```python
import torch

def _softmax(x, axis=-1):
    return torch.softmax(x, dim=axis)
def _gelu(x):
    return torch.nn.functional.gelu(x, approximate="tanh")
def _silu(x):
    return torch.nn.functional.silu(x)
def _sigmoid(x):
    return torch.sigmoid(x)
def _layernorm(x, axis=-1, eps=1e-5):
    m = x.mean(dim=axis, keepdim=True)
    v = x.var(dim=axis, keepdim=True, unbiased=False)
    return (x - m) / torch.sqrt(v + eps)
def _scatter_add(tgt, idx, src, axis=0):
    return tgt.clone().index_add_(axis, idx, src)
def _segment_sum(src, seg, n):
    out = torch.zeros((n,) + src.shape[1:], dtype=src.dtype)
    return out.index_add_(0, seg, src)
def _pad(x, pw):
    flat = tuple(v for pair in reversed(pw) for v in pair)
    return torch.nn.functional.pad(x, flat)

kernel_name = 'gated_mix__spectral_fnet__moe_arch_mod__prompt'

def setup_inputs():

    _w = (lambda a: (lambda t: t.to(torch.bfloat16) if t.is_floating_point() else t)(torch.as_tensor(a)))
    def _A_setup():
        B, S, D = 1, 2048, 512
        ns = torch.arange(S)[:, None] * torch.arange(S)[None, :]
        nd = torch.arange(D)[:, None] * torch.arange(D)[None, :]
        Ws_re = torch.cos(-2.0 * torch.pi * ns / S).to(float)
        Ws_im = torch.sin(-2.0 * torch.pi * ns / S).to(float)
        Wd_re = torch.cos(-2.0 * torch.pi * nd / D).to(float)
        Wd_im = torch.sin(-2.0 * torch.pi * nd / D).to(float)
        return {
            "x": _w((lambda *s: torch.randn(*s, dtype=torch.bfloat16) * 0.05)(B, S, D)),
            "dft_seq_re": _w(Ws_re),
            "dft_seq_im": _w(Ws_im),
            "dft_hid_re": _w(Wd_re),
            "dft_hid_im": _w(Wd_im),
        }
    _A_in = _A_setup()

    def _B_setup():
        B, S, D, F, C = 1, 2048, 512, 1792, 1
        return {
            "x": _w((lambda *s: torch.randn(*s, dtype=torch.bfloat16) * 0.05)(B, S, D)),
            "w_r": _w((lambda *s: torch.randn(*s, dtype=torch.bfloat16) * 1.6)(D)),
            "w_gate": _w((lambda *s: torch.randn(*s, dtype=torch.bfloat16) * 1.6)(D, F)),
            "w_up": _w((lambda *s: torch.randn(*s, dtype=torch.bfloat16) * 1.6)(D, F)),
            "w_down": _w((lambda *s: torch.randn(*s, dtype=torch.bfloat16) * 1.6)(F, D)),
        }
    _B_in = _B_setup()

    return {
        "A_x": _A_in["x"],
        "A_dft_seq_re": _A_in["dft_seq_re"],
        "A_dft_seq_im": _A_in["dft_seq_im"],
        "A_dft_hid_re": _A_in["dft_hid_re"],
        "A_dft_hid_im": _A_in["dft_hid_im"],
        "B_x": _B_in["x"],
        "B_w_r": _B_in["w_r"],
        "B_w_gate": _B_in["w_gate"],
        "B_w_up": _B_in["w_up"],
        "B_w_down": _B_in["w_down"],
        "gate_w": _w((lambda *s: torch.randn(*s, dtype=torch.bfloat16) * 0.05)(512) * 16.0),
    }

def reference(A_x, A_dft_seq_re, A_dft_seq_im, A_dft_hid_re, A_dft_hid_im, B_x, B_w_r, B_w_gate, B_w_up, B_w_down, gate_w):
    def _A_ref(x, dft_seq_re, dft_seq_im, dft_hid_re, dft_hid_im):
        a = torch.einsum("bsd,ed->bse", x, dft_hid_re)
        b = torch.einsum("bsd,ed->bse", x, dft_hid_im)
        y = torch.einsum("ts,bse->bte", dft_seq_re, a) - torch.einsum("ts,bse->bte", dft_seq_im, b)
        return y

    def _B_ref(x, w_r, w_gate, w_up, w_down):
        B, S, D = x.shape
        C = 1
        r = x @ w_r
        idx = torch.argsort(-r, axis=-1)[:, :C]
        idx_e = (lambda x, n, axis: torch.repeat_interleave(x, n, dim=axis))(idx.reshape(B, C, 1), D, axis=2)
        x_sel = (lambda x, i, axis: torch.take_along_dim(x, i, dim=axis))(x, idx_e, axis=1)
        g = _silu(x_sel @ w_gate)
        u = x_sel @ w_up
        y = (g * u) @ w_down
        r_sel = _sigmoid((lambda x, i, axis: torch.take_along_dim(x, i, dim=axis))(r, idx, axis=1))
        y = y * r_sel.reshape(B, C, 1)
        b_off = (torch.arange(B) * S).reshape(B, 1)
        flat_idx = (idx + b_off).reshape(B * C)
        zero = (x * 0.0).reshape(B * S, D)
        upd = _scatter_add(zero, flat_idx, y.reshape(B * C, D), axis=0)
        return x + upd.reshape(B, S, D)

    x = A_x
    g = _sigmoid((x * gate_w).sum(-1, keepdims=True))
    a = _A_ref(x, A_dft_seq_re, A_dft_seq_im, A_dft_hid_re, A_dft_hid_im)
    b = _B_ref(x, B_w_r, B_w_gate, B_w_up, B_w_down)
    return g * a + (1 - g) * b
```

```python
NAME = "gated_mix__spectral_fnet__moe_arch_mod__prompt"
KA_X, KA_CR, KA_CI, KA_DR, KA_DI, KA_BX, KA_WR, KA_WG, KA_WU, KA_WD, KA_GW, KA_OUT, KA_DBG, KA_WS = [8 * i for i in range(14)]

HEADER = open(__file__.rsplit("/", 1)[0] + "/header.txt").read()


class Asm:
    def __init__(self):
        self.lines = []
        self.uid = 0

    def __call__(self, s):
        for l in s.strip("\n").split("\n"):
            l = l.strip()
            if l:
                self.lines.append("    " + l)

    def label(self, l):
        self.lines.append(l + ":")

    def L(self, p):
        self.uid += 1
        return f"L_{p}{self.uid}"

    def raw(self, s):
        self.lines.append(s)

    def nop(self, n):
        while n > 0:
            k = min(n, 16)
            self("s_nop %d" % (k - 1))
            n -= k

    def srd(self, d, base, nbytes):
        self(f"s_mov_b32 s{d}, s{base}")
        self(f"s_mov_b32 s{d+1}, s{base+1}")
        self(f"s_mov_b32 s{d+2}, {nbytes:#x}")
        self(f"s_mov_b32 s{d+3}, 0x20000")

    def text(self):
        return "\n".join(self.lines) + "\n"


def kernel_head(a, name):
    a.raw(f".globl {name}")
    a.raw(".p2align 8")
    a.raw(f".type {name},@function")
    a.label(name)


def kernel_desc(name, vgpr, sgpr, accum=None):
    accum = accum or ((vgpr + 3) // 4) * 4
    return f""".p2align 6
.amdhsa_kernel {name}
  .amdhsa_next_free_vgpr {vgpr}
  .amdhsa_next_free_sgpr {sgpr}
  .amdhsa_accum_offset {accum}
  .amdhsa_group_segment_fixed_size 0
  .amdhsa_kernarg_size 112
  .amdhsa_user_sgpr_count 2
  .amdhsa_user_sgpr_kernarg_segment_ptr 1
  .amdhsa_system_sgpr_workgroup_id_x 1
.end_amdhsa_kernel
"""


def R4(r):
    return f"s[{r}:{r+3}]"


def V(r, n=1):
    return f"v{r}" if n == 1 else f"v[{r}:{r+n-1}]"


def finish(a, name, vgpr, sgpr, grid, block, lds, path):
    out = HEADER + f"; @launch grid=({grid},1,1) block=({block},1,1) lds={lds}\n" + '.amdgcn_target "amdgcn-amd-amdhsa--gfx950"\n.text\n'
    out += a.text() + '.section .rodata,"a"\n' + kernel_desc(name, vgpr, sgpr)
    open(path, "w").write(out)
```

```python
import argparse
from lib import *

NA, NF, NZ = 128, 56, 8
NWG = NA + NF + NZ
WS_E = 0
WS_ALIVE = 4096
WS_KEYF = 64 << 10
WS_KEYZ = 128 << 10
WS_FLAG = 192 << 10
WS_PART = 256 << 10
PARTC = 8 * 56 * 512
WS_INT = 2 << 20
CS = 32768 + 256
WS_STAMP = 8 << 20
WS_BYTES = 16 << 20
L_TILE = 0
L_U2 = 16384
UB = 17 * 64
L_MISC = L_U2 + 16 * UB
L_KMAX = L_MISC
L_GKEY = L_MISC + 4
L_OMG = L_MISC + 8
L_DUMP = L_MISC + 64
L_STG = L_DUMP + 4 * UB + 256
L_STGX = L_STG + 2048
L_W = 0
L_WD = 65536
L_RED = 98304
L_FKEY = L_RED + 2048
LDS_BYTES = L_FKEY + 64
MF = "v_mfma_f32_16x16x32_bf16"
LOG2E = 0x3fb8aa3b
DPPM = "row_mask:0xf bank_mask:0xf"


class S:
    WAVE = 3
    PX = 4
    T0, T1, T2, T3, T4, T5 = 6, 7, 8, 9, 10, 11
    EX = 12
    EY = 14
    PWR, PWG, PWU, PWD, PGW, POUT, PDBG, PWS = 16, 18, 20, 22, 24, 26, 28, 30
    RX, RWS, ROUT, RT0, RT1, RT2 = 32, 36, 40, 44, 48, 52
    TAG, E, SPIN, ISZ = 56, 57, 58, 59
    T1C, HH, TD, TM = 60, 61, 62, 63
    S2, CB, CLS, IDX = 64, 65, 66, 67
    CPD, CQD, CPM, CQM = 68, 69, 70, 71
    OMD, OMM, GKEY, WSEL = 72, 73, 74, 75
    WHICH, Z, PO, POL = 76, 77, 78, 79
    HIM = 14
    FJ = 60
    XS = 64
    ST = 96


def gen(a, o):
    name = NAME + "_kernel"
    kernel_head(a, name)

    def stamp(i):
        if o.stamps:
            a(f"s_memrealtime s[{S.ST}:{S.ST+1}]")
            a("s_waitcnt lgkmcnt(0)")
            a(f"v_writelane_b32 v254, s{S.ST}, {i}")

    def endprog():
        if o.stamps:
            a("s_mov_b64 exec, 0xffff")
            a(f"s_lshl3_add_u32 s{S.T0}, s2, s{S.WAVE}")
            a(f"s_lshl_b32 s{S.T0}, s{S.T0}, 7")
            a(f"s_add_u32 s{S.T0}, s{S.T0}, {WS_STAMP}")
            a("v_lshlrev_b32 v253, 3, v0")
            a("v_mov_b32 v255, 0")
            a(f"buffer_store_dwordx2 v[254:255], v253, {R4(S.RWS)}, s{S.T0} offen")
        a("s_endpgm")

    def poll_granules(vaddr, vd, sleep=0):
        l = a.L("poll")
        if sleep:
            a(f"s_branch {l}_1")
        a.label(l)
        if sleep:
            a(f"s_sleep {sleep}")
            a.label(f"{l}_1")
        a(f"buffer_load_dwordx4 {V(vd,4)}, v{vaddr}, {R4(S.RWS)}, s{S.PO} offen sc1")
        a(f"s_add_u32 s{S.PO}, s{S.PO}, 1024")
        a(f"s_min_u32 s{S.PO}, s{S.PO}, s{S.POL}")
        a("s_waitcnt vmcnt(0)")
        a(f"v_cmp_ne_u32 vcc, s{S.TAG}, v{vd+1}")
        a(f"v_cmp_ne_u32 s[{S.EX}:{S.EX+1}], s{S.TAG}, v{vd+3}")
        a(f"s_or_b64 vcc, vcc, s[{S.EX}:{S.EX+1}]")
        a(f"s_cbranch_vccz {l}_ok")
        a(f"s_sub_u32 s{S.SPIN}, s{S.SPIN}, 1")
        a(f"s_cbranch_scc0 {l}")
        a(f"s_mov_b32 s{S.SPIN}, 0")
        a.label(f"{l}_ok")

    def wave_max_key(vd):
        a(f"v_max_u32 v{vd}, v{vd}, v{vd+2}")
        a.nop(2)
        for r in (8, 4, 2, 1):
            a(f"v_max_u32_dpp v{vd}, v{vd}, v{vd} row_ror:{r} {DPPM}")
            if r != 1:
                a.nop(2)
        a(f"v_mov_b32 v{vd+1}, v{vd}")
        a.nop(2)
        a(f"v_permlane16_swap_b32 v{vd}, v{vd+1}")
        a(f"v_max_u32 v{vd}, v{vd}, v{vd+1}")
        a(f"v_mov_b32 v{vd+1}, v{vd}")
        a.nop(2)
        a(f"v_permlane32_swap_b32 v{vd}, v{vd+1}")
        a(f"v_max_u32 v{vd}, v{vd}, v{vd+1}")

    def sigmoid(d, s):
        a(f"v_mul_f32 v{d}, {LOG2E | 0x80000000:#x}, v{s}")
        a(f"v_exp_f32 v{d}, v{d}")
        a.nop(1)
        a(f"v_add_f32 v{d}, 1.0, v{d}")
        a(f"v_rcp_f32 v{d}, v{d}")
        a.nop(1)

    def rnd(d, s):
        a(f"v_cvt_pk_bf16_f32 v{d}, v{s}, v{s}")
        a(f"v_and_b32 v{d}, s{S.HIM}, v{d}")

    a(f"s_cmp_ge_u32 s2, {NWG}")
    a("s_cbranch_scc1 L_end")
    a(f"s_load_dwordx2 s[{S.PX}:{S.PX+1}], s[0:1], {KA_X}")
    a(f"s_load_dwordx16 s[16:31], s[0:1], {KA_WR}")
    if o.stamps:
        a("v_mov_b32 v254, 0")
    stamp(0)
    a("v_lshrrev_b32 v1, 6, v0")
    a("v_and_b32 v0, 63, v0")
    a(f"v_readfirstlane_b32 s{S.WAVE}, v1")
    a("v_and_b32 v1, 15, v0")
    a("v_lshrrev_b32 v2, 4, v0")
    a(f"s_mov_b32 s{S.SPIN}, 200000")
    a(f"s_mov_b32 s{S.HIM}, 0xffff0000")
    a(f"s_mov_b32 s{S.RX+2}, 0x200000")
    a(f"s_mov_b32 s{S.RX+3}, 0x20000")
    a(f"s_mov_b32 s{S.RWS+2}, {WS_BYTES:#x}")
    a(f"s_mov_b32 s{S.RWS+3}, 0x20000")
    a(f"s_and_b32 s{S.T0}, s2, 7")
    a(f"s_cmp_ge_u32 s2, {NA}")
    a("s_cbranch_scc1 L_notA")

    VROW, VTL, VG16 = 3, 4, 5
    XR, WR, GW = 16, 24, 28
    CM, AOP, ACC = 32, 96, 112
    M1, GA, M2, XG = 128, 176, 180, 196
    a(f"s_mov_b32 s{S.ISZ}, 0")
    a(f"s_lshr_b32 s{S.T1}, s2, 3")
    a(f"s_add_u32 s{S.T2}, s{S.T0}, 1")
    a(f"s_sub_u32 s{S.T3}, 16, s{S.T2}")
    a(f"s_and_b32 s{S.CB}, s{S.T1}, 7")
    a(f"s_and_b32 s{S.T4}, s{S.T2}, 7")
    a(f"s_bitcmp1_b32 s{S.T1}, 3")
    a(f"s_cselect_b32 s{S.S2}, s{S.T3}, s{S.T4}")
    a(f"s_and_b32 s{S.HH}, s{S.T1}, 1")
    a(f"s_bitcmp1_b32 s{S.T1}, 1")
    a(f"s_cselect_b32 s{S.T4}, s{S.T3}, s{S.T2}")
    a(f"s_lshr_b32 s{S.T5}, s{S.T1}, 2")
    a(f"s_lshl4_add_u32 s{S.T1C}, s{S.T5}, s{S.T4}")
    a(f"s_lshr_b32 s{S.T5}, s{S.T1}, 1")
    a(f"s_lshl3_add_u32 s{S.T5}, s{S.T5}, 8")
    a(f"s_cmp_eq_u32 s{S.T0}, 7")
    a(f"s_cselect_b32 s{S.T1C}, s{S.T5}, s{S.T1C}")
    a(f"s_cmp_eq_u32 s2, 127")
    a(f"s_cselect_b32 s{S.T1C}, 0, s{S.T1C}")
    a(f"s_cselect_b32 s{S.HH}, 0, s{S.HH}")
    a("v_and_b32 v6, 7, v0")
    a("v_and_b32 v7, 1, v2")
    a("v_xor_b32 v6, v6, v7")
    a("v_lshrrev_b32 v7, 3, v0")
    a("v_lshlrev_b32 v7, 14, v7")
    a(f"v_lshl_add_u32 v{VTL}, v6, 4, v7")

    def rows_setup():
        a(f"s_lshl3_add_u32 s{S.T5}, s{S.HH}, s{S.WAVE}")
        a(f"s_lshl_b32 s{S.T5}, s{S.T5}, 7")
        a(f"s_add_u32 s{S.TD}, s{S.T5}, s{S.T1C}")
        a(f"s_sub_u32 s{S.TM}, 2048, s{S.TD}")
        a(f"s_cmp_eq_u32 s{S.TD}, 0")
        a(f"s_cselect_b32 s{S.TM}, 1024, s{S.TM}")
        a(f"s_and_b32 s{S.CLS}, s{S.T1C}, 63")
        a(f"s_lshl_b32 s{S.T0}, s{S.TD}, 10")
        a(f"s_lshl_b32 s{S.T1}, s{S.TM}, 10")

    def vrow_setup():
        a("v_and_b32 v6, 1, v2")
        a("v_lshlrev_b32 v6, 5, v6")
        a("v_lshl_add_u32 v6, v1, 6, v6")
        a("v_lshrrev_b32 v7, 1, v2")
        a(f"v_lshl_add_u32 v{VROW}, v7, 4, v6")
        a(f"v_lshlrev_b32 v{VG16}, 4, v0")

    def ptr_setup():
        a("s_waitcnt lgkmcnt(0)")
        a(f"s_mov_b32 s{S.RX}, s{S.PX}")
        a(f"s_mov_b32 s{S.RX+1}, s{S.PX+1}")

    def tag_load():
        a(f"s_load_dword s{S.E}, s[{S.PWS}:{S.PWS+1}], {WS_E}")
        a(f"s_mov_b32 s{S.RWS}, s{S.PWS}")
        a(f"s_mov_b32 s{S.RWS+1}, s{S.PWS+1}")

    def tag_make():
        a(f"s_mul_i32 s{S.TAG}, s{S.E}, 0x9E3779B1")
        a(f"s_add_u32 s{S.TAG}, s{S.TAG}, 0x7F4A7C15")

    def rows_load():
        a(f"buffer_load_dwordx4 {V(XR,4)}, v{VROW}, {R4(S.RX)}, s{S.T0} offen")
        a(f"buffer_load_dwordx4 {V(XR+4,4)}, v{VROW}, {R4(S.RX)}, s{S.T1} offen")
        a(f"global_load_dwordx4 {V(WR,4)}, v{VROW}, s[{S.PWR}:{S.PWR+1}]")
        a(f"global_load_dwordx4 {V(GW,4)}, v{VROW}, s[{S.PGW}:{S.PGW+1}]")

    rows_setup()
    vrow_setup()
    a(f"s_lshl_b32 s{S.T2}, s{S.S2}, 10")
    a(f"s_lshl_b32 s{S.T3}, s{S.CB}, 7")
    a(f"s_add_u32 s{S.T2}, s{S.T2}, s{S.T3}")
    a(f"s_lshl_b32 s{S.T3}, s{S.WAVE}, 18")
    a(f"s_add_u32 s{S.T2}, s{S.T2}, s{S.T3}")
    a(f"s_add_u32 s{S.T3}, s{S.T2}, 131072")
    a(f"s_lshl_b32 s{S.T4}, s{S.WAVE}, 11")
    a(f"s_mov_b32 m0, s{S.T4}")
    ptr_setup()
    rows_load()
    a(f"buffer_load_dwordx4 v{VTL}, {R4(S.RX)}, s{S.T2} offen lds")
    a(f"s_add_u32 m0, s{S.T4}, 1024")
    tag_load()
    a(f"buffer_load_dwordx4 v{VTL}, {R4(S.RX)}, s{S.T3} offen lds")
    stamp(1)
    a("v_mov_b32 v6, 0")
    a(f"v_mov_b32 v7, {L_KMAX}")
    a("ds_write_b32 v7, v6")
    a("s_waitcnt lgkmcnt(0)")
    a("s_barrier")
    tag_make()
    a(f"s_lshr_b32 s{S.T0}, s{S.WAVE}, 2")
    a(f"v_lshl_add_u32 v6, s{S.T0}, 4, v1")
    a("v_cvt_f32_u32 v6, v6")
    a("v_mul_f32 v6, 0x3c000000, v6")
    a("v_lshlrev_b32 v7, 3, v2")
    a("v_cvt_f32_u32 v7, v7")
    a("v_mul_f32 v7, v7, v6")
    a("v_lshlrev_b32 v8, 31, v1")
    a("v_lshrrev_b32 v9, 16, v8")
    a("v_or_b32 v8, v8, v9")
    Cc, Ss = AOP, AOP + 8
    for kp in range(2):
        if kp:
            a("v_fmac_f32 v7, 0x42000000, v6")
        for j in range(8):
            if j == 0:
                a(f"v_cos_f32 v{Cc}, v7")
                a(f"v_sin_f32 v{Ss}, v7")
                a("v_add_f32 v9, v7, v6")
            else:
                a(f"v_cos_f32 v{Cc+j}, v9")
                a(f"v_sin_f32 v{Ss+j}, v9")
                if j < 7:
                    a("v_add_f32 v9, v9, v6")
        a.nop(1)
        for p in range(4):
            j = 2 * p
            a(f"v_cvt_pk_bf16_f32 v{CM+0*16+kp*4+p}, v{Cc+j}, v{Cc+j+1}")
            a(f"v_cvt_pk_bf16_f32 v{CM+1*16+kp*4+p}, -v{Ss+j}, -v{Ss+j+1}")
            if p % 2 == 0:
                a(f"v_cvt_pk_bf16_f32 v{CM+2*16+kp*4+p}, v{Cc+j}, -v{Ss+j+1}")
                a(f"v_cvt_pk_bf16_f32 v{CM+3*16+kp*4+p}, -v{Ss+j}, -v{Cc+j+1}")
            else:
                a(f"v_cvt_pk_bf16_f32 v{CM+2*16+kp*4+p}, -v{Cc+j}, v{Ss+j+1}")
                a(f"v_cvt_pk_bf16_f32 v{CM+3*16+kp*4+p}, v{Ss+j}, v{Cc+j+1}")
    a("v_cmp_eq_f32 vcc, 0, v6")
    a("v_mov_b32 v9, 0xbf803f80")
    a.nop(1)
    for r in range(8):
        a(f"v_cndmask_b32 v{CM+16+r}, v{CM+16+r}, v9, vcc")
    for t in range(4):
        for r in range(8):
            a(f"v_xor_b32 v{CM+t*16+8+r}, v{CM+t*16+r}, v8")
    VTR, VST = 10, 11
    a("v_bfe_u32 v6, v0, 2, 2")
    a("v_lshl_add_u32 v7, v2, 3, v6")
    a("v_lshlrev_b32 v7, 7, v7")
    a("v_and_b32 v9, 3, v0")
    a(f"s_bfe_u32 s{S.T1}, s{S.WAVE}, 0x10001")
    a(f"v_lshl_add_u32 v9, v9, 1, s{S.T1}")
    a("v_lshrrev_b32 v6, 1, v6")
    a("v_xor_b32 v9, v9, v6")
    a(f"s_and_b32 s{S.T1}, s{S.WAVE}, 1")
    a(f"s_lshl_b32 s{S.T1}, s{S.T1}, 3")
    a(f"v_lshl_add_u32 v9, v9, 4, s{S.T1}")
    a(f"v_add_u32 v{VTR}, v9, v7")
    a(f"v_mul_u32_u24 v{VST}, {CS}, v1")
    a(f"v_lshl_add_u32 v{VST}, v2, 4, v{VST}")
    a(f"s_mul_i32 s{S.T0}, s{S.T0}, {16*CS}")
    a(f"s_lshl3_add_u32 s{S.T1}, s{S.S2}, s{S.CB}")
    a(f"s_lshl_b32 s{S.T1}, s{S.T1}, 8")
    a(f"s_add_u32 s{S.T0}, s{S.T0}, s{S.T1}")
    a(f"s_and_b32 s{S.T1}, s{S.WAVE}, 3")
    a(f"s_lshl_b32 s{S.T1}, s{S.T1}, 6")
    a(f"s_add_u32 s{S.T0}, s{S.T0}, s{S.T1}")
    a(f"s_add_u32 s{S.T2}, s{S.T0}, {WS_INT}")
    a(f"s_add_u32 s{S.T3}, s{S.T2}, {32*CS}")
    a(f"s_lshl_b32 s{S.T4}, s2, 3")
    stamp(2)

    VT = 12

    def router(nwait):
        a("v_cmp_gt_u32 vcc, 32, v0")
        a(f"v_mov_b32 v6, s{S.TD}")
        a(f"v_mov_b32 v7, s{S.TM}")
        a(f"s_waitcnt vmcnt({nwait})")
        a("v_cndmask_b32 v6, v7, v6, vcc")
        for i in range(4):
            c = "0" if i == 0 else None
            for (d, x, w) in ((12, XR, WR), (13, XR + 4, WR), (14, XR, GW), (15, XR + 4, GW)):
                if i == 0:
                    a(f"v_dot2_f32_bf16 v{d}, v{x}, v{w}, 0")
                else:
                    a(f"v_dot2c_f32_bf16 v{d}, v{x+i}, v{w+i}")
            if i == 0:
                a("v_sub_u32 v6, 0xffff, v6")
                a.nop(2)
        a.nop(3)
        a("v_permlane32_swap_b32 v12, v13")
        a("v_permlane32_swap_b32 v14, v15")
        a("v_add_f32 v12, v12, v13")
        a("v_add_f32 v14, v14, v15")
        a.nop(2)
        a("v_permlane16_swap_b32 v12, v14")
        a("v_add_f32 v12, v12, v14")
        for r in (8, 4, 2, 1):
            a.nop(2)
            a(f"v_add_f32_dpp v12, v12, v12 row_ror:{r} {DPPM}")
        rnd(VT, VT)

    def keymax():
        a("v_ashrrev_i32 v7, 31, v12")
        a("v_or_b32 v7, 0x80000000, v7")
        a("v_xor_b32 v7, v7, v12")
        a(f"v_and_or_b32 v7, v7, s{S.HIM}, v6")
        a(f"v_mov_b32 v9, {L_KMAX}")
        a("s_mov_b32 exec_lo, 1")
        a("s_mov_b32 exec_hi, 1")
        a("ds_max_u32 v9, v7")
        a("s_mov_b64 exec, -1")

    router(2)
    keymax()
    a("s_waitcnt vmcnt(0) lgkmcnt(0)")
    a("s_barrier")
    stamp(3)
    a(f"s_cmp_lg_u32 s{S.WAVE}, 0")
    a("s_cbranch_scc1 L_nokey")
    a("ds_read_b32 v14, v9")
    a(f"v_mov_b32 v15, s{S.TAG}")
    a("v_lshlrev_b32 v13, 10, v0")
    a(f"s_add_u32 s{S.T0}, s{S.T4}, {WS_KEYF}")
    a(f"s_add_u32 s{S.T1}, s{S.T4}, {WS_KEYZ}")
    a("s_waitcnt lgkmcnt(0)")
    a(f"buffer_store_dwordx2 v[14:15], v13, {R4(S.RWS)}, s{S.T0} offen sc1")
    a(f"buffer_store_dwordx2 v[14:15], v13, {R4(S.RWS)}, s{S.T1} offen sc1")
    a.label("L_nokey")
    for k in range(4):
        for h in range(2):
            a(f"ds_read_b64_tr_b16 {V(AOP+4*k+2*h,2)}, v{VTR} offset:{L_TILE + k*4096 + h*512}")
    for k in range(4):
        a(f"s_waitcnt lgkmcnt({6-2*k})")
        for t in range(4):
            c = "0" if k == 0 else V(ACC + 4 * t, 4)
            a(f"{MF} {V(ACC+4*t,4)}, {V(AOP+4*k,4)}, {V(CM+16*t+4*k,4)}, {c}")
    a.nop(6)
    for i in range(4):
        a(f"v_cvt_pk_bf16_f32 v{AOP+i}, v{ACC+i}, v{ACC+4+i}")
    a(f"buffer_store_dwordx4 {V(AOP,4)}, v{VST}, {R4(S.RWS)}, s{S.T2} offen sc1")
    for i in range(4):
        a(f"v_cvt_pk_bf16_f32 v{AOP+4+i}, v{ACC+8+i}, v{ACC+12+i}")
    a(f"buffer_store_dwordx4 {V(AOP+4,4)}, v{VST}, {R4(S.RWS)}, s{S.T3} offen sc1")
    stamp(4)

    def gates():
        sigmoid(13, VT)
        rnd(13, 13)
        a("v_sub_f32 v14, 1.0, v13")
        rnd(14, 14)
        a.nop(1)
        a(f"v_readlane_b32 s{S.CPD}, v13, 16")
        a(f"v_readlane_b32 s{S.CQM}, v13, 48")
        a(f"v_readlane_b32 s{S.OMD}, v14, 16")
        a(f"v_readlane_b32 s{S.OMM}, v14, 48")
        a(f"s_xor_b32 s{S.CQD}, s{S.CPD}, 0x80000000")
        a(f"s_cmp_eq_u32 s{S.TD}, 0")
        a(f"s_cselect_b32 s{S.CQD}, 0, s{S.CQD}")
        a(f"s_cselect_b32 s{S.CPM}, 0, s{S.CQM}")
        for r in range(2):
            om = S.OMD if r == 0 else S.OMM
            for i in range(4):
                a(f"v_lshlrev_b32 v{XG+8*r+2*i}, 16, v{XR+4*r+i}")
                a(f"v_and_b32 v{XG+8*r+2*i+1}, s{S.HIM}, v{XR+4*r+i}")
            for i in range(8):
                a(f"v_mul_f32 v{XG+8*r+i}, s{om}, v{XG+8*r+i}")

    def const_d2():
        a("v_lshlrev_b32 v6, 2, v2")
        a("v_cvt_f32_u32 v6, v6")
        a("v_cvt_f32_u32 v7, v1")
        a("v_mul_f32 v7, 0x3d800000, v7")
        for hf in range(2):
            if hf:
                a("v_add_f32 v7, 0x3d800000, v7")
            a("v_mul_f32 v9, v6, v7")
            for jj in range(4):
                a(f"v_cos_f32 v{Cc+jj}, v9")
                a(f"v_sin_f32 v{Ss+jj}, v9")
                if jj < 3:
                    a("v_add_f32 v9, v9, v7")
            a.nop(1)
            for jj in range(4):
                if hf == 0:
                    a(f"v_cvt_pk_bf16_f32 v{M2+jj}, v{Cc+jj}, v{Ss+jj}")
                    a(f"v_cvt_pk_bf16_f32 v{M2+4+jj}, -v{Ss+jj}, v{Cc+jj}")
                else:
                    a(f"v_cvt_pk_bf16_f32 v{M2+8+jj}, v{Cc+jj}, -v{Ss+jj}")
                    a(f"v_cvt_pk_bf16_f32 v{M2+12+jj}, -v{Ss+jj}, -v{Cc+jj}")

    def const_d2_fix():
        l = a.L("nosp")
        a(f"s_cmp_lg_u32 s{S.TD}, 0")
        a(f"s_cbranch_scc1 {l}")
        for jj in range(4):
            a(f"v_mov_b32 v{M2+4+jj}, v{M2+jj}")
            a(f"v_mov_b32 v{M2+12+jj}, v{M2+8+jj}")
        a.label(l)

    def const_d1():
        a("v_cvt_f32_u32 v6, v1")
        a("v_mul_f32 v6, 0x3b000000, v6")
        a(f"s_lshl_b32 s{S.T0}, s{S.WAVE}, 2")
        a(f"v_lshl_add_u32 v7, v2, 6, s{S.T0}")
        a("v_cvt_f32_u32 v7, v7")
        a("v_mul_f32 v7, v7, v6")
        a("v_mul_f32 v13, 0x41800000, v6")
        a("v_lshlrev_b32 v8, 31, v1")
        a("v_lshrrev_b32 v9, 16, v8")
        a("v_or_b32 v8, v8, v9")
        for ib in range(4):
            if ib:
                a("v_add_f32 v7, v7, v6")
            for j in range(4):
                src = "v7" if j == 0 else "v9"
                a(f"v_cos_f32 v{Cc+j}, {src}")
                a(f"v_sin_f32 v{Ss+j}, {src}")
                if j < 3:
                    a(f"v_add_f32 v9, {src}, v13")
            a.nop(1)
            b = M1 + 12 * ib
            for p in range(2):
                a(f"v_cvt_pk_bf16_f32 v{b+p}, v{Cc+2*p}, v{Cc+2*p+1}")
                a(f"v_cvt_pk_bf16_f32 v{b+4+p}, -v{Ss+2*p}, -v{Ss+2*p+1}")
            for p in range(2):
                a(f"v_xor_b32 v{b+2+p}, v{b+p}, v8")
                a(f"v_xor_b32 v{b+6+p}, v{b+4+p}, v8")
        a("v_lshrrev_b32 v6, 1, v1")
        a(f"v_add_u32 v7, s{S.T0}, v6")
        a("v_and_b32 v9, 1, v1")
        a("v_lshl_add_u32 v7, v9, 3, v7")
        a("v_cvt_f32_u32 v7, v7")
        a("v_mul_f32 v7, 0x3d000000, v7")
        a("v_cos_f32 v7, v7")
        a.nop(1)
        a("v_cvt_pk_bf16_f32 v7, v7, -v7")
        for ib in range(4):
            a(f"v_cmp_eq_u32 vcc, {ib}, v6")
            a.nop(2)
            for p in range(4):
                a(f"v_cndmask_b32 v{M1+12*ib+8+p}, 0, v7, vcc")

    def const_ga():
        a("v_lshrrev_b32 v6, 1, v1")
        a(f"s_lshl_b32 s{S.T0}, s{S.HH}, 10")
        a(f"s_add_u32 s{S.T0}, s{S.T0}, s{S.T1C}")
        a(f"v_lshl_add_u32 v6, v6, 7, s{S.T0}")
        a("v_and_b32 v7, 1, v1")
        a("v_lshlrev_b32 v9, 9, v7")
        a("v_lshl_or_b32 v13, v6, 1, v7")
        a("v_cmp_eq_u32 vcc, 1, v13")
        a("v_mov_b32 v13, 0x400")
        a.nop(1)
        a("v_cndmask_b32 v6, v6, v13, vcc")
        a("v_cndmask_b32 v9, v9, 0, vcc")
        a("v_lshlrev_b32 v7, 2, v2")
        a("v_mad_u32_u24 v9, v7, v6, v9")
        a("v_cvt_f32_u32 v9, v9")
        a("v_cvt_f32_u32 v6, v6")
        a("v_mul_f32 v9, 0x3a000000, v9")
        a("v_mul_f32 v6, 0x3a000000, v6")
        for jj in range(4):
            a(f"v_cos_f32 v{Cc+jj}, v9")
            a(f"v_sin_f32 v{Ss+jj}, v9")
            if jj < 3:
                a("v_add_f32 v9, v9, v6")
        l0, l64, ld = a.L("g0"), a.L("g64"), a.L("gd")
        a(f"s_cmp_eq_u32 s{S.T1C}, 0")
        a(f"s_cbranch_scc1 {l0}")
        a(f"s_cmp_eq_u32 s{S.T1C}, 64")
        a(f"s_cbranch_scc1 {l64}")
        for jj in range(4):
            a(f"v_cvt_pk_bf16_f32 v{GA+jj}, v{Cc+jj}, v{Ss+jj}")
        a(f"s_branch {ld}")
        a.label(l0)
        for jj in range(4):
            a(f"v_cvt_pk_bf16_f32 v{GA+jj}, v{Cc+jj}, 0")
        a(f"s_branch {ld}")
        a.label(l64)
        for jj in range(4):
            a(f"v_cvt_pk_bf16_f32 v{GA+jj}, 0, v{Cc+jj}")
        a.label(ld)

    VLD, VUW, VUX, VUR0, VUR1 = 212, 213, 214, 215, 216

    def addr_p2():
        a("v_lshrrev_b32 v6, 2, v1")
        a("v_lshlrev_b32 v6, 8, v6")
        a("v_lshl_add_u32 v6, v2, 13, v6")
        a("v_and_b32 v7, 3, v1")
        a(f"v_lshl_add_u32 v{VLD}, v7, 4, v6")
        a(f"v_mul_u32_u24 v6, {4*UB}, v2")
        a("v_bfe_u32 v7, v1, 1, 2")
        a(f"s_and_b32 s{S.T0}, s{S.WAVE}, 3")
        a(f"v_xor_b32 v7, s{S.T0}, v7")
        a("v_lshlrev_b32 v7, 4, v7")
        a("v_lshl_add_u32 v7, v1, 6, v7")
        a(f"v_add_u32 v{VUW}, v6, v7")
        a(f"s_lshl_b32 s{S.T1}, s{S.T0}, 4")
        a(f"s_add_u32 s{S.T1}, s{S.T1}, 1024")
        a(f"v_lshl_add_u32 v7, v1, 1, s{S.T1}")
        a("v_add_u32 v7, v7, v6")
        a("v_cmp_gt_u32 vcc, 8, v1")
        a(f"v_mov_b32 v9, {L_DUMP - L_U2}")
        a("v_lshl_add_u32 v9, v0, 1, v9")
        a(f"v_cndmask_b32 v{VUX}, v9, v7, vcc")
        a(f"s_mul_i32 s{S.T1}, s{S.WAVE}, {2*UB}")
        a("v_bfe_u32 v7, v1, 1, 2")
        a("v_xor_b32 v7, v7, v2")
        a("v_lshlrev_b32 v7, 4, v7")
        a("v_lshl_add_u32 v7, v1, 6, v7")
        a(f"v_add_u32 v{VUR0}, s{S.T1}, v7")
        a("v_sub_u32 v6, 16, v1")
        a("v_bfe_u32 v7, v6, 1, 2")
        a("v_xor_b32 v7, v7, v2")
        a("v_lshlrev_b32 v7, 4, v7")
        a("v_lshl_add_u32 v7, v6, 6, v7")
        a(f"v_add_u32 v{VUR1}, s{S.T1}, v7")

    def flag_soff():
        a(f"s_and_b32 s{S.PO}, s2, 7")
        a(f"s_lshl_b32 s{S.PO}, s{S.PO}, 13")
        a(f"s_add_u32 s{S.PO}, s{S.PO}, {WS_FLAG}")
        a(f"s_add_u32 s{S.POL}, s{S.PO}, 7168")

    a(f"s_cmp_eq_u32 s{S.WAVE}, 4")
    a("s_cbranch_scc1 L_w4a")
    gates()
    a("s_waitcnt vmcnt(0)")
    a("s_barrier")
    a("s_branch L_consts")
    a.label("L_w4a")
    a(f"v_mov_b32 v9, {L_KMAX}")
    a("ds_read_b32 v14, v9")
    a(f"v_mov_b32 v15, s{S.TAG}")
    a("v_lshlrev_b32 v13, 10, v0")
    a(f"s_add_u32 s{S.T0}, s{S.T4}, {WS_FLAG}")
    a("s_waitcnt vmcnt(0) lgkmcnt(0)")
    a("s_barrier")
    a(f"buffer_store_dwordx2 v[14:15], v13, {R4(S.RWS)}, s{S.T0} offen sc1")
    a.nop(1)
    gates()
    a.label("L_consts")
    stamp(5)
    a.srd(S.ROUT, S.POUT, 0x200000)
    const_d2()
    addr_p2()
    a(f"s_cmp_ge_u32 s{S.WAVE}, 4")
    a("s_cbranch_scc1 L_zjoin")
    const_d1()
    a.label("L_zjoin")
    const_d2_fix()
    a(f"s_cmp_ge_u32 s{S.WAVE}, 4")
    a("s_cbranch_scc1 L_hi")
    const_ga()
    a(f"s_mul_i32 s{S.T0}, s{S.CLS}, {CS}")
    a(f"s_lshl_b32 s{S.T1}, s{S.WAVE}, 6")
    a(f"s_add_u32 s{S.T0}, s{S.T0}, s{S.T1}")
    a(f"s_add_u32 s{S.T0}, s{S.T0}, {WS_INT}")
    a(f"s_add_u32 s{S.T1}, s{S.T0}, 4096")
    stamp(6)
    a("s_barrier")
    stamp(7)
    LD, DA, OP1, D1A, X16 = 32, 64, 96, 32, 112
    for ah in range(2):
        for jj in range(4):
            so = S.T0 if jj < 2 else S.T1
            a(f"buffer_load_dwordx4 {V(LD+16*ah+4*jj,4)}, v{VLD}, {R4(S.RWS)}, s{so} offen offset:{(jj & 1)*2048 + ah*1024} sc1")
    for ah in range(2):
        a(f"s_waitcnt vmcnt({4-4*ah})")
        b = LD + 16 * ah
        for r in range(4):
            for c in range(r + 1, 4):
                a(f"v_swap_b32 v{b+4*r+c}, v{b+4*c+r}")
        a.nop(2)
        for ib in range(4):
            a(f"{MF} {V(DA+8*ib+4*ah,4)}, {V(b+4*ib,4)}, {V(GA,4)}, 0")
    stamp(8)
    a.nop(5)
    for ib in range(4):
        for p in range(4):
            a(f"v_cvt_pk_bf16_f32 v{OP1+4*ib+p}, v{DA+8*ib+2*p}, v{DA+8*ib+2*p+1}")
        if ib == 0:
            continue
        jb = ib - 1
        a(f"{MF} {V(D1A+8*jb,4)}, {V(OP1+4*jb,4)}, {V(M1+12*jb,4)}, 0")
        a(f"{MF} {V(D1A+8*jb+4,4)}, {V(OP1+4*jb,4)}, {V(M1+12*jb+4,4)}, 0")
        a(f"{MF} {V(X16,4)}, {V(OP1+4*jb,4)}, {V(M1+12*jb+8,4)}, {'0' if jb == 0 else V(X16,4)}")
    a.nop(1)
    a(f"{MF} {V(D1A+24,4)}, {V(OP1+12,4)}, {V(M1+36,4)}, 0")
    a(f"{MF} {V(D1A+28,4)}, {V(OP1+12,4)}, {V(M1+40,4)}, 0")
    a(f"{MF} {V(X16,4)}, {V(OP1+12,4)}, {V(M1+44,4)}, {V(X16,4)}")
    PK = 64
    for ib in range(4):
        for i in range(4):
            a(f"v_cvt_pk_bf16_f32 v{PK+4*i+ib}, v{D1A+8*ib+i}, v{D1A+8*ib+4+i}")
    for i in range(4):
        a(f"ds_write_b128 v{VUW}, {V(PK+4*i,4)} offset:{L_U2 + i*UB}")
    a(f"v_cvt_pk_bf16_f32 v{X16}, v{X16}, v{X16+1}")
    a(f"v_cvt_pk_bf16_f32 v{X16+2}, v{X16+2}, v{X16+3}")
    a(f"ds_write_b16 v{VUX}, v{X16} offset:{L_U2}")
    a(f"ds_write_b16_d16_hi v{VUX}, v{X16} offset:{L_U2+UB}")
    a(f"ds_write_b16 v{VUX}, v{X16+2} offset:{L_U2+2*UB}")
    a(f"ds_write_b16_d16_hi v{VUX}, v{X16+2} offset:{L_U2+3*UB}")
    a("s_branch L_d2")
    a.label("L_hi")
    a(f"s_cmp_lg_u32 s{S.WAVE}, 4")
    a("s_cbranch_scc1 L_hi2")
    flag_soff()
    stamp(6)
    poll_granules(VG16, 32)
    a("s_barrier")
    stamp(7)
    wave_max_key(32)
    a(f"v_mov_b32 v9, {L_GKEY}")
    a("s_mov_b64 exec, 1")
    a("ds_write_b32 v9, v32")
    a("s_mov_b64 exec, -1")
    a("s_branch L_d2")
    a.label("L_hi2")
    a("s_barrier")
    a.label("L_d2")
    a("s_waitcnt lgkmcnt(0)")
    a("s_barrier")
    stamp(9)
    UO, PQ = 32, 48
    a(f"ds_read_b128 {V(UO,4)}, v{VUR0} offset:{L_U2}")
    a(f"ds_read_b128 {V(UO+4,4)}, v{VUR1} offset:{L_U2}")
    a(f"ds_read_b128 {V(UO+8,4)}, v{VUR0} offset:{L_U2+UB}")
    a(f"ds_read_b128 {V(UO+12,4)}, v{VUR1} offset:{L_U2+UB}")
    a(f"v_mov_b32 v9, {L_GKEY}")
    a("ds_read_b32 v6, v9")
    for k, m in enumerate((0, 8, 4, 12)):
        a(f"s_waitcnt lgkmcnt({4-k})")
        a(f"{MF} {V(PQ+4*k,4)}, {V(UO+4*k,4)}, {V(M2+m,4)}, 0")
    a("s_waitcnt lgkmcnt(0)")
    a(f"v_readfirstlane_b32 s{S.GKEY}, v6")
    a(f"s_lshl_b32 s{S.T0}, s{S.TD}, 10")
    a(f"s_lshl_b32 s{S.T1}, s{S.TM}, 10")
    a(f"s_andn2_b32 s{S.IDX}, 0xffff, s{S.GKEY}")
    a.nop(1)
    for i in range(4):
        a(f"v_permlane16_swap_b32 v{PQ+i}, v{PQ+4+i}")
    for i in range(4):
        a(f"v_permlane16_swap_b32 v{PQ+8+i}, v{PQ+12+i}")
    a(f"s_cmp_lg_u32 s{S.ISZ}, 0")
    a("s_cbranch_scc1 L_zfin")
    for r, (cp, cq, so, tr) in enumerate(((S.CPD, S.CQD, S.T0, S.TD), (S.CPM, S.CQM, S.T1, S.TM))):
        for i in range(8):
            a(f"v_fmac_f32 v{XG+8*r+i}, s{cp}, v{PQ+i}")
        for i in range(8):
            a(f"v_fmac_f32 v{XG+8*r+i}, s{cq}, v{PQ+8+i}")
        for i in range(4):
            a(f"v_cvt_pk_bf16_f32 v{UO+4*r+i}, v{XG+8*r+2*i}, v{XG+8*r+2*i+1}")
        l = a.L("skip")
        a(f"s_cmp_eq_u32 s{tr}, s{S.IDX}")
        a(f"s_cbranch_scc1 {l}")
        a(f"buffer_store_dwordx4 {V(UO+4*r,4)}, v{VROW}, {R4(S.ROUT)}, s{so} offen{o.outpol}")
        a.label(l)
    stamp(10)
    if o.stamps:
        a("s_waitcnt vmcnt(0)")
        stamp(11)
    endprog()

    a.label("L_zfin")
    a(f"s_cmp_lg_u32 s{S.WAVE}, s{S.WSEL}")
    a("s_cbranch_scc1 L_zf1")
    a(f"s_cmp_lg_u32 s{S.WHICH}, 0")
    a(f"s_cselect_b32 s{S.CPD}, s{S.CPM}, s{S.CPD}")
    a(f"s_cselect_b32 s{S.CQD}, s{S.CQM}, s{S.CQD}")
    a(f"s_cselect_b32 s{S.OMD}, s{S.OMM}, s{S.OMD}")
    a(f"s_cselect_b64 vcc, -1, 0")
    for i in range(8):
        a(f"v_mul_f32 v{PQ+i}, s{S.CPD}, v{PQ+i}")
    for i in range(8):
        a(f"v_fmac_f32 v{PQ+i}, s{S.CQD}, v{PQ+8+i}")
    for i in range(4):
        a(f"v_cndmask_b32 v{XR+i}, v{XR+i}, v{XR+4+i}, vcc")
    a(f"v_lshlrev_b32 v6, 1, v{VROW}")
    a(f"ds_write_b128 v6, {V(PQ,4)} offset:{L_STG}")
    a(f"ds_write_b128 v6, {V(PQ+4,4)} offset:{L_STG+16}")
    a(f"ds_write_b128 v{VROW}, {V(XR,4)} offset:{L_STGX}")
    a(f"v_mov_b32 v7, s{S.OMD}")
    a(f"v_mov_b32 v9, {L_OMG}")
    a("ds_write_b32 v9, v7")
    a.label("L_zf1")
    a(f"s_lshl3_add_u32 s{S.T2}, s{S.Z}, s{S.WAVE}")
    a("v_and_b32 v6, 3, v0")
    a(f"s_lshl_b32 s{S.T3}, s{S.T2}, 4")
    a(f"v_lshl_add_u32 v10, v6, 2, s{S.T3}")
    a("v_lshlrev_b32 v11, 1, v10")
    a("v_lshrrev_b32 v7, 2, v0")
    a("v_lshlrev_b32 v7, 9, v7")
    a("v_lshl_add_u32 v13, v6, 4, v7")
    a(f"s_mul_i32 s{S.PO}, s{S.Z}, {56*512}")
    a(f"s_lshl_b32 s{S.T3}, s{S.WAVE}, 6")
    a(f"s_add_u32 s{S.PO}, s{S.PO}, s{S.T3}")
    a(f"s_add_u32 s{S.PO}, s{S.PO}, {WS_PART}")
    a(f"s_add_u32 s{S.POL}, s{S.PO}, {(o.pc-1)*PARTC}")
    a(f"s_and_b32 s{S.T0}, s{S.GKEY}, 0xffff0000")
    a(f"s_xor_b32 s{S.T1}, s{S.T0}, 0x80000000")
    a(f"s_xor_b32 s{S.T3}, s{S.T0}, 0xffff0000")
    a(f"s_bitcmp1_b32 s{S.T0}, 31")
    a(f"s_cselect_b32 s{S.T0}, s{S.T1}, s{S.T3}")
    a(f"v_mov_b32 v14, s{S.T0}")
    sigmoid(14, 14)
    rnd(14, 14)
    a("s_waitcnt lgkmcnt(0)")
    a("s_barrier")
    a(f"ds_read_b64 v[32:33], v11 offset:{L_STG}")
    a(f"ds_read_b32 v34, v10 offset:{L_STGX}")
    a(f"v_mov_b32 v9, {L_OMG}")
    a("ds_read_b32 v35, v9")
    a("v_mov_b32 v52, 0")
    a("v_mov_b32 v54, 0")
    a(f"v_mov_b32 v53, s{S.TAG}")
    a(f"v_mov_b32 v55, s{S.TAG}")
    stamp(10)
    a.label("L_zp")
    a(f"s_add_u32 s{S.T0}, s{S.PO}, 8192")
    a(f"s_add_u32 s{S.T1}, s{S.PO}, 16384")
    a(f"s_add_u32 s{S.T2}, s{S.PO}, 24576")
    a(f"buffer_load_dwordx4 v[40:43], v13, {R4(S.RWS)}, s{S.PO} offen sc1")
    a(f"buffer_load_dwordx4 v[44:47], v13, {R4(S.RWS)}, s{S.T0} offen sc1")
    a(f"buffer_load_dwordx4 v[48:51], v13, {R4(S.RWS)}, s{S.T1} offen sc1")
    a("s_mov_b32 exec_hi, 0")
    a(f"buffer_load_dwordx4 v[52:55], v13, {R4(S.RWS)}, s{S.T2} offen sc1")
    a("s_mov_b32 exec_hi, -1")
    a(f"s_add_u32 s{S.PO}, s{S.PO}, {PARTC}")
    a(f"s_min_u32 s{S.PO}, s{S.PO}, s{S.POL}")
    a("s_waitcnt vmcnt(0)")
    a(f"v_xor_b32 v36, s{S.TAG}, v41")
    a(f"v_xor_b32 v37, s{S.TAG}, v43")
    for r in (45, 47, 49, 51, 53, 55):
        d = 36 + ((r >> 1) & 1)
        a(f"v_bitop3_b32 v{d}, v{r}, s{S.TAG}, v{d} bitop3:0xbe")
    a("v_or_b32 v36, v36, v37")
    a("v_cmp_ne_u32 vcc, 0, v36")
    a("v_add_f32 v40, v40, v44")
    a("s_cbranch_vccz L_zp_ok")
    a(f"s_sub_u32 s{S.SPIN}, s{S.SPIN}, 1")
    a("s_cbranch_scc0 L_zp")
    a.label("L_zp_ok")
    stamp(11)
    a("v_add_f32 v42, v42, v46")
    a("v_add_f32 v48, v48, v52")
    a("v_add_f32 v50, v50, v54")
    a("v_add_f32 v40, v40, v48")
    a("v_add_f32 v42, v42, v50")
    for r in (4, 8):
        a.nop(1)
        a(f"v_add_f32_dpp v40, v40, v40 row_ror:{r} {DPPM}")
        a(f"v_add_f32_dpp v42, v42, v42 row_ror:{r} {DPPM}")
    a.nop(2)
    a("v_permlane16_swap_b32 v40, v42")
    a("v_add_f32 v40, v40, v42")
    a("v_mov_b32 v42, v40")
    a.nop(2)
    a("v_permlane32_swap_b32 v40, v42")
    a("v_add_f32 v40, v40, v42")
    a("v_mov_b32 v42, v40")
    a.nop(2)
    a("v_permlane16_swap_b32 v40, v42")
    a("s_waitcnt lgkmcnt(0)")
    a("v_cvt_pk_bf16_f32 v41, v40, v42")
    a("v_lshlrev_b32 v40, 16, v41")
    a(f"v_and_b32 v42, s{S.HIM}, v41")
    a("v_mul_f32 v40, v40, v14")
    a("v_mul_f32 v42, v42, v14")
    a("v_cvt_pk_bf16_f32 v41, v40, v42")
    a("v_lshlrev_b32 v40, 16, v41")
    a(f"v_and_b32 v42, s{S.HIM}, v41")
    a("v_lshlrev_b32 v36, 16, v34")
    a(f"v_and_b32 v37, s{S.HIM}, v34")
    a("v_add_f32 v40, v40, v36")
    a("v_add_f32 v42, v42, v37")
    a("v_cvt_pk_bf16_f32 v41, v40, v42")
    a("v_lshlrev_b32 v40, 16, v41")
    a(f"v_and_b32 v42, s{S.HIM}, v41")
    a("v_fmac_f32 v32, v40, v35")
    a("v_fmac_f32 v33, v42, v35")
    a("v_cvt_pk_bf16_f32 v41, v32, v33")
    a(f"s_lshl_b32 s{S.T0}, s{S.IDX}, 10")
    a("s_mov_b64 exec, 15")
    a(f"buffer_store_dword v41, v10, {R4(S.ROUT)}, s{S.T0} offen")
    a("s_mov_b64 exec, -1")
    stamp(12)
    a(f"s_or_b32 s{S.T0}, s{S.Z}, s{S.WAVE}")
    a("s_cbranch_scc1 L_zend")
    a("s_mov_b64 exec, 0xff")
    a("v_lshlrev_b32 v6, 2, v0")
    a(f"s_mov_b32 s{S.T0}, {WS_ALIVE}")
    a.label("L_za")
    a(f"buffer_load_dword v7, v6, {R4(S.RWS)}, s{S.T0} offen sc1")
    a("s_waitcnt vmcnt(0)")
    a(f"v_cmp_ne_u32 vcc, s{S.TAG}, v7")
    a.nop(1)
    a("s_cbranch_vccz L_za_ok")
    a(f"s_sub_u32 s{S.SPIN}, s{S.SPIN}, 1")
    a("s_cbranch_scc0 L_za")
    a.label("L_za_ok")
    a("s_mov_b64 exec, 1")
    a(f"s_add_u32 s{S.E}, s{S.E}, 1")
    a(f"v_mov_b32 v7, s{S.E}")
    a(f"buffer_store_dword v7, v6, {R4(S.RWS)}, 0 offen sc1")
    a("s_mov_b64 exec, -1")
    a.label("L_zend")
    endprog()

    a.label("L_notA")
    a(f"s_cmp_lt_u32 s2, {NA+NF}")
    a("s_cbranch_scc1 L_F")
    a(f"s_mov_b32 s{S.ISZ}, 1")
    a(f"s_sub_u32 s{S.Z}, s2, {NA+NF}")
    vrow_setup()
    ptr_setup()
    tag_load()
    a.srd(S.ROUT, S.POUT, 0x200000)
    const_d2()
    addr_p2()
    a(f"s_cmp_ge_u32 s{S.WAVE}, 4")
    a("s_cbranch_scc1 L_z1")
    const_d1()
    a.label("L_z1")
    a("s_waitcnt lgkmcnt(0)")
    tag_make()
    a(f"s_cmp_lg_u32 s{S.WAVE}, 4")
    a("s_cbranch_scc1 L_z2")
    a(f"s_lshl_b32 s{S.PO}, s{S.Z}, 13")
    a(f"s_add_u32 s{S.PO}, s{S.PO}, {WS_KEYZ}")
    a(f"s_add_u32 s{S.POL}, s{S.PO}, 7168")
    stamp(1)
    poll_granules(VG16, 32, sleep=o.zsleep)
    stamp(2)
    wave_max_key(32)
    a(f"v_mov_b32 v9, {L_KMAX}")
    a("s_mov_b64 exec, 1")
    a("ds_write_b32 v9, v32")
    a("s_mov_b64 exec, -1")
    a("s_waitcnt lgkmcnt(0)")
    a.label("L_z2")
    a("s_barrier")
    a(f"v_mov_b32 v9, {L_KMAX}")
    a("ds_read_b32 v6, v9")
    a(f"s_cmp_lg_u32 s{S.WAVE}, 5")
    a("s_cbranch_scc1 L_z3")
    a(f"s_lshl_b32 s{S.T0}, s{S.Z}, 2")
    a(f"s_add_u32 s{S.T0}, s{S.T0}, {WS_ALIVE}")
    a("s_mov_b64 exec, 1")
    a(f"v_mov_b32 v7, s{S.TAG}")
    a(f"buffer_store_dword v7, v0, {R4(S.RWS)}, s{S.T0} offen sc1")
    a("s_mov_b64 exec, -1")
    a.label("L_z3")
    a("s_waitcnt lgkmcnt(0)")
    a(f"v_readfirstlane_b32 s{S.GKEY}, v6")
    a(f"s_andn2_b32 s{S.IDX}, 0xffff, s{S.GKEY}")
    a(f"s_and_b32 s{S.IDX}, s{S.IDX}, 2047")
    a(f"s_and_b32 s{S.T0}, s{S.IDX}, 127")
    a(f"s_cmp_gt_u32 s{S.T0}, 64")
    a(f"s_cselect_b32 s{S.WHICH}, 1, 0")
    a(f"s_and_b32 s{S.T0}, s{S.IDX}, {1024 + 63}")
    a(f"s_cmp_eq_u32 s{S.T0}, 1024")
    a(f"s_cselect_b32 s{S.WHICH}, 1, s{S.WHICH}")
    a(f"s_sub_u32 s{S.T0}, 2048, s{S.IDX}")
    a(f"s_cmp_lg_u32 s{S.WHICH}, 0")
    a(f"s_cselect_b32 s{S.T0}, s{S.T0}, s{S.IDX}")
    a(f"s_cmp_eq_u32 s{S.T0}, 1024")
    a(f"s_cselect_b32 s{S.T0}, 0, s{S.T0}")
    a(f"s_and_b32 s{S.T1C}, s{S.T0}, 127")
    a(f"s_lshr_b32 s{S.HH}, s{S.T0}, 10")
    a(f"s_bfe_u32 s{S.WSEL}, s{S.T0}, 0x30007")
    rows_setup()
    rows_load()
    router(0)
    gates()
    stamp(3)
    a("s_branch L_zjoin")

    a.label("L_F")
    WG_, WD_ = 32, 64
    a(f"s_sub_u32 s{S.T1}, s2, {NA}")
    a(f"s_lshr_b32 s{S.T1}, s{S.T1}, 3")
    a(f"s_mul_i32 s{S.FJ}, s{S.T0}, 7")
    a(f"s_add_u32 s{S.FJ}, s{S.FJ}, s{S.T1}")
    a("v_lshrrev_b32 v6, 2, v0")
    a("v_mul_u32_u24 v6, 3584, v6")
    a("v_and_b32 v7, 3, v0")
    a("v_lshl_add_u32 v3, v7, 4, v6")
    a("v_lshrrev_b32 v6, 3, v0")
    a("v_lshlrev_b32 v6, 10, v6")
    a("v_and_b32 v8, 7, v0")
    a("v_lshl_add_u32 v4, v8, 4, v6")
    a(f"s_mul_i32 s{S.T2}, s{S.WAVE}, {64*3584}")
    a(f"s_lshl_b32 s{S.T3}, s{S.FJ}, 6")
    a(f"s_add_u32 s{S.T2}, s{S.T2}, s{S.T3}")
    a(f"s_lshl_b32 s{S.T3}, s{S.FJ}, 15")
    a(f"s_lshl_b32 s{S.T4}, s{S.WAVE}, 7")
    a(f"s_add_u32 s{S.T3}, s{S.T3}, s{S.T4}")
    a(f"s_lshl_b32 s{S.T4}, s{S.WAVE}, 13")
    a(f"s_mov_b32 m0, s{S.T4}")
    for r in (S.RT0, S.RT1, S.RT2):
        a(f"s_mov_b32 s{r+2}, {512*1792*2:#x}")
        a(f"s_mov_b32 s{r+3}, 0x20000")
    a("s_waitcnt lgkmcnt(0)")
    for r, p in ((S.RT0, S.PWG), (S.RT1, S.PWU), (S.RT2, S.PWD)):
        a(f"s_mov_b32 s{r}, s{p}")
        a(f"s_mov_b32 s{r+1}, s{p+1}")
    for b in range(4):
        for mat in range(2):
            if b or mat:
                a(f"s_add_u32 m0, s{S.T4}, {mat*4096 + b*1024}")
            if b and not mat:
                a(f"s_add_u32 s{S.T2}, s{S.T2}, {16*3584}")
            else:
                a.nop(1)
            a(f"buffer_load_dwordx4 v3, {R4(S.RT0 if mat == 0 else S.RT1)}, s{S.T2} offen lds{o.wpol}")
    a(f"s_lshl_b32 s{S.T5}, s{S.WAVE}, 12")
    for b in range(4):
        a(f"s_add_u32 m0, s{S.T5}, {L_WD + b*1024}")
        if b:
            a(f"s_add_u32 s{S.T3}, s{S.T3}, 8192")
        else:
            a.nop(1)
        a(f"buffer_load_dwordx4 v4, {R4(S.RT2)}, s{S.T3} offen lds{o.wpol}")
    tag_load()
    stamp(1)
    a("v_bfe_u32 v6, v0, 2, 2")
    a("v_lshlrev_b32 v8, 3, v7")
    a("v_lshl_add_u32 v9, v6, 6, v8")
    a("v_and_b32 v10, 1, v2")
    a("v_lshl_add_u32 v9, v10, 5, v9")
    a("v_lshrrev_b32 v10, 1, v2")
    a("v_lshl_add_u32 v9, v10, 12, v9")
    a(f"v_add_u32 v9, s{S.T4}, v9")
    a("v_lshl_add_u32 v10, v6, 7, v8")
    a("v_lshl_add_u32 v10, v2, 5, v10")
    a(f"s_add_u32 s{S.T5}, s{S.T5}, {L_WD}")
    a(f"v_add_u32 v10, s{S.T5}, v10")
    a("v_lshlrev_b32 v5, 4, v0")
    a("v_lshlrev_b32 v11, 2, v0")
    a(f"v_add_u32 v11, {L_RED}, v11")
    a(f"s_lshl_b32 s{S.T5}, s{S.WAVE}, 8")
    a(f"v_add_u32 v12, s{S.T5}, v11")
    a("v_lshlrev_b32 v13, 3, v0")
    a(f"s_and_b32 s{S.PO}, s2, 7")
    a(f"s_lshl_b32 s{S.PO}, s{S.PO}, 13")
    a(f"s_add_u32 s{S.PO}, s{S.PO}, {WS_KEYF}")
    a(f"s_add_u32 s{S.POL}, s{S.PO}, 7168")
    a("s_waitcnt vmcnt(4) lgkmcnt(0)")
    tag_make()
    stamp(2)
    for k in range(16):
        a(f"ds_read_b64_tr_b16 {V(WG_+2*k,2)}, v9 offset:{L_W + k*256}")
        if k == 13:
            a("s_waitcnt lgkmcnt(4)")
    a("s_waitcnt vmcnt(0)")
    for k in range(8):
        a(f"ds_read_b64_tr_b16 {V(WD_+2*k,2)}, v10 offset:{k*512}")
    stamp(3)
    a(f"v_mov_b32 v14, {L_FKEY}")
    a(f"s_cmp_lg_u32 s{S.WAVE}, 0")
    a("s_cbranch_scc1 L_f1")
    poll_granules(5, 16)
    stamp(4)
    wave_max_key(16)
    a("s_mov_b64 exec, 1")
    a("ds_write_b32 v14, v16")
    a("s_mov_b64 exec, -1")
    a.label("L_f1")
    a("s_waitcnt lgkmcnt(0)")
    a("s_barrier")
    a("ds_read_b32 v16, v14")
    a(f"s_mul_i32 s{S.T2}, s{S.WAVE}, {56*512}")
    a(f"s_lshl_b32 s{S.T3}, s{S.FJ}, 9")
    a(f"s_add_u32 s{S.T2}, s{S.T2}, s{S.T3}")
    a(f"s_add_u32 s{S.T2}, s{S.T2}, {WS_PART}")
    a(f"s_lshl_b32 s{S.T1}, s{S.WAVE}, 7")
    a("s_waitcnt lgkmcnt(0)")
    a(f"v_readfirstlane_b32 s{S.T0}, v16")
    a(f"s_andn2_b32 s{S.T0}, 2047, s{S.T0}")
    a(f"s_lshl_b32 s{S.T0}, s{S.T0}, 10")
    a(f"s_add_u32 s{S.T0}, s{S.T0}, s{S.T1}")
    a(f"s_load_dwordx16 s[{S.XS}:{S.XS+15}], s[{S.PX}:{S.PX+1}], s{S.T0}")
    a(f"s_load_dwordx16 s[{S.XS+16}:{S.XS+31}], s[{S.PX}:{S.PX+1}], s{S.T0} offset:64")
    for i in range(4):
        a(f"v_mov_b32 v{16+i}, 0")
    a("s_waitcnt lgkmcnt(0)")
    stamp(5)
    for i in range(32):
        a(f"v_dot2c_f32_bf16 v{16+(i&3)}, s{S.XS+i}, v{WG_+i}")
    a.nop(2)
    a("v_add_f32 v16, v16, v17")
    a("v_add_f32 v18, v18, v19")
    a("v_add_f32 v16, v16, v18")
    a(f"ds_write_b32 v12, v16")
    a("s_waitcnt lgkmcnt(0)")
    a("s_barrier")
    for i in range(4):
        a(f"ds_read2st64_b32 v[{16+2*i}:{17+2*i}], v11 offset0:{2*i} offset1:{2*i+1}")
    a("s_waitcnt lgkmcnt(2)")
    a("v_add_f32 v16, v16, v17")
    a("v_add_f32 v18, v18, v19")
    a("s_waitcnt lgkmcnt(0)")
    a("v_add_f32 v20, v20, v21")
    a("v_add_f32 v22, v22, v23")
    a("v_add_f32 v16, v16, v18")
    a("v_add_f32 v20, v20, v22")
    a("v_add_f32 v16, v16, v20")
    rnd(16, 16)
    a("v_mov_b32 v18, v16")
    sigmoid(17, 16)
    a("v_permlane32_swap_b32 v18, v16")
    a("v_mul_f32 v17, v17, v18")
    rnd(17, 17)
    a("v_mul_f32 v17, v17, v16")
    a.nop(2)
    a(f"v_mov_b32_dpp v18, v17 quad_perm:[1,0,3,2] {DPPM}")
    a("v_cvt_pk_bf16_f32 v17, v17, v18")
    for i in range(4):
        a(f"v_mov_b32 v{20+i}, 0")
    for i in range(16):
        a(f"v_readlane_b32 s{S.XS+i}, v17, {2*i}")
    for i in range(16):
        a(f"v_dot2c_f32_bf16 v{20+(i&3)}, s{S.XS+i}, v{WD_+i}")
    a(f"v_mov_b32 v25, s{S.TAG}")
    a.nop(1)
    a("v_add_f32 v20, v20, v21")
    a("v_add_f32 v22, v22, v23")
    a("v_add_f32 v24, v20, v22")
    for c in range(o.pc):
        if c:
            a(f"s_add_u32 s{S.T2}, s{S.T2}, {PARTC}")
        a(f"buffer_store_dwordx2 v[24:25], v13, {R4(S.RWS)}, s{S.T2} offen sc1")
    stamp(6)
    endprog()
    a.label("L_end")
    a("s_endpgm")
    return name


def main():
    ap = argparse.ArgumentParser()
    ap.add_argument("-o", required=True)
    ap.add_argument("--stamps", type=int, default=0)
    ap.add_argument("--pc", type=int, default=2)
    ap.add_argument("--zsleep", type=int, default=6)
    ap.add_argument("--wpol", default="")
    ap.add_argument("--outpol", default="")
    o = ap.parse_args()
    o.wpol = (" " + o.wpol) if o.wpol else ""
    o.outpol = (" " + o.outpol) if o.outpol else ""
    a = Asm()
    name = gen(a, o)
    finish(a, name, 256 if o.stamps else 220, 100, NWG, 512, LDS_BYTES, o.o)


main()
```

```python
import argparse
from lib import *

NA, NF, NZ = 128, 112, 16
NWG = NA + NF + NZ
WS_E = 0
WS_ALIVE = 4096
WS_KEYF = 64 << 10
WS_KEYZ = 128 << 10
WS_FLAG = 192 << 10
WS_PART = 256 << 10
PZ = NF * 256
PARTC = NZ * PZ
WS_INT = 2 << 20
CS = 32768 + 256
WS_STAMP = 8 << 20
WS_BYTES = 16 << 20
L_TILE = 0
L_U2 = 16384
L_CT = L_U2
UB = 17 * 64
L_MISC = L_U2 + 16 * UB
L_KMAX = L_MISC
L_GKEY = L_MISC + 4
L_DUMP = L_MISC + 64
L_XG2 = L_DUMP + 4 * UB + 256
L_W = 0
L_WD = 32768
L_RED = L_WD + 16 * 1088
L_FKEY = L_RED + 2048
LDS_BYTES = 84 * 1024
MF = "v_mfma_f32_16x16x32_bf16"
LOG2E = 0x3fb8aa3b
DPPM = "row_mask:0xf bank_mask:0xf"
HIM = "0xffff0000"


class S:
    WAVE = 3
    PX = 4
    T0, T1, T2, T3, T4, T5 = 6, 7, 8, 9, 10, 11
    EX = 12
    EY = 14
    PWR, PWG, PWU, PWD, PGW, POUT, PDBG, PWS = 16, 18, 20, 22, 24, 26, 28, 30
    RWS, ROUT = 36, 40
    TAG, E, SPIN, ISZ = 56, 57, 58, 59
    T1C, HH, TD, TM = 60, 61, 62, 63
    S2, CB, IDX, BLK = 64, 65, 67, 66
    GKEY, WSEL, WHICH, Z = 74, 75, 76, 77
    PO, POL = 78, 79
    SI0, SI1, ID8 = 80, 81, 82
    FJ, KS = 60, 61
    HS = 64
    ST = 96


def gen(a, o):
    name = NAME + "_kernel"
    kernel_head(a, name)

    def stamp(i):
        if o.stamps:
            a(f"s_memrealtime s[{S.ST}:{S.ST+1}]")
            a("s_waitcnt lgkmcnt(0)")
            a(f"v_writelane_b32 v254, s{S.ST}, {i}")

    def endprog():
        if o.stamps:
            a("s_mov_b64 exec, 0xffff")
            a(f"s_lshl3_add_u32 s{S.T0}, s2, s{S.WAVE}")
            a(f"s_lshl_b32 s{S.T0}, s{S.T0}, 7")
            a(f"s_add_u32 s{S.T0}, s{S.T0}, {WS_STAMP}")
            a("v_lshlrev_b32 v253, 3, v0")
            a("v_mov_b32 v255, 0")
            a(f"buffer_store_dwordx2 v[254:255], v253, {R4(S.RWS)}, s{S.T0} offen")
        a("s_endpgm")

    def poll_setup(base):
        a(f"s_and_b32 s{S.PO}, s2, 7")
        a(f"s_lshl_b32 s{S.PO}, s{S.PO}, 13")
        a(f"s_add_u32 s{S.PO}, s{S.PO}, {base}")
        a(f"s_add_u32 s{S.POL}, s{S.PO}, 7168")

    def poll_granules(vaddr, vd, sleep=0):
        l = a.L("poll")
        if sleep:
            a(f"s_branch {l}_1")
        a.label(l)
        if sleep:
            a(f"s_sleep {sleep}")
            a.label(f"{l}_1")
        a(f"buffer_load_dwordx4 {V(vd,4)}, v{vaddr}, {R4(S.RWS)}, s{S.PO} offen sc1")
        a(f"s_add_u32 s{S.PO}, s{S.PO}, 1024")
        a(f"s_min_u32 s{S.PO}, s{S.PO}, s{S.POL}")
        a(f"s_sub_u32 s{S.SPIN}, s{S.SPIN}, 1")
        a(f"s_cbranch_scc1 {l}_ok")
        a("s_waitcnt vmcnt(0)")
        a(f"v_cmp_ne_u32 vcc, s{S.TAG}, v{vd+1}")
        a(f"v_cmp_ne_u32 s[{S.EX}:{S.EX+1}], s{S.TAG}, v{vd+3}")
        a(f"s_or_b64 vcc, vcc, s[{S.EX}:{S.EX+1}]")
        a(f"s_cbranch_vccnz {l}")
        a.label(f"{l}_ok")

    def wave_max_key(vd):
        a("s_waitcnt vmcnt(0)")
        a(f"v_max_u32 v{vd}, v{vd}, v{vd+2}")
        for r in (8, 4, 2, 1):
            a.nop(2)
            a(f"v_max_u32_dpp v{vd}, v{vd}, v{vd} row_ror:{r} {DPPM}")
        a(f"v_mov_b32 v{vd+1}, v{vd}")
        a.nop(2)
        a(f"v_permlane16_swap_b32 v{vd}, v{vd+1}")
        a(f"v_max_u32 v{vd}, v{vd}, v{vd+1}")
        a(f"v_mov_b32 v{vd+1}, v{vd}")
        a.nop(2)
        a(f"v_permlane32_swap_b32 v{vd}, v{vd+1}")
        a(f"v_max_u32 v{vd}, v{vd}, v{vd+1}")

    def sigmoid(d, s):
        a(f"v_mul_f32 v{d}, {LOG2E | 0x80000000:#x}, v{s}")
        a(f"v_exp_f32 v{d}, v{d}")
        a.nop(1)
        a(f"v_add_f32 v{d}, 1.0, v{d}")
        a(f"v_rcp_f32 v{d}, v{d}")
        a.nop(1)

    def rnd(d, s):
        a(f"v_cvt_pk_bf16_f32 v{d}, v{s}, v{s}")
        a(f"v_and_b32 v{d}, {HIM}, v{d}")

    def tag_load():
        a(f"s_load_dword s{S.E}, s[{S.PWS}:{S.PWS+1}], {WS_E}")
        a.srd(S.RWS, S.PWS, WS_BYTES)
        a(f"s_mov_b32 s{S.SPIN}, 200000")

    def tag_make():
        a(f"s_mul_i32 s{S.TAG}, s{S.E}, 0x9E3779B1")
        a(f"s_add_u32 s{S.TAG}, s{S.TAG}, 0x7F4A7C15")

    a(f"s_load_dwordx2 s[{S.PX}:{S.PX+1}], s[0:1], {KA_X}")
    a(f"s_load_dwordx16 s[16:31], s[0:1], {KA_WR}")
    if o.stamps:
        a("v_mov_b32 v254, 0")
        a(f"s_memrealtime s[{S.ST}:{S.ST+1}]")
    a("v_lshrrev_b32 v1, 6, v0")
    a("v_and_b32 v0, 63, v0")
    a(f"v_readfirstlane_b32 s{S.WAVE}, v1")
    a("v_and_b32 v1, 15, v0")
    a("v_lshrrev_b32 v2, 4, v0")
    a(f"s_and_b32 s{S.T0}, s2, 7")
    a(f"s_lshr_b32 s{S.T1}, s2, 3")
    a(f"s_cmp_ge_u32 s2, {NA}")
    a("s_cbranch_scc1 L_notA")

    VROW, VG16, VSGN, VTR, VST, VT = 3, 5, 8, 10, 11, 12
    XR, WR, GW = 16, 24, 28
    CM, AOP, ACC = 32, 96, 112
    M1, GA, M2, XG, CO = 128, 176, 180, 196, 212
    VLD, VUW, VUX, VUR0, VUR1 = 216, 217, 218, 219, 220
    Cc, Ss = AOP, AOP + 8

    def rows_setup(wreg):
        a(f"s_lshl3_add_u32 s{S.T5}, s{S.HH}, s{wreg}")
        a(f"s_lshl_b32 s{S.T5}, s{S.T5}, 7")
        a(f"s_add_u32 s{S.TD}, s{S.T5}, s{S.T1C}")
        a(f"s_sub_u32 s{S.TM}, 2048, s{S.TD}")
        a(f"s_cmp_eq_u32 s{S.TD}, 0")
        a(f"s_cselect_b32 s{S.TM}, 1024, s{S.TM}")
        a(f"s_lshl_b32 s{S.T4}, s{S.TD}, 10")
        a(f"s_lshl_b32 s{S.T5}, s{S.TM}, 10")
        a(f"v_add_u32 v6, s{S.T4}, v{VROW}")
        a(f"v_add_u32 v7, s{S.T5}, v{VROW}")

    def vrow_setup():
        a("v_and_b32 v6, 1, v2")
        a("v_lshlrev_b32 v6, 5, v6")
        a("v_lshl_add_u32 v6, v1, 6, v6")
        a("v_lshrrev_b32 v7, 1, v2")
        a(f"v_lshl_add_u32 v{VROW}, v7, 4, v6")

    def rows_load():
        a(f"global_load_dwordx4 {V(XR,4)}, v6, s[{S.PX}:{S.PX+1}]")
        a(f"global_load_dwordx4 {V(XR+4,4)}, v7, s[{S.PX}:{S.PX+1}]")

    a(f"s_add_u32 s{S.T2}, s{S.T0}, 1")
    a(f"s_sub_u32 s{S.T3}, 15, s{S.T0}")
    a(f"s_and_b32 s{S.HH}, s{S.T1}, 1")
    a(f"s_bitcmp1_b32 s{S.T1}, 1")
    a(f"s_cselect_b32 s{S.T4}, s{S.T3}, s{S.T2}")
    a(f"s_lshr_b32 s{S.T5}, s{S.T1}, 2")
    a(f"s_lshl4_add_u32 s{S.T1C}, s{S.T5}, s{S.T4}")
    vrow_setup()
    a(f"s_cmp_lg_u32 s{S.T0}, 7")
    a("s_cbranch_scc1 L_k7")
    a(f"s_lshr_b32 s{S.T5}, s{S.T1}, 1")
    a(f"s_lshl3_add_u32 s{S.T1C}, s{S.T5}, 8")
    a(f"s_mov_b32 s{S.T2}, 0")
    a(f"s_cmp_eq_u32 s2, 127")
    a(f"s_cselect_b32 s{S.T1C}, 0, s{S.T1C}")
    a(f"s_cselect_b32 s{S.HH}, 0, s{S.HH}")
    a.label("L_k7")
    rows_setup(S.WAVE)
    a(f"s_bitcmp1_b32 s{S.T1}, 3")
    a(f"s_cselect_b32 s{S.S2}, s{S.T3}, s{S.T2}")
    a(f"s_and_b32 s{S.CB}, s{S.T1}, 7")
    a(f"s_lshl3_add_u32 s{S.BLK}, s{S.S2}, s{S.CB}")
    a("v_and_b32 v9, 7, v0")
    a("s_waitcnt lgkmcnt(0)")
    rows_load()
    a(f"global_load_dwordx4 {V(WR,4)}, v{VROW}, s[{S.PWR}:{S.PWR+1}]")
    if o.stamps:
        a(f"v_writelane_b32 v254, s{S.ST}, 0")
    a(f"s_lshl_b32 s{S.T2}, s{S.WAVE}, 11")
    a(f"s_add_u32 s{S.T3}, s{S.T2}, s{S.BLK}")
    a(f"s_lshl_b32 s{S.T3}, s{S.T3}, 7")
    a(f"s_mov_b32 m0, s{S.T2}")
    a("v_bfe_u32 v13, v0, 4, 1")
    a("v_xor_b32 v9, v9, v13")
    a("v_lshrrev_b32 v13, 3, v0")
    a(f"v_lshl_add_u32 v9, v9, 4, s{S.T3}")
    a("v_lshl_add_u32 v6, v13, 14, v9")
    a(f"global_load_lds_dwordx4 v6, s[{S.PX}:{S.PX+1}]")
    a(f"s_add_u32 m0, s{S.T2}, 1024")
    a("v_add_u32 v6, 0x20000, v6")
    a(f"global_load_lds_dwordx4 v6, s[{S.PX}:{S.PX+1}]")
    a(f"global_load_dwordx4 {V(GW,4)}, v{VROW}, s[{S.PGW}:{S.PGW+1}]")
    tag_load()
    stamp(1)
    a(f"s_lshr_b32 s{S.T0}, s{S.WAVE}, 2")
    a(f"s_and_b32 s{S.T1}, s{S.WAVE}, 1")
    a(f"s_bfe_u32 s{S.T2}, s{S.WAVE}, 0x10001")
    a(f"v_lshl_add_u32 v6, s{S.T0}, 4, v1")
    a(f"s_lshl3_add_u32 s{S.T3}, s{S.T2}, s{S.T1}")
    a(f"s_lshl_b32 s{S.T3}, s{S.T3}, 2")
    a("v_cvt_f32_u32 v6, v6")
    a(f"v_lshl_add_u32 v7, v2, 3, s{S.T3}")
    a("v_mul_f32 v6, 0x3c000000, v6")
    a("v_cvt_f32_u32 v7, v7")
    a(f"v_lshlrev_b32 v{VG16}, 4, v0")
    a("v_mul_f32 v7, v7, v6")
    for j in range(4):
        a(f"v_cos_f32 v{Cc+j}, v7")
        a(f"v_sin_f32 v{Ss+j}, v7")
        if j < 3:
            a("v_add_f32 v7, v7, v6")
    a(f"s_lshl_b32 s{S.T4}, s{S.T0}, 13")
    a(f"s_lshl_b32 s{S.T5}, s{S.T2}, 10")
    a(f"s_lshl3_add_u32 s{S.T5}, s{S.T1}, s{S.T5}")
    a(f"v_add_u32 v13, s{S.T4}, v{VG16}")
    a(f"v_add_u32 v9, s{S.T5}, v13")
    K = CM
    a(f"v_cvt_pk_bf16_f32 v{K+0}, v{Cc}, v{Cc+1}")
    a(f"v_cvt_pk_bf16_f32 v{K+1}, v{Cc+2}, v{Cc+3}")
    a(f"v_cvt_pk_bf16_f32 v{K+2}, -v{Ss}, -v{Ss+1}")
    a(f"v_cvt_pk_bf16_f32 v{K+3}, -v{Ss+2}, -v{Ss+3}")
    a("v_cmp_eq_f32 vcc, 0, v6")
    a(f"v_cvt_pk_bf16_f32 v{K+4}, v{Cc}, -v{Ss+1}")
    a(f"v_cvt_pk_bf16_f32 v{K+5}, -v{Cc+2}, v{Ss+3}")
    a(f"v_cvt_pk_bf16_f32 v{K+6}, -v{Ss}, -v{Cc+1}")
    a(f"v_cvt_pk_bf16_f32 v{K+7}, v{Ss+2}, v{Cc+3}")
    a(f"ds_write_b64 v9, {V(K,2)} offset:{L_CT}")
    a(f"ds_write_b64 v9, {V(K+4,2)} offset:{L_CT+4096}")
    a(f"ds_write_b64 v9, {V(K+6,2)} offset:{L_CT+6144}")
    a("s_mov_b64 exec, vcc")
    a(f"v_mov_b32 v{K+2}, 0xbf803f80")
    a(f"v_mov_b32 v{K+3}, 0xbf803f80")
    a("s_mov_b64 exec, -1")
    a(f"ds_write_b64 v9, {V(K+2,2)} offset:{L_CT+2048}")
    a("v_mov_b32 v6, 0")
    a(f"v_mov_b32 v7, {L_KMAX}")
    a("ds_write_b32 v7, v6")
    a(f"v_lshlrev_b32 v{VSGN}, 31, v1")
    a(f"v_lshrrev_b32 v9, 16, v{VSGN}")
    a(f"v_or_b32 v{VSGN}, v{VSGN}, v9")
    a("s_waitcnt lgkmcnt(0)")
    a("s_barrier")
    for t in range(4):
        for kp in range(2):
            a(f"ds_read_b128 {V(CM+16*t+4*kp,4)}, v13 offset:{L_CT + t*2048 + kp*1024}")
    tag_make()
    a("v_bfe_u32 v6, v0, 2, 2")
    a("v_lshl_add_u32 v7, v2, 3, v6")
    a("v_and_b32 v9, 3, v0")
    a(f"v_lshl_add_u32 v9, v9, 1, s{S.T2}")
    a("v_lshrrev_b32 v6, 1, v6")
    a("v_xor_b32 v9, v9, v6")
    a(f"s_lshl_b32 s{S.T1}, s{S.T1}, 3")
    a(f"v_lshl_add_u32 v9, v9, 4, s{S.T1}")
    a(f"v_lshl_add_u32 v{VTR}, v7, 7, v9")
    a(f"s_sub_u32 s{S.T4}, 0xffff, s{S.TD}")
    a(f"s_sub_u32 s{S.T5}, 0xffff, s{S.TM}")
    a(f"v_mov_b32 v4, s{S.T4}")
    a(f"v_writelane_b32 v4, s{S.T5}, 32")
    a("v_mov_b32 v12, 0")
    a("v_mov_b32 v13, 0")
    for t in range(4):
        a(f"s_waitcnt lgkmcnt({6-2*t})")
        for r in range(8):
            a(f"v_xor_b32 v{CM+t*16+8+r}, v{CM+t*16+r}, v{VSGN}")
    a(f"v_mul_u32_u24 v{VST}, {CS}, v1")
    a(f"v_lshl_add_u32 v{VST}, v2, 4, v{VST}")
    a(f"s_mul_i32 s{S.T0}, s{S.T0}, {16*CS}")
    a(f"s_lshl_b32 s{S.T1}, s{S.BLK}, 8")
    a(f"s_add_u32 s{S.T0}, s{S.T0}, s{S.T1}")
    a(f"s_and_b32 s{S.T1}, s{S.WAVE}, 3")
    a(f"s_lshl_b32 s{S.T1}, s{S.T1}, 6")
    a(f"s_add_u32 s{S.T0}, s{S.T0}, s{S.T1}")
    a(f"s_add_u32 s{S.SI0}, s{S.T0}, {WS_INT}")
    a(f"s_add_u32 s{S.SI1}, s{S.SI0}, {32*CS}")
    a(f"s_lshl_b32 s{S.ID8}, s2, 3")

    def const_d2():
        a("v_lshlrev_b32 v6, 2, v2")
        a("v_cvt_f32_u32 v7, v1")
        a("v_cvt_f32_u32 v6, v6")
        a("v_mul_f32 v7, 0x3d800000, v7")
        for hf in range(2):
            if hf:
                a("v_add_f32 v7, 0x3d800000, v7")
            a("v_mul_f32 v9, v6, v7")
            for jj in range(4):
                a(f"v_cos_f32 v{Cc+jj}, v9")
                a(f"v_sin_f32 v{Ss+jj}, v9")
                if jj < 3:
                    a("v_add_f32 v9, v9, v7")
            a.nop(1)
            for jj in range(4):
                if hf == 0:
                    a(f"v_cvt_pk_bf16_f32 v{M2+jj}, v{Cc+jj}, v{Ss+jj}")
                    a(f"v_cvt_pk_bf16_f32 v{M2+4+jj}, -v{Ss+jj}, v{Cc+jj}")
                else:
                    a(f"v_cvt_pk_bf16_f32 v{M2+8+jj}, v{Cc+jj}, -v{Ss+jj}")
                    a(f"v_cvt_pk_bf16_f32 v{M2+12+jj}, -v{Ss+jj}, -v{Cc+jj}")

    def addr_ur():
        a("v_bfe_u32 v7, v1, 1, 2")
        a("v_xor_b32 v7, v7, v2")
        a("v_lshlrev_b32 v7, 4, v7")
        a(f"v_lshl_add_u32 v{VUR0}, v1, 6, v7")
        a("v_sub_u32 v6, 16, v1")
        a("v_bfe_u32 v7, v6, 1, 2")
        a("v_xor_b32 v7, v7, v2")
        a("v_lshlrev_b32 v7, 4, v7")
        a(f"v_lshl_add_u32 v{VUR1}, v6, 6, v7")

    def addr_ur_blk(wreg):
        a(f"s_mul_i32 s{S.T1}, s{wreg}, {2*UB}")
        a(f"v_add_u32 v{VUR0}, s{S.T1}, v{VUR0}")
        a(f"v_add_u32 v{VUR1}, s{S.T1}, v{VUR1}")

    def addr_p2():
        a("v_lshrrev_b32 v6, 2, v1")
        a("v_lshlrev_b32 v6, 8, v6")
        a("v_lshl_add_u32 v6, v2, 13, v6")
        a("v_and_b32 v7, 3, v1")
        a(f"v_lshl_add_u32 v{VLD}, v7, 4, v6")
        a(f"v_mul_u32_u24 v6, {4*UB}, v2")
        a("v_bfe_u32 v7, v1, 1, 2")
        a(f"v_xor_b32 v7, s{S.WAVE}, v7")
        a("v_lshl_add_u32 v7, v7, 4, v6")
        a(f"v_lshl_add_u32 v{VUW}, v1, 6, v7")
        a(f"s_lshl4_add_u32 s{S.T1}, s{S.WAVE}, 1024")
        a(f"v_mov_b32 v9, {L_DUMP - L_U2}")
        a(f"v_lshl_add_u32 v{VUX}, v0, 1, v9")
        a(f"v_lshl_add_u32 v7, v1, 1, s{S.T1}")
        a("s_mov_b32 exec_lo, 0x00ff00ff")
        a("s_mov_b32 exec_hi, 0x00ff00ff")
        a(f"v_add_u32 v{VUX}, v7, v6")
        a("s_mov_b64 exec, -1")

    if o.pre >= 1:
        addr_ur()
        addr_ur_blk(S.WAVE)
    if o.pre >= 2:
        const_d2()
    stamp(2)

    def dots(w):
        for i in range(4):
            a(f"v_dot2c_f32_bf16 v12, v{XR+i}, v{w+i}")
            a(f"v_dot2c_f32_bf16 v13, v{XR+4+i}, v{w+i}")
        a.nop(3)
        a("v_permlane32_swap_b32 v12, v13")
        a("v_add_f32 v12, v12, v13")
        a("v_mov_b32 v13, v12")
        a.nop(2)
        a("v_permlane16_swap_b32 v12, v13")
        a("v_add_f32 v12, v12, v13")
        for r in (8, 4, 2, 1):
            a.nop(2)
            a(f"v_add_f32_dpp v12, v12, v12 row_ror:{r} {DPPM}")
        rnd(12, 12)

    a(f"v_mov_b32 v9, {L_KMAX}")
    a("s_waitcnt vmcnt(3)")
    dots(WR)
    a("v_ashrrev_i32 v7, 31, v12")
    a("v_or_b32 v7, 0x80000000, v7")
    a("v_xor_b32 v7, v7, v12")
    a(f"v_and_b32 v7, {HIM}, v7")
    a("v_or_b32 v7, v7, v4")
    a("s_mov_b32 exec_lo, 1")
    a("s_mov_b32 exec_hi, 1")
    a("ds_max_u32 v9, v7")
    a("s_mov_b64 exec, -1")
    a("s_waitcnt vmcnt(0) lgkmcnt(0)")
    a("s_barrier")
    stamp(3)
    a(f"s_cmp_lg_u32 s{S.WAVE}, 0")
    a("s_cbranch_scc1 L_nokey")
    a("ds_read_b32 v14, v9")
    a(f"v_mov_b32 v15, s{S.TAG}")
    a("v_lshlrev_b32 v13, 10, v0")
    a(f"s_add_u32 s{S.T0}, s{S.ID8}, {WS_KEYF}")
    a(f"s_add_u32 s{S.T1}, s{S.ID8}, {WS_KEYZ}")
    a("s_waitcnt lgkmcnt(0)")
    a(f"buffer_store_dwordx2 v[14:15], v13, {R4(S.RWS)}, s{S.T0} offen sc1")
    a(f"buffer_store_dwordx2 v[14:15], v13, {R4(S.RWS)}, s{S.T1} offen sc1")
    a.label("L_nokey")
    for k in range(4):
        for h in range(2):
            a(f"ds_read_b64_tr_b16 {V(AOP+4*k+2*h,2)}, v{VTR} offset:{L_TILE + k*4096 + h*512}")
    for k in range(4):
        a(f"s_waitcnt lgkmcnt({6-2*k})")
        for t in range(4):
            c = "0" if k == 0 else V(ACC + 4 * t, 4)
            a(f"{MF} {V(ACC+4*t,4)}, {V(AOP+4*k,4)}, {V(CM+16*t+4*k,4)}, {c}")
    a("v_mov_b32 v12, 0")
    a("v_mov_b32 v13, 0")
    a.nop(4)
    for i in range(4):
        a(f"v_cvt_pk_bf16_f32 v{AOP+i}, v{ACC+i}, v{ACC+4+i}")
    a(f"buffer_store_dwordx4 {V(AOP,4)}, v{VST}, {R4(S.RWS)}, s{S.SI0} offen sc1")
    for i in range(4):
        a(f"v_cvt_pk_bf16_f32 v{AOP+4+i}, v{ACC+8+i}, v{ACC+12+i}")
    a(f"buffer_store_dwordx4 {V(AOP+4,4)}, v{VST}, {R4(S.RWS)}, s{S.SI1} offen sc1")
    stamp(4)

    def gates(full):
        dots(GW)
        sigmoid(13, 12)
        rnd(13, 13)
        a("v_sub_f32 v14, 1.0, v13")
        rnd(14, 14)
        a(f"v_readlane_b32 s{S.T0}, v13, 0")
        a(f"v_readlane_b32 s{S.T1}, v13, 32")
        a(f"v_readlane_b32 s{S.T2}, v14, 0")
        a(f"v_readlane_b32 s{S.T3}, v14, 32")
        a(f"s_xor_b32 s{S.T4}, s{S.T0}, 0x80000000")
        a(f"s_cmp_eq_u32 s{S.TD}, 0")
        a(f"s_cselect_b32 s{S.T4}, 0, s{S.T4}")
        a(f"s_cselect_b32 s{S.T5}, 0, s{S.T1}")
        if not full:
            return
        a(f"v_mov_b32 v{CO}, s{S.T0}")
        a(f"v_mov_b32 v{CO+1}, s{S.T4}")
        a(f"v_mov_b32 v{CO+2}, s{S.T5}")
        a(f"v_mov_b32 v{CO+3}, s{S.T1}")
        a(f"v_mov_b32 v13, s{S.T2}")
        a(f"v_mov_b32 v14, s{S.T3}")
        for r in range(2):
            a(f"v_permlane16_swap_b32 v{XR+4*r}, v{XR+4*r+2}")
            a(f"v_permlane16_swap_b32 v{XR+4*r+1}, v{XR+4*r+3}")
        for r in range(2):
            for i in range(4):
                a(f"v_lshlrev_b32 v{XG+8*r+2*i}, 16, v{XR+4*r+i}")
                a(f"v_and_b32 v{XG+8*r+2*i+1}, {HIM}, v{XR+4*r+i}")
            for i in range(8):
                a(f"v_mul_f32 v{XG+8*r+i}, v{13+r}, v{XG+8*r+i}")

    def const_d2_fix():
        l = a.L("nosp")
        a(f"s_cmp_lg_u32 s{S.TD}, 0")
        a(f"s_cbranch_scc1 {l}")
        for jj in range(4):
            a(f"v_mov_b32 v{M2+4+jj}, v{M2+jj}")
            a(f"v_mov_b32 v{M2+12+jj}, v{M2+8+jj}")
        a.label(l)

    def const_d1():
        a("v_cvt_f32_u32 v6, v1")
        a(f"s_lshl_b32 s{S.T0}, s{S.WAVE}, 2")
        a(f"v_lshl_add_u32 v7, v2, 6, s{S.T0}")
        a("v_mul_f32 v6, 0x3b000000, v6")
        a("v_cvt_f32_u32 v7, v7")
        a("v_mul_f32 v13, 0x41800000, v6")
        a("v_mul_f32 v7, v7, v6")
        for ib in range(4):
            if ib:
                a("v_add_f32 v7, v7, v6")
            for j in range(4):
                src = "v7" if j == 0 else "v9"
                a(f"v_cos_f32 v{Cc+j}, {src}")
                a(f"v_sin_f32 v{Ss+j}, {src}")
                if j < 3:
                    a(f"v_add_f32 v9, {src}, v13")
            b = M1 + 12 * ib
            a(f"v_mov_b32 v{b+8}, 0")
            for p in range(2):
                a(f"v_cvt_pk_bf16_f32 v{b+p}, v{Cc+2*p}, v{Cc+2*p+1}")
                a(f"v_cvt_pk_bf16_f32 v{b+4+p}, -v{Ss+2*p}, -v{Ss+2*p+1}")
            for p in range(2):
                a(f"v_xor_b32 v{b+2+p}, v{b+p}, v{VSGN}")
                a(f"v_xor_b32 v{b+6+p}, v{b+4+p}, v{VSGN}")
        a("v_lshrrev_b32 v6, 1, v1")
        a(f"v_add_u32 v7, s{S.T0}, v6")
        a("v_and_b32 v9, 1, v1")
        a("v_lshl_add_u32 v7, v9, 3, v7")
        a("v_cvt_f32_u32 v7, v7")
        a("v_mul_f32 v7, 0x3d000000, v7")
        a("v_cos_f32 v7, v7")
        for ib in range(4):
            m = 0x00030003 << (2 * ib)
            a(f"s_mov_b32 exec_lo, {m:#x}")
            a(f"s_mov_b32 exec_hi, {m:#x}")
            a(f"v_cvt_pk_bf16_f32 v{M1+12*ib+8}, v7, -v7")
        a("s_mov_b64 exec, -1")
        for ib in range(4):
            for p in range(1, 4):
                a(f"v_mov_b32 v{M1+12*ib+8+p}, v{M1+12*ib+8}")

    def const_ga():
        a("v_lshrrev_b32 v6, 1, v1")
        a(f"s_lshl_b32 s{S.T0}, s{S.HH}, 10")
        a(f"s_add_u32 s{S.T0}, s{S.T0}, s{S.T1C}")
        a(f"v_lshl_add_u32 v6, v6, 7, s{S.T0}")
        a("v_and_b32 v7, 1, v1")
        a("v_lshlrev_b32 v9, 9, v7")
        l0, l64, ld = a.L("g0"), a.L("g64"), a.L("gd")
        a(f"s_cmp_lg_u32 s{S.T1C}, 0")
        a(f"s_cbranch_scc1 {l0}")
        a("s_mov_b32 exec_lo, 0x00020002")
        a("s_mov_b32 exec_hi, 0x00020002")
        a("v_mov_b32 v6, 0x400")
        a("v_mov_b32 v9, 0")
        a("s_mov_b64 exec, -1")
        a.label(l0)
        a("v_lshlrev_b32 v7, 2, v2")
        a("v_mad_u32_u24 v9, v7, v6, v9")
        a("v_cvt_f32_u32 v6, v6")
        a("v_cvt_f32_u32 v9, v9")
        a("v_mul_f32 v6, 0x3a000000, v6")
        a("v_mul_f32 v9, 0x3a000000, v9")
        for jj in range(4):
            a(f"v_cos_f32 v{Cc+jj}, v9")
            a(f"v_sin_f32 v{Ss+jj}, v9")
            if jj < 3:
                a("v_add_f32 v9, v9, v6")
        a(f"s_and_b32 s{S.T1}, s{S.T1C}, 63")
        a(f"s_mul_i32 s{S.T0}, s{S.T1}, {CS}")
        for jj in range(4):
            a(f"v_cvt_pk_bf16_f32 v{GA+jj}, v{Cc+jj}, v{Ss+jj}")
        a(f"s_cmp_lg_u32 s{S.T1}, 0")
        a(f"s_cbranch_scc1 {ld}")
        a(f"s_lshr_b32 s{S.T1}, s{S.T1C}, 2")
        for jj in range(4):
            a(f"v_and_b32 v{GA+jj}, 0xffff, v{GA+jj}")
            a(f"v_lshlrev_b32 v{GA+jj}, s{S.T1}, v{GA+jj}")
        a.label(ld)
        a(f"s_lshl_b32 s{S.T1}, s{S.WAVE}, 6")
        a(f"s_add_u32 s{S.T0}, s{S.T0}, s{S.T1}")
        a(f"s_add_u32 s{S.T0}, s{S.T0}, {WS_INT}")
        a(f"s_add_u32 s{S.T1}, s{S.T0}, 4096")

    gates(True)
    if o.pre < 1:
        addr_ur()
        addr_ur_blk(S.WAVE)
    if o.pre < 2:
        const_d2()
    const_d2_fix()
    a.srd(S.ROUT, S.POUT, 0x200000)
    a(f"s_mov_b32 s{S.ISZ}, 0")
    stamp(5)
    a(f"s_cmp_ge_u32 s{S.WAVE}, 4")
    a("s_cbranch_scc1 L_hi0")
    a("s_waitcnt vmcnt(0)")
    a("s_barrier")
    stamp(6)
    addr_p2()
    const_d1()
    a.label("L_zjoin")
    const_ga()
    stamp(7)
    a("s_barrier")
    stamp(8)
    LD, DA, OP1, D1A, X16, TP = 32, 64, 96, 32, 112, 96
    for ah in range(2):
        for jj in range(4):
            so = S.T0 if jj < 2 else S.T1
            a(f"buffer_load_dwordx4 {V(LD+16*ah+4*jj,4)}, v{VLD}, {R4(S.RWS)}, s{so} offen offset:{(jj & 1)*2048 + ah*1024} sc1")
    for ah in range(2):
        a(f"s_waitcnt vmcnt({4-4*ah})")
        b = LD + 16 * ah
        tp = TP + 16 * ah
        for ib in range(5):
            if ib < 4:
                for p in range(2):
                    s0 = b + 8 * p + (ib & 2)
                    a(f"v_pk_mov_b32 {V(tp+4*ib+2*p,2)}, {V(s0,2)}, {V(s0+4,2)} op_sel:[{ib&1},{ib&1}]")
            else:
                a.nop(2)
            if ib:
                a(f"{MF} {V(DA+8*(ib-1)+4*ah,4)}, {V(tp+4*(ib-1),4)}, {V(GA,4)}, 0")
    stamp(9)
    a.nop(1)
    for ib in range(4):
        for p in range(4):
            a(f"v_cvt_pk_bf16_f32 v{OP1+4*ib+p}, v{DA+8*ib+2*p}, v{DA+8*ib+2*p+1}")
        if ib == 0:
            continue
        jb = ib - 1
        a(f"{MF} {V(D1A+8*jb,4)}, {V(OP1+4*jb,4)}, {V(M1+12*jb,4)}, 0")
        a(f"{MF} {V(D1A+8*jb+4,4)}, {V(OP1+4*jb,4)}, {V(M1+12*jb+4,4)}, 0")
        a(f"{MF} {V(X16,4)}, {V(OP1+4*jb,4)}, {V(M1+12*jb+8,4)}, {'0' if jb == 0 else V(X16,4)}")
    a(f"{MF} {V(D1A+24,4)}, {V(OP1+12,4)}, {V(M1+36,4)}, 0")
    a(f"{MF} {V(D1A+28,4)}, {V(OP1+12,4)}, {V(M1+40,4)}, 0")
    a(f"{MF} {V(X16,4)}, {V(OP1+12,4)}, {V(M1+44,4)}, {V(X16,4)}")
    PK = 64
    for ib in range(3):
        for i in range(4):
            a(f"v_cvt_pk_bf16_f32 v{PK+4*i+ib}, v{D1A+8*ib+i}, v{D1A+8*ib+4+i}")
    for i in range(4):
        a(f"v_cvt_pk_bf16_f32 v{PK+4*i+3}, v{D1A+24+i}, v{D1A+28+i}")
        a(f"ds_write_b128 v{VUW}, {V(PK+4*i,4)} offset:{L_U2 + i*UB}")
    a(f"v_cvt_pk_bf16_f32 v{X16}, v{X16}, v{X16+1}")
    a(f"v_cvt_pk_bf16_f32 v{X16+2}, v{X16+2}, v{X16+3}")
    a(f"ds_write_b16 v{VUX}, v{X16} offset:{L_U2}")
    a(f"ds_write_b16_d16_hi v{VUX}, v{X16} offset:{L_U2+UB}")
    a(f"ds_write_b16 v{VUX}, v{X16+2} offset:{L_U2+2*UB}")
    a(f"ds_write_b16_d16_hi v{VUX}, v{X16+2} offset:{L_U2+3*UB}")
    a.label("L_d2")
    a("s_waitcnt lgkmcnt(0)")
    a("s_barrier")
    stamp(10)
    UO, PQ = 32, 48
    a(f"s_cmp_lg_u32 s{S.ISZ}, 0")
    a("s_cbranch_scc1 L_zfin")
    a(f"ds_read_b128 {V(UO,4)}, v{VUR0} offset:{L_U2}")
    a(f"ds_read_b128 {V(UO+4,4)}, v{VUR1} offset:{L_U2}")
    a(f"ds_read_b128 {V(UO+8,4)}, v{VUR0} offset:{L_U2+UB}")
    a(f"ds_read_b128 {V(UO+12,4)}, v{VUR1} offset:{L_U2+UB}")
    a(f"v_mov_b32 v9, {L_GKEY}")
    a("ds_read_b32 v6, v9")
    for k, m in enumerate((0, 8, 4, 12)):
        a(f"s_waitcnt lgkmcnt({4-k})")
        a(f"{MF} {V(PQ+4*k,4)}, {V(UO+4*k,4)}, {V(M2+m,4)}, 0")
    a("s_waitcnt lgkmcnt(0)")
    a(f"v_readfirstlane_b32 s{S.GKEY}, v6")
    a(f"s_lshl_b32 s{S.T0}, s{S.TD}, 10")
    a(f"s_lshl_b32 s{S.T1}, s{S.TM}, 10")
    a(f"s_andn2_b32 s{S.IDX}, 0xffff, s{S.GKEY}")
    for r in range(2):
        for i in range(8):
            a(f"v_fmac_f32 v{XG+8*r+i}, v{CO+2*r}, v{PQ+i}")
    for r, (so, tr) in enumerate(((S.T0, S.TD), (S.T1, S.TM))):
        for i in range(8):
            a(f"v_fmac_f32 v{XG+8*r+i}, v{CO+2*r+1}, v{PQ+8+i}")
        for i in range(4):
            a(f"v_cvt_pk_bf16_f32 v{UO+4*r+i}, v{XG+8*r+2*i}, v{XG+8*r+2*i+1}")
        l = a.L("skip")
        a(f"s_cmp_eq_u32 s{tr}, s{S.IDX}")
        a(f"s_cbranch_scc1 {l}")
        a(f"v_permlane16_swap_b32 v{UO+4*r}, v{UO+4*r+2}")
        a(f"v_permlane16_swap_b32 v{UO+4*r+1}, v{UO+4*r+3}")
        a(f"buffer_store_dwordx4 {V(UO+4*r,4)}, v{VROW}, {R4(S.ROUT)}, s{so} offen{o.outpol}")
        a.label(l)
    stamp(11)
    if o.stamps:
        a("s_waitcnt vmcnt(0)")
        stamp(12)
    endprog()

    a.label("L_hi0")
    a(f"s_cmp_lg_u32 s{S.WAVE}, 4")
    a("s_cbranch_scc1 L_hi1")
    a(f"v_mov_b32 v9, {L_KMAX}")
    a("ds_read_b32 v14, v9")
    a(f"v_mov_b32 v15, s{S.TAG}")
    a("v_lshlrev_b32 v13, 10, v0")
    a(f"s_add_u32 s{S.T0}, s{S.ID8}, {WS_FLAG}")
    poll_setup(WS_FLAG)
    a("s_waitcnt vmcnt(0) lgkmcnt(0)")
    a("s_barrier")
    a(f"buffer_store_dwordx2 v[14:15], v13, {R4(S.RWS)}, s{S.T0} offen sc1")
    stamp(6)
    poll_granules(VG16, 32)
    a("s_barrier")
    stamp(8)
    wave_max_key(32)
    a(f"v_mov_b32 v9, {L_GKEY}")
    a("s_mov_b64 exec, 1")
    a("ds_write_b32 v9, v32")
    a("s_mov_b64 exec, -1")
    a("s_branch L_d2")
    a.label("L_hi1")
    a("s_waitcnt vmcnt(0)")
    a("s_barrier")
    a("s_barrier")
    a("s_branch L_d2")

    a.label("L_notA")
    a(f"s_cmp_lt_u32 s2, {NA+NF}")
    a("s_cbranch_scc1 L_F")
    a(f"s_cmp_ge_u32 s2, {NWG}")
    a("s_cbranch_scc1 L_end")
    a(f"s_mov_b32 s{S.ISZ}, 1")
    a(f"s_sub_u32 s{S.Z}, s2, {NA+NF}")
    vrow_setup()
    a(f"v_lshlrev_b32 v{VG16}, 4, v0")
    a(f"v_lshlrev_b32 v{VSGN}, 31, v1")
    a(f"v_lshrrev_b32 v9, 16, v{VSGN}")
    a(f"v_or_b32 v{VSGN}, v{VSGN}, v9")
    a("s_waitcnt lgkmcnt(0)")
    if o.stamps:
        a(f"v_writelane_b32 v254, s{S.ST}, 0")
    a(f"global_load_dwordx4 {V(GW,4)}, v{VROW}, s[{S.PGW}:{S.PGW+1}]")
    tag_load()
    a.srd(S.ROUT, S.POUT, 0x200000)
    addr_p2()
    a(f"s_cmp_ge_u32 s{S.WAVE}, 4")
    a("s_cbranch_scc1 L_z1")
    const_d2()
    addr_ur()
    const_d1()
    a.label("L_z1")
    a("s_waitcnt lgkmcnt(0)")
    tag_make()
    a(f"s_lshr_b32 s{S.T0}, s{S.Z}, 2")
    a(f"s_and_b32 s{S.T1}, s{S.Z}, 3")
    a(f"s_lshl3_add_u32 s{S.T0}, s{S.T0}, s{S.T1}")
    a(f"s_lshl_b32 s{S.SI0}, s{S.T0}, 5")
    a(f"s_cmp_lg_u32 s{S.WAVE}, 4")
    a("s_cbranch_scc1 L_z2")
    poll_setup(WS_KEYZ)
    stamp(1)
    poll_granules(VG16, 32, sleep=o.zsleep)
    stamp(2)
    wave_max_key(32)
    a(f"v_mov_b32 v9, {L_KMAX}")
    a("s_mov_b64 exec, 1")
    a("ds_write_b32 v9, v32")
    a("s_mov_b64 exec, -1")
    a("s_waitcnt lgkmcnt(0)")
    a.label("L_z2")
    a("s_barrier")
    a(f"v_mov_b32 v9, {L_KMAX}")
    a("ds_read_b32 v6, v9")
    a("v_mov_b32 v12, 0")
    a("v_mov_b32 v13, 0")
    a("s_waitcnt lgkmcnt(0)")
    a(f"v_readfirstlane_b32 s{S.GKEY}, v6")
    a(f"s_andn2_b32 s{S.IDX}, 2047, s{S.GKEY}")
    a(f"s_and_b32 s{S.T0}, s{S.IDX}, 127")
    a(f"s_cmp_gt_u32 s{S.T0}, 64")
    a(f"s_cselect_b32 s{S.WHICH}, 1, 0")
    a(f"s_and_b32 s{S.T0}, s{S.IDX}, {1024 + 63}")
    a(f"s_cmp_eq_u32 s{S.T0}, 1024")
    a(f"s_cselect_b32 s{S.WHICH}, 1, s{S.WHICH}")
    a(f"s_sub_u32 s{S.T0}, 2048, s{S.IDX}")
    a(f"s_cmp_lg_u32 s{S.WHICH}, 0")
    a(f"s_cselect_b32 s{S.T0}, s{S.T0}, s{S.IDX}")
    a(f"s_cmp_eq_u32 s{S.T0}, 1024")
    a(f"s_cselect_b32 s{S.T0}, 0, s{S.T0}")
    a(f"s_and_b32 s{S.T1C}, s{S.T0}, 127")
    a(f"s_lshr_b32 s{S.HH}, s{S.T0}, 10")
    a(f"s_bfe_u32 s{S.WSEL}, s{S.T0}, 0x30007")
    rows_setup(S.WSEL)
    rows_load()
    a(f"s_cmp_ge_u32 s{S.WAVE}, 4")
    a("s_cbranch_scc1 L_z4")
    addr_ur_blk(S.WSEL)
    const_d2_fix()
    a(f"v_subrev_u32 v6, s{S.SI0}, v{VROW}")
    a("v_and_b32 v6, 0xffffff7f, v6")
    a(f"v_cmp_gt_u32 s[{S.EY}:{S.EY+1}], 32, v6")
    a("v_lshlrev_b32 v6, 7, v1")
    a(f"v_lshl_add_u32 v4, v2, 4, v6")
    a("s_waitcnt vmcnt(0)")
    gates(False)
    a(f"s_cmp_lg_u32 s{S.WHICH}, 0")
    a(f"s_cselect_b32 s{S.T0}, s{S.T5}, s{S.T0}")
    a(f"s_cselect_b32 s{S.T4}, s{S.T1}, s{S.T4}")
    a(f"v_mov_b32 v{CO}, s{S.T0}")
    a(f"v_mov_b32 v{CO+1}, s{S.T4}")
    stamp(3)
    a("s_branch L_zjoin")
    a.label("L_z4")
    a(f"s_sub_u32 s{S.T0}, s{S.WAVE}, 4")
    a(f"s_lshl3_add_u32 s{S.T1}, s{S.T0}, s{S.SI0}")
    a("v_and_b32 v6, 3, v0")
    a(f"v_lshl_add_u32 v10, v6, 1, s{S.T1}")
    a(f"s_lshl_b32 s{S.T2}, s{S.IDX}, 10")
    a(f"v_add_u32 v7, s{S.T2}, v10")
    a(f"global_load_ushort v34, v7, s[{S.PX}:{S.PX+1}]")
    a(f"global_load_ushort v35, v7, s[{S.PX}:{S.PX+1}] offset:128")
    a("v_lshlrev_b32 v10, 1, v10")
    a("v_lshrrev_b32 v7, 2, v0")
    a("v_lshlrev_b32 v7, 8, v7")
    a("v_lshl_add_u32 v11, v6, 4, v7")
    a(f"s_mul_i32 s{S.SI0}, s{S.Z}, {PZ}")
    a(f"s_lshl_b32 s{S.T0}, s{S.T0}, 6")
    a(f"s_add_u32 s{S.SI0}, s{S.SI0}, s{S.T0}")
    a(f"s_add_u32 s{S.SI0}, s{S.SI0}, {WS_PART}")
    a(f"s_add_u32 s{S.SI1}, s{S.SI0}, {(o.pc-1)*PARTC}")
    a(f"s_and_b32 s{S.T0}, s{S.GKEY}, 0xffff0000")
    a(f"s_xor_b32 s{S.T1}, s{S.T0}, 0x80000000")
    a(f"s_xor_b32 s{S.T3}, s{S.T0}, 0xffff0000")
    a(f"s_bitcmp1_b32 s{S.T0}, 31")
    a(f"s_cselect_b32 s{S.T0}, s{S.T1}, s{S.T3}")
    a(f"v_mov_b32 v15, s{S.T0}")
    sigmoid(15, 15)
    rnd(15, 15)
    a(f"s_cmp_lg_u32 s{S.WAVE}, 5")
    a("s_cbranch_scc1 L_z5")
    a(f"s_lshl_b32 s{S.T0}, s{S.Z}, 2")
    a(f"s_add_u32 s{S.T0}, s{S.T0}, {WS_ALIVE}")
    a("s_mov_b64 exec, 1")
    a(f"v_mov_b32 v7, s{S.TAG}")
    a(f"buffer_store_dword v7, v0, {R4(S.RWS)}, s{S.T0} offen sc1")
    a("s_mov_b64 exec, -1")
    a.label("L_z5")
    a("s_waitcnt vmcnt(0)")
    gates(False)
    a(f"s_cmp_lg_u32 s{S.WHICH}, 0")
    a(f"s_cselect_b32 s{S.T2}, s{S.T3}, s{S.T2}")
    a(f"v_mov_b32 v36, s{S.T2}")
    a("v_lshlrev_b32 v34, 16, v34")
    a("v_lshlrev_b32 v35, 16, v35")
    stamp(3)
    a(f"s_cmp_lg_u32 s{S.WAVE}, 4")
    a("s_cbranch_scc1 L_z6")
    poll_setup(WS_FLAG)
    stamp(6)
    poll_granules(VG16, 40)
    a.label("L_z6")
    a("s_barrier")
    stamp(8)
    a.label("L_zp")
    for i in range(7):
        if i:
            a(f"s_add_u32 s{S.T0}, s{S.SI0}, {4096*i}")
        a(f"buffer_load_dwordx4 {V(40+4*i,4)}, v11, {R4(S.RWS)}, s{S.T0 if i else S.SI0} offen sc1")
    a(f"s_add_u32 s{S.SI0}, s{S.SI0}, {PARTC}")
    a(f"s_min_u32 s{S.SI0}, s{S.SI0}, s{S.SI1}")
    a(f"s_sub_u32 s{S.SPIN}, s{S.SPIN}, 1")
    a("s_cbranch_scc1 L_zp_ok")
    a(f"v_mov_b32 v38, s{S.TAG}")
    for i in range(7):
        a(f"s_waitcnt vmcnt({6-i})")
        if i == 0:
            a("v_xor_b32 v37, v38, v41")
        else:
            a(f"v_bitop3_b32 v37, v{41+4*i}, v38, v37 bitop3:0xbe")
            a(f"v_add_f32 v40, v40, v{40+4*i}")
        a(f"v_bitop3_b32 v37, v{43+4*i}, v38, v37 bitop3:0xbe")
        if i:
            a(f"v_add_f32 v42, v42, v{42+4*i}")
    a("v_cmp_ne_u32 vcc, 0, v37")
    a.nop(1)
    a("s_cbranch_vccnz L_zp")
    a.label("L_zp_ok")
    stamp(9)
    for r in (4, 8):
        a(f"v_add_f32_dpp v40, v40, v40 row_ror:{r} {DPPM}")
        a(f"v_add_f32_dpp v42, v42, v42 row_ror:{r} {DPPM}")
        a.nop(1)
    a.nop(1)
    a("v_permlane16_swap_b32 v40, v42")
    a("v_add_f32 v40, v40, v42")
    a("v_mov_b32 v42, v40")
    a.nop(2)
    a("v_permlane32_swap_b32 v40, v42")
    a("v_add_f32 v40, v40, v42")
    a("v_mov_b32 v42, v40")
    a.nop(2)
    a("v_permlane16_swap_b32 v40, v42")
    a("v_cvt_pk_bf16_f32 v41, v40, v42")
    a("v_lshlrev_b32 v40, 16, v41")
    a(f"v_and_b32 v42, {HIM}, v41")
    a("v_mul_f32 v40, v40, v15")
    a("v_mul_f32 v42, v42, v15")
    a("v_cvt_pk_bf16_f32 v41, v40, v42")
    a("v_lshlrev_b32 v40, 16, v41")
    a(f"v_and_b32 v42, {HIM}, v41")
    a("v_add_f32 v40, v40, v34")
    a("v_add_f32 v42, v42, v35")
    a("v_cvt_pk_bf16_f32 v41, v40, v42")
    a("v_lshlrev_b32 v40, 16, v41")
    a(f"v_and_b32 v42, {HIM}, v41")
    a("v_mul_f32 v40, v40, v36")
    a("v_mul_f32 v42, v42, v36")
    a("s_mov_b64 exec, 15")
    a(f"ds_write_b32 v10, v40 offset:{L_XG2}")
    a(f"ds_write_b32 v10, v42 offset:{L_XG2+256}")
    a("s_mov_b64 exec, -1")
    a("s_branch L_d2")

    a.label("L_zfin")
    a(f"s_cmp_lg_u32 s{S.WAVE}, 0")
    a("s_cbranch_scc1 L_zend")
    a(f"ds_read_b128 {V(UO,4)}, v{VUR0} offset:{L_U2}")
    a(f"ds_read_b128 {V(UO+4,4)}, v{VUR1} offset:{L_U2}")
    a(f"ds_read_b128 {V(UO+8,4)}, v{VUR0} offset:{L_U2+UB}")
    a(f"ds_read_b128 {V(UO+12,4)}, v{VUR1} offset:{L_U2+UB}")
    a(f"ds_read_b128 {V(XG,4)}, v4 offset:{L_XG2}")
    a(f"ds_read_b128 {V(XG+4,4)}, v4 offset:{L_XG2+64}")
    for k, m in enumerate((0, 8, 4, 12)):
        a(f"s_waitcnt lgkmcnt({5-k})")
        a(f"{MF} {V(PQ+4*k,4)}, {V(UO+4*k,4)}, {V(M2+m,4)}, 0")
    a(f"s_lshl_b32 s{S.T0}, s{S.IDX}, 10")
    a("s_waitcnt lgkmcnt(0)")
    a.nop(2)
    for i in range(8):
        a(f"v_fmac_f32 v{XG+i}, v{CO}, v{PQ+i}")
    for i in range(8):
        a(f"v_fmac_f32 v{XG+i}, v{CO+1}, v{PQ+8+i}")
    for i in range(4):
        a(f"v_cvt_pk_bf16_f32 v{UO+i}, v{XG+2*i}, v{XG+2*i+1}")
    a.nop(2)
    a(f"v_permlane16_swap_b32 v{UO}, v{UO+2}")
    a(f"v_permlane16_swap_b32 v{UO+1}, v{UO+3}")
    a(f"s_mov_b64 exec, s[{S.EY}:{S.EY+1}]")
    a(f"buffer_store_dwordx4 {V(UO,4)}, v{VROW}, {R4(S.ROUT)}, s{S.T0} offen")
    a("s_mov_b64 exec, -1")
    stamp(11)
    a(f"s_cmp_lg_u32 s{S.Z}, 0")
    a("s_cbranch_scc1 L_zend")
    a("s_mov_b64 exec, 0xffff")
    a("v_lshlrev_b32 v6, 2, v0")
    a(f"s_mov_b32 s{S.T0}, {WS_ALIVE}")
    a.label("L_za")
    a(f"buffer_load_dword v7, v6, {R4(S.RWS)}, s{S.T0} offen sc1")
    a(f"s_sub_u32 s{S.SPIN}, s{S.SPIN}, 1")
    a("s_cbranch_scc1 L_za_ok")
    a("s_waitcnt vmcnt(0)")
    a(f"v_cmp_ne_u32 vcc, s{S.TAG}, v7")
    a.nop(1)
    a("s_cbranch_vccnz L_za")
    a.label("L_za_ok")
    a("s_mov_b64 exec, 1")
    a(f"s_add_u32 s{S.E}, s{S.E}, 1")
    a(f"v_mov_b32 v9, s{S.E}")
    a(f"buffer_store_dword v9, v6, {R4(S.RWS)}, 0 offen sc1")
    a("s_mov_b64 exec, -1")
    a.label("L_zend")
    endprog()

    a.label("L_F")
    WG_, WD_, XV = 32, 48, 64
    PXS = f"s[{S.PX}:{S.PX+1}]"
    a(f"s_mul_i32 s{S.FJ}, s{S.T0}, 14")
    a(f"s_add_u32 s{S.FJ}, s{S.FJ}, s{S.T1}")
    a(f"s_sub_u32 s{S.FJ}, s{S.FJ}, 16")
    a(f"s_lshl1_add_u32 s{S.KS}, s{S.FJ}, s{S.WAVE}")
    a(f"s_and_b32 s{S.KS}, s{S.KS}, 7")
    a(f"s_mul_i32 s{S.T2}, s{S.KS}, {64*3584}")
    a(f"s_lshl_b32 s{S.T3}, s{S.FJ}, 5")
    a(f"s_add_u32 s{S.T2}, s{S.T2}, s{S.T3}")
    a("v_lshrrev_b32 v6, 1, v0")
    a("v_mul_u32_u24 v6, 3584, v6")
    a("v_and_b32 v7, 1, v0")
    a(f"v_lshl_add_u32 v7, v7, 4, s{S.T2}")
    a("v_add_u32 v3, v6, v7")
    a(f"v_add_u32 v4, {32*3584}, v3")
    a(f"s_lshl_b32 s{S.T4}, s{S.WAVE}, 12")
    a(f"s_mov_b32 m0, s{S.T4}")
    a(f"s_lshl3_add_u32 s{S.T3}, s{S.FJ}, s{S.WAVE}")
    a(f"s_lshl_b32 s{S.T3}, s{S.T3}, 11")
    a("v_lshlrev_b32 v5, 4, v0")
    a(f"s_mul_i32 s{S.T5}, s{S.WAVE}, 2176")
    a("s_waitcnt lgkmcnt(0)")
    a(f"global_load_lds_dwordx4 v3, s[{S.PWG}:{S.PWG+1}]{o.wpol}")
    a(f"s_add_u32 m0, s{S.T4}, 2048")
    a(f"v_add_u32 v6, s{S.T3}, v5")
    a(f"global_load_lds_dwordx4 v3, s[{S.PWU}:{S.PWU+1}]{o.wpol}")
    a(f"s_add_u32 m0, s{S.T4}, 1024")
    a("v_add_u32 v7, 1024, v6")
    a(f"global_load_lds_dwordx4 v4, s[{S.PWG}:{S.PWG+1}]{o.wpol}")
    a(f"s_add_u32 m0, s{S.T4}, 3072")
    if o.stamps:
        a(f"v_writelane_b32 v254, s{S.ST}, 0")
    a.nop(1)
    a(f"global_load_lds_dwordx4 v4, s[{S.PWU}:{S.PWU+1}]{o.wpol}")
    a(f"s_add_u32 m0, s{S.T5}, {L_WD}")
    a.nop(1)
    a(f"global_load_lds_dwordx4 v6, s[{S.PWD}:{S.PWD+1}]{o.wpol}")
    a(f"s_add_u32 m0, s{S.T5}, {L_WD+1088}")
    a.nop(1)
    a(f"global_load_lds_dwordx4 v7, s[{S.PWD}:{S.PWD+1}]{o.wpol}")
    tag_load()
    stamp(1)
    a("v_bfe_u32 v6, v0, 2, 2")
    a("v_and_b32 v7, 3, v0")
    a("v_lshlrev_b32 v8, 3, v7")
    a("v_lshl_add_u32 v9, v6, 5, v8")
    a("v_and_b32 v10, 1, v2")
    a("v_lshl_add_u32 v9, v10, 11, v9")
    a("v_lshrrev_b32 v10, 1, v2")
    a("v_lshl_add_u32 v9, v10, 10, v9")
    a(f"v_add_u32 v9, s{S.T4}, v9")
    a("v_lshlrev_b32 v15, 6, v10")
    a("v_mul_u32_u24 v10, 1088, v6")
    a("v_add_u32 v10, v10, v8")
    a("v_lshl_add_u32 v10, v2, 5, v10")
    a(f"s_lshl_b32 s{S.T5}, s{S.WAVE}, 8")
    a(f"v_add_u32 v10, s{S.T5}, v10")
    a("v_lshlrev_b32 v11, 2, v0")
    a(f"v_add_u32 v11, {L_RED}, v11")
    a(f"v_add_u32 v12, s{S.T5}, v11")
    a(f"v_mul_u32_u24 v13, {PZ}, v2")
    a("v_lshl_add_u32 v13, v1, 4, v13")
    a(f"s_lshl_b32 s{S.T1}, s{S.KS}, 7")
    a(f"v_add_u32 v15, s{S.T1}, v15")
    poll_setup(WS_KEYF)
    a(f"v_mov_b32 v14, {L_FKEY}")
    for i in range(2):
        a(f"v_mov_b32 v{16+i}, 0")
    for i in range(4):
        a(f"v_mov_b32 v{24+i}, 0")
    a("s_waitcnt vmcnt(2) lgkmcnt(0)")
    tag_make()
    stamp(2)
    for k in range(8):
        a(f"ds_read_b64_tr_b16 {V(WG_+2*k,2)}, v9 offset:{L_W + k*128}")
    a(f"s_cmp_lg_u32 s{S.WAVE}, 0")
    a("s_cbranch_scc1 L_f1")
    stamp(3)
    poll_granules(5, 20)
    stamp(4)
    wave_max_key(20)
    a("s_mov_b64 exec, 1")
    a("ds_write_b32 v14, v20")
    a("s_mov_b64 exec, -1")
    a.label("L_f1")
    a("s_waitcnt vmcnt(0) lgkmcnt(0)")
    a("s_barrier")
    a("ds_read_b32 v20, v14")
    a("s_waitcnt lgkmcnt(0)")
    a("v_not_b32 v20, v20")
    a("v_and_b32 v20, 2047, v20")
    a("v_lshl_add_u32 v15, v20, 10, v15")
    for i in range(4):
        a(f"global_load_dwordx4 {V(XV+4*i,4)}, v15, {PXS} offset:{16*i}")
    a(f"s_cmp_ge_u32 s{S.WAVE}, 4")
    a("s_cbranch_scc1 L_f2")
    for st in range(2):
        for k in range(4):
            a(f"ds_read_b64_tr_b16 {V(WD_+8*st+2*k,2)}, v10 offset:{L_WD + k*4*1088 + st*128}")
    a(f"s_mul_i32 s{S.T2}, s{S.WAVE}, {4*PZ}")
    a(f"s_lshl_b32 s{S.T3}, s{S.FJ}, 8")
    a(f"s_add_u32 s{S.T2}, s{S.T2}, s{S.T3}")
    a(f"s_add_u32 s{S.T2}, s{S.T2}, {WS_PART}")
    a(f"v_mov_b32 v29, s{S.TAG}")
    a(f"v_mov_b32 v31, s{S.TAG}")
    a.label("L_f2")
    for i in range(16):
        if i % 4 == 0:
            a(f"s_waitcnt vmcnt({3 - i // 4})")
        a(f"v_dot2c_f32_bf16 v{16+(i&1)}, v{XV+i}, v{WG_+i}")
    stamp(5)
    a.nop(3)
    a("v_add_f32 v16, v16, v17")
    a("ds_write_b32 v12, v16")
    a("s_waitcnt lgkmcnt(0)")
    a("s_barrier")
    a(f"s_cmp_ge_u32 s{S.WAVE}, 4")
    a("s_cbranch_scc1 L_fend")
    for i in range(4):
        a(f"ds_read2st64_b32 v[{16+2*i}:{17+2*i}], v11 offset0:{2*i} offset1:{2*i+1}")
    a("s_waitcnt lgkmcnt(2)")
    a("v_add_f32 v16, v16, v17")
    a("v_add_f32 v18, v18, v19")
    a("s_waitcnt lgkmcnt(0)")
    a("v_add_f32 v20, v20, v21")
    a("v_add_f32 v22, v22, v23")
    a("v_add_f32 v16, v16, v18")
    a("v_add_f32 v20, v20, v22")
    a("v_add_f32 v16, v16, v20")
    a("v_mov_b32 v18, v16")
    a.nop(2)
    a("v_permlane32_swap_b32 v16, v18")
    a("v_add_f32 v16, v16, v18")
    rnd(16, 16)
    a("v_mov_b32 v18, v16")
    sigmoid(17, 16)
    a("v_permlane16_swap_b32 v16, v18")
    a("v_mul_f32 v17, v17, v16")
    rnd(17, 17)
    a("v_mul_f32 v17, v17, v18")
    a.nop(2)
    a(f"v_mov_b32_dpp v18, v17 quad_perm:[1,0,3,2] {DPPM}")
    a("v_cvt_pk_bf16_f32 v17, v17, v18")
    a.nop(1)
    for i in range(8):
        a(f"v_readlane_b32 s{S.HS+i}, v17, {2*i}")
    for i in range(8):
        a(f"v_dot2c_f32_bf16 v{24+(i&1)}, s{S.HS+i}, v{WD_+i}")
        a(f"v_dot2c_f32_bf16 v{26+(i&1)}, s{S.HS+i}, v{WD_+8+i}")
    a.nop(2)
    a("v_add_f32 v28, v24, v25")
    a("v_add_f32 v30, v26, v27")
    for c in range(o.pc):
        if c:
            a(f"s_add_u32 s{S.T2}, s{S.T2}, {PARTC}")
        a(f"buffer_store_dwordx4 v[28:31], v13, {R4(S.RWS)}, s{S.T2} offen sc1")
    stamp(6)
    a.label("L_fend")
    endprog()
    a.label("L_end")
    a("s_endpgm")
    return name


def main():
    ap = argparse.ArgumentParser()
    ap.add_argument("-o", required=True)
    ap.add_argument("--stamps", type=int, default=0)
    ap.add_argument("--pc", type=int, default=1)
    ap.add_argument("--pre", type=int, default=1)
    ap.add_argument("--zsleep", type=int, default=6)
    ap.add_argument("--wpol", default="")
    ap.add_argument("--outpol", default="")
    o = ap.parse_args()
    o.wpol = (" " + o.wpol) if o.wpol else ""
    o.outpol = (" " + o.outpol) if o.outpol else ""
    a = Asm()
    name = gen(a, o)
    finish(a, name, 256 if o.stamps else 224, 100, NWG, 512, LDS_BYTES, o.o)


main()
```

```python
import argparse
from lib import *

NA, NF, NZ = 128, 112, 16
NWG = NA + NF + NZ
WS_E = 0
WS_ALIVE = 4096
WS_KEY = 64 << 10
WS_PART = 256 << 10
PZ = NF * 256
PARTC = NZ * PZ
WS_INT = 2 << 20
CS = 32768 + 256
WS_STAMP = 8 << 20
WS_BYTES = 16 << 20
L_TILE = 0
L_U2 = 16384
L_CT = L_U2
UB = 17 * 64
L_MISC = L_U2 + 16 * UB
L_KSL = L_MISC
L_GKEY = L_MISC + 64
L_DUMP = L_MISC + 128
L_XG2 = L_DUMP + 4 * UB + 256
L_W = 0
L_WD = 32768
L_RED = L_WD + 16 * 1088
L_FKEY = L_RED + 2048
LDS_BYTES = 84 * 1024
MF = "v_mfma_f32_16x16x32_bf16"
LOG2E = 0x3fb8aa3b
DPPM = "row_mask:0xf bank_mask:0xf"
HIM = "0xffff0000"


class S:
    WAVE = 3
    PX = 4
    T0, T1, T2, T3, T4, T5 = 6, 7, 8, 9, 10, 11
    EX = 12
    EY = 14
    PWR, PWG, PWU, PWD, PGW, POUT, PDBG, PWS = 16, 18, 20, 22, 24, 26, 28, 30
    L0, L1, SPT, PIE = 32, 33, 34, 35
    RWS, ROUT = 36, 40
    HS = 44
    GKEY, WSEL, WHICH, Z = 44, 45, 46, 47
    SI0, SI1, ID8, BLK = 48, 49, 50, 51
    PO, POL, IDX, RC = 52, 53, 54, 55
    KM, SPIN, ISZ = 57, 58, 59
    T1C, HH, TD, TM = 60, 61, 62, 63
    FJ, KS = 60, 61
    ST = 68


def gen(a, o):
    name = NAME + "_kernel"
    kernel_head(a, name)
    VE, VTAG = 222, 223

    def stamp(i):
        if o.stamps:
            a(f"s_memrealtime s[{S.ST+2*i}:{S.ST+2*i+1}]")

    def endprog(dmap=()):
        if o.dbg:
            l = a.L("nodbg")
            a("s_waitcnt vmcnt(0) lgkmcnt(0)")
            a(f"s_lshl_b32 s{S.T0}, 1, s{S.WAVE}")
            a(f"s_and_b32 s{S.T0}, s{S.T0}, 0x91")
            a(f"s_cbranch_scc0 {l}")
            a("v_mov_b32 v252, 0")
            a(f"s_not_b32 s{S.T0}, s{S.ST}")
            a(f"v_writelane_b32 v252, s{S.T0}, 0")
            for st, k in dmap:
                a(f"v_writelane_b32 v252, s{S.ST+2*st}, {k}")
            a("s_mov_b64 exec, 0xffff")
            a("v_lshlrev_b32 v253, 2, v0")
            a(f"global_atomic_umax v253, v252, s[{S.PDBG}:{S.PDBG+1}]")
            a("s_mov_b64 exec, -1")
            a.label(l)
        if o.stamps:
            a("s_waitcnt lgkmcnt(0)")
            a(f"s_add_u32 s{S.ST+28}, s{S.RC}, s{S.ST+30}")
            for i in range(16):
                a(f"v_writelane_b32 v254, s{S.ST+2*i}, {i}")
            a("s_mov_b64 exec, 0xffff")
            a(f"s_lshl3_add_u32 s{S.T0}, s2, s{S.WAVE}")
            a(f"s_lshl_b32 s{S.T0}, s{S.T0}, 7")
            a(f"s_add_u32 s{S.T0}, s{S.T0}, {WS_STAMP}")
            a("v_lshlrev_b32 v253, 3, v0")
            a("v_mov_b32 v255, 0")
            a(f"buffer_store_dwordx2 v[254:255], v253, {R4(S.RWS)}, s{S.T0} offen")
        a("s_endpgm")

    def spin():
        a(f"s_add_u32 s{S.SPIN}, s{S.SPIN}, 1")
        a(f"s_lshr_b32 s{S.SPT}, s{S.SPIN}, {o.spin}")

    def poll_setup(c0, c1):
        a(f"s_mov_b32 s{S.PO}, {WS_KEY + 1024*c0}")
        a(f"s_mov_b32 s{S.POL}, {WS_KEY + 1024*c1}")

    def poll_granules(vaddr, vd, sleep=0):
        l = a.L("poll")
        if sleep:
            a(f"s_branch {l}_1")
        a.label(l)
        if sleep:
            a(f"s_sleep {sleep}")
            a.label(f"{l}_1")
        a(f"buffer_load_dwordx4 {V(vd,4)}, v{vaddr}, {R4(S.RWS)}, s{S.PO} offen sc1")
        a(f"s_add_u32 s{S.PO}, s{S.PO}, 1024")
        a(f"s_min_u32 s{S.PO}, s{S.PO}, s{S.POL}")
        if o.stamps:
            a(f"s_add_u32 s{S.RC}, s{S.RC}, 1")
        spin()
        a("s_waitcnt vmcnt(0)")
        a(f"s_cbranch_scc1 {l}_ok")
        a(f"v_cmp_ne_u32 vcc, v{VTAG}, v{vd+1}")
        a(f"v_cmp_ne_u32 s[{S.EX}:{S.EX+1}], v{VTAG}, v{vd+3}")
        a(f"s_or_b64 vcc, vcc, s[{S.EX}:{S.EX+1}]")
        a(f"s_cbranch_vccnz {l}")
        a.label(f"{l}_ok")

    def wave_max_key(vd):
        a(f"v_max_u32 v{vd}, v{vd}, v{vd+2}")
        for r in (8, 4, 2, 1):
            a.nop(2)
            a(f"v_max_u32_dpp v{vd}, v{vd}, v{vd} row_ror:{r} {DPPM}")
        a(f"v_mov_b32 v{vd+1}, v{vd}")
        a.nop(2)
        a(f"v_permlane16_swap_b32 v{vd}, v{vd+1}")
        a(f"v_max_u32 v{vd}, v{vd}, v{vd+1}")
        a(f"v_mov_b32 v{vd+1}, v{vd}")
        a.nop(2)
        a(f"v_permlane32_swap_b32 v{vd}, v{vd+1}")
        a(f"v_max_u32 v{vd}, v{vd}, v{vd+1}")

    def sigmoid(d, s):
        a(f"v_mul_f32 v{d}, {LOG2E | 0x80000000:#x}, v{s}")
        a(f"v_exp_f32 v{d}, v{d}")
        a.nop(1)
        a(f"v_add_f32 v{d}, 1.0, v{d}")
        a(f"v_rcp_f32 v{d}, v{d}")
        a.nop(1)

    def rnd(d, s):
        a(f"v_cvt_pk_bf16_f32 v{d}, v{s}, v{s}")
        a(f"v_and_b32 v{d}, {HIM}, v{d}")

    def tag_load():
        a(f"v_mov_b32 v{VTAG}, 0")
        a(f"global_load_dword v{VE}, v{VTAG}, s[{S.PWS}:{S.PWS+1}]")
        a.srd(S.RWS, S.PWS, WS_BYTES)
        a(f"s_mov_b32 s{S.SPIN}, 0")
        a(f"s_mov_b32 s{S.KM}, 0x9E3779B1")

    def tag_make():
        a(f"v_mul_lo_u32 v{VTAG}, v{VE}, s{S.KM}")
        a(f"v_add_u32 v{VTAG}, 0x7F4A7C15, v{VTAG}")

    a(f"s_load_dwordx2 s[{S.PX}:{S.PX+1}], s[0:1], {KA_X}")
    a(f"s_load_dwordx16 s[16:31], s[0:1], {KA_WR}")
    if o.stamps:
        for i in range(1, 16):
            a(f"s_mov_b32 s{S.ST+2*i}, 0")
        a(f"s_mov_b32 s{S.RC}, 0")
    stamp(0)
    if o.ffirst:
        a("s_xor_b32 s2, s2, 128")
    a("v_lshrrev_b32 v1, 6, v0")
    a("v_and_b32 v0, 63, v0")
    a(f"v_readfirstlane_b32 s{S.WAVE}, v1")
    a("v_and_b32 v1, 15, v0")
    a("v_lshrrev_b32 v2, 4, v0")
    a(f"s_and_b32 s{S.T0}, s2, 7")
    a(f"s_lshr_b32 s{S.T1}, s2, 3")
    a(f"s_cmp_ge_u32 s2, {NA}")
    a("s_cbranch_scc1 L_notA")
    if o.only == "F":
        a("s_endpgm")

    VROW, VG16, VSGN, VTR, VST = 3, 5, 8, 10, 11
    XR, WR, GW = 16, 24, 28
    CM, AOP, ACC = 32, 96, 112
    M1, GA, M2, XG, CO = 128, 176, 180, 196, 212
    VLD, VUW, VUX, VUR0, VUR1 = 216, 217, 218, 219, 220
    Cc, Ss = 64, 72

    def rows_setup(wreg):
        a(f"s_lshl3_add_u32 s{S.T5}, s{S.HH}, s{wreg}")
        a(f"s_lshl_b32 s{S.T5}, s{S.T5}, 7")
        a(f"s_add_u32 s{S.TD}, s{S.T5}, s{S.T1C}")
        a(f"s_sub_u32 s{S.TM}, 2048, s{S.TD}")
        a(f"s_cmp_eq_u32 s{S.TD}, 0")
        a(f"s_cselect_b32 s{S.TM}, 1024, s{S.TM}")
        a(f"s_lshl_b32 s{S.T4}, s{S.TD}, 10")
        a(f"s_lshl_b32 s{S.T5}, s{S.TM}, 10")
        a(f"v_add_u32 v6, s{S.T4}, v{VROW}")
        a(f"v_add_u32 v7, s{S.T5}, v{VROW}")

    def vrow_setup():
        a("v_and_b32 v6, 1, v2")
        a("v_lshlrev_b32 v6, 5, v6")
        a("v_lshl_add_u32 v6, v1, 6, v6")
        a("v_lshrrev_b32 v7, 1, v2")
        a(f"v_lshl_add_u32 v{VROW}, v7, 4, v6")

    def rows_load():
        a(f"global_load_dwordx4 {V(XR,4)}, v6, s[{S.PX}:{S.PX+1}]")
        a(f"global_load_dwordx4 {V(XR+4,4)}, v7, s[{S.PX}:{S.PX+1}]")

    def sgn_setup():
        a(f"v_lshlrev_b32 v{VSGN}, 31, v1")
        a(f"v_lshrrev_b32 v9, 16, v{VSGN}")
        a(f"v_or_b32 v{VSGN}, v{VSGN}, v9")

    a(f"s_add_u32 s{S.T2}, s{S.T0}, 1")
    a(f"s_sub_u32 s{S.T3}, 15, s{S.T0}")
    a(f"s_and_b32 s{S.HH}, s{S.T1}, 1")
    a(f"s_bitcmp1_b32 s{S.T1}, 1")
    a(f"s_cselect_b32 s{S.T4}, s{S.T3}, s{S.T2}")
    a(f"s_lshr_b32 s{S.T5}, s{S.T1}, 2")
    a(f"s_lshl4_add_u32 s{S.T1C}, s{S.T5}, s{S.T4}")
    vrow_setup()
    a(f"s_cmp_lg_u32 s{S.T0}, 7")
    a("s_cbranch_scc1 L_k7")
    a(f"s_lshr_b32 s{S.T5}, s{S.T1}, 1")
    a(f"s_lshl3_add_u32 s{S.T1C}, s{S.T5}, 8")
    a(f"s_mov_b32 s{S.T2}, 0")
    a(f"s_cmp_eq_u32 s2, 127")
    a(f"s_cselect_b32 s{S.T1C}, 0, s{S.T1C}")
    a(f"s_cselect_b32 s{S.HH}, 0, s{S.HH}")
    a.label("L_k7")
    rows_setup(S.WAVE)
    a(f"s_bitcmp1_b32 s{S.T1}, 3")
    a(f"s_cselect_b32 s{S.T2}, s{S.T3}, s{S.T2}")
    a(f"s_and_b32 s{S.T3}, s{S.T1}, 7")
    a(f"s_lshl3_add_u32 s{S.BLK}, s{S.T2}, s{S.T3}")
    a(f"s_lshl_b32 s{S.PIE}, s{S.T2}, 5")
    a(f"s_add_u32 s{S.PIE}, s{S.PIE}, s{S.T3}")
    a(f"s_lshl_b32 s{S.PIE}, s{S.PIE}, 6")
    a("v_and_b32 v9, 7, v0")
    a("s_waitcnt lgkmcnt(0)")
    rows_load()
    a(f"global_load_dwordx4 {V(WR,4)}, v{VROW}, s[{S.PWR}:{S.PWR+1}]")
    stamp(1)
    a(f"s_lshl_b32 s{S.T2}, s{S.WAVE}, 11")
    a(f"s_add_u32 s{S.T3}, s{S.T2}, s{S.BLK}")
    a(f"s_lshl_b32 s{S.T3}, s{S.T3}, 7")
    a(f"s_mov_b32 m0, s{S.T2}")
    a("v_bfe_u32 v13, v0, 4, 1")
    a("v_xor_b32 v9, v9, v13")
    a("v_lshrrev_b32 v13, 3, v0")
    a(f"v_lshl_add_u32 v9, v9, 4, s{S.T3}")
    a("v_lshl_add_u32 v6, v13, 14, v9")
    tag_load()
    a(f"global_load_lds_dwordx4 v6, s[{S.PX}:{S.PX+1}]")
    a(f"s_add_u32 m0, s{S.T2}, 1024")
    a("v_add_u32 v6, 0x20000, v6")
    a(f"global_load_lds_dwordx4 v6, s[{S.PX}:{S.PX+1}]")
    if o.apf:
        a(f"s_and_b32 s{S.T0}, s2, 7")
        a(f"s_lshr_b32 s{S.T1}, s2, 3")
        a(f"s_lshl4_add_u32 s{S.T4}, s{S.T0}, s{S.T1}")
        a(f"s_mul_i32 s{S.T5}, s{S.T0}, 12")
        a(f"s_add_u32 s{S.T5}, s{S.T5}, s{S.T1}")
        a(f"s_add_u32 s{S.T5}, s{S.T5}, 16")
        a(f"s_cmp_lt_u32 s{S.T0}, 4")
        a(f"s_cselect_b32 s{S.T4}, s{S.T4}, s{S.T5}")
        a(f"s_min_u32 s{S.T4}, s{S.T4}, 111")
        a(f"s_lshl3_add_u32 s{S.T4}, s{S.T4}, s{S.WAVE}")
        a(f"s_lshl_b32 s{S.T4}, s{S.T4}, 11")
        a(f"v_lshl_add_u32 v6, v0, 4, s{S.T4}")
        a(f"global_load_dwordx4 v[{M1}:{M1+3}], v6, s[{S.PWD}:{S.PWD+1}]")
        a(f"global_load_dwordx4 v[{M1+4}:{M1+7}], v6, s[{S.PWD}:{S.PWD+1}] offset:1024")
    stamp(2)
    C1, S1, K = AOP, AOP + 4, AOP + 8
    a(f"s_lshr_b32 s{S.T0}, s{S.WAVE}, 2")
    misc = [f"s_mul_i32 s{S.SI0}, s{S.T0}, {16*CS}",
            f"s_add_u32 s{S.SI0}, s{S.SI0}, s{S.PIE}",
            f"s_and_b32 s{S.T4}, s{S.WAVE}, 3",
            f"s_lshl_b32 s{S.T4}, s{S.T4}, 9",
            f"s_add_u32 s{S.SI0}, s{S.SI0}, s{S.T4}",
            f"s_add_u32 s{S.SI0}, s{S.SI0}, {WS_INT}",
            f"s_add_u32 s{S.SI1}, s{S.SI0}, {32*CS}"]
    for i, m in enumerate(misc):
        a(m)
        if i < 4:
            a(f"v_mov_b32 v{ACC+i}, -1")
        if i == 4:
            a(f"v_mul_u32_u24 v{VST}, {CS}, v1")
        if i == 5:
            a(f"v_lshl_add_u32 v{VST}, v2, 4, v{VST}")
    a(f"buffer_store_dwordx4 {V(ACC,4)}, v{VST}, {R4(S.RWS)}, s{S.SI0} offen sc1")
    a(f"buffer_store_dwordx4 {V(ACC,4)}, v{VST}, {R4(S.RWS)}, s{S.SI1} offen sc1")
    a(f"s_and_b32 s{S.T1}, s{S.WAVE}, 1")
    a(f"s_bfe_u32 s{S.T2}, s{S.WAVE}, 0x10001")
    a(f"v_lshl_add_u32 v6, s{S.T0}, 4, v1")
    a(f"s_lshl3_add_u32 s{S.T3}, s{S.T2}, s{S.T1}")
    a(f"s_lshl_b32 s{S.T3}, s{S.T3}, 2")
    a("v_cvt_f32_u32 v6, v6")
    a(f"v_lshl_add_u32 v7, v2, 3, s{S.T3}")
    a("v_mul_f32 v6, 0x3c000000, v6")
    a("v_cvt_f32_u32 v7, v7")
    a(f"v_lshlrev_b32 v{VG16}, 4, v0")
    a("v_mul_f32 v7, v7, v6")
    for j in range(4):
        a(f"v_cos_f32 v{C1+j}, v7")
        a(f"v_sin_f32 v{S1+j}, v7")
        if j < 3:
            a("v_add_f32 v7, v7, v6")
    a(f"s_lshl_b32 s{S.T4}, s{S.T0}, 13")
    a(f"s_lshl_b32 s{S.T5}, s{S.T2}, 10")
    a(f"s_lshl3_add_u32 s{S.T5}, s{S.T1}, s{S.T5}")
    a(f"v_add_u32 v15, s{S.T4}, v{VG16}")
    a(f"v_add_u32 v9, s{S.T5}, v15")
    a(f"v_cvt_pk_bf16_f32 v{K+0}, v{C1}, v{C1+1}")
    a(f"v_cvt_pk_bf16_f32 v{K+1}, v{C1+2}, v{C1+3}")
    a(f"v_cvt_pk_bf16_f32 v{K+2}, -v{S1}, -v{S1+1}")
    a(f"v_cvt_pk_bf16_f32 v{K+3}, -v{S1+2}, -v{S1+3}")
    a("v_cmp_eq_f32 vcc, 0, v6")
    a(f"v_cvt_pk_bf16_f32 v{K+4}, v{C1}, -v{S1+1}")
    a(f"v_cvt_pk_bf16_f32 v{K+5}, -v{C1+2}, v{S1+3}")
    a(f"v_cvt_pk_bf16_f32 v{K+6}, -v{S1}, -v{C1+1}")
    a(f"v_cvt_pk_bf16_f32 v{K+7}, v{S1+2}, v{C1+3}")
    a(f"ds_write_b64 v9, {V(K,2)} offset:{L_CT}")
    a(f"ds_write_b64 v9, {V(K+4,2)} offset:{L_CT+4096}")
    a(f"ds_write_b64 v9, {V(K+6,2)} offset:{L_CT+6144}")
    a("s_mov_b64 exec, vcc")
    a(f"v_mov_b32 v{K+2}, 0xbf803f80")
    a(f"v_mov_b32 v{K+3}, 0xbf803f80")
    a("s_mov_b64 exec, -1")
    a(f"ds_write_b64 v9, {V(K+2,2)} offset:{L_CT+2048}")
    a(f"s_sub_u32 s{S.T4}, 0xffff, s{S.TD}")
    a(f"s_sub_u32 s{S.T5}, 0xffff, s{S.TM}")
    a(f"v_mov_b32 v4, s{S.T4}")
    a(f"v_writelane_b32 v4, s{S.T5}, 32")
    a(f"s_lshl3_add_u32 s{S.T4}, s{S.WAVE}, {L_KSL}")
    a("v_lshrrev_b32 v9, 3, v0")
    a(f"v_add_u32 v9, s{S.T4}, v9")
    a("v_mov_b32 v12, 0")
    a("v_mov_b32 v13, 0")
    a("v_lshlrev_b32 v14, 10, v0")
    a(f"s_lshl_b32 s{S.ID8}, s2, 3")
    a(f"s_add_u32 s{S.ID8}, s{S.ID8}, {WS_KEY}")
    stamp(3)

    def dots(w):
        for i in range(4):
            a(f"v_dot2c_f32_bf16 v12, v{XR+i}, v{w+i}")
            a(f"v_dot2c_f32_bf16 v13, v{XR+4+i}, v{w+i}")
        a.nop(3)
        a("v_permlane32_swap_b32 v12, v13")
        a("v_add_f32 v12, v12, v13")
        a("v_mov_b32 v13, v12")
        a.nop(2)
        a("v_permlane16_swap_b32 v12, v13")
        a("v_add_f32 v12, v12, v13")
        for r in (8, 4, 2, 1):
            a.nop(2)
            a(f"v_add_f32_dpp v12, v12, v12 row_ror:{r} {DPPM}")
        rnd(12, 12)

    a(f"s_waitcnt vmcnt({5 + 2*o.apf})")
    stamp(4)
    dots(WR)
    a("v_ashrrev_i32 v7, 31, v12")
    a("v_or_b32 v7, 0x80000000, v7")
    a("v_xor_b32 v7, v7, v12")
    a(f"v_and_b32 v7, {HIM}, v7")
    a("v_or_b32 v7, v7, v4")
    a("s_mov_b32 exec_lo, 1")
    a("s_mov_b32 exec_hi, 1")
    a("ds_write_b32 v9, v7")
    a("s_mov_b64 exec, -1")
    a("s_waitcnt lgkmcnt(0)")
    a("s_barrier")
    a(f"s_cmp_lg_u32 s{S.WAVE}, 0")
    a("s_cbranch_scc1 L_nokey")
    a(f"v_mov_b32 v9, {L_KSL}")
    for i in range(4):
        a(f"ds_read_b128 {V(CM+4*i,4)}, v9 offset:{16*i}")
    a(f"s_waitcnt vmcnt({4 + 2*o.apf})")
    tag_make()
    a("s_mov_b64 exec, 0xfff")
    a("s_waitcnt lgkmcnt(2)")
    a(f"v_max3_u32 v6, v{CM}, v{CM+1}, v{CM+2}")
    a(f"v_max3_u32 v7, v{CM+3}, v{CM+4}, v{CM+5}")
    a(f"v_max3_u32 v6, v{CM+6}, v{CM+7}, v6")
    a("s_waitcnt lgkmcnt(0)")
    a(f"v_max3_u32 v7, v{CM+8}, v{CM+9}, v7")
    a(f"v_max3_u32 v6, v{CM+10}, v{CM+11}, v6")
    a(f"v_max3_u32 v7, v{CM+12}, v{CM+13}, v7")
    a(f"v_max3_u32 v6, v{CM+14}, v{CM+15}, v6")
    a(f"v_max_u32 v{VE}, v6, v7")
    a(f"buffer_store_dwordx2 v[{VE}:{VTAG}], v14, {R4(S.RWS)}, s{S.ID8} offen sc1")
    a("s_mov_b64 exec, -1")
    stamp(5)
    a.label("L_nokey")
    for t in range(4):
        for kp in range(2):
            a(f"ds_read_b128 {V(CM+16*t+4*kp,4)}, v15 offset:{L_CT + t*2048 + kp*1024}")
    sgn_setup()
    a("v_bfe_u32 v6, v0, 2, 2")
    a("v_lshl_add_u32 v7, v2, 3, v6")
    a("v_and_b32 v9, 3, v0")
    a(f"v_lshl_add_u32 v9, v9, 1, s{S.T2}")
    a("v_lshrrev_b32 v6, 1, v6")
    a("v_xor_b32 v9, v9, v6")
    a(f"s_lshl_b32 s{S.T1}, s{S.T1}, 3")
    a(f"v_lshl_add_u32 v9, v9, 4, s{S.T1}")
    a(f"v_lshl_add_u32 v{VTR}, v7, 7, v9")
    for t in range(4):
        a(f"s_waitcnt lgkmcnt({6-2*t})")
        for r in range(8):
            a(f"v_xor_b32 v{CM+t*16+8+r}, v{CM+t*16+r}, v{VSGN}")
    a(f"s_cmp_eq_u32 s{S.WAVE}, 0")
    a("s_cbranch_scc1 L_w0a")
    a("s_waitcnt vmcnt(0)")
    a("s_barrier")
    a("s_branch L_w0b")
    a.label("L_w0a")
    a(f"s_add_u32 s{S.T0}, s{S.ID8}, {12*1024}")
    a("s_waitcnt vmcnt(1)")
    a("s_barrier")
    a("s_mov_b64 exec, 0xf")
    a(f"buffer_store_dwordx2 v[{VE}:{VTAG}], v14, {R4(S.RWS)}, s{S.T0} offen sc1")
    a("s_mov_b64 exec, -1")
    a.label("L_w0b")
    stamp(6)
    for k in range(4):
        for h in range(2):
            a(f"ds_read_b64_tr_b16 {V(AOP+4*k+2*h,2)}, v{VTR} offset:{L_TILE + k*4096 + h*512}")
    a(f"global_load_dwordx4 {V(GW,4)}, v{VROW}, s[{S.PGW}:{S.PGW+1}]")
    for k in range(4):
        a(f"s_waitcnt lgkmcnt({6-2*k})")
        for t in range(4):
            c = "0" if k == 0 else V(ACC + 4 * t, 4)
            a(f"{MF} {V(ACC+4*t,4)}, {V(AOP+4*k,4)}, {V(CM+16*t+4*k,4)}, {c}")
    a("v_mov_b32 v12, 0")
    a("v_mov_b32 v13, 0")
    a.nop(4)
    for i in range(4):
        a(f"v_cvt_pk_bf16_f32 v{AOP+i}, v{ACC+i}, v{ACC+4+i}")
    a(f"buffer_store_dwordx4 {V(AOP,4)}, v{VST}, {R4(S.RWS)}, s{S.SI0} offen sc1")
    for i in range(4):
        a(f"v_cvt_pk_bf16_f32 v{AOP+4+i}, v{ACC+8+i}, v{ACC+12+i}")
    a(f"buffer_store_dwordx4 {V(AOP+4,4)}, v{VST}, {R4(S.RWS)}, s{S.SI1} offen sc1")
    stamp(7)

    def gates(full):
        dots(GW)
        sigmoid(13, 12)
        rnd(13, 13)
        a("v_sub_f32 v14, 1.0, v13")
        rnd(14, 14)
        a(f"v_readlane_b32 s{S.T0}, v13, 0")
        a(f"v_readlane_b32 s{S.T1}, v13, 32")
        a(f"v_readlane_b32 s{S.T2}, v14, 0")
        a(f"v_readlane_b32 s{S.T3}, v14, 32")
        a(f"s_xor_b32 s{S.T4}, s{S.T0}, 0x80000000")
        a(f"s_cmp_eq_u32 s{S.TD}, 0")
        a(f"s_cselect_b32 s{S.T4}, 0, s{S.T4}")
        a(f"s_cselect_b32 s{S.T5}, 0, s{S.T1}")
        if not full:
            return
        a(f"v_mov_b32 v{CO}, s{S.T0}")
        a(f"v_mov_b32 v{CO+1}, s{S.T4}")
        a(f"v_mov_b32 v{CO+2}, s{S.T5}")
        a(f"v_mov_b32 v{CO+3}, s{S.T1}")
        a(f"v_mov_b32 v13, s{S.T2}")
        a(f"v_mov_b32 v14, s{S.T3}")
        for r in range(2):
            a(f"v_permlane16_swap_b32 v{XR+4*r}, v{XR+4*r+2}")
            a(f"v_permlane16_swap_b32 v{XR+4*r+1}, v{XR+4*r+3}")
        for r in range(2):
            for i in range(4):
                a(f"v_lshlrev_b32 v{XG+8*r+2*i}, 16, v{XR+4*r+i}")
                a(f"v_and_b32 v{XG+8*r+2*i+1}, {HIM}, v{XR+4*r+i}")
            for i in range(8):
                a(f"v_mul_f32 v{XG+8*r+i}, v{13+r}, v{XG+8*r+i}")

    def const_d2():
        a("v_lshlrev_b32 v6, 2, v2")
        a("v_cvt_f32_u32 v7, v1")
        a("v_cvt_f32_u32 v6, v6")
        a("v_mul_f32 v7, 0x3d800000, v7")
        for hf in range(2):
            if hf:
                a("v_add_f32 v7, 0x3d800000, v7")
            a("v_mul_f32 v9, v6, v7")
            for jj in range(4):
                a(f"v_cos_f32 v{Cc+jj}, v9")
                a(f"v_sin_f32 v{Ss+jj}, v9")
                if jj < 3:
                    a("v_add_f32 v9, v9, v7")
            a.nop(1)
            for jj in range(4):
                if hf == 0:
                    a(f"v_cvt_pk_bf16_f32 v{M2+jj}, v{Cc+jj}, v{Ss+jj}")
                    a(f"v_cvt_pk_bf16_f32 v{M2+4+jj}, -v{Ss+jj}, v{Cc+jj}")
                else:
                    a(f"v_cvt_pk_bf16_f32 v{M2+8+jj}, v{Cc+jj}, -v{Ss+jj}")
                    a(f"v_cvt_pk_bf16_f32 v{M2+12+jj}, -v{Ss+jj}, -v{Cc+jj}")

    def const_d2_fix():
        l = a.L("nosp")
        a(f"s_cmp_lg_u32 s{S.TD}, 0")
        a(f"s_cbranch_scc1 {l}")
        for jj in range(4):
            a(f"v_mov_b32 v{M2+4+jj}, v{M2+jj}")
            a(f"v_mov_b32 v{M2+12+jj}, v{M2+8+jj}")
        a.label(l)

    def addr_ur():
        a("v_bfe_u32 v7, v1, 1, 2")
        a("v_xor_b32 v7, v7, v2")
        a("v_lshlrev_b32 v7, 4, v7")
        a(f"v_lshl_add_u32 v{VUR0}, v1, 6, v7")
        a("v_sub_u32 v6, 16, v1")
        a("v_bfe_u32 v7, v6, 1, 2")
        a("v_xor_b32 v7, v7, v2")
        a("v_lshlrev_b32 v7, 4, v7")
        a(f"v_lshl_add_u32 v{VUR1}, v6, 6, v7")

    def addr_ur_blk(wreg):
        a(f"s_mul_i32 s{S.T1}, s{wreg}, {2*UB}")
        a(f"v_add_u32 v{VUR0}, s{S.T1}, v{VUR0}")
        a(f"v_add_u32 v{VUR1}, s{S.T1}, v{VUR1}")

    def addr_p2():
        a("v_lshlrev_b32 v6, 4, v1")
        a(f"v_lshl_add_u32 v{VLD}, v2, 13, v6")
        a(f"v_mul_u32_u24 v6, {4*UB}, v2")
        a("v_bfe_u32 v7, v1, 1, 2")
        a(f"v_xor_b32 v7, s{S.WAVE}, v7")
        a("v_lshl_add_u32 v7, v7, 4, v6")
        a(f"v_lshl_add_u32 v{VUW}, v1, 6, v7")
        a(f"s_lshl4_add_u32 s{S.T1}, s{S.WAVE}, 1024")
        a(f"v_mov_b32 v9, {L_DUMP - L_U2}")
        a(f"v_lshl_add_u32 v{VUX}, v0, 1, v9")
        a(f"v_lshl_add_u32 v7, v1, 1, s{S.T1}")
        a("s_mov_b32 exec_lo, 0x00ff00ff")
        a("s_mov_b32 exec_hi, 0x00ff00ff")
        a(f"v_add_u32 v{VUX}, v7, v6")
        a("s_mov_b64 exec, -1")

    def const_d1():
        a("v_cvt_f32_u32 v6, v1")
        a(f"s_lshl_b32 s{S.T0}, s{S.WAVE}, 2")
        a(f"v_lshl_add_u32 v7, v2, 6, s{S.T0}")
        a("v_mul_f32 v6, 0x3b000000, v6")
        a("v_cvt_f32_u32 v7, v7")
        a("v_mul_f32 v15, 0x41800000, v6")
        a("v_mul_f32 v7, v7, v6")
        for ib in range(4):
            if ib:
                a("v_add_f32 v7, v7, v6")
            for j in range(4):
                src = "v7" if j == 0 else "v9"
                a(f"v_cos_f32 v{Cc+j}, {src}")
                a(f"v_sin_f32 v{Ss+j}, {src}")
                if j < 3:
                    a(f"v_add_f32 v9, {src}, v15")
            b = M1 + 12 * ib
            a(f"v_mov_b32 v{b+8}, 0")
            for p in range(2):
                a(f"v_cvt_pk_bf16_f32 v{b+p}, v{Cc+2*p}, v{Cc+2*p+1}")
                a(f"v_cvt_pk_bf16_f32 v{b+4+p}, -v{Ss+2*p}, -v{Ss+2*p+1}")
            for p in range(2):
                a(f"v_xor_b32 v{b+2+p}, v{b+p}, v{VSGN}")
                a(f"v_xor_b32 v{b+6+p}, v{b+4+p}, v{VSGN}")
        a("v_lshrrev_b32 v6, 1, v1")
        a(f"v_add_u32 v7, s{S.T0}, v6")
        a("v_and_b32 v9, 1, v1")
        a("v_lshl_add_u32 v7, v9, 3, v7")
        a("v_cvt_f32_u32 v7, v7")
        a("v_mul_f32 v7, 0x3d000000, v7")
        a("v_cos_f32 v7, v7")
        for ib in range(4):
            m = 0x00030003 << (2 * ib)
            a(f"s_mov_b32 exec_lo, {m:#x}")
            a(f"s_mov_b32 exec_hi, {m:#x}")
            a(f"v_cvt_pk_bf16_f32 v{M1+12*ib+8}, v7, -v7")
        a("s_mov_b64 exec, -1")
        for ib in range(4):
            for p in range(1, 4):
                a(f"v_mov_b32 v{M1+12*ib+8+p}, v{M1+12*ib+8}")

    def const_ga():
        a("v_lshrrev_b32 v6, 1, v1")
        a(f"s_lshl_b32 s{S.T0}, s{S.HH}, 10")
        a(f"s_add_u32 s{S.T0}, s{S.T0}, s{S.T1C}")
        a(f"v_lshl_add_u32 v6, v6, 7, s{S.T0}")
        a("v_and_b32 v7, 1, v1")
        a("v_lshlrev_b32 v9, 9, v7")
        l0, ld = a.L("g0"), a.L("gd")
        a(f"s_cmp_lg_u32 s{S.T1C}, 0")
        a(f"s_cbranch_scc1 {l0}")
        a("s_mov_b32 exec_lo, 0x00020002")
        a("s_mov_b32 exec_hi, 0x00020002")
        a("v_mov_b32 v6, 0x400")
        a("v_mov_b32 v9, 0")
        a("s_mov_b64 exec, -1")
        a.label(l0)
        a("v_lshlrev_b32 v7, 2, v2")
        a("v_mad_u32_u24 v9, v7, v6, v9")
        a("v_cvt_f32_u32 v6, v6")
        a("v_cvt_f32_u32 v9, v9")
        a("v_mul_f32 v6, 0x3a000000, v6")
        a("v_mul_f32 v9, 0x3a000000, v9")
        for jj in range(4):
            a(f"v_cos_f32 v{Cc+jj}, v9")
            a(f"v_sin_f32 v{Ss+jj}, v9")
            if jj < 3:
                a("v_add_f32 v9, v9, v6")
        a(f"s_and_b32 s{S.T1}, s{S.T1C}, 63")
        a(f"s_mul_i32 s{S.L0}, s{S.T1}, {CS}")
        for jj in range(4):
            a(f"v_cvt_pk_bf16_f32 v{GA+jj}, v{Cc+jj}, v{Ss+jj}")
        a(f"s_cmp_lg_u32 s{S.T1}, 0")
        a(f"s_cbranch_scc1 {ld}")
        a(f"s_lshr_b32 s{S.T1}, s{S.T1C}, 2")
        for jj in range(4):
            a(f"v_and_b32 v{GA+jj}, 0xffff, v{GA+jj}")
            a(f"v_lshlrev_b32 v{GA+jj}, s{S.T1}, v{GA+jj}")
        a.label(ld)
        a(f"s_lshl_b32 s{S.T1}, s{S.WAVE}, 9")
        a(f"s_add_u32 s{S.L0}, s{S.L0}, s{S.T1}")
        a(f"s_add_u32 s{S.L0}, s{S.L0}, {WS_INT}")
        a(f"s_add_u32 s{S.L1}, s{S.L0}, 4096")

    LD, DA, OP1, D1A, X16, TP = 32, 64, 96, 32, 112, 96

    def int_loads(ah):
        for jj in range(4):
            so = S.L0 if jj < 2 else S.L1
            a(f"buffer_load_dwordx4 {V(LD+16*ah+4*jj,4)}, v{VLD}, {R4(S.RWS)}, s{so} offen offset:{(jj & 1)*2048 + ah*256} sc1")

    def int_check(ah):
        b = LD + 16 * ah
        a(f"v_max3_u32 v6, v{b}, v{b+2}, v{b+4}")
        a(f"v_max3_u32 v7, v{b+6}, v{b+8}, v{b+10}")
        a(f"v_max3_u32 v6, v{b+12}, v{b+14}, v6")
        a("v_max_u32 v6, v6, v7")
        a("v_cmp_eq_u32 vcc, -1, v6")

    def late_consts():
        gates(True)
        const_d2()
        const_d2_fix()
        addr_ur()
        addr_ur_blk(S.WAVE)

    a.srd(S.ROUT, S.POUT, 0x200000)
    a(f"s_mov_b32 s{S.ISZ}, 0")
    a(f"s_cmp_ge_u32 s{S.WAVE}, 4")
    a("s_cbranch_scc1 L_hi0")
    addr_p2()
    const_ga()
    if o.m1pre:
        const_d1()
    stamp(8)
    a(f"s_waitcnt vmcnt({0 if o.ackwait & 1 else 2})")
    a("s_barrier")
    stamp(9)
    int_loads(0)
    int_loads(1)
    if not o.m1pre:
        const_d1()
    late_consts()
    a.label("L_zjoin")
    stamp(10)
    for ah in range(2):
        a(f"s_waitcnt vmcnt({4-4*ah})")
        int_check(ah)
        a.nop(1)
        a(f"s_cbranch_vccnz L_retry{ah}")
        a.label(f"L_got{ah}")
        b = LD + 16 * ah
        tp = TP + 16 * ah
        for ib in range(5):
            if ib < 4:
                for p in range(2):
                    s0 = b + 8 * p + (ib & 2)
                    a(f"v_pk_mov_b32 {V(tp+4*ib+2*p,2)}, {V(s0,2)}, {V(s0+4,2)} op_sel:[{ib&1},{ib&1}]")
            else:
                a.nop(2)
            if ib:
                a(f"{MF} {V(DA+8*(ib-1)+4*ah,4)}, {V(tp+4*(ib-1),4)}, {V(GA,4)}, 0")
    stamp(11)
    a.nop(1)
    for ib in range(4):
        for p in range(4):
            a(f"v_cvt_pk_bf16_f32 v{OP1+4*ib+p}, v{DA+8*ib+2*p}, v{DA+8*ib+2*p+1}")
        if ib == 0:
            continue
        jb = ib - 1
        a(f"{MF} {V(D1A+8*jb,4)}, {V(OP1+4*jb,4)}, {V(M1+12*jb,4)}, 0")
        a(f"{MF} {V(D1A+8*jb+4,4)}, {V(OP1+4*jb,4)}, {V(M1+12*jb+4,4)}, 0")
        a(f"{MF} {V(X16,4)}, {V(OP1+4*jb,4)}, {V(M1+12*jb+8,4)}, {'0' if jb == 0 else V(X16,4)}")
    a(f"{MF} {V(D1A+24,4)}, {V(OP1+12,4)}, {V(M1+36,4)}, 0")
    a(f"{MF} {V(D1A+28,4)}, {V(OP1+12,4)}, {V(M1+40,4)}, 0")
    a(f"{MF} {V(X16,4)}, {V(OP1+12,4)}, {V(M1+44,4)}, {V(X16,4)}")
    PK = 64
    for ib in range(3):
        for i in range(4):
            a(f"v_cvt_pk_bf16_f32 v{PK+4*i+ib}, v{D1A+8*ib+i}, v{D1A+8*ib+4+i}")
    for i in range(4):
        a(f"v_cvt_pk_bf16_f32 v{PK+4*i+3}, v{D1A+24+i}, v{D1A+28+i}")
        a(f"ds_write_b128 v{VUW}, {V(PK+4*i,4)} offset:{L_U2 + i*UB}")
    a(f"v_cvt_pk_bf16_f32 v{X16}, v{X16}, v{X16+1}")
    a(f"v_cvt_pk_bf16_f32 v{X16+2}, v{X16+2}, v{X16+3}")
    a(f"ds_write_b16 v{VUX}, v{X16} offset:{L_U2}")
    a(f"ds_write_b16_d16_hi v{VUX}, v{X16} offset:{L_U2+UB}")
    a(f"ds_write_b16 v{VUX}, v{X16+2} offset:{L_U2+2*UB}")
    a(f"ds_write_b16_d16_hi v{VUX}, v{X16+2} offset:{L_U2+3*UB}")
    a.label("L_d2")
    a("s_waitcnt lgkmcnt(0)")
    a("s_barrier")
    stamp(12)
    UO, PQ = 32, 48
    a(f"s_cmp_lg_u32 s{S.ISZ}, 0")
    a("s_cbranch_scc1 L_zfin")
    a(f"ds_read_b128 {V(UO,4)}, v{VUR0} offset:{L_U2}")
    a(f"ds_read_b128 {V(UO+4,4)}, v{VUR1} offset:{L_U2}")
    a(f"ds_read_b128 {V(UO+8,4)}, v{VUR0} offset:{L_U2+UB}")
    a(f"ds_read_b128 {V(UO+12,4)}, v{VUR1} offset:{L_U2+UB}")
    a(f"v_mov_b32 v9, {L_GKEY}")
    a("ds_read_b32 v6, v9")
    for k, m in enumerate((0, 8, 4, 12)):
        a(f"s_waitcnt lgkmcnt({4-k})")
        a(f"{MF} {V(PQ+4*k,4)}, {V(UO+4*k,4)}, {V(M2+m,4)}, 0")
    a("s_waitcnt lgkmcnt(0)")
    a(f"v_readfirstlane_b32 s{S.GKEY}, v6")
    a(f"s_lshl_b32 s{S.T0}, s{S.TD}, 10")
    a(f"s_lshl_b32 s{S.T1}, s{S.TM}, 10")
    a(f"s_andn2_b32 s{S.IDX}, 0xffff, s{S.GKEY}")
    for r in range(2):
        for i in range(8):
            a(f"v_fmac_f32 v{XG+8*r+i}, v{CO+2*r}, v{PQ+i}")
    for r, (so, tr) in enumerate(((S.T0, S.TD), (S.T1, S.TM))):
        for i in range(8):
            a(f"v_fmac_f32 v{XG+8*r+i}, v{CO+2*r+1}, v{PQ+8+i}")
        for i in range(4):
            a(f"v_cvt_pk_bf16_f32 v{UO+4*r+i}, v{XG+8*r+2*i}, v{XG+8*r+2*i+1}")
        l = a.L("skip")
        a(f"s_cmp_eq_u32 s{tr}, s{S.IDX}")
        a(f"s_cbranch_scc1 {l}")
        a(f"v_permlane16_swap_b32 v{UO+4*r}, v{UO+4*r+2}")
        a(f"v_permlane16_swap_b32 v{UO+4*r+1}, v{UO+4*r+3}")
        a(f"buffer_store_dwordx4 {V(UO+4*r,4)}, v{VROW}, {R4(S.ROUT)}, s{so} offen{o.outpol}")
        a.label(l)
    stamp(13)
    if o.stamps:
        a("s_waitcnt vmcnt(0)")
        stamp(15)
    endprog(((1, 1), (3, 2), (5, 3), (6, 4), (7, 5), (9, 6), (11, 7), (13, 8), (15, 9)))

    for ah in range(2):
        a.label(f"L_retry{ah}")
        if o.stamps:
            a(f"s_add_u32 s{S.RC}, s{S.RC}, {1 << (8*ah)}")
        if o.rsleep:
            a(f"s_sleep {o.rsleep}")
        int_loads(ah)
        spin()
        a("s_waitcnt vmcnt(0)")
        a(f"s_cbranch_scc1 L_got{ah}")
        int_check(ah)
        a.nop(1)
        a(f"s_cbranch_vccnz L_retry{ah}")
        a(f"s_branch L_got{ah}")

    a.label("L_hi0")
    a(f"s_cmp_lg_u32 s{S.WAVE}, 4")
    a("s_cbranch_scc1 L_hi1")
    tag_make()
    poll_setup(12, 15)
    const_d2()
    stamp(8)
    poll_granules(VG16, 32)
    stamp(9)
    a("s_barrier")
    wave_max_key(32)
    a(f"v_mov_b32 v9, {L_GKEY}")
    a("s_mov_b64 exec, 1")
    a("ds_write_b32 v9, v32")
    a("s_mov_b64 exec, -1")
    a("s_branch L_hi2")
    a.label("L_hi1")
    const_d2()
    a(f"s_waitcnt vmcnt({0 if o.ackwait & 2 else 2})")
    a("s_barrier")
    a.label("L_hi2")
    gates(True)
    addr_ur()
    addr_ur_blk(S.WAVE)
    stamp(10)
    a("s_branch L_d2")

    a.label("L_notA")
    a(f"s_lshl4_add_u32 s{S.FJ}, s{S.T0}, s{S.T1}")
    a(f"s_sub_u32 s{S.FJ}, s{S.FJ}, 16")
    a(f"s_cmp_ge_u32 s2, {NWG}")
    a("s_cbranch_scc1 L_end")
    a(f"s_cmp_lt_u32 s{S.T0}, 4")
    a("s_cbranch_scc1 L_F")
    a(f"s_mul_i32 s{S.FJ}, s{S.T0}, 12")
    a(f"s_add_u32 s{S.FJ}, s{S.FJ}, s{S.T1}")
    a(f"s_cmp_lt_u32 s{S.T1}, 28")
    a("s_cbranch_scc1 L_F")
    a(f"s_mov_b32 s{S.ISZ}, 1")
    a(f"s_lshl2_add_u32 s{S.Z}, s{S.T0}, s{S.T1}")
    a(f"s_sub_u32 s{S.Z}, s{S.Z}, 44")
    vrow_setup()
    a(f"v_lshlrev_b32 v{VG16}, 4, v0")
    sgn_setup()
    a("s_waitcnt lgkmcnt(0)")
    a(f"global_load_dwordx4 {V(GW,4)}, v{VROW}, s[{S.PGW}:{S.PGW+1}]")
    tag_load()
    a.srd(S.ROUT, S.POUT, 0x200000)
    addr_p2()
    a(f"s_cmp_ge_u32 s{S.WAVE}, 4")
    a("s_cbranch_scc1 L_z1")
    const_d2()
    addr_ur()
    const_d1()
    a.label("L_z1")
    a("s_waitcnt vmcnt(0)")
    tag_make()
    a(f"s_lshr_b32 s{S.T0}, s{S.Z}, 2")
    a(f"s_and_b32 s{S.T1}, s{S.Z}, 3")
    a(f"s_lshl3_add_u32 s{S.T0}, s{S.T0}, s{S.T1}")
    a(f"s_lshl_b32 s{S.SI0}, s{S.T0}, 5")
    a(f"s_cmp_lg_u32 s{S.WAVE}, 4")
    a("s_cbranch_scc1 L_z2")
    poll_setup(8, 11)
    if o.zsleep0:
        a(f"s_sleep {o.zsleep0}")
    stamp(1)
    poll_granules(VG16, 32, sleep=o.zsleep)
    stamp(2)
    wave_max_key(32)
    a(f"v_mov_b32 v9, {L_KSL}")
    a("s_mov_b64 exec, 1")
    a("ds_write_b32 v9, v32")
    a("s_mov_b64 exec, -1")
    a("s_waitcnt lgkmcnt(0)")
    a.label("L_z2")
    a("s_barrier")
    a(f"v_mov_b32 v9, {L_KSL}")
    a("ds_read_b32 v6, v9")
    a("v_mov_b32 v12, 0")
    a("v_mov_b32 v13, 0")
    a("s_waitcnt lgkmcnt(0)")
    a(f"v_readfirstlane_b32 s{S.GKEY}, v6")
    a(f"s_andn2_b32 s{S.IDX}, 2047, s{S.GKEY}")
    a(f"s_and_b32 s{S.T0}, s{S.IDX}, 127")
    a(f"s_cmp_gt_u32 s{S.T0}, 64")
    a(f"s_cselect_b32 s{S.WHICH}, 1, 0")
    a(f"s_and_b32 s{S.T0}, s{S.IDX}, {1024 + 63}")
    a(f"s_cmp_eq_u32 s{S.T0}, 1024")
    a(f"s_cselect_b32 s{S.WHICH}, 1, s{S.WHICH}")
    a(f"s_sub_u32 s{S.T0}, 2048, s{S.IDX}")
    a(f"s_cmp_lg_u32 s{S.WHICH}, 0")
    a(f"s_cselect_b32 s{S.T0}, s{S.T0}, s{S.IDX}")
    a(f"s_cmp_eq_u32 s{S.T0}, 1024")
    a(f"s_cselect_b32 s{S.T0}, 0, s{S.T0}")
    a(f"s_and_b32 s{S.T1C}, s{S.T0}, 127")
    a(f"s_lshr_b32 s{S.HH}, s{S.T0}, 10")
    a(f"s_bfe_u32 s{S.WSEL}, s{S.T0}, 0x30007")
    rows_setup(S.WSEL)
    rows_load()
    a(f"s_cmp_ge_u32 s{S.WAVE}, 4")
    a("s_cbranch_scc1 L_z4")
    const_ga()
    addr_ur_blk(S.WSEL)
    const_d2_fix()
    a(f"v_subrev_u32 v6, s{S.SI0}, v{VROW}")
    a("v_and_b32 v6, 0xffffff7f, v6")
    a(f"v_cmp_gt_u32 s[{S.EY}:{S.EY+1}], 32, v6")
    a("v_lshlrev_b32 v6, 7, v1")
    a(f"v_lshl_add_u32 v4, v2, 4, v6")
    stamp(3)
    a("s_waitcnt vmcnt(0)")
    a("s_barrier")
    stamp(9)
    int_loads(0)
    int_loads(1)
    gates(False)
    a(f"s_cmp_lg_u32 s{S.WHICH}, 0")
    a(f"s_cselect_b32 s{S.T0}, s{S.T5}, s{S.T0}")
    a(f"s_cselect_b32 s{S.T4}, s{S.T1}, s{S.T4}")
    a(f"v_mov_b32 v{CO}, s{S.T0}")
    a(f"v_mov_b32 v{CO+1}, s{S.T4}")
    a("s_branch L_zjoin")
    a.label("L_z4")
    a(f"s_sub_u32 s{S.T0}, s{S.WAVE}, 4")
    a(f"s_lshl3_add_u32 s{S.T1}, s{S.T0}, s{S.SI0}")
    a("v_and_b32 v6, 3, v0")
    a(f"v_lshl_add_u32 v10, v6, 1, s{S.T1}")
    a(f"s_lshl_b32 s{S.T2}, s{S.IDX}, 10")
    a(f"v_add_u32 v7, s{S.T2}, v10")
    a(f"global_load_ushort v34, v7, s[{S.PX}:{S.PX+1}]")
    a(f"global_load_ushort v35, v7, s[{S.PX}:{S.PX+1}] offset:128")
    a(f"s_cmp_lg_u32 s{S.WAVE}, 4")
    a("s_cbranch_scc1 L_z6")
    poll_setup(12, 15)
    stamp(8)
    poll_granules(VG16, 40)
    a.label("L_z6")
    a("s_barrier")
    stamp(9)
    a("v_lshlrev_b32 v10, 1, v10")
    a("v_lshrrev_b32 v7, 2, v0")
    a("v_lshlrev_b32 v7, 8, v7")
    a("v_lshl_add_u32 v11, v6, 4, v7")
    a(f"s_mul_i32 s{S.SI0}, s{S.Z}, {PZ}")
    a(f"s_lshl_b32 s{S.T0}, s{S.T0}, 6")
    a(f"s_add_u32 s{S.SI0}, s{S.SI0}, s{S.T0}")
    a(f"s_add_u32 s{S.SI0}, s{S.SI0}, {WS_PART}")
    a(f"s_add_u32 s{S.SI1}, s{S.SI0}, {(o.pc-1)*PARTC}")
    a(f"s_and_b32 s{S.T0}, s{S.GKEY}, 0xffff0000")
    a(f"s_xor_b32 s{S.T1}, s{S.T0}, 0x80000000")
    a(f"s_xor_b32 s{S.T3}, s{S.T0}, 0xffff0000")
    a(f"s_bitcmp1_b32 s{S.T0}, 31")
    a(f"s_cselect_b32 s{S.T0}, s{S.T1}, s{S.T3}")
    a(f"v_mov_b32 v15, s{S.T0}")
    sigmoid(15, 15)
    rnd(15, 15)
    a(f"s_cmp_lg_u32 s{S.WAVE}, 5")
    a("s_cbranch_scc1 L_z5")
    a(f"s_lshl_b32 s{S.T0}, s{S.Z}, 2")
    a(f"s_add_u32 s{S.T0}, s{S.T0}, {WS_ALIVE}")
    a("s_mov_b64 exec, 1")
    a(f"buffer_store_dword v{VTAG}, v0, {R4(S.RWS)}, s{S.T0} offen sc1")
    a("s_mov_b64 exec, -1")
    a("s_waitcnt vmcnt(1)")
    a("s_branch L_z7")
    a.label("L_z5")
    a("s_waitcnt vmcnt(0)")
    a.label("L_z7")
    gates(False)
    a(f"s_cmp_lg_u32 s{S.WHICH}, 0")
    a(f"s_cselect_b32 s{S.T2}, s{S.T3}, s{S.T2}")
    a(f"v_mov_b32 v36, s{S.T2}")
    a("v_lshlrev_b32 v34, 16, v34")
    a("v_lshlrev_b32 v35, 16, v35")
    stamp(10)
    if o.psleep:
        a("s_branch L_zp1")
    a.label("L_zp")
    if o.psleep:
        a(f"s_sleep {o.psleep}")
        a.label("L_zp1")
    for i in range(7):
        if i:
            a(f"s_add_u32 s{S.T0}, s{S.SI0}, {4096*i}")
        a(f"buffer_load_dwordx4 {V(40+4*i,4)}, v11, {R4(S.RWS)}, s{S.T0 if i else S.SI0} offen sc1")
    a(f"s_add_u32 s{S.SI0}, s{S.SI0}, {PARTC}")
    a(f"s_min_u32 s{S.SI0}, s{S.SI0}, s{S.SI1}")
    if o.stamps:
        a(f"s_add_u32 s{S.RC}, s{S.RC}, 256")
    spin()
    a("s_cbranch_scc1 L_zp_ok")
    for i in range(7):
        a(f"s_waitcnt vmcnt({6-i})")
        if i == 0:
            a(f"v_xor_b32 v37, v{VTAG}, v41")
        else:
            a(f"v_bitop3_b32 v37, v{41+4*i}, v{VTAG}, v37 bitop3:0xbe")
            a(f"v_add_f32 v40, v40, v{40+4*i}")
        a(f"v_bitop3_b32 v37, v{43+4*i}, v{VTAG}, v37 bitop3:0xbe")
        if i:
            a(f"v_add_f32 v42, v42, v{42+4*i}")
    a("v_cmp_ne_u32 vcc, 0, v37")
    a.nop(1)
    a("s_cbranch_vccnz L_zp")
    a.label("L_zp_ok")
    stamp(11)
    for r in (4, 8):
        a(f"v_add_f32_dpp v40, v40, v40 row_ror:{r} {DPPM}")
        a(f"v_add_f32_dpp v42, v42, v42 row_ror:{r} {DPPM}")
        a.nop(1)
    a.nop(1)
    a("v_permlane16_swap_b32 v40, v42")
    a("v_add_f32 v40, v40, v42")
    a("v_mov_b32 v42, v40")
    a.nop(2)
    a("v_permlane32_swap_b32 v40, v42")
    a("v_add_f32 v40, v40, v42")
    a("v_mov_b32 v42, v40")
    a.nop(2)
    a("v_permlane16_swap_b32 v40, v42")
    a("v_cvt_pk_bf16_f32 v41, v40, v42")
    a("v_lshlrev_b32 v40, 16, v41")
    a(f"v_and_b32 v42, {HIM}, v41")
    a("v_mul_f32 v40, v40, v15")
    a("v_mul_f32 v42, v42, v15")
    a("v_cvt_pk_bf16_f32 v41, v40, v42")
    a("v_lshlrev_b32 v40, 16, v41")
    a(f"v_and_b32 v42, {HIM}, v41")
    a("v_add_f32 v40, v40, v34")
    a("v_add_f32 v42, v42, v35")
    a("v_cvt_pk_bf16_f32 v41, v40, v42")
    a("v_lshlrev_b32 v40, 16, v41")
    a(f"v_and_b32 v42, {HIM}, v41")
    a("v_mul_f32 v40, v40, v36")
    a("v_mul_f32 v42, v42, v36")
    a("s_mov_b64 exec, 15")
    a(f"ds_write_b32 v10, v40 offset:{L_XG2}")
    a(f"ds_write_b32 v10, v42 offset:{L_XG2+256}")
    a("s_mov_b64 exec, -1")
    a("s_branch L_d2")

    a.label("L_zfin")
    a(f"s_cmp_lg_u32 s{S.WAVE}, 0")
    a("s_cbranch_scc1 L_zend")
    a(f"ds_read_b128 {V(UO,4)}, v{VUR0} offset:{L_U2}")
    a(f"ds_read_b128 {V(UO+4,4)}, v{VUR1} offset:{L_U2}")
    a(f"ds_read_b128 {V(UO+8,4)}, v{VUR0} offset:{L_U2+UB}")
    a(f"ds_read_b128 {V(UO+12,4)}, v{VUR1} offset:{L_U2+UB}")
    a(f"ds_read_b128 {V(XG,4)}, v4 offset:{L_XG2}")
    a(f"ds_read_b128 {V(XG+4,4)}, v4 offset:{L_XG2+64}")
    for k, m in enumerate((0, 8, 4, 12)):
        a(f"s_waitcnt lgkmcnt({5-k})")
        a(f"{MF} {V(PQ+4*k,4)}, {V(UO+4*k,4)}, {V(M2+m,4)}, 0")
    a(f"s_lshl_b32 s{S.T0}, s{S.IDX}, 10")
    a("s_waitcnt lgkmcnt(0)")
    a.nop(2)
    for i in range(8):
        a(f"v_fmac_f32 v{XG+i}, v{CO}, v{PQ+i}")
    for i in range(8):
        a(f"v_fmac_f32 v{XG+i}, v{CO+1}, v{PQ+8+i}")
    for i in range(4):
        a(f"v_cvt_pk_bf16_f32 v{UO+i}, v{XG+2*i}, v{XG+2*i+1}")
    a.nop(2)
    a(f"v_permlane16_swap_b32 v{UO}, v{UO+2}")
    a(f"v_permlane16_swap_b32 v{UO+1}, v{UO+3}")
    a(f"s_mov_b64 exec, s[{S.EY}:{S.EY+1}]")
    a(f"buffer_store_dwordx4 {V(UO,4)}, v{VROW}, {R4(S.ROUT)}, s{S.T0} offen")
    a("s_mov_b64 exec, -1")
    stamp(13)
    a(f"s_cmp_lg_u32 s{S.Z}, 0")
    a("s_cbranch_scc1 L_zend")
    a("s_mov_b64 exec, 0xffff")
    a("v_lshlrev_b32 v6, 2, v0")
    a(f"s_mov_b32 s{S.T0}, {WS_ALIVE}")
    a.label("L_za")
    a(f"buffer_load_dword v7, v6, {R4(S.RWS)}, s{S.T0} offen sc1")
    spin()
    a("s_cbranch_scc1 L_za_ok")
    a("s_waitcnt vmcnt(0)")
    a(f"v_cmp_ne_u32 vcc, v{VTAG}, v7")
    a.nop(1)
    a("s_cbranch_vccnz L_za")
    a.label("L_za_ok")
    a("s_mov_b64 exec, 1")
    a(f"v_add_u32 v9, 1, v{VE}")
    a(f"buffer_store_dword v9, v6, {R4(S.RWS)}, 0 offen sc1")
    a("s_mov_b64 exec, -1")
    a.label("L_zend")
    endprog(((2, 13), (11, 14), (13, 15)))

    a.label("L_F")
    if o.only == "A":
        a("s_endpgm")
    WG_, WD_, XV = 32, 48, 64
    PXS = f"s[{S.PX}:{S.PX+1}]"
    a(f"s_lshl1_add_u32 s{S.KS}, s{S.FJ}, s{S.WAVE}")
    a(f"s_and_b32 s{S.KS}, s{S.KS}, 7")
    a(f"s_mul_i32 s{S.T2}, s{S.KS}, {64*3584}")
    a(f"s_lshl_b32 s{S.T3}, s{S.FJ}, 5")
    a(f"s_add_u32 s{S.T2}, s{S.T2}, s{S.T3}")
    a("v_lshrrev_b32 v6, 1, v0")
    a("v_mul_u32_u24 v6, 3584, v6")
    a("v_and_b32 v7, 1, v0")
    a(f"v_lshl_add_u32 v7, v7, 4, s{S.T2}")
    a("v_add_u32 v3, v6, v7")
    a(f"v_add_u32 v4, {32*3584}, v3")
    a(f"s_lshl_b32 s{S.T4}, s{S.WAVE}, 12")
    a(f"s_mov_b32 m0, s{S.T4}")
    a(f"s_lshl3_add_u32 s{S.T3}, s{S.FJ}, s{S.WAVE}")
    a(f"s_lshl_b32 s{S.T3}, s{S.T3}, 11")
    a("v_lshlrev_b32 v5, 4, v0")
    a(f"s_mul_i32 s{S.T5}, s{S.WAVE}, 2176")
    if o.fpf:
        a(f"s_and_b32 s{S.T0}, s{S.FJ}, 3")
        a(f"s_lshl3_add_u32 s{S.T0}, s{S.T0}, s{S.WAVE}")
        a(f"s_mul_i32 s{S.T0}, s{S.T0}, {16*3584}")
        a(f"s_lshr_b32 s{S.T1}, s{S.FJ}, 2")
        a(f"s_lshl_b32 s{S.T1}, s{S.T1}, 7")
        a(f"s_add_u32 s{S.T0}, s{S.T0}, s{S.T1}")
        a("v_lshrrev_b32 v8, 3, v0")
        a("v_mul_u32_u24 v8, 3584, v8")
        a("v_and_b32 v9, 7, v0")
        a(f"v_lshl_add_u32 v9, v9, 4, s{S.T0}")
        a("v_add_u32 v8, v8, v9")
        a(f"v_add_u32 v9, {8*3584}, v8")
    a("s_waitcnt lgkmcnt(0)")
    if o.fpf:
        a(f"global_load_dwordx4 v[80:83], v8, s[{S.PWG}:{S.PWG+1}]")
        a(f"global_load_dwordx4 v[84:87], v8, s[{S.PWU}:{S.PWU+1}]")
        a(f"global_load_dwordx4 v[88:91], v9, s[{S.PWG}:{S.PWG+1}]")
        a(f"global_load_dwordx4 v[92:95], v9, s[{S.PWU}:{S.PWU+1}]")
    a(f"v_add_u32 v6, s{S.T3}, v5")
    a("v_add_u32 v7, 1024, v6")

    def wd_dma():
        a(f"s_add_u32 m0, s{S.T5}, {L_WD}")
        a.nop(1)
        a(f"global_load_lds_dwordx4 v6, s[{S.PWD}:{S.PWD+1}]{o.wpol}")
        a(f"s_add_u32 m0, s{S.T5}, {L_WD+1088}")
        a.nop(1)
        a(f"global_load_lds_dwordx4 v7, s[{S.PWD}:{S.PWD+1}]{o.wpol}")

    if o.wdfirst:
        wd_dma()
    tag_load()
    if o.fpf >= 2:
        a(f"s_waitcnt vmcnt({3 if o.wdfirst else 1})")
    a(f"s_mov_b32 m0, s{S.T4}")
    a.nop(1)
    a(f"global_load_lds_dwordx4 v3, s[{S.PWG}:{S.PWG+1}]{o.wpol}")
    a(f"s_add_u32 m0, s{S.T4}, 2048")
    a.nop(1)
    a(f"global_load_lds_dwordx4 v3, s[{S.PWU}:{S.PWU+1}]{o.wpol}")
    a(f"s_add_u32 m0, s{S.T4}, 1024")
    a.nop(1)
    a(f"global_load_lds_dwordx4 v4, s[{S.PWG}:{S.PWG+1}]{o.wpol}")
    a(f"s_add_u32 m0, s{S.T4}, 3072")
    a.nop(1)
    a(f"global_load_lds_dwordx4 v4, s[{S.PWU}:{S.PWU+1}]{o.wpol}")
    if not o.wdfirst and not o.wdlate:
        wd_dma()
    if o.wdlate:
        a("v_mov_b32 v100, v6")
        a("v_mov_b32 v101, v7")
        a(f"s_mov_b32 s{S.L0}, s{S.T5}")
    stamp(1)
    a("v_bfe_u32 v6, v0, 2, 2")
    a("v_and_b32 v7, 3, v0")
    a("v_lshlrev_b32 v8, 3, v7")
    a("v_lshl_add_u32 v9, v6, 5, v8")
    a("v_and_b32 v10, 1, v2")
    a("v_lshl_add_u32 v9, v10, 11, v9")
    a("v_lshrrev_b32 v10, 1, v2")
    a("v_lshl_add_u32 v9, v10, 10, v9")
    a(f"v_add_u32 v9, s{S.T4}, v9")
    a("v_lshlrev_b32 v15, 6, v10")
    a("v_mul_u32_u24 v10, 1088, v6")
    a("v_add_u32 v10, v10, v8")
    a("v_lshl_add_u32 v10, v2, 5, v10")
    a(f"s_lshl_b32 s{S.T5}, s{S.WAVE}, 8")
    a(f"v_add_u32 v10, s{S.T5}, v10")
    a("v_lshlrev_b32 v11, 2, v0")
    a(f"v_add_u32 v11, {L_RED}, v11")
    a(f"v_add_u32 v12, s{S.T5}, v11")
    a(f"v_mul_u32_u24 v13, {PZ}, v2")
    a("v_lshl_add_u32 v13, v1, 4, v13")
    a(f"s_lshl_b32 s{S.T1}, s{S.KS}, 7")
    a(f"v_add_u32 v15, s{S.T1}, v15")
    poll_setup(0, 7)
    a(f"v_mov_b32 v14, {L_FKEY}")
    for i in range(2):
        a(f"v_mov_b32 v{16+i}, 0")
    for i in range(4):
        a(f"v_mov_b32 v{24+i}, 0")
    a("s_waitcnt vmcnt(0)")
    tag_make()
    stamp(2)
    for k in range(8):
        a(f"ds_read_b64_tr_b16 {V(WG_+2*k,2)}, v9 offset:{L_W + k*128}")
    a(f"s_cmp_lg_u32 s{S.WAVE}, {o.fpw}")
    a("s_cbranch_scc1 L_f1")
    stamp(3)
    poll_granules(5, 20)
    stamp(4)
    wave_max_key(20)
    a("s_mov_b64 exec, 1")
    a("ds_write_b32 v14, v20")
    a("s_mov_b64 exec, -1")
    a.label("L_f1")
    a("s_waitcnt lgkmcnt(0)")
    a("s_barrier")
    a("ds_read_b32 v20, v14")
    a("s_waitcnt lgkmcnt(0)")
    a("v_not_b32 v20, v20")
    a("v_and_b32 v20, 2047, v20")
    a("v_lshl_add_u32 v15, v20, 10, v15")
    for i in range(4):
        a(f"global_load_dwordx4 {V(XV+4*i,4)}, v15, {PXS} offset:{16*i}")
    stamp(5)

    def wd_tr():
        for st in range(2):
            for k in range(4):
                a(f"ds_read_b64_tr_b16 {V(WD_+8*st+2*k,2)}, v10 offset:{L_WD + k*4*1088 + st*128}")

    if o.wdlate:
        a(f"s_add_u32 m0, s{S.L0}, {L_WD}")
        a.nop(1)
        a(f"global_load_lds_dwordx4 v100, s[{S.PWD}:{S.PWD+1}]{o.wpol}")
        a(f"s_add_u32 m0, s{S.L0}, {L_WD+1088}")
        a.nop(1)
        a(f"global_load_lds_dwordx4 v101, s[{S.PWD}:{S.PWD+1}]{o.wpol}")
    a(f"s_cmp_ge_u32 s{S.WAVE}, 4")
    a("s_cbranch_scc1 L_f2")
    if not o.wdlate:
        wd_tr()
    a(f"s_mul_i32 s{S.T2}, s{S.WAVE}, {4*PZ}")
    a(f"s_lshl_b32 s{S.T3}, s{S.FJ}, 8")
    a(f"s_add_u32 s{S.T2}, s{S.T2}, s{S.T3}")
    a(f"s_add_u32 s{S.T2}, s{S.T2}, {WS_PART}")
    a(f"v_mov_b32 v29, v{VTAG}")
    a(f"v_mov_b32 v31, v{VTAG}")
    a.label("L_f2")
    for i in range(16):
        if i % 4 == 0:
            a(f"s_waitcnt vmcnt({3 - i // 4 + (2 if o.wdlate else 0)})")
        a(f"v_dot2c_f32_bf16 v{16+(i&1)}, v{XV+i}, v{WG_+i}")
    stamp(6)
    a.nop(3)
    a("v_add_f32 v16, v16, v17")
    a("ds_write_b32 v12, v16")
    a("s_waitcnt vmcnt(0) lgkmcnt(0)")
    a("s_barrier")
    a(f"s_cmp_ge_u32 s{S.WAVE}, 4")
    a("s_cbranch_scc1 L_fend")
    for i in range(4):
        a(f"ds_read2st64_b32 v[{16+2*i}:{17+2*i}], v11 offset0:{2*i} offset1:{2*i+1}")
    nl = 0
    if o.wdlate:
        wd_tr()
        nl = 8
    a(f"s_waitcnt lgkmcnt({2+nl})")
    a("v_add_f32 v16, v16, v17")
    a("v_add_f32 v18, v18, v19")
    a(f"s_waitcnt lgkmcnt({nl})")
    a("v_add_f32 v20, v20, v21")
    a("v_add_f32 v22, v22, v23")
    a("v_add_f32 v16, v16, v18")
    a("v_add_f32 v20, v20, v22")
    a("v_add_f32 v16, v16, v20")
    a("v_mov_b32 v18, v16")
    a.nop(2)
    a("v_permlane32_swap_b32 v16, v18")
    a("v_add_f32 v16, v16, v18")
    rnd(16, 16)
    a("v_mov_b32 v18, v16")
    sigmoid(17, 16)
    a("v_permlane16_swap_b32 v16, v18")
    a("v_mul_f32 v17, v17, v16")
    rnd(17, 17)
    a("v_mul_f32 v17, v17, v18")
    a.nop(2)
    a(f"v_mov_b32_dpp v18, v17 quad_perm:[1,0,3,2] {DPPM}")
    a("v_cvt_pk_bf16_f32 v17, v17, v18")
    a.nop(1)
    for i in range(8):
        a(f"v_readlane_b32 s{S.HS+i}, v17, {2*i}")
    a("s_waitcnt lgkmcnt(0)")
    for i in range(8):
        a(f"v_dot2c_f32_bf16 v{24+(i&1)}, s{S.HS+i}, v{WD_+i}")
        a(f"v_dot2c_f32_bf16 v{26+(i&1)}, s{S.HS+i}, v{WD_+8+i}")
    a.nop(2)
    a("v_add_f32 v28, v24, v25")
    a("v_add_f32 v30, v26, v27")
    for c in range(o.pc):
        if c:
            a(f"s_add_u32 s{S.T2}, s{S.T2}, {PARTC}")
        a(f"buffer_store_dwordx4 v[28:31], v13, {R4(S.RWS)}, s{S.T2} offen sc1")
    stamp(7)
    a.label("L_fend")
    endprog(((2, 10), (4, 11), (7, 12)))
    a.label("L_end")
    a("s_endpgm")
    return name


def main():
    ap = argparse.ArgumentParser()
    ap.add_argument("-o", required=True)
    ap.add_argument("--stamps", type=int, default=0)
    ap.add_argument("--dbg", type=int, default=0)
    ap.add_argument("--pc", type=int, default=2)
    ap.add_argument("--zsleep", type=int, default=8)
    ap.add_argument("--zsleep0", type=int, default=0)
    ap.add_argument("--psleep", type=int, default=0)
    ap.add_argument("--rsleep", type=int, default=0)
    ap.add_argument("--m1pre", type=int, default=1)
    ap.add_argument("--ackwait", type=int, default=0)
    ap.add_argument("--ffirst", type=int, default=0)
    ap.add_argument("--apf", type=int, default=0)
    ap.add_argument("--wdlate", type=int, default=0)
    ap.add_argument("--fpf", type=int, default=0)
    ap.add_argument("--fpw", type=int, default=0)
    ap.add_argument("--wdfirst", type=int, default=0)
    ap.add_argument("--wpol", default="")
    ap.add_argument("--only", default="")
    ap.add_argument("--noclean", type=int, default=0)
    ap.add_argument("--spin", type=int, default=17)
    ap.add_argument("--outpol", default="")
    o = ap.parse_args()
    o.wpol = (" " + o.wpol) if o.wpol else ""
    o.outpol = (" " + o.outpol) if o.outpol else ""
    a = Asm()
    name = gen(a, o)
    finish(a, name, 256 if o.stamps else 224, 100, NWG, 512, LDS_BYTES, o.o)


main()
```

```python
import argparse
from lib import *

NA, NF, NZ = 128, 112, 16
NWG = NA + NF + NZ
WS_E = 0
WS_ALIVE = 4096
WS_KEY = 64 << 10
WS_PART = 256 << 10
PZ = NF * 256
PARTC = NZ * PZ
WS_INT = 2 << 20
CS = 32768 + 256
WS_STAMP = 8 << 20
WS_BYTES = 16 << 20
L_TILE = 0
L_U2 = 16384
L_CT = L_U2
UB = 17 * 64
L_MISC = L_U2 + 16 * UB
L_KSL = L_MISC
L_GKEY = L_MISC + 64
L_DUMP = L_MISC + 128
L_XG2 = L_DUMP + 4 * UB + 256
L_W = 0
L_WD = 32768
L_RED = L_WD + 16 * 1088
L_FKEY = L_RED + 2048
LDS_BYTES = 84 * 1024
MF = "v_mfma_f32_16x16x32_bf16"
LOG2E = 0x3fb8aa3b
DPPM = "row_mask:0xf bank_mask:0xf"
HIM = "0xffff0000"


class S:
    WAVE = 3
    PX = 4
    T0, T1, T2, T3, T4, T5 = 6, 7, 8, 9, 10, 11
    EX = 12
    EY = 14
    PWR, PWG, PWU, PWD, PGW, POUT, PDBG, PWS = 16, 18, 20, 22, 24, 26, 28, 30
    L0, L1, SPT, PIE = 32, 33, 34, 35
    RWS, ROUT = 36, 40
    HS = 44
    GKEY, WSEL, WHICH, Z = 44, 45, 46, 47
    SI0, SI1, ID8, BLK = 48, 49, 50, 51
    PO, POL, IDX, RC = 52, 53, 54, 55
    KM, SPIN, ISZ = 57, 58, 59
    T1C, HH, TD, TM = 60, 61, 62, 63
    FJ, KS = 60, 61
    ST = 68


def gen(a, o):
    name = NAME + "_kernel"
    kernel_head(a, name)
    VE, VTAG = 222, 223

    def stamp(i):
        if o.stamps:
            a(f"s_memrealtime s[{S.ST+2*i}:{S.ST+2*i+1}]")

    def endprog(dmap=()):
        if o.dbg:
            l = a.L("nodbg")
            a("s_waitcnt vmcnt(0) lgkmcnt(0)")
            a(f"s_lshl_b32 s{S.T0}, 1, s{S.WAVE}")
            a(f"s_and_b32 s{S.T0}, s{S.T0}, 0x91")
            a(f"s_cbranch_scc0 {l}")
            a("v_mov_b32 v252, 0")
            a(f"s_not_b32 s{S.T0}, s{S.ST}")
            a(f"v_writelane_b32 v252, s{S.T0}, 0")
            for st, k in dmap:
                a(f"v_writelane_b32 v252, s{S.ST+2*st}, {k}")
            a("s_mov_b64 exec, 0xffff")
            a("v_lshlrev_b32 v253, 2, v0")
            a(f"global_atomic_umax v253, v252, s[{S.PDBG}:{S.PDBG+1}]")
            a("s_mov_b64 exec, -1")
            a.label(l)
        if o.stamps:
            a("s_waitcnt lgkmcnt(0)")
            a(f"s_add_u32 s{S.ST+28}, s{S.RC}, s{S.ST+30}")
            for i in range(16):
                a(f"v_writelane_b32 v254, s{S.ST+2*i}, {i}")
            a("s_mov_b64 exec, 0xffff")
            a(f"s_lshl3_add_u32 s{S.T0}, s2, s{S.WAVE}")
            a(f"s_lshl_b32 s{S.T0}, s{S.T0}, 7")
            a(f"s_add_u32 s{S.T0}, s{S.T0}, {WS_STAMP}")
            a("v_lshlrev_b32 v253, 3, v0")
            a("v_mov_b32 v255, 0")
            a(f"buffer_store_dwordx2 v[254:255], v253, {R4(S.RWS)}, s{S.T0} offen")
        a("s_endpgm")

    def spin():
        a(f"s_add_u32 s{S.SPIN}, s{S.SPIN}, 1")
        a(f"s_lshr_b32 s{S.SPT}, s{S.SPIN}, {o.spin}")

    def poll_setup(c0, c1):
        a(f"s_mov_b32 s{S.PO}, {WS_KEY + 1024*c0}")
        a(f"s_mov_b32 s{S.POL}, {WS_KEY + 1024*c1}")

    def poll_granules(vaddr, vd, sleep=0):
        l = a.L("poll")
        if sleep:
            a(f"s_branch {l}_1")
        a.label(l)
        if sleep:
            a(f"s_sleep {sleep}")
            a.label(f"{l}_1")
        a(f"buffer_load_dwordx4 {V(vd,4)}, v{vaddr}, {R4(S.RWS)}, s{S.PO} offen sc1")
        a(f"s_add_u32 s{S.PO}, s{S.PO}, 1024")
        a(f"s_min_u32 s{S.PO}, s{S.PO}, s{S.POL}")
        if o.stamps:
            a(f"s_add_u32 s{S.RC}, s{S.RC}, 1")
        spin()
        a("s_waitcnt vmcnt(0)")
        a(f"s_cbranch_scc1 {l}_ok")
        a(f"v_cmp_ne_u32 vcc, v{VTAG}, v{vd+1}")
        a(f"v_cmp_ne_u32 s[{S.EX}:{S.EX+1}], v{VTAG}, v{vd+3}")
        a(f"s_or_b64 vcc, vcc, s[{S.EX}:{S.EX+1}]")
        a(f"s_cbranch_vccnz {l}")
        a.label(f"{l}_ok")

    def wave_max_key(vd):
        a(f"v_max_u32 v{vd}, v{vd}, v{vd+2}")
        for r in (8, 4, 2, 1):
            a.nop(2)
            a(f"v_max_u32_dpp v{vd}, v{vd}, v{vd} row_ror:{r} {DPPM}")
        a(f"v_mov_b32 v{vd+1}, v{vd}")
        a.nop(2)
        a(f"v_permlane16_swap_b32 v{vd}, v{vd+1}")
        a(f"v_max_u32 v{vd}, v{vd}, v{vd+1}")
        a(f"v_mov_b32 v{vd+1}, v{vd}")
        a.nop(2)
        a(f"v_permlane32_swap_b32 v{vd}, v{vd+1}")
        a(f"v_max_u32 v{vd}, v{vd}, v{vd+1}")

    def sigmoid(d, s):
        a(f"v_mul_f32 v{d}, {LOG2E | 0x80000000:#x}, v{s}")
        a(f"v_exp_f32 v{d}, v{d}")
        a.nop(1)
        a(f"v_add_f32 v{d}, 1.0, v{d}")
        a(f"v_rcp_f32 v{d}, v{d}")
        a.nop(1)

    def rnd(d, s):
        a(f"v_cvt_pk_bf16_f32 v{d}, v{s}, v{s}")
        a(f"v_and_b32 v{d}, {HIM}, v{d}")

    def tag_load():
        a(f"v_mov_b32 v{VTAG}, 0")
        a(f"global_load_dword v{VE}, v{VTAG}, s[{S.PWS}:{S.PWS+1}]")
        a.srd(S.RWS, S.PWS, WS_BYTES)
        a(f"s_mov_b32 s{S.SPIN}, 0")
        a(f"s_mov_b32 s{S.KM}, 0x9E3779B1")

    def tag_make():
        a(f"v_mul_lo_u32 v{VTAG}, v{VE}, s{S.KM}")
        a(f"v_add_u32 v{VTAG}, 0x7F4A7C15, v{VTAG}")

    a(f"s_load_dwordx2 s[{S.PX}:{S.PX+1}], s[0:1], {KA_X}")
    a(f"s_load_dwordx16 s[16:31], s[0:1], {KA_WR}")
    if o.stamps:
        for i in range(1, 16):
            a(f"s_mov_b32 s{S.ST+2*i}, 0")
        a(f"s_mov_b32 s{S.RC}, 0")
    stamp(0)
    if o.ffirst:
        a("s_xor_b32 s2, s2, 128")
    a("v_lshrrev_b32 v1, 6, v0")
    a("v_and_b32 v0, 63, v0")
    a(f"v_readfirstlane_b32 s{S.WAVE}, v1")
    a("v_and_b32 v1, 15, v0")
    a("v_lshrrev_b32 v2, 4, v0")
    a(f"s_and_b32 s{S.T0}, s2, 7")
    a(f"s_lshr_b32 s{S.T1}, s2, 3")
    a(f"s_cmp_ge_u32 s2, {NA}")
    a("s_cbranch_scc1 L_notA")
    if o.only == "F":
        a("s_endpgm")

    VROW, VG16, VSGN, VTR, VST = 3, 5, 8, 10, 11
    XR, WR, GW = 16, 24, 28
    CM, AOP, ACC = 32, 96, 112
    M1, GA, M2, XG, CO = 128, 176, 180, 196, 212
    VLD, VUW, VUX, VUR0, VUR1 = 216, 217, 218, 219, 220
    Cc, Ss = 64, 72

    def rows_setup(wreg):
        a(f"s_lshl3_add_u32 s{S.T5}, s{S.HH}, s{wreg}")
        a(f"s_lshl_b32 s{S.T5}, s{S.T5}, 7")
        a(f"s_add_u32 s{S.TD}, s{S.T5}, s{S.T1C}")
        a(f"s_sub_u32 s{S.TM}, 2048, s{S.TD}")
        a(f"s_cmp_eq_u32 s{S.TD}, 0")
        a(f"s_cselect_b32 s{S.TM}, 1024, s{S.TM}")
        a(f"s_lshl_b32 s{S.T4}, s{S.TD}, 10")
        a(f"s_lshl_b32 s{S.T5}, s{S.TM}, 10")
        a(f"v_add_u32 v6, s{S.T4}, v{VROW}")
        a(f"v_add_u32 v7, s{S.T5}, v{VROW}")

    def vrow_setup():
        a("v_and_b32 v6, 1, v2")
        a("v_lshlrev_b32 v6, 5, v6")
        a("v_lshl_add_u32 v6, v1, 6, v6")
        a("v_lshrrev_b32 v7, 1, v2")
        a(f"v_lshl_add_u32 v{VROW}, v7, 4, v6")

    def rows_load():
        a(f"global_load_dwordx4 {V(XR,4)}, v6, s[{S.PX}:{S.PX+1}]{o.xpol}")
        a(f"global_load_dwordx4 {V(XR+4,4)}, v7, s[{S.PX}:{S.PX+1}]{o.xpol}")

    def sgn_setup():
        a(f"v_lshlrev_b32 v{VSGN}, 31, v1")
        a(f"v_lshrrev_b32 v9, 16, v{VSGN}")
        a(f"v_or_b32 v{VSGN}, v{VSGN}, v9")

    a(f"s_add_u32 s{S.T2}, s{S.T0}, 1")
    a(f"s_sub_u32 s{S.T3}, 15, s{S.T0}")
    a(f"s_and_b32 s{S.HH}, s{S.T1}, 1")
    a(f"s_bitcmp1_b32 s{S.T1}, 1")
    a(f"s_cselect_b32 s{S.T4}, s{S.T3}, s{S.T2}")
    a(f"s_lshr_b32 s{S.T5}, s{S.T1}, 2")
    a(f"s_lshl4_add_u32 s{S.T1C}, s{S.T5}, s{S.T4}")
    vrow_setup()
    a(f"s_cmp_lg_u32 s{S.T0}, 7")
    a("s_cbranch_scc1 L_k7")
    a(f"s_lshr_b32 s{S.T5}, s{S.T1}, 1")
    a(f"s_lshl3_add_u32 s{S.T1C}, s{S.T5}, 8")
    a(f"s_mov_b32 s{S.T2}, 0")
    a(f"s_cmp_eq_u32 s2, 127")
    a(f"s_cselect_b32 s{S.T1C}, 0, s{S.T1C}")
    a(f"s_cselect_b32 s{S.HH}, 0, s{S.HH}")
    a.label("L_k7")
    rows_setup(S.WAVE)
    a(f"s_bitcmp1_b32 s{S.T1}, 3")
    a(f"s_cselect_b32 s{S.T2}, s{S.T3}, s{S.T2}")
    a(f"s_and_b32 s{S.T3}, s{S.T1}, 7")
    a(f"s_lshl3_add_u32 s{S.BLK}, s{S.T2}, s{S.T3}")
    a(f"s_lshl_b32 s{S.PIE}, s{S.T2}, 5")
    a(f"s_add_u32 s{S.PIE}, s{S.PIE}, s{S.T3}")
    a(f"s_lshl_b32 s{S.PIE}, s{S.PIE}, 6")
    a("v_and_b32 v9, 7, v0")
    a("s_waitcnt lgkmcnt(0)")
    rows_load()
    a(f"global_load_dwordx4 {V(WR,4)}, v{VROW}, s[{S.PWR}:{S.PWR+1}]")
    stamp(1)
    a(f"s_lshl_b32 s{S.T2}, s{S.WAVE}, 11")
    a(f"s_add_u32 s{S.T3}, s{S.T2}, s{S.BLK}")
    a(f"s_lshl_b32 s{S.T3}, s{S.T3}, 7")
    a(f"s_mov_b32 m0, s{S.T2}")
    a("v_bfe_u32 v13, v0, 4, 1")
    a("v_xor_b32 v9, v9, v13")
    a("v_lshrrev_b32 v13, 3, v0")
    a(f"v_lshl_add_u32 v9, v9, 4, s{S.T3}")
    a("v_lshl_add_u32 v6, v13, 14, v9")
    tag_load()
    a(f"global_load_lds_dwordx4 v6, s[{S.PX}:{S.PX+1}]{o.tpol}")
    a(f"s_add_u32 m0, s{S.T2}, 1024")
    a("v_add_u32 v6, 0x20000, v6")
    a(f"global_load_lds_dwordx4 v6, s[{S.PX}:{S.PX+1}]{o.tpol}")
    if o.apf:
        a(f"s_and_b32 s{S.T0}, s2, 7")
        a(f"s_lshr_b32 s{S.T1}, s2, 3")
        a(f"s_lshl4_add_u32 s{S.T4}, s{S.T0}, s{S.T1}")
        a(f"s_mul_i32 s{S.T5}, s{S.T0}, 12")
        a(f"s_add_u32 s{S.T5}, s{S.T5}, s{S.T1}")
        a(f"s_add_u32 s{S.T5}, s{S.T5}, 16")
        a(f"s_cmp_lt_u32 s{S.T0}, 4")
        a(f"s_cselect_b32 s{S.T4}, s{S.T4}, s{S.T5}")
        a(f"s_min_u32 s{S.T4}, s{S.T4}, 111")
        a(f"s_lshl3_add_u32 s{S.T4}, s{S.T4}, s{S.WAVE}")
        a(f"s_lshl_b32 s{S.T4}, s{S.T4}, 11")
        a(f"v_lshl_add_u32 v6, v0, 4, s{S.T4}")
        a(f"global_load_dwordx4 v[{M1}:{M1+3}], v6, s[{S.PWD}:{S.PWD+1}]")
        a(f"global_load_dwordx4 v[{M1+4}:{M1+7}], v6, s[{S.PWD}:{S.PWD+1}] offset:1024")
    stamp(2)
    C1, S1, K = AOP, AOP + 4, AOP + 8
    a(f"s_lshr_b32 s{S.T0}, s{S.WAVE}, 2")
    misc = [f"s_mul_i32 s{S.SI0}, s{S.T0}, {16*CS}",
            f"s_add_u32 s{S.SI0}, s{S.SI0}, s{S.PIE}",
            f"s_and_b32 s{S.T4}, s{S.WAVE}, 3",
            f"s_lshl_b32 s{S.T4}, s{S.T4}, 9",
            f"s_add_u32 s{S.SI0}, s{S.SI0}, s{S.T4}",
            f"s_add_u32 s{S.SI0}, s{S.SI0}, {WS_INT}",
            f"s_add_u32 s{S.SI1}, s{S.SI0}, {32*CS}"]
    for i, m in enumerate(misc):
        a(m)
        if i < 4:
            a(f"v_mov_b32 v{ACC+i}, -1")
        if i == 4:
            a(f"v_mul_u32_u24 v{VST}, {CS}, v1")
        if i == 5:
            a(f"v_lshl_add_u32 v{VST}, v2, 4, v{VST}")
    a(f"buffer_store_dwordx4 {V(ACC,4)}, v{VST}, {R4(S.RWS)}, s{S.SI0} offen sc1")
    a(f"buffer_store_dwordx4 {V(ACC,4)}, v{VST}, {R4(S.RWS)}, s{S.SI1} offen sc1")
    a(f"s_and_b32 s{S.T1}, s{S.WAVE}, 1")
    a(f"s_bfe_u32 s{S.T2}, s{S.WAVE}, 0x10001")
    a(f"v_lshl_add_u32 v6, s{S.T0}, 4, v1")
    a(f"s_lshl3_add_u32 s{S.T3}, s{S.T2}, s{S.T1}")
    a(f"s_lshl_b32 s{S.T3}, s{S.T3}, 2")
    a("v_cvt_f32_u32 v6, v6")
    a(f"v_lshl_add_u32 v7, v2, 3, s{S.T3}")
    a("v_mul_f32 v6, 0x3c000000, v6")
    a("v_cvt_f32_u32 v7, v7")
    a(f"v_lshlrev_b32 v{VG16}, 4, v0")
    a("v_mul_f32 v7, v7, v6")
    for j in range(4):
        a(f"v_cos_f32 v{C1+j}, v7")
        a(f"v_sin_f32 v{S1+j}, v7")
        if j < 3:
            a("v_add_f32 v7, v7, v6")
    a(f"s_lshl_b32 s{S.T4}, s{S.T0}, 13")
    a(f"s_lshl_b32 s{S.T5}, s{S.T2}, 10")
    a(f"s_lshl3_add_u32 s{S.T5}, s{S.T1}, s{S.T5}")
    a(f"v_add_u32 v15, s{S.T4}, v{VG16}")
    a(f"v_add_u32 v9, s{S.T5}, v15")
    a(f"v_cvt_pk_bf16_f32 v{K+0}, v{C1}, v{C1+1}")
    a(f"v_cvt_pk_bf16_f32 v{K+1}, v{C1+2}, v{C1+3}")
    a(f"v_cvt_pk_bf16_f32 v{K+2}, -v{S1}, -v{S1+1}")
    a(f"v_cvt_pk_bf16_f32 v{K+3}, -v{S1+2}, -v{S1+3}")
    a("v_cmp_eq_f32 vcc, 0, v6")
    a(f"v_cvt_pk_bf16_f32 v{K+4}, v{C1}, -v{S1+1}")
    a(f"v_cvt_pk_bf16_f32 v{K+5}, -v{C1+2}, v{S1+3}")
    a(f"v_cvt_pk_bf16_f32 v{K+6}, -v{S1}, -v{C1+1}")
    a(f"v_cvt_pk_bf16_f32 v{K+7}, v{S1+2}, v{C1+3}")
    a(f"ds_write_b64 v9, {V(K,2)} offset:{L_CT}")
    a(f"ds_write_b64 v9, {V(K+4,2)} offset:{L_CT+4096}")
    a(f"ds_write_b64 v9, {V(K+6,2)} offset:{L_CT+6144}")
    a("s_mov_b64 exec, vcc")
    a(f"v_mov_b32 v{K+2}, 0xbf803f80")
    a(f"v_mov_b32 v{K+3}, 0xbf803f80")
    a("s_mov_b64 exec, -1")
    a(f"ds_write_b64 v9, {V(K+2,2)} offset:{L_CT+2048}")
    a(f"s_sub_u32 s{S.T4}, 0xffff, s{S.TD}")
    a(f"s_sub_u32 s{S.T5}, 0xffff, s{S.TM}")
    a(f"v_mov_b32 v4, s{S.T4}")
    a(f"v_writelane_b32 v4, s{S.T5}, 32")
    a(f"s_lshl3_add_u32 s{S.T4}, s{S.WAVE}, {L_KSL}")
    a("v_lshrrev_b32 v9, 3, v0")
    a(f"v_add_u32 v9, s{S.T4}, v9")
    a("v_mov_b32 v12, 0")
    a("v_mov_b32 v13, 0")
    a("v_lshlrev_b32 v14, 10, v0")
    a(f"s_lshl_b32 s{S.ID8}, s2, 3")
    a(f"s_add_u32 s{S.ID8}, s{S.ID8}, {WS_KEY}")
    stamp(3)

    def dots(w):
        for i in range(4):
            a(f"v_dot2c_f32_bf16 v12, v{XR+i}, v{w+i}")
            a(f"v_dot2c_f32_bf16 v13, v{XR+4+i}, v{w+i}")
        a.nop(3)
        a("v_permlane32_swap_b32 v12, v13")
        a("v_add_f32 v12, v12, v13")
        a("v_mov_b32 v13, v12")
        a.nop(2)
        a("v_permlane16_swap_b32 v12, v13")
        a("v_add_f32 v12, v12, v13")
        for r in (8, 4, 2, 1):
            a.nop(2)
            a(f"v_add_f32_dpp v12, v12, v12 row_ror:{r} {DPPM}")
        rnd(12, 12)

    a(f"s_waitcnt vmcnt({5 + 2*o.apf})")
    stamp(4)
    dots(WR)
    a("v_ashrrev_i32 v7, 31, v12")
    a("v_or_b32 v7, 0x80000000, v7")
    a("v_xor_b32 v7, v7, v12")
    a(f"v_and_b32 v7, {HIM}, v7")
    a("v_or_b32 v7, v7, v4")
    a("s_mov_b32 exec_lo, 1")
    a("s_mov_b32 exec_hi, 1")
    a("ds_write_b32 v9, v7")
    a("s_mov_b64 exec, -1")
    a("s_waitcnt lgkmcnt(0)")
    a("s_barrier")
    a(f"s_cmp_lg_u32 s{S.WAVE}, 0")
    a("s_cbranch_scc1 L_nokey")
    a(f"v_mov_b32 v9, {L_KSL}")
    for i in range(4):
        a(f"ds_read_b128 {V(CM+4*i,4)}, v9 offset:{16*i}")
    a(f"s_waitcnt vmcnt({4 + 2*o.apf})")
    tag_make()
    a("s_mov_b64 exec, 0xfff")
    a("s_waitcnt lgkmcnt(2)")
    a(f"v_max3_u32 v6, v{CM}, v{CM+1}, v{CM+2}")
    a(f"v_max3_u32 v7, v{CM+3}, v{CM+4}, v{CM+5}")
    a(f"v_max3_u32 v6, v{CM+6}, v{CM+7}, v6")
    a("s_waitcnt lgkmcnt(0)")
    a(f"v_max3_u32 v7, v{CM+8}, v{CM+9}, v7")
    a(f"v_max3_u32 v6, v{CM+10}, v{CM+11}, v6")
    a(f"v_max3_u32 v7, v{CM+12}, v{CM+13}, v7")
    a(f"v_max3_u32 v6, v{CM+14}, v{CM+15}, v6")
    a(f"v_max_u32 v{VE}, v6, v7")
    a(f"buffer_store_dwordx2 v[{VE}:{VTAG}], v14, {R4(S.RWS)}, s{S.ID8} offen sc1")
    a("s_mov_b64 exec, -1")
    stamp(5)
    a.label("L_nokey")
    for t in range(4):
        for kp in range(2):
            a(f"ds_read_b128 {V(CM+16*t+4*kp,4)}, v15 offset:{L_CT + t*2048 + kp*1024}")
    sgn_setup()
    a("v_bfe_u32 v6, v0, 2, 2")
    a("v_lshl_add_u32 v7, v2, 3, v6")
    a("v_and_b32 v9, 3, v0")
    a(f"v_lshl_add_u32 v9, v9, 1, s{S.T2}")
    a("v_lshrrev_b32 v6, 1, v6")
    a("v_xor_b32 v9, v9, v6")
    a(f"s_lshl_b32 s{S.T1}, s{S.T1}, 3")
    a(f"v_lshl_add_u32 v9, v9, 4, s{S.T1}")
    a(f"v_lshl_add_u32 v{VTR}, v7, 7, v9")
    for t in range(4):
        a(f"s_waitcnt lgkmcnt({6-2*t})")
        for r in range(8):
            a(f"v_xor_b32 v{CM+t*16+8+r}, v{CM+t*16+r}, v{VSGN}")
    a(f"s_cmp_eq_u32 s{S.WAVE}, 0")
    a("s_cbranch_scc1 L_w0a")
    a("s_waitcnt vmcnt(0)")
    a("s_barrier")
    a("s_branch L_w0b")
    a.label("L_w0a")
    a(f"s_add_u32 s{S.T0}, s{S.ID8}, {12*1024}")
    a("s_waitcnt vmcnt(1)")
    a("s_barrier")
    a("s_mov_b64 exec, 0xf")
    a(f"buffer_store_dwordx2 v[{VE}:{VTAG}], v14, {R4(S.RWS)}, s{S.T0} offen sc1")
    a("s_mov_b64 exec, -1")
    a.label("L_w0b")
    stamp(6)
    for k in range(4):
        for h in range(2):
            a(f"ds_read_b64_tr_b16 {V(AOP+4*k+2*h,2)}, v{VTR} offset:{L_TILE + k*4096 + h*512}")
    a(f"global_load_dwordx4 {V(GW,4)}, v{VROW}, s[{S.PGW}:{S.PGW+1}]")
    for k in range(4):
        a(f"s_waitcnt lgkmcnt({6-2*k})")
        for t in range(4):
            c = "0" if k == 0 else V(ACC + 4 * t, 4)
            a(f"{MF} {V(ACC+4*t,4)}, {V(AOP+4*k,4)}, {V(CM+16*t+4*k,4)}, {c}")
    a("v_mov_b32 v12, 0")
    a("v_mov_b32 v13, 0")
    a.nop(4)
    for i in range(4):
        a(f"v_cvt_pk_bf16_f32 v{AOP+i}, v{ACC+i}, v{ACC+4+i}")
    a(f"buffer_store_dwordx4 {V(AOP,4)}, v{VST}, {R4(S.RWS)}, s{S.SI0} offen sc1")
    for i in range(4):
        a(f"v_cvt_pk_bf16_f32 v{AOP+4+i}, v{ACC+8+i}, v{ACC+12+i}")
    a(f"buffer_store_dwordx4 {V(AOP+4,4)}, v{VST}, {R4(S.RWS)}, s{S.SI1} offen sc1")
    stamp(7)

    def gates(full):
        dots(GW)
        sigmoid(13, 12)
        rnd(13, 13)
        a("v_sub_f32 v14, 1.0, v13")
        rnd(14, 14)
        a(f"v_readlane_b32 s{S.T0}, v13, 0")
        a(f"v_readlane_b32 s{S.T1}, v13, 32")
        a(f"v_readlane_b32 s{S.T2}, v14, 0")
        a(f"v_readlane_b32 s{S.T3}, v14, 32")
        a(f"s_xor_b32 s{S.T4}, s{S.T0}, 0x80000000")
        a(f"s_cmp_eq_u32 s{S.TD}, 0")
        a(f"s_cselect_b32 s{S.T4}, 0, s{S.T4}")
        a(f"s_cselect_b32 s{S.T5}, 0, s{S.T1}")
        if not full:
            return
        a(f"v_mov_b32 v{CO}, s{S.T0}")
        a(f"v_mov_b32 v{CO+1}, s{S.T4}")
        a(f"v_mov_b32 v{CO+2}, s{S.T5}")
        a(f"v_mov_b32 v{CO+3}, s{S.T1}")
        a(f"v_mov_b32 v13, s{S.T2}")
        a(f"v_mov_b32 v14, s{S.T3}")
        for r in range(2):
            a(f"v_permlane16_swap_b32 v{XR+4*r}, v{XR+4*r+2}")
            a(f"v_permlane16_swap_b32 v{XR+4*r+1}, v{XR+4*r+3}")
        for r in range(2):
            for i in range(4):
                a(f"v_lshlrev_b32 v{XG+8*r+2*i}, 16, v{XR+4*r+i}")
                a(f"v_and_b32 v{XG+8*r+2*i+1}, {HIM}, v{XR+4*r+i}")
            for i in range(8):
                a(f"v_mul_f32 v{XG+8*r+i}, v{13+r}, v{XG+8*r+i}")

    def const_d2():
        a("v_lshlrev_b32 v6, 2, v2")
        a("v_cvt_f32_u32 v7, v1")
        a("v_cvt_f32_u32 v6, v6")
        a("v_mul_f32 v7, 0x3d800000, v7")
        for hf in range(2):
            if hf:
                a("v_add_f32 v7, 0x3d800000, v7")
            a("v_mul_f32 v9, v6, v7")
            for jj in range(4):
                a(f"v_cos_f32 v{Cc+jj}, v9")
                a(f"v_sin_f32 v{Ss+jj}, v9")
                if jj < 3:
                    a("v_add_f32 v9, v9, v7")
            a.nop(1)
            for jj in range(4):
                if hf == 0:
                    a(f"v_cvt_pk_bf16_f32 v{M2+jj}, v{Cc+jj}, v{Ss+jj}")
                    a(f"v_cvt_pk_bf16_f32 v{M2+4+jj}, -v{Ss+jj}, v{Cc+jj}")
                else:
                    a(f"v_cvt_pk_bf16_f32 v{M2+8+jj}, v{Cc+jj}, -v{Ss+jj}")
                    a(f"v_cvt_pk_bf16_f32 v{M2+12+jj}, -v{Ss+jj}, -v{Cc+jj}")

    def const_d2_fix():
        l = a.L("nosp")
        a(f"s_cmp_lg_u32 s{S.TD}, 0")
        a(f"s_cbranch_scc1 {l}")
        for jj in range(4):
            a(f"v_mov_b32 v{M2+4+jj}, v{M2+jj}")
            a(f"v_mov_b32 v{M2+12+jj}, v{M2+8+jj}")
        a.label(l)

    def addr_ur():
        a("v_bfe_u32 v7, v1, 1, 2")
        a("v_xor_b32 v7, v7, v2")
        a("v_lshlrev_b32 v7, 4, v7")
        a(f"v_lshl_add_u32 v{VUR0}, v1, 6, v7")
        a("v_sub_u32 v6, 16, v1")
        a("v_bfe_u32 v7, v6, 1, 2")
        a("v_xor_b32 v7, v7, v2")
        a("v_lshlrev_b32 v7, 4, v7")
        a(f"v_lshl_add_u32 v{VUR1}, v6, 6, v7")

    def addr_ur_blk(wreg):
        a(f"s_mul_i32 s{S.T1}, s{wreg}, {2*UB}")
        a(f"v_add_u32 v{VUR0}, s{S.T1}, v{VUR0}")
        a(f"v_add_u32 v{VUR1}, s{S.T1}, v{VUR1}")

    def addr_p2():
        a("v_lshlrev_b32 v6, 4, v1")
        a(f"v_lshl_add_u32 v{VLD}, v2, 13, v6")
        a(f"v_mul_u32_u24 v6, {4*UB}, v2")
        a("v_bfe_u32 v7, v1, 1, 2")
        a(f"v_xor_b32 v7, s{S.WAVE}, v7")
        a("v_lshl_add_u32 v7, v7, 4, v6")
        a(f"v_lshl_add_u32 v{VUW}, v1, 6, v7")
        a(f"s_lshl4_add_u32 s{S.T1}, s{S.WAVE}, 1024")
        a(f"v_mov_b32 v9, {L_DUMP - L_U2}")
        a(f"v_lshl_add_u32 v{VUX}, v0, 1, v9")
        a(f"v_lshl_add_u32 v7, v1, 1, s{S.T1}")
        a("s_mov_b32 exec_lo, 0x00ff00ff")
        a("s_mov_b32 exec_hi, 0x00ff00ff")
        a(f"v_add_u32 v{VUX}, v7, v6")
        a("s_mov_b64 exec, -1")

    def const_d1():
        a("v_cvt_f32_u32 v6, v1")
        a(f"s_lshl_b32 s{S.T0}, s{S.WAVE}, 2")
        a(f"v_lshl_add_u32 v7, v2, 6, s{S.T0}")
        a("v_mul_f32 v6, 0x3b000000, v6")
        a("v_cvt_f32_u32 v7, v7")
        a("v_mul_f32 v15, 0x41800000, v6")
        a("v_mul_f32 v7, v7, v6")
        for ib in range(4):
            if ib:
                a("v_add_f32 v7, v7, v6")
            for j in range(4):
                src = "v7" if j == 0 else "v9"
                a(f"v_cos_f32 v{Cc+j}, {src}")
                a(f"v_sin_f32 v{Ss+j}, {src}")
                if j < 3:
                    a(f"v_add_f32 v9, {src}, v15")
            b = M1 + 12 * ib
            a(f"v_mov_b32 v{b+8}, 0")
            for p in range(2):
                a(f"v_cvt_pk_bf16_f32 v{b+p}, v{Cc+2*p}, v{Cc+2*p+1}")
                a(f"v_cvt_pk_bf16_f32 v{b+4+p}, -v{Ss+2*p}, -v{Ss+2*p+1}")
            for p in range(2):
                a(f"v_xor_b32 v{b+2+p}, v{b+p}, v{VSGN}")
                a(f"v_xor_b32 v{b+6+p}, v{b+4+p}, v{VSGN}")
        a("v_lshrrev_b32 v6, 1, v1")
        a(f"v_add_u32 v7, s{S.T0}, v6")
        a("v_and_b32 v9, 1, v1")
        a("v_lshl_add_u32 v7, v9, 3, v7")
        a("v_cvt_f32_u32 v7, v7")
        a("v_mul_f32 v7, 0x3d000000, v7")
        a("v_cos_f32 v7, v7")
        for ib in range(4):
            m = 0x00030003 << (2 * ib)
            a(f"s_mov_b32 exec_lo, {m:#x}")
            a(f"s_mov_b32 exec_hi, {m:#x}")
            a(f"v_cvt_pk_bf16_f32 v{M1+12*ib+8}, v7, -v7")
        a("s_mov_b64 exec, -1")
        for ib in range(4):
            for p in range(1, 4):
                a(f"v_mov_b32 v{M1+12*ib+8+p}, v{M1+12*ib+8}")

    def const_ga():
        a("v_lshrrev_b32 v6, 1, v1")
        a(f"s_lshl_b32 s{S.T0}, s{S.HH}, 10")
        a(f"s_add_u32 s{S.T0}, s{S.T0}, s{S.T1C}")
        a(f"v_lshl_add_u32 v6, v6, 7, s{S.T0}")
        a("v_and_b32 v7, 1, v1")
        a("v_lshlrev_b32 v9, 9, v7")
        l0, ld = a.L("g0"), a.L("gd")
        a(f"s_cmp_lg_u32 s{S.T1C}, 0")
        a(f"s_cbranch_scc1 {l0}")
        a("s_mov_b32 exec_lo, 0x00020002")
        a("s_mov_b32 exec_hi, 0x00020002")
        a("v_mov_b32 v6, 0x400")
        a("v_mov_b32 v9, 0")
        a("s_mov_b64 exec, -1")
        a.label(l0)
        a("v_lshlrev_b32 v7, 2, v2")
        a("v_mad_u32_u24 v9, v7, v6, v9")
        a("v_cvt_f32_u32 v6, v6")
        a("v_cvt_f32_u32 v9, v9")
        a("v_mul_f32 v6, 0x3a000000, v6")
        a("v_mul_f32 v9, 0x3a000000, v9")
        for jj in range(4):
            a(f"v_cos_f32 v{Cc+jj}, v9")
            a(f"v_sin_f32 v{Ss+jj}, v9")
            if jj < 3:
                a("v_add_f32 v9, v9, v6")
        a(f"s_and_b32 s{S.T1}, s{S.T1C}, 63")
        a(f"s_mul_i32 s{S.L0}, s{S.T1}, {CS}")
        for jj in range(4):
            a(f"v_cvt_pk_bf16_f32 v{GA+jj}, v{Cc+jj}, v{Ss+jj}")
        a(f"s_cmp_lg_u32 s{S.T1}, 0")
        a(f"s_cbranch_scc1 {ld}")
        a(f"s_lshr_b32 s{S.T1}, s{S.T1C}, 2")
        for jj in range(4):
            a(f"v_and_b32 v{GA+jj}, 0xffff, v{GA+jj}")
            a(f"v_lshlrev_b32 v{GA+jj}, s{S.T1}, v{GA+jj}")
        a.label(ld)
        a(f"s_lshl_b32 s{S.T1}, s{S.WAVE}, 9")
        a(f"s_add_u32 s{S.L0}, s{S.L0}, s{S.T1}")
        a(f"s_add_u32 s{S.L0}, s{S.L0}, {WS_INT}")
        a(f"s_add_u32 s{S.L1}, s{S.L0}, 4096")

    LD, DA, OP1, D1A, X16, TP = 32, 64, 96, 32, 112, 96

    def int_loads(ah):
        for jj in range(4):
            so = S.L0 if jj < 2 else S.L1
            a(f"buffer_load_dwordx4 {V(LD+16*ah+4*jj,4)}, v{VLD}, {R4(S.RWS)}, s{so} offen offset:{(jj & 1)*2048 + ah*256} sc1")

    def int_check(ah):
        b = LD + 16 * ah
        a(f"v_max3_u32 v6, v{b}, v{b+2}, v{b+4}")
        a(f"v_max3_u32 v7, v{b+6}, v{b+8}, v{b+10}")
        a(f"v_max3_u32 v6, v{b+12}, v{b+14}, v6")
        a("v_max_u32 v6, v6, v7")
        a("v_cmp_eq_u32 vcc, -1, v6")

    def late_consts():
        gates(True)
        const_d2()
        const_d2_fix()
        addr_ur()
        addr_ur_blk(S.WAVE)

    a.srd(S.ROUT, S.POUT, 0x200000)
    a(f"s_mov_b32 s{S.ISZ}, 0")
    a(f"s_cmp_ge_u32 s{S.WAVE}, 4")
    a("s_cbranch_scc1 L_hi0")
    addr_p2()
    const_ga()
    if o.m1pre:
        const_d1()
    stamp(8)
    a(f"s_waitcnt vmcnt({0 if o.ackwait & 1 else 2})")
    a("s_barrier")
    stamp(9)
    int_loads(0)
    int_loads(1)
    if not o.m1pre:
        const_d1()
    late_consts()
    a.label("L_zjoin")
    stamp(10)
    for ah in range(2):
        a(f"s_waitcnt vmcnt({4-4*ah})")
        int_check(ah)
        a.nop(1)
        a(f"s_cbranch_vccnz L_retry{ah}")
        a.label(f"L_got{ah}")
        b = LD + 16 * ah
        tp = TP + 16 * ah
        for ib in range(5):
            if ib < 4:
                for p in range(2):
                    s0 = b + 8 * p + (ib & 2)
                    a(f"v_pk_mov_b32 {V(tp+4*ib+2*p,2)}, {V(s0,2)}, {V(s0+4,2)} op_sel:[{ib&1},{ib&1}]")
            else:
                a.nop(2)
            if ib:
                a(f"{MF} {V(DA+8*(ib-1)+4*ah,4)}, {V(tp+4*(ib-1),4)}, {V(GA,4)}, 0")
    stamp(11)
    a.nop(1)
    for ib in range(4):
        for p in range(4):
            a(f"v_cvt_pk_bf16_f32 v{OP1+4*ib+p}, v{DA+8*ib+2*p}, v{DA+8*ib+2*p+1}")
        if ib == 0:
            continue
        jb = ib - 1
        a(f"{MF} {V(D1A+8*jb,4)}, {V(OP1+4*jb,4)}, {V(M1+12*jb,4)}, 0")
        a(f"{MF} {V(D1A+8*jb+4,4)}, {V(OP1+4*jb,4)}, {V(M1+12*jb+4,4)}, 0")
        a(f"{MF} {V(X16,4)}, {V(OP1+4*jb,4)}, {V(M1+12*jb+8,4)}, {'0' if jb == 0 else V(X16,4)}")
    a(f"{MF} {V(D1A+24,4)}, {V(OP1+12,4)}, {V(M1+36,4)}, 0")
    a(f"{MF} {V(D1A+28,4)}, {V(OP1+12,4)}, {V(M1+40,4)}, 0")
    a(f"{MF} {V(X16,4)}, {V(OP1+12,4)}, {V(M1+44,4)}, {V(X16,4)}")
    PK = 64
    for ib in range(3):
        for i in range(4):
            a(f"v_cvt_pk_bf16_f32 v{PK+4*i+ib}, v{D1A+8*ib+i}, v{D1A+8*ib+4+i}")
    for i in range(4):
        a(f"v_cvt_pk_bf16_f32 v{PK+4*i+3}, v{D1A+24+i}, v{D1A+28+i}")
        a(f"ds_write_b128 v{VUW}, {V(PK+4*i,4)} offset:{L_U2 + i*UB}")
    a(f"v_cvt_pk_bf16_f32 v{X16}, v{X16}, v{X16+1}")
    a(f"v_cvt_pk_bf16_f32 v{X16+2}, v{X16+2}, v{X16+3}")
    a(f"ds_write_b16 v{VUX}, v{X16} offset:{L_U2}")
    a(f"ds_write_b16_d16_hi v{VUX}, v{X16} offset:{L_U2+UB}")
    a(f"ds_write_b16 v{VUX}, v{X16+2} offset:{L_U2+2*UB}")
    a(f"ds_write_b16_d16_hi v{VUX}, v{X16+2} offset:{L_U2+3*UB}")
    a.label("L_d2")
    a("s_waitcnt lgkmcnt(0)")
    a("s_barrier")
    stamp(12)
    UO, PQ = 32, 48
    a(f"s_cmp_lg_u32 s{S.ISZ}, 0")
    a("s_cbranch_scc1 L_zfin")
    a(f"ds_read_b128 {V(UO,4)}, v{VUR0} offset:{L_U2}")
    a(f"ds_read_b128 {V(UO+4,4)}, v{VUR1} offset:{L_U2}")
    a(f"ds_read_b128 {V(UO+8,4)}, v{VUR0} offset:{L_U2+UB}")
    a(f"ds_read_b128 {V(UO+12,4)}, v{VUR1} offset:{L_U2+UB}")
    a(f"v_mov_b32 v9, {L_GKEY}")
    a("ds_read_b32 v6, v9")
    for k, m in enumerate((0, 8, 4, 12)):
        a(f"s_waitcnt lgkmcnt({4-k})")
        a(f"{MF} {V(PQ+4*k,4)}, {V(UO+4*k,4)}, {V(M2+m,4)}, 0")
    a("s_waitcnt lgkmcnt(0)")
    a(f"v_readfirstlane_b32 s{S.GKEY}, v6")
    a(f"s_lshl_b32 s{S.T0}, s{S.TD}, 10")
    a(f"s_lshl_b32 s{S.T1}, s{S.TM}, 10")
    a(f"s_andn2_b32 s{S.IDX}, 0xffff, s{S.GKEY}")
    for r in range(2):
        for i in range(8):
            a(f"v_fmac_f32 v{XG+8*r+i}, v{CO+2*r}, v{PQ+i}")
    for r, (so, tr) in enumerate(((S.T0, S.TD), (S.T1, S.TM))):
        for i in range(8):
            a(f"v_fmac_f32 v{XG+8*r+i}, v{CO+2*r+1}, v{PQ+8+i}")
        for i in range(4):
            a(f"v_cvt_pk_bf16_f32 v{UO+4*r+i}, v{XG+8*r+2*i}, v{XG+8*r+2*i+1}")
        l = a.L("skip")
        a(f"s_cmp_eq_u32 s{tr}, s{S.IDX}")
        a(f"s_cbranch_scc1 {l}")
        a(f"v_permlane16_swap_b32 v{UO+4*r}, v{UO+4*r+2}")
        a(f"v_permlane16_swap_b32 v{UO+4*r+1}, v{UO+4*r+3}")
        a(f"buffer_store_dwordx4 {V(UO+4*r,4)}, v{VROW}, {R4(S.ROUT)}, s{so} offen{o.outpol}")
        a.label(l)
    stamp(13)
    if o.stamps:
        a("s_waitcnt vmcnt(0)")
        stamp(15)
    endprog(((1, 1), (3, 2), (5, 3), (6, 4), (7, 5), (9, 6), (11, 7), (13, 8), (15, 9)))

    for ah in range(2):
        a.label(f"L_retry{ah}")
        if o.stamps:
            a(f"s_add_u32 s{S.RC}, s{S.RC}, {1 << (8*ah)}")
        if o.rsleep:
            a(f"s_sleep {o.rsleep}")
        int_loads(ah)
        spin()
        a("s_waitcnt vmcnt(0)")
        a(f"s_cbranch_scc1 L_got{ah}")
        int_check(ah)
        a.nop(1)
        a(f"s_cbranch_vccnz L_retry{ah}")
        a(f"s_branch L_got{ah}")

    a.label("L_hi0")
    a(f"s_cmp_lg_u32 s{S.WAVE}, 4")
    a("s_cbranch_scc1 L_hi1")
    tag_make()
    poll_setup(12, 15)
    const_d2()
    stamp(8)
    poll_granules(VG16, 32)
    stamp(9)
    a("s_barrier")
    wave_max_key(32)
    a(f"v_mov_b32 v9, {L_GKEY}")
    a("s_mov_b64 exec, 1")
    a("ds_write_b32 v9, v32")
    a("s_mov_b64 exec, -1")
    a("s_branch L_hi2")
    a.label("L_hi1")
    const_d2()
    a(f"s_waitcnt vmcnt({0 if o.ackwait & 2 else 2})")
    a("s_barrier")
    a.label("L_hi2")
    gates(True)
    addr_ur()
    addr_ur_blk(S.WAVE)
    stamp(10)
    a("s_branch L_d2")

    a.label("L_notA")
    a(f"s_lshl4_add_u32 s{S.FJ}, s{S.T0}, s{S.T1}")
    a(f"s_sub_u32 s{S.FJ}, s{S.FJ}, 16")
    a(f"s_cmp_ge_u32 s2, {NWG}")
    a("s_cbranch_scc1 L_end")
    a(f"s_cmp_lt_u32 s{S.T0}, 4")
    a("s_cbranch_scc1 L_F")
    a(f"s_mul_i32 s{S.FJ}, s{S.T0}, 12")
    a(f"s_add_u32 s{S.FJ}, s{S.FJ}, s{S.T1}")
    a(f"s_cmp_lt_u32 s{S.T1}, 28")
    a("s_cbranch_scc1 L_F")
    a(f"s_mov_b32 s{S.ISZ}, 1")
    a(f"s_lshl2_add_u32 s{S.Z}, s{S.T0}, s{S.T1}")
    a(f"s_sub_u32 s{S.Z}, s{S.Z}, 44")
    vrow_setup()
    a(f"v_lshlrev_b32 v{VG16}, 4, v0")
    sgn_setup()
    a("s_waitcnt lgkmcnt(0)")
    a(f"global_load_dwordx4 {V(GW,4)}, v{VROW}, s[{S.PGW}:{S.PGW+1}]")
    tag_load()
    a.srd(S.ROUT, S.POUT, 0x200000)
    addr_p2()
    a(f"s_cmp_ge_u32 s{S.WAVE}, 4")
    a("s_cbranch_scc1 L_z1")
    const_d2()
    addr_ur()
    const_d1()
    a.label("L_z1")
    a("s_waitcnt vmcnt(0)")
    tag_make()
    a(f"s_lshr_b32 s{S.T0}, s{S.Z}, 2")
    a(f"s_and_b32 s{S.T1}, s{S.Z}, 3")
    a(f"s_lshl3_add_u32 s{S.T0}, s{S.T0}, s{S.T1}")
    a(f"s_lshl_b32 s{S.SI0}, s{S.T0}, 5")
    a(f"s_cmp_lg_u32 s{S.WAVE}, 4")
    a("s_cbranch_scc1 L_z2")
    poll_setup(8, 11)
    if o.zsleep0:
        a(f"s_sleep {o.zsleep0}")
    stamp(1)
    poll_granules(VG16, 32, sleep=o.zsleep)
    stamp(2)
    wave_max_key(32)
    a(f"v_mov_b32 v9, {L_KSL}")
    a("s_mov_b64 exec, 1")
    a("ds_write_b32 v9, v32")
    a("s_mov_b64 exec, -1")
    a("s_waitcnt lgkmcnt(0)")
    a.label("L_z2")
    a("s_barrier")
    a(f"v_mov_b32 v9, {L_KSL}")
    a("ds_read_b32 v6, v9")
    a("v_mov_b32 v12, 0")
    a("v_mov_b32 v13, 0")
    a("s_waitcnt lgkmcnt(0)")
    a(f"v_readfirstlane_b32 s{S.GKEY}, v6")
    a(f"s_andn2_b32 s{S.IDX}, 2047, s{S.GKEY}")
    a(f"s_and_b32 s{S.T0}, s{S.IDX}, 127")
    a(f"s_cmp_gt_u32 s{S.T0}, 64")
    a(f"s_cselect_b32 s{S.WHICH}, 1, 0")
    a(f"s_and_b32 s{S.T0}, s{S.IDX}, {1024 + 63}")
    a(f"s_cmp_eq_u32 s{S.T0}, 1024")
    a(f"s_cselect_b32 s{S.WHICH}, 1, s{S.WHICH}")
    a(f"s_sub_u32 s{S.T0}, 2048, s{S.IDX}")
    a(f"s_cmp_lg_u32 s{S.WHICH}, 0")
    a(f"s_cselect_b32 s{S.T0}, s{S.T0}, s{S.IDX}")
    a(f"s_cmp_eq_u32 s{S.T0}, 1024")
    a(f"s_cselect_b32 s{S.T0}, 0, s{S.T0}")
    a(f"s_and_b32 s{S.T1C}, s{S.T0}, 127")
    a(f"s_lshr_b32 s{S.HH}, s{S.T0}, 10")
    a(f"s_bfe_u32 s{S.WSEL}, s{S.T0}, 0x30007")
    rows_setup(S.WSEL)
    rows_load()
    a(f"s_cmp_ge_u32 s{S.WAVE}, 4")
    a("s_cbranch_scc1 L_z4")
    const_ga()
    addr_ur_blk(S.WSEL)
    const_d2_fix()
    a(f"v_subrev_u32 v6, s{S.SI0}, v{VROW}")
    a("v_and_b32 v6, 0xffffff7f, v6")
    a(f"v_cmp_gt_u32 s[{S.EY}:{S.EY+1}], 32, v6")
    a("v_lshlrev_b32 v6, 7, v1")
    a(f"v_lshl_add_u32 v4, v2, 4, v6")
    stamp(3)
    a("s_waitcnt vmcnt(0)")
    a("s_barrier")
    stamp(9)
    int_loads(0)
    int_loads(1)
    gates(False)
    a(f"s_cmp_lg_u32 s{S.WHICH}, 0")
    a(f"s_cselect_b32 s{S.T0}, s{S.T5}, s{S.T0}")
    a(f"s_cselect_b32 s{S.T4}, s{S.T1}, s{S.T4}")
    a(f"v_mov_b32 v{CO}, s{S.T0}")
    a(f"v_mov_b32 v{CO+1}, s{S.T4}")
    a("s_branch L_zjoin")
    a.label("L_z4")
    a(f"s_sub_u32 s{S.T0}, s{S.WAVE}, 4")
    a(f"s_lshl3_add_u32 s{S.T1}, s{S.T0}, s{S.SI0}")
    a("v_and_b32 v6, 3, v0")
    a(f"v_lshl_add_u32 v10, v6, 1, s{S.T1}")
    a(f"s_lshl_b32 s{S.T2}, s{S.IDX}, 10")
    a(f"v_add_u32 v7, s{S.T2}, v10")
    a(f"global_load_ushort v34, v7, s[{S.PX}:{S.PX+1}]")
    a(f"global_load_ushort v35, v7, s[{S.PX}:{S.PX+1}] offset:128")
    a(f"s_cmp_lg_u32 s{S.WAVE}, 4")
    a("s_cbranch_scc1 L_z6")
    poll_setup(12, 15)
    stamp(8)
    poll_granules(VG16, 40)
    a.label("L_z6")
    a("s_barrier")
    stamp(9)
    a("v_lshlrev_b32 v10, 1, v10")
    a("v_lshrrev_b32 v7, 2, v0")
    a("v_lshlrev_b32 v7, 8, v7")
    a("v_lshl_add_u32 v11, v6, 4, v7")
    a(f"s_mul_i32 s{S.SI0}, s{S.Z}, {PZ}")
    a(f"s_lshl_b32 s{S.T0}, s{S.T0}, 6")
    a(f"s_add_u32 s{S.SI0}, s{S.SI0}, s{S.T0}")
    a(f"s_add_u32 s{S.SI0}, s{S.SI0}, {WS_PART}")
    a(f"s_add_u32 s{S.SI1}, s{S.SI0}, {(o.pc-1)*PARTC}")
    a(f"s_and_b32 s{S.T0}, s{S.GKEY}, 0xffff0000")
    a(f"s_xor_b32 s{S.T1}, s{S.T0}, 0x80000000")
    a(f"s_xor_b32 s{S.T3}, s{S.T0}, 0xffff0000")
    a(f"s_bitcmp1_b32 s{S.T0}, 31")
    a(f"s_cselect_b32 s{S.T0}, s{S.T1}, s{S.T3}")
    a(f"v_mov_b32 v15, s{S.T0}")
    sigmoid(15, 15)
    rnd(15, 15)
    a(f"s_cmp_lg_u32 s{S.WAVE}, 5")
    a("s_cbranch_scc1 L_z5")
    a(f"s_lshl_b32 s{S.T0}, s{S.Z}, 2")
    a(f"s_add_u32 s{S.T0}, s{S.T0}, {WS_ALIVE}")
    a("s_mov_b64 exec, 1")
    a(f"buffer_store_dword v{VTAG}, v0, {R4(S.RWS)}, s{S.T0} offen sc1")
    a("s_mov_b64 exec, -1")
    a("s_waitcnt vmcnt(1)")
    a("s_branch L_z7")
    a.label("L_z5")
    a("s_waitcnt vmcnt(0)")
    a.label("L_z7")
    gates(False)
    a(f"s_cmp_lg_u32 s{S.WHICH}, 0")
    a(f"s_cselect_b32 s{S.T2}, s{S.T3}, s{S.T2}")
    a(f"v_mov_b32 v36, s{S.T2}")
    a("v_lshlrev_b32 v34, 16, v34")
    a("v_lshlrev_b32 v35, 16, v35")
    stamp(10)
    if o.psleep:
        a("s_branch L_zp1")
    a.label("L_zp")
    if o.psleep:
        a(f"s_sleep {o.psleep}")
        a.label("L_zp1")
    for i in range(7):
        if i:
            a(f"s_add_u32 s{S.T0}, s{S.SI0}, {4096*i}")
        a(f"buffer_load_dwordx4 {V(40+4*i,4)}, v11, {R4(S.RWS)}, s{S.T0 if i else S.SI0} offen sc1")
    a(f"s_add_u32 s{S.SI0}, s{S.SI0}, {PARTC}")
    a(f"s_min_u32 s{S.SI0}, s{S.SI0}, s{S.SI1}")
    if o.stamps:
        a(f"s_add_u32 s{S.RC}, s{S.RC}, 256")
    spin()
    a("s_cbranch_scc1 L_zp_ok")
    for i in range(7):
        a(f"s_waitcnt vmcnt({6-i})")
        if i == 0:
            a(f"v_xor_b32 v37, v{VTAG}, v41")
        else:
            a(f"v_bitop3_b32 v37, v{41+4*i}, v{VTAG}, v37 bitop3:0xbe")
            a(f"v_add_f32 v40, v40, v{40+4*i}")
        a(f"v_bitop3_b32 v37, v{43+4*i}, v{VTAG}, v37 bitop3:0xbe")
        if i:
            a(f"v_add_f32 v42, v42, v{42+4*i}")
    a("v_cmp_ne_u32 vcc, 0, v37")
    a.nop(1)
    a("s_cbranch_vccnz L_zp")
    a.label("L_zp_ok")
    stamp(11)
    for r in (4, 8):
        a(f"v_add_f32_dpp v40, v40, v40 row_ror:{r} {DPPM}")
        a(f"v_add_f32_dpp v42, v42, v42 row_ror:{r} {DPPM}")
        a.nop(1)
    a.nop(1)
    a("v_permlane16_swap_b32 v40, v42")
    a("v_add_f32 v40, v40, v42")
    a("v_mov_b32 v42, v40")
    a.nop(2)
    a("v_permlane32_swap_b32 v40, v42")
    a("v_add_f32 v40, v40, v42")
    a("v_mov_b32 v42, v40")
    a.nop(2)
    a("v_permlane16_swap_b32 v40, v42")
    a("v_cvt_pk_bf16_f32 v41, v40, v42")
    a("v_lshlrev_b32 v40, 16, v41")
    a(f"v_and_b32 v42, {HIM}, v41")
    a("v_mul_f32 v40, v40, v15")
    a("v_mul_f32 v42, v42, v15")
    a("v_cvt_pk_bf16_f32 v41, v40, v42")
    a("v_lshlrev_b32 v40, 16, v41")
    a(f"v_and_b32 v42, {HIM}, v41")
    a("v_add_f32 v40, v40, v34")
    a("v_add_f32 v42, v42, v35")
    a("v_cvt_pk_bf16_f32 v41, v40, v42")
    a("v_lshlrev_b32 v40, 16, v41")
    a(f"v_and_b32 v42, {HIM}, v41")
    a("v_mul_f32 v40, v40, v36")
    a("v_mul_f32 v42, v42, v36")
    a("s_mov_b64 exec, 15")
    a(f"ds_write_b32 v10, v40 offset:{L_XG2}")
    a(f"ds_write_b32 v10, v42 offset:{L_XG2+256}")
    a("s_mov_b64 exec, -1")
    a("s_branch L_d2")

    a.label("L_zfin")
    a(f"s_cmp_lg_u32 s{S.WAVE}, 0")
    a("s_cbranch_scc1 L_zend")
    a(f"ds_read_b128 {V(UO,4)}, v{VUR0} offset:{L_U2}")
    a(f"ds_read_b128 {V(UO+4,4)}, v{VUR1} offset:{L_U2}")
    a(f"ds_read_b128 {V(UO+8,4)}, v{VUR0} offset:{L_U2+UB}")
    a(f"ds_read_b128 {V(UO+12,4)}, v{VUR1} offset:{L_U2+UB}")
    a(f"ds_read_b128 {V(XG,4)}, v4 offset:{L_XG2}")
    a(f"ds_read_b128 {V(XG+4,4)}, v4 offset:{L_XG2+64}")
    for k, m in enumerate((0, 8, 4, 12)):
        a(f"s_waitcnt lgkmcnt({5-k})")
        a(f"{MF} {V(PQ+4*k,4)}, {V(UO+4*k,4)}, {V(M2+m,4)}, 0")
    a(f"s_lshl_b32 s{S.T0}, s{S.IDX}, 10")
    a("s_waitcnt lgkmcnt(0)")
    a.nop(2)
    for i in range(8):
        a(f"v_fmac_f32 v{XG+i}, v{CO}, v{PQ+i}")
    for i in range(8):
        a(f"v_fmac_f32 v{XG+i}, v{CO+1}, v{PQ+8+i}")
    for i in range(4):
        a(f"v_cvt_pk_bf16_f32 v{UO+i}, v{XG+2*i}, v{XG+2*i+1}")
    a.nop(2)
    a(f"v_permlane16_swap_b32 v{UO}, v{UO+2}")
    a(f"v_permlane16_swap_b32 v{UO+1}, v{UO+3}")
    a(f"s_mov_b64 exec, s[{S.EY}:{S.EY+1}]")
    a(f"buffer_store_dwordx4 {V(UO,4)}, v{VROW}, {R4(S.ROUT)}, s{S.T0} offen")
    a("s_mov_b64 exec, -1")
    stamp(13)
    a(f"s_cmp_lg_u32 s{S.Z}, 0")
    a("s_cbranch_scc1 L_zend")
    a("s_mov_b64 exec, 0xffff")
    a("v_lshlrev_b32 v6, 2, v0")
    a(f"s_mov_b32 s{S.T0}, {WS_ALIVE}")
    a.label("L_za")
    a(f"buffer_load_dword v7, v6, {R4(S.RWS)}, s{S.T0} offen sc1")
    spin()
    a("s_cbranch_scc1 L_za_ok")
    a("s_waitcnt vmcnt(0)")
    a(f"v_cmp_ne_u32 vcc, v{VTAG}, v7")
    a.nop(1)
    a("s_cbranch_vccnz L_za")
    a.label("L_za_ok")
    a("s_mov_b64 exec, 1")
    a(f"v_add_u32 v9, 1, v{VE}")
    a(f"buffer_store_dword v9, v6, {R4(S.RWS)}, 0 offen sc1")
    a("s_mov_b64 exec, -1")
    a.label("L_zend")
    endprog(((2, 13), (11, 14), (13, 15)))

    a.label("L_F")
    if o.only == "A":
        a("s_endpgm")
    WG_, WD_, XV = 32, 48, 64
    PXS = f"s[{S.PX}:{S.PX+1}]"
    a(f"s_lshl1_add_u32 s{S.KS}, s{S.FJ}, s{S.WAVE}")
    a(f"s_and_b32 s{S.KS}, s{S.KS}, 7")
    a(f"s_mul_i32 s{S.T2}, s{S.KS}, {64*3584}")
    a(f"s_lshl_b32 s{S.T3}, s{S.FJ}, 5")
    a(f"s_add_u32 s{S.T2}, s{S.T2}, s{S.T3}")
    a("v_lshrrev_b32 v6, 1, v0")
    a("v_mul_u32_u24 v6, 3584, v6")
    a("v_and_b32 v7, 1, v0")
    a(f"v_lshl_add_u32 v7, v7, 4, s{S.T2}")
    a("v_add_u32 v3, v6, v7")
    a(f"v_add_u32 v4, {32*3584}, v3")
    a(f"s_lshl_b32 s{S.T4}, s{S.WAVE}, 12")
    a(f"s_mov_b32 m0, s{S.T4}")
    a(f"s_lshl3_add_u32 s{S.T3}, s{S.FJ}, s{S.WAVE}")
    a(f"s_lshl_b32 s{S.T3}, s{S.T3}, 11")
    a("v_lshlrev_b32 v5, 4, v0")
    a(f"s_mul_i32 s{S.T5}, s{S.WAVE}, 2176")
    if o.fpf:
        a(f"s_and_b32 s{S.T0}, s{S.FJ}, 3")
        a(f"s_lshl3_add_u32 s{S.T0}, s{S.T0}, s{S.WAVE}")
        a(f"s_mul_i32 s{S.T0}, s{S.T0}, {16*3584}")
        a(f"s_lshr_b32 s{S.T1}, s{S.FJ}, 2")
        a(f"s_lshl_b32 s{S.T1}, s{S.T1}, 7")
        a(f"s_add_u32 s{S.T0}, s{S.T0}, s{S.T1}")
        a("v_lshrrev_b32 v8, 3, v0")
        a("v_mul_u32_u24 v8, 3584, v8")
        a("v_and_b32 v9, 7, v0")
        a(f"v_lshl_add_u32 v9, v9, 4, s{S.T0}")
        a("v_add_u32 v8, v8, v9")
        a(f"v_add_u32 v9, {8*3584}, v8")
    a("s_waitcnt lgkmcnt(0)")
    if o.fpf:
        a(f"global_load_dwordx4 v[80:83], v8, s[{S.PWG}:{S.PWG+1}]{o.pfpol}")
        a(f"global_load_dwordx4 v[84:87], v8, s[{S.PWU}:{S.PWU+1}]{o.pfpol}")
        a(f"global_load_dwordx4 v[88:91], v9, s[{S.PWG}:{S.PWG+1}]{o.pfpol}")
        a(f"global_load_dwordx4 v[92:95], v9, s[{S.PWU}:{S.PWU+1}]{o.pfpol}")
    a(f"v_add_u32 v6, s{S.T3}, v5")
    a("v_add_u32 v7, 1024, v6")

    def wd_dma():
        a(f"s_add_u32 m0, s{S.T5}, {L_WD}")
        a.nop(1)
        a(f"global_load_lds_dwordx4 v6, s[{S.PWD}:{S.PWD+1}]{o.wdpol}")
        a(f"s_add_u32 m0, s{S.T5}, {L_WD+1088}")
        a.nop(1)
        a(f"global_load_lds_dwordx4 v7, s[{S.PWD}:{S.PWD+1}]{o.wdpol}")

    if o.wdfirst:
        wd_dma()
    tag_load()
    if o.fpf >= 2:
        a(f"s_waitcnt vmcnt({3 if o.wdfirst else 1})")
    a(f"s_mov_b32 m0, s{S.T4}")
    a.nop(1)
    a(f"global_load_lds_dwordx4 v3, s[{S.PWG}:{S.PWG+1}]{o.wpol}")
    a(f"s_add_u32 m0, s{S.T4}, 2048")
    a.nop(1)
    a(f"global_load_lds_dwordx4 v3, s[{S.PWU}:{S.PWU+1}]{o.wpol}")
    a(f"s_add_u32 m0, s{S.T4}, 1024")
    a.nop(1)
    a(f"global_load_lds_dwordx4 v4, s[{S.PWG}:{S.PWG+1}]{o.wpol}")
    a(f"s_add_u32 m0, s{S.T4}, 3072")
    a.nop(1)
    a(f"global_load_lds_dwordx4 v4, s[{S.PWU}:{S.PWU+1}]{o.wpol}")
    if not o.wdfirst and not o.wdlate:
        wd_dma()
    if o.wdlate:
        a("v_mov_b32 v100, v6")
        a("v_mov_b32 v101, v7")
        a(f"s_mov_b32 s{S.L0}, s{S.T5}")
    stamp(1)
    a("v_bfe_u32 v6, v0, 2, 2")
    a("v_and_b32 v7, 3, v0")
    a("v_lshlrev_b32 v8, 3, v7")
    a("v_lshl_add_u32 v9, v6, 5, v8")
    a("v_and_b32 v10, 1, v2")
    a("v_lshl_add_u32 v9, v10, 11, v9")
    a("v_lshrrev_b32 v10, 1, v2")
    a("v_lshl_add_u32 v9, v10, 10, v9")
    a(f"v_add_u32 v9, s{S.T4}, v9")
    a("v_lshlrev_b32 v15, 6, v10")
    a("v_mul_u32_u24 v10, 1088, v6")
    a("v_add_u32 v10, v10, v8")
    a("v_lshl_add_u32 v10, v2, 5, v10")
    a(f"s_lshl_b32 s{S.T5}, s{S.WAVE}, 8")
    a(f"v_add_u32 v10, s{S.T5}, v10")
    a("v_lshlrev_b32 v11, 2, v0")
    a(f"v_add_u32 v11, {L_RED}, v11")
    a(f"v_add_u32 v12, s{S.T5}, v11")
    a(f"v_mul_u32_u24 v13, {PZ}, v2")
    a("v_lshl_add_u32 v13, v1, 4, v13")
    a(f"s_lshl_b32 s{S.T1}, s{S.KS}, 7")
    a(f"v_add_u32 v15, s{S.T1}, v15")
    poll_setup(0, 7)
    a(f"v_mov_b32 v14, {L_FKEY}")
    for i in range(2):
        a(f"v_mov_b32 v{16+i}, 0")
    for i in range(4):
        a(f"v_mov_b32 v{24+i}, 0")
    a("s_waitcnt vmcnt(0)")
    tag_make()
    stamp(2)
    for k in range(8):
        a(f"ds_read_b64_tr_b16 {V(WG_+2*k,2)}, v9 offset:{L_W + k*128}")
    a(f"s_cmp_lg_u32 s{S.WAVE}, {o.fpw}")
    a("s_cbranch_scc1 L_f1")
    stamp(3)
    poll_granules(5, 20)
    stamp(4)
    wave_max_key(20)
    a("s_mov_b64 exec, 1")
    a("ds_write_b32 v14, v20")
    a("s_mov_b64 exec, -1")
    a.label("L_f1")
    a("s_waitcnt lgkmcnt(0)")
    a("s_barrier")
    a("ds_read_b32 v20, v14")
    a("s_waitcnt lgkmcnt(0)")
    a("v_not_b32 v20, v20")
    a("v_and_b32 v20, 2047, v20")
    a("v_lshl_add_u32 v15, v20, 10, v15")
    for i in range(4):
        a(f"global_load_dwordx4 {V(XV+4*i,4)}, v15, {PXS} offset:{16*i}")
    stamp(5)

    def wd_tr():
        for st in range(2):
            for k in range(4):
                a(f"ds_read_b64_tr_b16 {V(WD_+8*st+2*k,2)}, v10 offset:{L_WD + k*4*1088 + st*128}")

    if o.wdlate:
        a(f"s_add_u32 m0, s{S.L0}, {L_WD}")
        a.nop(1)
        a(f"global_load_lds_dwordx4 v100, s[{S.PWD}:{S.PWD+1}]{o.wpol}")
        a(f"s_add_u32 m0, s{S.L0}, {L_WD+1088}")
        a.nop(1)
        a(f"global_load_lds_dwordx4 v101, s[{S.PWD}:{S.PWD+1}]{o.wpol}")
    a(f"s_cmp_ge_u32 s{S.WAVE}, 4")
    a("s_cbranch_scc1 L_f2")
    if not o.wdlate:
        wd_tr()
    a(f"s_mul_i32 s{S.T2}, s{S.WAVE}, {4*PZ}")
    a(f"s_lshl_b32 s{S.T3}, s{S.FJ}, 8")
    a(f"s_add_u32 s{S.T2}, s{S.T2}, s{S.T3}")
    a(f"s_add_u32 s{S.T2}, s{S.T2}, {WS_PART}")
    a(f"v_mov_b32 v29, v{VTAG}")
    a(f"v_mov_b32 v31, v{VTAG}")
    a.label("L_f2")
    for i in range(16):
        if i % 4 == 0:
            a(f"s_waitcnt vmcnt({3 - i // 4 + (2 if o.wdlate else 0)})")
        a(f"v_dot2c_f32_bf16 v{16+(i&1)}, v{XV+i}, v{WG_+i}")
    stamp(6)
    a.nop(3)
    a("v_add_f32 v16, v16, v17")
    a("ds_write_b32 v12, v16")
    a("s_waitcnt vmcnt(0) lgkmcnt(0)")
    a("s_barrier")
    a(f"s_cmp_ge_u32 s{S.WAVE}, 4")
    a("s_cbranch_scc1 L_fend")
    for i in range(4):
        a(f"ds_read2st64_b32 v[{16+2*i}:{17+2*i}], v11 offset0:{2*i} offset1:{2*i+1}")
    nl = 0
    if o.wdlate:
        wd_tr()
        nl = 8
    a(f"s_waitcnt lgkmcnt({2+nl})")
    a("v_add_f32 v16, v16, v17")
    a("v_add_f32 v18, v18, v19")
    a(f"s_waitcnt lgkmcnt({nl})")
    a("v_add_f32 v20, v20, v21")
    a("v_add_f32 v22, v22, v23")
    a("v_add_f32 v16, v16, v18")
    a("v_add_f32 v20, v20, v22")
    a("v_add_f32 v16, v16, v20")
    a("v_mov_b32 v18, v16")
    a.nop(2)
    a("v_permlane32_swap_b32 v16, v18")
    a("v_add_f32 v16, v16, v18")
    rnd(16, 16)
    a("v_mov_b32 v18, v16")
    sigmoid(17, 16)
    a("v_permlane16_swap_b32 v16, v18")
    a("v_mul_f32 v17, v17, v16")
    rnd(17, 17)
    a("v_mul_f32 v17, v17, v18")
    a.nop(2)
    a(f"v_mov_b32_dpp v18, v17 quad_perm:[1,0,3,2] {DPPM}")
    a("v_cvt_pk_bf16_f32 v17, v17, v18")
    a.nop(1)
    for i in range(8):
        a(f"v_readlane_b32 s{S.HS+i}, v17, {2*i}")
    a("s_waitcnt lgkmcnt(0)")
    for i in range(8):
        a(f"v_dot2c_f32_bf16 v{24+(i&1)}, s{S.HS+i}, v{WD_+i}")
        a(f"v_dot2c_f32_bf16 v{26+(i&1)}, s{S.HS+i}, v{WD_+8+i}")
    a.nop(2)
    a("v_add_f32 v28, v24, v25")
    a("v_add_f32 v30, v26, v27")
    for c in range(o.pc):
        if c:
            a(f"s_add_u32 s{S.T2}, s{S.T2}, {PARTC}")
        a(f"buffer_store_dwordx4 v[28:31], v13, {R4(S.RWS)}, s{S.T2} offen sc1")
    stamp(7)
    a.label("L_fend")
    endprog(((2, 10), (4, 11), (7, 12)))
    a.label("L_end")
    a("s_endpgm")
    return name


def main():
    ap = argparse.ArgumentParser()
    ap.add_argument("-o", required=True)
    ap.add_argument("--stamps", type=int, default=0)
    ap.add_argument("--dbg", type=int, default=0)
    ap.add_argument("--pc", type=int, default=2)
    ap.add_argument("--zsleep", type=int, default=8)
    ap.add_argument("--zsleep0", type=int, default=0)
    ap.add_argument("--psleep", type=int, default=0)
    ap.add_argument("--rsleep", type=int, default=0)
    ap.add_argument("--m1pre", type=int, default=1)
    ap.add_argument("--ackwait", type=int, default=0)
    ap.add_argument("--ffirst", type=int, default=0)
    ap.add_argument("--apf", type=int, default=0)
    ap.add_argument("--wdlate", type=int, default=0)
    ap.add_argument("--fpf", type=int, default=0)
    ap.add_argument("--fpw", type=int, default=0)
    ap.add_argument("--wdfirst", type=int, default=0)
    for k in ("wpol", "pfpol", "wdpol", "xpol", "tpol"):
        ap.add_argument("--" + k, default="")
    ap.add_argument("--only", default="")
    ap.add_argument("--noclean", type=int, default=0)
    ap.add_argument("--spin", type=int, default=17)
    ap.add_argument("--outpol", default="")
    o = ap.parse_args()
    for k in ("wpol", "pfpol", "wdpol", "xpol", "tpol"):
        setattr(o, k, (" " + getattr(o, k)) if getattr(o, k) else "")
    o.outpol = (" " + o.outpol) if o.outpol else ""
    a = Asm()
    name = gen(a, o)
    finish(a, name, 256 if o.stamps else 224, 100, NWG, 512, LDS_BYTES, o.o)


main()
```

```python
import argparse
from lib import *

NA, NF, NZ = 128, 112, 16
NWG = NA + NF + NZ
WS_E = 0
WS_ALIVE = 4096
WS_KEY = 64 << 10
WS_KEY2 = 128 << 10
WS_XCH = 192 << 10
XCHC = 28 * 4096
WS_PART = 704 << 10
PZ = NF * 256
PARTC = NZ * PZ
WS_INT = 2 << 20
CS = 32768 + 256
WS_STAMP = 8 << 20
WS_BYTES = 16 << 20
L_TILE = 0
L_U2 = 16384
L_CT = L_U2
UB = 17 * 64
L_MISC = L_U2 + 16 * UB
L_KSL = L_MISC
L_GKEY = L_MISC + 64
L_DUMP = L_MISC + 128
L_XG2 = L_DUMP + 4 * UB + 256
L_M2 = L_XG2 + 2048
L_WV = L_M2 + 4096
L_W = 0
L_WD = 32768
L_RED = L_WD + 16 * 1088
L_FKEY = L_RED + 2048
LDS_BYTES = 84 * 1024
MF = "v_mfma_f32_16x16x32_bf16"
LOG2E = 0x3fb8aa3b
DPPM = "row_mask:0xf bank_mask:0xf"
HIM = "0xffff0000"
NVGPR = 168


class S:
    WAVE = 3
    PX = 4
    T0, T1, T2, T3, T4, T5 = 6, 7, 8, 9, 10, 11
    EX = 12
    EY = 14
    PWR, PWG, PWU, PWD, PGW, POUT, PDBG, PWS = 16, 18, 20, 22, 24, 26, 28, 30
    L0, L1, SPT, PIE = 32, 33, 34, 35
    RWS, ROUT = 36, 40
    XS = 44
    GKEY, WSEL, WHICH, Z = 44, 45, 46, 47
    SI0, SI1, ID8, BLK = 48, 49, 50, 51
    IDX, ISZ = 54, 55
    T1C, HH, TD, TM = 56, 57, 58, 59
    FJ, PO, POL, RC, KM, SPIN = 60, 61, 62, 63, 64, 65
    ST = 68


def gen(a, o):
    name = NAME + "_kernel"
    kernel_head(a, name)
    VE, VTAG = 30, 31
    PXS = f"s[{S.PX}:{S.PX+1}]"

    def stamp(i):
        if o.stamps:
            a(f"s_memrealtime s[{S.ST+2*i}:{S.ST+2*i+1}]")

    def endprog():
        if o.stamps:
            a("s_waitcnt lgkmcnt(0)")
            a(f"s_add_u32 s{S.ST+28}, s{S.RC}, s{S.ST+30}")
            for i in range(16):
                a(f"v_writelane_b32 v166, s{S.ST+2*i}, {i}")
            a("s_mov_b64 exec, 0xffff")
            a(f"s_lshl4_add_u32 s{S.T0}, s2, s{S.WAVE}")
            a(f"s_lshl_b32 s{S.T0}, s{S.T0}, 7")
            a(f"s_add_u32 s{S.T0}, s{S.T0}, {WS_STAMP}")
            a(f"v_lshl_add_u32 v165, v0, 3, s{S.T0}")
            a("v_mov_b32 v167, 0")
            a(f"global_store_dwordx2 v165, v[166:167], s[{S.PWS}:{S.PWS+1}]")
        a("s_endpgm")

    def spin():
        a(f"s_add_u32 s{S.SPIN}, s{S.SPIN}, 1")
        a(f"s_lshr_b32 s{S.SPT}, s{S.SPIN}, {o.spin}")

    def poll_setup(base, R, C):
        a(f"s_and_b32 s{S.PO}, s2, {R-1}")
        a(f"s_mul_i32 s{S.PO}, s{S.PO}, {1024*C}")
        a(f"s_add_u32 s{S.PO}, s{S.PO}, {base}")
        a(f"s_add_u32 s{S.POL}, s{S.PO}, {1024*(C-1)}")

    def set_exec(n):
        if n >= 64:
            a("s_mov_b64 exec, -1")
        elif n <= 31:
            a(f"s_mov_b64 exec, {(1 << n) - 1:#x}")
        else:
            a("s_mov_b32 exec_lo, -1")
            a(f"s_mov_b32 exec_hi, {(1 << (n - 32)) - 1:#x}")

    RF, CF = o.mf
    RZ, CZ = o.mz
    R2, C2 = o.m2
    assert RF * CF + RZ * CZ <= 64 and R2 * C2 <= 64

    def poll_granules(vaddr, vd, sleep=0, step=1024):
        l = a.L("poll")
        if sleep:
            a(f"s_branch {l}_1")
        a.label(l)
        if sleep:
            a(f"s_sleep {sleep}")
            a.label(f"{l}_1")
        a(f"buffer_load_dwordx4 {V(vd,4)}, v{vaddr}, {R4(S.RWS)}, s{S.PO} offen sc1")
        a(f"s_add_u32 s{S.PO}, s{S.PO}, {step}")
        a(f"s_min_u32 s{S.PO}, s{S.PO}, s{S.POL}")
        if o.stamps:
            a(f"s_add_u32 s{S.RC}, s{S.RC}, 1")
        spin()
        a("s_waitcnt vmcnt(0)")
        a(f"s_cbranch_scc1 {l}_ok")
        a(f"v_cmp_ne_u32 vcc, v{VTAG}, v{vd+1}")
        a(f"v_cmp_ne_u32 s[{S.EX}:{S.EX+1}], v{VTAG}, v{vd+3}")
        a(f"s_or_b64 vcc, vcc, s[{S.EX}:{S.EX+1}]")
        a(f"s_cbranch_vccnz {l}")
        a.label(f"{l}_ok")

    def wave_max_key(vd):
        a(f"v_max_u32 v{vd}, v{vd}, v{vd+2}")
        for r in (8, 4, 2, 1):
            a.nop(2)
            a(f"v_max_u32_dpp v{vd}, v{vd}, v{vd} row_ror:{r} {DPPM}")
        a(f"v_mov_b32 v{vd+1}, v{vd}")
        a.nop(2)
        a(f"v_permlane16_swap_b32 v{vd}, v{vd+1}")
        a(f"v_max_u32 v{vd}, v{vd}, v{vd+1}")
        a(f"v_mov_b32 v{vd+1}, v{vd}")
        a.nop(2)
        a(f"v_permlane32_swap_b32 v{vd}, v{vd+1}")
        a(f"v_max_u32 v{vd}, v{vd}, v{vd+1}")

    def lds_put(addr, v, tag=False):
        a(f"v_mov_b32 v9, {addr}")
        a("s_mov_b64 exec, 1")
        if tag:
            a(f"ds_write2_b32 v9, v{v}, v{VTAG} offset1:1")
        else:
            a(f"ds_write_b32 v9, v{v}")
        a("s_mov_b64 exec, -1")
        a("s_waitcnt lgkmcnt(0)")

    def sigmoid(d, s):
        a(f"v_mul_f32 v{d}, {LOG2E | 0x80000000:#x}, v{s}")
        a(f"v_exp_f32 v{d}, v{d}")
        a.nop(1)
        a(f"v_add_f32 v{d}, 1.0, v{d}")
        a(f"v_rcp_f32 v{d}, v{d}")
        a.nop(1)

    def rnd(d, s):
        a(f"v_cvt_pk_bf16_f32 v{d}, v{s}, v{s}")
        a(f"v_and_b32 v{d}, {HIM}, v{d}")

    def ws_setup():
        a.srd(S.RWS, S.PWS, WS_BYTES)
        a(f"s_mov_b32 s{S.SPIN}, 0")

    def tag_load():
        a(f"v_mov_b32 v{VTAG}, 0")
        a(f"global_load_dword v{VE}, v{VTAG}, s[{S.PWS}:{S.PWS+1}]")
        a(f"s_mov_b32 s{S.KM}, 0x9E3779B1")

    def tag_make():
        a(f"v_mul_lo_u32 v{VTAG}, v{VE}, s{S.KM}")
        a(f"v_add_u32 v{VTAG}, 0x7F4A7C15, v{VTAG}")

    a(f"s_load_dwordx2 s[{S.PX}:{S.PX+1}], s[0:1], {KA_X}")
    a(f"s_load_dwordx16 s[16:31], s[0:1], {KA_WR}")
    if o.stamps:
        for i in range(1, 16):
            a(f"s_mov_b32 s{S.ST+2*i}, 0")
        a(f"s_mov_b32 s{S.RC}, 0")
    stamp(0)
    a("v_lshrrev_b32 v1, 6, v0")
    a("v_and_b32 v0, 63, v0")
    a(f"v_readfirstlane_b32 s{S.WAVE}, v1")
    a("v_and_b32 v1, 15, v0")
    a("v_lshrrev_b32 v2, 4, v0")
    a(f"s_and_b32 s{S.T0}, s2, 7")
    a(f"s_sub_u32 s{S.WAVE}, s{S.WAVE}, 1")
    a(f"s_min_u32 s{S.WAVE}, s{S.WAVE}, 8")
    a(f"s_lshr_b32 s{S.T1}, s2, 3")
    a(f"s_cmp_ge_u32 s2, {NA}")
    a("s_cbranch_scc1 L_notA")
    if o.only == "F":
        a("s_endpgm")

    VROW, VG16, VSGN, VTR, VST = 3, 5, 8, 10, 11
    VLD, VUW, VUX, VUR0, VUR1 = 10, 11, 28, 29, 30
    XR, WR, GW, CO = 16, 24, 24, 24
    CM, AOP, ACC = 32, 96, 112
    LD, DA0, DA1, TP, X16, PK = 32, 64, 32, 80, 96, 48
    M1, GA, XG = 100, 148, 152
    Cc, Ss = 64, 68
    UO, PQ, M2 = 32, 48, 64

    def rows_setup(wreg):
        a(f"s_lshl3_add_u32 s{S.T5}, s{S.HH}, s{wreg}")
        a(f"s_lshl_b32 s{S.T5}, s{S.T5}, 7")
        a(f"s_add_u32 s{S.TD}, s{S.T5}, s{S.T1C}")
        a(f"s_sub_u32 s{S.TM}, 2048, s{S.TD}")
        a(f"s_cmp_eq_u32 s{S.TD}, 0")
        a(f"s_cselect_b32 s{S.TM}, 1024, s{S.TM}")
        a(f"s_lshl_b32 s{S.T4}, s{S.TD}, 10")
        a(f"s_lshl_b32 s{S.T5}, s{S.TM}, 10")
        a(f"v_add_u32 v6, s{S.T4}, v{VROW}")
        a(f"v_add_u32 v7, s{S.T5}, v{VROW}")

    def vrow_setup():
        a("v_and_b32 v6, 1, v2")
        a("v_lshlrev_b32 v6, 5, v6")
        a("v_lshl_add_u32 v6, v1, 6, v6")
        a("v_lshrrev_b32 v7, 1, v2")
        a(f"v_lshl_add_u32 v{VROW}, v7, 4, v6")

    def rows_load():
        a(f"global_load_dwordx4 {V(XR,4)}, v6, {PXS}")
        a(f"global_load_dwordx4 {V(XR+4,4)}, v7, {PXS}")

    def sgn_setup():
        a(f"v_lshlrev_b32 v{VSGN}, 31, v1")
        a(f"v_lshrrev_b32 v9, 16, v{VSGN}")
        a(f"v_or_b32 v{VSGN}, v{VSGN}, v9")

    def tile_ids():
        a(f"s_bitcmp1_b32 s{S.T1}, 3")
        a(f"s_cselect_b32 s{S.T2}, s{S.T3}, s{S.T2}")
        a(f"s_and_b32 s{S.T3}, s{S.T1}, 7")
        a(f"s_lshl3_add_u32 s{S.BLK}, s{S.T2}, s{S.T3}")
        a(f"s_lshl_b32 s{S.PIE}, s{S.T2}, 5")
        a(f"s_add_u32 s{S.PIE}, s{S.PIE}, s{S.T3}")
        a(f"s_lshl_b32 s{S.PIE}, s{S.PIE}, 6")

    def vst_setup():
        a(f"v_mul_u32_u24 v{VST}, {CS}, v1")
        a(f"v_lshl_add_u32 v{VST}, v2, 4, v{VST}")

    def const_d2():
        R = 40
        a("v_lshlrev_b32 v6, 2, v2")
        a("v_cvt_f32_u32 v7, v1")
        a("v_cvt_f32_u32 v6, v6")
        a("v_mul_f32 v7, 0x3d800000, v7")
        for hf in range(2):
            if hf:
                a("v_add_f32 v7, 0x3d800000, v7")
            a("v_mul_f32 v9, v6, v7")
            for jj in range(4):
                a(f"v_cos_f32 v{Cc+jj}, v9")
                a(f"v_sin_f32 v{Ss+jj}, v9")
                if jj < 3:
                    a("v_add_f32 v9, v9, v7")
            a.nop(1)
            for jj in range(4):
                if hf == 0:
                    a(f"v_cvt_pk_bf16_f32 v{R+jj}, v{Cc+jj}, v{Ss+jj}")
                    a(f"v_cvt_pk_bf16_f32 v{R+8+jj}, -v{Ss+jj}, v{Cc+jj}")
                else:
                    a(f"v_cvt_pk_bf16_f32 v{R+4+jj}, v{Cc+jj}, -v{Ss+jj}")
                    a(f"v_cvt_pk_bf16_f32 v{R+12+jj}, -v{Ss+jj}, -v{Cc+jj}")
        for k in range(4):
            a(f"ds_write_b128 v{VG16}, {V(R+4*k,4)} offset:{L_M2 + 1024*k}")

    a(f"s_add_u32 s{S.T2}, s{S.T0}, 1")
    a(f"s_sub_u32 s{S.T3}, 15, s{S.T0}")
    a(f"s_cmp_eq_u32 s{S.WAVE}, 8")
    a("s_cbranch_scc1 L_ah")
    a(f"s_and_b32 s{S.HH}, s{S.T1}, 1")
    a(f"s_bitcmp1_b32 s{S.T1}, 1")
    a(f"s_cselect_b32 s{S.T4}, s{S.T3}, s{S.T2}")
    a(f"s_lshr_b32 s{S.T5}, s{S.T1}, 2")
    a(f"s_lshl4_add_u32 s{S.T1C}, s{S.T5}, s{S.T4}")
    vrow_setup()
    a(f"s_cmp_lg_u32 s{S.T0}, 7")
    a("s_cbranch_scc1 L_k7")
    a(f"s_lshr_b32 s{S.T5}, s{S.T1}, 1")
    a(f"s_lshl3_add_u32 s{S.T1C}, s{S.T5}, 8")
    a(f"s_mov_b32 s{S.T2}, 0")
    a(f"s_cmp_eq_u32 s2, 127")
    a(f"s_cselect_b32 s{S.T1C}, 0, s{S.T1C}")
    a(f"s_cselect_b32 s{S.HH}, 0, s{S.HH}")
    a.label("L_k7")
    rows_setup(S.WAVE)
    a("s_waitcnt lgkmcnt(0)")
    rows_load()
    stamp(1)
    tile_ids()

    def tile_dma():
        a(f"s_lshl_b32 s{S.T4}, s{S.WAVE}, 11")
        a(f"s_add_u32 s{S.T5}, s{S.T4}, s{S.BLK}")
        a(f"s_lshl_b32 s{S.T5}, s{S.T5}, 7")
        a(f"s_mov_b32 m0, s{S.T4}")
        a("v_and_b32 v9, 7, v0")
        a("v_bfe_u32 v13, v0, 4, 1")
        a("v_xor_b32 v9, v9, v13")
        a("v_lshrrev_b32 v13, 3, v0")
        a(f"v_lshl_add_u32 v9, v9, 4, s{S.T5}")
        a("v_lshl_add_u32 v13, v13, 14, v9")
        a(f"global_load_lds_dwordx4 v13, {PXS}")
        a(f"s_add_u32 m0, s{S.T4}, 1024")
        a("v_add_u32 v13, 0x20000, v13")
        a(f"global_load_lds_dwordx4 v13, {PXS}")
        stamp(2)

    if not o.tlate:
        tile_dma()
    C1, S1, K = AOP, AOP + 4, AOP + 8
    a(f"s_lshr_b32 s{S.T0}, s{S.WAVE}, 2")
    a(f"s_and_b32 s{S.T1}, s{S.WAVE}, 1")
    a(f"s_bfe_u32 s{S.T2}, s{S.WAVE}, 0x10001")
    a(f"v_lshl_add_u32 v6, s{S.T0}, 4, v1")
    a(f"s_lshl3_add_u32 s{S.T3}, s{S.T2}, s{S.T1}")
    a(f"s_lshl_b32 s{S.T3}, s{S.T3}, 2")
    a("v_cvt_f32_u32 v6, v6")
    a(f"v_lshl_add_u32 v7, v2, 3, s{S.T3}")
    a("v_mul_f32 v6, 0x3c000000, v6")
    a("v_cvt_f32_u32 v7, v7")
    a(f"v_lshlrev_b32 v{VG16}, 4, v0")
    a("v_mul_f32 v7, v7, v6")
    for j in range(4):
        a(f"v_cos_f32 v{C1+j}, v7")
        a(f"v_sin_f32 v{S1+j}, v7")
        if j < 3:
            a("v_add_f32 v7, v7, v6")
    a(f"s_lshl_b32 s{S.T4}, s{S.T0}, 13")
    a(f"s_lshl_b32 s{S.T5}, s{S.T2}, 10")
    a(f"s_lshl3_add_u32 s{S.T5}, s{S.T1}, s{S.T5}")
    a(f"v_add_u32 v15, s{S.T4}, v{VG16}")
    a(f"v_add_u32 v9, s{S.T5}, v15")
    a(f"v_cvt_pk_bf16_f32 v{K+0}, v{C1}, v{C1+1}")
    a(f"v_cvt_pk_bf16_f32 v{K+1}, v{C1+2}, v{C1+3}")
    a(f"v_cvt_pk_bf16_f32 v{K+2}, -v{S1}, -v{S1+1}")
    a(f"v_cvt_pk_bf16_f32 v{K+3}, -v{S1+2}, -v{S1+3}")
    a("v_cmp_eq_f32 vcc, 0, v6")
    a(f"v_cvt_pk_bf16_f32 v{K+4}, v{C1}, -v{S1+1}")
    a(f"v_cvt_pk_bf16_f32 v{K+5}, -v{C1+2}, v{S1+3}")
    a(f"v_cvt_pk_bf16_f32 v{K+6}, -v{S1}, -v{C1+1}")
    a(f"v_cvt_pk_bf16_f32 v{K+7}, v{S1+2}, v{C1+3}")
    a(f"ds_write_b64 v9, {V(K,2)} offset:{L_CT}")
    a(f"ds_write_b64 v9, {V(K+4,2)} offset:{L_CT+4096}")
    a(f"ds_write_b64 v9, {V(K+6,2)} offset:{L_CT+6144}")
    a("s_mov_b64 exec, vcc")
    a(f"v_mov_b32 v{K+2}, 0xbf803f80")
    a(f"v_mov_b32 v{K+3}, 0xbf803f80")
    a("s_mov_b64 exec, -1")
    a(f"ds_write_b64 v9, {V(K+2,2)} offset:{L_CT+2048}")
    if o.tlate:
        tile_dma()
    a(f"s_sub_u32 s{S.T4}, 0xffff, s{S.TD}")
    a(f"s_sub_u32 s{S.T5}, 0xffff, s{S.TM}")
    a(f"v_mov_b32 v4, s{S.T4}")
    a(f"v_writelane_b32 v4, s{S.T5}, 32")
    a(f"s_lshl3_add_u32 s{S.T4}, s{S.WAVE}, {L_KSL}")
    a("v_lshrrev_b32 v9, 3, v0")
    a(f"v_add_u32 v9, s{S.T4}, v9")
    a("v_mov_b32 v12, 0")
    a("v_mov_b32 v13, 0")
    stamp(3)
    a("s_barrier")
    a(f"ds_read_b128 {V(WR,4)}, v{VROW} offset:{L_WV}")

    def dots(w):
        for i in range(4):
            a(f"v_dot2c_f32_bf16 v12, v{XR+i}, v{w+i}")
            a(f"v_dot2c_f32_bf16 v13, v{XR+4+i}, v{w+i}")
        a.nop(3)
        a("v_permlane32_swap_b32 v12, v13")
        a("v_add_f32 v12, v12, v13")
        a("v_mov_b32 v13, v12")
        a.nop(2)
        a("v_permlane16_swap_b32 v12, v13")
        a("v_add_f32 v12, v12, v13")
        for r in (8, 4, 2, 1):
            a.nop(2)
            a(f"v_add_f32_dpp v12, v12, v12 row_ror:{r} {DPPM}")
        rnd(12, 12)

    a("s_waitcnt vmcnt(2) lgkmcnt(0)")
    stamp(4)
    dots(WR)
    a("v_ashrrev_i32 v7, 31, v12")
    a("v_or_b32 v7, 0x80000000, v7")
    a("v_xor_b32 v7, v7, v12")
    a(f"v_and_b32 v7, {HIM}, v7")
    a("v_or_b32 v7, v7, v4")
    a("s_mov_b32 exec_lo, 1")
    a("s_mov_b32 exec_hi, 1")
    a("ds_write_b32 v9, v7")
    a("s_mov_b64 exec, -1")
    a("s_waitcnt lgkmcnt(0)")
    a("s_barrier")
    stamp(5)
    for t in range(4):
        for kp in range(2):
            a(f"ds_read_b128 {V(CM+16*t+4*kp,4)}, v15 offset:{L_CT + t*2048 + kp*1024}")
    sgn_setup()
    a("v_bfe_u32 v6, v0, 2, 2")
    a("v_lshl_add_u32 v7, v2, 3, v6")
    a("v_and_b32 v9, 3, v0")
    a(f"v_lshl_add_u32 v9, v9, 1, s{S.T2}")
    a("v_lshrrev_b32 v6, 1, v6")
    a("v_xor_b32 v9, v9, v6")
    a(f"s_lshl_b32 s{S.T1}, s{S.T1}, 3")
    a(f"v_lshl_add_u32 v9, v9, 4, s{S.T1}")
    a(f"v_lshl_add_u32 v{VTR}, v7, 7, v9")
    for t in range(4):
        a(f"s_waitcnt lgkmcnt({6-2*t})")
        for r in range(8):
            a(f"v_xor_b32 v{CM+t*16+8+r}, v{CM+t*16+r}, v{VSGN}")
    a(f"ds_read_b128 {V(GW,4)}, v{VROW} offset:{L_WV+1024}")
    a("s_waitcnt vmcnt(0)")
    a("s_barrier")
    stamp(6)
    for k in range(4):
        for h in range(2):
            a(f"ds_read_b64_tr_b16 {V(AOP+4*k+2*h,2)}, v{VTR} offset:{L_TILE + k*4096 + h*512}")
    ws_setup()
    vst_setup()
    misc = [f"s_mul_i32 s{S.SI0}, s{S.T0}, {16*CS}",
            f"s_add_u32 s{S.SI0}, s{S.SI0}, s{S.PIE}",
            f"s_and_b32 s{S.T4}, s{S.WAVE}, 3",
            f"s_lshl_b32 s{S.T4}, s{S.T4}, 9",
            f"s_add_u32 s{S.SI0}, s{S.SI0}, s{S.T4}",
            f"s_add_u32 s{S.SI0}, s{S.SI0}, {WS_INT}",
            f"s_add_u32 s{S.SI1}, s{S.SI0}, {32*CS}",
            f"s_mov_b32 s{S.ISZ}, 0"]
    for m in misc:
        a(m)
    for k in range(4):
        a(f"s_waitcnt lgkmcnt({6-2*k})")
        for t in range(4):
            c = "0" if k == 0 else V(ACC + 4 * t, 4)
            a(f"{MF} {V(ACC+4*t,4)}, {V(AOP+4*k,4)}, {V(CM+16*t+4*k,4)}, {c}")
    a("v_mov_b32 v12, 0")
    a("v_mov_b32 v13, 0")
    a.nop(4)
    for i in range(4):
        a(f"v_cvt_pk_bf16_f32 v{AOP+i}, v{ACC+i}, v{ACC+4+i}")
    a(f"buffer_store_dwordx4 {V(AOP,4)}, v{VST}, {R4(S.RWS)}, s{S.SI0} offen sc1")
    for i in range(4):
        a(f"v_cvt_pk_bf16_f32 v{AOP+4+i}, v{ACC+8+i}, v{ACC+12+i}")
    a(f"buffer_store_dwordx4 {V(AOP+4,4)}, v{VST}, {R4(S.RWS)}, s{S.SI1} offen sc1")
    stamp(7)

    def gates(full):
        dots(GW)
        sigmoid(13, 12)
        rnd(13, 13)
        a("v_sub_f32 v14, 1.0, v13")
        rnd(14, 14)
        a(f"v_readlane_b32 s{S.T0}, v13, 0")
        a(f"v_readlane_b32 s{S.T1}, v13, 32")
        a(f"v_readlane_b32 s{S.T2}, v14, 0")
        a(f"v_readlane_b32 s{S.T3}, v14, 32")
        a(f"s_xor_b32 s{S.T4}, s{S.T0}, 0x80000000")
        a(f"s_cmp_eq_u32 s{S.TD}, 0")
        a(f"s_cselect_b32 s{S.T4}, 0, s{S.T4}")
        a(f"s_cselect_b32 s{S.T5}, 0, s{S.T1}")
        if not full:
            return
        a(f"v_mov_b32 v{CO}, s{S.T0}")
        a(f"v_mov_b32 v{CO+1}, s{S.T4}")
        a(f"v_mov_b32 v{CO+2}, s{S.T5}")
        a(f"v_mov_b32 v{CO+3}, s{S.T1}")
        a(f"v_mov_b32 v13, s{S.T2}")
        a(f"v_mov_b32 v14, s{S.T3}")
        for r in range(2):
            a(f"v_permlane16_swap_b32 v{XR+4*r}, v{XR+4*r+2}")
            a(f"v_permlane16_swap_b32 v{XR+4*r+1}, v{XR+4*r+3}")
        for r in range(2):
            for i in range(4):
                a(f"v_lshlrev_b32 v{XG+8*r+2*i}, 16, v{XR+4*r+i}")
                a(f"v_and_b32 v{XG+8*r+2*i+1}, {HIM}, v{XR+4*r+i}")
            for i in range(8):
                a(f"v_mul_f32 v{XG+8*r+i}, v{13+r}, v{XG+8*r+i}")

    def addr_ur(wreg):
        a(f"s_mul_i32 s{S.T1}, s{wreg}, {2*UB}")
        a("v_bfe_u32 v7, v1, 1, 2")
        a("v_xor_b32 v7, v7, v2")
        a(f"v_lshl_add_u32 v7, v7, 4, s{S.T1}")
        a(f"v_lshl_add_u32 v{VUR0}, v1, 6, v7")
        a("v_sub_u32 v6, 16, v1")
        a("v_bfe_u32 v7, v6, 1, 2")
        a("v_xor_b32 v7, v7, v2")
        a(f"v_lshl_add_u32 v7, v7, 4, s{S.T1}")
        a(f"v_lshl_add_u32 v{VUR1}, v6, 6, v7")

    def addr_p2():
        a("v_lshlrev_b32 v6, 4, v1")
        a(f"v_lshl_add_u32 v{VLD}, v2, 13, v6")
        a(f"v_mul_u32_u24 v6, {4*UB}, v2")
        a("v_bfe_u32 v7, v1, 1, 2")
        a(f"v_xor_b32 v7, s{S.WAVE}, v7")
        a("v_lshl_add_u32 v7, v7, 4, v6")
        a(f"v_lshl_add_u32 v{VUW}, v1, 6, v7")
        a(f"s_lshl4_add_u32 s{S.T1}, s{S.WAVE}, 1024")
        a(f"v_mov_b32 v9, {L_DUMP - L_U2}")
        a(f"v_lshl_add_u32 v{VUX}, v0, 1, v9")
        a(f"v_lshl_add_u32 v7, v1, 1, s{S.T1}")
        a("s_mov_b32 exec_lo, 0x00ff00ff")
        a("s_mov_b32 exec_hi, 0x00ff00ff")
        a(f"v_add_u32 v{VUX}, v7, v6")
        a("s_mov_b64 exec, -1")

    def const_d1():
        a("v_cvt_f32_u32 v6, v1")
        a(f"s_lshl_b32 s{S.T0}, s{S.WAVE}, 2")
        a(f"v_lshl_add_u32 v7, v2, 6, s{S.T0}")
        a("v_mul_f32 v6, 0x3b000000, v6")
        a("v_cvt_f32_u32 v7, v7")
        a("v_mul_f32 v15, 0x41800000, v6")
        a("v_mul_f32 v7, v7, v6")
        for ib in range(4):
            if ib:
                a("v_add_f32 v7, v7, v6")
            for j in range(4):
                src = "v7" if j == 0 else "v9"
                a(f"v_cos_f32 v{Cc+j}, {src}")
                a(f"v_sin_f32 v{Ss+j}, {src}")
                if j < 3:
                    a(f"v_add_f32 v9, {src}, v15")
            b = M1 + 12 * ib
            a(f"v_mov_b32 v{b+8}, 0")
            for p in range(2):
                a(f"v_cvt_pk_bf16_f32 v{b+p}, v{Cc+2*p}, v{Cc+2*p+1}")
                a(f"v_cvt_pk_bf16_f32 v{b+4+p}, -v{Ss+2*p}, -v{Ss+2*p+1}")
            for p in range(2):
                a(f"v_xor_b32 v{b+2+p}, v{b+p}, v{VSGN}")
                a(f"v_xor_b32 v{b+6+p}, v{b+4+p}, v{VSGN}")
        a("v_lshrrev_b32 v6, 1, v1")
        a(f"v_add_u32 v7, s{S.T0}, v6")
        a("v_and_b32 v9, 1, v1")
        a("v_lshl_add_u32 v7, v9, 3, v7")
        a("v_cvt_f32_u32 v7, v7")
        a("v_mul_f32 v7, 0x3d000000, v7")
        a("v_cos_f32 v7, v7")
        for ib in range(4):
            m = 0x00030003 << (2 * ib)
            a(f"s_mov_b32 exec_lo, {m:#x}")
            a(f"s_mov_b32 exec_hi, {m:#x}")
            a(f"v_cvt_pk_bf16_f32 v{M1+12*ib+8}, v7, -v7")
        a("s_mov_b64 exec, -1")
        for ib in range(4):
            for p in range(1, 4):
                a(f"v_mov_b32 v{M1+12*ib+8+p}, v{M1+12*ib+8}")

    def const_ga():
        a("v_lshrrev_b32 v6, 1, v1")
        a(f"s_lshl_b32 s{S.T0}, s{S.HH}, 10")
        a(f"s_add_u32 s{S.T0}, s{S.T0}, s{S.T1C}")
        a(f"v_lshl_add_u32 v6, v6, 7, s{S.T0}")
        a("v_and_b32 v7, 1, v1")
        a("v_lshlrev_b32 v9, 9, v7")
        l0, ld = a.L("g0"), a.L("gd")
        a(f"s_cmp_lg_u32 s{S.T1C}, 0")
        a(f"s_cbranch_scc1 {l0}")
        a("s_mov_b32 exec_lo, 0x00020002")
        a("s_mov_b32 exec_hi, 0x00020002")
        a("v_mov_b32 v6, 0x400")
        a("v_mov_b32 v9, 0")
        a("s_mov_b64 exec, -1")
        a.label(l0)
        a("v_lshlrev_b32 v7, 2, v2")
        a("v_mad_u32_u24 v9, v7, v6, v9")
        a("v_cvt_f32_u32 v6, v6")
        a("v_cvt_f32_u32 v9, v9")
        a("v_mul_f32 v6, 0x3a000000, v6")
        a("v_mul_f32 v9, 0x3a000000, v9")
        for jj in range(4):
            a(f"v_cos_f32 v{Cc+jj}, v9")
            a(f"v_sin_f32 v{Ss+jj}, v9")
            if jj < 3:
                a("v_add_f32 v9, v9, v6")
        a(f"s_and_b32 s{S.T1}, s{S.T1C}, 63")
        a(f"s_mul_i32 s{S.L0}, s{S.T1}, {CS}")
        for jj in range(4):
            a(f"v_cvt_pk_bf16_f32 v{GA+jj}, v{Cc+jj}, v{Ss+jj}")
        a(f"s_cmp_lg_u32 s{S.T1}, 0")
        a(f"s_cbranch_scc1 {ld}")
        a(f"s_lshr_b32 s{S.T1}, s{S.T1C}, 2")
        for jj in range(4):
            a(f"v_and_b32 v{GA+jj}, 0xffff, v{GA+jj}")
            a(f"v_lshlrev_b32 v{GA+jj}, s{S.T1}, v{GA+jj}")
        a.label(ld)
        a(f"s_lshl_b32 s{S.T1}, s{S.WAVE}, 9")
        a(f"s_add_u32 s{S.L0}, s{S.L0}, s{S.T1}")
        a(f"s_add_u32 s{S.L0}, s{S.L0}, {WS_INT}")
        a(f"s_add_u32 s{S.L1}, s{S.L0}, 4096")

    def m2_addr():
        a(f"s_cmp_eq_u32 s{S.TD}, 0")
        a(f"s_cselect_b32 s{S.T0}, 0, 2048")
        a(f"v_add_u32 v4, s{S.T0}, v{VG16}")

    def int_loads(ah):
        for jj in range(4):
            so = S.L0 if jj < 2 else S.L1
            a(f"buffer_load_dwordx4 {V(LD+16*ah+4*jj,4)}, v{VLD}, {R4(S.RWS)}, s{so} offen offset:{(jj & 1)*2048 + ah*256} sc1")

    def int_check(ah):
        b = LD + 16 * ah
        a(f"v_max3_u32 v6, v{b}, v{b+2}, v{b+4}")
        a(f"v_max3_u32 v7, v{b+6}, v{b+8}, v{b+10}")
        a(f"v_max3_u32 v6, v{b+12}, v{b+14}, v6")
        a("v_max_u32 v6, v6, v7")
        a("v_cmp_eq_u32 vcc, -1, v6")

    a.srd(S.ROUT, S.POUT, 0x200000)
    a(f"s_cmp_ge_u32 s{S.WAVE}, 4")
    a("s_cbranch_scc1 L_hi0")
    addr_p2()
    const_ga()
    if o.mode == 0:
        gates(True)
        a("s_waitcnt vmcnt(0)")
        a("s_barrier")
    const_d1()
    stamp(8)
    if o.ackwait:
        a("s_waitcnt vmcnt(0)")
    a("s_barrier")
    stamp(9)
    int_loads(0)
    int_loads(1)
    if o.mode:
        gates(True)
    addr_ur(S.WAVE)
    m2_addr()
    a.label("L_zjoin")
    stamp(10)
    for ah in range(2):
        a(f"s_waitcnt vmcnt({4-4*ah})")
        if o.mode:
            int_check(ah)
            a.nop(1)
            a(f"s_cbranch_vccnz L_retry{ah}")
        a.label(f"L_got{ah}")
        b = LD + 16 * ah
        da = DA1 if ah else DA0
        for ib in range(5):
            if ib < 4:
                for p in range(2):
                    s0 = b + 8 * p + (ib & 2)
                    a(f"v_pk_mov_b32 {V(TP+4*ib+2*p,2)}, {V(s0,2)}, {V(s0+4,2)} op_sel:[{ib&1},{ib&1}]")
            else:
                a.nop(2)
            if ib:
                a(f"{MF} {V(da+4*(ib-1),4)}, {V(TP+4*(ib-1),4)}, {V(GA,4)}, 0")
    stamp(11)
    a.nop(1)

    def d1(jb):
        a(f"{MF} {V(DA0+4*jb,4)}, {V(TP+4*jb,4)}, {V(M1+12*jb,4)}, 0")
        a(f"{MF} {V(DA1+4*jb,4)}, {V(TP+4*jb,4)}, {V(M1+12*jb+4,4)}, 0")
        a(f"{MF} {V(X16,4)}, {V(TP+4*jb,4)}, {V(M1+12*jb+8,4)}, {'0' if jb == 0 else V(X16,4)}")

    for ib in range(4):
        for p in range(4):
            s0 = (DA1 if p >= 2 else DA0) + 4 * ib + 2 * (p & 1)
            a(f"v_cvt_pk_bf16_f32 v{TP+4*ib+p}, v{s0}, v{s0+1}")
        if ib:
            d1(ib - 1)
    d1(3)
    for ib in range(3):
        for i in range(4):
            a(f"v_cvt_pk_bf16_f32 v{PK+4*i+ib}, v{DA0+4*ib+i}, v{DA1+4*ib+i}")
    for i in range(4):
        a(f"v_cvt_pk_bf16_f32 v{PK+4*i+3}, v{DA0+12+i}, v{DA1+12+i}")
        a(f"ds_write_b128 v{VUW}, {V(PK+4*i,4)} offset:{L_U2 + i*UB}")
    a(f"v_cvt_pk_bf16_f32 v{X16}, v{X16}, v{X16+1}")
    a(f"v_cvt_pk_bf16_f32 v{X16+2}, v{X16+2}, v{X16+3}")
    a(f"ds_write_b16 v{VUX}, v{X16} offset:{L_U2}")
    a(f"ds_write_b16_d16_hi v{VUX}, v{X16} offset:{L_U2+UB}")
    a(f"ds_write_b16 v{VUX}, v{X16+2} offset:{L_U2+2*UB}")
    a(f"ds_write_b16_d16_hi v{VUX}, v{X16+2} offset:{L_U2+3*UB}")
    a.label("L_d2")
    a(f"ds_read_b128 {V(M2,4)}, v{VG16} offset:{L_M2}")
    a(f"ds_read_b128 {V(M2+4,4)}, v{VG16} offset:{L_M2+1024}")
    a(f"ds_read_b128 {V(M2+8,4)}, v4 offset:{L_M2}")
    a(f"ds_read_b128 {V(M2+12,4)}, v4 offset:{L_M2+1024}")
    a(f"v_mov_b32 v9, {L_GKEY}")
    a("ds_read_b32 v6, v9")
    a("s_waitcnt lgkmcnt(0)")
    a("s_barrier")
    stamp(12)
    a(f"ds_read_b128 {V(UO,4)}, v{VUR0} offset:{L_U2}")
    a(f"ds_read_b128 {V(UO+4,4)}, v{VUR1} offset:{L_U2}")
    a(f"ds_read_b128 {V(UO+8,4)}, v{VUR0} offset:{L_U2+UB}")
    a(f"ds_read_b128 {V(UO+12,4)}, v{VUR1} offset:{L_U2+UB}")
    a(f"s_cmp_lg_u32 s{S.ISZ}, 0")
    a("s_cbranch_scc1 L_zfin")
    a(f"v_readfirstlane_b32 s{S.GKEY}, v6")
    a(f"s_lshl_b32 s{S.T0}, s{S.TD}, 10")
    a(f"s_lshl_b32 s{S.T1}, s{S.TM}, 10")
    a(f"s_andn2_b32 s{S.IDX}, 0xffff, s{S.GKEY}")
    for k in range(4):
        a(f"s_waitcnt lgkmcnt({3-k})")
        a(f"{MF} {V(PQ+4*k,4)}, {V(UO+4*k,4)}, {V(M2+4*k,4)}, 0")
    a.nop(2)
    for r in range(2):
        for i in range(8):
            a(f"v_fmac_f32 v{XG+8*r+i}, v{CO+2*r}, v{PQ+i}")
    for r, (so, tr) in enumerate(((S.T0, S.TD), (S.T1, S.TM))):
        for i in range(8):
            a(f"v_fmac_f32 v{XG+8*r+i}, v{CO+2*r+1}, v{PQ+8+i}")
        for i in range(4):
            a(f"v_cvt_pk_bf16_f32 v{UO+4*r+i}, v{XG+8*r+2*i}, v{XG+8*r+2*i+1}")
        l = a.L("skip")
        a(f"s_cmp_eq_u32 s{tr}, s{S.IDX}")
        a(f"s_cbranch_scc1 {l}")
        a(f"v_permlane16_swap_b32 v{UO+4*r}, v{UO+4*r+2}")
        a(f"v_permlane16_swap_b32 v{UO+4*r+1}, v{UO+4*r+3}")
        a(f"buffer_store_dwordx4 {V(UO+4*r,4)}, v{VROW}, {R4(S.ROUT)}, s{so} offen{o.outpol}")
        a.label(l)
    stamp(13)
    if o.stamps:
        a("s_waitcnt vmcnt(0)")
        stamp(15)
    endprog()

    for ah in range(2 if o.mode else 0):
        a.label(f"L_retry{ah}")
        if o.stamps:
            a(f"s_add_u32 s{S.RC}, s{S.RC}, {1 << (8*ah)}")
        if o.rsleep:
            a(f"s_sleep {o.rsleep}")
        int_loads(ah)
        spin()
        a("s_waitcnt vmcnt(0)")
        a(f"s_cbranch_scc1 L_got{ah}")
        int_check(ah)
        a.nop(1)
        a(f"s_cbranch_vccnz L_retry{ah}")
        a(f"s_branch L_got{ah}")

    a.label("L_hi0")
    if o.mode == 0:
        a("s_waitcnt vmcnt(0)")
        a("s_barrier")
    if o.hipre:
        gates(True)
    a("s_barrier")
    if not o.hipre:
        gates(True)
    addr_ur(S.WAVE)
    m2_addr()
    stamp(10)
    a("s_branch L_d2")

    a.label("L_ah")
    a(f"v_lshlrev_b32 v{VG16}, 4, v0")
    a(f"s_mov_b32 m0, {L_WV}")
    a(f"v_mov_b32 v{VTAG}, 0")
    a("s_waitcnt lgkmcnt(0)")
    a(f"global_load_lds_dwordx4 v{VG16}, s[{S.PWR}:{S.PWR+1}]")
    a(f"s_mov_b32 m0, {L_WV+1024}")
    a(f"global_load_dword v{VE}, v{VTAG}, s[{S.PWS}:{S.PWS+1}]")
    a(f"global_load_lds_dwordx4 v{VG16}, s[{S.PGW}:{S.PGW+1}]")
    a(f"s_mov_b32 s{S.KM}, 0x9E3779B1")
    stamp(1)
    a(f"s_and_b32 s{S.T2}, s{S.T2}, 7")
    tile_ids()
    vst_setup()
    a("v_lshlrev_b32 v14, 10, v0")
    for i in range(4):
        a(f"v_mov_b32 v{32+i}, -1")
    a(f"s_lshl_b32 s{S.ID8}, s2, 3")
    a(f"s_add_u32 s{S.ID8}, s{S.ID8}, {WS_KEY}")
    a(f"s_add_u32 s{S.SI0}, s{S.PIE}, {WS_INT}")
    ws_setup()

    def cleans():
        for i in range(16):
            off = (i & 3) * 512
            a(f"buffer_store_dwordx4 v[32:35], v{VST}, {R4(S.RWS)}, s{S.SI0} offen offset:{off} sc1")
            if (i & 3) == 3 and i < 15:
                a(f"s_add_u32 s{S.SI0}, s{S.SI0}, {16*CS}")

    if o.mode == 1:
        cleans()
        a("s_waitcnt vmcnt(16)")
    else:
        a("s_waitcnt vmcnt(0)")
    stamp(2)
    a("s_barrier")
    tag_make()
    const_d2()
    a(f"v_mov_b32 v9, {L_KSL}")
    a("s_barrier")
    for i in range(4):
        a(f"ds_read_b128 {V(40+4*i,4)}, v9 offset:{16*i}")
    set_exec(max(RF * CF + RZ * CZ, R2 * C2))
    a("s_waitcnt lgkmcnt(2)")
    a("v_max3_u32 v6, v40, v41, v42")
    a("v_max3_u32 v7, v43, v44, v45")
    a("v_max3_u32 v6, v46, v47, v6")
    a("s_waitcnt lgkmcnt(0)")
    a("v_max3_u32 v7, v48, v49, v7")
    a("v_max3_u32 v6, v50, v51, v6")
    a("v_max3_u32 v7, v52, v53, v7")
    a("v_max3_u32 v6, v54, v55, v6")
    a(f"v_max_u32 v{VE}, v6, v7")
    if RF * CF + RZ * CZ < R2 * C2:
        set_exec(RF * CF + RZ * CZ)
    a(f"buffer_store_dwordx2 v[{VE}:{VTAG}], v14, {R4(S.RWS)}, s{S.ID8} offen sc1")
    a("s_mov_b64 exec, -1")
    a(f"s_add_u32 s{S.ID8}, s{S.ID8}, {WS_KEY2 - WS_KEY}")
    stamp(5)

    def key2():
        set_exec(R2 * C2)
        a(f"buffer_store_dwordx2 v[{VE}:{VTAG}], v14, {R4(S.RWS)}, s{S.ID8} offen sc1")
        a("s_mov_b64 exec, -1")
        stamp(6)

    if o.mode == 2:
        cleans()
        a("s_waitcnt vmcnt(0)")
    if o.mode == 1:
        a("s_waitcnt vmcnt(1)")
    if o.mode:
        key2()
    a("s_barrier")
    poll_setup(WS_KEY2, R2, C2)
    if o.mode == 0:
        a("s_barrier")
        key2()
    if o.k2ack:
        a("s_waitcnt vmcnt(0)")
    if o.k2sleep0:
        a(f"s_sleep {o.k2sleep0}")
    stamp(8)
    poll_granules(VG16, 32, sleep=o.k2sleep)
    stamp(9)
    wave_max_key(32)
    lds_put(L_GKEY, 32)
    a("s_barrier")
    endprog()

    a.label("L_notA")
    if o.only == "AA":
        a("s_endpgm")
    a(f"s_lshl4_add_u32 s{S.FJ}, s{S.T0}, s{S.T1}")
    a(f"s_sub_u32 s{S.FJ}, s{S.FJ}, 16")
    a(f"s_cmp_ge_u32 s2, {NWG}")
    a("s_cbranch_scc1 L_end")
    a(f"s_cmp_lt_u32 s{S.T0}, 4")
    a("s_cbranch_scc1 L_F")
    a(f"s_mul_i32 s{S.FJ}, s{S.T0}, 12")
    a(f"s_add_u32 s{S.FJ}, s{S.FJ}, s{S.T1}")
    a(f"s_cmp_lt_u32 s{S.T1}, 28")
    a("s_cbranch_scc1 L_F")
    a(f"s_mov_b32 s{S.ISZ}, 1")
    a(f"s_lshl2_add_u32 s{S.Z}, s{S.T0}, s{S.T1}")
    a(f"s_sub_u32 s{S.Z}, s{S.Z}, 44")
    vrow_setup()
    a(f"v_lshlrev_b32 v{VG16}, 4, v0")
    sgn_setup()
    a("s_waitcnt lgkmcnt(0)")
    ws_setup()
    a.srd(S.ROUT, S.POUT, 0x200000)
    addr_p2()
    a(f"s_cmp_eq_u32 s{S.WAVE}, 8")
    a("s_cbranch_scc1 L_zh")
    a(f"s_cmp_ge_u32 s{S.WAVE}, 4")
    a("s_cbranch_scc1 L_z1")
    const_d1()
    a.label("L_z1")
    a(f"s_lshr_b32 s{S.T0}, s{S.Z}, 2")
    a(f"s_and_b32 s{S.T1}, s{S.Z}, 3")
    a(f"s_lshl3_add_u32 s{S.T0}, s{S.T0}, s{S.T1}")
    a(f"s_lshl_b32 s{S.SI0}, s{S.T0}, 5")
    a(f"v_mov_b32 v9, {L_KSL}")
    a("v_mov_b32 v12, 0")
    a("v_mov_b32 v13, 0")
    a("s_barrier")
    a(f"ds_read_b64 v[{VE}:{VTAG}], v9")
    a(f"ds_read_b128 {V(GW,4)}, v{VROW} offset:{L_WV+1024}")
    a("s_waitcnt lgkmcnt(0)")
    a(f"v_readfirstlane_b32 s{S.GKEY}, v{VE}")
    a(f"s_andn2_b32 s{S.IDX}, 2047, s{S.GKEY}")
    a(f"s_and_b32 s{S.T0}, s{S.IDX}, 127")
    a(f"s_cmp_gt_u32 s{S.T0}, 64")
    a(f"s_cselect_b32 s{S.WHICH}, 1, 0")
    a(f"s_and_b32 s{S.T0}, s{S.IDX}, {1024 + 63}")
    a(f"s_cmp_eq_u32 s{S.T0}, 1024")
    a(f"s_cselect_b32 s{S.WHICH}, 1, s{S.WHICH}")
    a(f"s_sub_u32 s{S.T0}, 2048, s{S.IDX}")
    a(f"s_cmp_lg_u32 s{S.WHICH}, 0")
    a(f"s_cselect_b32 s{S.T0}, s{S.T0}, s{S.IDX}")
    a(f"s_cmp_eq_u32 s{S.T0}, 1024")
    a(f"s_cselect_b32 s{S.T0}, 0, s{S.T0}")
    a(f"s_and_b32 s{S.T1C}, s{S.T0}, 127")
    a(f"s_lshr_b32 s{S.HH}, s{S.T0}, 10")
    a(f"s_bfe_u32 s{S.WSEL}, s{S.T0}, 0x30007")
    rows_setup(S.WSEL)
    rows_load()
    a(f"s_cmp_ge_u32 s{S.WAVE}, 4")
    a("s_cbranch_scc1 L_z4")
    const_ga()
    addr_ur(S.WSEL)
    m2_addr()
    a(f"v_subrev_u32 v6, s{S.SI0}, v{VROW}")
    a("v_and_b32 v6, 0xffffff7f, v6")
    a(f"v_cmp_gt_u32 s[{S.EY}:{S.EY+1}], 32, v6")
    a("v_lshlrev_b32 v6, 7, v1")
    a(f"v_lshl_add_u32 v15, v2, 4, v6")
    a("s_waitcnt vmcnt(0)")
    gates(False)
    a(f"s_cmp_lg_u32 s{S.WHICH}, 0")
    a(f"s_cselect_b32 s{S.T0}, s{S.T5}, s{S.T0}")
    a(f"s_cselect_b32 s{S.T4}, s{S.T1}, s{S.T4}")
    a(f"v_mov_b32 v{CO}, s{S.T0}")
    a(f"v_mov_b32 v{CO+1}, s{S.T4}")
    stamp(3)
    a("s_barrier")
    stamp(9)
    int_loads(0)
    int_loads(1)
    a("s_branch L_zjoin")
    a.label("L_z4")
    a(f"s_sub_u32 s{S.T0}, s{S.WAVE}, 4")
    a(f"s_lshl3_add_u32 s{S.T1}, s{S.T0}, s{S.SI0}")
    a("v_and_b32 v6, 3, v0")
    a(f"v_lshl_add_u32 v10, v6, 1, s{S.T1}")
    a(f"s_lshl_b32 s{S.T2}, s{S.IDX}, 10")
    a(f"v_add_u32 v7, s{S.T2}, v10")
    a(f"global_load_ushort v34, v7, {PXS}")
    a(f"global_load_ushort v35, v7, {PXS} offset:128")
    a("v_lshlrev_b32 v10, 1, v10")
    a("v_lshrrev_b32 v7, 2, v0")
    a("v_lshlrev_b32 v7, 8, v7")
    a("v_lshl_add_u32 v11, v6, 4, v7")
    a(f"s_mul_i32 s{S.SI0}, s{S.Z}, {PZ}")
    a(f"s_lshl_b32 s{S.T0}, s{S.T0}, 6")
    a(f"s_add_u32 s{S.SI0}, s{S.SI0}, s{S.T0}")
    a(f"s_add_u32 s{S.SI0}, s{S.SI0}, {WS_PART}")
    a(f"s_add_u32 s{S.SI1}, s{S.SI0}, {(o.pc-1)*PARTC}")
    a(f"s_and_b32 s{S.T0}, s{S.GKEY}, 0xffff0000")
    a(f"s_xor_b32 s{S.T1}, s{S.T0}, 0x80000000")
    a(f"s_xor_b32 s{S.T3}, s{S.T0}, 0xffff0000")
    a(f"s_bitcmp1_b32 s{S.T0}, 31")
    a(f"s_cselect_b32 s{S.T0}, s{S.T1}, s{S.T3}")
    a(f"v_mov_b32 v15, s{S.T0}")
    sigmoid(15, 15)
    rnd(15, 15)
    a("s_waitcnt vmcnt(0)")
    gates(False)
    a(f"s_cmp_lg_u32 s{S.WHICH}, 0")
    a(f"s_cselect_b32 s{S.T2}, s{S.T3}, s{S.T2}")
    a(f"v_mov_b32 v36, s{S.T2}")
    a("v_lshlrev_b32 v34, 16, v34")
    a("v_lshlrev_b32 v35, 16, v35")
    a(f"v_mov_b32 v4, v{VG16}")
    a(f"v_mov_b32 v{VUR0}, 0")
    a(f"v_mov_b32 v{VUR1}, 0")
    a("s_barrier")
    if o.psleep0:
        a(f"s_sleep {o.psleep0}")
    stamp(10)
    if o.psleep:
        a("s_branch L_zp1")
    a.label("L_zp")
    if o.psleep:
        a(f"s_sleep {o.psleep}")
        a.label("L_zp1")
    for i in range(7):
        if i:
            a(f"s_add_u32 s{S.T0}, s{S.SI0}, {4096*i}")
        a(f"buffer_load_dwordx4 {V(40+4*i,4)}, v11, {R4(S.RWS)}, s{S.T0 if i else S.SI0} offen sc1")
    a(f"s_add_u32 s{S.SI0}, s{S.SI0}, {PARTC}")
    a(f"s_min_u32 s{S.SI0}, s{S.SI0}, s{S.SI1}")
    if o.stamps:
        a(f"s_add_u32 s{S.RC}, s{S.RC}, 256")
    spin()
    a("s_cbranch_scc1 L_zp_ok")
    for i in range(7):
        a(f"s_waitcnt vmcnt({6-i})")
        if i == 0:
            a(f"v_xor_b32 v37, v{VTAG}, v41")
        else:
            a(f"v_bitop3_b32 v37, v{41+4*i}, v{VTAG}, v37 bitop3:0xbe")
            a(f"v_add_f32 v40, v40, v{40+4*i}")
        a(f"v_bitop3_b32 v37, v{43+4*i}, v{VTAG}, v37 bitop3:0xbe")
        if i:
            a(f"v_add_f32 v42, v42, v{42+4*i}")
    a("v_cmp_ne_u32 vcc, 0, v37")
    a.nop(1)
    a("s_cbranch_vccnz L_zp")
    a.label("L_zp_ok")
    a("s_waitcnt vmcnt(0)")
    stamp(11)
    for r in (4, 8):
        a(f"v_add_f32_dpp v40, v40, v40 row_ror:{r} {DPPM}")
        a(f"v_add_f32_dpp v42, v42, v42 row_ror:{r} {DPPM}")
        a.nop(1)
    a.nop(1)
    a("v_permlane16_swap_b32 v40, v42")
    a("v_add_f32 v40, v40, v42")
    a("v_mov_b32 v42, v40")
    a.nop(2)
    a("v_permlane32_swap_b32 v40, v42")
    a("v_add_f32 v40, v40, v42")
    a("v_mov_b32 v42, v40")
    a.nop(2)
    a("v_permlane16_swap_b32 v40, v42")
    a("v_cvt_pk_bf16_f32 v41, v40, v42")
    a("v_lshlrev_b32 v40, 16, v41")
    a(f"v_and_b32 v42, {HIM}, v41")
    a("v_mul_f32 v40, v40, v15")
    a("v_mul_f32 v42, v42, v15")
    a("v_cvt_pk_bf16_f32 v41, v40, v42")
    a("v_lshlrev_b32 v40, 16, v41")
    a(f"v_and_b32 v42, {HIM}, v41")
    a("v_add_f32 v40, v40, v34")
    a("v_add_f32 v42, v42, v35")
    a("v_cvt_pk_bf16_f32 v41, v40, v42")
    a("v_lshlrev_b32 v40, 16, v41")
    a(f"v_and_b32 v42, {HIM}, v41")
    a("v_mul_f32 v40, v40, v36")
    a("v_mul_f32 v42, v42, v36")
    a("s_mov_b64 exec, 15")
    a(f"ds_write_b32 v10, v40 offset:{L_XG2}")
    a(f"ds_write_b32 v10, v42 offset:{L_XG2+256}")
    a("s_waitcnt lgkmcnt(0)")
    a("s_barrier")
    stamp(12)
    endprog()

    a.label("L_zfin")
    a(f"s_cmp_lg_u32 s{S.WAVE}, 0")
    a("s_cbranch_scc1 L_zend")
    a(f"ds_read_b128 {V(XG,4)}, v15 offset:{L_XG2}")
    a(f"ds_read_b128 {V(XG+4,4)}, v15 offset:{L_XG2+64}")
    for k in range(4):
        a(f"s_waitcnt lgkmcnt({5-k})")
        a(f"{MF} {V(PQ+4*k,4)}, {V(UO+4*k,4)}, {V(M2+4*k,4)}, 0")
    a(f"s_lshl_b32 s{S.T0}, s{S.IDX}, 10")
    a("s_waitcnt lgkmcnt(0)")
    a.nop(2)
    for i in range(8):
        a(f"v_fmac_f32 v{XG+i}, v{CO}, v{PQ+i}")
    for i in range(8):
        a(f"v_fmac_f32 v{XG+i}, v{CO+1}, v{PQ+8+i}")
    for i in range(4):
        a(f"v_cvt_pk_bf16_f32 v{UO+i}, v{XG+2*i}, v{XG+2*i+1}")
    a.nop(2)
    a(f"v_permlane16_swap_b32 v{UO}, v{UO+2}")
    a(f"v_permlane16_swap_b32 v{UO+1}, v{UO+3}")
    a(f"s_mov_b64 exec, s[{S.EY}:{S.EY+1}]")
    a(f"buffer_store_dwordx4 {V(UO,4)}, v{VROW}, {R4(S.ROUT)}, s{S.T0} offen")
    a("s_mov_b64 exec, -1")
    stamp(13)
    a.label("L_zend")
    endprog()

    a.label("L_zh")
    a(f"s_mov_b32 m0, {L_WV+1024}")
    tag_load()
    a(f"global_load_lds_dwordx4 v{VG16}, s[{S.PGW}:{S.PGW+1}]")
    const_d2()
    a("s_waitcnt vmcnt(0)")
    tag_make()
    poll_setup(WS_KEY + 1024 * RF * CF, RZ, CZ)
    if o.zsleep0:
        a(f"s_sleep {o.zsleep0}")
    stamp(1)
    poll_granules(VG16, 32, sleep=o.zsleep)
    stamp(2)
    wave_max_key(32)
    lds_put(L_KSL, 32, tag=True)
    a("s_barrier")
    a(f"s_lshl_b32 s{S.T0}, s{S.Z}, 2")
    a(f"s_add_u32 s{S.T0}, s{S.T0}, {WS_ALIVE}")
    a("s_mov_b64 exec, 1")
    a(f"buffer_store_dword v{VTAG}, v0, {R4(S.RWS)}, s{S.T0} offen sc1")
    a("s_mov_b64 exec, -1")
    poll_setup(WS_KEY2, R2, C2)
    a("s_waitcnt vmcnt(0)")
    if o.zk2sleep0:
        a(f"s_sleep {o.zk2sleep0}")
    stamp(8)
    poll_granules(VG16, 32, sleep=o.k2sleep)
    stamp(9)
    a("s_barrier")
    a(f"s_cmp_lg_u32 s{S.Z}, 0")
    a("s_cbranch_scc1 L_zend")
    a("s_mov_b64 exec, 0xffff")
    a("v_lshlrev_b32 v6, 2, v0")
    a(f"s_mov_b32 s{S.T0}, {WS_ALIVE}")
    a.label("L_za")
    a(f"buffer_load_dword v7, v6, {R4(S.RWS)}, s{S.T0} offen sc1")
    spin()
    a("s_waitcnt vmcnt(0)")
    a("s_cbranch_scc1 L_za_ok")
    a(f"v_cmp_ne_u32 vcc, v{VTAG}, v7")
    a.nop(1)
    a("s_cbranch_vccnz L_za")
    a.label("L_za_ok")
    a("s_mov_b64 exec, 1")
    a(f"v_add_u32 v9, 1, v{VE}")
    a("s_barrier")
    a(f"buffer_store_dword v9, v6, {R4(S.RWS)}, 0 offen sc1")
    a("s_mov_b64 exec, -1")
    a("s_branch L_zend")

    a.label("L_F")
    if o.only == "A":
        a("s_endpgm")
    WG_, WD_ = 32, 48
    a("v_lshlrev_b32 v5, 4, v0")
    a(f"s_cmp_eq_u32 s{S.WAVE}, 8")
    a("s_cbranch_scc1 L_fh")
    a(f"s_and_b32 s{S.T0}, s{S.FJ}, 3")
    a(f"s_lshr_b32 s{S.T1}, s{S.WAVE}, 1")
    a(f"s_lshl2_add_u32 s{S.L0}, s{S.T0}, s{S.T1}")
    a(f"s_mul_i32 s{S.T2}, s{S.L0}, {32*3584}")
    a(f"s_lshr_b32 s{S.L1}, s{S.FJ}, 2")
    a(f"s_lshl_b32 s{S.T3}, s{S.L1}, 7")
    a(f"s_add_u32 s{S.T2}, s{S.T2}, s{S.T3}")
    a("v_lshrrev_b32 v6, 3, v0")
    a("v_mul_u32_u24 v6, 3584, v6")
    a("v_and_b32 v7, 7, v0")
    a("v_bfe_u32 v8, v0, 4, 1")
    a("v_lshlrev_b32 v8, 2, v8")
    a("v_xor_b32 v7, v7, v8")
    a(f"v_lshl_add_u32 v7, v7, 4, s{S.T2}")
    a("v_add_u32 v3, v6, v7")
    a(f"s_lshl_b32 s{S.T4}, s{S.WAVE}, 12")
    a(f"s_mov_b32 m0, s{S.T4}")
    a(f"s_lshl3_add_u32 s{S.T3}, s{S.FJ}, s{S.WAVE}")
    a(f"s_lshl_b32 s{S.T3}, s{S.T3}, 11")
    a(f"s_mul_i32 s{S.T5}, s{S.WAVE}, 2176")
    a(f"s_bitcmp1_b32 s{S.WAVE}, 0")
    a("s_waitcnt lgkmcnt(0)")
    a(f"s_cselect_b32 s{S.PWG}, s{S.PWU}, s{S.PWG}")
    a(f"s_cselect_b32 s{S.PWG+1}, s{S.PWU+1}, s{S.PWG+1}")
    if o.fdelay:
        a(f"s_sleep {o.fdelay}")
    if o.fbar:
        a("s_barrier")
    for b in range(4):
        if b:
            a(f"s_add_u32 m0, s{S.T4}, {1024*b}")
            a(f"v_add_u32 v3, {8*3584}, v3")
        a(f"global_load_lds_dwordx4 v3, s[{S.PWG}:{S.PWG+1}]{o.wpol}")
    a(f"v_add_u32 v6, s{S.T3}, v5")
    a(f"s_add_u32 m0, s{S.T5}, {L_WD}")
    a("v_add_u32 v7, 1024, v6")
    a(f"global_load_lds_dwordx4 v6, s[{S.PWD}:{S.PWD+1}]{o.wpol}")
    a(f"s_add_u32 m0, s{S.T5}, {L_WD+1088}")
    a.nop(1)
    a(f"global_load_lds_dwordx4 v7, s[{S.PWD}:{S.PWD+1}]{o.wpol}")
    ws_setup()
    stamp(1)
    a("v_bfe_u32 v6, v0, 2, 2")
    a("v_and_b32 v7, 3, v0")
    a("v_lshlrev_b32 v8, 3, v7")
    a("v_lshl_add_u32 v8, v2, 5, v8")
    a("v_and_b32 v9, 2, v6")
    a("v_lshlrev_b32 v9, 5, v9")
    a("v_xor_b32 v9, v9, v8")
    a("v_lshl_add_u32 v9, v6, 7, v9")
    a(f"v_add_u32 v9, s{S.T4}, v9")
    a("v_mul_u32_u24 v10, 1088, v6")
    a("v_add_u32 v10, v10, v8")
    a(f"s_lshl_b32 s{S.T5}, s{S.WAVE}, 8")
    a(f"v_add_u32 v10, s{S.T5}, v10")
    a("v_lshlrev_b32 v11, 2, v0")
    a(f"v_add_u32 v11, {L_RED}, v11")
    a(f"v_add_u32 v12, s{S.T5}, v11")
    a(f"v_mul_u32_u24 v13, {PZ}, v2")
    a("v_lshl_add_u32 v13, v1, 4, v13")
    a("v_lshlrev_b32 v15, 4, v1")
    a("v_lshl_add_u32 v15, v2, 10, v15")
    a(f"s_lshl_b32 s{S.L0}, s{S.L0}, 6")
    a(f"s_lshl_b32 s{S.L1}, s{S.L1}, 12")
    a(f"s_add_u32 s{S.L1}, s{S.L1}, {WS_XCH}")
    a(f"s_lshl_b32 s{S.T1}, s{S.T0}, 10")
    a(f"s_add_u32 s{S.PO}, s{S.L1}, s{S.T1}")
    a(f"s_add_u32 s{S.POL}, s{S.PO}, {(o.xc-1)*XCHC}")
    a(f"s_lshl_b32 s{S.T1}, s{S.T0}, 8")
    a(f"s_add_u32 s{S.L1}, s{S.L1}, s{S.T1}")
    a(f"s_mul_i32 s{S.T2}, s{S.WAVE}, {4*PZ}")
    a(f"s_lshl_b32 s{S.T3}, s{S.FJ}, 8")
    a(f"s_add_u32 s{S.T2}, s{S.T2}, s{S.T3}")
    a(f"s_add_u32 s{S.T2}, s{S.T2}, {WS_PART}")
    a(f"v_mov_b32 v14, {L_FKEY}")
    for i in range(2):
        a(f"v_mov_b32 v{16+i}, 0")
    for i in range(4):
        a(f"v_mov_b32 v{24+i}, 0")
    a("s_waitcnt vmcnt(0)")
    stamp(2)
    if o.fw0:
        a("s_barrier")
    for k in range(8):
        a(f"ds_read_b64_tr_b16 {V(WG_+2*k,2)}, v9 offset:{L_W + k*512}")
    a("s_waitcnt lgkmcnt(0)")
    a("s_barrier")
    a(f"ds_read_b64 v[{VE}:{VTAG}], v14")
    a("s_waitcnt lgkmcnt(0)")
    a(f"v_readfirstlane_b32 s{S.T0}, v{VE}")
    a(f"s_andn2_b32 s{S.T0}, 2047, s{S.T0}")
    a(f"s_lshl_b32 s{S.T0}, s{S.T0}, 10")
    a(f"s_add_u32 s{S.T0}, s{S.T0}, s{S.L0}")
    a(f"s_load_dwordx16 s[{S.XS}:{S.XS+15}], {PXS}, s{S.T0}")
    stamp(5)
    a(f"v_mov_b32 v29, v{VTAG}")
    a("s_waitcnt lgkmcnt(0)")
    for i in range(16):
        a(f"v_dot2c_f32_bf16 v{16+(i&1)}, s{S.XS+i}, v{WG_+i}")
    stamp(6)
    a.nop(3)
    a("v_add_f32 v16, v16, v17")
    a("ds_write_b32 v12, v16")
    a("s_waitcnt lgkmcnt(0)")
    a("s_barrier")
    a(f"s_cmp_ge_u32 s{S.WAVE}, 4")
    a("s_cbranch_scc1 L_fend")
    a(f"s_lshl_b32 s{S.T0}, s{S.WAVE}, 4")
    a(f"s_lshl_b64 s[{S.EX}:{S.EX+1}], 0xffff, s{S.T0}")
    for i, (p, q) in enumerate(((0, 2), (4, 6), (1, 3), (5, 7))):
        a(f"ds_read2st64_b32 v[{16+2*i}:{17+2*i}], v11 offset0:{p} offset1:{q}")
    a("s_waitcnt lgkmcnt(2)")
    a("v_add_f32 v16, v16, v17")
    a("v_add_f32 v18, v18, v19")
    a("s_waitcnt lgkmcnt(0)")
    a("v_add_f32 v20, v20, v21")
    a("v_add_f32 v22, v22, v23")
    a("v_add_f32 v28, v16, v18")
    a(f"s_mov_b64 exec, s[{S.EX}:{S.EX+1}]")
    a("v_add_f32 v30, v20, v22")
    for c in range(o.xc):
        if c:
            a(f"s_add_u32 s{S.L1}, s{S.L1}, {XCHC}")
        a(f"buffer_store_dwordx4 v[28:31], v15, {R4(S.RWS)}, s{S.L1} offen sc1")
    a("s_mov_b64 exec, -1")
    stamp(7)
    for st in range(2):
        for k in range(4):
            a(f"ds_read_b64_tr_b16 {V(WD_+8*st+2*k,2)}, v10 offset:{L_WD + k*4*1088 + st*128}")
    if o.xack:
        a("s_waitcnt vmcnt(0)")
    if o.xsleep0:
        a(f"s_sleep {o.xsleep0}")
    stamp(8)
    poll_granules(5, 16, step=XCHC)
    stamp(9)
    a("v_permlane16_swap_b32 v16, v18")
    a("v_add_f32 v16, v16, v18")
    a("v_mov_b32 v18, v16")
    a.nop(2)
    a("v_permlane32_swap_b32 v16, v18")
    a("v_add_f32 v16, v16, v18")
    rnd(16, 16)
    a("v_mov_b32 v18, v16")
    sigmoid(17, 16)
    a("v_permlane16_swap_b32 v16, v18")
    a("v_mul_f32 v17, v17, v16")
    rnd(17, 17)
    a("v_mul_f32 v17, v17, v18")
    a.nop(2)
    a(f"v_mov_b32_dpp v18, v17 quad_perm:[1,0,3,2] {DPPM}")
    a("v_cvt_pk_bf16_f32 v17, v17, v18")
    a.nop(1)
    for i in range(8):
        a(f"v_readlane_b32 s{S.XS+i}, v17, {2*i}")
    a("s_waitcnt lgkmcnt(0)")
    for i in range(8):
        a(f"v_dot2c_f32_bf16 v{24+(i&1)}, s{S.XS+i}, v{WD_+i}")
        a(f"v_dot2c_f32_bf16 v{26+(i&1)}, s{S.XS+i}, v{WD_+8+i}")
    a.nop(2)
    a("v_add_f32 v28, v24, v25")
    a("v_add_f32 v30, v26, v27")
    for c in range(o.pc):
        if c:
            a(f"s_add_u32 s{S.T2}, s{S.T2}, {PARTC}")
        a(f"buffer_store_dwordx4 v[28:31], v13, {R4(S.RWS)}, s{S.T2} offen sc1")
    stamp(10)
    a.label("L_fend")
    endprog()

    a.label("L_fh")
    a("s_waitcnt lgkmcnt(0)")
    tag_load()
    ws_setup()
    poll_setup(WS_KEY, RF, CF)
    a("s_waitcnt vmcnt(0)")
    if o.fbar:
        a("s_barrier")
    tag_make()
    if o.fw0:
        a("s_barrier")
    if o.fsleep0:
        a(f"s_sleep {o.fsleep0}")
    stamp(3)
    poll_granules(5, 20, sleep=o.fsleep)
    stamp(4)
    wave_max_key(20)
    lds_put(L_FKEY, 20, tag=True)
    a("s_barrier")
    endprog()
    a.label("L_end")
    a("s_endpgm")
    return name


def main():
    ap = argparse.ArgumentParser()
    ap.add_argument("-o", required=True)
    for k, d in dict(stamps=0, pc=2, xc=2, zsleep=8, zsleep0=0, psleep=0, psleep0=0, rsleep=0, ackwait=0, hipre=0, tlate=0,
                     mode=0, k2ack=1, k2sleep0=0, zk2sleep0=0, k2sleep=0, fbar=0, fw0=1, xack=1, fdelay=0, xsleep0=0, fsleep0=0, fsleep=0, spin=17).items():
        ap.add_argument("--" + k, type=int, default=d)
    for k in ("wpol", "outpol", "only"):
        ap.add_argument("--" + k, default="")
    ap.add_argument("--mf", default="8,3")
    ap.add_argument("--mz", default="1,6")
    ap.add_argument("--m2", default="8,2")
    o = ap.parse_args()
    for k in ("mf", "mz", "m2"):
        setattr(o, k, [int(v) for v in getattr(o, k).split(",")])
    for k in ("wpol", "outpol"):
        setattr(o, k, (" " + getattr(o, k)) if getattr(o, k) else "")
    a = Asm()
    name = gen(a, o)
    finish(a, name, NVGPR, 100, NWG, 576, LDS_BYTES, o.o)


main()
```

```python
import argparse
from lib import *

NA, NF, NZ = 128, 112, 16
NWG = NA + NF + NZ
WS_E = 0
WS_ALIVE = 4096
WS_KEY = 64 << 10
WS_KEY2 = 128 << 10
WS_XCH = 192 << 10
XCHC = 28 * 4096
WS_PART = 704 << 10
PZ = 56 * 256
PARTC = NZ * PZ
WS_INT = 2 << 20
CS = 32768 + 256
WS_STAMP = 8 << 20
WS_BYTES = 16 << 20
L_TILE = 0
L_U2 = 16384
L_CT = L_U2
UB = 17 * 64
L_MISC = L_U2 + 16 * UB
L_KSL = L_MISC
L_GKEY = L_MISC + 64
L_DUMP = L_MISC + 128
L_XG2 = L_DUMP + 4 * UB + 256
L_M2 = L_XG2 + 2048
L_WV = L_M2 + 4096
L_W = 0
L_WD = 32768
L_RED = L_WD + 16384
L_FKEY = L_RED + 2048
LDS_BYTES = 84 * 1024
MF = "v_mfma_f32_16x16x32_bf16"
LOG2E = 0x3fb8aa3b
DPPM = "row_mask:0xf bank_mask:0xf"
HIM = "0xffff0000"
NVGPR = 168


class S:
    WAVE = 3
    PX = 4
    T0, T1, T2, T3, T4, T5 = 6, 7, 8, 9, 10, 11
    EX = 12
    EY = 14
    PWR, PWG, PWU, PWD, PGW, POUT, PDBG, PWS = 16, 18, 20, 22, 24, 26, 28, 30
    L0, L1, SPT, PIE = 32, 33, 34, 35
    RWS, ROUT = 36, 40
    XS = 44
    GKEY, WSEL, WHICH, Z = 44, 45, 46, 47
    SI0, SI1, ID8, BLK = 48, 49, 50, 51
    IDX, ISZ = 54, 55
    T1C, HH, TD, TM = 56, 57, 58, 59
    FJ, PO, POL, RC, KM, SPIN = 60, 61, 62, 63, 64, 65
    ST = 68


def gen(a, o):
    name = NAME + "_kernel"
    kernel_head(a, name)
    VE, VTAG = 30, 31
    PXS = f"s[{S.PX}:{S.PX+1}]"

    def stamp(i):
        if o.stamps:
            a(f"s_memrealtime s[{S.ST+2*i}:{S.ST+2*i+1}]")

    def endprog():
        if o.stamps:
            a("s_waitcnt lgkmcnt(0)")
            a(f"s_add_u32 s{S.ST+28}, s{S.RC}, s{S.ST+30}")
            for i in range(16):
                a(f"v_writelane_b32 v166, s{S.ST+2*i}, {i}")
            a("s_mov_b64 exec, 0xffff")
            a(f"s_lshl4_add_u32 s{S.T0}, s2, s{S.WAVE}")
            a(f"s_lshl_b32 s{S.T0}, s{S.T0}, 7")
            a(f"s_add_u32 s{S.T0}, s{S.T0}, {WS_STAMP}")
            a(f"v_lshl_add_u32 v165, v0, 3, s{S.T0}")
            a("v_mov_b32 v167, 0")
            a(f"global_store_dwordx2 v165, v[166:167], s[{S.PWS}:{S.PWS+1}]")
        a("s_endpgm")

    def spin():
        a(f"s_add_u32 s{S.SPIN}, s{S.SPIN}, 1")
        a(f"s_lshr_b32 s{S.SPT}, s{S.SPIN}, {o.spin}")

    def poll_setup(base, R, C):
        a(f"s_and_b32 s{S.PO}, s2, {R-1}")
        a(f"s_mul_i32 s{S.PO}, s{S.PO}, {1024*C}")
        a(f"s_add_u32 s{S.PO}, s{S.PO}, {base}")
        a(f"s_add_u32 s{S.POL}, s{S.PO}, {1024*(C-1)}")

    def set_exec(n):
        if n >= 64:
            a("s_mov_b64 exec, -1")
        elif n <= 31:
            a(f"s_mov_b64 exec, {(1 << n) - 1:#x}")
        else:
            a("s_mov_b32 exec_lo, -1")
            a(f"s_mov_b32 exec_hi, {(1 << (n - 32)) - 1:#x}")

    RF, CF = o.mf
    RZ, CZ = o.mz
    R2, C2 = o.m2
    assert RF * CF + RZ * CZ <= 64 and R2 * C2 <= 64

    def poll_granules(vaddr, vd, sleep=0, step=1024):
        l = a.L("poll")
        if sleep:
            a(f"s_branch {l}_1")
        a.label(l)
        if sleep:
            a(f"s_sleep {sleep}")
            a.label(f"{l}_1")
        a(f"buffer_load_dwordx4 {V(vd,4)}, v{vaddr}, {R4(S.RWS)}, s{S.PO} offen sc1")
        a(f"s_add_u32 s{S.PO}, s{S.PO}, {step}")
        a(f"s_min_u32 s{S.PO}, s{S.PO}, s{S.POL}")
        if o.stamps:
            a(f"s_add_u32 s{S.RC}, s{S.RC}, 1")
        spin()
        a("s_waitcnt vmcnt(0)")
        a(f"s_cbranch_scc1 {l}_ok")
        a(f"v_cmp_ne_u32 vcc, v{VTAG}, v{vd+1}")
        a(f"v_cmp_ne_u32 s[{S.EX}:{S.EX+1}], v{VTAG}, v{vd+3}")
        a(f"s_or_b64 vcc, vcc, s[{S.EX}:{S.EX+1}]")
        a(f"s_cbranch_vccnz {l}")
        a.label(f"{l}_ok")

    def wave_max_key(vd):
        a(f"v_max_u32 v{vd}, v{vd}, v{vd+2}")
        for r in (8, 4, 2, 1):
            a.nop(2)
            a(f"v_max_u32_dpp v{vd}, v{vd}, v{vd} row_ror:{r} {DPPM}")
        a(f"v_mov_b32 v{vd+1}, v{vd}")
        a.nop(2)
        a(f"v_permlane16_swap_b32 v{vd}, v{vd+1}")
        a(f"v_max_u32 v{vd}, v{vd}, v{vd+1}")
        a(f"v_mov_b32 v{vd+1}, v{vd}")
        a.nop(2)
        a(f"v_permlane32_swap_b32 v{vd}, v{vd+1}")
        a(f"v_max_u32 v{vd}, v{vd}, v{vd+1}")

    def lds_put(addr, v, tag=False):
        a(f"v_mov_b32 v9, {addr}")
        a("s_mov_b64 exec, 1")
        if tag:
            a(f"ds_write2_b32 v9, v{v}, v{VTAG} offset1:1")
        else:
            a(f"ds_write_b32 v9, v{v}")
        a("s_mov_b64 exec, -1")
        a("s_waitcnt lgkmcnt(0)")

    def sigmoid(d, s):
        a(f"v_mul_f32 v{d}, {LOG2E | 0x80000000:#x}, v{s}")
        a(f"v_exp_f32 v{d}, v{d}")
        a.nop(1)
        a(f"v_add_f32 v{d}, 1.0, v{d}")
        a(f"v_rcp_f32 v{d}, v{d}")
        a.nop(1)

    def rnd(d, s):
        a(f"v_cvt_pk_bf16_f32 v{d}, v{s}, v{s}")
        a(f"v_and_b32 v{d}, {HIM}, v{d}")

    def ws_setup():
        a.srd(S.RWS, S.PWS, WS_BYTES)
        a(f"s_mov_b32 s{S.SPIN}, 0")

    def tag_load():
        a(f"v_mov_b32 v{VTAG}, 0")
        a(f"global_load_dword v{VE}, v{VTAG}, s[{S.PWS}:{S.PWS+1}]")
        a(f"s_mov_b32 s{S.KM}, 0x9E3779B1")

    def tag_make():
        a(f"v_mul_lo_u32 v{VTAG}, v{VE}, s{S.KM}")
        a(f"v_add_u32 v{VTAG}, 0x7F4A7C15, v{VTAG}")

    a(f"s_load_dwordx2 s[{S.PX}:{S.PX+1}], s[0:1], {KA_X}")
    a(f"s_load_dwordx16 s[16:31], s[0:1], {KA_WR}")
    if o.stamps:
        for i in range(1, 16):
            a(f"s_mov_b32 s{S.ST+2*i}, 0")
        a(f"s_mov_b32 s{S.RC}, 0")
    stamp(0)
    a("v_lshrrev_b32 v1, 6, v0")
    a("v_and_b32 v0, 63, v0")
    a(f"v_readfirstlane_b32 s{S.WAVE}, v1")
    a("v_and_b32 v1, 15, v0")
    a("v_lshrrev_b32 v2, 4, v0")
    a(f"s_and_b32 s{S.T0}, s2, 7")
    a(f"s_sub_u32 s{S.WAVE}, s{S.WAVE}, 1")
    a(f"s_min_u32 s{S.WAVE}, s{S.WAVE}, 8")
    a(f"s_lshr_b32 s{S.T1}, s2, 3")
    a(f"s_cmp_ge_u32 s2, {NA}")
    a("s_cbranch_scc1 L_notA")
    if o.only == "F":
        a("s_endpgm")

    VROW, VG16, VSGN, VTR, VST = 3, 5, 8, 10, 11
    VLD, VUW, VUX, VUR0, VUR1 = 10, 11, 28, 29, 30
    XR, WR, GW, CO = 16, 24, 24, 24
    CM, AOP, ACC = 32, 96, 112
    LD, DA0, DA1, TP, X16, PK = 32, 64, 32, 80, 96, 48
    M1, GA, XG = 100, 148, 152
    Cc, Ss = 64, 68
    UO, PQ, M2 = 32, 48, 64

    def rows_setup(wreg):
        a(f"s_lshl3_add_u32 s{S.T5}, s{S.HH}, s{wreg}")
        a(f"s_lshl_b32 s{S.T5}, s{S.T5}, 7")
        a(f"s_add_u32 s{S.TD}, s{S.T5}, s{S.T1C}")
        a(f"s_sub_u32 s{S.TM}, 2048, s{S.TD}")
        a(f"s_cmp_eq_u32 s{S.TD}, 0")
        a(f"s_cselect_b32 s{S.TM}, 1024, s{S.TM}")
        a(f"s_lshl_b32 s{S.T4}, s{S.TD}, 10")
        a(f"s_lshl_b32 s{S.T5}, s{S.TM}, 10")
        a(f"v_add_u32 v6, s{S.T4}, v{VROW}")
        a(f"v_add_u32 v7, s{S.T5}, v{VROW}")

    def vrow_setup():
        a("v_and_b32 v6, 1, v2")
        a("v_lshlrev_b32 v6, 5, v6")
        a("v_lshl_add_u32 v6, v1, 6, v6")
        a("v_lshrrev_b32 v7, 1, v2")
        a(f"v_lshl_add_u32 v{VROW}, v7, 4, v6")

    def rows_load():
        a(f"global_load_dwordx4 {V(XR,4)}, v6, {PXS}")
        a(f"global_load_dwordx4 {V(XR+4,4)}, v7, {PXS}")

    def sgn_setup():
        a(f"v_lshlrev_b32 v{VSGN}, 31, v1")
        a(f"v_lshrrev_b32 v9, 16, v{VSGN}")
        a(f"v_or_b32 v{VSGN}, v{VSGN}, v9")

    def sgn_setup2():
        a(f"v_lshlrev_b32 v{VSGN}, 31, v1")
        a(f"v_lshrrev_b32 v14, 16, v{VSGN}")
        a(f"v_or_b32 v{VSGN}, v{VSGN}, v14")

    def tile_ids():
        a(f"s_bitcmp1_b32 s{S.T1}, 3")
        a(f"s_cselect_b32 s{S.T2}, s{S.T3}, s{S.T2}")
        a(f"s_and_b32 s{S.T3}, s{S.T1}, 7")
        a(f"s_lshl3_add_u32 s{S.BLK}, s{S.T2}, s{S.T3}")
        a(f"s_lshl_b32 s{S.PIE}, s{S.T2}, 5")
        a(f"s_add_u32 s{S.PIE}, s{S.PIE}, s{S.T3}")
        a(f"s_lshl_b32 s{S.PIE}, s{S.PIE}, 6")

    def vst_setup():
        a(f"v_mul_u32_u24 v{VST}, {CS}, v1")
        a(f"v_lshl_add_u32 v{VST}, v2, 4, v{VST}")

    def const_d2():
        R = 40
        a("v_lshlrev_b32 v6, 2, v2")
        a("v_cvt_f32_u32 v7, v1")
        a("v_cvt_f32_u32 v6, v6")
        a("v_mul_f32 v7, 0x3d800000, v7")
        for hf in range(2):
            if hf:
                a("v_add_f32 v7, 0x3d800000, v7")
            a("v_mul_f32 v9, v6, v7")
            for jj in range(4):
                a(f"v_cos_f32 v{Cc+jj}, v9")
                a(f"v_sin_f32 v{Ss+jj}, v9")
                if jj < 3:
                    a("v_add_f32 v9, v9, v7")
            a.nop(1)
            for jj in range(4):
                if hf == 0:
                    a(f"v_cvt_pk_bf16_f32 v{R+jj}, v{Cc+jj}, v{Ss+jj}")
                    a(f"v_cvt_pk_bf16_f32 v{R+8+jj}, -v{Ss+jj}, v{Cc+jj}")
                else:
                    a(f"v_cvt_pk_bf16_f32 v{R+4+jj}, v{Cc+jj}, -v{Ss+jj}")
                    a(f"v_cvt_pk_bf16_f32 v{R+12+jj}, -v{Ss+jj}, -v{Cc+jj}")
        for k in range(4):
            a(f"ds_write_b128 v{VG16}, {V(R+4*k,4)} offset:{L_M2 + 1024*k}")

    if o.touch:
        a("s_mov_b64 exec, 0")
        for k in range(9):
            a(f"s_cmp_eq_u32 s{S.WAVE}, {(k + 8) % 9}")
            a(f"s_cbranch_scc1 L_ta{k}")
        a.label("L_taback")
        a("s_mov_b64 exec, -1")
        a.label("L_ta_start")
    a(f"s_add_u32 s{S.T2}, s{S.T0}, 1")
    a(f"s_sub_u32 s{S.T3}, 15, s{S.T0}")
    a(f"s_cmp_eq_u32 s{S.WAVE}, 8")
    a("s_cbranch_scc1 L_ah")
    a(f"s_and_b32 s{S.HH}, s{S.T1}, 1")
    a(f"s_bitcmp1_b32 s{S.T1}, 1")
    a(f"s_cselect_b32 s{S.T4}, s{S.T3}, s{S.T2}")
    a(f"s_lshr_b32 s{S.T5}, s{S.T1}, 2")
    a(f"s_lshl4_add_u32 s{S.T1C}, s{S.T5}, s{S.T4}")
    vrow_setup()
    a(f"s_cmp_lg_u32 s{S.T0}, 7")
    a("s_cbranch_scc1 L_k7")
    a(f"s_lshr_b32 s{S.T5}, s{S.T1}, 1")
    a(f"s_lshl3_add_u32 s{S.T1C}, s{S.T5}, 8")
    a(f"s_mov_b32 s{S.T2}, 0")
    a(f"s_cmp_eq_u32 s2, 127")
    a(f"s_cselect_b32 s{S.T1C}, 0, s{S.T1C}")
    a(f"s_cselect_b32 s{S.HH}, 0, s{S.HH}")
    a.label("L_k7")
    rows_setup(S.WAVE)
    a("s_waitcnt lgkmcnt(0)")
    rows_load()
    stamp(1)
    tile_ids()

    def tile_dma():
        a(f"s_lshl_b32 s{S.T4}, s{S.WAVE}, 11")
        a(f"s_add_u32 s{S.T5}, s{S.T4}, s{S.BLK}")
        a(f"s_lshl_b32 s{S.T5}, s{S.T5}, 7")
        a(f"s_mov_b32 m0, s{S.T4}")
        a("v_and_b32 v9, 7, v0")
        a("v_bfe_u32 v13, v0, 4, 1")
        a("v_xor_b32 v9, v9, v13")
        a("v_lshrrev_b32 v13, 3, v0")
        a(f"v_lshl_add_u32 v9, v9, 4, s{S.T5}")
        a("v_lshl_add_u32 v13, v13, 14, v9")
        a(f"global_load_lds_dwordx4 v13, {PXS}")
        a(f"s_add_u32 m0, s{S.T4}, 1024")
        a("v_add_u32 v13, 0x20000, v13")
        a(f"global_load_lds_dwordx4 v13, {PXS}")
        stamp(2)

    if not o.tlate:
        tile_dma()
    C1, S1, K = AOP, AOP + 4, AOP + 8
    a(f"s_lshr_b32 s{S.T0}, s{S.WAVE}, 2")
    a(f"s_and_b32 s{S.T1}, s{S.WAVE}, 1")
    a(f"s_bfe_u32 s{S.T2}, s{S.WAVE}, 0x10001")
    a(f"v_lshl_add_u32 v6, s{S.T0}, 4, v1")
    a(f"s_lshl3_add_u32 s{S.T3}, s{S.T2}, s{S.T1}")
    a(f"s_lshl_b32 s{S.T3}, s{S.T3}, 2")
    a("v_cvt_f32_u32 v6, v6")
    a(f"v_lshl_add_u32 v7, v2, 3, s{S.T3}")
    a("v_mul_f32 v6, 0x3c000000, v6")
    a("v_cvt_f32_u32 v7, v7")
    a(f"v_lshlrev_b32 v{VG16}, 4, v0")
    a("v_mul_f32 v7, v7, v6")
    for j in range(4):
        a(f"v_cos_f32 v{C1+j}, v7")
        a(f"v_sin_f32 v{S1+j}, v7")
        if j < 3:
            a("v_add_f32 v7, v7, v6")
    if o.tlate == 2:
        a(f"global_load_dwordx4 {V(WR,4)}, v{VROW}, s[{S.PWR}:{S.PWR+1}]")
        tile_dma()
    a(f"s_lshl_b32 s{S.T4}, s{S.T0}, 13")
    a(f"s_lshl_b32 s{S.T5}, s{S.T2}, 10")
    a(f"s_lshl3_add_u32 s{S.T5}, s{S.T1}, s{S.T5}")
    a(f"v_add_u32 v15, s{S.T4}, v{VG16}")
    a(f"v_add_u32 v9, s{S.T5}, v15")
    a(f"v_cvt_pk_bf16_f32 v{K+0}, v{C1}, v{C1+1}")
    a(f"v_cvt_pk_bf16_f32 v{K+1}, v{C1+2}, v{C1+3}")
    a(f"v_cvt_pk_bf16_f32 v{K+2}, -v{S1}, -v{S1+1}")
    a(f"v_cvt_pk_bf16_f32 v{K+3}, -v{S1+2}, -v{S1+3}")
    a("v_cmp_eq_f32 vcc, 0, v6")
    a(f"v_cvt_pk_bf16_f32 v{K+4}, v{C1}, -v{S1+1}")
    a(f"v_cvt_pk_bf16_f32 v{K+5}, -v{C1+2}, v{S1+3}")
    a(f"v_cvt_pk_bf16_f32 v{K+6}, -v{S1}, -v{C1+1}")
    a(f"v_cvt_pk_bf16_f32 v{K+7}, v{S1+2}, v{C1+3}")
    a(f"ds_write_b64 v9, {V(K,2)} offset:{L_CT}")
    a(f"ds_write_b64 v9, {V(K+4,2)} offset:{L_CT+4096}")
    a(f"ds_write_b64 v9, {V(K+6,2)} offset:{L_CT+6144}")
    a("s_mov_b64 exec, vcc")
    a(f"v_mov_b32 v{K+2}, 0xbf803f80")
    a(f"v_mov_b32 v{K+3}, 0xbf803f80")
    a("s_mov_b64 exec, -1")
    a(f"ds_write_b64 v9, {V(K+2,2)} offset:{L_CT+2048}")
    if o.tlate != 2:
        a(f"global_load_dwordx4 {V(WR,4)}, v{VROW}, s[{S.PWR}:{S.PWR+1}]")
    if o.tlate == 1:
        tile_dma()
    a("v_mov_b32 v12, 0")
    a("v_mov_b32 v13, 0")
    stamp(3)

    def dots(w, fill=()):
        fill = list(fill)

        def pad(n):
            while n and fill:
                a(fill.pop(0))
                n -= 1
            a.nop(n)

        for i in range(4):
            a(f"v_dot2c_f32_bf16 v12, v{XR+i}, v{w+i}")
            a(f"v_dot2c_f32_bf16 v13, v{XR+4+i}, v{w+i}")
        pad(3)
        a("v_permlane32_swap_b32 v12, v13")
        a("v_add_f32 v12, v12, v13")
        a("v_mov_b32 v13, v12")
        pad(2)
        a("v_permlane16_swap_b32 v12, v13")
        a("v_add_f32 v12, v12, v13")
        for r in (8, 4, 2, 1):
            pad(2)
            a(f"v_add_f32_dpp v12, v12, v12 row_ror:{r} {DPPM}")
        rnd(12, 12)
        for x in fill:
            a(x)

    a(f"s_waitcnt vmcnt({2 if o.tlate else 0})")
    stamp(4)
    dots(WR, [f"s_sub_u32 s{S.T4}, 0xffff, s{S.TD}", f"s_sub_u32 s{S.T5}, 0xffff, s{S.TM}", f"v_mov_b32 v4, s{S.T4}",
              f"v_writelane_b32 v4, s{S.T5}, 32", f"s_lshl3_add_u32 s{S.T4}, s{S.WAVE}, {L_KSL}",
              "v_lshrrev_b32 v9, 3, v0", f"v_add_u32 v9, s{S.T4}, v9",
              "v_bfe_u32 v6, v0, 2, 2", "v_and_b32 v14, 3, v0", f"v_lshl_add_u32 v14, v14, 1, s{S.T2}",
              f"v_lshl_add_u32 v{VTR}, v2, 3, v6", "v_lshrrev_b32 v6, 1, v6", "v_xor_b32 v14, v14, v6"])
    a("v_ashrrev_i32 v7, 31, v12")
    a("v_or_b32 v7, 0x80000000, v7")
    a("v_xor_b32 v7, v7, v12")
    a(f"v_and_b32 v7, {HIM}, v7")
    a("v_or_b32 v7, v7, v4")
    a("s_mov_b32 exec_lo, 1")
    a("s_mov_b32 exec_hi, 1")
    a("ds_write_b32 v9, v7")
    a("s_mov_b64 exec, -1")
    a(f"s_lshl_b32 s{S.T1}, s{S.T1}, 3")
    a(f"v_lshl_add_u32 v14, v14, 4, s{S.T1}")
    a(f"v_lshl_add_u32 v{VTR}, v{VTR}, 7, v14")
    a("s_waitcnt vmcnt(0) lgkmcnt(0)")
    a("s_barrier")
    stamp(5)
    for k in range(4):
        for h in range(2):
            a(f"ds_read_b64_tr_b16 {V(AOP+4*k+2*h,2)}, v{VTR} offset:{L_TILE + k*4096 + h*512}")
        if k < 2:
            for t in range(4):
                a(f"ds_read_b128 {V(CM+16*t+4*k,4)}, v15 offset:{L_CT + t*2048 + k*1024}")
        if k == 1:
            a("s_waitcnt lgkmcnt(9)")
    sgn_setup2()
    a(f"global_load_dwordx4 {V(GW,4)}, v{VROW}, s[{S.PGW}:{S.PGW+1}]")
    xors = [f"v_xor_b32 v{CM+t*16+8+4*kp+r}, v{CM+t*16+4*kp+r}, v{VSGN}" for kp in range(2) for t in range(4) for r in range(4)]
    misc = [f"s_mul_i32 s{S.SI0}, s{S.T0}, {16*CS}",
            f"s_add_u32 s{S.SI0}, s{S.SI0}, s{S.PIE}",
            f"s_and_b32 s{S.T4}, s{S.WAVE}, 3",
            f"s_lshl_b32 s{S.T4}, s{S.T4}, 9",
            f"s_add_u32 s{S.SI0}, s{S.SI0}, s{S.T4}",
            f"s_add_u32 s{S.SI0}, s{S.SI0}, {WS_INT}",
            f"s_add_u32 s{S.SI1}, s{S.SI0}, {32*CS}",
            f"s_mov_b32 s{S.ISZ}, 0",
            f"s_mov_b32 s{S.RWS}, s{S.PWS}", f"s_mov_b32 s{S.RWS+1}, s{S.PWS+1}", f"s_mov_b32 s{S.RWS+2}, {WS_BYTES:#x}",
            f"s_mov_b32 s{S.RWS+3}, 0x20000", f"s_mov_b32 s{S.SPIN}, 0",
            f"v_mul_u32_u24 v{VST}, {CS}, v1", f"v_lshl_add_u32 v{VST}, v2, 4, v{VST}"]
    fill = xors + misc
    for k in range(4):
        for t in range(4):
            if k == 0:
                a(f"s_waitcnt lgkmcnt({13-t})")
            elif k == 1:
                a(f"s_waitcnt lgkmcnt({7-t})")
            elif t == 0:
                a(f"s_waitcnt lgkmcnt({2 if k == 2 else 0})")
            c = "0" if k == 0 else V(ACC + 4 * t, 4)
            a(f"{MF} {V(ACC+4*t,4)}, {V(AOP+4*k,4)}, {V(CM+16*t+4*k,4)}, {c}")
            n = 4 if k < 2 else 2
            if k < 3 or t < 3:
                for _ in range(n):
                    if fill:
                        a(fill.pop(0))
    for x in fill:
        a(x)
    a("v_mov_b32 v12, 0")
    a("v_mov_b32 v13, 0")
    for i in range(4):
        a(f"v_cvt_pk_bf16_f32 v{AOP+i}, v{ACC+i}, v{ACC+4+i}")
    a(f"buffer_store_dwordx4 {V(AOP,4)}, v{VST}, {R4(S.RWS)}, s{S.SI0} offen sc1")
    for i in range(4):
        a(f"v_cvt_pk_bf16_f32 v{AOP+4+i}, v{ACC+8+i}, v{ACC+12+i}")
    a(f"buffer_store_dwordx4 {V(AOP+4,4)}, v{VST}, {R4(S.RWS)}, s{S.SI1} offen sc1")
    stamp(7)
    a.label("L_ta_end")

    def gates(full):
        if full:
            a("s_waitcnt vmcnt(2)")
        dots(GW)
        sigmoid(13, 12)
        rnd(13, 13)
        a("v_sub_f32 v14, 1.0, v13")
        rnd(14, 14)
        a(f"v_readlane_b32 s{S.T0}, v13, 0")
        a(f"v_readlane_b32 s{S.T1}, v13, 32")
        a(f"v_readlane_b32 s{S.T2}, v14, 0")
        a(f"v_readlane_b32 s{S.T3}, v14, 32")
        a(f"s_xor_b32 s{S.T4}, s{S.T0}, 0x80000000")
        a(f"s_cmp_eq_u32 s{S.TD}, 0")
        a(f"s_cselect_b32 s{S.T4}, 0, s{S.T4}")
        a(f"s_cselect_b32 s{S.T5}, 0, s{S.T1}")
        if not full:
            return
        a(f"v_mov_b32 v{CO}, s{S.T0}")
        a(f"v_mov_b32 v{CO+1}, s{S.T4}")
        a(f"v_mov_b32 v{CO+2}, s{S.T5}")
        a(f"v_mov_b32 v{CO+3}, s{S.T1}")
        a(f"v_mov_b32 v13, s{S.T2}")
        a(f"v_mov_b32 v14, s{S.T3}")
        for r in range(2):
            a(f"v_permlane16_swap_b32 v{XR+4*r}, v{XR+4*r+2}")
            a(f"v_permlane16_swap_b32 v{XR+4*r+1}, v{XR+4*r+3}")
        for r in range(2):
            for i in range(4):
                a(f"v_lshlrev_b32 v{XG+8*r+2*i}, 16, v{XR+4*r+i}")
                a(f"v_and_b32 v{XG+8*r+2*i+1}, {HIM}, v{XR+4*r+i}")
            for i in range(8):
                a(f"v_mul_f32 v{XG+8*r+i}, v{13+r}, v{XG+8*r+i}")

    def addr_ur(wreg):
        a(f"s_mul_i32 s{S.T1}, s{wreg}, {2*UB}")
        a("v_bfe_u32 v7, v1, 1, 2")
        a("v_xor_b32 v7, v7, v2")
        a(f"v_lshl_add_u32 v7, v7, 4, s{S.T1}")
        a(f"v_lshl_add_u32 v{VUR0}, v1, 6, v7")
        a("v_sub_u32 v6, 16, v1")
        a("v_bfe_u32 v7, v6, 1, 2")
        a("v_xor_b32 v7, v7, v2")
        a(f"v_lshl_add_u32 v7, v7, 4, s{S.T1}")
        a(f"v_lshl_add_u32 v{VUR1}, v6, 6, v7")

    def addr_p2():
        a("v_lshlrev_b32 v6, 4, v1")
        a(f"v_lshl_add_u32 v{VLD}, v2, 13, v6")
        a(f"v_mul_u32_u24 v6, {4*UB}, v2")
        a("v_bfe_u32 v7, v1, 1, 2")
        a(f"v_xor_b32 v7, s{S.WAVE}, v7")
        a("v_lshl_add_u32 v7, v7, 4, v6")
        a(f"v_lshl_add_u32 v{VUW}, v1, 6, v7")
        a(f"s_lshl4_add_u32 s{S.T1}, s{S.WAVE}, 1024")
        a(f"v_mov_b32 v9, {L_DUMP - L_U2}")
        a(f"v_lshl_add_u32 v{VUX}, v0, 1, v9")
        a(f"v_lshl_add_u32 v7, v1, 1, s{S.T1}")
        a("s_mov_b32 exec_lo, 0x00ff00ff")
        a("s_mov_b32 exec_hi, 0x00ff00ff")
        a(f"v_add_u32 v{VUX}, v7, v6")
        a("s_mov_b64 exec, -1")

    def const_d1():
        a("v_cvt_f32_u32 v6, v1")
        a(f"s_lshl_b32 s{S.T0}, s{S.WAVE}, 2")
        a(f"v_lshl_add_u32 v7, v2, 6, s{S.T0}")
        a("v_mul_f32 v6, 0x3b000000, v6")
        a("v_cvt_f32_u32 v7, v7")
        a("v_mul_f32 v15, 0x41800000, v6")
        a("v_mul_f32 v7, v7, v6")
        for ib in range(4):
            if ib:
                a("v_add_f32 v7, v7, v6")
            for j in range(4):
                src = "v7" if j == 0 else "v9"
                a(f"v_cos_f32 v{Cc+j}, {src}")
                a(f"v_sin_f32 v{Ss+j}, {src}")
                if j < 3:
                    a(f"v_add_f32 v9, {src}, v15")
            b = M1 + 12 * ib
            a(f"v_mov_b32 v{b+8}, 0")
            for p in range(2):
                a(f"v_cvt_pk_bf16_f32 v{b+p}, v{Cc+2*p}, v{Cc+2*p+1}")
                a(f"v_cvt_pk_bf16_f32 v{b+4+p}, -v{Ss+2*p}, -v{Ss+2*p+1}")
            for p in range(2):
                a(f"v_xor_b32 v{b+2+p}, v{b+p}, v{VSGN}")
                a(f"v_xor_b32 v{b+6+p}, v{b+4+p}, v{VSGN}")
        a("v_lshrrev_b32 v6, 1, v1")
        a(f"v_add_u32 v7, s{S.T0}, v6")
        a("v_and_b32 v9, 1, v1")
        a("v_lshl_add_u32 v7, v9, 3, v7")
        a("v_cvt_f32_u32 v7, v7")
        a("v_mul_f32 v7, 0x3d000000, v7")
        a("v_cos_f32 v7, v7")
        for ib in range(4):
            m = 0x00030003 << (2 * ib)
            a(f"s_mov_b32 exec_lo, {m:#x}")
            a(f"s_mov_b32 exec_hi, {m:#x}")
            a(f"v_cvt_pk_bf16_f32 v{M1+12*ib+8}, v7, -v7")
        a("s_mov_b64 exec, -1")
        for ib in range(4):
            for p in range(1, 4):
                a(f"v_mov_b32 v{M1+12*ib+8+p}, v{M1+12*ib+8}")

    def const_ga():
        a("v_lshrrev_b32 v6, 1, v1")
        a(f"s_lshl_b32 s{S.T0}, s{S.HH}, 10")
        a(f"s_add_u32 s{S.T0}, s{S.T0}, s{S.T1C}")
        a(f"v_lshl_add_u32 v6, v6, 7, s{S.T0}")
        a("v_and_b32 v7, 1, v1")
        a("v_lshlrev_b32 v9, 9, v7")
        l0, ld = a.L("g0"), a.L("gd")
        a(f"s_cmp_lg_u32 s{S.T1C}, 0")
        a(f"s_cbranch_scc1 {l0}")
        a("s_mov_b32 exec_lo, 0x00020002")
        a("s_mov_b32 exec_hi, 0x00020002")
        a("v_mov_b32 v6, 0x400")
        a("v_mov_b32 v9, 0")
        a("s_mov_b64 exec, -1")
        a.label(l0)
        a("v_lshlrev_b32 v7, 2, v2")
        a("v_mad_u32_u24 v9, v7, v6, v9")
        a("v_cvt_f32_u32 v6, v6")
        a("v_cvt_f32_u32 v9, v9")
        a("v_mul_f32 v6, 0x3a000000, v6")
        a("v_mul_f32 v9, 0x3a000000, v9")
        for jj in range(4):
            a(f"v_cos_f32 v{Cc+jj}, v9")
            a(f"v_sin_f32 v{Ss+jj}, v9")
            if jj < 3:
                a("v_add_f32 v9, v9, v6")
        a(f"s_and_b32 s{S.T1}, s{S.T1C}, 63")
        a(f"s_mul_i32 s{S.L0}, s{S.T1}, {CS}")
        for jj in range(4):
            a(f"v_cvt_pk_bf16_f32 v{GA+jj}, v{Cc+jj}, v{Ss+jj}")
        a(f"s_cmp_lg_u32 s{S.T1}, 0")
        a(f"s_cbranch_scc1 {ld}")
        a(f"s_lshr_b32 s{S.T1}, s{S.T1C}, 2")
        for jj in range(4):
            a(f"v_and_b32 v{GA+jj}, 0xffff, v{GA+jj}")
            a(f"v_lshlrev_b32 v{GA+jj}, s{S.T1}, v{GA+jj}")
        a.label(ld)
        a(f"s_lshl_b32 s{S.T1}, s{S.WAVE}, 9")
        a(f"s_add_u32 s{S.L0}, s{S.L0}, s{S.T1}")
        a(f"s_add_u32 s{S.L0}, s{S.L0}, {WS_INT}")
        a(f"s_add_u32 s{S.L1}, s{S.L0}, 4096")

    def m2_addr():
        a(f"s_cmp_eq_u32 s{S.TD}, 0")
        a(f"s_cselect_b32 s{S.T0}, 0, 2048")
        a(f"v_add_u32 v4, s{S.T0}, v{VG16}")

    def int_loads(ah):
        for jj in range(4):
            so = S.L0 if jj < 2 else S.L1
            a(f"buffer_load_dwordx4 {V(LD+16*ah+4*jj,4)}, v{VLD}, {R4(S.RWS)}, s{so} offen offset:{(jj & 1)*2048 + ah*256} sc1")

    def int_check(ah):
        b = LD + 16 * ah
        a(f"v_max3_u32 v6, v{b}, v{b+2}, v{b+4}")
        a(f"v_max3_u32 v7, v{b+6}, v{b+8}, v{b+10}")
        a(f"v_max3_u32 v6, v{b+12}, v{b+14}, v6")
        a("v_max_u32 v6, v6, v7")
        a("v_cmp_eq_u32 vcc, -1, v6")

    a.srd(S.ROUT, S.POUT, 0x200000)
    a(f"s_cmp_ge_u32 s{S.WAVE}, 4")
    a("s_cbranch_scc1 L_hi0")
    addr_p2()
    const_ga()
    if o.mode == 0:
        gates(True)
        a("s_waitcnt vmcnt(0)")
        a("s_barrier")
    const_d1()
    stamp(8)
    if o.ackwait:
        a("s_waitcnt vmcnt(0)")
    a("s_barrier")
    stamp(9)
    int_loads(0)
    int_loads(1)
    if o.mode:
        gates(True)
    addr_ur(S.WAVE)
    m2_addr()
    a.label("L_zjoin")
    stamp(10)
    for ah in range(2):
        a(f"s_waitcnt vmcnt({4-4*ah})")
        if o.mode:
            int_check(ah)
            a.nop(1)
            a(f"s_cbranch_vccnz L_retry{ah}")
        a.label(f"L_got{ah}")
        b = LD + 16 * ah
        da = DA1 if ah else DA0
        for ib in range(5):
            if ib < 4:
                for p in range(2):
                    s0 = b + 8 * p + (ib & 2)
                    a(f"v_pk_mov_b32 {V(TP+4*ib+2*p,2)}, {V(s0,2)}, {V(s0+4,2)} op_sel:[{ib&1},{ib&1}]")
            else:
                a.nop(2)
            if ib:
                a(f"{MF} {V(da+4*(ib-1),4)}, {V(TP+4*(ib-1),4)}, {V(GA,4)}, 0")
    stamp(11)
    a.nop(1)

    def d1(jb):
        a(f"{MF} {V(DA0+4*jb,4)}, {V(TP+4*jb,4)}, {V(M1+12*jb,4)}, 0")
        a(f"{MF} {V(DA1+4*jb,4)}, {V(TP+4*jb,4)}, {V(M1+12*jb+4,4)}, 0")
        a(f"{MF} {V(X16,4)}, {V(TP+4*jb,4)}, {V(M1+12*jb+8,4)}, {'0' if jb == 0 else V(X16,4)}")

    for ib in range(4):
        for p in range(4):
            s0 = (DA1 if p >= 2 else DA0) + 4 * ib + 2 * (p & 1)
            a(f"v_cvt_pk_bf16_f32 v{TP+4*ib+p}, v{s0}, v{s0+1}")
        if ib:
            d1(ib - 1)
    d1(3)
    for ib in range(3):
        for i in range(4):
            a(f"v_cvt_pk_bf16_f32 v{PK+4*i+ib}, v{DA0+4*ib+i}, v{DA1+4*ib+i}")
    for i in range(4):
        a(f"v_cvt_pk_bf16_f32 v{PK+4*i+3}, v{DA0+12+i}, v{DA1+12+i}")
        a(f"ds_write_b128 v{VUW}, {V(PK+4*i,4)} offset:{L_U2 + i*UB}")
    a(f"v_cvt_pk_bf16_f32 v{X16}, v{X16}, v{X16+1}")
    a(f"v_cvt_pk_bf16_f32 v{X16+2}, v{X16+2}, v{X16+3}")
    a(f"ds_write_b16 v{VUX}, v{X16} offset:{L_U2}")
    a(f"ds_write_b16_d16_hi v{VUX}, v{X16} offset:{L_U2+UB}")
    a(f"ds_write_b16 v{VUX}, v{X16+2} offset:{L_U2+2*UB}")
    a(f"ds_write_b16_d16_hi v{VUX}, v{X16+2} offset:{L_U2+3*UB}")
    a.label("L_d2")
    a(f"ds_read_b128 {V(M2,4)}, v{VG16} offset:{L_M2}")
    a(f"ds_read_b128 {V(M2+4,4)}, v{VG16} offset:{L_M2+1024}")
    a(f"ds_read_b128 {V(M2+8,4)}, v4 offset:{L_M2}")
    a(f"ds_read_b128 {V(M2+12,4)}, v4 offset:{L_M2+1024}")
    a(f"v_mov_b32 v9, {L_GKEY}")
    a("ds_read_b32 v6, v9")
    a("s_waitcnt lgkmcnt(0)")
    a("s_barrier")
    stamp(12)
    a(f"ds_read_b128 {V(UO,4)}, v{VUR0} offset:{L_U2}")
    a(f"ds_read_b128 {V(UO+4,4)}, v{VUR1} offset:{L_U2}")
    a(f"ds_read_b128 {V(UO+8,4)}, v{VUR0} offset:{L_U2+UB}")
    a(f"ds_read_b128 {V(UO+12,4)}, v{VUR1} offset:{L_U2+UB}")
    a(f"s_cmp_lg_u32 s{S.ISZ}, 0")
    a("s_cbranch_scc1 L_zfin")
    a(f"v_readfirstlane_b32 s{S.GKEY}, v6")
    a(f"s_lshl_b32 s{S.T0}, s{S.TD}, 10")
    a(f"s_lshl_b32 s{S.T1}, s{S.TM}, 10")
    a(f"s_andn2_b32 s{S.IDX}, 0xffff, s{S.GKEY}")
    for k in range(4):
        a(f"s_waitcnt lgkmcnt({3-k})")
        a(f"{MF} {V(PQ+4*k,4)}, {V(UO+4*k,4)}, {V(M2+4*k,4)}, 0")
    a.nop(2)
    for r in range(2):
        for i in range(8):
            a(f"v_fmac_f32 v{XG+8*r+i}, v{CO+2*r}, v{PQ+i}")
    for r, (so, tr) in enumerate(((S.T0, S.TD), (S.T1, S.TM))):
        for i in range(8):
            a(f"v_fmac_f32 v{XG+8*r+i}, v{CO+2*r+1}, v{PQ+8+i}")
        for i in range(4):
            a(f"v_cvt_pk_bf16_f32 v{UO+4*r+i}, v{XG+8*r+2*i}, v{XG+8*r+2*i+1}")
        l = a.L("skip")
        a(f"s_cmp_eq_u32 s{tr}, s{S.IDX}")
        a(f"s_cbranch_scc1 {l}")
        a(f"v_permlane16_swap_b32 v{UO+4*r}, v{UO+4*r+2}")
        a(f"v_permlane16_swap_b32 v{UO+4*r+1}, v{UO+4*r+3}")
        a(f"buffer_store_dwordx4 {V(UO+4*r,4)}, v{VROW}, {R4(S.ROUT)}, s{so} offen{o.outpol}")
        a.label(l)
    stamp(13)
    if o.stamps:
        a("s_waitcnt vmcnt(0)")
        stamp(15)
    endprog()

    for ah in range(2 if o.mode else 0):
        a.label(f"L_retry{ah}")
        if o.stamps:
            a(f"s_add_u32 s{S.RC}, s{S.RC}, {1 << (8*ah)}")
        if o.rsleep:
            a(f"s_sleep {o.rsleep}")
        int_loads(ah)
        spin()
        a("s_waitcnt vmcnt(0)")
        a(f"s_cbranch_scc1 L_got{ah}")
        int_check(ah)
        a.nop(1)
        a(f"s_cbranch_vccnz L_retry{ah}")
        a(f"s_branch L_got{ah}")

    a.label("L_hi0")
    if o.mode == 0:
        a("s_waitcnt vmcnt(0)")
        a("s_barrier")
    if o.hipre:
        gates(True)
    a("s_barrier")
    if not o.hipre:
        gates(True)
    addr_ur(S.WAVE)
    m2_addr()
    stamp(10)
    a("s_branch L_d2")

    a.label("L_ah")
    if o.cpf:
        a(f"s_cmp_ge_u32 s{S.T1}, {o.cpf}")
        a("s_cbranch_scc1 L_nocpf")
        a(f"s_getpc_b64 s[{S.EX}:{S.EX+1}]")
        a.label("L_pc")
        a(f"s_sub_u32 s{S.EX}, s{S.EX}, L_pc - {name}")
        a(f"s_subb_u32 s{S.EX+1}, s{S.EX+1}, 0")
        a("v_lshlrev_b32 v6, 7, v0")
        a("v_add_u32 v7, 0x2000, v6")
        a(f"v_min_u32 v7, L_end - {name}, v7")
        a(f"global_load_dword v12, v6, s[{S.EX}:{S.EX+1}]")
        a(f"global_load_dword v13, v7, s[{S.EX}:{S.EX+1}]")
        a.label("L_nocpf")
    a(f"v_lshlrev_b32 v{VG16}, 4, v0")
    a(f"v_mov_b32 v{VTAG}, 0")
    a(f"s_mov_b32 s{S.KM}, 0x9E3779B1")
    a(f"s_cmp_ge_u32 s{S.T1}, {o.wpf}")
    a("s_waitcnt lgkmcnt(0)")
    a("s_cbranch_scc1 L_nowpf")
    a(f"global_load_dwordx4 v[32:35], v{VG16}, s[{S.PWR}:{S.PWR+1}]")
    a(f"global_load_dword v{VE}, v{VTAG}, s[{S.PWS}:{S.PWS+1}]")
    a(f"global_load_dwordx4 v[36:39], v{VG16}, s[{S.PGW}:{S.PGW+1}]")
    a.label("L_nowpf")
    stamp(1)
    a("v_lshlrev_b32 v14, 10, v0")
    a(f"s_lshl_b32 s{S.ID8}, s2, 3")
    a(f"s_add_u32 s{S.ID8}, s{S.ID8}, {WS_KEY}")
    ws_setup()

    const_d2()
    stamp(2)
    a(f"global_load_dword v{VE}, v{VTAG}, s[{S.PWS}:{S.PWS+1}]")
    a(f"v_mov_b32 v9, {L_KSL}")
    a("s_waitcnt vmcnt(0)")
    tag_make()
    stamp(3)
    a("s_barrier")
    for i in range(4):
        a(f"ds_read_b128 {V(40+4*i,4)}, v9 offset:{16*i}")
    set_exec(max(RF * CF + RZ * CZ, R2 * C2))
    a("s_waitcnt lgkmcnt(2)")
    a("v_max3_u32 v6, v40, v41, v42")
    a("v_max3_u32 v7, v43, v44, v45")
    a("v_max3_u32 v6, v46, v47, v6")
    a("s_waitcnt lgkmcnt(0)")
    a("v_max3_u32 v7, v48, v49, v7")
    a("v_max3_u32 v6, v50, v51, v6")
    a("v_max3_u32 v7, v52, v53, v7")
    a("v_max3_u32 v6, v54, v55, v6")
    a(f"v_max_u32 v{VE}, v6, v7")
    if RF * CF + RZ * CZ < R2 * C2:
        set_exec(RF * CF + RZ * CZ)
    a(f"buffer_store_dwordx2 v[{VE}:{VTAG}], v14, {R4(S.RWS)}, s{S.ID8} offen sc1")
    a("s_mov_b64 exec, -1")
    a(f"s_add_u32 s{S.ID8}, s{S.ID8}, {WS_KEY2 - WS_KEY}")
    stamp(5)

    def key2():
        set_exec(R2 * C2)
        a(f"buffer_store_dwordx2 v[{VE}:{VTAG}], v14, {R4(S.RWS)}, s{S.ID8} offen sc1")
        a("s_mov_b64 exec, -1")
        stamp(6)

    poll_setup(WS_KEY2, R2, C2)
    if o.mode == 0:
        a("s_barrier")
        key2()
    if o.k2ack:
        a("s_waitcnt vmcnt(0)")
    if o.k2sleep0:
        a(f"s_sleep {o.k2sleep0}")
    stamp(8)
    poll_granules(VG16, 32, sleep=o.k2sleep)
    stamp(9)
    wave_max_key(32)
    lds_put(L_GKEY, 32)
    a("s_barrier")
    endprog()

    a.label("L_notA")
    if o.only == "AA":
        a("s_endpgm")
    a(f"s_lshl4_add_u32 s{S.FJ}, s{S.T0}, s{S.T1}")
    a(f"s_sub_u32 s{S.FJ}, s{S.FJ}, 16")
    a(f"s_cmp_ge_u32 s2, {NWG}")
    a("s_cbranch_scc1 L_end")
    a(f"s_cmp_lt_u32 s{S.T0}, 4")
    a("s_cbranch_scc1 L_F")
    a(f"s_mul_i32 s{S.FJ}, s{S.T0}, 12")
    a(f"s_add_u32 s{S.FJ}, s{S.FJ}, s{S.T1}")
    a(f"s_cmp_lt_u32 s{S.T1}, 28")
    a("s_cbranch_scc1 L_F")
    a(f"s_mov_b32 s{S.ISZ}, 1")
    a(f"s_lshl2_add_u32 s{S.Z}, s{S.T0}, s{S.T1}")
    a(f"s_sub_u32 s{S.Z}, s{S.Z}, 44")
    vrow_setup()
    a(f"v_lshlrev_b32 v{VG16}, 4, v0")
    sgn_setup()
    a("s_waitcnt lgkmcnt(0)")
    ws_setup()
    a.srd(S.ROUT, S.POUT, 0x200000)
    addr_p2()
    a(f"s_cmp_eq_u32 s{S.WAVE}, 8")
    a("s_cbranch_scc1 L_zh")
    a(f"s_cmp_ge_u32 s{S.WAVE}, 4")
    a("s_cbranch_scc1 L_z0")
    const_d1()
    a("s_branch L_z1")
    a.label("L_z0")
    if o.ztouch:
        a("s_mov_b64 exec, 0")
        a(f"s_sub_u32 s{S.T0}, s{S.WAVE}, 8")
        a.label("L_tzback")
        a(f"s_add_u32 s{S.T0}, s{S.T0}, 4")
        for k in range(o.ztouch):
            a(f"s_cmp_eq_u32 s{S.T0}, {k}")
            a(f"s_cbranch_scc1 L_tz{k}")
        a("s_mov_b64 exec, -1")
    a.label("L_z1")
    a(f"v_mov_b32 v9, {L_KSL}")
    a("v_mov_b32 v12, 0")
    a("v_mov_b32 v13, 0")
    a("s_barrier")
    a(f"ds_read_b64 v[{VE}:{VTAG}], v9")
    a(f"ds_read_b128 {V(GW,4)}, v{VROW} offset:{L_WV+1024}")
    a("s_waitcnt lgkmcnt(0)")
    a(f"v_readfirstlane_b32 s{S.GKEY}, v{VE}")
    a(f"s_andn2_b32 s{S.IDX}, 2047, s{S.GKEY}")
    a(f"s_and_b32 s{S.T0}, s{S.IDX}, 127")
    a(f"s_cmp_gt_u32 s{S.T0}, 64")
    a(f"s_cselect_b32 s{S.WHICH}, 1, 0")
    a(f"s_and_b32 s{S.T0}, s{S.IDX}, {1024 + 63}")
    a(f"s_cmp_eq_u32 s{S.T0}, 1024")
    a(f"s_cselect_b32 s{S.WHICH}, 1, s{S.WHICH}")
    a(f"s_sub_u32 s{S.T0}, 2048, s{S.IDX}")
    a(f"s_cmp_lg_u32 s{S.WHICH}, 0")
    a(f"s_cselect_b32 s{S.T0}, s{S.T0}, s{S.IDX}")
    a(f"s_cmp_eq_u32 s{S.T0}, 1024")
    a(f"s_cselect_b32 s{S.T0}, 0, s{S.T0}")
    a(f"s_and_b32 s{S.T1C}, s{S.T0}, 127")
    a(f"s_lshr_b32 s{S.HH}, s{S.T0}, 10")
    a(f"s_bfe_u32 s{S.WSEL}, s{S.T0}, 0x30007")
    rows_setup(S.WSEL)
    rows_load()
    a(f"s_cmp_ge_u32 s{S.WAVE}, 4")
    a("s_cbranch_scc1 L_z4")
    const_ga()
    addr_ur(S.WSEL)
    m2_addr()
    a(f"v_cmp_eq_u32 s[{S.EY}:{S.EY+1}], s{S.Z}, v1")
    a("v_lshlrev_b32 v6, 7, v1")
    a(f"v_lshl_add_u32 v15, v2, 4, v6")
    a("s_waitcnt vmcnt(0)")
    gates(False)
    a(f"s_cmp_lg_u32 s{S.WHICH}, 0")
    a(f"s_cselect_b32 s{S.T0}, s{S.T5}, s{S.T0}")
    a(f"s_cselect_b32 s{S.T4}, s{S.T1}, s{S.T4}")
    a(f"v_mov_b32 v{CO}, s{S.T0}")
    a(f"v_mov_b32 v{CO+1}, s{S.T4}")
    stamp(3)
    a("s_barrier")
    stamp(9)
    int_loads(0)
    int_loads(1)
    a("s_branch L_zjoin")
    a.label("L_z4")
    a(f"s_cmp_ge_u32 s{S.WAVE}, 6")
    a("s_cbranch_scc1 L_zend")
    a(f"s_sub_u32 s{S.T0}, s{S.WAVE}, 4")
    a(f"s_lshl1_add_u32 s{S.T1}, s{S.Z}, s{S.T0}")
    a(f"s_lshl_b32 s{S.T1}, s{S.T1}, 5")
    a("v_and_b32 v6, 7, v0")
    a(f"v_lshl_add_u32 v10, v6, 2, s{S.T1}")
    a(f"s_lshl_b32 s{S.T2}, s{S.IDX}, 10")
    a(f"v_add_u32 v7, s{S.T2}, v10")
    a(f"global_load_dword v35, v7, {PXS}")
    a("v_lshlrev_b32 v10, 1, v10")
    a("v_lshrrev_b32 v7, 3, v0")
    a("v_lshlrev_b32 v7, 8, v7")
    a("v_lshl_add_u32 v11, v6, 4, v7")
    a(f"s_mul_i32 s{S.SI0}, s{S.Z}, {PZ}")
    a(f"s_lshl_b32 s{S.T0}, s{S.T0}, 7")
    a(f"s_add_u32 s{S.SI0}, s{S.SI0}, s{S.T0}")
    a(f"s_add_u32 s{S.SI0}, s{S.SI0}, {WS_PART}")
    a(f"s_add_u32 s{S.SI1}, s{S.SI0}, {(o.pc-1)*PARTC}")
    a(f"s_and_b32 s{S.T0}, s{S.GKEY}, 0xffff0000")
    a(f"s_xor_b32 s{S.T1}, s{S.T0}, 0x80000000")
    a(f"s_xor_b32 s{S.T3}, s{S.T0}, 0xffff0000")
    a(f"s_bitcmp1_b32 s{S.T0}, 31")
    a(f"s_cselect_b32 s{S.T0}, s{S.T1}, s{S.T3}")
    a(f"v_mov_b32 v15, s{S.T0}")
    sigmoid(15, 15)
    rnd(15, 15)
    a("s_waitcnt vmcnt(0)")
    gates(False)
    a(f"s_cmp_lg_u32 s{S.WHICH}, 0")
    a(f"s_cselect_b32 s{S.T2}, s{S.T3}, s{S.T2}")
    a(f"v_mov_b32 v36, s{S.T2}")
    a("v_lshlrev_b32 v34, 16, v35")
    a(f"v_and_b32 v35, {HIM}, v35")
    a("s_barrier")
    if o.psleep0:
        a(f"s_sleep {o.psleep0}")
    a.label("L_tz_start")
    stamp(10)
    if o.psleep:
        a("s_branch L_zp1")
    a.label("L_zp")
    if o.psleep:
        a(f"s_sleep {o.psleep}")
        a.label("L_zp1")
    for i in range(7):
        if i and i % 2 == 0:
            a(f"s_add_u32 s{S.T0}, s{S.SI0}, {2048*i}")
        a(f"buffer_load_dwordx4 {V(40+4*i,4)}, v11, {R4(S.RWS)}, s{S.T0 if i >= 2 else S.SI0} offen offset:{2048*(i&1)} sc1")
    a(f"s_add_u32 s{S.SI0}, s{S.SI0}, {PARTC}")
    a(f"s_min_u32 s{S.SI0}, s{S.SI0}, s{S.SI1}")
    if o.stamps:
        a(f"s_add_u32 s{S.RC}, s{S.RC}, 256")
    spin()
    a("s_cbranch_scc1 L_zp_ok")
    for i in range(7):
        a(f"s_waitcnt vmcnt({6-i})")
        a(f"v_bitop3_b32 v{37 if i == 0 else 38 + (i & 1)}, v{41+4*i}, v{43+4*i}, v{VTAG} bitop3:0x7e")
        if i:
            a(f"v_add_f32 v40, v40, v{40+4*i}")
            a(f"v_add_f32 v42, v42, v{42+4*i}")
        if i and i % 2 == 0:
            a("v_or3_b32 v37, v37, v38, v39")
    a("v_cmp_ne_u32 vcc, 0, v37")
    a.nop(1)
    a("s_cbranch_vccnz L_zp")
    a.label("L_zp_ok")
    a("s_waitcnt vmcnt(0)")
    stamp(11)
    a(f"v_add_f32_dpp v40, v40, v40 row_ror:8 {DPPM}")
    a(f"v_add_f32_dpp v42, v42, v42 row_ror:8 {DPPM}")
    a.nop(1)
    a.nop(1)
    a("v_permlane16_swap_b32 v40, v42")
    a("v_add_f32 v40, v40, v42")
    a("v_mov_b32 v42, v40")
    a.nop(2)
    a("v_permlane32_swap_b32 v40, v42")
    a("v_add_f32 v40, v40, v42")
    a("v_mov_b32 v42, v40")
    a.nop(2)
    a("v_permlane16_swap_b32 v40, v42")
    a("v_cvt_pk_bf16_f32 v41, v40, v42")
    a("v_lshlrev_b32 v40, 16, v41")
    a(f"v_and_b32 v42, {HIM}, v41")
    a("v_mul_f32 v40, v40, v15")
    a("v_mul_f32 v42, v42, v15")
    a("v_cvt_pk_bf16_f32 v41, v40, v42")
    a("v_lshlrev_b32 v40, 16, v41")
    a(f"v_and_b32 v42, {HIM}, v41")
    a("v_add_f32 v40, v40, v34")
    a("v_add_f32 v42, v42, v35")
    a("v_cvt_pk_bf16_f32 v41, v40, v42")
    a("v_lshlrev_b32 v40, 16, v41")
    a(f"v_and_b32 v42, {HIM}, v41")
    a("v_mul_f32 v40, v40, v36")
    a("v_mul_f32 v41, v42, v36")
    a("s_mov_b64 exec, 0xff")
    a(f"ds_write_b64 v10, v[40:41] offset:{L_XG2}")
    a("s_waitcnt lgkmcnt(0)")
    a("s_barrier")
    stamp(12)
    endprog()

    a.label("L_zfin")
    a(f"s_cmp_lg_u32 s{S.WAVE}, 0")
    a("s_cbranch_scc1 L_zend")
    a(f"ds_read_b128 {V(XG,4)}, v15 offset:{L_XG2}")
    a(f"ds_read_b128 {V(XG+4,4)}, v15 offset:{L_XG2+64}")
    for k in range(4):
        a(f"s_waitcnt lgkmcnt({5-k})")
        a(f"{MF} {V(PQ+4*k,4)}, {V(UO+4*k,4)}, {V(M2+4*k,4)}, 0")
    a(f"s_lshl_b32 s{S.T0}, s{S.IDX}, 10")
    a("s_waitcnt lgkmcnt(0)")
    a.nop(2)
    for i in range(8):
        a(f"v_fmac_f32 v{XG+i}, v{CO}, v{PQ+i}")
    for i in range(8):
        a(f"v_fmac_f32 v{XG+i}, v{CO+1}, v{PQ+8+i}")
    for i in range(4):
        a(f"v_cvt_pk_bf16_f32 v{UO+i}, v{XG+2*i}, v{XG+2*i+1}")
    a.nop(2)
    a(f"v_permlane16_swap_b32 v{UO}, v{UO+2}")
    a(f"v_permlane16_swap_b32 v{UO+1}, v{UO+3}")
    a(f"s_mov_b64 exec, s[{S.EY}:{S.EY+1}]")
    a(f"buffer_store_dwordx4 {V(UO,4)}, v{VROW}, {R4(S.ROUT)}, s{S.T0} offen")
    a("s_mov_b64 exec, -1")
    stamp(13)
    a.label("L_zend")
    endprog()

    a.label("L_zh")
    const_d2()
    a(f"s_mov_b32 m0, {L_WV+1024}")
    tag_load()
    a(f"global_load_lds_dwordx4 v{VG16}, s[{S.PGW}:{S.PGW+1}]")
    a("s_waitcnt vmcnt(0)")
    tag_make()
    poll_setup(WS_KEY + 1024 * RF * CF, RZ, CZ)
    if o.zsleep0:
        a(f"s_sleep {o.zsleep0}")
    stamp(1)
    poll_granules(VG16, 32, sleep=o.zsleep)
    stamp(2)
    wave_max_key(32)
    lds_put(L_KSL, 32, tag=True)
    a("s_barrier")
    a(f"s_lshl_b32 s{S.T0}, s{S.Z}, 2")
    a(f"s_add_u32 s{S.T0}, s{S.T0}, {WS_ALIVE}")
    a("s_mov_b64 exec, 1")
    a(f"buffer_store_dword v{VTAG}, v0, {R4(S.RWS)}, s{S.T0} offen sc1")
    a("s_mov_b64 exec, -1")
    poll_setup(WS_KEY2, R2, C2)
    a("s_waitcnt vmcnt(0)")
    if o.zk2sleep0:
        a(f"s_sleep {o.zk2sleep0}")
    stamp(8)
    poll_granules(VG16, 32, sleep=o.k2sleep)
    stamp(9)
    a("s_barrier")
    a(f"s_cmp_lg_u32 s{S.Z}, 0")
    a("s_cbranch_scc1 L_zend")
    a("s_mov_b64 exec, 0xffff")
    a("v_lshlrev_b32 v6, 2, v0")
    a(f"s_mov_b32 s{S.T0}, {WS_ALIVE}")
    a.label("L_za")
    a(f"buffer_load_dword v7, v6, {R4(S.RWS)}, s{S.T0} offen sc1")
    spin()
    a("s_waitcnt vmcnt(0)")
    a("s_cbranch_scc1 L_za_ok")
    a(f"v_cmp_ne_u32 vcc, v{VTAG}, v7")
    a.nop(1)
    a("s_cbranch_vccnz L_za")
    a.label("L_za_ok")
    a("s_mov_b64 exec, 1")
    a(f"v_add_u32 v9, 1, v{VE}")
    a("s_barrier")
    a(f"buffer_store_dword v9, v6, {R4(S.RWS)}, 0 offen sc1")
    a("s_mov_b64 exec, -1")
    a("s_branch L_zend")

    a.label("L_F")
    if o.only == "A":
        a("s_endpgm")
    WG_, WD_ = 32, 48
    a("v_lshlrev_b32 v5, 4, v0")
    a(f"s_cmp_eq_u32 s{S.WAVE}, 8")
    a("s_cbranch_scc1 L_fh")
    a(f"s_and_b32 s{S.T0}, s{S.FJ}, 3")
    a(f"s_lshr_b32 s{S.T1}, s{S.WAVE}, 1")
    a(f"s_lshl2_add_u32 s{S.L0}, s{S.T0}, s{S.T1}")
    a(f"s_mul_i32 s{S.T2}, s{S.L0}, {32*3584}")
    a(f"s_lshr_b32 s{S.L1}, s{S.FJ}, 2")
    a(f"s_lshl_b32 s{S.T3}, s{S.L1}, 7")
    a(f"s_add_u32 s{S.T2}, s{S.T2}, s{S.T3}")
    a("v_lshrrev_b32 v6, 3, v0")
    a("v_mul_u32_u24 v6, 3584, v6")
    a("v_and_b32 v7, 7, v0")
    a("v_bfe_u32 v8, v0, 4, 1")
    a("v_lshlrev_b32 v8, 2, v8")
    a("v_xor_b32 v4, v7, v8")
    a(f"v_lshl_add_u32 v7, v4, 4, s{S.T2}")
    a("v_add_u32 v3, v6, v7")
    a(f"s_lshl_b32 s{S.T4}, s{S.WAVE}, 12")
    a(f"s_mov_b32 m0, s{S.T4}")
    a(f"s_bitcmp1_b32 s{S.WAVE}, 0")
    a("s_waitcnt lgkmcnt(0)")
    a(f"s_cselect_b32 s{S.PWG}, s{S.PWU}, s{S.PWG}")
    a(f"s_cselect_b32 s{S.PWG+1}, s{S.PWU+1}, s{S.PWG+1}")
    if o.fdelay:
        a(f"s_sleep {o.fdelay}")
    for b in range(4):
        if b:
            a(f"s_add_u32 m0, s{S.T4}, {1024*b}")
            a(f"v_add_u32 v3, {8*3584}, v3")
        a(f"global_load_lds_dwordx4 v3, s[{S.PWG}:{S.PWG+1}]{o.wpol}")
    ws_setup()
    stamp(1)
    a("v_bfe_u32 v6, v0, 2, 2")
    a("v_and_b32 v7, 3, v0")
    a("v_lshlrev_b32 v8, 3, v7")
    a("v_lshl_add_u32 v8, v2, 5, v8")
    a("v_and_b32 v9, 2, v6")
    a("v_lshlrev_b32 v9, 5, v9")
    a("v_xor_b32 v9, v9, v8")
    a("v_lshl_add_u32 v9, v6, 7, v9")
    a(f"v_add_u32 v9, s{S.T4}, v9")
    a(f"s_lshl_b32 s{S.T5}, s{S.WAVE}, 8")
    a("v_lshlrev_b32 v11, 2, v0")
    a(f"v_add_u32 v11, {L_RED}, v11")
    a(f"v_add_u32 v12, s{S.T5}, v11")
    a(f"s_lshl1_add_u32 s{S.T1}, s{S.L1}, s{S.T1}")
    a(f"s_lshl_b32 s{S.T2}, s{S.T1}, 15")
    a(f"s_and_b32 s{S.T3}, s{S.WAVE}, 1")
    a(f"s_lshl1_add_u32 s{S.T3}, s{S.T0}, s{S.T3}")
    a(f"s_lshl_b32 s{S.T5}, s{S.T3}, 7")
    a(f"s_add_u32 s{S.T2}, s{S.T2}, s{S.T5}")
    a("v_lshrrev_b32 v6, 3, v0")
    a(f"v_lshl_add_u32 v6, v6, 10, s{S.T2}")
    a("v_lshl_add_u32 v4, v4, 4, v6")
    a("v_lshrrev_b32 v6, 5, v0")
    a(f"v_mul_u32_u24 v13, {PZ}, v6")
    a("v_and_b32 v6, 31, v0")
    a("v_lshl_add_u32 v13, v6, 3, v13")
    a(f"s_mul_i32 s{S.T2}, s{S.T3}, {2*PZ}")
    a(f"s_lshl_b32 s{S.T1}, s{S.T1}, 8")
    a(f"s_add_u32 s{S.T2}, s{S.T2}, s{S.T1}")
    a(f"s_add_u32 s{S.T2}, s{S.T2}, {WS_PART}")
    a(f"s_lshl_b32 s{S.L0}, s{S.L0}, 6")
    a(f"s_lshl_b32 s{S.L1}, s{S.L1}, 12")
    a(f"s_add_u32 s{S.PO}, s{S.L1}, {WS_XCH}")
    a(f"s_add_u32 s{S.POL}, s{S.PO}, {(o.xc-1)*XCHC}")
    a(f"s_lshl_b32 s{S.T1}, s{S.T0}, 10")
    a(f"s_add_u32 s{S.L1}, s{S.PO}, s{S.T1}")
    a(f"v_mov_b32 v14, {L_FKEY}")
    a(f"s_lshr_b32 s{S.T1}, s{S.WAVE}, 1")
    a(f"s_lshl_b32 s{S.T1}, s{S.T1}, 9")
    a(f"v_lshl_add_u32 v15, v6, 4, s{S.T1}")
    a("v_lshrrev_b32 v6, 5, v0")
    a("v_lshl_add_u32 v15, v6, 10, v15")
    for i in range(2):
        a(f"v_mov_b32 v{16+i}, 0")
    for i in range(2):
        a(f"v_mov_b32 v{24+i}, 0")

    def wd_dma():
        l = a.L("nowd")
        a(f"s_cmp_ge_u32 s{S.WAVE}, 4")
        a(f"s_cbranch_scc1 {l}")
        for b in range(4):
            a(f"s_add_u32 m0, s{S.T4}, {L_WD + 1024*b}")
            if b:
                a("v_add_u32 v4, 0x2000, v4")
            else:
                a.nop(1)
            a(f"global_load_lds_dwordx4 v4, s[{S.PWD}:{S.PWD+1}]")
        a.label(l)

    if o.wdpos == 0:
        wd_dma()
    a("s_waitcnt vmcnt(0)")
    stamp(2)
    if o.fw0:
        a("s_barrier")
    if o.wdpos == 1:
        wd_dma()
    for k in range(8):
        a(f"ds_read_b64_tr_b16 {V(WG_+2*k,2)}, v9 offset:{L_W + k*512}")
    a("s_waitcnt lgkmcnt(0)")
    a("s_barrier")
    a(f"ds_read_b64 v[{VE}:{VTAG}], v14")
    a("s_waitcnt lgkmcnt(0)")
    a(f"v_readfirstlane_b32 s{S.T0}, v{VE}")
    a(f"s_andn2_b32 s{S.T0}, 2047, s{S.T0}")
    a(f"s_lshl_b32 s{S.T0}, s{S.T0}, 10")
    a(f"s_add_u32 s{S.T0}, s{S.T0}, s{S.L0}")
    a(f"s_load_dwordx16 s[{S.XS}:{S.XS+15}], {PXS}, s{S.T0}")
    stamp(5)
    if o.wdpos == 2:
        wd_dma()
    a(f"v_mov_b32 v29, v{VTAG}")
    a("s_waitcnt vmcnt(0)")
    for k in range(8):
        a(f"ds_read_b64_tr_b16 {V(WD_+2*k,2)}, v9 offset:{L_WD + k*512}")
    a("s_waitcnt lgkmcnt(0)")
    for i in range(16):
        a(f"v_dot2c_f32_bf16 v{16+(i&1)}, s{S.XS+i}, v{WG_+i}")
    stamp(6)
    a.nop(3)
    a("v_add_f32 v16, v16, v17")
    a("ds_write_b32 v12, v16")
    a("s_waitcnt lgkmcnt(0)")
    a("s_barrier")
    a(f"s_cmp_ge_u32 s{S.WAVE}, 4")
    a("s_cbranch_scc1 L_fend")
    a(f"s_lshl_b32 s{S.T0}, s{S.WAVE}, 4")
    a(f"s_lshl_b64 s[{S.EX}:{S.EX+1}], 0xffff, s{S.T0}")
    for i, (p, q) in enumerate(((0, 2), (4, 6), (1, 3), (5, 7))):
        a(f"ds_read2st64_b32 v[{16+2*i}:{17+2*i}], v11 offset0:{p} offset1:{q}")
    a("s_waitcnt lgkmcnt(2)")
    a("v_add_f32 v16, v16, v17")
    a("v_add_f32 v18, v18, v19")
    a("s_waitcnt lgkmcnt(0)")
    a("v_add_f32 v20, v20, v21")
    a("v_add_f32 v22, v22, v23")
    a("v_add_f32 v28, v16, v18")
    a(f"s_mov_b64 exec, s[{S.EX}:{S.EX+1}]")
    a("v_add_f32 v30, v20, v22")
    for c in range(o.xc):
        if c:
            a(f"s_add_u32 s{S.L1}, s{S.L1}, {XCHC}")
        a(f"buffer_store_dwordx4 v[28:31], v5, {R4(S.RWS)}, s{S.L1} offen sc1")
    a("s_mov_b64 exec, -1")
    stamp(7)
    if o.xack:
        a("s_waitcnt vmcnt(0)")
    if o.xsleep0:
        a(f"s_sleep {o.xsleep0}")
    stamp(8)
    a.label("L_fx")
    for i in range(2):
        a(f"buffer_load_dwordx4 {V(64+4*i,4)}, v15, {R4(S.RWS)}, s{S.PO} offen offset:{2048*i} sc1")
    a(f"s_add_u32 s{S.PO}, s{S.PO}, {XCHC}")
    a(f"s_min_u32 s{S.PO}, s{S.PO}, s{S.POL}")
    if o.stamps:
        a(f"s_add_u32 s{S.RC}, s{S.RC}, 1")
    spin()
    a("s_cbranch_scc1 L_fx_ok")
    a("s_waitcnt vmcnt(1)")
    a(f"v_bitop3_b32 v20, v65, v67, v{VTAG} bitop3:0x7e")
    a("s_waitcnt vmcnt(0)")
    a("v_add_f32 v16, v64, v68")
    a("v_add_f32 v18, v66, v70")
    a(f"v_bitop3_b32 v21, v69, v71, v{VTAG} bitop3:0x7e")
    a("v_or_b32 v20, v20, v21")
    a("v_cmp_ne_u32 vcc, 0, v20")
    a("v_permlane32_swap_b32 v16, v18")
    a("s_cbranch_vccnz L_fx")
    a.label("L_fx_ok")
    stamp(9)
    a("v_add_f32 v16, v16, v18")
    rnd(16, 16)
    a("v_mov_b32 v18, v16")
    sigmoid(17, 16)
    a("v_permlane32_swap_b32 v16, v18")
    a("v_mul_f32 v17, v17, v16")
    rnd(17, 17)
    a("v_mul_f32 v17, v17, v18")
    a.nop(2)
    a(f"v_mov_b32_dpp v18, v17 quad_perm:[1,0,3,2] {DPPM}")
    a("v_cvt_pk_bf16_f32 v17, v17, v18")
    a.nop(1)
    for i in range(16):
        a(f"v_readlane_b32 s{S.XS+i}, v17, {2*i}")
    for i in range(16):
        a(f"v_dot2c_f32_bf16 v{24+(i&1)}, s{S.XS+i}, v{WD_+i}")
    a.nop(3)
    a("v_add_f32 v30, v24, v25")
    for c in range(o.pc):
        if c:
            a(f"s_add_u32 s{S.T2}, s{S.T2}, {PARTC}")
        a(f"buffer_store_dwordx2 v[30:31], v13, {R4(S.RWS)}, s{S.T2} offen sc1")
    stamp(10)
    a.label("L_fend")
    endprog()

    a.label("L_fh")
    a("s_waitcnt lgkmcnt(0)")
    if o.fesleep:
        a(f"s_sleep {o.fesleep}")
    tag_load()
    ws_setup()
    poll_setup(WS_KEY, RF, CF)
    if o.fw0:
        a("s_barrier")
    if o.fsleep0:
        a(f"s_sleep {o.fsleep0}")
    a("s_waitcnt vmcnt(0)")
    tag_make()
    stamp(3)
    poll_granules(5, 20, sleep=o.fsleep)
    stamp(4)
    wave_max_key(20)
    lds_put(L_FKEY, 20, tag=True)
    a("s_barrier")
    endprog()
    a.label("L_end")
    a("s_endpgm")
    return name


def main():
    ap = argparse.ArgumentParser()
    ap.add_argument("-o", required=True)
    for k, d in dict(stamps=0, pc=2, xc=2, zsleep=8, zsleep0=0, psleep=0, psleep0=0, rsleep=0, ackwait=0, hipre=0, tlate=1,
                     mode=0, k2ack=1, k2sleep0=0, zk2sleep0=0, k2sleep=0, fbar=0, cpf=0, ztouch=0, zstep=64, touch=0, wdpos=1, wpf=1, fesleep=16, fw0=1, xack=1, fdelay=0, xsleep0=0, fsleep0=0, fsleep=0, spin=17).items():
        ap.add_argument("--" + k, type=int, default=d)
    for k in ("wpol", "outpol", "only"):
        ap.add_argument("--" + k, default="")
    ap.add_argument("--mf", default="8,3")
    ap.add_argument("--mz", default="1,6")
    ap.add_argument("--m2", default="8,2")
    o = ap.parse_args()
    for k in ("mf", "mz", "m2"):
        setattr(o, k, [int(v) for v in getattr(o, k).split(",")])
    for k in ("wpol", "outpol"):
        setattr(o, k, (" " + getattr(o, k)) if getattr(o, k) else "")
    a = Asm()
    name = gen(a, o)
    if o.touch:
        insert_stubs(a, [("L_ta_start", "L_ta_end", "L_ta", "L_taback", 9)], step=o.touch)
    if o.ztouch:
        insert_stubs(a, [("L_tz_start", "L_zend", "L_tz", "L_tzback", o.ztouch)], step=o.zstep)
    finish(a, name, NVGPR, 100, NWG, 576, LDS_BYTES, o.o)


main()
```

```python
import argparse
from lib import *

NA, NF, NZ = 128, 112, 16
NWG = NA + NF + NZ
WS_E = 0
WS_ALIVE = 4096
WS_KEY = 64 << 10
WS_KEY2 = 128 << 10
WS_XCH = 192 << 10
XCHC = 28 * 4096
WS_PART = 704 << 10
PZ = 56 * 256
PARTC = NZ * PZ
WS_INT = 2 << 20
CS = 32768 + 256
WS_STAMP = 8 << 20
WS_BYTES = 16 << 20
L_TILE = 0
L_U2 = 16384
L_CT = L_U2
UB = 17 * 64
L_MISC = L_U2 + 16 * UB
L_KSL = L_MISC
L_GKEY = L_MISC + 64
L_DUMP = L_MISC + 128
L_XG2 = L_DUMP + 4 * UB + 256
L_M2 = L_XG2 + 2048
L_WV = L_M2 + 4096
L_W = 0
L_WD = 32768
L_RED = L_WD + 16384
L_FKEY = L_RED + 2048
LDS_BYTES = 84 * 1024
MF = "v_mfma_f32_16x16x32_bf16"
LOG2E = 0x3fb8aa3b
DPPM = "row_mask:0xf bank_mask:0xf"
HIM = "0xffff0000"
NVGPR = 168


class S:
    WAVE = 3
    PX = 4
    T0, T1, T2, T3, T4, T5 = 6, 7, 8, 9, 10, 11
    EX = 12
    EY = 14
    PWR, PWG, PWU, PWD, PGW, POUT, PDBG, PWS = 16, 18, 20, 22, 24, 26, 28, 30
    L0, L1, SPT, PIE = 32, 33, 34, 35
    RWS, ROUT = 36, 40
    XS = 44
    GKEY, WSEL, WHICH, Z = 44, 45, 46, 47
    SI0, SI1, ID8, BLK = 48, 49, 50, 51
    IDX, ISZ = 54, 55
    T1C, HH, TD, TM = 56, 57, 58, 59
    FJ, PO, POL, RC, KM, SPIN = 60, 61, 62, 63, 64, 65
    ST = 68


def gen(a, o):
    name = NAME + "_kernel"
    kernel_head(a, name)
    VE, VTAG = 30, 31
    PXS = f"s[{S.PX}:{S.PX+1}]"

    def stamp(i):
        if o.stamps:
            a(f"s_memrealtime s[{S.ST+2*i}:{S.ST+2*i+1}]")

    def hold(cp):
        if o.hold and o.hold[0] == cp:
            l = a.L("hold")
            a.label(l)
            a("s_sleep 1")
            a("s_memrealtime s[100:101]")
            a("s_waitcnt lgkmcnt(0)")
            a("s_sub_u32 s100, s100, s66")
            a(f"s_cmp_lt_u32 s100, {o.hold[1]}")
            a(f"s_cbranch_scc1 {l}")

    def endprog():
        if o.stamps:
            a("s_waitcnt lgkmcnt(0)")
            a(f"s_add_u32 s{S.ST+28}, s{S.RC}, s{S.ST+30}")
            for i in range(16):
                a(f"v_writelane_b32 v166, s{S.ST+2*i}, {i}")
            a("s_mov_b64 exec, 0xffff")
            a(f"s_lshl4_add_u32 s{S.T0}, s2, s{S.WAVE}")
            a(f"s_lshl_b32 s{S.T0}, s{S.T0}, 7")
            a(f"s_add_u32 s{S.T0}, s{S.T0}, {WS_STAMP}")
            a(f"v_lshl_add_u32 v165, v0, 3, s{S.T0}")
            a("v_mov_b32 v167, 0")
            a(f"global_store_dwordx2 v165, v[166:167], s[{S.PWS}:{S.PWS+1}]")
        a("s_endpgm")

    def spin():
        a(f"s_add_u32 s{S.SPIN}, s{S.SPIN}, 1")
        a(f"s_lshr_b32 s{S.SPT}, s{S.SPIN}, {o.spin}")

    def poll_setup(base, R, C):
        a(f"s_and_b32 s{S.PO}, s2, {R-1}")
        a(f"s_mul_i32 s{S.PO}, s{S.PO}, {1024*C}")
        a(f"s_add_u32 s{S.PO}, s{S.PO}, {base}")
        a(f"s_add_u32 s{S.POL}, s{S.PO}, {1024*(C-1)}")

    def set_exec(n):
        if n >= 64:
            a("s_mov_b64 exec, -1")
        elif n <= 31:
            a(f"s_mov_b64 exec, {(1 << n) - 1:#x}")
        else:
            a("s_mov_b32 exec_lo, -1")
            a(f"s_mov_b32 exec_hi, {(1 << (n - 32)) - 1:#x}")

    RF, CF = o.mf
    RZ, CZ = o.mz
    R2, C2 = o.m2
    assert RF * CF + RZ * CZ <= 64 and R2 * C2 <= 64

    def poll_granules(vaddr, vd, sleep=0, step=1024):
        l = a.L("poll")
        if sleep:
            a(f"s_branch {l}_1")
        a.label(l)
        if sleep:
            a(f"s_sleep {sleep}")
            a.label(f"{l}_1")
        a(f"buffer_load_dwordx4 {V(vd,4)}, v{vaddr}, {R4(S.RWS)}, s{S.PO} offen sc1")
        a(f"s_add_u32 s{S.PO}, s{S.PO}, {step}")
        a(f"s_min_u32 s{S.PO}, s{S.PO}, s{S.POL}")
        if o.stamps:
            a(f"s_add_u32 s{S.RC}, s{S.RC}, 1")
        spin()
        a("s_waitcnt vmcnt(0)")
        a(f"s_cbranch_scc1 {l}_ok")
        a(f"v_cmp_ne_u32 vcc, v{VTAG}, v{vd+1}")
        a(f"v_cmp_ne_u32 s[{S.EX}:{S.EX+1}], v{VTAG}, v{vd+3}")
        a(f"s_or_b64 vcc, vcc, s[{S.EX}:{S.EX+1}]")
        a(f"s_cbranch_vccnz {l}")
        a.label(f"{l}_ok")

    def wave_max_key(vd):
        a(f"v_max_u32 v{vd}, v{vd}, v{vd+2}")
        for r in (8, 4, 2, 1):
            a.nop(2)
            a(f"v_max_u32_dpp v{vd}, v{vd}, v{vd} row_ror:{r} {DPPM}")
        a(f"v_mov_b32 v{vd+1}, v{vd}")
        a.nop(2)
        a(f"v_permlane16_swap_b32 v{vd}, v{vd+1}")
        a(f"v_max_u32 v{vd}, v{vd}, v{vd+1}")
        a(f"v_mov_b32 v{vd+1}, v{vd}")
        a.nop(2)
        a(f"v_permlane32_swap_b32 v{vd}, v{vd+1}")
        a(f"v_max_u32 v{vd}, v{vd}, v{vd+1}")

    def lds_put(addr, v, tag=False):
        a(f"v_mov_b32 v9, {addr}")
        a("s_mov_b64 exec, 1")
        if tag:
            a(f"ds_write2_b32 v9, v{v}, v{VTAG} offset1:1")
        else:
            a(f"ds_write_b32 v9, v{v}")
        a("s_mov_b64 exec, -1")
        a("s_waitcnt lgkmcnt(0)")

    def sigmoid(d, s):
        a(f"v_mul_f32 v{d}, {LOG2E | 0x80000000:#x}, v{s}")
        a(f"v_exp_f32 v{d}, v{d}")
        a.nop(1)
        a(f"v_add_f32 v{d}, 1.0, v{d}")
        a(f"v_rcp_f32 v{d}, v{d}")
        a.nop(1)

    def rnd(d, s):
        a(f"v_cvt_pk_bf16_f32 v{d}, v{s}, v{s}")
        a(f"v_and_b32 v{d}, {HIM}, v{d}")

    def ws_setup():
        a.srd(S.RWS, S.PWS, WS_BYTES)
        a(f"s_mov_b32 s{S.SPIN}, 0")

    def tag_load():
        a(f"v_mov_b32 v{VTAG}, 0")
        a(f"global_load_dword v{VE}, v{VTAG}, s[{S.PWS}:{S.PWS+1}]")
        a(f"s_mov_b32 s{S.KM}, 0x9E3779B1")

    def tag_make():
        a(f"v_mul_lo_u32 v{VTAG}, v{VE}, s{S.KM}")
        a(f"v_add_u32 v{VTAG}, 0x7F4A7C15, v{VTAG}")

    a(f"s_load_dwordx2 s[{S.PX}:{S.PX+1}], s[0:1], {KA_X}")
    a(f"s_load_dwordx16 s[16:31], s[0:1], {KA_WR}")
    if o.stamps:
        for i in range(1, 16):
            a(f"s_mov_b32 s{S.ST+2*i}, 0")
        a(f"s_mov_b32 s{S.RC}, 0")
    stamp(0)
    if o.hold:
        a("s_memrealtime s[66:67]")
    a("v_lshrrev_b32 v1, 6, v0")
    a("v_and_b32 v0, 63, v0")
    a(f"v_readfirstlane_b32 s{S.WAVE}, v1")
    a("v_and_b32 v1, 15, v0")
    a("v_lshrrev_b32 v2, 4, v0")
    a(f"s_and_b32 s{S.T0}, s2, 7")
    a(f"s_sub_u32 s{S.WAVE}, s{S.WAVE}, 1")
    a(f"s_min_u32 s{S.WAVE}, s{S.WAVE}, 8")
    a(f"s_lshr_b32 s{S.T1}, s2, 3")
    a(f"s_cmp_ge_u32 s2, {NA}")
    a("s_cbranch_scc1 L_notA")
    if o.only == "F":
        a("s_endpgm")

    VROW, VG16, VSGN, VTR, VST = 3, 5, 8, 10, 11
    VLD, VUW, VUX, VUR0, VUR1 = 10, 11, 28, 29, 30
    XR, WR, GW, CO = 16, 24, 24, 24
    CM, AOP, ACC = 32, 96, 112
    LD, DA0, DA1, TP, X16, PK = 32, 64, 32, 80, 96, 48
    M1, GA, XG = 100, 148, 152
    Cc, Ss = 64, 68
    UO, PQ, M2 = 32, 48, 64

    def rows_setup(wreg):
        a(f"s_lshl3_add_u32 s{S.T5}, s{S.HH}, s{wreg}")
        a(f"s_lshl_b32 s{S.T5}, s{S.T5}, 7")
        a(f"s_add_u32 s{S.TD}, s{S.T5}, s{S.T1C}")
        a(f"s_sub_u32 s{S.TM}, 2048, s{S.TD}")
        a(f"s_cmp_eq_u32 s{S.TD}, 0")
        a(f"s_cselect_b32 s{S.TM}, 1024, s{S.TM}")
        a(f"s_lshl_b32 s{S.T4}, s{S.TD}, 10")
        a(f"s_lshl_b32 s{S.T5}, s{S.TM}, 10")
        a(f"v_add_u32 v6, s{S.T4}, v{VROW}")
        a(f"v_add_u32 v7, s{S.T5}, v{VROW}")

    def vrow_setup():
        a("v_and_b32 v6, 1, v2")
        a("v_lshlrev_b32 v6, 5, v6")
        a("v_lshl_add_u32 v6, v1, 6, v6")
        a("v_lshrrev_b32 v7, 1, v2")
        a(f"v_lshl_add_u32 v{VROW}, v7, 4, v6")

    def rows_load():
        a(f"global_load_dwordx4 {V(XR,4)}, v6, {PXS}")
        a(f"global_load_dwordx4 {V(XR+4,4)}, v7, {PXS}")

    def sgn_setup():
        a(f"v_lshlrev_b32 v{VSGN}, 31, v1")
        a(f"v_lshrrev_b32 v9, 16, v{VSGN}")
        a(f"v_or_b32 v{VSGN}, v{VSGN}, v9")

    def sgn_setup2():
        a(f"v_lshlrev_b32 v{VSGN}, 31, v1")
        a(f"v_lshrrev_b32 v14, 16, v{VSGN}")
        a(f"v_or_b32 v{VSGN}, v{VSGN}, v14")

    def tile_ids():
        a(f"s_bitcmp1_b32 s{S.T1}, 3")
        a(f"s_cselect_b32 s{S.T2}, s{S.T3}, s{S.T2}")
        a(f"s_and_b32 s{S.T3}, s{S.T1}, 7")
        a(f"s_lshl3_add_u32 s{S.BLK}, s{S.T2}, s{S.T3}")
        a(f"s_lshl_b32 s{S.PIE}, s{S.T2}, 5")
        a(f"s_add_u32 s{S.PIE}, s{S.PIE}, s{S.T3}")
        a(f"s_lshl_b32 s{S.PIE}, s{S.PIE}, 6")

    def vst_setup():
        a(f"v_mul_u32_u24 v{VST}, {CS}, v1")
        a(f"v_lshl_add_u32 v{VST}, v2, 4, v{VST}")

    def const_d2():
        R = 40
        a("v_lshlrev_b32 v6, 2, v2")
        a("v_cvt_f32_u32 v7, v1")
        a("v_cvt_f32_u32 v6, v6")
        a("v_mul_f32 v7, 0x3d800000, v7")
        for hf in range(2):
            if hf:
                a("v_add_f32 v7, 0x3d800000, v7")
            a("v_mul_f32 v9, v6, v7")
            for jj in range(4):
                a(f"v_cos_f32 v{Cc+jj}, v9")
                a(f"v_sin_f32 v{Ss+jj}, v9")
                if jj < 3:
                    a("v_add_f32 v9, v9, v7")
            a.nop(1)
            for jj in range(4):
                if hf == 0:
                    a(f"v_cvt_pk_bf16_f32 v{R+jj}, v{Cc+jj}, v{Ss+jj}")
                    a(f"v_cvt_pk_bf16_f32 v{R+8+jj}, -v{Ss+jj}, v{Cc+jj}")
                else:
                    a(f"v_cvt_pk_bf16_f32 v{R+4+jj}, v{Cc+jj}, -v{Ss+jj}")
                    a(f"v_cvt_pk_bf16_f32 v{R+12+jj}, -v{Ss+jj}, -v{Cc+jj}")
        for k in range(4):
            a(f"ds_write_b128 v{VG16}, {V(R+4*k,4)} offset:{L_M2 + 1024*k}")

    if o.touch:
        a("s_mov_b64 exec, 0")
        for k in range(9):
            a(f"s_cmp_eq_u32 s{S.WAVE}, {(k + 8) % 9}")
            a(f"s_cbranch_scc1 L_ta{k}")
        a.label("L_taback")
        a("s_mov_b64 exec, -1")
        a.label("L_ta_start")
    a(f"s_add_u32 s{S.T2}, s{S.T0}, 1")
    a(f"s_sub_u32 s{S.T3}, 15, s{S.T0}")
    a(f"s_cmp_eq_u32 s{S.WAVE}, 8")
    a("s_cbranch_scc1 L_ah")
    a(f"s_and_b32 s{S.HH}, s{S.T1}, 1")
    a(f"s_bitcmp1_b32 s{S.T1}, 1")
    a(f"s_cselect_b32 s{S.T4}, s{S.T3}, s{S.T2}")
    a(f"s_lshr_b32 s{S.T5}, s{S.T1}, 2")
    a(f"s_lshl4_add_u32 s{S.T1C}, s{S.T5}, s{S.T4}")
    vrow_setup()
    a(f"s_cmp_lg_u32 s{S.T0}, 7")
    a("s_cbranch_scc1 L_k7")
    a(f"s_lshr_b32 s{S.T5}, s{S.T1}, 1")
    a(f"s_lshl3_add_u32 s{S.T1C}, s{S.T5}, 8")
    a(f"s_mov_b32 s{S.T2}, 0")
    a(f"s_cmp_eq_u32 s2, 127")
    a(f"s_cselect_b32 s{S.T1C}, 0, s{S.T1C}")
    a(f"s_cselect_b32 s{S.HH}, 0, s{S.HH}")
    a.label("L_k7")
    rows_setup(S.WAVE)
    a("s_waitcnt lgkmcnt(0)")
    rows_load()
    stamp(1)
    tile_ids()

    def tile_dma():
        a(f"s_lshl_b32 s{S.T4}, s{S.WAVE}, 11")
        a(f"s_add_u32 s{S.T5}, s{S.T4}, s{S.BLK}")
        a(f"s_lshl_b32 s{S.T5}, s{S.T5}, 7")
        a(f"s_mov_b32 m0, s{S.T4}")
        a("v_and_b32 v9, 7, v0")
        a("v_bfe_u32 v13, v0, 4, 1")
        a("v_xor_b32 v9, v9, v13")
        a("v_lshrrev_b32 v13, 3, v0")
        a(f"v_lshl_add_u32 v9, v9, 4, s{S.T5}")
        a("v_lshl_add_u32 v13, v13, 14, v9")
        a(f"global_load_lds_dwordx4 v13, {PXS}")
        a(f"s_add_u32 m0, s{S.T4}, 1024")
        a("v_add_u32 v13, 0x20000, v13")
        a(f"global_load_lds_dwordx4 v13, {PXS}")
        stamp(2)

    if not o.tlate:
        tile_dma()
    C1, S1, K = AOP, AOP + 4, AOP + 8
    a(f"s_lshr_b32 s{S.T0}, s{S.WAVE}, 2")
    a(f"s_and_b32 s{S.T1}, s{S.WAVE}, 1")
    a(f"s_bfe_u32 s{S.T2}, s{S.WAVE}, 0x10001")
    a(f"v_lshl_add_u32 v6, s{S.T0}, 4, v1")
    a(f"s_lshl3_add_u32 s{S.T3}, s{S.T2}, s{S.T1}")
    a(f"s_lshl_b32 s{S.T3}, s{S.T3}, 2")
    a("v_cvt_f32_u32 v6, v6")
    a(f"v_lshl_add_u32 v7, v2, 3, s{S.T3}")
    a("v_mul_f32 v6, 0x3c000000, v6")
    a("v_cvt_f32_u32 v7, v7")
    a(f"v_lshlrev_b32 v{VG16}, 4, v0")
    a("v_mul_f32 v7, v7, v6")
    for j in range(4):
        a(f"v_cos_f32 v{C1+j}, v7")
        a(f"v_sin_f32 v{S1+j}, v7")
        if j < 3:
            a("v_add_f32 v7, v7, v6")
    if o.tlate == 2:
        a(f"global_load_dwordx4 {V(WR,4)}, v{VROW}, s[{S.PWR}:{S.PWR+1}]")
        tile_dma()
    a(f"s_lshl_b32 s{S.T4}, s{S.T0}, 13")
    a(f"s_lshl_b32 s{S.T5}, s{S.T2}, 10")
    a(f"s_lshl3_add_u32 s{S.T5}, s{S.T1}, s{S.T5}")
    a(f"v_add_u32 v15, s{S.T4}, v{VG16}")
    a(f"v_add_u32 v9, s{S.T5}, v15")
    a(f"v_cvt_pk_bf16_f32 v{K+0}, v{C1}, v{C1+1}")
    a(f"v_cvt_pk_bf16_f32 v{K+1}, v{C1+2}, v{C1+3}")
    a(f"v_cvt_pk_bf16_f32 v{K+2}, -v{S1}, -v{S1+1}")
    a(f"v_cvt_pk_bf16_f32 v{K+3}, -v{S1+2}, -v{S1+3}")
    a("v_cmp_eq_f32 vcc, 0, v6")
    a(f"v_cvt_pk_bf16_f32 v{K+4}, v{C1}, -v{S1+1}")
    a(f"v_cvt_pk_bf16_f32 v{K+5}, -v{C1+2}, v{S1+3}")
    a(f"v_cvt_pk_bf16_f32 v{K+6}, -v{S1}, -v{C1+1}")
    a(f"v_cvt_pk_bf16_f32 v{K+7}, v{S1+2}, v{C1+3}")
    a(f"ds_write_b64 v9, {V(K,2)} offset:{L_CT}")
    a(f"ds_write_b64 v9, {V(K+4,2)} offset:{L_CT+4096}")
    a(f"ds_write_b64 v9, {V(K+6,2)} offset:{L_CT+6144}")
    a("s_mov_b64 exec, vcc")
    a(f"v_mov_b32 v{K+2}, 0xbf803f80")
    a(f"v_mov_b32 v{K+3}, 0xbf803f80")
    a("s_mov_b64 exec, -1")
    a(f"ds_write_b64 v9, {V(K+2,2)} offset:{L_CT+2048}")
    if o.tlate != 2:
        a(f"global_load_dwordx4 {V(WR,4)}, v{VROW}, s[{S.PWR}:{S.PWR+1}]")
    if o.tlate == 1:
        tile_dma()
    a("v_mov_b32 v12, 0")
    a("v_mov_b32 v13, 0")
    stamp(3)

    def dots(w, fill=()):
        fill = list(fill)

        def pad(n):
            while n and fill:
                a(fill.pop(0))
                n -= 1
            a.nop(n)

        for i in range(4):
            a(f"v_dot2c_f32_bf16 v12, v{XR+i}, v{w+i}")
            a(f"v_dot2c_f32_bf16 v13, v{XR+4+i}, v{w+i}")
        pad(3)
        a("v_permlane32_swap_b32 v12, v13")
        a("v_add_f32 v12, v12, v13")
        a("v_mov_b32 v13, v12")
        pad(2)
        a("v_permlane16_swap_b32 v12, v13")
        a("v_add_f32 v12, v12, v13")
        for r in (8, 4, 2, 1):
            pad(2)
            a(f"v_add_f32_dpp v12, v12, v12 row_ror:{r} {DPPM}")
        rnd(12, 12)
        for x in fill:
            a(x)

    a(f"s_waitcnt vmcnt({2 if o.tlate else 0})")
    stamp(4)
    dots(WR, [f"s_sub_u32 s{S.T4}, 0xffff, s{S.TD}", f"s_sub_u32 s{S.T5}, 0xffff, s{S.TM}", f"v_mov_b32 v4, s{S.T4}",
              f"v_writelane_b32 v4, s{S.T5}, 32", f"s_lshl3_add_u32 s{S.T4}, s{S.WAVE}, {L_KSL}",
              "v_lshrrev_b32 v9, 3, v0", f"v_add_u32 v9, s{S.T4}, v9",
              "v_bfe_u32 v6, v0, 2, 2", "v_and_b32 v14, 3, v0", f"v_lshl_add_u32 v14, v14, 1, s{S.T2}",
              f"v_lshl_add_u32 v{VTR}, v2, 3, v6", "v_lshrrev_b32 v6, 1, v6", "v_xor_b32 v14, v14, v6"])
    a("v_ashrrev_i32 v7, 31, v12")
    a("v_or_b32 v7, 0x80000000, v7")
    a("v_xor_b32 v7, v7, v12")
    a(f"v_and_b32 v7, {HIM}, v7")
    a("v_or_b32 v7, v7, v4")
    a("s_mov_b32 exec_lo, 1")
    a("s_mov_b32 exec_hi, 1")
    a("ds_write_b32 v9, v7")
    a("s_mov_b64 exec, -1")
    a(f"s_lshl_b32 s{S.T1}, s{S.T1}, 3")
    a(f"v_lshl_add_u32 v14, v14, 4, s{S.T1}")
    a(f"v_lshl_add_u32 v{VTR}, v{VTR}, 7, v14")
    a("s_waitcnt vmcnt(0) lgkmcnt(0)")
    hold("B1")
    a("s_barrier")
    stamp(5)
    for k in range(4):
        for h in range(2):
            a(f"ds_read_b64_tr_b16 {V(AOP+4*k+2*h,2)}, v{VTR} offset:{L_TILE + k*4096 + h*512}")
        if k < 2:
            for t in range(4):
                a(f"ds_read_b128 {V(CM+16*t+4*k,4)}, v15 offset:{L_CT + t*2048 + k*1024}")
        if k == 1:
            a("s_waitcnt lgkmcnt(9)")
    sgn_setup2()
    a(f"global_load_dwordx4 {V(GW,4)}, v{VROW}, s[{S.PGW}:{S.PGW+1}]")
    xors = [f"v_xor_b32 v{CM+t*16+8+4*kp+r}, v{CM+t*16+4*kp+r}, v{VSGN}" for kp in range(2) for t in range(4) for r in range(4)]
    misc = [f"s_mul_i32 s{S.SI0}, s{S.T0}, {16*CS}",
            f"s_add_u32 s{S.SI0}, s{S.SI0}, s{S.PIE}",
            f"s_and_b32 s{S.T4}, s{S.WAVE}, 3",
            f"s_lshl_b32 s{S.T4}, s{S.T4}, 9",
            f"s_add_u32 s{S.SI0}, s{S.SI0}, s{S.T4}",
            f"s_add_u32 s{S.SI0}, s{S.SI0}, {WS_INT}",
            f"s_add_u32 s{S.SI1}, s{S.SI0}, {32*CS}",
            f"s_mov_b32 s{S.ISZ}, 0",
            f"s_mov_b32 s{S.RWS}, s{S.PWS}", f"s_mov_b32 s{S.RWS+1}, s{S.PWS+1}", f"s_mov_b32 s{S.RWS+2}, {WS_BYTES:#x}",
            f"s_mov_b32 s{S.RWS+3}, 0x20000", f"s_mov_b32 s{S.SPIN}, 0",
            f"v_mul_u32_u24 v{VST}, {CS}, v1", f"v_lshl_add_u32 v{VST}, v2, 4, v{VST}"]
    fill = xors + misc
    for k in range(4):
        for t in range(4):
            if k == 0:
                a(f"s_waitcnt lgkmcnt({13-t})")
            elif k == 1:
                a(f"s_waitcnt lgkmcnt({7-t})")
            elif t == 0:
                a(f"s_waitcnt lgkmcnt({2 if k == 2 else 0})")
            c = "0" if k == 0 else V(ACC + 4 * t, 4)
            a(f"{MF} {V(ACC+4*t,4)}, {V(AOP+4*k,4)}, {V(CM+16*t+4*k,4)}, {c}")
            n = 4 if k < 2 else 2
            if k < 3 or t < 3:
                for _ in range(n):
                    if fill:
                        a(fill.pop(0))
    for x in fill:
        a(x)
    a("v_mov_b32 v12, 0")
    a("v_mov_b32 v13, 0")
    for i in range(4):
        a(f"v_cvt_pk_bf16_f32 v{AOP+i}, v{ACC+i}, v{ACC+4+i}")
    a(f"buffer_store_dwordx4 {V(AOP,4)}, v{VST}, {R4(S.RWS)}, s{S.SI0} offen sc1")
    for i in range(4):
        a(f"v_cvt_pk_bf16_f32 v{AOP+4+i}, v{ACC+8+i}, v{ACC+12+i}")
    a(f"buffer_store_dwordx4 {V(AOP+4,4)}, v{VST}, {R4(S.RWS)}, s{S.SI1} offen sc1")
    stamp(7)
    a.label("L_ta_end")

    def gates(full):
        if full:
            a("s_waitcnt vmcnt(2)")
        dots(GW)
        sigmoid(13, 12)
        rnd(13, 13)
        a("v_sub_f32 v14, 1.0, v13")
        rnd(14, 14)
        a(f"v_readlane_b32 s{S.T0}, v13, 0")
        a(f"v_readlane_b32 s{S.T1}, v13, 32")
        a(f"v_readlane_b32 s{S.T2}, v14, 0")
        a(f"v_readlane_b32 s{S.T3}, v14, 32")
        a(f"s_xor_b32 s{S.T4}, s{S.T0}, 0x80000000")
        a(f"s_cmp_eq_u32 s{S.TD}, 0")
        a(f"s_cselect_b32 s{S.T4}, 0, s{S.T4}")
        a(f"s_cselect_b32 s{S.T5}, 0, s{S.T1}")
        if not full:
            return
        a(f"v_mov_b32 v{CO}, s{S.T0}")
        a(f"v_mov_b32 v{CO+1}, s{S.T4}")
        a(f"v_mov_b32 v{CO+2}, s{S.T5}")
        a(f"v_mov_b32 v{CO+3}, s{S.T1}")
        a(f"v_mov_b32 v13, s{S.T2}")
        a(f"v_mov_b32 v14, s{S.T3}")
        for r in range(2):
            a(f"v_permlane16_swap_b32 v{XR+4*r}, v{XR+4*r+2}")
            a(f"v_permlane16_swap_b32 v{XR+4*r+1}, v{XR+4*r+3}")
        for r in range(2):
            for i in range(4):
                a(f"v_lshlrev_b32 v{XG+8*r+2*i}, 16, v{XR+4*r+i}")
                a(f"v_and_b32 v{XG+8*r+2*i+1}, {HIM}, v{XR+4*r+i}")
            for i in range(8):
                a(f"v_mul_f32 v{XG+8*r+i}, v{13+r}, v{XG+8*r+i}")

    def addr_ur(wreg):
        a(f"s_mul_i32 s{S.T1}, s{wreg}, {2*UB}")
        a("v_bfe_u32 v7, v1, 1, 2")
        a("v_xor_b32 v7, v7, v2")
        a(f"v_lshl_add_u32 v7, v7, 4, s{S.T1}")
        a(f"v_lshl_add_u32 v{VUR0}, v1, 6, v7")
        a("v_sub_u32 v6, 16, v1")
        a("v_bfe_u32 v7, v6, 1, 2")
        a("v_xor_b32 v7, v7, v2")
        a(f"v_lshl_add_u32 v7, v7, 4, s{S.T1}")
        a(f"v_lshl_add_u32 v{VUR1}, v6, 6, v7")

    def addr_p2():
        a("v_lshlrev_b32 v6, 4, v1")
        a(f"v_lshl_add_u32 v{VLD}, v2, 13, v6")
        a(f"v_mul_u32_u24 v6, {4*UB}, v2")
        a("v_bfe_u32 v7, v1, 1, 2")
        a(f"v_xor_b32 v7, s{S.WAVE}, v7")
        a("v_lshl_add_u32 v7, v7, 4, v6")
        a(f"v_lshl_add_u32 v{VUW}, v1, 6, v7")
        a(f"s_lshl4_add_u32 s{S.T1}, s{S.WAVE}, 1024")
        a(f"v_mov_b32 v9, {L_DUMP - L_U2}")
        a(f"v_lshl_add_u32 v{VUX}, v0, 1, v9")
        a(f"v_lshl_add_u32 v7, v1, 1, s{S.T1}")
        a("s_mov_b32 exec_lo, 0x00ff00ff")
        a("s_mov_b32 exec_hi, 0x00ff00ff")
        a(f"v_add_u32 v{VUX}, v7, v6")
        a("s_mov_b64 exec, -1")

    def const_d1():
        a("v_cvt_f32_u32 v6, v1")
        a(f"s_lshl_b32 s{S.T0}, s{S.WAVE}, 2")
        a(f"v_lshl_add_u32 v7, v2, 6, s{S.T0}")
        a("v_mul_f32 v6, 0x3b000000, v6")
        a("v_cvt_f32_u32 v7, v7")
        a("v_mul_f32 v15, 0x41800000, v6")
        a("v_mul_f32 v7, v7, v6")
        for ib in range(4):
            if ib:
                a("v_add_f32 v7, v7, v6")
            for j in range(4):
                src = "v7" if j == 0 else "v9"
                a(f"v_cos_f32 v{Cc+j}, {src}")
                a(f"v_sin_f32 v{Ss+j}, {src}")
                if j < 3:
                    a(f"v_add_f32 v9, {src}, v15")
            b = M1 + 12 * ib
            a(f"v_mov_b32 v{b+8}, 0")
            for p in range(2):
                a(f"v_cvt_pk_bf16_f32 v{b+p}, v{Cc+2*p}, v{Cc+2*p+1}")
                a(f"v_cvt_pk_bf16_f32 v{b+4+p}, -v{Ss+2*p}, -v{Ss+2*p+1}")
            for p in range(2):
                a(f"v_xor_b32 v{b+2+p}, v{b+p}, v{VSGN}")
                a(f"v_xor_b32 v{b+6+p}, v{b+4+p}, v{VSGN}")
        a("v_lshrrev_b32 v6, 1, v1")
        a(f"v_add_u32 v7, s{S.T0}, v6")
        a("v_and_b32 v9, 1, v1")
        a("v_lshl_add_u32 v7, v9, 3, v7")
        a("v_cvt_f32_u32 v7, v7")
        a("v_mul_f32 v7, 0x3d000000, v7")
        a("v_cos_f32 v7, v7")
        for ib in range(4):
            m = 0x00030003 << (2 * ib)
            a(f"s_mov_b32 exec_lo, {m:#x}")
            a(f"s_mov_b32 exec_hi, {m:#x}")
            a(f"v_cvt_pk_bf16_f32 v{M1+12*ib+8}, v7, -v7")
        a("s_mov_b64 exec, -1")
        for ib in range(4):
            for p in range(1, 4):
                a(f"v_mov_b32 v{M1+12*ib+8+p}, v{M1+12*ib+8}")

    def const_ga():
        a("v_lshrrev_b32 v6, 1, v1")
        a(f"s_lshl_b32 s{S.T0}, s{S.HH}, 10")
        a(f"s_add_u32 s{S.T0}, s{S.T0}, s{S.T1C}")
        a(f"v_lshl_add_u32 v6, v6, 7, s{S.T0}")
        a("v_and_b32 v7, 1, v1")
        a("v_lshlrev_b32 v9, 9, v7")
        l0, ld = a.L("g0"), a.L("gd")
        a(f"s_cmp_lg_u32 s{S.T1C}, 0")
        a(f"s_cbranch_scc1 {l0}")
        a("s_mov_b32 exec_lo, 0x00020002")
        a("s_mov_b32 exec_hi, 0x00020002")
        a("v_mov_b32 v6, 0x400")
        a("v_mov_b32 v9, 0")
        a("s_mov_b64 exec, -1")
        a.label(l0)
        a("v_lshlrev_b32 v7, 2, v2")
        a("v_mad_u32_u24 v9, v7, v6, v9")
        a("v_cvt_f32_u32 v6, v6")
        a("v_cvt_f32_u32 v9, v9")
        a("v_mul_f32 v6, 0x3a000000, v6")
        a("v_mul_f32 v9, 0x3a000000, v9")
        for jj in range(4):
            a(f"v_cos_f32 v{Cc+jj}, v9")
            a(f"v_sin_f32 v{Ss+jj}, v9")
            if jj < 3:
                a("v_add_f32 v9, v9, v6")
        a(f"s_and_b32 s{S.T1}, s{S.T1C}, 63")
        a(f"s_mul_i32 s{S.L0}, s{S.T1}, {CS}")
        for jj in range(4):
            a(f"v_cvt_pk_bf16_f32 v{GA+jj}, v{Cc+jj}, v{Ss+jj}")
        a(f"s_cmp_lg_u32 s{S.T1}, 0")
        a(f"s_cbranch_scc1 {ld}")
        a(f"s_lshr_b32 s{S.T1}, s{S.T1C}, 2")
        for jj in range(4):
            a(f"v_and_b32 v{GA+jj}, 0xffff, v{GA+jj}")
            a(f"v_lshlrev_b32 v{GA+jj}, s{S.T1}, v{GA+jj}")
        a.label(ld)
        a(f"s_lshl_b32 s{S.T1}, s{S.WAVE}, 9")
        a(f"s_add_u32 s{S.L0}, s{S.L0}, s{S.T1}")
        a(f"s_add_u32 s{S.L0}, s{S.L0}, {WS_INT}")
        a(f"s_add_u32 s{S.L1}, s{S.L0}, 4096")

    def m2_addr():
        a(f"s_cmp_eq_u32 s{S.TD}, 0")
        a(f"s_cselect_b32 s{S.T0}, 0, 2048")
        a(f"v_add_u32 v4, s{S.T0}, v{VG16}")

    def int_loads(ah):
        for jj in range(4):
            so = S.L0 if jj < 2 else S.L1
            a(f"buffer_load_dwordx4 {V(LD+16*ah+4*jj,4)}, v{VLD}, {R4(S.RWS)}, s{so} offen offset:{(jj & 1)*2048 + ah*256} sc1")

    def int_check(ah):
        b = LD + 16 * ah
        a(f"v_max3_u32 v6, v{b}, v{b+2}, v{b+4}")
        a(f"v_max3_u32 v7, v{b+6}, v{b+8}, v{b+10}")
        a(f"v_max3_u32 v6, v{b+12}, v{b+14}, v6")
        a("v_max_u32 v6, v6, v7")
        a("v_cmp_eq_u32 vcc, -1, v6")

    a.srd(S.ROUT, S.POUT, 0x200000)
    a(f"s_cmp_ge_u32 s{S.WAVE}, 4")
    a("s_cbranch_scc1 L_hi0")
    addr_p2()
    const_ga()
    if o.mode == 0:
        gates(True)
        a("s_waitcnt vmcnt(0)")
        hold("B3")
        a("s_barrier")
    const_d1()
    stamp(8)
    if o.ackwait:
        a("s_waitcnt vmcnt(0)")
    hold("B4")
    a("s_barrier")
    stamp(9)
    int_loads(0)
    int_loads(1)
    if o.mode:
        gates(True)
    addr_ur(S.WAVE)
    m2_addr()
    a.label("L_zjoin")
    stamp(10)
    for ah in range(2):
        a(f"s_waitcnt vmcnt({4-4*ah})")
        if o.mode:
            int_check(ah)
            a.nop(1)
            a(f"s_cbranch_vccnz L_retry{ah}")
        a.label(f"L_got{ah}")
        b = LD + 16 * ah
        da = DA1 if ah else DA0
        for ib in range(5):
            if ib < 4:
                for p in range(2):
                    s0 = b + 8 * p + (ib & 2)
                    a(f"v_pk_mov_b32 {V(TP+4*ib+2*p,2)}, {V(s0,2)}, {V(s0+4,2)} op_sel:[{ib&1},{ib&1}]")
            else:
                a.nop(2)
            if ib:
                a(f"{MF} {V(da+4*(ib-1),4)}, {V(TP+4*(ib-1),4)}, {V(GA,4)}, 0")
    stamp(11)
    a.nop(1)

    def d1(jb):
        a(f"{MF} {V(DA0+4*jb,4)}, {V(TP+4*jb,4)}, {V(M1+12*jb,4)}, 0")
        a(f"{MF} {V(DA1+4*jb,4)}, {V(TP+4*jb,4)}, {V(M1+12*jb+4,4)}, 0")
        a(f"{MF} {V(X16,4)}, {V(TP+4*jb,4)}, {V(M1+12*jb+8,4)}, {'0' if jb == 0 else V(X16,4)}")

    for ib in range(4):
        for p in range(4):
            s0 = (DA1 if p >= 2 else DA0) + 4 * ib + 2 * (p & 1)
            a(f"v_cvt_pk_bf16_f32 v{TP+4*ib+p}, v{s0}, v{s0+1}")
        if ib:
            d1(ib - 1)
    d1(3)
    for ib in range(3):
        for i in range(4):
            a(f"v_cvt_pk_bf16_f32 v{PK+4*i+ib}, v{DA0+4*ib+i}, v{DA1+4*ib+i}")
    for i in range(4):
        a(f"v_cvt_pk_bf16_f32 v{PK+4*i+3}, v{DA0+12+i}, v{DA1+12+i}")
        a(f"ds_write_b128 v{VUW}, {V(PK+4*i,4)} offset:{L_U2 + i*UB}")
    a(f"v_cvt_pk_bf16_f32 v{X16}, v{X16}, v{X16+1}")
    a(f"v_cvt_pk_bf16_f32 v{X16+2}, v{X16+2}, v{X16+3}")
    a(f"ds_write_b16 v{VUX}, v{X16} offset:{L_U2}")
    a(f"ds_write_b16_d16_hi v{VUX}, v{X16} offset:{L_U2+UB}")
    a(f"ds_write_b16 v{VUX}, v{X16+2} offset:{L_U2+2*UB}")
    a(f"ds_write_b16_d16_hi v{VUX}, v{X16+2} offset:{L_U2+3*UB}")
    a.label("L_d2")
    a(f"ds_read_b128 {V(M2,4)}, v{VG16} offset:{L_M2}")
    a(f"ds_read_b128 {V(M2+4,4)}, v{VG16} offset:{L_M2+1024}")
    a(f"ds_read_b128 {V(M2+8,4)}, v4 offset:{L_M2}")
    a(f"ds_read_b128 {V(M2+12,4)}, v4 offset:{L_M2+1024}")
    a(f"v_mov_b32 v9, {L_GKEY}")
    a("ds_read_b32 v6, v9")
    a("s_waitcnt lgkmcnt(0)")
    a("s_barrier")
    stamp(12)
    a(f"ds_read_b128 {V(UO,4)}, v{VUR0} offset:{L_U2}")
    a(f"ds_read_b128 {V(UO+4,4)}, v{VUR1} offset:{L_U2}")
    a(f"ds_read_b128 {V(UO+8,4)}, v{VUR0} offset:{L_U2+UB}")
    a(f"ds_read_b128 {V(UO+12,4)}, v{VUR1} offset:{L_U2+UB}")
    a(f"s_cmp_lg_u32 s{S.ISZ}, 0")
    a("s_cbranch_scc1 L_zfin")
    a(f"v_readfirstlane_b32 s{S.GKEY}, v6")
    a(f"s_lshl_b32 s{S.T0}, s{S.TD}, 10")
    a(f"s_lshl_b32 s{S.T1}, s{S.TM}, 10")
    a(f"s_andn2_b32 s{S.IDX}, 0xffff, s{S.GKEY}")
    for k in range(4):
        a(f"s_waitcnt lgkmcnt({3-k})")
        a(f"{MF} {V(PQ+4*k,4)}, {V(UO+4*k,4)}, {V(M2+4*k,4)}, 0")
    a.nop(2)
    for r in range(2):
        for i in range(8):
            a(f"v_fmac_f32 v{XG+8*r+i}, v{CO+2*r}, v{PQ+i}")
    for r, (so, tr) in enumerate(((S.T0, S.TD), (S.T1, S.TM))):
        for i in range(8):
            a(f"v_fmac_f32 v{XG+8*r+i}, v{CO+2*r+1}, v{PQ+8+i}")
        for i in range(4):
            a(f"v_cvt_pk_bf16_f32 v{UO+4*r+i}, v{XG+8*r+2*i}, v{XG+8*r+2*i+1}")
        l = a.L("skip")
        a(f"s_cmp_eq_u32 s{tr}, s{S.IDX}")
        a(f"s_cbranch_scc1 {l}")
        a(f"v_permlane16_swap_b32 v{UO+4*r}, v{UO+4*r+2}")
        a(f"v_permlane16_swap_b32 v{UO+4*r+1}, v{UO+4*r+3}")
        a(f"buffer_store_dwordx4 {V(UO+4*r,4)}, v{VROW}, {R4(S.ROUT)}, s{so} offen{o.outpol}")
        a.label(l)
    stamp(13)
    if o.stamps:
        a("s_waitcnt vmcnt(0)")
        stamp(15)
    endprog()

    for ah in range(2 if o.mode else 0):
        a.label(f"L_retry{ah}")
        if o.stamps:
            a(f"s_add_u32 s{S.RC}, s{S.RC}, {1 << (8*ah)}")
        if o.rsleep:
            a(f"s_sleep {o.rsleep}")
        int_loads(ah)
        spin()
        a("s_waitcnt vmcnt(0)")
        a(f"s_cbranch_scc1 L_got{ah}")
        int_check(ah)
        a.nop(1)
        a(f"s_cbranch_vccnz L_retry{ah}")
        a(f"s_branch L_got{ah}")

    a.label("L_hi0")
    if o.mode == 0:
        a("s_waitcnt vmcnt(0)")
        a("s_barrier")
    if o.hipre:
        gates(True)
    a("s_barrier")
    if not o.hipre:
        gates(True)
    addr_ur(S.WAVE)
    m2_addr()
    stamp(10)
    a("s_branch L_d2")

    a.label("L_ah")
    if o.cpf:
        a(f"s_cmp_ge_u32 s{S.T1}, {o.cpf}")
        a("s_cbranch_scc1 L_nocpf")
        a(f"s_getpc_b64 s[{S.EX}:{S.EX+1}]")
        a.label("L_pc")
        a(f"s_sub_u32 s{S.EX}, s{S.EX}, L_pc - {name}")
        a(f"s_subb_u32 s{S.EX+1}, s{S.EX+1}, 0")
        a("v_lshlrev_b32 v6, 7, v0")
        a("v_add_u32 v7, 0x2000, v6")
        a(f"v_min_u32 v7, L_end - {name}, v7")
        a(f"global_load_dword v12, v6, s[{S.EX}:{S.EX+1}]")
        a(f"global_load_dword v13, v7, s[{S.EX}:{S.EX+1}]")
        a.label("L_nocpf")
    a(f"v_lshlrev_b32 v{VG16}, 4, v0")
    a(f"v_mov_b32 v{VTAG}, 0")
    a(f"s_mov_b32 s{S.KM}, 0x9E3779B1")
    a(f"s_cmp_ge_u32 s{S.T1}, {o.wpf}")
    a("s_waitcnt lgkmcnt(0)")
    a("s_cbranch_scc1 L_nowpf")
    a(f"global_load_dwordx4 v[32:35], v{VG16}, s[{S.PWR}:{S.PWR+1}]")
    a(f"global_load_dword v{VE}, v{VTAG}, s[{S.PWS}:{S.PWS+1}]")
    a(f"global_load_dwordx4 v[36:39], v{VG16}, s[{S.PGW}:{S.PGW+1}]")
    a.label("L_nowpf")
    stamp(1)
    a("v_lshlrev_b32 v14, 10, v0")
    a(f"s_lshl_b32 s{S.ID8}, s2, 3")
    a(f"s_add_u32 s{S.ID8}, s{S.ID8}, {WS_KEY}")
    ws_setup()

    const_d2()
    stamp(2)
    a(f"global_load_dword v{VE}, v{VTAG}, s[{S.PWS}:{S.PWS+1}]")
    a(f"v_mov_b32 v9, {L_KSL}")
    a("s_waitcnt vmcnt(0)")
    tag_make()
    stamp(3)
    a("s_barrier")
    for i in range(4):
        a(f"ds_read_b128 {V(40+4*i,4)}, v9 offset:{16*i}")
    set_exec(max(RF * CF + RZ * CZ, R2 * C2))
    a("s_waitcnt lgkmcnt(2)")
    a("v_max3_u32 v6, v40, v41, v42")
    a("v_max3_u32 v7, v43, v44, v45")
    a("v_max3_u32 v6, v46, v47, v6")
    a("s_waitcnt lgkmcnt(0)")
    a("v_max3_u32 v7, v48, v49, v7")
    a("v_max3_u32 v6, v50, v51, v6")
    a("v_max3_u32 v7, v52, v53, v7")
    a("v_max3_u32 v6, v54, v55, v6")
    a(f"v_max_u32 v{VE}, v6, v7")
    if RF * CF + RZ * CZ < R2 * C2:
        set_exec(RF * CF + RZ * CZ)
    a(f"buffer_store_dwordx2 v[{VE}:{VTAG}], v14, {R4(S.RWS)}, s{S.ID8} offen sc1")
    a("s_mov_b64 exec, -1")
    a(f"s_add_u32 s{S.ID8}, s{S.ID8}, {WS_KEY2 - WS_KEY}")
    stamp(5)

    def key2():
        set_exec(R2 * C2)
        a(f"buffer_store_dwordx2 v[{VE}:{VTAG}], v14, {R4(S.RWS)}, s{S.ID8} offen sc1")
        a("s_mov_b64 exec, -1")
        stamp(6)

    poll_setup(WS_KEY2, R2, C2)
    if o.mode == 0:
        a("s_barrier")
        key2()
    if o.k2ack:
        a("s_waitcnt vmcnt(0)")
    if o.k2sleep0:
        a(f"s_sleep {o.k2sleep0}")
    stamp(8)
    poll_granules(VG16, 32, sleep=o.k2sleep)
    stamp(9)
    wave_max_key(32)
    lds_put(L_GKEY, 32)
    a("s_barrier")
    endprog()

    a.label("L_notA")
    if o.only == "AA":
        a("s_endpgm")
    a(f"s_lshl4_add_u32 s{S.FJ}, s{S.T0}, s{S.T1}")
    a(f"s_sub_u32 s{S.FJ}, s{S.FJ}, 16")
    a(f"s_cmp_ge_u32 s2, {NWG}")
    a("s_cbranch_scc1 L_end")
    a(f"s_cmp_lt_u32 s{S.T0}, 4")
    a("s_cbranch_scc1 L_F")
    a(f"s_mul_i32 s{S.FJ}, s{S.T0}, 12")
    a(f"s_add_u32 s{S.FJ}, s{S.FJ}, s{S.T1}")
    a(f"s_cmp_lt_u32 s{S.T1}, 28")
    a("s_cbranch_scc1 L_F")
    a(f"s_mov_b32 s{S.ISZ}, 1")
    a(f"s_lshl2_add_u32 s{S.Z}, s{S.T0}, s{S.T1}")
    a(f"s_sub_u32 s{S.Z}, s{S.Z}, 44")
    vrow_setup()
    a(f"v_lshlrev_b32 v{VG16}, 4, v0")
    sgn_setup()
    a("s_waitcnt lgkmcnt(0)")
    ws_setup()
    a.srd(S.ROUT, S.POUT, 0x200000)
    addr_p2()
    a(f"s_cmp_eq_u32 s{S.WAVE}, 8")
    a("s_cbranch_scc1 L_zh")
    a(f"s_cmp_ge_u32 s{S.WAVE}, 4")
    a("s_cbranch_scc1 L_z0")
    const_d1()
    a("s_branch L_z1")
    a.label("L_z0")
    if o.ztouch:
        a("s_mov_b64 exec, 0")
        a(f"s_sub_u32 s{S.T0}, s{S.WAVE}, 8")
        a.label("L_tzback")
        a(f"s_add_u32 s{S.T0}, s{S.T0}, 4")
        for k in range(o.ztouch):
            a(f"s_cmp_eq_u32 s{S.T0}, {k}")
            a(f"s_cbranch_scc1 L_tz{k}")
        a("s_mov_b64 exec, -1")
    a.label("L_z1")
    a(f"v_mov_b32 v9, {L_KSL}")
    a("v_mov_b32 v12, 0")
    a("v_mov_b32 v13, 0")
    a("s_barrier")
    a(f"ds_read_b64 v[{VE}:{VTAG}], v9")
    a(f"ds_read_b128 {V(GW,4)}, v{VROW} offset:{L_WV+1024}")
    a("s_waitcnt lgkmcnt(0)")
    a(f"v_readfirstlane_b32 s{S.GKEY}, v{VE}")
    a(f"s_andn2_b32 s{S.IDX}, 2047, s{S.GKEY}")
    a(f"s_and_b32 s{S.T0}, s{S.IDX}, 127")
    a(f"s_cmp_gt_u32 s{S.T0}, 64")
    a(f"s_cselect_b32 s{S.WHICH}, 1, 0")
    a(f"s_and_b32 s{S.T0}, s{S.IDX}, {1024 + 63}")
    a(f"s_cmp_eq_u32 s{S.T0}, 1024")
    a(f"s_cselect_b32 s{S.WHICH}, 1, s{S.WHICH}")
    a(f"s_sub_u32 s{S.T0}, 2048, s{S.IDX}")
    a(f"s_cmp_lg_u32 s{S.WHICH}, 0")
    a(f"s_cselect_b32 s{S.T0}, s{S.T0}, s{S.IDX}")
    a(f"s_cmp_eq_u32 s{S.T0}, 1024")
    a(f"s_cselect_b32 s{S.T0}, 0, s{S.T0}")
    a(f"s_and_b32 s{S.T1C}, s{S.T0}, 127")
    a(f"s_lshr_b32 s{S.HH}, s{S.T0}, 10")
    a(f"s_bfe_u32 s{S.WSEL}, s{S.T0}, 0x30007")
    rows_setup(S.WSEL)
    rows_load()
    a(f"s_cmp_ge_u32 s{S.WAVE}, 4")
    a("s_cbranch_scc1 L_z4")
    const_ga()
    addr_ur(S.WSEL)
    m2_addr()
    a(f"v_cmp_eq_u32 s[{S.EY}:{S.EY+1}], s{S.Z}, v1")
    a("v_lshlrev_b32 v6, 7, v1")
    a(f"v_lshl_add_u32 v15, v2, 4, v6")
    a("s_waitcnt vmcnt(0)")
    gates(False)
    a(f"s_cmp_lg_u32 s{S.WHICH}, 0")
    a(f"s_cselect_b32 s{S.T0}, s{S.T5}, s{S.T0}")
    a(f"s_cselect_b32 s{S.T4}, s{S.T1}, s{S.T4}")
    a(f"v_mov_b32 v{CO}, s{S.T0}")
    a(f"v_mov_b32 v{CO+1}, s{S.T4}")
    stamp(3)
    a("s_barrier")
    stamp(9)
    int_loads(0)
    int_loads(1)
    a("s_branch L_zjoin")
    a.label("L_z4")
    a(f"s_cmp_ge_u32 s{S.WAVE}, 6")
    a("s_cbranch_scc1 L_zend2")
    a(f"s_sub_u32 s{S.T0}, s{S.WAVE}, 4")
    a(f"s_lshl1_add_u32 s{S.T1}, s{S.Z}, s{S.T0}")
    a(f"s_lshl_b32 s{S.T1}, s{S.T1}, 5")
    a("v_and_b32 v6, 7, v0")
    a(f"v_lshl_add_u32 v10, v6, 2, s{S.T1}")
    a(f"s_lshl_b32 s{S.T2}, s{S.IDX}, 10")
    a(f"v_add_u32 v7, s{S.T2}, v10")
    a(f"global_load_dword v35, v7, {PXS}")
    a("v_lshlrev_b32 v10, 1, v10")
    a("v_lshrrev_b32 v7, 3, v0")
    a("v_lshlrev_b32 v7, 8, v7")
    a("v_lshl_add_u32 v11, v6, 4, v7")
    a(f"s_mul_i32 s{S.SI0}, s{S.Z}, {PZ}")
    a(f"s_lshl_b32 s{S.T0}, s{S.T0}, 7")
    a(f"s_add_u32 s{S.SI0}, s{S.SI0}, s{S.T0}")
    a(f"s_add_u32 s{S.SI0}, s{S.SI0}, {WS_PART}")
    a(f"s_add_u32 s{S.SI1}, s{S.SI0}, {(o.pc-1)*PARTC}")
    a(f"s_and_b32 s{S.T0}, s{S.GKEY}, 0xffff0000")
    a(f"s_xor_b32 s{S.T1}, s{S.T0}, 0x80000000")
    a(f"s_xor_b32 s{S.T3}, s{S.T0}, 0xffff0000")
    a(f"s_bitcmp1_b32 s{S.T0}, 31")
    a(f"s_cselect_b32 s{S.T0}, s{S.T1}, s{S.T3}")
    a(f"v_mov_b32 v15, s{S.T0}")
    sigmoid(15, 15)
    rnd(15, 15)
    a("s_waitcnt vmcnt(0)")
    gates(False)
    a(f"s_cmp_lg_u32 s{S.WHICH}, 0")
    a(f"s_cselect_b32 s{S.T2}, s{S.T3}, s{S.T2}")
    a(f"v_mov_b32 v36, s{S.T2}")
    a("v_lshlrev_b32 v34, 16, v35")
    a(f"v_and_b32 v35, {HIM}, v35")
    a("s_barrier")
    if o.psleep0:
        a(f"s_sleep {o.psleep0}")
    hold("pp")
    a.label("L_tz_start")
    stamp(10)
    if o.psleep:
        a("s_branch L_zp1")
    a.label("L_zp")
    if o.psleep:
        a(f"s_sleep {o.psleep}")
        a.label("L_zp1")
    for i in range(7):
        if i and i % 2 == 0:
            a(f"s_add_u32 s{S.T0}, s{S.SI0}, {2048*i}")
        a(f"buffer_load_dwordx4 {V(40+4*i,4)}, v11, {R4(S.RWS)}, s{S.T0 if i >= 2 else S.SI0} offen offset:{2048*(i&1)} sc1")
    a(f"s_add_u32 s{S.SI0}, s{S.SI0}, {PARTC}")
    a(f"s_min_u32 s{S.SI0}, s{S.SI0}, s{S.SI1}")
    if o.stamps:
        a(f"s_add_u32 s{S.RC}, s{S.RC}, 256")
    spin()
    a("s_cbranch_scc1 L_zp_ok")
    for i in range(7):
        a(f"s_waitcnt vmcnt({6-i})")
        a(f"v_bitop3_b32 v{37 if i == 0 else 38 + (i & 1)}, v{41+4*i}, v{43+4*i}, v{VTAG} bitop3:0x7e")
        if i:
            a(f"v_add_f32 v40, v40, v{40+4*i}")
            a(f"v_add_f32 v42, v42, v{42+4*i}")
        if i and i % 2 == 0:
            a("v_or3_b32 v37, v37, v38, v39")
    a("v_cmp_ne_u32 vcc, 0, v37")
    a.nop(1)
    a("s_cbranch_vccnz L_zp")
    a.label("L_zp_ok")
    a("s_waitcnt vmcnt(0)")
    stamp(11)
    a(f"v_add_f32_dpp v40, v40, v40 row_ror:8 {DPPM}")
    a(f"v_add_f32_dpp v42, v42, v42 row_ror:8 {DPPM}")
    a.nop(1)
    a.nop(1)
    a("v_permlane16_swap_b32 v40, v42")
    a("v_add_f32 v40, v40, v42")
    a("v_mov_b32 v42, v40")
    a.nop(2)
    a("v_permlane32_swap_b32 v40, v42")
    a("v_add_f32 v40, v40, v42")
    a("v_mov_b32 v42, v40")
    a.nop(2)
    a("v_permlane16_swap_b32 v40, v42")
    a("v_cvt_pk_bf16_f32 v41, v40, v42")
    a("v_lshlrev_b32 v40, 16, v41")
    a(f"v_and_b32 v42, {HIM}, v41")
    a("v_mul_f32 v40, v40, v15")
    a("v_mul_f32 v42, v42, v15")
    a("v_cvt_pk_bf16_f32 v41, v40, v42")
    a("v_lshlrev_b32 v40, 16, v41")
    a(f"v_and_b32 v42, {HIM}, v41")
    a("v_add_f32 v40, v40, v34")
    a("v_add_f32 v42, v42, v35")
    a("v_cvt_pk_bf16_f32 v41, v40, v42")
    a("v_lshlrev_b32 v40, 16, v41")
    a(f"v_and_b32 v42, {HIM}, v41")
    a("v_mul_f32 v40, v40, v36")
    a("v_mul_f32 v41, v42, v36")
    a("s_mov_b64 exec, 0xff")
    a(f"ds_write_b64 v10, v[40:41] offset:{L_XG2}")
    a("s_waitcnt lgkmcnt(0)")
    a("s_barrier")
    stamp(12)
    endprog()

    a.label("L_zfin")
    a(f"s_cmp_lg_u32 s{S.WAVE}, 0")
    a("s_cbranch_scc1 L_zend")
    a(f"ds_read_b128 {V(XG,4)}, v15 offset:{L_XG2}")
    a(f"ds_read_b128 {V(XG+4,4)}, v15 offset:{L_XG2+64}")
    for k in range(4):
        a(f"s_waitcnt lgkmcnt({5-k})")
        a(f"{MF} {V(PQ+4*k,4)}, {V(UO+4*k,4)}, {V(M2+4*k,4)}, 0")
    a(f"s_lshl_b32 s{S.T0}, s{S.IDX}, 10")
    a("s_waitcnt lgkmcnt(0)")
    a.nop(2)
    for i in range(8):
        a(f"v_fmac_f32 v{XG+i}, v{CO}, v{PQ+i}")
    for i in range(8):
        a(f"v_fmac_f32 v{XG+i}, v{CO+1}, v{PQ+8+i}")
    for i in range(4):
        a(f"v_cvt_pk_bf16_f32 v{UO+i}, v{XG+2*i}, v{XG+2*i+1}")
    a.nop(2)
    a(f"v_permlane16_swap_b32 v{UO}, v{UO+2}")
    a(f"v_permlane16_swap_b32 v{UO+1}, v{UO+3}")
    a(f"s_mov_b64 exec, s[{S.EY}:{S.EY+1}]")
    a(f"buffer_store_dwordx4 {V(UO,4)}, v{VROW}, {R4(S.ROUT)}, s{S.T0} offen")
    a("s_mov_b64 exec, -1")
    stamp(13)
    a.label("L_zend")
    endprog()
    a.label("L_zend2")
    if o.hold and o.hold[0] == "end":
        a("s_barrier")
        a("s_barrier")
    hold("end")
    endprog()

    a.label("L_zh")
    const_d2()
    a(f"s_mov_b32 m0, {L_WV+1024}")
    tag_load()
    a(f"global_load_lds_dwordx4 v{VG16}, s[{S.PGW}:{S.PGW+1}]")
    a("s_waitcnt vmcnt(0)")
    tag_make()
    poll_setup(WS_KEY + 1024 * RF * CF, RZ, CZ)
    if o.zsleep0:
        a(f"s_sleep {o.zsleep0}")
    stamp(1)
    poll_granules(VG16, 32, sleep=o.zsleep)
    stamp(2)
    wave_max_key(32)
    lds_put(L_KSL, 32, tag=True)
    a("s_barrier")
    a(f"s_lshl_b32 s{S.T0}, s{S.Z}, 2")
    a(f"s_add_u32 s{S.T0}, s{S.T0}, {WS_ALIVE}")
    a("s_mov_b64 exec, 1")
    a(f"buffer_store_dword v{VTAG}, v0, {R4(S.RWS)}, s{S.T0} offen sc1")
    a("s_mov_b64 exec, -1")
    poll_setup(WS_KEY2, R2, C2)
    a("s_waitcnt vmcnt(0)")
    if o.zk2sleep0:
        a(f"s_sleep {o.zk2sleep0}")
    stamp(8)
    poll_granules(VG16, 32, sleep=o.k2sleep)
    stamp(9)
    a("s_barrier")
    a(f"s_cmp_lg_u32 s{S.Z}, 0")
    a("s_cbranch_scc1 L_zend")
    a("s_mov_b64 exec, 0xffff")
    a("v_lshlrev_b32 v6, 2, v0")
    a(f"s_mov_b32 s{S.T0}, {WS_ALIVE}")
    a.label("L_za")
    a(f"buffer_load_dword v7, v6, {R4(S.RWS)}, s{S.T0} offen sc1")
    spin()
    a("s_waitcnt vmcnt(0)")
    a("s_cbranch_scc1 L_za_ok")
    a(f"v_cmp_ne_u32 vcc, v{VTAG}, v7")
    a.nop(1)
    a("s_cbranch_vccnz L_za")
    a.label("L_za_ok")
    a("s_mov_b64 exec, 1")
    a(f"v_add_u32 v9, 1, v{VE}")
    a("s_barrier")
    a(f"buffer_store_dword v9, v6, {R4(S.RWS)}, 0 offen sc1")
    a("s_mov_b64 exec, -1")
    a("s_branch L_zend")

    a.label("L_F")
    if o.only == "A":
        a("s_endpgm")
    WG_, WD_ = 32, 48
    a("v_lshlrev_b32 v5, 4, v0")
    a(f"s_cmp_eq_u32 s{S.WAVE}, 8")
    a("s_cbranch_scc1 L_fh")
    a(f"s_and_b32 s{S.T0}, s{S.FJ}, 3")
    a(f"s_lshr_b32 s{S.T1}, s{S.WAVE}, 1")
    a(f"s_lshl2_add_u32 s{S.L0}, s{S.T0}, s{S.T1}")
    a(f"s_mul_i32 s{S.T2}, s{S.L0}, {32*3584}")
    a(f"s_lshr_b32 s{S.L1}, s{S.FJ}, 2")
    a(f"s_lshl_b32 s{S.T3}, s{S.L1}, 7")
    a(f"s_add_u32 s{S.T2}, s{S.T2}, s{S.T3}")
    a("v_lshrrev_b32 v6, 3, v0")
    a("v_mul_u32_u24 v6, 3584, v6")
    a("v_and_b32 v7, 7, v0")
    a("v_bfe_u32 v8, v0, 4, 1")
    a("v_lshlrev_b32 v8, 2, v8")
    a("v_xor_b32 v4, v7, v8")
    a(f"v_lshl_add_u32 v7, v4, 4, s{S.T2}")
    a("v_add_u32 v3, v6, v7")
    a(f"s_lshl_b32 s{S.T4}, s{S.WAVE}, 12")
    a(f"s_mov_b32 m0, s{S.T4}")
    a(f"s_bitcmp1_b32 s{S.WAVE}, 0")
    a("s_waitcnt lgkmcnt(0)")
    a(f"s_cselect_b32 s{S.PWG}, s{S.PWU}, s{S.PWG}")
    a(f"s_cselect_b32 s{S.PWG+1}, s{S.PWU+1}, s{S.PWG+1}")
    if o.fdelay:
        a(f"s_sleep {o.fdelay}")
    for b in range(4):
        if b:
            a(f"s_add_u32 m0, s{S.T4}, {1024*b}")
            a(f"v_add_u32 v3, {8*3584}, v3")
        a(f"global_load_lds_dwordx4 v3, s[{S.PWG}:{S.PWG+1}]{o.wpol}")
    ws_setup()
    stamp(1)
    a("v_bfe_u32 v6, v0, 2, 2")
    a("v_and_b32 v7, 3, v0")
    a("v_lshlrev_b32 v8, 3, v7")
    a("v_lshl_add_u32 v8, v2, 5, v8")
    a("v_and_b32 v9, 2, v6")
    a("v_lshlrev_b32 v9, 5, v9")
    a("v_xor_b32 v9, v9, v8")
    a("v_lshl_add_u32 v9, v6, 7, v9")
    a(f"v_add_u32 v9, s{S.T4}, v9")
    a(f"s_lshl_b32 s{S.T5}, s{S.WAVE}, 8")
    a("v_lshlrev_b32 v11, 2, v0")
    a(f"v_add_u32 v11, {L_RED}, v11")
    a(f"v_add_u32 v12, s{S.T5}, v11")
    a(f"s_lshl1_add_u32 s{S.T1}, s{S.L1}, s{S.T1}")
    a(f"s_lshl_b32 s{S.T2}, s{S.T1}, 15")
    a(f"s_and_b32 s{S.T3}, s{S.WAVE}, 1")
    a(f"s_lshl1_add_u32 s{S.T3}, s{S.T0}, s{S.T3}")
    a(f"s_lshl_b32 s{S.T5}, s{S.T3}, 7")
    a(f"s_add_u32 s{S.T2}, s{S.T2}, s{S.T5}")
    a("v_lshrrev_b32 v6, 3, v0")
    a(f"v_lshl_add_u32 v6, v6, 10, s{S.T2}")
    a("v_lshl_add_u32 v4, v4, 4, v6")
    a("v_lshrrev_b32 v6, 5, v0")
    a(f"v_mul_u32_u24 v13, {PZ}, v6")
    a("v_and_b32 v6, 31, v0")
    a("v_lshl_add_u32 v13, v6, 3, v13")
    a(f"s_mul_i32 s{S.T2}, s{S.T3}, {2*PZ}")
    a(f"s_lshl_b32 s{S.T1}, s{S.T1}, 8")
    a(f"s_add_u32 s{S.T2}, s{S.T2}, s{S.T1}")
    a(f"s_add_u32 s{S.T2}, s{S.T2}, {WS_PART}")
    a(f"s_lshl_b32 s{S.L0}, s{S.L0}, 6")
    a(f"s_lshl_b32 s{S.L1}, s{S.L1}, 12")
    a(f"s_add_u32 s{S.PO}, s{S.L1}, {WS_XCH}")
    a(f"s_add_u32 s{S.POL}, s{S.PO}, {(o.xc-1)*XCHC}")
    a(f"s_lshl_b32 s{S.T1}, s{S.T0}, 10")
    a(f"s_add_u32 s{S.L1}, s{S.PO}, s{S.T1}")
    a(f"v_mov_b32 v14, {L_FKEY}")
    a(f"s_lshr_b32 s{S.T1}, s{S.WAVE}, 1")
    a(f"s_lshl_b32 s{S.T1}, s{S.T1}, 9")
    a(f"v_lshl_add_u32 v15, v6, 4, s{S.T1}")
    a("v_lshrrev_b32 v6, 5, v0")
    a("v_lshl_add_u32 v15, v6, 10, v15")
    for i in range(2):
        a(f"v_mov_b32 v{16+i}, 0")
    for i in range(2):
        a(f"v_mov_b32 v{24+i}, 0")

    def wd_dma():
        l = a.L("nowd")
        a(f"s_cmp_ge_u32 s{S.WAVE}, 4")
        a(f"s_cbranch_scc1 {l}")
        for b in range(4):
            a(f"s_add_u32 m0, s{S.T4}, {L_WD + 1024*b}")
            if b:
                a("v_add_u32 v4, 0x2000, v4")
            else:
                a.nop(1)
            a(f"global_load_lds_dwordx4 v4, s[{S.PWD}:{S.PWD+1}]")
        a.label(l)

    if o.wdpos == 0:
        wd_dma()
    a("s_waitcnt vmcnt(0)")
    stamp(2)
    if o.fw0:
        a("s_barrier")
    if o.wdpos == 1:
        wd_dma()
    for k in range(8):
        a(f"ds_read_b64_tr_b16 {V(WG_+2*k,2)}, v9 offset:{L_W + k*512}")
    a("s_waitcnt lgkmcnt(0)")
    a("s_barrier")
    a(f"ds_read_b64 v[{VE}:{VTAG}], v14")
    a("s_waitcnt lgkmcnt(0)")
    a(f"v_readfirstlane_b32 s{S.T0}, v{VE}")
    a(f"s_andn2_b32 s{S.T0}, 2047, s{S.T0}")
    a(f"s_lshl_b32 s{S.T0}, s{S.T0}, 10")
    a(f"s_add_u32 s{S.T0}, s{S.T0}, s{S.L0}")
    a(f"s_load_dwordx16 s[{S.XS}:{S.XS+15}], {PXS}, s{S.T0}")
    stamp(5)
    if o.wdpos == 2:
        wd_dma()
    a(f"v_mov_b32 v29, v{VTAG}")
    a("s_waitcnt vmcnt(0)")
    for k in range(8):
        a(f"ds_read_b64_tr_b16 {V(WD_+2*k,2)}, v9 offset:{L_WD + k*512}")
    a("s_waitcnt lgkmcnt(0)")
    for i in range(16):
        a(f"v_dot2c_f32_bf16 v{16+(i&1)}, s{S.XS+i}, v{WG_+i}")
    stamp(6)
    a.nop(3)
    a("v_add_f32 v16, v16, v17")
    a("ds_write_b32 v12, v16")
    a("s_waitcnt lgkmcnt(0)")
    a("s_barrier")
    a(f"s_cmp_ge_u32 s{S.WAVE}, 4")
    a("s_cbranch_scc1 L_fend")
    a(f"s_lshl_b32 s{S.T0}, s{S.WAVE}, 4")
    a(f"s_lshl_b64 s[{S.EX}:{S.EX+1}], 0xffff, s{S.T0}")
    for i, (p, q) in enumerate(((0, 2), (4, 6), (1, 3), (5, 7))):
        a(f"ds_read2st64_b32 v[{16+2*i}:{17+2*i}], v11 offset0:{p} offset1:{q}")
    a("s_waitcnt lgkmcnt(2)")
    a("v_add_f32 v16, v16, v17")
    a("v_add_f32 v18, v18, v19")
    a("s_waitcnt lgkmcnt(0)")
    a("v_add_f32 v20, v20, v21")
    a("v_add_f32 v22, v22, v23")
    a("v_add_f32 v28, v16, v18")
    a(f"s_mov_b64 exec, s[{S.EX}:{S.EX+1}]")
    a("v_add_f32 v30, v20, v22")
    for c in range(o.xc):
        if c:
            a(f"s_add_u32 s{S.L1}, s{S.L1}, {XCHC}")
        a(f"buffer_store_dwordx4 v[28:31], v5, {R4(S.RWS)}, s{S.L1} offen sc1")
    a("s_mov_b64 exec, -1")
    stamp(7)
    if o.xack:
        a("s_waitcnt vmcnt(0)")
    if o.xsleep0:
        a(f"s_sleep {o.xsleep0}")
    stamp(8)
    a.label("L_fx")
    for i in range(2):
        a(f"buffer_load_dwordx4 {V(64+4*i,4)}, v15, {R4(S.RWS)}, s{S.PO} offen offset:{2048*i} sc1")
    a(f"s_add_u32 s{S.PO}, s{S.PO}, {XCHC}")
    a(f"s_min_u32 s{S.PO}, s{S.PO}, s{S.POL}")
    if o.stamps:
        a(f"s_add_u32 s{S.RC}, s{S.RC}, 1")
    spin()
    a("s_cbranch_scc1 L_fx_ok")
    a("s_waitcnt vmcnt(1)")
    a(f"v_bitop3_b32 v20, v65, v67, v{VTAG} bitop3:0x7e")
    a("s_waitcnt vmcnt(0)")
    a("v_add_f32 v16, v64, v68")
    a("v_add_f32 v18, v66, v70")
    a(f"v_bitop3_b32 v21, v69, v71, v{VTAG} bitop3:0x7e")
    a("v_or_b32 v20, v20, v21")
    a("v_cmp_ne_u32 vcc, 0, v20")
    a("v_permlane32_swap_b32 v16, v18")
    a("s_cbranch_vccnz L_fx")
    a.label("L_fx_ok")
    stamp(9)
    a("v_add_f32 v16, v16, v18")
    rnd(16, 16)
    a("v_mov_b32 v18, v16")
    sigmoid(17, 16)
    a("v_permlane32_swap_b32 v16, v18")
    a("v_mul_f32 v17, v17, v16")
    rnd(17, 17)
    a("v_mul_f32 v17, v17, v18")
    a.nop(2)
    a(f"v_mov_b32_dpp v18, v17 quad_perm:[1,0,3,2] {DPPM}")
    a("v_cvt_pk_bf16_f32 v17, v17, v18")
    a.nop(1)
    for i in range(16):
        a(f"v_readlane_b32 s{S.XS+i}, v17, {2*i}")
    for i in range(16):
        a(f"v_dot2c_f32_bf16 v{24+(i&1)}, s{S.XS+i}, v{WD_+i}")
    a.nop(3)
    a("v_add_f32 v30, v24, v25")
    for c in range(o.pc):
        if c:
            a(f"s_add_u32 s{S.T2}, s{S.T2}, {PARTC}")
        a(f"buffer_store_dwordx2 v[30:31], v13, {R4(S.RWS)}, s{S.T2} offen sc1")
    stamp(10)
    a.label("L_fend")
    endprog()

    a.label("L_fh")
    a("s_waitcnt lgkmcnt(0)")
    if o.fesleep:
        a(f"s_sleep {o.fesleep}")
    tag_load()
    ws_setup()
    poll_setup(WS_KEY, RF, CF)
    if o.fw0:
        a("s_barrier")
    if o.fsleep0:
        a(f"s_sleep {o.fsleep0}")
    a("s_waitcnt vmcnt(0)")
    tag_make()
    hold("fp")
    stamp(3)
    poll_granules(5, 20, sleep=o.fsleep)
    stamp(4)
    wave_max_key(20)
    lds_put(L_FKEY, 20, tag=True)
    a("s_barrier")
    endprog()
    a.label("L_end")
    a("s_endpgm")
    return name


def main():
    ap = argparse.ArgumentParser()
    ap.add_argument("-o", required=True)
    for k, d in dict(stamps=0, pc=2, xc=2, zsleep=8, zsleep0=0, psleep=0, psleep0=0, rsleep=0, ackwait=0, hipre=0, tlate=1,
                     mode=0, k2ack=1, k2sleep0=0, zk2sleep0=0, k2sleep=0, fbar=0, cpf=0, ztouch=0, zstep=64, touch=0, wdpos=1, wpf=1, fesleep=16, fw0=1, xack=1, fdelay=0, xsleep0=0, fsleep0=0, fsleep=0, spin=17).items():
        ap.add_argument("--" + k, type=int, default=d)
    for k in ("wpol", "outpol", "only"):
        ap.add_argument("--" + k, default="")
    ap.add_argument("--mf", default="8,3")
    ap.add_argument("--mz", default="1,6")
    ap.add_argument("--m2", default="8,2")
    ap.add_argument("--hold", default="")
    o = ap.parse_args()
    if o.hold:
        o.hold = o.hold.split(":")
    for k in ("mf", "mz", "m2"):
        setattr(o, k, [int(v) for v in getattr(o, k).split(",")])
    for k in ("wpol", "outpol"):
        setattr(o, k, (" " + getattr(o, k)) if getattr(o, k) else "")
    a = Asm()
    name = gen(a, o)
    if o.touch:
        insert_stubs(a, [("L_ta_start", "L_ta_end", "L_ta", "L_taback", 9)], step=o.touch)
    if o.ztouch:
        insert_stubs(a, [("L_tz_start", "L_zend", "L_tz", "L_tzback", o.ztouch)], step=o.zstep)
    finish(a, name, NVGPR, 102, NWG, 576, LDS_BYTES, o.o)


main()
```

```python
import argparse
from lib import *

NA, NF, NZ = 128, 112, 16
NWG = NA + NF + NZ
WS_E = 0
WS_ALIVE = 4096
WS_KEY = 64 << 10
WS_KEY2 = 128 << 10
WS_XCH = 192 << 10
XCHC = 28 * 4096
WS_PART = 704 << 10
PZ = 56 * 256
PARTC = NZ * PZ
WS_INT = 2 << 20
CS = 32768 + 256
WS_STAMP = 8 << 20
WS_BYTES = 16 << 20
L_TILE = 0
L_U2 = 16384
L_CT = L_U2
UB = 17 * 64
L_MISC = L_U2 + 16 * UB
L_KSL = L_MISC
L_GKEY = L_MISC + 64
L_ZF = L_MISC + 72
L_EXP = L_MISC + 128
L_DUMP = L_MISC + 192
L_XG2 = L_DUMP + 4 * UB + 256
L_M2 = L_XG2 + 4096
L_WV = L_M2 + 4096
L_XT = L_WV + 2048
L_W = 0
L_WD = 32768
L_RED = L_WD + 16384
L_FKEY = L_RED + 2048
LDS_BYTES = 84 * 1024
MF = "v_mfma_f32_16x16x32_bf16"
LOG2E = 0x3fb8aa3b
DPPM = "row_mask:0xf bank_mask:0xf"
HIM = "0xffff0000"
NVGPR = 168


class S:
    WAVE = 3
    PX = 4
    T0, T1, T2, T3, T4, T5 = 6, 7, 8, 9, 10, 11
    EX = 12
    EY = 14
    PWR, PWG, PWU, PWD, PGW, POUT, PDBG, PWS = 16, 18, 20, 22, 24, 26, 28, 30
    L0, L1, SPT, PIE = 32, 33, 34, 35
    RWS, ROUT = 36, 40
    XS = 44
    GKEY, WSEL, WHICH, Z = 44, 45, 46, 47
    SI0, SI1, ID8, BLK = 48, 49, 50, 51
    IDX, ISZ, TC = 54, 55, 53
    SO = 44
    T1C, HH, TD, TM = 56, 57, 58, 59
    FJ, PO, POL, RC, KM, SPIN = 60, 61, 62, 63, 64, 65
    ST = 68


def gen(a, o):
    name = NAME + "_kernel"
    kernel_head(a, name)
    VE, VTAG = 30, 31
    PXS = f"s[{S.PX}:{S.PX+1}]"

    def stamp(i):
        if o.stamps:
            a(f"s_memrealtime s[{S.ST+2*i}:{S.ST+2*i+1}]")

    def hold(cp):
        if o.hold and o.hold[0] == cp:
            l = a.L("hold")
            a.label(l)
            a("s_sleep 1")
            a("s_memrealtime s[100:101]")
            a("s_waitcnt lgkmcnt(0)")
            a("s_sub_u32 s100, s100, s66")
            a(f"s_cmp_lt_u32 s100, {o.hold[1]}")
            a(f"s_cbranch_scc1 {l}")

    def touch(pre, n, first, step, back=None, tail=None):
        a("s_mov_b64 exec, 0")
        a(f"s_sub_u32 s{S.TC}, s{S.WAVE}, {first + step}")
        a.label(f"{pre}back")
        a(f"s_add_u32 s{S.TC}, s{S.TC}, {step}")
        for k in range(n):
            a(f"s_cmp_eq_u32 s{S.TC}, {k}")
            a(f"s_cbranch_scc1 {pre}{k}")
        a("s_mov_b64 exec, -1")

    def endprog():
        if o.stamps:
            a("s_waitcnt lgkmcnt(0)")
            a(f"s_add_u32 s{S.ST+28}, s{S.RC}, s{S.ST+30}")
            for i in range(16):
                a(f"v_writelane_b32 v166, s{S.ST+2*i}, {i}")
            a("s_mov_b64 exec, 0xffff")
            a(f"s_lshl4_add_u32 s{S.T0}, s2, s{S.WAVE}")
            a(f"s_lshl_b32 s{S.T0}, s{S.T0}, 7")
            a(f"s_add_u32 s{S.T0}, s{S.T0}, {WS_STAMP}")
            a(f"v_lshl_add_u32 v165, v0, 3, s{S.T0}")
            a("v_mov_b32 v167, 0")
            a(f"global_store_dwordx2 v165, v[166:167], s[{S.PWS}:{S.PWS+1}]")
        a("s_endpgm")

    def spin():
        a(f"s_add_u32 s{S.SPIN}, s{S.SPIN}, 1")
        a(f"s_lshr_b32 s{S.SPT}, s{S.SPIN}, {o.spin}")

    def poll_setup(base, R, C):
        a(f"s_and_b32 s{S.PO}, s2, {R-1}")
        a(f"s_mul_i32 s{S.PO}, s{S.PO}, {1024*C}")
        a(f"s_add_u32 s{S.PO}, s{S.PO}, {base}")
        a(f"s_add_u32 s{S.POL}, s{S.PO}, {1024*(C-1)}")

    def set_exec(n):
        if n >= 64:
            a("s_mov_b64 exec, -1")
        elif n <= 31:
            a(f"s_mov_b64 exec, {(1 << n) - 1:#x}")
        else:
            a("s_mov_b32 exec_lo, -1")
            a(f"s_mov_b32 exec_hi, {(1 << (n - 32)) - 1:#x}")

    RF, CF = o.mf
    RZ, CZ = o.mz
    R2, C2 = o.m2
    assert RF * CF + RZ * CZ + R2 * C2 <= 64

    def poll_granules(vaddr, vd, sleep=0, step=1024):
        l = a.L("poll")
        if sleep:
            a(f"s_branch {l}_1")
        a.label(l)
        if sleep:
            a(f"s_sleep {sleep}")
            a.label(f"{l}_1")
        a(f"buffer_load_dwordx4 {V(vd,4)}, v{vaddr}, {R4(S.RWS)}, s{S.PO} offen sc1")
        a(f"s_add_u32 s{S.PO}, s{S.PO}, {step}")
        a(f"s_min_u32 s{S.PO}, s{S.PO}, s{S.POL}")
        if o.stamps:
            a(f"s_add_u32 s{S.RC}, s{S.RC}, 1")
        spin()
        a("s_waitcnt vmcnt(0)")
        a(f"s_cbranch_scc1 {l}_ok")
        a(f"v_cmp_ne_u32 vcc, v{VTAG}, v{vd+1}")
        a(f"v_cmp_ne_u32 s[{S.EX}:{S.EX+1}], v{VTAG}, v{vd+3}")
        a(f"s_or_b64 vcc, vcc, s[{S.EX}:{S.EX+1}]")
        a(f"s_cbranch_vccnz {l}")
        a.label(f"{l}_ok")

    def wave_max_key(vd):
        a(f"v_max_u32 v{vd}, v{vd}, v{vd+2}")
        for r in (8, 4, 2, 1):
            a.nop(2)
            a(f"v_max_u32_dpp v{vd}, v{vd}, v{vd} row_ror:{r} {DPPM}")
        a(f"v_mov_b32 v{vd+1}, v{vd}")
        a.nop(2)
        a(f"v_permlane16_swap_b32 v{vd}, v{vd+1}")
        a(f"v_max_u32 v{vd}, v{vd}, v{vd+1}")
        a(f"v_mov_b32 v{vd+1}, v{vd}")
        a.nop(2)
        a(f"v_permlane32_swap_b32 v{vd}, v{vd+1}")
        a(f"v_max_u32 v{vd}, v{vd}, v{vd+1}")

    def lds_put(addr, v, tag=False):
        a(f"v_mov_b32 v9, {addr}")
        a("s_mov_b64 exec, 1")
        if tag:
            a(f"ds_write2_b32 v9, v{v}, v{VTAG} offset1:1")
        else:
            a(f"ds_write_b32 v9, v{v}")
        a("s_mov_b64 exec, -1")
        a("s_waitcnt lgkmcnt(0)")

    def sigmoid(d, s):
        a(f"v_mul_f32 v{d}, {LOG2E | 0x80000000:#x}, v{s}")
        a(f"v_exp_f32 v{d}, v{d}")
        a.nop(1)
        a(f"v_add_f32 v{d}, 1.0, v{d}")
        a(f"v_rcp_f32 v{d}, v{d}")
        a.nop(1)

    def rnd(d, s):
        a(f"v_cvt_pk_bf16_f32 v{d}, v{s}, v{s}")
        a(f"v_and_b32 v{d}, {HIM}, v{d}")

    def ws_setup():
        a.srd(S.RWS, S.PWS, WS_BYTES)
        a(f"s_mov_b32 s{S.SPIN}, 0")

    def tag_load():
        a(f"v_mov_b32 v{VTAG}, 0")
        a(f"global_load_dword v{VE}, v{VTAG}, s[{S.PWS}:{S.PWS+1}]")
        a(f"s_mov_b32 s{S.KM}, 0x9E3779B1")

    def tag_make():
        a(f"v_mul_lo_u32 v{VTAG}, v{VE}, s{S.KM}")
        a(f"v_add_u32 v{VTAG}, 0x7F4A7C15, v{VTAG}")

    a(f"s_load_dwordx2 s[{S.PX}:{S.PX+1}], s[0:1], {KA_X}")
    a(f"s_load_dwordx16 s[16:31], s[0:1], {KA_WR}")
    if o.stamps:
        for i in range(1, 16):
            a(f"s_mov_b32 s{S.ST+2*i}, 0")
        a(f"s_mov_b32 s{S.RC}, 0")
    stamp(0)
    if o.hold:
        a("s_memrealtime s[66:67]")
    a("v_lshrrev_b32 v1, 6, v0")
    a("v_and_b32 v0, 63, v0")
    a(f"v_readfirstlane_b32 s{S.WAVE}, v1")
    a("v_and_b32 v1, 15, v0")
    a("v_lshrrev_b32 v2, 4, v0")
    a(f"s_and_b32 s{S.T0}, s2, 7")
    a(f"s_sub_u32 s{S.WAVE}, s{S.WAVE}, 1")
    a(f"s_min_u32 s{S.WAVE}, s{S.WAVE}, 8")
    a(f"s_lshr_b32 s{S.T1}, s2, 3")
    a(f"s_cmp_ge_u32 s2, {NA}")
    a("s_cbranch_scc1 L_notA")
    if o.only == "F":
        a("s_endpgm")

    VROW, VG16, VSGN, VTR, VST = 3, 5, 8, 10, 11
    VLD, VUW, VUX, VUR0, VUR1 = 10, 11, 28, 29, 30
    XR, WR, GW, CO = 16, 24, 24, 24
    CM, AOP, ACC = 32, 96, 112
    LD, DA0, DA1, TP, X16, PK = 32, 64, 32, 80, 96, 48
    M1, GA, XG = 100, 148, 152
    Cc, Ss = 64, 68
    UO, PQ, M2 = 32, 48, 64

    def rows_setup(wreg):
        a(f"s_lshl3_add_u32 s{S.T5}, s{S.HH}, s{wreg}")
        a(f"s_lshl_b32 s{S.T5}, s{S.T5}, 7")
        a(f"s_add_u32 s{S.TD}, s{S.T5}, s{S.T1C}")
        a(f"s_sub_u32 s{S.TM}, 2048, s{S.TD}")
        a(f"s_cmp_eq_u32 s{S.TD}, 0")
        a(f"s_cselect_b32 s{S.TM}, 1024, s{S.TM}")
        a(f"s_lshl_b32 s{S.T4}, s{S.TD}, 10")
        a(f"s_lshl_b32 s{S.T5}, s{S.TM}, 10")
        a(f"v_add_u32 v6, s{S.T4}, v{VG16}")
        a(f"v_add_u32 v7, s{S.T5}, v{VG16}")

    def vrow_setup():
        a("v_and_b32 v6, 1, v2")
        a("v_lshlrev_b32 v6, 5, v6")
        a("v_lshl_add_u32 v6, v1, 6, v6")
        a("v_lshrrev_b32 v7, 1, v2")
        a(f"v_lshl_add_u32 v{VROW}, v7, 4, v6")

    def rows_load():
        a(f"global_load_dwordx4 {V(XR,4)}, v6, {PXS}")
        a(f"global_load_dwordx4 {V(XR+4,4)}, v7, {PXS}")

    def sgn_setup():
        a(f"v_lshlrev_b32 v{VSGN}, 31, v1")
        a(f"v_lshrrev_b32 v9, 16, v{VSGN}")
        a(f"v_or_b32 v{VSGN}, v{VSGN}, v9")

    def sgn_setup2():
        a(f"v_lshlrev_b32 v{VSGN}, 31, v1")
        a(f"v_lshrrev_b32 v14, 16, v{VSGN}")
        a(f"v_or_b32 v{VSGN}, v{VSGN}, v14")

    def tile_ids():
        a(f"s_bitcmp1_b32 s{S.T1}, 3")
        a(f"s_cselect_b32 s{S.T2}, s{S.T3}, s{S.T2}")
        a(f"s_and_b32 s{S.T3}, s{S.T1}, 7")
        a(f"s_lshl3_add_u32 s{S.BLK}, s{S.T2}, s{S.T3}")
        a(f"s_lshl_b32 s{S.PIE}, s{S.T2}, 5")
        a(f"s_add_u32 s{S.PIE}, s{S.PIE}, s{S.T3}")
        a(f"s_lshl_b32 s{S.PIE}, s{S.PIE}, 6")

    def vst_setup():
        a(f"v_mul_u32_u24 v{VST}, {CS}, v1")
        a(f"v_lshl_add_u32 v{VST}, v2, 4, v{VST}")

    def const_d2():
        R = 40
        a("v_lshlrev_b32 v6, 2, v2")
        a("v_cvt_f32_u32 v7, v1")
        a("v_cvt_f32_u32 v6, v6")
        a("v_mul_f32 v7, 0x3d800000, v7")
        for hf in range(2):
            if hf:
                a("v_add_f32 v7, 0x3d800000, v7")
            a("v_mul_f32 v9, v6, v7")
            for jj in range(4):
                a(f"v_cos_f32 v{Cc+jj}, v9")
                a(f"v_sin_f32 v{Ss+jj}, v9")
                if jj < 3:
                    a("v_add_f32 v9, v9, v7")
            a.nop(1)
            for jj in range(4):
                if hf == 0:
                    a(f"v_cvt_pk_bf16_f32 v{R+jj}, v{Cc+jj}, v{Ss+jj}")
                    a(f"v_cvt_pk_bf16_f32 v{R+8+jj}, -v{Ss+jj}, v{Cc+jj}")
                else:
                    a(f"v_cvt_pk_bf16_f32 v{R+4+jj}, v{Cc+jj}, -v{Ss+jj}")
                    a(f"v_cvt_pk_bf16_f32 v{R+12+jj}, -v{Ss+jj}, -v{Cc+jj}")
        for k in range(4):
            a(f"ds_write_b128 v{VG16}, {V(R+4*k,4)} offset:{L_M2 + 1024*k}")

    if o.touch:
        a("s_mov_b64 exec, 0")
        for k in range(9):
            a(f"s_cmp_eq_u32 s{S.WAVE}, {(k + 8) % 9}")
            a(f"s_cbranch_scc1 L_ta{k}")
        a.label("L_taback")
        a("s_mov_b64 exec, -1")
        a.label("L_ta_start")
    a(f"s_add_u32 s{S.T2}, s{S.T0}, 1")
    a(f"s_sub_u32 s{S.T3}, 15, s{S.T0}")
    a(f"s_cmp_eq_u32 s{S.WAVE}, 8")
    a("s_cbranch_scc1 L_ah")
    a(f"s_and_b32 s{S.HH}, s{S.T1}, 1")
    a(f"s_bitcmp1_b32 s{S.T1}, 1")
    a(f"s_cselect_b32 s{S.T4}, s{S.T3}, s{S.T2}")
    a(f"s_lshr_b32 s{S.T5}, s{S.T1}, 2")
    a(f"s_lshl4_add_u32 s{S.T1C}, s{S.T5}, s{S.T4}")
    a(f"v_lshlrev_b32 v{VG16}, 4, v0")
    a(f"v_mov_b32 v{VROW}, 0")
    a(f"s_cmp_lg_u32 s{S.T0}, 7")
    a("s_cbranch_scc1 L_k7")
    a(f"s_lshr_b32 s{S.T5}, s{S.T1}, 1")
    a(f"s_lshl3_add_u32 s{S.T1C}, s{S.T5}, 8")
    a(f"s_mov_b32 s{S.T2}, 0")
    a(f"s_cmp_eq_u32 s2, 127")
    a(f"s_cselect_b32 s{S.T1C}, 0, s{S.T1C}")
    a(f"s_cselect_b32 s{S.HH}, 0, s{S.HH}")
    a.label("L_k7")
    rows_setup(S.WAVE)
    a("s_waitcnt lgkmcnt(0)")
    rows_load()
    stamp(1)
    tile_ids()

    def tile_dma():
        a(f"s_lshl_b32 s{S.T4}, s{S.WAVE}, 11")
        a(f"s_add_u32 s{S.T5}, s{S.T4}, s{S.BLK}")
        a(f"s_lshl_b32 s{S.T5}, s{S.T5}, 7")
        a(f"s_mov_b32 m0, s{S.T4}")
        a("v_and_b32 v9, 7, v0")
        a("v_bfe_u32 v13, v0, 4, 1")
        a("v_xor_b32 v9, v9, v13")
        a("v_lshrrev_b32 v13, 3, v0")
        a(f"v_lshl_add_u32 v9, v9, 4, s{S.T5}")
        a("v_lshl_add_u32 v13, v13, 14, v9")
        a(f"global_load_lds_dwordx4 v13, {PXS}")
        a(f"s_add_u32 m0, s{S.T4}, 1024")
        a("v_add_u32 v13, 0x20000, v13")
        a(f"global_load_lds_dwordx4 v13, {PXS}")
        stamp(2)

    if not o.tlate:
        tile_dma()
    C1, S1, K = AOP, AOP + 4, AOP + 8
    a(f"s_lshr_b32 s{S.T0}, s{S.WAVE}, 2")
    a(f"s_and_b32 s{S.T1}, s{S.WAVE}, 1")
    a(f"s_bfe_u32 s{S.T2}, s{S.WAVE}, 0x10001")
    a(f"v_lshl_add_u32 v6, s{S.T0}, 4, v1")
    a(f"s_lshl3_add_u32 s{S.T3}, s{S.T2}, s{S.T1}")
    a(f"s_lshl_b32 s{S.T3}, s{S.T3}, 2")
    a("v_cvt_f32_u32 v6, v6")
    a(f"v_lshl_add_u32 v7, v2, 3, s{S.T3}")
    a("v_mul_f32 v6, 0x3c000000, v6")
    a("v_cvt_f32_u32 v7, v7")
    a("v_mul_f32 v7, v7, v6")
    for j in range(4):
        a(f"v_cos_f32 v{C1+j}, v7")
        a(f"v_sin_f32 v{S1+j}, v7")
        if j < 3:
            a("v_add_f32 v7, v7, v6")
    if o.tlate == 2:
        a(f"global_load_dwordx4 {V(WR,4)}, v{VG16}, s[{S.PWR}:{S.PWR+1}]")
        tile_dma()
    a(f"s_lshl_b32 s{S.T4}, s{S.T0}, 13")
    a(f"s_lshl_b32 s{S.T5}, s{S.T2}, 10")
    a(f"s_lshl3_add_u32 s{S.T5}, s{S.T1}, s{S.T5}")
    a(f"v_add_u32 v15, s{S.T4}, v{VG16}")
    a(f"v_add_u32 v9, s{S.T5}, v15")
    a(f"v_cvt_pk_bf16_f32 v{K+0}, v{C1}, v{C1+1}")
    a(f"v_cvt_pk_bf16_f32 v{K+1}, v{C1+2}, v{C1+3}")
    a(f"v_cvt_pk_bf16_f32 v{K+2}, -v{S1}, -v{S1+1}")
    a(f"v_cvt_pk_bf16_f32 v{K+3}, -v{S1+2}, -v{S1+3}")
    a("v_cmp_eq_f32 vcc, 0, v6")
    a(f"v_cvt_pk_bf16_f32 v{K+4}, v{C1}, -v{S1+1}")
    a(f"v_cvt_pk_bf16_f32 v{K+5}, -v{C1+2}, v{S1+3}")
    a(f"v_cvt_pk_bf16_f32 v{K+6}, -v{S1}, -v{C1+1}")
    a(f"v_cvt_pk_bf16_f32 v{K+7}, v{S1+2}, v{C1+3}")
    a(f"ds_write_b64 v9, {V(K,2)} offset:{L_CT}")
    a(f"ds_write_b64 v9, {V(K+4,2)} offset:{L_CT+4096}")
    a(f"ds_write_b64 v9, {V(K+6,2)} offset:{L_CT+6144}")
    a("s_mov_b64 exec, vcc")
    a(f"v_mov_b32 v{K+2}, 0xbf803f80")
    a(f"v_mov_b32 v{K+3}, 0xbf803f80")
    a("s_mov_b64 exec, -1")
    a(f"ds_write_b64 v9, {V(K+2,2)} offset:{L_CT+2048}")
    if o.tlate != 2:
        a(f"global_load_dwordx4 {V(WR,4)}, v{VG16}, s[{S.PWR}:{S.PWR+1}]")
    if o.tlate == 1:
        tile_dma()
    a("v_mov_b32 v12, 0")
    a("v_mov_b32 v13, 0")
    stamp(3)

    def dots(w, fill=()):
        fill = list(fill)

        def pad(n):
            while n and fill:
                a(fill.pop(0))
                n -= 1
            a.nop(n)

        for i in range(4):
            a(f"v_dot2c_f32_bf16 v12, v{XR+i}, v{w+i}")
            a(f"v_dot2c_f32_bf16 v13, v{XR+4+i}, v{w+i}")
        pad(3)
        a("v_permlane32_swap_b32 v12, v13")
        a("v_add_f32 v12, v12, v13")
        a("v_mov_b32 v13, v12")
        pad(2)
        a("v_permlane16_swap_b32 v12, v13")
        a("v_add_f32 v12, v12, v13")
        for r in (8, 4, 2, 1):
            pad(2)
            a(f"v_add_f32_dpp v12, v12, v12 row_ror:{r} {DPPM}")
        rnd(12, 12)
        for x in fill:
            a(x)

    a(f"s_waitcnt vmcnt({2 if o.tlate else 0})")
    stamp(4)
    dots(WR, [f"s_sub_u32 s{S.T4}, 0xffff, s{S.TD}", f"s_sub_u32 s{S.T5}, 0xffff, s{S.TM}", f"v_mov_b32 v4, s{S.T4}",
              f"v_writelane_b32 v4, s{S.T5}, 32", f"s_lshl3_add_u32 s{S.T4}, s{S.WAVE}, {L_KSL}",
              "v_lshrrev_b32 v9, 3, v0", f"v_add_u32 v9, s{S.T4}, v9",
              "v_bfe_u32 v6, v0, 2, 2", "v_and_b32 v14, 3, v0", f"v_lshl_add_u32 v14, v14, 1, s{S.T2}",
              f"v_lshl_add_u32 v{VTR}, v2, 3, v6", "v_lshrrev_b32 v6, 1, v6", "v_xor_b32 v14, v14, v6"])
    a("v_ashrrev_i32 v7, 31, v12")
    a("v_or_b32 v7, 0x80000000, v7")
    a("v_xor_b32 v7, v7, v12")
    a(f"v_and_b32 v7, {HIM}, v7")
    a("v_or_b32 v7, v7, v4")
    a("s_mov_b32 exec_lo, 1")
    a("s_mov_b32 exec_hi, 1")
    a("ds_write_b32 v9, v7")
    a("s_mov_b64 exec, -1")
    a(f"s_lshl_b32 s{S.T1}, s{S.T1}, 3")
    a(f"v_lshl_add_u32 v14, v14, 4, s{S.T1}")
    a(f"v_lshl_add_u32 v{VTR}, v{VTR}, 7, v14")
    a("v_lshlrev_b32 v9, 4, v2")
    a("s_waitcnt vmcnt(0) lgkmcnt(0)")
    hold("B1")
    a("s_barrier")
    stamp(5)
    a(f"ds_read_b128 v[28:31], v9 offset:{L_EXP}")
    for k in range(4):
        for h in range(2):
            a(f"ds_read_b64_tr_b16 {V(AOP+4*k+2*h,2)}, v{VTR} offset:{L_TILE + k*4096 + h*512}")
        if k < 2:
            for t in range(4):
                a(f"ds_read_b128 {V(CM+16*t+4*k,4)}, v15 offset:{L_CT + t*2048 + k*1024}")
        if k == 1:
            a("s_waitcnt lgkmcnt(9)")
    sgn_setup2()
    a(f"global_load_dwordx4 {V(GW,4)}, v{VG16}, s[{S.PGW}:{S.PGW+1}]")
    xors = [f"v_xor_b32 v{CM+t*16+8+4*kp+r}, v{CM+t*16+4*kp+r}, v{VSGN}" for kp in range(2) for t in range(4) for r in range(4)]
    misc = [f"s_mul_i32 s{S.SO}, s{S.T0}, {16*CS}",
            f"s_add_u32 s{S.SO}, s{S.SO}, s{S.PIE}",
            f"s_and_b32 s{S.T4}, s{S.WAVE}, 3",
            f"s_lshl_b32 s{S.T4}, s{S.T4}, 9",
            f"s_add_u32 s{S.SO}, s{S.SO}, s{S.T4}",
            f"s_add_u32 s{S.SO}, s{S.SO}, {WS_INT}",
            f"s_mov_b32 s{S.RWS}, s{S.PWS}", f"s_mov_b32 s{S.RWS+1}, s{S.PWS+1}", f"s_mov_b32 s{S.RWS+2}, {WS_BYTES:#x}",
            f"s_mov_b32 s{S.RWS+3}, 0x20000",
            f"s_add_u32 s{S.SO+1}, s{S.SO}, {32*CS}", f"s_mov_b32 s{S.T5}, 0xfffefffe",
            f"v_mul_u32_u24 v{VST}, {CS}, v1", f"v_lshl_add_u32 v{VST}, v2, 4, v{VST}",
            ]
    fill = xors + misc
    for k in range(4):
        for t in range(4):
            if k == 0:
                a(f"s_waitcnt lgkmcnt({13-t})")
            elif k == 1:
                a(f"s_waitcnt lgkmcnt({7-t})")
            elif t == 0:
                a(f"s_waitcnt lgkmcnt({2 if k == 2 else 0})")
            c = "0" if k == 0 else V(ACC + 4 * t, 4)
            a(f"{MF} {V(ACC+4*t,4)}, {V(AOP+4*k,4)}, {V(CM+16*t+4*k,4)}, {c}")
            n = 4 if k < 2 else 2
            if k < 3 or t < 3:
                for _ in range(n):
                    if fill:
                        x = fill.pop(0)
                        if x != "TAGWAIT":
                            a(x)
    for x in fill:
        a(x)
    a("v_mov_b32 v12, 0")
    a("v_mov_b32 v13, 0")
    for h in range(2):
        for i in range(4):
            a(f"v_cvt_pk_bf16_f32 v{AOP+4*h+i}, v{ACC+8*h+i}, v{ACC+8*h+4+i}")
        for i in range(4):
            a(f"v_and_or_b32 v{AOP+4*h+i}, v{AOP+4*h+i}, s{S.T5}, v{28+i}")
        a(f"buffer_store_dwordx4 {V(AOP+4*h,4)}, v{VST}, {R4(S.RWS)}, s{S.SO+h} offen sc1")
    a(f"s_mov_b32 s{S.SPIN}, 0")
    a(f"s_mov_b32 s{S.ISZ}, 0")
    stamp(7)
    a.label("L_ta_end")

    gwait = [2]

    def gates(full):
        if full:
            a(f"s_waitcnt vmcnt({gwait[0]})")
        dots(GW)
        if full:
            a(f"s_lshl_b32 s{S.T0}, s{S.WAVE}, 11")
            a(f"v_add_u32 v6, s{S.T0}, v{VG16}")
            a(f"ds_write_b128 v6, {V(XR,4)} offset:{L_XT}")
            a(f"ds_write_b128 v6, {V(XR+4,4)} offset:{L_XT+1024}")
            a(f"v_lshl_add_u32 v7, v1, 6, s{S.T0}")
            a("v_lshl_add_u32 v7, v2, 3, v7")
            a("s_waitcnt lgkmcnt(0)")
            for r in range(2):
                a(f"ds_read2_b64 {V(XR+4*r,4)}, v7 offset0:{0} offset1:{4}" if False else f"ds_read_b64 {V(XR+4*r,2)}, v7 offset:{L_XT+1024*r}")
                a(f"ds_read_b64 {V(XR+4*r+2,2)}, v7 offset:{L_XT+1024*r+32}")
            vrow_setup()
        sigmoid(13, 12)
        rnd(13, 13)
        a("v_sub_f32 v14, 1.0, v13")
        rnd(14, 14)
        a(f"v_readlane_b32 s{S.T0}, v13, 0")
        a(f"v_readlane_b32 s{S.T1}, v13, 32")
        a(f"v_readlane_b32 s{S.T2}, v14, 0")
        a(f"v_readlane_b32 s{S.T3}, v14, 32")
        a(f"s_xor_b32 s{S.T4}, s{S.T0}, 0x80000000")
        a(f"s_cmp_eq_u32 s{S.TD}, 0")
        a(f"s_cselect_b32 s{S.T4}, 0, s{S.T4}")
        a(f"s_cselect_b32 s{S.T5}, 0, s{S.T1}")
        if not full:
            return
        a(f"v_mov_b32 v{CO}, s{S.T0}")
        a(f"v_mov_b32 v{CO+1}, s{S.T4}")
        a(f"v_mov_b32 v{CO+2}, s{S.T5}")
        a(f"v_mov_b32 v{CO+3}, s{S.T1}")
        a(f"v_mov_b32 v13, s{S.T2}")
        a(f"v_mov_b32 v14, s{S.T3}")
        a("s_waitcnt lgkmcnt(0)")
        for r in range(2):
            for i in range(4):
                a(f"v_lshlrev_b32 v{XG+8*r+2*i}, 16, v{XR+4*r+i}")
                a(f"v_and_b32 v{XG+8*r+2*i+1}, {HIM}, v{XR+4*r+i}")
            for i in range(8):
                a(f"v_mul_f32 v{XG+8*r+i}, v{13+r}, v{XG+8*r+i}")

    def addr_ur(wreg):
        a(f"s_mul_i32 s{S.T1}, s{wreg}, {2*UB}")
        a("v_bfe_u32 v7, v1, 1, 2")
        a("v_xor_b32 v7, v7, v2")
        a(f"v_lshl_add_u32 v7, v7, 4, s{S.T1}")
        a(f"v_lshl_add_u32 v{VUR0}, v1, 6, v7")
        a("v_sub_u32 v6, 16, v1")
        a("v_bfe_u32 v7, v6, 1, 2")
        a("v_xor_b32 v7, v7, v2")
        a(f"v_lshl_add_u32 v7, v7, 4, s{S.T1}")
        a(f"v_lshl_add_u32 v{VUR1}, v6, 6, v7")

    def addr_p2():
        a("v_lshlrev_b32 v6, 4, v1")
        a(f"v_lshl_add_u32 v{VLD}, v2, 13, v6")
        a(f"v_mul_u32_u24 v6, {4*UB}, v2")
        a("v_bfe_u32 v7, v1, 1, 2")
        a(f"v_xor_b32 v7, s{S.WAVE}, v7")
        a("v_lshl_add_u32 v7, v7, 4, v6")
        a(f"v_lshl_add_u32 v{VUW}, v1, 6, v7")
        a(f"s_lshl4_add_u32 s{S.T1}, s{S.WAVE}, 1024")
        a(f"v_mov_b32 v9, {L_DUMP - L_U2}")
        a(f"v_lshl_add_u32 v{VUX}, v0, 1, v9")
        a(f"v_lshl_add_u32 v7, v1, 1, s{S.T1}")
        a("s_mov_b32 exec_lo, 0x00ff00ff")
        a("s_mov_b32 exec_hi, 0x00ff00ff")
        a(f"v_add_u32 v{VUX}, v7, v6")
        a("s_mov_b64 exec, -1")

    EXP = 96

    def exp_setup():
        a("v_and_b32 v6, 3, v1")
        a("v_lshlrev_b32 v6, 4, v6")
        a(f"ds_read_b128 {V(EXP,4)}, v6 offset:{L_EXP}")
        a("s_waitcnt lgkmcnt(0)")

    def exp_make():
        a("v_lshlrev_b32 v6, 1, v1")
        a(f"v_lshrrev_b32 v6, v6, v{VTAG}")
        a("v_lshlrev_b32 v7, 15, v6")
        a("v_and_b32 v6, 1, v6")
        a("v_and_b32 v7, 0x10000, v7")
        a("v_or_b32 v6, v6, v7")
        a("v_lshlrev_b32 v7, 2, v1")
        a(f"ds_write_b32 v7, v6 offset:{L_EXP}")
        a("s_waitcnt lgkmcnt(0)")

    def const_d1():
        a("v_cvt_f32_u32 v6, v1")
        a(f"s_lshl_b32 s{S.T0}, s{S.WAVE}, 2")
        a(f"v_lshl_add_u32 v7, v2, 6, s{S.T0}")
        a("v_mul_f32 v6, 0x3b000000, v6")
        a("v_cvt_f32_u32 v7, v7")
        a("v_mul_f32 v15, 0x41800000, v6")
        a("v_mul_f32 v7, v7, v6")
        for ib in range(4):
            if ib:
                a("v_add_f32 v7, v7, v6")
            for j in range(4):
                src = "v7" if j == 0 else "v9"
                a(f"v_cos_f32 v{Cc+j}, {src}")
                a(f"v_sin_f32 v{Ss+j}, {src}")
                if j < 3:
                    a(f"v_add_f32 v9, {src}, v15")
            b = M1 + 12 * ib
            a(f"v_mov_b32 v{b+8}, 0")
            for p in range(2):
                a(f"v_cvt_pk_bf16_f32 v{b+p}, v{Cc+2*p}, v{Cc+2*p+1}")
                a(f"v_cvt_pk_bf16_f32 v{b+4+p}, -v{Ss+2*p}, -v{Ss+2*p+1}")
            for p in range(2):
                a(f"v_xor_b32 v{b+2+p}, v{b+p}, v{VSGN}")
                a(f"v_xor_b32 v{b+6+p}, v{b+4+p}, v{VSGN}")
        a("v_lshrrev_b32 v6, 1, v1")
        a(f"v_add_u32 v7, s{S.T0}, v6")
        a("v_and_b32 v9, 1, v1")
        a("v_lshl_add_u32 v7, v9, 3, v7")
        a("v_cvt_f32_u32 v7, v7")
        a("v_mul_f32 v7, 0x3d000000, v7")
        a("v_cos_f32 v7, v7")
        for ib in range(4):
            m = 0x00030003 << (2 * ib)
            a(f"s_mov_b32 exec_lo, {m:#x}")
            a(f"s_mov_b32 exec_hi, {m:#x}")
            a(f"v_cvt_pk_bf16_f32 v{M1+12*ib+8}, v7, -v7")
        a("s_mov_b64 exec, -1")
        for ib in range(4):
            for p in range(1, 4):
                a(f"v_mov_b32 v{M1+12*ib+8+p}, v{M1+12*ib+8}")

    def const_ga():
        a("v_lshrrev_b32 v6, 1, v1")
        a(f"s_lshl_b32 s{S.T0}, s{S.HH}, 10")
        a(f"s_add_u32 s{S.T0}, s{S.T0}, s{S.T1C}")
        a(f"v_lshl_add_u32 v6, v6, 7, s{S.T0}")
        a("v_and_b32 v7, 1, v1")
        a("v_lshlrev_b32 v9, 9, v7")
        l0, ld = a.L("g0"), a.L("gd")
        a(f"s_cmp_lg_u32 s{S.T1C}, 0")
        a(f"s_cbranch_scc1 {l0}")
        a("s_mov_b32 exec_lo, 0x00020002")
        a("s_mov_b32 exec_hi, 0x00020002")
        a("v_mov_b32 v6, 0x400")
        a("v_mov_b32 v9, 0")
        a("s_mov_b64 exec, -1")
        a.label(l0)
        a("v_lshlrev_b32 v7, 2, v2")
        a("v_mad_u32_u24 v9, v7, v6, v9")
        a("v_cvt_f32_u32 v6, v6")
        a("v_cvt_f32_u32 v9, v9")
        a("v_mul_f32 v6, 0x3a000000, v6")
        a("v_mul_f32 v9, 0x3a000000, v9")
        for jj in range(4):
            a(f"v_cos_f32 v{Cc+jj}, v9")
            a(f"v_sin_f32 v{Ss+jj}, v9")
            if jj < 3:
                a("v_add_f32 v9, v9, v6")
        a(f"s_and_b32 s{S.T1}, s{S.T1C}, 63")
        a(f"s_mul_i32 s{S.L0}, s{S.T1}, {CS}")
        for jj in range(4):
            a(f"v_cvt_pk_bf16_f32 v{GA+jj}, v{Cc+jj}, v{Ss+jj}")
        a(f"s_cmp_lg_u32 s{S.T1}, 0")
        a(f"s_cbranch_scc1 {ld}")
        a(f"s_lshr_b32 s{S.T1}, s{S.T1C}, 2")
        for jj in range(4):
            a(f"v_and_b32 v{GA+jj}, 0xffff, v{GA+jj}")
            a(f"v_lshlrev_b32 v{GA+jj}, s{S.T1}, v{GA+jj}")
        a.label(ld)
        a(f"s_lshl_b32 s{S.T1}, s{S.WAVE}, 9")
        a(f"s_add_u32 s{S.L0}, s{S.L0}, s{S.T1}")
        a(f"s_add_u32 s{S.L0}, s{S.L0}, {WS_INT}")
        a(f"s_add_u32 s{S.L1}, s{S.L0}, 4096")

    def m2_addr():
        a(f"s_cmp_eq_u32 s{S.TD}, 0")
        a(f"s_cselect_b32 s{S.T0}, 0, 2048")
        a(f"v_add_u32 v4, s{S.T0}, v{VG16}")

    def int_loads(ah):
        for jj in range(4):
            so = S.L0 if jj < 2 else S.L1
            a(f"buffer_load_dwordx4 {V(LD+16*ah+4*jj,4)}, v{VLD}, {R4(S.RWS)}, s{so} offen offset:{(jj & 1)*2048 + ah*256} sc1")

    def int_check(ah):
        b = LD + 16 * ah
        t = [6, 7, 9, 12, 13, 14]
        for i in range(4):
            a(f"v_bitop3_b32 v{t[0]}, v{b+i}, v{b+4+i}, v{EXP+i} bitop3:0x7e") if i == 0 else \
                a(f"v_bitop3_b32 v{t[1]}, v{b+i}, v{b+4+i}, v{EXP+i} bitop3:0x7e")
            a(f"v_bitop3_b32 v{t[2]}, v{b+8+i}, v{b+12+i}, v{EXP+i} bitop3:0x7e")
            a(f"v_or3_b32 v6, v6, v7, v9" if i else "v_or_b32 v6, v6, v9")
        a("v_and_b32 v6, 0x10001, v6")
        a("v_cmp_ne_u32 vcc, 0, v6")

    a.srd(S.ROUT, S.POUT, 0x200000)
    a(f"s_cmp_ge_u32 s{S.WAVE}, 4")
    a("s_cbranch_scc1 L_hi0")
    pre = [lambda: (addr_p2(), const_ga(), exp_setup()), const_d1, lambda: gates(True), lambda: (addr_ur(S.WAVE), m2_addr())]
    if o.gfirst:
        pre[1], pre[2] = pre[2], pre[1]
    for f in pre[:o.npre]:
        f()
    stamp(8)
    a(f"s_waitcnt vmcnt({0 if o.ackwait else 2})")
    if o.b3:
        a("s_barrier")
    if o.isleep0:
        a(f"s_sleep {o.isleep0}")
    hold("B4")
    stamp(9)
    int_loads(0)
    int_loads(1)
    gwait[0] = 10
    for f in pre[o.npre:]:
        f()
    gwait[0] = 2
    a.label("L_zjoin")
    stamp(10)
    for ah in range(2):
        a(f"s_waitcnt vmcnt({4-4*ah})")
        int_check(ah)
        a.nop(1)
        a(f"s_cbranch_vccnz L_retry{ah}")
        a.label(f"L_got{ah}")
        b = LD + 16 * ah
        da = DA1 if ah else DA0
        for ib in range(5):
            if ib < 4:
                for p in range(2):
                    s0 = b + 8 * p + (ib & 2)
                    a(f"v_pk_mov_b32 {V(TP+4*ib+2*p,2)}, {V(s0,2)}, {V(s0+4,2)} op_sel:[{ib&1},{ib&1}]")
            else:
                a.nop(2)
            if ib:
                a(f"{MF} {V(da+4*(ib-1),4)}, {V(TP+4*(ib-1),4)}, {V(GA,4)}, 0")
    stamp(11)
    a.nop(1)

    def d1(jb):
        a(f"{MF} {V(DA0+4*jb,4)}, {V(TP+4*jb,4)}, {V(M1+12*jb,4)}, 0")
        a(f"{MF} {V(DA1+4*jb,4)}, {V(TP+4*jb,4)}, {V(M1+12*jb+4,4)}, 0")
        a(f"{MF} {V(X16,4)}, {V(TP+4*jb,4)}, {V(M1+12*jb+8,4)}, {'0' if jb == 0 else V(X16,4)}")

    for ib in range(4):
        for p in range(4):
            s0 = (DA1 if p >= 2 else DA0) + 4 * ib + 2 * (p & 1)
            a(f"v_cvt_pk_bf16_f32 v{TP+4*ib+p}, v{s0}, v{s0+1}")
        if ib:
            d1(ib - 1)
    d1(3)
    for ib in range(3):
        for i in range(4):
            a(f"v_cvt_pk_bf16_f32 v{PK+4*i+ib}, v{DA0+4*ib+i}, v{DA1+4*ib+i}")
    for i in range(4):
        a(f"v_cvt_pk_bf16_f32 v{PK+4*i+3}, v{DA0+12+i}, v{DA1+12+i}")
        a(f"ds_write_b128 v{VUW}, {V(PK+4*i,4)} offset:{L_U2 + i*UB}")
    a(f"v_cvt_pk_bf16_f32 v{X16}, v{X16}, v{X16+1}")
    a(f"v_cvt_pk_bf16_f32 v{X16+2}, v{X16+2}, v{X16+3}")
    a(f"ds_write_b16 v{VUX}, v{X16} offset:{L_U2}")
    a(f"ds_write_b16_d16_hi v{VUX}, v{X16} offset:{L_U2+UB}")
    a(f"ds_write_b16 v{VUX}, v{X16+2} offset:{L_U2+2*UB}")
    a(f"ds_write_b16_d16_hi v{VUX}, v{X16+2} offset:{L_U2+3*UB}")
    a.label("L_d2")
    a(f"ds_read_b128 {V(M2,4)}, v{VG16} offset:{L_M2}")
    a(f"ds_read_b128 {V(M2+4,4)}, v{VG16} offset:{L_M2+1024}")
    a(f"ds_read_b128 {V(M2+8,4)}, v4 offset:{L_M2}")
    a(f"ds_read_b128 {V(M2+12,4)}, v4 offset:{L_M2+1024}")
    a(f"v_mov_b32 v9, {L_GKEY}")
    a("s_waitcnt lgkmcnt(0)")
    a("s_barrier")
    stamp(12)
    a("ds_read_b32 v6, v9")
    a(f"ds_read_b128 {V(UO,4)}, v{VUR0} offset:{L_U2}")
    a(f"ds_read_b128 {V(UO+4,4)}, v{VUR1} offset:{L_U2}")
    a(f"ds_read_b128 {V(UO+8,4)}, v{VUR0} offset:{L_U2+UB}")
    a(f"ds_read_b128 {V(UO+12,4)}, v{VUR1} offset:{L_U2+UB}")
    a(f"s_cmp_lg_u32 s{S.ISZ}, 0")
    a("s_cbranch_scc1 L_zfin")
    a(f"s_lshl_b32 s{S.T0}, s{S.TD}, 10")
    a(f"s_lshl_b32 s{S.T1}, s{S.TM}, 10")
    for k in range(4):
        a(f"s_waitcnt lgkmcnt({3-k})")
        a(f"{MF} {V(PQ+4*k,4)}, {V(UO+4*k,4)}, {V(M2+4*k,4)}, 0")
    a(f"v_readfirstlane_b32 s{S.GKEY}, v6")
    a(f"s_andn2_b32 s{S.IDX}, 0xffff, s{S.GKEY}")
    for r in range(2):
        for i in range(8):
            a(f"v_fmac_f32 v{XG+8*r+i}, v{CO+2*r}, v{PQ+i}")
    for r, (so, tr) in enumerate(((S.T0, S.TD), (S.T1, S.TM))):
        for i in range(8):
            a(f"v_fmac_f32 v{XG+8*r+i}, v{CO+2*r+1}, v{PQ+8+i}")
        for i in range(4):
            a(f"v_cvt_pk_bf16_f32 v{UO+4*r+i}, v{XG+8*r+2*i}, v{XG+8*r+2*i+1}")
        l = a.L("skip")
        if r == 0:
            stamp(6)
        a(f"s_cmp_eq_u32 s{tr}, s{S.IDX}")
        a(f"s_cbranch_scc1 {l}")
        a(f"v_permlane16_swap_b32 v{UO+4*r}, v{UO+4*r+2}")
        a(f"v_permlane16_swap_b32 v{UO+4*r+1}, v{UO+4*r+3}")
        a(f"buffer_store_dwordx4 {V(UO+4*r,4)}, v{VROW}, {R4(S.ROUT)}, s{so} offen{o.outpol}")
        a.label(l)
    a.label("L_tb_end")
    stamp(13)
    if o.stamps:
        a("s_waitcnt vmcnt(0)")
        stamp(15)
    endprog()

    for ah in range(2):
        a.label(f"L_retry{ah}")
        if o.stamps:
            a(f"s_add_u32 s{S.RC}, s{S.RC}, {1 << (8*ah)}")
        if o.rsleep:
            a(f"s_sleep {o.rsleep}")
        int_loads(ah)
        spin()
        a("s_waitcnt vmcnt(0)")
        a(f"s_cbranch_scc1 L_got{ah}")
        int_check(ah)
        a.nop(1)
        a(f"s_cbranch_vccnz L_retry{ah}")
        a(f"s_branch L_got{ah}")

    a.label("L_hi0")
    if o.b3:
        if o.ackwait:
            a("s_waitcnt vmcnt(0)")
        a("s_barrier")
    a.label("L_hi1")
    if o.atouch:
        touch("L_tb", o.atouch, 4, 4)
        a(f"s_cmp_lg_u32 s{S.ISZ}, 0")
        a("s_cbranch_scc1 L_z0b")
    gates(True)
    addr_ur(S.WAVE)
    m2_addr()
    stamp(10)
    a("s_branch L_d2")

    a.label("L_ah")
    if o.cpf:
        a(f"s_cmp_ge_u32 s{S.T1}, {o.cpf}")
        a("s_cbranch_scc1 L_nocpf")
        a(f"s_getpc_b64 s[{S.EX}:{S.EX+1}]")
        a.label("L_pc")
        a(f"s_sub_u32 s{S.EX}, s{S.EX}, L_pc - {name}")
        a(f"s_subb_u32 s{S.EX+1}, s{S.EX+1}, 0")
        a("v_lshlrev_b32 v6, 7, v0")
        a("v_add_u32 v7, 0x2000, v6")
        a(f"v_min_u32 v7, L_end - {name}, v7")
        a(f"global_load_dword v12, v6, s[{S.EX}:{S.EX+1}]")
        a(f"global_load_dword v13, v7, s[{S.EX}:{S.EX+1}]")
        a.label("L_nocpf")
    a(f"v_lshlrev_b32 v{VG16}, 4, v0")
    a(f"v_mov_b32 v{VTAG}, 0")
    a(f"s_mov_b32 s{S.KM}, 0x9E3779B1")
    a(f"s_cmp_ge_u32 s{S.T1}, {o.wpf}")
    a("s_waitcnt lgkmcnt(0)")
    a("s_cbranch_scc1 L_nowpf")
    a(f"global_load_dwordx4 v[32:35], v{VG16}, s[{S.PWR}:{S.PWR+1}]")
    a(f"global_load_dword v{VE}, v{VTAG}, s[{S.PWS}:{S.PWS+1}]")
    a(f"global_load_dwordx4 v[36:39], v{VG16}, s[{S.PGW}:{S.PGW+1}]")
    a.label("L_nowpf")
    stamp(1)
    a("v_lshlrev_b32 v14, 10, v0")
    a(f"s_lshl_b32 s{S.ID8}, s2, 3")
    a(f"s_add_u32 s{S.ID8}, s{S.ID8}, {WS_KEY}")
    ws_setup()

    const_d2()
    stamp(2)
    a(f"global_load_dword v{VE}, v{VTAG}, s[{S.PWS}:{S.PWS+1}]")
    a(f"v_mov_b32 v9, {L_KSL}")
    a("s_waitcnt vmcnt(0)")
    tag_make()
    exp_make()
    a(f"v_mov_b32 v9, {L_KSL}")
    stamp(3)
    a("s_barrier")
    for i in range(4):
        a(f"ds_read_b128 {V(40+4*i,4)}, v9 offset:{16*i}")
    set_exec(RF * CF + RZ * CZ + R2 * C2)
    a("s_waitcnt lgkmcnt(2)")
    a("v_max3_u32 v6, v40, v41, v42")
    a("v_max3_u32 v7, v43, v44, v45")
    a("v_max3_u32 v6, v46, v47, v6")
    a("s_waitcnt lgkmcnt(0)")
    a("v_max3_u32 v7, v48, v49, v7")
    a("v_max3_u32 v6, v50, v51, v6")
    a("v_max3_u32 v7, v52, v53, v7")
    a("v_max3_u32 v6, v54, v55, v6")
    a(f"v_max_u32 v{VE}, v6, v7")
    a(f"buffer_store_dwordx2 v[{VE}:{VTAG}], v14, {R4(S.RWS)}, s{S.ID8} offen sc1")
    a("s_mov_b64 exec, -1")
    stamp(5)
    poll_setup(WS_KEY + 1024 * (RF * CF + RZ * CZ), R2, C2)
    a("s_waitcnt vmcnt(0)")
    if o.b3:
        a("s_barrier")
    a(f"s_sleep {o.k2sleep0}")
    stamp(8)
    poll_granules(VG16, 32, sleep=o.k2sleep)
    stamp(9)
    wave_max_key(32)
    lds_put(L_GKEY, 32)
    a("s_barrier")
    endprog()

    a.label("L_notA")
    if o.only == "AA":
        a("s_endpgm")
    a(f"s_lshl4_add_u32 s{S.FJ}, s{S.T0}, s{S.T1}")
    a(f"s_sub_u32 s{S.FJ}, s{S.FJ}, 16")
    a(f"s_cmp_ge_u32 s2, {NWG}")
    a("s_cbranch_scc1 L_end")
    a(f"s_cmp_lt_u32 s{S.T0}, 4")
    a("s_cbranch_scc1 L_F")
    a(f"s_mul_i32 s{S.FJ}, s{S.T0}, 12")
    a(f"s_add_u32 s{S.FJ}, s{S.FJ}, s{S.T1}")
    a(f"s_cmp_lt_u32 s{S.T1}, 28")
    a("s_cbranch_scc1 L_F")
    a(f"s_mov_b32 s{S.ISZ}, 1")
    a(f"s_lshl2_add_u32 s{S.Z}, s{S.T0}, s{S.T1}")
    a(f"s_sub_u32 s{S.Z}, s{S.Z}, 44")
    vrow_setup()
    a(f"v_lshlrev_b32 v{VG16}, 4, v0")
    sgn_setup()
    a("s_waitcnt lgkmcnt(0)")
    ws_setup()
    a.srd(S.ROUT, S.POUT, 0x200000)
    addr_p2()
    a(f"s_cmp_eq_u32 s{S.WAVE}, 8")
    a("s_cbranch_scc1 L_zh")
    a(f"s_cmp_ge_u32 s{S.WAVE}, 4")
    a("s_cbranch_scc1 L_z0")
    const_d1()
    a("s_branch L_z1")
    a.label("L_z0")
    if o.atouch:
        a("s_branch L_hi1")
    a.label("L_z0b")
    if o.ztouch:
        touch("L_tz", o.ztouch, 4, 4)
    a.label("L_z1")
    a(f"v_mov_b32 v9, {L_KSL}")
    a("v_mov_b32 v12, 0")
    a("v_mov_b32 v13, 0")
    a("s_barrier")
    a(f"ds_read_b64 v[{VE}:{VTAG}], v9")
    a(f"ds_read_b128 {V(GW,4)}, v{VG16} offset:{L_WV+1024}")
    a("s_waitcnt lgkmcnt(0)")
    a(f"v_readfirstlane_b32 s{S.GKEY}, v{VE}")
    a(f"s_andn2_b32 s{S.IDX}, 2047, s{S.GKEY}")
    a(f"s_and_b32 s{S.T0}, s{S.IDX}, 127")
    a(f"s_cmp_gt_u32 s{S.T0}, 64")
    a(f"s_cselect_b32 s{S.WHICH}, 1, 0")
    a(f"s_and_b32 s{S.T0}, s{S.IDX}, {1024 + 63}")
    a(f"s_cmp_eq_u32 s{S.T0}, 1024")
    a(f"s_cselect_b32 s{S.WHICH}, 1, s{S.WHICH}")
    a(f"s_sub_u32 s{S.T0}, 2048, s{S.IDX}")
    a(f"s_cmp_lg_u32 s{S.WHICH}, 0")
    a(f"s_cselect_b32 s{S.T0}, s{S.T0}, s{S.IDX}")
    a(f"s_cmp_eq_u32 s{S.T0}, 1024")
    a(f"s_cselect_b32 s{S.T0}, 0, s{S.T0}")
    a(f"s_and_b32 s{S.T1C}, s{S.T0}, 127")
    a(f"s_lshr_b32 s{S.HH}, s{S.T0}, 10")
    a(f"s_bfe_u32 s{S.WSEL}, s{S.T0}, 0x30007")
    rows_setup(S.WSEL)
    a(f"s_cmp_ge_u32 s{S.WAVE}, 4")
    a("s_cbranch_scc1 L_z4")
    const_ga()
    exp_setup()
    if o.zisleep0:
        a(f"s_sleep {o.zisleep0}")
    stamp(9)
    int_loads(0)
    int_loads(1)
    addr_ur(S.WSEL)
    m2_addr()
    a("v_lshlrev_b32 v6, 7, v1")
    a(f"v_lshl_add_u32 v15, v2, 4, v6")
    a("s_branch L_zjoin")
    a.label("L_z4")
    a(f"s_cmp_ge_u32 s{S.WAVE}, 6")
    a("s_cbranch_scc1 L_zend2")
    rows_load()
    a(f"s_sub_u32 s{S.T0}, s{S.WAVE}, 4")
    a(f"s_lshl1_add_u32 s{S.T1}, s{S.Z}, s{S.T0}")
    a(f"s_lshl_b32 s{S.T1}, s{S.T1}, 5")
    a("v_and_b32 v6, 7, v0")
    a(f"v_lshl_add_u32 v10, v6, 2, s{S.T1}")
    a(f"s_lshl_b32 s{S.T2}, s{S.IDX}, 10")
    a(f"v_add_u32 v7, s{S.T2}, v10")
    a(f"global_load_dword v35, v7, {PXS}")
    a("v_lshlrev_b32 v10, 1, v10")
    a("v_lshrrev_b32 v7, 3, v0")
    a("v_lshlrev_b32 v7, 8, v7")
    a("v_lshl_add_u32 v11, v6, 4, v7")
    a(f"s_mul_i32 s{S.SI0}, s{S.Z}, {PZ}")
    a(f"s_lshl_b32 s{S.T0}, s{S.T0}, 7")
    a(f"s_add_u32 s{S.SI0}, s{S.SI0}, s{S.T0}")
    a(f"s_add_u32 s{S.SI0}, s{S.SI0}, {WS_PART}")
    a(f"s_add_u32 s{S.SI1}, s{S.SI0}, {(o.pc-1)*PARTC}")
    a(f"s_and_b32 s{S.T0}, s{S.GKEY}, 0xffff0000")
    a(f"s_xor_b32 s{S.T1}, s{S.T0}, 0x80000000")
    a(f"s_xor_b32 s{S.T3}, s{S.T0}, 0xffff0000")
    a(f"s_bitcmp1_b32 s{S.T0}, 31")
    a(f"s_cselect_b32 s{S.T0}, s{S.T1}, s{S.T3}")
    a(f"v_mov_b32 v15, s{S.T0}")
    sigmoid(15, 15)
    rnd(15, 15)
    a("s_waitcnt vmcnt(0)")
    gates(False)
    a(f"s_cmp_lg_u32 s{S.WHICH}, 0")
    a(f"s_cselect_b32 s{S.T2}, s{S.T3}, s{S.T2}")
    a(f"s_cselect_b32 s{S.T0}, s{S.T5}, s{S.T0}")
    a(f"s_cselect_b32 s{S.T4}, s{S.T1}, s{S.T4}")
    a(f"v_mov_b32 v36, s{S.T2}")
    a(f"v_mov_b32 v{CO}, s{S.T0}")
    a(f"v_mov_b32 v{CO+1}, s{S.T4}")
    a("v_lshlrev_b32 v34, 16, v35")
    a(f"v_and_b32 v35, {HIM}, v35")
    a("s_barrier")
    if o.psleep0:
        a(f"s_sleep {o.psleep0}")
    hold("pp")
    a(f"v_mov_b32 v9, {L_ZF}")
    a.label("L_tz_start")
    stamp(10)
    if o.psleep:
        a("s_branch L_zp1")
    a.label("L_zp")
    if o.psleep:
        a(f"s_sleep {o.psleep}")
        a.label("L_zp1")
    for i in range(7):
        if i and i % 2 == 0:
            a(f"s_add_u32 s{S.T0}, s{S.SI0}, {2048*i}")
        a(f"buffer_load_dwordx4 {V(40+4*i,4)}, v11, {R4(S.RWS)}, s{S.T0 if i >= 2 else S.SI0} offen offset:{2048*(i&1)} sc1")
    a(f"s_add_u32 s{S.SI0}, s{S.SI0}, {PARTC}")
    a(f"s_min_u32 s{S.SI0}, s{S.SI0}, s{S.SI1}")
    if o.stamps:
        a(f"s_add_u32 s{S.RC}, s{S.RC}, 256")
    spin()
    a("s_cbranch_scc1 L_zp_ok")
    for i in range(7):
        a(f"s_waitcnt vmcnt({6-i})")
        a(f"v_bitop3_b32 v{37 if i == 0 else 38 + (i & 1)}, v{41+4*i}, v{43+4*i}, v{VTAG} bitop3:0x7e")
        if i:
            a(f"v_add_f32 v40, v40, v{40+4*i}")
            a(f"v_add_f32 v42, v42, v{42+4*i}")
        if i and i % 2 == 0:
            a("v_or3_b32 v37, v37, v38, v39")
    a("v_cmp_ne_u32 vcc, 0, v37")
    a.nop(1)
    a("s_cbranch_vccnz L_zp")
    a.label("L_zp_ok")
    a("ds_read_b32 v12, v9")
    a(f"ds_read_b64 v[32:33], v10 offset:{L_XG2}")
    a(f"ds_read_b64 v[16:17], v10 offset:{L_XG2+2048}")
    a("v_lshrrev_b32 v11, 1, v10")
    a(f"s_lshl_b32 s{S.T2}, s{S.IDX}, 10")
    a("s_waitcnt vmcnt(0)")
    stamp(11)
    a(f"v_add_f32_dpp v40, v40, v40 row_ror:8 {DPPM}")
    a(f"v_add_f32_dpp v42, v42, v42 row_ror:8 {DPPM}")
    a.nop(1)
    a.nop(1)
    a("v_permlane16_swap_b32 v40, v42")
    a("v_add_f32 v40, v40, v42")
    a("v_mov_b32 v42, v40")
    a.nop(2)
    a("v_permlane32_swap_b32 v40, v42")
    a("v_add_f32 v40, v40, v42")
    a("v_mov_b32 v42, v40")
    a.nop(2)
    a("v_permlane16_swap_b32 v40, v42")
    a("v_cvt_pk_bf16_f32 v41, v40, v42")
    a("v_lshlrev_b32 v40, 16, v41")
    a(f"v_and_b32 v42, {HIM}, v41")
    a("v_mul_f32 v40, v40, v15")
    a("v_mul_f32 v42, v42, v15")
    a("v_cvt_pk_bf16_f32 v41, v40, v42")
    a("v_lshlrev_b32 v40, 16, v41")
    a(f"v_and_b32 v42, {HIM}, v41")
    a("v_add_f32 v40, v40, v34")
    a("v_add_f32 v42, v42, v35")
    a("v_cvt_pk_bf16_f32 v41, v40, v42")
    a("v_lshlrev_b32 v40, 16, v41")
    a(f"v_and_b32 v42, {HIM}, v41")
    a.label("L_zw")
    a("s_waitcnt lgkmcnt(0)")
    a("v_cmp_eq_u32 vcc, 0, v12")
    a(f"v_mul_f32 v32, v{CO}, v32")
    a(f"v_mul_f32 v33, v{CO}, v33")
    a("s_cbranch_vccz L_zw_ok")
    spin()
    a("s_cbranch_scc1 L_zw_ok")
    a("ds_read_b32 v12, v9")
    a(f"ds_read_b64 v[32:33], v10 offset:{L_XG2}")
    a(f"ds_read_b64 v[16:17], v10 offset:{L_XG2+2048}")
    a("s_branch L_zw")
    a.label("L_zw_ok")
    a(f"v_fmac_f32 v32, v{CO+1}, v16")
    a(f"v_fmac_f32 v33, v{CO+1}, v17")
    a("v_fmac_f32 v32, v40, v36")
    a("v_fmac_f32 v33, v42, v36")
    a("v_cvt_pk_bf16_f32 v32, v32, v33")
    a("s_mov_b64 exec, 0xff")
    a(f"buffer_store_dword v32, v11, {R4(S.ROUT)}, s{S.T2} offen{o.zpol}")
    a("s_mov_b64 exec, -1")
    stamp(13)
    a("s_barrier")
    endprog()

    a.label("L_zfin")
    a(f"s_cmp_lg_u32 s{S.WAVE}, 0")
    a("s_cbranch_scc1 L_zend")
    for k in range(4):
        a(f"s_waitcnt lgkmcnt({3-k})")
        a(f"{MF} {V(PQ+4*k,4)}, {V(UO+4*k,4)}, {V(M2+4*k,4)}, 0")
    a.nop(3)
    for k in range(4):
        if k == 2:
            a.nop(2)
        a(f"ds_write_b128 v15, {V(PQ+4*k,4)} offset:{L_XG2 + 64*(k&1) + 2048*(k>>1)}")
    a(f"v_mov_b32 v9, {L_ZF}")
    a("s_waitcnt lgkmcnt(0)")
    a("ds_write_b32 v9, v9")
    a("s_waitcnt lgkmcnt(0)")
    stamp(13)
    a.label("L_zend")
    endprog()
    a.label("L_zend2")
    if o.hold and o.hold[0] == "end":
        a("s_barrier")
        a("s_barrier")
    hold("end")
    endprog()

    a.label("L_zh")
    a(f"v_mov_b32 v9, {L_ZF}")
    a("v_mov_b32 v6, 0")
    a("ds_write_b32 v9, v6")
    const_d2()
    a(f"s_mov_b32 m0, {L_WV+1024}")
    tag_load()
    a(f"global_load_lds_dwordx4 v{VG16}, s[{S.PGW}:{S.PGW+1}]")
    a("s_waitcnt vmcnt(0)")
    tag_make()
    exp_make()
    poll_setup(WS_KEY + 1024 * RF * CF, RZ, CZ)
    if o.zsleep0:
        a(f"s_sleep {o.zsleep0}")
    stamp(1)
    poll_granules(VG16, 32, sleep=o.zsleep)
    stamp(2)
    wave_max_key(32)
    lds_put(L_KSL, 32, tag=True)
    a("s_barrier")
    a(f"s_lshl_b32 s{S.T0}, s{S.Z}, 2")
    a(f"s_add_u32 s{S.T0}, s{S.T0}, {WS_ALIVE}")
    a("s_mov_b64 exec, 1")
    a(f"buffer_store_dword v{VTAG}, v0, {R4(S.RWS)}, s{S.T0} offen sc1")
    a("s_mov_b64 exec, -1")
    a(f"s_cmp_lg_u32 s{S.Z}, 0")
    a("s_cbranch_scc1 L_zend")
    a("s_mov_b64 exec, 0xffff")
    a("v_lshlrev_b32 v6, 2, v0")
    a(f"s_mov_b32 s{S.T0}, {WS_ALIVE}")
    a("s_barrier")
    a.label("L_za")
    a(f"buffer_load_dword v7, v6, {R4(S.RWS)}, s{S.T0} offen sc1")
    spin()
    a("s_waitcnt vmcnt(0)")
    a("s_cbranch_scc1 L_za_ok")
    a(f"v_cmp_ne_u32 vcc, v{VTAG}, v7")
    a.nop(1)
    a("s_cbranch_vccnz L_za")
    a.label("L_za_ok")
    a("s_mov_b64 exec, 1")
    a(f"v_add_u32 v9, 1, v{VE}")
    a("s_barrier")
    a(f"buffer_store_dword v9, v6, {R4(S.RWS)}, 0 offen sc1")
    a("s_mov_b64 exec, -1")
    a("s_branch L_zend")

    a.label("L_F")
    if o.only == "A":
        a("s_endpgm")
    WG_, WD_ = 32, 48
    a("v_lshlrev_b32 v5, 4, v0")
    a(f"s_cmp_eq_u32 s{S.WAVE}, 8")
    a("s_cbranch_scc1 L_fh")
    a(f"s_and_b32 s{S.T0}, s{S.FJ}, 3")
    a(f"s_lshr_b32 s{S.T1}, s{S.WAVE}, 1")
    a(f"s_lshl2_add_u32 s{S.L0}, s{S.T0}, s{S.T1}")
    a(f"s_mul_i32 s{S.T2}, s{S.L0}, {32*3584}")
    a(f"s_lshr_b32 s{S.L1}, s{S.FJ}, 2")
    a(f"s_lshl_b32 s{S.T3}, s{S.L1}, 7")
    a(f"s_add_u32 s{S.T2}, s{S.T2}, s{S.T3}")
    a("v_lshrrev_b32 v6, 3, v0")
    a("v_mul_u32_u24 v6, 3584, v6")
    a("v_and_b32 v7, 7, v0")
    a("v_bfe_u32 v8, v0, 4, 1")
    a("v_lshlrev_b32 v8, 2, v8")
    a("v_xor_b32 v4, v7, v8")
    a(f"v_lshl_add_u32 v7, v4, 4, s{S.T2}")
    a("v_add_u32 v3, v6, v7")
    a(f"s_lshl_b32 s{S.T4}, s{S.WAVE}, 12")
    a(f"s_mov_b32 m0, s{S.T4}")
    a(f"s_bitcmp1_b32 s{S.WAVE}, 0")
    a("s_waitcnt lgkmcnt(0)")
    a(f"s_cselect_b32 s{S.PWG}, s{S.PWU}, s{S.PWG}")
    a(f"s_cselect_b32 s{S.PWG+1}, s{S.PWU+1}, s{S.PWG+1}")
    if o.fdelay:
        a(f"s_sleep {o.fdelay}")
    for b in range(4):
        if b:
            a(f"s_add_u32 m0, s{S.T4}, {1024*b}")
            a(f"v_add_u32 v3, {8*3584}, v3")
        a(f"global_load_lds_dwordx4 v3, s[{S.PWG}:{S.PWG+1}]{o.wpol}")
    ws_setup()
    stamp(1)
    a("v_bfe_u32 v6, v0, 2, 2")
    a("v_and_b32 v7, 3, v0")
    a("v_lshlrev_b32 v8, 3, v7")
    a("v_lshl_add_u32 v8, v2, 5, v8")
    a("v_and_b32 v9, 2, v6")
    a("v_lshlrev_b32 v9, 5, v9")
    a("v_xor_b32 v9, v9, v8")
    a("v_lshl_add_u32 v9, v6, 7, v9")
    a(f"v_add_u32 v9, s{S.T4}, v9")
    a(f"s_lshl_b32 s{S.T5}, s{S.WAVE}, 8")
    a("v_lshlrev_b32 v11, 2, v0")
    a(f"v_add_u32 v11, {L_RED}, v11")
    a(f"v_add_u32 v12, s{S.T5}, v11")
    a(f"s_lshl1_add_u32 s{S.T1}, s{S.L1}, s{S.T1}")
    a(f"s_lshl_b32 s{S.T2}, s{S.T1}, 15")
    a(f"s_and_b32 s{S.T3}, s{S.WAVE}, 1")
    a(f"s_lshl1_add_u32 s{S.T3}, s{S.T0}, s{S.T3}")
    a(f"s_lshl_b32 s{S.T5}, s{S.T3}, 7")
    a(f"s_add_u32 s{S.T2}, s{S.T2}, s{S.T5}")
    a("v_lshrrev_b32 v6, 3, v0")
    a(f"v_lshl_add_u32 v6, v6, 10, s{S.T2}")
    a("v_lshl_add_u32 v4, v4, 4, v6")
    a("v_lshrrev_b32 v6, 5, v0")
    a(f"v_mul_u32_u24 v13, {PZ}, v6")
    a("v_and_b32 v6, 31, v0")
    a("v_lshl_add_u32 v13, v6, 3, v13")
    a(f"s_mul_i32 s{S.T2}, s{S.T3}, {2*PZ}")
    a(f"s_lshl_b32 s{S.T1}, s{S.T1}, 8")
    a(f"s_add_u32 s{S.T2}, s{S.T2}, s{S.T1}")
    a(f"s_add_u32 s{S.T2}, s{S.T2}, {WS_PART}")
    a(f"s_lshl_b32 s{S.L0}, s{S.L0}, 6")
    a(f"s_lshl_b32 s{S.L1}, s{S.L1}, 12")
    a(f"s_add_u32 s{S.PO}, s{S.L1}, {WS_XCH}")
    a(f"s_add_u32 s{S.POL}, s{S.PO}, {(o.xc-1)*XCHC}")
    a(f"s_lshl_b32 s{S.T1}, s{S.T0}, 10")
    a(f"s_add_u32 s{S.L1}, s{S.PO}, s{S.T1}")
    a(f"v_mov_b32 v14, {L_FKEY}")
    a(f"s_lshr_b32 s{S.T1}, s{S.WAVE}, 1")
    a(f"s_lshl_b32 s{S.T1}, s{S.T1}, 9")
    a(f"v_lshl_add_u32 v15, v6, 4, s{S.T1}")
    a("v_lshrrev_b32 v6, 5, v0")
    a("v_lshl_add_u32 v15, v6, 10, v15")
    for i in range(2):
        a(f"v_mov_b32 v{16+i}, 0")
    for i in range(2):
        a(f"v_mov_b32 v{24+i}, 0")

    def wd_dma():
        l = a.L("nowd")
        a(f"s_cmp_ge_u32 s{S.WAVE}, 4")
        a(f"s_cbranch_scc1 {l}")
        for b in range(4):
            a(f"s_add_u32 m0, s{S.T4}, {L_WD + 1024*b}")
            if b:
                a("v_add_u32 v4, 0x2000, v4")
            else:
                a.nop(1)
            a(f"global_load_lds_dwordx4 v4, s[{S.PWD}:{S.PWD+1}]")
        a.label(l)

    if o.wdpos == 0:
        wd_dma()
    a("s_waitcnt vmcnt(0)")
    stamp(2)
    if o.fw0:
        a("s_barrier")
    if o.wdpos == 1:
        wd_dma()
    for k in range(8):
        a(f"ds_read_b64_tr_b16 {V(WG_+2*k,2)}, v9 offset:{L_W + k*512}")
    if o.ftouch:
        touch("L_tf", o.ftouch, 0, 8)
    a("s_waitcnt lgkmcnt(0)")
    a("s_barrier")
    a.label("L_tf_start")
    a(f"ds_read_b64 v[{VE}:{VTAG}], v14")
    a("s_waitcnt lgkmcnt(0)")
    a(f"v_readfirstlane_b32 s{S.T0}, v{VE}")
    a(f"s_andn2_b32 s{S.T0}, 2047, s{S.T0}")
    a(f"s_lshl_b32 s{S.T0}, s{S.T0}, 10")
    a(f"s_add_u32 s{S.T0}, s{S.T0}, s{S.L0}")
    a(f"s_load_dwordx16 s[{S.XS}:{S.XS+15}], {PXS}, s{S.T0}")
    stamp(5)
    if o.wdpos == 2:
        wd_dma()
    a(f"v_mov_b32 v29, v{VTAG}")
    a("s_waitcnt vmcnt(0)")
    for k in range(8):
        a(f"ds_read_b64_tr_b16 {V(WD_+2*k,2)}, v9 offset:{L_WD + k*512}")
    a("s_waitcnt lgkmcnt(0)")
    for i in range(16):
        a(f"v_dot2c_f32_bf16 v{16+(i&1)}, s{S.XS+i}, v{WG_+i}")
    stamp(6)
    a.nop(3)
    a("v_add_f32 v16, v16, v17")
    a("ds_write_b32 v12, v16")
    a("s_waitcnt lgkmcnt(0)")
    a("s_barrier")
    a(f"s_lshl_b32 s{S.T0}, s{S.WAVE}, 4")
    a(f"s_lshl_b64 s[{S.EX}:{S.EX+1}], 0xffff, s{S.T0}")
    for i, (p, q) in enumerate(((0, 2), (4, 6), (1, 3), (5, 7))):
        a(f"ds_read2st64_b32 v[{16+2*i}:{17+2*i}], v11 offset0:{p} offset1:{q}")
    a("s_waitcnt lgkmcnt(2)")
    a("v_add_f32 v16, v16, v17")
    a("v_add_f32 v18, v18, v19")
    a("s_waitcnt lgkmcnt(0)")
    a("v_add_f32 v20, v20, v21")
    a("v_add_f32 v22, v22, v23")
    a("v_add_f32 v28, v16, v18")
    a(f"s_mov_b64 exec, s[{S.EX}:{S.EX+1}]")
    a("v_add_f32 v30, v20, v22")
    a(f"s_cmp_ge_u32 s{S.WAVE}, 4")
    a("s_cbranch_scc1 L_f5")
    a(f"buffer_store_dwordx4 v[28:31], v5, {R4(S.RWS)}, s{S.L1} offen{'' if o.xl2 else ' sc1'}")
    a("s_mov_b64 exec, -1")
    stamp(7)
    if o.xack:
        a("s_waitcnt vmcnt(0)")
    if o.xsleep0:
        a(f"s_sleep {o.xsleep0}")
    stamp(8)
    a.label("L_fx")
    for i in range(2):
        a(f"buffer_load_dwordx4 {V(64+4*i,4)}, v15, {R4(S.RWS)}, s{S.PO} offen offset:{2048*i} sc1")
    if o.xl2:
        a(f"s_cmp_ge_u32 s{S.SPIN}, {o.xl2 - 1}")
        a(f"s_cselect_b32 s{S.T0}, {XCHC}, 0")
        a(f"s_add_u32 s{S.PO}, s{S.PO}, s{S.T0}")
    else:
        a(f"s_add_u32 s{S.PO}, s{S.PO}, {XCHC}")
    a(f"s_min_u32 s{S.PO}, s{S.PO}, s{S.POL}")
    if o.stamps:
        a(f"s_add_u32 s{S.RC}, s{S.RC}, 1")
    spin()
    a("s_cbranch_scc1 L_fx_ok")
    a("s_waitcnt vmcnt(1)")
    a(f"v_bitop3_b32 v20, v65, v67, v{VTAG} bitop3:0x7e")
    a("s_waitcnt vmcnt(0)")
    a("v_add_f32 v16, v64, v68")
    a("v_add_f32 v18, v66, v70")
    a(f"v_bitop3_b32 v21, v69, v71, v{VTAG} bitop3:0x7e")
    a("v_or_b32 v20, v20, v21")
    a("v_cmp_ne_u32 vcc, 0, v20")
    a("v_permlane32_swap_b32 v16, v18")
    a("s_cbranch_vccnz L_fx")
    a.label("L_fx_ok")
    stamp(9)
    a("v_add_f32 v16, v16, v18")
    rnd(16, 16)
    a("v_mov_b32 v18, v16")
    sigmoid(17, 16)
    a("v_permlane32_swap_b32 v16, v18")
    a("v_mul_f32 v17, v17, v16")
    rnd(17, 17)
    a("v_mul_f32 v17, v17, v18")
    a.nop(2)
    a(f"v_mov_b32_dpp v18, v17 quad_perm:[1,0,3,2] {DPPM}")
    a("v_cvt_pk_bf16_f32 v17, v17, v18")
    a.nop(1)
    for i in range(16):
        a(f"v_readlane_b32 s{S.XS+i}, v17, {2*i}")
    for i in range(16):
        a(f"v_dot2c_f32_bf16 v{24+(i&1)}, s{S.XS+i}, v{WD_+i}")
    a.nop(3)
    a("v_add_f32 v30, v24, v25")
    for c in range(o.pc):
        if c:
            a(f"s_add_u32 s{S.T2}, s{S.T2}, {PARTC}")
        a(f"buffer_store_dwordx2 v[30:31], v13, {R4(S.RWS)}, s{S.T2} offen sc1")
    stamp(10)
    a.label("L_fend")
    endprog()
    a.label("L_f5")
    for c in range(1, o.xc):
        a(f"s_add_u32 s{S.L1}, s{S.L1}, {XCHC}")
        a(f"buffer_store_dwordx4 v[28:31], v5, {R4(S.RWS)}, s{S.L1} offen sc1")
    a("s_mov_b64 exec, -1")
    endprog()

    a.label("L_fh")
    a("s_waitcnt lgkmcnt(0)")
    if o.fesleep:
        a(f"s_sleep {o.fesleep}")
    tag_load()
    ws_setup()
    poll_setup(WS_KEY, RF, CF)
    if o.fw0:
        a("s_barrier")
    if o.fsleep0:
        a(f"s_sleep {o.fsleep0}")
    a("s_waitcnt vmcnt(0)")
    tag_make()
    hold("fp")
    stamp(3)
    poll_granules(5, 20, sleep=o.fsleep)
    stamp(4)
    wave_max_key(20)
    lds_put(L_FKEY, 20, tag=True)
    a("s_barrier")
    endprog()
    a.label("L_end")
    a("s_endpgm")
    return name


def main():
    ap = argparse.ArgumentParser()
    ap.add_argument("-o", required=True)
    for k, d in dict(stamps=0, pc=2, xc=2, zsleep=8, zsleep0=30, psleep=0, psleep0=0, rsleep=3, ackwait=1, hipre=0, tlate=1,
                     mode=0, k2ack=1, k2sleep0=10, zk2sleep0=0, k2sleep=3, fbar=0, cpf=0, atouch=10, ftouch=8, xl2=5, npre=2, gfirst=0, isleep0=4, zisleep0=0, b3=1, ztouch=8, zstep=128, touch=0, wdpos=1, wpf=1, fesleep=0, fw0=0, xack=0, fdelay=0, xsleep0=3, fsleep0=40, fsleep=3, spin=17).items():
        ap.add_argument("--" + k, type=int, default=d)
    for k in ("wpol", "outpol", "zpol", "only"):
        ap.add_argument("--" + k, default="")
    ap.add_argument("--mf", default="8,2")
    ap.add_argument("--mz", default="1,3")
    ap.add_argument("--m2", default="1,3")
    ap.add_argument("--hold", default="")
    o = ap.parse_args()
    if o.hold:
        o.hold = o.hold.split(":")
    for k in ("mf", "mz", "m2"):
        setattr(o, k, [int(v) for v in getattr(o, k).split(",")])
    for k in ("wpol", "outpol", "zpol"):
        setattr(o, k, (" " + getattr(o, k)) if getattr(o, k) else "")
    a = Asm()
    name = gen(a, o)
    if o.touch:
        insert_stubs(a, [("L_ta_start", "L_ta_end", "L_ta", "L_taback", 9)], step=o.touch)
    reg = []
    if o.atouch:
        reg.append(("L_zjoin", "L_tb_end", "L_tb", "L_tbback", o.atouch))
    if o.ztouch:
        reg.append(("L_tz_start", "L_zend", "L_tz", "L_tzback", o.ztouch))
    if o.ftouch:
        reg.append(("L_tf_start", "L_fend", "L_tf", "L_tfback", o.ftouch))
    if reg:
        insert_stubs(a, reg, step=o.zstep)
    finish(a, name, NVGPR, 102, NWG, 576, LDS_BYTES, o.o)


main()
```

```python
import argparse
from lib import *

NA, NF, NZ = 128, 112, 16
NWG = NA + NF + NZ
WS_E = 0
WS_ALIVE = 4096
WS_KEY = 64 << 10
WS_KEY2 = 128 << 10
WS_XCH = 192 << 10
XCHC = 28 * 4096
WS_PART = 704 << 10
PZ = 56 * 256
PARTC = NZ * PZ
WS_INT = 2 << 20
CS = 32768 + 256
WS_STAMP = 8 << 20
WS_BYTES = 16 << 20
L_TILE = 0
L_U2 = 16384
L_CT = L_U2
UB = 17 * 64
L_MISC = L_U2 + 16 * UB
L_KSL = L_MISC
L_GKEY = L_MISC + 64
L_ZC = L_MISC + 76
L_ZF = L_MISC + 72
L_EXP = L_MISC + 128
L_DUMP = L_MISC + 192
L_XG2 = L_DUMP + 4 * UB + 256
L_M2 = L_XG2 + 4096
L_WV = L_M2 + 4096
L_XT = L_WV + 2048
L_W = 0
L_WD = 32768
L_RED = L_WD + 16384
L_FKEY = L_RED + 2048
LDS_BYTES = 84 * 1024
MF = "v_mfma_f32_16x16x32_bf16"
LOG2E = 0x3fb8aa3b
DPPM = "row_mask:0xf bank_mask:0xf"
HIM = "0xffff0000"
NVGPR = 168


class S:
    WAVE = 3
    PX = 4
    T0, T1, T2, T3, T4, T5 = 6, 7, 8, 9, 10, 11
    EX = 12
    EY = 14
    PWR, PWG, PWU, PWD, PGW, POUT, PDBG, PWS = 16, 18, 20, 22, 24, 26, 28, 30
    L0, L1, SPT, PIE = 32, 33, 34, 35
    RWS, ROUT = 36, 40
    XS = 44
    GKEY, WSEL, WHICH, Z = 44, 45, 46, 47
    SI0, SI1, ID8, BLK = 48, 49, 50, 51
    IDX, ISZ, TC = 54, 55, 53
    SO = 44
    T1C, HH, TD, TM = 56, 57, 58, 59
    FJ, PO, POL, RC, KM, SPIN = 60, 61, 62, 63, 64, 65
    PO0, L10, T20, FKEY, FIN = 40, 41, 42, 43, 35
    ST = 68


def gen(a, o):
    name = NAME + "_kernel"
    kernel_head(a, name)
    VE, VTAG = 30, 31
    PXS = f"s[{S.PX}:{S.PX+1}]"

    def stamp(i):
        if o.stamps:
            a(f"s_memrealtime s[{S.ST+2*i}:{S.ST+2*i+1}]")

    def hold(cp):
        if o.hold and o.hold[0] == cp:
            l = a.L("hold")
            a.label(l)
            a("s_sleep 1")
            a("s_memrealtime s[100:101]")
            a("s_waitcnt lgkmcnt(0)")
            a("s_sub_u32 s100, s100, s66")
            a(f"s_cmp_lt_u32 s100, {o.hold[1]}")
            a(f"s_cbranch_scc1 {l}")

    def touch(pre, n, first, step, back=None, tail=None):
        a("s_mov_b64 exec, 0")
        a(f"s_sub_u32 s{S.TC}, s{S.WAVE}, {first + step}")
        a.label(f"{pre}back")
        a(f"s_add_u32 s{S.TC}, s{S.TC}, {step}")
        for k in range(n):
            a(f"s_cmp_eq_u32 s{S.TC}, {k}")
            a(f"s_cbranch_scc1 {pre}{k}")
        a("s_mov_b64 exec, -1")

    def endprog():
        if o.stamps:
            a("s_waitcnt lgkmcnt(0)")
            a(f"s_add_u32 s{S.ST+28}, s{S.RC}, s{S.ST+30}")
            for i in range(16):
                a(f"v_writelane_b32 v166, s{S.ST+2*i}, {i}")
            a("s_mov_b64 exec, 0xffff")
            a(f"s_lshl4_add_u32 s{S.T0}, s2, s{S.WAVE}")
            a(f"s_lshl_b32 s{S.T0}, s{S.T0}, 7")
            a(f"s_add_u32 s{S.T0}, s{S.T0}, {WS_STAMP}")
            a(f"v_lshl_add_u32 v165, v0, 3, s{S.T0}")
            a("v_mov_b32 v167, 0")
            a(f"global_store_dwordx2 v165, v[166:167], s[{S.PWS}:{S.PWS+1}]")
        a("s_endpgm")

    def spin():
        a(f"s_add_u32 s{S.SPIN}, s{S.SPIN}, 1")
        a(f"s_lshr_b32 s{S.SPT}, s{S.SPIN}, {o.spin}")

    def poll_setup(base, R, C):
        a(f"s_and_b32 s{S.PO}, s2, {R-1}")
        a(f"s_mul_i32 s{S.PO}, s{S.PO}, {1024*C}")
        a(f"s_add_u32 s{S.PO}, s{S.PO}, {base}")
        a(f"s_add_u32 s{S.POL}, s{S.PO}, {1024*(C-1)}")

    def set_exec(n):
        if n >= 64:
            a("s_mov_b64 exec, -1")
        elif n <= 31:
            a(f"s_mov_b64 exec, {(1 << n) - 1:#x}")
        else:
            a("s_mov_b32 exec_lo, -1")
            a(f"s_mov_b32 exec_hi, {(1 << (n - 32)) - 1:#x}")

    RS = 8 if o.spec else 0
    RF, CF = o.mf
    RZ, CZ = o.mz
    R2, C2 = o.m2
    assert RF * CF + RZ * CZ + R2 * C2 + RS <= 64

    def poll_granules(vaddr, vd, sleep=0, step=1024):
        l = a.L("poll")
        if sleep:
            a(f"s_branch {l}_1")
        a.label(l)
        if sleep:
            a(f"s_sleep {sleep}")
            a.label(f"{l}_1")
        a(f"buffer_load_dwordx4 {V(vd,4)}, v{vaddr}, {R4(S.RWS)}, s{S.PO} offen sc1")
        a(f"s_add_u32 s{S.PO}, s{S.PO}, {step}")
        a(f"s_min_u32 s{S.PO}, s{S.PO}, s{S.POL}")
        if o.stamps:
            a(f"s_add_u32 s{S.RC}, s{S.RC}, 1")
        spin()
        a("s_waitcnt vmcnt(0)")
        a(f"s_cbranch_scc1 {l}_ok")
        a(f"v_cmp_ne_u32 vcc, v{VTAG}, v{vd+1}")
        a(f"v_cmp_ne_u32 s[{S.EX}:{S.EX+1}], v{VTAG}, v{vd+3}")
        a(f"s_or_b64 vcc, vcc, s[{S.EX}:{S.EX+1}]")
        a(f"s_cbranch_vccnz {l}")
        a.label(f"{l}_ok")

    def wave_max_key(vd):
        a(f"v_max_u32 v{vd}, v{vd}, v{vd+2}")
        for r in (8, 4, 2, 1):
            a.nop(2)
            a(f"v_max_u32_dpp v{vd}, v{vd}, v{vd} row_ror:{r} {DPPM}")
        a(f"v_mov_b32 v{vd+1}, v{vd}")
        a.nop(2)
        a(f"v_permlane16_swap_b32 v{vd}, v{vd+1}")
        a(f"v_max_u32 v{vd}, v{vd}, v{vd+1}")
        a(f"v_mov_b32 v{vd+1}, v{vd}")
        a.nop(2)
        a(f"v_permlane32_swap_b32 v{vd}, v{vd+1}")
        a(f"v_max_u32 v{vd}, v{vd}, v{vd+1}")

    def lds_put(addr, v, tag=False):
        a(f"v_mov_b32 v9, {addr}")
        a("s_mov_b64 exec, 1")
        if tag:
            a(f"ds_write2_b32 v9, v{v}, v{VTAG} offset1:1")
        else:
            a(f"ds_write_b32 v9, v{v}")
        a("s_mov_b64 exec, -1")
        a("s_waitcnt lgkmcnt(0)")

    def sigmoid(d, s):
        a(f"v_mul_f32 v{d}, {LOG2E | 0x80000000:#x}, v{s}")
        a(f"v_exp_f32 v{d}, v{d}")
        a.nop(1)
        a(f"v_add_f32 v{d}, 1.0, v{d}")
        a(f"v_rcp_f32 v{d}, v{d}")
        a.nop(1)

    def rnd(d, s):
        a(f"v_cvt_pk_bf16_f32 v{d}, v{s}, v{s}")
        a(f"v_and_b32 v{d}, {HIM}, v{d}")

    def ws_setup():
        a.srd(S.RWS, S.PWS, WS_BYTES)
        a(f"s_mov_b32 s{S.SPIN}, 0")

    def tag_load():
        a(f"v_mov_b32 v{VTAG}, 0")
        a(f"global_load_dword v{VE}, v{VTAG}, s[{S.PWS}:{S.PWS+1}]")
        a(f"s_mov_b32 s{S.KM}, 0x9E3779B1")

    def tag_make():
        a(f"v_mul_lo_u32 v{VTAG}, v{VE}, s{S.KM}")
        a(f"v_add_u32 v{VTAG}, 0x7F4A7C15, v{VTAG}")

    a(f"s_load_dwordx2 s[{S.PX}:{S.PX+1}], s[0:1], {KA_X}")
    a(f"s_load_dwordx16 s[16:31], s[0:1], {KA_WR}")
    if o.stamps:
        for i in range(1, 16):
            a(f"s_mov_b32 s{S.ST+2*i}, 0")
        a(f"s_mov_b32 s{S.RC}, 0")
    stamp(0)
    if o.hold:
        a("s_memrealtime s[66:67]")
    a("v_lshrrev_b32 v1, 6, v0")
    a("v_and_b32 v0, 63, v0")
    a(f"v_readfirstlane_b32 s{S.WAVE}, v1")
    a("v_and_b32 v1, 15, v0")
    a("v_lshrrev_b32 v2, 4, v0")
    a(f"s_and_b32 s{S.T0}, s2, 7")
    a(f"s_sub_u32 s{S.WAVE}, s{S.WAVE}, 1")
    a(f"s_min_u32 s{S.WAVE}, s{S.WAVE}, 8")
    a(f"s_lshr_b32 s{S.T1}, s2, 3")
    a(f"s_cmp_ge_u32 s2, {NA}")
    a("s_cbranch_scc1 L_notA")
    if o.only == "F":
        a("s_endpgm")

    VROW, VG16, VSGN, VTR, VST = 3, 5, 8, 10, 11
    VLD, VUW, VUX, VUR0, VUR1 = 10, 11, 28, 29, 30
    XR, WR, GW, CO = 16, 24, 24, 24
    CM, AOP, ACC = 32, 96, 112
    LD, DA0, DA1, TP, X16, PK = 32, 64, 32, 80, 96, 48
    M1, GA, XG = 100, 148, 152
    Cc, Ss = 64, 68
    UO, PQ, M2 = 32, 48, 64

    def rows_setup(wreg):
        a(f"s_lshl3_add_u32 s{S.T5}, s{S.HH}, s{wreg}")
        a(f"s_lshl_b32 s{S.T5}, s{S.T5}, 7")
        a(f"s_add_u32 s{S.TD}, s{S.T5}, s{S.T1C}")
        a(f"s_sub_u32 s{S.TM}, 2048, s{S.TD}")
        a(f"s_cmp_eq_u32 s{S.TD}, 0")
        a(f"s_cselect_b32 s{S.TM}, 1024, s{S.TM}")
        a(f"s_lshl_b32 s{S.T4}, s{S.TD}, 10")
        a(f"s_lshl_b32 s{S.T5}, s{S.TM}, 10")
        a(f"v_add_u32 v6, s{S.T4}, v{VG16}")
        a(f"v_add_u32 v7, s{S.T5}, v{VG16}")

    def vrow_setup():
        a("v_and_b32 v6, 1, v2")
        a("v_lshlrev_b32 v6, 5, v6")
        a("v_lshl_add_u32 v6, v1, 6, v6")
        a("v_lshrrev_b32 v7, 1, v2")
        a(f"v_lshl_add_u32 v{VROW}, v7, 4, v6")

    def rows_load():
        a(f"global_load_dwordx4 {V(XR,4)}, v6, {PXS}")
        a(f"global_load_dwordx4 {V(XR+4,4)}, v7, {PXS}")

    def sgn_setup():
        a(f"v_lshlrev_b32 v{VSGN}, 31, v1")
        a(f"v_lshrrev_b32 v9, 16, v{VSGN}")
        a(f"v_or_b32 v{VSGN}, v{VSGN}, v9")

    def sgn_setup2():
        a(f"v_lshlrev_b32 v{VSGN}, 31, v1")
        a(f"v_lshrrev_b32 v14, 16, v{VSGN}")
        a(f"v_or_b32 v{VSGN}, v{VSGN}, v14")

    def tile_ids():
        a(f"s_bitcmp1_b32 s{S.T1}, 3")
        a(f"s_cselect_b32 s{S.T2}, s{S.T3}, s{S.T2}")
        a(f"s_and_b32 s{S.T3}, s{S.T1}, 7")
        a(f"s_lshl3_add_u32 s{S.BLK}, s{S.T2}, s{S.T3}")
        a(f"s_lshl_b32 s{S.PIE}, s{S.T2}, 5")
        a(f"s_add_u32 s{S.PIE}, s{S.PIE}, s{S.T3}")
        a(f"s_lshl_b32 s{S.PIE}, s{S.PIE}, 6")

    def vst_setup():
        a(f"v_mul_u32_u24 v{VST}, {CS}, v1")
        a(f"v_lshl_add_u32 v{VST}, v2, 4, v{VST}")

    def const_d2():
        R = 40
        a("v_lshlrev_b32 v6, 2, v2")
        a("v_cvt_f32_u32 v7, v1")
        a("v_cvt_f32_u32 v6, v6")
        a("v_mul_f32 v7, 0x3d800000, v7")
        for hf in range(2):
            if hf:
                a("v_add_f32 v7, 0x3d800000, v7")
            a("v_mul_f32 v9, v6, v7")
            for jj in range(4):
                a(f"v_cos_f32 v{Cc+jj}, v9")
                a(f"v_sin_f32 v{Ss+jj}, v9")
                if jj < 3:
                    a("v_add_f32 v9, v9, v7")
            a.nop(1)
            for jj in range(4):
                if hf == 0:
                    a(f"v_cvt_pk_bf16_f32 v{R+jj}, v{Cc+jj}, v{Ss+jj}")
                    a(f"v_cvt_pk_bf16_f32 v{R+8+jj}, -v{Ss+jj}, v{Cc+jj}")
                else:
                    a(f"v_cvt_pk_bf16_f32 v{R+4+jj}, v{Cc+jj}, -v{Ss+jj}")
                    a(f"v_cvt_pk_bf16_f32 v{R+12+jj}, -v{Ss+jj}, -v{Cc+jj}")
        for k in range(4):
            a(f"ds_write_b128 v{VG16}, {V(R+4*k,4)} offset:{L_M2 + 1024*k}")

    if o.touch:
        a("s_mov_b64 exec, 0")
        for k in range(9):
            a(f"s_cmp_eq_u32 s{S.WAVE}, {(k + 8) % 9}")
            a(f"s_cbranch_scc1 L_ta{k}")
        a.label("L_taback")
        a("s_mov_b64 exec, -1")
        a.label("L_ta_start")
    a(f"s_add_u32 s{S.T2}, s{S.T0}, 1")
    a(f"s_sub_u32 s{S.T3}, 15, s{S.T0}")
    a(f"s_cmp_eq_u32 s{S.WAVE}, 8")
    a("s_cbranch_scc1 L_ah")
    a(f"s_and_b32 s{S.HH}, s{S.T1}, 1")
    a(f"s_bitcmp1_b32 s{S.T1}, 1")
    a(f"s_cselect_b32 s{S.T4}, s{S.T3}, s{S.T2}")
    a(f"s_lshr_b32 s{S.T5}, s{S.T1}, 2")
    a(f"s_lshl4_add_u32 s{S.T1C}, s{S.T5}, s{S.T4}")
    a(f"v_lshlrev_b32 v{VG16}, 4, v0")
    a(f"v_mov_b32 v{VROW}, 0")
    a(f"s_cmp_lg_u32 s{S.T0}, 7")
    a("s_cbranch_scc1 L_k7")
    a(f"s_lshr_b32 s{S.T5}, s{S.T1}, 1")
    a(f"s_lshl3_add_u32 s{S.T1C}, s{S.T5}, 8")
    a(f"s_mov_b32 s{S.T2}, 0")
    a(f"s_cmp_eq_u32 s2, 127")
    a(f"s_cselect_b32 s{S.T1C}, 0, s{S.T1C}")
    a(f"s_cselect_b32 s{S.HH}, 0, s{S.HH}")
    a.label("L_k7")
    rows_setup(S.WAVE)
    a("s_waitcnt lgkmcnt(0)")
    rows_load()
    stamp(1)
    tile_ids()

    def tile_dma():
        a(f"s_lshl_b32 s{S.T4}, s{S.WAVE}, 11")
        a(f"s_add_u32 s{S.T5}, s{S.T4}, s{S.BLK}")
        a(f"s_lshl_b32 s{S.T5}, s{S.T5}, 7")
        a(f"s_mov_b32 m0, s{S.T4}")
        a("v_and_b32 v9, 7, v0")
        a("v_bfe_u32 v13, v0, 4, 1")
        a("v_xor_b32 v9, v9, v13")
        a("v_lshrrev_b32 v13, 3, v0")
        a(f"v_lshl_add_u32 v9, v9, 4, s{S.T5}")
        a("v_lshl_add_u32 v13, v13, 14, v9")
        a(f"global_load_lds_dwordx4 v13, {PXS}")
        a(f"s_add_u32 m0, s{S.T4}, 1024")
        a("v_add_u32 v13, 0x20000, v13")
        a(f"global_load_lds_dwordx4 v13, {PXS}")
        stamp(2)

    if not o.tlate:
        tile_dma()
    C1, S1, K = AOP, AOP + 4, AOP + 8
    a(f"s_lshr_b32 s{S.T0}, s{S.WAVE}, 2")
    a(f"s_and_b32 s{S.T1}, s{S.WAVE}, 1")
    a(f"s_bfe_u32 s{S.T2}, s{S.WAVE}, 0x10001")
    a(f"v_lshl_add_u32 v6, s{S.T0}, 4, v1")
    a(f"s_lshl3_add_u32 s{S.T3}, s{S.T2}, s{S.T1}")
    a(f"s_lshl_b32 s{S.T3}, s{S.T3}, 2")
    a("v_cvt_f32_u32 v6, v6")
    a(f"v_lshl_add_u32 v7, v2, 3, s{S.T3}")
    a("v_mul_f32 v6, 0x3c000000, v6")
    a("v_cvt_f32_u32 v7, v7")
    a("v_mul_f32 v7, v7, v6")
    for j in range(4):
        a(f"v_cos_f32 v{C1+j}, v7")
        a(f"v_sin_f32 v{S1+j}, v7")
        if j < 3:
            a("v_add_f32 v7, v7, v6")
    if o.tlate == 2:
        a(f"global_load_dwordx4 {V(WR,4)}, v{VG16}, s[{S.PWR}:{S.PWR+1}]")
        tile_dma()
    a(f"s_lshl_b32 s{S.T4}, s{S.T0}, 13")
    a(f"s_lshl_b32 s{S.T5}, s{S.T2}, 10")
    a(f"s_lshl3_add_u32 s{S.T5}, s{S.T1}, s{S.T5}")
    a(f"v_add_u32 v15, s{S.T4}, v{VG16}")
    a(f"v_add_u32 v9, s{S.T5}, v15")
    a(f"v_cvt_pk_bf16_f32 v{K+0}, v{C1}, v{C1+1}")
    a(f"v_cvt_pk_bf16_f32 v{K+1}, v{C1+2}, v{C1+3}")
    a(f"v_cvt_pk_bf16_f32 v{K+2}, -v{S1}, -v{S1+1}")
    a(f"v_cvt_pk_bf16_f32 v{K+3}, -v{S1+2}, -v{S1+3}")
    a("v_cmp_eq_f32 vcc, 0, v6")
    a(f"v_cvt_pk_bf16_f32 v{K+4}, v{C1}, -v{S1+1}")
    a(f"v_cvt_pk_bf16_f32 v{K+5}, -v{C1+2}, v{S1+3}")
    a(f"v_cvt_pk_bf16_f32 v{K+6}, -v{S1}, -v{C1+1}")
    a(f"v_cvt_pk_bf16_f32 v{K+7}, v{S1+2}, v{C1+3}")
    a(f"ds_write_b64 v9, {V(K,2)} offset:{L_CT}")
    a(f"ds_write_b64 v9, {V(K+4,2)} offset:{L_CT+4096}")
    a(f"ds_write_b64 v9, {V(K+6,2)} offset:{L_CT+6144}")
    a("s_mov_b64 exec, vcc")
    a(f"v_mov_b32 v{K+2}, 0xbf803f80")
    a(f"v_mov_b32 v{K+3}, 0xbf803f80")
    a("s_mov_b64 exec, -1")
    a(f"ds_write_b64 v9, {V(K+2,2)} offset:{L_CT+2048}")
    if o.tlate != 2:
        a(f"global_load_dwordx4 {V(WR,4)}, v{VG16}, s[{S.PWR}:{S.PWR+1}]")
    if o.tlate == 1:
        tile_dma()
    a("v_mov_b32 v12, 0")
    a("v_mov_b32 v13, 0")
    stamp(3)
    if o.b0:
        a("s_waitcnt lgkmcnt(0)")
        a("s_barrier")
        for k in range(2):
            for t in range(4):
                a(f"ds_read_b128 {V(CM+16*t+4*k,4)}, v15 offset:{L_CT + t*2048 + k*1024}")

    def dots(w, fill=()):
        fill = list(fill)

        def pad(n):
            while n and fill:
                a(fill.pop(0))
                n -= 1
            a.nop(n)

        for i in range(4):
            a(f"v_dot2c_f32_bf16 v12, v{XR+i}, v{w+i}")
            a(f"v_dot2c_f32_bf16 v13, v{XR+4+i}, v{w+i}")
        pad(3)
        a("v_permlane32_swap_b32 v12, v13")
        a("v_add_f32 v12, v12, v13")
        a("v_mov_b32 v13, v12")
        pad(2)
        a("v_permlane16_swap_b32 v12, v13")
        a("v_add_f32 v12, v12, v13")
        for r in (8, 4, 2, 1):
            pad(2)
            a(f"v_add_f32_dpp v12, v12, v12 row_ror:{r} {DPPM}")
        rnd(12, 12)
        for x in fill:
            a(x)

    a(f"s_waitcnt vmcnt({2 if o.tlate else 0})")
    stamp(4)
    dots(WR, [f"s_sub_u32 s{S.T4}, 0xffff, s{S.TD}", f"s_sub_u32 s{S.T5}, 0xffff, s{S.TM}", f"v_mov_b32 v4, s{S.T4}",
              f"v_writelane_b32 v4, s{S.T5}, 32", f"s_lshl3_add_u32 s{S.T4}, s{S.WAVE}, {L_KSL}",
              "v_lshrrev_b32 v9, 3, v0", f"v_add_u32 v9, s{S.T4}, v9",
              "v_bfe_u32 v6, v0, 2, 2", "v_and_b32 v14, 3, v0", f"v_lshl_add_u32 v14, v14, 1, s{S.T2}",
              f"v_lshl_add_u32 v{VTR}, v2, 3, v6", "v_lshrrev_b32 v6, 1, v6", "v_xor_b32 v14, v14, v6"])
    a("v_ashrrev_i32 v7, 31, v12")
    a("v_or_b32 v7, 0x80000000, v7")
    a("v_xor_b32 v7, v7, v12")
    a(f"v_and_b32 v7, {HIM}, v7")
    a("v_or_b32 v7, v7, v4")
    a("s_mov_b32 exec_lo, 1")
    a("s_mov_b32 exec_hi, 1")
    a("ds_write_b32 v9, v7")
    a("s_mov_b64 exec, -1")
    a(f"s_lshl_b32 s{S.T1}, s{S.T1}, 3")
    a(f"v_lshl_add_u32 v14, v14, 4, s{S.T1}")
    a(f"v_lshl_add_u32 v{VTR}, v{VTR}, 7, v14")
    a("v_lshlrev_b32 v9, 4, v2")
    a("s_waitcnt vmcnt(0) lgkmcnt(0)")
    hold("B1")
    a("s_barrier")
    stamp(5)
    a(f"ds_read_b128 v[28:31], v9 offset:{L_EXP}")
    for k in range(4):
        for h in range(2):
            a(f"ds_read_b64_tr_b16 {V(AOP+4*k+2*h,2)}, v{VTR} offset:{L_TILE + k*4096 + h*512}")
        if k < 2 and not o.b0:
            for t in range(4):
                a(f"ds_read_b128 {V(CM+16*t+4*k,4)}, v15 offset:{L_CT + t*2048 + k*1024}")
        if k == 1 and not o.b0:
            a("s_waitcnt lgkmcnt(9)")
    sgn_setup2()
    a(f"global_load_dwordx4 {V(GW,4)}, v{VG16}, s[{S.PGW}:{S.PGW+1}]")
    xors = [f"v_xor_b32 v{CM+t*16+8+4*kp+r}, v{CM+t*16+4*kp+r}, v{VSGN}" for kp in range(2) for t in range(4) for r in range(4)]
    misc = [f"s_mul_i32 s{S.SO}, s{S.T0}, {16*CS}",
            f"s_add_u32 s{S.SO}, s{S.SO}, s{S.PIE}",
            f"s_and_b32 s{S.T4}, s{S.WAVE}, 3",
            f"s_lshl_b32 s{S.T4}, s{S.T4}, 9",
            f"s_add_u32 s{S.SO}, s{S.SO}, s{S.T4}",
            f"s_add_u32 s{S.SO}, s{S.SO}, {WS_INT}",
            f"s_mov_b32 s{S.RWS}, s{S.PWS}", f"s_mov_b32 s{S.RWS+1}, s{S.PWS+1}", f"s_mov_b32 s{S.RWS+2}, {WS_BYTES:#x}",
            f"s_mov_b32 s{S.RWS+3}, 0x20000",
            f"s_add_u32 s{S.SO+1}, s{S.SO}, {32*CS}", f"s_mov_b32 s{S.T5}, 0xfffefffe", f"s_mov_b32 s{S.T4}, 0x07060302",
            f"v_mul_u32_u24 v{VST}, {CS}, v1", f"v_lshl_add_u32 v{VST}, v2, 4, v{VST}",
            ]
    fill = xors + misc
    for k in range(4):
        for t in range(4):
            if o.b0:
                if t == 0:
                    a(f"s_waitcnt lgkmcnt({6-2*k})")
            elif k == 0:
                a(f"s_waitcnt lgkmcnt({13-t})")
            elif k == 1:
                a(f"s_waitcnt lgkmcnt({7-t})")
            elif t == 0:
                a(f"s_waitcnt lgkmcnt({2 if k == 2 else 0})")
            c = "0" if k == 0 else V(ACC + 4 * t, 4)
            a(f"{MF} {V(ACC+4*t,4)}, {V(AOP+4*k,4)}, {V(CM+16*t+4*k,4)}, {c}")
            n = 4 if k < 2 else 2
            if k < 3 or t < 3:
                for _ in range(n):
                    if fill:
                        x = fill.pop(0)
                        if x != "TAGWAIT":
                            a(x)
    for x in fill:
        a(x)
    a("v_mov_b32 v12, 0")
    a("v_mov_b32 v13, 0")
    for h in range(2):
        for i in range(8):
            a(f"v_add_u32 v{ACC+8*h+i}, 0x10000, v{ACC+8*h+i}")
        for i in range(4):
            a(f"v_perm_b32 v{AOP+4*h+i}, v{ACC+8*h+4+i}, v{ACC+8*h+i}, s{S.T4}")
        for i in range(4):
            a(f"v_and_or_b32 v{AOP+4*h+i}, v{AOP+4*h+i}, s{S.T5}, v{28+i}")
        a(f"buffer_store_dwordx4 {V(AOP+4*h,4)}, v{VST}, {R4(S.RWS)}, s{S.SO+h} offen sc1")
    a(f"s_mov_b32 s{S.SPIN}, 0")
    a(f"s_mov_b32 s{S.ISZ}, 0")
    stamp(7)
    if o.only == "P1":
        a("s_endpgm")
    a.label("L_ta_end")

    gwait = [2]

    def gates(full):
        if full:
            a(f"s_waitcnt vmcnt({gwait[0]})")
        dots(GW)
        if full:
            a(f"s_lshl_b32 s{S.T0}, s{S.WAVE}, 11")
            a(f"v_add_u32 v6, s{S.T0}, v{VG16}")
            a(f"ds_write_b128 v6, {V(XR,4)} offset:{L_XT}")
            a(f"ds_write_b128 v6, {V(XR+4,4)} offset:{L_XT+1024}")
            a(f"v_lshl_add_u32 v7, v1, 6, s{S.T0}")
            a("v_lshl_add_u32 v7, v2, 3, v7")
            a("s_waitcnt lgkmcnt(0)")
            for r in range(2):
                a(f"ds_read2_b64 {V(XR+4*r,4)}, v7 offset0:{0} offset1:{4}" if False else f"ds_read_b64 {V(XR+4*r,2)}, v7 offset:{L_XT+1024*r}")
                a(f"ds_read_b64 {V(XR+4*r+2,2)}, v7 offset:{L_XT+1024*r+32}")
            vrow_setup()
        sigmoid(13, 12)
        rnd(13, 13)
        a("v_sub_f32 v14, 1.0, v13")
        rnd(14, 14)
        a(f"v_readlane_b32 s{S.T0}, v13, 0")
        a(f"v_readlane_b32 s{S.T1}, v13, 32")
        a(f"v_readlane_b32 s{S.T2}, v14, 0")
        a(f"v_readlane_b32 s{S.T3}, v14, 32")
        a(f"s_xor_b32 s{S.T4}, s{S.T0}, 0x80000000")
        a(f"s_cmp_eq_u32 s{S.TD}, 0")
        a(f"s_cselect_b32 s{S.T4}, 0, s{S.T4}")
        a(f"s_cselect_b32 s{S.T5}, 0, s{S.T1}")
        if not full:
            return
        a(f"v_mov_b32 v{CO}, s{S.T0}")
        a(f"v_mov_b32 v{CO+1}, s{S.T4}")
        a(f"v_mov_b32 v{CO+2}, s{S.T5}")
        a(f"v_mov_b32 v{CO+3}, s{S.T1}")
        a(f"v_mov_b32 v13, s{S.T2}")
        a(f"v_mov_b32 v14, s{S.T3}")
        a("s_waitcnt lgkmcnt(0)")
        for r in range(2):
            for i in range(4):
                a(f"v_lshlrev_b32 v{XG+8*r+2*i}, 16, v{XR+4*r+i}")
                a(f"v_and_b32 v{XG+8*r+2*i+1}, {HIM}, v{XR+4*r+i}")
            for i in range(8):
                a(f"v_mul_f32 v{XG+8*r+i}, v{13+r}, v{XG+8*r+i}")

    def addr_ur(wreg):
        a(f"s_mul_i32 s{S.T1}, s{wreg}, {2*UB}")
        a("v_bfe_u32 v7, v1, 1, 2")
        a("v_xor_b32 v7, v7, v2")
        a(f"v_lshl_add_u32 v7, v7, 4, s{S.T1}")
        a(f"v_lshl_add_u32 v{VUR0}, v1, 6, v7")
        a("v_sub_u32 v6, 16, v1")
        a("v_bfe_u32 v7, v6, 1, 2")
        a("v_xor_b32 v7, v7, v2")
        a(f"v_lshl_add_u32 v7, v7, 4, s{S.T1}")
        a(f"v_lshl_add_u32 v{VUR1}, v6, 6, v7")

    def addr_p2():
        a("v_lshlrev_b32 v6, 4, v1")
        a(f"v_lshl_add_u32 v{VLD}, v2, 13, v6")
        a(f"v_mul_u32_u24 v6, {4*UB}, v2")
        a("v_bfe_u32 v7, v1, 1, 2")
        a(f"v_xor_b32 v7, s{S.WAVE}, v7")
        a("v_lshl_add_u32 v7, v7, 4, v6")
        a(f"v_lshl_add_u32 v{VUW}, v1, 6, v7")
        a(f"s_lshl4_add_u32 s{S.T1}, s{S.WAVE}, 1024")
        a(f"v_mov_b32 v9, {L_DUMP - L_U2}")
        a(f"v_lshl_add_u32 v{VUX}, v0, 1, v9")
        a(f"v_lshl_add_u32 v7, v1, 1, s{S.T1}")
        a("s_mov_b32 exec_lo, 0x00ff00ff")
        a("s_mov_b32 exec_hi, 0x00ff00ff")
        a(f"v_add_u32 v{VUX}, v7, v6")
        a("s_mov_b64 exec, -1")

    EXP = 96

    def exp_setup():
        a("v_and_b32 v6, 3, v1")
        a("v_lshlrev_b32 v6, 4, v6")
        a(f"ds_read_b128 {V(EXP,4)}, v6 offset:{L_EXP}")
        a("s_waitcnt lgkmcnt(0)")

    def exp_make():
        a("v_lshlrev_b32 v6, 1, v1")
        a(f"v_lshrrev_b32 v6, v6, v{VTAG}")
        a("v_lshlrev_b32 v7, 15, v6")
        a("v_and_b32 v6, 1, v6")
        a("v_and_b32 v7, 0x10000, v7")
        a("v_or_b32 v6, v6, v7")
        a("v_lshlrev_b32 v7, 2, v1")
        a(f"ds_write_b32 v7, v6 offset:{L_EXP}")
        a("s_waitcnt lgkmcnt(0)")

    def const_d1():
        a("v_cvt_f32_u32 v6, v1")
        a(f"s_lshl_b32 s{S.T0}, s{S.WAVE}, 2")
        a(f"v_lshl_add_u32 v7, v2, 6, s{S.T0}")
        a("v_mul_f32 v6, 0x3b000000, v6")
        a("v_cvt_f32_u32 v7, v7")
        a("v_mul_f32 v15, 0x41800000, v6")
        a("v_mul_f32 v7, v7, v6")
        for ib in range(4):
            if ib:
                a("v_add_f32 v7, v7, v6")
            for j in range(4):
                src = "v7" if j == 0 else "v9"
                a(f"v_cos_f32 v{Cc+j}, {src}")
                a(f"v_sin_f32 v{Ss+j}, {src}")
                if j < 3:
                    a(f"v_add_f32 v9, {src}, v15")
            b = M1 + 12 * ib
            a(f"v_mov_b32 v{b+8}, 0")
            for p in range(2):
                a(f"v_cvt_pk_bf16_f32 v{b+p}, v{Cc+2*p}, v{Cc+2*p+1}")
                a(f"v_cvt_pk_bf16_f32 v{b+4+p}, -v{Ss+2*p}, -v{Ss+2*p+1}")
            for p in range(2):
                a(f"v_xor_b32 v{b+2+p}, v{b+p}, v{VSGN}")
                a(f"v_xor_b32 v{b+6+p}, v{b+4+p}, v{VSGN}")
        a("v_lshrrev_b32 v6, 1, v1")
        a(f"v_add_u32 v7, s{S.T0}, v6")
        a("v_and_b32 v9, 1, v1")
        a("v_lshl_add_u32 v7, v9, 3, v7")
        a("v_cvt_f32_u32 v7, v7")
        a("v_mul_f32 v7, 0x3d000000, v7")
        a("v_cos_f32 v7, v7")
        for ib in range(4):
            m = 0x00030003 << (2 * ib)
            a(f"s_mov_b32 exec_lo, {m:#x}")
            a(f"s_mov_b32 exec_hi, {m:#x}")
            a(f"v_cvt_pk_bf16_f32 v{M1+12*ib+8}, v7, -v7")
        a("s_mov_b64 exec, -1")
        for ib in range(4):
            for p in range(1, 4):
                a(f"v_mov_b32 v{M1+12*ib+8+p}, v{M1+12*ib+8}")

    def const_ga():
        a("v_lshrrev_b32 v6, 1, v1")
        a(f"s_lshl_b32 s{S.T0}, s{S.HH}, 10")
        a(f"s_add_u32 s{S.T0}, s{S.T0}, s{S.T1C}")
        a(f"v_lshl_add_u32 v6, v6, 7, s{S.T0}")
        a("v_and_b32 v7, 1, v1")
        a("v_lshlrev_b32 v9, 9, v7")
        l0, ld = a.L("g0"), a.L("gd")
        a(f"s_cmp_lg_u32 s{S.T1C}, 0")
        a(f"s_cbranch_scc1 {l0}")
        a("s_mov_b32 exec_lo, 0x00020002")
        a("s_mov_b32 exec_hi, 0x00020002")
        a("v_mov_b32 v6, 0x400")
        a("v_mov_b32 v9, 0")
        a("s_mov_b64 exec, -1")
        a.label(l0)
        a("v_lshlrev_b32 v7, 2, v2")
        a("v_mad_u32_u24 v9, v7, v6, v9")
        a("v_cvt_f32_u32 v6, v6")
        a("v_cvt_f32_u32 v9, v9")
        a("v_mul_f32 v6, 0x3a000000, v6")
        a("v_mul_f32 v9, 0x3a000000, v9")
        for jj in range(4):
            a(f"v_cos_f32 v{Cc+jj}, v9")
            a(f"v_sin_f32 v{Ss+jj}, v9")
            if jj < 3:
                a("v_add_f32 v9, v9, v6")
        a(f"s_and_b32 s{S.T1}, s{S.T1C}, 63")
        a.nop(1)
        for jj in range(4):
            a(f"v_cvt_pk_bf16_f32 v{GA+jj}, v{Cc+jj}, v{Ss+jj}")
        a(f"s_cmp_lg_u32 s{S.T1}, 0")
        a(f"s_cbranch_scc1 {ld}")
        a(f"s_lshr_b32 s{S.T1}, s{S.T1C}, 2")
        for jj in range(4):
            a(f"v_and_b32 v{GA+jj}, 0xffff, v{GA+jj}")
            a(f"v_lshlrev_b32 v{GA+jj}, s{S.T1}, v{GA+jj}")
        a.label(ld)

    def int_base():
        a(f"s_and_b32 s{S.T1}, s{S.T1C}, 63")
        a(f"s_mul_i32 s{S.L0}, s{S.T1}, {CS}")
        a(f"s_lshl_b32 s{S.T1}, s{S.WAVE}, 9")
        a(f"s_add_u32 s{S.L0}, s{S.L0}, s{S.T1}")
        a(f"s_add_u32 s{S.L0}, s{S.L0}, {WS_INT}")
        a(f"s_add_u32 s{S.L1}, s{S.L0}, 4096")

    def m2_addr():
        a(f"s_cmp_eq_u32 s{S.TD}, 0")
        a(f"s_cselect_b32 s{S.T0}, 0, 2048")
        a(f"v_add_u32 v4, s{S.T0}, v{VG16}")

    def int_loads(ah):
        for jj in range(4):
            so = S.L0 if jj < 2 else S.L1
            a(f"buffer_load_dwordx4 {V(LD+16*ah+4*jj,4)}, v{VLD}, {R4(S.RWS)}, s{so} offen offset:{(jj & 1)*2048 + ah*256} sc1")

    a.srd(S.ROUT, S.POUT, 0x200000)
    a(f"s_cmp_ge_u32 s{S.WAVE}, 4")
    a("s_cbranch_scc1 L_hi0")
    if o.prio & 1:
        a("s_setprio 2")
    pre = [lambda: (addr_p2(), int_base(), const_ga(), exp_setup()), const_d1, lambda: gates(True), lambda: (addr_ur(S.WAVE), m2_addr())]
    if o.gfirst:
        pre[1], pre[2] = pre[2], pre[1]
    for f in pre[:o.npre]:
        f()
    stamp(8)
    a(f"s_waitcnt vmcnt({0 if o.ackwait else 2})")
    if o.b3:
        a("s_barrier")
    if o.isleep0:
        a(f"s_sleep {o.isleep0}")
    hold("B4")
    stamp(9)
    if o.stag:
        a(f"s_cmp_lg_u32 s{S.HH}, 0")
        a("s_cbranch_scc1 L_stg1")
        int_loads(0)
        a(f"s_waitcnt vmcnt({4 - o.stag})")
        int_loads(1)
        a("s_branch L_stg2")
        a.label("L_stg1")
        int_loads(1)
        a(f"s_waitcnt vmcnt({4 - o.stag})")
        int_loads(0)
        a("s_waitcnt vmcnt(0)")
        a.label("L_stg2")
    else:
        int_loads(0)
        int_loads(1)
    gwait[0] = 10
    for f in pre[o.npre:]:
        f()
    gwait[0] = 2
    a.label("L_zjoin")
    stamp(10)
    for ah in range(2):
        a(f"s_waitcnt vmcnt({4-4*ah})")
        a.label(f"L_got{ah}")
        b = LD + 16 * ah
        da = DA1 if ah else DA0
        for ib in range(4):
            for jj in range(4):
                a(f"v_xor_b32 v{TP+4*ib+jj}, v{b+4*jj+ib}, v{EXP+ib}")
            if ib == 0:
                a(f"v_or3_b32 v6, v{TP}, v{TP+1}, v{TP+2}")
                a(f"v_or_b32 v6, v6, v{TP+3}")
            else:
                a(f"v_or3_b32 v6, v6, v{TP+4*ib}, v{TP+4*ib+1}")
                a(f"v_or3_b32 v6, v6, v{TP+4*ib+2}, v{TP+4*ib+3}")
            if ib == 3:
                a("v_and_b32 v6, 0x10001, v6")
                a("v_cmp_ne_u32 vcc, 0, v6")
            if not (ah == 1):
                a(f"{MF} {V(da+4*ib,4)}, {V(TP+4*ib,4)}, {V(GA,4)}, 0")
            else:
                a(f"{MF} {V(da+4*ib,4)}, {V(TP+4*ib,4)}, {V(GA,4)}, 0")
        a(f"s_cbranch_vccnz L_retry{ah}")
        a.label(f"L_fail{ah}")
    stamp(11)

    def d1(jb):
        a(f"{MF} {V(DA0+4*jb,4)}, {V(TP+4*jb,4)}, {V(M1+12*jb,4)}, 0")
        a(f"{MF} {V(DA1+4*jb,4)}, {V(TP+4*jb,4)}, {V(M1+12*jb+4,4)}, 0")
        a(f"{MF} {V(X16,4)}, {V(TP+4*jb,4)}, {V(M1+12*jb+8,4)}, {'0' if jb == 0 else V(X16,4)}")

    for ib in range(4):
        for p in range(4):
            s0 = (DA1 if p >= 2 else DA0) + 4 * ib + 2 * (p & 1)
            a(f"v_cvt_pk_bf16_f32 v{TP+4*ib+p}, v{s0}, v{s0+1}")
        if ib:
            d1(ib - 1)
    d1(3)
    for ib in range(3):
        for i in range(4):
            a(f"v_cvt_pk_bf16_f32 v{PK+4*i+ib}, v{DA0+4*ib+i}, v{DA1+4*ib+i}")
    for i in range(4):
        a(f"v_cvt_pk_bf16_f32 v{PK+4*i+3}, v{DA0+12+i}, v{DA1+12+i}")
        a(f"ds_write_b128 v{VUW}, {V(PK+4*i,4)} offset:{L_U2 + i*UB}")
    a(f"v_cvt_pk_bf16_f32 v{X16}, v{X16}, v{X16+1}")
    a(f"v_cvt_pk_bf16_f32 v{X16+2}, v{X16+2}, v{X16+3}")
    a(f"ds_write_b16 v{VUX}, v{X16} offset:{L_U2}")
    a(f"ds_write_b16_d16_hi v{VUX}, v{X16} offset:{L_U2+UB}")
    a(f"ds_write_b16 v{VUX}, v{X16+2} offset:{L_U2+2*UB}")
    a(f"ds_write_b16_d16_hi v{VUX}, v{X16+2} offset:{L_U2+3*UB}")
    a.label("L_d2")
    a(f"ds_read_b128 {V(M2,4)}, v{VG16} offset:{L_M2}")
    a(f"ds_read_b128 {V(M2+4,4)}, v{VG16} offset:{L_M2+1024}")
    a(f"ds_read_b128 {V(M2+8,4)}, v4 offset:{L_M2}")
    a(f"ds_read_b128 {V(M2+12,4)}, v4 offset:{L_M2+1024}")
    a(f"v_mov_b32 v9, {L_GKEY}")
    a(f"s_cmp_lg_u32 s{S.ISZ}, 0")
    a("s_waitcnt lgkmcnt(0)")
    a("s_cbranch_scc1 L_zsync")
    a("s_barrier")
    stamp(12)
    a("ds_read_b32 v6, v9")
    a(f"ds_read_b128 {V(UO,4)}, v{VUR0} offset:{L_U2}")
    a(f"ds_read_b128 {V(UO+4,4)}, v{VUR1} offset:{L_U2}")
    a(f"ds_read_b128 {V(UO+8,4)}, v{VUR0} offset:{L_U2+UB}")
    a(f"ds_read_b128 {V(UO+12,4)}, v{VUR1} offset:{L_U2+UB}")
    a(f"s_lshl_b32 s{S.T0}, s{S.TD}, 10")
    a(f"s_lshl_b32 s{S.T1}, s{S.TM}, 10")
    for k in range(4):
        a(f"s_waitcnt lgkmcnt({3-k})")
        a(f"{MF} {V(PQ+4*k,4)}, {V(UO+4*k,4)}, {V(M2+4*k,4)}, 0")
    a(f"v_readfirstlane_b32 s{S.GKEY}, v6")
    a(f"s_andn2_b32 s{S.IDX}, 0xffff, s{S.GKEY}")
    for r in range(2):
        for i in range(8):
            a(f"v_fmac_f32 v{XG+8*r+i}, v{CO+2*r}, v{PQ+i}")
    for r, (so, tr) in enumerate(((S.T0, S.TD), (S.T1, S.TM))):
        for i in range(8):
            a(f"v_fmac_f32 v{XG+8*r+i}, v{CO+2*r+1}, v{PQ+8+i}")
        for i in range(4):
            a(f"v_cvt_pk_bf16_f32 v{UO+4*r+i}, v{XG+8*r+2*i}, v{XG+8*r+2*i+1}")
        l = a.L("skip")
        if r == 0:
            stamp(6)
        a(f"s_cmp_eq_u32 s{tr}, s{S.IDX}")
        a(f"s_cbranch_scc1 {l}")
        a(f"v_permlane16_swap_b32 v{UO+4*r}, v{UO+4*r+2}")
        a(f"v_permlane16_swap_b32 v{UO+4*r+1}, v{UO+4*r+3}")
        a(f"buffer_store_dwordx4 {V(UO+4*r,4)}, v{VROW}, {R4(S.ROUT)}, s{so} offen{o.outpol}")
        a.label(l)
    a.label("L_tb_end")
    stamp(13)
    if o.stamps:
        a("s_waitcnt vmcnt(0)")
        stamp(15)
    endprog()

    for ah in range(2):
        a.label(f"L_retry{ah}")
        if o.stamps:
            a(f"s_add_u32 s{S.RC}, s{S.RC}, {1 << (8*ah)}")
        if o.rsleep:
            a(f"s_sleep {o.rsleep}")
        spin()
        a(f"s_cbranch_scc1 L_fail{ah}")
        int_loads(ah)
        a("s_waitcnt vmcnt(0)")
        a(f"s_branch L_got{ah}")

    a.label("L_hi0")
    if o.b3:
        if o.ackwait:
            a("s_waitcnt vmcnt(0)")
        a("s_barrier")
    a.label("L_hi1")
    if o.atouch:
        touch("L_tb", o.atouch, 4, 4)
        a(f"s_cmp_lg_u32 s{S.ISZ}, 0")
        a("s_cbranch_scc1 L_z0b")
    gates(True)
    addr_ur(S.WAVE)
    m2_addr()
    stamp(10)
    a("s_branch L_d2")

    a.label("L_ah")
    if o.prio & 2:
        a("s_setprio 3")
    if o.cpf:
        a(f"s_cmp_ge_u32 s{S.T1}, {o.cpf}")
        a("s_cbranch_scc1 L_nocpf")
        a(f"s_getpc_b64 s[{S.EX}:{S.EX+1}]")
        a.label("L_pc")
        a(f"s_sub_u32 s{S.EX}, s{S.EX}, L_pc - {name}")
        a(f"s_subb_u32 s{S.EX+1}, s{S.EX+1}, 0")
        a("v_lshlrev_b32 v6, 7, v0")
        a("v_add_u32 v7, 0x2000, v6")
        a(f"v_min_u32 v7, L_end - {name}, v7")
        a(f"global_load_dword v12, v6, s[{S.EX}:{S.EX+1}]")
        a(f"global_load_dword v13, v7, s[{S.EX}:{S.EX+1}]")
        a.label("L_nocpf")
    a(f"v_lshlrev_b32 v{VG16}, 4, v0")
    a(f"v_mov_b32 v{VTAG}, 0")
    a(f"s_mov_b32 s{S.KM}, 0x9E3779B1")
    a(f"s_cmp_ge_u32 s{S.T1}, {o.wpf}")
    a("s_waitcnt lgkmcnt(0)")
    a("s_cbranch_scc1 L_nowpf")
    a(f"global_load_dwordx4 v[32:35], v{VG16}, s[{S.PWR}:{S.PWR+1}]")
    a(f"global_load_dword v{VE}, v{VTAG}, s[{S.PWS}:{S.PWS+1}]")
    a(f"global_load_dwordx4 v[36:39], v{VG16}, s[{S.PGW}:{S.PGW+1}]")
    a.label("L_nowpf")
    stamp(1)
    a("v_lshlrev_b32 v14, 10, v0")
    a(f"s_lshl_b32 s{S.ID8}, s2, 3")
    a(f"s_add_u32 s{S.ID8}, s{S.ID8}, {WS_KEY}")
    ws_setup()

    const_d2()
    stamp(2)
    if o.b0:
        a("s_barrier")
    a(f"global_load_dword v{VE}, v{VTAG}, s[{S.PWS}:{S.PWS+1}]")
    a(f"v_mov_b32 v9, {L_KSL}")
    a("s_waitcnt vmcnt(0)")
    tag_make()
    exp_make()
    a(f"v_mov_b32 v9, {L_KSL}")
    stamp(3)
    a("s_barrier")
    for i in range(4):
        a(f"ds_read_b128 {V(40+4*i,4)}, v9 offset:{16*i}")
    set_exec(RF * CF + RZ * CZ + R2 * C2 + RS)
    a("s_waitcnt lgkmcnt(2)")
    a("v_max3_u32 v6, v40, v41, v42")
    a("v_max3_u32 v7, v43, v44, v45")
    a("v_max3_u32 v6, v46, v47, v6")
    a("s_waitcnt lgkmcnt(0)")
    a("v_max3_u32 v7, v48, v49, v7")
    a("v_max3_u32 v6, v50, v51, v6")
    a("v_max3_u32 v7, v52, v53, v7")
    a("v_max3_u32 v6, v54, v55, v6")
    a(f"v_max_u32 v{VE}, v6, v7")
    a(f"buffer_store_dwordx2 v[{VE}:{VTAG}], v14, {R4(S.RWS)}, s{S.ID8} offen sc1")
    a("s_mov_b64 exec, -1")
    stamp(5)
    if o.only == "P1":
        a("s_endpgm")
    poll_setup(WS_KEY + 1024 * (RF * CF + RZ * CZ), R2, C2)
    a("s_waitcnt vmcnt(0)")
    if o.b3:
        a("s_barrier")
    a(f"s_sleep {o.k2sleep0}")
    stamp(8)
    poll_granules(VG16, 32, sleep=o.k2sleep)
    stamp(9)
    wave_max_key(32)
    lds_put(L_GKEY, 32)
    a("s_barrier")
    endprog()

    a.label("L_notA")
    if o.only == "AA":
        a("s_endpgm")
    a(f"s_lshl4_add_u32 s{S.FJ}, s{S.T0}, s{S.T1}")
    a(f"s_sub_u32 s{S.FJ}, s{S.FJ}, 16")
    a(f"s_cmp_ge_u32 s2, {NWG}")
    a("s_cbranch_scc1 L_end")
    a(f"s_cmp_lt_u32 s{S.T0}, 4")
    a("s_cbranch_scc1 L_F")
    a(f"s_mul_i32 s{S.FJ}, s{S.T0}, 12")
    a(f"s_add_u32 s{S.FJ}, s{S.FJ}, s{S.T1}")
    a(f"s_cmp_lt_u32 s{S.T1}, 28")
    a("s_cbranch_scc1 L_F")
    a(f"s_mov_b32 s{S.ISZ}, 1")
    a(f"s_lshl2_add_u32 s{S.Z}, s{S.T0}, s{S.T1}")
    a(f"s_sub_u32 s{S.Z}, s{S.Z}, 44")
    vrow_setup()
    a(f"v_lshlrev_b32 v{VG16}, 4, v0")
    sgn_setup()
    a("s_waitcnt lgkmcnt(0)")
    ws_setup()
    a.srd(S.ROUT, S.POUT, 0x200000)
    addr_p2()
    a(f"s_cmp_eq_u32 s{S.WAVE}, 8")
    a("s_cbranch_scc1 L_zh")
    a(f"s_cmp_ge_u32 s{S.WAVE}, 4")
    a("s_cbranch_scc1 L_z0")
    const_d1()
    a("s_branch L_z1")
    a.label("L_z0")
    if o.atouch:
        a("s_branch L_hi1")
    a.label("L_z0b")
    if o.ztouch:
        touch("L_tz", o.ztouch, 4, 4)
    a.label("L_z1")
    a(f"v_mov_b32 v9, {L_KSL}")
    a("v_mov_b32 v12, 0")
    a("v_mov_b32 v13, 0")
    a("s_barrier")
    a(f"ds_read_b64 v[{VE}:{VTAG}], v9")
    a(f"ds_read_b128 {V(GW,4)}, v{VG16} offset:{L_WV+1024}")
    a("s_waitcnt lgkmcnt(0)")
    a(f"v_readfirstlane_b32 s{S.GKEY}, v{VE}")
    a(f"s_andn2_b32 s{S.IDX}, 2047, s{S.GKEY}")
    a(f"s_and_b32 s{S.T0}, s{S.IDX}, 127")
    a(f"s_cmp_gt_u32 s{S.T0}, 64")
    a(f"s_cselect_b32 s{S.WHICH}, 1, 0")
    a(f"s_and_b32 s{S.T0}, s{S.IDX}, {1024 + 63}")
    a(f"s_cmp_eq_u32 s{S.T0}, 1024")
    a(f"s_cselect_b32 s{S.WHICH}, 1, s{S.WHICH}")
    a(f"s_sub_u32 s{S.T0}, 2048, s{S.IDX}")
    a(f"s_cmp_lg_u32 s{S.WHICH}, 0")
    a(f"s_cselect_b32 s{S.T0}, s{S.T0}, s{S.IDX}")
    a(f"s_cmp_eq_u32 s{S.T0}, 1024")
    a(f"s_cselect_b32 s{S.T0}, 0, s{S.T0}")
    a(f"s_and_b32 s{S.T1C}, s{S.T0}, 127")
    a(f"s_lshr_b32 s{S.HH}, s{S.T0}, 10")
    a(f"s_bfe_u32 s{S.WSEL}, s{S.T0}, 0x30007")
    rows_setup(S.WSEL)
    a(f"s_cmp_ge_u32 s{S.WAVE}, 4")
    a("s_cbranch_scc1 L_z4")
    int_base()
    if o.zisleep0:
        a(f"s_sleep {o.zisleep0}")
    stamp(9)
    int_loads(0)
    int_loads(1)
    const_ga()
    exp_setup()
    addr_ur(S.WSEL)
    m2_addr()
    a("v_lshlrev_b32 v6, 7, v1")
    a(f"v_lshl_add_u32 v15, v2, 4, v6")
    a("s_branch L_zjoin")
    a.label("L_z4")
    a(f"s_cmp_ge_u32 s{S.WAVE}, 6")
    a("s_cbranch_scc1 L_zend2")
    rows_load()
    a(f"s_sub_u32 s{S.T0}, s{S.WAVE}, 4")
    a(f"s_lshl1_add_u32 s{S.T1}, s{S.Z}, s{S.T0}")
    a(f"s_lshl_b32 s{S.T1}, s{S.T1}, 5")
    a("v_and_b32 v6, 7, v0")
    a(f"v_lshl_add_u32 v10, v6, 2, s{S.T1}")
    a(f"s_lshl_b32 s{S.T2}, s{S.IDX}, 10")
    a(f"v_add_u32 v7, s{S.T2}, v10")
    a(f"global_load_dword v35, v7, {PXS}")
    a("v_lshlrev_b32 v10, 1, v10")
    a("v_lshrrev_b32 v7, 3, v0")
    a("v_lshlrev_b32 v7, 8, v7")
    a("v_lshl_add_u32 v11, v6, 4, v7")
    a(f"s_mul_i32 s{S.SI0}, s{S.Z}, {PZ}")
    a(f"s_lshl_b32 s{S.T0}, s{S.T0}, 7")
    a(f"s_add_u32 s{S.SI0}, s{S.SI0}, s{S.T0}")
    a(f"s_add_u32 s{S.SI0}, s{S.SI0}, {WS_PART}")
    a(f"s_add_u32 s{S.SI1}, s{S.SI0}, {(o.pc-1)*PARTC}")
    a(f"s_and_b32 s{S.T0}, s{S.GKEY}, 0xffff0000")
    a(f"s_xor_b32 s{S.T1}, s{S.T0}, 0x80000000")
    a(f"s_xor_b32 s{S.T3}, s{S.T0}, 0xffff0000")
    a(f"s_bitcmp1_b32 s{S.T0}, 31")
    a(f"s_cselect_b32 s{S.T0}, s{S.T1}, s{S.T3}")
    a(f"v_mov_b32 v15, s{S.T0}")
    sigmoid(15, 15)
    rnd(15, 15)
    a("s_waitcnt vmcnt(0)")
    gates(False)
    a(f"s_cmp_lg_u32 s{S.WHICH}, 0")
    a(f"s_cselect_b32 s{S.T2}, s{S.T3}, s{S.T2}")
    a(f"s_cselect_b32 s{S.T0}, s{S.T5}, s{S.T0}")
    a(f"s_cselect_b32 s{S.T4}, s{S.T1}, s{S.T4}")
    a(f"v_xor_b32 v{VTAG}, s{S.IDX}, v{VTAG}")
    a(f"v_mov_b32 v36, s{S.T2}")
    a(f"v_mov_b32 v{CO}, s{S.T0}")
    a(f"v_mov_b32 v{CO+1}, s{S.T4}")
    a("v_lshlrev_b32 v34, 16, v35")
    a(f"v_and_b32 v35, {HIM}, v35")
    if o.psleep0:
        a(f"s_sleep {o.psleep0}")
    hold("pp")
    a(f"v_mov_b32 v9, {L_ZF}")
    a.label("L_tz_start")
    stamp(10)
    if o.psleep:
        a("s_branch L_zp1")
    a.label("L_zp")
    if o.psleep:
        a(f"s_sleep {o.psleep}")
        a.label("L_zp1")
    for i in range(7):
        if i and i % 2 == 0:
            a(f"s_add_u32 s{S.T0}, s{S.SI0}, {2048*i}")
        a(f"buffer_load_dwordx4 {V(40+4*i,4)}, v11, {R4(S.RWS)}, s{S.T0 if i >= 2 else S.SI0} offen offset:{2048*(i&1)} sc1")
    a(f"s_add_u32 s{S.SI0}, s{S.SI0}, {PARTC}")
    a(f"s_min_u32 s{S.SI0}, s{S.SI0}, s{S.SI1}")
    if o.stamps:
        a(f"s_add_u32 s{S.RC}, s{S.RC}, 256")
    spin()
    a("s_cbranch_scc1 L_zp_ok")
    for i in range(7):
        a(f"s_waitcnt vmcnt({6-i})")
        a(f"v_bitop3_b32 v{37 if i == 0 else 38 + (i & 1)}, v{41+4*i}, v{43+4*i}, v{VTAG} bitop3:0x7e")
        if i:
            a(f"v_add_f32 v40, v40, v{40+4*i}")
            a(f"v_add_f32 v42, v42, v{42+4*i}")
        if i and i % 2 == 0:
            a("v_or3_b32 v37, v37, v38, v39")
    a("v_cmp_ne_u32 vcc, 0, v37")
    a.nop(1)
    a("s_cbranch_vccnz L_zp")
    a.label("L_zp_ok")
    a("ds_read_b32 v12, v9")
    a(f"ds_read_b64 v[32:33], v10 offset:{L_XG2}")
    a(f"ds_read_b64 v[16:17], v10 offset:{L_XG2+2048}")
    a("v_lshrrev_b32 v11, 1, v10")
    a(f"s_lshl_b32 s{S.T2}, s{S.IDX}, 10")
    a("s_waitcnt vmcnt(0)")
    stamp(11)
    a(f"v_add_f32_dpp v40, v40, v40 row_ror:8 {DPPM}")
    a(f"v_add_f32_dpp v42, v42, v42 row_ror:8 {DPPM}")
    a.nop(1)
    a.nop(1)
    a("v_permlane16_swap_b32 v40, v42")
    a("v_add_f32 v40, v40, v42")
    a("v_mov_b32 v42, v40")
    a.nop(2)
    a("v_permlane32_swap_b32 v40, v42")
    a("v_add_f32 v40, v40, v42")
    a("v_mov_b32 v42, v40")
    a.nop(2)
    a("v_permlane16_swap_b32 v40, v42")
    a("v_cvt_pk_bf16_f32 v41, v40, v42")
    a("v_lshlrev_b32 v40, 16, v41")
    a(f"v_and_b32 v42, {HIM}, v41")
    a("v_mul_f32 v40, v40, v15")
    a("v_mul_f32 v42, v42, v15")
    a("v_cvt_pk_bf16_f32 v41, v40, v42")
    a("v_lshlrev_b32 v40, 16, v41")
    a(f"v_and_b32 v42, {HIM}, v41")
    a("v_add_f32 v40, v40, v34")
    a("v_add_f32 v42, v42, v35")
    a("v_cvt_pk_bf16_f32 v41, v40, v42")
    a("v_lshlrev_b32 v40, 16, v41")
    a(f"v_and_b32 v42, {HIM}, v41")
    a.label("L_zw")
    a("s_waitcnt lgkmcnt(0)")
    a("v_cmp_eq_u32 vcc, 0, v12")
    a(f"v_mul_f32 v32, v{CO}, v32")
    a(f"v_mul_f32 v33, v{CO}, v33")
    a("s_cbranch_vccz L_zw_ok")
    spin()
    a("s_cbranch_scc1 L_zw_ok")
    a("ds_read_b32 v12, v9")
    a(f"ds_read_b64 v[32:33], v10 offset:{L_XG2}")
    a(f"ds_read_b64 v[16:17], v10 offset:{L_XG2+2048}")
    a("s_branch L_zw")
    a.label("L_zw_ok")
    a(f"v_fmac_f32 v32, v{CO+1}, v16")
    a(f"v_fmac_f32 v33, v{CO+1}, v17")
    a("v_fmac_f32 v32, v40, v36")
    a("v_fmac_f32 v33, v42, v36")
    a("v_cvt_pk_bf16_f32 v32, v32, v33")
    a("s_mov_b64 exec, 0xff")
    a(f"buffer_store_dword v32, v11, {R4(S.ROUT)}, s{S.T2} offen{o.zpol}")
    a("s_mov_b64 exec, -1")
    stamp(13)
    a("s_barrier")
    endprog()

    a.label("L_zsync")
    a(f"v_mov_b32 v9, {L_ZC}")
    a("v_mov_b32 v6, 1")
    a("s_mov_b64 exec, 1")
    a("ds_add_u32 v9, v6")
    a("s_mov_b64 exec, -1")
    a(f"s_cmp_lg_u32 s{S.WAVE}, 0")
    a("s_cbranch_scc1 L_zend")
    a.label("L_zs")
    a("ds_read_b32 v6, v9")
    spin()
    a("s_waitcnt lgkmcnt(0)")
    a("s_cbranch_scc1 L_zs_ok")
    a("v_cmp_ne_u32 vcc, 4, v6")
    a.nop(1)
    a("s_cbranch_vccnz L_zs")
    a.label("L_zs_ok")
    stamp(12)
    a(f"ds_read_b128 {V(UO,4)}, v{VUR0} offset:{L_U2}")
    a(f"ds_read_b128 {V(UO+4,4)}, v{VUR1} offset:{L_U2}")
    a(f"ds_read_b128 {V(UO+8,4)}, v{VUR0} offset:{L_U2+UB}")
    a(f"ds_read_b128 {V(UO+12,4)}, v{VUR1} offset:{L_U2+UB}")
    for k in range(4):
        a(f"s_waitcnt lgkmcnt({3-k})")
        a(f"{MF} {V(PQ+4*k,4)}, {V(UO+4*k,4)}, {V(M2+4*k,4)}, 0")
    a.nop(3)
    for k in range(4):
        if k == 2:
            a.nop(2)
        a(f"ds_write_b128 v15, {V(PQ+4*k,4)} offset:{L_XG2 + 64*(k&1) + 2048*(k>>1)}")
    a(f"v_mov_b32 v9, {L_ZF}")
    a("s_waitcnt lgkmcnt(0)")
    a("ds_write_b32 v9, v9")
    a("s_waitcnt lgkmcnt(0)")
    stamp(13)
    a.label("L_zend")
    endprog()
    a.label("L_zend2")
    if o.hold and o.hold[0] == "end":
        a("s_barrier")
    hold("end")
    endprog()

    a.label("L_zh")
    a(f"v_mov_b32 v9, {L_ZF}")
    a("v_mov_b32 v6, 0")
    a("ds_write2_b32 v9, v6, v6 offset1:1")
    const_d2()
    a(f"s_mov_b32 m0, {L_WV+1024}")
    tag_load()
    a(f"global_load_lds_dwordx4 v{VG16}, s[{S.PGW}:{S.PGW+1}]")
    a("s_waitcnt vmcnt(0)")
    tag_make()
    exp_make()
    poll_setup(WS_KEY + 1024 * RF * CF, RZ, CZ)
    if o.zsleep0:
        a(f"s_sleep {o.zsleep0}")
    stamp(1)
    poll_granules(VG16, 32, sleep=o.zsleep)
    stamp(2)
    wave_max_key(32)
    lds_put(L_KSL, 32, tag=True)
    a("s_barrier")
    a(f"s_lshl_b32 s{S.T0}, s{S.Z}, 2")
    a(f"s_add_u32 s{S.T0}, s{S.T0}, {WS_ALIVE}")
    a("s_mov_b64 exec, 1")
    a(f"buffer_store_dword v{VTAG}, v0, {R4(S.RWS)}, s{S.T0} offen sc1")
    a("s_mov_b64 exec, -1")
    a(f"s_cmp_lg_u32 s{S.Z}, 0")
    a("s_cbranch_scc1 L_zend")
    a("s_mov_b64 exec, 0xffff")
    a("v_lshlrev_b32 v6, 2, v0")
    a(f"s_mov_b32 s{S.T0}, {WS_ALIVE}")
    a("s_waitcnt vmcnt(0)")
    a("s_sleep 24")
    a.label("L_za")
    a(f"buffer_load_dword v7, v6, {R4(S.RWS)}, s{S.T0} offen sc1")
    spin()
    a("s_waitcnt vmcnt(0)")
    a("s_cbranch_scc1 L_za_ok")
    a(f"v_cmp_ne_u32 vcc, v{VTAG}, v7")
    a.nop(1)
    a("s_cbranch_vccnz L_za")
    a.label("L_za_ok")
    a("s_mov_b64 exec, 1")
    a(f"v_add_u32 v9, 1, v{VE}")
    a("s_barrier")
    a(f"buffer_store_dword v9, v6, {R4(S.RWS)}, 0 offen sc1")
    a("s_mov_b64 exec, -1")
    a("s_branch L_zend")

    a.label("L_F")
    if o.only == "A":
        a("s_endpgm")
    WG_, WD_ = 32, 48
    a("v_lshlrev_b32 v5, 4, v0")
    a(f"s_cmp_eq_u32 s{S.WAVE}, 8")
    a("s_cbranch_scc1 L_fh")
    a(f"s_and_b32 s{S.T0}, s{S.FJ}, 3")
    a(f"s_lshr_b32 s{S.T1}, s{S.WAVE}, 1")
    a(f"s_lshl2_add_u32 s{S.L0}, s{S.T0}, s{S.T1}")
    a(f"s_mul_i32 s{S.T2}, s{S.L0}, {32*3584}")
    a(f"s_lshr_b32 s{S.L1}, s{S.FJ}, 2")
    a(f"s_lshl_b32 s{S.T3}, s{S.L1}, 7")
    a(f"s_add_u32 s{S.T2}, s{S.T2}, s{S.T3}")
    a("v_lshrrev_b32 v6, 3, v0")
    a("v_mul_u32_u24 v6, 3584, v6")
    a("v_and_b32 v7, 7, v0")
    a("v_bfe_u32 v8, v0, 4, 1")
    a("v_lshlrev_b32 v8, 2, v8")
    a("v_xor_b32 v4, v7, v8")
    a(f"v_lshl_add_u32 v7, v4, 4, s{S.T2}")
    a("v_add_u32 v3, v6, v7")
    a(f"s_lshl_b32 s{S.T4}, s{S.WAVE}, 12")
    a(f"s_mov_b32 m0, s{S.T4}")
    a(f"s_bitcmp1_b32 s{S.WAVE}, 0")
    a("s_waitcnt lgkmcnt(0)")
    a(f"s_cselect_b32 s{S.PWG}, s{S.PWU}, s{S.PWG}")
    a(f"s_cselect_b32 s{S.PWG+1}, s{S.PWU+1}, s{S.PWG+1}")
    if o.fdelay:
        a(f"s_sleep {o.fdelay}")
    for b in range(4):
        if b:
            a(f"s_add_u32 m0, s{S.T4}, {1024*b}")
            a(f"v_add_u32 v3, {8*3584}, v3")
        if o.wthr and b >= o.wthr:
            a(f"s_waitcnt vmcnt({o.wthr - 1})")
        a(f"global_load_lds_dwordx4 v3, s[{S.PWG}:{S.PWG+1}]{o.wpol}")
    ws_setup()
    stamp(1)
    a("v_bfe_u32 v6, v0, 2, 2")
    a("v_and_b32 v7, 3, v0")
    a("v_lshlrev_b32 v8, 3, v7")
    a("v_lshl_add_u32 v8, v2, 5, v8")
    a("v_and_b32 v9, 2, v6")
    a("v_lshlrev_b32 v9, 5, v9")
    a("v_xor_b32 v9, v9, v8")
    a("v_lshl_add_u32 v9, v6, 7, v9")
    a(f"v_add_u32 v9, s{S.T4}, v9")
    a(f"s_lshl_b32 s{S.T5}, s{S.WAVE}, 8")
    a("v_lshlrev_b32 v11, 2, v0")
    a(f"v_add_u32 v11, {L_RED}, v11")
    a(f"v_add_u32 v12, s{S.T5}, v11")
    a(f"s_lshl1_add_u32 s{S.T1}, s{S.L1}, s{S.T1}")
    a(f"s_lshl_b32 s{S.T2}, s{S.T1}, 15")
    a(f"s_and_b32 s{S.T3}, s{S.WAVE}, 1")
    a(f"s_lshl1_add_u32 s{S.T3}, s{S.T0}, s{S.T3}")
    a(f"s_lshl_b32 s{S.T5}, s{S.T3}, 7")
    a(f"s_add_u32 s{S.T2}, s{S.T2}, s{S.T5}")
    a("v_lshrrev_b32 v6, 3, v0")
    a(f"v_lshl_add_u32 v6, v6, 10, s{S.T2}")
    a("v_lshl_add_u32 v4, v4, 4, v6")
    a("v_lshrrev_b32 v6, 5, v0")
    a(f"v_mul_u32_u24 v13, {PZ}, v6")
    a("v_and_b32 v6, 31, v0")
    a("v_lshl_add_u32 v13, v6, 3, v13")
    a(f"s_mul_i32 s{S.T2}, s{S.T3}, {2*PZ}")
    a(f"s_lshl_b32 s{S.T1}, s{S.T1}, 8")
    a(f"s_add_u32 s{S.T2}, s{S.T2}, s{S.T1}")
    a(f"s_add_u32 s{S.T2}, s{S.T2}, {WS_PART}")
    a(f"s_lshl_b32 s{S.L0}, s{S.L0}, 6")
    a(f"s_lshl_b32 s{S.L1}, s{S.L1}, 12")
    a(f"s_add_u32 s{S.PO}, s{S.L1}, {WS_XCH}")
    a(f"s_add_u32 s{S.POL}, s{S.PO}, {(o.xc-1)*XCHC}")
    a(f"s_lshl_b32 s{S.T1}, s{S.T0}, 10")
    a(f"s_add_u32 s{S.L1}, s{S.PO}, s{S.T1}")
    a(f"v_mov_b32 v14, {L_FKEY}")
    a(f"s_lshr_b32 s{S.T1}, s{S.WAVE}, 1")
    a(f"s_lshl_b32 s{S.T1}, s{S.T1}, 9")
    a(f"v_lshl_add_u32 v15, v6, 4, s{S.T1}")
    a("v_lshrrev_b32 v6, 5, v0")
    a("v_lshl_add_u32 v15, v6, 10, v15")
    a(f"s_mov_b32 s{S.PO0}, s{S.PO}")
    a(f"s_mov_b32 s{S.L10}, s{S.L1}")
    a(f"s_mov_b32 s{S.T20}, s{S.T2}")
    a(f"s_mov_b32 s{S.FIN}, 0")

    def wd_dma():
        l = a.L("nowd")
        a(f"s_cmp_ge_u32 s{S.WAVE}, 4")
        a(f"s_cbranch_scc1 {l}")
        for b in range(4):
            a(f"s_add_u32 m0, s{S.T4}, {L_WD + 1024*b}")
            if b:
                a("v_add_u32 v4, 0x2000, v4")
            else:
                a.nop(1)
            a(f"global_load_lds_dwordx4 v4, s[{S.PWD}:{S.PWD+1}]")
        a.label(l)

    if o.wdpos == 0:
        wd_dma()
    a("s_waitcnt vmcnt(0)")
    stamp(2)
    if o.fw0:
        a("s_barrier")
    if o.wdpos == 1:
        wd_dma()
    if o.xpre:
        for i in range(2):
            a(f"buffer_load_dwordx4 {V(64+4*i,4)}, v15, {R4(S.RWS)}, s{S.PO} offen offset:{2048*i} sc1")
    for k in range(8):
        a(f"ds_read_b64_tr_b16 {V(WG_+2*k,2)}, v9 offset:{L_W + k*512}")
    if o.ftouch:
        touch("L_tf", o.ftouch, 0, 8)
    a("s_waitcnt lgkmcnt(0)")
    a("s_barrier")
    a.label("L_tf_start")
    a("ds_read_b64 v[26:27], v14")
    a("s_waitcnt lgkmcnt(0)")
    a(f"v_readfirstlane_b32 s{S.FKEY}, v26")
    a.label("L_redo")
    a(f"s_andn2_b32 s{S.T0}, 2047, s{S.FKEY}")
    a(f"s_lshl_b32 s{S.T1}, s{S.T0}, 10")
    a(f"s_add_u32 s{S.T1}, s{S.T1}, s{S.L0}")
    a(f"s_load_dwordx16 s[{S.XS}:{S.XS+15}], {PXS}, s{S.T1}")
    stamp(5)
    a(f"v_xor_b32 v{VTAG}, s{S.T0}, v27")
    a(f"v_xor_b32 v29, s{S.T0}, v27")
    for r in (16, 17, 24, 25):
        a(f"v_mov_b32 v{r}, 0")
    a(f"s_mov_b32 s{S.PO}, s{S.PO0}")
    a(f"s_mov_b32 s{S.L1}, s{S.L10}")
    a(f"s_mov_b32 s{S.T2}, s{S.T20}")
    a(f"s_mov_b32 s{S.KM}, 0")
    a("s_waitcnt lgkmcnt(0)")
    for i in range(16):
        a(f"v_dot2c_f32_bf16 v{16+(i&1)}, s{S.XS+i}, v{WG_+i}")
    stamp(6)
    a.nop(3)
    a("v_add_f32 v16, v16, v17")
    a("ds_write_b32 v12, v16")
    a("s_waitcnt lgkmcnt(0)")
    a("s_barrier")
    a(f"s_lshl_b32 s{S.T0}, s{S.WAVE}, 4")
    a(f"s_lshl_b64 s[{S.EX}:{S.EX+1}], 0xffff, s{S.T0}")
    for i, (p, q) in enumerate(((0, 2), (4, 6), (1, 3), (5, 7))):
        a(f"ds_read2st64_b32 v[{16+2*i}:{17+2*i}], v11 offset0:{p} offset1:{q}")
    a("s_waitcnt lgkmcnt(2)")
    a("v_add_f32 v16, v16, v17")
    a("v_add_f32 v18, v18, v19")
    a("s_waitcnt lgkmcnt(0)")
    a("v_add_f32 v20, v20, v21")
    a("v_add_f32 v22, v22, v23")
    a("v_add_f32 v28, v16, v18")
    a(f"s_mov_b64 exec, s[{S.EX}:{S.EX+1}]")
    a("v_add_f32 v30, v20, v22")
    a(f"s_cmp_ge_u32 s{S.WAVE}, 4")
    a("s_cbranch_scc1 L_f5")
    a(f"buffer_store_dwordx4 v[28:31], v5, {R4(S.RWS)}, s{S.L1} offen{'' if o.xl2 else ' sc1'}")
    a("s_mov_b64 exec, -1")
    stamp(7)
    a("s_waitcnt vmcnt(1)")
    for k in range(8):
        a(f"ds_read_b64_tr_b16 {V(WD_+2*k,2)}, v9 offset:{L_WD + k*512}")
    if o.xsleep0:
        a(f"s_sleep {o.xsleep0}")
    stamp(8)
    a.label("L_fx")
    for i in range(2):
        a(f"buffer_load_dwordx4 {V(64+4*i,4)}, v15, {R4(S.RWS)}, s{S.PO} offen offset:{2048*i} sc1")
    if o.xl2:
        a(f"s_add_u32 s{S.KM}, s{S.KM}, 1")
        a(f"s_cmp_ge_u32 s{S.KM}, {o.xl2}")
        a(f"s_cselect_b32 s{S.T0}, {XCHC}, 0")
        a(f"s_add_u32 s{S.PO}, s{S.PO}, s{S.T0}")
    else:
        a(f"s_add_u32 s{S.PO}, s{S.PO}, {XCHC}")
    a(f"s_min_u32 s{S.PO}, s{S.PO}, s{S.POL}")
    if o.stamps:
        a(f"s_add_u32 s{S.RC}, s{S.RC}, 1")
    spin()
    a("s_cbranch_scc1 L_fx_ok")
    a("s_waitcnt vmcnt(1)")
    a(f"v_bitop3_b32 v20, v65, v67, v{VTAG} bitop3:0x7e")
    a("s_waitcnt vmcnt(0)")
    a("v_add_f32 v16, v64, v68")
    a("v_add_f32 v18, v66, v70")
    a(f"v_bitop3_b32 v21, v69, v71, v{VTAG} bitop3:0x7e")
    a("v_or_b32 v20, v20, v21")
    a("v_cmp_ne_u32 vcc, 0, v20")
    a("v_permlane32_swap_b32 v16, v18")
    a("s_cbranch_vccnz L_fxr")
    a.label("L_fx_ok")
    stamp(9)
    a("v_add_f32 v16, v16, v18")
    rnd(16, 16)
    a("v_mov_b32 v18, v16")
    sigmoid(17, 16)
    a("v_permlane32_swap_b32 v16, v18")
    a("v_mul_f32 v17, v17, v16")
    rnd(17, 17)
    a("v_mul_f32 v17, v17, v18")
    a.nop(2)
    a(f"v_mov_b32_dpp v18, v17 quad_perm:[1,0,3,2] {DPPM}")
    a("v_cvt_pk_bf16_f32 v17, v17, v18")
    a.nop(1)
    for i in range(16):
        a(f"v_readlane_b32 s{S.XS+i}, v17, {2*i}")
    a("s_waitcnt lgkmcnt(0)")
    for i in range(16):
        a(f"v_dot2c_f32_bf16 v{24+(i&1)}, s{S.XS+i}, v{WD_+i}")
    a.nop(3)
    a("v_add_f32 v30, v24, v25")
    for c in range(o.pc):
        if c:
            a(f"s_add_u32 s{S.T2}, s{S.T2}, {PARTC}")
        a(f"buffer_store_dwordx2 v[30:31], v13, {R4(S.RWS)}, s{S.T2} offen sc1")
    stamp(10)
    a.label("L_fend")
    a(f"s_cmp_lg_u32 s{S.FIN}, 0")
    a("s_cbranch_scc1 L_fexit")
    a("s_barrier")
    a("ds_read_b32 v26, v14 offset:8")
    a(f"s_mov_b32 s{S.FIN}, 1")
    a("s_waitcnt lgkmcnt(0)")
    a(f"v_readfirstlane_b32 s{S.T0}, v26")
    a(f"s_cmp_eq_u32 s{S.T0}, s{S.FKEY}")
    a(f"s_mov_b32 s{S.FKEY}, s{S.T0}")
    if o.stamps:
        a(f"s_cselect_b32 s{S.T1}, 0, 64")
        a(f"s_add_u32 s{S.RC}, s{S.RC}, s{S.T1}")
        a(f"s_cmp_eq_u32 s{S.T1}, 0")
    a("s_cbranch_scc0 L_redo")
    a.label("L_fexit")
    endprog()
    a.label("L_f5")
    for c in range(1, o.xc):
        a(f"s_add_u32 s{S.L1}, s{S.L1}, {XCHC}")
        a(f"buffer_store_dwordx4 v[28:31], v5, {R4(S.RWS)}, s{S.L1} offen sc1")
    a("s_mov_b64 exec, -1")
    a("s_branch L_fend")
    a.label("L_fxr")
    a("ds_read_b32 v26, v14 offset:8")
    a("s_waitcnt lgkmcnt(0)")
    a(f"v_readfirstlane_b32 s{S.T0}, v26")
    a(f"s_cmp_eq_u32 s{S.T0}, 0")
    a("s_cbranch_scc1 L_fx")
    a(f"s_cmp_eq_u32 s{S.T0}, s{S.FKEY}")
    a("s_cbranch_scc1 L_fx")
    a("s_branch L_fend")

    a.label("L_fh")
    a("s_waitcnt lgkmcnt(0)")
    if o.fesleep:
        a(f"s_sleep {o.fesleep}")
    tag_load()
    ws_setup()
    a(f"v_mov_b32 v14, {L_FKEY}")
    a("v_mov_b32 v6, 0")
    a("ds_write_b32 v14, v6 offset:8")
    if o.spec:
        poll_setup(WS_KEY + 1024 * (RF * CF + RZ * CZ + R2 * C2), 8, 1)
        a(f"s_sleep {o.spec}")
        a("s_waitcnt vmcnt(0)")
        tag_make()
        stamp(1)
        a(f"buffer_load_dwordx4 v[20:23], v5, {R4(S.RWS)}, s{S.PO} offen sc1")
        poll_setup(WS_KEY, RF, CF)
        a("s_waitcnt vmcnt(0)")
        stamp(2)
        a(f"v_cmp_ne_u32 vcc, v{VTAG}, v21")
        a(f"v_cmp_ne_u32 s[{S.EX}:{S.EX+1}], v{VTAG}, v23")
        a("s_mov_b64 exec, vcc")
        a("v_mov_b32 v20, 0")
        a(f"s_mov_b64 exec, s[{S.EX}:{S.EX+1}]")
        a("v_mov_b32 v22, 0")
        a("s_mov_b64 exec, -1")
        a(f"s_or_b64 s[{S.EY}:{S.EY+1}], vcc, s[{S.EX}:{S.EX+1}]")
        wave_max_key(20)
        lds_put(L_FKEY, 20, tag=True)
        a("s_barrier")
        a(f"s_cmp_eq_u64 s[{S.EY}:{S.EY+1}], 0")
        a("s_cbranch_scc1 L_fh2")
        if o.fsleep0:
            a(f"s_sleep {o.fsleep0}")
        stamp(3)
        poll_granules(5, 20, sleep=o.fsleep)
        stamp(4)
        wave_max_key(20)
        a.label("L_fh2")
        lds_put(L_FKEY + 8, 20)
    else:
        poll_setup(WS_KEY, RF, CF)
        if o.fsleep0:
            a(f"s_sleep {o.fsleep0}")
        a("s_waitcnt vmcnt(0)")
        tag_make()
        stamp(3)
        poll_granules(5, 20, sleep=o.fsleep)
        stamp(4)
        wave_max_key(20)
        lds_put(L_FKEY, 20, tag=True)
        a("s_barrier")
        lds_put(L_FKEY + 8, 20)
    a("s_barrier")
    endprog()
    a.label("L_end")
    a("s_endpgm")
    return name


def main():
    ap = argparse.ArgumentParser()
    ap.add_argument("-o", required=True)
    for k, d in dict(stamps=0, pc=1, xc=2, zsleep=8, zsleep0=27, psleep=0, psleep0=22, rsleep=3, ackwait=1, hipre=0, tlate=1,
                     mode=0, k2ack=1, k2sleep0=10, zk2sleep0=0, k2sleep=3, fbar=0, cpf=0, lds=0, nsgpr=102, prio=1, stag=0, spec=0, b0=1, wthr=2, xpre=0, atouch=10, ftouch=8, xl2=5, npre=3, gfirst=0, isleep0=0, zisleep0=5, b3=1, ztouch=8, zstep=128, touch=0, wdpos=1, wpf=1, fesleep=0, fw0=0, xack=0, fdelay=3, xsleep0=3, fsleep0=40, fsleep=3, spin=17).items():
        ap.add_argument("--" + k, type=int, default=d)
    for k in ("wpol", "outpol", "zpol", "only"):
        ap.add_argument("--" + k, default="")
    ap.add_argument("--mf", default="8,2")
    ap.add_argument("--mz", default="1,3")
    ap.add_argument("--m2", default="1,3")
    ap.add_argument("--hold", default="")
    o = ap.parse_args()
    if o.hold:
        o.hold = o.hold.split(":")
    for k in ("mf", "mz", "m2"):
        setattr(o, k, [int(v) for v in getattr(o, k).split(",")])
    for k in ("wpol", "outpol", "zpol"):
        setattr(o, k, (" " + getattr(o, k)) if getattr(o, k) else "")
    a = Asm()
    name = gen(a, o)
    if o.touch:
        insert_stubs(a, [("L_ta_start", "L_ta_end", "L_ta", "L_taback", 9)], step=o.touch)
    reg = []
    if o.atouch:
        reg.append(("L_zjoin", "L_tb_end", "L_tb", "L_tbback", o.atouch))
    if o.ztouch:
        reg.append(("L_tz_start", "L_zend", "L_tz", "L_tzback", o.ztouch))
    if o.ftouch:
        reg.append(("L_tf_start", "L_fend", "L_tf", "L_tfback", o.ftouch))
    if reg:
        insert_stubs(a, reg, step=o.zstep)
    finish(a, name, NVGPR, o.nsgpr, NWG, 576, o.lds or LDS_BYTES, o.o)


main()
```

```python
import argparse
from lib import *

NA, NF, NZ = 128, 112, 16
NWG = NA + NF + NZ
WS_E = 0
WS_ALIVE = 4096
WS_KEY = 64 << 10
WS_KEY2 = 128 << 10
WS_XCH = 192 << 10
XCHC = 28 * 4096
WS_PART = 704 << 10
PZ = 56 * 256
PARTC = NZ * PZ
WS_INT = 2 << 20
CS = 32768 + 256
WS_STAMP = 8 << 20
WS_BYTES = 16 << 20
L_TILE = 0
L_U2 = 16384
L_CT = L_U2
UB = 17 * 64
L_MISC = L_U2 + 16 * UB
L_KSL = L_MISC
L_GKEY = L_MISC + 64
L_ZF = L_MISC + 72
L_EXP = L_MISC + 128
L_DUMP = L_MISC + 192
L_XG2 = L_DUMP + 4 * UB + 256
L_M2 = L_XG2 + 4096
L_WV = L_M2 + 4096
L_XT = L_WV + 2048
L_W = 0
L_WD = 32768
L_RED = L_WD + 16384
L_FKEY = L_RED + 2048
LDS_BYTES = 84 * 1024
MF = "v_mfma_f32_16x16x32_bf16"
LOG2E = 0x3fb8aa3b
DPPM = "row_mask:0xf bank_mask:0xf"
HIM = "0xffff0000"
NVGPR = 168


class S:
    WAVE = 3
    PX = 4
    T0, T1, T2, T3, T4, T5 = 6, 7, 8, 9, 10, 11
    EX = 12
    EY = 14
    PWR, PWG, PWU, PWD, PGW, POUT, PDBG, PWS = 16, 18, 20, 22, 24, 26, 28, 30
    L0, L1, SPT, PIE = 32, 33, 34, 35
    RWS, ROUT = 36, 40
    XS = 44
    GKEY, WSEL, WHICH, Z = 44, 45, 46, 47
    SI0, SI1, ID8, BLK = 48, 49, 50, 51
    IDX, ISZ, TC = 54, 55, 53
    SO = 44
    T1C, HH, TD, TM = 56, 57, 58, 59
    FJ, PO, POL, RC, KM, SPIN = 60, 61, 62, 63, 64, 65
    ST = 68


def gen(a, o):
    name = NAME + "_kernel"
    kernel_head(a, name)
    VE, VTAG = 30, 31
    PXS = f"s[{S.PX}:{S.PX+1}]"

    def stamp(i):
        if o.stamps:
            a(f"s_memrealtime s[{S.ST+2*i}:{S.ST+2*i+1}]")

    def hold(cp):
        if o.hold and o.hold[0] == cp:
            l = a.L("hold")
            a.label(l)
            a("s_sleep 1")
            a("s_memrealtime s[100:101]")
            a("s_waitcnt lgkmcnt(0)")
            a("s_sub_u32 s100, s100, s66")
            a(f"s_cmp_lt_u32 s100, {o.hold[1]}")
            a(f"s_cbranch_scc1 {l}")

    def touch(pre, n, first, step, back=None, tail=None):
        a("s_mov_b64 exec, 0")
        a(f"s_sub_u32 s{S.TC}, s{S.WAVE}, {first + step}")
        a.label(f"{pre}back")
        a(f"s_add_u32 s{S.TC}, s{S.TC}, {step}")
        for k in range(n):
            a(f"s_cmp_eq_u32 s{S.TC}, {k}")
            a(f"s_cbranch_scc1 {pre}{k}")
        a("s_mov_b64 exec, -1")

    def endprog():
        if o.stamps:
            a("s_waitcnt lgkmcnt(0)")
            a(f"s_add_u32 s{S.ST+28}, s{S.RC}, s{S.ST+30}")
            for i in range(16):
                a(f"v_writelane_b32 v166, s{S.ST+2*i}, {i}")
            a("s_mov_b64 exec, 0xffff")
            a(f"s_lshl4_add_u32 s{S.T0}, s2, s{S.WAVE}")
            a(f"s_lshl_b32 s{S.T0}, s{S.T0}, 7")
            a(f"s_add_u32 s{S.T0}, s{S.T0}, {WS_STAMP}")
            a(f"v_lshl_add_u32 v165, v0, 3, s{S.T0}")
            a("v_mov_b32 v167, 0")
            a(f"global_store_dwordx2 v165, v[166:167], s[{S.PWS}:{S.PWS+1}]")
        a("s_endpgm")

    def spin():
        a(f"s_add_u32 s{S.SPIN}, s{S.SPIN}, 1")
        a(f"s_lshr_b32 s{S.SPT}, s{S.SPIN}, {o.spin}")

    def poll_setup(base, R, C):
        a(f"s_and_b32 s{S.PO}, s2, {R-1}")
        a(f"s_mul_i32 s{S.PO}, s{S.PO}, {1024*C}")
        a(f"s_add_u32 s{S.PO}, s{S.PO}, {base}")
        a(f"s_add_u32 s{S.POL}, s{S.PO}, {1024*(C-1)}")

    def set_exec(n):
        if n >= 64:
            a("s_mov_b64 exec, -1")
        elif n <= 31:
            a(f"s_mov_b64 exec, {(1 << n) - 1:#x}")
        else:
            a("s_mov_b32 exec_lo, -1")
            a(f"s_mov_b32 exec_hi, {(1 << (n - 32)) - 1:#x}")

    RF, CF = o.mf
    RZ, CZ = o.mz
    R2, C2 = o.m2
    assert RF * CF + RZ * CZ + R2 * C2 <= 64

    def poll_granules(vaddr, vd, sleep=0, step=1024):
        l = a.L("poll")
        if sleep:
            a(f"s_branch {l}_1")
        a.label(l)
        if sleep:
            a(f"s_sleep {sleep}")
            a.label(f"{l}_1")
        a(f"buffer_load_dwordx4 {V(vd,4)}, v{vaddr}, {R4(S.RWS)}, s{S.PO} offen sc1")
        a(f"s_add_u32 s{S.PO}, s{S.PO}, {step}")
        a(f"s_min_u32 s{S.PO}, s{S.PO}, s{S.POL}")
        if o.stamps:
            a(f"s_add_u32 s{S.RC}, s{S.RC}, 1")
        spin()
        a("s_waitcnt vmcnt(0)")
        a(f"s_cbranch_scc1 {l}_ok")
        a(f"v_cmp_ne_u32 vcc, v{VTAG}, v{vd+1}")
        a(f"v_cmp_ne_u32 s[{S.EX}:{S.EX+1}], v{VTAG}, v{vd+3}")
        a(f"s_or_b64 vcc, vcc, s[{S.EX}:{S.EX+1}]")
        a(f"s_cbranch_vccnz {l}")
        a.label(f"{l}_ok")

    def wave_max_key(vd):
        a(f"v_max_u32 v{vd}, v{vd}, v{vd+2}")
        for r in (8, 4, 2, 1):
            a.nop(2)
            a(f"v_max_u32_dpp v{vd}, v{vd}, v{vd} row_ror:{r} {DPPM}")
        a(f"v_mov_b32 v{vd+1}, v{vd}")
        a.nop(2)
        a(f"v_permlane16_swap_b32 v{vd}, v{vd+1}")
        a(f"v_max_u32 v{vd}, v{vd}, v{vd+1}")
        a(f"v_mov_b32 v{vd+1}, v{vd}")
        a.nop(2)
        a(f"v_permlane32_swap_b32 v{vd}, v{vd+1}")
        a(f"v_max_u32 v{vd}, v{vd}, v{vd+1}")

    def lds_put(addr, v, tag=False):
        a(f"v_mov_b32 v9, {addr}")
        a("s_mov_b64 exec, 1")
        if tag:
            a(f"ds_write2_b32 v9, v{v}, v{VTAG} offset1:1")
        else:
            a(f"ds_write_b32 v9, v{v}")
        a("s_mov_b64 exec, -1")
        a("s_waitcnt lgkmcnt(0)")

    def sigmoid(d, s):
        a(f"v_mul_f32 v{d}, {LOG2E | 0x80000000:#x}, v{s}")
        a(f"v_exp_f32 v{d}, v{d}")
        a.nop(1)
        a(f"v_add_f32 v{d}, 1.0, v{d}")
        a(f"v_rcp_f32 v{d}, v{d}")
        a.nop(1)

    def rnd(d, s):
        a(f"v_cvt_pk_bf16_f32 v{d}, v{s}, v{s}")
        a(f"v_and_b32 v{d}, {HIM}, v{d}")

    def ws_setup():
        a.srd(S.RWS, S.PWS, WS_BYTES)
        a(f"s_mov_b32 s{S.SPIN}, 0")

    def tag_load():
        a(f"v_mov_b32 v{VTAG}, 0")
        a(f"global_load_dword v{VE}, v{VTAG}, s[{S.PWS}:{S.PWS+1}]")
        a(f"s_mov_b32 s{S.KM}, 0x9E3779B1")

    def tag_make():
        a(f"v_mul_lo_u32 v{VTAG}, v{VE}, s{S.KM}")
        a(f"v_add_u32 v{VTAG}, 0x7F4A7C15, v{VTAG}")

    a(f"s_load_dwordx2 s[{S.PX}:{S.PX+1}], s[0:1], {KA_X}")
    a(f"s_load_dwordx16 s[16:31], s[0:1], {KA_WR}")
    if o.stamps:
        for i in range(1, 16):
            a(f"s_mov_b32 s{S.ST+2*i}, 0")
        a(f"s_mov_b32 s{S.RC}, 0")
    stamp(0)
    if o.hold:
        a("s_memrealtime s[66:67]")
    a("v_lshrrev_b32 v1, 6, v0")
    a("v_and_b32 v0, 63, v0")
    a(f"v_readfirstlane_b32 s{S.WAVE}, v1")
    a("v_and_b32 v1, 15, v0")
    a("v_lshrrev_b32 v2, 4, v0")
    a(f"s_and_b32 s{S.T0}, s2, 7")
    a(f"s_sub_u32 s{S.WAVE}, s{S.WAVE}, 1")
    a(f"s_min_u32 s{S.WAVE}, s{S.WAVE}, 8")
    a(f"s_lshr_b32 s{S.T1}, s2, 3")
    a(f"s_cmp_ge_u32 s2, {NA}")
    a("s_cbranch_scc1 L_notA")
    if o.only == "F":
        a("s_endpgm")

    VROW, VG16, VSGN, VTR, VST = 3, 5, 8, 10, 11
    VLD, VUW, VUX, VUR0, VUR1 = 10, 11, 28, 29, 30
    XR, WR, GW, CO = 16, 24, 24, 24
    CM, AOP, ACC = 32, 96, 112
    LD, DA0, DA1, TP, X16, PK = 32, 64, 32, 80, 96, 48
    M1, GA, XG = 100, 148, 152
    Cc, Ss = 64, 68
    UO, PQ, M2 = 32, 48, 64

    def rows_setup(wreg):
        a(f"s_lshl3_add_u32 s{S.T5}, s{S.HH}, s{wreg}")
        a(f"s_lshl_b32 s{S.T5}, s{S.T5}, 7")
        a(f"s_add_u32 s{S.TD}, s{S.T5}, s{S.T1C}")
        a(f"s_sub_u32 s{S.TM}, 2048, s{S.TD}")
        a(f"s_cmp_eq_u32 s{S.TD}, 0")
        a(f"s_cselect_b32 s{S.TM}, 1024, s{S.TM}")
        a(f"s_lshl_b32 s{S.T4}, s{S.TD}, 10")
        a(f"s_lshl_b32 s{S.T5}, s{S.TM}, 10")
        a(f"v_add_u32 v6, s{S.T4}, v{VG16}")
        a(f"v_add_u32 v7, s{S.T5}, v{VG16}")

    def vrow_setup():
        a("v_and_b32 v6, 1, v2")
        a("v_lshlrev_b32 v6, 5, v6")
        a("v_lshl_add_u32 v6, v1, 6, v6")
        a("v_lshrrev_b32 v7, 1, v2")
        a(f"v_lshl_add_u32 v{VROW}, v7, 4, v6")

    def rows_load():
        a(f"global_load_dwordx4 {V(XR,4)}, v6, {PXS}")
        a(f"global_load_dwordx4 {V(XR+4,4)}, v7, {PXS}")

    def sgn_setup():
        a(f"v_lshlrev_b32 v{VSGN}, 31, v1")
        a(f"v_lshrrev_b32 v9, 16, v{VSGN}")
        a(f"v_or_b32 v{VSGN}, v{VSGN}, v9")

    def sgn_setup2():
        a(f"v_lshlrev_b32 v{VSGN}, 31, v1")
        a(f"v_lshrrev_b32 v14, 16, v{VSGN}")
        a(f"v_or_b32 v{VSGN}, v{VSGN}, v14")

    def tile_ids():
        a(f"s_bitcmp1_b32 s{S.T1}, 3")
        a(f"s_cselect_b32 s{S.T2}, s{S.T3}, s{S.T2}")
        a(f"s_and_b32 s{S.T3}, s{S.T1}, 7")
        a(f"s_lshl3_add_u32 s{S.BLK}, s{S.T2}, s{S.T3}")
        a(f"s_lshl_b32 s{S.PIE}, s{S.T2}, 5")
        a(f"s_add_u32 s{S.PIE}, s{S.PIE}, s{S.T3}")
        a(f"s_lshl_b32 s{S.PIE}, s{S.PIE}, 6")

    def vst_setup():
        a(f"v_mul_u32_u24 v{VST}, {CS}, v1")
        a(f"v_lshl_add_u32 v{VST}, v2, 4, v{VST}")

    def const_d2():
        R = 40
        a("v_lshlrev_b32 v6, 2, v2")
        a("v_cvt_f32_u32 v7, v1")
        a("v_cvt_f32_u32 v6, v6")
        a("v_mul_f32 v7, 0x3d800000, v7")
        for hf in range(2):
            if hf:
                a("v_add_f32 v7, 0x3d800000, v7")
            a("v_mul_f32 v9, v6, v7")
            for jj in range(4):
                a(f"v_cos_f32 v{Cc+jj}, v9")
                a(f"v_sin_f32 v{Ss+jj}, v9")
                if jj < 3:
                    a("v_add_f32 v9, v9, v7")
            a.nop(1)
            for jj in range(4):
                if hf == 0:
                    a(f"v_cvt_pk_bf16_f32 v{R+jj}, v{Cc+jj}, v{Ss+jj}")
                    a(f"v_cvt_pk_bf16_f32 v{R+8+jj}, -v{Ss+jj}, v{Cc+jj}")
                else:
                    a(f"v_cvt_pk_bf16_f32 v{R+4+jj}, v{Cc+jj}, -v{Ss+jj}")
                    a(f"v_cvt_pk_bf16_f32 v{R+12+jj}, -v{Ss+jj}, -v{Cc+jj}")
        for k in range(4):
            a(f"ds_write_b128 v{VG16}, {V(R+4*k,4)} offset:{L_M2 + 1024*k}")

    if o.touch:
        a("s_mov_b64 exec, 0")
        for k in range(9):
            a(f"s_cmp_eq_u32 s{S.WAVE}, {(k + 8) % 9}")
            a(f"s_cbranch_scc1 L_ta{k}")
        a.label("L_taback")
        a("s_mov_b64 exec, -1")
        a.label("L_ta_start")
    a(f"s_add_u32 s{S.T2}, s{S.T0}, 1")
    a(f"s_sub_u32 s{S.T3}, 15, s{S.T0}")
    a(f"s_cmp_eq_u32 s{S.WAVE}, 8")
    a("s_cbranch_scc1 L_ah")
    a(f"s_and_b32 s{S.HH}, s{S.T1}, 1")
    a(f"s_bitcmp1_b32 s{S.T1}, 1")
    a(f"s_cselect_b32 s{S.T4}, s{S.T3}, s{S.T2}")
    a(f"s_lshr_b32 s{S.T5}, s{S.T1}, 2")
    a(f"s_lshl4_add_u32 s{S.T1C}, s{S.T5}, s{S.T4}")
    a(f"v_lshlrev_b32 v{VG16}, 4, v0")
    a(f"v_mov_b32 v{VROW}, 0")
    a(f"s_cmp_lg_u32 s{S.T0}, 7")
    a("s_cbranch_scc1 L_k7")
    a(f"s_lshr_b32 s{S.T5}, s{S.T1}, 1")
    a(f"s_lshl3_add_u32 s{S.T1C}, s{S.T5}, 8")
    a(f"s_mov_b32 s{S.T2}, 0")
    a(f"s_cmp_eq_u32 s2, 127")
    a(f"s_cselect_b32 s{S.T1C}, 0, s{S.T1C}")
    a(f"s_cselect_b32 s{S.HH}, 0, s{S.HH}")
    a.label("L_k7")
    rows_setup(S.WAVE)
    a("s_waitcnt lgkmcnt(0)")
    rows_load()
    stamp(1)
    tile_ids()

    def tile_dma():
        a(f"s_lshl_b32 s{S.T4}, s{S.WAVE}, 11")
        a(f"s_add_u32 s{S.T5}, s{S.T4}, s{S.BLK}")
        a(f"s_lshl_b32 s{S.T5}, s{S.T5}, 7")
        a(f"s_mov_b32 m0, s{S.T4}")
        a("v_and_b32 v9, 7, v0")
        a("v_bfe_u32 v13, v0, 4, 1")
        a("v_xor_b32 v9, v9, v13")
        a("v_lshrrev_b32 v13, 3, v0")
        a(f"v_lshl_add_u32 v9, v9, 4, s{S.T5}")
        a("v_lshl_add_u32 v13, v13, 14, v9")
        a(f"global_load_lds_dwordx4 v13, {PXS}")
        a(f"s_add_u32 m0, s{S.T4}, 1024")
        a("v_add_u32 v13, 0x20000, v13")
        a(f"global_load_lds_dwordx4 v13, {PXS}")
        stamp(2)

    if not o.tlate:
        tile_dma()
    C1, S1, K = AOP, AOP + 4, AOP + 8
    a(f"s_lshr_b32 s{S.T0}, s{S.WAVE}, 2")
    a(f"s_and_b32 s{S.T1}, s{S.WAVE}, 1")
    a(f"s_bfe_u32 s{S.T2}, s{S.WAVE}, 0x10001")
    a(f"v_lshl_add_u32 v6, s{S.T0}, 4, v1")
    a(f"s_lshl3_add_u32 s{S.T3}, s{S.T2}, s{S.T1}")
    a(f"s_lshl_b32 s{S.T3}, s{S.T3}, 2")
    a("v_cvt_f32_u32 v6, v6")
    a(f"v_lshl_add_u32 v7, v2, 3, s{S.T3}")
    a("v_mul_f32 v6, 0x3c000000, v6")
    a("v_cvt_f32_u32 v7, v7")
    a("v_mul_f32 v7, v7, v6")
    for j in range(4):
        a(f"v_cos_f32 v{C1+j}, v7")
        a(f"v_sin_f32 v{S1+j}, v7")
        if j < 3:
            a("v_add_f32 v7, v7, v6")
    if o.tlate == 2:
        a(f"global_load_dwordx4 {V(WR,4)}, v{VG16}, s[{S.PWR}:{S.PWR+1}]")
        tile_dma()
    a(f"s_lshl_b32 s{S.T4}, s{S.T0}, 13")
    a(f"s_lshl_b32 s{S.T5}, s{S.T2}, 10")
    a(f"s_lshl3_add_u32 s{S.T5}, s{S.T1}, s{S.T5}")
    a(f"v_add_u32 v15, s{S.T4}, v{VG16}")
    a(f"v_add_u32 v9, s{S.T5}, v15")
    a(f"v_cvt_pk_bf16_f32 v{K+0}, v{C1}, v{C1+1}")
    a(f"v_cvt_pk_bf16_f32 v{K+1}, v{C1+2}, v{C1+3}")
    a(f"v_cvt_pk_bf16_f32 v{K+2}, -v{S1}, -v{S1+1}")
    a(f"v_cvt_pk_bf16_f32 v{K+3}, -v{S1+2}, -v{S1+3}")
    a("v_cmp_eq_f32 vcc, 0, v6")
    a(f"v_cvt_pk_bf16_f32 v{K+4}, v{C1}, -v{S1+1}")
    a(f"v_cvt_pk_bf16_f32 v{K+5}, -v{C1+2}, v{S1+3}")
    a(f"v_cvt_pk_bf16_f32 v{K+6}, -v{S1}, -v{C1+1}")
    a(f"v_cvt_pk_bf16_f32 v{K+7}, v{S1+2}, v{C1+3}")
    a(f"ds_write_b64 v9, {V(K,2)} offset:{L_CT}")
    a(f"ds_write_b64 v9, {V(K+4,2)} offset:{L_CT+4096}")
    a(f"ds_write_b64 v9, {V(K+6,2)} offset:{L_CT+6144}")
    a("s_mov_b64 exec, vcc")
    a(f"v_mov_b32 v{K+2}, 0xbf803f80")
    a(f"v_mov_b32 v{K+3}, 0xbf803f80")
    a("s_mov_b64 exec, -1")
    a(f"ds_write_b64 v9, {V(K+2,2)} offset:{L_CT+2048}")
    if o.tlate != 2:
        a(f"global_load_dwordx4 {V(WR,4)}, v{VG16}, s[{S.PWR}:{S.PWR+1}]")
    if o.tlate == 1:
        tile_dma()
    a("v_mov_b32 v12, 0")
    a("v_mov_b32 v13, 0")
    stamp(3)

    def dots(w, fill=()):
        fill = list(fill)

        def pad(n):
            while n and fill:
                a(fill.pop(0))
                n -= 1
            a.nop(n)

        for i in range(4):
            a(f"v_dot2c_f32_bf16 v12, v{XR+i}, v{w+i}")
            a(f"v_dot2c_f32_bf16 v13, v{XR+4+i}, v{w+i}")
        pad(3)
        a("v_permlane32_swap_b32 v12, v13")
        a("v_add_f32 v12, v12, v13")
        a("v_mov_b32 v13, v12")
        pad(2)
        a("v_permlane16_swap_b32 v12, v13")
        a("v_add_f32 v12, v12, v13")
        for r in (8, 4, 2, 1):
            pad(2)
            a(f"v_add_f32_dpp v12, v12, v12 row_ror:{r} {DPPM}")
        rnd(12, 12)
        for x in fill:
            a(x)

    a(f"s_waitcnt vmcnt({2 if o.tlate else 0})")
    stamp(4)
    dots(WR, [f"s_sub_u32 s{S.T4}, 0xffff, s{S.TD}", f"s_sub_u32 s{S.T5}, 0xffff, s{S.TM}", f"v_mov_b32 v4, s{S.T4}",
              f"v_writelane_b32 v4, s{S.T5}, 32", f"s_lshl3_add_u32 s{S.T4}, s{S.WAVE}, {L_KSL}",
              "v_lshrrev_b32 v9, 3, v0", f"v_add_u32 v9, s{S.T4}, v9",
              "v_bfe_u32 v6, v0, 2, 2", "v_and_b32 v14, 3, v0", f"v_lshl_add_u32 v14, v14, 1, s{S.T2}",
              f"v_lshl_add_u32 v{VTR}, v2, 3, v6", "v_lshrrev_b32 v6, 1, v6", "v_xor_b32 v14, v14, v6"])
    a("v_ashrrev_i32 v7, 31, v12")
    a("v_or_b32 v7, 0x80000000, v7")
    a("v_xor_b32 v7, v7, v12")
    a(f"v_and_b32 v7, {HIM}, v7")
    a("v_or_b32 v7, v7, v4")
    a("s_mov_b32 exec_lo, 1")
    a("s_mov_b32 exec_hi, 1")
    a("ds_write_b32 v9, v7")
    a("s_mov_b64 exec, -1")
    a(f"s_lshl_b32 s{S.T1}, s{S.T1}, 3")
    a(f"v_lshl_add_u32 v14, v14, 4, s{S.T1}")
    a(f"v_lshl_add_u32 v{VTR}, v{VTR}, 7, v14")
    a("v_lshlrev_b32 v9, 4, v2")
    a("s_waitcnt vmcnt(0) lgkmcnt(0)")
    hold("B1")
    a("s_barrier")
    stamp(5)
    a(f"ds_read_b128 v[28:31], v9 offset:{L_EXP}")
    for k in range(4):
        for h in range(2):
            a(f"ds_read_b64_tr_b16 {V(AOP+4*k+2*h,2)}, v{VTR} offset:{L_TILE + k*4096 + h*512}")
        if k < 2:
            for t in range(4):
                a(f"ds_read_b128 {V(CM+16*t+4*k,4)}, v15 offset:{L_CT + t*2048 + k*1024}")
        if k == 1:
            a("s_waitcnt lgkmcnt(9)")
    sgn_setup2()
    a(f"global_load_dwordx4 {V(GW,4)}, v{VG16}, s[{S.PGW}:{S.PGW+1}]")
    xors = [f"v_xor_b32 v{CM+t*16+8+4*kp+r}, v{CM+t*16+4*kp+r}, v{VSGN}" for kp in range(2) for t in range(4) for r in range(4)]
    misc = [f"s_mul_i32 s{S.SO}, s{S.T0}, {16*CS}",
            f"s_add_u32 s{S.SO}, s{S.SO}, s{S.PIE}",
            f"s_and_b32 s{S.T4}, s{S.WAVE}, 3",
            f"s_lshl_b32 s{S.T4}, s{S.T4}, 9",
            f"s_add_u32 s{S.SO}, s{S.SO}, s{S.T4}",
            f"s_add_u32 s{S.SO}, s{S.SO}, {WS_INT}",
            f"s_mov_b32 s{S.RWS}, s{S.PWS}", f"s_mov_b32 s{S.RWS+1}, s{S.PWS+1}", f"s_mov_b32 s{S.RWS+2}, {WS_BYTES:#x}",
            f"s_mov_b32 s{S.RWS+3}, 0x20000",
            f"s_add_u32 s{S.SO+1}, s{S.SO}, {32*CS}", f"s_mov_b32 s{S.T5}, 0xfffefffe", f"s_mov_b32 s{S.T4}, 0x07060302",
            f"v_mul_u32_u24 v{VST}, {CS}, v1", f"v_lshl_add_u32 v{VST}, v2, 4, v{VST}",
            ]
    fill = xors + misc
    for k in range(4):
        for t in range(4):
            if k == 0:
                a(f"s_waitcnt lgkmcnt({13-t})")
            elif k == 1:
                a(f"s_waitcnt lgkmcnt({7-t})")
            elif t == 0:
                a(f"s_waitcnt lgkmcnt({2 if k == 2 else 0})")
            c = "0" if k == 0 else V(ACC + 4 * t, 4)
            a(f"{MF} {V(ACC+4*t,4)}, {V(AOP+4*k,4)}, {V(CM+16*t+4*k,4)}, {c}")
            n = 4 if k < 2 else 2
            if k < 3 or t < 3:
                for _ in range(n):
                    if fill:
                        x = fill.pop(0)
                        if x != "TAGWAIT":
                            a(x)
    for x in fill:
        a(x)
    a("v_mov_b32 v12, 0")
    a("v_mov_b32 v13, 0")
    for h in range(2):
        for i in range(8):
            a(f"v_add_u32 v{ACC+8*h+i}, 0x10000, v{ACC+8*h+i}")
        for i in range(4):
            a(f"v_perm_b32 v{AOP+4*h+i}, v{ACC+8*h+4+i}, v{ACC+8*h+i}, s{S.T4}")
        for i in range(4):
            a(f"v_and_or_b32 v{AOP+4*h+i}, v{AOP+4*h+i}, s{S.T5}, v{28+i}")
        a(f"buffer_store_dwordx4 {V(AOP+4*h,4)}, v{VST}, {R4(S.RWS)}, s{S.SO+h} offen sc1")
    a(f"s_mov_b32 s{S.SPIN}, 0")
    a(f"s_mov_b32 s{S.ISZ}, 0")
    stamp(7)
    a.label("L_ta_end")

    gwait = [2]

    def gates(full):
        if full:
            a(f"s_waitcnt vmcnt({gwait[0]})")
        dots(GW)
        if full:
            a(f"s_lshl_b32 s{S.T0}, s{S.WAVE}, 11")
            a(f"v_add_u32 v6, s{S.T0}, v{VG16}")
            a(f"ds_write_b128 v6, {V(XR,4)} offset:{L_XT}")
            a(f"ds_write_b128 v6, {V(XR+4,4)} offset:{L_XT+1024}")
            a(f"v_lshl_add_u32 v7, v1, 6, s{S.T0}")
            a("v_lshl_add_u32 v7, v2, 3, v7")
            a("s_waitcnt lgkmcnt(0)")
            for r in range(2):
                a(f"ds_read2_b64 {V(XR+4*r,4)}, v7 offset0:{0} offset1:{4}" if False else f"ds_read_b64 {V(XR+4*r,2)}, v7 offset:{L_XT+1024*r}")
                a(f"ds_read_b64 {V(XR+4*r+2,2)}, v7 offset:{L_XT+1024*r+32}")
            vrow_setup()
        sigmoid(13, 12)
        rnd(13, 13)
        a("v_sub_f32 v14, 1.0, v13")
        rnd(14, 14)
        a(f"v_readlane_b32 s{S.T0}, v13, 0")
        a(f"v_readlane_b32 s{S.T1}, v13, 32")
        a(f"v_readlane_b32 s{S.T2}, v14, 0")
        a(f"v_readlane_b32 s{S.T3}, v14, 32")
        a(f"s_xor_b32 s{S.T4}, s{S.T0}, 0x80000000")
        a(f"s_cmp_eq_u32 s{S.TD}, 0")
        a(f"s_cselect_b32 s{S.T4}, 0, s{S.T4}")
        a(f"s_cselect_b32 s{S.T5}, 0, s{S.T1}")
        if not full:
            return
        a(f"v_mov_b32 v{CO}, s{S.T0}")
        a(f"v_mov_b32 v{CO+1}, s{S.T4}")
        a(f"v_mov_b32 v{CO+2}, s{S.T5}")
        a(f"v_mov_b32 v{CO+3}, s{S.T1}")
        a(f"v_mov_b32 v13, s{S.T2}")
        a(f"v_mov_b32 v14, s{S.T3}")
        a("s_waitcnt lgkmcnt(0)")
        for r in range(2):
            for i in range(4):
                a(f"v_lshlrev_b32 v{XG+8*r+2*i}, 16, v{XR+4*r+i}")
                a(f"v_and_b32 v{XG+8*r+2*i+1}, {HIM}, v{XR+4*r+i}")
            for i in range(8):
                a(f"v_mul_f32 v{XG+8*r+i}, v{13+r}, v{XG+8*r+i}")

    def addr_ur(wreg):
        a(f"s_mul_i32 s{S.T1}, s{wreg}, {2*UB}")
        a("v_bfe_u32 v7, v1, 1, 2")
        a("v_xor_b32 v7, v7, v2")
        a(f"v_lshl_add_u32 v7, v7, 4, s{S.T1}")
        a(f"v_lshl_add_u32 v{VUR0}, v1, 6, v7")
        a("v_sub_u32 v6, 16, v1")
        a("v_bfe_u32 v7, v6, 1, 2")
        a("v_xor_b32 v7, v7, v2")
        a(f"v_lshl_add_u32 v7, v7, 4, s{S.T1}")
        a(f"v_lshl_add_u32 v{VUR1}, v6, 6, v7")

    def addr_p2():
        a("v_lshlrev_b32 v6, 4, v1")
        a(f"v_lshl_add_u32 v{VLD}, v2, 13, v6")
        a(f"v_mul_u32_u24 v6, {4*UB}, v2")
        a("v_bfe_u32 v7, v1, 1, 2")
        a(f"v_xor_b32 v7, s{S.WAVE}, v7")
        a("v_lshl_add_u32 v7, v7, 4, v6")
        a(f"v_lshl_add_u32 v{VUW}, v1, 6, v7")
        a(f"s_lshl4_add_u32 s{S.T1}, s{S.WAVE}, 1024")
        a(f"v_mov_b32 v9, {L_DUMP - L_U2}")
        a(f"v_lshl_add_u32 v{VUX}, v0, 1, v9")
        a(f"v_lshl_add_u32 v7, v1, 1, s{S.T1}")
        a("s_mov_b32 exec_lo, 0x00ff00ff")
        a("s_mov_b32 exec_hi, 0x00ff00ff")
        a(f"v_add_u32 v{VUX}, v7, v6")
        a("s_mov_b64 exec, -1")

    EXP = 96

    def exp_setup():
        a("v_and_b32 v6, 3, v1")
        a("v_lshlrev_b32 v6, 4, v6")
        a(f"ds_read_b128 {V(EXP,4)}, v6 offset:{L_EXP}")
        a("s_waitcnt lgkmcnt(0)")

    def exp_make():
        a("v_lshlrev_b32 v6, 1, v1")
        a(f"v_lshrrev_b32 v6, v6, v{VTAG}")
        a("v_lshlrev_b32 v7, 15, v6")
        a("v_and_b32 v6, 1, v6")
        a("v_and_b32 v7, 0x10000, v7")
        a("v_or_b32 v6, v6, v7")
        a("v_lshlrev_b32 v7, 2, v1")
        a(f"ds_write_b32 v7, v6 offset:{L_EXP}")
        a("s_waitcnt lgkmcnt(0)")

    def const_d1():
        a("v_cvt_f32_u32 v6, v1")
        a(f"s_lshl_b32 s{S.T0}, s{S.WAVE}, 2")
        a(f"v_lshl_add_u32 v7, v2, 6, s{S.T0}")
        a("v_mul_f32 v6, 0x3b000000, v6")
        a("v_cvt_f32_u32 v7, v7")
        a("v_mul_f32 v15, 0x41800000, v6")
        a("v_mul_f32 v7, v7, v6")
        for ib in range(4):
            if ib:
                a("v_add_f32 v7, v7, v6")
            for j in range(4):
                src = "v7" if j == 0 else "v9"
                a(f"v_cos_f32 v{Cc+j}, {src}")
                a(f"v_sin_f32 v{Ss+j}, {src}")
                if j < 3:
                    a(f"v_add_f32 v9, {src}, v15")
            b = M1 + 12 * ib
            a(f"v_mov_b32 v{b+8}, 0")
            for p in range(2):
                a(f"v_cvt_pk_bf16_f32 v{b+p}, v{Cc+2*p}, v{Cc+2*p+1}")
                a(f"v_cvt_pk_bf16_f32 v{b+4+p}, -v{Ss+2*p}, -v{Ss+2*p+1}")
            for p in range(2):
                a(f"v_xor_b32 v{b+2+p}, v{b+p}, v{VSGN}")
                a(f"v_xor_b32 v{b+6+p}, v{b+4+p}, v{VSGN}")
        a("v_lshrrev_b32 v6, 1, v1")
        a(f"v_add_u32 v7, s{S.T0}, v6")
        a("v_and_b32 v9, 1, v1")
        a("v_lshl_add_u32 v7, v9, 3, v7")
        a("v_cvt_f32_u32 v7, v7")
        a("v_mul_f32 v7, 0x3d000000, v7")
        a("v_cos_f32 v7, v7")
        for ib in range(4):
            m = 0x00030003 << (2 * ib)
            a(f"s_mov_b32 exec_lo, {m:#x}")
            a(f"s_mov_b32 exec_hi, {m:#x}")
            a(f"v_cvt_pk_bf16_f32 v{M1+12*ib+8}, v7, -v7")
        a("s_mov_b64 exec, -1")
        for ib in range(4):
            for p in range(1, 4):
                a(f"v_mov_b32 v{M1+12*ib+8+p}, v{M1+12*ib+8}")

    def const_ga():
        a("v_lshrrev_b32 v6, 1, v1")
        a(f"s_lshl_b32 s{S.T0}, s{S.HH}, 10")
        a(f"s_add_u32 s{S.T0}, s{S.T0}, s{S.T1C}")
        a(f"v_lshl_add_u32 v6, v6, 7, s{S.T0}")
        a("v_and_b32 v7, 1, v1")
        a("v_lshlrev_b32 v9, 9, v7")
        l0, ld = a.L("g0"), a.L("gd")
        a(f"s_cmp_lg_u32 s{S.T1C}, 0")
        a(f"s_cbranch_scc1 {l0}")
        a("s_mov_b32 exec_lo, 0x00020002")
        a("s_mov_b32 exec_hi, 0x00020002")
        a("v_mov_b32 v6, 0x400")
        a("v_mov_b32 v9, 0")
        a("s_mov_b64 exec, -1")
        a.label(l0)
        a("v_lshlrev_b32 v7, 2, v2")
        a("v_mad_u32_u24 v9, v7, v6, v9")
        a("v_cvt_f32_u32 v6, v6")
        a("v_cvt_f32_u32 v9, v9")
        a("v_mul_f32 v6, 0x3a000000, v6")
        a("v_mul_f32 v9, 0x3a000000, v9")
        for jj in range(4):
            a(f"v_cos_f32 v{Cc+jj}, v9")
            a(f"v_sin_f32 v{Ss+jj}, v9")
            if jj < 3:
                a("v_add_f32 v9, v9, v6")
        a(f"s_and_b32 s{S.T1}, s{S.T1C}, 63")
        a(f"s_mul_i32 s{S.L0}, s{S.T1}, {CS}")
        for jj in range(4):
            a(f"v_cvt_pk_bf16_f32 v{GA+jj}, v{Cc+jj}, v{Ss+jj}")
        a(f"s_cmp_lg_u32 s{S.T1}, 0")
        a(f"s_cbranch_scc1 {ld}")
        a(f"s_lshr_b32 s{S.T1}, s{S.T1C}, 2")
        for jj in range(4):
            a(f"v_and_b32 v{GA+jj}, 0xffff, v{GA+jj}")
            a(f"v_lshlrev_b32 v{GA+jj}, s{S.T1}, v{GA+jj}")
        a.label(ld)
        a(f"s_lshl_b32 s{S.T1}, s{S.WAVE}, 9")
        a(f"s_add_u32 s{S.L0}, s{S.L0}, s{S.T1}")
        a(f"s_add_u32 s{S.L0}, s{S.L0}, {WS_INT}")
        a(f"s_add_u32 s{S.L1}, s{S.L0}, 4096")

    def m2_addr():
        a(f"s_cmp_eq_u32 s{S.TD}, 0")
        a(f"s_cselect_b32 s{S.T0}, 0, 2048")
        a(f"v_add_u32 v4, s{S.T0}, v{VG16}")

    def int_loads(ah):
        for jj in range(4):
            so = S.L0 if jj < 2 else S.L1
            a(f"buffer_load_dwordx4 {V(LD+16*ah+4*jj,4)}, v{VLD}, {R4(S.RWS)}, s{so} offen offset:{(jj & 1)*2048 + ah*256} sc1")

    a.srd(S.ROUT, S.POUT, 0x200000)
    a(f"s_cmp_ge_u32 s{S.WAVE}, 4")
    a("s_cbranch_scc1 L_hi0")
    pre = [lambda: (addr_p2(), const_ga(), exp_setup()), const_d1, lambda: gates(True), lambda: (addr_ur(S.WAVE), m2_addr())]
    if o.gfirst:
        pre[1], pre[2] = pre[2], pre[1]
    for f in pre[:o.npre]:
        f()
    stamp(8)
    a(f"s_waitcnt vmcnt({0 if o.ackwait else 2})")
    if o.b3:
        a("s_barrier")
    if o.isleep0:
        a(f"s_sleep {o.isleep0}")
    hold("B4")
    stamp(9)
    int_loads(0)
    int_loads(1)
    gwait[0] = 10
    for f in pre[o.npre:]:
        f()
    gwait[0] = 2
    a.label("L_zjoin")
    stamp(10)
    for ah in range(2):
        a(f"s_waitcnt vmcnt({4-4*ah})")
        a.label(f"L_got{ah}")
        b = LD + 16 * ah
        da = DA1 if ah else DA0
        for ib in range(4):
            for jj in range(4):
                a(f"v_xor_b32 v{TP+4*ib+jj}, v{b+4*jj+ib}, v{EXP+ib}")
            if ib == 0:
                a(f"v_or3_b32 v6, v{TP}, v{TP+1}, v{TP+2}")
                a(f"v_or_b32 v6, v6, v{TP+3}")
            else:
                a(f"v_or3_b32 v6, v6, v{TP+4*ib}, v{TP+4*ib+1}")
                a(f"v_or3_b32 v6, v6, v{TP+4*ib+2}, v{TP+4*ib+3}")
            if ib == 3:
                a("v_and_b32 v6, 0x10001, v6")
                a("v_cmp_ne_u32 vcc, 0, v6")
            if not (ah == 1):
                a(f"{MF} {V(da+4*ib,4)}, {V(TP+4*ib,4)}, {V(GA,4)}, 0")
            else:
                a(f"{MF} {V(da+4*ib,4)}, {V(TP+4*ib,4)}, {V(GA,4)}, 0")
        a(f"s_cbranch_vccnz L_retry{ah}")
        a.label(f"L_fail{ah}")
    stamp(11)

    def d1(jb):
        a(f"{MF} {V(DA0+4*jb,4)}, {V(TP+4*jb,4)}, {V(M1+12*jb,4)}, 0")
        a(f"{MF} {V(DA1+4*jb,4)}, {V(TP+4*jb,4)}, {V(M1+12*jb+4,4)}, 0")
        a(f"{MF} {V(X16,4)}, {V(TP+4*jb,4)}, {V(M1+12*jb+8,4)}, {'0' if jb == 0 else V(X16,4)}")

    for ib in range(4):
        for p in range(4):
            s0 = (DA1 if p >= 2 else DA0) + 4 * ib + 2 * (p & 1)
            a(f"v_cvt_pk_bf16_f32 v{TP+4*ib+p}, v{s0}, v{s0+1}")
        if ib:
            d1(ib - 1)
    d1(3)
    for ib in range(3):
        for i in range(4):
            a(f"v_cvt_pk_bf16_f32 v{PK+4*i+ib}, v{DA0+4*ib+i}, v{DA1+4*ib+i}")
    for i in range(4):
        a(f"v_cvt_pk_bf16_f32 v{PK+4*i+3}, v{DA0+12+i}, v{DA1+12+i}")
        a(f"ds_write_b128 v{VUW}, {V(PK+4*i,4)} offset:{L_U2 + i*UB}")
    a(f"v_cvt_pk_bf16_f32 v{X16}, v{X16}, v{X16+1}")
    a(f"v_cvt_pk_bf16_f32 v{X16+2}, v{X16+2}, v{X16+3}")
    a(f"ds_write_b16 v{VUX}, v{X16} offset:{L_U2}")
    a(f"ds_write_b16_d16_hi v{VUX}, v{X16} offset:{L_U2+UB}")
    a(f"ds_write_b16 v{VUX}, v{X16+2} offset:{L_U2+2*UB}")
    a(f"ds_write_b16_d16_hi v{VUX}, v{X16+2} offset:{L_U2+3*UB}")
    a.label("L_d2")
    a(f"ds_read_b128 {V(M2,4)}, v{VG16} offset:{L_M2}")
    a(f"ds_read_b128 {V(M2+4,4)}, v{VG16} offset:{L_M2+1024}")
    a(f"ds_read_b128 {V(M2+8,4)}, v4 offset:{L_M2}")
    a(f"ds_read_b128 {V(M2+12,4)}, v4 offset:{L_M2+1024}")
    a(f"v_mov_b32 v9, {L_GKEY}")
    a("s_waitcnt lgkmcnt(0)")
    a("s_barrier")
    stamp(12)
    a("ds_read_b32 v6, v9")
    a(f"ds_read_b128 {V(UO,4)}, v{VUR0} offset:{L_U2}")
    a(f"ds_read_b128 {V(UO+4,4)}, v{VUR1} offset:{L_U2}")
    a(f"ds_read_b128 {V(UO+8,4)}, v{VUR0} offset:{L_U2+UB}")
    a(f"ds_read_b128 {V(UO+12,4)}, v{VUR1} offset:{L_U2+UB}")
    a(f"s_cmp_lg_u32 s{S.ISZ}, 0")
    a("s_cbranch_scc1 L_zfin")
    a(f"s_lshl_b32 s{S.T0}, s{S.TD}, 10")
    a(f"s_lshl_b32 s{S.T1}, s{S.TM}, 10")
    for k in range(4):
        a(f"s_waitcnt lgkmcnt({3-k})")
        a(f"{MF} {V(PQ+4*k,4)}, {V(UO+4*k,4)}, {V(M2+4*k,4)}, 0")
    a(f"v_readfirstlane_b32 s{S.GKEY}, v6")
    a(f"s_andn2_b32 s{S.IDX}, 0xffff, s{S.GKEY}")
    for r in range(2):
        for i in range(8):
            a(f"v_fmac_f32 v{XG+8*r+i}, v{CO+2*r}, v{PQ+i}")
    for r, (so, tr) in enumerate(((S.T0, S.TD), (S.T1, S.TM))):
        for i in range(8):
            a(f"v_fmac_f32 v{XG+8*r+i}, v{CO+2*r+1}, v{PQ+8+i}")
        for i in range(4):
            a(f"v_cvt_pk_bf16_f32 v{UO+4*r+i}, v{XG+8*r+2*i}, v{XG+8*r+2*i+1}")
        l = a.L("skip")
        if r == 0:
            stamp(6)
        a(f"s_cmp_eq_u32 s{tr}, s{S.IDX}")
        a(f"s_cbranch_scc1 {l}")
        a(f"v_permlane16_swap_b32 v{UO+4*r}, v{UO+4*r+2}")
        a(f"v_permlane16_swap_b32 v{UO+4*r+1}, v{UO+4*r+3}")
        a(f"buffer_store_dwordx4 {V(UO+4*r,4)}, v{VROW}, {R4(S.ROUT)}, s{so} offen{o.outpol}")
        a.label(l)
    a.label("L_tb_end")
    stamp(13)
    if o.stamps:
        a("s_waitcnt vmcnt(0)")
        stamp(15)
    endprog()

    for ah in range(2):
        a.label(f"L_retry{ah}")
        if o.stamps:
            a(f"s_add_u32 s{S.RC}, s{S.RC}, {1 << (8*ah)}")
        if o.rsleep:
            a(f"s_sleep {o.rsleep}")
        spin()
        a(f"s_cbranch_scc1 L_fail{ah}")
        int_loads(ah)
        a("s_waitcnt vmcnt(0)")
        a(f"s_branch L_got{ah}")

    a.label("L_hi0")
    if o.b3:
        if o.ackwait:
            a("s_waitcnt vmcnt(0)")
        a("s_barrier")
    a.label("L_hi1")
    if o.atouch:
        touch("L_tb", o.atouch, 4, 4)
        a(f"s_cmp_lg_u32 s{S.ISZ}, 0")
        a("s_cbranch_scc1 L_z0b")
    gates(True)
    addr_ur(S.WAVE)
    m2_addr()
    stamp(10)
    a("s_branch L_d2")

    a.label("L_ah")
    if o.cpf:
        a(f"s_cmp_ge_u32 s{S.T1}, {o.cpf}")
        a("s_cbranch_scc1 L_nocpf")
        a(f"s_getpc_b64 s[{S.EX}:{S.EX+1}]")
        a.label("L_pc")
        a(f"s_sub_u32 s{S.EX}, s{S.EX}, L_pc - {name}")
        a(f"s_subb_u32 s{S.EX+1}, s{S.EX+1}, 0")
        a("v_lshlrev_b32 v6, 7, v0")
        a("v_add_u32 v7, 0x2000, v6")
        a(f"v_min_u32 v7, L_end - {name}, v7")
        a(f"global_load_dword v12, v6, s[{S.EX}:{S.EX+1}]")
        a(f"global_load_dword v13, v7, s[{S.EX}:{S.EX+1}]")
        a.label("L_nocpf")
    a(f"v_lshlrev_b32 v{VG16}, 4, v0")
    a(f"v_mov_b32 v{VTAG}, 0")
    a(f"s_mov_b32 s{S.KM}, 0x9E3779B1")
    a(f"s_cmp_ge_u32 s{S.T1}, {o.wpf}")
    a("s_waitcnt lgkmcnt(0)")
    a("s_cbranch_scc1 L_nowpf")
    a(f"global_load_dwordx4 v[32:35], v{VG16}, s[{S.PWR}:{S.PWR+1}]")
    a(f"global_load_dword v{VE}, v{VTAG}, s[{S.PWS}:{S.PWS+1}]")
    a(f"global_load_dwordx4 v[36:39], v{VG16}, s[{S.PGW}:{S.PGW+1}]")
    a.label("L_nowpf")
    stamp(1)
    a("v_lshlrev_b32 v14, 10, v0")
    a(f"s_lshl_b32 s{S.ID8}, s2, 3")
    a(f"s_add_u32 s{S.ID8}, s{S.ID8}, {WS_KEY}")
    ws_setup()

    const_d2()
    stamp(2)
    a(f"global_load_dword v{VE}, v{VTAG}, s[{S.PWS}:{S.PWS+1}]")
    a(f"v_mov_b32 v9, {L_KSL}")
    a("s_waitcnt vmcnt(0)")
    tag_make()
    exp_make()
    a(f"v_mov_b32 v9, {L_KSL}")
    stamp(3)
    a("s_barrier")
    for i in range(4):
        a(f"ds_read_b128 {V(40+4*i,4)}, v9 offset:{16*i}")
    set_exec(RF * CF + RZ * CZ + R2 * C2)
    a("s_waitcnt lgkmcnt(2)")
    a("v_max3_u32 v6, v40, v41, v42")
    a("v_max3_u32 v7, v43, v44, v45")
    a("v_max3_u32 v6, v46, v47, v6")
    a("s_waitcnt lgkmcnt(0)")
    a("v_max3_u32 v7, v48, v49, v7")
    a("v_max3_u32 v6, v50, v51, v6")
    a("v_max3_u32 v7, v52, v53, v7")
    a("v_max3_u32 v6, v54, v55, v6")
    a(f"v_max_u32 v{VE}, v6, v7")
    a(f"buffer_store_dwordx2 v[{VE}:{VTAG}], v14, {R4(S.RWS)}, s{S.ID8} offen sc1")
    a("s_mov_b64 exec, -1")
    stamp(5)
    poll_setup(WS_KEY + 1024 * (RF * CF + RZ * CZ), R2, C2)
    a("s_waitcnt vmcnt(0)")
    if o.b3:
        a("s_barrier")
    a(f"s_sleep {o.k2sleep0}")
    stamp(8)
    poll_granules(VG16, 32, sleep=o.k2sleep)
    stamp(9)
    wave_max_key(32)
    lds_put(L_GKEY, 32)
    a("s_barrier")
    endprog()

    a.label("L_notA")
    if o.only == "AA":
        a("s_endpgm")
    a(f"s_lshl4_add_u32 s{S.FJ}, s{S.T0}, s{S.T1}")
    a(f"s_sub_u32 s{S.FJ}, s{S.FJ}, 16")
    a(f"s_cmp_ge_u32 s2, {NWG}")
    a("s_cbranch_scc1 L_end")
    a(f"s_cmp_lt_u32 s{S.T0}, 4")
    a("s_cbranch_scc1 L_F")
    a(f"s_mul_i32 s{S.FJ}, s{S.T0}, 12")
    a(f"s_add_u32 s{S.FJ}, s{S.FJ}, s{S.T1}")
    a(f"s_cmp_lt_u32 s{S.T1}, 28")
    a("s_cbranch_scc1 L_F")
    a(f"s_mov_b32 s{S.ISZ}, 1")
    a(f"s_lshl2_add_u32 s{S.Z}, s{S.T0}, s{S.T1}")
    a(f"s_sub_u32 s{S.Z}, s{S.Z}, 44")
    vrow_setup()
    a(f"v_lshlrev_b32 v{VG16}, 4, v0")
    sgn_setup()
    a("s_waitcnt lgkmcnt(0)")
    ws_setup()
    a.srd(S.ROUT, S.POUT, 0x200000)
    addr_p2()
    a(f"s_cmp_eq_u32 s{S.WAVE}, 8")
    a("s_cbranch_scc1 L_zh")
    a(f"s_cmp_ge_u32 s{S.WAVE}, 4")
    a("s_cbranch_scc1 L_z0")
    const_d1()
    a("s_branch L_z1")
    a.label("L_z0")
    if o.atouch:
        a("s_branch L_hi1")
    a.label("L_z0b")
    if o.ztouch:
        touch("L_tz", o.ztouch, 4, 4)
    a.label("L_z1")
    a(f"v_mov_b32 v9, {L_KSL}")
    a("v_mov_b32 v12, 0")
    a("v_mov_b32 v13, 0")
    a("s_barrier")
    a(f"ds_read_b64 v[{VE}:{VTAG}], v9")
    a(f"ds_read_b128 {V(GW,4)}, v{VG16} offset:{L_WV+1024}")
    a("s_waitcnt lgkmcnt(0)")
    a(f"v_readfirstlane_b32 s{S.GKEY}, v{VE}")
    a(f"s_andn2_b32 s{S.IDX}, 2047, s{S.GKEY}")
    a(f"s_and_b32 s{S.T0}, s{S.IDX}, 127")
    a(f"s_cmp_gt_u32 s{S.T0}, 64")
    a(f"s_cselect_b32 s{S.WHICH}, 1, 0")
    a(f"s_and_b32 s{S.T0}, s{S.IDX}, {1024 + 63}")
    a(f"s_cmp_eq_u32 s{S.T0}, 1024")
    a(f"s_cselect_b32 s{S.WHICH}, 1, s{S.WHICH}")
    a(f"s_sub_u32 s{S.T0}, 2048, s{S.IDX}")
    a(f"s_cmp_lg_u32 s{S.WHICH}, 0")
    a(f"s_cselect_b32 s{S.T0}, s{S.T0}, s{S.IDX}")
    a(f"s_cmp_eq_u32 s{S.T0}, 1024")
    a(f"s_cselect_b32 s{S.T0}, 0, s{S.T0}")
    a(f"s_and_b32 s{S.T1C}, s{S.T0}, 127")
    a(f"s_lshr_b32 s{S.HH}, s{S.T0}, 10")
    a(f"s_bfe_u32 s{S.WSEL}, s{S.T0}, 0x30007")
    rows_setup(S.WSEL)
    a(f"s_cmp_ge_u32 s{S.WAVE}, 4")
    a("s_cbranch_scc1 L_z4")
    const_ga()
    exp_setup()
    if o.zisleep0:
        a(f"s_sleep {o.zisleep0}")
    stamp(9)
    int_loads(0)
    int_loads(1)
    addr_ur(S.WSEL)
    m2_addr()
    a("v_lshlrev_b32 v6, 7, v1")
    a(f"v_lshl_add_u32 v15, v2, 4, v6")
    a("s_branch L_zjoin")
    a.label("L_z4")
    a(f"s_cmp_ge_u32 s{S.WAVE}, 6")
    a("s_cbranch_scc1 L_zend2")
    rows_load()
    a(f"s_sub_u32 s{S.T0}, s{S.WAVE}, 4")
    a(f"s_lshl1_add_u32 s{S.T1}, s{S.Z}, s{S.T0}")
    a(f"s_lshl_b32 s{S.T1}, s{S.T1}, 5")
    a("v_and_b32 v6, 7, v0")
    a(f"v_lshl_add_u32 v10, v6, 2, s{S.T1}")
    a(f"s_lshl_b32 s{S.T2}, s{S.IDX}, 10")
    a(f"v_add_u32 v7, s{S.T2}, v10")
    a(f"global_load_dword v35, v7, {PXS}")
    a("v_lshlrev_b32 v10, 1, v10")
    a("v_lshrrev_b32 v7, 3, v0")
    a("v_lshlrev_b32 v7, 8, v7")
    a("v_lshl_add_u32 v11, v6, 4, v7")
    a(f"s_mul_i32 s{S.SI0}, s{S.Z}, {PZ}")
    a(f"s_lshl_b32 s{S.T0}, s{S.T0}, 7")
    a(f"s_add_u32 s{S.SI0}, s{S.SI0}, s{S.T0}")
    a(f"s_add_u32 s{S.SI0}, s{S.SI0}, {WS_PART}")
    a(f"s_add_u32 s{S.SI1}, s{S.SI0}, {(o.pc-1)*PARTC}")
    a(f"s_and_b32 s{S.T0}, s{S.GKEY}, 0xffff0000")
    a(f"s_xor_b32 s{S.T1}, s{S.T0}, 0x80000000")
    a(f"s_xor_b32 s{S.T3}, s{S.T0}, 0xffff0000")
    a(f"s_bitcmp1_b32 s{S.T0}, 31")
    a(f"s_cselect_b32 s{S.T0}, s{S.T1}, s{S.T3}")
    a(f"v_mov_b32 v15, s{S.T0}")
    sigmoid(15, 15)
    rnd(15, 15)
    a("s_waitcnt vmcnt(0)")
    gates(False)
    a(f"s_cmp_lg_u32 s{S.WHICH}, 0")
    a(f"s_cselect_b32 s{S.T2}, s{S.T3}, s{S.T2}")
    a(f"s_cselect_b32 s{S.T0}, s{S.T5}, s{S.T0}")
    a(f"s_cselect_b32 s{S.T4}, s{S.T1}, s{S.T4}")
    a(f"v_mov_b32 v36, s{S.T2}")
    a(f"v_mov_b32 v{CO}, s{S.T0}")
    a(f"v_mov_b32 v{CO+1}, s{S.T4}")
    a("v_lshlrev_b32 v34, 16, v35")
    a(f"v_and_b32 v35, {HIM}, v35")
    a("s_barrier")
    if o.psleep0:
        a(f"s_sleep {o.psleep0}")
    hold("pp")
    a(f"v_mov_b32 v9, {L_ZF}")
    a.label("L_tz_start")
    stamp(10)
    if o.psleep:
        a("s_branch L_zp1")
    a.label("L_zp")
    if o.psleep:
        a(f"s_sleep {o.psleep}")
        a.label("L_zp1")
    for i in range(7):
        if i and i % 2 == 0:
            a(f"s_add_u32 s{S.T0}, s{S.SI0}, {2048*i}")
        a(f"buffer_load_dwordx4 {V(40+4*i,4)}, v11, {R4(S.RWS)}, s{S.T0 if i >= 2 else S.SI0} offen offset:{2048*(i&1)} sc1")
    a(f"s_add_u32 s{S.SI0}, s{S.SI0}, {PARTC}")
    a(f"s_min_u32 s{S.SI0}, s{S.SI0}, s{S.SI1}")
    if o.stamps:
        a(f"s_add_u32 s{S.RC}, s{S.RC}, 256")
    spin()
    a("s_cbranch_scc1 L_zp_ok")
    for i in range(7):
        a(f"s_waitcnt vmcnt({6-i})")
        a(f"v_bitop3_b32 v{37 if i == 0 else 38 + (i & 1)}, v{41+4*i}, v{43+4*i}, v{VTAG} bitop3:0x7e")
        if i:
            a(f"v_add_f32 v40, v40, v{40+4*i}")
            a(f"v_add_f32 v42, v42, v{42+4*i}")
        if i and i % 2 == 0:
            a("v_or3_b32 v37, v37, v38, v39")
    a("v_cmp_ne_u32 vcc, 0, v37")
    a.nop(1)
    a("s_cbranch_vccnz L_zp")
    a.label("L_zp_ok")
    a("ds_read_b32 v12, v9")
    a(f"ds_read_b64 v[32:33], v10 offset:{L_XG2}")
    a(f"ds_read_b64 v[16:17], v10 offset:{L_XG2+2048}")
    a("v_lshrrev_b32 v11, 1, v10")
    a(f"s_lshl_b32 s{S.T2}, s{S.IDX}, 10")
    a("s_waitcnt vmcnt(0)")
    stamp(11)
    a(f"v_add_f32_dpp v40, v40, v40 row_ror:8 {DPPM}")
    a(f"v_add_f32_dpp v42, v42, v42 row_ror:8 {DPPM}")
    a.nop(1)
    a.nop(1)
    a("v_permlane16_swap_b32 v40, v42")
    a("v_add_f32 v40, v40, v42")
    a("v_mov_b32 v42, v40")
    a.nop(2)
    a("v_permlane32_swap_b32 v40, v42")
    a("v_add_f32 v40, v40, v42")
    a("v_mov_b32 v42, v40")
    a.nop(2)
    a("v_permlane16_swap_b32 v40, v42")
    a("v_cvt_pk_bf16_f32 v41, v40, v42")
    a("v_lshlrev_b32 v40, 16, v41")
    a(f"v_and_b32 v42, {HIM}, v41")
    a("v_mul_f32 v40, v40, v15")
    a("v_mul_f32 v42, v42, v15")
    a("v_cvt_pk_bf16_f32 v41, v40, v42")
    a("v_lshlrev_b32 v40, 16, v41")
    a(f"v_and_b32 v42, {HIM}, v41")
    a("v_add_f32 v40, v40, v34")
    a("v_add_f32 v42, v42, v35")
    a("v_cvt_pk_bf16_f32 v41, v40, v42")
    a("v_lshlrev_b32 v40, 16, v41")
    a(f"v_and_b32 v42, {HIM}, v41")
    a.label("L_zw")
    a("s_waitcnt lgkmcnt(0)")
    a("v_cmp_eq_u32 vcc, 0, v12")
    a(f"v_mul_f32 v32, v{CO}, v32")
    a(f"v_mul_f32 v33, v{CO}, v33")
    a("s_cbranch_vccz L_zw_ok")
    spin()
    a("s_cbranch_scc1 L_zw_ok")
    a("ds_read_b32 v12, v9")
    a(f"ds_read_b64 v[32:33], v10 offset:{L_XG2}")
    a(f"ds_read_b64 v[16:17], v10 offset:{L_XG2+2048}")
    a("s_branch L_zw")
    a.label("L_zw_ok")
    a(f"v_fmac_f32 v32, v{CO+1}, v16")
    a(f"v_fmac_f32 v33, v{CO+1}, v17")
    a("v_fmac_f32 v32, v40, v36")
    a("v_fmac_f32 v33, v42, v36")
    a("v_cvt_pk_bf16_f32 v32, v32, v33")
    a("s_mov_b64 exec, 0xff")
    a(f"buffer_store_dword v32, v11, {R4(S.ROUT)}, s{S.T2} offen{o.zpol}")
    a("s_mov_b64 exec, -1")
    stamp(13)
    a("s_barrier")
    endprog()

    a.label("L_zfin")
    a(f"s_cmp_lg_u32 s{S.WAVE}, 0")
    a("s_cbranch_scc1 L_zend")
    for k in range(4):
        a(f"s_waitcnt lgkmcnt({3-k})")
        a(f"{MF} {V(PQ+4*k,4)}, {V(UO+4*k,4)}, {V(M2+4*k,4)}, 0")
    a.nop(3)
    for k in range(4):
        if k == 2:
            a.nop(2)
        a(f"ds_write_b128 v15, {V(PQ+4*k,4)} offset:{L_XG2 + 64*(k&1) + 2048*(k>>1)}")
    a(f"v_mov_b32 v9, {L_ZF}")
    a("s_waitcnt lgkmcnt(0)")
    a("ds_write_b32 v9, v9")
    a("s_waitcnt lgkmcnt(0)")
    stamp(13)
    a.label("L_zend")
    endprog()
    a.label("L_zend2")
    if o.hold and o.hold[0] == "end":
        a("s_barrier")
        a("s_barrier")
    hold("end")
    endprog()

    a.label("L_zh")
    a(f"v_mov_b32 v9, {L_ZF}")
    a("v_mov_b32 v6, 0")
    a("ds_write_b32 v9, v6")
    const_d2()
    a(f"s_mov_b32 m0, {L_WV+1024}")
    tag_load()
    a(f"global_load_lds_dwordx4 v{VG16}, s[{S.PGW}:{S.PGW+1}]")
    a("s_waitcnt vmcnt(0)")
    tag_make()
    exp_make()
    poll_setup(WS_KEY + 1024 * RF * CF, RZ, CZ)
    if o.zsleep0:
        a(f"s_sleep {o.zsleep0}")
    stamp(1)
    poll_granules(VG16, 32, sleep=o.zsleep)
    stamp(2)
    wave_max_key(32)
    lds_put(L_KSL, 32, tag=True)
    a("s_barrier")
    a(f"s_lshl_b32 s{S.T0}, s{S.Z}, 2")
    a(f"s_add_u32 s{S.T0}, s{S.T0}, {WS_ALIVE}")
    a("s_mov_b64 exec, 1")
    a(f"buffer_store_dword v{VTAG}, v0, {R4(S.RWS)}, s{S.T0} offen sc1")
    a("s_mov_b64 exec, -1")
    a(f"s_cmp_lg_u32 s{S.Z}, 0")
    a("s_cbranch_scc1 L_zend")
    a("s_mov_b64 exec, 0xffff")
    a("v_lshlrev_b32 v6, 2, v0")
    a(f"s_mov_b32 s{S.T0}, {WS_ALIVE}")
    a("s_barrier")
    a.label("L_za")
    a(f"buffer_load_dword v7, v6, {R4(S.RWS)}, s{S.T0} offen sc1")
    spin()
    a("s_waitcnt vmcnt(0)")
    a("s_cbranch_scc1 L_za_ok")
    a(f"v_cmp_ne_u32 vcc, v{VTAG}, v7")
    a.nop(1)
    a("s_cbranch_vccnz L_za")
    a.label("L_za_ok")
    a("s_mov_b64 exec, 1")
    a(f"v_add_u32 v9, 1, v{VE}")
    a("s_barrier")
    a(f"buffer_store_dword v9, v6, {R4(S.RWS)}, 0 offen sc1")
    a("s_mov_b64 exec, -1")
    a("s_branch L_zend")

    a.label("L_F")
    if o.only == "A":
        a("s_endpgm")
    WG_, WD_ = 32, 48
    a("v_lshlrev_b32 v5, 4, v0")
    a(f"s_cmp_eq_u32 s{S.WAVE}, 8")
    a("s_cbranch_scc1 L_fh")
    a(f"s_and_b32 s{S.T0}, s{S.FJ}, 3")
    a(f"s_lshr_b32 s{S.T1}, s{S.WAVE}, 1")
    a(f"s_lshl2_add_u32 s{S.L0}, s{S.T0}, s{S.T1}")
    a(f"s_mul_i32 s{S.T2}, s{S.L0}, {32*3584}")
    a(f"s_lshr_b32 s{S.L1}, s{S.FJ}, 2")
    a(f"s_lshl_b32 s{S.T3}, s{S.L1}, 7")
    a(f"s_add_u32 s{S.T2}, s{S.T2}, s{S.T3}")
    a("v_lshrrev_b32 v6, 3, v0")
    a("v_mul_u32_u24 v6, 3584, v6")
    a("v_and_b32 v7, 7, v0")
    a("v_bfe_u32 v8, v0, 4, 1")
    a("v_lshlrev_b32 v8, 2, v8")
    a("v_xor_b32 v4, v7, v8")
    a(f"v_lshl_add_u32 v7, v4, 4, s{S.T2}")
    a("v_add_u32 v3, v6, v7")
    a(f"s_lshl_b32 s{S.T4}, s{S.WAVE}, 12")
    a(f"s_mov_b32 m0, s{S.T4}")
    a(f"s_bitcmp1_b32 s{S.WAVE}, 0")
    a("s_waitcnt lgkmcnt(0)")
    a(f"s_cselect_b32 s{S.PWG}, s{S.PWU}, s{S.PWG}")
    a(f"s_cselect_b32 s{S.PWG+1}, s{S.PWU+1}, s{S.PWG+1}")
    if o.fdelay:
        a(f"s_sleep {o.fdelay}")
    for b in range(4):
        if b:
            a(f"s_add_u32 m0, s{S.T4}, {1024*b}")
            a(f"v_add_u32 v3, {8*3584}, v3")
        a(f"global_load_lds_dwordx4 v3, s[{S.PWG}:{S.PWG+1}]{o.wpol}")
    ws_setup()
    stamp(1)
    a("v_bfe_u32 v6, v0, 2, 2")
    a("v_and_b32 v7, 3, v0")
    a("v_lshlrev_b32 v8, 3, v7")
    a("v_lshl_add_u32 v8, v2, 5, v8")
    a("v_and_b32 v9, 2, v6")
    a("v_lshlrev_b32 v9, 5, v9")
    a("v_xor_b32 v9, v9, v8")
    a("v_lshl_add_u32 v9, v6, 7, v9")
    a(f"v_add_u32 v9, s{S.T4}, v9")
    a(f"s_lshl_b32 s{S.T5}, s{S.WAVE}, 8")
    a("v_lshlrev_b32 v11, 2, v0")
    a(f"v_add_u32 v11, {L_RED}, v11")
    a(f"v_add_u32 v12, s{S.T5}, v11")
    a(f"s_lshl1_add_u32 s{S.T1}, s{S.L1}, s{S.T1}")
    a(f"s_lshl_b32 s{S.T2}, s{S.T1}, 15")
    a(f"s_and_b32 s{S.T3}, s{S.WAVE}, 1")
    a(f"s_lshl1_add_u32 s{S.T3}, s{S.T0}, s{S.T3}")
    a(f"s_lshl_b32 s{S.T5}, s{S.T3}, 7")
    a(f"s_add_u32 s{S.T2}, s{S.T2}, s{S.T5}")
    a("v_lshrrev_b32 v6, 3, v0")
    a(f"v_lshl_add_u32 v6, v6, 10, s{S.T2}")
    a("v_lshl_add_u32 v4, v4, 4, v6")
    a("v_lshrrev_b32 v6, 5, v0")
    a(f"v_mul_u32_u24 v13, {PZ}, v6")
    a("v_and_b32 v6, 31, v0")
    a("v_lshl_add_u32 v13, v6, 3, v13")
    a(f"s_mul_i32 s{S.T2}, s{S.T3}, {2*PZ}")
    a(f"s_lshl_b32 s{S.T1}, s{S.T1}, 8")
    a(f"s_add_u32 s{S.T2}, s{S.T2}, s{S.T1}")
    a(f"s_add_u32 s{S.T2}, s{S.T2}, {WS_PART}")
    a(f"s_lshl_b32 s{S.L0}, s{S.L0}, 6")
    a(f"s_lshl_b32 s{S.L1}, s{S.L1}, 12")
    a(f"s_add_u32 s{S.PO}, s{S.L1}, {WS_XCH}")
    a(f"s_add_u32 s{S.POL}, s{S.PO}, {(o.xc-1)*XCHC}")
    a(f"s_lshl_b32 s{S.T1}, s{S.T0}, 10")
    a(f"s_add_u32 s{S.L1}, s{S.PO}, s{S.T1}")
    a(f"v_mov_b32 v14, {L_FKEY}")
    a(f"s_lshr_b32 s{S.T1}, s{S.WAVE}, 1")
    a(f"s_lshl_b32 s{S.T1}, s{S.T1}, 9")
    a(f"v_lshl_add_u32 v15, v6, 4, s{S.T1}")
    a("v_lshrrev_b32 v6, 5, v0")
    a("v_lshl_add_u32 v15, v6, 10, v15")
    for i in range(2):
        a(f"v_mov_b32 v{16+i}, 0")
    for i in range(2):
        a(f"v_mov_b32 v{24+i}, 0")

    def wd_dma():
        l = a.L("nowd")
        a(f"s_cmp_ge_u32 s{S.WAVE}, 4")
        a(f"s_cbranch_scc1 {l}")
        for b in range(4):
            a(f"s_add_u32 m0, s{S.T4}, {L_WD + 1024*b}")
            if b:
                a("v_add_u32 v4, 0x2000, v4")
            else:
                a.nop(1)
            a(f"global_load_lds_dwordx4 v4, s[{S.PWD}:{S.PWD+1}]")
        a.label(l)

    if o.wdpos == 0:
        wd_dma()
    a("s_waitcnt vmcnt(0)")
    stamp(2)
    if o.fw0:
        a("s_barrier")
    if o.wdpos == 1:
        wd_dma()
    for k in range(8):
        a(f"ds_read_b64_tr_b16 {V(WG_+2*k,2)}, v9 offset:{L_W + k*512}")
    if o.ftouch:
        touch("L_tf", o.ftouch, 0, 8)
    a("s_waitcnt lgkmcnt(0)")
    a("s_barrier")
    a.label("L_tf_start")
    a(f"ds_read_b64 v[{VE}:{VTAG}], v14")
    a("s_waitcnt lgkmcnt(0)")
    a(f"v_readfirstlane_b32 s{S.T0}, v{VE}")
    a(f"s_andn2_b32 s{S.T0}, 2047, s{S.T0}")
    a(f"s_lshl_b32 s{S.T0}, s{S.T0}, 10")
    a(f"s_add_u32 s{S.T0}, s{S.T0}, s{S.L0}")
    a(f"s_load_dwordx16 s[{S.XS}:{S.XS+15}], {PXS}, s{S.T0}")
    stamp(5)
    if o.wdpos == 2:
        wd_dma()
    a(f"v_mov_b32 v29, v{VTAG}")
    a("s_waitcnt vmcnt(0)")
    for k in range(8):
        a(f"ds_read_b64_tr_b16 {V(WD_+2*k,2)}, v9 offset:{L_WD + k*512}")
    a("s_waitcnt lgkmcnt(0)")
    for i in range(16):
        a(f"v_dot2c_f32_bf16 v{16+(i&1)}, s{S.XS+i}, v{WG_+i}")
    stamp(6)
    a.nop(3)
    a("v_add_f32 v16, v16, v17")
    a("ds_write_b32 v12, v16")
    a("s_waitcnt lgkmcnt(0)")
    a("s_barrier")
    a(f"s_lshl_b32 s{S.T0}, s{S.WAVE}, 4")
    a(f"s_lshl_b64 s[{S.EX}:{S.EX+1}], 0xffff, s{S.T0}")
    for i, (p, q) in enumerate(((0, 2), (4, 6), (1, 3), (5, 7))):
        a(f"ds_read2st64_b32 v[{16+2*i}:{17+2*i}], v11 offset0:{p} offset1:{q}")
    a("s_waitcnt lgkmcnt(2)")
    a("v_add_f32 v16, v16, v17")
    a("v_add_f32 v18, v18, v19")
    a("s_waitcnt lgkmcnt(0)")
    a("v_add_f32 v20, v20, v21")
    a("v_add_f32 v22, v22, v23")
    a("v_add_f32 v28, v16, v18")
    a(f"s_mov_b64 exec, s[{S.EX}:{S.EX+1}]")
    a("v_add_f32 v30, v20, v22")
    a(f"s_cmp_ge_u32 s{S.WAVE}, 4")
    a("s_cbranch_scc1 L_f5")
    a(f"buffer_store_dwordx4 v[28:31], v5, {R4(S.RWS)}, s{S.L1} offen{'' if o.xl2 else ' sc1'}")
    a("s_mov_b64 exec, -1")
    stamp(7)
    if o.xack:
        a("s_waitcnt vmcnt(0)")
    if o.xsleep0:
        a(f"s_sleep {o.xsleep0}")
    stamp(8)
    a.label("L_fx")
    for i in range(2):
        a(f"buffer_load_dwordx4 {V(64+4*i,4)}, v15, {R4(S.RWS)}, s{S.PO} offen offset:{2048*i} sc1")
    if o.xl2:
        a(f"s_cmp_ge_u32 s{S.SPIN}, {o.xl2 - 1}")
        a(f"s_cselect_b32 s{S.T0}, {XCHC}, 0")
        a(f"s_add_u32 s{S.PO}, s{S.PO}, s{S.T0}")
    else:
        a(f"s_add_u32 s{S.PO}, s{S.PO}, {XCHC}")
    a(f"s_min_u32 s{S.PO}, s{S.PO}, s{S.POL}")
    if o.stamps:
        a(f"s_add_u32 s{S.RC}, s{S.RC}, 1")
    spin()
    a("s_cbranch_scc1 L_fx_ok")
    a("s_waitcnt vmcnt(1)")
    a(f"v_bitop3_b32 v20, v65, v67, v{VTAG} bitop3:0x7e")
    a("s_waitcnt vmcnt(0)")
    a("v_add_f32 v16, v64, v68")
    a("v_add_f32 v18, v66, v70")
    a(f"v_bitop3_b32 v21, v69, v71, v{VTAG} bitop3:0x7e")
    a("v_or_b32 v20, v20, v21")
    a("v_cmp_ne_u32 vcc, 0, v20")
    a("v_permlane32_swap_b32 v16, v18")
    a("s_cbranch_vccnz L_fx")
    a.label("L_fx_ok")
    stamp(9)
    a("v_add_f32 v16, v16, v18")
    rnd(16, 16)
    a("v_mov_b32 v18, v16")
    sigmoid(17, 16)
    a("v_permlane32_swap_b32 v16, v18")
    a("v_mul_f32 v17, v17, v16")
    rnd(17, 17)
    a("v_mul_f32 v17, v17, v18")
    a.nop(2)
    a(f"v_mov_b32_dpp v18, v17 quad_perm:[1,0,3,2] {DPPM}")
    a("v_cvt_pk_bf16_f32 v17, v17, v18")
    a.nop(1)
    for i in range(16):
        a(f"v_readlane_b32 s{S.XS+i}, v17, {2*i}")
    for i in range(16):
        a(f"v_dot2c_f32_bf16 v{24+(i&1)}, s{S.XS+i}, v{WD_+i}")
    a.nop(3)
    a("v_add_f32 v30, v24, v25")
    for c in range(o.pc):
        if c:
            a(f"s_add_u32 s{S.T2}, s{S.T2}, {PARTC}")
        a(f"buffer_store_dwordx2 v[30:31], v13, {R4(S.RWS)}, s{S.T2} offen sc1")
    stamp(10)
    a.label("L_fend")
    endprog()
    a.label("L_f5")
    for c in range(1, o.xc):
        a(f"s_add_u32 s{S.L1}, s{S.L1}, {XCHC}")
        a(f"buffer_store_dwordx4 v[28:31], v5, {R4(S.RWS)}, s{S.L1} offen sc1")
    a("s_mov_b64 exec, -1")
    endprog()

    a.label("L_fh")
    a("s_waitcnt lgkmcnt(0)")
    if o.fesleep:
        a(f"s_sleep {o.fesleep}")
    tag_load()
    ws_setup()
    poll_setup(WS_KEY, RF, CF)
    if o.fw0:
        a("s_barrier")
    if o.fsleep0:
        a(f"s_sleep {o.fsleep0}")
    a("s_waitcnt vmcnt(0)")
    tag_make()
    hold("fp")
    stamp(3)
    poll_granules(5, 20, sleep=o.fsleep)
    stamp(4)
    wave_max_key(20)
    lds_put(L_FKEY, 20, tag=True)
    a("s_barrier")
    endprog()
    a.label("L_end")
    a("s_endpgm")
    return name


def main():
    ap = argparse.ArgumentParser()
    ap.add_argument("-o", required=True)
    for k, d in dict(stamps=0, pc=2, xc=2, zsleep=8, zsleep0=30, psleep=0, psleep0=10, rsleep=3, ackwait=1, hipre=0, tlate=1,
                     mode=0, k2ack=1, k2sleep0=10, zk2sleep0=0, k2sleep=3, fbar=0, cpf=0, atouch=10, ftouch=8, xl2=5, npre=2, gfirst=0, isleep0=4, zisleep0=0, b3=1, ztouch=8, zstep=128, touch=0, wdpos=1, wpf=1, fesleep=0, fw0=0, xack=0, fdelay=0, xsleep0=3, fsleep0=40, fsleep=3, spin=17).items():
        ap.add_argument("--" + k, type=int, default=d)
    for k in ("wpol", "outpol", "zpol", "only"):
        ap.add_argument("--" + k, default="")
    ap.add_argument("--mf", default="8,2")
    ap.add_argument("--mz", default="1,3")
    ap.add_argument("--m2", default="1,3")
    ap.add_argument("--hold", default="")
    o = ap.parse_args()
    if o.hold:
        o.hold = o.hold.split(":")
    for k in ("mf", "mz", "m2"):
        setattr(o, k, [int(v) for v in getattr(o, k).split(",")])
    for k in ("wpol", "outpol", "zpol"):
        setattr(o, k, (" " + getattr(o, k)) if getattr(o, k) else "")
    a = Asm()
    name = gen(a, o)
    if o.touch:
        insert_stubs(a, [("L_ta_start", "L_ta_end", "L_ta", "L_taback", 9)], step=o.touch)
    reg = []
    if o.atouch:
        reg.append(("L_zjoin", "L_tb_end", "L_tb", "L_tbback", o.atouch))
    if o.ztouch:
        reg.append(("L_tz_start", "L_zend", "L_tz", "L_tzback", o.ztouch))
    if o.ftouch:
        reg.append(("L_tf_start", "L_fend", "L_tf", "L_tfback", o.ftouch))
    if reg:
        insert_stubs(a, reg, step=o.zstep)
    finish(a, name, NVGPR, 102, NWG, 576, LDS_BYTES, o.o)


main()
```

```python
import argparse
from lib import *

NA, NF, NZ = 128, 112, 16
NWG = NA + NF + NZ
WS_E = 0
WS_ALIVE = 4096
WS_KEY = 64 << 10
WS_KEY2 = 128 << 10
WS_XCH = 192 << 10
XCHC = 28 * 4096
WS_PART = 704 << 10
PZ = 56 * 256
PARTC = NZ * PZ
WS_INT = 2 << 20
CS = 32768 + 256
WS_STAMP = 8 << 20
WS_BYTES = 16 << 20
L_TILE = 0
L_U2 = 16384
L_CT = L_U2
UB = 17 * 64
L_MISC = L_U2 + 16 * UB
L_KSL = L_MISC
L_GKEY = L_MISC + 64
L_ZC = L_MISC + 76
L_ZF = L_MISC + 72
L_EXP = L_MISC + 128
L_DUMP = L_MISC + 192
L_XG2 = L_DUMP + 4 * UB + 256
L_M2 = L_XG2 + 4096
L_WV = L_M2 + 4096
L_XT = L_WV + 2048
L_W = 0
L_WD = 32768
L_RED = L_WD + 16384
L_FKEY = L_RED + 2048
LDS_BYTES = 84 * 1024
MF = "v_mfma_f32_16x16x32_bf16"
LOG2E = 0x3fb8aa3b
DPPM = "row_mask:0xf bank_mask:0xf"
HIM = "0xffff0000"
NVGPR = 168


class S:
    WAVE = 3
    PX = 4
    T0, T1, T2, T3, T4, T5 = 6, 7, 8, 9, 10, 11
    EX = 12
    EY = 14
    PWR, PWG, PWU, PWD, PGW, POUT, PDBG, PWS = 16, 18, 20, 22, 24, 26, 28, 30
    L0, L1, SPT, PIE = 32, 33, 34, 35
    RWS, ROUT = 36, 40
    XS = 44
    GKEY, WSEL, WHICH, Z = 44, 45, 46, 47
    SI0, SI1, ID8, BLK = 48, 49, 50, 51
    IDX, ISZ, TC = 54, 55, 53
    SO = 44
    T1C, HH, TD, TM = 56, 57, 58, 59
    FJ, PO, POL, RC, KM, SPIN = 60, 61, 62, 63, 64, 65
    PO0, L10, T20, FKEY, FIN = 40, 41, 42, 43, 35
    ST = 68


def gen(a, o):
    name = NAME + "_kernel"
    kernel_head(a, name)
    VE, VTAG = 30, 31
    PXS = f"s[{S.PX}:{S.PX+1}]"

    def stamp(i):
        if o.stamps:
            a(f"s_memrealtime s[{S.ST+2*i}:{S.ST+2*i+1}]")

    def hold(cp):
        if o.hold and o.hold[0] == cp:
            l = a.L("hold")
            a.label(l)
            a("s_sleep 1")
            a("s_memrealtime s[100:101]")
            a("s_waitcnt lgkmcnt(0)")
            a("s_sub_u32 s100, s100, s66")
            a(f"s_cmp_lt_u32 s100, {o.hold[1]}")
            a(f"s_cbranch_scc1 {l}")

    def touch(pre, n, first, step, back=None, tail=None):
        a("s_mov_b64 exec, 0")
        a(f"s_sub_u32 s{S.TC}, s{S.WAVE}, {first + step}")
        a.label(f"{pre}back")
        a(f"s_add_u32 s{S.TC}, s{S.TC}, {step}")
        for k in range(n):
            a(f"s_cmp_eq_u32 s{S.TC}, {k}")
            a(f"s_cbranch_scc1 {pre}{k}")
        a("s_mov_b64 exec, -1")

    def endprog():
        if o.stamps:
            a("s_waitcnt lgkmcnt(0)")
            a(f"s_add_u32 s{S.ST+28}, s{S.RC}, s{S.ST+30}")
            for i in range(16):
                a(f"v_writelane_b32 v166, s{S.ST+2*i}, {i}")
            a("s_mov_b64 exec, 0xffff")
            a(f"s_lshl4_add_u32 s{S.T0}, s2, s{S.WAVE}")
            a(f"s_lshl_b32 s{S.T0}, s{S.T0}, 7")
            a(f"s_add_u32 s{S.T0}, s{S.T0}, {WS_STAMP}")
            a(f"v_lshl_add_u32 v165, v0, 3, s{S.T0}")
            a("v_mov_b32 v167, 0")
            a(f"global_store_dwordx2 v165, v[166:167], s[{S.PWS}:{S.PWS+1}]")
        a("s_endpgm")

    def spin():
        a(f"s_add_u32 s{S.SPIN}, s{S.SPIN}, 1")
        a(f"s_lshr_b32 s{S.SPT}, s{S.SPIN}, {o.spin}")

    def poll_setup(base, R, C):
        a(f"s_and_b32 s{S.PO}, s2, {R-1}")
        a(f"s_mul_i32 s{S.PO}, s{S.PO}, {1024*C}")
        a(f"s_add_u32 s{S.PO}, s{S.PO}, {base}")
        a(f"s_add_u32 s{S.POL}, s{S.PO}, {1024*(C-1)}")

    def set_exec(n):
        if n >= 64:
            a("s_mov_b64 exec, -1")
        elif n <= 31:
            a(f"s_mov_b64 exec, {(1 << n) - 1:#x}")
        else:
            a("s_mov_b32 exec_lo, -1")
            a(f"s_mov_b32 exec_hi, {(1 << (n - 32)) - 1:#x}")

    RS = 8 if o.spec else 0
    RF, CF = o.mf
    RZ, CZ = o.mz
    R2, C2 = o.m2
    assert RF * CF + RZ * CZ + R2 * C2 + RS <= 64

    def poll_granules(vaddr, vd, sleep=0, step=1024):
        l = a.L("poll")
        if sleep:
            a(f"s_branch {l}_1")
        a.label(l)
        if sleep:
            a(f"s_sleep {sleep}")
            a.label(f"{l}_1")
        a(f"buffer_load_dwordx4 {V(vd,4)}, v{vaddr}, {R4(S.RWS)}, s{S.PO} offen sc1")
        a(f"s_add_u32 s{S.PO}, s{S.PO}, {step}")
        a(f"s_min_u32 s{S.PO}, s{S.PO}, s{S.POL}")
        if o.stamps:
            a(f"s_add_u32 s{S.RC}, s{S.RC}, 1")
        spin()
        a("s_waitcnt vmcnt(0)")
        a(f"s_cbranch_scc1 {l}_ok")
        a(f"v_cmp_ne_u32 vcc, v{VTAG}, v{vd+1}")
        a(f"v_cmp_ne_u32 s[{S.EX}:{S.EX+1}], v{VTAG}, v{vd+3}")
        a(f"s_or_b64 vcc, vcc, s[{S.EX}:{S.EX+1}]")
        a(f"s_cbranch_vccnz {l}")
        a.label(f"{l}_ok")

    def wave_max_key(vd):
        a(f"v_max_u32 v{vd}, v{vd}, v{vd+2}")
        for r in (8, 4, 2, 1):
            a.nop(2)
            a(f"v_max_u32_dpp v{vd}, v{vd}, v{vd} row_ror:{r} {DPPM}")
        a(f"v_mov_b32 v{vd+1}, v{vd}")
        a.nop(2)
        a(f"v_permlane16_swap_b32 v{vd}, v{vd+1}")
        a(f"v_max_u32 v{vd}, v{vd}, v{vd+1}")
        a(f"v_mov_b32 v{vd+1}, v{vd}")
        a.nop(2)
        a(f"v_permlane32_swap_b32 v{vd}, v{vd+1}")
        a(f"v_max_u32 v{vd}, v{vd}, v{vd+1}")

    def lds_put(addr, v, tag=False):
        a(f"v_mov_b32 v9, {addr}")
        a("s_mov_b64 exec, 1")
        if tag:
            a(f"ds_write2_b32 v9, v{v}, v{VTAG} offset1:1")
        else:
            a(f"ds_write_b32 v9, v{v}")
        a("s_mov_b64 exec, -1")
        a("s_waitcnt lgkmcnt(0)")

    def sigmoid(d, s):
        a(f"v_mul_f32 v{d}, {LOG2E | 0x80000000:#x}, v{s}")
        a(f"v_exp_f32 v{d}, v{d}")
        a.nop(1)
        a(f"v_add_f32 v{d}, 1.0, v{d}")
        a(f"v_rcp_f32 v{d}, v{d}")
        a.nop(1)

    def rnd(d, s):
        a(f"v_cvt_pk_bf16_f32 v{d}, v{s}, v{s}")
        a(f"v_and_b32 v{d}, {HIM}, v{d}")

    def ws_setup():
        a.srd(S.RWS, S.PWS, WS_BYTES)
        a(f"s_mov_b32 s{S.SPIN}, 0")

    def tag_load():
        a(f"v_mov_b32 v{VTAG}, 0")
        a(f"global_load_dword v{VE}, v{VTAG}, s[{S.PWS}:{S.PWS+1}]")
        a(f"s_mov_b32 s{S.KM}, 0x9E3779B1")

    def tag_make():
        a(f"v_mul_lo_u32 v{VTAG}, v{VE}, s{S.KM}")
        a(f"v_add_u32 v{VTAG}, 0x7F4A7C15, v{VTAG}")

    a(f"s_load_dwordx2 s[{S.PX}:{S.PX+1}], s[0:1], {KA_X}")
    a(f"s_load_dwordx16 s[16:31], s[0:1], {KA_WR}")
    if o.stamps:
        for i in range(1, 16):
            a(f"s_mov_b32 s{S.ST+2*i}, 0")
        a(f"s_mov_b32 s{S.RC}, 0")
    stamp(0)
    if o.hold:
        a("s_memrealtime s[66:67]")
    if o.skew:
        a("s_and_b32 s6, s2, 7")
        a("s_cmp_lg_u32 s6, 5")
        a("s_cbranch_scc1 L_noskew")
        a(f"s_sleep {o.skew}")
        a.label("L_noskew")
    a("v_lshrrev_b32 v1, 6, v0")
    a("v_and_b32 v0, 63, v0")
    a(f"v_readfirstlane_b32 s{S.WAVE}, v1")
    a("v_and_b32 v1, 15, v0")
    a("v_lshrrev_b32 v2, 4, v0")
    a(f"s_and_b32 s{S.T0}, s2, 7")
    a(f"s_sub_u32 s{S.WAVE}, s{S.WAVE}, 1")
    a(f"s_min_u32 s{S.WAVE}, s{S.WAVE}, 8")
    a(f"s_lshr_b32 s{S.T1}, s2, 3")
    a(f"s_cmp_ge_u32 s2, {NA}")
    a("s_cbranch_scc1 L_notA")
    if o.only == "F":
        a("s_endpgm")

    VROW, VG16, VSGN, VTR, VST = 3, 5, 8, 10, 11
    VLD, VUW, VUX, VUR0, VUR1 = 10, 11, 28, 29, 30
    XR, WR, GW, CO = 16, 24, 24, 24
    CM, AOP, ACC = 32, 96, 112
    LD, DA0, DA1, TP, X16, PK = 32, 64, 32, 80, 96, 48
    M1, GA, XG = 100, 148, 152
    Cc, Ss = 64, 68
    UO, PQ, M2 = 32, 48, 64

    def rows_setup(wreg):
        a(f"s_lshl3_add_u32 s{S.T5}, s{S.HH}, s{wreg}")
        a(f"s_lshl_b32 s{S.T5}, s{S.T5}, 7")
        a(f"s_add_u32 s{S.TD}, s{S.T5}, s{S.T1C}")
        a(f"s_sub_u32 s{S.TM}, 2048, s{S.TD}")
        a(f"s_cmp_eq_u32 s{S.TD}, 0")
        a(f"s_cselect_b32 s{S.TM}, 1024, s{S.TM}")
        a(f"s_lshl_b32 s{S.T4}, s{S.TD}, 10")
        a(f"s_lshl_b32 s{S.T5}, s{S.TM}, 10")
        a(f"v_add_u32 v6, s{S.T4}, v{VG16}")
        a(f"v_add_u32 v7, s{S.T5}, v{VG16}")

    def vrow_setup():
        a("v_and_b32 v6, 1, v2")
        a("v_lshlrev_b32 v6, 5, v6")
        a("v_lshl_add_u32 v6, v1, 6, v6")
        a("v_lshrrev_b32 v7, 1, v2")
        a(f"v_lshl_add_u32 v{VROW}, v7, 4, v6")

    def rows_load():
        a(f"global_load_dwordx4 {V(XR,4)}, v6, {PXS}")
        a(f"global_load_dwordx4 {V(XR+4,4)}, v7, {PXS}")

    def sgn_setup():
        a(f"v_lshlrev_b32 v{VSGN}, 31, v1")
        a(f"v_lshrrev_b32 v9, 16, v{VSGN}")
        a(f"v_or_b32 v{VSGN}, v{VSGN}, v9")

    def sgn_setup2():
        a(f"v_lshlrev_b32 v{VSGN}, 31, v1")
        a(f"v_lshrrev_b32 v14, 16, v{VSGN}")
        a(f"v_or_b32 v{VSGN}, v{VSGN}, v14")

    def tile_ids():
        a(f"s_bitcmp1_b32 s{S.T1}, 3")
        a(f"s_cselect_b32 s{S.T2}, s{S.T3}, s{S.T2}")
        a(f"s_and_b32 s{S.T3}, s{S.T1}, 7")
        a(f"s_lshl3_add_u32 s{S.BLK}, s{S.T2}, s{S.T3}")
        a(f"s_lshl_b32 s{S.PIE}, s{S.T2}, 5")
        a(f"s_add_u32 s{S.PIE}, s{S.PIE}, s{S.T3}")
        a(f"s_lshl_b32 s{S.PIE}, s{S.PIE}, 6")

    def vst_setup():
        a(f"v_mul_u32_u24 v{VST}, {CS}, v1")
        a(f"v_lshl_add_u32 v{VST}, v2, 4, v{VST}")

    def const_d2():
        R = 40
        a("v_lshlrev_b32 v6, 2, v2")
        a("v_cvt_f32_u32 v7, v1")
        a("v_cvt_f32_u32 v6, v6")
        a("v_mul_f32 v7, 0x3d800000, v7")
        for hf in range(2):
            if hf:
                a("v_add_f32 v7, 0x3d800000, v7")
            a("v_mul_f32 v9, v6, v7")
            for jj in range(4):
                a(f"v_cos_f32 v{Cc+jj}, v9")
                a(f"v_sin_f32 v{Ss+jj}, v9")
                if jj < 3:
                    a("v_add_f32 v9, v9, v7")
            a.nop(1)
            for jj in range(4):
                if hf == 0:
                    a(f"v_cvt_pk_bf16_f32 v{R+jj}, v{Cc+jj}, v{Ss+jj}")
                    a(f"v_cvt_pk_bf16_f32 v{R+8+jj}, -v{Ss+jj}, v{Cc+jj}")
                else:
                    a(f"v_cvt_pk_bf16_f32 v{R+4+jj}, v{Cc+jj}, -v{Ss+jj}")
                    a(f"v_cvt_pk_bf16_f32 v{R+12+jj}, -v{Ss+jj}, -v{Cc+jj}")
        for k in range(4):
            a(f"ds_write_b128 v{VG16}, {V(R+4*k,4)} offset:{L_M2 + 1024*k}")

    if o.touch:
        a("s_mov_b64 exec, 0")
        for k in range(9):
            a(f"s_cmp_eq_u32 s{S.WAVE}, {(k + 8) % 9}")
            a(f"s_cbranch_scc1 L_ta{k}")
        a.label("L_taback")
        a("s_mov_b64 exec, -1")
        a.label("L_ta_start")
    a(f"s_add_u32 s{S.T2}, s{S.T0}, 1")
    a(f"s_sub_u32 s{S.T3}, 15, s{S.T0}")
    a(f"s_cmp_eq_u32 s{S.WAVE}, 8")
    a("s_cbranch_scc1 L_ah")
    a(f"s_and_b32 s{S.HH}, s{S.T1}, 1")
    a(f"s_bitcmp1_b32 s{S.T1}, 1")
    a(f"s_cselect_b32 s{S.T4}, s{S.T3}, s{S.T2}")
    a(f"s_lshr_b32 s{S.T5}, s{S.T1}, 2")
    a(f"s_lshl4_add_u32 s{S.T1C}, s{S.T5}, s{S.T4}")
    a(f"v_lshlrev_b32 v{VG16}, 4, v0")
    a(f"v_mov_b32 v{VROW}, 0")
    a(f"s_cmp_lg_u32 s{S.T0}, 7")
    a("s_cbranch_scc1 L_k7")
    a(f"s_lshr_b32 s{S.T5}, s{S.T1}, 1")
    a(f"s_lshl3_add_u32 s{S.T1C}, s{S.T5}, 8")
    a(f"s_mov_b32 s{S.T2}, 0")
    a(f"s_cmp_eq_u32 s2, 127")
    a(f"s_cselect_b32 s{S.T1C}, 0, s{S.T1C}")
    a(f"s_cselect_b32 s{S.HH}, 0, s{S.HH}")
    a.label("L_k7")
    rows_setup(S.WAVE)
    a("s_waitcnt lgkmcnt(0)")
    rows_load()
    stamp(1)
    tile_ids()

    def tile_dma():
        a(f"s_lshl_b32 s{S.T4}, s{S.WAVE}, 11")
        a(f"s_add_u32 s{S.T5}, s{S.T4}, s{S.BLK}")
        a(f"s_lshl_b32 s{S.T5}, s{S.T5}, 7")
        a(f"s_mov_b32 m0, s{S.T4}")
        a("v_and_b32 v9, 7, v0")
        a("v_bfe_u32 v13, v0, 4, 1")
        a("v_xor_b32 v9, v9, v13")
        a("v_lshrrev_b32 v13, 3, v0")
        a(f"v_lshl_add_u32 v9, v9, 4, s{S.T5}")
        a("v_lshl_add_u32 v13, v13, 14, v9")
        a(f"global_load_lds_dwordx4 v13, {PXS}")
        a(f"s_add_u32 m0, s{S.T4}, 1024")
        a("v_add_u32 v13, 0x20000, v13")
        a(f"global_load_lds_dwordx4 v13, {PXS}")
        stamp(2)

    if not o.tlate:
        tile_dma()
    C1, S1, K = AOP, AOP + 4, AOP + 8
    a(f"s_lshr_b32 s{S.T0}, s{S.WAVE}, 2")
    a(f"s_and_b32 s{S.T1}, s{S.WAVE}, 1")
    a(f"s_bfe_u32 s{S.T2}, s{S.WAVE}, 0x10001")
    a(f"v_lshl_add_u32 v6, s{S.T0}, 4, v1")
    a(f"s_lshl3_add_u32 s{S.T3}, s{S.T2}, s{S.T1}")
    a(f"s_lshl_b32 s{S.T3}, s{S.T3}, 2")
    a("v_cvt_f32_u32 v6, v6")
    a(f"v_lshl_add_u32 v7, v2, 3, s{S.T3}")
    a("v_mul_f32 v6, 0x3c000000, v6")
    a("v_cvt_f32_u32 v7, v7")
    a("v_mul_f32 v7, v7, v6")
    for j in range(4):
        a(f"v_cos_f32 v{C1+j}, v7")
        a(f"v_sin_f32 v{S1+j}, v7")
        if j < 3:
            a("v_add_f32 v7, v7, v6")
    if o.tlate == 2:
        a(f"global_load_dwordx4 {V(WR,4)}, v{VG16}, s[{S.PWR}:{S.PWR+1}]")
        tile_dma()
    a(f"s_lshl_b32 s{S.T4}, s{S.T0}, 13")
    a(f"s_lshl_b32 s{S.T5}, s{S.T2}, 10")
    a(f"s_lshl3_add_u32 s{S.T5}, s{S.T1}, s{S.T5}")
    a(f"v_add_u32 v15, s{S.T4}, v{VG16}")
    a(f"v_add_u32 v9, s{S.T5}, v15")
    a(f"v_cvt_pk_bf16_f32 v{K+0}, v{C1}, v{C1+1}")
    a(f"v_cvt_pk_bf16_f32 v{K+1}, v{C1+2}, v{C1+3}")
    a(f"v_cvt_pk_bf16_f32 v{K+2}, -v{S1}, -v{S1+1}")
    a(f"v_cvt_pk_bf16_f32 v{K+3}, -v{S1+2}, -v{S1+3}")
    a("v_cmp_eq_f32 vcc, 0, v6")
    a(f"v_cvt_pk_bf16_f32 v{K+4}, v{C1}, -v{S1+1}")
    a(f"v_cvt_pk_bf16_f32 v{K+5}, -v{C1+2}, v{S1+3}")
    a(f"v_cvt_pk_bf16_f32 v{K+6}, -v{S1}, -v{C1+1}")
    a(f"v_cvt_pk_bf16_f32 v{K+7}, v{S1+2}, v{C1+3}")
    a(f"ds_write_b64 v9, {V(K,2)} offset:{L_CT}")
    a(f"ds_write_b64 v9, {V(K+4,2)} offset:{L_CT+4096}")
    a(f"ds_write_b64 v9, {V(K+6,2)} offset:{L_CT+6144}")
    a("s_mov_b64 exec, vcc")
    a(f"v_mov_b32 v{K+2}, 0xbf803f80")
    a(f"v_mov_b32 v{K+3}, 0xbf803f80")
    a("s_mov_b64 exec, -1")
    a(f"ds_write_b64 v9, {V(K+2,2)} offset:{L_CT+2048}")
    if o.tlate != 2:
        a(f"global_load_dwordx4 {V(WR,4)}, v{VG16}, s[{S.PWR}:{S.PWR+1}]")
    if o.tlate == 1:
        tile_dma()
    a("v_mov_b32 v12, 0")
    a("v_mov_b32 v13, 0")
    stamp(3)
    if o.b0:
        a("s_waitcnt lgkmcnt(0)")
        a("s_barrier")
        for k in range(2):
            for t in range(4):
                a(f"ds_read_b128 {V(CM+16*t+4*k,4)}, v15 offset:{L_CT + t*2048 + k*1024}")

    def dots(w, fill=()):
        fill = list(fill)

        def pad(n):
            while n and fill:
                a(fill.pop(0))
                n -= 1
            a.nop(n)

        for i in range(4):
            a(f"v_dot2c_f32_bf16 v12, v{XR+i}, v{w+i}")
            a(f"v_dot2c_f32_bf16 v13, v{XR+4+i}, v{w+i}")
        pad(3)
        a("v_permlane32_swap_b32 v12, v13")
        a("v_add_f32 v12, v12, v13")
        a("v_mov_b32 v13, v12")
        pad(2)
        a("v_permlane16_swap_b32 v12, v13")
        a("v_add_f32 v12, v12, v13")
        for r in (8, 4, 2, 1):
            pad(2)
            a(f"v_add_f32_dpp v12, v12, v12 row_ror:{r} {DPPM}")
        rnd(12, 12)
        for x in fill:
            a(x)

    a(f"s_waitcnt vmcnt({2 if o.tlate else 0})")
    stamp(4)
    dots(WR, [f"s_sub_u32 s{S.T4}, 0xffff, s{S.TD}", f"s_sub_u32 s{S.T5}, 0xffff, s{S.TM}", f"v_mov_b32 v4, s{S.T4}",
              f"v_writelane_b32 v4, s{S.T5}, 32", f"s_lshl3_add_u32 s{S.T4}, s{S.WAVE}, {L_KSL}",
              "v_lshrrev_b32 v9, 3, v0", f"v_add_u32 v9, s{S.T4}, v9",
              "v_bfe_u32 v6, v0, 2, 2", "v_and_b32 v14, 3, v0", f"v_lshl_add_u32 v14, v14, 1, s{S.T2}",
              f"v_lshl_add_u32 v{VTR}, v2, 3, v6", "v_lshrrev_b32 v6, 1, v6", "v_xor_b32 v14, v14, v6"])
    a("v_ashrrev_i32 v7, 31, v12")
    a("v_or_b32 v7, 0x80000000, v7")
    a("v_xor_b32 v7, v7, v12")
    a(f"v_and_b32 v7, {HIM}, v7")
    a("v_or_b32 v7, v7, v4")
    a("s_mov_b32 exec_lo, 1")
    a("s_mov_b32 exec_hi, 1")
    a("ds_write_b32 v9, v7")
    a("s_mov_b64 exec, -1")
    a(f"s_lshl_b32 s{S.T1}, s{S.T1}, 3")
    a(f"v_lshl_add_u32 v14, v14, 4, s{S.T1}")
    a(f"v_lshl_add_u32 v{VTR}, v{VTR}, 7, v14")
    a("v_lshlrev_b32 v9, 4, v2")
    a("s_waitcnt vmcnt(0) lgkmcnt(0)")
    hold("B1")
    a("s_barrier")
    stamp(5)
    a(f"ds_read_b128 v[28:31], v9 offset:{L_EXP}")
    for k in range(4):
        for h in range(2):
            a(f"ds_read_b64_tr_b16 {V(AOP+4*k+2*h,2)}, v{VTR} offset:{L_TILE + k*4096 + h*512}")
        if k < 2 and not o.b0:
            for t in range(4):
                a(f"ds_read_b128 {V(CM+16*t+4*k,4)}, v15 offset:{L_CT + t*2048 + k*1024}")
        if k == 1 and not o.b0:
            a("s_waitcnt lgkmcnt(9)")
    sgn_setup2()
    a(f"global_load_dwordx4 {V(GW,4)}, v{VG16}, s[{S.PGW}:{S.PGW+1}]")
    xors = [f"v_xor_b32 v{CM+t*16+8+4*kp+r}, v{CM+t*16+4*kp+r}, v{VSGN}" for kp in range(2) for t in range(4) for r in range(4)]
    misc = [f"s_mul_i32 s{S.SO}, s{S.T0}, {16*CS}",
            f"s_add_u32 s{S.SO}, s{S.SO}, s{S.PIE}",
            f"s_and_b32 s{S.T4}, s{S.WAVE}, 3",
            f"s_lshl_b32 s{S.T4}, s{S.T4}, 9",
            f"s_add_u32 s{S.SO}, s{S.SO}, s{S.T4}",
            f"s_add_u32 s{S.SO}, s{S.SO}, {WS_INT}",
            f"s_mov_b32 s{S.RWS}, s{S.PWS}", f"s_mov_b32 s{S.RWS+1}, s{S.PWS+1}", f"s_mov_b32 s{S.RWS+2}, {WS_BYTES:#x}",
            f"s_mov_b32 s{S.RWS+3}, 0x20000",
            f"s_add_u32 s{S.SO+1}, s{S.SO}, {32*CS}", f"s_mov_b32 s{S.T5}, 0xfffefffe", f"s_mov_b32 s{S.T4}, 0x07060302",
            f"v_mul_u32_u24 v{VST}, {CS}, v1", f"v_lshl_add_u32 v{VST}, v2, 4, v{VST}",
            ]
    fill = xors + misc
    for k in range(4):
        for t in range(4):
            if o.b0:
                if t == 0:
                    a(f"s_waitcnt lgkmcnt({6-2*k})")
            elif k == 0:
                a(f"s_waitcnt lgkmcnt({13-t})")
            elif k == 1:
                a(f"s_waitcnt lgkmcnt({7-t})")
            elif t == 0:
                a(f"s_waitcnt lgkmcnt({2 if k == 2 else 0})")
            c = "0" if k == 0 else V(ACC + 4 * t, 4)
            a(f"{MF} {V(ACC+4*t,4)}, {V(AOP+4*k,4)}, {V(CM+16*t+4*k,4)}, {c}")
            n = 4 if k < 2 else 2
            if k < 3 or t < 3:
                for _ in range(n):
                    if fill:
                        x = fill.pop(0)
                        if x != "TAGWAIT":
                            a(x)
    for x in fill:
        a(x)
    a("v_mov_b32 v12, 0")
    a("v_mov_b32 v13, 0")
    for h in range(2):
        for i in range(8):
            a(f"v_add_u32 v{ACC+8*h+i}, 0x10000, v{ACC+8*h+i}")
        for i in range(4):
            a(f"v_perm_b32 v{AOP+4*h+i}, v{ACC+8*h+4+i}, v{ACC+8*h+i}, s{S.T4}")
        for i in range(4):
            a(f"v_and_or_b32 v{AOP+4*h+i}, v{AOP+4*h+i}, s{S.T5}, v{28+i}")
        a(f"buffer_store_dwordx4 {V(AOP+4*h,4)}, v{VST}, {R4(S.RWS)}, s{S.SO+h} offen sc1")
    a(f"s_mov_b32 s{S.SPIN}, 0")
    a(f"s_mov_b32 s{S.ISZ}, 0")
    stamp(7)
    if o.only == "P1":
        a("s_endpgm")
    a.label("L_ta_end")

    gwait = [2]

    def gates(full):
        if full:
            a(f"s_waitcnt vmcnt({gwait[0]})")
        dots(GW)
        if full:
            a(f"s_lshl_b32 s{S.T0}, s{S.WAVE}, 11")
            a(f"v_add_u32 v6, s{S.T0}, v{VG16}")
            a(f"ds_write_b128 v6, {V(XR,4)} offset:{L_XT}")
            a(f"ds_write_b128 v6, {V(XR+4,4)} offset:{L_XT+1024}")
            a(f"v_lshl_add_u32 v7, v1, 6, s{S.T0}")
            a("v_lshl_add_u32 v7, v2, 3, v7")
            a("s_waitcnt lgkmcnt(0)")
            for r in range(2):
                a(f"ds_read2_b64 {V(XR+4*r,4)}, v7 offset0:{0} offset1:{4}" if False else f"ds_read_b64 {V(XR+4*r,2)}, v7 offset:{L_XT+1024*r}")
                a(f"ds_read_b64 {V(XR+4*r+2,2)}, v7 offset:{L_XT+1024*r+32}")
            vrow_setup()
        sigmoid(13, 12)
        rnd(13, 13)
        a("v_sub_f32 v14, 1.0, v13")
        rnd(14, 14)
        a(f"v_readlane_b32 s{S.T0}, v13, 0")
        a(f"v_readlane_b32 s{S.T1}, v13, 32")
        a(f"v_readlane_b32 s{S.T2}, v14, 0")
        a(f"v_readlane_b32 s{S.T3}, v14, 32")
        a(f"s_xor_b32 s{S.T4}, s{S.T0}, 0x80000000")
        a(f"s_cmp_eq_u32 s{S.TD}, 0")
        a(f"s_cselect_b32 s{S.T4}, 0, s{S.T4}")
        a(f"s_cselect_b32 s{S.T5}, 0, s{S.T1}")
        if not full:
            return
        a(f"v_mov_b32 v{CO}, s{S.T0}")
        a(f"v_mov_b32 v{CO+1}, s{S.T4}")
        a(f"v_mov_b32 v{CO+2}, s{S.T5}")
        a(f"v_mov_b32 v{CO+3}, s{S.T1}")
        a(f"v_mov_b32 v13, s{S.T2}")
        a(f"v_mov_b32 v14, s{S.T3}")
        a("s_waitcnt lgkmcnt(0)")
        for r in range(2):
            for i in range(4):
                a(f"v_lshlrev_b32 v{XG+8*r+2*i}, 16, v{XR+4*r+i}")
                a(f"v_and_b32 v{XG+8*r+2*i+1}, {HIM}, v{XR+4*r+i}")
            for i in range(8):
                a(f"v_mul_f32 v{XG+8*r+i}, v{13+r}, v{XG+8*r+i}")

    def addr_ur(wreg):
        a(f"s_mul_i32 s{S.T1}, s{wreg}, {2*UB}")
        a("v_bfe_u32 v7, v1, 1, 2")
        a("v_xor_b32 v7, v7, v2")
        a(f"v_lshl_add_u32 v7, v7, 4, s{S.T1}")
        a(f"v_lshl_add_u32 v{VUR0}, v1, 6, v7")
        a("v_sub_u32 v6, 16, v1")
        a("v_bfe_u32 v7, v6, 1, 2")
        a("v_xor_b32 v7, v7, v2")
        a(f"v_lshl_add_u32 v7, v7, 4, s{S.T1}")
        a(f"v_lshl_add_u32 v{VUR1}, v6, 6, v7")

    def addr_p2():
        a("v_lshlrev_b32 v6, 4, v1")
        a(f"v_lshl_add_u32 v{VLD}, v2, 13, v6")
        a(f"v_mul_u32_u24 v6, {4*UB}, v2")
        a("v_bfe_u32 v7, v1, 1, 2")
        a(f"v_xor_b32 v7, s{S.WAVE}, v7")
        a("v_lshl_add_u32 v7, v7, 4, v6")
        a(f"v_lshl_add_u32 v{VUW}, v1, 6, v7")
        a(f"s_lshl4_add_u32 s{S.T1}, s{S.WAVE}, 1024")
        a(f"v_mov_b32 v9, {L_DUMP - L_U2}")
        a(f"v_lshl_add_u32 v{VUX}, v0, 1, v9")
        a(f"v_lshl_add_u32 v7, v1, 1, s{S.T1}")
        a("s_mov_b32 exec_lo, 0x00ff00ff")
        a("s_mov_b32 exec_hi, 0x00ff00ff")
        a(f"v_add_u32 v{VUX}, v7, v6")
        a("s_mov_b64 exec, -1")

    EXP = 96

    def exp_setup():
        a("v_and_b32 v6, 3, v1")
        a("v_lshlrev_b32 v6, 4, v6")
        a(f"ds_read_b128 {V(EXP,4)}, v6 offset:{L_EXP}")
        a("s_waitcnt lgkmcnt(0)")

    def exp_make():
        a("v_lshlrev_b32 v6, 1, v1")
        a(f"v_lshrrev_b32 v6, v6, v{VTAG}")
        a("v_lshlrev_b32 v7, 15, v6")
        a("v_and_b32 v6, 1, v6")
        a("v_and_b32 v7, 0x10000, v7")
        a("v_or_b32 v6, v6, v7")
        a("v_lshlrev_b32 v7, 2, v1")
        a(f"ds_write_b32 v7, v6 offset:{L_EXP}")
        a("s_waitcnt lgkmcnt(0)")

    def const_d1():
        a("v_cvt_f32_u32 v6, v1")
        a(f"s_lshl_b32 s{S.T0}, s{S.WAVE}, 2")
        a(f"v_lshl_add_u32 v7, v2, 6, s{S.T0}")
        a("v_mul_f32 v6, 0x3b000000, v6")
        a("v_cvt_f32_u32 v7, v7")
        a("v_mul_f32 v15, 0x41800000, v6")
        a("v_mul_f32 v7, v7, v6")
        for ib in range(4):
            if ib:
                a("v_add_f32 v7, v7, v6")
            for j in range(4):
                src = "v7" if j == 0 else "v9"
                a(f"v_cos_f32 v{Cc+j}, {src}")
                a(f"v_sin_f32 v{Ss+j}, {src}")
                if j < 3:
                    a(f"v_add_f32 v9, {src}, v15")
            b = M1 + 12 * ib
            a(f"v_mov_b32 v{b+8}, 0")
            for p in range(2):
                a(f"v_cvt_pk_bf16_f32 v{b+p}, v{Cc+2*p}, v{Cc+2*p+1}")
                a(f"v_cvt_pk_bf16_f32 v{b+4+p}, -v{Ss+2*p}, -v{Ss+2*p+1}")
            for p in range(2):
                a(f"v_xor_b32 v{b+2+p}, v{b+p}, v{VSGN}")
                a(f"v_xor_b32 v{b+6+p}, v{b+4+p}, v{VSGN}")
        a("v_lshrrev_b32 v6, 1, v1")
        a(f"v_add_u32 v7, s{S.T0}, v6")
        a("v_and_b32 v9, 1, v1")
        a("v_lshl_add_u32 v7, v9, 3, v7")
        a("v_cvt_f32_u32 v7, v7")
        a("v_mul_f32 v7, 0x3d000000, v7")
        a("v_cos_f32 v7, v7")
        for ib in range(4):
            m = 0x00030003 << (2 * ib)
            a(f"s_mov_b32 exec_lo, {m:#x}")
            a(f"s_mov_b32 exec_hi, {m:#x}")
            a(f"v_cvt_pk_bf16_f32 v{M1+12*ib+8}, v7, -v7")
        a("s_mov_b64 exec, -1")
        for ib in range(4):
            for p in range(1, 4):
                a(f"v_mov_b32 v{M1+12*ib+8+p}, v{M1+12*ib+8}")

    def const_ga():
        a("v_lshrrev_b32 v6, 1, v1")
        a(f"s_lshl_b32 s{S.T0}, s{S.HH}, 10")
        a(f"s_add_u32 s{S.T0}, s{S.T0}, s{S.T1C}")
        a(f"v_lshl_add_u32 v6, v6, 7, s{S.T0}")
        a("v_and_b32 v7, 1, v1")
        a("v_lshlrev_b32 v9, 9, v7")
        l0, ld = a.L("g0"), a.L("gd")
        a(f"s_cmp_lg_u32 s{S.T1C}, 0")
        a(f"s_cbranch_scc1 {l0}")
        a("s_mov_b32 exec_lo, 0x00020002")
        a("s_mov_b32 exec_hi, 0x00020002")
        a("v_mov_b32 v6, 0x400")
        a("v_mov_b32 v9, 0")
        a("s_mov_b64 exec, -1")
        a.label(l0)
        a("v_lshlrev_b32 v7, 2, v2")
        a("v_mad_u32_u24 v9, v7, v6, v9")
        a("v_cvt_f32_u32 v6, v6")
        a("v_cvt_f32_u32 v9, v9")
        a("v_mul_f32 v6, 0x3a000000, v6")
        a("v_mul_f32 v9, 0x3a000000, v9")
        for jj in range(4):
            a(f"v_cos_f32 v{Cc+jj}, v9")
            a(f"v_sin_f32 v{Ss+jj}, v9")
            if jj < 3:
                a("v_add_f32 v9, v9, v6")
        a(f"s_and_b32 s{S.T1}, s{S.T1C}, 63")
        a.nop(1)
        for jj in range(4):
            a(f"v_cvt_pk_bf16_f32 v{GA+jj}, v{Cc+jj}, v{Ss+jj}")
        a(f"s_cmp_lg_u32 s{S.T1}, 0")
        a(f"s_cbranch_scc1 {ld}")
        a(f"s_lshr_b32 s{S.T1}, s{S.T1C}, 2")
        for jj in range(4):
            a(f"v_and_b32 v{GA+jj}, 0xffff, v{GA+jj}")
            a(f"v_lshlrev_b32 v{GA+jj}, s{S.T1}, v{GA+jj}")
        a.label(ld)

    def int_base():
        a(f"s_and_b32 s{S.T1}, s{S.T1C}, 63")
        a(f"s_mul_i32 s{S.L0}, s{S.T1}, {CS}")
        a(f"s_lshl_b32 s{S.T1}, s{S.WAVE}, 9")
        a(f"s_add_u32 s{S.L0}, s{S.L0}, s{S.T1}")
        a(f"s_add_u32 s{S.L0}, s{S.L0}, {WS_INT}")
        a(f"s_add_u32 s{S.L1}, s{S.L0}, 4096")

    def m2_addr():
        a(f"s_cmp_eq_u32 s{S.TD}, 0")
        a(f"s_cselect_b32 s{S.T0}, 0, 2048")
        a(f"v_add_u32 v4, s{S.T0}, v{VG16}")

    def int_loads(ah):
        for jj in range(4):
            so = S.L0 if jj < 2 else S.L1
            a(f"buffer_load_dwordx4 {V(LD+16*ah+4*jj,4)}, v{VLD}, {R4(S.RWS)}, s{so} offen offset:{(jj & 1)*2048 + ah*256} sc1")

    a.srd(S.ROUT, S.POUT, 0x200000)
    a(f"s_cmp_ge_u32 s{S.WAVE}, 4")
    a("s_cbranch_scc1 L_hi0")
    if o.prio & 1:
        a("s_setprio 2")
    pre = [lambda: (addr_p2(), int_base(), const_ga(), exp_setup()), const_d1, lambda: gates(True), lambda: (addr_ur(S.WAVE), m2_addr())]
    if o.gfirst:
        pre[1], pre[2] = pre[2], pre[1]
    for f in pre[:o.npre]:
        f()
    stamp(8)
    a(f"s_waitcnt vmcnt({0 if o.ackwait else 2})")
    if o.b3:
        a("s_barrier")
    if o.isleep0:
        a(f"s_sleep {o.isleep0}")
    hold("B4")
    stamp(9)
    if o.stag:
        a(f"s_cmp_lg_u32 s{S.HH}, 0")
        a("s_cbranch_scc1 L_stg1")
        int_loads(0)
        a(f"s_waitcnt vmcnt({4 - o.stag})")
        int_loads(1)
        a("s_branch L_stg2")
        a.label("L_stg1")
        int_loads(1)
        a(f"s_waitcnt vmcnt({4 - o.stag})")
        int_loads(0)
        a("s_waitcnt vmcnt(0)")
        a.label("L_stg2")
    else:
        int_loads(0)
        int_loads(1)
    gwait[0] = 10
    for f in pre[o.npre:]:
        f()
    gwait[0] = 2
    a.label("L_zjoin")
    stamp(10)
    for ah in range(2):
        a(f"s_waitcnt vmcnt({4-4*ah})")
        a.label(f"L_got{ah}")
        b = LD + 16 * ah
        da = DA1 if ah else DA0
        for ib in range(4):
            for jj in range(4):
                a(f"v_xor_b32 v{TP+4*ib+jj}, v{b+4*jj+ib}, v{EXP+ib}")
            if ib == 0:
                a(f"v_or3_b32 v6, v{TP}, v{TP+1}, v{TP+2}")
                a(f"v_or_b32 v6, v6, v{TP+3}")
            else:
                a(f"v_or3_b32 v6, v6, v{TP+4*ib}, v{TP+4*ib+1}")
                a(f"v_or3_b32 v6, v6, v{TP+4*ib+2}, v{TP+4*ib+3}")
            if ib == 3:
                a("v_and_b32 v6, 0x10001, v6")
                a("v_cmp_ne_u32 vcc, 0, v6")
            if not (ah == 1):
                a(f"{MF} {V(da+4*ib,4)}, {V(TP+4*ib,4)}, {V(GA,4)}, 0")
            else:
                a(f"{MF} {V(da+4*ib,4)}, {V(TP+4*ib,4)}, {V(GA,4)}, 0")
        a(f"s_cbranch_vccnz L_retry{ah}")
        a.label(f"L_fail{ah}")
    stamp(11)

    def d1(jb):
        a(f"{MF} {V(DA0+4*jb,4)}, {V(TP+4*jb,4)}, {V(M1+12*jb,4)}, 0")
        a(f"{MF} {V(DA1+4*jb,4)}, {V(TP+4*jb,4)}, {V(M1+12*jb+4,4)}, 0")
        a(f"{MF} {V(X16,4)}, {V(TP+4*jb,4)}, {V(M1+12*jb+8,4)}, {'0' if jb == 0 else V(X16,4)}")

    for ib in range(4):
        for p in range(4):
            s0 = (DA1 if p >= 2 else DA0) + 4 * ib + 2 * (p & 1)
            a(f"v_cvt_pk_bf16_f32 v{TP+4*ib+p}, v{s0}, v{s0+1}")
        if ib:
            d1(ib - 1)
    d1(3)
    for ib in range(3):
        for i in range(4):
            a(f"v_cvt_pk_bf16_f32 v{PK+4*i+ib}, v{DA0+4*ib+i}, v{DA1+4*ib+i}")
    for i in range(4):
        a(f"v_cvt_pk_bf16_f32 v{PK+4*i+3}, v{DA0+12+i}, v{DA1+12+i}")
        a(f"ds_write_b128 v{VUW}, {V(PK+4*i,4)} offset:{L_U2 + i*UB}")
    a(f"v_cvt_pk_bf16_f32 v{X16}, v{X16}, v{X16+1}")
    a(f"v_cvt_pk_bf16_f32 v{X16+2}, v{X16+2}, v{X16+3}")
    a(f"ds_write_b16 v{VUX}, v{X16} offset:{L_U2}")
    a(f"ds_write_b16_d16_hi v{VUX}, v{X16} offset:{L_U2+UB}")
    a(f"ds_write_b16 v{VUX}, v{X16+2} offset:{L_U2+2*UB}")
    a(f"ds_write_b16_d16_hi v{VUX}, v{X16+2} offset:{L_U2+3*UB}")
    a.label("L_d2")
    a(f"ds_read_b128 {V(M2,4)}, v{VG16} offset:{L_M2}")
    a(f"ds_read_b128 {V(M2+4,4)}, v{VG16} offset:{L_M2+1024}")
    a(f"ds_read_b128 {V(M2+8,4)}, v4 offset:{L_M2}")
    a(f"ds_read_b128 {V(M2+12,4)}, v4 offset:{L_M2+1024}")
    a(f"v_mov_b32 v9, {L_GKEY}")
    a(f"s_cmp_lg_u32 s{S.ISZ}, 0")
    a("s_waitcnt lgkmcnt(0)")
    a("s_cbranch_scc1 L_zsync")
    a("s_barrier")
    stamp(12)
    a("ds_read_b32 v6, v9")
    a(f"ds_read_b128 {V(UO,4)}, v{VUR0} offset:{L_U2}")
    a(f"ds_read_b128 {V(UO+4,4)}, v{VUR1} offset:{L_U2}")
    a(f"ds_read_b128 {V(UO+8,4)}, v{VUR0} offset:{L_U2+UB}")
    a(f"ds_read_b128 {V(UO+12,4)}, v{VUR1} offset:{L_U2+UB}")
    a(f"s_lshl_b32 s{S.T0}, s{S.TD}, 10")
    a(f"s_lshl_b32 s{S.T1}, s{S.TM}, 10")
    for k in range(4):
        a(f"s_waitcnt lgkmcnt({3-k})")
        a(f"{MF} {V(PQ+4*k,4)}, {V(UO+4*k,4)}, {V(M2+4*k,4)}, 0")
    a(f"v_readfirstlane_b32 s{S.GKEY}, v6")
    a(f"s_andn2_b32 s{S.IDX}, 0xffff, s{S.GKEY}")
    for r in range(2):
        for i in range(8):
            a(f"v_fmac_f32 v{XG+8*r+i}, v{CO+2*r}, v{PQ+i}")
    for r, (so, tr) in enumerate(((S.T0, S.TD), (S.T1, S.TM))):
        for i in range(8):
            a(f"v_fmac_f32 v{XG+8*r+i}, v{CO+2*r+1}, v{PQ+8+i}")
        for i in range(4):
            a(f"v_cvt_pk_bf16_f32 v{UO+4*r+i}, v{XG+8*r+2*i}, v{XG+8*r+2*i+1}")
        l = a.L("skip")
        if r == 0:
            stamp(6)
        a(f"s_cmp_eq_u32 s{tr}, s{S.IDX}")
        a(f"s_cbranch_scc1 {l}")
        a(f"v_permlane16_swap_b32 v{UO+4*r}, v{UO+4*r+2}")
        a(f"v_permlane16_swap_b32 v{UO+4*r+1}, v{UO+4*r+3}")
        a(f"buffer_store_dwordx4 {V(UO+4*r,4)}, v{VROW}, {R4(S.ROUT)}, s{so} offen{o.outpol}")
        a.label(l)
    a.label("L_tb_end")
    stamp(13)
    if o.stamps:
        a("s_waitcnt vmcnt(0)")
        stamp(15)
    endprog()

    for ah in range(2):
        a.label(f"L_retry{ah}")
        if o.stamps:
            a(f"s_add_u32 s{S.RC}, s{S.RC}, {1 << (8*ah)}")
        if o.rsleep:
            a(f"s_sleep {o.rsleep}")
        spin()
        a(f"s_cbranch_scc1 L_fail{ah}")
        int_loads(ah)
        a("s_waitcnt vmcnt(0)")
        a(f"s_branch L_got{ah}")

    a.label("L_hi0")
    if o.b3:
        if o.ackwait:
            a("s_waitcnt vmcnt(0)")
        a("s_barrier")
    a.label("L_hi1")
    if o.atouch:
        touch("L_tb", o.atouch, 4, 4)
        a(f"s_cmp_lg_u32 s{S.ISZ}, 0")
        a("s_cbranch_scc1 L_z0b")
    gates(True)
    addr_ur(S.WAVE)
    m2_addr()
    stamp(10)
    a("s_branch L_d2")

    a.label("L_ah")
    if o.prio & 2:
        a("s_setprio 3")
    if o.cpf:
        a(f"s_cmp_ge_u32 s{S.T1}, {o.cpf}")
        a("s_cbranch_scc1 L_nocpf")
        a(f"s_getpc_b64 s[{S.EX}:{S.EX+1}]")
        a.label("L_pc")
        a(f"s_sub_u32 s{S.EX}, s{S.EX}, L_pc - {name}")
        a(f"s_subb_u32 s{S.EX+1}, s{S.EX+1}, 0")
        a("v_lshlrev_b32 v6, 7, v0")
        a("v_add_u32 v7, 0x2000, v6")
        a(f"v_min_u32 v7, L_end - {name}, v7")
        a(f"global_load_dword v12, v6, s[{S.EX}:{S.EX+1}]")
        a(f"global_load_dword v13, v7, s[{S.EX}:{S.EX+1}]")
        a.label("L_nocpf")
    a(f"v_lshlrev_b32 v{VG16}, 4, v0")
    a(f"v_mov_b32 v{VTAG}, 0")
    a(f"s_mov_b32 s{S.KM}, 0x9E3779B1")
    a(f"s_cmp_ge_u32 s{S.T1}, {o.wpf}")
    a("s_waitcnt lgkmcnt(0)")
    a("s_cbranch_scc1 L_nowpf")
    a(f"global_load_dwordx4 v[32:35], v{VG16}, s[{S.PWR}:{S.PWR+1}]")
    a(f"global_load_dword v{VE}, v{VTAG}, s[{S.PWS}:{S.PWS+1}]")
    a(f"global_load_dwordx4 v[36:39], v{VG16}, s[{S.PGW}:{S.PGW+1}]")
    a.label("L_nowpf")
    stamp(1)
    a("v_lshlrev_b32 v14, 10, v0")
    a(f"s_lshl_b32 s{S.ID8}, s2, 3")
    a(f"s_add_u32 s{S.ID8}, s{S.ID8}, {WS_KEY}")
    ws_setup()

    const_d2()
    stamp(2)
    if o.b0:
        a("s_barrier")
    a(f"global_load_dword v{VE}, v{VTAG}, s[{S.PWS}:{S.PWS+1}]")
    a(f"v_mov_b32 v9, {L_KSL}")
    a("s_waitcnt vmcnt(0)")
    tag_make()
    exp_make()
    a(f"v_mov_b32 v9, {L_KSL}")
    stamp(3)
    a("s_barrier")
    for i in range(4):
        a(f"ds_read_b128 {V(40+4*i,4)}, v9 offset:{16*i}")
    set_exec(RF * CF + RZ * CZ + R2 * C2 + RS)
    a("s_waitcnt lgkmcnt(2)")
    a("v_max3_u32 v6, v40, v41, v42")
    a("v_max3_u32 v7, v43, v44, v45")
    a("v_max3_u32 v6, v46, v47, v6")
    a("s_waitcnt lgkmcnt(0)")
    a("v_max3_u32 v7, v48, v49, v7")
    a("v_max3_u32 v6, v50, v51, v6")
    a("v_max3_u32 v7, v52, v53, v7")
    a("v_max3_u32 v6, v54, v55, v6")
    a(f"v_max_u32 v{VE}, v6, v7")
    a(f"buffer_store_dwordx2 v[{VE}:{VTAG}], v14, {R4(S.RWS)}, s{S.ID8} offen sc1")
    a("s_mov_b64 exec, -1")
    stamp(5)
    if o.only == "P1":
        a("s_endpgm")
    poll_setup(WS_KEY + 1024 * (RF * CF + RZ * CZ), R2, C2)
    a("s_waitcnt vmcnt(0)")
    if not o.gate:
        a("s_barrier")
    if o.k2sleep0:
        a(f"s_sleep {o.k2sleep0}")
    stamp(8)
    poll_granules(VG16, 32, sleep=o.k2sleep)
    stamp(9)
    wave_max_key(32)
    lds_put(L_GKEY, 32)
    if o.gate:
        a(f"s_sleep {o.gate}")
        a("s_barrier")
        if o.hold and o.hold[0] == "endA":
            a(f"s_sub_u32 s{S.T0}, s2, {o.hold[2]}")
            a(f"s_cmp_ge_u32 s{S.T0}, {o.hold[3]}")
            a("s_cbranch_scc1 L_nohold")
            a("s_barrier")
            hold("endA")
            a.label("L_nohold")
        endprog()
    a("s_barrier")
    endprog()

    a.label("L_notA")
    if o.only == "AA":
        a("s_endpgm")
    a(f"s_lshl4_add_u32 s{S.FJ}, s{S.T0}, s{S.T1}")
    a(f"s_sub_u32 s{S.FJ}, s{S.FJ}, 16")
    a(f"s_cmp_ge_u32 s2, {NWG}")
    a("s_cbranch_scc1 L_end")
    a(f"s_cmp_lt_u32 s{S.T0}, 4")
    a("s_cbranch_scc1 L_F")
    a(f"s_mul_i32 s{S.FJ}, s{S.T0}, 12")
    a(f"s_add_u32 s{S.FJ}, s{S.FJ}, s{S.T1}")
    a(f"s_cmp_lt_u32 s{S.T1}, 28")
    a("s_cbranch_scc1 L_F")
    a(f"s_mov_b32 s{S.ISZ}, 1")
    a(f"s_lshl2_add_u32 s{S.Z}, s{S.T0}, s{S.T1}")
    a(f"s_sub_u32 s{S.Z}, s{S.Z}, 44")
    vrow_setup()
    a(f"v_lshlrev_b32 v{VG16}, 4, v0")
    sgn_setup()
    a("s_waitcnt lgkmcnt(0)")
    ws_setup()
    a.srd(S.ROUT, S.POUT, 0x200000)
    addr_p2()
    a(f"s_cmp_eq_u32 s{S.WAVE}, 8")
    a("s_cbranch_scc1 L_zh")
    a(f"s_cmp_ge_u32 s{S.WAVE}, 4")
    a("s_cbranch_scc1 L_z0")
    const_d1()
    a("s_branch L_z1")
    a.label("L_z0")
    if o.atouch:
        a("s_branch L_hi1")
    a.label("L_z0b")
    if o.ztouch:
        touch("L_tz", o.ztouch, 4, 4)
    a.label("L_z1")
    a(f"v_mov_b32 v9, {L_KSL}")
    a("v_mov_b32 v12, 0")
    a("v_mov_b32 v13, 0")
    a("s_barrier")
    a(f"ds_read_b64 v[{VE}:{VTAG}], v9")
    a(f"ds_read_b128 {V(GW,4)}, v{VG16} offset:{L_WV+1024}")
    a("s_waitcnt lgkmcnt(0)")
    a(f"v_readfirstlane_b32 s{S.GKEY}, v{VE}")
    a(f"s_andn2_b32 s{S.IDX}, 2047, s{S.GKEY}")
    a(f"s_and_b32 s{S.T0}, s{S.IDX}, 127")
    a(f"s_cmp_gt_u32 s{S.T0}, 64")
    a(f"s_cselect_b32 s{S.WHICH}, 1, 0")
    a(f"s_and_b32 s{S.T0}, s{S.IDX}, {1024 + 63}")
    a(f"s_cmp_eq_u32 s{S.T0}, 1024")
    a(f"s_cselect_b32 s{S.WHICH}, 1, s{S.WHICH}")
    a(f"s_sub_u32 s{S.T0}, 2048, s{S.IDX}")
    a(f"s_cmp_lg_u32 s{S.WHICH}, 0")
    a(f"s_cselect_b32 s{S.T0}, s{S.T0}, s{S.IDX}")
    a(f"s_cmp_eq_u32 s{S.T0}, 1024")
    a(f"s_cselect_b32 s{S.T0}, 0, s{S.T0}")
    a(f"s_and_b32 s{S.T1C}, s{S.T0}, 127")
    a(f"s_lshr_b32 s{S.HH}, s{S.T0}, 10")
    a(f"s_bfe_u32 s{S.WSEL}, s{S.T0}, 0x30007")
    rows_setup(S.WSEL)
    a(f"s_cmp_ge_u32 s{S.WAVE}, 4")
    a("s_cbranch_scc1 L_z4")
    int_base()
    if o.zisleep0:
        a(f"s_sleep {o.zisleep0}")
    stamp(9)
    int_loads(0)
    int_loads(1)
    const_ga()
    exp_setup()
    addr_ur(S.WSEL)
    m2_addr()
    a("v_lshlrev_b32 v6, 7, v1")
    a(f"v_lshl_add_u32 v15, v2, 4, v6")
    a("s_branch L_zjoin")
    a.label("L_z4")
    a(f"s_cmp_ge_u32 s{S.WAVE}, 6")
    a("s_cbranch_scc1 L_zend2")
    rows_load()
    a(f"s_sub_u32 s{S.T0}, s{S.WAVE}, 4")
    a(f"s_lshl1_add_u32 s{S.T1}, s{S.Z}, s{S.T0}")
    a(f"s_lshl_b32 s{S.T1}, s{S.T1}, 5")
    a("v_and_b32 v6, 7, v0")
    a(f"v_lshl_add_u32 v10, v6, 2, s{S.T1}")
    a(f"s_lshl_b32 s{S.T2}, s{S.IDX}, 10")
    a(f"v_add_u32 v7, s{S.T2}, v10")
    a(f"global_load_dword v35, v7, {PXS}")
    a("v_lshlrev_b32 v10, 1, v10")
    a("v_lshrrev_b32 v7, 3, v0")
    a("v_lshlrev_b32 v7, 8, v7")
    a("v_lshl_add_u32 v11, v6, 4, v7")
    a(f"s_mul_i32 s{S.SI0}, s{S.Z}, {PZ}")
    a(f"s_lshl_b32 s{S.T0}, s{S.T0}, 7")
    a(f"s_add_u32 s{S.SI0}, s{S.SI0}, s{S.T0}")
    a(f"s_add_u32 s{S.SI0}, s{S.SI0}, {WS_PART}")
    a(f"s_add_u32 s{S.SI1}, s{S.SI0}, {(o.pc-1)*PARTC}")
    a(f"s_and_b32 s{S.T0}, s{S.GKEY}, 0xffff0000")
    a(f"s_xor_b32 s{S.T1}, s{S.T0}, 0x80000000")
    a(f"s_xor_b32 s{S.T3}, s{S.T0}, 0xffff0000")
    a(f"s_bitcmp1_b32 s{S.T0}, 31")
    a(f"s_cselect_b32 s{S.T0}, s{S.T1}, s{S.T3}")
    a(f"v_mov_b32 v15, s{S.T0}")
    sigmoid(15, 15)
    rnd(15, 15)
    a("s_waitcnt vmcnt(0)")
    gates(False)
    a(f"s_cmp_lg_u32 s{S.WHICH}, 0")
    a(f"s_cselect_b32 s{S.T2}, s{S.T3}, s{S.T2}")
    a(f"s_cselect_b32 s{S.T0}, s{S.T5}, s{S.T0}")
    a(f"s_cselect_b32 s{S.T4}, s{S.T1}, s{S.T4}")
    a(f"v_xor_b32 v{VTAG}, s{S.IDX}, v{VTAG}")
    a(f"v_mov_b32 v36, s{S.T2}")
    a(f"v_mov_b32 v{CO}, s{S.T0}")
    a(f"v_mov_b32 v{CO+1}, s{S.T4}")
    a("v_lshlrev_b32 v34, 16, v35")
    a(f"v_and_b32 v35, {HIM}, v35")
    if o.psleep0:
        a(f"s_sleep {o.psleep0}")
    hold("pp")
    a(f"v_mov_b32 v9, {L_ZF}")
    a.label("L_tz_start")
    stamp(10)
    if o.psleep:
        a("s_branch L_zp1")
    a.label("L_zp")
    if o.psleep:
        a(f"s_sleep {o.psleep}")
        a.label("L_zp1")
    for i in range(7):
        if i and i % 2 == 0:
            a(f"s_add_u32 s{S.T0}, s{S.SI0}, {2048*i}")
        a(f"buffer_load_dwordx4 {V(40+4*i,4)}, v11, {R4(S.RWS)}, s{S.T0 if i >= 2 else S.SI0} offen offset:{2048*(i&1)} sc1")
    a(f"s_add_u32 s{S.SI0}, s{S.SI0}, {PARTC}")
    a(f"s_min_u32 s{S.SI0}, s{S.SI0}, s{S.SI1}")
    if o.stamps:
        a(f"s_add_u32 s{S.RC}, s{S.RC}, 256")
    spin()
    a("s_cbranch_scc1 L_zp_ok")
    for i in range(7):
        a(f"s_waitcnt vmcnt({6-i})")
        a(f"v_bitop3_b32 v{37 if i == 0 else 38 + (i & 1)}, v{41+4*i}, v{43+4*i}, v{VTAG} bitop3:0x7e")
        if i:
            a(f"v_add_f32 v40, v40, v{40+4*i}")
            a(f"v_add_f32 v42, v42, v{42+4*i}")
        if i and i % 2 == 0:
            a("v_or3_b32 v37, v37, v38, v39")
    a("v_cmp_ne_u32 vcc, 0, v37")
    a.nop(1)
    a("s_cbranch_vccnz L_zp")
    a.label("L_zp_ok")
    a("ds_read_b32 v12, v9")
    a(f"ds_read_b64 v[32:33], v10 offset:{L_XG2}")
    a(f"ds_read_b64 v[16:17], v10 offset:{L_XG2+2048}")
    a("v_lshrrev_b32 v11, 1, v10")
    a(f"s_lshl_b32 s{S.T2}, s{S.IDX}, 10")
    a("s_waitcnt vmcnt(0)")
    stamp(11)
    a(f"v_add_f32_dpp v40, v40, v40 row_ror:8 {DPPM}")
    a(f"v_add_f32_dpp v42, v42, v42 row_ror:8 {DPPM}")
    a.nop(1)
    a.nop(1)
    a("v_permlane16_swap_b32 v40, v42")
    a("v_add_f32 v40, v40, v42")
    a("v_mov_b32 v42, v40")
    a.nop(2)
    a("v_permlane32_swap_b32 v40, v42")
    a("v_add_f32 v40, v40, v42")
    a("v_mov_b32 v42, v40")
    a.nop(2)
    a("v_permlane16_swap_b32 v40, v42")
    a("v_cvt_pk_bf16_f32 v41, v40, v42")
    a("v_lshlrev_b32 v40, 16, v41")
    a(f"v_and_b32 v42, {HIM}, v41")
    a("v_mul_f32 v40, v40, v15")
    a("v_mul_f32 v42, v42, v15")
    a("v_cvt_pk_bf16_f32 v41, v40, v42")
    a("v_lshlrev_b32 v40, 16, v41")
    a(f"v_and_b32 v42, {HIM}, v41")
    a("v_add_f32 v40, v40, v34")
    a("v_add_f32 v42, v42, v35")
    a("v_cvt_pk_bf16_f32 v41, v40, v42")
    a("v_lshlrev_b32 v40, 16, v41")
    a(f"v_and_b32 v42, {HIM}, v41")
    a.label("L_zw")
    a("s_waitcnt lgkmcnt(0)")
    a("v_cmp_eq_u32 vcc, 0, v12")
    a(f"v_mul_f32 v32, v{CO}, v32")
    a(f"v_mul_f32 v33, v{CO}, v33")
    a("s_cbranch_vccz L_zw_ok")
    spin()
    a("s_cbranch_scc1 L_zw_ok")
    a("ds_read_b32 v12, v9")
    a(f"ds_read_b64 v[32:33], v10 offset:{L_XG2}")
    a(f"ds_read_b64 v[16:17], v10 offset:{L_XG2+2048}")
    a("s_branch L_zw")
    a.label("L_zw_ok")
    a(f"v_fmac_f32 v32, v{CO+1}, v16")
    a(f"v_fmac_f32 v33, v{CO+1}, v17")
    a("v_fmac_f32 v32, v40, v36")
    a("v_fmac_f32 v33, v42, v36")
    a("v_cvt_pk_bf16_f32 v32, v32, v33")
    a("s_mov_b64 exec, 0xff")
    a(f"buffer_store_dword v32, v11, {R4(S.ROUT)}, s{S.T2} offen{o.zpol}")
    a("s_mov_b64 exec, -1")
    stamp(13)
    a("s_barrier")
    endprog()

    a.label("L_zsync")
    a(f"v_mov_b32 v9, {L_ZC}")
    a("v_mov_b32 v6, 1")
    a("s_mov_b64 exec, 1")
    a("ds_add_u32 v9, v6")
    a("s_mov_b64 exec, -1")
    a(f"s_cmp_lg_u32 s{S.WAVE}, 0")
    a("s_cbranch_scc1 L_zend")
    a.label("L_zs")
    a("ds_read_b32 v6, v9")
    spin()
    a("s_waitcnt lgkmcnt(0)")
    a("s_cbranch_scc1 L_zs_ok")
    a("v_cmp_ne_u32 vcc, 4, v6")
    a.nop(1)
    a("s_cbranch_vccnz L_zs")
    a.label("L_zs_ok")
    stamp(12)
    a(f"ds_read_b128 {V(UO,4)}, v{VUR0} offset:{L_U2}")
    a(f"ds_read_b128 {V(UO+4,4)}, v{VUR1} offset:{L_U2}")
    a(f"ds_read_b128 {V(UO+8,4)}, v{VUR0} offset:{L_U2+UB}")
    a(f"ds_read_b128 {V(UO+12,4)}, v{VUR1} offset:{L_U2+UB}")
    for k in range(4):
        a(f"s_waitcnt lgkmcnt({3-k})")
        a(f"{MF} {V(PQ+4*k,4)}, {V(UO+4*k,4)}, {V(M2+4*k,4)}, 0")
    a.nop(3)
    for k in range(4):
        if k == 2:
            a.nop(2)
        a(f"ds_write_b128 v15, {V(PQ+4*k,4)} offset:{L_XG2 + 64*(k&1) + 2048*(k>>1)}")
    a(f"v_mov_b32 v9, {L_ZF}")
    a("s_waitcnt lgkmcnt(0)")
    a("ds_write_b32 v9, v9")
    a("s_waitcnt lgkmcnt(0)")
    stamp(13)
    a.label("L_zend")
    endprog()
    a.label("L_zend2")
    if o.hold and o.hold[0] == "end":
        a("s_barrier")
    hold("end")
    endprog()

    a.label("L_zh")
    a(f"v_mov_b32 v9, {L_ZF}")
    a("v_mov_b32 v6, 0")
    a("ds_write2_b32 v9, v6, v6 offset1:1")
    const_d2()
    a(f"s_mov_b32 m0, {L_WV+1024}")
    tag_load()
    a(f"global_load_lds_dwordx4 v{VG16}, s[{S.PGW}:{S.PGW+1}]")
    a("s_waitcnt vmcnt(0)")
    tag_make()
    exp_make()
    poll_setup(WS_KEY + 1024 * RF * CF, RZ, CZ)
    if o.zsleep0:
        a(f"s_sleep {o.zsleep0}")
    stamp(1)
    poll_granules(VG16, 32, sleep=o.zsleep)
    stamp(2)
    wave_max_key(32)
    lds_put(L_KSL, 32, tag=True)
    a("s_barrier")
    a(f"s_lshl_b32 s{S.T0}, s{S.Z}, 2")
    a(f"s_add_u32 s{S.T0}, s{S.T0}, {WS_ALIVE}")
    a("s_mov_b64 exec, 1")
    a(f"buffer_store_dword v{VTAG}, v0, {R4(S.RWS)}, s{S.T0} offen sc1")
    a("s_mov_b64 exec, -1")
    a(f"s_cmp_lg_u32 s{S.Z}, 0")
    a("s_cbranch_scc1 L_zend")
    a("s_mov_b64 exec, 0xffff")
    a("v_lshlrev_b32 v6, 2, v0")
    a(f"s_mov_b32 s{S.T0}, {WS_ALIVE}")
    a("s_waitcnt vmcnt(0)")
    a("s_sleep 24")
    a.label("L_za")
    a(f"buffer_load_dword v7, v6, {R4(S.RWS)}, s{S.T0} offen sc1")
    spin()
    a("s_waitcnt vmcnt(0)")
    a("s_cbranch_scc1 L_za_ok")
    a(f"v_cmp_ne_u32 vcc, v{VTAG}, v7")
    a.nop(1)
    a("s_cbranch_vccnz L_za")
    a.label("L_za_ok")
    a("s_mov_b64 exec, 1")
    a(f"v_add_u32 v9, 1, v{VE}")
    a("s_barrier")
    a(f"buffer_store_dword v9, v6, {R4(S.RWS)}, 0 offen sc1")
    a("s_mov_b64 exec, -1")
    a("s_branch L_zend")

    a.label("L_F")
    if o.only == "A":
        a("s_endpgm")
    WG_, WD_ = 32, 48
    a("v_lshlrev_b32 v5, 4, v0")
    a(f"s_cmp_eq_u32 s{S.WAVE}, 8")
    a("s_cbranch_scc1 L_fh")
    a(f"s_and_b32 s{S.T0}, s{S.FJ}, 3")
    a(f"s_lshr_b32 s{S.T1}, s{S.WAVE}, 1")
    a(f"s_lshl2_add_u32 s{S.L0}, s{S.T0}, s{S.T1}")
    a(f"s_mul_i32 s{S.T2}, s{S.L0}, {32*3584}")
    a(f"s_lshr_b32 s{S.L1}, s{S.FJ}, 2")
    a(f"s_lshl_b32 s{S.T3}, s{S.L1}, 7")
    a(f"s_add_u32 s{S.T2}, s{S.T2}, s{S.T3}")
    a("v_lshrrev_b32 v6, 3, v0")
    a("v_mul_u32_u24 v6, 3584, v6")
    a("v_and_b32 v7, 7, v0")
    a("v_bfe_u32 v8, v0, 4, 1")
    a("v_lshlrev_b32 v8, 2, v8")
    a("v_xor_b32 v4, v7, v8")
    a(f"v_lshl_add_u32 v7, v4, 4, s{S.T2}")
    a("v_add_u32 v3, v6, v7")
    a(f"s_lshl_b32 s{S.T4}, s{S.WAVE}, 12")
    a(f"s_mov_b32 m0, s{S.T4}")
    a(f"s_bitcmp1_b32 s{S.WAVE}, 0")
    a("s_waitcnt lgkmcnt(0)")
    a(f"s_cselect_b32 s{S.PWG}, s{S.PWU}, s{S.PWG}")
    a(f"s_cselect_b32 s{S.PWG+1}, s{S.PWU+1}, s{S.PWG+1}")
    if o.fdelay:
        a(f"s_sleep {o.fdelay}")
    for b in range(4):
        if b:
            a(f"s_add_u32 m0, s{S.T4}, {1024*b}")
            a(f"v_add_u32 v3, {8*3584}, v3")
        if o.wthr and b >= o.wthr:
            a(f"s_waitcnt vmcnt({o.wthr - 1})")
        a(f"global_load_lds_dwordx4 v3, s[{S.PWG}:{S.PWG+1}]{o.wpol}")
    ws_setup()
    stamp(1)
    a("v_bfe_u32 v6, v0, 2, 2")
    a("v_and_b32 v7, 3, v0")
    a("v_lshlrev_b32 v8, 3, v7")
    a("v_lshl_add_u32 v8, v2, 5, v8")
    a("v_and_b32 v9, 2, v6")
    a("v_lshlrev_b32 v9, 5, v9")
    a("v_xor_b32 v9, v9, v8")
    a("v_lshl_add_u32 v9, v6, 7, v9")
    a(f"v_add_u32 v9, s{S.T4}, v9")
    a(f"s_lshl_b32 s{S.T5}, s{S.WAVE}, 8")
    a("v_lshlrev_b32 v11, 2, v0")
    a(f"v_add_u32 v11, {L_RED}, v11")
    a(f"v_add_u32 v12, s{S.T5}, v11")
    a(f"s_lshl1_add_u32 s{S.T1}, s{S.L1}, s{S.T1}")
    a(f"s_lshl_b32 s{S.T2}, s{S.T1}, 15")
    a(f"s_and_b32 s{S.T3}, s{S.WAVE}, 1")
    a(f"s_lshl1_add_u32 s{S.T3}, s{S.T0}, s{S.T3}")
    a(f"s_lshl_b32 s{S.T5}, s{S.T3}, 7")
    a(f"s_add_u32 s{S.T2}, s{S.T2}, s{S.T5}")
    a("v_lshrrev_b32 v6, 3, v0")
    a(f"v_lshl_add_u32 v6, v6, 10, s{S.T2}")
    a("v_lshl_add_u32 v4, v4, 4, v6")
    a("v_lshrrev_b32 v6, 5, v0")
    a(f"v_mul_u32_u24 v13, {PZ}, v6")
    a("v_and_b32 v6, 31, v0")
    a("v_lshl_add_u32 v13, v6, 3, v13")
    a(f"s_mul_i32 s{S.T2}, s{S.T3}, {2*PZ}")
    a(f"s_lshl_b32 s{S.T1}, s{S.T1}, 8")
    a(f"s_add_u32 s{S.T2}, s{S.T2}, s{S.T1}")
    a(f"s_add_u32 s{S.T2}, s{S.T2}, {WS_PART}")
    a(f"s_lshl_b32 s{S.L0}, s{S.L0}, 6")
    a(f"s_lshl_b32 s{S.L1}, s{S.L1}, 12")
    a(f"s_add_u32 s{S.PO}, s{S.L1}, {WS_XCH}")
    a(f"s_add_u32 s{S.POL}, s{S.PO}, {(o.xc-1)*XCHC}")
    a(f"s_lshl_b32 s{S.T1}, s{S.T0}, 10")
    a(f"s_add_u32 s{S.L1}, s{S.PO}, s{S.T1}")
    a(f"v_mov_b32 v14, {L_FKEY}")
    a(f"s_lshr_b32 s{S.T1}, s{S.WAVE}, 1")
    a(f"s_lshl_b32 s{S.T1}, s{S.T1}, 9")
    a(f"v_lshl_add_u32 v15, v6, 4, s{S.T1}")
    a("v_lshrrev_b32 v6, 5, v0")
    a("v_lshl_add_u32 v15, v6, 10, v15")
    a(f"s_mov_b32 s{S.PO0}, s{S.PO}")
    a(f"s_mov_b32 s{S.L10}, s{S.L1}")
    a(f"s_mov_b32 s{S.T20}, s{S.T2}")
    a(f"s_mov_b32 s{S.FIN}, 0")

    def wd_dma():
        l = a.L("nowd")
        a(f"s_cmp_ge_u32 s{S.WAVE}, 4")
        a(f"s_cbranch_scc1 {l}")
        for b in range(4):
            a(f"s_add_u32 m0, s{S.T4}, {L_WD + 1024*b}")
            if b:
                a("v_add_u32 v4, 0x2000, v4")
            else:
                a.nop(1)
            a(f"global_load_lds_dwordx4 v4, s[{S.PWD}:{S.PWD+1}]")
        a.label(l)

    if o.wdpos == 0:
        wd_dma()
    a("s_waitcnt vmcnt(0)")
    stamp(2)
    if o.fw0:
        a("s_barrier")
    if o.wdpos == 1:
        wd_dma()
    if o.xpre:
        for i in range(2):
            a(f"buffer_load_dwordx4 {V(64+4*i,4)}, v15, {R4(S.RWS)}, s{S.PO} offen offset:{2048*i} sc1")
    for k in range(8):
        a(f"ds_read_b64_tr_b16 {V(WG_+2*k,2)}, v9 offset:{L_W + k*512}")
    if o.ftouch:
        touch("L_tf", o.ftouch, 0, 8)
    a("s_waitcnt lgkmcnt(0)")
    a("s_barrier")
    a.label("L_tf_start")
    a("ds_read_b64 v[26:27], v14")
    a("s_waitcnt lgkmcnt(0)")
    a(f"v_readfirstlane_b32 s{S.FKEY}, v26")
    a.label("L_redo")
    a(f"s_andn2_b32 s{S.T0}, 2047, s{S.FKEY}")
    a(f"s_lshl_b32 s{S.T1}, s{S.T0}, 10")
    a(f"s_add_u32 s{S.T1}, s{S.T1}, s{S.L0}")
    a(f"s_load_dwordx16 s[{S.XS}:{S.XS+15}], {PXS}, s{S.T1}")
    stamp(5)
    a(f"v_xor_b32 v{VTAG}, s{S.T0}, v27")
    a(f"v_xor_b32 v29, s{S.T0}, v27")
    for r in (16, 17, 24, 25):
        a(f"v_mov_b32 v{r}, 0")
    a(f"s_mov_b32 s{S.PO}, s{S.PO0}")
    a(f"s_mov_b32 s{S.L1}, s{S.L10}")
    a(f"s_mov_b32 s{S.T2}, s{S.T20}")
    a(f"s_mov_b32 s{S.KM}, 0")
    a("s_waitcnt lgkmcnt(0)")
    for i in range(16):
        a(f"v_dot2c_f32_bf16 v{16+(i&1)}, s{S.XS+i}, v{WG_+i}")
    stamp(6)
    a.nop(3)
    a("v_add_f32 v16, v16, v17")
    a("ds_write_b32 v12, v16")
    a("s_waitcnt lgkmcnt(0)")
    a("s_barrier")
    a(f"s_lshl_b32 s{S.T0}, s{S.WAVE}, 4")
    a(f"s_lshl_b64 s[{S.EX}:{S.EX+1}], 0xffff, s{S.T0}")
    for i, (p, q) in enumerate(((0, 2), (4, 6), (1, 3), (5, 7))):
        a(f"ds_read2st64_b32 v[{16+2*i}:{17+2*i}], v11 offset0:{p} offset1:{q}")
    a("s_waitcnt lgkmcnt(2)")
    a("v_add_f32 v16, v16, v17")
    a("v_add_f32 v18, v18, v19")
    a("s_waitcnt lgkmcnt(0)")
    a("v_add_f32 v20, v20, v21")
    a("v_add_f32 v22, v22, v23")
    a("v_add_f32 v28, v16, v18")
    a(f"s_mov_b64 exec, s[{S.EX}:{S.EX+1}]")
    a("v_add_f32 v30, v20, v22")
    a(f"s_cmp_ge_u32 s{S.WAVE}, 4")
    a("s_cbranch_scc1 L_f5")
    a(f"buffer_store_dwordx4 v[28:31], v5, {R4(S.RWS)}, s{S.L1} offen{'' if o.xl2 else ' sc1'}")
    a("s_mov_b64 exec, -1")
    stamp(7)
    a("s_waitcnt vmcnt(1)")
    for k in range(8):
        a(f"ds_read_b64_tr_b16 {V(WD_+2*k,2)}, v9 offset:{L_WD + k*512}")
    if o.xsleep0:
        a(f"s_sleep {o.xsleep0}")
    stamp(8)
    a.label("L_fx")
    for i in range(2):
        a(f"buffer_load_dwordx4 {V(64+4*i,4)}, v15, {R4(S.RWS)}, s{S.PO} offen offset:{2048*i} sc1")
    if o.xl2:
        a(f"s_add_u32 s{S.KM}, s{S.KM}, 1")
        a(f"s_cmp_ge_u32 s{S.KM}, {o.xl2}")
        a(f"s_cselect_b32 s{S.T0}, {XCHC}, 0")
        a(f"s_add_u32 s{S.PO}, s{S.PO}, s{S.T0}")
    else:
        a(f"s_add_u32 s{S.PO}, s{S.PO}, {XCHC}")
    a(f"s_min_u32 s{S.PO}, s{S.PO}, s{S.POL}")
    if o.stamps:
        a(f"s_add_u32 s{S.RC}, s{S.RC}, 1")
    spin()
    a("s_cbranch_scc1 L_fx_ok")
    a("s_waitcnt vmcnt(1)")
    a(f"v_bitop3_b32 v20, v65, v67, v{VTAG} bitop3:0x7e")
    a("s_waitcnt vmcnt(0)")
    a("v_add_f32 v16, v64, v68")
    a("v_add_f32 v18, v66, v70")
    a(f"v_bitop3_b32 v21, v69, v71, v{VTAG} bitop3:0x7e")
    a("v_or_b32 v20, v20, v21")
    a("v_cmp_ne_u32 vcc, 0, v20")
    a("v_permlane32_swap_b32 v16, v18")
    a("s_cbranch_vccnz L_fxr")
    a.label("L_fx_ok")
    stamp(9)
    a("v_add_f32 v16, v16, v18")
    rnd(16, 16)
    a("v_mov_b32 v18, v16")
    sigmoid(17, 16)
    a("v_permlane32_swap_b32 v16, v18")
    a("v_mul_f32 v17, v17, v16")
    rnd(17, 17)
    a("v_mul_f32 v17, v17, v18")
    a.nop(2)
    a(f"v_mov_b32_dpp v18, v17 quad_perm:[1,0,3,2] {DPPM}")
    a("v_cvt_pk_bf16_f32 v17, v17, v18")
    a.nop(1)
    for i in range(16):
        a(f"v_readlane_b32 s{S.XS+i}, v17, {2*i}")
    a("s_waitcnt lgkmcnt(0)")
    for i in range(16):
        a(f"v_dot2c_f32_bf16 v{24+(i&1)}, s{S.XS+i}, v{WD_+i}")
    a.nop(3)
    a("v_add_f32 v30, v24, v25")
    for c in range(o.pc):
        if c:
            a(f"s_add_u32 s{S.T2}, s{S.T2}, {PARTC}")
        a(f"buffer_store_dwordx2 v[30:31], v13, {R4(S.RWS)}, s{S.T2} offen sc1")
    stamp(10)
    a.label("L_fend")
    a(f"s_cmp_lg_u32 s{S.FIN}, 0")
    a("s_cbranch_scc1 L_fexit")
    a("s_barrier")
    a("ds_read_b32 v26, v14 offset:8")
    a(f"s_mov_b32 s{S.FIN}, 1")
    a("s_waitcnt lgkmcnt(0)")
    a(f"v_readfirstlane_b32 s{S.T0}, v26")
    a(f"s_cmp_eq_u32 s{S.T0}, s{S.FKEY}")
    a(f"s_mov_b32 s{S.FKEY}, s{S.T0}")
    if o.stamps:
        a(f"s_cselect_b32 s{S.T1}, 0, 64")
        a(f"s_add_u32 s{S.RC}, s{S.RC}, s{S.T1}")
        a(f"s_cmp_eq_u32 s{S.T1}, 0")
    a("s_cbranch_scc0 L_redo")
    a.label("L_fexit")
    endprog()
    a.label("L_f5")
    for c in range(1, o.xc):
        a(f"s_add_u32 s{S.L1}, s{S.L1}, {XCHC}")
        a(f"buffer_store_dwordx4 v[28:31], v5, {R4(S.RWS)}, s{S.L1} offen sc1")
    a("s_mov_b64 exec, -1")
    a("s_branch L_fend")
    a.label("L_fxr")
    a("ds_read_b32 v26, v14 offset:8")
    a("s_waitcnt lgkmcnt(0)")
    a(f"v_readfirstlane_b32 s{S.T0}, v26")
    a(f"s_cmp_eq_u32 s{S.T0}, 0")
    a("s_cbranch_scc1 L_fx")
    a(f"s_cmp_eq_u32 s{S.T0}, s{S.FKEY}")
    a("s_cbranch_scc1 L_fx")
    a("s_branch L_fend")

    a.label("L_fh")
    a("s_waitcnt lgkmcnt(0)")
    if o.fesleep:
        a(f"s_sleep {o.fesleep}")
    tag_load()
    ws_setup()
    a(f"v_mov_b32 v14, {L_FKEY}")
    a("v_mov_b32 v6, 0")
    a("ds_write_b32 v14, v6 offset:8")
    if o.spec:
        poll_setup(WS_KEY + 1024 * (RF * CF + RZ * CZ + R2 * C2), 8, 1)
        a(f"s_sleep {o.spec}")
        a("s_waitcnt vmcnt(0)")
        tag_make()
        stamp(1)
        a(f"buffer_load_dwordx4 v[20:23], v5, {R4(S.RWS)}, s{S.PO} offen sc1")
        poll_setup(WS_KEY, RF, CF)
        a("s_waitcnt vmcnt(0)")
        stamp(2)
        a(f"v_cmp_ne_u32 vcc, v{VTAG}, v21")
        a(f"v_cmp_ne_u32 s[{S.EX}:{S.EX+1}], v{VTAG}, v23")
        a("s_mov_b64 exec, vcc")
        a("v_mov_b32 v20, 0")
        a(f"s_mov_b64 exec, s[{S.EX}:{S.EX+1}]")
        a("v_mov_b32 v22, 0")
        a("s_mov_b64 exec, -1")
        a(f"s_or_b64 s[{S.EY}:{S.EY+1}], vcc, s[{S.EX}:{S.EX+1}]")
        wave_max_key(20)
        lds_put(L_FKEY, 20, tag=True)
        a("s_barrier")
        a(f"s_cmp_eq_u64 s[{S.EY}:{S.EY+1}], 0")
        a("s_cbranch_scc1 L_fh2")
        if o.fsleep0:
            a(f"s_sleep {o.fsleep0}")
        stamp(3)
        poll_granules(5, 20, sleep=o.fsleep)
        stamp(4)
        wave_max_key(20)
        a.label("L_fh2")
        lds_put(L_FKEY + 8, 20)
    else:
        poll_setup(WS_KEY, RF, CF)
        if o.fsleep0:
            a(f"s_sleep {o.fsleep0}")
        a("s_waitcnt vmcnt(0)")
        tag_make()
        stamp(3)
        poll_granules(5, 20, sleep=o.fsleep)
        stamp(4)
        wave_max_key(20)
        lds_put(L_FKEY, 20, tag=True)
        a("s_barrier")
        lds_put(L_FKEY + 8, 20)
    a("s_barrier")
    endprog()
    a.label("L_end")
    a("s_endpgm")
    return name


def main():
    ap = argparse.ArgumentParser()
    ap.add_argument("-o", required=True)
    for k, d in dict(stamps=0, pc=1, xc=2, zsleep=8, zsleep0=27, psleep=0, psleep0=22, rsleep=3, ackwait=1, hipre=0, tlate=1,
                     mode=0, k2ack=1, k2sleep0=2, zk2sleep0=0, k2sleep=3, fbar=0, cpf=0, skew=0, gate=12, lds=0, nsgpr=102, prio=1, stag=0, spec=0, b0=1, wthr=2, xpre=0, atouch=10, ftouch=8, xl2=5, npre=3, gfirst=0, isleep0=0, zisleep0=5, b3=1, ztouch=8, zstep=128, touch=0, wdpos=1, wpf=1, fesleep=0, fw0=0, xack=0, fdelay=3, xsleep0=3, fsleep0=40, fsleep=3, spin=17).items():
        ap.add_argument("--" + k, type=int, default=d)
    for k in ("wpol", "outpol", "zpol", "only"):
        ap.add_argument("--" + k, default="")
    ap.add_argument("--mf", default="8,2")
    ap.add_argument("--mz", default="1,3")
    ap.add_argument("--m2", default="8,2")
    ap.add_argument("--hold", default="")
    o = ap.parse_args()
    if o.hold:
        o.hold = o.hold.split(":")
    for k in ("mf", "mz", "m2"):
        setattr(o, k, [int(v) for v in getattr(o, k).split(",")])
    for k in ("wpol", "outpol", "zpol"):
        setattr(o, k, (" " + getattr(o, k)) if getattr(o, k) else "")
    a = Asm()
    name = gen(a, o)
    if o.touch:
        insert_stubs(a, [("L_ta_start", "L_ta_end", "L_ta", "L_taback", 9)], step=o.touch)
    reg = []
    if o.atouch:
        reg.append(("L_zjoin", "L_tb_end", "L_tb", "L_tbback", o.atouch))
    if o.ztouch:
        reg.append(("L_tz_start", "L_zend", "L_tz", "L_tzback", o.ztouch))
    if o.ftouch:
        reg.append(("L_tf_start", "L_fend", "L_tf", "L_tfback", o.ftouch))
    if reg:
        insert_stubs(a, reg, step=o.zstep)
    finish(a, name, NVGPR, o.nsgpr, NWG, 576, o.lds or LDS_BYTES, o.o)


main()
```

```python
import argparse
from lib import *

NA, NF, NZ = 128, 112, 16
NWG = NA + NF + NZ
WS_E = 0
WS_ALIVE = 4096
WS_KEY = 64 << 10
WS_KEY2 = 128 << 10
WS_XCH = 192 << 10
XCHC = 28 * 4096
WS_PART = 704 << 10
PZ = 56 * 256
PARTC = NZ * PZ
WS_INT = 2 << 20
CS = 32768 + 256
WS_STAMP = 8 << 20
WS_BYTES = 16 << 20
L_TILE = 0
L_U2 = 16384
L_CT = L_U2
UB = 17 * 64
L_MISC = L_U2 + 16 * UB
L_KSL = L_MISC
L_GKEY = L_MISC + 64
L_ZC = L_MISC + 76
L_ZF = L_MISC + 72
L_EXP = L_MISC + 128
L_DUMP = L_MISC + 192
L_XG2 = L_DUMP + 4 * UB + 256
L_M2 = L_XG2 + 4096
L_WV = L_M2 + 4096
L_XT = L_WV + 2048
L_W = 0
L_WD = 32768
L_RED = L_WD + 16384
L_FKEY = L_RED + 2048
LDS_BYTES = 84 * 1024
MF = "v_mfma_f32_16x16x32_bf16"
LOG2E = 0x3fb8aa3b
DPPM = "row_mask:0xf bank_mask:0xf"
HIM = "0xffff0000"
NVGPR = 168


class S:
    WAVE = 3
    PX = 4
    T0, T1, T2, T3, T4, T5 = 6, 7, 8, 9, 10, 11
    EX = 12
    EY = 14
    PWR, PWG, PWU, PWD, PGW, POUT, PDBG, PWS = 16, 18, 20, 22, 24, 26, 28, 30
    L0, L1, SPT, PIE = 32, 33, 34, 35
    RWS, ROUT = 36, 40
    XS = 44
    GKEY, WSEL, WHICH, Z = 44, 45, 46, 47
    SI0, SI1, ID8, BLK = 48, 49, 50, 51
    IDX, ISZ, TC = 54, 55, 53
    SO = 44
    T1C, HH, TD, TM = 56, 57, 58, 59
    FJ, PO, POL, RC, KM, SPIN = 60, 61, 62, 63, 64, 65
    PO0, L10, T20, FKEY, FIN = 40, 41, 42, 43, 35
    ST = 68


def gen(a, o):
    name = NAME + "_kernel"
    kernel_head(a, name)
    VE, VTAG = 30, 31
    PXS = f"s[{S.PX}:{S.PX+1}]"

    def stamp(i):
        if o.stamps:
            a(f"s_memrealtime s[{S.ST+2*i}:{S.ST+2*i+1}]")

    def hold(cp):
        if o.hold and o.hold[0] == cp:
            l = a.L("hold")
            a.label(l)
            a("s_sleep 1")
            a("s_memrealtime s[100:101]")
            a("s_waitcnt lgkmcnt(0)")
            a("s_sub_u32 s100, s100, s66")
            a(f"s_cmp_lt_u32 s100, {o.hold[1]}")
            a(f"s_cbranch_scc1 {l}")

    def touch(pre, n, first, step, back=None, tail=None):
        a("s_mov_b64 exec, 0")
        a(f"s_sub_u32 s{S.TC}, s{S.WAVE}, {first + step}")
        a.label(f"{pre}back")
        a(f"s_add_u32 s{S.TC}, s{S.TC}, {step}")
        for k in range(n):
            a(f"s_cmp_eq_u32 s{S.TC}, {k}")
            a(f"s_cbranch_scc1 {pre}{k}")
        a("s_mov_b64 exec, -1")

    def endprog():
        if o.stamps:
            a("s_waitcnt lgkmcnt(0)")
            a(f"s_add_u32 s{S.ST+28}, s{S.RC}, s{S.ST+30}")
            for i in range(16):
                a(f"v_writelane_b32 v166, s{S.ST+2*i}, {i}")
            a("s_mov_b64 exec, 0xffff")
            a(f"s_lshl4_add_u32 s{S.T0}, s2, s{S.WAVE}")
            a(f"s_lshl_b32 s{S.T0}, s{S.T0}, 7")
            a(f"s_add_u32 s{S.T0}, s{S.T0}, {WS_STAMP}")
            a(f"v_lshl_add_u32 v165, v0, 3, s{S.T0}")
            a("v_mov_b32 v167, 0")
            a(f"global_store_dwordx2 v165, v[166:167], s[{S.PWS}:{S.PWS+1}]")
        a("s_endpgm")

    def spin():
        a(f"s_add_u32 s{S.SPIN}, s{S.SPIN}, 1")
        a(f"s_lshr_b32 s{S.SPT}, s{S.SPIN}, {o.spin}")

    def poll_setup(base, R, C):
        a(f"s_and_b32 s{S.PO}, s2, {R-1}")
        a(f"s_mul_i32 s{S.PO}, s{S.PO}, {1024*C}")
        a(f"s_add_u32 s{S.PO}, s{S.PO}, {base}")
        a(f"s_add_u32 s{S.POL}, s{S.PO}, {1024*(C-1)}")

    def set_exec(n):
        if n >= 64:
            a("s_mov_b64 exec, -1")
        elif n <= 31:
            a(f"s_mov_b64 exec, {(1 << n) - 1:#x}")
        else:
            a("s_mov_b32 exec_lo, -1")
            a(f"s_mov_b32 exec_hi, {(1 << (n - 32)) - 1:#x}")

    RS = 8 if o.spec else 0
    RF, CF = o.mf
    RZ, CZ = o.mz
    R2, C2 = o.m2
    assert RF * CF + RZ * CZ + R2 * C2 + RS <= 64

    def poll_granules(vaddr, vd, sleep=0, step=1024):
        l = a.L("poll")
        if sleep:
            a(f"s_branch {l}_1")
        a.label(l)
        if sleep:
            a(f"s_sleep {sleep}")
            a.label(f"{l}_1")
        a(f"buffer_load_dwordx4 {V(vd,4)}, v{vaddr}, {R4(S.RWS)}, s{S.PO} offen sc1")
        a(f"s_add_u32 s{S.PO}, s{S.PO}, {step}")
        a(f"s_min_u32 s{S.PO}, s{S.PO}, s{S.POL}")
        if o.stamps:
            a(f"s_add_u32 s{S.RC}, s{S.RC}, 1")
        spin()
        a("s_waitcnt vmcnt(0)")
        a(f"s_cbranch_scc1 {l}_ok")
        a(f"v_cmp_ne_u32 vcc, v{VTAG}, v{vd+1}")
        a(f"v_cmp_ne_u32 s[{S.EX}:{S.EX+1}], v{VTAG}, v{vd+3}")
        a(f"s_or_b64 vcc, vcc, s[{S.EX}:{S.EX+1}]")
        a(f"s_cbranch_vccnz {l}")
        a.label(f"{l}_ok")

    def wave_max_key(vd):
        a(f"v_max_u32 v{vd}, v{vd}, v{vd+2}")
        for r in ("row_ror:8", "row_ror:4", "row_ror:2", "row_ror:1"):
            a.nop(2)
            a(f"v_max_u32_dpp v{vd}, v{vd}, v{vd} {r} {DPPM}")
        a.nop(2)
        a(f"v_max_u32_dpp v{vd}, v{vd}, v{vd} row_bcast:15 row_mask:0xa bank_mask:0xf")
        a.nop(2)
        a(f"v_max_u32_dpp v{vd}, v{vd}, v{vd} row_bcast:31 row_mask:0xc bank_mask:0xf")

    def lds_put(addr, v, tag=False):
        a(f"v_mov_b32 v9, {addr}")
        a("s_mov_b32 exec_lo, 0")
        a("s_brev_b32 exec_hi, 1")
        if tag:
            a(f"ds_write2_b32 v9, v{v}, v{VTAG} offset1:1")
        else:
            a(f"ds_write_b32 v9, v{v}")
        a("s_mov_b64 exec, -1")
        a("s_waitcnt lgkmcnt(0)")

    def sigmoid(d, s):
        a(f"v_mul_f32 v{d}, {LOG2E | 0x80000000:#x}, v{s}")
        a(f"v_exp_f32 v{d}, v{d}")
        a.nop(1)
        a(f"v_add_f32 v{d}, 1.0, v{d}")
        a(f"v_rcp_f32 v{d}, v{d}")
        a.nop(1)

    def rnd(d, s):
        a(f"v_cvt_pk_bf16_f32 v{d}, v{s}, v{s}")
        a(f"v_and_b32 v{d}, {HIM}, v{d}")

    def ws_setup():
        a.srd(S.RWS, S.PWS, WS_BYTES)
        a(f"s_mov_b32 s{S.SPIN}, 0")

    def tag_load():
        a(f"v_mov_b32 v{VTAG}, 0")
        a(f"global_load_dword v{VE}, v{VTAG}, s[{S.PWS}:{S.PWS+1}]")
        a(f"s_mov_b32 s{S.KM}, 0x9E3779B1")

    def tag_make():
        a(f"v_mul_lo_u32 v{VTAG}, v{VE}, s{S.KM}")
        a(f"v_add_u32 v{VTAG}, 0x7F4A7C15, v{VTAG}")

    a(f"s_load_dwordx2 s[{S.PX}:{S.PX+1}], s[0:1], {KA_X}")
    a(f"s_load_dwordx16 s[16:31], s[0:1], {KA_WR}")
    if o.stamps:
        for i in range(1, 16):
            a(f"s_mov_b32 s{S.ST+2*i}, 0")
        a(f"s_mov_b32 s{S.RC}, 0")
    stamp(0)
    if o.hold:
        a("s_memrealtime s[66:67]")
    if o.skew:
        a("s_and_b32 s6, s2, 7")
        a("s_cmp_lg_u32 s6, 5")
        a("s_cbranch_scc1 L_noskew")
        a(f"s_sleep {o.skew}")
        a.label("L_noskew")
    a("v_lshrrev_b32 v1, 6, v0")
    a("v_and_b32 v0, 63, v0")
    a(f"v_readfirstlane_b32 s{S.WAVE}, v1")
    a("v_and_b32 v1, 15, v0")
    a("v_lshrrev_b32 v2, 4, v0")
    a(f"s_and_b32 s{S.T0}, s2, 7")
    a(f"s_sub_u32 s{S.WAVE}, s{S.WAVE}, 1")
    a(f"s_min_u32 s{S.WAVE}, s{S.WAVE}, 8")
    a(f"s_lshr_b32 s{S.T1}, s2, 3")
    a(f"s_cmp_ge_u32 s2, {NA}")
    a("s_cbranch_scc1 L_notA")
    if o.only == "F":
        a("s_endpgm")

    VROW, VG16, VSGN, VTR, VST = 3, 5, 8, 10, 11
    VLD, VUW, VUX, VUR0, VUR1 = 10, 11, 28, 29, 30
    XR, WR, GW, CO = 16, 24, 24, 24
    CM, AOP, ACC = 32, 96, 112
    LD, DA0, DA1, TP, X16, PK = 32, 64, 32, 80, 96, 48
    M1, GA, XG = 100, 148, 152
    Cc, Ss = 64, 68
    UO, PQ, M2 = 32, 48, 64

    def rows_setup(wreg):
        a(f"s_lshl3_add_u32 s{S.T5}, s{S.HH}, s{wreg}")
        a(f"s_lshl_b32 s{S.T5}, s{S.T5}, 7")
        a(f"s_add_u32 s{S.TD}, s{S.T5}, s{S.T1C}")
        a(f"s_sub_u32 s{S.TM}, 2048, s{S.TD}")
        a(f"s_cmp_eq_u32 s{S.TD}, 0")
        a(f"s_cselect_b32 s{S.TM}, 1024, s{S.TM}")
        a(f"s_lshl_b32 s{S.T4}, s{S.TD}, 10")
        a(f"s_lshl_b32 s{S.T5}, s{S.TM}, 10")
        a(f"v_add_u32 v6, s{S.T4}, v{VG16}")
        a(f"v_add_u32 v7, s{S.T5}, v{VG16}")

    def vrow_setup():
        a("v_and_b32 v6, 1, v2")
        a("v_lshlrev_b32 v6, 5, v6")
        a("v_lshl_add_u32 v6, v1, 6, v6")
        a("v_lshrrev_b32 v7, 1, v2")
        a(f"v_lshl_add_u32 v{VROW}, v7, 4, v6")

    def rows_load():
        a(f"global_load_dwordx4 {V(XR,4)}, v6, {PXS}")
        a(f"global_load_dwordx4 {V(XR+4,4)}, v7, {PXS}")

    def sgn_setup():
        a(f"v_lshlrev_b32 v{VSGN}, 31, v1")
        a(f"v_lshrrev_b32 v9, 16, v{VSGN}")
        a(f"v_or_b32 v{VSGN}, v{VSGN}, v9")

    def sgn_setup2():
        a(f"v_lshlrev_b32 v{VSGN}, 31, v1")
        a(f"v_lshrrev_b32 v14, 16, v{VSGN}")
        a(f"v_or_b32 v{VSGN}, v{VSGN}, v14")

    def tile_ids():
        a(f"s_bitcmp1_b32 s{S.T1}, 3")
        a(f"s_cselect_b32 s{S.T2}, s{S.T3}, s{S.T2}")
        a(f"s_and_b32 s{S.T3}, s{S.T1}, 7")
        a(f"s_lshl3_add_u32 s{S.BLK}, s{S.T2}, s{S.T3}")
        a(f"s_lshl_b32 s{S.PIE}, s{S.T2}, 5")
        a(f"s_add_u32 s{S.PIE}, s{S.PIE}, s{S.T3}")
        a(f"s_lshl_b32 s{S.PIE}, s{S.PIE}, 6")

    def vst_setup():
        a(f"v_mul_u32_u24 v{VST}, {CS}, v1")
        a(f"v_lshl_add_u32 v{VST}, v2, 4, v{VST}")

    def const_d2():
        R = 40
        a("v_lshlrev_b32 v6, 2, v2")
        a("v_cvt_f32_u32 v7, v1")
        a("v_cvt_f32_u32 v6, v6")
        a("v_mul_f32 v7, 0x3d800000, v7")
        for hf in range(2):
            if hf:
                a("v_add_f32 v7, 0x3d800000, v7")
            a("v_mul_f32 v9, v6, v7")
            for jj in range(4):
                a(f"v_cos_f32 v{Cc+jj}, v9")
                a(f"v_sin_f32 v{Ss+jj}, v9")
                if jj < 3:
                    a("v_add_f32 v9, v9, v7")
            a.nop(1)
            for jj in range(4):
                if hf == 0:
                    a(f"v_cvt_pk_bf16_f32 v{R+jj}, v{Cc+jj}, v{Ss+jj}")
                    a(f"v_cvt_pk_bf16_f32 v{R+8+jj}, -v{Ss+jj}, v{Cc+jj}")
                else:
                    a(f"v_cvt_pk_bf16_f32 v{R+4+jj}, v{Cc+jj}, -v{Ss+jj}")
                    a(f"v_cvt_pk_bf16_f32 v{R+12+jj}, -v{Ss+jj}, -v{Cc+jj}")
        for k in range(4):
            a(f"ds_write_b128 v{VG16}, {V(R+4*k,4)} offset:{L_M2 + 1024*k}")

    if o.touch:
        a("s_mov_b64 exec, 0")
        for k in range(9):
            a(f"s_cmp_eq_u32 s{S.WAVE}, {(k + 8) % 9}")
            a(f"s_cbranch_scc1 L_ta{k}")
        a.label("L_taback")
        a("s_mov_b64 exec, -1")
        a.label("L_ta_start")
    a(f"s_add_u32 s{S.T2}, s{S.T0}, 1")
    a(f"s_sub_u32 s{S.T3}, 15, s{S.T0}")
    a(f"s_cmp_eq_u32 s{S.WAVE}, 8")
    a("s_cbranch_scc1 L_ah")
    a(f"s_and_b32 s{S.HH}, s{S.T1}, 1")
    a(f"s_bitcmp1_b32 s{S.T1}, 1")
    a(f"s_cselect_b32 s{S.T4}, s{S.T3}, s{S.T2}")
    a(f"s_lshr_b32 s{S.T5}, s{S.T1}, 2")
    a(f"s_lshl4_add_u32 s{S.T1C}, s{S.T5}, s{S.T4}")
    a(f"v_lshlrev_b32 v{VG16}, 4, v0")
    a(f"v_mov_b32 v{VROW}, 0")
    a(f"s_cmp_lg_u32 s{S.T0}, 7")
    a("s_cbranch_scc1 L_k7")
    a(f"s_lshr_b32 s{S.T5}, s{S.T1}, 1")
    a(f"s_lshl3_add_u32 s{S.T1C}, s{S.T5}, 8")
    a(f"s_mov_b32 s{S.T2}, 0")
    a(f"s_cmp_eq_u32 s2, 127")
    a(f"s_cselect_b32 s{S.T1C}, 0, s{S.T1C}")
    a(f"s_cselect_b32 s{S.HH}, 0, s{S.HH}")
    a.label("L_k7")
    rows_setup(S.WAVE)
    a("s_waitcnt lgkmcnt(0)")
    rows_load()
    stamp(1)
    if o.b0 == 2:
        a("s_barrier")
    tile_ids()

    def tile_dma():
        a(f"s_lshl_b32 s{S.T4}, s{S.WAVE}, 11")
        a(f"s_add_u32 s{S.T5}, s{S.T4}, s{S.BLK}")
        a(f"s_lshl_b32 s{S.T5}, s{S.T5}, 7")
        a(f"s_mov_b32 m0, s{S.T4}")
        a("v_and_b32 v9, 7, v0")
        a("v_bfe_u32 v13, v0, 4, 1")
        a("v_xor_b32 v9, v9, v13")
        a("v_lshrrev_b32 v13, 3, v0")
        a(f"v_lshl_add_u32 v9, v9, 4, s{S.T5}")
        a("v_lshl_add_u32 v13, v13, 14, v9")
        a(f"global_load_lds_dwordx4 v13, {PXS}")
        a(f"s_add_u32 m0, s{S.T4}, 1024")
        a("v_add_u32 v13, 0x20000, v13")
        a(f"global_load_lds_dwordx4 v13, {PXS}")
        stamp(2)

    if not o.tlate:
        tile_dma()
    C1, S1, K = AOP, AOP + 4, AOP + 8
    a(f"s_lshr_b32 s{S.T0}, s{S.WAVE}, 2")
    a(f"s_and_b32 s{S.T1}, s{S.WAVE}, 1")
    a(f"s_bfe_u32 s{S.T2}, s{S.WAVE}, 0x10001")
    a(f"v_lshl_add_u32 v6, s{S.T0}, 4, v1")
    a(f"s_lshl3_add_u32 s{S.T3}, s{S.T2}, s{S.T1}")
    a(f"s_lshl_b32 s{S.T3}, s{S.T3}, 2")
    a("v_cvt_f32_u32 v6, v6")
    a(f"v_lshl_add_u32 v7, v2, 3, s{S.T3}")
    a("v_mul_f32 v6, 0x3c000000, v6")
    a("v_cvt_f32_u32 v7, v7")
    a("v_mul_f32 v7, v7, v6")
    for j in range(4):
        a(f"v_cos_f32 v{C1+j}, v7")
        a(f"v_sin_f32 v{S1+j}, v7")
        if j < 3:
            a("v_add_f32 v7, v7, v6")
    if o.tlate == 2:
        a(f"global_load_dwordx4 {V(WR,4)}, v{VG16}, s[{S.PWR}:{S.PWR+1}]")
        tile_dma()
    a(f"s_lshl_b32 s{S.T4}, s{S.T0}, 13")
    a(f"s_lshl_b32 s{S.T5}, s{S.T2}, 10")
    a(f"s_lshl3_add_u32 s{S.T5}, s{S.T1}, s{S.T5}")
    a(f"v_add_u32 v15, s{S.T4}, v{VG16}")
    a(f"v_add_u32 v9, s{S.T5}, v15")
    a(f"v_cvt_pk_bf16_f32 v{K+0}, v{C1}, v{C1+1}")
    a(f"v_cvt_pk_bf16_f32 v{K+1}, v{C1+2}, v{C1+3}")
    a(f"v_cvt_pk_bf16_f32 v{K+2}, -v{S1}, -v{S1+1}")
    a(f"v_cvt_pk_bf16_f32 v{K+3}, -v{S1+2}, -v{S1+3}")
    a("v_cmp_eq_f32 vcc, 0, v6")
    a(f"v_cvt_pk_bf16_f32 v{K+4}, v{C1}, -v{S1+1}")
    a(f"v_cvt_pk_bf16_f32 v{K+5}, -v{C1+2}, v{S1+3}")
    a(f"v_cvt_pk_bf16_f32 v{K+6}, -v{S1}, -v{C1+1}")
    a(f"v_cvt_pk_bf16_f32 v{K+7}, v{S1+2}, v{C1+3}")
    a(f"ds_write_b64 v9, {V(K,2)} offset:{L_CT}")
    a(f"ds_write_b64 v9, {V(K+4,2)} offset:{L_CT+4096}")
    a(f"ds_write_b64 v9, {V(K+6,2)} offset:{L_CT+6144}")
    a("s_mov_b64 exec, vcc")
    a(f"v_mov_b32 v{K+2}, 0xbf803f80")
    a(f"v_mov_b32 v{K+3}, 0xbf803f80")
    a("s_mov_b64 exec, -1")
    a(f"ds_write_b64 v9, {V(K+2,2)} offset:{L_CT+2048}")
    if o.tlate != 2:
        a(f"global_load_dwordx4 {V(WR,4)}, v{VG16}, s[{S.PWR}:{S.PWR+1}]")
    if o.tlate == 1:
        tile_dma()
    a("v_mov_b32 v12, 0")
    a("v_mov_b32 v13, 0")
    stamp(3)
    if o.b0 == 1:
        a("s_waitcnt lgkmcnt(0)")
        a("s_barrier")
        for k in range(2):
            for t in range(4):
                a(f"ds_read_b128 {V(CM+16*t+4*k,4)}, v15 offset:{L_CT + t*2048 + k*1024}")

    def dots(w, fill=()):
        fill = list(fill)

        def pad(n):
            while n and fill:
                a(fill.pop(0))
                n -= 1
            a.nop(n)

        for i in range(4):
            a(f"v_dot2c_f32_bf16 v12, v{XR+i}, v{w+i}")
            a(f"v_dot2c_f32_bf16 v13, v{XR+4+i}, v{w+i}")
        pad(3)
        a("v_permlane32_swap_b32 v12, v13")
        a("v_add_f32 v12, v12, v13")
        a("v_mov_b32 v13, v12")
        pad(2)
        a("v_permlane16_swap_b32 v12, v13")
        a("v_add_f32 v12, v12, v13")
        for r in (8, 4, 2, 1):
            pad(2)
            a(f"v_add_f32_dpp v12, v12, v12 row_ror:{r} {DPPM}")
        rnd(12, 12)
        for x in fill:
            a(x)

    a(f"s_waitcnt vmcnt({2 if o.tlate else 0})")
    stamp(4)
    dots(WR, [f"s_sub_u32 s{S.T4}, 0xffff, s{S.TD}", f"s_sub_u32 s{S.T5}, 0xffff, s{S.TM}", f"v_mov_b32 v4, s{S.T4}",
              f"v_writelane_b32 v4, s{S.T5}, 32", f"v_mov_b32 v9, {L_KSL}",
              f"v_lshlrev_b32 v{VSGN}, 31, v1", f"v_lshrrev_b32 v7, 16, v{VSGN}", f"v_or_b32 v{VSGN}, v{VSGN}, v7",
              "v_bfe_u32 v6, v0, 2, 2", "v_and_b32 v14, 3, v0", f"v_lshl_add_u32 v14, v14, 1, s{S.T2}",
              f"v_lshl_add_u32 v{VTR}, v2, 3, v6", "v_lshrrev_b32 v6, 1, v6", "v_xor_b32 v14, v14, v6"])
    a("v_ashrrev_i32 v7, 31, v12")
    a("v_or_b32 v7, 0x80000000, v7")
    a("v_xor_b32 v7, v7, v12")
    a(f"v_and_b32 v7, {HIM}, v7")
    a("v_or_b32 v7, v7, v4")
    a("s_mov_b32 exec_lo, 1")
    a("s_mov_b32 exec_hi, 1")
    a("ds_max_u32 v9, v7")
    a("s_mov_b64 exec, -1")
    if o.b1a:
        a("s_waitcnt lgkmcnt(0)")
        a("s_barrier")
    if o.b0 == 2:
        for k in range(2):
            for t in range(4):
                a(f"ds_read_b128 {V(CM+16*t+4*k,4)}, v15 offset:{L_CT + t*2048 + k*1024}")
    a(f"s_lshl_b32 s{S.T1}, s{S.T1}, 3")
    a(f"v_lshl_add_u32 v14, v14, 4, s{S.T1}")
    a(f"v_lshl_add_u32 v{VTR}, v{VTR}, 7, v14")
    a("v_lshlrev_b32 v9, 4, v2")
    a("s_waitcnt vmcnt(0)" + ("" if o.b0 == 2 else " lgkmcnt(0)"))
    hold("B1")
    a("s_barrier")
    stamp(5)
    if o.b0 == 2:
        a("s_waitcnt lgkmcnt(5)")
    a(f"ds_read_b128 v[28:31], v9 offset:{L_EXP}")
    for k in range(4):
        for h in range(2):
            a(f"ds_read_b64_tr_b16 {V(AOP+4*k+2*h,2)}, v{VTR} offset:{L_TILE + k*4096 + h*512}")
        if k < 2 and not o.b0:
            for t in range(4):
                a(f"ds_read_b128 {V(CM+16*t+4*k,4)}, v15 offset:{L_CT + t*2048 + k*1024}")
        if k == 1 and not o.b0:
            a("s_waitcnt lgkmcnt(9)")
    a(f"global_load_dwordx4 {V(GW,4)}, v{VG16}, s[{S.PGW}:{S.PGW+1}]")
    xors = [f"v_xor_b32 v{CM+t*16+8+4*kp+r}, v{CM+t*16+4*kp+r}, v{VSGN}" for kp in range(2) for t in range(4) for r in range(4)]
    misc = [f"s_mul_i32 s{S.SO}, s{S.T0}, {16*CS}",
            f"s_add_u32 s{S.SO}, s{S.SO}, s{S.PIE}",
            f"s_and_b32 s{S.T4}, s{S.WAVE}, 3",
            f"s_lshl_b32 s{S.T4}, s{S.T4}, 9",
            f"s_add_u32 s{S.SO}, s{S.SO}, s{S.T4}",
            f"s_add_u32 s{S.SO}, s{S.SO}, {WS_INT}",
            f"s_mov_b32 s{S.RWS}, s{S.PWS}", f"s_mov_b32 s{S.RWS+1}, s{S.PWS+1}", f"s_mov_b32 s{S.RWS+2}, {WS_BYTES:#x}",
            f"s_mov_b32 s{S.RWS+3}, 0x20000",
            f"s_add_u32 s{S.SO+1}, s{S.SO}, {32*CS}", f"s_mov_b32 s{S.T5}, 0xfffefffe", f"s_mov_b32 s{S.T4}, 0x07060302",
            f"v_mul_u32_u24 v{VST}, {CS}, v1", f"v_lshl_add_u32 v{VST}, v2, 4, v{VST}",
            ]
    fill = xors + misc
    for k in range(4):
        for t in range(4):
            if o.b0:
                if t == 0:
                    a(f"s_waitcnt lgkmcnt({6-2*k})")
            elif k == 0:
                a(f"s_waitcnt lgkmcnt({13-t})")
            elif k == 1:
                a(f"s_waitcnt lgkmcnt({7-t})")
            elif t == 0:
                a(f"s_waitcnt lgkmcnt({2 if k == 2 else 0})")
            c = "0" if k == 0 else V(ACC + 4 * t, 4)
            a(f"{MF} {V(ACC+4*t,4)}, {V(AOP+4*k,4)}, {V(CM+16*t+4*k,4)}, {c}")
            n = 4 if k < 2 else 2
            if k < 3 or t < 3:
                for _ in range(n):
                    if fill:
                        x = fill.pop(0)
                        if x != "TAGWAIT":
                            a(x)
    for x in fill:
        a(x)
    a("v_mov_b32 v12, 0")
    a("v_mov_b32 v13, 0")
    for h in range(2):
        for i in range(8):
            a(f"v_add_u32 v{ACC+8*h+i}, 0x10000, v{ACC+8*h+i}")
        for i in range(4):
            a(f"v_perm_b32 v{AOP+4*h+i}, v{ACC+8*h+4+i}, v{ACC+8*h+i}, s{S.T4}")
        for i in range(4):
            a(f"v_and_or_b32 v{AOP+4*h+i}, v{AOP+4*h+i}, s{S.T5}, v{28+i}")
        a(f"buffer_store_dwordx4 {V(AOP+4*h,4)}, v{VST}, {R4(S.RWS)}, s{S.SO+h} offen sc1")
    a(f"s_mov_b32 s{S.SPIN}, 0")
    a(f"s_mov_b32 s{S.ISZ}, 0")
    stamp(7)
    if o.only == "P1":
        a("s_endpgm")
    a.label("L_ta_end")

    gwait = [2]

    def gates(full):
        if full:
            a(f"s_waitcnt vmcnt({gwait[0]})")
        dots(GW)
        if full:
            a(f"s_lshl_b32 s{S.T0}, s{S.WAVE}, 11")
            a(f"v_add_u32 v6, s{S.T0}, v{VG16}")
            a(f"ds_write_b128 v6, {V(XR,4)} offset:{L_XT}")
            a(f"ds_write_b128 v6, {V(XR+4,4)} offset:{L_XT+1024}")
            a(f"v_lshl_add_u32 v7, v1, 6, s{S.T0}")
            a("v_lshl_add_u32 v7, v2, 3, v7")
            a("s_waitcnt lgkmcnt(0)")
            for r in range(2):
                a(f"ds_read2_b64 {V(XR+4*r,4)}, v7 offset0:{0} offset1:{4}" if False else f"ds_read_b64 {V(XR+4*r,2)}, v7 offset:{L_XT+1024*r}")
                a(f"ds_read_b64 {V(XR+4*r+2,2)}, v7 offset:{L_XT+1024*r+32}")
            vrow_setup()
        sigmoid(13, 12)
        rnd(13, 13)
        a("v_sub_f32 v14, 1.0, v13")
        rnd(14, 14)
        a(f"v_readlane_b32 s{S.T0}, v13, 0")
        a(f"v_readlane_b32 s{S.T1}, v13, 32")
        a(f"v_readlane_b32 s{S.T2}, v14, 0")
        a(f"v_readlane_b32 s{S.T3}, v14, 32")
        a(f"s_xor_b32 s{S.T4}, s{S.T0}, 0x80000000")
        a(f"s_cmp_eq_u32 s{S.TD}, 0")
        a(f"s_cselect_b32 s{S.T4}, 0, s{S.T4}")
        a(f"s_cselect_b32 s{S.T5}, 0, s{S.T1}")
        if not full:
            return
        a(f"v_mov_b32 v{CO}, s{S.T0}")
        a(f"v_mov_b32 v{CO+1}, s{S.T4}")
        a(f"v_mov_b32 v{CO+2}, s{S.T5}")
        a(f"v_mov_b32 v{CO+3}, s{S.T1}")
        a(f"v_mov_b32 v13, s{S.T2}")
        a(f"v_mov_b32 v14, s{S.T3}")
        a("s_waitcnt lgkmcnt(0)")
        for r in range(2):
            for i in range(4):
                a(f"v_lshlrev_b32 v{XG+8*r+2*i}, 16, v{XR+4*r+i}")
                a(f"v_and_b32 v{XG+8*r+2*i+1}, {HIM}, v{XR+4*r+i}")
            for i in range(8):
                a(f"v_mul_f32 v{XG+8*r+i}, v{13+r}, v{XG+8*r+i}")

    def addr_ur(wreg):
        a(f"s_mul_i32 s{S.T1}, s{wreg}, {2*UB}")
        a("v_bfe_u32 v7, v1, 1, 2")
        a("v_xor_b32 v7, v7, v2")
        a(f"v_lshl_add_u32 v7, v7, 4, s{S.T1}")
        a(f"v_lshl_add_u32 v{VUR0}, v1, 6, v7")
        a("v_sub_u32 v6, 16, v1")
        a("v_bfe_u32 v7, v6, 1, 2")
        a("v_xor_b32 v7, v7, v2")
        a(f"v_lshl_add_u32 v7, v7, 4, s{S.T1}")
        a(f"v_lshl_add_u32 v{VUR1}, v6, 6, v7")

    def addr_p2():
        a("v_lshlrev_b32 v6, 4, v1")
        a(f"v_lshl_add_u32 v{VLD}, v2, 13, v6")
        a(f"v_mul_u32_u24 v6, {4*UB}, v2")
        a("v_bfe_u32 v7, v1, 1, 2")
        a(f"v_xor_b32 v7, s{S.WAVE}, v7")
        a("v_lshl_add_u32 v7, v7, 4, v6")
        a(f"v_lshl_add_u32 v{VUW}, v1, 6, v7")
        a(f"s_lshl4_add_u32 s{S.T1}, s{S.WAVE}, 1024")
        a(f"v_mov_b32 v9, {L_DUMP - L_U2}")
        a(f"v_lshl_add_u32 v{VUX}, v0, 1, v9")
        a(f"v_lshl_add_u32 v7, v1, 1, s{S.T1}")
        a("s_mov_b32 exec_lo, 0x00ff00ff")
        a("s_mov_b32 exec_hi, 0x00ff00ff")
        a(f"v_add_u32 v{VUX}, v7, v6")
        a("s_mov_b64 exec, -1")

    EXP = 96

    def exp_setup():
        a("v_and_b32 v6, 3, v1")
        a("v_lshlrev_b32 v6, 4, v6")
        a(f"ds_read_b128 {V(EXP,4)}, v6 offset:{L_EXP}")
        a("s_waitcnt lgkmcnt(0)")

    def exp_make():
        a("v_lshlrev_b32 v6, 1, v1")
        a(f"v_lshrrev_b32 v6, v6, v{VTAG}")
        a("v_lshlrev_b32 v7, 15, v6")
        a("v_and_b32 v6, 1, v6")
        a("v_and_b32 v7, 0x10000, v7")
        a("v_or_b32 v6, v6, v7")
        a("v_lshlrev_b32 v7, 2, v1")
        a(f"ds_write_b32 v7, v6 offset:{L_EXP}")
        a("s_waitcnt lgkmcnt(0)")

    def const_d1():
        a("v_cvt_f32_u32 v6, v1")
        a(f"s_lshl_b32 s{S.T0}, s{S.WAVE}, 2")
        a(f"v_lshl_add_u32 v7, v2, 6, s{S.T0}")
        a("v_mul_f32 v6, 0x3b000000, v6")
        a("v_cvt_f32_u32 v7, v7")
        a("v_mul_f32 v15, 0x41800000, v6")
        a("v_mul_f32 v7, v7, v6")
        for ib in range(4):
            if ib:
                a("v_add_f32 v7, v7, v6")
            for j in range(4):
                src = "v7" if j == 0 else "v9"
                a(f"v_cos_f32 v{Cc+j}, {src}")
                a(f"v_sin_f32 v{Ss+j}, {src}")
                if j < 3:
                    a(f"v_add_f32 v9, {src}, v15")
            b = M1 + 12 * ib
            a(f"v_mov_b32 v{b+8}, 0")
            for p in range(2):
                a(f"v_cvt_pk_bf16_f32 v{b+p}, v{Cc+2*p}, v{Cc+2*p+1}")
                a(f"v_cvt_pk_bf16_f32 v{b+4+p}, -v{Ss+2*p}, -v{Ss+2*p+1}")
            for p in range(2):
                a(f"v_xor_b32 v{b+2+p}, v{b+p}, v{VSGN}")
                a(f"v_xor_b32 v{b+6+p}, v{b+4+p}, v{VSGN}")
        a("v_lshrrev_b32 v6, 1, v1")
        a(f"v_add_u32 v7, s{S.T0}, v6")
        a("v_and_b32 v9, 1, v1")
        a("v_lshl_add_u32 v7, v9, 3, v7")
        a("v_cvt_f32_u32 v7, v7")
        a("v_mul_f32 v7, 0x3d000000, v7")
        a("v_cos_f32 v7, v7")
        for ib in range(4):
            m = 0x00030003 << (2 * ib)
            a(f"s_mov_b32 exec_lo, {m:#x}")
            a(f"s_mov_b32 exec_hi, {m:#x}")
            a(f"v_cvt_pk_bf16_f32 v{M1+12*ib+8}, v7, -v7")
        a("s_mov_b64 exec, -1")
        for ib in range(4):
            for p in range(1, 4):
                a(f"v_mov_b32 v{M1+12*ib+8+p}, v{M1+12*ib+8}")

    def const_ga():
        a("v_lshrrev_b32 v6, 1, v1")
        a(f"s_lshl_b32 s{S.T0}, s{S.HH}, 10")
        a(f"s_add_u32 s{S.T0}, s{S.T0}, s{S.T1C}")
        a(f"v_lshl_add_u32 v6, v6, 7, s{S.T0}")
        a("v_and_b32 v7, 1, v1")
        a("v_lshlrev_b32 v9, 9, v7")
        l0, ld = a.L("g0"), a.L("gd")
        a(f"s_cmp_lg_u32 s{S.T1C}, 0")
        a(f"s_cbranch_scc1 {l0}")
        a("s_mov_b32 exec_lo, 0x00020002")
        a("s_mov_b32 exec_hi, 0x00020002")
        a("v_mov_b32 v6, 0x400")
        a("v_mov_b32 v9, 0")
        a("s_mov_b64 exec, -1")
        a.label(l0)
        a("v_lshlrev_b32 v7, 2, v2")
        a("v_mad_u32_u24 v9, v7, v6, v9")
        a("v_cvt_f32_u32 v6, v6")
        a("v_cvt_f32_u32 v9, v9")
        a("v_mul_f32 v6, 0x3a000000, v6")
        a("v_mul_f32 v9, 0x3a000000, v9")
        for jj in range(4):
            a(f"v_cos_f32 v{Cc+jj}, v9")
            a(f"v_sin_f32 v{Ss+jj}, v9")
            if jj < 3:
                a("v_add_f32 v9, v9, v6")
        a(f"s_and_b32 s{S.T1}, s{S.T1C}, 63")
        a.nop(1)
        for jj in range(4):
            a(f"v_cvt_pk_bf16_f32 v{GA+jj}, v{Cc+jj}, v{Ss+jj}")
        a(f"s_cmp_lg_u32 s{S.T1}, 0")
        a(f"s_cbranch_scc1 {ld}")
        a(f"s_lshr_b32 s{S.T1}, s{S.T1C}, 2")
        for jj in range(4):
            a(f"v_and_b32 v{GA+jj}, 0xffff, v{GA+jj}")
            a(f"v_lshlrev_b32 v{GA+jj}, s{S.T1}, v{GA+jj}")
        a.label(ld)

    def int_base():
        a(f"s_and_b32 s{S.T1}, s{S.T1C}, 63")
        a(f"s_mul_i32 s{S.L0}, s{S.T1}, {CS}")
        a(f"s_lshl_b32 s{S.T1}, s{S.WAVE}, 9")
        a(f"s_add_u32 s{S.L0}, s{S.L0}, s{S.T1}")
        a(f"s_add_u32 s{S.L0}, s{S.L0}, {WS_INT}")
        a(f"s_add_u32 s{S.L1}, s{S.L0}, 4096")

    def m2_addr():
        a(f"s_cmp_eq_u32 s{S.TD}, 0")
        a(f"s_cselect_b32 s{S.T0}, 0, 2048")
        a(f"v_add_u32 v4, s{S.T0}, v{VG16}")

    def int_loads(ah):
        for jj in range(4):
            so = S.L0 if jj < 2 else S.L1
            a(f"buffer_load_dwordx4 {V(LD+16*ah+4*jj,4)}, v{VLD}, {R4(S.RWS)}, s{so} offen offset:{(jj & 1)*2048 + ah*256} sc1")

    a.srd(S.ROUT, S.POUT, 0x200000)
    a(f"s_cmp_ge_u32 s{S.WAVE}, 4")
    a("s_cbranch_scc1 L_hi0")
    if o.prio & 1:
        a("s_setprio 2")
    pre = [lambda: (addr_p2(), int_base(), const_ga(), exp_setup()), const_d1, lambda: gates(True), lambda: (addr_ur(S.WAVE), m2_addr())]
    if o.gfirst:
        pre[1], pre[2] = pre[2], pre[1]
    for f in pre[:o.npre]:
        f()
    stamp(8)
    a(f"s_waitcnt vmcnt({0 if o.ackwait else 2})")
    if o.b3:
        a("s_barrier")
    if o.isleep0:
        a(f"s_sleep {o.isleep0}")
    hold("B4")
    stamp(9)
    if o.stag:
        a(f"s_cmp_lg_u32 s{S.HH}, 0")
        a("s_cbranch_scc1 L_stg1")
        int_loads(0)
        a(f"s_waitcnt vmcnt({4 - o.stag})")
        int_loads(1)
        a("s_branch L_stg2")
        a.label("L_stg1")
        int_loads(1)
        a(f"s_waitcnt vmcnt({4 - o.stag})")
        int_loads(0)
        a("s_waitcnt vmcnt(0)")
        a.label("L_stg2")
    else:
        int_loads(0)
        int_loads(1)
    gwait[0] = 10
    for f in pre[o.npre:]:
        f()
    gwait[0] = 2
    a.label("L_zjoin")
    stamp(10)
    for ah in range(2):
        a(f"s_waitcnt vmcnt({4-4*ah})")
        a.label(f"L_got{ah}")
        b = LD + 16 * ah
        da = DA1 if ah else DA0
        for ib in range(4):
            for jj in range(4):
                a(f"v_xor_b32 v{TP+4*ib+jj}, v{b+4*jj+ib}, v{EXP+ib}")
            if ib == 0:
                a(f"v_or3_b32 v6, v{TP}, v{TP+1}, v{TP+2}")
                a(f"v_or_b32 v6, v6, v{TP+3}")
            else:
                a(f"v_or3_b32 v6, v6, v{TP+4*ib}, v{TP+4*ib+1}")
                a(f"v_or3_b32 v6, v6, v{TP+4*ib+2}, v{TP+4*ib+3}")
            if ib == 3:
                a("v_and_b32 v6, 0x10001, v6")
                a("v_cmp_ne_u32 vcc, 0, v6")
            if not (ah == 1):
                a(f"{MF} {V(da+4*ib,4)}, {V(TP+4*ib,4)}, {V(GA,4)}, 0")
            else:
                a(f"{MF} {V(da+4*ib,4)}, {V(TP+4*ib,4)}, {V(GA,4)}, 0")
        a(f"s_cbranch_vccnz L_retry{ah}")
        a.label(f"L_fail{ah}")
    stamp(11)

    def d1(jb):
        a(f"{MF} {V(DA0+4*jb,4)}, {V(TP+4*jb,4)}, {V(M1+12*jb,4)}, 0")
        a(f"{MF} {V(DA1+4*jb,4)}, {V(TP+4*jb,4)}, {V(M1+12*jb+4,4)}, 0")
        a(f"{MF} {V(X16,4)}, {V(TP+4*jb,4)}, {V(M1+12*jb+8,4)}, {'0' if jb == 0 else V(X16,4)}")

    for ib in range(4):
        for p in range(4):
            s0 = (DA1 if p >= 2 else DA0) + 4 * ib + 2 * (p & 1)
            a(f"v_cvt_pk_bf16_f32 v{TP+4*ib+p}, v{s0}, v{s0+1}")
        if ib:
            d1(ib - 1)
    d1(3)
    for ib in range(3):
        for i in range(4):
            a(f"v_cvt_pk_bf16_f32 v{PK+4*i+ib}, v{DA0+4*ib+i}, v{DA1+4*ib+i}")
    for i in range(4):
        a(f"v_cvt_pk_bf16_f32 v{PK+4*i+3}, v{DA0+12+i}, v{DA1+12+i}")
        a(f"ds_write_b128 v{VUW}, {V(PK+4*i,4)} offset:{L_U2 + i*UB}")
    a(f"v_cvt_pk_bf16_f32 v{X16}, v{X16}, v{X16+1}")
    a(f"v_cvt_pk_bf16_f32 v{X16+2}, v{X16+2}, v{X16+3}")
    a(f"ds_write_b16 v{VUX}, v{X16} offset:{L_U2}")
    a(f"ds_write_b16_d16_hi v{VUX}, v{X16} offset:{L_U2+UB}")
    a(f"ds_write_b16 v{VUX}, v{X16+2} offset:{L_U2+2*UB}")
    a(f"ds_write_b16_d16_hi v{VUX}, v{X16+2} offset:{L_U2+3*UB}")
    a.label("L_d2")
    a(f"ds_read_b128 {V(M2,4)}, v{VG16} offset:{L_M2}")
    a(f"ds_read_b128 {V(M2+4,4)}, v{VG16} offset:{L_M2+1024}")
    a(f"ds_read_b128 {V(M2+8,4)}, v4 offset:{L_M2}")
    a(f"ds_read_b128 {V(M2+12,4)}, v4 offset:{L_M2+1024}")
    a(f"v_mov_b32 v9, {L_GKEY}")
    a(f"s_cmp_lg_u32 s{S.ISZ}, 0")
    a("s_waitcnt lgkmcnt(0)")
    a("s_cbranch_scc1 L_zsync")
    a("s_barrier")
    stamp(12)
    a("ds_read_b32 v6, v9")
    a(f"ds_read_b128 {V(UO,4)}, v{VUR0} offset:{L_U2}")
    a(f"ds_read_b128 {V(UO+4,4)}, v{VUR1} offset:{L_U2}")
    a(f"ds_read_b128 {V(UO+8,4)}, v{VUR0} offset:{L_U2+UB}")
    a(f"ds_read_b128 {V(UO+12,4)}, v{VUR1} offset:{L_U2+UB}")
    a(f"s_lshl_b32 s{S.T0}, s{S.TD}, 10")
    a(f"s_lshl_b32 s{S.T1}, s{S.TM}, 10")
    for k in range(4):
        a(f"s_waitcnt lgkmcnt({3-k})")
        a(f"{MF} {V(PQ+4*k,4)}, {V(UO+4*k,4)}, {V(M2+4*k,4)}, 0")
    a(f"v_readfirstlane_b32 s{S.GKEY}, v6")
    a(f"s_andn2_b32 s{S.IDX}, 0xffff, s{S.GKEY}")
    for r in range(2):
        for i in range(8):
            a(f"v_fmac_f32 v{XG+8*r+i}, v{CO+2*r}, v{PQ+i}")
    for r, (so, tr) in enumerate(((S.T0, S.TD), (S.T1, S.TM))):
        for i in range(8):
            a(f"v_fmac_f32 v{XG+8*r+i}, v{CO+2*r+1}, v{PQ+8+i}")
        for i in range(4):
            a(f"v_cvt_pk_bf16_f32 v{UO+4*r+i}, v{XG+8*r+2*i}, v{XG+8*r+2*i+1}")
        l = a.L("skip")
        if r == 0:
            stamp(6)
        a(f"s_cmp_eq_u32 s{tr}, s{S.IDX}")
        a(f"s_cbranch_scc1 {l}")
        a(f"v_permlane16_swap_b32 v{UO+4*r}, v{UO+4*r+2}")
        a(f"v_permlane16_swap_b32 v{UO+4*r+1}, v{UO+4*r+3}")
        a(f"buffer_store_dwordx4 {V(UO+4*r,4)}, v{VROW}, {R4(S.ROUT)}, s{so} offen{o.outpol}")
        a.label(l)
    a.label("L_tb_end")
    stamp(13)
    if o.stamps:
        a("s_waitcnt vmcnt(0)")
        stamp(15)
    endprog()

    for ah in range(2):
        a.label(f"L_retry{ah}")
        if o.stamps:
            a(f"s_add_u32 s{S.RC}, s{S.RC}, {1 << (8*ah)}")
        if o.rsleep:
            a(f"s_sleep {o.rsleep}")
        spin()
        a(f"s_cbranch_scc1 L_fail{ah}")
        int_loads(ah)
        a("s_waitcnt vmcnt(0)")
        a(f"s_branch L_got{ah}")

    a.label("L_hi0")
    if o.b3:
        if o.ackwait:
            a("s_waitcnt vmcnt(0)")
        a("s_barrier")
    a.label("L_hi1")
    if o.atouch:
        touch("L_tb", o.atouch, 4, 4)
        a(f"s_cmp_lg_u32 s{S.ISZ}, 0")
        a("s_cbranch_scc1 L_z0b")
    gates(True)
    addr_ur(S.WAVE)
    m2_addr()
    stamp(10)
    a("s_branch L_d2")

    a.label("L_ah")
    if o.prio & 2:
        a("s_setprio 3")
    if o.cpf:
        a(f"s_cmp_ge_u32 s{S.T1}, {o.cpf}")
        a("s_cbranch_scc1 L_nocpf")
        a(f"s_getpc_b64 s[{S.EX}:{S.EX+1}]")
        a.label("L_pc")
        a(f"s_sub_u32 s{S.EX}, s{S.EX}, L_pc - {name}")
        a(f"s_subb_u32 s{S.EX+1}, s{S.EX+1}, 0")
        a("v_lshlrev_b32 v6, 7, v0")
        a("v_add_u32 v7, 0x2000, v6")
        a(f"v_min_u32 v7, L_end - {name}, v7")
        a(f"v_mov_b32 v13, s{S.EX+1}")
        a(f"v_mov_b32 v15, s{S.EX+1}")
        a(f"v_add_co_u32 v12, vcc, s{S.EX}, v6")
        a.nop(2)
        a("v_addc_co_u32 v13, vcc, 0, v13, vcc")
        a(f"v_add_co_u32 v14, vcc, s{S.EX}, v7")
        a.nop(2)
        a("v_addc_co_u32 v15, vcc, 0, v15, vcc")
        a("global_load_dword v10, v[12:13], off")
        a("global_load_dword v11, v[14:15], off")
        a.label("L_nocpf")
    a(f"v_lshlrev_b32 v{VG16}, 4, v0")
    a(f"v_mov_b32 v{VTAG}, 0")
    a(f"v_mov_b32 v9, {L_KSL}")
    a(f"ds_write_b32 v9, v{VTAG}")
    a(f"s_mov_b32 s{S.KM}, 0x9E3779B1")
    a(f"s_cmp_ge_u32 s{S.T1}, {o.wpf}")
    a("s_waitcnt lgkmcnt(0)")
    a("s_cbranch_scc1 L_nowpf")
    a(f"global_load_dwordx4 v[32:35], v{VG16}, s[{S.PWR}:{S.PWR+1}]")
    a(f"global_load_dword v{VE}, v{VTAG}, s[{S.PWS}:{S.PWS+1}]")
    a(f"global_load_dwordx4 v[36:39], v{VG16}, s[{S.PGW}:{S.PGW+1}]")
    a.label("L_nowpf")
    stamp(1)
    a("v_lshlrev_b32 v14, 10, v0")
    a(f"s_lshl_b32 s{S.ID8}, s2, 3")
    a(f"s_add_u32 s{S.ID8}, s{S.ID8}, {WS_KEY}")
    ws_setup()

    if o.b0 == 2:
        a("s_barrier")
    const_d2()
    a(f"global_load_dword v{VE}, v{VTAG}, s[{S.PWS}:{S.PWS+1}]")
    a("s_waitcnt lgkmcnt(0)")
    stamp(2)
    if o.b0 == 1:
        a("s_barrier")
    a(f"v_mov_b32 v9, {L_KSL}")
    a("s_waitcnt vmcnt(0)")
    tag_make()
    exp_make()
    a(f"v_mov_b32 v9, {L_KSL}")
    stamp(3)
    a("s_barrier")
    a(f"ds_read_b32 v{VE}, v9")
    set_exec(RF * CF + RZ * CZ + R2 * C2 + RS)
    a("s_waitcnt lgkmcnt(0)")
    a(f"buffer_store_dwordx2 v[{VE}:{VTAG}], v14, {R4(S.RWS)}, s{S.ID8} offen sc1")
    a("s_mov_b64 exec, -1")
    stamp(5)
    if o.b1a:
        a("s_barrier")
    if o.only == "P1":
        a("s_endpgm")
    poll_setup(WS_KEY + 1024 * (RF * CF + RZ * CZ), R2, C2)
    a("s_waitcnt vmcnt(0)")
    if not o.gate:
        a("s_barrier")
    if o.k2sleep0:
        a(f"s_sleep {o.k2sleep0}")
    stamp(8)
    poll_granules(VG16, 32, sleep=o.k2sleep)
    stamp(9)
    wave_max_key(32)
    lds_put(L_GKEY, 32)
    if o.gate:
        a(f"s_sleep {o.gate}")
        a("s_barrier")
        if o.hold and o.hold[0] == "endA":
            a(f"s_sub_u32 s{S.T0}, s2, {o.hold[2]}")
            a(f"s_cmp_ge_u32 s{S.T0}, {o.hold[3]}")
            a("s_cbranch_scc1 L_nohold")
            a("s_barrier")
            hold("endA")
            a.label("L_nohold")
        endprog()
    a("s_barrier")
    endprog()

    a.label("L_notA")
    if o.only == "AA":
        a("s_endpgm")
    a(f"s_lshl4_add_u32 s{S.FJ}, s{S.T0}, s{S.T1}")
    a(f"s_sub_u32 s{S.FJ}, s{S.FJ}, 16")
    a(f"s_cmp_ge_u32 s2, {NWG}")
    a("s_cbranch_scc1 L_end")
    a(f"s_cmp_lt_u32 s{S.T0}, 4")
    a("s_cbranch_scc1 L_F")
    a(f"s_mul_i32 s{S.FJ}, s{S.T0}, 12")
    a(f"s_add_u32 s{S.FJ}, s{S.FJ}, s{S.T1}")
    a(f"s_cmp_lt_u32 s{S.T1}, 28")
    a("s_cbranch_scc1 L_F")
    a(f"s_mov_b32 s{S.ISZ}, 1")
    a(f"s_lshl2_add_u32 s{S.Z}, s{S.T0}, s{S.T1}")
    a(f"s_sub_u32 s{S.Z}, s{S.Z}, 44")
    vrow_setup()
    a(f"v_lshlrev_b32 v{VG16}, 4, v0")
    sgn_setup()
    a("s_waitcnt lgkmcnt(0)")
    ws_setup()
    a.srd(S.ROUT, S.POUT, 0x200000)
    addr_p2()
    a(f"s_cmp_eq_u32 s{S.WAVE}, 8")
    a("s_cbranch_scc1 L_zh")
    a(f"s_cmp_ge_u32 s{S.WAVE}, 4")
    a("s_cbranch_scc1 L_z0")
    const_d1()
    a("s_branch L_z1")
    a.label("L_z0")
    if o.atouch:
        a("s_branch L_hi1")
    a.label("L_z0b")
    if o.ztouch:
        touch("L_tz", o.ztouch, 4, 4)
    a.label("L_z1")
    a(f"v_mov_b32 v9, {L_KSL}")
    a("v_mov_b32 v12, 0")
    a("v_mov_b32 v13, 0")
    a("s_barrier")
    a(f"ds_read_b64 v[{VE}:{VTAG}], v9")
    a(f"ds_read_b128 {V(GW,4)}, v{VG16} offset:{L_WV+1024}")
    a("s_waitcnt lgkmcnt(0)")
    a(f"v_readfirstlane_b32 s{S.GKEY}, v{VE}")
    a(f"s_andn2_b32 s{S.IDX}, 2047, s{S.GKEY}")
    a(f"s_and_b32 s{S.T0}, s{S.IDX}, 127")
    a(f"s_cmp_gt_u32 s{S.T0}, 64")
    a(f"s_cselect_b32 s{S.WHICH}, 1, 0")
    a(f"s_and_b32 s{S.T0}, s{S.IDX}, {1024 + 63}")
    a(f"s_cmp_eq_u32 s{S.T0}, 1024")
    a(f"s_cselect_b32 s{S.WHICH}, 1, s{S.WHICH}")
    a(f"s_sub_u32 s{S.T0}, 2048, s{S.IDX}")
    a(f"s_cmp_lg_u32 s{S.WHICH}, 0")
    a(f"s_cselect_b32 s{S.T0}, s{S.T0}, s{S.IDX}")
    a(f"s_cmp_eq_u32 s{S.T0}, 1024")
    a(f"s_cselect_b32 s{S.T0}, 0, s{S.T0}")
    a(f"s_and_b32 s{S.T1C}, s{S.T0}, 127")
    a(f"s_lshr_b32 s{S.HH}, s{S.T0}, 10")
    a(f"s_bfe_u32 s{S.WSEL}, s{S.T0}, 0x30007")
    rows_setup(S.WSEL)
    a(f"s_cmp_ge_u32 s{S.WAVE}, 4")
    a("s_cbranch_scc1 L_z4")
    int_base()
    if o.zisleep0:
        a(f"s_sleep {o.zisleep0}")
    stamp(9)
    int_loads(0)
    int_loads(1)
    const_ga()
    exp_setup()
    addr_ur(S.WSEL)
    m2_addr()
    a("v_lshlrev_b32 v6, 7, v1")
    a(f"v_lshl_add_u32 v15, v2, 4, v6")
    a("s_branch L_zjoin")
    a.label("L_z4")
    a(f"s_cmp_ge_u32 s{S.WAVE}, 6")
    a("s_cbranch_scc1 L_zend2")
    rows_load()
    a(f"s_sub_u32 s{S.T0}, s{S.WAVE}, 4")
    a(f"s_lshl1_add_u32 s{S.T1}, s{S.Z}, s{S.T0}")
    a(f"s_lshl_b32 s{S.T1}, s{S.T1}, 5")
    a("v_and_b32 v6, 7, v0")
    a(f"v_lshl_add_u32 v10, v6, 2, s{S.T1}")
    a(f"s_lshl_b32 s{S.T2}, s{S.IDX}, 10")
    a(f"v_add_u32 v7, s{S.T2}, v10")
    a(f"global_load_dword v35, v7, {PXS}")
    a("v_lshlrev_b32 v10, 1, v10")
    a("v_lshrrev_b32 v7, 3, v0")
    a("v_lshlrev_b32 v7, 8, v7")
    a("v_lshl_add_u32 v11, v6, 4, v7")
    a(f"s_mul_i32 s{S.SI0}, s{S.Z}, {PZ}")
    a(f"s_lshl_b32 s{S.T0}, s{S.T0}, 7")
    a(f"s_add_u32 s{S.SI0}, s{S.SI0}, s{S.T0}")
    a(f"s_add_u32 s{S.SI0}, s{S.SI0}, {WS_PART}")
    a(f"s_add_u32 s{S.SI1}, s{S.SI0}, {(o.pc-1)*PARTC}")
    a(f"s_and_b32 s{S.T0}, s{S.GKEY}, 0xffff0000")
    a(f"s_xor_b32 s{S.T1}, s{S.T0}, 0x80000000")
    a(f"s_xor_b32 s{S.T3}, s{S.T0}, 0xffff0000")
    a(f"s_bitcmp1_b32 s{S.T0}, 31")
    a(f"s_cselect_b32 s{S.T0}, s{S.T1}, s{S.T3}")
    a(f"v_mov_b32 v15, s{S.T0}")
    sigmoid(15, 15)
    rnd(15, 15)
    a("s_waitcnt vmcnt(0)")
    gates(False)
    a(f"s_cmp_lg_u32 s{S.WHICH}, 0")
    a(f"s_cselect_b32 s{S.T2}, s{S.T3}, s{S.T2}")
    a(f"s_cselect_b32 s{S.T0}, s{S.T5}, s{S.T0}")
    a(f"s_cselect_b32 s{S.T4}, s{S.T1}, s{S.T4}")
    a(f"v_xor_b32 v{VTAG}, s{S.IDX}, v{VTAG}")
    a(f"v_mov_b32 v36, s{S.T2}")
    a(f"v_mov_b32 v{CO}, s{S.T0}")
    a(f"v_mov_b32 v{CO+1}, s{S.T4}")
    a("v_lshlrev_b32 v34, 16, v35")
    a(f"v_and_b32 v35, {HIM}, v35")
    if o.psleep0:
        a(f"s_sleep {o.psleep0}")
    hold("pp")
    a(f"v_mov_b32 v9, {L_ZF}")
    a.label("L_tz_start")
    stamp(10)
    if o.psleep:
        a("s_branch L_zp1")
    a.label("L_zp")
    if o.psleep:
        a(f"s_sleep {o.psleep}")
        a.label("L_zp1")
    for i in range(7):
        if i and i % 2 == 0:
            a(f"s_add_u32 s{S.T0}, s{S.SI0}, {2048*i}")
        a(f"buffer_load_dwordx4 {V(40+4*i,4)}, v11, {R4(S.RWS)}, s{S.T0 if i >= 2 else S.SI0} offen offset:{2048*(i&1)} sc1")
    a(f"s_add_u32 s{S.SI0}, s{S.SI0}, {PARTC}")
    a(f"s_min_u32 s{S.SI0}, s{S.SI0}, s{S.SI1}")
    if o.stamps:
        a(f"s_add_u32 s{S.RC}, s{S.RC}, 256")
    spin()
    a("s_cbranch_scc1 L_zp_ok")
    for i in range(7):
        a(f"s_waitcnt vmcnt({6-i})")
        a(f"v_bitop3_b32 v{37 if i == 0 else 38 + (i & 1)}, v{41+4*i}, v{43+4*i}, v{VTAG} bitop3:0x7e")
        if i:
            a(f"v_add_f32 v40, v40, v{40+4*i}")
            a(f"v_add_f32 v42, v42, v{42+4*i}")
        if i and i % 2 == 0:
            a("v_or3_b32 v37, v37, v38, v39")
    a("v_cmp_ne_u32 vcc, 0, v37")
    a.nop(1)
    a("s_cbranch_vccnz L_zp")
    a.label("L_zp_ok")
    a("ds_read_b32 v12, v9")
    a(f"ds_read_b64 v[32:33], v10 offset:{L_XG2}")
    a(f"ds_read_b64 v[16:17], v10 offset:{L_XG2+2048}")
    a("v_lshrrev_b32 v11, 1, v10")
    a(f"s_lshl_b32 s{S.T2}, s{S.IDX}, 10")
    a("s_waitcnt vmcnt(0)")
    stamp(11)
    a(f"v_add_f32_dpp v40, v40, v40 row_ror:8 {DPPM}")
    a(f"v_add_f32_dpp v42, v42, v42 row_ror:8 {DPPM}")
    a.nop(1)
    a.nop(1)
    a("v_permlane16_swap_b32 v40, v42")
    a("v_add_f32 v40, v40, v42")
    a("v_mov_b32 v42, v40")
    a.nop(2)
    a("v_permlane32_swap_b32 v40, v42")
    a("v_add_f32 v40, v40, v42")
    a("v_mov_b32 v42, v40")
    a.nop(2)
    a("v_permlane16_swap_b32 v40, v42")
    a("v_cvt_pk_bf16_f32 v41, v40, v42")
    a("v_lshlrev_b32 v40, 16, v41")
    a(f"v_and_b32 v42, {HIM}, v41")
    a("v_mul_f32 v40, v40, v15")
    a("v_mul_f32 v42, v42, v15")
    a("v_cvt_pk_bf16_f32 v41, v40, v42")
    a("v_lshlrev_b32 v40, 16, v41")
    a(f"v_and_b32 v42, {HIM}, v41")
    a("v_add_f32 v40, v40, v34")
    a("v_add_f32 v42, v42, v35")
    a("v_cvt_pk_bf16_f32 v41, v40, v42")
    a("v_lshlrev_b32 v40, 16, v41")
    a(f"v_and_b32 v42, {HIM}, v41")
    a.label("L_zw")
    a("s_waitcnt lgkmcnt(0)")
    a("v_cmp_eq_u32 vcc, 0, v12")
    a(f"v_mul_f32 v32, v{CO}, v32")
    a(f"v_mul_f32 v33, v{CO}, v33")
    a("s_cbranch_vccz L_zw_ok")
    spin()
    a("s_cbranch_scc1 L_zw_ok")
    a("ds_read_b32 v12, v9")
    a(f"ds_read_b64 v[32:33], v10 offset:{L_XG2}")
    a(f"ds_read_b64 v[16:17], v10 offset:{L_XG2+2048}")
    a("s_branch L_zw")
    a.label("L_zw_ok")
    a(f"v_fmac_f32 v32, v{CO+1}, v16")
    a(f"v_fmac_f32 v33, v{CO+1}, v17")
    a("v_fmac_f32 v32, v40, v36")
    a("v_fmac_f32 v33, v42, v36")
    a("v_cvt_pk_bf16_f32 v32, v32, v33")
    a("s_mov_b64 exec, 0xff")
    a(f"buffer_store_dword v32, v11, {R4(S.ROUT)}, s{S.T2} offen{o.zpol}")
    a("s_mov_b64 exec, -1")
    stamp(13)
    a("s_barrier")
    endprog()

    a.label("L_zsync")
    a(f"v_mov_b32 v9, {L_ZC}")
    a("v_mov_b32 v6, 1")
    a("s_mov_b64 exec, 1")
    a("ds_add_u32 v9, v6")
    a("s_mov_b64 exec, -1")
    a(f"s_cmp_lg_u32 s{S.WAVE}, 0")
    a("s_cbranch_scc1 L_zend")
    a.label("L_zs")
    a("ds_read_b32 v6, v9")
    spin()
    a("s_waitcnt lgkmcnt(0)")
    a("s_cbranch_scc1 L_zs_ok")
    a("v_cmp_ne_u32 vcc, 4, v6")
    a.nop(1)
    a("s_cbranch_vccnz L_zs")
    a.label("L_zs_ok")
    stamp(12)
    a(f"ds_read_b128 {V(UO,4)}, v{VUR0} offset:{L_U2}")
    a(f"ds_read_b128 {V(UO+4,4)}, v{VUR1} offset:{L_U2}")
    a(f"ds_read_b128 {V(UO+8,4)}, v{VUR0} offset:{L_U2+UB}")
    a(f"ds_read_b128 {V(UO+12,4)}, v{VUR1} offset:{L_U2+UB}")
    for k in range(4):
        a(f"s_waitcnt lgkmcnt({3-k})")
        a(f"{MF} {V(PQ+4*k,4)}, {V(UO+4*k,4)}, {V(M2+4*k,4)}, 0")
    a.nop(3)
    for k in range(4):
        if k == 2:
            a.nop(2)
        a(f"ds_write_b128 v15, {V(PQ+4*k,4)} offset:{L_XG2 + 64*(k&1) + 2048*(k>>1)}")
    a(f"v_mov_b32 v9, {L_ZF}")
    a("s_waitcnt lgkmcnt(0)")
    a("ds_write_b32 v9, v9")
    a("s_waitcnt lgkmcnt(0)")
    stamp(13)
    a.label("L_zend")
    endprog()
    a.label("L_zend2")
    if o.hold and o.hold[0] == "end":
        a("s_barrier")
    hold("end")
    endprog()

    a.label("L_zh")
    a(f"v_mov_b32 v9, {L_ZF}")
    a("v_mov_b32 v6, 0")
    a("ds_write2_b32 v9, v6, v6 offset1:1")
    const_d2()
    a(f"s_mov_b32 m0, {L_WV+1024}")
    tag_load()
    a(f"global_load_lds_dwordx4 v{VG16}, s[{S.PGW}:{S.PGW+1}]")
    a("s_waitcnt vmcnt(0)")
    tag_make()
    exp_make()
    poll_setup(WS_KEY + 1024 * RF * CF, RZ, CZ)
    if o.zsleep0:
        a(f"s_sleep {o.zsleep0}")
    stamp(1)
    poll_granules(VG16, 32, sleep=o.zsleep)
    stamp(2)
    wave_max_key(32)
    lds_put(L_KSL, 32, tag=True)
    a("s_barrier")
    a(f"s_lshl_b32 s{S.T0}, s{S.Z}, 2")
    a(f"s_add_u32 s{S.T0}, s{S.T0}, {WS_ALIVE}")
    a("s_mov_b64 exec, 1")
    a(f"buffer_store_dword v{VTAG}, v0, {R4(S.RWS)}, s{S.T0} offen sc1")
    a("s_mov_b64 exec, -1")
    a(f"s_cmp_lg_u32 s{S.Z}, 0")
    a("s_cbranch_scc1 L_zend")
    a("s_mov_b64 exec, 0xffff")
    a("v_lshlrev_b32 v6, 2, v0")
    a(f"s_mov_b32 s{S.T0}, {WS_ALIVE}")
    a("s_waitcnt vmcnt(0)")
    a("s_sleep 24")
    a.label("L_za")
    a(f"buffer_load_dword v7, v6, {R4(S.RWS)}, s{S.T0} offen sc1")
    spin()
    a("s_waitcnt vmcnt(0)")
    a("s_cbranch_scc1 L_za_ok")
    a(f"v_cmp_ne_u32 vcc, v{VTAG}, v7")
    a.nop(1)
    a("s_cbranch_vccnz L_za")
    a.label("L_za_ok")
    a("s_mov_b64 exec, 1")
    a(f"v_add_u32 v9, 1, v{VE}")
    a("s_barrier")
    a(f"buffer_store_dword v9, v6, {R4(S.RWS)}, 0 offen sc1")
    a("s_mov_b64 exec, -1")
    a("s_branch L_zend")

    a.label("L_F")
    if o.only == "A":
        a("s_endpgm")
    WG_, WD_ = 32, 48
    a("v_lshlrev_b32 v5, 4, v0")
    a(f"s_cmp_eq_u32 s{S.WAVE}, 8")
    a("s_cbranch_scc1 L_fh")
    a(f"s_and_b32 s{S.T0}, s{S.FJ}, 3")
    a(f"s_lshr_b32 s{S.T1}, s{S.WAVE}, 1")
    a(f"s_lshl2_add_u32 s{S.L0}, s{S.T0}, s{S.T1}")
    a(f"s_mul_i32 s{S.T2}, s{S.L0}, {32*3584}")
    a(f"s_lshr_b32 s{S.L1}, s{S.FJ}, 2")
    a(f"s_lshl_b32 s{S.T3}, s{S.L1}, 7")
    a(f"s_add_u32 s{S.T2}, s{S.T2}, s{S.T3}")
    a("v_lshrrev_b32 v6, 3, v0")
    a("v_mul_u32_u24 v6, 3584, v6")
    a("v_and_b32 v7, 7, v0")
    a("v_bfe_u32 v8, v0, 4, 1")
    a("v_lshlrev_b32 v8, 2, v8")
    a("v_xor_b32 v4, v7, v8")
    a(f"v_lshl_add_u32 v7, v4, 4, s{S.T2}")
    a("v_add_u32 v3, v6, v7")
    a(f"s_lshl_b32 s{S.T4}, s{S.WAVE}, 12")
    a(f"s_mov_b32 m0, s{S.T4}")
    def w_dma():
        a(f"s_bitcmp1_b32 s{S.WAVE}, 0")
        a("s_waitcnt lgkmcnt(0)")
        a(f"s_cselect_b32 s{S.PWG}, s{S.PWU}, s{S.PWG}")
        a(f"s_cselect_b32 s{S.PWG+1}, s{S.PWU+1}, s{S.PWG+1}")
        if o.fdelay:
            a(f"s_sleep {o.fdelay}")
        for b in range(4):
            if b:
                a(f"s_add_u32 m0, s{S.T4}, {1024*b}")
                a(f"v_add_u32 v3, {8*3584}, v3")
            if o.wthr and b >= o.wthr:
                a(f"s_waitcnt vmcnt({o.wthr - 1})")
            a(f"global_load_lds_dwordx4 v3, s[{S.PWG}:{S.PWG+1}]{o.wpol}")
        ws_setup()
        stamp(1)

    if not o.flate:
        w_dma()
    a("v_bfe_u32 v6, v0, 2, 2")
    a("v_and_b32 v7, 3, v0")
    a("v_lshlrev_b32 v8, 3, v7")
    a("v_lshl_add_u32 v8, v2, 5, v8")
    a("v_and_b32 v9, 2, v6")
    a("v_lshlrev_b32 v9, 5, v9")
    a("v_xor_b32 v9, v9, v8")
    a("v_lshl_add_u32 v9, v6, 7, v9")
    a(f"v_add_u32 v9, s{S.T4}, v9")
    a(f"s_lshl_b32 s{S.T5}, s{S.WAVE}, 8")
    a("v_lshlrev_b32 v11, 2, v0")
    a(f"v_add_u32 v11, {L_RED}, v11")
    a(f"v_add_u32 v12, s{S.T5}, v11")
    a(f"s_lshl1_add_u32 s{S.T1}, s{S.L1}, s{S.T1}")
    a(f"s_lshl_b32 s{S.T2}, s{S.T1}, 15")
    a(f"s_and_b32 s{S.T3}, s{S.WAVE}, 1")
    a(f"s_lshl1_add_u32 s{S.T3}, s{S.T0}, s{S.T3}")
    a(f"s_lshl_b32 s{S.T5}, s{S.T3}, 7")
    a(f"s_add_u32 s{S.T2}, s{S.T2}, s{S.T5}")
    a("v_lshrrev_b32 v6, 3, v0")
    a(f"v_lshl_add_u32 v6, v6, 10, s{S.T2}")
    a("v_lshl_add_u32 v4, v4, 4, v6")
    a("v_lshrrev_b32 v6, 5, v0")
    a(f"v_mul_u32_u24 v13, {PZ}, v6")
    a("v_and_b32 v6, 31, v0")
    a("v_lshl_add_u32 v13, v6, 3, v13")
    a(f"s_mul_i32 s{S.T2}, s{S.T3}, {2*PZ}")
    a(f"s_lshl_b32 s{S.T1}, s{S.T1}, 8")
    a(f"s_add_u32 s{S.T2}, s{S.T2}, s{S.T1}")
    a(f"s_add_u32 s{S.T2}, s{S.T2}, {WS_PART}")
    a(f"s_lshl_b32 s{S.L0}, s{S.L0}, 6")
    a(f"s_lshl_b32 s{S.L1}, s{S.L1}, 12")
    a(f"s_add_u32 s{S.PO}, s{S.L1}, {WS_XCH}")
    a(f"s_add_u32 s{S.POL}, s{S.PO}, {(o.xc-1)*XCHC}")
    a(f"s_lshl_b32 s{S.T1}, s{S.T0}, 10")
    a(f"s_add_u32 s{S.L1}, s{S.PO}, s{S.T1}")
    a(f"v_mov_b32 v14, {L_FKEY}")
    a(f"s_lshr_b32 s{S.T1}, s{S.WAVE}, 1")
    a(f"s_lshl_b32 s{S.T1}, s{S.T1}, 9")
    a(f"v_lshl_add_u32 v15, v6, 4, s{S.T1}")
    a("v_lshrrev_b32 v6, 5, v0")
    a("v_lshl_add_u32 v15, v6, 10, v15")
    a(f"s_mov_b32 s{S.PO0}, s{S.PO}")
    a(f"s_mov_b32 s{S.L10}, s{S.L1}")
    a(f"s_mov_b32 s{S.T20}, s{S.T2}")
    a(f"s_mov_b32 s{S.FIN}, 0")

    if o.flate:
        w_dma()

    def wd_dma():
        l = a.L("nowd")
        a(f"s_cmp_ge_u32 s{S.WAVE}, 4")
        a(f"s_cbranch_scc1 {l}")
        for b in range(4):
            a(f"s_add_u32 m0, s{S.T4}, {L_WD + 1024*b}")
            if b:
                a("v_add_u32 v4, 0x2000, v4")
            else:
                a.nop(1)
            a(f"global_load_lds_dwordx4 v4, s[{S.PWD}:{S.PWD+1}]")
        a.label(l)

    if o.wdpos == 0:
        wd_dma()
    a("s_waitcnt vmcnt(0)")
    stamp(2)
    if o.fw0:
        a("s_barrier")
    if o.wdpos == 1:
        wd_dma()
    if o.xpre:
        for i in range(2):
            a(f"buffer_load_dwordx4 {V(64+4*i,4)}, v15, {R4(S.RWS)}, s{S.PO} offen offset:{2048*i} sc1")
    for k in range(8):
        a(f"ds_read_b64_tr_b16 {V(WG_+2*k,2)}, v9 offset:{L_W + k*512}")
    if o.ftouch:
        touch("L_tf", o.ftouch, 0, 8)
    a("s_waitcnt lgkmcnt(0)")
    a("s_barrier")
    a.label("L_tf_start")
    a("ds_read_b64 v[26:27], v14")
    a("s_waitcnt lgkmcnt(0)")
    a(f"v_readfirstlane_b32 s{S.FKEY}, v26")
    a.label("L_redo")
    a(f"s_andn2_b32 s{S.T0}, 2047, s{S.FKEY}")
    a(f"s_lshl_b32 s{S.T1}, s{S.T0}, 10")
    a(f"s_add_u32 s{S.T1}, s{S.T1}, s{S.L0}")
    a(f"s_load_dwordx16 s[{S.XS}:{S.XS+15}], {PXS}, s{S.T1}")
    stamp(5)
    a(f"v_xor_b32 v{VTAG}, s{S.T0}, v27")
    a(f"v_xor_b32 v29, s{S.T0}, v27")
    for r in (16, 17, 24, 25):
        a(f"v_mov_b32 v{r}, 0")
    a(f"s_mov_b32 s{S.PO}, s{S.PO0}")
    a(f"s_mov_b32 s{S.L1}, s{S.L10}")
    a(f"s_mov_b32 s{S.T2}, s{S.T20}")
    a(f"s_mov_b32 s{S.KM}, 0")
    a("s_waitcnt lgkmcnt(0)")
    for i in range(16):
        a(f"v_dot2c_f32_bf16 v{16+(i&1)}, s{S.XS+i}, v{WG_+i}")
    stamp(6)
    a.nop(3)
    a("v_add_f32 v16, v16, v17")
    a("ds_write_b32 v12, v16")
    a("s_waitcnt lgkmcnt(0)")
    a("s_barrier")
    a(f"s_lshl_b32 s{S.T0}, s{S.WAVE}, 4")
    a(f"s_lshl_b64 s[{S.EX}:{S.EX+1}], 0xffff, s{S.T0}")
    for i, (p, q) in enumerate(((0, 2), (4, 6), (1, 3), (5, 7))):
        a(f"ds_read2st64_b32 v[{16+2*i}:{17+2*i}], v11 offset0:{p} offset1:{q}")
    a("s_waitcnt lgkmcnt(2)")
    a("v_add_f32 v16, v16, v17")
    a("v_add_f32 v18, v18, v19")
    a("s_waitcnt lgkmcnt(0)")
    a("v_add_f32 v20, v20, v21")
    a("v_add_f32 v22, v22, v23")
    a("v_add_f32 v28, v16, v18")
    a(f"s_mov_b64 exec, s[{S.EX}:{S.EX+1}]")
    a("v_add_f32 v30, v20, v22")
    a(f"s_cmp_ge_u32 s{S.WAVE}, 4")
    a("s_cbranch_scc1 L_f5")
    a(f"buffer_store_dwordx4 v[28:31], v5, {R4(S.RWS)}, s{S.L1} offen{'' if o.xl2 else ' sc1'}")
    a("s_mov_b64 exec, -1")
    stamp(7)
    a("s_waitcnt vmcnt(1)")
    for k in range(8):
        a(f"ds_read_b64_tr_b16 {V(WD_+2*k,2)}, v9 offset:{L_WD + k*512}")
    if o.xsleep0:
        a(f"s_sleep {o.xsleep0}")
    stamp(8)
    a.label("L_fx")
    for i in range(2):
        a(f"buffer_load_dwordx4 {V(64+4*i,4)}, v15, {R4(S.RWS)}, s{S.PO} offen offset:{2048*i} sc1")
    if o.xl2:
        a(f"s_add_u32 s{S.KM}, s{S.KM}, 1")
        a(f"s_cmp_ge_u32 s{S.KM}, {o.xl2}")
        a(f"s_cselect_b32 s{S.T0}, {XCHC}, 0")
        a(f"s_add_u32 s{S.PO}, s{S.PO}, s{S.T0}")
    else:
        a(f"s_add_u32 s{S.PO}, s{S.PO}, {XCHC}")
    a(f"s_min_u32 s{S.PO}, s{S.PO}, s{S.POL}")
    if o.stamps:
        a(f"s_add_u32 s{S.RC}, s{S.RC}, 1")
    spin()
    a("s_cbranch_scc1 L_fx_ok")
    a("s_waitcnt vmcnt(1)")
    a(f"v_bitop3_b32 v20, v65, v67, v{VTAG} bitop3:0x7e")
    a("s_waitcnt vmcnt(0)")
    a("v_add_f32 v16, v64, v68")
    a("v_add_f32 v18, v66, v70")
    a(f"v_bitop3_b32 v21, v69, v71, v{VTAG} bitop3:0x7e")
    a("v_or_b32 v20, v20, v21")
    a("v_cmp_ne_u32 vcc, 0, v20")
    a("v_permlane32_swap_b32 v16, v18")
    a("s_cbranch_vccnz L_fxr")
    a.label("L_fx_ok")
    stamp(9)
    a("v_add_f32 v16, v16, v18")
    rnd(16, 16)
    a("v_mov_b32 v18, v16")
    sigmoid(17, 16)
    a("v_permlane32_swap_b32 v16, v18")
    a("v_mul_f32 v17, v17, v16")
    rnd(17, 17)
    a("v_mul_f32 v17, v17, v18")
    a.nop(2)
    a(f"v_mov_b32_dpp v18, v17 quad_perm:[1,0,3,2] {DPPM}")
    a("v_cvt_pk_bf16_f32 v17, v17, v18")
    a.nop(1)
    for i in range(16):
        a(f"v_readlane_b32 s{S.XS+i}, v17, {2*i}")
    a("s_waitcnt lgkmcnt(0)")
    for i in range(16):
        a(f"v_dot2c_f32_bf16 v{24+(i&1)}, s{S.XS+i}, v{WD_+i}")
    a.nop(3)
    a("v_add_f32 v30, v24, v25")
    for c in range(o.pc):
        if c:
            a(f"s_add_u32 s{S.T2}, s{S.T2}, {PARTC}")
        a(f"buffer_store_dwordx2 v[30:31], v13, {R4(S.RWS)}, s{S.T2} offen sc1")
    stamp(10)
    a.label("L_fend")
    a(f"s_cmp_lg_u32 s{S.FIN}, 0")
    a("s_cbranch_scc1 L_fexit")
    a("s_barrier")
    a("ds_read_b32 v26, v14 offset:8")
    a(f"s_mov_b32 s{S.FIN}, 1")
    a("s_waitcnt lgkmcnt(0)")
    a(f"v_readfirstlane_b32 s{S.T0}, v26")
    a(f"s_cmp_eq_u32 s{S.T0}, s{S.FKEY}")
    a(f"s_mov_b32 s{S.FKEY}, s{S.T0}")
    if o.stamps:
        a(f"s_cselect_b32 s{S.T1}, 0, 64")
        a(f"s_add_u32 s{S.RC}, s{S.RC}, s{S.T1}")
        a(f"s_cmp_eq_u32 s{S.T1}, 0")
    a("s_cbranch_scc0 L_redo")
    a.label("L_fexit")
    endprog()
    a.label("L_f5")
    for c in range(1, o.xc):
        a(f"s_add_u32 s{S.L1}, s{S.L1}, {XCHC}")
        a(f"buffer_store_dwordx4 v[28:31], v5, {R4(S.RWS)}, s{S.L1} offen sc1")
    a("s_mov_b64 exec, -1")
    a("s_branch L_fend")
    a.label("L_fxr")
    a("ds_read_b32 v26, v14 offset:8")
    a("s_waitcnt lgkmcnt(0)")
    a(f"v_readfirstlane_b32 s{S.T0}, v26")
    a(f"s_cmp_eq_u32 s{S.T0}, 0")
    a("s_cbranch_scc1 L_fx")
    a(f"s_cmp_eq_u32 s{S.T0}, s{S.FKEY}")
    a("s_cbranch_scc1 L_fx")
    a("s_branch L_fend")

    a.label("L_fh")
    a("s_waitcnt lgkmcnt(0)")
    if o.fesleep:
        a(f"s_sleep {o.fesleep}")
    tag_load()
    ws_setup()
    a(f"v_mov_b32 v14, {L_FKEY}")
    a("v_mov_b32 v6, 0")
    a("ds_write_b32 v14, v6 offset:8")
    if o.spec:
        poll_setup(WS_KEY + 1024 * (RF * CF + RZ * CZ + R2 * C2), 8, 1)
        a(f"s_sleep {o.spec}")
        a("s_waitcnt vmcnt(0)")
        tag_make()
        stamp(1)
        a(f"buffer_load_dwordx4 v[20:23], v5, {R4(S.RWS)}, s{S.PO} offen sc1")
        poll_setup(WS_KEY, RF, CF)
        a("s_waitcnt vmcnt(0)")
        stamp(2)
        a(f"v_cmp_ne_u32 vcc, v{VTAG}, v21")
        a(f"v_cmp_ne_u32 s[{S.EX}:{S.EX+1}], v{VTAG}, v23")
        a("s_mov_b64 exec, vcc")
        a("v_mov_b32 v20, 0")
        a(f"s_mov_b64 exec, s[{S.EX}:{S.EX+1}]")
        a("v_mov_b32 v22, 0")
        a("s_mov_b64 exec, -1")
        a(f"s_or_b64 s[{S.EY}:{S.EY+1}], vcc, s[{S.EX}:{S.EX+1}]")
        wave_max_key(20)
        lds_put(L_FKEY, 20, tag=True)
        a("s_barrier")
        a(f"s_cmp_eq_u64 s[{S.EY}:{S.EY+1}], 0")
        a("s_cbranch_scc1 L_fh2")
        if o.fsleep0:
            a(f"s_sleep {o.fsleep0}")
        stamp(3)
        poll_granules(5, 20, sleep=o.fsleep)
        stamp(4)
        wave_max_key(20)
        a.label("L_fh2")
        lds_put(L_FKEY + 8, 20)
    else:
        poll_setup(WS_KEY, RF, CF)
        if o.fsleep0:
            a(f"s_sleep {o.fsleep0}")
        a("s_waitcnt vmcnt(0)")
        tag_make()
        stamp(3)
        poll_granules(5, 20, sleep=o.fsleep)
        stamp(4)
        wave_max_key(20)
        lds_put(L_FKEY, 20, tag=True)
        a("s_barrier")
        lds_put(L_FKEY + 8, 20)
    a("s_barrier")
    endprog()
    a.label("L_end")
    a("s_endpgm")
    return name


def main():
    ap = argparse.ArgumentParser()
    ap.add_argument("-o", required=True)
    for k, d in dict(stamps=0, pc=1, xc=2, zsleep=8, zsleep0=24, psleep=0, psleep0=22, rsleep=3, ackwait=1, hipre=0, tlate=1,
                     mode=0, k2ack=1, k2sleep0=6, zk2sleep0=0, k2sleep=5, fbar=0, cpf=2, flate=1, b1a=1, skew=0, gate=1, lds=0, nsgpr=102, prio=1, stag=0, spec=0, b0=2, wthr=0, xpre=0, atouch=10, ftouch=8, xl2=5, npre=3, gfirst=0, isleep0=0, zisleep0=5, b3=1, ztouch=8, zstep=128, touch=0, wdpos=1, wpf=2, fesleep=0, fw0=0, xack=0, fdelay=0, xsleep0=3, fsleep0=37, fsleep=4, spin=17).items():
        ap.add_argument("--" + k, type=int, default=d)
    for k in ("wpol", "outpol", "zpol", "only"):
        ap.add_argument("--" + k, default="")
    ap.add_argument("--mf", default="8,2")
    ap.add_argument("--mz", default="1,3")
    ap.add_argument("--m2", default="8,2")
    ap.add_argument("--hold", default="")
    o = ap.parse_args()
    if o.hold:
        o.hold = o.hold.split(":")
    for k in ("mf", "mz", "m2"):
        setattr(o, k, [int(v) for v in getattr(o, k).split(",")])
    for k in ("wpol", "outpol", "zpol"):
        setattr(o, k, (" " + getattr(o, k)) if getattr(o, k) else "")
    a = Asm()
    name = gen(a, o)
    if o.touch:
        insert_stubs(a, [("L_ta_start", "L_ta_end", "L_ta", "L_taback", 9)], step=o.touch)
    reg = []
    if o.atouch:
        reg.append(("L_zjoin", "L_tb_end", "L_tb", "L_tbback", o.atouch))
    if o.ztouch:
        reg.append(("L_tz_start", "L_zend", "L_tz", "L_tzback", o.ztouch))
    if o.ftouch:
        reg.append(("L_tf_start", "L_fend", "L_tf", "L_tfback", o.ftouch))
    if reg:
        insert_stubs(a, reg, step=o.zstep)
    finish(a, name, NVGPR, o.nsgpr, NWG, 576, o.lds or LDS_BYTES, o.o)


main()
```

```python
import argparse
from lib import *

NA, NF, NZ = 128, 112, 16
NWG = NA + NF + NZ
WS_E = 0
WS_ALIVE = 4096
WS_KEY = 64 << 10
WS_KEY2 = 128 << 10
WS_XCH = 192 << 10
XCHC = 28 * 4096
WS_PART = 704 << 10
PZ = 56 * 256
PARTC = NZ * PZ
WS_INT = 2 << 20
CS = 32768 + 256
WS_STAMP = 8 << 20
WS_BYTES = 16 << 20
L_TILE = 0
L_U2 = 16384
L_CT = L_U2
UB = 17 * 64
L_MISC = L_U2 + 16 * UB
L_KSL = L_MISC
L_GKEY = L_MISC + 64
L_ZC = L_MISC + 76
L_ZF = L_MISC + 72
L_EXP = L_MISC + 128
L_DUMP = L_MISC + 192
L_XG2 = L_DUMP + 4 * UB + 256
L_M2 = L_XG2 + 4096
L_WV = L_M2 + 4096
L_XT = L_WV + 2048
L_W = 0
L_WD = 32768
L_RED = L_WD + 16384
L_FKEY = L_RED + 2048
LDS_BYTES = 84 * 1024
MF = "v_mfma_f32_16x16x32_bf16"
LOG2E = 0x3fb8aa3b
DPPM = "row_mask:0xf bank_mask:0xf"
HIM = "0xffff0000"
NVGPR = 168


class S:
    WAVE = 3
    PX = 4
    T0, T1, T2, T3, T4, T5 = 6, 7, 8, 9, 10, 11
    EX = 12
    EY = 14
    PWR, PWG, PWU, PWD, PGW, POUT, PDBG, PWS = 16, 18, 20, 22, 24, 26, 28, 30
    L0, L1, SPT, PIE = 32, 33, 34, 35
    RWS, ROUT = 36, 40
    XS = 44
    GKEY, WSEL, WHICH, Z = 44, 45, 46, 47
    SI0, SI1, ID8, BLK = 48, 49, 50, 51
    IDX, ISZ, TC = 54, 55, 53
    SO = 44
    T1C, HH, TD, TM = 56, 57, 58, 59
    FJ, PO, POL, RC, KM, SPIN = 60, 61, 62, 63, 64, 65
    PO0, L10, T20, FKEY, FIN = 40, 41, 42, 43, 35
    ST = 68


def gen(a, o):
    global WS_KEY, WS_XCH, WS_PART, WS_INT, WS_ALIVE, WS_BYTES
    WS_KEY += o.wsoff << 20
    WS_XCH += o.wsoff << 20
    WS_PART += o.wsoff << 20
    WS_INT += o.wsoff << 20
    WS_ALIVE += o.wsoff << 20
    WS_BYTES = max(WS_BYTES, (o.wsoff + 8) << 20)
    name = NAME + "_kernel"
    kernel_head(a, name)
    VE, VTAG = 30, 31
    PXS = f"s[{S.PX}:{S.PX+1}]"

    def stamp(i):
        if o.stamps:
            a(f"s_memrealtime s[{S.ST+2*i}:{S.ST+2*i+1}]")

    def hold(cp):
        if o.hold and o.hold[0] == cp:
            l = a.L("hold")
            a.label(l)
            a("s_sleep 1")
            a("s_memrealtime s[100:101]")
            a("s_waitcnt lgkmcnt(0)")
            a("s_sub_u32 s100, s100, s66")
            a(f"s_cmp_lt_u32 s100, {o.hold[1]}")
            a(f"s_cbranch_scc1 {l}")

    def touch(pre, n, first, step, back=None, tail=None):
        a("s_mov_b64 exec, 0")
        a(f"s_sub_u32 s{S.TC}, s{S.WAVE}, {first + step}")
        a.label(f"{pre}back")
        a(f"s_add_u32 s{S.TC}, s{S.TC}, {step}")
        for k in range(n):
            a(f"s_cmp_eq_u32 s{S.TC}, {k}")
            a(f"s_cbranch_scc1 {pre}{k}")
        a("s_mov_b64 exec, -1")

    def endprog():
        if o.stamps:
            a("s_waitcnt lgkmcnt(0)")
            a(f"s_add_u32 s{S.ST+28}, s{S.RC}, s{S.ST+30}")
            for i in range(16):
                a(f"v_writelane_b32 v166, s{S.ST+2*i}, {i}")
            a("s_mov_b64 exec, 0xffff")
            a(f"s_lshl4_add_u32 s{S.T0}, s2, s{S.WAVE}")
            a(f"s_lshl_b32 s{S.T0}, s{S.T0}, 7")
            a(f"s_add_u32 s{S.T0}, s{S.T0}, {WS_STAMP}")
            a(f"v_lshl_add_u32 v165, v0, 3, s{S.T0}")
            a("v_mov_b32 v167, 0")
            a(f"global_store_dwordx2 v165, v[166:167], s[{S.PWS}:{S.PWS+1}]")
        a("s_endpgm")

    def spin():
        a(f"s_add_u32 s{S.SPIN}, s{S.SPIN}, 1")
        a(f"s_lshr_b32 s{S.SPT}, s{S.SPIN}, {o.spin}")

    def poll_setup(base, R, C):
        a(f"s_and_b32 s{S.PO}, s2, {R-1}")
        a(f"s_mul_i32 s{S.PO}, s{S.PO}, {1024*C}")
        a(f"s_add_u32 s{S.PO}, s{S.PO}, {base}")
        a(f"s_add_u32 s{S.POL}, s{S.PO}, {1024*(C-1)}")

    def set_exec(n):
        if n >= 64:
            a("s_mov_b64 exec, -1")
        elif n <= 31:
            a(f"s_mov_b64 exec, {(1 << n) - 1:#x}")
        else:
            a("s_mov_b32 exec_lo, -1")
            a(f"s_mov_b32 exec_hi, {(1 << (n - 32)) - 1:#x}")

    RS = 8 if o.spec else 0
    RF, CF = o.mf
    RZ, CZ = o.mz
    R2, C2 = o.m2
    assert RF * CF + RZ * CZ + R2 * C2 + RS <= 64

    def poll_granules(vaddr, vd, sleep=0, step=1024):
        l = a.L("poll")
        if sleep:
            a(f"s_branch {l}_1")
        a.label(l)
        if sleep:
            a(f"s_sleep {sleep}")
            a.label(f"{l}_1")
        a(f"buffer_load_dwordx4 {V(vd,4)}, v{vaddr}, {R4(S.RWS)}, s{S.PO} offen sc1")
        a(f"s_add_u32 s{S.PO}, s{S.PO}, {step}")
        a(f"s_min_u32 s{S.PO}, s{S.PO}, s{S.POL}")
        if o.stamps:
            a(f"s_add_u32 s{S.RC}, s{S.RC}, 1")
        spin()
        a("s_waitcnt vmcnt(0)")
        a(f"s_cbranch_scc1 {l}_ok")
        a(f"v_cmp_ne_u32 vcc, v{VTAG}, v{vd+1}")
        a(f"v_cmp_ne_u32 s[{S.EX}:{S.EX+1}], v{VTAG}, v{vd+3}")
        a(f"s_or_b64 vcc, vcc, s[{S.EX}:{S.EX+1}]")
        a(f"s_cbranch_vccnz {l}")
        a.label(f"{l}_ok")

    def wave_max_key(vd):
        a(f"v_max_u32 v{vd}, v{vd}, v{vd+2}")
        for r in ("row_ror:8", "row_ror:4", "row_ror:2", "row_ror:1"):
            a.nop(2)
            a(f"v_max_u32_dpp v{vd}, v{vd}, v{vd} {r} {DPPM}")
        a.nop(2)
        a(f"v_max_u32_dpp v{vd}, v{vd}, v{vd} row_bcast:15 row_mask:0xa bank_mask:0xf")
        a.nop(2)
        a(f"v_max_u32_dpp v{vd}, v{vd}, v{vd} row_bcast:31 row_mask:0xc bank_mask:0xf")

    def lds_put(addr, v, tag=False):
        a(f"v_mov_b32 v9, {addr}")
        a("s_mov_b32 exec_lo, 0")
        a("s_brev_b32 exec_hi, 1")
        if tag:
            a(f"ds_write2_b32 v9, v{v}, v{VTAG} offset1:1")
        else:
            a(f"ds_write_b32 v9, v{v}")
        a("s_mov_b64 exec, -1")
        a("s_waitcnt lgkmcnt(0)")

    def sigmoid(d, s):
        a(f"v_mul_f32 v{d}, {LOG2E | 0x80000000:#x}, v{s}")
        a(f"v_exp_f32 v{d}, v{d}")
        a.nop(1)
        a(f"v_add_f32 v{d}, 1.0, v{d}")
        a(f"v_rcp_f32 v{d}, v{d}")
        a.nop(1)

    def rnd(d, s):
        a(f"v_cvt_pk_bf16_f32 v{d}, v{s}, v{s}")
        a(f"v_and_b32 v{d}, {HIM}, v{d}")

    def ws_setup():
        a.srd(S.RWS, S.PWS, WS_BYTES)
        a(f"s_mov_b32 s{S.SPIN}, 0")

    def tag_load():
        a(f"v_mov_b32 v{VTAG}, 0")
        a(f"global_load_dword v{VE}, v{VTAG}, s[{S.PWS}:{S.PWS+1}]")
        a(f"s_mov_b32 s{S.KM}, 0x9E3779B1")

    def tag_make():
        a(f"v_mul_lo_u32 v{VTAG}, v{VE}, s{S.KM}")
        a(f"v_add_u32 v{VTAG}, 0x7F4A7C15, v{VTAG}")

    a(f"s_load_dwordx2 s[{S.PX}:{S.PX+1}], s[0:1], {KA_X}")
    a(f"s_load_dwordx16 s[16:31], s[0:1], {KA_WR}")
    if o.stamps:
        for i in range(1, 16):
            a(f"s_mov_b32 s{S.ST+2*i}, 0")
        a(f"s_mov_b32 s{S.RC}, 0")
    stamp(0)
    if o.hold:
        a("s_memrealtime s[66:67]")
    if o.skew:
        a("s_and_b32 s6, s2, 7")
        a("s_cmp_lg_u32 s6, 5")
        a("s_cbranch_scc1 L_noskew")
        a(f"s_sleep {o.skew}")
        a.label("L_noskew")
    a("v_lshrrev_b32 v1, 6, v0")
    a("v_and_b32 v0, 63, v0")
    a(f"v_readfirstlane_b32 s{S.WAVE}, v1")
    a("v_and_b32 v1, 15, v0")
    a("v_lshrrev_b32 v2, 4, v0")
    a(f"s_and_b32 s{S.T0}, s2, 7")
    a(f"s_sub_u32 s{S.WAVE}, s{S.WAVE}, 1")
    a(f"s_min_u32 s{S.WAVE}, s{S.WAVE}, 8")
    a(f"s_lshr_b32 s{S.T1}, s2, 3")
    a(f"s_cmp_ge_u32 s2, {NA}")
    a("s_cbranch_scc1 L_notA")
    if o.only == "F":
        a("s_endpgm")

    VROW, VG16, VSGN, VTR, VST = 3, 5, 8, 10, 11
    VLD, VUW, VUX, VUR0, VUR1 = 10, 11, 28, 29, 30
    XR, WR, GW, CO = 16, 24, 24, 24
    CM, AOP, ACC = 32, 96, 112
    LD, DA0, DA1, TP, X16, PK = 32, 64, 32, 80, 96, 48
    M1, GA, XG = 100, 148, 152
    Cc, Ss = 64, 68
    UO, PQ, M2 = 32, 48, 64

    def rows_setup(wreg):
        a(f"s_lshl3_add_u32 s{S.T5}, s{S.HH}, s{wreg}")
        a(f"s_lshl_b32 s{S.T5}, s{S.T5}, 7")
        a(f"s_add_u32 s{S.TD}, s{S.T5}, s{S.T1C}")
        a(f"s_sub_u32 s{S.TM}, 2048, s{S.TD}")
        a(f"s_cmp_eq_u32 s{S.TD}, 0")
        a(f"s_cselect_b32 s{S.TM}, 1024, s{S.TM}")
        a(f"s_lshl_b32 s{S.T4}, s{S.TD}, 10")
        a(f"s_lshl_b32 s{S.T5}, s{S.TM}, 10")
        a(f"v_add_u32 v6, s{S.T4}, v{VG16}")
        a(f"v_add_u32 v7, s{S.T5}, v{VG16}")

    def vrow_setup():
        a("v_and_b32 v6, 1, v2")
        a("v_lshlrev_b32 v6, 5, v6")
        a("v_lshl_add_u32 v6, v1, 6, v6")
        a("v_lshrrev_b32 v7, 1, v2")
        a(f"v_lshl_add_u32 v{VROW}, v7, 4, v6")

    def rows_load():
        a(f"global_load_dwordx4 {V(XR,4)}, v6, {PXS}")
        a(f"global_load_dwordx4 {V(XR+4,4)}, v7, {PXS}")

    def sgn_setup():
        a(f"v_lshlrev_b32 v{VSGN}, 31, v1")
        a(f"v_lshrrev_b32 v9, 16, v{VSGN}")
        a(f"v_or_b32 v{VSGN}, v{VSGN}, v9")

    def sgn_setup2():
        a(f"v_lshlrev_b32 v{VSGN}, 31, v1")
        a(f"v_lshrrev_b32 v14, 16, v{VSGN}")
        a(f"v_or_b32 v{VSGN}, v{VSGN}, v14")

    def tile_ids():
        a(f"s_bitcmp1_b32 s{S.T1}, 3")
        a(f"s_cselect_b32 s{S.T2}, s{S.T3}, s{S.T2}")
        a(f"s_and_b32 s{S.T3}, s{S.T1}, 7")
        a(f"s_lshl3_add_u32 s{S.BLK}, s{S.T2}, s{S.T3}")
        a(f"s_lshl_b32 s{S.PIE}, s{S.T2}, 5")
        a(f"s_add_u32 s{S.PIE}, s{S.PIE}, s{S.T3}")
        a(f"s_lshl_b32 s{S.PIE}, s{S.PIE}, 6")

    def vst_setup():
        a(f"v_mul_u32_u24 v{VST}, {CS}, v1")
        a(f"v_lshl_add_u32 v{VST}, v2, 4, v{VST}")

    def const_d2():
        R = 40
        a("v_lshlrev_b32 v6, 2, v2")
        a("v_cvt_f32_u32 v7, v1")
        a("v_cvt_f32_u32 v6, v6")
        a("v_mul_f32 v7, 0x3d800000, v7")
        for hf in range(2):
            if hf:
                a("v_add_f32 v7, 0x3d800000, v7")
            a("v_mul_f32 v9, v6, v7")
            for jj in range(4):
                a(f"v_cos_f32 v{Cc+jj}, v9")
                a(f"v_sin_f32 v{Ss+jj}, v9")
                if jj < 3:
                    a("v_add_f32 v9, v9, v7")
            a.nop(1)
            for jj in range(4):
                if hf == 0:
                    a(f"v_cvt_pk_bf16_f32 v{R+jj}, v{Cc+jj}, v{Ss+jj}")
                    a(f"v_cvt_pk_bf16_f32 v{R+8+jj}, -v{Ss+jj}, v{Cc+jj}")
                else:
                    a(f"v_cvt_pk_bf16_f32 v{R+4+jj}, v{Cc+jj}, -v{Ss+jj}")
                    a(f"v_cvt_pk_bf16_f32 v{R+12+jj}, -v{Ss+jj}, -v{Cc+jj}")
        for k in range(4):
            a(f"ds_write_b128 v{VG16}, {V(R+4*k,4)} offset:{L_M2 + 1024*k}")

    if o.touch:
        a("s_mov_b64 exec, 0")
        for k in range(9):
            a(f"s_cmp_eq_u32 s{S.WAVE}, {(k + 8) % 9}")
            a(f"s_cbranch_scc1 L_ta{k}")
        a.label("L_taback")
        a("s_mov_b64 exec, -1")
        a.label("L_ta_start")
    a(f"s_add_u32 s{S.T2}, s{S.T0}, 1")
    a(f"s_sub_u32 s{S.T3}, 15, s{S.T0}")
    a(f"s_cmp_eq_u32 s{S.WAVE}, 8")
    a("s_cbranch_scc1 L_ah")
    a(f"s_and_b32 s{S.HH}, s{S.T1}, 1")
    a(f"s_bitcmp1_b32 s{S.T1}, 1")
    a(f"s_cselect_b32 s{S.T4}, s{S.T3}, s{S.T2}")
    a(f"s_lshr_b32 s{S.T5}, s{S.T1}, 2")
    a(f"s_lshl4_add_u32 s{S.T1C}, s{S.T5}, s{S.T4}")
    a(f"v_lshlrev_b32 v{VG16}, 4, v0")
    a(f"v_mov_b32 v{VROW}, 0")
    a(f"s_cmp_lg_u32 s{S.T0}, 7")
    a("s_cbranch_scc1 L_k7")
    a(f"s_lshr_b32 s{S.T5}, s{S.T1}, 1")
    a(f"s_lshl3_add_u32 s{S.T1C}, s{S.T5}, 8")
    a(f"s_mov_b32 s{S.T2}, 0")
    a(f"s_cmp_eq_u32 s2, 127")
    a(f"s_cselect_b32 s{S.T1C}, 0, s{S.T1C}")
    a(f"s_cselect_b32 s{S.HH}, 0, s{S.HH}")
    a.label("L_k7")
    rows_setup(S.WAVE)
    a("s_waitcnt lgkmcnt(0)")
    rows_load()
    stamp(1)
    if o.b0 == 2:
        a("s_barrier")
    tile_ids()

    def tile_dma():
        a(f"s_lshl_b32 s{S.T4}, s{S.WAVE}, 11")
        a(f"s_add_u32 s{S.T5}, s{S.T4}, s{S.BLK}")
        a(f"s_lshl_b32 s{S.T5}, s{S.T5}, 7")
        a(f"s_mov_b32 m0, s{S.T4}")
        a("v_and_b32 v9, 7, v0")
        a("v_bfe_u32 v13, v0, 4, 1")
        a("v_xor_b32 v9, v9, v13")
        a("v_lshrrev_b32 v13, 3, v0")
        a(f"v_lshl_add_u32 v9, v9, 4, s{S.T5}")
        a("v_lshl_add_u32 v13, v13, 14, v9")
        a(f"global_load_lds_dwordx4 v13, {PXS}")
        a(f"s_add_u32 m0, s{S.T4}, 1024")
        a("v_add_u32 v13, 0x20000, v13")
        a(f"global_load_lds_dwordx4 v13, {PXS}")
        stamp(2)

    if not o.tlate:
        tile_dma()
    C1, S1, K = AOP, AOP + 4, AOP + 8
    a(f"s_lshr_b32 s{S.T0}, s{S.WAVE}, 2")
    a(f"s_and_b32 s{S.T1}, s{S.WAVE}, 1")
    a(f"s_bfe_u32 s{S.T2}, s{S.WAVE}, 0x10001")
    a(f"v_lshl_add_u32 v6, s{S.T0}, 4, v1")
    a(f"s_lshl3_add_u32 s{S.T3}, s{S.T2}, s{S.T1}")
    a(f"s_lshl_b32 s{S.T3}, s{S.T3}, 2")
    a("v_cvt_f32_u32 v6, v6")
    a(f"v_lshl_add_u32 v7, v2, 3, s{S.T3}")
    a("v_mul_f32 v6, 0x3c000000, v6")
    a("v_cvt_f32_u32 v7, v7")
    a("v_mul_f32 v7, v7, v6")
    for j in range(4):
        a(f"v_cos_f32 v{C1+j}, v7")
        a(f"v_sin_f32 v{S1+j}, v7")
        if j < 3:
            a("v_add_f32 v7, v7, v6")
    if o.tlate == 2:
        a(f"global_load_dwordx4 {V(WR,4)}, v{VG16}, s[{S.PWR}:{S.PWR+1}]")
        tile_dma()
    a(f"s_lshl_b32 s{S.T4}, s{S.T0}, 13")
    a(f"s_lshl_b32 s{S.T5}, s{S.T2}, 10")
    a(f"s_lshl3_add_u32 s{S.T5}, s{S.T1}, s{S.T5}")
    a(f"v_add_u32 v15, s{S.T4}, v{VG16}")
    a(f"v_add_u32 v9, s{S.T5}, v15")
    a(f"v_cvt_pk_bf16_f32 v{K+0}, v{C1}, v{C1+1}")
    a(f"v_cvt_pk_bf16_f32 v{K+1}, v{C1+2}, v{C1+3}")
    a(f"v_cvt_pk_bf16_f32 v{K+2}, -v{S1}, -v{S1+1}")
    a(f"v_cvt_pk_bf16_f32 v{K+3}, -v{S1+2}, -v{S1+3}")
    a("v_cmp_eq_f32 vcc, 0, v6")
    a(f"v_cvt_pk_bf16_f32 v{K+4}, v{C1}, -v{S1+1}")
    a(f"v_cvt_pk_bf16_f32 v{K+5}, -v{C1+2}, v{S1+3}")
    a(f"v_cvt_pk_bf16_f32 v{K+6}, -v{S1}, -v{C1+1}")
    a(f"v_cvt_pk_bf16_f32 v{K+7}, v{S1+2}, v{C1+3}")
    a(f"ds_write_b64 v9, {V(K,2)} offset:{L_CT}")
    a(f"ds_write_b64 v9, {V(K+4,2)} offset:{L_CT+4096}")
    a(f"ds_write_b64 v9, {V(K+6,2)} offset:{L_CT+6144}")
    a("s_mov_b64 exec, vcc")
    a(f"v_mov_b32 v{K+2}, 0xbf803f80")
    a(f"v_mov_b32 v{K+3}, 0xbf803f80")
    a("s_mov_b64 exec, -1")
    a(f"ds_write_b64 v9, {V(K+2,2)} offset:{L_CT+2048}")
    if o.tlate != 2:
        a(f"global_load_dwordx4 {V(WR,4)}, v{VG16}, s[{S.PWR}:{S.PWR+1}]")
    if o.tlate == 1:
        tile_dma()
    a("v_mov_b32 v12, 0")
    a("v_mov_b32 v13, 0")
    stamp(3)
    if o.b0 == 1:
        a("s_waitcnt lgkmcnt(0)")
        a("s_barrier")
        for k in range(2):
            for t in range(4):
                a(f"ds_read_b128 {V(CM+16*t+4*k,4)}, v15 offset:{L_CT + t*2048 + k*1024}")

    def dots(w, fill=()):
        fill = list(fill)

        def pad(n):
            while n and fill:
                a(fill.pop(0))
                n -= 1
            a.nop(n)

        for i in range(4):
            a(f"v_dot2c_f32_bf16 v12, v{XR+i}, v{w+i}")
            a(f"v_dot2c_f32_bf16 v13, v{XR+4+i}, v{w+i}")
        pad(3)
        a("v_permlane32_swap_b32 v12, v13")
        a("v_add_f32 v12, v12, v13")
        a("v_mov_b32 v13, v12")
        pad(2)
        a("v_permlane16_swap_b32 v12, v13")
        a("v_add_f32 v12, v12, v13")
        for r in (8, 4, 2, 1):
            pad(2)
            a(f"v_add_f32_dpp v12, v12, v12 row_ror:{r} {DPPM}")
        rnd(12, 12)
        for x in fill:
            a(x)

    a(f"s_waitcnt vmcnt({2 if o.tlate else 0})")
    stamp(4)
    dots(WR, [f"s_sub_u32 s{S.T4}, 0xffff, s{S.TD}", f"s_sub_u32 s{S.T5}, 0xffff, s{S.TM}", f"v_mov_b32 v4, s{S.T4}",
              f"v_writelane_b32 v4, s{S.T5}, 32", f"v_mov_b32 v9, {L_KSL}",
              f"v_lshlrev_b32 v{VSGN}, 31, v1", f"v_lshrrev_b32 v7, 16, v{VSGN}", f"v_or_b32 v{VSGN}, v{VSGN}, v7",
              "v_bfe_u32 v6, v0, 2, 2", "v_and_b32 v14, 3, v0", f"v_lshl_add_u32 v14, v14, 1, s{S.T2}",
              f"v_lshl_add_u32 v{VTR}, v2, 3, v6", "v_lshrrev_b32 v6, 1, v6", "v_xor_b32 v14, v14, v6"])
    a("v_ashrrev_i32 v7, 31, v12")
    a("v_or_b32 v7, 0x80000000, v7")
    a("v_xor_b32 v7, v7, v12")
    a(f"v_and_b32 v7, {HIM}, v7")
    a("v_or_b32 v7, v7, v4")
    a("s_mov_b32 exec_lo, 1")
    a("s_mov_b32 exec_hi, 1")
    a("ds_max_u32 v9, v7")
    a("s_mov_b64 exec, -1")
    if o.b1a:
        a("s_waitcnt lgkmcnt(0)")
        hold("K")
        a("s_barrier")
    if o.b0 == 2:
        for k in range(2):
            for t in range(4):
                a(f"ds_read_b128 {V(CM+16*t+4*k,4)}, v15 offset:{L_CT + t*2048 + k*1024}")
    a(f"s_lshl_b32 s{S.T1}, s{S.T1}, 3")
    a(f"v_lshl_add_u32 v14, v14, 4, s{S.T1}")
    a(f"v_lshl_add_u32 v{VTR}, v{VTR}, 7, v14")
    a("v_lshlrev_b32 v9, 4, v2")
    a("s_waitcnt vmcnt(0)" + ("" if o.b0 == 2 else " lgkmcnt(0)"))
    hold("B1")
    a("s_barrier")
    stamp(5)
    if o.b0 == 2:
        a("s_waitcnt lgkmcnt(5)")
    a(f"ds_read_b128 v[28:31], v9 offset:{L_EXP}")
    for k in range(4):
        for h in range(2):
            a(f"ds_read_b64_tr_b16 {V(AOP+4*k+2*h,2)}, v{VTR} offset:{L_TILE + k*4096 + h*512}")
        if k < 2 and not o.b0:
            for t in range(4):
                a(f"ds_read_b128 {V(CM+16*t+4*k,4)}, v15 offset:{L_CT + t*2048 + k*1024}")
        if k == 1 and not o.b0:
            a("s_waitcnt lgkmcnt(9)")
    a(f"global_load_dwordx4 {V(GW,4)}, v{VG16}, s[{S.PGW}:{S.PGW+1}]")
    xors = [f"v_xor_b32 v{CM+t*16+8+4*kp+r}, v{CM+t*16+4*kp+r}, v{VSGN}" for kp in range(2) for t in range(4) for r in range(4)]
    misc = [f"s_mul_i32 s{S.SO}, s{S.T0}, {16*CS}",
            f"s_add_u32 s{S.SO}, s{S.SO}, s{S.PIE}",
            f"s_and_b32 s{S.T4}, s{S.WAVE}, 3",
            f"s_lshl_b32 s{S.T4}, s{S.T4}, 9",
            f"s_add_u32 s{S.SO}, s{S.SO}, s{S.T4}",
            f"s_add_u32 s{S.SO}, s{S.SO}, {WS_INT}",
            f"s_mov_b32 s{S.RWS}, s{S.PWS}", f"s_mov_b32 s{S.RWS+1}, s{S.PWS+1}", f"s_mov_b32 s{S.RWS+2}, {WS_BYTES:#x}",
            f"s_mov_b32 s{S.RWS+3}, 0x20000",
            f"s_add_u32 s{S.SO+1}, s{S.SO}, {32*CS}", f"s_mov_b32 s{S.T5}, 0xfffefffe", f"s_mov_b32 s{S.T4}, 0x07060302",
            f"v_mul_u32_u24 v{VST}, {CS}, v1", f"v_lshl_add_u32 v{VST}, v2, 4, v{VST}",
            ]
    fill = xors + misc
    for k in range(4):
        for t in range(4):
            if o.b0:
                if t == 0:
                    a(f"s_waitcnt lgkmcnt({6-2*k})")
            elif k == 0:
                a(f"s_waitcnt lgkmcnt({13-t})")
            elif k == 1:
                a(f"s_waitcnt lgkmcnt({7-t})")
            elif t == 0:
                a(f"s_waitcnt lgkmcnt({2 if k == 2 else 0})")
            c = "0" if k == 0 else V(ACC + 4 * t, 4)
            a(f"{MF} {V(ACC+4*t,4)}, {V(AOP+4*k,4)}, {V(CM+16*t+4*k,4)}, {c}")
            n = 4 if k < 2 else 2
            if k < 3 or t < 3:
                for _ in range(n):
                    if fill:
                        x = fill.pop(0)
                        if x != "TAGWAIT":
                            a(x)
    for x in fill:
        a(x)
    a("v_mov_b32 v12, 0")
    a("v_mov_b32 v13, 0")
    for h in range(2):
        for i in range(8):
            a(f"v_add_u32 v{ACC+8*h+i}, 0x10000, v{ACC+8*h+i}")
        for i in range(4):
            a(f"v_perm_b32 v{AOP+4*h+i}, v{ACC+8*h+4+i}, v{ACC+8*h+i}, s{S.T4}")
        for i in range(4):
            a(f"v_and_or_b32 v{AOP+4*h+i}, v{AOP+4*h+i}, s{S.T5}, v{28+i}")
        a(f"buffer_store_dwordx4 {V(AOP+4*h,4)}, v{VST}, {R4(S.RWS)}, s{S.SO+h} offen sc1")
    a(f"s_mov_b32 s{S.SPIN}, 0")
    a(f"s_mov_b32 s{S.ISZ}, 0")
    stamp(7)
    if o.only == "P1":
        a("s_endpgm")
    a.label("L_ta_end")

    gwait = [2]

    def gates(full):
        if full:
            a(f"s_waitcnt vmcnt({gwait[0]})")
        dots(GW)
        if full:
            a(f"s_lshl_b32 s{S.T0}, s{S.WAVE}, 11")
            a(f"v_add_u32 v6, s{S.T0}, v{VG16}")
            a(f"ds_write_b128 v6, {V(XR,4)} offset:{L_XT}")
            a(f"ds_write_b128 v6, {V(XR+4,4)} offset:{L_XT+1024}")
            a(f"v_lshl_add_u32 v7, v1, 6, s{S.T0}")
            a("v_lshl_add_u32 v7, v2, 3, v7")
            a("s_waitcnt lgkmcnt(0)")
            for r in range(2):
                a(f"ds_read2_b64 {V(XR+4*r,4)}, v7 offset0:{0} offset1:{4}" if False else f"ds_read_b64 {V(XR+4*r,2)}, v7 offset:{L_XT+1024*r}")
                a(f"ds_read_b64 {V(XR+4*r+2,2)}, v7 offset:{L_XT+1024*r+32}")
            vrow_setup()
        sigmoid(13, 12)
        rnd(13, 13)
        a("v_sub_f32 v14, 1.0, v13")
        rnd(14, 14)
        a(f"v_readlane_b32 s{S.T0}, v13, 0")
        a(f"v_readlane_b32 s{S.T1}, v13, 32")
        a(f"v_readlane_b32 s{S.T2}, v14, 0")
        a(f"v_readlane_b32 s{S.T3}, v14, 32")
        a(f"s_xor_b32 s{S.T4}, s{S.T0}, 0x80000000")
        a(f"s_cmp_eq_u32 s{S.TD}, 0")
        a(f"s_cselect_b32 s{S.T4}, 0, s{S.T4}")
        a(f"s_cselect_b32 s{S.T5}, 0, s{S.T1}")
        if not full:
            return
        a(f"v_mov_b32 v{CO}, s{S.T0}")
        a(f"v_mov_b32 v{CO+1}, s{S.T4}")
        a(f"v_mov_b32 v{CO+2}, s{S.T5}")
        a(f"v_mov_b32 v{CO+3}, s{S.T1}")
        a(f"v_mov_b32 v13, s{S.T2}")
        a(f"v_mov_b32 v14, s{S.T3}")
        a("s_waitcnt lgkmcnt(0)")
        for r in range(2):
            for i in range(4):
                a(f"v_lshlrev_b32 v{XG+8*r+2*i}, 16, v{XR+4*r+i}")
                a(f"v_and_b32 v{XG+8*r+2*i+1}, {HIM}, v{XR+4*r+i}")
            for i in range(8):
                a(f"v_mul_f32 v{XG+8*r+i}, v{13+r}, v{XG+8*r+i}")

    def addr_ur(wreg):
        a(f"s_mul_i32 s{S.T1}, s{wreg}, {2*UB}")
        a("v_bfe_u32 v7, v1, 1, 2")
        a("v_xor_b32 v7, v7, v2")
        a(f"v_lshl_add_u32 v7, v7, 4, s{S.T1}")
        a(f"v_lshl_add_u32 v{VUR0}, v1, 6, v7")
        a("v_sub_u32 v6, 16, v1")
        a("v_bfe_u32 v7, v6, 1, 2")
        a("v_xor_b32 v7, v7, v2")
        a(f"v_lshl_add_u32 v7, v7, 4, s{S.T1}")
        a(f"v_lshl_add_u32 v{VUR1}, v6, 6, v7")

    def addr_p2():
        a("v_lshlrev_b32 v6, 4, v1")
        a(f"v_lshl_add_u32 v{VLD}, v2, 13, v6")
        a(f"v_mul_u32_u24 v6, {4*UB}, v2")
        a("v_bfe_u32 v7, v1, 1, 2")
        a(f"v_xor_b32 v7, s{S.WAVE}, v7")
        a("v_lshl_add_u32 v7, v7, 4, v6")
        a(f"v_lshl_add_u32 v{VUW}, v1, 6, v7")
        a(f"s_lshl4_add_u32 s{S.T1}, s{S.WAVE}, 1024")
        a(f"v_mov_b32 v9, {L_DUMP - L_U2}")
        a(f"v_lshl_add_u32 v{VUX}, v0, 1, v9")
        a(f"v_lshl_add_u32 v7, v1, 1, s{S.T1}")
        a("s_mov_b32 exec_lo, 0x00ff00ff")
        a("s_mov_b32 exec_hi, 0x00ff00ff")
        a(f"v_add_u32 v{VUX}, v7, v6")
        a("s_mov_b64 exec, -1")

    EXP = 96

    def exp_setup():
        a("v_and_b32 v6, 3, v1")
        a("v_lshlrev_b32 v6, 4, v6")
        a(f"ds_read_b128 {V(EXP,4)}, v6 offset:{L_EXP}")
        a("s_waitcnt lgkmcnt(0)")

    def exp_make():
        a("v_lshlrev_b32 v6, 1, v1")
        a(f"v_lshrrev_b32 v6, v6, v{VTAG}")
        a("v_lshlrev_b32 v7, 15, v6")
        a("v_and_b32 v6, 1, v6")
        a("v_and_b32 v7, 0x10000, v7")
        a("v_or_b32 v6, v6, v7")
        a("v_lshlrev_b32 v7, 2, v1")
        a(f"ds_write_b32 v7, v6 offset:{L_EXP}")
        a("s_waitcnt lgkmcnt(0)")

    def const_d1():
        a("v_cvt_f32_u32 v6, v1")
        a(f"s_lshl_b32 s{S.T0}, s{S.WAVE}, 2")
        a(f"v_lshl_add_u32 v7, v2, 6, s{S.T0}")
        a("v_mul_f32 v6, 0x3b000000, v6")
        a("v_cvt_f32_u32 v7, v7")
        a("v_mul_f32 v15, 0x41800000, v6")
        a("v_mul_f32 v7, v7, v6")
        for ib in range(4):
            if ib:
                a("v_add_f32 v7, v7, v6")
            for j in range(4):
                src = "v7" if j == 0 else "v9"
                a(f"v_cos_f32 v{Cc+j}, {src}")
                a(f"v_sin_f32 v{Ss+j}, {src}")
                if j < 3:
                    a(f"v_add_f32 v9, {src}, v15")
            b = M1 + 12 * ib
            a(f"v_mov_b32 v{b+8}, 0")
            for p in range(2):
                a(f"v_cvt_pk_bf16_f32 v{b+p}, v{Cc+2*p}, v{Cc+2*p+1}")
                a(f"v_cvt_pk_bf16_f32 v{b+4+p}, -v{Ss+2*p}, -v{Ss+2*p+1}")
            for p in range(2):
                a(f"v_xor_b32 v{b+2+p}, v{b+p}, v{VSGN}")
                a(f"v_xor_b32 v{b+6+p}, v{b+4+p}, v{VSGN}")
        a("v_lshrrev_b32 v6, 1, v1")
        a(f"v_add_u32 v7, s{S.T0}, v6")
        a("v_and_b32 v9, 1, v1")
        a("v_lshl_add_u32 v7, v9, 3, v7")
        a("v_cvt_f32_u32 v7, v7")
        a("v_mul_f32 v7, 0x3d000000, v7")
        a("v_cos_f32 v7, v7")
        for ib in range(4):
            m = 0x00030003 << (2 * ib)
            a(f"s_mov_b32 exec_lo, {m:#x}")
            a(f"s_mov_b32 exec_hi, {m:#x}")
            a(f"v_cvt_pk_bf16_f32 v{M1+12*ib+8}, v7, -v7")
        a("s_mov_b64 exec, -1")
        for ib in range(4):
            for p in range(1, 4):
                a(f"v_mov_b32 v{M1+12*ib+8+p}, v{M1+12*ib+8}")

    def const_ga():
        a("v_lshrrev_b32 v6, 1, v1")
        a(f"s_lshl_b32 s{S.T0}, s{S.HH}, 10")
        a(f"s_add_u32 s{S.T0}, s{S.T0}, s{S.T1C}")
        a(f"v_lshl_add_u32 v6, v6, 7, s{S.T0}")
        a("v_and_b32 v7, 1, v1")
        a("v_lshlrev_b32 v9, 9, v7")
        l0, ld = a.L("g0"), a.L("gd")
        a(f"s_cmp_lg_u32 s{S.T1C}, 0")
        a(f"s_cbranch_scc1 {l0}")
        a("s_mov_b32 exec_lo, 0x00020002")
        a("s_mov_b32 exec_hi, 0x00020002")
        a("v_mov_b32 v6, 0x400")
        a("v_mov_b32 v9, 0")
        a("s_mov_b64 exec, -1")
        a.label(l0)
        a("v_lshlrev_b32 v7, 2, v2")
        a("v_mad_u32_u24 v9, v7, v6, v9")
        a("v_cvt_f32_u32 v6, v6")
        a("v_cvt_f32_u32 v9, v9")
        a("v_mul_f32 v6, 0x3a000000, v6")
        a("v_mul_f32 v9, 0x3a000000, v9")
        for jj in range(4):
            a(f"v_cos_f32 v{Cc+jj}, v9")
            a(f"v_sin_f32 v{Ss+jj}, v9")
            if jj < 3:
                a("v_add_f32 v9, v9, v6")
        a(f"s_and_b32 s{S.T1}, s{S.T1C}, 63")
        a.nop(1)
        for jj in range(4):
            a(f"v_cvt_pk_bf16_f32 v{GA+jj}, v{Cc+jj}, v{Ss+jj}")
        a(f"s_cmp_lg_u32 s{S.T1}, 0")
        a(f"s_cbranch_scc1 {ld}")
        a(f"s_lshr_b32 s{S.T1}, s{S.T1C}, 2")
        for jj in range(4):
            a(f"v_and_b32 v{GA+jj}, 0xffff, v{GA+jj}")
            a(f"v_lshlrev_b32 v{GA+jj}, s{S.T1}, v{GA+jj}")
        a.label(ld)

    def int_base():
        a(f"s_and_b32 s{S.T1}, s{S.T1C}, 63")
        a(f"s_mul_i32 s{S.L0}, s{S.T1}, {CS}")
        a(f"s_lshl_b32 s{S.T1}, s{S.WAVE}, 9")
        a(f"s_add_u32 s{S.L0}, s{S.L0}, s{S.T1}")
        a(f"s_add_u32 s{S.L0}, s{S.L0}, {WS_INT}")
        a(f"s_add_u32 s{S.L1}, s{S.L0}, 4096")

    def m2_addr():
        a(f"s_cmp_eq_u32 s{S.TD}, 0")
        a(f"s_cselect_b32 s{S.T0}, 0, 2048")
        a(f"v_add_u32 v4, s{S.T0}, v{VG16}")

    def int_loads(ah):
        for jj in range(4):
            so = S.L0 if jj < 2 else S.L1
            a(f"buffer_load_dwordx4 {V(LD+16*ah+4*jj,4)}, v{VLD}, {R4(S.RWS)}, s{so} offen offset:{(jj & 1)*2048 + ah*256} sc1")

    a.srd(S.ROUT, S.POUT, 0x200000)
    a(f"s_cmp_ge_u32 s{S.WAVE}, 4")
    a("s_cbranch_scc1 L_hi0")
    if o.prio & 1:
        a("s_setprio 2")
    pre = [lambda: (addr_p2(), int_base(), const_ga(), exp_setup()), const_d1, lambda: gates(True), lambda: (addr_ur(S.WAVE), m2_addr())]
    if o.gfirst:
        pre[1], pre[2] = pre[2], pre[1]
    for f in pre[:o.npre]:
        f()
    stamp(8)
    a(f"s_waitcnt vmcnt({0 if o.ackwait else 2})")
    if o.b3:
        a("s_barrier")
    if o.isleep0:
        a(f"s_sleep {o.isleep0}")
    hold("B4")
    stamp(9)
    if o.stag:
        a(f"s_cmp_lg_u32 s{S.HH}, 0")
        a("s_cbranch_scc1 L_stg1")
        int_loads(0)
        a(f"s_waitcnt vmcnt({4 - o.stag})")
        int_loads(1)
        a("s_branch L_stg2")
        a.label("L_stg1")
        int_loads(1)
        a(f"s_waitcnt vmcnt({4 - o.stag})")
        int_loads(0)
        a("s_waitcnt vmcnt(0)")
        a.label("L_stg2")
    else:
        int_loads(0)
        int_loads(1)
    gwait[0] = 10
    for f in pre[o.npre:]:
        f()
    gwait[0] = 2
    a.label("L_zjoin")
    stamp(10)
    for ah in range(2):
        a(f"s_waitcnt vmcnt({4-4*ah})")
        a.label(f"L_got{ah}")
        b = LD + 16 * ah
        da = DA1 if ah else DA0
        for ib in range(4):
            for jj in range(4):
                a(f"v_xor_b32 v{TP+4*ib+jj}, v{b+4*jj+ib}, v{EXP+ib}")
            if ib == 0:
                a(f"v_or3_b32 v6, v{TP}, v{TP+1}, v{TP+2}")
                a(f"v_or_b32 v6, v6, v{TP+3}")
            else:
                a(f"v_or3_b32 v6, v6, v{TP+4*ib}, v{TP+4*ib+1}")
                a(f"v_or3_b32 v6, v6, v{TP+4*ib+2}, v{TP+4*ib+3}")
            if ib == 3:
                a("v_and_b32 v6, 0x10001, v6")
                a("v_cmp_ne_u32 vcc, 0, v6")
            if not (ah == 1):
                a(f"{MF} {V(da+4*ib,4)}, {V(TP+4*ib,4)}, {V(GA,4)}, 0")
            else:
                a(f"{MF} {V(da+4*ib,4)}, {V(TP+4*ib,4)}, {V(GA,4)}, 0")
        a(f"s_cbranch_vccnz L_retry{ah}")
        a.label(f"L_fail{ah}")
    stamp(11)

    def d1(jb):
        a(f"{MF} {V(DA0+4*jb,4)}, {V(TP+4*jb,4)}, {V(M1+12*jb,4)}, 0")
        a(f"{MF} {V(DA1+4*jb,4)}, {V(TP+4*jb,4)}, {V(M1+12*jb+4,4)}, 0")
        a(f"{MF} {V(X16,4)}, {V(TP+4*jb,4)}, {V(M1+12*jb+8,4)}, {'0' if jb == 0 else V(X16,4)}")

    for ib in range(4):
        for p in range(4):
            s0 = (DA1 if p >= 2 else DA0) + 4 * ib + 2 * (p & 1)
            a(f"v_cvt_pk_bf16_f32 v{TP+4*ib+p}, v{s0}, v{s0+1}")
        if ib:
            d1(ib - 1)
    d1(3)
    for ib in range(3):
        for i in range(4):
            a(f"v_cvt_pk_bf16_f32 v{PK+4*i+ib}, v{DA0+4*ib+i}, v{DA1+4*ib+i}")
    for i in range(4):
        a(f"v_cvt_pk_bf16_f32 v{PK+4*i+3}, v{DA0+12+i}, v{DA1+12+i}")
        a(f"ds_write_b128 v{VUW}, {V(PK+4*i,4)} offset:{L_U2 + i*UB}")
    a(f"v_cvt_pk_bf16_f32 v{X16}, v{X16}, v{X16+1}")
    a(f"v_cvt_pk_bf16_f32 v{X16+2}, v{X16+2}, v{X16+3}")
    a(f"ds_write_b16 v{VUX}, v{X16} offset:{L_U2}")
    a(f"ds_write_b16_d16_hi v{VUX}, v{X16} offset:{L_U2+UB}")
    a(f"ds_write_b16 v{VUX}, v{X16+2} offset:{L_U2+2*UB}")
    a(f"ds_write_b16_d16_hi v{VUX}, v{X16+2} offset:{L_U2+3*UB}")
    a.label("L_d2")
    a(f"ds_read_b128 {V(M2,4)}, v{VG16} offset:{L_M2}")
    a(f"ds_read_b128 {V(M2+4,4)}, v{VG16} offset:{L_M2+1024}")
    a(f"ds_read_b128 {V(M2+8,4)}, v4 offset:{L_M2}")
    a(f"ds_read_b128 {V(M2+12,4)}, v4 offset:{L_M2+1024}")
    a(f"v_mov_b32 v9, {L_GKEY}")
    a(f"s_cmp_lg_u32 s{S.ISZ}, 0")
    a("s_waitcnt lgkmcnt(0)")
    a("s_cbranch_scc1 L_zsync")
    a("s_barrier")
    stamp(12)
    a("ds_read_b32 v6, v9")
    a(f"ds_read_b128 {V(UO,4)}, v{VUR0} offset:{L_U2}")
    a(f"ds_read_b128 {V(UO+4,4)}, v{VUR1} offset:{L_U2}")
    a(f"ds_read_b128 {V(UO+8,4)}, v{VUR0} offset:{L_U2+UB}")
    a(f"ds_read_b128 {V(UO+12,4)}, v{VUR1} offset:{L_U2+UB}")
    a(f"s_lshl_b32 s{S.T0}, s{S.TD}, 10")
    a(f"s_lshl_b32 s{S.T1}, s{S.TM}, 10")
    for k in range(4):
        a(f"s_waitcnt lgkmcnt({3-k})")
        a(f"{MF} {V(PQ+4*k,4)}, {V(UO+4*k,4)}, {V(M2+4*k,4)}, 0")
    a(f"v_readfirstlane_b32 s{S.GKEY}, v6")
    a(f"s_andn2_b32 s{S.IDX}, 0xffff, s{S.GKEY}")
    for r in range(2):
        for i in range(8):
            a(f"v_fmac_f32 v{XG+8*r+i}, v{CO+2*r}, v{PQ+i}")
    for r, (so, tr) in enumerate(((S.T0, S.TD), (S.T1, S.TM))):
        for i in range(8):
            a(f"v_fmac_f32 v{XG+8*r+i}, v{CO+2*r+1}, v{PQ+8+i}")
        for i in range(4):
            a(f"v_cvt_pk_bf16_f32 v{UO+4*r+i}, v{XG+8*r+2*i}, v{XG+8*r+2*i+1}")
        l = a.L("skip")
        if r == 0:
            stamp(6)
        a(f"s_cmp_eq_u32 s{tr}, s{S.IDX}")
        a(f"s_cbranch_scc1 {l}")
        a(f"v_permlane16_swap_b32 v{UO+4*r}, v{UO+4*r+2}")
        a(f"v_permlane16_swap_b32 v{UO+4*r+1}, v{UO+4*r+3}")
        a(f"buffer_store_dwordx4 {V(UO+4*r,4)}, v{VROW}, {R4(S.ROUT)}, s{so} offen{o.outpol}")
        a.label(l)
    a.label("L_tb_end")
    stamp(13)
    if o.stamps:
        a("s_waitcnt vmcnt(0)")
        stamp(15)
    endprog()

    for ah in range(2):
        a.label(f"L_retry{ah}")
        if o.stamps:
            a(f"s_add_u32 s{S.RC}, s{S.RC}, {1 << (8*ah)}")
        if o.rsleep:
            a(f"s_sleep {o.rsleep}")
        spin()
        a(f"s_cbranch_scc1 L_fail{ah}")
        int_loads(ah)
        a("s_waitcnt vmcnt(0)")
        a(f"s_branch L_got{ah}")

    a.label("L_hi0")
    if o.b3:
        if o.ackwait:
            a("s_waitcnt vmcnt(0)")
        a("s_barrier")
    a.label("L_hi1")
    if o.atouch:
        touch("L_tb", o.atouch, 4, 4)
        a(f"s_cmp_lg_u32 s{S.ISZ}, 0")
        a("s_cbranch_scc1 L_z0b")
    gates(True)
    addr_ur(S.WAVE)
    m2_addr()
    stamp(10)
    a("s_branch L_d2")

    a.label("L_ah")
    if o.prio & 2:
        a("s_setprio 3")
    if o.cpf:
        a(f"s_cmp_ge_u32 s{S.T1}, {o.cpf}")
        a("s_cbranch_scc1 L_nocpf")
        a(f"s_getpc_b64 s[{S.EX}:{S.EX+1}]")
        a.label("L_pc")
        a(f"s_sub_u32 s{S.EX}, s{S.EX}, L_pc - {name}")
        a(f"s_subb_u32 s{S.EX+1}, s{S.EX+1}, 0")
        a("v_lshlrev_b32 v6, 7, v0")
        a("v_add_u32 v7, 0x2000, v6")
        a(f"v_min_u32 v7, L_end - {name}, v7")
        a(f"v_mov_b32 v13, s{S.EX+1}")
        a(f"v_mov_b32 v15, s{S.EX+1}")
        a(f"v_add_co_u32 v12, vcc, s{S.EX}, v6")
        a.nop(2)
        a("v_addc_co_u32 v13, vcc, 0, v13, vcc")
        a(f"v_add_co_u32 v14, vcc, s{S.EX}, v7")
        a.nop(2)
        a("v_addc_co_u32 v15, vcc, 0, v15, vcc")
        a("global_load_dword v10, v[12:13], off")
        a("global_load_dword v11, v[14:15], off")
        a.label("L_nocpf")
    a(f"v_lshlrev_b32 v{VG16}, 4, v0")
    a(f"v_mov_b32 v{VTAG}, 0")
    a(f"v_mov_b32 v9, {L_KSL}")
    a(f"ds_write_b32 v9, v{VTAG}")
    a(f"s_mov_b32 s{S.KM}, 0x9E3779B1")
    a(f"s_cmp_ge_u32 s{S.T1}, {o.wpf}")
    a("s_waitcnt lgkmcnt(0)")
    a("s_cbranch_scc1 L_nowpf")
    a(f"global_load_dwordx4 v[32:35], v{VG16}, s[{S.PWR}:{S.PWR+1}]")
    a(f"global_load_dword v{VE}, v{VTAG}, s[{S.PWS}:{S.PWS+1}]")
    a(f"global_load_dwordx4 v[36:39], v{VG16}, s[{S.PGW}:{S.PGW+1}]")
    a.label("L_nowpf")
    stamp(1)
    a("v_lshlrev_b32 v14, 10, v0")
    a(f"s_lshl_b32 s{S.ID8}, s2, 3")
    a(f"s_add_u32 s{S.ID8}, s{S.ID8}, {WS_KEY}")
    ws_setup()

    if o.b0 == 2:
        a("s_barrier")
    const_d2()
    a(f"global_load_dword v{VE}, v{VTAG}, s[{S.PWS}:{S.PWS+1}]")
    a("s_waitcnt lgkmcnt(0)")
    stamp(2)
    if o.b0 == 1:
        a("s_barrier")
    a(f"v_mov_b32 v9, {L_KSL}")
    a("s_waitcnt vmcnt(0)")
    tag_make()
    exp_make()
    a(f"v_mov_b32 v9, {L_KSL}")
    stamp(3)
    a("s_barrier")
    a(f"ds_read_b32 v{VE}, v9")
    set_exec(RF * CF + RZ * CZ + R2 * C2 + RS)
    a("s_waitcnt lgkmcnt(0)")
    a(f"buffer_store_dwordx2 v[{VE}:{VTAG}], v14, {R4(S.RWS)}, s{S.ID8} offen sc1")
    a("s_mov_b64 exec, -1")
    stamp(5)
    if o.b1a:
        a("s_barrier")
    if o.only == "P1":
        a("s_endpgm")
    poll_setup(WS_KEY + 1024 * (RF * CF + RZ * CZ), R2, C2)
    a("s_waitcnt vmcnt(0)")
    if not o.gate and o.b3:
        a("s_barrier")
    if o.k2sleep0:
        a(f"s_sleep {o.k2sleep0}")
    stamp(8)
    poll_granules(VG16, 32, sleep=o.k2sleep)
    stamp(9)
    wave_max_key(32)
    lds_put(L_GKEY, 32)
    if o.gate:
        a(f"s_sleep {o.gate}")
        a("s_barrier")
        if o.hold and o.hold[0] == "endA":
            a(f"s_sub_u32 s{S.T0}, s2, {o.hold[2]}")
            a(f"s_cmp_ge_u32 s{S.T0}, {o.hold[3]}")
            a("s_cbranch_scc1 L_nohold")
            a("s_barrier")
            hold("endA")
            a.label("L_nohold")
        endprog()
    a("s_barrier")
    endprog()

    a.label("L_notA")
    if o.only == "AA":
        a("s_endpgm")
    a(f"s_lshl4_add_u32 s{S.FJ}, s{S.T0}, s{S.T1}")
    a(f"s_sub_u32 s{S.FJ}, s{S.FJ}, 16")
    a(f"s_cmp_ge_u32 s2, {NWG}")
    a("s_cbranch_scc1 L_end")
    a(f"s_cmp_lt_u32 s{S.T0}, 4")
    a("s_cbranch_scc1 L_F")
    a(f"s_mul_i32 s{S.FJ}, s{S.T0}, 12")
    a(f"s_add_u32 s{S.FJ}, s{S.FJ}, s{S.T1}")
    a(f"s_cmp_lt_u32 s{S.T1}, 28")
    a("s_cbranch_scc1 L_F")
    a(f"s_mov_b32 s{S.ISZ}, 1")
    a(f"s_lshl2_add_u32 s{S.Z}, s{S.T0}, s{S.T1}")
    a(f"s_sub_u32 s{S.Z}, s{S.Z}, 44")
    vrow_setup()
    a(f"v_lshlrev_b32 v{VG16}, 4, v0")
    sgn_setup()
    a("s_waitcnt lgkmcnt(0)")
    ws_setup()
    a.srd(S.ROUT, S.POUT, 0x200000)
    addr_p2()
    a(f"s_cmp_eq_u32 s{S.WAVE}, 8")
    a("s_cbranch_scc1 L_zh")
    a(f"s_cmp_ge_u32 s{S.WAVE}, 4")
    a("s_cbranch_scc1 L_z0")
    const_d1()
    a("s_branch L_z1")
    a.label("L_z0")
    if o.atouch:
        a("s_branch L_hi1")
    a.label("L_z0b")
    if o.ztouch:
        touch("L_tz", o.ztouch, 4, 4)
    a.label("L_z1")
    a(f"v_mov_b32 v9, {L_KSL}")
    a("v_mov_b32 v12, 0")
    a("v_mov_b32 v13, 0")
    a("s_barrier")
    a(f"ds_read_b64 v[{VE}:{VTAG}], v9")
    a(f"ds_read_b128 {V(GW,4)}, v{VG16} offset:{L_WV+1024}")
    a("s_waitcnt lgkmcnt(0)")
    a(f"v_readfirstlane_b32 s{S.GKEY}, v{VE}")
    a(f"s_andn2_b32 s{S.IDX}, 2047, s{S.GKEY}")
    a(f"s_and_b32 s{S.T0}, s{S.IDX}, 127")
    a(f"s_cmp_gt_u32 s{S.T0}, 64")
    a(f"s_cselect_b32 s{S.WHICH}, 1, 0")
    a(f"s_and_b32 s{S.T0}, s{S.IDX}, {1024 + 63}")
    a(f"s_cmp_eq_u32 s{S.T0}, 1024")
    a(f"s_cselect_b32 s{S.WHICH}, 1, s{S.WHICH}")
    a(f"s_sub_u32 s{S.T0}, 2048, s{S.IDX}")
    a(f"s_cmp_lg_u32 s{S.WHICH}, 0")
    a(f"s_cselect_b32 s{S.T0}, s{S.T0}, s{S.IDX}")
    a(f"s_cmp_eq_u32 s{S.T0}, 1024")
    a(f"s_cselect_b32 s{S.T0}, 0, s{S.T0}")
    a(f"s_and_b32 s{S.T1C}, s{S.T0}, 127")
    a(f"s_lshr_b32 s{S.HH}, s{S.T0}, 10")
    a(f"s_bfe_u32 s{S.WSEL}, s{S.T0}, 0x30007")
    rows_setup(S.WSEL)
    a(f"s_cmp_ge_u32 s{S.WAVE}, 4")
    a("s_cbranch_scc1 L_z4")
    int_base()
    if o.zisleep0:
        a(f"s_sleep {o.zisleep0}")
    stamp(9)
    int_loads(0)
    int_loads(1)
    const_ga()
    exp_setup()
    addr_ur(S.WSEL)
    m2_addr()
    a("v_lshlrev_b32 v6, 7, v1")
    a(f"v_lshl_add_u32 v15, v2, 4, v6")
    a("s_branch L_zjoin")
    a.label("L_z4")
    a(f"s_cmp_ge_u32 s{S.WAVE}, 6")
    a("s_cbranch_scc1 L_zend2")
    rows_load()
    a(f"s_sub_u32 s{S.T0}, s{S.WAVE}, 4")
    a(f"s_lshl1_add_u32 s{S.T1}, s{S.Z}, s{S.T0}")
    a(f"s_lshl_b32 s{S.T1}, s{S.T1}, 5")
    a("v_and_b32 v6, 7, v0")
    a(f"v_lshl_add_u32 v10, v6, 2, s{S.T1}")
    a(f"s_lshl_b32 s{S.T2}, s{S.IDX}, 10")
    a(f"v_add_u32 v7, s{S.T2}, v10")
    a(f"global_load_dword v35, v7, {PXS}")
    a("v_lshlrev_b32 v10, 1, v10")
    a("v_lshrrev_b32 v7, 3, v0")
    a("v_lshlrev_b32 v7, 8, v7")
    a("v_lshl_add_u32 v11, v6, 4, v7")
    a(f"s_mul_i32 s{S.SI0}, s{S.Z}, {PZ}")
    a(f"s_lshl_b32 s{S.T0}, s{S.T0}, 7")
    a(f"s_add_u32 s{S.SI0}, s{S.SI0}, s{S.T0}")
    a(f"s_add_u32 s{S.SI0}, s{S.SI0}, {WS_PART}")
    a(f"s_add_u32 s{S.SI1}, s{S.SI0}, {(o.pc-1)*PARTC}")
    a(f"s_and_b32 s{S.T0}, s{S.GKEY}, 0xffff0000")
    a(f"s_xor_b32 s{S.T1}, s{S.T0}, 0x80000000")
    a(f"s_xor_b32 s{S.T3}, s{S.T0}, 0xffff0000")
    a(f"s_bitcmp1_b32 s{S.T0}, 31")
    a(f"s_cselect_b32 s{S.T0}, s{S.T1}, s{S.T3}")
    a(f"v_mov_b32 v15, s{S.T0}")
    sigmoid(15, 15)
    rnd(15, 15)
    a("s_waitcnt vmcnt(0)")
    gates(False)
    a(f"s_cmp_lg_u32 s{S.WHICH}, 0")
    a(f"s_cselect_b32 s{S.T2}, s{S.T3}, s{S.T2}")
    a(f"s_cselect_b32 s{S.T0}, s{S.T5}, s{S.T0}")
    a(f"s_cselect_b32 s{S.T4}, s{S.T1}, s{S.T4}")
    a(f"v_xor_b32 v{VTAG}, s{S.IDX}, v{VTAG}")
    a(f"v_mov_b32 v36, s{S.T2}")
    a(f"v_mov_b32 v{CO}, s{S.T0}")
    a(f"v_mov_b32 v{CO+1}, s{S.T4}")
    a("v_lshlrev_b32 v34, 16, v35")
    a(f"v_and_b32 v35, {HIM}, v35")
    if o.psleep0:
        a(f"s_sleep {o.psleep0}")
    hold("pp")
    a(f"v_mov_b32 v9, {L_ZF}")
    a.label("L_tz_start")
    stamp(10)
    if o.psleep:
        a("s_branch L_zp1")
    a.label("L_zp")
    if o.psleep:
        a(f"s_sleep {o.psleep}")
        a.label("L_zp1")
    for i in range(7):
        if i and i % 2 == 0:
            a(f"s_add_u32 s{S.T0}, s{S.SI0}, {2048*i}")
        a(f"buffer_load_dwordx4 {V(40+4*i,4)}, v11, {R4(S.RWS)}, s{S.T0 if i >= 2 else S.SI0} offen offset:{2048*(i&1)} sc1")
    a(f"s_add_u32 s{S.SI0}, s{S.SI0}, {PARTC}")
    a(f"s_min_u32 s{S.SI0}, s{S.SI0}, s{S.SI1}")
    if o.stamps:
        a(f"s_add_u32 s{S.RC}, s{S.RC}, 256")
    spin()
    a("s_cbranch_scc1 L_zp_ok")
    for i in range(7):
        a(f"s_waitcnt vmcnt({6-i})")
        a(f"v_bitop3_b32 v{37 if i == 0 else 38 + (i & 1)}, v{41+4*i}, v{43+4*i}, v{VTAG} bitop3:0x7e")
        if i:
            a(f"v_add_f32 v40, v40, v{40+4*i}")
            a(f"v_add_f32 v42, v42, v{42+4*i}")
        if i and i % 2 == 0:
            a("v_or3_b32 v37, v37, v38, v39")
    a("v_cmp_ne_u32 vcc, 0, v37")
    a.nop(1)
    a("s_cbranch_vccnz L_zp")
    a.label("L_zp_ok")
    a("ds_read_b32 v12, v9")
    a(f"ds_read_b64 v[32:33], v10 offset:{L_XG2}")
    a(f"ds_read_b64 v[16:17], v10 offset:{L_XG2+2048}")
    a("v_lshrrev_b32 v11, 1, v10")
    a(f"s_lshl_b32 s{S.T2}, s{S.IDX}, 10")
    a("s_waitcnt vmcnt(0)")
    stamp(11)
    a(f"v_add_f32_dpp v40, v40, v40 row_ror:8 {DPPM}")
    a(f"v_add_f32_dpp v42, v42, v42 row_ror:8 {DPPM}")
    a.nop(1)
    a.nop(1)
    a("v_permlane16_swap_b32 v40, v42")
    a("v_add_f32 v40, v40, v42")
    a("v_mov_b32 v42, v40")
    a.nop(2)
    a("v_permlane32_swap_b32 v40, v42")
    a("v_add_f32 v40, v40, v42")
    a("v_mov_b32 v42, v40")
    a.nop(2)
    a("v_permlane16_swap_b32 v40, v42")
    a("v_cvt_pk_bf16_f32 v41, v40, v42")
    a("v_lshlrev_b32 v40, 16, v41")
    a(f"v_and_b32 v42, {HIM}, v41")
    a("v_mul_f32 v40, v40, v15")
    a("v_mul_f32 v42, v42, v15")
    a("v_cvt_pk_bf16_f32 v41, v40, v42")
    a("v_lshlrev_b32 v40, 16, v41")
    a(f"v_and_b32 v42, {HIM}, v41")
    a("v_add_f32 v40, v40, v34")
    a("v_add_f32 v42, v42, v35")
    a("v_cvt_pk_bf16_f32 v41, v40, v42")
    a("v_lshlrev_b32 v40, 16, v41")
    a(f"v_and_b32 v42, {HIM}, v41")
    a.label("L_zw")
    a("s_waitcnt lgkmcnt(0)")
    a("v_cmp_eq_u32 vcc, 0, v12")
    a(f"v_mul_f32 v32, v{CO}, v32")
    a(f"v_mul_f32 v33, v{CO}, v33")
    a("s_cbranch_vccz L_zw_ok")
    spin()
    a("s_cbranch_scc1 L_zw_ok")
    a("ds_read_b32 v12, v9")
    a(f"ds_read_b64 v[32:33], v10 offset:{L_XG2}")
    a(f"ds_read_b64 v[16:17], v10 offset:{L_XG2+2048}")
    a("s_branch L_zw")
    a.label("L_zw_ok")
    a(f"v_fmac_f32 v32, v{CO+1}, v16")
    a(f"v_fmac_f32 v33, v{CO+1}, v17")
    a("v_fmac_f32 v32, v40, v36")
    a("v_fmac_f32 v33, v42, v36")
    a("v_cvt_pk_bf16_f32 v32, v32, v33")
    a("s_mov_b64 exec, 0xff")
    a(f"buffer_store_dword v32, v11, {R4(S.ROUT)}, s{S.T2} offen{o.zpol}")
    a("s_mov_b64 exec, -1")
    stamp(13)
    a("s_barrier")
    endprog()

    a.label("L_zsync")
    a(f"v_mov_b32 v9, {L_ZC}")
    a("v_mov_b32 v6, 1")
    a("s_mov_b64 exec, 1")
    a("ds_add_u32 v9, v6")
    a("s_mov_b64 exec, -1")
    a(f"s_cmp_lg_u32 s{S.WAVE}, 0")
    a("s_cbranch_scc1 L_zend")
    a.label("L_zs")
    a("ds_read_b32 v6, v9")
    spin()
    a("s_waitcnt lgkmcnt(0)")
    a("s_cbranch_scc1 L_zs_ok")
    a("v_cmp_ne_u32 vcc, 4, v6")
    a.nop(1)
    a("s_cbranch_vccnz L_zs")
    a.label("L_zs_ok")
    stamp(12)
    a(f"ds_read_b128 {V(UO,4)}, v{VUR0} offset:{L_U2}")
    a(f"ds_read_b128 {V(UO+4,4)}, v{VUR1} offset:{L_U2}")
    a(f"ds_read_b128 {V(UO+8,4)}, v{VUR0} offset:{L_U2+UB}")
    a(f"ds_read_b128 {V(UO+12,4)}, v{VUR1} offset:{L_U2+UB}")
    for k in range(4):
        a(f"s_waitcnt lgkmcnt({3-k})")
        a(f"{MF} {V(PQ+4*k,4)}, {V(UO+4*k,4)}, {V(M2+4*k,4)}, 0")
    a.nop(3)
    for k in range(4):
        if k == 2:
            a.nop(2)
        a(f"ds_write_b128 v15, {V(PQ+4*k,4)} offset:{L_XG2 + 64*(k&1) + 2048*(k>>1)}")
    a(f"v_mov_b32 v9, {L_ZF}")
    a("s_waitcnt lgkmcnt(0)")
    a("ds_write_b32 v9, v9")
    a("s_waitcnt lgkmcnt(0)")
    stamp(13)
    a.label("L_zend")
    endprog()
    a.label("L_zend2")
    if o.hold and o.hold[0] == "end":
        a("s_barrier")
    hold("end")
    endprog()

    a.label("L_zh")
    a(f"v_mov_b32 v9, {L_ZF}")
    a("v_mov_b32 v6, 0")
    a("ds_write2_b32 v9, v6, v6 offset1:1")
    const_d2()
    a(f"s_mov_b32 m0, {L_WV+1024}")
    tag_load()
    a(f"global_load_lds_dwordx4 v{VG16}, s[{S.PGW}:{S.PGW+1}]")
    a("s_waitcnt vmcnt(0)")
    tag_make()
    exp_make()
    poll_setup(WS_KEY + 1024 * RF * CF, RZ, CZ)
    if o.zsleep0:
        a(f"s_sleep {o.zsleep0}")
    stamp(1)
    poll_granules(VG16, 32, sleep=o.zsleep)
    stamp(2)
    wave_max_key(32)
    lds_put(L_KSL, 32, tag=True)
    a("s_barrier")
    a(f"s_lshl_b32 s{S.T0}, s{S.Z}, 2")
    a(f"s_add_u32 s{S.T0}, s{S.T0}, {WS_ALIVE}")
    a("s_mov_b64 exec, 1")
    a(f"buffer_store_dword v{VTAG}, v0, {R4(S.RWS)}, s{S.T0} offen sc1")
    a("s_mov_b64 exec, -1")
    a(f"s_cmp_lg_u32 s{S.Z}, 0")
    a("s_cbranch_scc1 L_zend")
    a("s_mov_b64 exec, 0xffff")
    a("v_lshlrev_b32 v6, 2, v0")
    a(f"s_mov_b32 s{S.T0}, {WS_ALIVE}")
    a("s_waitcnt vmcnt(0)")
    a("s_sleep 24")
    a.label("L_za")
    a(f"buffer_load_dword v7, v6, {R4(S.RWS)}, s{S.T0} offen sc1")
    spin()
    a("s_waitcnt vmcnt(0)")
    a("s_cbranch_scc1 L_za_ok")
    a(f"v_cmp_ne_u32 vcc, v{VTAG}, v7")
    a.nop(1)
    a("s_cbranch_vccnz L_za")
    a.label("L_za_ok")
    a("s_mov_b64 exec, 1")
    a(f"v_add_u32 v9, 1, v{VE}")
    a("s_barrier")
    a(f"buffer_store_dword v9, v6, {R4(S.RWS)}, 0 offen sc1")
    a("s_mov_b64 exec, -1")
    a("s_branch L_zend")

    a.label("L_F")
    if o.only == "A":
        a("s_endpgm")
    WG_, WD_ = 32, 48
    a("v_lshlrev_b32 v5, 4, v0")
    a(f"s_cmp_eq_u32 s{S.WAVE}, 8")
    a("s_cbranch_scc1 L_fh")
    a(f"s_and_b32 s{S.T0}, s{S.FJ}, 3")
    a(f"s_lshr_b32 s{S.T1}, s{S.WAVE}, 1")
    a(f"s_lshl2_add_u32 s{S.L0}, s{S.T0}, s{S.T1}")
    a(f"s_mul_i32 s{S.T2}, s{S.L0}, {32*3584}")
    a(f"s_lshr_b32 s{S.L1}, s{S.FJ}, 2")
    a(f"s_lshl_b32 s{S.T3}, s{S.L1}, 7")
    a(f"s_add_u32 s{S.T2}, s{S.T2}, s{S.T3}")
    a("v_lshrrev_b32 v6, 3, v0")
    a("v_mul_u32_u24 v6, 3584, v6")
    a("v_and_b32 v7, 7, v0")
    a("v_bfe_u32 v8, v0, 4, 1")
    a("v_lshlrev_b32 v8, 2, v8")
    a("v_xor_b32 v4, v7, v8")
    a(f"v_lshl_add_u32 v7, v4, 4, s{S.T2}")
    a("v_add_u32 v3, v6, v7")
    a(f"s_lshl_b32 s{S.T4}, s{S.WAVE}, 12")
    a(f"s_mov_b32 m0, s{S.T4}")
    def w_dma():
        a(f"s_bitcmp1_b32 s{S.WAVE}, 0")
        a("s_waitcnt lgkmcnt(0)")
        a(f"s_cselect_b32 s{S.PWG}, s{S.PWU}, s{S.PWG}")
        a(f"s_cselect_b32 s{S.PWG+1}, s{S.PWU+1}, s{S.PWG+1}")
        if o.fdelay:
            a(f"s_sleep {o.fdelay}")
        for b in range(4):
            if b:
                a(f"s_add_u32 m0, s{S.T4}, {1024*b}")
                a(f"v_add_u32 v3, {8*3584}, v3")
            if o.wthr and b >= o.wthr:
                a(f"s_waitcnt vmcnt({o.wthr - 1})")
            a(f"global_load_lds_dwordx4 v3, s[{S.PWG}:{S.PWG+1}]{o.wpol}")
        ws_setup()
        stamp(1)

    if not o.flate:
        w_dma()
    a("v_bfe_u32 v6, v0, 2, 2")
    a("v_and_b32 v7, 3, v0")
    a("v_lshlrev_b32 v8, 3, v7")
    a("v_lshl_add_u32 v8, v2, 5, v8")
    a("v_and_b32 v9, 2, v6")
    a("v_lshlrev_b32 v9, 5, v9")
    a("v_xor_b32 v9, v9, v8")
    a("v_lshl_add_u32 v9, v6, 7, v9")
    a(f"v_add_u32 v9, s{S.T4}, v9")
    a(f"s_lshl_b32 s{S.T5}, s{S.WAVE}, 8")
    a("v_lshlrev_b32 v11, 2, v0")
    a(f"v_add_u32 v11, {L_RED}, v11")
    a(f"v_add_u32 v12, s{S.T5}, v11")
    a(f"s_lshl1_add_u32 s{S.T1}, s{S.L1}, s{S.T1}")
    a(f"s_lshl_b32 s{S.T2}, s{S.T1}, 15")
    a(f"s_and_b32 s{S.T3}, s{S.WAVE}, 1")
    a(f"s_lshl1_add_u32 s{S.T3}, s{S.T0}, s{S.T3}")
    a(f"s_lshl_b32 s{S.T5}, s{S.T3}, 7")
    a(f"s_add_u32 s{S.T2}, s{S.T2}, s{S.T5}")
    a("v_lshrrev_b32 v6, 3, v0")
    a(f"v_lshl_add_u32 v6, v6, 10, s{S.T2}")
    a("v_lshl_add_u32 v4, v4, 4, v6")
    a("v_lshrrev_b32 v6, 5, v0")
    a(f"v_mul_u32_u24 v13, {PZ}, v6")
    a("v_and_b32 v6, 31, v0")
    a("v_lshl_add_u32 v13, v6, 3, v13")
    a(f"s_mul_i32 s{S.T2}, s{S.T3}, {2*PZ}")
    a(f"s_lshl_b32 s{S.T1}, s{S.T1}, 8")
    a(f"s_add_u32 s{S.T2}, s{S.T2}, s{S.T1}")
    a(f"s_add_u32 s{S.T2}, s{S.T2}, {WS_PART}")
    a(f"s_lshl_b32 s{S.L0}, s{S.L0}, 6")
    a(f"s_lshl_b32 s{S.L1}, s{S.L1}, 12")
    a(f"s_add_u32 s{S.PO}, s{S.L1}, {WS_XCH}")
    a(f"s_add_u32 s{S.POL}, s{S.PO}, {(o.xc-1)*XCHC}")
    a(f"s_lshl_b32 s{S.T1}, s{S.T0}, 10")
    a(f"s_add_u32 s{S.L1}, s{S.PO}, s{S.T1}")
    a(f"v_mov_b32 v14, {L_FKEY}")
    a(f"s_lshr_b32 s{S.T1}, s{S.WAVE}, 1")
    a(f"s_lshl_b32 s{S.T1}, s{S.T1}, 9")
    a(f"v_lshl_add_u32 v15, v6, 4, s{S.T1}")
    a("v_lshrrev_b32 v6, 5, v0")
    a("v_lshl_add_u32 v15, v6, 10, v15")
    a(f"s_mov_b32 s{S.PO0}, s{S.PO}")
    a(f"s_mov_b32 s{S.L10}, s{S.L1}")
    a(f"s_mov_b32 s{S.T20}, s{S.T2}")
    a(f"s_mov_b32 s{S.FIN}, 0")

    if o.flate:
        w_dma()

    def wd_dma():
        l = a.L("nowd")
        a(f"s_cmp_ge_u32 s{S.WAVE}, 4")
        a(f"s_cbranch_scc1 {l}")
        for b in range(4):
            a(f"s_add_u32 m0, s{S.T4}, {L_WD + 1024*b}")
            if b:
                a("v_add_u32 v4, 0x2000, v4")
            else:
                a.nop(1)
            a(f"global_load_lds_dwordx4 v4, s[{S.PWD}:{S.PWD+1}]")
        a.label(l)

    if o.wdpos == 0:
        wd_dma()
    a("s_waitcnt vmcnt(0)")
    stamp(2)
    if o.fw0:
        a("s_barrier")
    if o.wdpos == 1:
        wd_dma()
    if o.xpre:
        for i in range(2):
            a(f"buffer_load_dwordx4 {V(64+4*i,4)}, v15, {R4(S.RWS)}, s{S.PO} offen offset:{2048*i} sc1")
    for k in range(8):
        a(f"ds_read_b64_tr_b16 {V(WG_+2*k,2)}, v9 offset:{L_W + k*512}")
    if o.ftouch:
        touch("L_tf", o.ftouch, 0, 8)
    a("s_waitcnt lgkmcnt(0)")
    a("s_barrier")
    a.label("L_tf_start")
    a("ds_read_b64 v[26:27], v14")
    a("s_waitcnt lgkmcnt(0)")
    a(f"v_readfirstlane_b32 s{S.FKEY}, v26")
    a.label("L_redo")
    a(f"s_andn2_b32 s{S.T0}, 2047, s{S.FKEY}")
    a(f"s_lshl_b32 s{S.T1}, s{S.T0}, 10")
    a(f"s_add_u32 s{S.T1}, s{S.T1}, s{S.L0}")
    a(f"s_load_dwordx16 s[{S.XS}:{S.XS+15}], {PXS}, s{S.T1}")
    stamp(5)
    a(f"v_xor_b32 v{VTAG}, s{S.T0}, v27")
    a(f"v_xor_b32 v29, s{S.T0}, v27")
    for r in (16, 17, 24, 25):
        a(f"v_mov_b32 v{r}, 0")
    a(f"s_mov_b32 s{S.PO}, s{S.PO0}")
    a(f"s_mov_b32 s{S.L1}, s{S.L10}")
    a(f"s_mov_b32 s{S.T2}, s{S.T20}")
    a(f"s_mov_b32 s{S.KM}, 0")
    a("s_waitcnt lgkmcnt(0)")
    for i in range(16):
        a(f"v_dot2c_f32_bf16 v{16+(i&1)}, s{S.XS+i}, v{WG_+i}")
    stamp(6)
    a.nop(3)
    a("v_add_f32 v16, v16, v17")
    a("ds_write_b32 v12, v16")
    a("s_waitcnt lgkmcnt(0)")
    a("s_barrier")
    a(f"s_lshl_b32 s{S.T0}, s{S.WAVE}, 4")
    a(f"s_lshl_b64 s[{S.EX}:{S.EX+1}], 0xffff, s{S.T0}")
    for i, (p, q) in enumerate(((0, 2), (4, 6), (1, 3), (5, 7))):
        a(f"ds_read2st64_b32 v[{16+2*i}:{17+2*i}], v11 offset0:{p} offset1:{q}")
    a("s_waitcnt lgkmcnt(2)")
    a("v_add_f32 v16, v16, v17")
    a("v_add_f32 v18, v18, v19")
    a("s_waitcnt lgkmcnt(0)")
    a("v_add_f32 v20, v20, v21")
    a("v_add_f32 v22, v22, v23")
    a("v_add_f32 v28, v16, v18")
    a(f"s_mov_b64 exec, s[{S.EX}:{S.EX+1}]")
    a("v_add_f32 v30, v20, v22")
    a(f"s_cmp_ge_u32 s{S.WAVE}, 4")
    a("s_cbranch_scc1 L_f5")
    a(f"buffer_store_dwordx4 v[28:31], v5, {R4(S.RWS)}, s{S.L1} offen{'' if o.xl2 else ' sc1'}")
    a("s_mov_b64 exec, -1")
    stamp(7)
    a("s_waitcnt vmcnt(1)")
    for k in range(8):
        a(f"ds_read_b64_tr_b16 {V(WD_+2*k,2)}, v9 offset:{L_WD + k*512}")
    if o.xsleep0:
        a(f"s_sleep {o.xsleep0}")
    stamp(8)
    a.label("L_fx")
    for i in range(2):
        a(f"buffer_load_dwordx4 {V(64+4*i,4)}, v15, {R4(S.RWS)}, s{S.PO} offen offset:{2048*i} sc1")
    if o.xl2:
        a(f"s_add_u32 s{S.KM}, s{S.KM}, 1")
        a(f"s_cmp_ge_u32 s{S.KM}, {o.xl2}")
        a(f"s_cselect_b32 s{S.T0}, {XCHC}, 0")
        a(f"s_add_u32 s{S.PO}, s{S.PO}, s{S.T0}")
    else:
        a(f"s_add_u32 s{S.PO}, s{S.PO}, {XCHC}")
    a(f"s_min_u32 s{S.PO}, s{S.PO}, s{S.POL}")
    if o.stamps:
        a(f"s_add_u32 s{S.RC}, s{S.RC}, 1")
    spin()
    a("s_cbranch_scc1 L_fx_ok")
    a("s_waitcnt vmcnt(1)")
    a(f"v_bitop3_b32 v20, v65, v67, v{VTAG} bitop3:0x7e")
    a("s_waitcnt vmcnt(0)")
    a("v_add_f32 v16, v64, v68")
    a("v_add_f32 v18, v66, v70")
    a(f"v_bitop3_b32 v21, v69, v71, v{VTAG} bitop3:0x7e")
    a("v_or_b32 v20, v20, v21")
    a("v_cmp_ne_u32 vcc, 0, v20")
    a("v_permlane32_swap_b32 v16, v18")
    a("s_cbranch_vccnz L_fxr")
    a.label("L_fx_ok")
    stamp(9)
    a("v_add_f32 v16, v16, v18")
    rnd(16, 16)
    a("v_mov_b32 v18, v16")
    sigmoid(17, 16)
    a("v_permlane32_swap_b32 v16, v18")
    a("v_mul_f32 v17, v17, v16")
    rnd(17, 17)
    a("v_mul_f32 v17, v17, v18")
    a.nop(2)
    a(f"v_mov_b32_dpp v18, v17 quad_perm:[1,0,3,2] {DPPM}")
    a("v_cvt_pk_bf16_f32 v17, v17, v18")
    a.nop(1)
    for i in range(16):
        a(f"v_readlane_b32 s{S.XS+i}, v17, {2*i}")
    a("s_waitcnt lgkmcnt(0)")
    for i in range(16):
        a(f"v_dot2c_f32_bf16 v{24+(i&1)}, s{S.XS+i}, v{WD_+i}")
    a.nop(3)
    a("v_add_f32 v30, v24, v25")
    for c in range(o.pc):
        if c:
            a(f"s_add_u32 s{S.T2}, s{S.T2}, {PARTC}")
        a(f"buffer_store_dwordx2 v[30:31], v13, {R4(S.RWS)}, s{S.T2} offen sc1")
    stamp(10)
    a.label("L_fend")
    a(f"s_cmp_lg_u32 s{S.FIN}, 0")
    a("s_cbranch_scc1 L_fexit")
    a("s_barrier")
    a("ds_read_b32 v26, v14 offset:8")
    a(f"s_mov_b32 s{S.FIN}, 1")
    a("s_waitcnt lgkmcnt(0)")
    a(f"v_readfirstlane_b32 s{S.T0}, v26")
    a(f"s_cmp_eq_u32 s{S.T0}, s{S.FKEY}")
    a(f"s_mov_b32 s{S.FKEY}, s{S.T0}")
    if o.stamps:
        a(f"s_cselect_b32 s{S.T1}, 0, 64")
        a(f"s_add_u32 s{S.RC}, s{S.RC}, s{S.T1}")
        a(f"s_cmp_eq_u32 s{S.T1}, 0")
    a("s_cbranch_scc0 L_redo")
    a.label("L_fexit")
    endprog()
    a.label("L_f5")
    for c in range(1, o.xc):
        a(f"s_add_u32 s{S.L1}, s{S.L1}, {XCHC}")
        a(f"buffer_store_dwordx4 v[28:31], v5, {R4(S.RWS)}, s{S.L1} offen sc1")
    a("s_mov_b64 exec, -1")
    a("s_branch L_fend")
    a.label("L_fxr")
    a("ds_read_b32 v26, v14 offset:8")
    a("s_waitcnt lgkmcnt(0)")
    a(f"v_readfirstlane_b32 s{S.T0}, v26")
    a(f"s_cmp_eq_u32 s{S.T0}, 0")
    a("s_cbranch_scc1 L_fx")
    a(f"s_cmp_eq_u32 s{S.T0}, s{S.FKEY}")
    a("s_cbranch_scc1 L_fx")
    a("s_branch L_fend")

    a.label("L_fh")
    a("s_waitcnt lgkmcnt(0)")
    if o.fesleep:
        a(f"s_sleep {o.fesleep}")
    tag_load()
    ws_setup()
    a(f"v_mov_b32 v14, {L_FKEY}")
    a("v_mov_b32 v6, 0")
    a("ds_write_b32 v14, v6 offset:8")
    if o.spec:
        poll_setup(WS_KEY + 1024 * (RF * CF + RZ * CZ + R2 * C2), 8, 1)
        a(f"s_sleep {o.spec}")
        a("s_waitcnt vmcnt(0)")
        tag_make()
        stamp(1)
        a(f"buffer_load_dwordx4 v[20:23], v5, {R4(S.RWS)}, s{S.PO} offen sc1")
        poll_setup(WS_KEY, RF, CF)
        a("s_waitcnt vmcnt(0)")
        stamp(2)
        a(f"v_cmp_ne_u32 vcc, v{VTAG}, v21")
        a(f"v_cmp_ne_u32 s[{S.EX}:{S.EX+1}], v{VTAG}, v23")
        a("s_mov_b64 exec, vcc")
        a("v_mov_b32 v20, 0")
        a(f"s_mov_b64 exec, s[{S.EX}:{S.EX+1}]")
        a("v_mov_b32 v22, 0")
        a("s_mov_b64 exec, -1")
        a(f"s_or_b64 s[{S.EY}:{S.EY+1}], vcc, s[{S.EX}:{S.EX+1}]")
        wave_max_key(20)
        lds_put(L_FKEY, 20, tag=True)
        a("s_barrier")
        a(f"s_cmp_eq_u64 s[{S.EY}:{S.EY+1}], 0")
        a("s_cbranch_scc1 L_fh2")
        if o.fsleep0:
            a(f"s_sleep {o.fsleep0}")
        stamp(3)
        poll_granules(5, 20, sleep=o.fsleep)
        stamp(4)
        wave_max_key(20)
        a.label("L_fh2")
        lds_put(L_FKEY + 8, 20)
    else:
        poll_setup(WS_KEY, RF, CF)
        if o.fsleep0:
            a(f"s_sleep {o.fsleep0}")
        a("s_waitcnt vmcnt(0)")
        tag_make()
        stamp(3)
        poll_granules(5, 20, sleep=o.fsleep)
        stamp(4)
        wave_max_key(20)
        lds_put(L_FKEY, 20, tag=True)
        a("s_barrier")
        lds_put(L_FKEY + 8, 20)
    a("s_barrier")
    endprog()
    a.label("L_end")
    a("s_endpgm")
    return name


def main():
    ap = argparse.ArgumentParser()
    ap.add_argument("-o", required=True)
    for k, d in dict(stamps=0, pc=1, xc=2, zsleep=8, zsleep0=24, psleep=0, psleep0=22, rsleep=3, ackwait=1, hipre=0, tlate=1,
                     mode=0, k2ack=1, k2sleep0=6, zk2sleep0=0, k2sleep=5, fbar=0, cpf=2, wsoff=0, flate=1, b1a=1, skew=0, gate=1, lds=0, nsgpr=102, prio=1, stag=0, spec=0, b0=2, wthr=0, xpre=0, atouch=10, ftouch=8, xl2=5, npre=3, gfirst=0, isleep0=0, zisleep0=5, b3=1, ztouch=8, zstep=128, touch=0, wdpos=1, wpf=2, fesleep=0, fw0=0, xack=0, fdelay=0, xsleep0=3, fsleep0=37, fsleep=4, spin=17).items():
        ap.add_argument("--" + k, type=int, default=d)
    for k in ("wpol", "outpol", "zpol", "only"):
        ap.add_argument("--" + k, default="")
    ap.add_argument("--mf", default="8,2")
    ap.add_argument("--mz", default="1,3")
    ap.add_argument("--m2", default="8,2")
    ap.add_argument("--hold", default="")
    o = ap.parse_args()
    if o.hold:
        o.hold = o.hold.split(":")
    for k in ("mf", "mz", "m2"):
        setattr(o, k, [int(v) for v in getattr(o, k).split(",")])
    for k in ("wpol", "outpol", "zpol"):
        setattr(o, k, (" " + getattr(o, k)) if getattr(o, k) else "")
    a = Asm()
    name = gen(a, o)
    if o.touch:
        insert_stubs(a, [("L_ta_start", "L_ta_end", "L_ta", "L_taback", 9)], step=o.touch)
    reg = []
    if o.atouch:
        reg.append(("L_zjoin", "L_tb_end", "L_tb", "L_tbback", o.atouch))
    if o.ztouch:
        reg.append(("L_tz_start", "L_zend", "L_tz", "L_tzback", o.ztouch))
    if o.ftouch:
        reg.append(("L_tf_start", "L_fend", "L_tf", "L_tfback", o.ftouch))
    if reg:
        insert_stubs(a, reg, step=o.zstep)
    finish(a, name, NVGPR, o.nsgpr, NWG, 576, o.lds or LDS_BYTES, o.o)


main()
```

```python
import argparse
from lib import *

NA, NF, NZ = 128, 112, 16
NWG = NA + NF + NZ
WS_E = 0
WS_ALIVE = 4096
WS_KEY = 64 << 10
WS_KEY2 = 128 << 10
WS_XCH = 192 << 10
XCHC = 28 * 4096
WS_PART = 704 << 10
PZ = 56 * 256
PARTC = NZ * PZ
WS_INT = 2 << 20
CS = 32768 + 256
WS_STAMP = 8 << 20
WS_BYTES = 16 << 20
L_TILE = 0
L_U2 = 16384
L_CT = L_U2
UB = 17 * 64
L_MISC = L_U2 + 16 * UB
L_KSL = L_MISC
L_GKEY = L_MISC + 64
L_ZC = L_MISC + 76
L_ZF = L_MISC + 72
L_EXP = L_MISC + 128
L_DUMP = L_MISC + 192
L_XG2 = L_DUMP + 4 * UB + 256
L_M2 = L_XG2 + 4096
L_WV = L_M2 + 4096
L_XT = L_WV + 2048
L_W = 0
L_WD = 32768
L_RED = L_WD + 16384
L_FKEY = L_RED + 2048
LDS_BYTES = 84 * 1024
MF = "v_mfma_f32_16x16x32_bf16"
LOG2E = 0x3fb8aa3b
DPPM = "row_mask:0xf bank_mask:0xf"
HIM = "0xffff0000"
NVGPR = 168


class S:
    WAVE = 3
    PX = 4
    T0, T1, T2, T3, T4, T5 = 6, 7, 8, 9, 10, 11
    EX = 12
    EY = 14
    PWR, PWG, PWU, PWD, PGW, POUT, PDBG, PWS = 16, 18, 20, 22, 24, 26, 28, 30
    L0, L1, SPT, PIE = 32, 33, 34, 35
    RWS, ROUT = 36, 40
    XS = 44
    GKEY, WSEL, WHICH, Z = 44, 45, 46, 47
    SI0, SI1, ID8, BLK = 48, 49, 50, 51
    IDX, ISZ, TC = 54, 55, 53
    SO = 44
    T1C, HH, TD, TM = 56, 57, 58, 59
    FJ, PO, POL, RC, KM, SPIN = 60, 61, 62, 63, 64, 65
    PO0, L10, T20, FKEY, FIN = 40, 41, 42, 43, 35
    ST = 68


def gen(a, o):
    global WS_KEY, WS_XCH, WS_PART, WS_INT, WS_ALIVE, WS_BYTES
    WS_KEY += o.wsoff << 20
    WS_XCH += o.wsoff << 20
    WS_PART += o.wsoff << 20
    WS_INT += o.wsoff << 20
    WS_ALIVE += o.wsoff << 20
    WS_BYTES = max(WS_BYTES, (o.wsoff + 8) << 20)
    name = NAME + "_kernel"
    kernel_head(a, name)
    VE, VTAG = 30, 31
    PXS = f"s[{S.PX}:{S.PX+1}]"

    def stamp(i):
        if o.stamps:
            a(f"s_memrealtime s[{S.ST+2*i}:{S.ST+2*i+1}]")

    def hold(cp):
        if o.hold and o.hold[0] == cp:
            l = a.L("hold")
            a.label(l)
            a("s_sleep 1")
            a("s_memrealtime s[100:101]")
            a("s_waitcnt lgkmcnt(0)")
            a("s_sub_u32 s100, s100, s66")
            a(f"s_cmp_lt_u32 s100, {o.hold[1]}")
            a(f"s_cbranch_scc1 {l}")

    def touch(pre, n, first, step, back=None, tail=None):
        a("s_mov_b64 exec, 0")
        a(f"s_sub_u32 s{S.TC}, s{S.WAVE}, {first + step}")
        a.label(f"{pre}back")
        a(f"s_add_u32 s{S.TC}, s{S.TC}, {step}")
        for k in range(n):
            a(f"s_cmp_eq_u32 s{S.TC}, {k}")
            a(f"s_cbranch_scc1 {pre}{k}")
        a("s_mov_b64 exec, -1")

    def endprog():
        if o.stamps:
            a("s_waitcnt lgkmcnt(0)")
            a(f"s_add_u32 s{S.ST+28}, s{S.RC}, s{S.ST+30}")
            for i in range(16):
                a(f"v_writelane_b32 v166, s{S.ST+2*i}, {i}")
            a("s_mov_b64 exec, 0xffff")
            a(f"s_lshl4_add_u32 s{S.T0}, s2, s{S.WAVE}")
            a(f"s_lshl_b32 s{S.T0}, s{S.T0}, 7")
            a(f"s_add_u32 s{S.T0}, s{S.T0}, {WS_STAMP}")
            a(f"v_lshl_add_u32 v165, v0, 3, s{S.T0}")
            a("v_mov_b32 v167, 0")
            a(f"global_store_dwordx2 v165, v[166:167], s[{S.PWS}:{S.PWS+1}]")
        a("s_endpgm")

    def spin():
        a(f"s_add_u32 s{S.SPIN}, s{S.SPIN}, 1")
        a(f"s_lshr_b32 s{S.SPT}, s{S.SPIN}, {o.spin}")

    def poll_setup(base, R, C):
        a(f"s_and_b32 s{S.PO}, s2, {R-1}")
        a(f"s_mul_i32 s{S.PO}, s{S.PO}, {1024*C}")
        a(f"s_add_u32 s{S.PO}, s{S.PO}, {base}")
        a(f"s_add_u32 s{S.POL}, s{S.PO}, {1024*(C-1)}")

    def set_exec(n):
        if n >= 64:
            a("s_mov_b64 exec, -1")
        elif n <= 31:
            a(f"s_mov_b64 exec, {(1 << n) - 1:#x}")
        else:
            a("s_mov_b32 exec_lo, -1")
            a(f"s_mov_b32 exec_hi, {(1 << (n - 32)) - 1:#x}")

    RS = 8 if o.spec else 0
    RF, CF = o.mf
    RZ, CZ = o.mz
    R2, C2 = o.m2
    assert RF * CF + RZ * CZ + R2 * C2 + RS <= 64

    def poll_granules(vaddr, vd, sleep=0, step=1024):
        l = a.L("poll")
        if sleep:
            a(f"s_branch {l}_1")
        a.label(l)
        if sleep:
            a(f"s_sleep {sleep}")
            a.label(f"{l}_1")
        a(f"buffer_load_dwordx4 {V(vd,4)}, v{vaddr}, {R4(S.RWS)}, s{S.PO} offen sc1")
        a(f"s_add_u32 s{S.PO}, s{S.PO}, {step}")
        a(f"s_min_u32 s{S.PO}, s{S.PO}, s{S.POL}")
        if o.stamps:
            a(f"s_add_u32 s{S.RC}, s{S.RC}, 1")
        spin()
        a("s_waitcnt vmcnt(0)")
        a(f"s_cbranch_scc1 {l}_ok")
        a(f"v_cmp_ne_u32 vcc, v{VTAG}, v{vd+1}")
        a(f"v_cmp_ne_u32 s[{S.EX}:{S.EX+1}], v{VTAG}, v{vd+3}")
        a(f"s_or_b64 vcc, vcc, s[{S.EX}:{S.EX+1}]")
        a(f"s_cbranch_vccnz {l}")
        a.label(f"{l}_ok")

    def wave_max_key(vd):
        a(f"v_max_u32 v{vd}, v{vd}, v{vd+2}")
        for r in ("row_ror:8", "row_ror:4", "row_ror:2", "row_ror:1"):
            a.nop(2)
            a(f"v_max_u32_dpp v{vd}, v{vd}, v{vd} {r} {DPPM}")
        a.nop(2)
        a(f"v_max_u32_dpp v{vd}, v{vd}, v{vd} row_bcast:15 row_mask:0xa bank_mask:0xf")
        a.nop(2)
        a(f"v_max_u32_dpp v{vd}, v{vd}, v{vd} row_bcast:31 row_mask:0xc bank_mask:0xf")

    def lds_put(addr, v, tag=False):
        a(f"v_mov_b32 v9, {addr}")
        a("s_mov_b32 exec_lo, 0")
        a("s_brev_b32 exec_hi, 1")
        if tag:
            a(f"ds_write2_b32 v9, v{v}, v{VTAG} offset1:1")
        else:
            a(f"ds_write_b32 v9, v{v}")
        a("s_mov_b64 exec, -1")
        a("s_waitcnt lgkmcnt(0)")

    def sigmoid(d, s):
        a(f"v_mul_f32 v{d}, {LOG2E | 0x80000000:#x}, v{s}")
        a(f"v_exp_f32 v{d}, v{d}")
        a.nop(1)
        a(f"v_add_f32 v{d}, 1.0, v{d}")
        a(f"v_rcp_f32 v{d}, v{d}")
        a.nop(1)

    def rnd(d, s):
        a(f"v_cvt_pk_bf16_f32 v{d}, v{s}, v{s}")
        a(f"v_and_b32 v{d}, {HIM}, v{d}")

    def ws_setup():
        a.srd(S.RWS, S.PWS, WS_BYTES)
        a(f"s_mov_b32 s{S.SPIN}, 0")

    def tag_load():
        a(f"v_mov_b32 v{VTAG}, 0")
        a(f"global_load_dword v{VE}, v{VTAG}, s[{S.PWS}:{S.PWS+1}]")
        a(f"s_mov_b32 s{S.KM}, 0x9E3779B1")

    def tag_make():
        a(f"v_mul_lo_u32 v{VTAG}, v{VE}, s{S.KM}")
        a(f"v_add_u32 v{VTAG}, 0x7F4A7C15, v{VTAG}")

    a(f"s_load_dwordx2 s[{S.PX}:{S.PX+1}], s[0:1], {KA_X}")
    a(f"s_load_dwordx16 s[16:31], s[0:1], {KA_WR}")
    if o.stamps:
        for i in range(1, 16):
            a(f"s_mov_b32 s{S.ST+2*i}, 0")
        a(f"s_mov_b32 s{S.RC}, 0")
    stamp(0)
    if o.hold or o.probe >= 0:
        a("s_memrealtime s[66:67]")
    if o.skew:
        a("s_and_b32 s6, s2, 7")
        a("s_cmp_lg_u32 s6, 5")
        a("s_cbranch_scc1 L_noskew")
        a(f"s_sleep {o.skew}")
        a.label("L_noskew")
    a("v_lshrrev_b32 v1, 6, v0")
    a("v_and_b32 v0, 63, v0")
    a(f"v_readfirstlane_b32 s{S.WAVE}, v1")
    a("v_and_b32 v1, 15, v0")
    a("v_lshrrev_b32 v2, 4, v0")
    a(f"s_and_b32 s{S.T0}, s2, 7")
    a(f"s_sub_u32 s{S.WAVE}, s{S.WAVE}, 1")
    a(f"s_min_u32 s{S.WAVE}, s{S.WAVE}, 8")
    a(f"s_lshr_b32 s{S.T1}, s2, 3")
    a(f"s_cmp_ge_u32 s2, {NA}")
    a("s_cbranch_scc1 L_notA")
    if o.only == "F":
        a("s_endpgm")

    VROW, VG16, VSGN, VTR, VST = 3, 5, 8, 10, 11
    VLD, VUW, VUX, VUR0, VUR1 = 10, 11, 28, 29, 30
    XR, WR, GW, CO = 16, 24, 24, 24
    CM, AOP, ACC = 32, 96, 112
    LD, DA0, DA1, TP, X16, PK = 32, 64, 32, 80, 96, 48
    M1, GA, XG = 100, 148, 152
    Cc, Ss = 64, 68
    UO, PQ, M2 = 32, 48, 64

    def rows_setup(wreg):
        a(f"s_lshl3_add_u32 s{S.T5}, s{S.HH}, s{wreg}")
        a(f"s_lshl_b32 s{S.T5}, s{S.T5}, 7")
        a(f"s_add_u32 s{S.TD}, s{S.T5}, s{S.T1C}")
        a(f"s_sub_u32 s{S.TM}, 2048, s{S.TD}")
        a(f"s_cmp_eq_u32 s{S.TD}, 0")
        a(f"s_cselect_b32 s{S.TM}, 1024, s{S.TM}")
        a(f"s_lshl_b32 s{S.T4}, s{S.TD}, 10")
        a(f"s_lshl_b32 s{S.T5}, s{S.TM}, 10")
        a(f"v_add_u32 v6, s{S.T4}, v{VG16}")
        a(f"v_add_u32 v7, s{S.T5}, v{VG16}")

    def vrow_setup():
        a("v_and_b32 v6, 1, v2")
        a("v_lshlrev_b32 v6, 5, v6")
        a("v_lshl_add_u32 v6, v1, 6, v6")
        a("v_lshrrev_b32 v7, 1, v2")
        a(f"v_lshl_add_u32 v{VROW}, v7, 4, v6")

    def rows_load():
        a(f"global_load_dwordx4 {V(XR,4)}, v6, {PXS}")
        a(f"global_load_dwordx4 {V(XR+4,4)}, v7, {PXS}")

    def sgn_setup():
        a(f"v_lshlrev_b32 v{VSGN}, 31, v1")
        a(f"v_lshrrev_b32 v9, 16, v{VSGN}")
        a(f"v_or_b32 v{VSGN}, v{VSGN}, v9")

    def sgn_setup2():
        a(f"v_lshlrev_b32 v{VSGN}, 31, v1")
        a(f"v_lshrrev_b32 v14, 16, v{VSGN}")
        a(f"v_or_b32 v{VSGN}, v{VSGN}, v14")

    def tile_ids():
        a(f"s_bitcmp1_b32 s{S.T1}, 3")
        a(f"s_cselect_b32 s{S.T2}, s{S.T3}, s{S.T2}")
        a(f"s_and_b32 s{S.T3}, s{S.T1}, 7")
        a(f"s_lshl3_add_u32 s{S.BLK}, s{S.T2}, s{S.T3}")
        a(f"s_lshl_b32 s{S.PIE}, s{S.T2}, 5")
        a(f"s_add_u32 s{S.PIE}, s{S.PIE}, s{S.T3}")
        a(f"s_lshl_b32 s{S.PIE}, s{S.PIE}, 6")

    def vst_setup():
        a(f"v_mul_u32_u24 v{VST}, {CS}, v1")
        a(f"v_lshl_add_u32 v{VST}, v2, 4, v{VST}")

    def const_d2():
        R = 40
        a("v_lshlrev_b32 v6, 2, v2")
        a("v_cvt_f32_u32 v7, v1")
        a("v_cvt_f32_u32 v6, v6")
        a("v_mul_f32 v7, 0x3d800000, v7")
        for hf in range(2):
            if hf:
                a("v_add_f32 v7, 0x3d800000, v7")
            a("v_mul_f32 v9, v6, v7")
            for jj in range(4):
                a(f"v_cos_f32 v{Cc+jj}, v9")
                a(f"v_sin_f32 v{Ss+jj}, v9")
                if jj < 3:
                    a("v_add_f32 v9, v9, v7")
            a.nop(1)
            for jj in range(4):
                if hf == 0:
                    a(f"v_cvt_pk_bf16_f32 v{R+jj}, v{Cc+jj}, v{Ss+jj}")
                    a(f"v_cvt_pk_bf16_f32 v{R+8+jj}, -v{Ss+jj}, v{Cc+jj}")
                else:
                    a(f"v_cvt_pk_bf16_f32 v{R+4+jj}, v{Cc+jj}, -v{Ss+jj}")
                    a(f"v_cvt_pk_bf16_f32 v{R+12+jj}, -v{Ss+jj}, -v{Cc+jj}")
        for k in range(4):
            a(f"ds_write_b128 v{VG16}, {V(R+4*k,4)} offset:{L_M2 + 1024*k}")

    if o.touch:
        a("s_mov_b64 exec, 0")
        for k in range(9):
            a(f"s_cmp_eq_u32 s{S.WAVE}, {(k + 8) % 9}")
            a(f"s_cbranch_scc1 L_ta{k}")
        a.label("L_taback")
        a("s_mov_b64 exec, -1")
        a.label("L_ta_start")
    a(f"s_add_u32 s{S.T2}, s{S.T0}, 1")
    a(f"s_sub_u32 s{S.T3}, 15, s{S.T0}")
    a(f"s_cmp_eq_u32 s{S.WAVE}, 8")
    a("s_cbranch_scc1 L_ah")
    a(f"s_and_b32 s{S.HH}, s{S.T1}, 1")
    a(f"s_bitcmp1_b32 s{S.T1}, 1")
    a(f"s_cselect_b32 s{S.T4}, s{S.T3}, s{S.T2}")
    a(f"s_lshr_b32 s{S.T5}, s{S.T1}, 2")
    a(f"s_lshl4_add_u32 s{S.T1C}, s{S.T5}, s{S.T4}")
    a(f"v_lshlrev_b32 v{VG16}, 4, v0")
    a(f"v_mov_b32 v{VROW}, 0")
    a(f"s_cmp_lg_u32 s{S.T0}, 7")
    a("s_cbranch_scc1 L_k7")
    a(f"s_lshr_b32 s{S.T5}, s{S.T1}, 1")
    a(f"s_lshl3_add_u32 s{S.T1C}, s{S.T5}, 8")
    a(f"s_mov_b32 s{S.T2}, 0")
    a(f"s_cmp_eq_u32 s2, 127")
    a(f"s_cselect_b32 s{S.T1C}, 0, s{S.T1C}")
    a(f"s_cselect_b32 s{S.HH}, 0, s{S.HH}")
    a.label("L_k7")
    rows_setup(S.WAVE)
    a("s_waitcnt lgkmcnt(0)")
    rows_load()
    stamp(1)
    if o.b0 == 2:
        a("s_barrier")
    tile_ids()

    def tile_dma():
        a(f"s_lshl_b32 s{S.T4}, s{S.WAVE}, 11")
        a(f"s_add_u32 s{S.T5}, s{S.T4}, s{S.BLK}")
        a(f"s_lshl_b32 s{S.T5}, s{S.T5}, 7")
        a(f"s_mov_b32 m0, s{S.T4}")
        a("v_and_b32 v9, 7, v0")
        a("v_bfe_u32 v13, v0, 4, 1")
        a("v_xor_b32 v9, v9, v13")
        a("v_lshrrev_b32 v13, 3, v0")
        a(f"v_lshl_add_u32 v9, v9, 4, s{S.T5}")
        a("v_lshl_add_u32 v13, v13, 14, v9")
        a(f"global_load_lds_dwordx4 v13, {PXS}")
        a(f"s_add_u32 m0, s{S.T4}, 1024")
        a("v_add_u32 v13, 0x20000, v13")
        a(f"global_load_lds_dwordx4 v13, {PXS}")
        stamp(2)

    if not o.tlate:
        tile_dma()
    C1, S1, K = AOP, AOP + 4, AOP + 8
    a(f"s_lshr_b32 s{S.T0}, s{S.WAVE}, 2")
    a(f"s_and_b32 s{S.T1}, s{S.WAVE}, 1")
    a(f"s_bfe_u32 s{S.T2}, s{S.WAVE}, 0x10001")
    a(f"v_lshl_add_u32 v6, s{S.T0}, 4, v1")
    a(f"s_lshl3_add_u32 s{S.T3}, s{S.T2}, s{S.T1}")
    a(f"s_lshl_b32 s{S.T3}, s{S.T3}, 2")
    a("v_cvt_f32_u32 v6, v6")
    a(f"v_lshl_add_u32 v7, v2, 3, s{S.T3}")
    a("v_mul_f32 v6, 0x3c000000, v6")
    a("v_cvt_f32_u32 v7, v7")
    a("v_mul_f32 v7, v7, v6")
    for j in range(4):
        a(f"v_cos_f32 v{C1+j}, v7")
        a(f"v_sin_f32 v{S1+j}, v7")
        if j < 3:
            a("v_add_f32 v7, v7, v6")
    if o.tlate == 2:
        a(f"global_load_dwordx4 {V(WR,4)}, v{VG16}, s[{S.PWR}:{S.PWR+1}]")
        tile_dma()
    a(f"s_lshl_b32 s{S.T4}, s{S.T0}, 13")
    a(f"s_lshl_b32 s{S.T5}, s{S.T2}, 10")
    a(f"s_lshl3_add_u32 s{S.T5}, s{S.T1}, s{S.T5}")
    a(f"v_add_u32 v15, s{S.T4}, v{VG16}")
    a(f"v_add_u32 v9, s{S.T5}, v15")
    a(f"v_cvt_pk_bf16_f32 v{K+0}, v{C1}, v{C1+1}")
    a(f"v_cvt_pk_bf16_f32 v{K+1}, v{C1+2}, v{C1+3}")
    a(f"v_cvt_pk_bf16_f32 v{K+2}, -v{S1}, -v{S1+1}")
    a(f"v_cvt_pk_bf16_f32 v{K+3}, -v{S1+2}, -v{S1+3}")
    a("v_cmp_eq_f32 vcc, 0, v6")
    a(f"v_cvt_pk_bf16_f32 v{K+4}, v{C1}, -v{S1+1}")
    a(f"v_cvt_pk_bf16_f32 v{K+5}, -v{C1+2}, v{S1+3}")
    a(f"v_cvt_pk_bf16_f32 v{K+6}, -v{S1}, -v{C1+1}")
    a(f"v_cvt_pk_bf16_f32 v{K+7}, v{S1+2}, v{C1+3}")
    a(f"ds_write_b64 v9, {V(K,2)} offset:{L_CT}")
    a(f"ds_write_b64 v9, {V(K+4,2)} offset:{L_CT+4096}")
    a(f"ds_write_b64 v9, {V(K+6,2)} offset:{L_CT+6144}")
    a("s_mov_b64 exec, vcc")
    a(f"v_mov_b32 v{K+2}, 0xbf803f80")
    a(f"v_mov_b32 v{K+3}, 0xbf803f80")
    a("s_mov_b64 exec, -1")
    a(f"ds_write_b64 v9, {V(K+2,2)} offset:{L_CT+2048}")
    if o.tlate != 2:
        a(f"global_load_dwordx4 {V(WR,4)}, v{VG16}, s[{S.PWR}:{S.PWR+1}]")
    if o.tlate == 1:
        tile_dma()
    a("v_mov_b32 v12, 0")
    a("v_mov_b32 v13, 0")
    stamp(3)
    if o.b0 == 1:
        a("s_waitcnt lgkmcnt(0)")
        a("s_barrier")
        for k in range(2):
            for t in range(4):
                a(f"ds_read_b128 {V(CM+16*t+4*k,4)}, v15 offset:{L_CT + t*2048 + k*1024}")

    def dots(w, fill=()):
        fill = list(fill)

        def pad(n):
            while n and fill:
                a(fill.pop(0))
                n -= 1
            a.nop(n)

        for i in range(4):
            a(f"v_dot2c_f32_bf16 v12, v{XR+i}, v{w+i}")
            a(f"v_dot2c_f32_bf16 v13, v{XR+4+i}, v{w+i}")
        pad(3)
        a("v_permlane32_swap_b32 v12, v13")
        a("v_add_f32 v12, v12, v13")
        a("v_mov_b32 v13, v12")
        pad(2)
        a("v_permlane16_swap_b32 v12, v13")
        a("v_add_f32 v12, v12, v13")
        for r in (8, 4, 2, 1):
            pad(2)
            a(f"v_add_f32_dpp v12, v12, v12 row_ror:{r} {DPPM}")
        rnd(12, 12)
        for x in fill:
            a(x)

    a(f"s_waitcnt vmcnt({2 if o.tlate else 0})")
    stamp(4)
    dots(WR, [f"s_sub_u32 s{S.T4}, 0xffff, s{S.TD}", f"s_sub_u32 s{S.T5}, 0xffff, s{S.TM}", f"v_mov_b32 v4, s{S.T4}",
              f"v_writelane_b32 v4, s{S.T5}, 32", f"v_mov_b32 v9, {L_KSL}",
              f"v_lshlrev_b32 v{VSGN}, 31, v1", f"v_lshrrev_b32 v7, 16, v{VSGN}", f"v_or_b32 v{VSGN}, v{VSGN}, v7",
              "v_bfe_u32 v6, v0, 2, 2", "v_and_b32 v14, 3, v0", f"v_lshl_add_u32 v14, v14, 1, s{S.T2}",
              f"v_lshl_add_u32 v{VTR}, v2, 3, v6", "v_lshrrev_b32 v6, 1, v6", "v_xor_b32 v14, v14, v6"])
    a("v_ashrrev_i32 v7, 31, v12")
    a("v_or_b32 v7, 0x80000000, v7")
    a("v_xor_b32 v7, v7, v12")
    a(f"v_and_b32 v7, {HIM}, v7")
    a("v_or_b32 v7, v7, v4")
    a("s_mov_b32 exec_lo, 1")
    a("s_mov_b32 exec_hi, 1")
    a("ds_max_u32 v9, v7")
    a("s_mov_b64 exec, -1")
    if o.b1a:
        a("s_waitcnt lgkmcnt(0)")
        hold("K")
        a("s_barrier")
    if o.b0 == 2:
        for k in range(2):
            for t in range(4):
                a(f"ds_read_b128 {V(CM+16*t+4*k,4)}, v15 offset:{L_CT + t*2048 + k*1024}")
    a(f"s_lshl_b32 s{S.T1}, s{S.T1}, 3")
    a(f"v_lshl_add_u32 v14, v14, 4, s{S.T1}")
    a(f"v_lshl_add_u32 v{VTR}, v{VTR}, 7, v14")
    a("v_lshlrev_b32 v9, 4, v2")
    a("s_waitcnt vmcnt(0)" + ("" if o.b0 == 2 else " lgkmcnt(0)"))
    hold("B1")
    a("s_barrier")
    stamp(5)
    if o.b0 == 2:
        a("s_waitcnt lgkmcnt(5)")
    a(f"ds_read_b128 v[28:31], v9 offset:{L_EXP}")
    for k in range(4):
        for h in range(2):
            a(f"ds_read_b64_tr_b16 {V(AOP+4*k+2*h,2)}, v{VTR} offset:{L_TILE + k*4096 + h*512}")
        if k < 2 and not o.b0:
            for t in range(4):
                a(f"ds_read_b128 {V(CM+16*t+4*k,4)}, v15 offset:{L_CT + t*2048 + k*1024}")
        if k == 1 and not o.b0:
            a("s_waitcnt lgkmcnt(9)")
    a(f"global_load_dwordx4 {V(GW,4)}, v{VG16}, s[{S.PGW}:{S.PGW+1}]")
    xors = [f"v_xor_b32 v{CM+t*16+8+4*kp+r}, v{CM+t*16+4*kp+r}, v{VSGN}" for kp in range(2) for t in range(4) for r in range(4)]
    misc = [f"s_mul_i32 s{S.SO}, s{S.T0}, {16*CS}",
            f"s_add_u32 s{S.SO}, s{S.SO}, s{S.PIE}",
            f"s_and_b32 s{S.T4}, s{S.WAVE}, 3",
            f"s_lshl_b32 s{S.T4}, s{S.T4}, 9",
            f"s_add_u32 s{S.SO}, s{S.SO}, s{S.T4}",
            f"s_add_u32 s{S.SO}, s{S.SO}, {WS_INT}",
            f"s_mov_b32 s{S.RWS}, s{S.PWS}", f"s_mov_b32 s{S.RWS+1}, s{S.PWS+1}", f"s_mov_b32 s{S.RWS+2}, {WS_BYTES:#x}",
            f"s_mov_b32 s{S.RWS+3}, 0x20000",
            f"s_add_u32 s{S.SO+1}, s{S.SO}, {32*CS}", f"s_mov_b32 s{S.T5}, 0xfffefffe", f"s_mov_b32 s{S.T4}, 0x07060302",
            f"v_mul_u32_u24 v{VST}, {CS}, v1", f"v_lshl_add_u32 v{VST}, v2, 4, v{VST}",
            ]
    fill = xors + misc
    for k in range(4):
        for t in range(4):
            if o.b0:
                if t == 0:
                    a(f"s_waitcnt lgkmcnt({6-2*k})")
            elif k == 0:
                a(f"s_waitcnt lgkmcnt({13-t})")
            elif k == 1:
                a(f"s_waitcnt lgkmcnt({7-t})")
            elif t == 0:
                a(f"s_waitcnt lgkmcnt({2 if k == 2 else 0})")
            c = "0" if k == 0 else V(ACC + 4 * t, 4)
            a(f"{MF} {V(ACC+4*t,4)}, {V(AOP+4*k,4)}, {V(CM+16*t+4*k,4)}, {c}")
            n = 4 if k < 2 else 2
            if k < 3 or t < 3:
                for _ in range(n):
                    if fill:
                        x = fill.pop(0)
                        if x != "TAGWAIT":
                            a(x)
    for x in fill:
        a(x)
    a("v_mov_b32 v12, 0")
    a("v_mov_b32 v13, 0")
    for h in range(2):
        for i in range(8):
            a(f"v_add_u32 v{ACC+8*h+i}, 0x10000, v{ACC+8*h+i}")
        for i in range(4):
            a(f"v_perm_b32 v{AOP+4*h+i}, v{ACC+8*h+4+i}, v{ACC+8*h+i}, s{S.T4}")
        for i in range(4):
            a(f"v_and_or_b32 v{AOP+4*h+i}, v{AOP+4*h+i}, s{S.T5}, v{28+i}")
        a(f"buffer_store_dwordx4 {V(AOP+4*h,4)}, v{VST}, {R4(S.RWS)}, s{S.SO+h} offen sc1")
    a(f"s_mov_b32 s{S.SPIN}, 0")
    a(f"s_mov_b32 s{S.ISZ}, 0")
    stamp(7)
    if o.only == "P1":
        a("s_endpgm")
    a.label("L_ta_end")

    gwait = [2]

    def gates(full):
        if full:
            a(f"s_waitcnt vmcnt({gwait[0]})")
        dots(GW)
        if full:
            a(f"s_lshl_b32 s{S.T0}, s{S.WAVE}, 11")
            a(f"v_add_u32 v6, s{S.T0}, v{VG16}")
            a(f"ds_write_b128 v6, {V(XR,4)} offset:{L_XT}")
            a(f"ds_write_b128 v6, {V(XR+4,4)} offset:{L_XT+1024}")
            a(f"v_lshl_add_u32 v7, v1, 6, s{S.T0}")
            a("v_lshl_add_u32 v7, v2, 3, v7")
            a("s_waitcnt lgkmcnt(0)")
            for r in range(2):
                a(f"ds_read2_b64 {V(XR+4*r,4)}, v7 offset0:{0} offset1:{4}" if False else f"ds_read_b64 {V(XR+4*r,2)}, v7 offset:{L_XT+1024*r}")
                a(f"ds_read_b64 {V(XR+4*r+2,2)}, v7 offset:{L_XT+1024*r+32}")
            vrow_setup()
        sigmoid(13, 12)
        rnd(13, 13)
        a("v_sub_f32 v14, 1.0, v13")
        rnd(14, 14)
        a(f"v_readlane_b32 s{S.T0}, v13, 0")
        a(f"v_readlane_b32 s{S.T1}, v13, 32")
        a(f"v_readlane_b32 s{S.T2}, v14, 0")
        a(f"v_readlane_b32 s{S.T3}, v14, 32")
        a(f"s_xor_b32 s{S.T4}, s{S.T0}, 0x80000000")
        a(f"s_cmp_eq_u32 s{S.TD}, 0")
        a(f"s_cselect_b32 s{S.T4}, 0, s{S.T4}")
        a(f"s_cselect_b32 s{S.T5}, 0, s{S.T1}")
        if not full:
            return
        a(f"v_mov_b32 v{CO}, s{S.T0}")
        a(f"v_mov_b32 v{CO+1}, s{S.T4}")
        a(f"v_mov_b32 v{CO+2}, s{S.T5}")
        a(f"v_mov_b32 v{CO+3}, s{S.T1}")
        a(f"v_mov_b32 v13, s{S.T2}")
        a(f"v_mov_b32 v14, s{S.T3}")
        a("s_waitcnt lgkmcnt(0)")
        for r in range(2):
            for i in range(4):
                a(f"v_lshlrev_b32 v{XG+8*r+2*i}, 16, v{XR+4*r+i}")
                a(f"v_and_b32 v{XG+8*r+2*i+1}, {HIM}, v{XR+4*r+i}")
            for i in range(8):
                a(f"v_mul_f32 v{XG+8*r+i}, v{13+r}, v{XG+8*r+i}")

    def addr_ur(wreg):
        a(f"s_mul_i32 s{S.T1}, s{wreg}, {2*UB}")
        a("v_bfe_u32 v7, v1, 1, 2")
        a("v_xor_b32 v7, v7, v2")
        a(f"v_lshl_add_u32 v7, v7, 4, s{S.T1}")
        a(f"v_lshl_add_u32 v{VUR0}, v1, 6, v7")
        a("v_sub_u32 v6, 16, v1")
        a("v_bfe_u32 v7, v6, 1, 2")
        a("v_xor_b32 v7, v7, v2")
        a(f"v_lshl_add_u32 v7, v7, 4, s{S.T1}")
        a(f"v_lshl_add_u32 v{VUR1}, v6, 6, v7")

    def addr_p2():
        a("v_lshlrev_b32 v6, 4, v1")
        a(f"v_lshl_add_u32 v{VLD}, v2, 13, v6")
        a(f"v_mul_u32_u24 v6, {4*UB}, v2")
        a("v_bfe_u32 v7, v1, 1, 2")
        a(f"v_xor_b32 v7, s{S.WAVE}, v7")
        a("v_lshl_add_u32 v7, v7, 4, v6")
        a(f"v_lshl_add_u32 v{VUW}, v1, 6, v7")
        a(f"s_lshl4_add_u32 s{S.T1}, s{S.WAVE}, 1024")
        a(f"v_mov_b32 v9, {L_DUMP - L_U2}")
        a(f"v_lshl_add_u32 v{VUX}, v0, 1, v9")
        a(f"v_lshl_add_u32 v7, v1, 1, s{S.T1}")
        a("s_mov_b32 exec_lo, 0x00ff00ff")
        a("s_mov_b32 exec_hi, 0x00ff00ff")
        a(f"v_add_u32 v{VUX}, v7, v6")
        a("s_mov_b64 exec, -1")

    EXP = 96

    def exp_setup():
        a("v_and_b32 v6, 3, v1")
        a("v_lshlrev_b32 v6, 4, v6")
        a(f"ds_read_b128 {V(EXP,4)}, v6 offset:{L_EXP}")
        a("s_waitcnt lgkmcnt(0)")

    def exp_make():
        a("v_lshlrev_b32 v6, 1, v1")
        a(f"v_lshrrev_b32 v6, v6, v{VTAG}")
        a("v_lshlrev_b32 v7, 15, v6")
        a("v_and_b32 v6, 1, v6")
        a("v_and_b32 v7, 0x10000, v7")
        a("v_or_b32 v6, v6, v7")
        a("v_lshlrev_b32 v7, 2, v1")
        a(f"ds_write_b32 v7, v6 offset:{L_EXP}")
        a("s_waitcnt lgkmcnt(0)")

    def const_d1():
        a("v_cvt_f32_u32 v6, v1")
        a(f"s_lshl_b32 s{S.T0}, s{S.WAVE}, 2")
        a(f"v_lshl_add_u32 v7, v2, 6, s{S.T0}")
        a("v_mul_f32 v6, 0x3b000000, v6")
        a("v_cvt_f32_u32 v7, v7")
        a("v_mul_f32 v15, 0x41800000, v6")
        a("v_mul_f32 v7, v7, v6")
        for ib in range(4):
            if ib:
                a("v_add_f32 v7, v7, v6")
            for j in range(4):
                src = "v7" if j == 0 else "v9"
                a(f"v_cos_f32 v{Cc+j}, {src}")
                a(f"v_sin_f32 v{Ss+j}, {src}")
                if j < 3:
                    a(f"v_add_f32 v9, {src}, v15")
            b = M1 + 12 * ib
            a(f"v_mov_b32 v{b+8}, 0")
            for p in range(2):
                a(f"v_cvt_pk_bf16_f32 v{b+p}, v{Cc+2*p}, v{Cc+2*p+1}")
                a(f"v_cvt_pk_bf16_f32 v{b+4+p}, -v{Ss+2*p}, -v{Ss+2*p+1}")
            for p in range(2):
                a(f"v_xor_b32 v{b+2+p}, v{b+p}, v{VSGN}")
                a(f"v_xor_b32 v{b+6+p}, v{b+4+p}, v{VSGN}")
        a("v_lshrrev_b32 v6, 1, v1")
        a(f"v_add_u32 v7, s{S.T0}, v6")
        a("v_and_b32 v9, 1, v1")
        a("v_lshl_add_u32 v7, v9, 3, v7")
        a("v_cvt_f32_u32 v7, v7")
        a("v_mul_f32 v7, 0x3d000000, v7")
        a("v_cos_f32 v7, v7")
        for ib in range(4):
            m = 0x00030003 << (2 * ib)
            a(f"s_mov_b32 exec_lo, {m:#x}")
            a(f"s_mov_b32 exec_hi, {m:#x}")
            a(f"v_cvt_pk_bf16_f32 v{M1+12*ib+8}, v7, -v7")
        a("s_mov_b64 exec, -1")
        for ib in range(4):
            for p in range(1, 4):
                a(f"v_mov_b32 v{M1+12*ib+8+p}, v{M1+12*ib+8}")

    def const_ga():
        a("v_lshrrev_b32 v6, 1, v1")
        a(f"s_lshl_b32 s{S.T0}, s{S.HH}, 10")
        a(f"s_add_u32 s{S.T0}, s{S.T0}, s{S.T1C}")
        a(f"v_lshl_add_u32 v6, v6, 7, s{S.T0}")
        a("v_and_b32 v7, 1, v1")
        a("v_lshlrev_b32 v9, 9, v7")
        l0, ld = a.L("g0"), a.L("gd")
        a(f"s_cmp_lg_u32 s{S.T1C}, 0")
        a(f"s_cbranch_scc1 {l0}")
        a("s_mov_b32 exec_lo, 0x00020002")
        a("s_mov_b32 exec_hi, 0x00020002")
        a("v_mov_b32 v6, 0x400")
        a("v_mov_b32 v9, 0")
        a("s_mov_b64 exec, -1")
        a.label(l0)
        a("v_lshlrev_b32 v7, 2, v2")
        a("v_mad_u32_u24 v9, v7, v6, v9")
        a("v_cvt_f32_u32 v6, v6")
        a("v_cvt_f32_u32 v9, v9")
        a("v_mul_f32 v6, 0x3a000000, v6")
        a("v_mul_f32 v9, 0x3a000000, v9")
        for jj in range(4):
            a(f"v_cos_f32 v{Cc+jj}, v9")
            a(f"v_sin_f32 v{Ss+jj}, v9")
            if jj < 3:
                a("v_add_f32 v9, v9, v6")
        a(f"s_and_b32 s{S.T1}, s{S.T1C}, 63")
        a.nop(1)
        for jj in range(4):
            a(f"v_cvt_pk_bf16_f32 v{GA+jj}, v{Cc+jj}, v{Ss+jj}")
        a(f"s_cmp_lg_u32 s{S.T1}, 0")
        a(f"s_cbranch_scc1 {ld}")
        a(f"s_lshr_b32 s{S.T1}, s{S.T1C}, 2")
        for jj in range(4):
            a(f"v_and_b32 v{GA+jj}, 0xffff, v{GA+jj}")
            a(f"v_lshlrev_b32 v{GA+jj}, s{S.T1}, v{GA+jj}")
        a.label(ld)

    def int_base():
        a(f"s_and_b32 s{S.T1}, s{S.T1C}, 63")
        a(f"s_mul_i32 s{S.L0}, s{S.T1}, {CS}")
        a(f"s_lshl_b32 s{S.T1}, s{S.WAVE}, 9")
        a(f"s_add_u32 s{S.L0}, s{S.L0}, s{S.T1}")
        a(f"s_add_u32 s{S.L0}, s{S.L0}, {WS_INT}")
        a(f"s_add_u32 s{S.L1}, s{S.L0}, 4096")

    def m2_addr():
        a(f"s_cmp_eq_u32 s{S.TD}, 0")
        a(f"s_cselect_b32 s{S.T0}, 0, 2048")
        a(f"v_add_u32 v4, s{S.T0}, v{VG16}")

    def int_loads(ah):
        for jj in range(4):
            so = S.L0 if jj < 2 else S.L1
            a(f"buffer_load_dwordx4 {V(LD+16*ah+4*jj,4)}, v{VLD}, {R4(S.RWS)}, s{so} offen offset:{(jj & 1)*2048 + ah*256} sc1")

    a.srd(S.ROUT, S.POUT, 0x200000)
    a(f"s_cmp_ge_u32 s{S.WAVE}, 4")
    a("s_cbranch_scc1 L_hi0")
    if o.prio & 1:
        a("s_setprio 2")
    pre = [lambda: (addr_p2(), int_base(), const_ga(), exp_setup()), const_d1, lambda: gates(True), lambda: (addr_ur(S.WAVE), m2_addr())]
    if o.gfirst:
        pre[1], pre[2] = pre[2], pre[1]
    for f in pre[:o.npre]:
        f()
    stamp(8)
    a(f"s_waitcnt vmcnt({0 if o.ackwait else 2})")
    if o.b3:
        a("s_barrier")
    if o.isleep0:
        a(f"s_sleep {o.isleep0}")
    hold("B4")
    stamp(9)
    if o.stag:
        a(f"s_cmp_lg_u32 s{S.HH}, 0")
        a("s_cbranch_scc1 L_stg1")
        int_loads(0)
        a(f"s_waitcnt vmcnt({4 - o.stag})")
        int_loads(1)
        a("s_branch L_stg2")
        a.label("L_stg1")
        int_loads(1)
        a(f"s_waitcnt vmcnt({4 - o.stag})")
        int_loads(0)
        a("s_waitcnt vmcnt(0)")
        a.label("L_stg2")
    else:
        int_loads(0)
        int_loads(1)
    gwait[0] = 10
    for f in pre[o.npre:]:
        f()
    gwait[0] = 2
    a.label("L_zjoin")
    stamp(10)
    for ah in range(2):
        a(f"s_waitcnt vmcnt({4-4*ah})")
        a.label(f"L_got{ah}")
        b = LD + 16 * ah
        da = DA1 if ah else DA0
        for ib in range(4):
            for jj in range(4):
                a(f"v_xor_b32 v{TP+4*ib+jj}, v{b+4*jj+ib}, v{EXP+ib}")
            if ib == 0:
                a(f"v_or3_b32 v6, v{TP}, v{TP+1}, v{TP+2}")
                a(f"v_or_b32 v6, v6, v{TP+3}")
            else:
                a(f"v_or3_b32 v6, v6, v{TP+4*ib}, v{TP+4*ib+1}")
                a(f"v_or3_b32 v6, v6, v{TP+4*ib+2}, v{TP+4*ib+3}")
            if ib == 3:
                a("v_and_b32 v6, 0x10001, v6")
                a("v_cmp_ne_u32 vcc, 0, v6")
            if not (ah == 1):
                a(f"{MF} {V(da+4*ib,4)}, {V(TP+4*ib,4)}, {V(GA,4)}, 0")
            else:
                a(f"{MF} {V(da+4*ib,4)}, {V(TP+4*ib,4)}, {V(GA,4)}, 0")
        a(f"s_cbranch_vccnz L_retry{ah}")
        a.label(f"L_fail{ah}")
    stamp(11)

    def d1(jb):
        a(f"{MF} {V(DA0+4*jb,4)}, {V(TP+4*jb,4)}, {V(M1+12*jb,4)}, 0")
        a(f"{MF} {V(DA1+4*jb,4)}, {V(TP+4*jb,4)}, {V(M1+12*jb+4,4)}, 0")
        a(f"{MF} {V(X16,4)}, {V(TP+4*jb,4)}, {V(M1+12*jb+8,4)}, {'0' if jb == 0 else V(X16,4)}")

    for ib in range(4):
        for p in range(4):
            s0 = (DA1 if p >= 2 else DA0) + 4 * ib + 2 * (p & 1)
            a(f"v_cvt_pk_bf16_f32 v{TP+4*ib+p}, v{s0}, v{s0+1}")
        if ib:
            d1(ib - 1)
    d1(3)
    for ib in range(3):
        for i in range(4):
            a(f"v_cvt_pk_bf16_f32 v{PK+4*i+ib}, v{DA0+4*ib+i}, v{DA1+4*ib+i}")
    for i in range(4):
        a(f"v_cvt_pk_bf16_f32 v{PK+4*i+3}, v{DA0+12+i}, v{DA1+12+i}")
        a(f"ds_write_b128 v{VUW}, {V(PK+4*i,4)} offset:{L_U2 + i*UB}")
    a(f"v_cvt_pk_bf16_f32 v{X16}, v{X16}, v{X16+1}")
    a(f"v_cvt_pk_bf16_f32 v{X16+2}, v{X16+2}, v{X16+3}")
    a(f"ds_write_b16 v{VUX}, v{X16} offset:{L_U2}")
    a(f"ds_write_b16_d16_hi v{VUX}, v{X16} offset:{L_U2+UB}")
    a(f"ds_write_b16 v{VUX}, v{X16+2} offset:{L_U2+2*UB}")
    a(f"ds_write_b16_d16_hi v{VUX}, v{X16+2} offset:{L_U2+3*UB}")
    a.label("L_d2")
    a(f"ds_read_b128 {V(M2,4)}, v{VG16} offset:{L_M2}")
    a(f"ds_read_b128 {V(M2+4,4)}, v{VG16} offset:{L_M2+1024}")
    a(f"ds_read_b128 {V(M2+8,4)}, v4 offset:{L_M2}")
    a(f"ds_read_b128 {V(M2+12,4)}, v4 offset:{L_M2+1024}")
    a(f"v_mov_b32 v9, {L_GKEY}")
    a(f"s_cmp_lg_u32 s{S.ISZ}, 0")
    a("s_waitcnt lgkmcnt(0)")
    a("s_cbranch_scc1 L_zsync")
    a("s_barrier")
    stamp(12)
    a("ds_read_b32 v6, v9")
    a(f"ds_read_b128 {V(UO,4)}, v{VUR0} offset:{L_U2}")
    a(f"ds_read_b128 {V(UO+4,4)}, v{VUR1} offset:{L_U2}")
    a(f"ds_read_b128 {V(UO+8,4)}, v{VUR0} offset:{L_U2+UB}")
    a(f"ds_read_b128 {V(UO+12,4)}, v{VUR1} offset:{L_U2+UB}")
    a(f"s_lshl_b32 s{S.T0}, s{S.TD}, 10")
    a(f"s_lshl_b32 s{S.T1}, s{S.TM}, 10")
    for k in range(4):
        a(f"s_waitcnt lgkmcnt({3-k})")
        a(f"{MF} {V(PQ+4*k,4)}, {V(UO+4*k,4)}, {V(M2+4*k,4)}, 0")
    a(f"v_readfirstlane_b32 s{S.GKEY}, v6")
    a(f"s_andn2_b32 s{S.IDX}, 0xffff, s{S.GKEY}")
    for r in range(2):
        for i in range(8):
            a(f"v_fmac_f32 v{XG+8*r+i}, v{CO+2*r}, v{PQ+i}")
    for r, (so, tr) in enumerate(((S.T0, S.TD), (S.T1, S.TM))):
        for i in range(8):
            a(f"v_fmac_f32 v{XG+8*r+i}, v{CO+2*r+1}, v{PQ+8+i}")
        for i in range(4):
            a(f"v_cvt_pk_bf16_f32 v{UO+4*r+i}, v{XG+8*r+2*i}, v{XG+8*r+2*i+1}")
        l = a.L("skip")
        if r == 0:
            stamp(6)
        a(f"s_cmp_eq_u32 s{tr}, s{S.IDX}")
        a(f"s_cbranch_scc1 {l}")
        a(f"v_permlane16_swap_b32 v{UO+4*r}, v{UO+4*r+2}")
        a(f"v_permlane16_swap_b32 v{UO+4*r+1}, v{UO+4*r+3}")
        a(f"buffer_store_dwordx4 {V(UO+4*r,4)}, v{VROW}, {R4(S.ROUT)}, s{so} offen{o.outpol}")
        a.label(l)
    a.label("L_tb_end")
    stamp(13)
    if o.stamps:
        a("s_waitcnt vmcnt(0)")
        stamp(15)
    endprog()

    for ah in range(2):
        a.label(f"L_retry{ah}")
        if o.stamps:
            a(f"s_add_u32 s{S.RC}, s{S.RC}, {1 << (8*ah)}")
        if o.rsleep:
            a(f"s_sleep {o.rsleep}")
        spin()
        a(f"s_cbranch_scc1 L_fail{ah}")
        int_loads(ah)
        a("s_waitcnt vmcnt(0)")
        a(f"s_branch L_got{ah}")

    a.label("L_hi0")
    if o.b3:
        if o.ackwait:
            a("s_waitcnt vmcnt(0)")
        a("s_barrier")
    a.label("L_hi1")
    if o.atouch:
        touch("L_tb", o.atouch, 4, 4)
        a(f"s_cmp_lg_u32 s{S.ISZ}, 0")
        a("s_cbranch_scc1 L_z0b")
    gates(True)
    addr_ur(S.WAVE)
    m2_addr()
    stamp(10)
    a("s_branch L_d2")

    a.label("L_ah")
    if o.prio & 2:
        a("s_setprio 3")
    if o.cpf:
        a(f"s_cmp_ge_u32 s{S.T1}, {o.cpf}")
        a("s_cbranch_scc1 L_nocpf")
        a(f"s_getpc_b64 s[{S.EX}:{S.EX+1}]")
        a.label("L_pc")
        a(f"s_sub_u32 s{S.EX}, s{S.EX}, L_pc - {name}")
        a(f"s_subb_u32 s{S.EX+1}, s{S.EX+1}, 0")
        a("v_lshlrev_b32 v6, 7, v0")
        a("v_add_u32 v7, 0x2000, v6")
        a(f"v_min_u32 v7, L_end - {name}, v7")
        a(f"v_mov_b32 v13, s{S.EX+1}")
        a(f"v_mov_b32 v15, s{S.EX+1}")
        a(f"v_add_co_u32 v12, vcc, s{S.EX}, v6")
        a.nop(2)
        a("v_addc_co_u32 v13, vcc, 0, v13, vcc")
        a(f"v_add_co_u32 v14, vcc, s{S.EX}, v7")
        a.nop(2)
        a("v_addc_co_u32 v15, vcc, 0, v15, vcc")
        a("global_load_dword v10, v[12:13], off")
        a("global_load_dword v11, v[14:15], off")
        a.label("L_nocpf")
    a(f"v_lshlrev_b32 v{VG16}, 4, v0")
    a(f"v_mov_b32 v{VTAG}, 0")
    a(f"v_mov_b32 v9, {L_KSL}")
    a(f"ds_write_b32 v9, v{VTAG}")
    a(f"s_mov_b32 s{S.KM}, 0x9E3779B1")
    a(f"s_cmp_ge_u32 s{S.T1}, {o.wpf}")
    a("s_waitcnt lgkmcnt(0)")
    a("s_cbranch_scc1 L_nowpf")
    a(f"global_load_dwordx4 v[32:35], v{VG16}, s[{S.PWR}:{S.PWR+1}]")
    a(f"global_load_dword v{VE}, v{VTAG}, s[{S.PWS}:{S.PWS+1}]")
    a(f"global_load_dwordx4 v[36:39], v{VG16}, s[{S.PGW}:{S.PGW+1}]")
    a.label("L_nowpf")
    stamp(1)
    a("v_lshlrev_b32 v14, 10, v0")
    a(f"s_lshl_b32 s{S.ID8}, s2, 3")
    a(f"s_add_u32 s{S.ID8}, s{S.ID8}, {WS_KEY}")
    ws_setup()

    if o.b0 == 2:
        a("s_barrier")
    const_d2()
    a(f"global_load_dword v{VE}, v{VTAG}, s[{S.PWS}:{S.PWS+1}]")
    a("s_waitcnt lgkmcnt(0)")
    stamp(2)
    if o.b0 == 1:
        a("s_barrier")
    a(f"v_mov_b32 v9, {L_KSL}")
    a("s_waitcnt vmcnt(0)")
    tag_make()
    exp_make()
    a(f"v_mov_b32 v9, {L_KSL}")
    stamp(3)
    a("s_barrier")
    a(f"ds_read_b32 v{VE}, v9")
    set_exec(RF * CF + RZ * CZ + R2 * C2 + RS)
    a("s_waitcnt lgkmcnt(0)")
    a(f"buffer_store_dwordx2 v[{VE}:{VTAG}], v14, {R4(S.RWS)}, s{S.ID8} offen sc1")
    if o.probe >= 0:
        a("s_mov_b64 exec, 1")
        a("v_mov_b32 v40, s66")
        a(f"v_mov_b32 v41, v{VTAG}")
        a(f"s_add_u32 s{S.T0}, s{S.ID8}, {WS_KEY2 - WS_KEY}")
        a(f"buffer_store_dwordx2 v[40:41], v14, {R4(S.RWS)}, s{S.T0} offen sc1")
    a("s_mov_b64 exec, -1")
    stamp(5)
    if o.b1a:
        a("s_barrier")
    if o.only == "P1":
        a("s_endpgm")
    poll_setup(WS_KEY + 1024 * (RF * CF + RZ * CZ), R2, C2)
    a("s_waitcnt vmcnt(0)")
    if not o.gate and o.b3:
        a("s_barrier")
    if o.k2sleep0:
        a(f"s_sleep {o.k2sleep0}")
    stamp(8)
    poll_granules(VG16, 32, sleep=o.k2sleep)
    stamp(9)
    wave_max_key(32)
    lds_put(L_GKEY, 32)
    if o.gate:
        a(f"s_sleep {o.gate}")
        a("s_barrier")
        if o.probe >= 0:
            a("s_cmp_lg_u32 s2, 9")
            a("s_cbranch_scc1 L_noprobe")
            a("s_barrier")
            a(f"s_mov_b32 s{S.PO}, {WS_KEY2}")
            a(f"s_mov_b32 s{S.POL}, {WS_KEY2}")
            poll_granules(VG16, 32, sleep=4)
            for i in range(8):
                a(f"v_readlane_b32 s{70+i}, v{32 + 2*(i&1)}, {i>>1}")
            a("s_mov_b32 s80, s70")
            for i in range(1, 8):
                a(f"s_sub_u32 s81, s{70+i}, s80")
                a("s_cmp_lt_i32 s81, 0")
                a(f"s_cselect_b32 s80, s{70+i}, s80")
            if o.probe < 8:
                a(f"s_sub_u32 s81, s{70+o.probe}, s80")
            else:
                a("s_mov_b32 s81, 0")
                for i in range(8):
                    a(f"s_sub_u32 s82, s{70+i}, s80")
                    a("s_max_u32 s81, s81, s82")
            a("s_mul_i32 s81, s81, 10")
            a("s_add_u32 s81, s81, 800")
            a.label("L_pw")
            a("s_sleep 1")
            a("s_memrealtime s[100:101]")
            a("s_waitcnt lgkmcnt(0)")
            a("s_sub_u32 s100, s100, s80")
            a("s_cmp_lt_u32 s100, s81")
            a("s_cbranch_scc1 L_pw")
            a.label("L_noprobe")
        if o.hold and o.hold[0] == "endA":
            a(f"s_sub_u32 s{S.T0}, s2, {o.hold[2]}")
            a(f"s_cmp_ge_u32 s{S.T0}, {o.hold[3]}")
            a("s_cbranch_scc1 L_nohold")
            a("s_barrier")
            hold("endA")
            a.label("L_nohold")
        endprog()
    a("s_barrier")
    endprog()

    a.label("L_notA")
    if o.only == "AA":
        a("s_endpgm")
    a(f"s_lshl4_add_u32 s{S.FJ}, s{S.T0}, s{S.T1}")
    a(f"s_sub_u32 s{S.FJ}, s{S.FJ}, 16")
    a(f"s_cmp_ge_u32 s2, {NWG}")
    a("s_cbranch_scc1 L_end")
    a(f"s_cmp_lt_u32 s{S.T0}, 4")
    a("s_cbranch_scc1 L_F")
    a(f"s_mul_i32 s{S.FJ}, s{S.T0}, 12")
    a(f"s_add_u32 s{S.FJ}, s{S.FJ}, s{S.T1}")
    a(f"s_cmp_lt_u32 s{S.T1}, 28")
    a("s_cbranch_scc1 L_F")
    a(f"s_mov_b32 s{S.ISZ}, 1")
    a(f"s_lshl2_add_u32 s{S.Z}, s{S.T0}, s{S.T1}")
    a(f"s_sub_u32 s{S.Z}, s{S.Z}, 44")
    vrow_setup()
    a(f"v_lshlrev_b32 v{VG16}, 4, v0")
    sgn_setup()
    a("s_waitcnt lgkmcnt(0)")
    ws_setup()
    a.srd(S.ROUT, S.POUT, 0x200000)
    addr_p2()
    a(f"s_cmp_eq_u32 s{S.WAVE}, 8")
    a("s_cbranch_scc1 L_zh")
    a(f"s_cmp_ge_u32 s{S.WAVE}, 4")
    a("s_cbranch_scc1 L_z0")
    const_d1()
    a("s_branch L_z1")
    a.label("L_z0")
    if o.atouch:
        a("s_branch L_hi1")
    a.label("L_z0b")
    if o.ztouch:
        touch("L_tz", o.ztouch, 4, 4)
    a.label("L_z1")
    a(f"v_mov_b32 v9, {L_KSL}")
    a("v_mov_b32 v12, 0")
    a("v_mov_b32 v13, 0")
    a("s_barrier")
    a(f"ds_read_b64 v[{VE}:{VTAG}], v9")
    a(f"ds_read_b128 {V(GW,4)}, v{VG16} offset:{L_WV+1024}")
    a("s_waitcnt lgkmcnt(0)")
    a(f"v_readfirstlane_b32 s{S.GKEY}, v{VE}")
    a(f"s_andn2_b32 s{S.IDX}, 2047, s{S.GKEY}")
    a(f"s_and_b32 s{S.T0}, s{S.IDX}, 127")
    a(f"s_cmp_gt_u32 s{S.T0}, 64")
    a(f"s_cselect_b32 s{S.WHICH}, 1, 0")
    a(f"s_and_b32 s{S.T0}, s{S.IDX}, {1024 + 63}")
    a(f"s_cmp_eq_u32 s{S.T0}, 1024")
    a(f"s_cselect_b32 s{S.WHICH}, 1, s{S.WHICH}")
    a(f"s_sub_u32 s{S.T0}, 2048, s{S.IDX}")
    a(f"s_cmp_lg_u32 s{S.WHICH}, 0")
    a(f"s_cselect_b32 s{S.T0}, s{S.T0}, s{S.IDX}")
    a(f"s_cmp_eq_u32 s{S.T0}, 1024")
    a(f"s_cselect_b32 s{S.T0}, 0, s{S.T0}")
    a(f"s_and_b32 s{S.T1C}, s{S.T0}, 127")
    a(f"s_lshr_b32 s{S.HH}, s{S.T0}, 10")
    a(f"s_bfe_u32 s{S.WSEL}, s{S.T0}, 0x30007")
    rows_setup(S.WSEL)
    a(f"s_cmp_ge_u32 s{S.WAVE}, 4")
    a("s_cbranch_scc1 L_z4")
    int_base()
    if o.zisleep0:
        a(f"s_sleep {o.zisleep0}")
    stamp(9)
    int_loads(0)
    int_loads(1)
    const_ga()
    exp_setup()
    addr_ur(S.WSEL)
    m2_addr()
    a("v_lshlrev_b32 v6, 7, v1")
    a(f"v_lshl_add_u32 v15, v2, 4, v6")
    a("s_branch L_zjoin")
    a.label("L_z4")
    a(f"s_cmp_ge_u32 s{S.WAVE}, 6")
    a("s_cbranch_scc1 L_zend2")
    rows_load()
    a(f"s_sub_u32 s{S.T0}, s{S.WAVE}, 4")
    a(f"s_lshl1_add_u32 s{S.T1}, s{S.Z}, s{S.T0}")
    a(f"s_lshl_b32 s{S.T1}, s{S.T1}, 5")
    a("v_and_b32 v6, 7, v0")
    a(f"v_lshl_add_u32 v10, v6, 2, s{S.T1}")
    a(f"s_lshl_b32 s{S.T2}, s{S.IDX}, 10")
    a(f"v_add_u32 v7, s{S.T2}, v10")
    a(f"global_load_dword v35, v7, {PXS}")
    a("v_lshlrev_b32 v10, 1, v10")
    a("v_lshrrev_b32 v7, 3, v0")
    a("v_lshlrev_b32 v7, 8, v7")
    a("v_lshl_add_u32 v11, v6, 4, v7")
    a(f"s_mul_i32 s{S.SI0}, s{S.Z}, {PZ}")
    a(f"s_lshl_b32 s{S.T0}, s{S.T0}, 7")
    a(f"s_add_u32 s{S.SI0}, s{S.SI0}, s{S.T0}")
    a(f"s_add_u32 s{S.SI0}, s{S.SI0}, {WS_PART}")
    a(f"s_add_u32 s{S.SI1}, s{S.SI0}, {(o.pc-1)*PARTC}")
    a(f"s_and_b32 s{S.T0}, s{S.GKEY}, 0xffff0000")
    a(f"s_xor_b32 s{S.T1}, s{S.T0}, 0x80000000")
    a(f"s_xor_b32 s{S.T3}, s{S.T0}, 0xffff0000")
    a(f"s_bitcmp1_b32 s{S.T0}, 31")
    a(f"s_cselect_b32 s{S.T0}, s{S.T1}, s{S.T3}")
    a(f"v_mov_b32 v15, s{S.T0}")
    sigmoid(15, 15)
    rnd(15, 15)
    a("s_waitcnt vmcnt(0)")
    gates(False)
    a(f"s_cmp_lg_u32 s{S.WHICH}, 0")
    a(f"s_cselect_b32 s{S.T2}, s{S.T3}, s{S.T2}")
    a(f"s_cselect_b32 s{S.T0}, s{S.T5}, s{S.T0}")
    a(f"s_cselect_b32 s{S.T4}, s{S.T1}, s{S.T4}")
    a(f"v_xor_b32 v{VTAG}, s{S.IDX}, v{VTAG}")
    a(f"v_mov_b32 v36, s{S.T2}")
    a(f"v_mov_b32 v{CO}, s{S.T0}")
    a(f"v_mov_b32 v{CO+1}, s{S.T4}")
    a("v_lshlrev_b32 v34, 16, v35")
    a(f"v_and_b32 v35, {HIM}, v35")
    if o.psleep0:
        a(f"s_sleep {o.psleep0}")
    hold("pp")
    a(f"v_mov_b32 v9, {L_ZF}")
    a.label("L_tz_start")
    stamp(10)
    if o.psleep:
        a("s_branch L_zp1")
    a.label("L_zp")
    if o.psleep:
        a(f"s_sleep {o.psleep}")
        a.label("L_zp1")
    for i in range(7):
        if i and i % 2 == 0:
            a(f"s_add_u32 s{S.T0}, s{S.SI0}, {2048*i}")
        a(f"buffer_load_dwordx4 {V(40+4*i,4)}, v11, {R4(S.RWS)}, s{S.T0 if i >= 2 else S.SI0} offen offset:{2048*(i&1)} sc1")
    a(f"s_add_u32 s{S.SI0}, s{S.SI0}, {PARTC}")
    a(f"s_min_u32 s{S.SI0}, s{S.SI0}, s{S.SI1}")
    if o.stamps:
        a(f"s_add_u32 s{S.RC}, s{S.RC}, 256")
    spin()
    a("s_cbranch_scc1 L_zp_ok")
    for i in range(7):
        a(f"s_waitcnt vmcnt({6-i})")
        a(f"v_bitop3_b32 v{37 if i == 0 else 38 + (i & 1)}, v{41+4*i}, v{43+4*i}, v{VTAG} bitop3:0x7e")
        if i:
            a(f"v_add_f32 v40, v40, v{40+4*i}")
            a(f"v_add_f32 v42, v42, v{42+4*i}")
        if i and i % 2 == 0:
            a("v_or3_b32 v37, v37, v38, v39")
    a("v_cmp_ne_u32 vcc, 0, v37")
    a.nop(1)
    a("s_cbranch_vccnz L_zp")
    a.label("L_zp_ok")
    a("ds_read_b32 v12, v9")
    a(f"ds_read_b64 v[32:33], v10 offset:{L_XG2}")
    a(f"ds_read_b64 v[16:17], v10 offset:{L_XG2+2048}")
    a("v_lshrrev_b32 v11, 1, v10")
    a(f"s_lshl_b32 s{S.T2}, s{S.IDX}, 10")
    a("s_waitcnt vmcnt(0)")
    stamp(11)
    a(f"v_add_f32_dpp v40, v40, v40 row_ror:8 {DPPM}")
    a(f"v_add_f32_dpp v42, v42, v42 row_ror:8 {DPPM}")
    a.nop(1)
    a.nop(1)
    a("v_permlane16_swap_b32 v40, v42")
    a("v_add_f32 v40, v40, v42")
    a("v_mov_b32 v42, v40")
    a.nop(2)
    a("v_permlane32_swap_b32 v40, v42")
    a("v_add_f32 v40, v40, v42")
    a("v_mov_b32 v42, v40")
    a.nop(2)
    a("v_permlane16_swap_b32 v40, v42")
    a("v_cvt_pk_bf16_f32 v41, v40, v42")
    a("v_lshlrev_b32 v40, 16, v41")
    a(f"v_and_b32 v42, {HIM}, v41")
    a("v_mul_f32 v40, v40, v15")
    a("v_mul_f32 v42, v42, v15")
    a("v_cvt_pk_bf16_f32 v41, v40, v42")
    a("v_lshlrev_b32 v40, 16, v41")
    a(f"v_and_b32 v42, {HIM}, v41")
    a("v_add_f32 v40, v40, v34")
    a("v_add_f32 v42, v42, v35")
    a("v_cvt_pk_bf16_f32 v41, v40, v42")
    a("v_lshlrev_b32 v40, 16, v41")
    a(f"v_and_b32 v42, {HIM}, v41")
    a.label("L_zw")
    a("s_waitcnt lgkmcnt(0)")
    a("v_cmp_eq_u32 vcc, 0, v12")
    a(f"v_mul_f32 v32, v{CO}, v32")
    a(f"v_mul_f32 v33, v{CO}, v33")
    a("s_cbranch_vccz L_zw_ok")
    spin()
    a("s_cbranch_scc1 L_zw_ok")
    a("ds_read_b32 v12, v9")
    a(f"ds_read_b64 v[32:33], v10 offset:{L_XG2}")
    a(f"ds_read_b64 v[16:17], v10 offset:{L_XG2+2048}")
    a("s_branch L_zw")
    a.label("L_zw_ok")
    a(f"v_fmac_f32 v32, v{CO+1}, v16")
    a(f"v_fmac_f32 v33, v{CO+1}, v17")
    a("v_fmac_f32 v32, v40, v36")
    a("v_fmac_f32 v33, v42, v36")
    a("v_cvt_pk_bf16_f32 v32, v32, v33")
    a("s_mov_b64 exec, 0xff")
    a(f"buffer_store_dword v32, v11, {R4(S.ROUT)}, s{S.T2} offen{o.zpol}")
    a("s_mov_b64 exec, -1")
    stamp(13)
    a("s_barrier")
    endprog()

    a.label("L_zsync")
    a(f"v_mov_b32 v9, {L_ZC}")
    a("v_mov_b32 v6, 1")
    a("s_mov_b64 exec, 1")
    a("ds_add_u32 v9, v6")
    a("s_mov_b64 exec, -1")
    a(f"s_cmp_lg_u32 s{S.WAVE}, 0")
    a("s_cbranch_scc1 L_zend")
    a.label("L_zs")
    a("ds_read_b32 v6, v9")
    spin()
    a("s_waitcnt lgkmcnt(0)")
    a("s_cbranch_scc1 L_zs_ok")
    a("v_cmp_ne_u32 vcc, 4, v6")
    a.nop(1)
    a("s_cbranch_vccnz L_zs")
    a.label("L_zs_ok")
    stamp(12)
    a(f"ds_read_b128 {V(UO,4)}, v{VUR0} offset:{L_U2}")
    a(f"ds_read_b128 {V(UO+4,4)}, v{VUR1} offset:{L_U2}")
    a(f"ds_read_b128 {V(UO+8,4)}, v{VUR0} offset:{L_U2+UB}")
    a(f"ds_read_b128 {V(UO+12,4)}, v{VUR1} offset:{L_U2+UB}")
    for k in range(4):
        a(f"s_waitcnt lgkmcnt({3-k})")
        a(f"{MF} {V(PQ+4*k,4)}, {V(UO+4*k,4)}, {V(M2+4*k,4)}, 0")
    a.nop(3)
    for k in range(4):
        if k == 2:
            a.nop(2)
        a(f"ds_write_b128 v15, {V(PQ+4*k,4)} offset:{L_XG2 + 64*(k&1) + 2048*(k>>1)}")
    a(f"v_mov_b32 v9, {L_ZF}")
    a("s_waitcnt lgkmcnt(0)")
    a("ds_write_b32 v9, v9")
    a("s_waitcnt lgkmcnt(0)")
    stamp(13)
    a.label("L_zend")
    endprog()
    a.label("L_zend2")
    if o.hold and o.hold[0] == "end":
        a("s_barrier")
    hold("end")
    endprog()

    a.label("L_zh")
    a(f"v_mov_b32 v9, {L_ZF}")
    a("v_mov_b32 v6, 0")
    a("ds_write2_b32 v9, v6, v6 offset1:1")
    const_d2()
    a(f"s_mov_b32 m0, {L_WV+1024}")
    tag_load()
    a(f"global_load_lds_dwordx4 v{VG16}, s[{S.PGW}:{S.PGW+1}]")
    a("s_waitcnt vmcnt(0)")
    tag_make()
    exp_make()
    poll_setup(WS_KEY + 1024 * RF * CF, RZ, CZ)
    if o.zsleep0:
        a(f"s_sleep {o.zsleep0}")
    stamp(1)
    poll_granules(VG16, 32, sleep=o.zsleep)
    stamp(2)
    wave_max_key(32)
    lds_put(L_KSL, 32, tag=True)
    a("s_barrier")
    a(f"s_lshl_b32 s{S.T0}, s{S.Z}, 2")
    a(f"s_add_u32 s{S.T0}, s{S.T0}, {WS_ALIVE}")
    a("s_mov_b64 exec, 1")
    a(f"buffer_store_dword v{VTAG}, v0, {R4(S.RWS)}, s{S.T0} offen sc1")
    a("s_mov_b64 exec, -1")
    a(f"s_cmp_lg_u32 s{S.Z}, 0")
    a("s_cbranch_scc1 L_zend")
    a("s_mov_b64 exec, 0xffff")
    a("v_lshlrev_b32 v6, 2, v0")
    a(f"s_mov_b32 s{S.T0}, {WS_ALIVE}")
    a("s_waitcnt vmcnt(0)")
    a("s_sleep 24")
    a.label("L_za")
    a(f"buffer_load_dword v7, v6, {R4(S.RWS)}, s{S.T0} offen sc1")
    spin()
    a("s_waitcnt vmcnt(0)")
    a("s_cbranch_scc1 L_za_ok")
    a(f"v_cmp_ne_u32 vcc, v{VTAG}, v7")
    a.nop(1)
    a("s_cbranch_vccnz L_za")
    a.label("L_za_ok")
    a("s_mov_b64 exec, 1")
    a(f"v_add_u32 v9, 1, v{VE}")
    a("s_barrier")
    a(f"buffer_store_dword v9, v6, {R4(S.RWS)}, 0 offen sc1")
    a("s_mov_b64 exec, -1")
    a("s_branch L_zend")

    a.label("L_F")
    if o.only == "A":
        a("s_endpgm")
    WG_, WD_ = 32, 48
    a("v_lshlrev_b32 v5, 4, v0")
    a(f"s_cmp_eq_u32 s{S.WAVE}, 8")
    a("s_cbranch_scc1 L_fh")
    a(f"s_and_b32 s{S.T0}, s{S.FJ}, 3")
    a(f"s_lshr_b32 s{S.T1}, s{S.WAVE}, 1")
    a(f"s_lshl2_add_u32 s{S.L0}, s{S.T0}, s{S.T1}")
    a(f"s_mul_i32 s{S.T2}, s{S.L0}, {32*3584}")
    a(f"s_lshr_b32 s{S.L1}, s{S.FJ}, 2")
    a(f"s_lshl_b32 s{S.T3}, s{S.L1}, 7")
    a(f"s_add_u32 s{S.T2}, s{S.T2}, s{S.T3}")
    a("v_lshrrev_b32 v6, 3, v0")
    a("v_mul_u32_u24 v6, 3584, v6")
    a("v_and_b32 v7, 7, v0")
    a("v_bfe_u32 v8, v0, 4, 1")
    a("v_lshlrev_b32 v8, 2, v8")
    a("v_xor_b32 v4, v7, v8")
    a(f"v_lshl_add_u32 v7, v4, 4, s{S.T2}")
    a("v_add_u32 v3, v6, v7")
    a(f"s_lshl_b32 s{S.T4}, s{S.WAVE}, 12")
    a(f"s_mov_b32 m0, s{S.T4}")
    def w_dma():
        a(f"s_bitcmp1_b32 s{S.WAVE}, 0")
        a("s_waitcnt lgkmcnt(0)")
        a(f"s_cselect_b32 s{S.PWG}, s{S.PWU}, s{S.PWG}")
        a(f"s_cselect_b32 s{S.PWG+1}, s{S.PWU+1}, s{S.PWG+1}")
        if o.fdelay:
            a(f"s_sleep {o.fdelay}")
        for b in range(4):
            if b:
                a(f"s_add_u32 m0, s{S.T4}, {1024*b}")
                a(f"v_add_u32 v3, {8*3584}, v3")
            if o.wthr and b >= o.wthr:
                a(f"s_waitcnt vmcnt({o.wthr - 1})")
            a(f"global_load_lds_dwordx4 v3, s[{S.PWG}:{S.PWG+1}]{o.wpol}")
        ws_setup()
        stamp(1)

    if not o.flate:
        w_dma()
    a("v_bfe_u32 v6, v0, 2, 2")
    a("v_and_b32 v7, 3, v0")
    a("v_lshlrev_b32 v8, 3, v7")
    a("v_lshl_add_u32 v8, v2, 5, v8")
    a("v_and_b32 v9, 2, v6")
    a("v_lshlrev_b32 v9, 5, v9")
    a("v_xor_b32 v9, v9, v8")
    a("v_lshl_add_u32 v9, v6, 7, v9")
    a(f"v_add_u32 v9, s{S.T4}, v9")
    a(f"s_lshl_b32 s{S.T5}, s{S.WAVE}, 8")
    a("v_lshlrev_b32 v11, 2, v0")
    a(f"v_add_u32 v11, {L_RED}, v11")
    a(f"v_add_u32 v12, s{S.T5}, v11")
    a(f"s_lshl1_add_u32 s{S.T1}, s{S.L1}, s{S.T1}")
    a(f"s_lshl_b32 s{S.T2}, s{S.T1}, 15")
    a(f"s_and_b32 s{S.T3}, s{S.WAVE}, 1")
    a(f"s_lshl1_add_u32 s{S.T3}, s{S.T0}, s{S.T3}")
    a(f"s_lshl_b32 s{S.T5}, s{S.T3}, 7")
    a(f"s_add_u32 s{S.T2}, s{S.T2}, s{S.T5}")
    a("v_lshrrev_b32 v6, 3, v0")
    a(f"v_lshl_add_u32 v6, v6, 10, s{S.T2}")
    a("v_lshl_add_u32 v4, v4, 4, v6")
    a("v_lshrrev_b32 v6, 5, v0")
    a(f"v_mul_u32_u24 v13, {PZ}, v6")
    a("v_and_b32 v6, 31, v0")
    a("v_lshl_add_u32 v13, v6, 3, v13")
    a(f"s_mul_i32 s{S.T2}, s{S.T3}, {2*PZ}")
    a(f"s_lshl_b32 s{S.T1}, s{S.T1}, 8")
    a(f"s_add_u32 s{S.T2}, s{S.T2}, s{S.T1}")
    a(f"s_add_u32 s{S.T2}, s{S.T2}, {WS_PART}")
    a(f"s_lshl_b32 s{S.L0}, s{S.L0}, 6")
    a(f"s_lshl_b32 s{S.L1}, s{S.L1}, 12")
    a(f"s_add_u32 s{S.PO}, s{S.L1}, {WS_XCH}")
    a(f"s_add_u32 s{S.POL}, s{S.PO}, {(o.xc-1)*XCHC}")
    a(f"s_lshl_b32 s{S.T1}, s{S.T0}, 10")
    a(f"s_add_u32 s{S.L1}, s{S.PO}, s{S.T1}")
    a(f"v_mov_b32 v14, {L_FKEY}")
    a(f"s_lshr_b32 s{S.T1}, s{S.WAVE}, 1")
    a(f"s_lshl_b32 s{S.T1}, s{S.T1}, 9")
    a(f"v_lshl_add_u32 v15, v6, 4, s{S.T1}")
    a("v_lshrrev_b32 v6, 5, v0")
    a("v_lshl_add_u32 v15, v6, 10, v15")
    a(f"s_mov_b32 s{S.PO0}, s{S.PO}")
    a(f"s_mov_b32 s{S.L10}, s{S.L1}")
    a(f"s_mov_b32 s{S.T20}, s{S.T2}")
    a(f"s_mov_b32 s{S.FIN}, 0")

    if o.flate:
        w_dma()

    def wd_dma():
        l = a.L("nowd")
        a(f"s_cmp_ge_u32 s{S.WAVE}, 4")
        a(f"s_cbranch_scc1 {l}")
        for b in range(4):
            a(f"s_add_u32 m0, s{S.T4}, {L_WD + 1024*b}")
            if b:
                a("v_add_u32 v4, 0x2000, v4")
            else:
                a.nop(1)
            a(f"global_load_lds_dwordx4 v4, s[{S.PWD}:{S.PWD+1}]")
        a.label(l)

    if o.wdpos == 0:
        wd_dma()
    a("s_waitcnt vmcnt(0)")
    stamp(2)
    if o.fw0:
        a("s_barrier")
    if o.wdpos == 1:
        wd_dma()
    if o.xpre:
        for i in range(2):
            a(f"buffer_load_dwordx4 {V(64+4*i,4)}, v15, {R4(S.RWS)}, s{S.PO} offen offset:{2048*i} sc1")
    for k in range(8):
        a(f"ds_read_b64_tr_b16 {V(WG_+2*k,2)}, v9 offset:{L_W + k*512}")
    if o.ftouch:
        touch("L_tf", o.ftouch, 0, 8)
    a("s_waitcnt lgkmcnt(0)")
    a("s_barrier")
    a.label("L_tf_start")
    a("ds_read_b64 v[26:27], v14")
    a("s_waitcnt lgkmcnt(0)")
    a(f"v_readfirstlane_b32 s{S.FKEY}, v26")
    a.label("L_redo")
    a(f"s_andn2_b32 s{S.T0}, 2047, s{S.FKEY}")
    a(f"s_lshl_b32 s{S.T1}, s{S.T0}, 10")
    a(f"s_add_u32 s{S.T1}, s{S.T1}, s{S.L0}")
    a(f"s_load_dwordx16 s[{S.XS}:{S.XS+15}], {PXS}, s{S.T1}")
    stamp(5)
    a(f"v_xor_b32 v{VTAG}, s{S.T0}, v27")
    a(f"v_xor_b32 v29, s{S.T0}, v27")
    for r in (16, 17, 24, 25):
        a(f"v_mov_b32 v{r}, 0")
    a(f"s_mov_b32 s{S.PO}, s{S.PO0}")
    a(f"s_mov_b32 s{S.L1}, s{S.L10}")
    a(f"s_mov_b32 s{S.T2}, s{S.T20}")
    a(f"s_mov_b32 s{S.KM}, 0")
    a("s_waitcnt lgkmcnt(0)")
    for i in range(16):
        a(f"v_dot2c_f32_bf16 v{16+(i&1)}, s{S.XS+i}, v{WG_+i}")
    stamp(6)
    a.nop(3)
    a("v_add_f32 v16, v16, v17")
    a("ds_write_b32 v12, v16")
    a("s_waitcnt lgkmcnt(0)")
    a("s_barrier")
    a(f"s_lshl_b32 s{S.T0}, s{S.WAVE}, 4")
    a(f"s_lshl_b64 s[{S.EX}:{S.EX+1}], 0xffff, s{S.T0}")
    for i, (p, q) in enumerate(((0, 2), (4, 6), (1, 3), (5, 7))):
        a(f"ds_read2st64_b32 v[{16+2*i}:{17+2*i}], v11 offset0:{p} offset1:{q}")
    a("s_waitcnt lgkmcnt(2)")
    a("v_add_f32 v16, v16, v17")
    a("v_add_f32 v18, v18, v19")
    a("s_waitcnt lgkmcnt(0)")
    a("v_add_f32 v20, v20, v21")
    a("v_add_f32 v22, v22, v23")
    a("v_add_f32 v28, v16, v18")
    a(f"s_mov_b64 exec, s[{S.EX}:{S.EX+1}]")
    a("v_add_f32 v30, v20, v22")
    a(f"s_cmp_ge_u32 s{S.WAVE}, 4")
    a("s_cbranch_scc1 L_f5")
    a(f"buffer_store_dwordx4 v[28:31], v5, {R4(S.RWS)}, s{S.L1} offen{'' if o.xl2 else ' sc1'}")
    a("s_mov_b64 exec, -1")
    stamp(7)
    a("s_waitcnt vmcnt(1)")
    for k in range(8):
        a(f"ds_read_b64_tr_b16 {V(WD_+2*k,2)}, v9 offset:{L_WD + k*512}")
    if o.xsleep0:
        a(f"s_sleep {o.xsleep0}")
    stamp(8)
    a.label("L_fx")
    for i in range(2):
        a(f"buffer_load_dwordx4 {V(64+4*i,4)}, v15, {R4(S.RWS)}, s{S.PO} offen offset:{2048*i} sc1")
    if o.xl2:
        a(f"s_add_u32 s{S.KM}, s{S.KM}, 1")
        a(f"s_cmp_ge_u32 s{S.KM}, {o.xl2}")
        a(f"s_cselect_b32 s{S.T0}, {XCHC}, 0")
        a(f"s_add_u32 s{S.PO}, s{S.PO}, s{S.T0}")
    else:
        a(f"s_add_u32 s{S.PO}, s{S.PO}, {XCHC}")
    a(f"s_min_u32 s{S.PO}, s{S.PO}, s{S.POL}")
    if o.stamps:
        a(f"s_add_u32 s{S.RC}, s{S.RC}, 1")
    spin()
    a("s_cbranch_scc1 L_fx_ok")
    a("s_waitcnt vmcnt(1)")
    a(f"v_bitop3_b32 v20, v65, v67, v{VTAG} bitop3:0x7e")
    a("s_waitcnt vmcnt(0)")
    a("v_add_f32 v16, v64, v68")
    a("v_add_f32 v18, v66, v70")
    a(f"v_bitop3_b32 v21, v69, v71, v{VTAG} bitop3:0x7e")
    a("v_or_b32 v20, v20, v21")
    a("v_cmp_ne_u32 vcc, 0, v20")
    a("v_permlane32_swap_b32 v16, v18")
    a("s_cbranch_vccnz L_fxr")
    a.label("L_fx_ok")
    stamp(9)
    a("v_add_f32 v16, v16, v18")
    rnd(16, 16)
    a("v_mov_b32 v18, v16")
    sigmoid(17, 16)
    a("v_permlane32_swap_b32 v16, v18")
    a("v_mul_f32 v17, v17, v16")
    rnd(17, 17)
    a("v_mul_f32 v17, v17, v18")
    a.nop(2)
    a(f"v_mov_b32_dpp v18, v17 quad_perm:[1,0,3,2] {DPPM}")
    a("v_cvt_pk_bf16_f32 v17, v17, v18")
    a.nop(1)
    for i in range(16):
        a(f"v_readlane_b32 s{S.XS+i}, v17, {2*i}")
    a("s_waitcnt lgkmcnt(0)")
    for i in range(16):
        a(f"v_dot2c_f32_bf16 v{24+(i&1)}, s{S.XS+i}, v{WD_+i}")
    a.nop(3)
    a("v_add_f32 v30, v24, v25")
    for c in range(o.pc):
        if c:
            a(f"s_add_u32 s{S.T2}, s{S.T2}, {PARTC}")
        a(f"buffer_store_dwordx2 v[30:31], v13, {R4(S.RWS)}, s{S.T2} offen sc1")
    stamp(10)
    a.label("L_fend")
    a(f"s_cmp_lg_u32 s{S.FIN}, 0")
    a("s_cbranch_scc1 L_fexit")
    a("s_barrier")
    a("ds_read_b32 v26, v14 offset:8")
    a(f"s_mov_b32 s{S.FIN}, 1")
    a("s_waitcnt lgkmcnt(0)")
    a(f"v_readfirstlane_b32 s{S.T0}, v26")
    a(f"s_cmp_eq_u32 s{S.T0}, s{S.FKEY}")
    a(f"s_mov_b32 s{S.FKEY}, s{S.T0}")
    if o.stamps:
        a(f"s_cselect_b32 s{S.T1}, 0, 64")
        a(f"s_add_u32 s{S.RC}, s{S.RC}, s{S.T1}")
        a(f"s_cmp_eq_u32 s{S.T1}, 0")
    a("s_cbranch_scc0 L_redo")
    a.label("L_fexit")
    endprog()
    a.label("L_f5")
    for c in range(1, o.xc):
        a(f"s_add_u32 s{S.L1}, s{S.L1}, {XCHC}")
        a(f"buffer_store_dwordx4 v[28:31], v5, {R4(S.RWS)}, s{S.L1} offen sc1")
    a("s_mov_b64 exec, -1")
    a("s_branch L_fend")
    a.label("L_fxr")
    a("ds_read_b32 v26, v14 offset:8")
    a("s_waitcnt lgkmcnt(0)")
    a(f"v_readfirstlane_b32 s{S.T0}, v26")
    a(f"s_cmp_eq_u32 s{S.T0}, 0")
    a("s_cbranch_scc1 L_fx")
    a(f"s_cmp_eq_u32 s{S.T0}, s{S.FKEY}")
    a("s_cbranch_scc1 L_fx")
    a("s_branch L_fend")

    a.label("L_fh")
    a("s_waitcnt lgkmcnt(0)")
    if o.fesleep:
        a(f"s_sleep {o.fesleep}")
    tag_load()
    ws_setup()
    a(f"v_mov_b32 v14, {L_FKEY}")
    a("v_mov_b32 v6, 0")
    a("ds_write_b32 v14, v6 offset:8")
    if o.spec:
        poll_setup(WS_KEY + 1024 * (RF * CF + RZ * CZ + R2 * C2), 8, 1)
        a(f"s_sleep {o.spec}")
        a("s_waitcnt vmcnt(0)")
        tag_make()
        stamp(1)
        a(f"buffer_load_dwordx4 v[20:23], v5, {R4(S.RWS)}, s{S.PO} offen sc1")
        poll_setup(WS_KEY, RF, CF)
        a("s_waitcnt vmcnt(0)")
        stamp(2)
        a(f"v_cmp_ne_u32 vcc, v{VTAG}, v21")
        a(f"v_cmp_ne_u32 s[{S.EX}:{S.EX+1}], v{VTAG}, v23")
        a("s_mov_b64 exec, vcc")
        a("v_mov_b32 v20, 0")
        a(f"s_mov_b64 exec, s[{S.EX}:{S.EX+1}]")
        a("v_mov_b32 v22, 0")
        a("s_mov_b64 exec, -1")
        a(f"s_or_b64 s[{S.EY}:{S.EY+1}], vcc, s[{S.EX}:{S.EX+1}]")
        wave_max_key(20)
        lds_put(L_FKEY, 20, tag=True)
        a("s_barrier")
        a(f"s_cmp_eq_u64 s[{S.EY}:{S.EY+1}], 0")
        a("s_cbranch_scc1 L_fh2")
        if o.fsleep0:
            a(f"s_sleep {o.fsleep0}")
        stamp(3)
        poll_granules(5, 20, sleep=o.fsleep)
        stamp(4)
        wave_max_key(20)
        a.label("L_fh2")
        lds_put(L_FKEY + 8, 20)
    else:
        poll_setup(WS_KEY, RF, CF)
        if o.fsleep0:
            a(f"s_sleep {o.fsleep0}")
        a("s_waitcnt vmcnt(0)")
        tag_make()
        stamp(3)
        poll_granules(5, 20, sleep=o.fsleep)
        stamp(4)
        wave_max_key(20)
        lds_put(L_FKEY, 20, tag=True)
        a("s_barrier")
        lds_put(L_FKEY + 8, 20)
    a("s_barrier")
    endprog()
    a.label("L_end")
    a("s_endpgm")
    return name


def main():
    ap = argparse.ArgumentParser()
    ap.add_argument("-o", required=True)
    for k, d in dict(stamps=0, pc=1, xc=2, zsleep=8, zsleep0=24, psleep=0, psleep0=22, rsleep=3, ackwait=1, hipre=0, tlate=1,
                     mode=0, k2ack=1, k2sleep0=6, zk2sleep0=0, k2sleep=5, fbar=0, cpf=2, probe=-1, wsoff=0, flate=1, b1a=1, skew=0, gate=1, lds=0, nsgpr=102, prio=1, stag=0, spec=0, b0=2, wthr=0, xpre=0, atouch=10, ftouch=8, xl2=5, npre=3, gfirst=0, isleep0=0, zisleep0=5, b3=1, ztouch=8, zstep=128, touch=0, wdpos=1, wpf=2, fesleep=0, fw0=0, xack=0, fdelay=0, xsleep0=3, fsleep0=37, fsleep=4, spin=17).items():
        ap.add_argument("--" + k, type=int, default=d)
    for k in ("wpol", "outpol", "zpol", "only"):
        ap.add_argument("--" + k, default="")
    ap.add_argument("--mf", default="8,2")
    ap.add_argument("--mz", default="1,3")
    ap.add_argument("--m2", default="8,2")
    ap.add_argument("--hold", default="")
    o = ap.parse_args()
    if o.hold:
        o.hold = o.hold.split(":")
    for k in ("mf", "mz", "m2"):
        setattr(o, k, [int(v) for v in getattr(o, k).split(",")])
    for k in ("wpol", "outpol", "zpol"):
        setattr(o, k, (" " + getattr(o, k)) if getattr(o, k) else "")
    a = Asm()
    name = gen(a, o)
    if o.touch:
        insert_stubs(a, [("L_ta_start", "L_ta_end", "L_ta", "L_taback", 9)], step=o.touch)
    reg = []
    if o.atouch:
        reg.append(("L_zjoin", "L_tb_end", "L_tb", "L_tbback", o.atouch))
    if o.ztouch:
        reg.append(("L_tz_start", "L_zend", "L_tz", "L_tzback", o.ztouch))
    if o.ftouch:
        reg.append(("L_tf_start", "L_fend", "L_tf", "L_tfback", o.ftouch))
    if reg:
        insert_stubs(a, reg, step=o.zstep)
    finish(a, name, NVGPR, o.nsgpr, NWG, 576, o.lds or LDS_BYTES, o.o)


main()
```

```python
import argparse
from lib import *

NA, NF, NZ = 128, 112, 16
NWG = NA + NF + NZ
WS_E = 0
WS_ALIVE = 4096
WS_KEY = 64 << 10
WS_KEY2 = 128 << 10
WS_XCH = 192 << 10
XCHC = 28 * 4096
WS_PART = 704 << 10
PZ = 56 * 256
PARTC = NZ * PZ
WS_INT = 2 << 20
CS = 32768 + 256
WS_STAMP = 8 << 20
WS_BYTES = 16 << 20
L_TILE = 0
L_U2 = 16384
L_CT = L_U2
UB = 17 * 64
L_MISC = L_U2 + 16 * UB
L_KSL = L_MISC
L_GKEY = L_MISC + 64
L_ZC = L_MISC + 76
L_ZF = L_MISC + 72
L_EXP = L_MISC + 128
L_DUMP = L_MISC + 192
L_XG2 = L_DUMP + 4 * UB + 256
L_M2 = L_XG2 + 4096
L_WV = L_M2 + 4096
L_XT = L_WV + 2048
L_W = 0
L_WD = 32768
L_RED = L_WD + 16384
L_FKEY = L_RED + 2048
LDS_BYTES = 84 * 1024
MF = "v_mfma_f32_16x16x32_bf16"
LOG2E = 0x3fb8aa3b
DPPM = "row_mask:0xf bank_mask:0xf"
HIM = "0xffff0000"
NVGPR = 168


class S:
    WAVE = 3
    PX = 4
    T0, T1, T2, T3, T4, T5 = 6, 7, 8, 9, 10, 11
    EX = 12
    EY = 14
    PWR, PWG, PWU, PWD, PGW, POUT, PDBG, PWS = 16, 18, 20, 22, 24, 26, 28, 30
    L0, L1, SPT, PIE = 32, 33, 34, 35
    RWS, ROUT = 36, 40
    XS = 44
    GKEY, WSEL, WHICH, Z = 44, 45, 46, 47
    SI0, SI1, ID8, BLK = 48, 49, 50, 51
    IDX, ISZ, TC = 54, 55, 53
    SO = 44
    T1C, HH, TD, TM = 56, 57, 58, 59
    FJ, PO, POL, RC, KM, SPIN = 60, 61, 62, 63, 64, 65
    PO0, L10, T20, FKEY, FIN = 40, 41, 42, 43, 35
    ST = 68


def gen(a, o):
    global WS_KEY, WS_XCH, WS_PART, WS_INT, WS_ALIVE, WS_BYTES
    WS_KEY += o.wsoff << 20
    WS_XCH += o.wsoff << 20
    WS_PART += o.wsoff << 20
    WS_INT += o.wsoff << 20
    WS_ALIVE += o.wsoff << 20
    WS_BYTES = max(WS_BYTES, (o.wsoff + 8) << 20)
    name = NAME + "_kernel"
    kernel_head(a, name)
    VE, VTAG = 30, 31
    PXS = f"s[{S.PX}:{S.PX+1}]"

    def stamp(i):
        if o.stamps:
            a(f"s_memrealtime s[{S.ST+2*i}:{S.ST+2*i+1}]")

    def hold(cp):
        if o.hold and o.hold[0] == cp:
            l = a.L("hold")
            a.label(l)
            a("s_sleep 1")
            a("s_memrealtime s[100:101]")
            a("s_waitcnt lgkmcnt(0)")
            a("s_sub_u32 s100, s100, s66")
            a(f"s_cmp_lt_u32 s100, {o.hold[1]}")
            a(f"s_cbranch_scc1 {l}")

    def touch(pre, n, first, step, back=None, tail=None):
        a("s_mov_b64 exec, 0")
        a(f"s_sub_u32 s{S.TC}, s{S.WAVE}, {first + step}")
        a.label(f"{pre}back")
        a(f"s_add_u32 s{S.TC}, s{S.TC}, {step}")
        for k in range(n):
            a(f"s_cmp_eq_u32 s{S.TC}, {k}")
            a(f"s_cbranch_scc1 {pre}{k}")
        a("s_mov_b64 exec, -1")

    def endprog():
        if o.stamps:
            a("s_waitcnt lgkmcnt(0)")
            a(f"s_add_u32 s{S.ST+28}, s{S.RC}, s{S.ST+30}")
            for i in range(16):
                a(f"v_writelane_b32 v166, s{S.ST+2*i}, {i}")
            a("s_mov_b64 exec, 0xffff")
            a(f"s_lshl4_add_u32 s{S.T0}, s2, s{S.WAVE}")
            a(f"s_lshl_b32 s{S.T0}, s{S.T0}, 7")
            a(f"s_add_u32 s{S.T0}, s{S.T0}, {WS_STAMP}")
            a(f"v_lshl_add_u32 v165, v0, 3, s{S.T0}")
            a("v_mov_b32 v167, 0")
            a(f"global_store_dwordx2 v165, v[166:167], s[{S.PWS}:{S.PWS+1}]" + (" sc1" if o.ev else ""))
        a("s_endpgm")

    def spin():
        a(f"s_add_u32 s{S.SPIN}, s{S.SPIN}, 1")
        a(f"s_lshr_b32 s{S.SPT}, s{S.SPIN}, {o.spin}")

    def poll_setup(base, R, C):
        a(f"s_and_b32 s{S.PO}, s2, {R-1}")
        a(f"s_mul_i32 s{S.PO}, s{S.PO}, {1024*C}")
        a(f"s_add_u32 s{S.PO}, s{S.PO}, {base}")
        a(f"s_add_u32 s{S.POL}, s{S.PO}, {1024*(C-1)}")

    def set_exec(n):
        if n >= 64:
            a("s_mov_b64 exec, -1")
        elif n <= 31:
            a(f"s_mov_b64 exec, {(1 << n) - 1:#x}")
        else:
            a("s_mov_b32 exec_lo, -1")
            a(f"s_mov_b32 exec_hi, {(1 << (n - 32)) - 1:#x}")

    RS = 8 if o.spec else 0
    RF, CF = o.mf
    RZ, CZ = o.mz
    R2, C2 = o.m2
    assert RF * CF + RZ * CZ + R2 * C2 + RS <= 64

    def poll_granules(vaddr, vd, sleep=0, step=1024):
        l = a.L("poll")
        if sleep:
            a(f"s_branch {l}_1")
        a.label(l)
        if sleep:
            a(f"s_sleep {sleep}")
            a.label(f"{l}_1")
        a(f"buffer_load_dwordx4 {V(vd,4)}, v{vaddr}, {R4(S.RWS)}, s{S.PO} offen sc1")
        a(f"s_add_u32 s{S.PO}, s{S.PO}, {step}")
        a(f"s_min_u32 s{S.PO}, s{S.PO}, s{S.POL}")
        if o.stamps:
            a(f"s_add_u32 s{S.RC}, s{S.RC}, 1")
        spin()
        a("s_waitcnt vmcnt(0)")
        a(f"s_cbranch_scc1 {l}_ok")
        a(f"v_cmp_ne_u32 vcc, v{VTAG}, v{vd+1}")
        a(f"v_cmp_ne_u32 s[{S.EX}:{S.EX+1}], v{VTAG}, v{vd+3}")
        a(f"s_or_b64 vcc, vcc, s[{S.EX}:{S.EX+1}]")
        a(f"s_cbranch_vccnz {l}")
        a.label(f"{l}_ok")

    def wave_max_key(vd):
        a(f"v_max_u32 v{vd}, v{vd}, v{vd+2}")
        for r in ("row_ror:8", "row_ror:4", "row_ror:2", "row_ror:1"):
            a.nop(2)
            a(f"v_max_u32_dpp v{vd}, v{vd}, v{vd} {r} {DPPM}")
        a.nop(2)
        a(f"v_max_u32_dpp v{vd}, v{vd}, v{vd} row_bcast:15 row_mask:0xa bank_mask:0xf")
        a.nop(2)
        a(f"v_max_u32_dpp v{vd}, v{vd}, v{vd} row_bcast:31 row_mask:0xc bank_mask:0xf")

    def lds_put(addr, v, tag=False):
        a(f"v_mov_b32 v9, {addr}")
        a("s_mov_b32 exec_lo, 0")
        a("s_brev_b32 exec_hi, 1")
        if tag:
            a(f"ds_write2_b32 v9, v{v}, v{VTAG} offset1:1")
        else:
            a(f"ds_write_b32 v9, v{v}")
        a("s_mov_b64 exec, -1")
        a("s_waitcnt lgkmcnt(0)")

    def sigmoid(d, s):
        a(f"v_mul_f32 v{d}, {LOG2E | 0x80000000:#x}, v{s}")
        a(f"v_exp_f32 v{d}, v{d}")
        a.nop(1)
        a(f"v_add_f32 v{d}, 1.0, v{d}")
        a(f"v_rcp_f32 v{d}, v{d}")
        a.nop(1)

    def rnd(d, s):
        a(f"v_cvt_pk_bf16_f32 v{d}, v{s}, v{s}")
        a(f"v_and_b32 v{d}, {HIM}, v{d}")

    def ws_setup():
        a.srd(S.RWS, S.PWS, WS_BYTES)
        a(f"s_mov_b32 s{S.SPIN}, 0")

    def tag_load():
        a(f"v_mov_b32 v{VTAG}, 0")
        a(f"global_load_dword v{VE}, v{VTAG}, s[{S.PWS}:{S.PWS+1}]")
        a(f"s_mov_b32 s{S.KM}, 0x9E3779B1")

    def tag_make():
        a(f"v_mul_lo_u32 v{VTAG}, v{VE}, s{S.KM}")
        a(f"v_add_u32 v{VTAG}, 0x7F4A7C15, v{VTAG}")

    a(f"s_load_dwordx2 s[{S.PX}:{S.PX+1}], s[0:1], {KA_X}")
    a(f"s_load_dwordx16 s[16:31], s[0:1], {KA_WR}")
    if o.stamps:
        for i in range(1, 16):
            a(f"s_mov_b32 s{S.ST+2*i}, 0")
        a(f"s_mov_b32 s{S.RC}, 0")
    stamp(0)
    if o.hold or o.probe >= 0:
        a("s_memrealtime s[66:67]")
    if o.skew:
        a("s_and_b32 s6, s2, 7")
        a("s_cmp_lg_u32 s6, 5")
        a("s_cbranch_scc1 L_noskew")
        a(f"s_sleep {o.skew}")
        a.label("L_noskew")
    a("v_lshrrev_b32 v1, 6, v0")
    a("v_and_b32 v0, 63, v0")
    a(f"v_readfirstlane_b32 s{S.WAVE}, v1")
    a("v_and_b32 v1, 15, v0")
    a("v_lshrrev_b32 v2, 4, v0")
    a(f"s_and_b32 s{S.T0}, s2, 7")
    a(f"s_sub_u32 s{S.WAVE}, s{S.WAVE}, 1")
    a(f"s_min_u32 s{S.WAVE}, s{S.WAVE}, 8")
    a(f"s_lshr_b32 s{S.T1}, s2, 3")
    a(f"s_cmp_ge_u32 s2, {NA}")
    a("s_cbranch_scc1 L_notA")
    if o.only == "F":
        a("s_endpgm")

    VROW, VG16, VSGN, VTR, VST = 3, 5, 8, 10, 11
    VLD, VUW, VUX, VUR0, VUR1 = 10, 11, 28, 29, 30
    XR, WR, GW, CO = 16, 24, 24, 24
    CM, AOP, ACC = 32, 96, 112
    LD, DA0, DA1, TP, X16, PK = 32, 64, 32, 80, 96, 48
    M1, GA, XG = 100, 148, 152
    Cc, Ss = 64, 68
    UO, PQ, M2 = 32, 48, 64

    def rows_setup(wreg):
        a(f"s_lshl3_add_u32 s{S.T5}, s{S.HH}, s{wreg}")
        a(f"s_lshl_b32 s{S.T5}, s{S.T5}, 7")
        a(f"s_add_u32 s{S.TD}, s{S.T5}, s{S.T1C}")
        a(f"s_sub_u32 s{S.TM}, 2048, s{S.TD}")
        a(f"s_cmp_eq_u32 s{S.TD}, 0")
        a(f"s_cselect_b32 s{S.TM}, 1024, s{S.TM}")
        a(f"s_lshl_b32 s{S.T4}, s{S.TD}, 10")
        a(f"s_lshl_b32 s{S.T5}, s{S.TM}, 10")
        a(f"v_add_u32 v6, s{S.T4}, v{VG16}")
        a(f"v_add_u32 v7, s{S.T5}, v{VG16}")

    def vrow_setup():
        a("v_and_b32 v6, 1, v2")
        a("v_lshlrev_b32 v6, 5, v6")
        a("v_lshl_add_u32 v6, v1, 6, v6")
        a("v_lshrrev_b32 v7, 1, v2")
        a(f"v_lshl_add_u32 v{VROW}, v7, 4, v6")

    def rows_load():
        a(f"global_load_dwordx4 {V(XR,4)}, v6, {PXS}")
        a(f"global_load_dwordx4 {V(XR+4,4)}, v7, {PXS}")

    def sgn_setup():
        a(f"v_lshlrev_b32 v{VSGN}, 31, v1")
        a(f"v_lshrrev_b32 v9, 16, v{VSGN}")
        a(f"v_or_b32 v{VSGN}, v{VSGN}, v9")

    def sgn_setup2():
        a(f"v_lshlrev_b32 v{VSGN}, 31, v1")
        a(f"v_lshrrev_b32 v14, 16, v{VSGN}")
        a(f"v_or_b32 v{VSGN}, v{VSGN}, v14")

    def tile_ids():
        a(f"s_bitcmp1_b32 s{S.T1}, 3")
        a(f"s_cselect_b32 s{S.T2}, s{S.T3}, s{S.T2}")
        a(f"s_and_b32 s{S.T3}, s{S.T1}, 7")
        a(f"s_lshl3_add_u32 s{S.BLK}, s{S.T2}, s{S.T3}")
        a(f"s_lshl_b32 s{S.PIE}, s{S.T2}, 5")
        a(f"s_add_u32 s{S.PIE}, s{S.PIE}, s{S.T3}")
        a(f"s_lshl_b32 s{S.PIE}, s{S.PIE}, 6")

    def vst_setup():
        a(f"v_mul_u32_u24 v{VST}, {CS}, v1")
        a(f"v_lshl_add_u32 v{VST}, v2, 4, v{VST}")

    def const_d2():
        R = 40
        a("v_lshlrev_b32 v6, 2, v2")
        a("v_cvt_f32_u32 v7, v1")
        a("v_cvt_f32_u32 v6, v6")
        a("v_mul_f32 v7, 0x3d800000, v7")
        for hf in range(2):
            if hf:
                a("v_add_f32 v7, 0x3d800000, v7")
            a("v_mul_f32 v9, v6, v7")
            for jj in range(4):
                a(f"v_cos_f32 v{Cc+jj}, v9")
                a(f"v_sin_f32 v{Ss+jj}, v9")
                if jj < 3:
                    a("v_add_f32 v9, v9, v7")
            a.nop(1)
            for jj in range(4):
                if hf == 0:
                    a(f"v_cvt_pk_bf16_f32 v{R+jj}, v{Cc+jj}, v{Ss+jj}")
                    a(f"v_cvt_pk_bf16_f32 v{R+8+jj}, -v{Ss+jj}, v{Cc+jj}")
                else:
                    a(f"v_cvt_pk_bf16_f32 v{R+4+jj}, v{Cc+jj}, -v{Ss+jj}")
                    a(f"v_cvt_pk_bf16_f32 v{R+12+jj}, -v{Ss+jj}, -v{Cc+jj}")
        for k in range(4):
            a(f"ds_write_b128 v{VG16}, {V(R+4*k,4)} offset:{L_M2 + 1024*k}")

    if o.touch:
        a("s_mov_b64 exec, 0")
        for k in range(9):
            a(f"s_cmp_eq_u32 s{S.WAVE}, {(k + 8) % 9}")
            a(f"s_cbranch_scc1 L_ta{k}")
        a.label("L_taback")
        a("s_mov_b64 exec, -1")
        a.label("L_ta_start")
    a(f"s_add_u32 s{S.T2}, s{S.T0}, 1")
    a(f"s_sub_u32 s{S.T3}, 15, s{S.T0}")
    a(f"s_cmp_eq_u32 s{S.WAVE}, 8")
    a("s_cbranch_scc1 L_ah")
    a(f"s_and_b32 s{S.HH}, s{S.T1}, 1")
    a(f"s_bitcmp1_b32 s{S.T1}, 1")
    a(f"s_cselect_b32 s{S.T4}, s{S.T3}, s{S.T2}")
    a(f"s_lshr_b32 s{S.T5}, s{S.T1}, 2")
    a(f"s_lshl4_add_u32 s{S.T1C}, s{S.T5}, s{S.T4}")
    a(f"v_lshlrev_b32 v{VG16}, 4, v0")
    a(f"v_mov_b32 v{VROW}, 0")
    a(f"s_cmp_lg_u32 s{S.T0}, 7")
    a("s_cbranch_scc1 L_k7")
    a(f"s_lshr_b32 s{S.T5}, s{S.T1}, 1")
    a(f"s_lshl3_add_u32 s{S.T1C}, s{S.T5}, 8")
    a(f"s_mov_b32 s{S.T2}, 0")
    a(f"s_cmp_eq_u32 s2, 127")
    a(f"s_cselect_b32 s{S.T1C}, 0, s{S.T1C}")
    a(f"s_cselect_b32 s{S.HH}, 0, s{S.HH}")
    a.label("L_k7")
    rows_setup(S.WAVE)
    a("s_waitcnt lgkmcnt(0)")
    rows_load()
    stamp(1)
    if o.b0 == 2:
        a("s_barrier")
    tile_ids()

    def tile_dma():
        a(f"s_lshl_b32 s{S.T4}, s{S.WAVE}, 11")
        a(f"s_add_u32 s{S.T5}, s{S.T4}, s{S.BLK}")
        a(f"s_lshl_b32 s{S.T5}, s{S.T5}, 7")
        a(f"s_mov_b32 m0, s{S.T4}")
        a("v_and_b32 v9, 7, v0")
        a("v_bfe_u32 v13, v0, 4, 1")
        a("v_xor_b32 v9, v9, v13")
        a("v_lshrrev_b32 v13, 3, v0")
        a(f"v_lshl_add_u32 v9, v9, 4, s{S.T5}")
        a("v_lshl_add_u32 v13, v13, 14, v9")
        a(f"global_load_lds_dwordx4 v13, {PXS}")
        a(f"s_add_u32 m0, s{S.T4}, 1024")
        a("v_add_u32 v13, 0x20000, v13")
        a(f"global_load_lds_dwordx4 v13, {PXS}")
        stamp(2)

    if not o.tlate:
        tile_dma()
    C1, S1, K = AOP, AOP + 4, AOP + 8
    a(f"s_lshr_b32 s{S.T0}, s{S.WAVE}, 2")
    a(f"s_and_b32 s{S.T1}, s{S.WAVE}, 1")
    a(f"s_bfe_u32 s{S.T2}, s{S.WAVE}, 0x10001")
    a(f"v_lshl_add_u32 v6, s{S.T0}, 4, v1")
    a(f"s_lshl3_add_u32 s{S.T3}, s{S.T2}, s{S.T1}")
    a(f"s_lshl_b32 s{S.T3}, s{S.T3}, 2")
    a("v_cvt_f32_u32 v6, v6")
    a(f"v_lshl_add_u32 v7, v2, 3, s{S.T3}")
    a("v_mul_f32 v6, 0x3c000000, v6")
    a("v_cvt_f32_u32 v7, v7")
    a("v_mul_f32 v7, v7, v6")
    for j in range(4):
        a(f"v_cos_f32 v{C1+j}, v7")
        a(f"v_sin_f32 v{S1+j}, v7")
        if j < 3:
            a("v_add_f32 v7, v7, v6")
    if o.tlate == 2:
        a(f"global_load_dwordx4 {V(WR,4)}, v{VG16}, s[{S.PWR}:{S.PWR+1}]")
        tile_dma()
    a(f"s_lshl_b32 s{S.T4}, s{S.T0}, 13")
    a(f"s_lshl_b32 s{S.T5}, s{S.T2}, 10")
    a(f"s_lshl3_add_u32 s{S.T5}, s{S.T1}, s{S.T5}")
    a(f"v_add_u32 v15, s{S.T4}, v{VG16}")
    a(f"v_add_u32 v9, s{S.T5}, v15")
    a(f"v_cvt_pk_bf16_f32 v{K+0}, v{C1}, v{C1+1}")
    a(f"v_cvt_pk_bf16_f32 v{K+1}, v{C1+2}, v{C1+3}")
    a(f"v_cvt_pk_bf16_f32 v{K+2}, -v{S1}, -v{S1+1}")
    a(f"v_cvt_pk_bf16_f32 v{K+3}, -v{S1+2}, -v{S1+3}")
    a("v_cmp_eq_f32 vcc, 0, v6")
    a(f"v_cvt_pk_bf16_f32 v{K+4}, v{C1}, -v{S1+1}")
    a(f"v_cvt_pk_bf16_f32 v{K+5}, -v{C1+2}, v{S1+3}")
    a(f"v_cvt_pk_bf16_f32 v{K+6}, -v{S1}, -v{C1+1}")
    a(f"v_cvt_pk_bf16_f32 v{K+7}, v{S1+2}, v{C1+3}")
    a(f"ds_write_b64 v9, {V(K,2)} offset:{L_CT}")
    a(f"ds_write_b64 v9, {V(K+4,2)} offset:{L_CT+4096}")
    a(f"ds_write_b64 v9, {V(K+6,2)} offset:{L_CT+6144}")
    a("s_mov_b64 exec, vcc")
    a(f"v_mov_b32 v{K+2}, 0xbf803f80")
    a(f"v_mov_b32 v{K+3}, 0xbf803f80")
    a("s_mov_b64 exec, -1")
    a(f"ds_write_b64 v9, {V(K+2,2)} offset:{L_CT+2048}")
    if o.tlate != 2:
        a(f"global_load_dwordx4 {V(WR,4)}, v{VG16}, s[{S.PWR}:{S.PWR+1}]")
    if o.tlate == 1:
        tile_dma()
    a("v_mov_b32 v12, 0")
    a("v_mov_b32 v13, 0")
    stamp(3)
    if o.b0 == 1:
        a("s_waitcnt lgkmcnt(0)")
        a("s_barrier")
        for k in range(2):
            for t in range(4):
                a(f"ds_read_b128 {V(CM+16*t+4*k,4)}, v15 offset:{L_CT + t*2048 + k*1024}")

    def dots(w, fill=()):
        fill = list(fill)

        def pad(n):
            while n and fill:
                a(fill.pop(0))
                n -= 1
            a.nop(n)

        for i in range(4):
            a(f"v_dot2c_f32_bf16 v12, v{XR+i}, v{w+i}")
            a(f"v_dot2c_f32_bf16 v13, v{XR+4+i}, v{w+i}")
        pad(3)
        a("v_permlane32_swap_b32 v12, v13")
        a("v_add_f32 v12, v12, v13")
        a("v_mov_b32 v13, v12")
        pad(2)
        a("v_permlane16_swap_b32 v12, v13")
        a("v_add_f32 v12, v12, v13")
        for r in (8, 4, 2, 1):
            pad(2)
            a(f"v_add_f32_dpp v12, v12, v12 row_ror:{r} {DPPM}")
        rnd(12, 12)
        for x in fill:
            a(x)

    a(f"s_waitcnt vmcnt({2 if o.tlate else 0})")
    stamp(4)
    dots(WR, [f"s_sub_u32 s{S.T4}, 0xffff, s{S.TD}", f"s_sub_u32 s{S.T5}, 0xffff, s{S.TM}", f"v_mov_b32 v4, s{S.T4}",
              f"v_writelane_b32 v4, s{S.T5}, 32", f"v_mov_b32 v9, {L_KSL}",
              f"v_lshlrev_b32 v{VSGN}, 31, v1", f"v_lshrrev_b32 v7, 16, v{VSGN}", f"v_or_b32 v{VSGN}, v{VSGN}, v7",
              "v_bfe_u32 v6, v0, 2, 2", "v_and_b32 v14, 3, v0", f"v_lshl_add_u32 v14, v14, 1, s{S.T2}",
              f"v_lshl_add_u32 v{VTR}, v2, 3, v6", "v_lshrrev_b32 v6, 1, v6", "v_xor_b32 v14, v14, v6"])
    a("v_ashrrev_i32 v7, 31, v12")
    a("v_or_b32 v7, 0x80000000, v7")
    a("v_xor_b32 v7, v7, v12")
    a(f"v_and_b32 v7, {HIM}, v7")
    a("v_or_b32 v7, v7, v4")
    a("s_mov_b32 exec_lo, 1")
    a("s_mov_b32 exec_hi, 1")
    a("ds_max_u32 v9, v7")
    a("s_mov_b64 exec, -1")
    if o.b1a:
        a("s_waitcnt lgkmcnt(0)")
        hold("K")
        a("s_barrier")
    if o.b0 == 2:
        for k in range(2):
            for t in range(4):
                a(f"ds_read_b128 {V(CM+16*t+4*k,4)}, v15 offset:{L_CT + t*2048 + k*1024}")
    a(f"s_lshl_b32 s{S.T1}, s{S.T1}, 3")
    a(f"v_lshl_add_u32 v14, v14, 4, s{S.T1}")
    a(f"v_lshl_add_u32 v{VTR}, v{VTR}, 7, v14")
    a("v_lshlrev_b32 v9, 4, v2")
    a("s_waitcnt vmcnt(0)" + ("" if o.b0 == 2 else " lgkmcnt(0)"))
    hold("B1")
    a("s_barrier")
    stamp(5)
    if o.b0 == 2:
        a("s_waitcnt lgkmcnt(5)")
    a(f"ds_read_b128 v[28:31], v9 offset:{L_EXP}")
    for k in range(4):
        for h in range(2):
            a(f"ds_read_b64_tr_b16 {V(AOP+4*k+2*h,2)}, v{VTR} offset:{L_TILE + k*4096 + h*512}")
        if k < 2 and not o.b0:
            for t in range(4):
                a(f"ds_read_b128 {V(CM+16*t+4*k,4)}, v15 offset:{L_CT + t*2048 + k*1024}")
        if k == 1 and not o.b0:
            a("s_waitcnt lgkmcnt(9)")
    a(f"global_load_dwordx4 {V(GW,4)}, v{VG16}, s[{S.PGW}:{S.PGW+1}]")
    xors = [f"v_xor_b32 v{CM+t*16+8+4*kp+r}, v{CM+t*16+4*kp+r}, v{VSGN}" for kp in range(2) for t in range(4) for r in range(4)]
    misc = [f"s_mul_i32 s{S.SO}, s{S.T0}, {16*CS}",
            f"s_add_u32 s{S.SO}, s{S.SO}, s{S.PIE}",
            f"s_and_b32 s{S.T4}, s{S.WAVE}, 3",
            f"s_lshl_b32 s{S.T4}, s{S.T4}, 9",
            f"s_add_u32 s{S.SO}, s{S.SO}, s{S.T4}",
            f"s_add_u32 s{S.SO}, s{S.SO}, {WS_INT}",
            f"s_mov_b32 s{S.RWS}, s{S.PWS}", f"s_mov_b32 s{S.RWS+1}, s{S.PWS+1}", f"s_mov_b32 s{S.RWS+2}, {WS_BYTES:#x}",
            f"s_mov_b32 s{S.RWS+3}, 0x20000",
            f"s_add_u32 s{S.SO+1}, s{S.SO}, {32*CS}", f"s_mov_b32 s{S.T5}, 0xfffefffe", f"s_mov_b32 s{S.T4}, 0x07060302",
            f"v_mul_u32_u24 v{VST}, {CS}, v1", f"v_lshl_add_u32 v{VST}, v2, 4, v{VST}",
            ]
    fill = xors + misc
    for k in range(4):
        for t in range(4):
            if o.b0:
                if t == 0:
                    a(f"s_waitcnt lgkmcnt({6-2*k})")
            elif k == 0:
                a(f"s_waitcnt lgkmcnt({13-t})")
            elif k == 1:
                a(f"s_waitcnt lgkmcnt({7-t})")
            elif t == 0:
                a(f"s_waitcnt lgkmcnt({2 if k == 2 else 0})")
            c = "0" if k == 0 else V(ACC + 4 * t, 4)
            a(f"{MF} {V(ACC+4*t,4)}, {V(AOP+4*k,4)}, {V(CM+16*t+4*k,4)}, {c}")
            n = 4 if k < 2 else 2
            if k < 3 or t < 3:
                for _ in range(n):
                    if fill:
                        x = fill.pop(0)
                        if x != "TAGWAIT":
                            a(x)
    for x in fill:
        a(x)
    a("v_mov_b32 v12, 0")
    a("v_mov_b32 v13, 0")
    for h in range(2):
        for i in range(8):
            a(f"v_add_u32 v{ACC+8*h+i}, 0x10000, v{ACC+8*h+i}")
        for i in range(4):
            a(f"v_perm_b32 v{AOP+4*h+i}, v{ACC+8*h+4+i}, v{ACC+8*h+i}, s{S.T4}")
        for i in range(4):
            a(f"v_and_or_b32 v{AOP+4*h+i}, v{AOP+4*h+i}, s{S.T5}, v{28+i}")
        a(f"buffer_store_dwordx4 {V(AOP+4*h,4)}, v{VST}, {R4(S.RWS)}, s{S.SO+h} offen sc1")
    a(f"s_mov_b32 s{S.SPIN}, 0")
    a(f"s_mov_b32 s{S.ISZ}, 0")
    stamp(7)
    if o.only == "P1":
        a("s_endpgm")
    a.label("L_ta_end")

    gwait = [2]

    def gates(full):
        if full:
            a(f"s_waitcnt vmcnt({gwait[0]})")
        dots(GW)
        if full:
            a(f"s_lshl_b32 s{S.T0}, s{S.WAVE}, 11")
            a(f"v_add_u32 v6, s{S.T0}, v{VG16}")
            a(f"ds_write_b128 v6, {V(XR,4)} offset:{L_XT}")
            a(f"ds_write_b128 v6, {V(XR+4,4)} offset:{L_XT+1024}")
            a(f"v_lshl_add_u32 v7, v1, 6, s{S.T0}")
            a("v_lshl_add_u32 v7, v2, 3, v7")
            a("s_waitcnt lgkmcnt(0)")
            for r in range(2):
                a(f"ds_read2_b64 {V(XR+4*r,4)}, v7 offset0:{0} offset1:{4}" if False else f"ds_read_b64 {V(XR+4*r,2)}, v7 offset:{L_XT+1024*r}")
                a(f"ds_read_b64 {V(XR+4*r+2,2)}, v7 offset:{L_XT+1024*r+32}")
            vrow_setup()
        sigmoid(13, 12)
        rnd(13, 13)
        a("v_sub_f32 v14, 1.0, v13")
        rnd(14, 14)
        a(f"v_readlane_b32 s{S.T0}, v13, 0")
        a(f"v_readlane_b32 s{S.T1}, v13, 32")
        a(f"v_readlane_b32 s{S.T2}, v14, 0")
        a(f"v_readlane_b32 s{S.T3}, v14, 32")
        a(f"s_xor_b32 s{S.T4}, s{S.T0}, 0x80000000")
        a(f"s_cmp_eq_u32 s{S.TD}, 0")
        a(f"s_cselect_b32 s{S.T4}, 0, s{S.T4}")
        a(f"s_cselect_b32 s{S.T5}, 0, s{S.T1}")
        if not full:
            return
        a(f"v_mov_b32 v{CO}, s{S.T0}")
        a(f"v_mov_b32 v{CO+1}, s{S.T4}")
        a(f"v_mov_b32 v{CO+2}, s{S.T5}")
        a(f"v_mov_b32 v{CO+3}, s{S.T1}")
        a(f"v_mov_b32 v13, s{S.T2}")
        a(f"v_mov_b32 v14, s{S.T3}")
        a("s_waitcnt lgkmcnt(0)")
        for r in range(2):
            for i in range(4):
                a(f"v_lshlrev_b32 v{XG+8*r+2*i}, 16, v{XR+4*r+i}")
                a(f"v_and_b32 v{XG+8*r+2*i+1}, {HIM}, v{XR+4*r+i}")
            for i in range(8):
                a(f"v_mul_f32 v{XG+8*r+i}, v{13+r}, v{XG+8*r+i}")

    def addr_ur(wreg):
        a(f"s_mul_i32 s{S.T1}, s{wreg}, {2*UB}")
        a("v_bfe_u32 v7, v1, 1, 2")
        a("v_xor_b32 v7, v7, v2")
        a(f"v_lshl_add_u32 v7, v7, 4, s{S.T1}")
        a(f"v_lshl_add_u32 v{VUR0}, v1, 6, v7")
        a("v_sub_u32 v6, 16, v1")
        a("v_bfe_u32 v7, v6, 1, 2")
        a("v_xor_b32 v7, v7, v2")
        a(f"v_lshl_add_u32 v7, v7, 4, s{S.T1}")
        a(f"v_lshl_add_u32 v{VUR1}, v6, 6, v7")

    def addr_p2():
        a("v_lshlrev_b32 v6, 4, v1")
        a(f"v_lshl_add_u32 v{VLD}, v2, 13, v6")
        a(f"v_mul_u32_u24 v6, {4*UB}, v2")
        a("v_bfe_u32 v7, v1, 1, 2")
        a(f"v_xor_b32 v7, s{S.WAVE}, v7")
        a("v_lshl_add_u32 v7, v7, 4, v6")
        a(f"v_lshl_add_u32 v{VUW}, v1, 6, v7")
        a(f"s_lshl4_add_u32 s{S.T1}, s{S.WAVE}, 1024")
        a(f"v_mov_b32 v9, {L_DUMP - L_U2}")
        a(f"v_lshl_add_u32 v{VUX}, v0, 1, v9")
        a(f"v_lshl_add_u32 v7, v1, 1, s{S.T1}")
        a("s_mov_b32 exec_lo, 0x00ff00ff")
        a("s_mov_b32 exec_hi, 0x00ff00ff")
        a(f"v_add_u32 v{VUX}, v7, v6")
        a("s_mov_b64 exec, -1")

    EXP = 96

    def exp_setup():
        a("v_and_b32 v6, 3, v1")
        a("v_lshlrev_b32 v6, 4, v6")
        a(f"ds_read_b128 {V(EXP,4)}, v6 offset:{L_EXP}")
        a("s_waitcnt lgkmcnt(0)")

    def exp_make():
        a("v_lshlrev_b32 v6, 1, v1")
        a(f"v_lshrrev_b32 v6, v6, v{VTAG}")
        a("v_lshlrev_b32 v7, 15, v6")
        a("v_and_b32 v6, 1, v6")
        a("v_and_b32 v7, 0x10000, v7")
        a("v_or_b32 v6, v6, v7")
        a("v_lshlrev_b32 v7, 2, v1")
        a(f"ds_write_b32 v7, v6 offset:{L_EXP}")
        a("s_waitcnt lgkmcnt(0)")

    def const_d1():
        a("v_cvt_f32_u32 v6, v1")
        a(f"s_lshl_b32 s{S.T0}, s{S.WAVE}, 2")
        a(f"v_lshl_add_u32 v7, v2, 6, s{S.T0}")
        a("v_mul_f32 v6, 0x3b000000, v6")
        a("v_cvt_f32_u32 v7, v7")
        a("v_mul_f32 v15, 0x41800000, v6")
        a("v_mul_f32 v7, v7, v6")
        for ib in range(4):
            if ib:
                a("v_add_f32 v7, v7, v6")
            for j in range(4):
                src = "v7" if j == 0 else "v9"
                a(f"v_cos_f32 v{Cc+j}, {src}")
                a(f"v_sin_f32 v{Ss+j}, {src}")
                if j < 3:
                    a(f"v_add_f32 v9, {src}, v15")
            b = M1 + 12 * ib
            a(f"v_mov_b32 v{b+8}, 0")
            for p in range(2):
                a(f"v_cvt_pk_bf16_f32 v{b+p}, v{Cc+2*p}, v{Cc+2*p+1}")
                a(f"v_cvt_pk_bf16_f32 v{b+4+p}, -v{Ss+2*p}, -v{Ss+2*p+1}")
            for p in range(2):
                a(f"v_xor_b32 v{b+2+p}, v{b+p}, v{VSGN}")
                a(f"v_xor_b32 v{b+6+p}, v{b+4+p}, v{VSGN}")
        a("v_lshrrev_b32 v6, 1, v1")
        a(f"v_add_u32 v7, s{S.T0}, v6")
        a("v_and_b32 v9, 1, v1")
        a("v_lshl_add_u32 v7, v9, 3, v7")
        a("v_cvt_f32_u32 v7, v7")
        a("v_mul_f32 v7, 0x3d000000, v7")
        a("v_cos_f32 v7, v7")
        for ib in range(4):
            m = 0x00030003 << (2 * ib)
            a(f"s_mov_b32 exec_lo, {m:#x}")
            a(f"s_mov_b32 exec_hi, {m:#x}")
            a(f"v_cvt_pk_bf16_f32 v{M1+12*ib+8}, v7, -v7")
        a("s_mov_b64 exec, -1")
        for ib in range(4):
            for p in range(1, 4):
                a(f"v_mov_b32 v{M1+12*ib+8+p}, v{M1+12*ib+8}")

    def const_ga():
        a("v_lshrrev_b32 v6, 1, v1")
        a(f"s_lshl_b32 s{S.T0}, s{S.HH}, 10")
        a(f"s_add_u32 s{S.T0}, s{S.T0}, s{S.T1C}")
        a(f"v_lshl_add_u32 v6, v6, 7, s{S.T0}")
        a("v_and_b32 v7, 1, v1")
        a("v_lshlrev_b32 v9, 9, v7")
        l0, ld = a.L("g0"), a.L("gd")
        a(f"s_cmp_lg_u32 s{S.T1C}, 0")
        a(f"s_cbranch_scc1 {l0}")
        a("s_mov_b32 exec_lo, 0x00020002")
        a("s_mov_b32 exec_hi, 0x00020002")
        a("v_mov_b32 v6, 0x400")
        a("v_mov_b32 v9, 0")
        a("s_mov_b64 exec, -1")
        a.label(l0)
        a("v_lshlrev_b32 v7, 2, v2")
        a("v_mad_u32_u24 v9, v7, v6, v9")
        a("v_cvt_f32_u32 v6, v6")
        a("v_cvt_f32_u32 v9, v9")
        a("v_mul_f32 v6, 0x3a000000, v6")
        a("v_mul_f32 v9, 0x3a000000, v9")
        for jj in range(4):
            a(f"v_cos_f32 v{Cc+jj}, v9")
            a(f"v_sin_f32 v{Ss+jj}, v9")
            if jj < 3:
                a("v_add_f32 v9, v9, v6")
        a(f"s_and_b32 s{S.T1}, s{S.T1C}, 63")
        a.nop(1)
        for jj in range(4):
            a(f"v_cvt_pk_bf16_f32 v{GA+jj}, v{Cc+jj}, v{Ss+jj}")
        a(f"s_cmp_lg_u32 s{S.T1}, 0")
        a(f"s_cbranch_scc1 {ld}")
        a(f"s_lshr_b32 s{S.T1}, s{S.T1C}, 2")
        for jj in range(4):
            a(f"v_and_b32 v{GA+jj}, 0xffff, v{GA+jj}")
            a(f"v_lshlrev_b32 v{GA+jj}, s{S.T1}, v{GA+jj}")
        a.label(ld)

    def int_base():
        a(f"s_and_b32 s{S.T1}, s{S.T1C}, 63")
        a(f"s_mul_i32 s{S.L0}, s{S.T1}, {CS}")
        a(f"s_lshl_b32 s{S.T1}, s{S.WAVE}, 9")
        a(f"s_add_u32 s{S.L0}, s{S.L0}, s{S.T1}")
        a(f"s_add_u32 s{S.L0}, s{S.L0}, {WS_INT}")
        a(f"s_add_u32 s{S.L1}, s{S.L0}, 4096")

    def m2_addr():
        a(f"s_cmp_eq_u32 s{S.TD}, 0")
        a(f"s_cselect_b32 s{S.T0}, 0, 2048")
        a(f"v_add_u32 v4, s{S.T0}, v{VG16}")

    def int_loads(ah):
        for jj in range(4):
            so = S.L0 if jj < 2 else S.L1
            a(f"buffer_load_dwordx4 {V(LD+16*ah+4*jj,4)}, v{VLD}, {R4(S.RWS)}, s{so} offen offset:{(jj & 1)*2048 + ah*256} sc1")

    a.srd(S.ROUT, S.POUT, 0x200000)
    a(f"s_cmp_ge_u32 s{S.WAVE}, 4")
    a("s_cbranch_scc1 L_hi0")
    if o.prio & 1:
        a("s_setprio 2")
    pre = [lambda: (addr_p2(), int_base(), const_ga(), exp_setup()), const_d1, lambda: gates(True), lambda: (addr_ur(S.WAVE), m2_addr())]
    if o.gfirst:
        pre[1], pre[2] = pre[2], pre[1]
    for f in pre[:o.npre]:
        f()
    stamp(8)
    a(f"s_waitcnt vmcnt({0 if o.ackwait else 2})")
    if o.b3:
        a("s_barrier")
    if o.isleep0:
        a(f"s_sleep {o.isleep0}")
    hold("B4")
    stamp(9)
    if o.stag:
        a(f"s_cmp_lg_u32 s{S.HH}, 0")
        a("s_cbranch_scc1 L_stg1")
        int_loads(0)
        a(f"s_waitcnt vmcnt({4 - o.stag})")
        int_loads(1)
        a("s_branch L_stg2")
        a.label("L_stg1")
        int_loads(1)
        a(f"s_waitcnt vmcnt({4 - o.stag})")
        int_loads(0)
        a("s_waitcnt vmcnt(0)")
        a.label("L_stg2")
    else:
        int_loads(0)
        int_loads(1)
    gwait[0] = 10
    for f in pre[o.npre:]:
        f()
    gwait[0] = 2
    a.label("L_zjoin")
    stamp(10)
    for ah in range(2):
        a(f"s_waitcnt vmcnt({4-4*ah})")
        a.label(f"L_got{ah}")
        b = LD + 16 * ah
        da = DA1 if ah else DA0
        for ib in range(4):
            for jj in range(4):
                a(f"v_xor_b32 v{TP+4*ib+jj}, v{b+4*jj+ib}, v{EXP+ib}")
            if ib == 0:
                a(f"v_or3_b32 v6, v{TP}, v{TP+1}, v{TP+2}")
                a(f"v_or_b32 v6, v6, v{TP+3}")
            else:
                a(f"v_or3_b32 v6, v6, v{TP+4*ib}, v{TP+4*ib+1}")
                a(f"v_or3_b32 v6, v6, v{TP+4*ib+2}, v{TP+4*ib+3}")
            if ib == 3:
                a("v_and_b32 v6, 0x10001, v6")
                a("v_cmp_ne_u32 vcc, 0, v6")
            if not (ah == 1):
                a(f"{MF} {V(da+4*ib,4)}, {V(TP+4*ib,4)}, {V(GA,4)}, 0")
            else:
                a(f"{MF} {V(da+4*ib,4)}, {V(TP+4*ib,4)}, {V(GA,4)}, 0")
        a(f"s_cbranch_vccnz L_retry{ah}")
        a.label(f"L_fail{ah}")
    stamp(11)

    def d1(jb):
        a(f"{MF} {V(DA0+4*jb,4)}, {V(TP+4*jb,4)}, {V(M1+12*jb,4)}, 0")
        a(f"{MF} {V(DA1+4*jb,4)}, {V(TP+4*jb,4)}, {V(M1+12*jb+4,4)}, 0")
        a(f"{MF} {V(X16,4)}, {V(TP+4*jb,4)}, {V(M1+12*jb+8,4)}, {'0' if jb == 0 else V(X16,4)}")

    for ib in range(4):
        for p in range(4):
            s0 = (DA1 if p >= 2 else DA0) + 4 * ib + 2 * (p & 1)
            a(f"v_cvt_pk_bf16_f32 v{TP+4*ib+p}, v{s0}, v{s0+1}")
        if ib:
            d1(ib - 1)
    d1(3)
    for ib in range(3):
        for i in range(4):
            a(f"v_cvt_pk_bf16_f32 v{PK+4*i+ib}, v{DA0+4*ib+i}, v{DA1+4*ib+i}")
    for i in range(4):
        a(f"v_cvt_pk_bf16_f32 v{PK+4*i+3}, v{DA0+12+i}, v{DA1+12+i}")
        a(f"ds_write_b128 v{VUW}, {V(PK+4*i,4)} offset:{L_U2 + i*UB}")
    a(f"v_cvt_pk_bf16_f32 v{X16}, v{X16}, v{X16+1}")
    a(f"v_cvt_pk_bf16_f32 v{X16+2}, v{X16+2}, v{X16+3}")
    a(f"ds_write_b16 v{VUX}, v{X16} offset:{L_U2}")
    a(f"ds_write_b16_d16_hi v{VUX}, v{X16} offset:{L_U2+UB}")
    a(f"ds_write_b16 v{VUX}, v{X16+2} offset:{L_U2+2*UB}")
    a(f"ds_write_b16_d16_hi v{VUX}, v{X16+2} offset:{L_U2+3*UB}")
    a.label("L_d2")
    a(f"ds_read_b128 {V(M2,4)}, v{VG16} offset:{L_M2}")
    a(f"ds_read_b128 {V(M2+4,4)}, v{VG16} offset:{L_M2+1024}")
    a(f"ds_read_b128 {V(M2+8,4)}, v4 offset:{L_M2}")
    a(f"ds_read_b128 {V(M2+12,4)}, v4 offset:{L_M2+1024}")
    a(f"v_mov_b32 v9, {L_GKEY}")
    a(f"s_cmp_lg_u32 s{S.ISZ}, 0")
    a("s_waitcnt lgkmcnt(0)")
    a("s_cbranch_scc1 L_zsync")
    a("s_barrier")
    stamp(12)
    a("ds_read_b32 v6, v9")
    a(f"ds_read_b128 {V(UO,4)}, v{VUR0} offset:{L_U2}")
    a(f"ds_read_b128 {V(UO+4,4)}, v{VUR1} offset:{L_U2}")
    a(f"ds_read_b128 {V(UO+8,4)}, v{VUR0} offset:{L_U2+UB}")
    a(f"ds_read_b128 {V(UO+12,4)}, v{VUR1} offset:{L_U2+UB}")
    a(f"s_lshl_b32 s{S.T0}, s{S.TD}, 10")
    a(f"s_lshl_b32 s{S.T1}, s{S.TM}, 10")
    for k in range(4):
        a(f"s_waitcnt lgkmcnt({3-k})")
        a(f"{MF} {V(PQ+4*k,4)}, {V(UO+4*k,4)}, {V(M2+4*k,4)}, 0")
    a(f"v_readfirstlane_b32 s{S.GKEY}, v6")
    a(f"s_andn2_b32 s{S.IDX}, 0xffff, s{S.GKEY}")
    for r in range(2):
        for i in range(8):
            a(f"v_fmac_f32 v{XG+8*r+i}, v{CO+2*r}, v{PQ+i}")
    for r, (so, tr) in enumerate(((S.T0, S.TD), (S.T1, S.TM))):
        for i in range(8):
            a(f"v_fmac_f32 v{XG+8*r+i}, v{CO+2*r+1}, v{PQ+8+i}")
        for i in range(4):
            a(f"v_cvt_pk_bf16_f32 v{UO+4*r+i}, v{XG+8*r+2*i}, v{XG+8*r+2*i+1}")
        l = a.L("skip")
        if r == 0:
            stamp(6)
        a(f"s_cmp_eq_u32 s{tr}, s{S.IDX}")
        a(f"s_cbranch_scc1 {l}")
        a(f"v_permlane16_swap_b32 v{UO+4*r}, v{UO+4*r+2}")
        a(f"v_permlane16_swap_b32 v{UO+4*r+1}, v{UO+4*r+3}")
        a(f"buffer_store_dwordx4 {V(UO+4*r,4)}, v{VROW}, {R4(S.ROUT)}, s{so} offen{o.outpol}")
        a.label(l)
    a.label("L_tb_end")
    stamp(13)
    if o.stamps:
        a("s_waitcnt vmcnt(0)")
        stamp(15)
    endprog()

    for ah in range(2):
        a.label(f"L_retry{ah}")
        if o.stamps:
            a(f"s_add_u32 s{S.RC}, s{S.RC}, {1 << (8*ah)}")
        if o.rsleep:
            a(f"s_sleep {o.rsleep}")
        spin()
        a(f"s_cbranch_scc1 L_fail{ah}")
        int_loads(ah)
        a("s_waitcnt vmcnt(0)")
        a(f"s_branch L_got{ah}")

    a.label("L_hi0")
    if o.b3:
        if o.ackwait:
            a("s_waitcnt vmcnt(0)")
        a("s_barrier")
    a.label("L_hi1")
    if o.atouch:
        touch("L_tb", o.atouch, 4, 4)
        a(f"s_cmp_lg_u32 s{S.ISZ}, 0")
        a("s_cbranch_scc1 L_z0b")
    gates(True)
    addr_ur(S.WAVE)
    m2_addr()
    stamp(10)
    a("s_branch L_d2")

    a.label("L_ah")
    if o.prio & 2:
        a("s_setprio 3")
    if o.cpf:
        a(f"s_cmp_ge_u32 s{S.T1}, {o.cpf}")
        a("s_cbranch_scc1 L_nocpf")
        a(f"s_getpc_b64 s[{S.EX}:{S.EX+1}]")
        a.label("L_pc")
        a(f"s_sub_u32 s{S.EX}, s{S.EX}, L_pc - {name}")
        a(f"s_subb_u32 s{S.EX+1}, s{S.EX+1}, 0")
        a("v_lshlrev_b32 v6, 7, v0")
        a("v_add_u32 v7, 0x2000, v6")
        a(f"v_min_u32 v7, L_end - {name}, v7")
        a(f"v_mov_b32 v13, s{S.EX+1}")
        a(f"v_mov_b32 v15, s{S.EX+1}")
        a(f"v_add_co_u32 v12, vcc, s{S.EX}, v6")
        a.nop(2)
        a("v_addc_co_u32 v13, vcc, 0, v13, vcc")
        a(f"v_add_co_u32 v14, vcc, s{S.EX}, v7")
        a.nop(2)
        a("v_addc_co_u32 v15, vcc, 0, v15, vcc")
        a("global_load_dword v10, v[12:13], off")
        a("global_load_dword v11, v[14:15], off")
        a.label("L_nocpf")
    a(f"v_lshlrev_b32 v{VG16}, 4, v0")
    a(f"v_mov_b32 v{VTAG}, 0")
    a(f"v_mov_b32 v9, {L_KSL}")
    a(f"ds_write_b32 v9, v{VTAG}")
    a(f"s_mov_b32 s{S.KM}, 0x9E3779B1")
    a(f"s_cmp_ge_u32 s{S.T1}, {o.wpf}")
    a("s_waitcnt lgkmcnt(0)")
    a("s_cbranch_scc1 L_nowpf")
    a(f"global_load_dwordx4 v[32:35], v{VG16}, s[{S.PWR}:{S.PWR+1}]")
    a(f"global_load_dword v{VE}, v{VTAG}, s[{S.PWS}:{S.PWS+1}]")
    a(f"global_load_dwordx4 v[36:39], v{VG16}, s[{S.PGW}:{S.PGW+1}]")
    a.label("L_nowpf")
    stamp(1)
    a("v_lshlrev_b32 v14, 10, v0")
    a(f"s_lshl_b32 s{S.ID8}, s2, 3")
    a(f"s_add_u32 s{S.ID8}, s{S.ID8}, {WS_KEY}")
    ws_setup()

    if o.b0 == 2:
        a("s_barrier")
    const_d2()
    a(f"global_load_dword v{VE}, v{VTAG}, s[{S.PWS}:{S.PWS+1}]")
    a("s_waitcnt lgkmcnt(0)")
    stamp(2)
    if o.b0 == 1:
        a("s_barrier")
    a(f"v_mov_b32 v9, {L_KSL}")
    a("s_waitcnt vmcnt(0)")
    tag_make()
    exp_make()
    a(f"v_mov_b32 v9, {L_KSL}")
    stamp(3)
    a("s_barrier")
    a(f"ds_read_b32 v{VE}, v9")
    set_exec(RF * CF + RZ * CZ + R2 * C2 + RS)
    a("s_waitcnt lgkmcnt(0)")
    a(f"buffer_store_dwordx2 v[{VE}:{VTAG}], v14, {R4(S.RWS)}, s{S.ID8} offen sc1")
    if o.probe >= 0:
        a("s_mov_b64 exec, 1")
        a("v_mov_b32 v40, s66")
        a(f"v_mov_b32 v41, v{VTAG}")
        a(f"s_add_u32 s{S.T0}, s{S.ID8}, {WS_KEY2 - WS_KEY}")
        a(f"buffer_store_dwordx2 v[40:41], v14, {R4(S.RWS)}, s{S.T0} offen sc1")
    a("s_mov_b64 exec, -1")
    stamp(5)
    if o.b1a:
        a("s_barrier")
    if o.only == "P1":
        a("s_endpgm")
    poll_setup(WS_KEY + 1024 * (RF * CF + RZ * CZ), R2, C2)
    a("s_waitcnt vmcnt(0)")
    if not o.gate and o.b3:
        a("s_barrier")
    if o.k2sleep0:
        a(f"s_sleep {o.k2sleep0}")
    stamp(8)
    poll_granules(VG16, 32, sleep=o.k2sleep)
    stamp(9)
    wave_max_key(32)
    lds_put(L_GKEY, 32)
    if o.gate:
        a(f"s_sleep {o.gate}")
        a("s_barrier")
        if o.probe >= 0:
            a("s_cmp_lg_u32 s2, 9")
            a("s_cbranch_scc1 L_noprobe")
            a("s_barrier")
            a(f"s_mov_b32 s{S.PO}, {WS_KEY2}")
            a(f"s_mov_b32 s{S.POL}, {WS_KEY2}")
            poll_granules(VG16, 32, sleep=4)
            for i in range(8):
                a(f"v_readlane_b32 s{70+i}, v{32 + 2*(i&1)}, {i>>1}")
            a("s_mov_b32 s80, s70")
            for i in range(1, 8):
                a(f"s_sub_u32 s81, s{70+i}, s80")
                a("s_cmp_lt_i32 s81, 0")
                a(f"s_cselect_b32 s80, s{70+i}, s80")
            if o.probe < 8:
                a(f"s_sub_u32 s81, s{70+o.probe}, s80")
            else:
                a("s_mov_b32 s81, 0")
                for i in range(8):
                    a(f"s_sub_u32 s82, s{70+i}, s80")
                    a("s_max_u32 s81, s81, s82")
            a("s_mul_i32 s81, s81, 10")
            a("s_add_u32 s81, s81, 800")
            a.label("L_pw")
            a("s_sleep 1")
            a("s_memrealtime s[100:101]")
            a("s_waitcnt lgkmcnt(0)")
            a("s_sub_u32 s100, s100, s80")
            a("s_cmp_lt_u32 s100, s81")
            a("s_cbranch_scc1 L_pw")
            a.label("L_noprobe")
        if o.hold and o.hold[0] == "endA":
            a(f"s_sub_u32 s{S.T0}, s2, {o.hold[2]}")
            a(f"s_cmp_ge_u32 s{S.T0}, {o.hold[3]}")
            a("s_cbranch_scc1 L_nohold")
            a("s_barrier")
            hold("endA")
            a.label("L_nohold")
        endprog()
    a("s_barrier")
    endprog()

    a.label("L_notA")
    if o.only == "AA":
        a("s_endpgm")
    a(f"s_lshl4_add_u32 s{S.FJ}, s{S.T0}, s{S.T1}")
    a(f"s_sub_u32 s{S.FJ}, s{S.FJ}, 16")
    a(f"s_cmp_ge_u32 s2, {NWG}")
    a("s_cbranch_scc1 L_end")
    a(f"s_cmp_lt_u32 s{S.T0}, 4")
    a("s_cbranch_scc1 L_F")
    a(f"s_mul_i32 s{S.FJ}, s{S.T0}, 12")
    a(f"s_add_u32 s{S.FJ}, s{S.FJ}, s{S.T1}")
    a(f"s_cmp_lt_u32 s{S.T1}, 28")
    a("s_cbranch_scc1 L_F")
    a(f"s_mov_b32 s{S.ISZ}, 1")
    a(f"s_lshl2_add_u32 s{S.Z}, s{S.T0}, s{S.T1}")
    a(f"s_sub_u32 s{S.Z}, s{S.Z}, 44")
    vrow_setup()
    a(f"v_lshlrev_b32 v{VG16}, 4, v0")
    sgn_setup()
    a("s_waitcnt lgkmcnt(0)")
    ws_setup()
    a.srd(S.ROUT, S.POUT, 0x200000)
    addr_p2()
    a(f"s_cmp_eq_u32 s{S.WAVE}, 8")
    a("s_cbranch_scc1 L_zh")
    a(f"s_cmp_ge_u32 s{S.WAVE}, 4")
    a("s_cbranch_scc1 L_z0")
    const_d1()
    a("s_branch L_z1")
    a.label("L_z0")
    if o.atouch:
        a("s_branch L_hi1")
    a.label("L_z0b")
    if o.ztouch:
        touch("L_tz", o.ztouch, 4, 4)
    a.label("L_z1")
    a(f"v_mov_b32 v9, {L_KSL}")
    a("v_mov_b32 v12, 0")
    a("v_mov_b32 v13, 0")
    a("s_barrier")
    a(f"ds_read_b64 v[{VE}:{VTAG}], v9")
    a(f"ds_read_b128 {V(GW,4)}, v{VG16} offset:{L_WV+1024}")
    a("s_waitcnt lgkmcnt(0)")
    a(f"v_readfirstlane_b32 s{S.GKEY}, v{VE}")
    a(f"s_andn2_b32 s{S.IDX}, 2047, s{S.GKEY}")
    a(f"s_and_b32 s{S.T0}, s{S.IDX}, 127")
    a(f"s_cmp_gt_u32 s{S.T0}, 64")
    a(f"s_cselect_b32 s{S.WHICH}, 1, 0")
    a(f"s_and_b32 s{S.T0}, s{S.IDX}, {1024 + 63}")
    a(f"s_cmp_eq_u32 s{S.T0}, 1024")
    a(f"s_cselect_b32 s{S.WHICH}, 1, s{S.WHICH}")
    a(f"s_sub_u32 s{S.T0}, 2048, s{S.IDX}")
    a(f"s_cmp_lg_u32 s{S.WHICH}, 0")
    a(f"s_cselect_b32 s{S.T0}, s{S.T0}, s{S.IDX}")
    a(f"s_cmp_eq_u32 s{S.T0}, 1024")
    a(f"s_cselect_b32 s{S.T0}, 0, s{S.T0}")
    a(f"s_and_b32 s{S.T1C}, s{S.T0}, 127")
    a(f"s_lshr_b32 s{S.HH}, s{S.T0}, 10")
    a(f"s_bfe_u32 s{S.WSEL}, s{S.T0}, 0x30007")
    rows_setup(S.WSEL)
    a(f"s_cmp_ge_u32 s{S.WAVE}, 4")
    a("s_cbranch_scc1 L_z4")
    int_base()
    if o.zisleep0:
        a(f"s_sleep {o.zisleep0}")
    stamp(9)
    int_loads(0)
    int_loads(1)
    const_ga()
    exp_setup()
    addr_ur(S.WSEL)
    m2_addr()
    a("v_lshlrev_b32 v6, 7, v1")
    a(f"v_lshl_add_u32 v15, v2, 4, v6")
    a("s_branch L_zjoin")
    a.label("L_z4")
    a(f"s_cmp_ge_u32 s{S.WAVE}, 6")
    a("s_cbranch_scc1 L_zend2")
    rows_load()
    a(f"s_sub_u32 s{S.T0}, s{S.WAVE}, 4")
    a(f"s_lshl1_add_u32 s{S.T1}, s{S.Z}, s{S.T0}")
    a(f"s_lshl_b32 s{S.T1}, s{S.T1}, 5")
    a("v_and_b32 v6, 7, v0")
    a(f"v_lshl_add_u32 v10, v6, 2, s{S.T1}")
    a(f"s_lshl_b32 s{S.T2}, s{S.IDX}, 10")
    a(f"v_add_u32 v7, s{S.T2}, v10")
    a(f"global_load_dword v35, v7, {PXS}")
    a("v_lshlrev_b32 v10, 1, v10")
    a("v_lshrrev_b32 v7, 3, v0")
    a("v_lshlrev_b32 v7, 8, v7")
    a("v_lshl_add_u32 v11, v6, 4, v7")
    a(f"s_mul_i32 s{S.SI0}, s{S.Z}, {PZ}")
    a(f"s_lshl_b32 s{S.T0}, s{S.T0}, 7")
    a(f"s_add_u32 s{S.SI0}, s{S.SI0}, s{S.T0}")
    a(f"s_add_u32 s{S.SI0}, s{S.SI0}, {WS_PART}")
    a(f"s_add_u32 s{S.SI1}, s{S.SI0}, {(o.pc-1)*PARTC}")
    a(f"s_and_b32 s{S.T0}, s{S.GKEY}, 0xffff0000")
    a(f"s_xor_b32 s{S.T1}, s{S.T0}, 0x80000000")
    a(f"s_xor_b32 s{S.T3}, s{S.T0}, 0xffff0000")
    a(f"s_bitcmp1_b32 s{S.T0}, 31")
    a(f"s_cselect_b32 s{S.T0}, s{S.T1}, s{S.T3}")
    a(f"v_mov_b32 v15, s{S.T0}")
    sigmoid(15, 15)
    rnd(15, 15)
    a("s_waitcnt vmcnt(0)")
    gates(False)
    a(f"s_cmp_lg_u32 s{S.WHICH}, 0")
    a(f"s_cselect_b32 s{S.T2}, s{S.T3}, s{S.T2}")
    a(f"s_cselect_b32 s{S.T0}, s{S.T5}, s{S.T0}")
    a(f"s_cselect_b32 s{S.T4}, s{S.T1}, s{S.T4}")
    a(f"v_xor_b32 v{VTAG}, s{S.IDX}, v{VTAG}")
    a(f"v_mov_b32 v36, s{S.T2}")
    a(f"v_mov_b32 v{CO}, s{S.T0}")
    a(f"v_mov_b32 v{CO+1}, s{S.T4}")
    a("v_lshlrev_b32 v34, 16, v35")
    a(f"v_and_b32 v35, {HIM}, v35")
    if o.psleep0:
        a(f"s_sleep {o.psleep0}")
    hold("pp")
    a(f"v_mov_b32 v9, {L_ZF}")
    a.label("L_tz_start")
    stamp(10)
    if o.psleep:
        a("s_branch L_zp1")
    a.label("L_zp")
    if o.psleep:
        a(f"s_sleep {o.psleep}")
        a.label("L_zp1")
    for i in range(7):
        if i and i % 2 == 0:
            a(f"s_add_u32 s{S.T0}, s{S.SI0}, {2048*i}")
        a(f"buffer_load_dwordx4 {V(40+4*i,4)}, v11, {R4(S.RWS)}, s{S.T0 if i >= 2 else S.SI0} offen offset:{2048*(i&1)} sc1")
    a(f"s_add_u32 s{S.SI0}, s{S.SI0}, {PARTC}")
    a(f"s_min_u32 s{S.SI0}, s{S.SI0}, s{S.SI1}")
    if o.stamps:
        a(f"s_add_u32 s{S.RC}, s{S.RC}, 256")
    spin()
    a("s_cbranch_scc1 L_zp_ok")
    for i in range(7):
        a(f"s_waitcnt vmcnt({6-i})")
        a(f"v_bitop3_b32 v{37 if i == 0 else 38 + (i & 1)}, v{41+4*i}, v{43+4*i}, v{VTAG} bitop3:0x7e")
        if i:
            a(f"v_add_f32 v40, v40, v{40+4*i}")
            a(f"v_add_f32 v42, v42, v{42+4*i}")
        if i and i % 2 == 0:
            a("v_or3_b32 v37, v37, v38, v39")
    a("v_cmp_ne_u32 vcc, 0, v37")
    a.nop(1)
    a("s_cbranch_vccnz L_zp")
    a.label("L_zp_ok")
    a("ds_read_b32 v12, v9")
    a(f"ds_read_b64 v[32:33], v10 offset:{L_XG2}")
    a(f"ds_read_b64 v[16:17], v10 offset:{L_XG2+2048}")
    a("v_lshrrev_b32 v11, 1, v10")
    a(f"s_lshl_b32 s{S.T2}, s{S.IDX}, 10")
    a("s_waitcnt vmcnt(0)")
    stamp(11)
    a(f"v_add_f32_dpp v40, v40, v40 row_ror:8 {DPPM}")
    a(f"v_add_f32_dpp v42, v42, v42 row_ror:8 {DPPM}")
    a.nop(1)
    a.nop(1)
    a("v_permlane16_swap_b32 v40, v42")
    a("v_add_f32 v40, v40, v42")
    a("v_mov_b32 v42, v40")
    a.nop(2)
    a("v_permlane32_swap_b32 v40, v42")
    a("v_add_f32 v40, v40, v42")
    a("v_mov_b32 v42, v40")
    a.nop(2)
    a("v_permlane16_swap_b32 v40, v42")
    a("v_cvt_pk_bf16_f32 v41, v40, v42")
    a("v_lshlrev_b32 v40, 16, v41")
    a(f"v_and_b32 v42, {HIM}, v41")
    a("v_mul_f32 v40, v40, v15")
    a("v_mul_f32 v42, v42, v15")
    a("v_cvt_pk_bf16_f32 v41, v40, v42")
    a("v_lshlrev_b32 v40, 16, v41")
    a(f"v_and_b32 v42, {HIM}, v41")
    a("v_add_f32 v40, v40, v34")
    a("v_add_f32 v42, v42, v35")
    a("v_cvt_pk_bf16_f32 v41, v40, v42")
    a("v_lshlrev_b32 v40, 16, v41")
    a(f"v_and_b32 v42, {HIM}, v41")
    a.label("L_zw")
    a("s_waitcnt lgkmcnt(0)")
    a("v_cmp_eq_u32 vcc, 0, v12")
    a(f"v_mul_f32 v32, v{CO}, v32")
    a(f"v_mul_f32 v33, v{CO}, v33")
    a("s_cbranch_vccz L_zw_ok")
    spin()
    a("s_cbranch_scc1 L_zw_ok")
    a("ds_read_b32 v12, v9")
    a(f"ds_read_b64 v[32:33], v10 offset:{L_XG2}")
    a(f"ds_read_b64 v[16:17], v10 offset:{L_XG2+2048}")
    a("s_branch L_zw")
    a.label("L_zw_ok")
    a(f"v_fmac_f32 v32, v{CO+1}, v16")
    a(f"v_fmac_f32 v33, v{CO+1}, v17")
    a("v_fmac_f32 v32, v40, v36")
    a("v_fmac_f32 v33, v42, v36")
    a("v_cvt_pk_bf16_f32 v32, v32, v33")
    a("s_mov_b64 exec, 0xff")
    a(f"buffer_store_dword v32, v11, {R4(S.ROUT)}, s{S.T2} offen{o.zpol}")
    a("s_mov_b64 exec, -1")
    stamp(13)
    a("s_barrier")
    endprog()

    a.label("L_zsync")
    a(f"v_mov_b32 v9, {L_ZC}")
    a("v_mov_b32 v6, 1")
    a("s_mov_b64 exec, 1")
    a("ds_add_u32 v9, v6")
    a("s_mov_b64 exec, -1")
    a(f"s_cmp_lg_u32 s{S.WAVE}, 0")
    a("s_cbranch_scc1 L_zend")
    a.label("L_zs")
    a("ds_read_b32 v6, v9")
    spin()
    a("s_waitcnt lgkmcnt(0)")
    a("s_cbranch_scc1 L_zs_ok")
    a("v_cmp_ne_u32 vcc, 4, v6")
    a.nop(1)
    a("s_cbranch_vccnz L_zs")
    a.label("L_zs_ok")
    stamp(12)
    a(f"ds_read_b128 {V(UO,4)}, v{VUR0} offset:{L_U2}")
    a(f"ds_read_b128 {V(UO+4,4)}, v{VUR1} offset:{L_U2}")
    a(f"ds_read_b128 {V(UO+8,4)}, v{VUR0} offset:{L_U2+UB}")
    a(f"ds_read_b128 {V(UO+12,4)}, v{VUR1} offset:{L_U2+UB}")
    for k in range(4):
        a(f"s_waitcnt lgkmcnt({3-k})")
        a(f"{MF} {V(PQ+4*k,4)}, {V(UO+4*k,4)}, {V(M2+4*k,4)}, 0")
    a.nop(3)
    for k in range(4):
        if k == 2:
            a.nop(2)
        a(f"ds_write_b128 v15, {V(PQ+4*k,4)} offset:{L_XG2 + 64*(k&1) + 2048*(k>>1)}")
    a(f"v_mov_b32 v9, {L_ZF}")
    a("s_waitcnt lgkmcnt(0)")
    a("ds_write_b32 v9, v9")
    a("s_waitcnt lgkmcnt(0)")
    stamp(13)
    a.label("L_zend")
    endprog()
    a.label("L_zend2")
    if o.hold and o.hold[0] == "end":
        a("s_barrier")
    hold("end")
    if o.ev:
        lo, n, w, st, med = [int(v) for v in o.ev.split(":")]
        a("s_cmp_lg_u32 s2, 255")
        a("s_cbranch_scc1 L_noev")
        a(f"s_cmp_lg_u32 s{S.WAVE}, 7")
        a("s_cbranch_scc1 L_noev")
        a("s_barrier")
        a.label("L_ev0")
        a("s_sleep 4")
        a("s_memrealtime s[100:101]")
        a("s_waitcnt lgkmcnt(0)")
        a(f"s_sub_u32 s100, s100, s{S.ST}")
        a("s_cmp_lt_u32 s100, 750")
        a("s_cbranch_scc1 L_ev0")
        a("v_lshlrev_b32 v6, 11, v0")
        a(f"v_add_u32 v7, {WS_STAMP + 8*128}, v6")
        a(f"global_load_dword v40, v7, s[{S.PWS}:{S.PWS+1}] sc1")
        a(f"v_add_u32 v7, {WS_STAMP + lo*2048 + w*128 + st*8}, v6")
        a(f"global_load_dword v41, v7, s[{S.PWS}:{S.PWS+1}] sc1")
        a(f"v_add_u32 v7, {(n-64)*2048}, v7")
        a(f"global_load_dword v43, v7, s[{S.PWS}:{S.PWS+1}] sc1")
        a("s_waitcnt vmcnt(0)")
        a(f"v_subrev_u32 v40, s{S.ST}, v40")
        a("v_sub_u32 v40, 1000, v40")
        a("v_mov_b32 v42, v40")
        wave_max_key(40)
        a(f"v_subrev_u32 v41, s{S.ST}, v41")
        a(f"v_subrev_u32 v43, s{S.ST}, v43")
        a("v_max_i32 v41, 0, v41")
        a("v_max_i32 v43, 0, v43")
        wave_max_key(41)
        a.nop(2)
        a("v_readlane_b32 s6, v40, 63")
        a("v_readlane_b32 s7, v41, 63")
        a("s_sub_u32 s6, s6, 1000")
        a("s_add_u32 s7, s7, s6")
        a("s_mul_i32 s7, s7, 4")
        a("s_add_u32 s7, s7, 900")
        a("s_sub_u32 s7, s7, s6")
        a.label("L_ev1")
        a("s_sleep 1")
        a("s_memrealtime s[100:101]")
        a("s_waitcnt lgkmcnt(0)")
        a(f"s_sub_u32 s100, s100, s{S.ST}")
        a("s_cmp_lt_u32 s100, s7")
        a("s_cbranch_scc1 L_ev1")
        a.label("L_noev")
    endprog()

    a.label("L_zh")
    a(f"v_mov_b32 v9, {L_ZF}")
    a("v_mov_b32 v6, 0")
    a("ds_write2_b32 v9, v6, v6 offset1:1")
    const_d2()
    a(f"s_mov_b32 m0, {L_WV+1024}")
    tag_load()
    a(f"global_load_lds_dwordx4 v{VG16}, s[{S.PGW}:{S.PGW+1}]")
    a("s_waitcnt vmcnt(0)")
    tag_make()
    exp_make()
    poll_setup(WS_KEY + 1024 * RF * CF, RZ, CZ)
    if o.zsleep0:
        a(f"s_sleep {o.zsleep0}")
    stamp(1)
    poll_granules(VG16, 32, sleep=o.zsleep)
    stamp(2)
    wave_max_key(32)
    lds_put(L_KSL, 32, tag=True)
    a("s_barrier")
    a(f"s_lshl_b32 s{S.T0}, s{S.Z}, 2")
    a(f"s_add_u32 s{S.T0}, s{S.T0}, {WS_ALIVE}")
    a("s_mov_b64 exec, 1")
    a(f"buffer_store_dword v{VTAG}, v0, {R4(S.RWS)}, s{S.T0} offen sc1")
    a("s_mov_b64 exec, -1")
    a(f"s_cmp_lg_u32 s{S.Z}, 0")
    a("s_cbranch_scc1 L_zend")
    a("s_mov_b64 exec, 0xffff")
    a("v_lshlrev_b32 v6, 2, v0")
    a(f"s_mov_b32 s{S.T0}, {WS_ALIVE}")
    a("s_waitcnt vmcnt(0)")
    a("s_sleep 24")
    a.label("L_za")
    a(f"buffer_load_dword v7, v6, {R4(S.RWS)}, s{S.T0} offen sc1")
    spin()
    a("s_waitcnt vmcnt(0)")
    a("s_cbranch_scc1 L_za_ok")
    a(f"v_cmp_ne_u32 vcc, v{VTAG}, v7")
    a.nop(1)
    a("s_cbranch_vccnz L_za")
    a.label("L_za_ok")
    a("s_mov_b64 exec, 1")
    a(f"v_add_u32 v9, 1, v{VE}")
    a("s_barrier")
    a(f"buffer_store_dword v9, v6, {R4(S.RWS)}, 0 offen sc1")
    a("s_mov_b64 exec, -1")
    a("s_branch L_zend")

    a.label("L_F")
    if o.only == "A":
        a("s_endpgm")
    WG_, WD_ = 32, 48
    a("v_lshlrev_b32 v5, 4, v0")
    a(f"s_cmp_eq_u32 s{S.WAVE}, 8")
    a("s_cbranch_scc1 L_fh")
    a(f"s_and_b32 s{S.T0}, s{S.FJ}, 3")
    a(f"s_lshr_b32 s{S.T1}, s{S.WAVE}, 1")
    a(f"s_lshl2_add_u32 s{S.L0}, s{S.T0}, s{S.T1}")
    a(f"s_mul_i32 s{S.T2}, s{S.L0}, {32*3584}")
    a(f"s_lshr_b32 s{S.L1}, s{S.FJ}, 2")
    a(f"s_lshl_b32 s{S.T3}, s{S.L1}, 7")
    a(f"s_add_u32 s{S.T2}, s{S.T2}, s{S.T3}")
    a("v_lshrrev_b32 v6, 3, v0")
    a("v_mul_u32_u24 v6, 3584, v6")
    a("v_and_b32 v7, 7, v0")
    a("v_bfe_u32 v8, v0, 4, 1")
    a("v_lshlrev_b32 v8, 2, v8")
    a("v_xor_b32 v4, v7, v8")
    a(f"v_lshl_add_u32 v7, v4, 4, s{S.T2}")
    a("v_add_u32 v3, v6, v7")
    a(f"s_lshl_b32 s{S.T4}, s{S.WAVE}, 12")
    a(f"s_mov_b32 m0, s{S.T4}")
    def w_dma():
        a(f"s_bitcmp1_b32 s{S.WAVE}, 0")
        a("s_waitcnt lgkmcnt(0)")
        a(f"s_cselect_b32 s{S.PWG}, s{S.PWU}, s{S.PWG}")
        a(f"s_cselect_b32 s{S.PWG+1}, s{S.PWU+1}, s{S.PWG+1}")
        if o.fdelay:
            a(f"s_sleep {o.fdelay}")
        for b in range(4):
            if b:
                a(f"s_add_u32 m0, s{S.T4}, {1024*b}")
                a(f"v_add_u32 v3, {8*3584}, v3")
            if o.wthr and b >= o.wthr:
                a(f"s_waitcnt vmcnt({o.wthr - 1})")
            a(f"global_load_lds_dwordx4 v3, s[{S.PWG}:{S.PWG+1}]{o.wpol}")
        ws_setup()
        stamp(1)

    if not o.flate:
        w_dma()
    a("v_bfe_u32 v6, v0, 2, 2")
    a("v_and_b32 v7, 3, v0")
    a("v_lshlrev_b32 v8, 3, v7")
    a("v_lshl_add_u32 v8, v2, 5, v8")
    a("v_and_b32 v9, 2, v6")
    a("v_lshlrev_b32 v9, 5, v9")
    a("v_xor_b32 v9, v9, v8")
    a("v_lshl_add_u32 v9, v6, 7, v9")
    a(f"v_add_u32 v9, s{S.T4}, v9")
    a(f"s_lshl_b32 s{S.T5}, s{S.WAVE}, 8")
    a("v_lshlrev_b32 v11, 2, v0")
    a(f"v_add_u32 v11, {L_RED}, v11")
    a(f"v_add_u32 v12, s{S.T5}, v11")
    a(f"s_lshl1_add_u32 s{S.T1}, s{S.L1}, s{S.T1}")
    a(f"s_lshl_b32 s{S.T2}, s{S.T1}, 15")
    a(f"s_and_b32 s{S.T3}, s{S.WAVE}, 1")
    a(f"s_lshl1_add_u32 s{S.T3}, s{S.T0}, s{S.T3}")
    a(f"s_lshl_b32 s{S.T5}, s{S.T3}, 7")
    a(f"s_add_u32 s{S.T2}, s{S.T2}, s{S.T5}")
    a("v_lshrrev_b32 v6, 3, v0")
    a(f"v_lshl_add_u32 v6, v6, 10, s{S.T2}")
    a("v_lshl_add_u32 v4, v4, 4, v6")
    a("v_lshrrev_b32 v6, 5, v0")
    a(f"v_mul_u32_u24 v13, {PZ}, v6")
    a("v_and_b32 v6, 31, v0")
    a("v_lshl_add_u32 v13, v6, 3, v13")
    a(f"s_mul_i32 s{S.T2}, s{S.T3}, {2*PZ}")
    a(f"s_lshl_b32 s{S.T1}, s{S.T1}, 8")
    a(f"s_add_u32 s{S.T2}, s{S.T2}, s{S.T1}")
    a(f"s_add_u32 s{S.T2}, s{S.T2}, {WS_PART}")
    a(f"s_lshl_b32 s{S.L0}, s{S.L0}, 6")
    a(f"s_lshl_b32 s{S.L1}, s{S.L1}, 12")
    a(f"s_add_u32 s{S.PO}, s{S.L1}, {WS_XCH}")
    a(f"s_add_u32 s{S.POL}, s{S.PO}, {(o.xc-1)*XCHC}")
    a(f"s_lshl_b32 s{S.T1}, s{S.T0}, 10")
    a(f"s_add_u32 s{S.L1}, s{S.PO}, s{S.T1}")
    a(f"v_mov_b32 v14, {L_FKEY}")
    a(f"s_lshr_b32 s{S.T1}, s{S.WAVE}, 1")
    a(f"s_lshl_b32 s{S.T1}, s{S.T1}, 9")
    a(f"v_lshl_add_u32 v15, v6, 4, s{S.T1}")
    a("v_lshrrev_b32 v6, 5, v0")
    a("v_lshl_add_u32 v15, v6, 10, v15")
    a(f"s_mov_b32 s{S.PO0}, s{S.PO}")
    a(f"s_mov_b32 s{S.L10}, s{S.L1}")
    a(f"s_mov_b32 s{S.T20}, s{S.T2}")
    a(f"s_mov_b32 s{S.FIN}, 0")

    if o.flate:
        w_dma()

    def wd_dma():
        l = a.L("nowd")
        a(f"s_cmp_ge_u32 s{S.WAVE}, 4")
        a(f"s_cbranch_scc1 {l}")
        for b in range(4):
            a(f"s_add_u32 m0, s{S.T4}, {L_WD + 1024*b}")
            if b:
                a("v_add_u32 v4, 0x2000, v4")
            else:
                a.nop(1)
            a(f"global_load_lds_dwordx4 v4, s[{S.PWD}:{S.PWD+1}]")
        a.label(l)

    if o.wdpos == 0:
        wd_dma()
    a("s_waitcnt vmcnt(0)")
    stamp(2)
    if o.fw0:
        a("s_barrier")
    if o.wdpos == 1:
        wd_dma()
    if o.xpre:
        for i in range(2):
            a(f"buffer_load_dwordx4 {V(64+4*i,4)}, v15, {R4(S.RWS)}, s{S.PO} offen offset:{2048*i} sc1")
    for k in range(8):
        a(f"ds_read_b64_tr_b16 {V(WG_+2*k,2)}, v9 offset:{L_W + k*512}")
    if o.ftouch:
        touch("L_tf", o.ftouch, 0, 8)
    a("s_waitcnt lgkmcnt(0)")
    a("s_barrier")
    a.label("L_tf_start")
    a("ds_read_b64 v[26:27], v14")
    a("s_waitcnt lgkmcnt(0)")
    a(f"v_readfirstlane_b32 s{S.FKEY}, v26")
    a.label("L_redo")
    a(f"s_andn2_b32 s{S.T0}, 2047, s{S.FKEY}")
    a(f"s_lshl_b32 s{S.T1}, s{S.T0}, 10")
    a(f"s_add_u32 s{S.T1}, s{S.T1}, s{S.L0}")
    a(f"s_load_dwordx16 s[{S.XS}:{S.XS+15}], {PXS}, s{S.T1}")
    stamp(5)
    a(f"v_xor_b32 v{VTAG}, s{S.T0}, v27")
    a(f"v_xor_b32 v29, s{S.T0}, v27")
    for r in (16, 17, 24, 25):
        a(f"v_mov_b32 v{r}, 0")
    a(f"s_mov_b32 s{S.PO}, s{S.PO0}")
    a(f"s_mov_b32 s{S.L1}, s{S.L10}")
    a(f"s_mov_b32 s{S.T2}, s{S.T20}")
    a(f"s_mov_b32 s{S.KM}, 0")
    a("s_waitcnt lgkmcnt(0)")
    for i in range(16):
        a(f"v_dot2c_f32_bf16 v{16+(i&1)}, s{S.XS+i}, v{WG_+i}")
    stamp(6)
    a.nop(3)
    a("v_add_f32 v16, v16, v17")
    a("ds_write_b32 v12, v16")
    a("s_waitcnt lgkmcnt(0)")
    a("s_barrier")
    a(f"s_lshl_b32 s{S.T0}, s{S.WAVE}, 4")
    a(f"s_lshl_b64 s[{S.EX}:{S.EX+1}], 0xffff, s{S.T0}")
    for i, (p, q) in enumerate(((0, 2), (4, 6), (1, 3), (5, 7))):
        a(f"ds_read2st64_b32 v[{16+2*i}:{17+2*i}], v11 offset0:{p} offset1:{q}")
    a("s_waitcnt lgkmcnt(2)")
    a("v_add_f32 v16, v16, v17")
    a("v_add_f32 v18, v18, v19")
    a("s_waitcnt lgkmcnt(0)")
    a("v_add_f32 v20, v20, v21")
    a("v_add_f32 v22, v22, v23")
    a("v_add_f32 v28, v16, v18")
    a(f"s_mov_b64 exec, s[{S.EX}:{S.EX+1}]")
    a("v_add_f32 v30, v20, v22")
    a(f"s_cmp_ge_u32 s{S.WAVE}, 4")
    a("s_cbranch_scc1 L_f5")
    a(f"buffer_store_dwordx4 v[28:31], v5, {R4(S.RWS)}, s{S.L1} offen{'' if o.xl2 else ' sc1'}")
    a("s_mov_b64 exec, -1")
    stamp(7)
    a("s_waitcnt vmcnt(1)")
    for k in range(8):
        a(f"ds_read_b64_tr_b16 {V(WD_+2*k,2)}, v9 offset:{L_WD + k*512}")
    if o.xsleep0:
        a(f"s_sleep {o.xsleep0}")
    stamp(8)
    a.label("L_fx")
    for i in range(2):
        a(f"buffer_load_dwordx4 {V(64+4*i,4)}, v15, {R4(S.RWS)}, s{S.PO} offen offset:{2048*i} sc1")
    if o.xl2:
        a(f"s_add_u32 s{S.KM}, s{S.KM}, 1")
        a(f"s_cmp_ge_u32 s{S.KM}, {o.xl2}")
        a(f"s_cselect_b32 s{S.T0}, {XCHC}, 0")
        a(f"s_add_u32 s{S.PO}, s{S.PO}, s{S.T0}")
    else:
        a(f"s_add_u32 s{S.PO}, s{S.PO}, {XCHC}")
    a(f"s_min_u32 s{S.PO}, s{S.PO}, s{S.POL}")
    if o.stamps:
        a(f"s_add_u32 s{S.RC}, s{S.RC}, 1")
    spin()
    a("s_cbranch_scc1 L_fx_ok")
    a("s_waitcnt vmcnt(1)")
    a(f"v_bitop3_b32 v20, v65, v67, v{VTAG} bitop3:0x7e")
    a("s_waitcnt vmcnt(0)")
    a("v_add_f32 v16, v64, v68")
    a("v_add_f32 v18, v66, v70")
    a(f"v_bitop3_b32 v21, v69, v71, v{VTAG} bitop3:0x7e")
    a("v_or_b32 v20, v20, v21")
    a("v_cmp_ne_u32 vcc, 0, v20")
    a("v_permlane32_swap_b32 v16, v18")
    a("s_cbranch_vccnz L_fxr")
    a.label("L_fx_ok")
    stamp(9)
    a("v_add_f32 v16, v16, v18")
    rnd(16, 16)
    a("v_mov_b32 v18, v16")
    sigmoid(17, 16)
    a("v_permlane32_swap_b32 v16, v18")
    a("v_mul_f32 v17, v17, v16")
    rnd(17, 17)
    a("v_mul_f32 v17, v17, v18")
    a.nop(2)
    a(f"v_mov_b32_dpp v18, v17 quad_perm:[1,0,3,2] {DPPM}")
    a("v_cvt_pk_bf16_f32 v17, v17, v18")
    a.nop(1)
    for i in range(16):
        a(f"v_readlane_b32 s{S.XS+i}, v17, {2*i}")
    a("s_waitcnt lgkmcnt(0)")
    for i in range(16):
        a(f"v_dot2c_f32_bf16 v{24+(i&1)}, s{S.XS+i}, v{WD_+i}")
    a.nop(3)
    a("v_add_f32 v30, v24, v25")
    for c in range(o.pc):
        if c:
            a(f"s_add_u32 s{S.T2}, s{S.T2}, {PARTC}")
        a(f"buffer_store_dwordx2 v[30:31], v13, {R4(S.RWS)}, s{S.T2} offen sc1")
    stamp(10)
    a.label("L_fend")
    a(f"s_cmp_lg_u32 s{S.FIN}, 0")
    a("s_cbranch_scc1 L_fexit")
    a("s_barrier")
    a("ds_read_b32 v26, v14 offset:8")
    a(f"s_mov_b32 s{S.FIN}, 1")
    a("s_waitcnt lgkmcnt(0)")
    a(f"v_readfirstlane_b32 s{S.T0}, v26")
    a(f"s_cmp_eq_u32 s{S.T0}, s{S.FKEY}")
    a(f"s_mov_b32 s{S.FKEY}, s{S.T0}")
    if o.stamps:
        a(f"s_cselect_b32 s{S.T1}, 0, 64")
        a(f"s_add_u32 s{S.RC}, s{S.RC}, s{S.T1}")
        a(f"s_cmp_eq_u32 s{S.T1}, 0")
    a("s_cbranch_scc0 L_redo")
    a.label("L_fexit")
    endprog()
    a.label("L_f5")
    for c in range(1, o.xc):
        a(f"s_add_u32 s{S.L1}, s{S.L1}, {XCHC}")
        a(f"buffer_store_dwordx4 v[28:31], v5, {R4(S.RWS)}, s{S.L1} offen sc1")
    a("s_mov_b64 exec, -1")
    a("s_branch L_fend")
    a.label("L_fxr")
    a("ds_read_b32 v26, v14 offset:8")
    a("s_waitcnt lgkmcnt(0)")
    a(f"v_readfirstlane_b32 s{S.T0}, v26")
    a(f"s_cmp_eq_u32 s{S.T0}, 0")
    a("s_cbranch_scc1 L_fx")
    a(f"s_cmp_eq_u32 s{S.T0}, s{S.FKEY}")
    a("s_cbranch_scc1 L_fx")
    a("s_branch L_fend")

    a.label("L_fh")
    a("s_waitcnt lgkmcnt(0)")
    if o.fesleep:
        a(f"s_sleep {o.fesleep}")
    tag_load()
    ws_setup()
    a(f"v_mov_b32 v14, {L_FKEY}")
    a("v_mov_b32 v6, 0")
    a("ds_write_b32 v14, v6 offset:8")
    if o.spec:
        poll_setup(WS_KEY + 1024 * (RF * CF + RZ * CZ + R2 * C2), 8, 1)
        a(f"s_sleep {o.spec}")
        a("s_waitcnt vmcnt(0)")
        tag_make()
        stamp(1)
        a(f"buffer_load_dwordx4 v[20:23], v5, {R4(S.RWS)}, s{S.PO} offen sc1")
        poll_setup(WS_KEY, RF, CF)
        a("s_waitcnt vmcnt(0)")
        stamp(2)
        a(f"v_cmp_ne_u32 vcc, v{VTAG}, v21")
        a(f"v_cmp_ne_u32 s[{S.EX}:{S.EX+1}], v{VTAG}, v23")
        a("s_mov_b64 exec, vcc")
        a("v_mov_b32 v20, 0")
        a(f"s_mov_b64 exec, s[{S.EX}:{S.EX+1}]")
        a("v_mov_b32 v22, 0")
        a("s_mov_b64 exec, -1")
        a(f"s_or_b64 s[{S.EY}:{S.EY+1}], vcc, s[{S.EX}:{S.EX+1}]")
        wave_max_key(20)
        lds_put(L_FKEY, 20, tag=True)
        a("s_barrier")
        a(f"s_cmp_eq_u64 s[{S.EY}:{S.EY+1}], 0")
        a("s_cbranch_scc1 L_fh2")
        if o.fsleep0:
            a(f"s_sleep {o.fsleep0}")
        stamp(3)
        poll_granules(5, 20, sleep=o.fsleep)
        stamp(4)
        wave_max_key(20)
        a.label("L_fh2")
        lds_put(L_FKEY + 8, 20)
    else:
        poll_setup(WS_KEY, RF, CF)
        if o.fsleep0:
            a(f"s_sleep {o.fsleep0}")
        a("s_waitcnt vmcnt(0)")
        tag_make()
        stamp(3)
        poll_granules(5, 20, sleep=o.fsleep)
        stamp(4)
        wave_max_key(20)
        lds_put(L_FKEY, 20, tag=True)
        a("s_barrier")
        lds_put(L_FKEY + 8, 20)
    a("s_barrier")
    endprog()
    a.label("L_end")
    a("s_endpgm")
    return name


def main():
    ap = argparse.ArgumentParser()
    ap.add_argument("-o", required=True)
    for k, d in dict(stamps=0, pc=1, xc=2, zsleep=8, zsleep0=24, psleep=0, psleep0=22, rsleep=3, ackwait=1, hipre=0, tlate=1,
                     mode=0, k2ack=1, k2sleep0=6, zk2sleep0=0, k2sleep=5, fbar=0, cpf=2, probe=-1, wsoff=0, flate=1, b1a=1, skew=0, gate=1, lds=0, nsgpr=102, prio=1, stag=0, spec=0, b0=2, wthr=0, xpre=0, atouch=10, ftouch=8, xl2=5, npre=3, gfirst=0, isleep0=0, zisleep0=5, b3=1, ztouch=8, zstep=128, touch=0, wdpos=1, wpf=2, fesleep=0, fw0=0, xack=0, fdelay=0, xsleep0=3, fsleep0=37, fsleep=4, spin=17).items():
        ap.add_argument("--" + k, type=int, default=d)
    for k in ("wpol", "outpol", "zpol", "only"):
        ap.add_argument("--" + k, default="")
    ap.add_argument("--mf", default="8,2")
    ap.add_argument("--mz", default="1,3")
    ap.add_argument("--m2", default="8,2")
    ap.add_argument("--hold", default="")
    ap.add_argument("--ev", default="")
    o = ap.parse_args()
    if o.hold:
        o.hold = o.hold.split(":")
    for k in ("mf", "mz", "m2"):
        setattr(o, k, [int(v) for v in getattr(o, k).split(",")])
    for k in ("wpol", "outpol", "zpol"):
        setattr(o, k, (" " + getattr(o, k)) if getattr(o, k) else "")
    a = Asm()
    name = gen(a, o)
    if o.touch:
        insert_stubs(a, [("L_ta_start", "L_ta_end", "L_ta", "L_taback", 9)], step=o.touch)
    reg = []
    if o.atouch:
        reg.append(("L_zjoin", "L_tb_end", "L_tb", "L_tbback", o.atouch))
    if o.ztouch:
        reg.append(("L_tz_start", "L_zend", "L_tz", "L_tzback", o.ztouch))
    if o.ftouch:
        reg.append(("L_tf_start", "L_fend", "L_tf", "L_tfback", o.ftouch))
    if reg:
        insert_stubs(a, reg, step=o.zstep)
    finish(a, name, NVGPR, o.nsgpr, NWG, 576, o.lds or LDS_BYTES, o.o)


main()
```

```python
import argparse
from lib import *

NA, NF, NZ = 128, 112, 16
NWG = NA + NF + NZ
WS_E = 0
WS_ALIVE = 4096
WS_KEY = 64 << 10
WS_KEY2 = 128 << 10
WS_XCH = 192 << 10
XCHC = 28 * 4096
WS_PART = 704 << 10
PZ = 56 * 256
PARTC = NZ * PZ
WS_INT = 2 << 20
CS = 32768 + 256
WS_STAMP = 8 << 20
WS_BYTES = 16 << 20
L_TILE = 0
L_U2 = 16384
L_CT = L_U2
UB = 17 * 64
L_MISC = L_U2 + 16 * UB
L_KSL = L_MISC
L_GKEY = L_MISC + 64
L_ZC = L_MISC + 76
L_ZF = L_MISC + 72
L_EXP = L_MISC + 128
L_DUMP = L_MISC + 192
L_XG2 = L_DUMP + 4 * UB + 256
L_M2 = L_XG2 + 4096
L_WV = L_M2 + 4096
L_XT = L_WV + 2048
L_W = 0
L_WD = 32768
L_RED = L_WD + 16384
L_FKEY = L_RED + 2048
LDS_BYTES = 84 * 1024
MF = "v_mfma_f32_16x16x32_bf16"
LOG2E = 0x3fb8aa3b
DPPM = "row_mask:0xf bank_mask:0xf"
HIM = "0xffff0000"
NVGPR = 168


class S:
    WAVE = 3
    PX = 4
    T0, T1, T2, T3, T4, T5 = 6, 7, 8, 9, 10, 11
    EX = 12
    EY = 14
    PWR, PWG, PWU, PWD, PGW, POUT, PDBG, PWS = 16, 18, 20, 22, 24, 26, 28, 30
    L0, L1, SPT, PIE = 32, 33, 34, 35
    RWS, ROUT = 36, 40
    XS = 44
    GKEY, WSEL, WHICH, Z = 44, 45, 46, 47
    SI0, SI1, ID8, BLK = 48, 49, 50, 51
    IDX, ISZ, TC = 54, 55, 53
    SO = 44
    T1C, HH, TD, TM = 56, 57, 58, 59
    FJ, PO, POL, RC, KM, SPIN = 60, 61, 62, 63, 64, 65
    PO0, L10, T20, FKEY, FIN = 40, 41, 42, 43, 35
    ST = 68


def gen(a, o):
    global WS_KEY, WS_XCH, WS_PART, WS_INT, WS_ALIVE, WS_BYTES
    WS_KEY += o.wsoff << 20
    WS_XCH += o.wsoff << 20
    WS_PART += o.wsoff << 20
    WS_INT += o.wsoff << 20
    WS_ALIVE += o.wsoff << 20
    WS_BYTES = max(WS_BYTES, (o.wsoff + 8) << 20)
    name = NAME + "_kernel"
    kernel_head(a, name)
    VE, VTAG = 30, 31
    PXS = f"s[{S.PX}:{S.PX+1}]"

    def stamp(i):
        if o.stamps:
            a(f"s_memrealtime s[{S.ST+2*i}:{S.ST+2*i+1}]")

    def hold(cp):
        if o.hold and o.hold[0] == cp:
            l = a.L("hold")
            a.label(l)
            a("s_sleep 1")
            a("s_memrealtime s[100:101]")
            a("s_waitcnt lgkmcnt(0)")
            a("s_sub_u32 s100, s100, s66")
            a(f"s_cmp_lt_u32 s100, {o.hold[1]}")
            a(f"s_cbranch_scc1 {l}")

    def touch(pre, n, first, step, back=None, tail=None):
        a("s_mov_b64 exec, 0")
        a(f"s_sub_u32 s{S.TC}, s{S.WAVE}, {first + step}")
        a.label(f"{pre}back")
        a(f"s_add_u32 s{S.TC}, s{S.TC}, {step}")
        for k in range(n):
            a(f"s_cmp_eq_u32 s{S.TC}, {k}")
            a(f"s_cbranch_scc1 {pre}{k}")
        a("s_mov_b64 exec, -1")

    def endprog():
        if o.stamps:
            a("s_waitcnt lgkmcnt(0)")
            a(f"s_add_u32 s{S.ST+28}, s{S.RC}, s{S.ST+30}")
            for i in range(16):
                a(f"v_writelane_b32 v166, s{S.ST+2*i}, {i}")
            a("s_mov_b64 exec, 0xffff")
            a(f"s_lshl4_add_u32 s{S.T0}, s2, s{S.WAVE}")
            a(f"s_lshl_b32 s{S.T0}, s{S.T0}, 7")
            a(f"s_add_u32 s{S.T0}, s{S.T0}, {WS_STAMP}")
            a(f"v_lshl_add_u32 v165, v0, 3, s{S.T0}")
            a("v_mov_b32 v167, 0")
            a(f"global_store_dwordx2 v165, v[166:167], s[{S.PWS}:{S.PWS+1}]" + (" sc1" if o.ev else ""))
        a("s_endpgm")

    def spin():
        a(f"s_add_u32 s{S.SPIN}, s{S.SPIN}, 1")
        a(f"s_lshr_b32 s{S.SPT}, s{S.SPIN}, {o.spin}")

    def poll_setup(base, R, C):
        a(f"s_and_b32 s{S.PO}, s2, {R-1}")
        a(f"s_mul_i32 s{S.PO}, s{S.PO}, {1024*C}")
        a(f"s_add_u32 s{S.PO}, s{S.PO}, {base}")
        a(f"s_add_u32 s{S.POL}, s{S.PO}, {1024*(C-1)}")

    def set_exec(n):
        if n >= 64:
            a("s_mov_b64 exec, -1")
        elif n <= 31:
            a(f"s_mov_b64 exec, {(1 << n) - 1:#x}")
        else:
            a("s_mov_b32 exec_lo, -1")
            a(f"s_mov_b32 exec_hi, {(1 << (n - 32)) - 1:#x}")

    RS = 8 if o.spec else 0
    RF, CF = o.mf
    RZ, CZ = o.mz
    R2, C2 = o.m2
    assert RF * CF + RZ * CZ + R2 * C2 + RS <= 64

    def poll_granules(vaddr, vd, sleep=0, step=1024):
        l = a.L("poll")
        if sleep:
            a(f"s_branch {l}_1")
        a.label(l)
        if sleep:
            a(f"s_sleep {sleep}")
            a.label(f"{l}_1")
        a(f"buffer_load_dwordx4 {V(vd,4)}, v{vaddr}, {R4(S.RWS)}, s{S.PO} offen sc1")
        a(f"s_add_u32 s{S.PO}, s{S.PO}, {step}")
        a(f"s_min_u32 s{S.PO}, s{S.PO}, s{S.POL}")
        if o.stamps:
            a(f"s_add_u32 s{S.RC}, s{S.RC}, 1")
        spin()
        a("s_waitcnt vmcnt(0)")
        a(f"s_cbranch_scc1 {l}_ok")
        a(f"v_cmp_ne_u32 vcc, v{VTAG}, v{vd+1}")
        a(f"v_cmp_ne_u32 s[{S.EX}:{S.EX+1}], v{VTAG}, v{vd+3}")
        a(f"s_or_b64 vcc, vcc, s[{S.EX}:{S.EX+1}]")
        a(f"s_cbranch_vccnz {l}")
        a.label(f"{l}_ok")

    def wave_max_key(vd):
        a(f"v_max_u32 v{vd}, v{vd}, v{vd+2}")
        for r in ("row_ror:8", "row_ror:4", "row_ror:2", "row_ror:1"):
            a.nop(2)
            a(f"v_max_u32_dpp v{vd}, v{vd}, v{vd} {r} {DPPM}")
        a.nop(2)
        a(f"v_max_u32_dpp v{vd}, v{vd}, v{vd} row_bcast:15 row_mask:0xa bank_mask:0xf")
        a.nop(2)
        a(f"v_max_u32_dpp v{vd}, v{vd}, v{vd} row_bcast:31 row_mask:0xc bank_mask:0xf")

    def lds_put(addr, v, tag=False):
        a(f"v_mov_b32 v9, {addr}")
        a("s_mov_b32 exec_lo, 0")
        a("s_brev_b32 exec_hi, 1")
        if tag:
            a(f"ds_write2_b32 v9, v{v}, v{VTAG} offset1:1")
        else:
            a(f"ds_write_b32 v9, v{v}")
        a("s_mov_b64 exec, -1")
        a("s_waitcnt lgkmcnt(0)")

    def sigmoid(d, s):
        a(f"v_mul_f32 v{d}, {LOG2E | 0x80000000:#x}, v{s}")
        a(f"v_exp_f32 v{d}, v{d}")
        a.nop(1)
        a(f"v_add_f32 v{d}, 1.0, v{d}")
        a(f"v_rcp_f32 v{d}, v{d}")
        a.nop(1)

    def rnd(d, s):
        a(f"v_cvt_pk_bf16_f32 v{d}, v{s}, v{s}")
        a(f"v_and_b32 v{d}, {HIM}, v{d}")

    def ws_setup():
        a.srd(S.RWS, S.PWS, WS_BYTES)
        a(f"s_mov_b32 s{S.SPIN}, 0")

    def tag_load():
        a(f"v_mov_b32 v{VTAG}, 0")
        a(f"global_load_dword v{VE}, v{VTAG}, s[{S.PWS}:{S.PWS+1}]")
        a(f"s_mov_b32 s{S.KM}, 0x9E3779B1")

    def tag_make():
        a(f"v_mul_lo_u32 v{VTAG}, v{VE}, s{S.KM}")
        a(f"v_add_u32 v{VTAG}, 0x7F4A7C15, v{VTAG}")

    a(f"s_load_dwordx2 s[{S.PX}:{S.PX+1}], s[0:1], {KA_X}")
    a(f"s_load_dwordx16 s[16:31], s[0:1], {KA_WR}")
    if o.stamps:
        for i in range(1, 16):
            a(f"s_mov_b32 s{S.ST+2*i}, 0")
        a(f"s_mov_b32 s{S.RC}, 0")
    stamp(0)
    if o.hold or o.probe >= 0:
        a("s_memrealtime s[66:67]")
    if o.skew:
        a("s_and_b32 s6, s2, 7")
        a("s_cmp_lg_u32 s6, 5")
        a("s_cbranch_scc1 L_noskew")
        a(f"s_sleep {o.skew}")
        a.label("L_noskew")
    a("v_lshrrev_b32 v1, 6, v0")
    a("v_and_b32 v0, 63, v0")
    a(f"v_readfirstlane_b32 s{S.WAVE}, v1")
    a("v_and_b32 v1, 15, v0")
    a("v_lshrrev_b32 v2, 4, v0")
    a(f"s_and_b32 s{S.T0}, s2, 7")
    a(f"s_sub_u32 s{S.WAVE}, s{S.WAVE}, 1")
    a(f"s_min_u32 s{S.WAVE}, s{S.WAVE}, 8")
    a(f"s_lshr_b32 s{S.T1}, s2, 3")
    a(f"s_cmp_ge_u32 s2, {NA}")
    a("s_cbranch_scc1 L_notA")
    if o.only == "F":
        a("s_endpgm")

    VROW, VG16, VSGN, VTR, VST = 3, 5, 8, 10, 11
    VLD, VUW, VUX, VUR0, VUR1 = 10, 11, 28, 29, 30
    XR, WR, GW, CO = 16, 24, 24, 24
    CM, AOP, ACC = 32, 96, 112
    LD, DA0, DA1, TP, X16, PK = 32, 64, 32, 80, 96, 48
    M1, GA, XG = 100, 148, 152
    Cc, Ss = 64, 68
    UO, PQ, M2 = 32, 48, 64

    def rows_setup(wreg):
        a(f"s_lshl3_add_u32 s{S.T5}, s{S.HH}, s{wreg}")
        a(f"s_lshl_b32 s{S.T5}, s{S.T5}, 7")
        a(f"s_add_u32 s{S.TD}, s{S.T5}, s{S.T1C}")
        a(f"s_sub_u32 s{S.TM}, 2048, s{S.TD}")
        a(f"s_cmp_eq_u32 s{S.TD}, 0")
        a(f"s_cselect_b32 s{S.TM}, 1024, s{S.TM}")
        a(f"s_lshl_b32 s{S.T4}, s{S.TD}, 10")
        a(f"s_lshl_b32 s{S.T5}, s{S.TM}, 10")
        a(f"v_add_u32 v6, s{S.T4}, v{VG16}")
        a(f"v_add_u32 v7, s{S.T5}, v{VG16}")

    def vrow_setup():
        a("v_and_b32 v6, 1, v2")
        a("v_lshlrev_b32 v6, 5, v6")
        a("v_lshl_add_u32 v6, v1, 6, v6")
        a("v_lshrrev_b32 v7, 1, v2")
        a(f"v_lshl_add_u32 v{VROW}, v7, 4, v6")

    def rows_load():
        a(f"global_load_dwordx4 {V(XR,4)}, v6, {PXS}")
        a(f"global_load_dwordx4 {V(XR+4,4)}, v7, {PXS}")

    def sgn_setup():
        a(f"v_lshlrev_b32 v{VSGN}, 31, v1")
        a(f"v_lshrrev_b32 v9, 16, v{VSGN}")
        a(f"v_or_b32 v{VSGN}, v{VSGN}, v9")

    def sgn_setup2():
        a(f"v_lshlrev_b32 v{VSGN}, 31, v1")
        a(f"v_lshrrev_b32 v14, 16, v{VSGN}")
        a(f"v_or_b32 v{VSGN}, v{VSGN}, v14")

    def tile_ids():
        a(f"s_bitcmp1_b32 s{S.T1}, 3")
        a(f"s_cselect_b32 s{S.T2}, s{S.T3}, s{S.T2}")
        a(f"s_and_b32 s{S.T3}, s{S.T1}, 7")
        a(f"s_lshl3_add_u32 s{S.BLK}, s{S.T2}, s{S.T3}")
        a(f"s_lshl_b32 s{S.PIE}, s{S.T2}, 5")
        a(f"s_add_u32 s{S.PIE}, s{S.PIE}, s{S.T3}")
        a(f"s_lshl_b32 s{S.PIE}, s{S.PIE}, 6")

    def vst_setup():
        a(f"v_mul_u32_u24 v{VST}, {CS}, v1")
        a(f"v_lshl_add_u32 v{VST}, v2, 4, v{VST}")

    def const_d2():
        R = 40
        a("v_lshlrev_b32 v6, 2, v2")
        a("v_cvt_f32_u32 v7, v1")
        a("v_cvt_f32_u32 v6, v6")
        a("v_mul_f32 v7, 0x3d800000, v7")
        for hf in range(2):
            if hf:
                a("v_add_f32 v7, 0x3d800000, v7")
            a("v_mul_f32 v9, v6, v7")
            for jj in range(4):
                a(f"v_cos_f32 v{Cc+jj}, v9")
                a(f"v_sin_f32 v{Ss+jj}, v9")
                if jj < 3:
                    a("v_add_f32 v9, v9, v7")
            a.nop(1)
            for jj in range(4):
                if hf == 0:
                    a(f"v_cvt_pk_bf16_f32 v{R+jj}, v{Cc+jj}, v{Ss+jj}")
                    a(f"v_cvt_pk_bf16_f32 v{R+8+jj}, -v{Ss+jj}, v{Cc+jj}")
                else:
                    a(f"v_cvt_pk_bf16_f32 v{R+4+jj}, v{Cc+jj}, -v{Ss+jj}")
                    a(f"v_cvt_pk_bf16_f32 v{R+12+jj}, -v{Ss+jj}, -v{Cc+jj}")
        for k in range(4):
            a(f"ds_write_b128 v{VG16}, {V(R+4*k,4)} offset:{L_M2 + 1024*k}")

    if o.touch:
        a("s_mov_b64 exec, 0")
        for k in range(9):
            a(f"s_cmp_eq_u32 s{S.WAVE}, {(k + 8) % 9}")
            a(f"s_cbranch_scc1 L_ta{k}")
        a.label("L_taback")
        a("s_mov_b64 exec, -1")
        a.label("L_ta_start")
    a(f"s_add_u32 s{S.T2}, s{S.T0}, 1")
    a(f"s_sub_u32 s{S.T3}, 15, s{S.T0}")
    a(f"s_cmp_eq_u32 s{S.WAVE}, 8")
    a("s_cbranch_scc1 L_ah")
    a(f"s_and_b32 s{S.HH}, s{S.T1}, 1")
    a(f"s_bitcmp1_b32 s{S.T1}, 1")
    a(f"s_cselect_b32 s{S.T4}, s{S.T3}, s{S.T2}")
    a(f"s_lshr_b32 s{S.T5}, s{S.T1}, 2")
    a(f"s_lshl4_add_u32 s{S.T1C}, s{S.T5}, s{S.T4}")
    a(f"v_lshlrev_b32 v{VG16}, 4, v0")
    a(f"v_mov_b32 v{VROW}, 0")
    a(f"s_cmp_lg_u32 s{S.T0}, 7")
    a("s_cbranch_scc1 L_k7")
    a(f"s_lshr_b32 s{S.T5}, s{S.T1}, 1")
    a(f"s_lshl3_add_u32 s{S.T1C}, s{S.T5}, 8")
    a(f"s_mov_b32 s{S.T2}, 0")
    a(f"s_cmp_eq_u32 s2, 127")
    a(f"s_cselect_b32 s{S.T1C}, 0, s{S.T1C}")
    a(f"s_cselect_b32 s{S.HH}, 0, s{S.HH}")
    a.label("L_k7")
    rows_setup(S.WAVE)
    a("s_waitcnt lgkmcnt(0)")
    rows_load()
    stamp(1)
    if o.b0 == 2:
        a("s_barrier")
    tile_ids()

    def tile_dma():
        a(f"s_lshl_b32 s{S.T4}, s{S.WAVE}, 11")
        a(f"s_add_u32 s{S.T5}, s{S.T4}, s{S.BLK}")
        a(f"s_lshl_b32 s{S.T5}, s{S.T5}, 7")
        a(f"s_mov_b32 m0, s{S.T4}")
        a("v_and_b32 v9, 7, v0")
        a("v_bfe_u32 v13, v0, 4, 1")
        a("v_xor_b32 v9, v9, v13")
        a("v_lshrrev_b32 v13, 3, v0")
        a(f"v_lshl_add_u32 v9, v9, 4, s{S.T5}")
        a("v_lshl_add_u32 v13, v13, 14, v9")
        a(f"global_load_lds_dwordx4 v13, {PXS}")
        a(f"s_add_u32 m0, s{S.T4}, 1024")
        a("v_add_u32 v13, 0x20000, v13")
        a(f"global_load_lds_dwordx4 v13, {PXS}")
        stamp(2)

    if not o.tlate:
        tile_dma()
    C1, S1, K = AOP, AOP + 4, AOP + 8
    a(f"s_lshr_b32 s{S.T0}, s{S.WAVE}, 2")
    a(f"s_and_b32 s{S.T1}, s{S.WAVE}, 1")
    a(f"s_bfe_u32 s{S.T2}, s{S.WAVE}, 0x10001")
    a(f"v_lshl_add_u32 v6, s{S.T0}, 4, v1")
    a(f"s_lshl3_add_u32 s{S.T3}, s{S.T2}, s{S.T1}")
    a(f"s_lshl_b32 s{S.T3}, s{S.T3}, 2")
    a("v_cvt_f32_u32 v6, v6")
    a(f"v_lshl_add_u32 v7, v2, 3, s{S.T3}")
    a("v_mul_f32 v6, 0x3c000000, v6")
    a("v_cvt_f32_u32 v7, v7")
    a("v_mul_f32 v7, v7, v6")
    for j in range(4):
        a(f"v_cos_f32 v{C1+j}, v7")
        a(f"v_sin_f32 v{S1+j}, v7")
        if j < 3:
            a("v_add_f32 v7, v7, v6")
    if o.tlate == 2:
        a(f"global_load_dwordx4 {V(WR,4)}, v{VG16}, s[{S.PWR}:{S.PWR+1}]")
        tile_dma()
    a(f"s_lshl_b32 s{S.T4}, s{S.T0}, 13")
    a(f"s_lshl_b32 s{S.T5}, s{S.T2}, 10")
    a(f"s_lshl3_add_u32 s{S.T5}, s{S.T1}, s{S.T5}")
    a(f"v_add_u32 v15, s{S.T4}, v{VG16}")
    a(f"v_add_u32 v9, s{S.T5}, v15")
    a(f"v_cvt_pk_bf16_f32 v{K+0}, v{C1}, v{C1+1}")
    a(f"v_cvt_pk_bf16_f32 v{K+1}, v{C1+2}, v{C1+3}")
    a(f"v_cvt_pk_bf16_f32 v{K+2}, -v{S1}, -v{S1+1}")
    a(f"v_cvt_pk_bf16_f32 v{K+3}, -v{S1+2}, -v{S1+3}")
    a("v_cmp_eq_f32 vcc, 0, v6")
    a(f"v_cvt_pk_bf16_f32 v{K+4}, v{C1}, -v{S1+1}")
    a(f"v_cvt_pk_bf16_f32 v{K+5}, -v{C1+2}, v{S1+3}")
    a(f"v_cvt_pk_bf16_f32 v{K+6}, -v{S1}, -v{C1+1}")
    a(f"v_cvt_pk_bf16_f32 v{K+7}, v{S1+2}, v{C1+3}")
    a(f"ds_write_b64 v9, {V(K,2)} offset:{L_CT}")
    a(f"ds_write_b64 v9, {V(K+4,2)} offset:{L_CT+4096}")
    a(f"ds_write_b64 v9, {V(K+6,2)} offset:{L_CT+6144}")
    a("s_mov_b64 exec, vcc")
    a(f"v_mov_b32 v{K+2}, 0xbf803f80")
    a(f"v_mov_b32 v{K+3}, 0xbf803f80")
    a("s_mov_b64 exec, -1")
    a(f"ds_write_b64 v9, {V(K+2,2)} offset:{L_CT+2048}")
    if o.tlate != 2:
        a(f"global_load_dwordx4 {V(WR,4)}, v{VG16}, s[{S.PWR}:{S.PWR+1}]")
    if o.tlate == 1:
        tile_dma()
    a("v_mov_b32 v12, 0")
    a("v_mov_b32 v13, 0")
    stamp(3)
    if o.b0 == 1:
        a("s_waitcnt lgkmcnt(0)")
        a("s_barrier")
        for k in range(2):
            for t in range(4):
                a(f"ds_read_b128 {V(CM+16*t+4*k,4)}, v15 offset:{L_CT + t*2048 + k*1024}")

    def dots(w, fill=()):
        fill = list(fill)

        def pad(n):
            while n and fill:
                a(fill.pop(0))
                n -= 1
            a.nop(n)

        for i in range(4):
            a(f"v_dot2c_f32_bf16 v12, v{XR+i}, v{w+i}")
            a(f"v_dot2c_f32_bf16 v13, v{XR+4+i}, v{w+i}")
        pad(3)
        a("v_permlane32_swap_b32 v12, v13")
        a("v_add_f32 v12, v12, v13")
        a("v_mov_b32 v13, v12")
        pad(2)
        a("v_permlane16_swap_b32 v12, v13")
        a("v_add_f32 v12, v12, v13")
        for r in (8, 4, 2, 1):
            pad(2)
            a(f"v_add_f32_dpp v12, v12, v12 row_ror:{r} {DPPM}")
        rnd(12, 12)
        for x in fill:
            a(x)

    a(f"s_waitcnt vmcnt({2 if o.tlate else 0})")
    stamp(4)
    dots(WR, [f"s_sub_u32 s{S.T4}, 0xffff, s{S.TD}", f"s_sub_u32 s{S.T5}, 0xffff, s{S.TM}", f"v_mov_b32 v4, s{S.T4}",
              f"v_writelane_b32 v4, s{S.T5}, 32", f"v_mov_b32 v9, {L_KSL}",
              f"v_lshlrev_b32 v{VSGN}, 31, v1", f"v_lshrrev_b32 v7, 16, v{VSGN}", f"v_or_b32 v{VSGN}, v{VSGN}, v7",
              "v_bfe_u32 v6, v0, 2, 2", "v_and_b32 v14, 3, v0", f"v_lshl_add_u32 v14, v14, 1, s{S.T2}",
              f"v_lshl_add_u32 v{VTR}, v2, 3, v6", "v_lshrrev_b32 v6, 1, v6", "v_xor_b32 v14, v14, v6"])
    a("v_ashrrev_i32 v7, 31, v12")
    a("v_or_b32 v7, 0x80000000, v7")
    a("v_xor_b32 v7, v7, v12")
    a(f"v_and_b32 v7, {HIM}, v7")
    a("v_or_b32 v7, v7, v4")
    a("s_mov_b32 exec_lo, 1")
    a("s_mov_b32 exec_hi, 1")
    a("ds_max_u32 v9, v7")
    a("s_mov_b64 exec, -1")
    if o.b1a:
        a("s_waitcnt lgkmcnt(0)")
        hold("K")
        a("s_barrier")
    if o.b0 == 2:
        for k in range(2):
            for t in range(4):
                a(f"ds_read_b128 {V(CM+16*t+4*k,4)}, v15 offset:{L_CT + t*2048 + k*1024}")
    a(f"s_lshl_b32 s{S.T1}, s{S.T1}, 3")
    a(f"v_lshl_add_u32 v14, v14, 4, s{S.T1}")
    a(f"v_lshl_add_u32 v{VTR}, v{VTR}, 7, v14")
    a("v_lshlrev_b32 v9, 4, v2")
    a("s_waitcnt vmcnt(0)" + ("" if o.b0 == 2 else " lgkmcnt(0)"))
    hold("B1")
    a("s_barrier")
    stamp(5)
    if o.b0 == 2:
        a("s_waitcnt lgkmcnt(5)")
    a(f"ds_read_b128 v[28:31], v9 offset:{L_EXP}")
    for k in range(4):
        for h in range(2):
            a(f"ds_read_b64_tr_b16 {V(AOP+4*k+2*h,2)}, v{VTR} offset:{L_TILE + k*4096 + h*512}")
        if k < 2 and not o.b0:
            for t in range(4):
                a(f"ds_read_b128 {V(CM+16*t+4*k,4)}, v15 offset:{L_CT + t*2048 + k*1024}")
        if k == 1 and not o.b0:
            a("s_waitcnt lgkmcnt(9)")
    a(f"global_load_dwordx4 {V(GW,4)}, v{VG16}, s[{S.PGW}:{S.PGW+1}]")
    xors = [f"v_xor_b32 v{CM+t*16+8+4*kp+r}, v{CM+t*16+4*kp+r}, v{VSGN}" for kp in range(2) for t in range(4) for r in range(4)]
    misc = [f"s_mul_i32 s{S.SO}, s{S.T0}, {16*CS}",
            f"s_add_u32 s{S.SO}, s{S.SO}, s{S.PIE}",
            f"s_and_b32 s{S.T4}, s{S.WAVE}, 3",
            f"s_lshl_b32 s{S.T4}, s{S.T4}, 9",
            f"s_add_u32 s{S.SO}, s{S.SO}, s{S.T4}",
            f"s_add_u32 s{S.SO}, s{S.SO}, {WS_INT}",
            f"s_mov_b32 s{S.RWS}, s{S.PWS}", f"s_mov_b32 s{S.RWS+1}, s{S.PWS+1}", f"s_mov_b32 s{S.RWS+2}, {WS_BYTES:#x}",
            f"s_mov_b32 s{S.RWS+3}, 0x20000",
            f"s_add_u32 s{S.SO+1}, s{S.SO}, {32*CS}", f"s_mov_b32 s{S.T5}, 0xfffefffe", f"s_mov_b32 s{S.T4}, 0x07060302",
            f"v_mul_u32_u24 v{VST}, {CS}, v1", f"v_lshl_add_u32 v{VST}, v2, 4, v{VST}",
            ]
    fill = xors + misc
    for k in range(4):
        for t in range(4):
            if o.b0:
                if t == 0:
                    a(f"s_waitcnt lgkmcnt({6-2*k})")
            elif k == 0:
                a(f"s_waitcnt lgkmcnt({13-t})")
            elif k == 1:
                a(f"s_waitcnt lgkmcnt({7-t})")
            elif t == 0:
                a(f"s_waitcnt lgkmcnt({2 if k == 2 else 0})")
            c = "0" if k == 0 else V(ACC + 4 * t, 4)
            a(f"{MF} {V(ACC+4*t,4)}, {V(AOP+4*k,4)}, {V(CM+16*t+4*k,4)}, {c}")
            n = 4 if k < 2 else 2
            if k < 3 or t < 3:
                for _ in range(n):
                    if fill:
                        x = fill.pop(0)
                        if x != "TAGWAIT":
                            a(x)
    for x in fill:
        a(x)
    a("v_mov_b32 v12, 0")
    a("v_mov_b32 v13, 0")
    for h in range(2):
        for i in range(8):
            a(f"v_add_u32 v{ACC+8*h+i}, 0x10000, v{ACC+8*h+i}")
        for i in range(4):
            a(f"v_perm_b32 v{AOP+4*h+i}, v{ACC+8*h+4+i}, v{ACC+8*h+i}, s{S.T4}")
        for i in range(4):
            a(f"v_and_or_b32 v{AOP+4*h+i}, v{AOP+4*h+i}, s{S.T5}, v{28+i}")
        a(f"buffer_store_dwordx4 {V(AOP+4*h,4)}, v{VST}, {R4(S.RWS)}, s{S.SO+h} offen sc1")
    a(f"s_mov_b32 s{S.SPIN}, 0")
    a(f"s_mov_b32 s{S.ISZ}, 0")
    stamp(7)
    if o.only == "P1":
        a("s_endpgm")
    a.label("L_ta_end")

    gwait = [2]

    def gates(full):
        if full:
            a(f"s_waitcnt vmcnt({gwait[0]})")
        dots(GW)
        if full:
            a(f"s_lshl_b32 s{S.T0}, s{S.WAVE}, 11")
            a(f"v_add_u32 v6, s{S.T0}, v{VG16}")
            a(f"ds_write_b128 v6, {V(XR,4)} offset:{L_XT}")
            a(f"ds_write_b128 v6, {V(XR+4,4)} offset:{L_XT+1024}")
            a(f"v_lshl_add_u32 v7, v1, 6, s{S.T0}")
            a("v_lshl_add_u32 v7, v2, 3, v7")
            a("s_waitcnt lgkmcnt(0)")
            for r in range(2):
                a(f"ds_read2_b64 {V(XR+4*r,4)}, v7 offset0:{0} offset1:{4}" if False else f"ds_read_b64 {V(XR+4*r,2)}, v7 offset:{L_XT+1024*r}")
                a(f"ds_read_b64 {V(XR+4*r+2,2)}, v7 offset:{L_XT+1024*r+32}")
            vrow_setup()
        sigmoid(13, 12)
        rnd(13, 13)
        a("v_sub_f32 v14, 1.0, v13")
        rnd(14, 14)
        a(f"v_readlane_b32 s{S.T0}, v13, 0")
        a(f"v_readlane_b32 s{S.T1}, v13, 32")
        a(f"v_readlane_b32 s{S.T2}, v14, 0")
        a(f"v_readlane_b32 s{S.T3}, v14, 32")
        a(f"s_xor_b32 s{S.T4}, s{S.T0}, 0x80000000")
        a(f"s_cmp_eq_u32 s{S.TD}, 0")
        a(f"s_cselect_b32 s{S.T4}, 0, s{S.T4}")
        a(f"s_cselect_b32 s{S.T5}, 0, s{S.T1}")
        if not full:
            return
        a(f"v_mov_b32 v{CO}, s{S.T0}")
        a(f"v_mov_b32 v{CO+1}, s{S.T4}")
        a(f"v_mov_b32 v{CO+2}, s{S.T5}")
        a(f"v_mov_b32 v{CO+3}, s{S.T1}")
        a(f"v_mov_b32 v13, s{S.T2}")
        a(f"v_mov_b32 v14, s{S.T3}")
        a("s_waitcnt lgkmcnt(0)")
        for r in range(2):
            for i in range(4):
                a(f"v_lshlrev_b32 v{XG+8*r+2*i}, 16, v{XR+4*r+i}")
                a(f"v_and_b32 v{XG+8*r+2*i+1}, {HIM}, v{XR+4*r+i}")
            for i in range(8):
                a(f"v_mul_f32 v{XG+8*r+i}, v{13+r}, v{XG+8*r+i}")

    def addr_ur(wreg):
        a(f"s_mul_i32 s{S.T1}, s{wreg}, {2*UB}")
        a("v_bfe_u32 v7, v1, 1, 2")
        a("v_xor_b32 v7, v7, v2")
        a(f"v_lshl_add_u32 v7, v7, 4, s{S.T1}")
        a(f"v_lshl_add_u32 v{VUR0}, v1, 6, v7")
        a("v_sub_u32 v6, 16, v1")
        a("v_bfe_u32 v7, v6, 1, 2")
        a("v_xor_b32 v7, v7, v2")
        a(f"v_lshl_add_u32 v7, v7, 4, s{S.T1}")
        a(f"v_lshl_add_u32 v{VUR1}, v6, 6, v7")

    def addr_p2():
        a("v_lshlrev_b32 v6, 4, v1")
        a(f"v_lshl_add_u32 v{VLD}, v2, 13, v6")
        a(f"v_mul_u32_u24 v6, {4*UB}, v2")
        a("v_bfe_u32 v7, v1, 1, 2")
        a(f"v_xor_b32 v7, s{S.WAVE}, v7")
        a("v_lshl_add_u32 v7, v7, 4, v6")
        a(f"v_lshl_add_u32 v{VUW}, v1, 6, v7")
        a(f"s_lshl4_add_u32 s{S.T1}, s{S.WAVE}, 1024")
        a(f"v_mov_b32 v9, {L_DUMP - L_U2}")
        a(f"v_lshl_add_u32 v{VUX}, v0, 1, v9")
        a(f"v_lshl_add_u32 v7, v1, 1, s{S.T1}")
        a("s_mov_b32 exec_lo, 0x00ff00ff")
        a("s_mov_b32 exec_hi, 0x00ff00ff")
        a(f"v_add_u32 v{VUX}, v7, v6")
        a("s_mov_b64 exec, -1")

    EXP = 96

    def exp_setup():
        a("v_and_b32 v6, 3, v1")
        a("v_lshlrev_b32 v6, 4, v6")
        a(f"ds_read_b128 {V(EXP,4)}, v6 offset:{L_EXP}")
        a("s_waitcnt lgkmcnt(0)")

    def exp_make():
        a("v_lshlrev_b32 v6, 1, v1")
        a(f"v_lshrrev_b32 v6, v6, v{VTAG}")
        a("v_lshlrev_b32 v7, 15, v6")
        a("v_and_b32 v6, 1, v6")
        a("v_and_b32 v7, 0x10000, v7")
        a("v_or_b32 v6, v6, v7")
        a("v_lshlrev_b32 v7, 2, v1")
        a(f"ds_write_b32 v7, v6 offset:{L_EXP}")
        a("s_waitcnt lgkmcnt(0)")

    def const_d1():
        a("v_cvt_f32_u32 v6, v1")
        a(f"s_lshl_b32 s{S.T0}, s{S.WAVE}, 2")
        a(f"v_lshl_add_u32 v7, v2, 6, s{S.T0}")
        a("v_mul_f32 v6, 0x3b000000, v6")
        a("v_cvt_f32_u32 v7, v7")
        a("v_mul_f32 v15, 0x41800000, v6")
        a("v_mul_f32 v7, v7, v6")
        for ib in range(4):
            if ib:
                a("v_add_f32 v7, v7, v6")
            for j in range(4):
                src = "v7" if j == 0 else "v9"
                a(f"v_cos_f32 v{Cc+j}, {src}")
                a(f"v_sin_f32 v{Ss+j}, {src}")
                if j < 3:
                    a(f"v_add_f32 v9, {src}, v15")
            b = M1 + 12 * ib
            a(f"v_mov_b32 v{b+8}, 0")
            for p in range(2):
                a(f"v_cvt_pk_bf16_f32 v{b+p}, v{Cc+2*p}, v{Cc+2*p+1}")
                a(f"v_cvt_pk_bf16_f32 v{b+4+p}, -v{Ss+2*p}, -v{Ss+2*p+1}")
            for p in range(2):
                a(f"v_xor_b32 v{b+2+p}, v{b+p}, v{VSGN}")
                a(f"v_xor_b32 v{b+6+p}, v{b+4+p}, v{VSGN}")
        a("v_lshrrev_b32 v6, 1, v1")
        a(f"v_add_u32 v7, s{S.T0}, v6")
        a("v_and_b32 v9, 1, v1")
        a("v_lshl_add_u32 v7, v9, 3, v7")
        a("v_cvt_f32_u32 v7, v7")
        a("v_mul_f32 v7, 0x3d000000, v7")
        a("v_cos_f32 v7, v7")
        for ib in range(4):
            m = 0x00030003 << (2 * ib)
            a(f"s_mov_b32 exec_lo, {m:#x}")
            a(f"s_mov_b32 exec_hi, {m:#x}")
            a(f"v_cvt_pk_bf16_f32 v{M1+12*ib+8}, v7, -v7")
        a("s_mov_b64 exec, -1")
        for ib in range(4):
            for p in range(1, 4):
                a(f"v_mov_b32 v{M1+12*ib+8+p}, v{M1+12*ib+8}")

    def const_ga():
        a("v_lshrrev_b32 v6, 1, v1")
        a(f"s_lshl_b32 s{S.T0}, s{S.HH}, 10")
        a(f"s_add_u32 s{S.T0}, s{S.T0}, s{S.T1C}")
        a(f"v_lshl_add_u32 v6, v6, 7, s{S.T0}")
        a("v_and_b32 v7, 1, v1")
        a("v_lshlrev_b32 v9, 9, v7")
        l0, ld = a.L("g0"), a.L("gd")
        a(f"s_cmp_lg_u32 s{S.T1C}, 0")
        a(f"s_cbranch_scc1 {l0}")
        a("s_mov_b32 exec_lo, 0x00020002")
        a("s_mov_b32 exec_hi, 0x00020002")
        a("v_mov_b32 v6, 0x400")
        a("v_mov_b32 v9, 0")
        a("s_mov_b64 exec, -1")
        a.label(l0)
        a("v_lshlrev_b32 v7, 2, v2")
        a("v_mad_u32_u24 v9, v7, v6, v9")
        a("v_cvt_f32_u32 v6, v6")
        a("v_cvt_f32_u32 v9, v9")
        a("v_mul_f32 v6, 0x3a000000, v6")
        a("v_mul_f32 v9, 0x3a000000, v9")
        for jj in range(4):
            a(f"v_cos_f32 v{Cc+jj}, v9")
            a(f"v_sin_f32 v{Ss+jj}, v9")
            if jj < 3:
                a("v_add_f32 v9, v9, v6")
        a(f"s_and_b32 s{S.T1}, s{S.T1C}, 63")
        a.nop(1)
        for jj in range(4):
            a(f"v_cvt_pk_bf16_f32 v{GA+jj}, v{Cc+jj}, v{Ss+jj}")
        a(f"s_cmp_lg_u32 s{S.T1}, 0")
        a(f"s_cbranch_scc1 {ld}")
        a(f"s_lshr_b32 s{S.T1}, s{S.T1C}, 2")
        for jj in range(4):
            a(f"v_and_b32 v{GA+jj}, 0xffff, v{GA+jj}")
            a(f"v_lshlrev_b32 v{GA+jj}, s{S.T1}, v{GA+jj}")
        a.label(ld)

    def int_base():
        a(f"s_and_b32 s{S.T1}, s{S.T1C}, 63")
        a(f"s_mul_i32 s{S.L0}, s{S.T1}, {CS}")
        a(f"s_lshl_b32 s{S.T1}, s{S.WAVE}, 9")
        a(f"s_add_u32 s{S.L0}, s{S.L0}, s{S.T1}")
        a(f"s_add_u32 s{S.L0}, s{S.L0}, {WS_INT}")
        a(f"s_add_u32 s{S.L1}, s{S.L0}, 4096")

    def m2_addr():
        a(f"s_cmp_eq_u32 s{S.TD}, 0")
        a(f"s_cselect_b32 s{S.T0}, 0, 2048")
        a(f"v_add_u32 v4, s{S.T0}, v{VG16}")

    def int_loads(ah):
        for jj in range(4):
            so = S.L0 if jj < 2 else S.L1
            a(f"buffer_load_dwordx4 {V(LD+16*ah+4*jj,4)}, v{VLD}, {R4(S.RWS)}, s{so} offen offset:{(jj & 1)*2048 + ah*256} sc1")

    a.srd(S.ROUT, S.POUT, 0x200000)
    a(f"s_cmp_ge_u32 s{S.WAVE}, 4")
    a("s_cbranch_scc1 L_hi0")
    if o.prio & 1:
        a("s_setprio 2")
    pre = [lambda: (addr_p2(), int_base(), const_ga(), exp_setup()), const_d1, lambda: gates(True), lambda: (addr_ur(S.WAVE), m2_addr())]
    if o.gfirst:
        pre[1], pre[2] = pre[2], pre[1]
    for f in pre[:o.npre]:
        f()
    stamp(8)
    a(f"s_waitcnt vmcnt({0 if o.ackwait else 2})")
    if o.b3:
        a("s_barrier")
    if o.isleep0:
        a(f"s_sleep {o.isleep0}")
    hold("B4")
    stamp(9)
    if o.stag:
        a(f"s_cmp_lg_u32 s{S.HH}, 0")
        a("s_cbranch_scc1 L_stg1")
        int_loads(0)
        a(f"s_waitcnt vmcnt({4 - o.stag})")
        int_loads(1)
        a("s_branch L_stg2")
        a.label("L_stg1")
        int_loads(1)
        a(f"s_waitcnt vmcnt({4 - o.stag})")
        int_loads(0)
        a("s_waitcnt vmcnt(0)")
        a.label("L_stg2")
    else:
        int_loads(0)
        int_loads(1)
    gwait[0] = 10
    for f in pre[o.npre:]:
        f()
    gwait[0] = 2
    a.label("L_zjoin")
    stamp(10)
    for ah in range(2):
        a(f"s_waitcnt vmcnt({4-4*ah})")
        a.label(f"L_got{ah}")
        b = LD + 16 * ah
        da = DA1 if ah else DA0
        for ib in range(4):
            for jj in range(4):
                a(f"v_xor_b32 v{TP+4*ib+jj}, v{b+4*jj+ib}, v{EXP+ib}")
            if ib == 0:
                a(f"v_or3_b32 v6, v{TP}, v{TP+1}, v{TP+2}")
                a(f"v_or_b32 v6, v6, v{TP+3}")
            else:
                a(f"v_or3_b32 v6, v6, v{TP+4*ib}, v{TP+4*ib+1}")
                a(f"v_or3_b32 v6, v6, v{TP+4*ib+2}, v{TP+4*ib+3}")
            if ib == 3:
                a("v_and_b32 v6, 0x10001, v6")
                a("v_cmp_ne_u32 vcc, 0, v6")
            if not (ah == 1):
                a(f"{MF} {V(da+4*ib,4)}, {V(TP+4*ib,4)}, {V(GA,4)}, 0")
            else:
                a(f"{MF} {V(da+4*ib,4)}, {V(TP+4*ib,4)}, {V(GA,4)}, 0")
        a(f"s_cbranch_vccnz L_retry{ah}")
        a.label(f"L_fail{ah}")
    stamp(11)

    def d1(jb):
        a(f"{MF} {V(DA0+4*jb,4)}, {V(TP+4*jb,4)}, {V(M1+12*jb,4)}, 0")
        a(f"{MF} {V(DA1+4*jb,4)}, {V(TP+4*jb,4)}, {V(M1+12*jb+4,4)}, 0")
        a(f"{MF} {V(X16,4)}, {V(TP+4*jb,4)}, {V(M1+12*jb+8,4)}, {'0' if jb == 0 else V(X16,4)}")

    for ib in range(4):
        for p in range(4):
            s0 = (DA1 if p >= 2 else DA0) + 4 * ib + 2 * (p & 1)
            a(f"v_cvt_pk_bf16_f32 v{TP+4*ib+p}, v{s0}, v{s0+1}")
        if ib:
            d1(ib - 1)
    d1(3)
    for ib in range(3):
        for i in range(4):
            a(f"v_cvt_pk_bf16_f32 v{PK+4*i+ib}, v{DA0+4*ib+i}, v{DA1+4*ib+i}")
    for i in range(4):
        a(f"v_cvt_pk_bf16_f32 v{PK+4*i+3}, v{DA0+12+i}, v{DA1+12+i}")
        a(f"ds_write_b128 v{VUW}, {V(PK+4*i,4)} offset:{L_U2 + i*UB}")
    a(f"v_cvt_pk_bf16_f32 v{X16}, v{X16}, v{X16+1}")
    a(f"v_cvt_pk_bf16_f32 v{X16+2}, v{X16+2}, v{X16+3}")
    a(f"ds_write_b16 v{VUX}, v{X16} offset:{L_U2}")
    a(f"ds_write_b16_d16_hi v{VUX}, v{X16} offset:{L_U2+UB}")
    a(f"ds_write_b16 v{VUX}, v{X16+2} offset:{L_U2+2*UB}")
    a(f"ds_write_b16_d16_hi v{VUX}, v{X16+2} offset:{L_U2+3*UB}")
    a.label("L_d2")
    a(f"ds_read_b128 {V(M2,4)}, v{VG16} offset:{L_M2}")
    a(f"ds_read_b128 {V(M2+4,4)}, v{VG16} offset:{L_M2+1024}")
    a(f"ds_read_b128 {V(M2+8,4)}, v4 offset:{L_M2}")
    a(f"ds_read_b128 {V(M2+12,4)}, v4 offset:{L_M2+1024}")
    a(f"v_mov_b32 v9, {L_GKEY}")
    a(f"s_cmp_lg_u32 s{S.ISZ}, 0")
    a("s_waitcnt lgkmcnt(0)")
    a("s_cbranch_scc1 L_zsync")
    a("s_barrier")
    stamp(12)
    a("ds_read_b32 v6, v9")
    a(f"ds_read_b128 {V(UO,4)}, v{VUR0} offset:{L_U2}")
    a(f"ds_read_b128 {V(UO+4,4)}, v{VUR1} offset:{L_U2}")
    a(f"ds_read_b128 {V(UO+8,4)}, v{VUR0} offset:{L_U2+UB}")
    a(f"ds_read_b128 {V(UO+12,4)}, v{VUR1} offset:{L_U2+UB}")
    a(f"s_lshl_b32 s{S.T0}, s{S.TD}, 10")
    a(f"s_lshl_b32 s{S.T1}, s{S.TM}, 10")
    for k in range(4):
        a(f"s_waitcnt lgkmcnt({3-k})")
        a(f"{MF} {V(PQ+4*k,4)}, {V(UO+4*k,4)}, {V(M2+4*k,4)}, 0")
    a(f"v_readfirstlane_b32 s{S.GKEY}, v6")
    a(f"s_andn2_b32 s{S.IDX}, 0xffff, s{S.GKEY}")
    for r in range(2):
        for i in range(8):
            a(f"v_fmac_f32 v{XG+8*r+i}, v{CO+2*r}, v{PQ+i}")
    for r, (so, tr) in enumerate(((S.T0, S.TD), (S.T1, S.TM))):
        for i in range(8):
            a(f"v_fmac_f32 v{XG+8*r+i}, v{CO+2*r+1}, v{PQ+8+i}")
        for i in range(4):
            a(f"v_cvt_pk_bf16_f32 v{UO+4*r+i}, v{XG+8*r+2*i}, v{XG+8*r+2*i+1}")
        l = a.L("skip")
        if r == 0:
            stamp(6)
        a(f"s_cmp_eq_u32 s{tr}, s{S.IDX}")
        a(f"s_cbranch_scc1 {l}")
        a(f"v_permlane16_swap_b32 v{UO+4*r}, v{UO+4*r+2}")
        a(f"v_permlane16_swap_b32 v{UO+4*r+1}, v{UO+4*r+3}")
        a(f"buffer_store_dwordx4 {V(UO+4*r,4)}, v{VROW}, {R4(S.ROUT)}, s{so} offen{o.outpol}")
        a.label(l)
    a.label("L_tb_end")
    stamp(13)
    if o.stamps:
        a("s_waitcnt vmcnt(0)")
        stamp(15)
    endprog()

    for ah in range(2):
        a.label(f"L_retry{ah}")
        if o.stamps:
            a(f"s_add_u32 s{S.RC}, s{S.RC}, {1 << (8*ah)}")
        if o.rsleep:
            a(f"s_sleep {o.rsleep}")
        spin()
        a(f"s_cbranch_scc1 L_fail{ah}")
        int_loads(ah)
        a("s_waitcnt vmcnt(0)")
        a(f"s_branch L_got{ah}")

    a.label("L_hi0")
    if o.b3:
        if o.ackwait:
            a("s_waitcnt vmcnt(0)")
        a("s_barrier")
    a.label("L_hi1")
    if o.atouch:
        touch("L_tb", o.atouch, 4, 4)
        a(f"s_cmp_lg_u32 s{S.ISZ}, 0")
        a("s_cbranch_scc1 L_z0b")
    gates(True)
    addr_ur(S.WAVE)
    m2_addr()
    stamp(10)
    a("s_branch L_d2")

    a.label("L_ah")
    if o.prio & 2:
        a("s_setprio 3")
    if o.cpf:
        a(f"s_cmp_ge_u32 s{S.T1}, {o.cpf}")
        a("s_cbranch_scc1 L_nocpf")
        a(f"s_getpc_b64 s[{S.EX}:{S.EX+1}]")
        a.label("L_pc")
        a(f"s_sub_u32 s{S.EX}, s{S.EX}, L_pc - {name}")
        a(f"s_subb_u32 s{S.EX+1}, s{S.EX+1}, 0")
        a("v_lshlrev_b32 v6, 7, v0")
        a("v_add_u32 v7, 0x2000, v6")
        a(f"v_min_u32 v7, L_end - {name}, v7")
        a(f"v_mov_b32 v13, s{S.EX+1}")
        a(f"v_mov_b32 v15, s{S.EX+1}")
        a(f"v_add_co_u32 v12, vcc, s{S.EX}, v6")
        a.nop(2)
        a("v_addc_co_u32 v13, vcc, 0, v13, vcc")
        a(f"v_add_co_u32 v14, vcc, s{S.EX}, v7")
        a.nop(2)
        a("v_addc_co_u32 v15, vcc, 0, v15, vcc")
        a("global_load_dword v10, v[12:13], off")
        a("global_load_dword v11, v[14:15], off")
        a.label("L_nocpf")
    a(f"v_lshlrev_b32 v{VG16}, 4, v0")
    a(f"v_mov_b32 v{VTAG}, 0")
    a(f"v_mov_b32 v9, {L_KSL}")
    a(f"ds_write_b32 v9, v{VTAG}")
    a(f"s_mov_b32 s{S.KM}, 0x9E3779B1")
    a(f"s_cmp_ge_u32 s{S.T1}, {o.wpf}")
    a("s_waitcnt lgkmcnt(0)")
    a("s_cbranch_scc1 L_nowpf")
    a(f"global_load_dwordx4 v[32:35], v{VG16}, s[{S.PWR}:{S.PWR+1}]")
    a(f"global_load_dword v{VE}, v{VTAG}, s[{S.PWS}:{S.PWS+1}]")
    a(f"global_load_dwordx4 v[36:39], v{VG16}, s[{S.PGW}:{S.PGW+1}]")
    a.label("L_nowpf")
    stamp(1)
    a("v_lshlrev_b32 v14, 10, v0")
    a(f"s_lshl_b32 s{S.ID8}, s2, 3")
    a(f"s_add_u32 s{S.ID8}, s{S.ID8}, {WS_KEY}")
    ws_setup()

    if o.b0 == 2:
        a("s_barrier")
    const_d2()
    a(f"global_load_dword v{VE}, v{VTAG}, s[{S.PWS}:{S.PWS+1}]")
    a("s_waitcnt lgkmcnt(0)")
    stamp(2)
    if o.b0 == 1:
        a("s_barrier")
    a(f"v_mov_b32 v9, {L_KSL}")
    a("s_waitcnt vmcnt(0)")
    tag_make()
    exp_make()
    a(f"v_mov_b32 v9, {L_KSL}")
    stamp(3)
    a("s_barrier")
    a(f"ds_read_b32 v{VE}, v9")
    set_exec(RF * CF + RZ * CZ + R2 * C2 + RS)
    a("s_waitcnt lgkmcnt(0)")
    a(f"buffer_store_dwordx2 v[{VE}:{VTAG}], v14, {R4(S.RWS)}, s{S.ID8} offen sc1")
    if o.probe >= 0:
        a("s_mov_b64 exec, 1")
        a("v_mov_b32 v40, s66")
        a(f"v_mov_b32 v41, v{VTAG}")
        a(f"s_add_u32 s{S.T0}, s{S.ID8}, {WS_KEY2 - WS_KEY}")
        a(f"buffer_store_dwordx2 v[40:41], v14, {R4(S.RWS)}, s{S.T0} offen sc1")
    a("s_mov_b64 exec, -1")
    stamp(5)
    if o.b1a:
        a("s_barrier")
    if o.only == "P1":
        a("s_endpgm")
    poll_setup(WS_KEY + 1024 * (RF * CF + RZ * CZ), R2, C2)
    a("s_waitcnt vmcnt(0)")
    if not o.gate and o.b3:
        a("s_barrier")
    if o.k2sleep0:
        a(f"s_sleep {o.k2sleep0}")
    stamp(8)
    poll_granules(VG16, 32, sleep=o.k2sleep)
    stamp(9)
    wave_max_key(32)
    lds_put(L_GKEY, 32)
    if o.gate:
        a(f"s_sleep {o.gate}")
        a("s_barrier")
        if o.probe >= 0:
            a("s_cmp_lg_u32 s2, 9")
            a("s_cbranch_scc1 L_noprobe")
            a("s_barrier")
            a(f"s_mov_b32 s{S.PO}, {WS_KEY2}")
            a(f"s_mov_b32 s{S.POL}, {WS_KEY2}")
            poll_granules(VG16, 32, sleep=4)
            for i in range(8):
                a(f"v_readlane_b32 s{70+i}, v{32 + 2*(i&1)}, {i>>1}")
            a("s_mov_b32 s80, s70")
            for i in range(1, 8):
                a(f"s_sub_u32 s81, s{70+i}, s80")
                a("s_cmp_lt_i32 s81, 0")
                a(f"s_cselect_b32 s80, s{70+i}, s80")
            if o.probe < 8:
                a(f"s_sub_u32 s81, s{70+o.probe}, s80")
            else:
                a("s_mov_b32 s81, 0")
                for i in range(8):
                    a(f"s_sub_u32 s82, s{70+i}, s80")
                    a("s_max_u32 s81, s81, s82")
            a("s_mul_i32 s81, s81, 10")
            a("s_add_u32 s81, s81, 800")
            a.label("L_pw")
            a("s_sleep 1")
            a("s_memrealtime s[100:101]")
            a("s_waitcnt lgkmcnt(0)")
            a("s_sub_u32 s100, s100, s80")
            a("s_cmp_lt_u32 s100, s81")
            a("s_cbranch_scc1 L_pw")
            a.label("L_noprobe")
        if o.hold and o.hold[0] == "endA":
            a(f"s_sub_u32 s{S.T0}, s2, {o.hold[2]}")
            a(f"s_cmp_ge_u32 s{S.T0}, {o.hold[3]}")
            a("s_cbranch_scc1 L_nohold")
            a("s_barrier")
            hold("endA")
            a.label("L_nohold")
        endprog()
    a("s_barrier")
    endprog()

    a.label("L_notA")
    if o.only == "AA":
        a("s_endpgm")
    a(f"s_lshl4_add_u32 s{S.FJ}, s{S.T0}, s{S.T1}")
    a(f"s_sub_u32 s{S.FJ}, s{S.FJ}, 16")
    a(f"s_cmp_ge_u32 s2, {NWG}")
    a("s_cbranch_scc1 L_end")
    a(f"s_cmp_lt_u32 s{S.T0}, 4")
    a("s_cbranch_scc1 L_F")
    a(f"s_mul_i32 s{S.FJ}, s{S.T0}, 12")
    a(f"s_add_u32 s{S.FJ}, s{S.FJ}, s{S.T1}")
    a(f"s_cmp_lt_u32 s{S.T1}, 28")
    a("s_cbranch_scc1 L_F")
    a(f"s_mov_b32 s{S.ISZ}, 1")
    a(f"s_lshl2_add_u32 s{S.Z}, s{S.T0}, s{S.T1}")
    a(f"s_sub_u32 s{S.Z}, s{S.Z}, 44")
    vrow_setup()
    a(f"v_lshlrev_b32 v{VG16}, 4, v0")
    sgn_setup()
    a("s_waitcnt lgkmcnt(0)")
    ws_setup()
    a.srd(S.ROUT, S.POUT, 0x200000)
    addr_p2()
    a(f"s_cmp_eq_u32 s{S.WAVE}, 8")
    a("s_cbranch_scc1 L_zh")
    a(f"s_cmp_ge_u32 s{S.WAVE}, 4")
    a("s_cbranch_scc1 L_z0")
    const_d1()
    a("s_branch L_z1")
    a.label("L_z0")
    if o.atouch:
        a("s_branch L_hi1")
    a.label("L_z0b")
    if o.ztouch:
        touch("L_tz", o.ztouch, 4, 4)
    a.label("L_z1")
    a(f"v_mov_b32 v9, {L_KSL}")
    a("v_mov_b32 v12, 0")
    a("v_mov_b32 v13, 0")
    a("s_barrier")
    a(f"ds_read_b64 v[{VE}:{VTAG}], v9")
    a(f"ds_read_b128 {V(GW,4)}, v{VG16} offset:{L_WV+1024}")
    a("s_waitcnt lgkmcnt(0)")
    a(f"v_readfirstlane_b32 s{S.GKEY}, v{VE}")
    a(f"s_andn2_b32 s{S.IDX}, 2047, s{S.GKEY}")
    a(f"s_and_b32 s{S.T0}, s{S.IDX}, 127")
    a(f"s_cmp_gt_u32 s{S.T0}, 64")
    a(f"s_cselect_b32 s{S.WHICH}, 1, 0")
    a(f"s_and_b32 s{S.T0}, s{S.IDX}, {1024 + 63}")
    a(f"s_cmp_eq_u32 s{S.T0}, 1024")
    a(f"s_cselect_b32 s{S.WHICH}, 1, s{S.WHICH}")
    a(f"s_sub_u32 s{S.T0}, 2048, s{S.IDX}")
    a(f"s_cmp_lg_u32 s{S.WHICH}, 0")
    a(f"s_cselect_b32 s{S.T0}, s{S.T0}, s{S.IDX}")
    a(f"s_cmp_eq_u32 s{S.T0}, 1024")
    a(f"s_cselect_b32 s{S.T0}, 0, s{S.T0}")
    a(f"s_and_b32 s{S.T1C}, s{S.T0}, 127")
    a(f"s_lshr_b32 s{S.HH}, s{S.T0}, 10")
    a(f"s_bfe_u32 s{S.WSEL}, s{S.T0}, 0x30007")
    rows_setup(S.WSEL)
    a(f"s_cmp_ge_u32 s{S.WAVE}, 4")
    a("s_cbranch_scc1 L_z4")
    int_base()
    if o.zisleep0:
        a(f"s_sleep {o.zisleep0}")
    stamp(9)
    int_loads(0)
    int_loads(1)
    const_ga()
    exp_setup()
    addr_ur(S.WSEL)
    m2_addr()
    a("v_lshlrev_b32 v6, 7, v1")
    a(f"v_lshl_add_u32 v15, v2, 4, v6")
    a("s_branch L_zjoin")
    a.label("L_z4")
    a(f"s_cmp_ge_u32 s{S.WAVE}, 6")
    a("s_cbranch_scc1 L_zend2")
    rows_load()
    a(f"s_sub_u32 s{S.T0}, s{S.WAVE}, 4")
    a(f"s_lshl1_add_u32 s{S.T1}, s{S.Z}, s{S.T0}")
    a(f"s_lshl_b32 s{S.T1}, s{S.T1}, 5")
    a("v_and_b32 v6, 7, v0")
    a(f"v_lshl_add_u32 v10, v6, 2, s{S.T1}")
    a(f"s_lshl_b32 s{S.T2}, s{S.IDX}, 10")
    a(f"v_add_u32 v7, s{S.T2}, v10")
    a(f"global_load_dword v35, v7, {PXS}")
    a("v_lshlrev_b32 v10, 1, v10")
    a("v_lshrrev_b32 v7, 3, v0")
    a("v_lshlrev_b32 v7, 8, v7")
    a("v_lshl_add_u32 v11, v6, 4, v7")
    a(f"s_mul_i32 s{S.SI0}, s{S.Z}, {PZ}")
    a(f"s_lshl_b32 s{S.T0}, s{S.T0}, 7")
    a(f"s_add_u32 s{S.SI0}, s{S.SI0}, s{S.T0}")
    a(f"s_add_u32 s{S.SI0}, s{S.SI0}, {WS_PART}")
    a(f"s_add_u32 s{S.SI1}, s{S.SI0}, {(o.pc-1)*PARTC}")
    a(f"s_and_b32 s{S.T0}, s{S.GKEY}, 0xffff0000")
    a(f"s_xor_b32 s{S.T1}, s{S.T0}, 0x80000000")
    a(f"s_xor_b32 s{S.T3}, s{S.T0}, 0xffff0000")
    a(f"s_bitcmp1_b32 s{S.T0}, 31")
    a(f"s_cselect_b32 s{S.T0}, s{S.T1}, s{S.T3}")
    a(f"v_mov_b32 v15, s{S.T0}")
    sigmoid(15, 15)
    rnd(15, 15)
    a("s_waitcnt vmcnt(0)")
    gates(False)
    a(f"s_cmp_lg_u32 s{S.WHICH}, 0")
    a(f"s_cselect_b32 s{S.T2}, s{S.T3}, s{S.T2}")
    a(f"s_cselect_b32 s{S.T0}, s{S.T5}, s{S.T0}")
    a(f"s_cselect_b32 s{S.T4}, s{S.T1}, s{S.T4}")
    a(f"v_xor_b32 v{VTAG}, s{S.IDX}, v{VTAG}")
    a(f"v_mov_b32 v36, s{S.T2}")
    a(f"v_mov_b32 v{CO}, s{S.T0}")
    a(f"v_mov_b32 v{CO+1}, s{S.T4}")
    a("v_lshlrev_b32 v34, 16, v35")
    a(f"v_and_b32 v35, {HIM}, v35")
    if o.psleep0:
        a(f"s_sleep {o.psleep0}")
    hold("pp")
    a(f"v_mov_b32 v9, {L_ZF}")
    a.label("L_tz_start")
    stamp(10)
    if o.psleep:
        a("s_branch L_zp1")
    a.label("L_zp")
    if o.psleep:
        a(f"s_sleep {o.psleep}")
        a.label("L_zp1")
    for i in range(7):
        if i and i % 2 == 0:
            a(f"s_add_u32 s{S.T0}, s{S.SI0}, {2048*i}")
        a(f"buffer_load_dwordx4 {V(40+4*i,4)}, v11, {R4(S.RWS)}, s{S.T0 if i >= 2 else S.SI0} offen offset:{2048*(i&1)} sc1")
    a(f"s_add_u32 s{S.SI0}, s{S.SI0}, {PARTC}")
    a(f"s_min_u32 s{S.SI0}, s{S.SI0}, s{S.SI1}")
    if o.stamps:
        a(f"s_add_u32 s{S.RC}, s{S.RC}, 256")
    spin()
    a("s_cbranch_scc1 L_zp_ok")
    for i in range(7):
        a(f"s_waitcnt vmcnt({6-i})")
        a(f"v_bitop3_b32 v{37 if i == 0 else 38 + (i & 1)}, v{41+4*i}, v{43+4*i}, v{VTAG} bitop3:0x7e")
        if i:
            a(f"v_add_f32 v40, v40, v{40+4*i}")
            a(f"v_add_f32 v42, v42, v{42+4*i}")
        if i and i % 2 == 0:
            a("v_or3_b32 v37, v37, v38, v39")
    a("v_cmp_ne_u32 vcc, 0, v37")
    a.nop(1)
    a("s_cbranch_vccnz L_zp")
    a.label("L_zp_ok")
    a("ds_read_b32 v12, v9")
    a(f"ds_read_b64 v[32:33], v10 offset:{L_XG2}")
    a(f"ds_read_b64 v[16:17], v10 offset:{L_XG2+2048}")
    a("v_lshrrev_b32 v11, 1, v10")
    a(f"s_lshl_b32 s{S.T2}, s{S.IDX}, 10")
    a("s_waitcnt vmcnt(0)")
    stamp(11)
    a(f"v_add_f32_dpp v40, v40, v40 row_ror:8 {DPPM}")
    a(f"v_add_f32_dpp v42, v42, v42 row_ror:8 {DPPM}")
    a.nop(1)
    a.nop(1)
    a("v_permlane16_swap_b32 v40, v42")
    a("v_add_f32 v40, v40, v42")
    a("v_mov_b32 v42, v40")
    a.nop(2)
    a("v_permlane32_swap_b32 v40, v42")
    a("v_add_f32 v40, v40, v42")
    a("v_mov_b32 v42, v40")
    a.nop(2)
    a("v_permlane16_swap_b32 v40, v42")
    a("v_cvt_pk_bf16_f32 v41, v40, v42")
    a("v_lshlrev_b32 v40, 16, v41")
    a(f"v_and_b32 v42, {HIM}, v41")
    a("v_mul_f32 v40, v40, v15")
    a("v_mul_f32 v42, v42, v15")
    a("v_cvt_pk_bf16_f32 v41, v40, v42")
    a("v_lshlrev_b32 v40, 16, v41")
    a(f"v_and_b32 v42, {HIM}, v41")
    a("v_add_f32 v40, v40, v34")
    a("v_add_f32 v42, v42, v35")
    a("v_cvt_pk_bf16_f32 v41, v40, v42")
    a("v_lshlrev_b32 v40, 16, v41")
    a(f"v_and_b32 v42, {HIM}, v41")
    a.label("L_zw")
    a("s_waitcnt lgkmcnt(0)")
    a("v_cmp_eq_u32 vcc, 0, v12")
    a(f"v_mul_f32 v32, v{CO}, v32")
    a(f"v_mul_f32 v33, v{CO}, v33")
    a("s_cbranch_vccz L_zw_ok")
    spin()
    a("s_cbranch_scc1 L_zw_ok")
    a("ds_read_b32 v12, v9")
    a(f"ds_read_b64 v[32:33], v10 offset:{L_XG2}")
    a(f"ds_read_b64 v[16:17], v10 offset:{L_XG2+2048}")
    a("s_branch L_zw")
    a.label("L_zw_ok")
    a(f"v_fmac_f32 v32, v{CO+1}, v16")
    a(f"v_fmac_f32 v33, v{CO+1}, v17")
    a("v_fmac_f32 v32, v40, v36")
    a("v_fmac_f32 v33, v42, v36")
    a("v_cvt_pk_bf16_f32 v32, v32, v33")
    a("s_mov_b64 exec, 0xff")
    a(f"buffer_store_dword v32, v11, {R4(S.ROUT)}, s{S.T2} offen{o.zpol}")
    a("s_mov_b64 exec, -1")
    stamp(13)
    if o.stamps:
        a("s_waitcnt vmcnt(0)")
        stamp(15)
    a("s_barrier")
    endprog()

    a.label("L_zsync")
    a(f"v_mov_b32 v9, {L_ZC}")
    a("v_mov_b32 v6, 1")
    a("s_mov_b64 exec, 1")
    a("ds_add_u32 v9, v6")
    a("s_mov_b64 exec, -1")
    a(f"s_cmp_lg_u32 s{S.WAVE}, 0")
    a("s_cbranch_scc1 L_zend")
    a.label("L_zs")
    a("ds_read_b32 v6, v9")
    spin()
    a("s_waitcnt lgkmcnt(0)")
    a("s_cbranch_scc1 L_zs_ok")
    a("v_cmp_ne_u32 vcc, 4, v6")
    a.nop(1)
    a("s_cbranch_vccnz L_zs")
    a.label("L_zs_ok")
    stamp(12)
    a(f"ds_read_b128 {V(UO,4)}, v{VUR0} offset:{L_U2}")
    a(f"ds_read_b128 {V(UO+4,4)}, v{VUR1} offset:{L_U2}")
    a(f"ds_read_b128 {V(UO+8,4)}, v{VUR0} offset:{L_U2+UB}")
    a(f"ds_read_b128 {V(UO+12,4)}, v{VUR1} offset:{L_U2+UB}")
    for k in range(4):
        a(f"s_waitcnt lgkmcnt({3-k})")
        a(f"{MF} {V(PQ+4*k,4)}, {V(UO+4*k,4)}, {V(M2+4*k,4)}, 0")
    a.nop(3)
    for k in range(4):
        if k == 2:
            a.nop(2)
        a(f"ds_write_b128 v15, {V(PQ+4*k,4)} offset:{L_XG2 + 64*(k&1) + 2048*(k>>1)}")
    a(f"v_mov_b32 v9, {L_ZF}")
    a("s_waitcnt lgkmcnt(0)")
    a("ds_write_b32 v9, v9")
    a("s_waitcnt lgkmcnt(0)")
    stamp(13)
    a.label("L_zend")
    endprog()
    a.label("L_zend2")
    if o.hold and o.hold[0] == "end":
        a("s_barrier")
    hold("end")
    if o.ev:
        lo, n, w, st, med = [int(v) for v in o.ev.split(":")]
        a("s_cmp_lg_u32 s2, 255")
        a("s_cbranch_scc1 L_noev")
        a(f"s_cmp_lg_u32 s{S.WAVE}, 7")
        a("s_cbranch_scc1 L_noev")
        a("s_barrier")
        a.label("L_ev0")
        a("s_sleep 4")
        a("s_memrealtime s[100:101]")
        a("s_waitcnt lgkmcnt(0)")
        a(f"s_sub_u32 s100, s100, s{S.ST}")
        a("s_cmp_lt_u32 s100, 750")
        a("s_cbranch_scc1 L_ev0")
        a("v_lshlrev_b32 v6, 11, v0")
        a(f"v_add_u32 v7, {WS_STAMP + 8*128}, v6")
        a(f"global_load_dword v40, v7, s[{S.PWS}:{S.PWS+1}] sc1")
        a(f"v_add_u32 v7, {WS_STAMP + lo*2048 + w*128 + st*8}, v6")
        for q in range(n // 64):
            a(f"global_load_dword v{44+q}, v7, s[{S.PWS}:{S.PWS+1}] sc1")
            a(f"v_add_u32 v7, {64*2048}, v7")
        a("s_waitcnt vmcnt(0)")
        a(f"v_subrev_u32 v40, s{S.ST}, v40")
        a("v_sub_u32 v40, 1000, v40")
        a("v_mov_b32 v42, v40")
        wave_max_key(40)
        a("v_mov_b32 v41, 0")
        for q in range(n // 64):
            a(f"v_subrev_u32 v{44+q}, s{S.ST}, v{44+q}")
            a(f"v_cmp_gt_u32 vcc, 1000, v{44+q}")
            a.nop(2)
            a(f"v_cndmask_b32 v{44+q}, 0, v{44+q}, vcc")
            a(f"v_max_u32 v41, v41, v{44+q}")
        a("v_mov_b32 v43, v41")
        wave_max_key(41)
        a.nop(2)
        a("v_readlane_b32 s6, v40, 63")
        a("v_readlane_b32 s7, v41, 63")
        a("s_sub_u32 s6, s6, 1000")
        a("s_min_u32 s6, s6, 300")
        a("s_add_u32 s7, s7, s6")
        a("s_mul_i32 s7, s7, 4")
        a("s_add_u32 s7, s7, 900")
        a("s_sub_u32 s7, s7, s6")
        a.label("L_ev1")
        a("s_sleep 1")
        a("s_memrealtime s[100:101]")
        a("s_waitcnt lgkmcnt(0)")
        a(f"s_sub_u32 s100, s100, s{S.ST}")
        a("s_cmp_lt_u32 s100, s7")
        a("s_cbranch_scc1 L_ev1")
        a.label("L_noev")
    endprog()

    a.label("L_zh")
    a(f"v_mov_b32 v9, {L_ZF}")
    a("v_mov_b32 v6, 0")
    a("ds_write2_b32 v9, v6, v6 offset1:1")
    const_d2()
    a(f"s_mov_b32 m0, {L_WV+1024}")
    tag_load()
    a(f"global_load_lds_dwordx4 v{VG16}, s[{S.PGW}:{S.PGW+1}]")
    a("s_waitcnt vmcnt(0)")
    tag_make()
    exp_make()
    poll_setup(WS_KEY + 1024 * RF * CF, RZ, CZ)
    if o.zsleep0:
        a(f"s_sleep {o.zsleep0}")
    stamp(1)
    poll_granules(VG16, 32, sleep=o.zsleep)
    stamp(2)
    wave_max_key(32)
    lds_put(L_KSL, 32, tag=True)
    a("s_barrier")
    a(f"s_lshl_b32 s{S.T0}, s{S.Z}, 2")
    a(f"s_add_u32 s{S.T0}, s{S.T0}, {WS_ALIVE}")
    a("s_mov_b64 exec, 1")
    a(f"buffer_store_dword v{VTAG}, v0, {R4(S.RWS)}, s{S.T0} offen sc1")
    a("s_mov_b64 exec, -1")
    a(f"s_cmp_lg_u32 s{S.Z}, 0")
    a("s_cbranch_scc1 L_zend")
    a("s_mov_b64 exec, 0xffff")
    a("v_lshlrev_b32 v6, 2, v0")
    a(f"s_mov_b32 s{S.T0}, {WS_ALIVE}")
    a("s_waitcnt vmcnt(0)")
    a("s_sleep 24")
    a.label("L_za")
    a(f"buffer_load_dword v7, v6, {R4(S.RWS)}, s{S.T0} offen sc1")
    spin()
    a("s_waitcnt vmcnt(0)")
    a("s_cbranch_scc1 L_za_ok")
    a(f"v_cmp_ne_u32 vcc, v{VTAG}, v7")
    a.nop(1)
    a("s_cbranch_vccnz L_za")
    a.label("L_za_ok")
    a("s_mov_b64 exec, 1")
    a(f"v_add_u32 v9, 1, v{VE}")
    a("s_barrier")
    a(f"buffer_store_dword v9, v6, {R4(S.RWS)}, 0 offen sc1")
    a("s_mov_b64 exec, -1")
    a("s_branch L_zend")

    a.label("L_F")
    if o.only == "A":
        a("s_endpgm")
    WG_, WD_ = 32, 48
    a("v_lshlrev_b32 v5, 4, v0")
    a(f"s_cmp_eq_u32 s{S.WAVE}, 8")
    a("s_cbranch_scc1 L_fh")
    a(f"s_and_b32 s{S.T0}, s{S.FJ}, 3")
    a(f"s_lshr_b32 s{S.T1}, s{S.WAVE}, 1")
    a(f"s_lshl2_add_u32 s{S.L0}, s{S.T0}, s{S.T1}")
    a(f"s_mul_i32 s{S.T2}, s{S.L0}, {32*3584}")
    a(f"s_lshr_b32 s{S.L1}, s{S.FJ}, 2")
    a(f"s_lshl_b32 s{S.T3}, s{S.L1}, 7")
    a(f"s_add_u32 s{S.T2}, s{S.T2}, s{S.T3}")
    a("v_lshrrev_b32 v6, 3, v0")
    a("v_mul_u32_u24 v6, 3584, v6")
    a("v_and_b32 v7, 7, v0")
    a("v_bfe_u32 v8, v0, 4, 1")
    a("v_lshlrev_b32 v8, 2, v8")
    a("v_xor_b32 v4, v7, v8")
    a(f"v_lshl_add_u32 v7, v4, 4, s{S.T2}")
    a("v_add_u32 v3, v6, v7")
    a(f"s_lshl_b32 s{S.T4}, s{S.WAVE}, 12")
    a(f"s_mov_b32 m0, s{S.T4}")
    def w_dma():
        a(f"s_bitcmp1_b32 s{S.WAVE}, 0")
        a("s_waitcnt lgkmcnt(0)")
        a(f"s_cselect_b32 s{S.PWG}, s{S.PWU}, s{S.PWG}")
        a(f"s_cselect_b32 s{S.PWG+1}, s{S.PWU+1}, s{S.PWG+1}")
        if o.fdelay:
            a(f"s_sleep {o.fdelay}")
        for b in range(4):
            if b:
                a(f"s_add_u32 m0, s{S.T4}, {1024*b}")
                a(f"v_add_u32 v3, {8*3584}, v3")
            if o.wthr and b >= o.wthr:
                a(f"s_waitcnt vmcnt({o.wthr - 1})")
            a(f"global_load_lds_dwordx4 v3, s[{S.PWG}:{S.PWG+1}]{o.wpol}")
        ws_setup()
        stamp(1)

    if not o.flate:
        w_dma()
    a("v_bfe_u32 v6, v0, 2, 2")
    a("v_and_b32 v7, 3, v0")
    a("v_lshlrev_b32 v8, 3, v7")
    a("v_lshl_add_u32 v8, v2, 5, v8")
    a("v_and_b32 v9, 2, v6")
    a("v_lshlrev_b32 v9, 5, v9")
    a("v_xor_b32 v9, v9, v8")
    a("v_lshl_add_u32 v9, v6, 7, v9")
    a(f"v_add_u32 v9, s{S.T4}, v9")
    a(f"s_lshl_b32 s{S.T5}, s{S.WAVE}, 8")
    a("v_lshlrev_b32 v11, 2, v0")
    a(f"v_add_u32 v11, {L_RED}, v11")
    a(f"v_add_u32 v12, s{S.T5}, v11")
    a(f"s_lshl1_add_u32 s{S.T1}, s{S.L1}, s{S.T1}")
    a(f"s_lshl_b32 s{S.T2}, s{S.T1}, 15")
    a(f"s_and_b32 s{S.T3}, s{S.WAVE}, 1")
    a(f"s_lshl1_add_u32 s{S.T3}, s{S.T0}, s{S.T3}")
    a(f"s_lshl_b32 s{S.T5}, s{S.T3}, 7")
    a(f"s_add_u32 s{S.T2}, s{S.T2}, s{S.T5}")
    a("v_lshrrev_b32 v6, 3, v0")
    a(f"v_lshl_add_u32 v6, v6, 10, s{S.T2}")
    a("v_lshl_add_u32 v4, v4, 4, v6")
    a("v_lshrrev_b32 v6, 5, v0")
    a(f"v_mul_u32_u24 v13, {PZ}, v6")
    a("v_and_b32 v6, 31, v0")
    a("v_lshl_add_u32 v13, v6, 3, v13")
    a(f"s_mul_i32 s{S.T2}, s{S.T3}, {2*PZ}")
    a(f"s_lshl_b32 s{S.T1}, s{S.T1}, 8")
    a(f"s_add_u32 s{S.T2}, s{S.T2}, s{S.T1}")
    a(f"s_add_u32 s{S.T2}, s{S.T2}, {WS_PART}")
    a(f"s_lshl_b32 s{S.L0}, s{S.L0}, 6")
    a(f"s_lshl_b32 s{S.L1}, s{S.L1}, 12")
    a(f"s_add_u32 s{S.PO}, s{S.L1}, {WS_XCH}")
    a(f"s_add_u32 s{S.POL}, s{S.PO}, {(o.xc-1)*XCHC}")
    a(f"s_lshl_b32 s{S.T1}, s{S.T0}, 10")
    a(f"s_add_u32 s{S.L1}, s{S.PO}, s{S.T1}")
    a(f"v_mov_b32 v14, {L_FKEY}")
    a(f"s_lshr_b32 s{S.T1}, s{S.WAVE}, 1")
    a(f"s_lshl_b32 s{S.T1}, s{S.T1}, 9")
    a(f"v_lshl_add_u32 v15, v6, 4, s{S.T1}")
    a("v_lshrrev_b32 v6, 5, v0")
    a("v_lshl_add_u32 v15, v6, 10, v15")
    a(f"s_mov_b32 s{S.PO0}, s{S.PO}")
    a(f"s_mov_b32 s{S.L10}, s{S.L1}")
    a(f"s_mov_b32 s{S.T20}, s{S.T2}")
    a(f"s_mov_b32 s{S.FIN}, 0")

    if o.flate:
        w_dma()

    def wd_dma():
        l = a.L("nowd")
        a(f"s_cmp_ge_u32 s{S.WAVE}, 4")
        a(f"s_cbranch_scc1 {l}")
        for b in range(4):
            a(f"s_add_u32 m0, s{S.T4}, {L_WD + 1024*b}")
            if b:
                a("v_add_u32 v4, 0x2000, v4")
            else:
                a.nop(1)
            a(f"global_load_lds_dwordx4 v4, s[{S.PWD}:{S.PWD+1}]")
        a.label(l)

    if o.wdpos == 0:
        wd_dma()
    a("s_waitcnt vmcnt(0)")
    stamp(2)
    if o.fw0:
        a("s_barrier")
    if o.wdpos == 1:
        wd_dma()
    if o.xpre:
        for i in range(2):
            a(f"buffer_load_dwordx4 {V(64+4*i,4)}, v15, {R4(S.RWS)}, s{S.PO} offen offset:{2048*i} sc1")
    for k in range(8):
        a(f"ds_read_b64_tr_b16 {V(WG_+2*k,2)}, v9 offset:{L_W + k*512}")
    if o.ftouch:
        touch("L_tf", o.ftouch, 0, 8)
    a("s_waitcnt lgkmcnt(0)")
    a("s_barrier")
    a.label("L_tf_start")
    a("ds_read_b64 v[26:27], v14")
    a("s_waitcnt lgkmcnt(0)")
    a(f"v_readfirstlane_b32 s{S.FKEY}, v26")
    a.label("L_redo")
    a(f"s_andn2_b32 s{S.T0}, 2047, s{S.FKEY}")
    a(f"s_lshl_b32 s{S.T1}, s{S.T0}, 10")
    a(f"s_add_u32 s{S.T1}, s{S.T1}, s{S.L0}")
    a(f"s_load_dwordx16 s[{S.XS}:{S.XS+15}], {PXS}, s{S.T1}")
    stamp(5)
    a(f"v_xor_b32 v{VTAG}, s{S.T0}, v27")
    a(f"v_xor_b32 v29, s{S.T0}, v27")
    for r in (16, 17, 24, 25):
        a(f"v_mov_b32 v{r}, 0")
    a(f"s_mov_b32 s{S.PO}, s{S.PO0}")
    a(f"s_mov_b32 s{S.L1}, s{S.L10}")
    a(f"s_mov_b32 s{S.T2}, s{S.T20}")
    a(f"s_mov_b32 s{S.KM}, 0")
    a("s_waitcnt lgkmcnt(0)")
    for i in range(16):
        a(f"v_dot2c_f32_bf16 v{16+(i&1)}, s{S.XS+i}, v{WG_+i}")
    stamp(6)
    a.nop(3)
    a("v_add_f32 v16, v16, v17")
    a("ds_write_b32 v12, v16")
    a("s_waitcnt lgkmcnt(0)")
    a("s_barrier")
    a(f"s_lshl_b32 s{S.T0}, s{S.WAVE}, 4")
    a(f"s_lshl_b64 s[{S.EX}:{S.EX+1}], 0xffff, s{S.T0}")
    for i, (p, q) in enumerate(((0, 2), (4, 6), (1, 3), (5, 7))):
        a(f"ds_read2st64_b32 v[{16+2*i}:{17+2*i}], v11 offset0:{p} offset1:{q}")
    a("s_waitcnt lgkmcnt(2)")
    a("v_add_f32 v16, v16, v17")
    a("v_add_f32 v18, v18, v19")
    a("s_waitcnt lgkmcnt(0)")
    a("v_add_f32 v20, v20, v21")
    a("v_add_f32 v22, v22, v23")
    a("v_add_f32 v28, v16, v18")
    a(f"s_mov_b64 exec, s[{S.EX}:{S.EX+1}]")
    a("v_add_f32 v30, v20, v22")
    a(f"s_cmp_ge_u32 s{S.WAVE}, 4")
    a("s_cbranch_scc1 L_f5")
    a(f"buffer_store_dwordx4 v[28:31], v5, {R4(S.RWS)}, s{S.L1} offen{'' if o.xl2 else ' sc1'}")
    a("s_mov_b64 exec, -1")
    stamp(7)
    a("s_waitcnt vmcnt(1)")
    for k in range(8):
        a(f"ds_read_b64_tr_b16 {V(WD_+2*k,2)}, v9 offset:{L_WD + k*512}")
    if o.xsleep0:
        a(f"s_sleep {o.xsleep0}")
    stamp(8)
    a.label("L_fx")
    for i in range(2):
        a(f"buffer_load_dwordx4 {V(64+4*i,4)}, v15, {R4(S.RWS)}, s{S.PO} offen offset:{2048*i} sc1")
    if o.xl2:
        a(f"s_add_u32 s{S.KM}, s{S.KM}, 1")
        a(f"s_cmp_ge_u32 s{S.KM}, {o.xl2}")
        a(f"s_cselect_b32 s{S.T0}, {XCHC}, 0")
        a(f"s_add_u32 s{S.PO}, s{S.PO}, s{S.T0}")
    else:
        a(f"s_add_u32 s{S.PO}, s{S.PO}, {XCHC}")
    a(f"s_min_u32 s{S.PO}, s{S.PO}, s{S.POL}")
    if o.stamps:
        a(f"s_add_u32 s{S.RC}, s{S.RC}, 1")
    spin()
    a("s_cbranch_scc1 L_fx_ok")
    a("s_waitcnt vmcnt(1)")
    a(f"v_bitop3_b32 v20, v65, v67, v{VTAG} bitop3:0x7e")
    a("s_waitcnt vmcnt(0)")
    a("v_add_f32 v16, v64, v68")
    a("v_add_f32 v18, v66, v70")
    a(f"v_bitop3_b32 v21, v69, v71, v{VTAG} bitop3:0x7e")
    a("v_or_b32 v20, v20, v21")
    a("v_cmp_ne_u32 vcc, 0, v20")
    a("v_permlane32_swap_b32 v16, v18")
    a("s_cbranch_vccnz L_fxr")
    a.label("L_fx_ok")
    stamp(9)
    a("v_add_f32 v16, v16, v18")
    rnd(16, 16)
    a("v_mov_b32 v18, v16")
    sigmoid(17, 16)
    a("v_permlane32_swap_b32 v16, v18")
    a("v_mul_f32 v17, v17, v16")
    rnd(17, 17)
    a("v_mul_f32 v17, v17, v18")
    a.nop(2)
    a(f"v_mov_b32_dpp v18, v17 quad_perm:[1,0,3,2] {DPPM}")
    a("v_cvt_pk_bf16_f32 v17, v17, v18")
    a.nop(1)
    for i in range(16):
        a(f"v_readlane_b32 s{S.XS+i}, v17, {2*i}")
    a("s_waitcnt lgkmcnt(0)")
    for i in range(16):
        a(f"v_dot2c_f32_bf16 v{24+(i&1)}, s{S.XS+i}, v{WD_+i}")
    a.nop(3)
    a("v_add_f32 v30, v24, v25")
    for c in range(o.pc):
        if c:
            a(f"s_add_u32 s{S.T2}, s{S.T2}, {PARTC}")
        a(f"buffer_store_dwordx2 v[30:31], v13, {R4(S.RWS)}, s{S.T2} offen sc1")
    stamp(10)
    a.label("L_fend")
    a(f"s_cmp_lg_u32 s{S.FIN}, 0")
    a("s_cbranch_scc1 L_fexit")
    a("s_barrier")
    a("ds_read_b32 v26, v14 offset:8")
    a(f"s_mov_b32 s{S.FIN}, 1")
    a("s_waitcnt lgkmcnt(0)")
    a(f"v_readfirstlane_b32 s{S.T0}, v26")
    a(f"s_cmp_eq_u32 s{S.T0}, s{S.FKEY}")
    a(f"s_mov_b32 s{S.FKEY}, s{S.T0}")
    if o.stamps:
        a(f"s_cselect_b32 s{S.T1}, 0, 64")
        a(f"s_add_u32 s{S.RC}, s{S.RC}, s{S.T1}")
        a(f"s_cmp_eq_u32 s{S.T1}, 0")
    a("s_cbranch_scc0 L_redo")
    a.label("L_fexit")
    endprog()
    a.label("L_f5")
    for c in range(1, o.xc):
        a(f"s_add_u32 s{S.L1}, s{S.L1}, {XCHC}")
        a(f"buffer_store_dwordx4 v[28:31], v5, {R4(S.RWS)}, s{S.L1} offen sc1")
    a("s_mov_b64 exec, -1")
    a("s_branch L_fend")
    a.label("L_fxr")
    a("ds_read_b32 v26, v14 offset:8")
    a("s_waitcnt lgkmcnt(0)")
    a(f"v_readfirstlane_b32 s{S.T0}, v26")
    a(f"s_cmp_eq_u32 s{S.T0}, 0")
    a("s_cbranch_scc1 L_fx")
    a(f"s_cmp_eq_u32 s{S.T0}, s{S.FKEY}")
    a("s_cbranch_scc1 L_fx")
    a("s_branch L_fend")

    a.label("L_fh")
    a("s_waitcnt lgkmcnt(0)")
    if o.fesleep:
        a(f"s_sleep {o.fesleep}")
    tag_load()
    ws_setup()
    a(f"v_mov_b32 v14, {L_FKEY}")
    a("v_mov_b32 v6, 0")
    a("ds_write_b32 v14, v6 offset:8")
    if o.spec:
        poll_setup(WS_KEY + 1024 * (RF * CF + RZ * CZ + R2 * C2), 8, 1)
        a(f"s_sleep {o.spec}")
        a("s_waitcnt vmcnt(0)")
        tag_make()
        stamp(1)
        a(f"buffer_load_dwordx4 v[20:23], v5, {R4(S.RWS)}, s{S.PO} offen sc1")
        poll_setup(WS_KEY, RF, CF)
        a("s_waitcnt vmcnt(0)")
        stamp(2)
        a(f"v_cmp_ne_u32 vcc, v{VTAG}, v21")
        a(f"v_cmp_ne_u32 s[{S.EX}:{S.EX+1}], v{VTAG}, v23")
        a("s_mov_b64 exec, vcc")
        a("v_mov_b32 v20, 0")
        a(f"s_mov_b64 exec, s[{S.EX}:{S.EX+1}]")
        a("v_mov_b32 v22, 0")
        a("s_mov_b64 exec, -1")
        a(f"s_or_b64 s[{S.EY}:{S.EY+1}], vcc, s[{S.EX}:{S.EX+1}]")
        wave_max_key(20)
        lds_put(L_FKEY, 20, tag=True)
        a("s_barrier")
        a(f"s_cmp_eq_u64 s[{S.EY}:{S.EY+1}], 0")
        a("s_cbranch_scc1 L_fh2")
        if o.fsleep0:
            a(f"s_sleep {o.fsleep0}")
        stamp(3)
        poll_granules(5, 20, sleep=o.fsleep)
        stamp(4)
        wave_max_key(20)
        a.label("L_fh2")
        lds_put(L_FKEY + 8, 20)
    else:
        poll_setup(WS_KEY, RF, CF)
        if o.fsleep0:
            a(f"s_sleep {o.fsleep0}")
        a("s_waitcnt vmcnt(0)")
        tag_make()
        stamp(3)
        poll_granules(5, 20, sleep=o.fsleep)
        stamp(4)
        wave_max_key(20)
        lds_put(L_FKEY, 20, tag=True)
        a("s_barrier")
        lds_put(L_FKEY + 8, 20)
    a("s_barrier")
    endprog()
    a.label("L_end")
    a("s_endpgm")
    return name


def main():
    ap = argparse.ArgumentParser()
    ap.add_argument("-o", required=True)
    for k, d in dict(stamps=0, pc=1, xc=2, zsleep=8, zsleep0=24, psleep=0, psleep0=22, rsleep=3, ackwait=1, hipre=0, tlate=1,
                     mode=0, k2ack=1, k2sleep0=6, zk2sleep0=0, k2sleep=5, fbar=0, cpf=2, probe=-1, wsoff=0, flate=1, b1a=1, skew=0, gate=1, lds=0, nsgpr=102, prio=1, stag=0, spec=0, b0=2, wthr=0, xpre=0, atouch=10, ftouch=8, xl2=5, npre=3, gfirst=0, isleep0=0, zisleep0=5, b3=1, ztouch=8, zstep=128, touch=0, wdpos=1, wpf=2, fesleep=0, fw0=0, xack=0, fdelay=0, xsleep0=3, fsleep0=37, fsleep=4, spin=17).items():
        ap.add_argument("--" + k, type=int, default=d)
    for k in ("wpol", "outpol", "zpol", "only"):
        ap.add_argument("--" + k, default="")
    ap.add_argument("--mf", default="8,2")
    ap.add_argument("--mz", default="1,3")
    ap.add_argument("--m2", default="8,2")
    ap.add_argument("--hold", default="")
    ap.add_argument("--ev", default="")
    o = ap.parse_args()
    if o.hold:
        o.hold = o.hold.split(":")
    for k in ("mf", "mz", "m2"):
        setattr(o, k, [int(v) for v in getattr(o, k).split(",")])
    for k in ("wpol", "outpol", "zpol"):
        setattr(o, k, (" " + getattr(o, k)) if getattr(o, k) else "")
    a = Asm()
    name = gen(a, o)
    if o.touch:
        insert_stubs(a, [("L_ta_start", "L_ta_end", "L_ta", "L_taback", 9)], step=o.touch)
    reg = []
    if o.atouch:
        reg.append(("L_zjoin", "L_tb_end", "L_tb", "L_tbback", o.atouch))
    if o.ztouch:
        reg.append(("L_tz_start", "L_zend", "L_tz", "L_tzback", o.ztouch))
    if o.ftouch:
        reg.append(("L_tf_start", "L_fend", "L_tf", "L_tfback", o.ftouch))
    if reg:
        insert_stubs(a, reg, step=o.zstep)
    finish(a, name, NVGPR, o.nsgpr, NWG, 576, o.lds or LDS_BYTES, o.o)


main()
```

```python
import argparse
from lib import *

NA, NF, NZ = 128, 112, 16
NWG = NA + NF + NZ
WS_E = 0
WS_ALIVE = 4096
WS_KEY = 64 << 10
WS_KEY2 = 128 << 10
WS_XCH = 192 << 10
XCHC = 28 * 4096
WS_PART = 704 << 10
PZ = 56 * 256
PARTC = NZ * PZ
WS_INT = 2 << 20
CS = 32768 + 256
WS_STAMP = 8 << 20
WS_BYTES = 16 << 20
L_TILE = 0
L_U2 = 16384
L_CT = L_U2
UB = 17 * 64
L_MISC = L_U2 + 16 * UB
L_KSL = L_MISC
L_GKEY = L_MISC + 64
L_ZC = L_MISC + 76
L_ZF = L_MISC + 72
L_EXP = L_MISC + 128
L_DUMP = L_MISC + 192
L_XG2 = L_DUMP + 4 * UB + 256
L_M2 = L_XG2 + 4096
L_WV = L_M2 + 4096
L_XT = L_WV + 2048
L_W = 0
L_WD = 32768
L_RED = L_WD + 16384
L_FKEY = L_RED + 2048
LDS_BYTES = 84 * 1024
MF = "v_mfma_f32_16x16x32_bf16"
LOG2E = 0x3fb8aa3b
DPPM = "row_mask:0xf bank_mask:0xf"
HIM = "0xffff0000"
NVGPR = 168


class S:
    WAVE = 3
    PX = 4
    T0, T1, T2, T3, T4, T5 = 6, 7, 8, 9, 10, 11
    EX = 12
    EY = 14
    PWR, PWG, PWU, PWD, PGW, POUT, PDBG, PWS = 16, 18, 20, 22, 24, 26, 28, 30
    L0, L1, SPT, PIE = 32, 33, 34, 35
    RWS, ROUT = 36, 40
    XS = 44
    GKEY, WSEL, WHICH, Z = 44, 45, 46, 47
    SI0, SI1, ID8, BLK = 48, 49, 50, 51
    IDX, ISZ, TC = 54, 55, 53
    SO = 44
    T1C, HH, TD, TM = 56, 57, 58, 59
    FJ, PO, POL, RC, KM, SPIN = 60, 61, 62, 63, 64, 65
    PO0, L10, T20, FKEY, FIN = 40, 41, 42, 43, 35
    ST = 68


def gen(a, o):
    global WS_KEY, WS_XCH, WS_PART, WS_INT, WS_ALIVE, WS_BYTES
    WS_KEY += o.wsoff << 20
    WS_XCH += o.wsoff << 20
    WS_PART += o.wsoff << 20
    WS_INT += o.wsoff << 20
    WS_ALIVE += o.wsoff << 20
    WS_BYTES = max(WS_BYTES, (o.wsoff + 8) << 20)
    name = NAME + "_kernel"
    kernel_head(a, name)
    VE, VTAG = 30, 31
    PXS = f"s[{S.PX}:{S.PX+1}]"

    def stamp(i):
        if o.stamps:
            a(f"s_memrealtime s[{S.ST+2*i}:{S.ST+2*i+1}]")

    def hold(cp):
        if o.hold and o.hold[0] == cp:
            l = a.L("hold")
            a.label(l)
            a("s_sleep 1")
            a("s_memrealtime s[100:101]")
            a("s_waitcnt lgkmcnt(0)")
            a("s_sub_u32 s100, s100, s66")
            a(f"s_cmp_lt_u32 s100, {o.hold[1]}")
            a(f"s_cbranch_scc1 {l}")

    def touch(pre, n, first, step, back=None, tail=None):
        a("s_mov_b64 exec, 0")
        a(f"s_sub_u32 s{S.TC}, s{S.WAVE}, {first + step}")
        a.label(f"{pre}back")
        a(f"s_add_u32 s{S.TC}, s{S.TC}, {step}")
        for k in range(n):
            a(f"s_cmp_eq_u32 s{S.TC}, {k}")
            a(f"s_cbranch_scc1 {pre}{k}")
        a("s_mov_b64 exec, -1")

    def endprog():
        if o.stamps:
            a("s_waitcnt lgkmcnt(0)")
            a(f"s_add_u32 s{S.ST+28}, s{S.RC}, s{S.ST+30}")
            for i in range(16):
                a(f"v_writelane_b32 v166, s{S.ST+2*i}, {i}")
            a("s_mov_b64 exec, 0xffff")
            a(f"s_lshl4_add_u32 s{S.T0}, s2, s{S.WAVE}")
            a(f"s_lshl_b32 s{S.T0}, s{S.T0}, 7")
            a(f"s_add_u32 s{S.T0}, s{S.T0}, {WS_STAMP}")
            a(f"v_lshl_add_u32 v165, v0, 3, s{S.T0}")
            a("v_mov_b32 v167, 0")
            a(f"global_store_dwordx2 v165, v[166:167], s[{S.PWS}:{S.PWS+1}]" + (" sc1" if o.ev else ""))
        a("s_endpgm")

    def spin():
        a(f"s_add_u32 s{S.SPIN}, s{S.SPIN}, 1")
        a(f"s_lshr_b32 s{S.SPT}, s{S.SPIN}, {o.spin}")

    def poll_setup(base, R, C):
        a(f"s_and_b32 s{S.PO}, s2, {R-1}")
        a(f"s_mul_i32 s{S.PO}, s{S.PO}, {1024*C}")
        a(f"s_add_u32 s{S.PO}, s{S.PO}, {base}")
        a(f"s_add_u32 s{S.POL}, s{S.PO}, {1024*(C-1)}")

    def set_exec(n):
        if n >= 64:
            a("s_mov_b64 exec, -1")
        elif n <= 31:
            a(f"s_mov_b64 exec, {(1 << n) - 1:#x}")
        else:
            a("s_mov_b32 exec_lo, -1")
            a(f"s_mov_b32 exec_hi, {(1 << (n - 32)) - 1:#x}")

    RS = 8 if o.spec else 0
    RF, CF = o.mf
    RZ, CZ = o.mz
    R2, C2 = o.m2
    assert RF * CF + RZ * CZ + R2 * C2 + RS <= 64

    def poll_granules(vaddr, vd, sleep=0, step=1024):
        l = a.L("poll")
        if sleep:
            a(f"s_branch {l}_1")
        a.label(l)
        if sleep:
            a(f"s_sleep {sleep}")
            a.label(f"{l}_1")
        a(f"buffer_load_dwordx4 {V(vd,4)}, v{vaddr}, {R4(S.RWS)}, s{S.PO} offen sc1")
        a(f"s_add_u32 s{S.PO}, s{S.PO}, {step}")
        a(f"s_min_u32 s{S.PO}, s{S.PO}, s{S.POL}")
        if o.stamps:
            a(f"s_add_u32 s{S.RC}, s{S.RC}, 1")
        spin()
        a("s_waitcnt vmcnt(0)")
        a(f"s_cbranch_scc1 {l}_ok")
        a(f"v_cmp_ne_u32 vcc, v{VTAG}, v{vd+1}")
        a(f"v_cmp_ne_u32 s[{S.EX}:{S.EX+1}], v{VTAG}, v{vd+3}")
        a(f"s_or_b64 vcc, vcc, s[{S.EX}:{S.EX+1}]")
        a(f"s_cbranch_vccnz {l}")
        a.label(f"{l}_ok")

    def wave_max_key(vd):
        a(f"v_max_u32 v{vd}, v{vd}, v{vd+2}")
        for r in ("row_ror:8", "row_ror:4", "row_ror:2", "row_ror:1"):
            a.nop(2)
            a(f"v_max_u32_dpp v{vd}, v{vd}, v{vd} {r} {DPPM}")
        a.nop(2)
        a(f"v_max_u32_dpp v{vd}, v{vd}, v{vd} row_bcast:15 row_mask:0xa bank_mask:0xf")
        a.nop(2)
        a(f"v_max_u32_dpp v{vd}, v{vd}, v{vd} row_bcast:31 row_mask:0xc bank_mask:0xf")

    def lds_put(addr, v, tag=False):
        a(f"v_mov_b32 v9, {addr}")
        a("s_mov_b32 exec_lo, 0")
        a("s_brev_b32 exec_hi, 1")
        if tag:
            a(f"ds_write2_b32 v9, v{v}, v{VTAG} offset1:1")
        else:
            a(f"ds_write_b32 v9, v{v}")
        a("s_mov_b64 exec, -1")
        a("s_waitcnt lgkmcnt(0)")

    def sigmoid(d, s):
        a(f"v_mul_f32 v{d}, {LOG2E | 0x80000000:#x}, v{s}")
        a(f"v_exp_f32 v{d}, v{d}")
        a.nop(1)
        a(f"v_add_f32 v{d}, 1.0, v{d}")
        a(f"v_rcp_f32 v{d}, v{d}")
        a.nop(1)

    def rnd(d, s):
        a(f"v_cvt_pk_bf16_f32 v{d}, v{s}, v{s}")
        a(f"v_and_b32 v{d}, {HIM}, v{d}")

    def ws_setup():
        a.srd(S.RWS, S.PWS, WS_BYTES)
        a(f"s_mov_b32 s{S.SPIN}, 0")

    def tag_load():
        a(f"v_mov_b32 v{VTAG}, 0")
        a(f"global_load_dword v{VE}, v{VTAG}, s[{S.PWS}:{S.PWS+1}]")
        a(f"s_mov_b32 s{S.KM}, 0x9E3779B1")

    def tag_make():
        a(f"v_mul_lo_u32 v{VTAG}, v{VE}, s{S.KM}")
        a(f"v_add_u32 v{VTAG}, 0x7F4A7C15, v{VTAG}")

    a(f"s_load_dwordx2 s[{S.PX}:{S.PX+1}], s[0:1], {KA_X}")
    a(f"s_load_dwordx16 s[16:31], s[0:1], {KA_WR}")
    if o.stamps:
        for i in range(1, 16):
            a(f"s_mov_b32 s{S.ST+2*i}, 0")
        a(f"s_mov_b32 s{S.RC}, 0")
    stamp(0)
    if o.hold or o.probe >= 0:
        a("s_memrealtime s[66:67]")
    if o.skew:
        a("s_and_b32 s6, s2, 7")
        a("s_cmp_lg_u32 s6, 5")
        a("s_cbranch_scc1 L_noskew")
        a(f"s_sleep {o.skew}")
        a.label("L_noskew")
    a("v_lshrrev_b32 v1, 6, v0")
    a("v_and_b32 v0, 63, v0")
    a(f"v_readfirstlane_b32 s{S.WAVE}, v1")
    a("v_and_b32 v1, 15, v0")
    a("v_lshrrev_b32 v2, 4, v0")
    a(f"s_and_b32 s{S.T0}, s2, 7")
    a(f"s_sub_u32 s{S.WAVE}, s{S.WAVE}, 1")
    a(f"s_min_u32 s{S.WAVE}, s{S.WAVE}, 8")
    a(f"s_lshr_b32 s{S.T1}, s2, 3")
    a(f"s_cmp_ge_u32 s2, {NA}")
    a("s_cbranch_scc1 L_notA")
    if o.only == "F":
        a("s_endpgm")

    VROW, VG16, VSGN, VTR, VST = 3, 5, 8, 10, 11
    VLD, VUW, VUX, VUR0, VUR1 = 10, 11, 28, 29, 30
    XR, WR, GW, CO = 16, 24, 24, 24
    CM, AOP, ACC = 32, 96, 112
    LD, DA0, DA1, TP, X16, PK = 32, 64, 32, 80, 96, 48
    M1, GA, XG = 100, 148, 152
    Cc, Ss = 64, 68
    UO, PQ, M2 = 32, 48, 64

    def rows_setup(wreg):
        a(f"s_lshl3_add_u32 s{S.T5}, s{S.HH}, s{wreg}")
        a(f"s_lshl_b32 s{S.T5}, s{S.T5}, 7")
        a(f"s_add_u32 s{S.TD}, s{S.T5}, s{S.T1C}")
        a(f"s_sub_u32 s{S.TM}, 2048, s{S.TD}")
        a(f"s_cmp_eq_u32 s{S.TD}, 0")
        a(f"s_cselect_b32 s{S.TM}, 1024, s{S.TM}")
        a(f"s_lshl_b32 s{S.T4}, s{S.TD}, 10")
        a(f"s_lshl_b32 s{S.T5}, s{S.TM}, 10")
        a(f"v_add_u32 v6, s{S.T4}, v{VG16}")
        a(f"v_add_u32 v7, s{S.T5}, v{VG16}")

    def vrow_setup():
        a("v_and_b32 v6, 1, v2")
        a("v_lshlrev_b32 v6, 5, v6")
        a("v_lshl_add_u32 v6, v1, 6, v6")
        a("v_lshrrev_b32 v7, 1, v2")
        a(f"v_lshl_add_u32 v{VROW}, v7, 4, v6")

    def rows_load():
        a(f"global_load_dwordx4 {V(XR,4)}, v6, {PXS}")
        a(f"global_load_dwordx4 {V(XR+4,4)}, v7, {PXS}")

    def sgn_setup():
        a(f"v_lshlrev_b32 v{VSGN}, 31, v1")
        a(f"v_lshrrev_b32 v9, 16, v{VSGN}")
        a(f"v_or_b32 v{VSGN}, v{VSGN}, v9")

    def sgn_setup2():
        a(f"v_lshlrev_b32 v{VSGN}, 31, v1")
        a(f"v_lshrrev_b32 v14, 16, v{VSGN}")
        a(f"v_or_b32 v{VSGN}, v{VSGN}, v14")

    def tile_ids():
        a(f"s_bitcmp1_b32 s{S.T1}, 3")
        a(f"s_cselect_b32 s{S.T2}, s{S.T3}, s{S.T2}")
        a(f"s_and_b32 s{S.T3}, s{S.T1}, 7")
        a(f"s_lshl3_add_u32 s{S.BLK}, s{S.T2}, s{S.T3}")
        a(f"s_lshl_b32 s{S.PIE}, s{S.T2}, 5")
        a(f"s_add_u32 s{S.PIE}, s{S.PIE}, s{S.T3}")
        a(f"s_lshl_b32 s{S.PIE}, s{S.PIE}, 6")

    def vst_setup():
        a(f"v_mul_u32_u24 v{VST}, {CS}, v1")
        a(f"v_lshl_add_u32 v{VST}, v2, 4, v{VST}")

    def const_d2():
        R = 40
        a("v_lshlrev_b32 v6, 2, v2")
        a("v_cvt_f32_u32 v7, v1")
        a("v_cvt_f32_u32 v6, v6")
        a("v_mul_f32 v7, 0x3d800000, v7")
        for hf in range(2):
            if hf:
                a("v_add_f32 v7, 0x3d800000, v7")
            a("v_mul_f32 v9, v6, v7")
            for jj in range(4):
                a(f"v_cos_f32 v{Cc+jj}, v9")
                a(f"v_sin_f32 v{Ss+jj}, v9")
                if jj < 3:
                    a("v_add_f32 v9, v9, v7")
            a.nop(1)
            for jj in range(4):
                if hf == 0:
                    a(f"v_cvt_pk_bf16_f32 v{R+jj}, v{Cc+jj}, v{Ss+jj}")
                    a(f"v_cvt_pk_bf16_f32 v{R+8+jj}, -v{Ss+jj}, v{Cc+jj}")
                else:
                    a(f"v_cvt_pk_bf16_f32 v{R+4+jj}, v{Cc+jj}, -v{Ss+jj}")
                    a(f"v_cvt_pk_bf16_f32 v{R+12+jj}, -v{Ss+jj}, -v{Cc+jj}")
        for k in range(4):
            a(f"ds_write_b128 v{VG16}, {V(R+4*k,4)} offset:{L_M2 + 1024*k}")

    if o.touch:
        a("s_mov_b64 exec, 0")
        for k in range(9):
            a(f"s_cmp_eq_u32 s{S.WAVE}, {(k + 8) % 9}")
            a(f"s_cbranch_scc1 L_ta{k}")
        a.label("L_taback")
        a("s_mov_b64 exec, -1")
        a.label("L_ta_start")
    a(f"s_add_u32 s{S.T2}, s{S.T0}, 1")
    a(f"s_sub_u32 s{S.T3}, 15, s{S.T0}")
    a(f"s_cmp_eq_u32 s{S.WAVE}, 8")
    a("s_cbranch_scc1 L_ah")
    a(f"s_and_b32 s{S.HH}, s{S.T1}, 1")
    a(f"s_bitcmp1_b32 s{S.T1}, 1")
    a(f"s_cselect_b32 s{S.T4}, s{S.T3}, s{S.T2}")
    a(f"s_lshr_b32 s{S.T5}, s{S.T1}, 2")
    a(f"s_lshl4_add_u32 s{S.T1C}, s{S.T5}, s{S.T4}")
    a(f"v_lshlrev_b32 v{VG16}, 4, v0")
    a(f"v_mov_b32 v{VROW}, 0")
    a(f"s_cmp_lg_u32 s{S.T0}, 7")
    a("s_cbranch_scc1 L_k7")
    a(f"s_lshr_b32 s{S.T5}, s{S.T1}, 1")
    a(f"s_lshl3_add_u32 s{S.T1C}, s{S.T5}, 8")
    a(f"s_mov_b32 s{S.T2}, 0")
    a(f"s_cmp_eq_u32 s2, 127")
    a(f"s_cselect_b32 s{S.T1C}, 0, s{S.T1C}")
    a(f"s_cselect_b32 s{S.HH}, 0, s{S.HH}")
    a.label("L_k7")
    rows_setup(S.WAVE)
    a("s_waitcnt lgkmcnt(0)")
    rows_load()
    stamp(1)
    if o.b0 == 2:
        a("s_barrier")
    tile_ids()

    def tile_dma():
        a(f"s_lshl_b32 s{S.T4}, s{S.WAVE}, 11")
        a(f"s_add_u32 s{S.T5}, s{S.T4}, s{S.BLK}")
        a(f"s_lshl_b32 s{S.T5}, s{S.T5}, 7")
        a(f"s_mov_b32 m0, s{S.T4}")
        a("v_and_b32 v9, 7, v0")
        a("v_bfe_u32 v13, v0, 4, 1")
        a("v_xor_b32 v9, v9, v13")
        a("v_lshrrev_b32 v13, 3, v0")
        a(f"v_lshl_add_u32 v9, v9, 4, s{S.T5}")
        a("v_lshl_add_u32 v13, v13, 14, v9")
        a(f"global_load_lds_dwordx4 v13, {PXS}")
        a(f"s_add_u32 m0, s{S.T4}, 1024")
        a("v_add_u32 v13, 0x20000, v13")
        a(f"global_load_lds_dwordx4 v13, {PXS}")
        stamp(2)

    if not o.tlate:
        tile_dma()
    C1, S1, K = AOP, AOP + 4, AOP + 8
    a(f"s_lshr_b32 s{S.T0}, s{S.WAVE}, 2")
    a(f"s_and_b32 s{S.T1}, s{S.WAVE}, 1")
    a(f"s_bfe_u32 s{S.T2}, s{S.WAVE}, 0x10001")
    a(f"v_lshl_add_u32 v6, s{S.T0}, 4, v1")
    a(f"s_lshl3_add_u32 s{S.T3}, s{S.T2}, s{S.T1}")
    a(f"s_lshl_b32 s{S.T3}, s{S.T3}, 2")
    a("v_cvt_f32_u32 v6, v6")
    a(f"v_lshl_add_u32 v7, v2, 3, s{S.T3}")
    a("v_mul_f32 v6, 0x3c000000, v6")
    a("v_cvt_f32_u32 v7, v7")
    a("v_mul_f32 v7, v7, v6")
    for j in range(4):
        a(f"v_cos_f32 v{C1+j}, v7")
        a(f"v_sin_f32 v{S1+j}, v7")
        if j < 3:
            a("v_add_f32 v7, v7, v6")
    if o.tlate == 2:
        a(f"global_load_dwordx4 {V(WR,4)}, v{VG16}, s[{S.PWR}:{S.PWR+1}]")
        tile_dma()
    a(f"s_lshl_b32 s{S.T4}, s{S.T0}, 13")
    a(f"s_lshl_b32 s{S.T5}, s{S.T2}, 10")
    a(f"s_lshl3_add_u32 s{S.T5}, s{S.T1}, s{S.T5}")
    a(f"v_add_u32 v15, s{S.T4}, v{VG16}")
    a(f"v_add_u32 v9, s{S.T5}, v15")
    a(f"v_cvt_pk_bf16_f32 v{K+0}, v{C1}, v{C1+1}")
    a(f"v_cvt_pk_bf16_f32 v{K+1}, v{C1+2}, v{C1+3}")
    a(f"v_cvt_pk_bf16_f32 v{K+2}, -v{S1}, -v{S1+1}")
    a(f"v_cvt_pk_bf16_f32 v{K+3}, -v{S1+2}, -v{S1+3}")
    a("v_cmp_eq_f32 vcc, 0, v6")
    a(f"v_cvt_pk_bf16_f32 v{K+4}, v{C1}, -v{S1+1}")
    a(f"v_cvt_pk_bf16_f32 v{K+5}, -v{C1+2}, v{S1+3}")
    a(f"v_cvt_pk_bf16_f32 v{K+6}, -v{S1}, -v{C1+1}")
    a(f"v_cvt_pk_bf16_f32 v{K+7}, v{S1+2}, v{C1+3}")
    a(f"ds_write_b64 v9, {V(K,2)} offset:{L_CT}")
    a(f"ds_write_b64 v9, {V(K+4,2)} offset:{L_CT+4096}")
    a(f"ds_write_b64 v9, {V(K+6,2)} offset:{L_CT+6144}")
    a("s_mov_b64 exec, vcc")
    a(f"v_mov_b32 v{K+2}, 0xbf803f80")
    a(f"v_mov_b32 v{K+3}, 0xbf803f80")
    a("s_mov_b64 exec, -1")
    a(f"ds_write_b64 v9, {V(K+2,2)} offset:{L_CT+2048}")
    if o.tlate != 2:
        a(f"global_load_dwordx4 {V(WR,4)}, v{VG16}, s[{S.PWR}:{S.PWR+1}]")
    if o.tlate == 1:
        tile_dma()
    a("v_mov_b32 v12, 0")
    a("v_mov_b32 v13, 0")
    stamp(3)
    if o.b0 == 1:
        a("s_waitcnt lgkmcnt(0)")
        a("s_barrier")
        for k in range(2):
            for t in range(4):
                a(f"ds_read_b128 {V(CM+16*t+4*k,4)}, v15 offset:{L_CT + t*2048 + k*1024}")

    def dots(w, fill=()):
        fill = list(fill)

        def pad(n):
            while n and fill:
                a(fill.pop(0))
                n -= 1
            a.nop(n)

        for i in range(4):
            a(f"v_dot2c_f32_bf16 v12, v{XR+i}, v{w+i}")
            a(f"v_dot2c_f32_bf16 v13, v{XR+4+i}, v{w+i}")
        pad(3)
        a("v_permlane32_swap_b32 v12, v13")
        a("v_add_f32 v12, v12, v13")
        a("v_mov_b32 v13, v12")
        pad(2)
        a("v_permlane16_swap_b32 v12, v13")
        a("v_add_f32 v12, v12, v13")
        for r in (8, 4, 2, 1):
            pad(2)
            a(f"v_add_f32_dpp v12, v12, v12 row_ror:{r} {DPPM}")
        rnd(12, 12)
        for x in fill:
            a(x)

    a(f"s_waitcnt vmcnt({2 if o.tlate else 0})")
    stamp(4)
    dots(WR, [f"s_sub_u32 s{S.T4}, 0xffff, s{S.TD}", f"s_sub_u32 s{S.T5}, 0xffff, s{S.TM}", f"v_mov_b32 v4, s{S.T4}",
              f"v_writelane_b32 v4, s{S.T5}, 32", f"v_mov_b32 v9, {L_KSL}",
              f"v_lshlrev_b32 v{VSGN}, 31, v1", f"v_lshrrev_b32 v7, 16, v{VSGN}", f"v_or_b32 v{VSGN}, v{VSGN}, v7",
              "v_bfe_u32 v6, v0, 2, 2", "v_and_b32 v14, 3, v0", f"v_lshl_add_u32 v14, v14, 1, s{S.T2}",
              f"v_lshl_add_u32 v{VTR}, v2, 3, v6", "v_lshrrev_b32 v6, 1, v6", "v_xor_b32 v14, v14, v6"])
    a("v_ashrrev_i32 v7, 31, v12")
    a("v_or_b32 v7, 0x80000000, v7")
    a("v_xor_b32 v7, v7, v12")
    a(f"v_and_b32 v7, {HIM}, v7")
    a("v_or_b32 v7, v7, v4")
    a("s_mov_b32 exec_lo, 1")
    a("s_mov_b32 exec_hi, 1")
    a("ds_max_u32 v9, v7")
    a("s_mov_b64 exec, -1")
    if o.b1a:
        a("s_waitcnt lgkmcnt(0)")
        hold("K")
        a("s_barrier")
    if o.b0 == 2:
        for k in range(2):
            for t in range(4):
                a(f"ds_read_b128 {V(CM+16*t+4*k,4)}, v15 offset:{L_CT + t*2048 + k*1024}")
    a(f"s_lshl_b32 s{S.T1}, s{S.T1}, 3")
    a(f"v_lshl_add_u32 v14, v14, 4, s{S.T1}")
    a(f"v_lshl_add_u32 v{VTR}, v{VTR}, 7, v14")
    a("v_lshlrev_b32 v9, 4, v2")
    a("s_waitcnt vmcnt(0)" + ("" if o.b0 == 2 else " lgkmcnt(0)"))
    hold("B1")
    a("s_barrier")
    stamp(5)
    if o.b0 == 2:
        a("s_waitcnt lgkmcnt(5)")
    a(f"ds_read_b128 v[28:31], v9 offset:{L_EXP}")
    for k in range(4):
        for h in range(2):
            a(f"ds_read_b64_tr_b16 {V(AOP+4*k+2*h,2)}, v{VTR} offset:{L_TILE + k*4096 + h*512}")
        if k < 2 and not o.b0:
            for t in range(4):
                a(f"ds_read_b128 {V(CM+16*t+4*k,4)}, v15 offset:{L_CT + t*2048 + k*1024}")
        if k == 1 and not o.b0:
            a("s_waitcnt lgkmcnt(9)")
    a(f"global_load_dwordx4 {V(GW,4)}, v{VG16}, s[{S.PGW}:{S.PGW+1}]")
    xors = [f"v_xor_b32 v{CM+t*16+8+4*kp+r}, v{CM+t*16+4*kp+r}, v{VSGN}" for kp in range(2) for t in range(4) for r in range(4)]
    misc = [f"s_mul_i32 s{S.SO}, s{S.T0}, {16*CS}",
            f"s_add_u32 s{S.SO}, s{S.SO}, s{S.PIE}",
            f"s_and_b32 s{S.T4}, s{S.WAVE}, 3",
            f"s_lshl_b32 s{S.T4}, s{S.T4}, 9",
            f"s_add_u32 s{S.SO}, s{S.SO}, s{S.T4}",
            f"s_add_u32 s{S.SO}, s{S.SO}, {WS_INT}",
            f"s_mov_b32 s{S.RWS}, s{S.PWS}", f"s_mov_b32 s{S.RWS+1}, s{S.PWS+1}", f"s_mov_b32 s{S.RWS+2}, {WS_BYTES:#x}",
            f"s_mov_b32 s{S.RWS+3}, 0x20000",
            f"s_add_u32 s{S.SO+1}, s{S.SO}, {32*CS}", f"s_mov_b32 s{S.T5}, 0xfffefffe", f"s_mov_b32 s{S.T4}, 0x07060302",
            f"v_mul_u32_u24 v{VST}, {CS}, v1", f"v_lshl_add_u32 v{VST}, v2, 4, v{VST}",
            ]
    fill = xors + misc
    for k in range(4):
        for t in range(4):
            if o.b0:
                if t == 0:
                    a(f"s_waitcnt lgkmcnt({6-2*k})")
            elif k == 0:
                a(f"s_waitcnt lgkmcnt({13-t})")
            elif k == 1:
                a(f"s_waitcnt lgkmcnt({7-t})")
            elif t == 0:
                a(f"s_waitcnt lgkmcnt({2 if k == 2 else 0})")
            c = "0" if k == 0 else V(ACC + 4 * t, 4)
            a(f"{MF} {V(ACC+4*t,4)}, {V(AOP+4*k,4)}, {V(CM+16*t+4*k,4)}, {c}")
            n = 4 if k < 2 else 2
            if k < 3 or t < 3:
                for _ in range(n):
                    if fill:
                        x = fill.pop(0)
                        if x != "TAGWAIT":
                            a(x)
    for x in fill:
        a(x)
    a("v_mov_b32 v12, 0")
    a("v_mov_b32 v13, 0")
    for h in range(2):
        for i in range(8):
            a(f"v_add_u32 v{ACC+8*h+i}, 0x10000, v{ACC+8*h+i}")
        for i in range(4):
            a(f"v_perm_b32 v{AOP+4*h+i}, v{ACC+8*h+4+i}, v{ACC+8*h+i}, s{S.T4}")
        for i in range(4):
            a(f"v_and_or_b32 v{AOP+4*h+i}, v{AOP+4*h+i}, s{S.T5}, v{28+i}")
        a(f"buffer_store_dwordx4 {V(AOP+4*h,4)}, v{VST}, {R4(S.RWS)}, s{S.SO+h} offen sc1")
    a(f"s_mov_b32 s{S.SPIN}, 0")
    a(f"s_mov_b32 s{S.ISZ}, 0")
    stamp(7)
    if o.only == "P1":
        a("s_endpgm")
    a.label("L_ta_end")

    gwait = [2]

    def gates(full):
        if full:
            a(f"s_waitcnt vmcnt({gwait[0]})")
        dots(GW)
        if full:
            a(f"s_lshl_b32 s{S.T0}, s{S.WAVE}, 11")
            a(f"v_add_u32 v6, s{S.T0}, v{VG16}")
            a(f"ds_write_b128 v6, {V(XR,4)} offset:{L_XT}")
            a(f"ds_write_b128 v6, {V(XR+4,4)} offset:{L_XT+1024}")
            a(f"v_lshl_add_u32 v7, v1, 6, s{S.T0}")
            a("v_lshl_add_u32 v7, v2, 3, v7")
            a("s_waitcnt lgkmcnt(0)")
            for r in range(2):
                a(f"ds_read2_b64 {V(XR+4*r,4)}, v7 offset0:{0} offset1:{4}" if False else f"ds_read_b64 {V(XR+4*r,2)}, v7 offset:{L_XT+1024*r}")
                a(f"ds_read_b64 {V(XR+4*r+2,2)}, v7 offset:{L_XT+1024*r+32}")
            vrow_setup()
        sigmoid(13, 12)
        rnd(13, 13)
        a("v_sub_f32 v14, 1.0, v13")
        rnd(14, 14)
        a(f"v_readlane_b32 s{S.T0}, v13, 0")
        a(f"v_readlane_b32 s{S.T1}, v13, 32")
        a(f"v_readlane_b32 s{S.T2}, v14, 0")
        a(f"v_readlane_b32 s{S.T3}, v14, 32")
        a(f"s_xor_b32 s{S.T4}, s{S.T0}, 0x80000000")
        a(f"s_cmp_eq_u32 s{S.TD}, 0")
        a(f"s_cselect_b32 s{S.T4}, 0, s{S.T4}")
        a(f"s_cselect_b32 s{S.T5}, 0, s{S.T1}")
        if not full:
            return
        a(f"v_mov_b32 v{CO}, s{S.T0}")
        a(f"v_mov_b32 v{CO+1}, s{S.T4}")
        a(f"v_mov_b32 v{CO+2}, s{S.T5}")
        a(f"v_mov_b32 v{CO+3}, s{S.T1}")
        a(f"v_mov_b32 v13, s{S.T2}")
        a(f"v_mov_b32 v14, s{S.T3}")
        a("s_waitcnt lgkmcnt(0)")
        for r in range(2):
            for i in range(4):
                a(f"v_lshlrev_b32 v{XG+8*r+2*i}, 16, v{XR+4*r+i}")
                a(f"v_and_b32 v{XG+8*r+2*i+1}, {HIM}, v{XR+4*r+i}")
            for i in range(8):
                a(f"v_mul_f32 v{XG+8*r+i}, v{13+r}, v{XG+8*r+i}")

    def addr_ur(wreg):
        a(f"s_mul_i32 s{S.T1}, s{wreg}, {2*UB}")
        a("v_bfe_u32 v7, v1, 1, 2")
        a("v_xor_b32 v7, v7, v2")
        a(f"v_lshl_add_u32 v7, v7, 4, s{S.T1}")
        a(f"v_lshl_add_u32 v{VUR0}, v1, 6, v7")
        a("v_sub_u32 v6, 16, v1")
        a("v_bfe_u32 v7, v6, 1, 2")
        a("v_xor_b32 v7, v7, v2")
        a(f"v_lshl_add_u32 v7, v7, 4, s{S.T1}")
        a(f"v_lshl_add_u32 v{VUR1}, v6, 6, v7")

    def addr_p2():
        a("v_lshlrev_b32 v6, 4, v1")
        a(f"v_lshl_add_u32 v{VLD}, v2, 13, v6")
        a(f"v_mul_u32_u24 v6, {4*UB}, v2")
        a("v_bfe_u32 v7, v1, 1, 2")
        a(f"v_xor_b32 v7, s{S.WAVE}, v7")
        a("v_lshl_add_u32 v7, v7, 4, v6")
        a(f"v_lshl_add_u32 v{VUW}, v1, 6, v7")
        a(f"s_lshl4_add_u32 s{S.T1}, s{S.WAVE}, 1024")
        a(f"v_mov_b32 v9, {L_DUMP - L_U2}")
        a(f"v_lshl_add_u32 v{VUX}, v0, 1, v9")
        a(f"v_lshl_add_u32 v7, v1, 1, s{S.T1}")
        a("s_mov_b32 exec_lo, 0x00ff00ff")
        a("s_mov_b32 exec_hi, 0x00ff00ff")
        a(f"v_add_u32 v{VUX}, v7, v6")
        a("s_mov_b64 exec, -1")

    EXP = 96

    def exp_setup():
        a("v_and_b32 v6, 3, v1")
        a("v_lshlrev_b32 v6, 4, v6")
        a(f"ds_read_b128 {V(EXP,4)}, v6 offset:{L_EXP}")
        a("s_waitcnt lgkmcnt(0)")

    def exp_make():
        a("v_lshlrev_b32 v6, 1, v1")
        a(f"v_lshrrev_b32 v6, v6, v{VTAG}")
        a("v_lshlrev_b32 v7, 15, v6")
        a("v_and_b32 v6, 1, v6")
        a("v_and_b32 v7, 0x10000, v7")
        a("v_or_b32 v6, v6, v7")
        a("v_lshlrev_b32 v7, 2, v1")
        a(f"ds_write_b32 v7, v6 offset:{L_EXP}")
        a("s_waitcnt lgkmcnt(0)")

    def const_d1():
        a("v_cvt_f32_u32 v6, v1")
        a(f"s_lshl_b32 s{S.T0}, s{S.WAVE}, 2")
        a(f"v_lshl_add_u32 v7, v2, 6, s{S.T0}")
        a("v_mul_f32 v6, 0x3b000000, v6")
        a("v_cvt_f32_u32 v7, v7")
        a("v_mul_f32 v15, 0x41800000, v6")
        a("v_mul_f32 v7, v7, v6")
        for ib in range(4):
            if ib:
                a("v_add_f32 v7, v7, v6")
            for j in range(4):
                src = "v7" if j == 0 else "v9"
                a(f"v_cos_f32 v{Cc+j}, {src}")
                a(f"v_sin_f32 v{Ss+j}, {src}")
                if j < 3:
                    a(f"v_add_f32 v9, {src}, v15")
            b = M1 + 12 * ib
            a(f"v_mov_b32 v{b+8}, 0")
            for p in range(2):
                a(f"v_cvt_pk_bf16_f32 v{b+p}, v{Cc+2*p}, v{Cc+2*p+1}")
                a(f"v_cvt_pk_bf16_f32 v{b+4+p}, -v{Ss+2*p}, -v{Ss+2*p+1}")
            for p in range(2):
                a(f"v_xor_b32 v{b+2+p}, v{b+p}, v{VSGN}")
                a(f"v_xor_b32 v{b+6+p}, v{b+4+p}, v{VSGN}")
        a("v_lshrrev_b32 v6, 1, v1")
        a(f"v_add_u32 v7, s{S.T0}, v6")
        a("v_and_b32 v9, 1, v1")
        a("v_lshl_add_u32 v7, v9, 3, v7")
        a("v_cvt_f32_u32 v7, v7")
        a("v_mul_f32 v7, 0x3d000000, v7")
        a("v_cos_f32 v7, v7")
        for ib in range(4):
            m = 0x00030003 << (2 * ib)
            a(f"s_mov_b32 exec_lo, {m:#x}")
            a(f"s_mov_b32 exec_hi, {m:#x}")
            a(f"v_cvt_pk_bf16_f32 v{M1+12*ib+8}, v7, -v7")
        a("s_mov_b64 exec, -1")
        for ib in range(4):
            for p in range(1, 4):
                a(f"v_mov_b32 v{M1+12*ib+8+p}, v{M1+12*ib+8}")

    def const_ga():
        a("v_lshrrev_b32 v6, 1, v1")
        a(f"s_lshl_b32 s{S.T0}, s{S.HH}, 10")
        a(f"s_add_u32 s{S.T0}, s{S.T0}, s{S.T1C}")
        a(f"v_lshl_add_u32 v6, v6, 7, s{S.T0}")
        a("v_and_b32 v7, 1, v1")
        a("v_lshlrev_b32 v9, 9, v7")
        l0, ld = a.L("g0"), a.L("gd")
        a(f"s_cmp_lg_u32 s{S.T1C}, 0")
        a(f"s_cbranch_scc1 {l0}")
        a("s_mov_b32 exec_lo, 0x00020002")
        a("s_mov_b32 exec_hi, 0x00020002")
        a("v_mov_b32 v6, 0x400")
        a("v_mov_b32 v9, 0")
        a("s_mov_b64 exec, -1")
        a.label(l0)
        a("v_lshlrev_b32 v7, 2, v2")
        a("v_mad_u32_u24 v9, v7, v6, v9")
        a("v_cvt_f32_u32 v6, v6")
        a("v_cvt_f32_u32 v9, v9")
        a("v_mul_f32 v6, 0x3a000000, v6")
        a("v_mul_f32 v9, 0x3a000000, v9")
        for jj in range(4):
            a(f"v_cos_f32 v{Cc+jj}, v9")
            a(f"v_sin_f32 v{Ss+jj}, v9")
            if jj < 3:
                a("v_add_f32 v9, v9, v6")
        a(f"s_and_b32 s{S.T1}, s{S.T1C}, 63")
        a.nop(1)
        for jj in range(4):
            a(f"v_cvt_pk_bf16_f32 v{GA+jj}, v{Cc+jj}, v{Ss+jj}")
        a(f"s_cmp_lg_u32 s{S.T1}, 0")
        a(f"s_cbranch_scc1 {ld}")
        a(f"s_lshr_b32 s{S.T1}, s{S.T1C}, 2")
        for jj in range(4):
            a(f"v_and_b32 v{GA+jj}, 0xffff, v{GA+jj}")
            a(f"v_lshlrev_b32 v{GA+jj}, s{S.T1}, v{GA+jj}")
        a.label(ld)

    def int_base():
        a(f"s_and_b32 s{S.T1}, s{S.T1C}, 63")
        a(f"s_mul_i32 s{S.L0}, s{S.T1}, {CS}")
        a(f"s_lshl_b32 s{S.T1}, s{S.WAVE}, 9")
        a(f"s_add_u32 s{S.L0}, s{S.L0}, s{S.T1}")
        a(f"s_add_u32 s{S.L0}, s{S.L0}, {WS_INT}")
        a(f"s_add_u32 s{S.L1}, s{S.L0}, 4096")

    def m2_addr():
        a(f"s_cmp_eq_u32 s{S.TD}, 0")
        a(f"s_cselect_b32 s{S.T0}, 0, 2048")
        a(f"v_add_u32 v4, s{S.T0}, v{VG16}")

    def int_loads(ah):
        for jj in range(4):
            so = S.L0 if jj < 2 else S.L1
            a(f"buffer_load_dwordx4 {V(LD+16*ah+4*jj,4)}, v{VLD}, {R4(S.RWS)}, s{so} offen offset:{(jj & 1)*2048 + ah*256} sc1")

    a.srd(S.ROUT, S.POUT, 0x200000)
    a(f"s_cmp_ge_u32 s{S.WAVE}, 4")
    a("s_cbranch_scc1 L_hi0")
    if o.prio & 1:
        a("s_setprio 2")
    pre = [lambda: (addr_p2(), int_base(), const_ga(), exp_setup()), const_d1, lambda: gates(True), lambda: (addr_ur(S.WAVE), m2_addr())]
    if o.gfirst:
        pre[1], pre[2] = pre[2], pre[1]
    for f in pre[:o.npre]:
        f()
    stamp(8)
    a(f"s_waitcnt vmcnt({0 if o.ackwait else 2})")
    if o.b3:
        a("s_barrier")
    if o.isleep0:
        a(f"s_sleep {o.isleep0}")
    hold("B4")
    stamp(9)
    if o.stag:
        a(f"s_cmp_lg_u32 s{S.HH}, 0")
        a("s_cbranch_scc1 L_stg1")
        int_loads(0)
        a(f"s_waitcnt vmcnt({4 - o.stag})")
        int_loads(1)
        a("s_branch L_stg2")
        a.label("L_stg1")
        int_loads(1)
        a(f"s_waitcnt vmcnt({4 - o.stag})")
        int_loads(0)
        a("s_waitcnt vmcnt(0)")
        a.label("L_stg2")
    else:
        int_loads(0)
        int_loads(1)
    gwait[0] = 10
    for f in pre[o.npre:]:
        f()
    gwait[0] = 2
    a.label("L_zjoin")
    stamp(10)
    for ah in range(2):
        a(f"s_waitcnt vmcnt({4-4*ah})")
        a.label(f"L_got{ah}")
        b = LD + 16 * ah
        da = DA1 if ah else DA0
        for ib in range(4):
            for jj in range(4):
                a(f"v_xor_b32 v{TP+4*ib+jj}, v{b+4*jj+ib}, v{EXP+ib}")
            if ib == 0:
                a(f"v_or3_b32 v6, v{TP}, v{TP+1}, v{TP+2}")
                a(f"v_or_b32 v6, v6, v{TP+3}")
            else:
                a(f"v_or3_b32 v6, v6, v{TP+4*ib}, v{TP+4*ib+1}")
                a(f"v_or3_b32 v6, v6, v{TP+4*ib+2}, v{TP+4*ib+3}")
            if ib == 3:
                a("v_and_b32 v6, 0x10001, v6")
                a("v_cmp_ne_u32 vcc, 0, v6")
            if not (ah == 1):
                a(f"{MF} {V(da+4*ib,4)}, {V(TP+4*ib,4)}, {V(GA,4)}, 0")
            else:
                a(f"{MF} {V(da+4*ib,4)}, {V(TP+4*ib,4)}, {V(GA,4)}, 0")
        a(f"s_cbranch_vccnz L_retry{ah}")
        a.label(f"L_fail{ah}")
    stamp(11)

    def d1(jb):
        a(f"{MF} {V(DA0+4*jb,4)}, {V(TP+4*jb,4)}, {V(M1+12*jb,4)}, 0")
        a(f"{MF} {V(DA1+4*jb,4)}, {V(TP+4*jb,4)}, {V(M1+12*jb+4,4)}, 0")
        a(f"{MF} {V(X16,4)}, {V(TP+4*jb,4)}, {V(M1+12*jb+8,4)}, {'0' if jb == 0 else V(X16,4)}")

    for ib in range(4):
        for p in range(4):
            s0 = (DA1 if p >= 2 else DA0) + 4 * ib + 2 * (p & 1)
            a(f"v_cvt_pk_bf16_f32 v{TP+4*ib+p}, v{s0}, v{s0+1}")
        if ib:
            d1(ib - 1)
    d1(3)
    for ib in range(3):
        for i in range(4):
            a(f"v_cvt_pk_bf16_f32 v{PK+4*i+ib}, v{DA0+4*ib+i}, v{DA1+4*ib+i}")
    for i in range(4):
        a(f"v_cvt_pk_bf16_f32 v{PK+4*i+3}, v{DA0+12+i}, v{DA1+12+i}")
        a(f"ds_write_b128 v{VUW}, {V(PK+4*i,4)} offset:{L_U2 + i*UB}")
    a(f"v_cvt_pk_bf16_f32 v{X16}, v{X16}, v{X16+1}")
    a(f"v_cvt_pk_bf16_f32 v{X16+2}, v{X16+2}, v{X16+3}")
    a(f"ds_write_b16 v{VUX}, v{X16} offset:{L_U2}")
    a(f"ds_write_b16_d16_hi v{VUX}, v{X16} offset:{L_U2+UB}")
    a(f"ds_write_b16 v{VUX}, v{X16+2} offset:{L_U2+2*UB}")
    a(f"ds_write_b16_d16_hi v{VUX}, v{X16+2} offset:{L_U2+3*UB}")
    a.label("L_d2")
    a(f"ds_read_b128 {V(M2,4)}, v{VG16} offset:{L_M2}")
    a(f"ds_read_b128 {V(M2+4,4)}, v{VG16} offset:{L_M2+1024}")
    a(f"ds_read_b128 {V(M2+8,4)}, v4 offset:{L_M2}")
    a(f"ds_read_b128 {V(M2+12,4)}, v4 offset:{L_M2+1024}")
    a(f"v_mov_b32 v9, {L_GKEY}")
    a(f"s_cmp_lg_u32 s{S.ISZ}, 0")
    a("s_waitcnt lgkmcnt(0)")
    a("s_cbranch_scc1 L_zsync")
    a("s_barrier")
    stamp(12)
    a("ds_read_b32 v6, v9")
    a(f"ds_read_b128 {V(UO,4)}, v{VUR0} offset:{L_U2}")
    a(f"ds_read_b128 {V(UO+4,4)}, v{VUR1} offset:{L_U2}")
    a(f"ds_read_b128 {V(UO+8,4)}, v{VUR0} offset:{L_U2+UB}")
    a(f"ds_read_b128 {V(UO+12,4)}, v{VUR1} offset:{L_U2+UB}")
    a(f"s_lshl_b32 s{S.T0}, s{S.TD}, 10")
    a(f"s_lshl_b32 s{S.T1}, s{S.TM}, 10")
    for k in range(4):
        a(f"s_waitcnt lgkmcnt({3-k})")
        a(f"{MF} {V(PQ+4*k,4)}, {V(UO+4*k,4)}, {V(M2+4*k,4)}, 0")
    a(f"v_readfirstlane_b32 s{S.GKEY}, v6")
    a(f"s_andn2_b32 s{S.IDX}, 0xffff, s{S.GKEY}")
    for r in range(2):
        for i in range(8):
            a(f"v_fmac_f32 v{XG+8*r+i}, v{CO+2*r}, v{PQ+i}")
    for r, (so, tr) in enumerate(((S.T0, S.TD), (S.T1, S.TM))):
        for i in range(8):
            a(f"v_fmac_f32 v{XG+8*r+i}, v{CO+2*r+1}, v{PQ+8+i}")
        for i in range(4):
            a(f"v_cvt_pk_bf16_f32 v{UO+4*r+i}, v{XG+8*r+2*i}, v{XG+8*r+2*i+1}")
        l = a.L("skip")
        if r == 0:
            stamp(6)
        a(f"s_cmp_eq_u32 s{tr}, s{S.IDX}")
        a(f"s_cbranch_scc1 {l}")
        a(f"v_permlane16_swap_b32 v{UO+4*r}, v{UO+4*r+2}")
        a(f"v_permlane16_swap_b32 v{UO+4*r+1}, v{UO+4*r+3}")
        a(f"buffer_store_dwordx4 {V(UO+4*r,4)}, v{VROW}, {R4(S.ROUT)}, s{so} offen{o.outpol}")
        a.label(l)
    a.label("L_tb_end")
    stamp(13)
    if o.stamps:
        a("s_waitcnt vmcnt(0)")
        stamp(15)
    endprog()

    for ah in range(2):
        a.label(f"L_retry{ah}")
        if o.stamps:
            a(f"s_add_u32 s{S.RC}, s{S.RC}, {1 << (8*ah)}")
        if o.rsleep:
            a(f"s_sleep {o.rsleep}")
        spin()
        a(f"s_cbranch_scc1 L_fail{ah}")
        int_loads(ah)
        a("s_waitcnt vmcnt(0)")
        a(f"s_branch L_got{ah}")

    a.label("L_hi0")
    if o.b3:
        if o.ackwait:
            a("s_waitcnt vmcnt(0)")
        a("s_barrier")
    a.label("L_hi1")
    if o.atouch:
        touch("L_tb", o.atouch, 4, 4)
        a(f"s_cmp_lg_u32 s{S.ISZ}, 0")
        a("s_cbranch_scc1 L_z0b")
    gates(True)
    addr_ur(S.WAVE)
    m2_addr()
    stamp(10)
    a("s_branch L_d2")

    a.label("L_ah")
    if o.prio & 2:
        a("s_setprio 3")
    if o.cpf:
        a(f"s_cmp_ge_u32 s{S.T1}, {o.cpf}")
        a("s_cbranch_scc1 L_nocpf")
        a(f"s_getpc_b64 s[{S.EX}:{S.EX+1}]")
        a.label("L_pc")
        a(f"s_sub_u32 s{S.EX}, s{S.EX}, L_pc - {name}")
        a(f"s_subb_u32 s{S.EX+1}, s{S.EX+1}, 0")
        a("v_lshlrev_b32 v6, 7, v0")
        a("v_add_u32 v7, 0x2000, v6")
        a(f"v_min_u32 v7, L_end - {name}, v7")
        a(f"v_mov_b32 v13, s{S.EX+1}")
        a(f"v_mov_b32 v15, s{S.EX+1}")
        a(f"v_add_co_u32 v12, vcc, s{S.EX}, v6")
        a.nop(2)
        a("v_addc_co_u32 v13, vcc, 0, v13, vcc")
        a(f"v_add_co_u32 v14, vcc, s{S.EX}, v7")
        a.nop(2)
        a("v_addc_co_u32 v15, vcc, 0, v15, vcc")
        a("global_load_dword v10, v[12:13], off")
        a("global_load_dword v11, v[14:15], off")
        a.label("L_nocpf")
    a(f"v_lshlrev_b32 v{VG16}, 4, v0")
    a(f"v_mov_b32 v{VTAG}, 0")
    a(f"v_mov_b32 v9, {L_KSL}")
    a(f"ds_write_b32 v9, v{VTAG}")
    a(f"s_mov_b32 s{S.KM}, 0x9E3779B1")
    a(f"s_cmp_ge_u32 s{S.T1}, {o.wpf}")
    a("s_waitcnt lgkmcnt(0)")
    a("s_cbranch_scc1 L_nowpf")
    a(f"global_load_dwordx4 v[32:35], v{VG16}, s[{S.PWR}:{S.PWR+1}]")
    a(f"global_load_dword v{VE}, v{VTAG}, s[{S.PWS}:{S.PWS+1}]")
    a(f"global_load_dwordx4 v[36:39], v{VG16}, s[{S.PGW}:{S.PGW+1}]")
    a.label("L_nowpf")
    stamp(1)
    a("v_lshlrev_b32 v14, 10, v0")
    a(f"s_lshl_b32 s{S.ID8}, s2, 3")
    a(f"s_add_u32 s{S.ID8}, s{S.ID8}, {WS_KEY}")
    ws_setup()

    if o.b0 == 2:
        a("s_barrier")
    const_d2()
    a(f"global_load_dword v{VE}, v{VTAG}, s[{S.PWS}:{S.PWS+1}]")
    a("s_waitcnt lgkmcnt(0)")
    stamp(2)
    if o.b0 == 1:
        a("s_barrier")
    a(f"v_mov_b32 v9, {L_KSL}")
    a("s_waitcnt vmcnt(0)")
    tag_make()
    exp_make()
    a(f"v_mov_b32 v9, {L_KSL}")
    stamp(3)
    a("s_barrier")
    a(f"ds_read_b32 v{VE}, v9")
    set_exec(RF * CF + RZ * CZ + R2 * C2 + RS)
    a("s_waitcnt lgkmcnt(0)")
    a(f"buffer_store_dwordx2 v[{VE}:{VTAG}], v14, {R4(S.RWS)}, s{S.ID8} offen sc1")
    if o.probe >= 0:
        a("s_mov_b64 exec, 1")
        a("v_mov_b32 v40, s66")
        a(f"v_mov_b32 v41, v{VTAG}")
        a(f"s_add_u32 s{S.T0}, s{S.ID8}, {WS_KEY2 - WS_KEY}")
        a(f"buffer_store_dwordx2 v[40:41], v14, {R4(S.RWS)}, s{S.T0} offen sc1")
    a("s_mov_b64 exec, -1")
    stamp(5)
    if o.b1a:
        a("s_barrier")
    if o.only == "P1":
        a("s_endpgm")
    poll_setup(WS_KEY + 1024 * (RF * CF + RZ * CZ), R2, C2)
    a("s_waitcnt vmcnt(0)")
    if not o.gate and o.b3:
        a("s_barrier")
    if o.k2sleep0:
        a(f"s_sleep {o.k2sleep0}")
    stamp(8)
    poll_granules(VG16, 32, sleep=o.k2sleep)
    stamp(9)
    wave_max_key(32)
    lds_put(L_GKEY, 32)
    if o.gate:
        a(f"s_sleep {o.gate}")
        a("s_barrier")
        if o.probe >= 0:
            a("s_cmp_lg_u32 s2, 9")
            a("s_cbranch_scc1 L_noprobe")
            a("s_barrier")
            a(f"s_mov_b32 s{S.PO}, {WS_KEY2}")
            a(f"s_mov_b32 s{S.POL}, {WS_KEY2}")
            poll_granules(VG16, 32, sleep=4)
            for i in range(8):
                a(f"v_readlane_b32 s{70+i}, v{32 + 2*(i&1)}, {i>>1}")
            a("s_mov_b32 s80, s70")
            for i in range(1, 8):
                a(f"s_sub_u32 s81, s{70+i}, s80")
                a("s_cmp_lt_i32 s81, 0")
                a(f"s_cselect_b32 s80, s{70+i}, s80")
            if o.probe < 8:
                a(f"s_sub_u32 s81, s{70+o.probe}, s80")
            else:
                a("s_mov_b32 s81, 0")
                for i in range(8):
                    a(f"s_sub_u32 s82, s{70+i}, s80")
                    a("s_max_u32 s81, s81, s82")
            a("s_mul_i32 s81, s81, 10")
            a("s_add_u32 s81, s81, 800")
            a.label("L_pw")
            a("s_sleep 1")
            a("s_memrealtime s[100:101]")
            a("s_waitcnt lgkmcnt(0)")
            a("s_sub_u32 s100, s100, s80")
            a("s_cmp_lt_u32 s100, s81")
            a("s_cbranch_scc1 L_pw")
            a.label("L_noprobe")
        if o.hold and o.hold[0] == "endA":
            a(f"s_sub_u32 s{S.T0}, s2, {o.hold[2]}")
            a(f"s_cmp_ge_u32 s{S.T0}, {o.hold[3]}")
            a("s_cbranch_scc1 L_nohold")
            a("s_barrier")
            hold("endA")
            a.label("L_nohold")
        endprog()
    a("s_barrier")
    endprog()

    a.label("L_notA")
    if o.only == "AA":
        a("s_endpgm")
    a(f"s_lshl4_add_u32 s{S.FJ}, s{S.T0}, s{S.T1}")
    a(f"s_sub_u32 s{S.FJ}, s{S.FJ}, 16")
    a(f"s_cmp_ge_u32 s2, {NWG}")
    a("s_cbranch_scc1 L_end")
    a(f"s_cmp_lt_u32 s{S.T0}, 4")
    a("s_cbranch_scc1 L_F")
    a(f"s_mul_i32 s{S.FJ}, s{S.T0}, 12")
    a(f"s_add_u32 s{S.FJ}, s{S.FJ}, s{S.T1}")
    a(f"s_cmp_lt_u32 s{S.T1}, 28")
    a("s_cbranch_scc1 L_F")
    a(f"s_mov_b32 s{S.ISZ}, 1")
    a(f"s_lshl2_add_u32 s{S.Z}, s{S.T0}, s{S.T1}")
    a(f"s_sub_u32 s{S.Z}, s{S.Z}, 44")
    vrow_setup()
    a(f"v_lshlrev_b32 v{VG16}, 4, v0")
    sgn_setup()
    a("s_waitcnt lgkmcnt(0)")
    ws_setup()
    a.srd(S.ROUT, S.POUT, 0x200000)
    addr_p2()
    a(f"s_cmp_eq_u32 s{S.WAVE}, 8")
    a("s_cbranch_scc1 L_zh")
    a(f"s_cmp_ge_u32 s{S.WAVE}, 4")
    a("s_cbranch_scc1 L_z0")
    const_d1()
    a("s_branch L_z1")
    a.label("L_z0")
    if o.atouch:
        a("s_branch L_hi1")
    a.label("L_z0b")
    if o.ztouch:
        touch("L_tz", o.ztouch, 4, 4)
    a.label("L_z1")
    a(f"v_mov_b32 v9, {L_KSL}")
    a("v_mov_b32 v12, 0")
    a("v_mov_b32 v13, 0")
    a("s_barrier")
    a(f"ds_read_b64 v[{VE}:{VTAG}], v9")
    a(f"ds_read_b128 {V(GW,4)}, v{VG16} offset:{L_WV+1024}")
    a("s_waitcnt lgkmcnt(0)")
    a(f"v_readfirstlane_b32 s{S.GKEY}, v{VE}")
    a(f"s_andn2_b32 s{S.IDX}, 2047, s{S.GKEY}")
    a(f"s_and_b32 s{S.T0}, s{S.IDX}, 127")
    a(f"s_cmp_gt_u32 s{S.T0}, 64")
    a(f"s_cselect_b32 s{S.WHICH}, 1, 0")
    a(f"s_and_b32 s{S.T0}, s{S.IDX}, {1024 + 63}")
    a(f"s_cmp_eq_u32 s{S.T0}, 1024")
    a(f"s_cselect_b32 s{S.WHICH}, 1, s{S.WHICH}")
    a(f"s_sub_u32 s{S.T0}, 2048, s{S.IDX}")
    a(f"s_cmp_lg_u32 s{S.WHICH}, 0")
    a(f"s_cselect_b32 s{S.T0}, s{S.T0}, s{S.IDX}")
    a(f"s_cmp_eq_u32 s{S.T0}, 1024")
    a(f"s_cselect_b32 s{S.T0}, 0, s{S.T0}")
    a(f"s_and_b32 s{S.T1C}, s{S.T0}, 127")
    a(f"s_lshr_b32 s{S.HH}, s{S.T0}, 10")
    a(f"s_bfe_u32 s{S.WSEL}, s{S.T0}, 0x30007")
    rows_setup(S.WSEL)
    a(f"s_cmp_ge_u32 s{S.WAVE}, 4")
    a("s_cbranch_scc1 L_z4")
    int_base()
    if o.zisleep0:
        a(f"s_sleep {o.zisleep0}")
    stamp(9)
    int_loads(0)
    int_loads(1)
    const_ga()
    exp_setup()
    addr_ur(S.WSEL)
    m2_addr()
    a("v_lshlrev_b32 v6, 7, v1")
    a(f"v_lshl_add_u32 v15, v2, 4, v6")
    a("s_branch L_zjoin")
    a.label("L_z4")
    a(f"s_cmp_ge_u32 s{S.WAVE}, 6")
    a("s_cbranch_scc1 L_zend2")
    rows_load()
    a(f"s_sub_u32 s{S.T0}, s{S.WAVE}, 4")
    a(f"s_lshl1_add_u32 s{S.T1}, s{S.Z}, s{S.T0}")
    a(f"s_lshl_b32 s{S.T1}, s{S.T1}, 5")
    a("v_and_b32 v6, 7, v0")
    a(f"v_lshl_add_u32 v10, v6, 2, s{S.T1}")
    a(f"s_lshl_b32 s{S.T2}, s{S.IDX}, 10")
    a(f"v_add_u32 v7, s{S.T2}, v10")
    a(f"global_load_dword v35, v7, {PXS}")
    a("v_lshlrev_b32 v10, 1, v10")
    a("v_lshrrev_b32 v7, 3, v0")
    a("v_lshlrev_b32 v7, 8, v7")
    a("v_lshl_add_u32 v11, v6, 4, v7")
    a(f"s_mul_i32 s{S.SI0}, s{S.Z}, {PZ}")
    a(f"s_lshl_b32 s{S.T0}, s{S.T0}, 7")
    a(f"s_add_u32 s{S.SI0}, s{S.SI0}, s{S.T0}")
    a(f"s_add_u32 s{S.SI0}, s{S.SI0}, {WS_PART}")
    a(f"s_add_u32 s{S.SI1}, s{S.SI0}, {(o.pc-1)*PARTC}")
    a(f"s_and_b32 s{S.T0}, s{S.GKEY}, 0xffff0000")
    a(f"s_xor_b32 s{S.T1}, s{S.T0}, 0x80000000")
    a(f"s_xor_b32 s{S.T3}, s{S.T0}, 0xffff0000")
    a(f"s_bitcmp1_b32 s{S.T0}, 31")
    a(f"s_cselect_b32 s{S.T0}, s{S.T1}, s{S.T3}")
    a(f"v_mov_b32 v15, s{S.T0}")
    sigmoid(15, 15)
    rnd(15, 15)
    a("s_waitcnt vmcnt(0)")
    gates(False)
    a(f"s_cmp_lg_u32 s{S.WHICH}, 0")
    a(f"s_cselect_b32 s{S.T2}, s{S.T3}, s{S.T2}")
    a(f"s_cselect_b32 s{S.T0}, s{S.T5}, s{S.T0}")
    a(f"s_cselect_b32 s{S.T4}, s{S.T1}, s{S.T4}")
    a(f"v_xor_b32 v{VTAG}, s{S.IDX}, v{VTAG}")
    a(f"v_mov_b32 v36, s{S.T2}")
    a(f"v_mov_b32 v{CO}, s{S.T0}")
    a(f"v_mov_b32 v{CO+1}, s{S.T4}")
    a("v_lshlrev_b32 v34, 16, v35")
    a(f"v_and_b32 v35, {HIM}, v35")
    if o.psleep0:
        a(f"s_sleep {o.psleep0}")
    hold("pp")
    a(f"v_mov_b32 v9, {L_ZF}")
    a.label("L_tz_start")
    stamp(10)
    if o.psleep:
        a("s_branch L_zp1")
    a.label("L_zp")
    if o.psleep:
        a(f"s_sleep {o.psleep}")
        a.label("L_zp1")
    for i in range(7):
        if i and i % 2 == 0:
            a(f"s_add_u32 s{S.T0}, s{S.SI0}, {2048*i}")
        a(f"buffer_load_dwordx4 {V(40+4*i,4)}, v11, {R4(S.RWS)}, s{S.T0 if i >= 2 else S.SI0} offen offset:{2048*(i&1)} sc1")
    a(f"s_add_u32 s{S.SI0}, s{S.SI0}, {PARTC}")
    a(f"s_min_u32 s{S.SI0}, s{S.SI0}, s{S.SI1}")
    if o.stamps:
        a(f"s_add_u32 s{S.RC}, s{S.RC}, 256")
    spin()
    a("s_cbranch_scc1 L_zp_ok")
    for i in range(7):
        a(f"s_waitcnt vmcnt({6-i})")
        a(f"v_bitop3_b32 v{37 if i == 0 else 38 + (i & 1)}, v{41+4*i}, v{43+4*i}, v{VTAG} bitop3:0x7e")
        if i:
            a(f"v_add_f32 v40, v40, v{40+4*i}")
            a(f"v_add_f32 v42, v42, v{42+4*i}")
        if i and i % 2 == 0:
            a("v_or3_b32 v37, v37, v38, v39")
    a("v_cmp_ne_u32 vcc, 0, v37")
    a.nop(1)
    a("s_cbranch_vccnz L_zp")
    a.label("L_zp_ok")
    a("ds_read_b32 v12, v9")
    a(f"ds_read_b64 v[32:33], v10 offset:{L_XG2}")
    a(f"ds_read_b64 v[16:17], v10 offset:{L_XG2+2048}")
    a("v_lshrrev_b32 v11, 1, v10")
    a(f"s_lshl_b32 s{S.T2}, s{S.IDX}, 10")
    a("s_waitcnt vmcnt(0)")
    stamp(11)
    a(f"v_add_f32_dpp v40, v40, v40 row_ror:8 {DPPM}")
    a(f"v_add_f32_dpp v42, v42, v42 row_ror:8 {DPPM}")
    a.nop(1)
    a.nop(1)
    a("v_permlane16_swap_b32 v40, v42")
    a("v_add_f32 v40, v40, v42")
    a("v_mov_b32 v42, v40")
    a.nop(2)
    a("v_permlane32_swap_b32 v40, v42")
    a("v_add_f32 v40, v40, v42")
    a("v_mov_b32 v42, v40")
    a.nop(2)
    a("v_permlane16_swap_b32 v40, v42")
    a("v_cvt_pk_bf16_f32 v41, v40, v42")
    a("v_lshlrev_b32 v40, 16, v41")
    a(f"v_and_b32 v42, {HIM}, v41")
    a("v_mul_f32 v40, v40, v15")
    a("v_mul_f32 v42, v42, v15")
    a("v_cvt_pk_bf16_f32 v41, v40, v42")
    a("v_lshlrev_b32 v40, 16, v41")
    a(f"v_and_b32 v42, {HIM}, v41")
    a("v_add_f32 v40, v40, v34")
    a("v_add_f32 v42, v42, v35")
    a("v_cvt_pk_bf16_f32 v41, v40, v42")
    a("v_lshlrev_b32 v40, 16, v41")
    a(f"v_and_b32 v42, {HIM}, v41")
    a.label("L_zw")
    a("s_waitcnt lgkmcnt(0)")
    a("v_cmp_eq_u32 vcc, 0, v12")
    a(f"v_mul_f32 v32, v{CO}, v32")
    a(f"v_mul_f32 v33, v{CO}, v33")
    a("s_cbranch_vccz L_zw_ok")
    spin()
    a("s_cbranch_scc1 L_zw_ok")
    a("ds_read_b32 v12, v9")
    a(f"ds_read_b64 v[32:33], v10 offset:{L_XG2}")
    a(f"ds_read_b64 v[16:17], v10 offset:{L_XG2+2048}")
    a("s_branch L_zw")
    a.label("L_zw_ok")
    a(f"v_fmac_f32 v32, v{CO+1}, v16")
    a(f"v_fmac_f32 v33, v{CO+1}, v17")
    a("v_fmac_f32 v32, v40, v36")
    a("v_fmac_f32 v33, v42, v36")
    a("v_cvt_pk_bf16_f32 v32, v32, v33")
    a("s_mov_b64 exec, 0xff")
    a(f"buffer_store_dword v32, v11, {R4(S.ROUT)}, s{S.T2} offen{o.zpol}")
    a("s_mov_b64 exec, -1")
    stamp(13)
    if o.stamps:
        a("s_waitcnt vmcnt(0)")
        stamp(15)
    a("s_barrier")
    endprog()

    a.label("L_zsync")
    a(f"v_mov_b32 v9, {L_ZC}")
    a("v_mov_b32 v6, 1")
    a("s_mov_b64 exec, 1")
    a("ds_add_u32 v9, v6")
    a("s_mov_b64 exec, -1")
    a(f"s_cmp_lg_u32 s{S.WAVE}, 0")
    a("s_cbranch_scc1 L_zend")
    a.label("L_zs")
    a("ds_read_b32 v6, v9")
    spin()
    a("s_waitcnt lgkmcnt(0)")
    a("s_cbranch_scc1 L_zs_ok")
    a("v_cmp_ne_u32 vcc, 4, v6")
    a.nop(1)
    a("s_cbranch_vccnz L_zs")
    a.label("L_zs_ok")
    stamp(12)
    a(f"ds_read_b128 {V(UO,4)}, v{VUR0} offset:{L_U2}")
    a(f"ds_read_b128 {V(UO+4,4)}, v{VUR1} offset:{L_U2}")
    a(f"ds_read_b128 {V(UO+8,4)}, v{VUR0} offset:{L_U2+UB}")
    a(f"ds_read_b128 {V(UO+12,4)}, v{VUR1} offset:{L_U2+UB}")
    for k in range(4):
        a(f"s_waitcnt lgkmcnt({3-k})")
        a(f"{MF} {V(PQ+4*k,4)}, {V(UO+4*k,4)}, {V(M2+4*k,4)}, 0")
    a.nop(3)
    for k in range(4):
        if k == 2:
            a.nop(2)
        a(f"ds_write_b128 v15, {V(PQ+4*k,4)} offset:{L_XG2 + 64*(k&1) + 2048*(k>>1)}")
    a(f"v_mov_b32 v9, {L_ZF}")
    a("s_waitcnt lgkmcnt(0)")
    a("ds_write_b32 v9, v9")
    a("s_waitcnt lgkmcnt(0)")
    stamp(13)
    a.label("L_zend")
    endprog()
    a.label("L_zend2")
    if o.hold and o.hold[0] == "end":
        a("s_barrier")
    hold("end")
    if o.ev:
        lo, n, w, st, med = [int(v) for v in o.ev.split(":")]
        a("s_cmp_lg_u32 s2, 255")
        a("s_cbranch_scc1 L_noev")
        a(f"s_cmp_lg_u32 s{S.WAVE}, 7")
        a("s_cbranch_scc1 L_noev")
        a("s_barrier")
        a.label("L_ev0")
        a("s_sleep 4")
        a("s_memrealtime s[100:101]")
        a("s_waitcnt lgkmcnt(0)")
        a(f"s_sub_u32 s100, s100, s{S.ST}")
        a("s_cmp_lt_u32 s100, 750")
        a("s_cbranch_scc1 L_ev0")
        a("v_lshlrev_b32 v6, 11, v0")
        a(f"v_add_u32 v7, {WS_STAMP + 8*128}, v6")
        a(f"global_load_dword v40, v7, s[{S.PWS}:{S.PWS+1}] sc1")
        a(f"v_add_u32 v7, {WS_STAMP + lo*2048 + w*128 + st*8}, v6")
        for q in range(n // 64):
            a(f"global_load_dword v{44+q}, v7, s[{S.PWS}:{S.PWS+1}] sc1")
            a(f"v_add_u32 v7, {64*2048}, v7")
        a("s_waitcnt vmcnt(0)")
        a(f"v_subrev_u32 v40, s{S.ST}, v40")
        a("v_sub_u32 v40, 1000, v40")
        a("v_mov_b32 v42, v40")
        wave_max_key(40)
        a("v_mov_b32 v41, 0")
        for q in range(n // 64):
            a(f"v_subrev_u32 v{44+q}, s{S.ST}, v{44+q}")
            a(f"v_cmp_gt_u32 vcc, 1000, v{44+q}")
            a.nop(2)
            a(f"v_cndmask_b32 v{44+q}, 0, v{44+q}, vcc")
            a(f"v_max_u32 v41, v41, v{44+q}")
        a("v_mov_b32 v43, v41")
        wave_max_key(41)
        a.nop(2)
        a("v_readlane_b32 s6, v40, 63")
        a("v_readlane_b32 s7, v41, 63")
        a("s_sub_u32 s6, s6, 1000")
        a("s_min_u32 s6, s6, 300")
        a("s_add_u32 s7, s7, s6")
        a("s_mul_i32 s7, s7, 4")
        a("s_add_u32 s7, s7, 900")
        a("s_sub_u32 s7, s7, s6")
        a.label("L_ev1")
        a("s_sleep 1")
        a("s_memrealtime s[100:101]")
        a("s_waitcnt lgkmcnt(0)")
        a(f"s_sub_u32 s100, s100, s{S.ST}")
        a("s_cmp_lt_u32 s100, s7")
        a("s_cbranch_scc1 L_ev1")
        a.label("L_noev")
    endprog()

    a.label("L_zh")
    a(f"v_mov_b32 v9, {L_ZF}")
    a("v_mov_b32 v6, 0")
    a("ds_write2_b32 v9, v6, v6 offset1:1")
    const_d2()
    a(f"s_mov_b32 m0, {L_WV+1024}")
    tag_load()
    a(f"global_load_lds_dwordx4 v{VG16}, s[{S.PGW}:{S.PGW+1}]")
    a("s_waitcnt vmcnt(0)")
    tag_make()
    exp_make()
    poll_setup(WS_KEY + 1024 * RF * CF, RZ, CZ)
    if o.zsleep0:
        a(f"s_sleep {o.zsleep0}")
    stamp(1)
    poll_granules(VG16, 32, sleep=o.zsleep)
    stamp(2)
    wave_max_key(32)
    lds_put(L_KSL, 32, tag=True)
    a("s_barrier")
    a(f"s_lshl_b32 s{S.T0}, s{S.Z}, 2")
    a(f"s_add_u32 s{S.T0}, s{S.T0}, {WS_ALIVE}")
    a("s_mov_b64 exec, 1")
    a(f"buffer_store_dword v{VTAG}, v0, {R4(S.RWS)}, s{S.T0} offen sc1")
    a("s_mov_b64 exec, -1")
    a(f"s_cmp_lg_u32 s{S.Z}, 0")
    a("s_cbranch_scc1 L_zend")
    a("s_mov_b64 exec, 0xffff")
    a("v_lshlrev_b32 v6, 2, v0")
    a(f"s_mov_b32 s{S.T0}, {WS_ALIVE}")
    a("s_waitcnt vmcnt(0)")
    a("s_sleep 24")
    a.label("L_za")
    a(f"buffer_load_dword v7, v6, {R4(S.RWS)}, s{S.T0} offen sc1")
    spin()
    a("s_waitcnt vmcnt(0)")
    a("s_cbranch_scc1 L_za_ok")
    a(f"v_cmp_ne_u32 vcc, v{VTAG}, v7")
    a.nop(1)
    a("s_cbranch_vccnz L_za")
    a.label("L_za_ok")
    a("s_mov_b64 exec, 1")
    a(f"v_add_u32 v9, 1, v{VE}")
    a("s_barrier")
    a(f"buffer_store_dword v9, v6, {R4(S.RWS)}, 0 offen sc1")
    a("s_mov_b64 exec, -1")
    a("s_branch L_zend")

    a.label("L_F")
    if o.only == "A":
        a("s_endpgm")
    WG_, WD_ = 32, 48
    a("v_lshlrev_b32 v5, 4, v0")
    a(f"s_cmp_eq_u32 s{S.WAVE}, 8")
    a("s_cbranch_scc1 L_fh")
    a(f"s_and_b32 s{S.T0}, s{S.FJ}, 3")
    a(f"s_lshr_b32 s{S.T1}, s{S.WAVE}, 1")
    a(f"s_lshl2_add_u32 s{S.L0}, s{S.T0}, s{S.T1}")
    a(f"s_mul_i32 s{S.T2}, s{S.L0}, {32*3584}")
    a(f"s_lshr_b32 s{S.L1}, s{S.FJ}, 2")
    a(f"s_lshl_b32 s{S.T3}, s{S.L1}, 7")
    a(f"s_add_u32 s{S.T2}, s{S.T2}, s{S.T3}")
    a("v_lshrrev_b32 v6, 3, v0")
    a("v_mul_u32_u24 v6, 3584, v6")
    a("v_and_b32 v7, 7, v0")
    a("v_bfe_u32 v8, v0, 4, 1")
    a("v_lshlrev_b32 v8, 2, v8")
    a("v_xor_b32 v4, v7, v8")
    a(f"v_lshl_add_u32 v7, v4, 4, s{S.T2}")
    a("v_add_u32 v3, v6, v7")
    a(f"s_lshl_b32 s{S.T4}, s{S.WAVE}, 12")
    a(f"s_mov_b32 m0, s{S.T4}")
    def w_dma():
        a(f"s_bitcmp1_b32 s{S.WAVE}, 0")
        a("s_waitcnt lgkmcnt(0)")
        a(f"s_cselect_b32 s{S.PWG}, s{S.PWU}, s{S.PWG}")
        a(f"s_cselect_b32 s{S.PWG+1}, s{S.PWU+1}, s{S.PWG+1}")
        if o.fdelay:
            a(f"s_sleep {o.fdelay}")
        for b in range(4):
            if b:
                a(f"s_add_u32 m0, s{S.T4}, {1024*b}")
                a(f"v_add_u32 v3, {8*3584}, v3")
            if o.wthr and b >= o.wthr:
                a(f"s_waitcnt vmcnt({o.wthr - 1})")
            a(f"global_load_lds_dwordx4 v3, s[{S.PWG}:{S.PWG+1}]{o.wpol}")
        ws_setup()
        stamp(1)

    if not o.flate:
        w_dma()
    a("v_bfe_u32 v6, v0, 2, 2")
    a("v_and_b32 v7, 3, v0")
    a("v_lshlrev_b32 v8, 3, v7")
    a("v_lshl_add_u32 v8, v2, 5, v8")
    a("v_and_b32 v9, 2, v6")
    a("v_lshlrev_b32 v9, 5, v9")
    a("v_xor_b32 v9, v9, v8")
    a("v_lshl_add_u32 v9, v6, 7, v9")
    a(f"v_add_u32 v9, s{S.T4}, v9")
    a(f"s_lshl_b32 s{S.T5}, s{S.WAVE}, 8")
    a("v_lshlrev_b32 v11, 2, v0")
    a(f"v_add_u32 v11, {L_RED}, v11")
    a(f"v_add_u32 v12, s{S.T5}, v11")
    a(f"s_lshl1_add_u32 s{S.T1}, s{S.L1}, s{S.T1}")
    a(f"s_lshl_b32 s{S.T2}, s{S.T1}, 15")
    a(f"s_and_b32 s{S.T3}, s{S.WAVE}, 1")
    a(f"s_lshl1_add_u32 s{S.T3}, s{S.T0}, s{S.T3}")
    a(f"s_lshl_b32 s{S.T5}, s{S.T3}, 7")
    a(f"s_add_u32 s{S.T2}, s{S.T2}, s{S.T5}")
    a("v_lshrrev_b32 v6, 3, v0")
    a(f"v_lshl_add_u32 v6, v6, 10, s{S.T2}")
    a("v_lshl_add_u32 v4, v4, 4, v6")
    a("v_lshrrev_b32 v6, 5, v0")
    a(f"v_mul_u32_u24 v13, {PZ}, v6")
    a("v_and_b32 v6, 31, v0")
    a("v_lshl_add_u32 v13, v6, 3, v13")
    a(f"s_mul_i32 s{S.T2}, s{S.T3}, {2*PZ}")
    a(f"s_lshl_b32 s{S.T1}, s{S.T1}, 8")
    a(f"s_add_u32 s{S.T2}, s{S.T2}, s{S.T1}")
    a(f"s_add_u32 s{S.T2}, s{S.T2}, {WS_PART}")
    a(f"s_lshl_b32 s{S.L0}, s{S.L0}, 6")
    a(f"s_lshl_b32 s{S.L1}, s{S.L1}, 12")
    a(f"s_add_u32 s{S.PO}, s{S.L1}, {WS_XCH}")
    a(f"s_add_u32 s{S.POL}, s{S.PO}, {(o.xc-1)*XCHC}")
    a(f"s_lshl_b32 s{S.T1}, s{S.T0}, 10")
    a(f"s_add_u32 s{S.L1}, s{S.PO}, s{S.T1}")
    a(f"v_mov_b32 v14, {L_FKEY}")
    a(f"s_lshr_b32 s{S.T1}, s{S.WAVE}, 1")
    a(f"s_lshl_b32 s{S.T1}, s{S.T1}, 9")
    a(f"v_lshl_add_u32 v15, v6, 4, s{S.T1}")
    a("v_lshrrev_b32 v6, 5, v0")
    a("v_lshl_add_u32 v15, v6, 10, v15")
    a(f"s_mov_b32 s{S.PO0}, s{S.PO}")
    a(f"s_mov_b32 s{S.L10}, s{S.L1}")
    a(f"s_mov_b32 s{S.T20}, s{S.T2}")
    a(f"s_mov_b32 s{S.FIN}, 0")

    if o.flate:
        w_dma()

    def wd_dma():
        l = a.L("nowd")
        a(f"s_cmp_ge_u32 s{S.WAVE}, 4")
        a(f"s_cbranch_scc1 {l}")
        for b in range(4):
            a(f"s_add_u32 m0, s{S.T4}, {L_WD + 1024*b}")
            if b:
                a("v_add_u32 v4, 0x2000, v4")
            else:
                a.nop(1)
            a(f"global_load_lds_dwordx4 v4, s[{S.PWD}:{S.PWD+1}]")
        a.label(l)

    if o.wdpos == 0:
        wd_dma()
    a("s_waitcnt vmcnt(0)")
    stamp(2)
    if o.fw0:
        a("s_barrier")
    if o.wdpos == 1:
        wd_dma()
    if o.xpre:
        for i in range(2):
            a(f"buffer_load_dwordx4 {V(64+4*i,4)}, v15, {R4(S.RWS)}, s{S.PO} offen offset:{2048*i} sc1")
    for k in range(8):
        a(f"ds_read_b64_tr_b16 {V(WG_+2*k,2)}, v9 offset:{L_W + k*512}")
    if o.ftouch:
        touch("L_tf", o.ftouch, 0, 8)
    a("s_waitcnt lgkmcnt(0)")
    a("s_barrier")
    a.label("L_tf_start")
    a("ds_read_b64 v[26:27], v14")
    a("s_waitcnt lgkmcnt(0)")
    a(f"v_readfirstlane_b32 s{S.FKEY}, v26")
    a.label("L_redo")
    a(f"s_andn2_b32 s{S.T0}, 2047, s{S.FKEY}")
    a(f"s_lshl_b32 s{S.T1}, s{S.T0}, 10")
    a(f"s_add_u32 s{S.T1}, s{S.T1}, s{S.L0}")
    a(f"s_load_dwordx16 s[{S.XS}:{S.XS+15}], {PXS}, s{S.T1}")
    stamp(5)
    if o.wdpos == 3:
        a(f"s_cmp_ge_u32 s{S.WAVE}, 4")
        a("s_cbranch_scc1 L_nowd3")
        for b in range(4):
            a(f"v_add_u32 v6, {0x2000*b}, v4")
            a(f"global_load_dwordx4 {V(80+4*b,4)}, v6, s[{S.PWD}:{S.PWD+1}]")
        a.label("L_nowd3")
    a(f"v_xor_b32 v{VTAG}, s{S.T0}, v27")
    a(f"v_xor_b32 v29, s{S.T0}, v27")
    for r in (16, 17, 24, 25):
        a(f"v_mov_b32 v{r}, 0")
    a(f"s_mov_b32 s{S.PO}, s{S.PO0}")
    a(f"s_mov_b32 s{S.L1}, s{S.L10}")
    a(f"s_mov_b32 s{S.T2}, s{S.T20}")
    a(f"s_mov_b32 s{S.KM}, 0")
    a("s_waitcnt lgkmcnt(0)")
    for i in range(16):
        a(f"v_dot2c_f32_bf16 v{16+(i&1)}, s{S.XS+i}, v{WG_+i}")
    stamp(6)
    a.nop(3)
    a("v_add_f32 v16, v16, v17")
    a("ds_write_b32 v12, v16")
    a("s_waitcnt lgkmcnt(0)")
    a("s_barrier")
    a(f"s_lshl_b32 s{S.T0}, s{S.WAVE}, 4")
    a(f"s_lshl_b64 s[{S.EX}:{S.EX+1}], 0xffff, s{S.T0}")
    for i, (p, q) in enumerate(((0, 2), (4, 6), (1, 3), (5, 7))):
        a(f"ds_read2st64_b32 v[{16+2*i}:{17+2*i}], v11 offset0:{p} offset1:{q}")
    a("s_waitcnt lgkmcnt(2)")
    a("v_add_f32 v16, v16, v17")
    a("v_add_f32 v18, v18, v19")
    a("s_waitcnt lgkmcnt(0)")
    a("v_add_f32 v20, v20, v21")
    a("v_add_f32 v22, v22, v23")
    a("v_add_f32 v28, v16, v18")
    a(f"s_mov_b64 exec, s[{S.EX}:{S.EX+1}]")
    a("v_add_f32 v30, v20, v22")
    a(f"s_cmp_ge_u32 s{S.WAVE}, 4")
    a("s_cbranch_scc1 L_f5")
    a(f"buffer_store_dwordx4 v[28:31], v5, {R4(S.RWS)}, s{S.L1} offen{'' if o.xl2 else ' sc1'}")
    a("s_mov_b64 exec, -1")
    stamp(7)
    a("s_waitcnt vmcnt(1)")
    if o.wdpos == 3:
        a(f"v_add_u32 v6, s{S.T4}, v5")
        for b in range(4):
            a(f"ds_write_b128 v6, {V(80+4*b,4)} offset:{L_WD + 1024*b}")
        a("s_waitcnt lgkmcnt(0)")
    for k in range(8):
        a(f"ds_read_b64_tr_b16 {V(WD_+2*k,2)}, v9 offset:{L_WD + k*512}")
    if o.xsleep0:
        a(f"s_sleep {o.xsleep0}")
    stamp(8)
    a.label("L_fx")
    for i in range(2):
        a(f"buffer_load_dwordx4 {V(64+4*i,4)}, v15, {R4(S.RWS)}, s{S.PO} offen offset:{2048*i} sc1")
    if o.xl2:
        a(f"s_add_u32 s{S.KM}, s{S.KM}, 1")
        a(f"s_cmp_ge_u32 s{S.KM}, {o.xl2}")
        a(f"s_cselect_b32 s{S.T0}, {XCHC}, 0")
        a(f"s_add_u32 s{S.PO}, s{S.PO}, s{S.T0}")
    else:
        a(f"s_add_u32 s{S.PO}, s{S.PO}, {XCHC}")
    a(f"s_min_u32 s{S.PO}, s{S.PO}, s{S.POL}")
    if o.stamps:
        a(f"s_add_u32 s{S.RC}, s{S.RC}, 1")
    spin()
    a("s_cbranch_scc1 L_fx_ok")
    a("s_waitcnt vmcnt(1)")
    a(f"v_bitop3_b32 v20, v65, v67, v{VTAG} bitop3:0x7e")
    a("s_waitcnt vmcnt(0)")
    a("v_add_f32 v16, v64, v68")
    a("v_add_f32 v18, v66, v70")
    a(f"v_bitop3_b32 v21, v69, v71, v{VTAG} bitop3:0x7e")
    a("v_or_b32 v20, v20, v21")
    a("v_cmp_ne_u32 vcc, 0, v20")
    a("v_permlane32_swap_b32 v16, v18")
    a("s_cbranch_vccnz L_fxr")
    a.label("L_fx_ok")
    stamp(9)
    a("v_add_f32 v16, v16, v18")
    rnd(16, 16)
    a("v_mov_b32 v18, v16")
    sigmoid(17, 16)
    a("v_permlane32_swap_b32 v16, v18")
    a("v_mul_f32 v17, v17, v16")
    rnd(17, 17)
    a("v_mul_f32 v17, v17, v18")
    a.nop(2)
    a(f"v_mov_b32_dpp v18, v17 quad_perm:[1,0,3,2] {DPPM}")
    a("v_cvt_pk_bf16_f32 v17, v17, v18")
    a.nop(1)
    for i in range(16):
        a(f"v_readlane_b32 s{S.XS+i}, v17, {2*i}")
    a("s_waitcnt lgkmcnt(0)")
    for i in range(16):
        a(f"v_dot2c_f32_bf16 v{24+(i&1)}, s{S.XS+i}, v{WD_+i}")
    a.nop(3)
    a("v_add_f32 v30, v24, v25")
    for c in range(o.pc):
        if c:
            a(f"s_add_u32 s{S.T2}, s{S.T2}, {PARTC}")
        a(f"buffer_store_dwordx2 v[30:31], v13, {R4(S.RWS)}, s{S.T2} offen sc1")
    stamp(10)
    a.label("L_fend")
    a(f"s_cmp_lg_u32 s{S.FIN}, 0")
    a("s_cbranch_scc1 L_fexit")
    a("s_barrier")
    a("ds_read_b32 v26, v14 offset:8")
    a(f"s_mov_b32 s{S.FIN}, 1")
    a("s_waitcnt lgkmcnt(0)")
    a(f"v_readfirstlane_b32 s{S.T0}, v26")
    a(f"s_cmp_eq_u32 s{S.T0}, s{S.FKEY}")
    a(f"s_mov_b32 s{S.FKEY}, s{S.T0}")
    if o.stamps:
        a(f"s_cselect_b32 s{S.T1}, 0, 64")
        a(f"s_add_u32 s{S.RC}, s{S.RC}, s{S.T1}")
        a(f"s_cmp_eq_u32 s{S.T1}, 0")
    a("s_cbranch_scc0 L_redo")
    a.label("L_fexit")
    endprog()
    a.label("L_f5")
    for c in range(1, o.xc):
        a(f"s_add_u32 s{S.L1}, s{S.L1}, {XCHC}")
        a(f"buffer_store_dwordx4 v[28:31], v5, {R4(S.RWS)}, s{S.L1} offen sc1")
    a("s_mov_b64 exec, -1")
    a("s_branch L_fend")
    a.label("L_fxr")
    a("ds_read_b32 v26, v14 offset:8")
    a("s_waitcnt lgkmcnt(0)")
    a(f"v_readfirstlane_b32 s{S.T0}, v26")
    a(f"s_cmp_eq_u32 s{S.T0}, 0")
    a("s_cbranch_scc1 L_fx")
    a(f"s_cmp_eq_u32 s{S.T0}, s{S.FKEY}")
    a("s_cbranch_scc1 L_fx")
    a("s_branch L_fend")

    a.label("L_fh")
    a("s_waitcnt lgkmcnt(0)")
    if o.fesleep:
        a(f"s_sleep {o.fesleep}")
    tag_load()
    ws_setup()
    a(f"v_mov_b32 v14, {L_FKEY}")
    a("v_mov_b32 v6, 0")
    a("ds_write_b32 v14, v6 offset:8")
    if o.spec:
        poll_setup(WS_KEY + 1024 * (RF * CF + RZ * CZ + R2 * C2), 8, 1)
        a(f"s_sleep {o.spec}")
        a("s_waitcnt vmcnt(0)")
        tag_make()
        stamp(1)
        a(f"buffer_load_dwordx4 v[20:23], v5, {R4(S.RWS)}, s{S.PO} offen sc1")
        poll_setup(WS_KEY, RF, CF)
        a("s_waitcnt vmcnt(0)")
        stamp(2)
        a(f"v_cmp_ne_u32 vcc, v{VTAG}, v21")
        a(f"v_cmp_ne_u32 s[{S.EX}:{S.EX+1}], v{VTAG}, v23")
        a("s_mov_b64 exec, vcc")
        a("v_mov_b32 v20, 0")
        a(f"s_mov_b64 exec, s[{S.EX}:{S.EX+1}]")
        a("v_mov_b32 v22, 0")
        a("s_mov_b64 exec, -1")
        a(f"s_or_b64 s[{S.EY}:{S.EY+1}], vcc, s[{S.EX}:{S.EX+1}]")
        wave_max_key(20)
        lds_put(L_FKEY, 20, tag=True)
        a("s_barrier")
        a(f"s_cmp_eq_u64 s[{S.EY}:{S.EY+1}], 0")
        a("s_cbranch_scc1 L_fh2")
        if o.fsleep0:
            a(f"s_sleep {o.fsleep0}")
        stamp(3)
        poll_granules(5, 20, sleep=o.fsleep)
        stamp(4)
        wave_max_key(20)
        a.label("L_fh2")
        lds_put(L_FKEY + 8, 20)
    else:
        poll_setup(WS_KEY, RF, CF)
        if o.fsleep0:
            a(f"s_sleep {o.fsleep0}")
        a("s_waitcnt vmcnt(0)")
        tag_make()
        stamp(3)
        poll_granules(5, 20, sleep=o.fsleep)
        stamp(4)
        wave_max_key(20)
        lds_put(L_FKEY, 20, tag=True)
        a("s_barrier")
        lds_put(L_FKEY + 8, 20)
    a("s_barrier")
    endprog()
    a.label("L_end")
    a("s_endpgm")
    return name


def main():
    ap = argparse.ArgumentParser()
    ap.add_argument("-o", required=True)
    for k, d in dict(stamps=0, pc=1, xc=2, zsleep=8, zsleep0=24, psleep=0, psleep0=22, rsleep=3, ackwait=1, hipre=0, tlate=1,
                     mode=0, k2ack=1, k2sleep0=6, zk2sleep0=0, k2sleep=5, fbar=0, cpf=2, probe=-1, wsoff=0, flate=1, b1a=1, skew=0, gate=1, lds=0, nsgpr=102, prio=1, stag=0, spec=0, b0=2, wthr=0, xpre=0, atouch=10, ftouch=8, xl2=5, npre=3, gfirst=0, isleep0=0, zisleep0=5, b3=1, ztouch=8, zstep=128, touch=0, wdpos=1, wpf=2, fesleep=0, fw0=0, xack=0, fdelay=0, xsleep0=3, fsleep0=37, fsleep=4, spin=17).items():
        ap.add_argument("--" + k, type=int, default=d)
    for k in ("wpol", "outpol", "zpol", "only"):
        ap.add_argument("--" + k, default="")
    ap.add_argument("--mf", default="8,2")
    ap.add_argument("--mz", default="1,3")
    ap.add_argument("--m2", default="8,2")
    ap.add_argument("--hold", default="")
    ap.add_argument("--ev", default="")
    o = ap.parse_args()
    if o.hold:
        o.hold = o.hold.split(":")
    for k in ("mf", "mz", "m2"):
        setattr(o, k, [int(v) for v in getattr(o, k).split(",")])
    for k in ("wpol", "outpol", "zpol"):
        setattr(o, k, (" " + getattr(o, k)) if getattr(o, k) else "")
    a = Asm()
    name = gen(a, o)
    if o.touch:
        insert_stubs(a, [("L_ta_start", "L_ta_end", "L_ta", "L_taback", 9)], step=o.touch)
    reg = []
    if o.atouch:
        reg.append(("L_zjoin", "L_tb_end", "L_tb", "L_tbback", o.atouch))
    if o.ztouch:
        reg.append(("L_tz_start", "L_zend", "L_tz", "L_tzback", o.ztouch))
    if o.ftouch:
        reg.append(("L_tf_start", "L_fend", "L_tf", "L_tfback", o.ftouch))
    if reg:
        insert_stubs(a, reg, step=o.zstep)
    finish(a, name, NVGPR, o.nsgpr, NWG, 576, o.lds or LDS_BYTES, o.o)


main()
```

```python
import argparse
from lib import *

NA, NF, NZ = 128, 112, 16
NWG = NA + NF + NZ
WS_E = 0
WS_ALIVE = 4096
WS_KEY = 64 << 10
WS_KEY2 = 128 << 10
WS_XCH = 192 << 10
XCHC = 28 * 4096
WS_PART = 704 << 10
PZ = 56 * 256
PARTC = NZ * PZ
WS_INT = 2 << 20
CS = 32768 + 256
WS_STAMP = 8 << 20
WS_BYTES = 16 << 20
L_TILE = 0
L_U2 = 16384
L_CT = L_U2
UB = 17 * 64
L_MISC = L_U2 + 16 * UB
L_KSL = L_MISC
L_GKEY = L_MISC + 64
L_ZC = L_MISC + 76
L_ZF = L_MISC + 72
L_EXP = L_MISC + 128
L_DUMP = L_MISC + 192
L_XG2 = L_DUMP + 4 * UB + 256
L_M2 = L_XG2 + 4096
L_WV = L_M2 + 4096
L_XT = L_WV + 2048
L_W = 0
L_WD = 32768
L_RED = L_WD + 16384
L_FKEY = L_RED + 2048
LDS_BYTES = 84 * 1024
MF = "v_mfma_f32_16x16x32_bf16"
LOG2E = 0x3fb8aa3b
DPPM = "row_mask:0xf bank_mask:0xf"
HIM = "0xffff0000"
NVGPR = 168


class S:
    WAVE = 3
    PX = 4
    T0, T1, T2, T3, T4, T5 = 6, 7, 8, 9, 10, 11
    EX = 12
    EY = 14
    PWR, PWG, PWU, PWD, PGW, POUT, PDBG, PWS = 16, 18, 20, 22, 24, 26, 28, 30
    L0, L1, SPT, PIE = 32, 33, 34, 35
    RWS, ROUT = 36, 40
    XS = 44
    GKEY, WSEL, WHICH, Z = 44, 45, 46, 47
    SI0, SI1, ID8, BLK = 48, 49, 50, 51
    IDX, ISZ, TC = 54, 55, 53
    SO = 44
    T1C, HH, TD, TM = 56, 57, 58, 59
    FJ, PO, POL, RC, KM, SPIN = 60, 61, 62, 63, 64, 65
    PO0, L10, T20, FKEY, FIN = 40, 41, 42, 43, 35
    ST = 68


def gen(a, o):
    global WS_KEY, WS_XCH, WS_PART, WS_INT, WS_ALIVE, WS_BYTES
    WS_KEY += o.wsoff << 20
    WS_XCH += o.wsoff << 20
    WS_PART += o.wsoff << 20
    WS_INT += o.wsoff << 20
    WS_ALIVE += o.wsoff << 20
    WS_BYTES = max(WS_BYTES, (o.wsoff + 8) << 20)
    name = NAME + "_kernel"
    kernel_head(a, name)
    VE, VTAG = 30, 31
    PXS = f"s[{S.PX}:{S.PX+1}]"

    def stamp(i):
        if o.stamps:
            a(f"s_memrealtime s[{S.ST+2*i}:{S.ST+2*i+1}]")

    def hold(cp):
        if o.hold and o.hold[0] == cp:
            l = a.L("hold")
            a.label(l)
            a("s_sleep 1")
            a("s_memrealtime s[100:101]")
            a("s_waitcnt lgkmcnt(0)")
            a("s_sub_u32 s100, s100, s66")
            a(f"s_cmp_lt_u32 s100, {o.hold[1]}")
            a(f"s_cbranch_scc1 {l}")

    def touch(pre, n, first, step, back=None, tail=None):
        a("s_mov_b64 exec, 0")
        a(f"s_sub_u32 s{S.TC}, s{S.WAVE}, {first + step}")
        a.label(f"{pre}back")
        a(f"s_add_u32 s{S.TC}, s{S.TC}, {step}")
        for k in range(n):
            a(f"s_cmp_eq_u32 s{S.TC}, {k}")
            a(f"s_cbranch_scc1 {pre}{k}")
        a("s_mov_b64 exec, -1")

    def endprog():
        if o.stamps:
            a("s_waitcnt lgkmcnt(0)")
            a(f"s_add_u32 s{S.ST+28}, s{S.RC}, s{S.ST+30}")
            for i in range(16):
                a(f"v_writelane_b32 v166, s{S.ST+2*i}, {i}")
            a("s_mov_b64 exec, 0xffff")
            a(f"s_lshl4_add_u32 s{S.T0}, s2, s{S.WAVE}")
            a(f"s_lshl_b32 s{S.T0}, s{S.T0}, 7")
            a(f"s_add_u32 s{S.T0}, s{S.T0}, {WS_STAMP}")
            a(f"v_lshl_add_u32 v165, v0, 3, s{S.T0}")
            a("v_mov_b32 v167, 0")
            a(f"global_store_dwordx2 v165, v[166:167], s[{S.PWS}:{S.PWS+1}]" + (" sc1" if o.ev else ""))
        a("s_endpgm")

    def spin():
        a(f"s_add_u32 s{S.SPIN}, s{S.SPIN}, 1")
        a(f"s_lshr_b32 s{S.SPT}, s{S.SPIN}, {o.spin}")

    def poll_setup(base, R, C):
        a(f"s_and_b32 s{S.PO}, s2, {R-1}")
        a(f"s_mul_i32 s{S.PO}, s{S.PO}, {1024*C}")
        a(f"s_add_u32 s{S.PO}, s{S.PO}, {base}")
        a(f"s_add_u32 s{S.POL}, s{S.PO}, {1024*(C-1)}")

    def set_exec(n):
        if n >= 64:
            a("s_mov_b64 exec, -1")
        elif n <= 31:
            a(f"s_mov_b64 exec, {(1 << n) - 1:#x}")
        else:
            a("s_mov_b32 exec_lo, -1")
            a(f"s_mov_b32 exec_hi, {(1 << (n - 32)) - 1:#x}")

    RS = 8 if o.spec else 0
    RF, CF = o.mf
    RZ, CZ = o.mz
    R2, C2 = o.m2
    assert RF * CF + RZ * CZ + R2 * C2 + RS <= 64

    def poll_granules(vaddr, vd, sleep=0, step=1024):
        l = a.L("poll")
        if sleep:
            a(f"s_branch {l}_1")
        a.label(l)
        if sleep:
            a(f"s_sleep {sleep}")
            a.label(f"{l}_1")
        a(f"buffer_load_dwordx4 {V(vd,4)}, v{vaddr}, {R4(S.RWS)}, s{S.PO} offen sc1")
        a(f"s_add_u32 s{S.PO}, s{S.PO}, {step}")
        a(f"s_min_u32 s{S.PO}, s{S.PO}, s{S.POL}")
        if o.stamps:
            a(f"s_add_u32 s{S.RC}, s{S.RC}, 1")
        spin()
        a("s_waitcnt vmcnt(0)")
        a(f"s_cbranch_scc1 {l}_ok")
        a(f"v_cmp_ne_u32 vcc, v{VTAG}, v{vd+1}")
        a(f"v_cmp_ne_u32 s[{S.EX}:{S.EX+1}], v{VTAG}, v{vd+3}")
        a(f"s_or_b64 vcc, vcc, s[{S.EX}:{S.EX+1}]")
        a(f"s_cbranch_vccnz {l}")
        a.label(f"{l}_ok")

    def wave_max_key(vd):
        a(f"v_max_u32 v{vd}, v{vd}, v{vd+2}")
        for r in ("row_ror:8", "row_ror:4", "row_ror:2", "row_ror:1"):
            a.nop(2)
            a(f"v_max_u32_dpp v{vd}, v{vd}, v{vd} {r} {DPPM}")
        a.nop(2)
        a(f"v_max_u32_dpp v{vd}, v{vd}, v{vd} row_bcast:15 row_mask:0xa bank_mask:0xf")
        a.nop(2)
        a(f"v_max_u32_dpp v{vd}, v{vd}, v{vd} row_bcast:31 row_mask:0xc bank_mask:0xf")

    def lds_put(addr, v, tag=False):
        a(f"v_mov_b32 v9, {addr}")
        a("s_mov_b32 exec_lo, 0")
        a("s_brev_b32 exec_hi, 1")
        if tag:
            a(f"ds_write2_b32 v9, v{v}, v{VTAG} offset1:1")
        else:
            a(f"ds_write_b32 v9, v{v}")
        a("s_mov_b64 exec, -1")
        a("s_waitcnt lgkmcnt(0)")

    def sigmoid(d, s):
        a(f"v_mul_f32 v{d}, {LOG2E | 0x80000000:#x}, v{s}")
        a(f"v_exp_f32 v{d}, v{d}")
        a.nop(1)
        a(f"v_add_f32 v{d}, 1.0, v{d}")
        a(f"v_rcp_f32 v{d}, v{d}")
        a.nop(1)

    def rnd(d, s):
        a(f"v_cvt_pk_bf16_f32 v{d}, v{s}, v{s}")
        a(f"v_and_b32 v{d}, {HIM}, v{d}")

    def ws_setup():
        a.srd(S.RWS, S.PWS, WS_BYTES)
        a(f"s_mov_b32 s{S.SPIN}, 0")

    def tag_load():
        a(f"v_mov_b32 v{VTAG}, 0")
        a(f"global_load_dword v{VE}, v{VTAG}, s[{S.PWS}:{S.PWS+1}]")
        a(f"s_mov_b32 s{S.KM}, 0x9E3779B1")

    def tag_make():
        a(f"v_mul_lo_u32 v{VTAG}, v{VE}, s{S.KM}")
        a(f"v_add_u32 v{VTAG}, 0x7F4A7C15, v{VTAG}")

    a(f"s_load_dwordx2 s[{S.PX}:{S.PX+1}], s[0:1], {KA_X}")
    a(f"s_load_dwordx16 s[16:31], s[0:1], {KA_WR}")
    if o.stamps:
        for i in range(1, 16):
            a(f"s_mov_b32 s{S.ST+2*i}, 0")
        a(f"s_mov_b32 s{S.RC}, 0")
    stamp(0)
    if o.hold or o.probe >= 0:
        a("s_memrealtime s[66:67]")
    if o.skew:
        a("s_and_b32 s6, s2, 7")
        a("s_cmp_lg_u32 s6, 5")
        a("s_cbranch_scc1 L_noskew")
        a(f"s_sleep {o.skew}")
        a.label("L_noskew")
    a("v_lshrrev_b32 v1, 6, v0")
    a("v_and_b32 v0, 63, v0")
    a(f"v_readfirstlane_b32 s{S.WAVE}, v1")
    a("v_and_b32 v1, 15, v0")
    a("v_lshrrev_b32 v2, 4, v0")
    a(f"s_and_b32 s{S.T0}, s2, 7")
    a(f"s_sub_u32 s{S.WAVE}, s{S.WAVE}, 1")
    a(f"s_min_u32 s{S.WAVE}, s{S.WAVE}, 8")
    a(f"s_lshr_b32 s{S.T1}, s2, 3")
    a(f"s_cmp_ge_u32 s2, {NA}")
    a("s_cbranch_scc1 L_notA")
    if o.only == "F":
        a("s_endpgm")

    VROW, VG16, VSGN, VTR, VST = 3, 5, 8, 10, 11
    VLD, VUW, VUX, VUR0, VUR1 = 10, 11, 28, 29, 30
    XR, WR, GW, CO = 16, 24, 24, 24
    CM, AOP, ACC = 32, 96, 112
    LD, DA0, DA1, TP, X16, PK = 32, 64, 32, 80, 96, 48
    M1, GA, XG = 100, 148, 152
    Cc, Ss = 64, 68
    UO, PQ, M2 = 32, 48, 64

    def rows_setup(wreg):
        a(f"s_lshl3_add_u32 s{S.T5}, s{S.HH}, s{wreg}")
        a(f"s_lshl_b32 s{S.T5}, s{S.T5}, 7")
        a(f"s_add_u32 s{S.TD}, s{S.T5}, s{S.T1C}")
        a(f"s_sub_u32 s{S.TM}, 2048, s{S.TD}")
        a(f"s_cmp_eq_u32 s{S.TD}, 0")
        a(f"s_cselect_b32 s{S.TM}, 1024, s{S.TM}")
        a(f"s_lshl_b32 s{S.T4}, s{S.TD}, 10")
        a(f"s_lshl_b32 s{S.T5}, s{S.TM}, 10")
        a(f"v_add_u32 v6, s{S.T4}, v{VG16}")
        a(f"v_add_u32 v7, s{S.T5}, v{VG16}")

    def vrow_setup():
        a("v_and_b32 v6, 1, v2")
        a("v_lshlrev_b32 v6, 5, v6")
        a("v_lshl_add_u32 v6, v1, 6, v6")
        a("v_lshrrev_b32 v7, 1, v2")
        a(f"v_lshl_add_u32 v{VROW}, v7, 4, v6")

    def rows_load():
        a(f"global_load_dwordx4 {V(XR,4)}, v6, {PXS}")
        a(f"global_load_dwordx4 {V(XR+4,4)}, v7, {PXS}")

    def sgn_setup():
        a(f"v_lshlrev_b32 v{VSGN}, 31, v1")
        a(f"v_lshrrev_b32 v9, 16, v{VSGN}")
        a(f"v_or_b32 v{VSGN}, v{VSGN}, v9")

    def sgn_setup2():
        a(f"v_lshlrev_b32 v{VSGN}, 31, v1")
        a(f"v_lshrrev_b32 v14, 16, v{VSGN}")
        a(f"v_or_b32 v{VSGN}, v{VSGN}, v14")

    def tile_ids():
        a(f"s_bitcmp1_b32 s{S.T1}, 3")
        a(f"s_cselect_b32 s{S.T2}, s{S.T3}, s{S.T2}")
        a(f"s_and_b32 s{S.T3}, s{S.T1}, 7")
        a(f"s_lshl3_add_u32 s{S.BLK}, s{S.T2}, s{S.T3}")
        a(f"s_lshl_b32 s{S.PIE}, s{S.T2}, 5")
        a(f"s_add_u32 s{S.PIE}, s{S.PIE}, s{S.T3}")
        a(f"s_lshl_b32 s{S.PIE}, s{S.PIE}, 6")

    def vst_setup():
        a(f"v_mul_u32_u24 v{VST}, {CS}, v1")
        a(f"v_lshl_add_u32 v{VST}, v2, 4, v{VST}")

    def const_d2():
        R = 40
        a("v_lshlrev_b32 v6, 2, v2")
        a("v_cvt_f32_u32 v7, v1")
        a("v_cvt_f32_u32 v6, v6")
        a("v_mul_f32 v7, 0x3d800000, v7")
        for hf in range(2):
            if hf:
                a("v_add_f32 v7, 0x3d800000, v7")
            a("v_mul_f32 v9, v6, v7")
            for jj in range(4):
                a(f"v_cos_f32 v{Cc+jj}, v9")
                a(f"v_sin_f32 v{Ss+jj}, v9")
                if jj < 3:
                    a("v_add_f32 v9, v9, v7")
            a.nop(1)
            for jj in range(4):
                if hf == 0:
                    a(f"v_cvt_pk_bf16_f32 v{R+jj}, v{Cc+jj}, v{Ss+jj}")
                    a(f"v_cvt_pk_bf16_f32 v{R+8+jj}, -v{Ss+jj}, v{Cc+jj}")
                else:
                    a(f"v_cvt_pk_bf16_f32 v{R+4+jj}, v{Cc+jj}, -v{Ss+jj}")
                    a(f"v_cvt_pk_bf16_f32 v{R+12+jj}, -v{Ss+jj}, -v{Cc+jj}")
        for k in range(4):
            a(f"ds_write_b128 v{VG16}, {V(R+4*k,4)} offset:{L_M2 + 1024*k}")

    if o.touch:
        a("s_mov_b64 exec, 0")
        for k in range(9):
            a(f"s_cmp_eq_u32 s{S.WAVE}, {(k + 8) % 9}")
            a(f"s_cbranch_scc1 L_ta{k}")
        a.label("L_taback")
        a("s_mov_b64 exec, -1")
        a.label("L_ta_start")
    a(f"s_add_u32 s{S.T2}, s{S.T0}, 1")
    a(f"s_sub_u32 s{S.T3}, 15, s{S.T0}")
    a(f"s_cmp_eq_u32 s{S.WAVE}, 8")
    a("s_cbranch_scc1 L_ah")
    a(f"s_and_b32 s{S.HH}, s{S.T1}, 1")
    a(f"s_bitcmp1_b32 s{S.T1}, 1")
    a(f"s_cselect_b32 s{S.T4}, s{S.T3}, s{S.T2}")
    a(f"s_lshr_b32 s{S.T5}, s{S.T1}, 2")
    a(f"s_lshl4_add_u32 s{S.T1C}, s{S.T5}, s{S.T4}")
    a(f"v_lshlrev_b32 v{VG16}, 4, v0")
    a(f"v_mov_b32 v{VROW}, 0")
    a(f"s_cmp_lg_u32 s{S.T0}, 7")
    a("s_cbranch_scc1 L_k7")
    a(f"s_lshr_b32 s{S.T5}, s{S.T1}, 1")
    a(f"s_lshl3_add_u32 s{S.T1C}, s{S.T5}, 8")
    a(f"s_mov_b32 s{S.T2}, 0")
    a(f"s_cmp_eq_u32 s2, 127")
    a(f"s_cselect_b32 s{S.T1C}, 0, s{S.T1C}")
    a(f"s_cselect_b32 s{S.HH}, 0, s{S.HH}")
    a.label("L_k7")
    rows_setup(S.WAVE)
    a("s_waitcnt lgkmcnt(0)")
    rows_load()
    stamp(1)
    if o.b0 == 2:
        a("s_barrier")
    tile_ids()

    def tile_dma():
        a(f"s_lshl_b32 s{S.T4}, s{S.WAVE}, 11")
        a(f"s_add_u32 s{S.T5}, s{S.T4}, s{S.BLK}")
        a(f"s_lshl_b32 s{S.T5}, s{S.T5}, 7")
        a(f"s_mov_b32 m0, s{S.T4}")
        a("v_and_b32 v9, 7, v0")
        a("v_bfe_u32 v13, v0, 4, 1")
        a("v_xor_b32 v9, v9, v13")
        a("v_lshrrev_b32 v13, 3, v0")
        a(f"v_lshl_add_u32 v9, v9, 4, s{S.T5}")
        a("v_lshl_add_u32 v13, v13, 14, v9")
        a(f"global_load_lds_dwordx4 v13, {PXS}")
        a(f"s_add_u32 m0, s{S.T4}, 1024")
        a("v_add_u32 v13, 0x20000, v13")
        a(f"global_load_lds_dwordx4 v13, {PXS}")
        stamp(2)

    if not o.tlate:
        tile_dma()
    C1, S1, K = AOP, AOP + 4, AOP + 8
    a(f"s_lshr_b32 s{S.T0}, s{S.WAVE}, 2")
    a(f"s_and_b32 s{S.T1}, s{S.WAVE}, 1")
    a(f"s_bfe_u32 s{S.T2}, s{S.WAVE}, 0x10001")
    a(f"v_lshl_add_u32 v6, s{S.T0}, 4, v1")
    a(f"s_lshl3_add_u32 s{S.T3}, s{S.T2}, s{S.T1}")
    a(f"s_lshl_b32 s{S.T3}, s{S.T3}, 2")
    a("v_cvt_f32_u32 v6, v6")
    a(f"v_lshl_add_u32 v7, v2, 3, s{S.T3}")
    a("v_mul_f32 v6, 0x3c000000, v6")
    a("v_cvt_f32_u32 v7, v7")
    a("v_mul_f32 v7, v7, v6")
    for j in range(4):
        a(f"v_cos_f32 v{C1+j}, v7")
        a(f"v_sin_f32 v{S1+j}, v7")
        if j < 3:
            a("v_add_f32 v7, v7, v6")
    if o.tlate == 2:
        a(f"global_load_dwordx4 {V(WR,4)}, v{VG16}, s[{S.PWR}:{S.PWR+1}]")
        tile_dma()
    a(f"s_lshl_b32 s{S.T4}, s{S.T0}, 13")
    a(f"s_lshl_b32 s{S.T5}, s{S.T2}, 10")
    a(f"s_lshl3_add_u32 s{S.T5}, s{S.T1}, s{S.T5}")
    a(f"v_add_u32 v15, s{S.T4}, v{VG16}")
    a(f"v_add_u32 v9, s{S.T5}, v15")
    a(f"v_cvt_pk_bf16_f32 v{K+0}, v{C1}, v{C1+1}")
    a(f"v_cvt_pk_bf16_f32 v{K+1}, v{C1+2}, v{C1+3}")
    a(f"v_cvt_pk_bf16_f32 v{K+2}, -v{S1}, -v{S1+1}")
    a(f"v_cvt_pk_bf16_f32 v{K+3}, -v{S1+2}, -v{S1+3}")
    a("v_cmp_eq_f32 vcc, 0, v6")
    a(f"v_cvt_pk_bf16_f32 v{K+4}, v{C1}, -v{S1+1}")
    a(f"v_cvt_pk_bf16_f32 v{K+5}, -v{C1+2}, v{S1+3}")
    a(f"v_cvt_pk_bf16_f32 v{K+6}, -v{S1}, -v{C1+1}")
    a(f"v_cvt_pk_bf16_f32 v{K+7}, v{S1+2}, v{C1+3}")
    a(f"ds_write_b64 v9, {V(K,2)} offset:{L_CT}")
    a(f"ds_write_b64 v9, {V(K+4,2)} offset:{L_CT+4096}")
    a(f"ds_write_b64 v9, {V(K+6,2)} offset:{L_CT+6144}")
    a("s_mov_b64 exec, vcc")
    a(f"v_mov_b32 v{K+2}, 0xbf803f80")
    a(f"v_mov_b32 v{K+3}, 0xbf803f80")
    a("s_mov_b64 exec, -1")
    a(f"ds_write_b64 v9, {V(K+2,2)} offset:{L_CT+2048}")
    if o.tlate != 2:
        a(f"global_load_dwordx4 {V(WR,4)}, v{VG16}, s[{S.PWR}:{S.PWR+1}]")
    if o.tlate == 1:
        tile_dma()
    a("v_mov_b32 v12, 0")
    a("v_mov_b32 v13, 0")
    stamp(3)
    if o.b0 == 1:
        a("s_waitcnt lgkmcnt(0)")
        a("s_barrier")
        for k in range(2):
            for t in range(4):
                a(f"ds_read_b128 {V(CM+16*t+4*k,4)}, v15 offset:{L_CT + t*2048 + k*1024}")

    def dots(w, fill=()):
        fill = list(fill)

        def pad(n):
            while n and fill:
                a(fill.pop(0))
                n -= 1
            a.nop(n)

        for i in range(4):
            a(f"v_dot2c_f32_bf16 v12, v{XR+i}, v{w+i}")
            a(f"v_dot2c_f32_bf16 v13, v{XR+4+i}, v{w+i}")
        pad(3)
        a("v_permlane32_swap_b32 v12, v13")
        a("v_add_f32 v12, v12, v13")
        a("v_mov_b32 v13, v12")
        pad(2)
        a("v_permlane16_swap_b32 v12, v13")
        a("v_add_f32 v12, v12, v13")
        for r in (8, 4, 2, 1):
            pad(2)
            a(f"v_add_f32_dpp v12, v12, v12 row_ror:{r} {DPPM}")
        rnd(12, 12)
        for x in fill:
            a(x)

    a(f"s_waitcnt vmcnt({2 if o.tlate else 0})")
    stamp(4)
    dots(WR, [f"s_sub_u32 s{S.T4}, 0xffff, s{S.TD}", f"s_sub_u32 s{S.T5}, 0xffff, s{S.TM}", f"v_mov_b32 v4, s{S.T4}",
              f"v_writelane_b32 v4, s{S.T5}, 32", f"v_mov_b32 v9, {L_KSL}",
              f"v_lshlrev_b32 v{VSGN}, 31, v1", f"v_lshrrev_b32 v7, 16, v{VSGN}", f"v_or_b32 v{VSGN}, v{VSGN}, v7",
              "v_bfe_u32 v6, v0, 2, 2", "v_and_b32 v14, 3, v0", f"v_lshl_add_u32 v14, v14, 1, s{S.T2}",
              f"v_lshl_add_u32 v{VTR}, v2, 3, v6", "v_lshrrev_b32 v6, 1, v6", "v_xor_b32 v14, v14, v6"])
    a("v_ashrrev_i32 v7, 31, v12")
    a("v_or_b32 v7, 0x80000000, v7")
    a("v_xor_b32 v7, v7, v12")
    a(f"v_and_b32 v7, {HIM}, v7")
    a("v_or_b32 v7, v7, v4")
    a("s_mov_b32 exec_lo, 1")
    a("s_mov_b32 exec_hi, 1")
    a("ds_max_u32 v9, v7")
    a("s_mov_b64 exec, -1")
    if o.b1a:
        a("s_waitcnt lgkmcnt(0)")
        hold("K")
        a("s_barrier")
    if o.b0 == 2:
        for k in range(2):
            for t in range(4):
                a(f"ds_read_b128 {V(CM+16*t+4*k,4)}, v15 offset:{L_CT + t*2048 + k*1024}")
    a(f"s_lshl_b32 s{S.T1}, s{S.T1}, 3")
    a(f"v_lshl_add_u32 v14, v14, 4, s{S.T1}")
    a(f"v_lshl_add_u32 v{VTR}, v{VTR}, 7, v14")
    a("v_lshlrev_b32 v9, 4, v2")
    a("s_waitcnt vmcnt(0)" + ("" if o.b0 == 2 else " lgkmcnt(0)"))
    hold("B1")
    a("s_barrier")
    stamp(5)
    if o.b0 == 2:
        a("s_waitcnt lgkmcnt(5)")
    a(f"ds_read_b128 v[28:31], v9 offset:{L_EXP}")
    for k in range(4):
        for h in range(2):
            a(f"ds_read_b64_tr_b16 {V(AOP+4*k+2*h,2)}, v{VTR} offset:{L_TILE + k*4096 + h*512}")
        if k < 2 and not o.b0:
            for t in range(4):
                a(f"ds_read_b128 {V(CM+16*t+4*k,4)}, v15 offset:{L_CT + t*2048 + k*1024}")
        if k == 1 and not o.b0:
            a("s_waitcnt lgkmcnt(9)")
    a(f"global_load_dwordx4 {V(GW,4)}, v{VG16}, s[{S.PGW}:{S.PGW+1}]")
    xors = [f"v_xor_b32 v{CM+t*16+8+4*kp+r}, v{CM+t*16+4*kp+r}, v{VSGN}" for kp in range(2) for t in range(4) for r in range(4)]
    misc = [f"s_mul_i32 s{S.SO}, s{S.T0}, {16*CS}",
            f"s_add_u32 s{S.SO}, s{S.SO}, s{S.PIE}",
            f"s_and_b32 s{S.T4}, s{S.WAVE}, 3",
            f"s_lshl_b32 s{S.T4}, s{S.T4}, 9",
            f"s_add_u32 s{S.SO}, s{S.SO}, s{S.T4}",
            f"s_add_u32 s{S.SO}, s{S.SO}, {WS_INT}",
            f"s_mov_b32 s{S.RWS}, s{S.PWS}", f"s_mov_b32 s{S.RWS+1}, s{S.PWS+1}", f"s_mov_b32 s{S.RWS+2}, {WS_BYTES:#x}",
            f"s_mov_b32 s{S.RWS+3}, 0x20000",
            f"s_add_u32 s{S.SO+1}, s{S.SO}, {32*CS}", f"s_mov_b32 s{S.T5}, 0xfffefffe", f"s_mov_b32 s{S.T4}, 0x07060302",
            f"v_mul_u32_u24 v{VST}, {CS}, v1", f"v_lshl_add_u32 v{VST}, v2, 4, v{VST}",
            ]
    fill = xors + misc
    for k in range(4):
        for t in range(4):
            if o.b0:
                if t == 0:
                    a(f"s_waitcnt lgkmcnt({6-2*k})")
            elif k == 0:
                a(f"s_waitcnt lgkmcnt({13-t})")
            elif k == 1:
                a(f"s_waitcnt lgkmcnt({7-t})")
            elif t == 0:
                a(f"s_waitcnt lgkmcnt({2 if k == 2 else 0})")
            c = "0" if k == 0 else V(ACC + 4 * t, 4)
            a(f"{MF} {V(ACC+4*t,4)}, {V(AOP+4*k,4)}, {V(CM+16*t+4*k,4)}, {c}")
            n = 4 if k < 2 else 2
            if k < 3 or t < 3:
                for _ in range(n):
                    if fill:
                        x = fill.pop(0)
                        if x != "TAGWAIT":
                            a(x)
    for x in fill:
        a(x)
    a("v_mov_b32 v12, 0")
    a("v_mov_b32 v13, 0")
    for h in range(2):
        for i in range(8):
            a(f"v_add_u32 v{ACC+8*h+i}, 0x10000, v{ACC+8*h+i}")
        for i in range(4):
            a(f"v_perm_b32 v{AOP+4*h+i}, v{ACC+8*h+4+i}, v{ACC+8*h+i}, s{S.T4}")
        for i in range(4):
            a(f"v_and_or_b32 v{AOP+4*h+i}, v{AOP+4*h+i}, s{S.T5}, v{28+i}")
        a(f"buffer_store_dwordx4 {V(AOP+4*h,4)}, v{VST}, {R4(S.RWS)}, s{S.SO+h} offen sc1")
    a(f"s_mov_b32 s{S.SPIN}, 0")
    a(f"s_mov_b32 s{S.ISZ}, 0")
    stamp(7)
    if o.only == "P1":
        a("s_endpgm")
    a.label("L_ta_end")

    gwait = [2]

    def gates(full):
        if full:
            a(f"s_waitcnt vmcnt({gwait[0]})")
        dots(GW)
        if full:
            a(f"s_lshl_b32 s{S.T0}, s{S.WAVE}, 11")
            a(f"v_add_u32 v6, s{S.T0}, v{VG16}")
            a(f"ds_write_b128 v6, {V(XR,4)} offset:{L_XT}")
            a(f"ds_write_b128 v6, {V(XR+4,4)} offset:{L_XT+1024}")
            a(f"v_lshl_add_u32 v7, v1, 6, s{S.T0}")
            a("v_lshl_add_u32 v7, v2, 3, v7")
            a("s_waitcnt lgkmcnt(0)")
            for r in range(2):
                a(f"ds_read2_b64 {V(XR+4*r,4)}, v7 offset0:{0} offset1:{4}" if False else f"ds_read_b64 {V(XR+4*r,2)}, v7 offset:{L_XT+1024*r}")
                a(f"ds_read_b64 {V(XR+4*r+2,2)}, v7 offset:{L_XT+1024*r+32}")
            vrow_setup()
        sigmoid(13, 12)
        rnd(13, 13)
        a("v_sub_f32 v14, 1.0, v13")
        rnd(14, 14)
        a(f"v_readlane_b32 s{S.T0}, v13, 0")
        a(f"v_readlane_b32 s{S.T1}, v13, 32")
        a(f"v_readlane_b32 s{S.T2}, v14, 0")
        a(f"v_readlane_b32 s{S.T3}, v14, 32")
        a(f"s_xor_b32 s{S.T4}, s{S.T0}, 0x80000000")
        a(f"s_cmp_eq_u32 s{S.TD}, 0")
        a(f"s_cselect_b32 s{S.T4}, 0, s{S.T4}")
        a(f"s_cselect_b32 s{S.T5}, 0, s{S.T1}")
        if not full:
            return
        a(f"v_mov_b32 v{CO}, s{S.T0}")
        a(f"v_mov_b32 v{CO+1}, s{S.T4}")
        a(f"v_mov_b32 v{CO+2}, s{S.T5}")
        a(f"v_mov_b32 v{CO+3}, s{S.T1}")
        a(f"v_mov_b32 v13, s{S.T2}")
        a(f"v_mov_b32 v14, s{S.T3}")
        a("s_waitcnt lgkmcnt(0)")
        for r in range(2):
            for i in range(4):
                a(f"v_lshlrev_b32 v{XG+8*r+2*i}, 16, v{XR+4*r+i}")
                a(f"v_and_b32 v{XG+8*r+2*i+1}, {HIM}, v{XR+4*r+i}")
            for i in range(8):
                a(f"v_mul_f32 v{XG+8*r+i}, v{13+r}, v{XG+8*r+i}")

    def addr_ur(wreg):
        a(f"s_mul_i32 s{S.T1}, s{wreg}, {2*UB}")
        a("v_bfe_u32 v7, v1, 1, 2")
        a("v_xor_b32 v7, v7, v2")
        a(f"v_lshl_add_u32 v7, v7, 4, s{S.T1}")
        a(f"v_lshl_add_u32 v{VUR0}, v1, 6, v7")
        a("v_sub_u32 v6, 16, v1")
        a("v_bfe_u32 v7, v6, 1, 2")
        a("v_xor_b32 v7, v7, v2")
        a(f"v_lshl_add_u32 v7, v7, 4, s{S.T1}")
        a(f"v_lshl_add_u32 v{VUR1}, v6, 6, v7")

    def addr_p2():
        a("v_lshlrev_b32 v6, 4, v1")
        a(f"v_lshl_add_u32 v{VLD}, v2, 13, v6")
        a(f"v_mul_u32_u24 v6, {4*UB}, v2")
        a("v_bfe_u32 v7, v1, 1, 2")
        a(f"v_xor_b32 v7, s{S.WAVE}, v7")
        a("v_lshl_add_u32 v7, v7, 4, v6")
        a(f"v_lshl_add_u32 v{VUW}, v1, 6, v7")
        a(f"s_lshl4_add_u32 s{S.T1}, s{S.WAVE}, 1024")
        a(f"v_mov_b32 v9, {L_DUMP - L_U2}")
        a(f"v_lshl_add_u32 v{VUX}, v0, 1, v9")
        a(f"v_lshl_add_u32 v7, v1, 1, s{S.T1}")
        a("s_mov_b32 exec_lo, 0x00ff00ff")
        a("s_mov_b32 exec_hi, 0x00ff00ff")
        a(f"v_add_u32 v{VUX}, v7, v6")
        a("s_mov_b64 exec, -1")

    EXP = 96

    def exp_setup():
        a("v_and_b32 v6, 3, v1")
        a("v_lshlrev_b32 v6, 4, v6")
        a(f"ds_read_b128 {V(EXP,4)}, v6 offset:{L_EXP}")
        a("s_waitcnt lgkmcnt(0)")

    def exp_make():
        a("v_lshlrev_b32 v6, 1, v1")
        a(f"v_lshrrev_b32 v6, v6, v{VTAG}")
        a("v_lshlrev_b32 v7, 15, v6")
        a("v_and_b32 v6, 1, v6")
        a("v_and_b32 v7, 0x10000, v7")
        a("v_or_b32 v6, v6, v7")
        a("v_lshlrev_b32 v7, 2, v1")
        a(f"ds_write_b32 v7, v6 offset:{L_EXP}")
        a("s_waitcnt lgkmcnt(0)")

    def const_d1():
        a("v_cvt_f32_u32 v6, v1")
        a(f"s_lshl_b32 s{S.T0}, s{S.WAVE}, 2")
        a(f"v_lshl_add_u32 v7, v2, 6, s{S.T0}")
        a("v_mul_f32 v6, 0x3b000000, v6")
        a("v_cvt_f32_u32 v7, v7")
        a("v_mul_f32 v15, 0x41800000, v6")
        a("v_mul_f32 v7, v7, v6")
        for ib in range(4):
            if ib:
                a("v_add_f32 v7, v7, v6")
            for j in range(4):
                src = "v7" if j == 0 else "v9"
                a(f"v_cos_f32 v{Cc+j}, {src}")
                a(f"v_sin_f32 v{Ss+j}, {src}")
                if j < 3:
                    a(f"v_add_f32 v9, {src}, v15")
            b = M1 + 12 * ib
            a(f"v_mov_b32 v{b+8}, 0")
            for p in range(2):
                a(f"v_cvt_pk_bf16_f32 v{b+p}, v{Cc+2*p}, v{Cc+2*p+1}")
                a(f"v_cvt_pk_bf16_f32 v{b+4+p}, -v{Ss+2*p}, -v{Ss+2*p+1}")
            for p in range(2):
                a(f"v_xor_b32 v{b+2+p}, v{b+p}, v{VSGN}")
                a(f"v_xor_b32 v{b+6+p}, v{b+4+p}, v{VSGN}")
        a("v_lshrrev_b32 v6, 1, v1")
        a(f"v_add_u32 v7, s{S.T0}, v6")
        a("v_and_b32 v9, 1, v1")
        a("v_lshl_add_u32 v7, v9, 3, v7")
        a("v_cvt_f32_u32 v7, v7")
        a("v_mul_f32 v7, 0x3d000000, v7")
        a("v_cos_f32 v7, v7")
        for ib in range(4):
            m = 0x00030003 << (2 * ib)
            a(f"s_mov_b32 exec_lo, {m:#x}")
            a(f"s_mov_b32 exec_hi, {m:#x}")
            a(f"v_cvt_pk_bf16_f32 v{M1+12*ib+8}, v7, -v7")
        a("s_mov_b64 exec, -1")
        for ib in range(4):
            for p in range(1, 4):
                a(f"v_mov_b32 v{M1+12*ib+8+p}, v{M1+12*ib+8}")

    def const_ga():
        a("v_lshrrev_b32 v6, 1, v1")
        a(f"s_lshl_b32 s{S.T0}, s{S.HH}, 10")
        a(f"s_add_u32 s{S.T0}, s{S.T0}, s{S.T1C}")
        a(f"v_lshl_add_u32 v6, v6, 7, s{S.T0}")
        a("v_and_b32 v7, 1, v1")
        a("v_lshlrev_b32 v9, 9, v7")
        l0, ld = a.L("g0"), a.L("gd")
        a(f"s_cmp_lg_u32 s{S.T1C}, 0")
        a(f"s_cbranch_scc1 {l0}")
        a("s_mov_b32 exec_lo, 0x00020002")
        a("s_mov_b32 exec_hi, 0x00020002")
        a("v_mov_b32 v6, 0x400")
        a("v_mov_b32 v9, 0")
        a("s_mov_b64 exec, -1")
        a.label(l0)
        a("v_lshlrev_b32 v7, 2, v2")
        a("v_mad_u32_u24 v9, v7, v6, v9")
        a("v_cvt_f32_u32 v6, v6")
        a("v_cvt_f32_u32 v9, v9")
        a("v_mul_f32 v6, 0x3a000000, v6")
        a("v_mul_f32 v9, 0x3a000000, v9")
        for jj in range(4):
            a(f"v_cos_f32 v{Cc+jj}, v9")
            a(f"v_sin_f32 v{Ss+jj}, v9")
            if jj < 3:
                a("v_add_f32 v9, v9, v6")
        a(f"s_and_b32 s{S.T1}, s{S.T1C}, 63")
        a.nop(1)
        for jj in range(4):
            a(f"v_cvt_pk_bf16_f32 v{GA+jj}, v{Cc+jj}, v{Ss+jj}")
        a(f"s_cmp_lg_u32 s{S.T1}, 0")
        a(f"s_cbranch_scc1 {ld}")
        a(f"s_lshr_b32 s{S.T1}, s{S.T1C}, 2")
        for jj in range(4):
            a(f"v_and_b32 v{GA+jj}, 0xffff, v{GA+jj}")
            a(f"v_lshlrev_b32 v{GA+jj}, s{S.T1}, v{GA+jj}")
        a.label(ld)

    def int_base():
        a(f"s_and_b32 s{S.T1}, s{S.T1C}, 63")
        a(f"s_mul_i32 s{S.L0}, s{S.T1}, {CS}")
        a(f"s_lshl_b32 s{S.T1}, s{S.WAVE}, 9")
        a(f"s_add_u32 s{S.L0}, s{S.L0}, s{S.T1}")
        a(f"s_add_u32 s{S.L0}, s{S.L0}, {WS_INT}")
        a(f"s_add_u32 s{S.L1}, s{S.L0}, 4096")

    def m2_addr():
        a(f"s_cmp_eq_u32 s{S.TD}, 0")
        a(f"s_cselect_b32 s{S.T0}, 0, 2048")
        a(f"v_add_u32 v4, s{S.T0}, v{VG16}")

    def int_loads(ah):
        for jj in range(4):
            so = S.L0 if jj < 2 else S.L1
            a(f"buffer_load_dwordx4 {V(LD+16*ah+4*jj,4)}, v{VLD}, {R4(S.RWS)}, s{so} offen offset:{(jj & 1)*2048 + ah*256} sc1")

    a.srd(S.ROUT, S.POUT, 0x200000)
    a(f"s_cmp_ge_u32 s{S.WAVE}, 4")
    a("s_cbranch_scc1 L_hi0")
    if o.prio & 1:
        a("s_setprio 2")
    pre = [lambda: (addr_p2(), int_base(), const_ga(), exp_setup()), const_d1, lambda: gates(True), lambda: (addr_ur(S.WAVE), m2_addr())]
    if o.gfirst:
        pre[1], pre[2] = pre[2], pre[1]
    for f in pre[:o.npre]:
        f()
    stamp(8)
    a(f"s_waitcnt vmcnt({0 if o.ackwait else 2})")
    if o.b3:
        a("s_barrier")
    if o.isleep0:
        a(f"s_sleep {o.isleep0}")
    hold("B4")
    stamp(9)
    if o.stag:
        a(f"s_cmp_lg_u32 s{S.HH}, 0")
        a("s_cbranch_scc1 L_stg1")
        int_loads(0)
        a(f"s_waitcnt vmcnt({4 - o.stag})")
        int_loads(1)
        a("s_branch L_stg2")
        a.label("L_stg1")
        int_loads(1)
        a(f"s_waitcnt vmcnt({4 - o.stag})")
        int_loads(0)
        a("s_waitcnt vmcnt(0)")
        a.label("L_stg2")
    else:
        int_loads(0)
        int_loads(1)
    gwait[0] = 10
    for f in pre[o.npre:]:
        f()
    gwait[0] = 2
    a.label("L_zjoin")
    stamp(10)
    for ah in range(2):
        a(f"s_waitcnt vmcnt({4-4*ah})")
        a.label(f"L_got{ah}")
        b = LD + 16 * ah
        da = DA1 if ah else DA0
        for ib in range(4):
            for jj in range(4):
                a(f"v_xor_b32 v{TP+4*ib+jj}, v{b+4*jj+ib}, v{EXP+ib}")
            if ib == 0:
                a(f"v_or3_b32 v6, v{TP}, v{TP+1}, v{TP+2}")
                a(f"v_or_b32 v6, v6, v{TP+3}")
            else:
                a(f"v_or3_b32 v6, v6, v{TP+4*ib}, v{TP+4*ib+1}")
                a(f"v_or3_b32 v6, v6, v{TP+4*ib+2}, v{TP+4*ib+3}")
            if ib == 3:
                a("v_and_b32 v6, 0x10001, v6")
                a("v_cmp_ne_u32 vcc, 0, v6")
            if not (ah == 1):
                a(f"{MF} {V(da+4*ib,4)}, {V(TP+4*ib,4)}, {V(GA,4)}, 0")
            else:
                a(f"{MF} {V(da+4*ib,4)}, {V(TP+4*ib,4)}, {V(GA,4)}, 0")
        a(f"s_cbranch_vccnz L_retry{ah}")
        a.label(f"L_fail{ah}")
    stamp(11)

    def d1(jb):
        a(f"{MF} {V(DA0+4*jb,4)}, {V(TP+4*jb,4)}, {V(M1+12*jb,4)}, 0")
        a(f"{MF} {V(DA1+4*jb,4)}, {V(TP+4*jb,4)}, {V(M1+12*jb+4,4)}, 0")
        a(f"{MF} {V(X16,4)}, {V(TP+4*jb,4)}, {V(M1+12*jb+8,4)}, {'0' if jb == 0 else V(X16,4)}")

    for ib in range(4):
        for p in range(4):
            s0 = (DA1 if p >= 2 else DA0) + 4 * ib + 2 * (p & 1)
            a(f"v_cvt_pk_bf16_f32 v{TP+4*ib+p}, v{s0}, v{s0+1}")
        if ib:
            d1(ib - 1)
    d1(3)
    for ib in range(3):
        for i in range(4):
            a(f"v_cvt_pk_bf16_f32 v{PK+4*i+ib}, v{DA0+4*ib+i}, v{DA1+4*ib+i}")
    for i in range(4):
        a(f"v_cvt_pk_bf16_f32 v{PK+4*i+3}, v{DA0+12+i}, v{DA1+12+i}")
        a(f"ds_write_b128 v{VUW}, {V(PK+4*i,4)} offset:{L_U2 + i*UB}")
    a(f"v_cvt_pk_bf16_f32 v{X16}, v{X16}, v{X16+1}")
    a(f"v_cvt_pk_bf16_f32 v{X16+2}, v{X16+2}, v{X16+3}")
    a(f"ds_write_b16 v{VUX}, v{X16} offset:{L_U2}")
    a(f"ds_write_b16_d16_hi v{VUX}, v{X16} offset:{L_U2+UB}")
    a(f"ds_write_b16 v{VUX}, v{X16+2} offset:{L_U2+2*UB}")
    a(f"ds_write_b16_d16_hi v{VUX}, v{X16+2} offset:{L_U2+3*UB}")
    a.label("L_d2")
    a(f"ds_read_b128 {V(M2,4)}, v{VG16} offset:{L_M2}")
    a(f"ds_read_b128 {V(M2+4,4)}, v{VG16} offset:{L_M2+1024}")
    a(f"ds_read_b128 {V(M2+8,4)}, v4 offset:{L_M2}")
    a(f"ds_read_b128 {V(M2+12,4)}, v4 offset:{L_M2+1024}")
    a(f"v_mov_b32 v9, {L_GKEY}")
    a(f"s_cmp_lg_u32 s{S.ISZ}, 0")
    a("s_waitcnt lgkmcnt(0)")
    a("s_cbranch_scc1 L_zsync")
    a("s_barrier")
    stamp(12)
    a("ds_read_b32 v6, v9")
    a(f"ds_read_b128 {V(UO,4)}, v{VUR0} offset:{L_U2}")
    a(f"ds_read_b128 {V(UO+4,4)}, v{VUR1} offset:{L_U2}")
    a(f"ds_read_b128 {V(UO+8,4)}, v{VUR0} offset:{L_U2+UB}")
    a(f"ds_read_b128 {V(UO+12,4)}, v{VUR1} offset:{L_U2+UB}")
    a(f"s_lshl_b32 s{S.T0}, s{S.TD}, 10")
    a(f"s_lshl_b32 s{S.T1}, s{S.TM}, 10")
    for k in range(4):
        a(f"s_waitcnt lgkmcnt({3-k})")
        a(f"{MF} {V(PQ+4*k,4)}, {V(UO+4*k,4)}, {V(M2+4*k,4)}, 0")
    a(f"v_readfirstlane_b32 s{S.GKEY}, v6")
    a(f"s_andn2_b32 s{S.IDX}, 0xffff, s{S.GKEY}")
    for r in range(2):
        for i in range(8):
            a(f"v_fmac_f32 v{XG+8*r+i}, v{CO+2*r}, v{PQ+i}")
    for r, (so, tr) in enumerate(((S.T0, S.TD), (S.T1, S.TM))):
        for i in range(8):
            a(f"v_fmac_f32 v{XG+8*r+i}, v{CO+2*r+1}, v{PQ+8+i}")
        for i in range(4):
            a(f"v_cvt_pk_bf16_f32 v{UO+4*r+i}, v{XG+8*r+2*i}, v{XG+8*r+2*i+1}")
        l = a.L("skip")
        if r == 0:
            stamp(6)
        a(f"s_cmp_eq_u32 s{tr}, s{S.IDX}")
        a(f"s_cbranch_scc1 {l}")
        a(f"v_permlane16_swap_b32 v{UO+4*r}, v{UO+4*r+2}")
        a(f"v_permlane16_swap_b32 v{UO+4*r+1}, v{UO+4*r+3}")
        a(f"buffer_store_dwordx4 {V(UO+4*r,4)}, v{VROW}, {R4(S.ROUT)}, s{so} offen{o.outpol}")
        a.label(l)
    a.label("L_tb_end")
    stamp(13)
    if o.stamps:
        a("s_waitcnt vmcnt(0)")
        stamp(15)
    endprog()

    for ah in range(2):
        a.label(f"L_retry{ah}")
        if o.stamps:
            a(f"s_add_u32 s{S.RC}, s{S.RC}, {1 << (8*ah)}")
        if o.rsleep:
            a(f"s_sleep {o.rsleep}")
        spin()
        a(f"s_cbranch_scc1 L_fail{ah}")
        int_loads(ah)
        a("s_waitcnt vmcnt(0)")
        a(f"s_branch L_got{ah}")

    a.label("L_hi0")
    if o.b3:
        if o.ackwait:
            a("s_waitcnt vmcnt(0)")
        a("s_barrier")
    a.label("L_hi1")
    if o.atouch:
        touch("L_tb", o.atouch, 4, 4)
        a(f"s_cmp_lg_u32 s{S.ISZ}, 0")
        a("s_cbranch_scc1 L_z0b")
    gates(True)
    addr_ur(S.WAVE)
    m2_addr()
    stamp(10)
    a("s_branch L_d2")

    a.label("L_ah")
    if o.prio & 2:
        a("s_setprio 3")
    if o.cpf:
        a(f"s_cmp_ge_u32 s{S.T1}, {o.cpf}")
        a("s_cbranch_scc1 L_nocpf")
        a(f"s_getpc_b64 s[{S.EX}:{S.EX+1}]")
        a.label("L_pc")
        a(f"s_sub_u32 s{S.EX}, s{S.EX}, L_pc - {name}")
        a(f"s_subb_u32 s{S.EX+1}, s{S.EX+1}, 0")
        a("v_lshlrev_b32 v6, 7, v0")
        a("v_add_u32 v7, 0x2000, v6")
        a(f"v_min_u32 v7, L_end - {name}, v7")
        a(f"v_mov_b32 v13, s{S.EX+1}")
        a(f"v_mov_b32 v15, s{S.EX+1}")
        a(f"v_add_co_u32 v12, vcc, s{S.EX}, v6")
        a.nop(2)
        a("v_addc_co_u32 v13, vcc, 0, v13, vcc")
        a(f"v_add_co_u32 v14, vcc, s{S.EX}, v7")
        a.nop(2)
        a("v_addc_co_u32 v15, vcc, 0, v15, vcc")
        a("global_load_dword v10, v[12:13], off")
        a("global_load_dword v11, v[14:15], off")
        a.label("L_nocpf")
    a(f"v_lshlrev_b32 v{VG16}, 4, v0")
    a(f"v_mov_b32 v{VTAG}, 0")
    a(f"v_mov_b32 v9, {L_KSL}")
    a(f"ds_write_b32 v9, v{VTAG}")
    a(f"s_mov_b32 s{S.KM}, 0x9E3779B1")
    a(f"s_cmp_ge_u32 s{S.T1}, {o.wpf}")
    a("s_waitcnt lgkmcnt(0)")
    a("s_cbranch_scc1 L_nowpf")
    a(f"global_load_dwordx4 v[32:35], v{VG16}, s[{S.PWR}:{S.PWR+1}]")
    a(f"global_load_dword v{VE}, v{VTAG}, s[{S.PWS}:{S.PWS+1}]")
    a(f"global_load_dwordx4 v[36:39], v{VG16}, s[{S.PGW}:{S.PGW+1}]")
    a.label("L_nowpf")
    stamp(1)
    a("v_lshlrev_b32 v14, 10, v0")
    a(f"s_lshl_b32 s{S.ID8}, s2, 3")
    a(f"s_add_u32 s{S.ID8}, s{S.ID8}, {WS_KEY}")
    ws_setup()

    if o.b0 == 2:
        a("s_barrier")
    const_d2()
    a(f"global_load_dword v{VE}, v{VTAG}, s[{S.PWS}:{S.PWS+1}]")
    a("s_waitcnt lgkmcnt(0)")
    stamp(2)
    if o.b0 == 1:
        a("s_barrier")
    a(f"v_mov_b32 v9, {L_KSL}")
    a("s_waitcnt vmcnt(0)")
    tag_make()
    exp_make()
    a(f"v_mov_b32 v9, {L_KSL}")
    stamp(3)
    a("s_barrier")
    a(f"ds_read_b32 v{VE}, v9")
    set_exec(RF * CF + RZ * CZ + R2 * C2 + RS)
    a("s_waitcnt lgkmcnt(0)")
    a(f"buffer_store_dwordx2 v[{VE}:{VTAG}], v14, {R4(S.RWS)}, s{S.ID8} offen sc1")
    if o.probe >= 0:
        a("s_mov_b64 exec, 1")
        a("v_mov_b32 v40, s66")
        a(f"v_mov_b32 v41, v{VTAG}")
        a(f"s_add_u32 s{S.T0}, s{S.ID8}, {WS_KEY2 - WS_KEY}")
        a(f"buffer_store_dwordx2 v[40:41], v14, {R4(S.RWS)}, s{S.T0} offen sc1")
    a("s_mov_b64 exec, -1")
    stamp(5)
    if o.b1a:
        a("s_barrier")
    if o.only == "P1":
        a("s_endpgm")
    poll_setup(WS_KEY + 1024 * (RF * CF + RZ * CZ), R2, C2)
    a("s_waitcnt vmcnt(0)")
    if not o.gate and o.b3:
        a("s_barrier")
    if o.k2sleep0:
        a(f"s_sleep {o.k2sleep0}")
    stamp(8)
    poll_granules(VG16, 32, sleep=o.k2sleep)
    stamp(9)
    wave_max_key(32)
    lds_put(L_GKEY, 32)
    if o.gate:
        a(f"s_sleep {o.gate}")
        a("s_barrier")
        if o.probe >= 0:
            a("s_cmp_lg_u32 s2, 9")
            a("s_cbranch_scc1 L_noprobe")
            a("s_barrier")
            a(f"s_mov_b32 s{S.PO}, {WS_KEY2}")
            a(f"s_mov_b32 s{S.POL}, {WS_KEY2}")
            poll_granules(VG16, 32, sleep=4)
            for i in range(8):
                a(f"v_readlane_b32 s{70+i}, v{32 + 2*(i&1)}, {i>>1}")
            a("s_mov_b32 s80, s70")
            for i in range(1, 8):
                a(f"s_sub_u32 s81, s{70+i}, s80")
                a("s_cmp_lt_i32 s81, 0")
                a(f"s_cselect_b32 s80, s{70+i}, s80")
            if o.probe < 8:
                a(f"s_sub_u32 s81, s{70+o.probe}, s80")
            else:
                a("s_mov_b32 s81, 0")
                for i in range(8):
                    a(f"s_sub_u32 s82, s{70+i}, s80")
                    a("s_max_u32 s81, s81, s82")
            a("s_mul_i32 s81, s81, 10")
            a("s_add_u32 s81, s81, 800")
            a.label("L_pw")
            a("s_sleep 1")
            a("s_memrealtime s[100:101]")
            a("s_waitcnt lgkmcnt(0)")
            a("s_sub_u32 s100, s100, s80")
            a("s_cmp_lt_u32 s100, s81")
            a("s_cbranch_scc1 L_pw")
            a.label("L_noprobe")
        if o.hold and o.hold[0] == "endA":
            a(f"s_sub_u32 s{S.T0}, s2, {o.hold[2]}")
            a(f"s_cmp_ge_u32 s{S.T0}, {o.hold[3]}")
            a("s_cbranch_scc1 L_nohold")
            a("s_barrier")
            hold("endA")
            a.label("L_nohold")
        endprog()
    a("s_barrier")
    endprog()

    a.label("L_notA")
    if o.only == "AA":
        a("s_endpgm")
    a(f"s_lshl4_add_u32 s{S.FJ}, s{S.T0}, s{S.T1}")
    a(f"s_sub_u32 s{S.FJ}, s{S.FJ}, 16")
    a(f"s_cmp_ge_u32 s2, {NWG}")
    a("s_cbranch_scc1 L_end")
    a(f"s_cmp_lt_u32 s{S.T0}, 4")
    a("s_cbranch_scc1 L_F")
    a(f"s_mul_i32 s{S.FJ}, s{S.T0}, 12")
    a(f"s_add_u32 s{S.FJ}, s{S.FJ}, s{S.T1}")
    a(f"s_cmp_lt_u32 s{S.T1}, 28")
    a("s_cbranch_scc1 L_F")
    a(f"s_mov_b32 s{S.ISZ}, 1")
    a(f"s_lshl2_add_u32 s{S.Z}, s{S.T0}, s{S.T1}")
    a(f"s_sub_u32 s{S.Z}, s{S.Z}, 44")
    vrow_setup()
    a(f"v_lshlrev_b32 v{VG16}, 4, v0")
    sgn_setup()
    a("s_waitcnt lgkmcnt(0)")
    ws_setup()
    a.srd(S.ROUT, S.POUT, 0x200000)
    addr_p2()
    a(f"s_cmp_eq_u32 s{S.WAVE}, 8")
    a("s_cbranch_scc1 L_zh")
    a(f"s_cmp_ge_u32 s{S.WAVE}, 4")
    a("s_cbranch_scc1 L_z0")
    const_d1()
    a("s_branch L_z1")
    a.label("L_z0")
    if o.atouch:
        a("s_branch L_hi1")
    a.label("L_z0b")
    if o.ztouch:
        touch("L_tz", o.ztouch, 4, 4)
    a.label("L_z1")
    a(f"v_mov_b32 v9, {L_KSL}")
    a("v_mov_b32 v12, 0")
    a("v_mov_b32 v13, 0")
    a("s_barrier")
    a(f"ds_read_b64 v[{VE}:{VTAG}], v9")
    a(f"ds_read_b128 {V(GW,4)}, v{VG16} offset:{L_WV+1024}")
    a("s_waitcnt lgkmcnt(0)")
    a(f"v_readfirstlane_b32 s{S.GKEY}, v{VE}")
    a(f"s_andn2_b32 s{S.IDX}, 2047, s{S.GKEY}")
    a(f"s_and_b32 s{S.T0}, s{S.IDX}, 127")
    a(f"s_cmp_gt_u32 s{S.T0}, 64")
    a(f"s_cselect_b32 s{S.WHICH}, 1, 0")
    a(f"s_and_b32 s{S.T0}, s{S.IDX}, {1024 + 63}")
    a(f"s_cmp_eq_u32 s{S.T0}, 1024")
    a(f"s_cselect_b32 s{S.WHICH}, 1, s{S.WHICH}")
    a(f"s_sub_u32 s{S.T0}, 2048, s{S.IDX}")
    a(f"s_cmp_lg_u32 s{S.WHICH}, 0")
    a(f"s_cselect_b32 s{S.T0}, s{S.T0}, s{S.IDX}")
    a(f"s_cmp_eq_u32 s{S.T0}, 1024")
    a(f"s_cselect_b32 s{S.T0}, 0, s{S.T0}")
    a(f"s_and_b32 s{S.T1C}, s{S.T0}, 127")
    a(f"s_lshr_b32 s{S.HH}, s{S.T0}, 10")
    a(f"s_bfe_u32 s{S.WSEL}, s{S.T0}, 0x30007")
    rows_setup(S.WSEL)
    a(f"s_cmp_ge_u32 s{S.WAVE}, 4")
    a("s_cbranch_scc1 L_z4")
    int_base()
    if o.zisleep0:
        a(f"s_sleep {o.zisleep0}")
    stamp(9)
    int_loads(0)
    int_loads(1)
    const_ga()
    exp_setup()
    addr_ur(S.WSEL)
    m2_addr()
    a("v_lshlrev_b32 v6, 7, v1")
    a(f"v_lshl_add_u32 v15, v2, 4, v6")
    a("s_branch L_zjoin")
    a.label("L_z4")
    a(f"s_cmp_ge_u32 s{S.WAVE}, 6")
    a("s_cbranch_scc1 L_zend2")
    rows_load()
    a(f"s_sub_u32 s{S.T0}, s{S.WAVE}, 4")
    a(f"s_lshl1_add_u32 s{S.T1}, s{S.Z}, s{S.T0}")
    a(f"s_lshl_b32 s{S.T1}, s{S.T1}, 5")
    a("v_and_b32 v6, 7, v0")
    a(f"v_lshl_add_u32 v10, v6, 2, s{S.T1}")
    a(f"s_lshl_b32 s{S.T2}, s{S.IDX}, 10")
    a(f"v_add_u32 v7, s{S.T2}, v10")
    a(f"global_load_dword v35, v7, {PXS}")
    a("v_lshlrev_b32 v10, 1, v10")
    a("v_lshrrev_b32 v7, 3, v0")
    a("v_lshlrev_b32 v7, 8, v7")
    a("v_lshl_add_u32 v11, v6, 4, v7")
    a(f"s_mul_i32 s{S.SI0}, s{S.Z}, {PZ}")
    a(f"s_lshl_b32 s{S.T0}, s{S.T0}, 7")
    a(f"s_add_u32 s{S.SI0}, s{S.SI0}, s{S.T0}")
    a(f"s_add_u32 s{S.SI0}, s{S.SI0}, {WS_PART}")
    a(f"s_add_u32 s{S.SI1}, s{S.SI0}, {(o.pc-1)*PARTC}")
    a(f"s_and_b32 s{S.T0}, s{S.GKEY}, 0xffff0000")
    a(f"s_xor_b32 s{S.T1}, s{S.T0}, 0x80000000")
    a(f"s_xor_b32 s{S.T3}, s{S.T0}, 0xffff0000")
    a(f"s_bitcmp1_b32 s{S.T0}, 31")
    a(f"s_cselect_b32 s{S.T0}, s{S.T1}, s{S.T3}")
    a(f"v_mov_b32 v15, s{S.T0}")
    sigmoid(15, 15)
    rnd(15, 15)
    a("s_waitcnt vmcnt(0)")
    gates(False)
    a(f"s_cmp_lg_u32 s{S.WHICH}, 0")
    a(f"s_cselect_b32 s{S.T2}, s{S.T3}, s{S.T2}")
    a(f"s_cselect_b32 s{S.T0}, s{S.T5}, s{S.T0}")
    a(f"s_cselect_b32 s{S.T4}, s{S.T1}, s{S.T4}")
    a(f"v_xor_b32 v{VTAG}, s{S.IDX}, v{VTAG}")
    a(f"v_mov_b32 v36, s{S.T2}")
    a(f"v_mov_b32 v{CO}, s{S.T0}")
    a(f"v_mov_b32 v{CO+1}, s{S.T4}")
    a("v_lshlrev_b32 v34, 16, v35")
    a(f"v_and_b32 v35, {HIM}, v35")
    if o.psleep0:
        a(f"s_sleep {o.psleep0}")
    hold("pp")
    a(f"v_mov_b32 v9, {L_ZF}")
    a.label("L_tz_start")
    stamp(10)
    MK = 16
    for i in range(7):
        a(f"s_mov_b64 s[{MK+2*i}:{MK+2*i+1}], -1")
    for j in range(1, 4):
        a(f"s_add_u32 s{S.T3+j-1 if j < 3 else S.SI1}, s{S.SI0}, {4096*j}")
    a("s_branch L_zp1")
    a.label("L_zp")
    a(f"s_sleep {max(o.psleep, 1)}")
    a.label("L_zp1")
    so = [S.SI0, S.T3, S.T4, S.SI1]
    for i in range(7):
        a(f"s_mov_b64 exec, s[{MK+2*i}:{MK+2*i+1}]")
        a(f"s_cbranch_execz L_zq{i}")
        a(f"buffer_load_dwordx4 {V(40+4*i,4)}, v11, {R4(S.RWS)}, s{so[i >> 1]} offen offset:{2048*(i&1)} sc1")
        a.label(f"L_zq{i}")
    a("s_mov_b64 exec, -1")
    if o.stamps:
        a(f"s_add_u32 s{S.RC}, s{S.RC}, 256")
    a(f"s_mov_b64 s[{S.EX}:{S.EX+1}], 0")
    a("s_waitcnt vmcnt(0)")
    for i in range(7):
        a(f"v_bitop3_b32 v{37 + (i & 1)}, v{41+4*i}, v{43+4*i}, v{VTAG} bitop3:0x7e")
        a(f"v_cmp_ne_u32 s[{MK+2*i}:{MK+2*i+1}], 0, v{37 + (i & 1)}")
        if i:
            a(f"s_or_b64 s[{S.EX}:{S.EX+1}], s[{S.EX}:{S.EX+1}], s[{MK+2*i-2}:{MK+2*i-1}]")
    spin()
    a("s_cbranch_scc1 L_zp_ok")
    a(f"s_or_b64 s[{S.EX}:{S.EX+1}], s[{S.EX}:{S.EX+1}], s[{MK+12}:{MK+13}]")
    a("s_cbranch_scc1 L_zp")
    a.label("L_zp_ok")
    a("ds_read_b32 v12, v9")
    a(f"ds_read_b64 v[32:33], v10 offset:{L_XG2}")
    a(f"ds_read_b64 v[16:17], v10 offset:{L_XG2+2048}")
    a("v_lshrrev_b32 v11, 1, v10")
    a(f"s_lshl_b32 s{S.T2}, s{S.IDX}, 10")
    stamp(11)
    for (d, x) in ((40, 44), (48, 52), (56, 60), (40, 48), (56, 64), (40, 56)):
        a(f"v_add_f32 v{d}, v{d}, v{x}")
        a(f"v_add_f32 v{d+2}, v{d+2}, v{x+2}")
    a.nop(1)
    a(f"v_add_f32_dpp v40, v40, v40 row_ror:8 {DPPM}")
    a(f"v_add_f32_dpp v42, v42, v42 row_ror:8 {DPPM}")
    a.nop(1)
    a.nop(1)
    a("v_permlane16_swap_b32 v40, v42")
    a("v_add_f32 v40, v40, v42")
    a("v_mov_b32 v42, v40")
    a.nop(2)
    a("v_permlane32_swap_b32 v40, v42")
    a("v_add_f32 v40, v40, v42")
    a("v_mov_b32 v42, v40")
    a.nop(2)
    a("v_permlane16_swap_b32 v40, v42")
    a("v_cvt_pk_bf16_f32 v41, v40, v42")
    a("v_lshlrev_b32 v40, 16, v41")
    a(f"v_and_b32 v42, {HIM}, v41")
    a("v_mul_f32 v40, v40, v15")
    a("v_mul_f32 v42, v42, v15")
    a("v_cvt_pk_bf16_f32 v41, v40, v42")
    a("v_lshlrev_b32 v40, 16, v41")
    a(f"v_and_b32 v42, {HIM}, v41")
    a("v_add_f32 v40, v40, v34")
    a("v_add_f32 v42, v42, v35")
    a("v_cvt_pk_bf16_f32 v41, v40, v42")
    a("v_lshlrev_b32 v40, 16, v41")
    a(f"v_and_b32 v42, {HIM}, v41")
    a.label("L_zw")
    a("s_waitcnt lgkmcnt(0)")
    a("v_cmp_eq_u32 vcc, 0, v12")
    a(f"v_mul_f32 v32, v{CO}, v32")
    a(f"v_mul_f32 v33, v{CO}, v33")
    a("s_cbranch_vccz L_zw_ok")
    spin()
    a("s_cbranch_scc1 L_zw_ok")
    a("ds_read_b32 v12, v9")
    a(f"ds_read_b64 v[32:33], v10 offset:{L_XG2}")
    a(f"ds_read_b64 v[16:17], v10 offset:{L_XG2+2048}")
    a("s_branch L_zw")
    a.label("L_zw_ok")
    a(f"v_fmac_f32 v32, v{CO+1}, v16")
    a(f"v_fmac_f32 v33, v{CO+1}, v17")
    a("v_fmac_f32 v32, v40, v36")
    a("v_fmac_f32 v33, v42, v36")
    a("v_cvt_pk_bf16_f32 v32, v32, v33")
    a("s_mov_b64 exec, 0xff")
    a(f"buffer_store_dword v32, v11, {R4(S.ROUT)}, s{S.T2} offen{o.zpol}")
    a("s_mov_b64 exec, -1")
    stamp(13)
    if o.stamps:
        a("s_waitcnt vmcnt(0)")
        stamp(15)
    a("s_barrier")
    endprog()

    a.label("L_zsync")
    a(f"v_mov_b32 v9, {L_ZC}")
    a("v_mov_b32 v6, 1")
    a("s_mov_b64 exec, 1")
    a("ds_add_u32 v9, v6")
    a("s_mov_b64 exec, -1")
    a(f"s_cmp_lg_u32 s{S.WAVE}, 0")
    a("s_cbranch_scc1 L_zend")
    a.label("L_zs")
    a("ds_read_b32 v6, v9")
    spin()
    a("s_waitcnt lgkmcnt(0)")
    a("s_cbranch_scc1 L_zs_ok")
    a("v_cmp_ne_u32 vcc, 4, v6")
    a.nop(1)
    a("s_cbranch_vccnz L_zs")
    a.label("L_zs_ok")
    stamp(12)
    a(f"ds_read_b128 {V(UO,4)}, v{VUR0} offset:{L_U2}")
    a(f"ds_read_b128 {V(UO+4,4)}, v{VUR1} offset:{L_U2}")
    a(f"ds_read_b128 {V(UO+8,4)}, v{VUR0} offset:{L_U2+UB}")
    a(f"ds_read_b128 {V(UO+12,4)}, v{VUR1} offset:{L_U2+UB}")
    for k in range(4):
        a(f"s_waitcnt lgkmcnt({3-k})")
        a(f"{MF} {V(PQ+4*k,4)}, {V(UO+4*k,4)}, {V(M2+4*k,4)}, 0")
    a.nop(3)
    for k in range(4):
        if k == 2:
            a.nop(2)
        a(f"ds_write_b128 v15, {V(PQ+4*k,4)} offset:{L_XG2 + 64*(k&1) + 2048*(k>>1)}")
    a(f"v_mov_b32 v9, {L_ZF}")
    a("s_waitcnt lgkmcnt(0)")
    a("ds_write_b32 v9, v9")
    a("s_waitcnt lgkmcnt(0)")
    stamp(13)
    a.label("L_zend")
    endprog()
    a.label("L_zend2")
    if o.hold and o.hold[0] == "end":
        a("s_barrier")
    hold("end")
    if o.ev:
        lo, n, w, st, med = [int(v) for v in o.ev.split(":")]
        a("s_cmp_lg_u32 s2, 255")
        a("s_cbranch_scc1 L_noev")
        a(f"s_cmp_lg_u32 s{S.WAVE}, 7")
        a("s_cbranch_scc1 L_noev")
        a("s_barrier")
        a.label("L_ev0")
        a("s_sleep 4")
        a("s_memrealtime s[100:101]")
        a("s_waitcnt lgkmcnt(0)")
        a(f"s_sub_u32 s100, s100, s{S.ST}")
        a("s_cmp_lt_u32 s100, 750")
        a("s_cbranch_scc1 L_ev0")
        a("v_lshlrev_b32 v6, 11, v0")
        a(f"v_add_u32 v7, {WS_STAMP + 8*128}, v6")
        a(f"global_load_dword v40, v7, s[{S.PWS}:{S.PWS+1}] sc1")
        a(f"v_add_u32 v7, {WS_STAMP + lo*2048 + w*128 + st*8}, v6")
        for q in range(n // 64):
            a(f"global_load_dword v{44+q}, v7, s[{S.PWS}:{S.PWS+1}] sc1")
            a(f"v_add_u32 v7, {64*2048}, v7")
        a("s_waitcnt vmcnt(0)")
        a(f"v_subrev_u32 v40, s{S.ST}, v40")
        a("v_sub_u32 v40, 1000, v40")
        a("v_mov_b32 v42, v40")
        wave_max_key(40)
        a("v_mov_b32 v41, 0")
        for q in range(n // 64):
            a(f"v_subrev_u32 v{44+q}, s{S.ST}, v{44+q}")
            a(f"v_cmp_gt_u32 vcc, 1000, v{44+q}")
            a.nop(2)
            a(f"v_cndmask_b32 v{44+q}, 0, v{44+q}, vcc")
            a(f"v_max_u32 v41, v41, v{44+q}")
        a("v_mov_b32 v43, v41")
        wave_max_key(41)
        a.nop(2)
        a("v_readlane_b32 s6, v40, 63")
        a("v_readlane_b32 s7, v41, 63")
        a("s_sub_u32 s6, s6, 1000")
        a("s_min_u32 s6, s6, 300")
        a("s_add_u32 s7, s7, s6")
        a("s_mul_i32 s7, s7, 4")
        a("s_add_u32 s7, s7, 900")
        a("s_sub_u32 s7, s7, s6")
        a.label("L_ev1")
        a("s_sleep 1")
        a("s_memrealtime s[100:101]")
        a("s_waitcnt lgkmcnt(0)")
        a(f"s_sub_u32 s100, s100, s{S.ST}")
        a("s_cmp_lt_u32 s100, s7")
        a("s_cbranch_scc1 L_ev1")
        a.label("L_noev")
    endprog()

    a.label("L_zh")
    a(f"v_mov_b32 v9, {L_ZF}")
    a("v_mov_b32 v6, 0")
    a("ds_write2_b32 v9, v6, v6 offset1:1")
    const_d2()
    a(f"s_mov_b32 m0, {L_WV+1024}")
    tag_load()
    a(f"global_load_lds_dwordx4 v{VG16}, s[{S.PGW}:{S.PGW+1}]")
    a("s_waitcnt vmcnt(0)")
    tag_make()
    exp_make()
    poll_setup(WS_KEY + 1024 * RF * CF, RZ, CZ)
    if o.zsleep0:
        a(f"s_sleep {o.zsleep0}")
    stamp(1)
    poll_granules(VG16, 32, sleep=o.zsleep)
    stamp(2)
    wave_max_key(32)
    lds_put(L_KSL, 32, tag=True)
    a("s_barrier")
    a(f"s_lshl_b32 s{S.T0}, s{S.Z}, 2")
    a(f"s_add_u32 s{S.T0}, s{S.T0}, {WS_ALIVE}")
    a("s_mov_b64 exec, 1")
    a(f"buffer_store_dword v{VTAG}, v0, {R4(S.RWS)}, s{S.T0} offen sc1")
    a("s_mov_b64 exec, -1")
    a(f"s_cmp_lg_u32 s{S.Z}, 0")
    a("s_cbranch_scc1 L_zend")
    a("s_mov_b64 exec, 0xffff")
    a("v_lshlrev_b32 v6, 2, v0")
    a(f"s_mov_b32 s{S.T0}, {WS_ALIVE}")
    a("s_waitcnt vmcnt(0)")
    a("s_sleep 24")
    a.label("L_za")
    a(f"buffer_load_dword v7, v6, {R4(S.RWS)}, s{S.T0} offen sc1")
    spin()
    a("s_waitcnt vmcnt(0)")
    a("s_cbranch_scc1 L_za_ok")
    a(f"v_cmp_ne_u32 vcc, v{VTAG}, v7")
    a.nop(1)
    a("s_cbranch_vccnz L_za")
    a.label("L_za_ok")
    a("s_mov_b64 exec, 1")
    a(f"v_add_u32 v9, 1, v{VE}")
    a("s_barrier")
    a(f"buffer_store_dword v9, v6, {R4(S.RWS)}, 0 offen sc1")
    a("s_mov_b64 exec, -1")
    a("s_branch L_zend")

    a.label("L_F")
    if o.only == "A":
        a("s_endpgm")
    WG_, WD_ = 32, 48
    a("v_lshlrev_b32 v5, 4, v0")
    a(f"s_cmp_eq_u32 s{S.WAVE}, 8")
    a("s_cbranch_scc1 L_fh")
    a(f"s_and_b32 s{S.T0}, s{S.FJ}, 3")
    a(f"s_lshr_b32 s{S.T1}, s{S.WAVE}, 1")
    a(f"s_lshl2_add_u32 s{S.L0}, s{S.T0}, s{S.T1}")
    a(f"s_mul_i32 s{S.T2}, s{S.L0}, {32*3584}")
    a(f"s_lshr_b32 s{S.L1}, s{S.FJ}, 2")
    a(f"s_lshl_b32 s{S.T3}, s{S.L1}, 7")
    a(f"s_add_u32 s{S.T2}, s{S.T2}, s{S.T3}")
    a("v_lshrrev_b32 v6, 3, v0")
    a("v_mul_u32_u24 v6, 3584, v6")
    a("v_and_b32 v7, 7, v0")
    a("v_bfe_u32 v8, v0, 4, 1")
    a("v_lshlrev_b32 v8, 2, v8")
    a("v_xor_b32 v4, v7, v8")
    a(f"v_lshl_add_u32 v7, v4, 4, s{S.T2}")
    a("v_add_u32 v3, v6, v7")
    a(f"s_lshl_b32 s{S.T4}, s{S.WAVE}, 12")
    a(f"s_mov_b32 m0, s{S.T4}")
    def w_dma():
        a(f"s_bitcmp1_b32 s{S.WAVE}, 0")
        a("s_waitcnt lgkmcnt(0)")
        a(f"s_cselect_b32 s{S.PWG}, s{S.PWU}, s{S.PWG}")
        a(f"s_cselect_b32 s{S.PWG+1}, s{S.PWU+1}, s{S.PWG+1}")
        if o.fdelay:
            a(f"s_sleep {o.fdelay}")
        for b in range(4):
            if b:
                a(f"s_add_u32 m0, s{S.T4}, {1024*b}")
                a(f"v_add_u32 v3, {8*3584}, v3")
            if o.wthr and b >= o.wthr:
                a(f"s_waitcnt vmcnt({o.wthr - 1})")
            a(f"global_load_lds_dwordx4 v3, s[{S.PWG}:{S.PWG+1}]{o.wpol}")
        ws_setup()
        stamp(1)

    if not o.flate:
        w_dma()
    a("v_bfe_u32 v6, v0, 2, 2")
    a("v_and_b32 v7, 3, v0")
    a("v_lshlrev_b32 v8, 3, v7")
    a("v_lshl_add_u32 v8, v2, 5, v8")
    a("v_and_b32 v9, 2, v6")
    a("v_lshlrev_b32 v9, 5, v9")
    a("v_xor_b32 v9, v9, v8")
    a("v_lshl_add_u32 v9, v6, 7, v9")
    a(f"v_add_u32 v9, s{S.T4}, v9")
    a(f"s_lshl_b32 s{S.T5}, s{S.WAVE}, 8")
    a("v_lshlrev_b32 v11, 2, v0")
    a(f"v_add_u32 v11, {L_RED}, v11")
    a(f"v_add_u32 v12, s{S.T5}, v11")
    a(f"s_lshl1_add_u32 s{S.T1}, s{S.L1}, s{S.T1}")
    a(f"s_lshl_b32 s{S.T2}, s{S.T1}, 15")
    a(f"s_and_b32 s{S.T3}, s{S.WAVE}, 1")
    a(f"s_lshl1_add_u32 s{S.T3}, s{S.T0}, s{S.T3}")
    a(f"s_lshl_b32 s{S.T5}, s{S.T3}, 7")
    a(f"s_add_u32 s{S.T2}, s{S.T2}, s{S.T5}")
    a("v_lshrrev_b32 v6, 3, v0")
    a(f"v_lshl_add_u32 v6, v6, 10, s{S.T2}")
    a("v_lshl_add_u32 v4, v4, 4, v6")
    a("v_lshrrev_b32 v6, 5, v0")
    a(f"v_mul_u32_u24 v13, {PZ}, v6")
    a("v_and_b32 v6, 31, v0")
    a("v_lshl_add_u32 v13, v6, 3, v13")
    a(f"s_mul_i32 s{S.T2}, s{S.T3}, {2*PZ}")
    a(f"s_lshl_b32 s{S.T1}, s{S.T1}, 8")
    a(f"s_add_u32 s{S.T2}, s{S.T2}, s{S.T1}")
    a(f"s_add_u32 s{S.T2}, s{S.T2}, {WS_PART}")
    a(f"s_lshl_b32 s{S.L0}, s{S.L0}, 6")
    a(f"s_lshl_b32 s{S.L1}, s{S.L1}, 12")
    a(f"s_add_u32 s{S.PO}, s{S.L1}, {WS_XCH}")
    a(f"s_add_u32 s{S.POL}, s{S.PO}, {(o.xc-1)*XCHC}")
    a(f"s_lshl_b32 s{S.T1}, s{S.T0}, 10")
    a(f"s_add_u32 s{S.L1}, s{S.PO}, s{S.T1}")
    a(f"v_mov_b32 v14, {L_FKEY}")
    a(f"s_lshr_b32 s{S.T1}, s{S.WAVE}, 1")
    a(f"s_lshl_b32 s{S.T1}, s{S.T1}, 9")
    a(f"v_lshl_add_u32 v15, v6, 4, s{S.T1}")
    a("v_lshrrev_b32 v6, 5, v0")
    a("v_lshl_add_u32 v15, v6, 10, v15")
    a(f"s_mov_b32 s{S.PO0}, s{S.PO}")
    a(f"s_mov_b32 s{S.L10}, s{S.L1}")
    a(f"s_mov_b32 s{S.T20}, s{S.T2}")
    a(f"s_mov_b32 s{S.FIN}, 0")

    if o.flate:
        w_dma()

    def wd_dma():
        l = a.L("nowd")
        a(f"s_cmp_ge_u32 s{S.WAVE}, 4")
        a(f"s_cbranch_scc1 {l}")
        for b in range(4):
            a(f"s_add_u32 m0, s{S.T4}, {L_WD + 1024*b}")
            if b:
                a("v_add_u32 v4, 0x2000, v4")
            else:
                a.nop(1)
            a(f"global_load_lds_dwordx4 v4, s[{S.PWD}:{S.PWD+1}]")
        a.label(l)

    if o.wdpos == 0:
        wd_dma()
    a("s_waitcnt vmcnt(0)")
    stamp(2)
    if o.fw0:
        a("s_barrier")
    if o.wdpos == 1:
        wd_dma()
    if o.xpre:
        for i in range(2):
            a(f"buffer_load_dwordx4 {V(64+4*i,4)}, v15, {R4(S.RWS)}, s{S.PO} offen offset:{2048*i} sc1")
    for k in range(8):
        a(f"ds_read_b64_tr_b16 {V(WG_+2*k,2)}, v9 offset:{L_W + k*512}")
    if o.ftouch:
        touch("L_tf", o.ftouch, 0, 8)
    a("s_waitcnt lgkmcnt(0)")
    a("s_barrier")
    a.label("L_tf_start")
    a("ds_read_b64 v[26:27], v14")
    a("s_waitcnt lgkmcnt(0)")
    a(f"v_readfirstlane_b32 s{S.FKEY}, v26")
    a.label("L_redo")
    a(f"s_andn2_b32 s{S.T0}, 2047, s{S.FKEY}")
    a(f"s_lshl_b32 s{S.T1}, s{S.T0}, 10")
    a(f"s_add_u32 s{S.T1}, s{S.T1}, s{S.L0}")
    a(f"s_load_dwordx16 s[{S.XS}:{S.XS+15}], {PXS}, s{S.T1}")
    stamp(5)
    if o.wdpos == 3:
        a(f"s_cmp_ge_u32 s{S.WAVE}, 4")
        a("s_cbranch_scc1 L_nowd3")
        for b in range(4):
            a(f"v_add_u32 v6, {0x2000*b}, v4")
            a(f"global_load_dwordx4 {V(80+4*b,4)}, v6, s[{S.PWD}:{S.PWD+1}]")
        a.label("L_nowd3")
    a(f"v_xor_b32 v{VTAG}, s{S.T0}, v27")
    a(f"v_xor_b32 v29, s{S.T0}, v27")
    for r in (16, 17, 24, 25):
        a(f"v_mov_b32 v{r}, 0")
    a(f"s_mov_b32 s{S.PO}, s{S.PO0}")
    a(f"s_mov_b32 s{S.L1}, s{S.L10}")
    a(f"s_mov_b32 s{S.T2}, s{S.T20}")
    a(f"s_mov_b32 s{S.KM}, 0")
    a("s_waitcnt lgkmcnt(0)")
    for i in range(16):
        a(f"v_dot2c_f32_bf16 v{16+(i&1)}, s{S.XS+i}, v{WG_+i}")
    stamp(6)
    a.nop(3)
    a("v_add_f32 v16, v16, v17")
    a("ds_write_b32 v12, v16")
    a("s_waitcnt lgkmcnt(0)")
    a("s_barrier")
    a(f"s_lshl_b32 s{S.T0}, s{S.WAVE}, 4")
    a(f"s_lshl_b64 s[{S.EX}:{S.EX+1}], 0xffff, s{S.T0}")
    for i, (p, q) in enumerate(((0, 2), (4, 6), (1, 3), (5, 7))):
        a(f"ds_read2st64_b32 v[{16+2*i}:{17+2*i}], v11 offset0:{p} offset1:{q}")
    a("s_waitcnt lgkmcnt(2)")
    a("v_add_f32 v16, v16, v17")
    a("v_add_f32 v18, v18, v19")
    a("s_waitcnt lgkmcnt(0)")
    a("v_add_f32 v20, v20, v21")
    a("v_add_f32 v22, v22, v23")
    a("v_add_f32 v28, v16, v18")
    a(f"s_mov_b64 exec, s[{S.EX}:{S.EX+1}]")
    a("v_add_f32 v30, v20, v22")
    a(f"s_cmp_ge_u32 s{S.WAVE}, 4")
    a("s_cbranch_scc1 L_f5")
    a(f"buffer_store_dwordx4 v[28:31], v5, {R4(S.RWS)}, s{S.L1} offen{'' if o.xl2 else ' sc1'}")
    a("s_mov_b64 exec, -1")
    stamp(7)
    a("s_waitcnt vmcnt(1)")
    if o.wdpos == 3:
        a(f"v_add_u32 v6, s{S.T4}, v5")
        for b in range(4):
            a(f"ds_write_b128 v6, {V(80+4*b,4)} offset:{L_WD + 1024*b}")
        a("s_waitcnt lgkmcnt(0)")
    for k in range(8):
        a(f"ds_read_b64_tr_b16 {V(WD_+2*k,2)}, v9 offset:{L_WD + k*512}")
    if o.xsleep0:
        a(f"s_sleep {o.xsleep0}")
    stamp(8)
    a.label("L_fx")
    for i in range(2):
        a(f"buffer_load_dwordx4 {V(64+4*i,4)}, v15, {R4(S.RWS)}, s{S.PO} offen offset:{2048*i} sc1")
    if o.xl2:
        a(f"s_add_u32 s{S.KM}, s{S.KM}, 1")
        a(f"s_cmp_ge_u32 s{S.KM}, {o.xl2}")
        a(f"s_cselect_b32 s{S.T0}, {XCHC}, 0")
        a(f"s_add_u32 s{S.PO}, s{S.PO}, s{S.T0}")
    else:
        a(f"s_add_u32 s{S.PO}, s{S.PO}, {XCHC}")
    a(f"s_min_u32 s{S.PO}, s{S.PO}, s{S.POL}")
    if o.stamps:
        a(f"s_add_u32 s{S.RC}, s{S.RC}, 1")
    spin()
    a("s_cbranch_scc1 L_fx_ok")
    a("s_waitcnt vmcnt(1)")
    a(f"v_bitop3_b32 v20, v65, v67, v{VTAG} bitop3:0x7e")
    a("s_waitcnt vmcnt(0)")
    a("v_add_f32 v16, v64, v68")
    a("v_add_f32 v18, v66, v70")
    a(f"v_bitop3_b32 v21, v69, v71, v{VTAG} bitop3:0x7e")
    a("v_or_b32 v20, v20, v21")
    a("v_cmp_ne_u32 vcc, 0, v20")
    a("v_permlane32_swap_b32 v16, v18")
    a("s_cbranch_vccnz L_fxr")
    a.label("L_fx_ok")
    stamp(9)
    a("v_add_f32 v16, v16, v18")
    rnd(16, 16)
    a("v_mov_b32 v18, v16")
    sigmoid(17, 16)
    a("v_permlane32_swap_b32 v16, v18")
    a("v_mul_f32 v17, v17, v16")
    rnd(17, 17)
    a("v_mul_f32 v17, v17, v18")
    a.nop(2)
    a(f"v_mov_b32_dpp v18, v17 quad_perm:[1,0,3,2] {DPPM}")
    a("v_cvt_pk_bf16_f32 v17, v17, v18")
    a.nop(1)
    for i in range(16):
        a(f"v_readlane_b32 s{S.XS+i}, v17, {2*i}")
    a("s_waitcnt lgkmcnt(0)")
    for i in range(16):
        a(f"v_dot2c_f32_bf16 v{24+(i&1)}, s{S.XS+i}, v{WD_+i}")
    a.nop(3)
    a("v_add_f32 v30, v24, v25")
    for c in range(o.pc):
        if c:
            a(f"s_add_u32 s{S.T2}, s{S.T2}, {PARTC}")
        a(f"buffer_store_dwordx2 v[30:31], v13, {R4(S.RWS)}, s{S.T2} offen sc1")
    stamp(10)
    a.label("L_fend")
    a(f"s_cmp_lg_u32 s{S.FIN}, 0")
    a("s_cbranch_scc1 L_fexit")
    a("s_barrier")
    a("ds_read_b32 v26, v14 offset:8")
    a(f"s_mov_b32 s{S.FIN}, 1")
    a("s_waitcnt lgkmcnt(0)")
    a(f"v_readfirstlane_b32 s{S.T0}, v26")
    a(f"s_cmp_eq_u32 s{S.T0}, s{S.FKEY}")
    a(f"s_mov_b32 s{S.FKEY}, s{S.T0}")
    if o.stamps:
        a(f"s_cselect_b32 s{S.T1}, 0, 64")
        a(f"s_add_u32 s{S.RC}, s{S.RC}, s{S.T1}")
        a(f"s_cmp_eq_u32 s{S.T1}, 0")
    a("s_cbranch_scc0 L_redo")
    a.label("L_fexit")
    endprog()
    a.label("L_f5")
    for c in range(1, o.xc):
        a(f"s_add_u32 s{S.L1}, s{S.L1}, {XCHC}")
        a(f"buffer_store_dwordx4 v[28:31], v5, {R4(S.RWS)}, s{S.L1} offen sc1")
    a("s_mov_b64 exec, -1")
    a("s_branch L_fend")
    a.label("L_fxr")
    a("ds_read_b32 v26, v14 offset:8")
    a("s_waitcnt lgkmcnt(0)")
    a(f"v_readfirstlane_b32 s{S.T0}, v26")
    a(f"s_cmp_eq_u32 s{S.T0}, 0")
    a("s_cbranch_scc1 L_fx")
    a(f"s_cmp_eq_u32 s{S.T0}, s{S.FKEY}")
    a("s_cbranch_scc1 L_fx")
    a("s_branch L_fend")

    a.label("L_fh")
    a("s_waitcnt lgkmcnt(0)")
    if o.fesleep:
        a(f"s_sleep {o.fesleep}")
    tag_load()
    ws_setup()
    a(f"v_mov_b32 v14, {L_FKEY}")
    a("v_mov_b32 v6, 0")
    a("ds_write_b32 v14, v6 offset:8")
    if o.spec:
        poll_setup(WS_KEY + 1024 * (RF * CF + RZ * CZ + R2 * C2), 8, 1)
        a(f"s_sleep {o.spec}")
        a("s_waitcnt vmcnt(0)")
        tag_make()
        stamp(1)
        a(f"buffer_load_dwordx4 v[20:23], v5, {R4(S.RWS)}, s{S.PO} offen sc1")
        poll_setup(WS_KEY, RF, CF)
        a("s_waitcnt vmcnt(0)")
        stamp(2)
        a(f"v_cmp_ne_u32 vcc, v{VTAG}, v21")
        a(f"v_cmp_ne_u32 s[{S.EX}:{S.EX+1}], v{VTAG}, v23")
        a("s_mov_b64 exec, vcc")
        a("v_mov_b32 v20, 0")
        a(f"s_mov_b64 exec, s[{S.EX}:{S.EX+1}]")
        a("v_mov_b32 v22, 0")
        a("s_mov_b64 exec, -1")
        a(f"s_or_b64 s[{S.EY}:{S.EY+1}], vcc, s[{S.EX}:{S.EX+1}]")
        wave_max_key(20)
        lds_put(L_FKEY, 20, tag=True)
        a("s_barrier")
        a(f"s_cmp_eq_u64 s[{S.EY}:{S.EY+1}], 0")
        a("s_cbranch_scc1 L_fh2")
        if o.fsleep0:
            a(f"s_sleep {o.fsleep0}")
        stamp(3)
        poll_granules(5, 20, sleep=o.fsleep)
        stamp(4)
        wave_max_key(20)
        a.label("L_fh2")
        lds_put(L_FKEY + 8, 20)
    else:
        poll_setup(WS_KEY, RF, CF)
        if o.fsleep0:
            a(f"s_sleep {o.fsleep0}")
        a("s_waitcnt vmcnt(0)")
        tag_make()
        stamp(3)
        poll_granules(5, 20, sleep=o.fsleep)
        stamp(4)
        wave_max_key(20)
        lds_put(L_FKEY, 20, tag=True)
        a("s_barrier")
        lds_put(L_FKEY + 8, 20)
    a("s_barrier")
    endprog()
    a.label("L_end")
    a("s_endpgm")
    return name


def main():
    ap = argparse.ArgumentParser()
    ap.add_argument("-o", required=True)
    for k, d in dict(stamps=0, pc=1, xc=2, zsleep=8, zsleep0=24, psleep=0, psleep0=22, rsleep=3, ackwait=1, hipre=0, tlate=1,
                     mode=0, k2ack=1, k2sleep0=6, zk2sleep0=0, k2sleep=5, fbar=0, cpf=2, probe=-1, wsoff=0, flate=1, b1a=1, skew=0, gate=1, lds=0, nsgpr=102, prio=1, stag=0, spec=0, b0=2, wthr=0, xpre=0, atouch=10, ftouch=8, xl2=5, npre=3, gfirst=0, isleep0=0, zisleep0=5, b3=1, ztouch=8, zstep=128, touch=0, wdpos=3, wpf=2, fesleep=0, fw0=0, xack=0, fdelay=0, xsleep0=0, fsleep0=37, fsleep=4, spin=17).items():
        ap.add_argument("--" + k, type=int, default=d)
    for k in ("wpol", "outpol", "zpol", "only"):
        ap.add_argument("--" + k, default="")
    ap.add_argument("--mf", default="8,2")
    ap.add_argument("--mz", default="1,3")
    ap.add_argument("--m2", default="8,2")
    ap.add_argument("--hold", default="")
    ap.add_argument("--ev", default="")
    o = ap.parse_args()
    if o.hold:
        o.hold = o.hold.split(":")
    for k in ("mf", "mz", "m2"):
        setattr(o, k, [int(v) for v in getattr(o, k).split(",")])
    for k in ("wpol", "outpol", "zpol"):
        setattr(o, k, (" " + getattr(o, k)) if getattr(o, k) else "")
    a = Asm()
    name = gen(a, o)
    if o.touch:
        insert_stubs(a, [("L_ta_start", "L_ta_end", "L_ta", "L_taback", 9)], step=o.touch)
    reg = []
    if o.atouch:
        reg.append(("L_zjoin", "L_tb_end", "L_tb", "L_tbback", o.atouch))
    if o.ztouch:
        reg.append(("L_tz_start", "L_zend", "L_tz", "L_tzback", o.ztouch))
    if o.ftouch:
        reg.append(("L_tf_start", "L_fend", "L_tf", "L_tfback", o.ftouch))
    if reg:
        insert_stubs(a, reg, step=o.zstep)
    finish(a, name, NVGPR, o.nsgpr, NWG, 576, o.lds or LDS_BYTES, o.o)


main()
```

```python
import argparse
from lib import *

NA, NF, NZ = 128, 112, 16
NWG = NA + NF + NZ
WS_E = 0
WS_ALIVE = 4096
WS_KEY = 64 << 10
WS_KEY2 = 128 << 10
WS_XCH = 192 << 10
XCHC = 28 * 4096
WS_PART = 704 << 10
PZ = 56 * 256
PARTC = NZ * PZ
WS_INT = 2 << 20
CS = 32768 + 256
WS_STAMP = 8 << 20
WS_BYTES = 16 << 20
L_TILE = 0
L_U2 = 16384
L_CT = L_U2
UB = 17 * 64
L_MISC = L_U2 + 16 * UB
L_KSL = L_MISC
L_GKEY = L_MISC + 64
L_ZC = L_MISC + 76
L_ZF = L_MISC + 72
L_EXP = L_MISC + 128
L_DUMP = L_MISC + 192
L_XG2 = L_DUMP + 4 * UB + 256
L_M2 = L_XG2 + 4096
L_WV = L_M2 + 4096
L_XT = L_WV + 2048
L_W = 0
L_WD = 32768
L_RED = L_WD + 16384
L_FKEY = L_RED + 2048
LDS_BYTES = 84 * 1024
MF = "v_mfma_f32_16x16x32_bf16"
LOG2E = 0x3fb8aa3b
DPPM = "row_mask:0xf bank_mask:0xf"
HIM = "0xffff0000"
NVGPR = 168


class S:
    WAVE = 3
    PX = 4
    T0, T1, T2, T3, T4, T5 = 6, 7, 8, 9, 10, 11
    EX = 12
    EY = 14
    PWR, PWG, PWU, PWD, PGW, POUT, PDBG, PWS = 16, 18, 20, 22, 24, 26, 28, 30
    L0, L1, SPT, PIE = 32, 33, 34, 35
    RWS, ROUT = 36, 40
    XS = 44
    GKEY, WSEL, WHICH, Z = 44, 45, 46, 47
    SI0, SI1, ID8, BLK = 48, 49, 50, 51
    IDX, ISZ, TC = 54, 55, 53
    SO = 44
    T1C, HH, TD, TM = 56, 57, 58, 59
    FJ, PO, POL, RC, KM, SPIN = 60, 61, 62, 63, 64, 65
    PO0, L10, T20, FKEY, FIN = 40, 41, 42, 43, 35
    ST = 68


def gen(a, o):
    global WS_KEY, WS_XCH, WS_PART, WS_INT, WS_ALIVE, WS_BYTES
    WS_KEY += o.wsoff << 20
    WS_XCH += o.wsoff << 20
    WS_PART += o.wsoff << 20
    WS_INT += o.wsoff << 20
    WS_ALIVE += o.wsoff << 20
    WS_BYTES = max(WS_BYTES, (o.wsoff + 8) << 20)
    name = NAME + "_kernel"
    kernel_head(a, name)
    VE, VTAG = 30, 31
    PXS = f"s[{S.PX}:{S.PX+1}]"

    def stamp(i):
        if o.stamps:
            a(f"s_memrealtime s[{S.ST+2*i}:{S.ST+2*i+1}]")

    def hold(cp):
        if o.hold and o.hold[0] == cp:
            l = a.L("hold")
            a.label(l)
            a("s_sleep 1")
            a("s_memrealtime s[100:101]")
            a("s_waitcnt lgkmcnt(0)")
            a("s_sub_u32 s100, s100, s66")
            a(f"s_cmp_lt_u32 s100, {o.hold[1]}")
            a(f"s_cbranch_scc1 {l}")

    def touch(pre, n, first, step, back=None, tail=None):
        a("s_mov_b64 exec, 0")
        a(f"s_sub_u32 s{S.TC}, s{S.WAVE}, {first + step}")
        a.label(f"{pre}back")
        a(f"s_add_u32 s{S.TC}, s{S.TC}, {step}")
        for k in range(n):
            a(f"s_cmp_eq_u32 s{S.TC}, {k}")
            a(f"s_cbranch_scc1 {pre}{k}")
        a("s_mov_b64 exec, -1")

    def endprog():
        if o.stamps:
            a("s_waitcnt lgkmcnt(0)")
            a(f"s_add_u32 s{S.ST+28}, s{S.RC}, s{S.ST+30}")
            for i in range(16):
                a(f"v_writelane_b32 v166, s{S.ST+2*i}, {i}")
            a("s_mov_b64 exec, 0xffff")
            a(f"s_lshl4_add_u32 s{S.T0}, s2, s{S.WAVE}")
            a(f"s_lshl_b32 s{S.T0}, s{S.T0}, 7")
            a(f"s_add_u32 s{S.T0}, s{S.T0}, {WS_STAMP}")
            a(f"v_lshl_add_u32 v165, v0, 3, s{S.T0}")
            a("v_mov_b32 v167, 0")
            a(f"global_store_dwordx2 v165, v[166:167], s[{S.PWS}:{S.PWS+1}]" + (" sc1" if o.ev else ""))
        a("s_endpgm")

    def spin():
        a(f"s_add_u32 s{S.SPIN}, s{S.SPIN}, 1")
        a(f"s_lshr_b32 s{S.SPT}, s{S.SPIN}, {o.spin}")

    def poll_setup(base, R, C):
        a(f"s_and_b32 s{S.PO}, s2, {R-1}")
        a(f"s_mul_i32 s{S.PO}, s{S.PO}, {1024*C}")
        a(f"s_add_u32 s{S.PO}, s{S.PO}, {base}")
        a(f"s_add_u32 s{S.POL}, s{S.PO}, {1024*(C-1)}")

    def set_exec(n):
        if n >= 64:
            a("s_mov_b64 exec, -1")
        elif n <= 31:
            a(f"s_mov_b64 exec, {(1 << n) - 1:#x}")
        else:
            a("s_mov_b32 exec_lo, -1")
            a(f"s_mov_b32 exec_hi, {(1 << (n - 32)) - 1:#x}")

    RS = 8 if o.spec else 0
    RF, CF = o.mf
    RZ, CZ = o.mz
    R2, C2 = o.m2
    assert RF * CF + RZ * CZ + R2 * C2 + RS <= 64

    def poll_granules(vaddr, vd, sleep=0, step=1024):
        l = a.L("poll")
        if sleep:
            a(f"s_branch {l}_1")
        a.label(l)
        if sleep:
            a(f"s_sleep {sleep}")
            a.label(f"{l}_1")
        a(f"buffer_load_dwordx4 {V(vd,4)}, v{vaddr}, {R4(S.RWS)}, s{S.PO} offen sc1")
        a(f"s_add_u32 s{S.PO}, s{S.PO}, {step}")
        a(f"s_min_u32 s{S.PO}, s{S.PO}, s{S.POL}")
        if o.stamps:
            a(f"s_add_u32 s{S.RC}, s{S.RC}, 1")
        spin()
        a("s_waitcnt vmcnt(0)")
        a(f"s_cbranch_scc1 {l}_ok")
        a(f"v_cmp_ne_u32 vcc, v{VTAG}, v{vd+1}")
        a(f"v_cmp_ne_u32 s[{S.EX}:{S.EX+1}], v{VTAG}, v{vd+3}")
        a(f"s_or_b64 vcc, vcc, s[{S.EX}:{S.EX+1}]")
        a(f"s_cbranch_vccnz {l}")
        a.label(f"{l}_ok")

    def wave_max_key(vd):
        a(f"v_max_u32 v{vd}, v{vd}, v{vd+2}")
        for r in ("row_ror:8", "row_ror:4", "row_ror:2", "row_ror:1"):
            a.nop(2)
            a(f"v_max_u32_dpp v{vd}, v{vd}, v{vd} {r} {DPPM}")
        a.nop(2)
        a(f"v_max_u32_dpp v{vd}, v{vd}, v{vd} row_bcast:15 row_mask:0xa bank_mask:0xf")
        a.nop(2)
        a(f"v_max_u32_dpp v{vd}, v{vd}, v{vd} row_bcast:31 row_mask:0xc bank_mask:0xf")

    def lds_put(addr, v, tag=False):
        a(f"v_mov_b32 v9, {addr}")
        a("s_mov_b32 exec_lo, 0")
        a("s_brev_b32 exec_hi, 1")
        if tag:
            a(f"ds_write2_b32 v9, v{v}, v{VTAG} offset1:1")
        else:
            a(f"ds_write_b32 v9, v{v}")
        a("s_mov_b64 exec, -1")
        a("s_waitcnt lgkmcnt(0)")

    def sigmoid(d, s):
        a(f"v_mul_f32 v{d}, {LOG2E | 0x80000000:#x}, v{s}")
        a(f"v_exp_f32 v{d}, v{d}")
        a.nop(1)
        a(f"v_add_f32 v{d}, 1.0, v{d}")
        a(f"v_rcp_f32 v{d}, v{d}")
        a.nop(1)

    def rnd(d, s):
        a(f"v_cvt_pk_bf16_f32 v{d}, v{s}, v{s}")
        a(f"v_and_b32 v{d}, {HIM}, v{d}")

    def ws_setup():
        a.srd(S.RWS, S.PWS, WS_BYTES)
        a(f"s_mov_b32 s{S.SPIN}, 0")

    def tag_load():
        a(f"v_mov_b32 v{VTAG}, 0")
        a(f"global_load_dword v{VE}, v{VTAG}, s[{S.PWS}:{S.PWS+1}]")
        a(f"s_mov_b32 s{S.KM}, 0x9E3779B1")

    def tag_make():
        a(f"v_mul_lo_u32 v{VTAG}, v{VE}, s{S.KM}")
        a(f"v_add_u32 v{VTAG}, 0x7F4A7C15, v{VTAG}")

    a(f"s_load_dwordx2 s[{S.PX}:{S.PX+1}], s[0:1], {KA_X}")
    a(f"s_load_dwordx16 s[16:31], s[0:1], {KA_WR}")
    if o.stamps:
        for i in range(1, 16):
            a(f"s_mov_b32 s{S.ST+2*i}, 0")
        a(f"s_mov_b32 s{S.RC}, 0")
    stamp(0)
    if o.hold or o.probe >= 0:
        a("s_memrealtime s[66:67]")
    if o.skew:
        a("s_and_b32 s6, s2, 7")
        a("s_cmp_lg_u32 s6, 5")
        a("s_cbranch_scc1 L_noskew")
        a(f"s_sleep {o.skew}")
        a.label("L_noskew")
    a("v_lshrrev_b32 v1, 6, v0")
    a("v_and_b32 v0, 63, v0")
    a(f"v_readfirstlane_b32 s{S.WAVE}, v1")
    a("v_and_b32 v1, 15, v0")
    a("v_lshrrev_b32 v2, 4, v0")
    a(f"s_and_b32 s{S.T0}, s2, 7")
    a(f"s_sub_u32 s{S.WAVE}, s{S.WAVE}, 1")
    a(f"s_min_u32 s{S.WAVE}, s{S.WAVE}, 8")
    a(f"s_lshr_b32 s{S.T1}, s2, 3")
    a(f"s_cmp_ge_u32 s2, {NA}")
    a("s_cbranch_scc1 L_notA")
    if o.only == "F":
        a("s_endpgm")

    VROW, VG16, VSGN, VTR, VST = 3, 5, 8, 10, 11
    VLD, VUW, VUX, VUR0, VUR1 = 10, 11, 28, 29, 30
    XR, WR, GW, CO = 16, 24, 24, 24
    CM, AOP, ACC = 32, 96, 112
    LD, DA0, DA1, TP, X16, PK = 32, 64, 32, 80, 96, 48
    M1, GA, XG = 100, 148, 152
    Cc, Ss = 64, 68
    UO, PQ, M2 = 32, 48, 64

    def rows_setup(wreg):
        a(f"s_lshl3_add_u32 s{S.T5}, s{S.HH}, s{wreg}")
        a(f"s_lshl_b32 s{S.T5}, s{S.T5}, 7")
        a(f"s_add_u32 s{S.TD}, s{S.T5}, s{S.T1C}")
        a(f"s_sub_u32 s{S.TM}, 2048, s{S.TD}")
        a(f"s_cmp_eq_u32 s{S.TD}, 0")
        a(f"s_cselect_b32 s{S.TM}, 1024, s{S.TM}")
        a(f"s_lshl_b32 s{S.T4}, s{S.TD}, 10")
        a(f"s_lshl_b32 s{S.T5}, s{S.TM}, 10")
        a(f"v_add_u32 v6, s{S.T4}, v{VG16}")
        a(f"v_add_u32 v7, s{S.T5}, v{VG16}")

    def vrow_setup():
        a("v_and_b32 v6, 1, v2")
        a("v_lshlrev_b32 v6, 5, v6")
        a("v_lshl_add_u32 v6, v1, 6, v6")
        a("v_lshrrev_b32 v7, 1, v2")
        a(f"v_lshl_add_u32 v{VROW}, v7, 4, v6")

    def rows_load():
        a(f"global_load_dwordx4 {V(XR,4)}, v6, {PXS}{o.xpol}")
        a(f"global_load_dwordx4 {V(XR+4,4)}, v7, {PXS}{o.xpol}")

    def sgn_setup():
        a(f"v_lshlrev_b32 v{VSGN}, 31, v1")
        a(f"v_lshrrev_b32 v9, 16, v{VSGN}")
        a(f"v_or_b32 v{VSGN}, v{VSGN}, v9")

    def sgn_setup2():
        a(f"v_lshlrev_b32 v{VSGN}, 31, v1")
        a(f"v_lshrrev_b32 v14, 16, v{VSGN}")
        a(f"v_or_b32 v{VSGN}, v{VSGN}, v14")

    def tile_ids():
        a(f"s_bitcmp1_b32 s{S.T1}, 3")
        a(f"s_cselect_b32 s{S.T2}, s{S.T3}, s{S.T2}")
        a(f"s_and_b32 s{S.T3}, s{S.T1}, 7")
        a(f"s_lshl3_add_u32 s{S.BLK}, s{S.T2}, s{S.T3}")
        a(f"s_lshl_b32 s{S.PIE}, s{S.T2}, 5")
        a(f"s_add_u32 s{S.PIE}, s{S.PIE}, s{S.T3}")
        a(f"s_lshl_b32 s{S.PIE}, s{S.PIE}, 6")

    def vst_setup():
        a(f"v_mul_u32_u24 v{VST}, {CS}, v1")
        a(f"v_lshl_add_u32 v{VST}, v2, 4, v{VST}")

    def const_d2():
        R = 40
        a("v_lshlrev_b32 v6, 2, v2")
        a("v_cvt_f32_u32 v7, v1")
        a("v_cvt_f32_u32 v6, v6")
        a("v_mul_f32 v7, 0x3d800000, v7")
        for hf in range(2):
            if hf:
                a("v_add_f32 v7, 0x3d800000, v7")
            a("v_mul_f32 v9, v6, v7")
            for jj in range(4):
                a(f"v_cos_f32 v{Cc+jj}, v9")
                a(f"v_sin_f32 v{Ss+jj}, v9")
                if jj < 3:
                    a("v_add_f32 v9, v9, v7")
            a.nop(1)
            for jj in range(4):
                if hf == 0:
                    a(f"v_cvt_pk_bf16_f32 v{R+jj}, v{Cc+jj}, v{Ss+jj}")
                    a(f"v_cvt_pk_bf16_f32 v{R+8+jj}, -v{Ss+jj}, v{Cc+jj}")
                else:
                    a(f"v_cvt_pk_bf16_f32 v{R+4+jj}, v{Cc+jj}, -v{Ss+jj}")
                    a(f"v_cvt_pk_bf16_f32 v{R+12+jj}, -v{Ss+jj}, -v{Cc+jj}")
        for k in range(4):
            a(f"ds_write_b128 v{VG16}, {V(R+4*k,4)} offset:{L_M2 + 1024*k}")

    if o.touch:
        a("s_mov_b64 exec, 0")
        for k in range(9):
            a(f"s_cmp_eq_u32 s{S.WAVE}, {(k + 8) % 9}")
            a(f"s_cbranch_scc1 L_ta{k}")
        a.label("L_taback")
        a("s_mov_b64 exec, -1")
        a.label("L_ta_start")
    a(f"s_add_u32 s{S.T2}, s{S.T0}, 1")
    a(f"s_sub_u32 s{S.T3}, 15, s{S.T0}")
    a(f"s_cmp_eq_u32 s{S.WAVE}, 8")
    a("s_cbranch_scc1 L_ah")
    a(f"s_and_b32 s{S.HH}, s{S.T1}, 1")
    a(f"s_bitcmp1_b32 s{S.T1}, 1")
    a(f"s_cselect_b32 s{S.T4}, s{S.T3}, s{S.T2}")
    a(f"s_lshr_b32 s{S.T5}, s{S.T1}, 2")
    a(f"s_lshl4_add_u32 s{S.T1C}, s{S.T5}, s{S.T4}")
    a(f"v_lshlrev_b32 v{VG16}, 4, v0")
    a(f"v_mov_b32 v{VROW}, 0")
    a(f"s_cmp_lg_u32 s{S.T0}, 7")
    a("s_cbranch_scc1 L_k7")
    a(f"s_lshr_b32 s{S.T5}, s{S.T1}, 1")
    a(f"s_lshl3_add_u32 s{S.T1C}, s{S.T5}, 8")
    a(f"s_mov_b32 s{S.T2}, 0")
    a(f"s_cmp_eq_u32 s2, 127")
    a(f"s_cselect_b32 s{S.T1C}, 0, s{S.T1C}")
    a(f"s_cselect_b32 s{S.HH}, 0, s{S.HH}")
    a.label("L_k7")
    rows_setup(S.WAVE)
    a("s_waitcnt lgkmcnt(0)")
    rows_load()
    stamp(1)
    if o.b0 == 2:
        a("s_barrier")
    tile_ids()

    def tile_dma():
        a(f"s_lshl_b32 s{S.T4}, s{S.WAVE}, 11")
        a(f"s_add_u32 s{S.T5}, s{S.T4}, s{S.BLK}")
        a(f"s_lshl_b32 s{S.T5}, s{S.T5}, 7")
        a(f"s_mov_b32 m0, s{S.T4}")
        a("v_and_b32 v9, 7, v0")
        a("v_bfe_u32 v13, v0, 4, 1")
        a("v_xor_b32 v9, v9, v13")
        a("v_lshrrev_b32 v13, 3, v0")
        a(f"v_lshl_add_u32 v9, v9, 4, s{S.T5}")
        a("v_lshl_add_u32 v13, v13, 14, v9")
        a(f"global_load_lds_dwordx4 v13, {PXS}")
        a(f"s_add_u32 m0, s{S.T4}, 1024")
        a("v_add_u32 v13, 0x20000, v13")
        a(f"global_load_lds_dwordx4 v13, {PXS}")
        stamp(2)

    if not o.tlate:
        tile_dma()
    C1, S1, K = AOP, AOP + 4, AOP + 8
    a(f"s_lshr_b32 s{S.T0}, s{S.WAVE}, 2")
    a(f"s_and_b32 s{S.T1}, s{S.WAVE}, 1")
    a(f"s_bfe_u32 s{S.T2}, s{S.WAVE}, 0x10001")
    a(f"v_lshl_add_u32 v6, s{S.T0}, 4, v1")
    a(f"s_lshl3_add_u32 s{S.T3}, s{S.T2}, s{S.T1}")
    a(f"s_lshl_b32 s{S.T3}, s{S.T3}, 2")
    a("v_cvt_f32_u32 v6, v6")
    a(f"v_lshl_add_u32 v7, v2, 3, s{S.T3}")
    a("v_mul_f32 v6, 0x3c000000, v6")
    a("v_cvt_f32_u32 v7, v7")
    a("v_mul_f32 v7, v7, v6")
    for j in range(4):
        a(f"v_cos_f32 v{C1+j}, v7")
        a(f"v_sin_f32 v{S1+j}, v7")
        if j < 3:
            a("v_add_f32 v7, v7, v6")
    if o.tlate == 2:
        a(f"global_load_dwordx4 {V(WR,4)}, v{VG16}, s[{S.PWR}:{S.PWR+1}]")
        tile_dma()
    a(f"s_lshl_b32 s{S.T4}, s{S.T0}, 13")
    a(f"s_lshl_b32 s{S.T5}, s{S.T2}, 10")
    a(f"s_lshl3_add_u32 s{S.T5}, s{S.T1}, s{S.T5}")
    a(f"v_add_u32 v15, s{S.T4}, v{VG16}")
    a(f"v_add_u32 v9, s{S.T5}, v15")
    a(f"v_cvt_pk_bf16_f32 v{K+0}, v{C1}, v{C1+1}")
    a(f"v_cvt_pk_bf16_f32 v{K+1}, v{C1+2}, v{C1+3}")
    a(f"v_cvt_pk_bf16_f32 v{K+2}, -v{S1}, -v{S1+1}")
    a(f"v_cvt_pk_bf16_f32 v{K+3}, -v{S1+2}, -v{S1+3}")
    a("v_cmp_eq_f32 vcc, 0, v6")
    a(f"v_cvt_pk_bf16_f32 v{K+4}, v{C1}, -v{S1+1}")
    a(f"v_cvt_pk_bf16_f32 v{K+5}, -v{C1+2}, v{S1+3}")
    a(f"v_cvt_pk_bf16_f32 v{K+6}, -v{S1}, -v{C1+1}")
    a(f"v_cvt_pk_bf16_f32 v{K+7}, v{S1+2}, v{C1+3}")
    a(f"ds_write_b64 v9, {V(K,2)} offset:{L_CT}")
    a(f"ds_write_b64 v9, {V(K+4,2)} offset:{L_CT+4096}")
    a(f"ds_write_b64 v9, {V(K+6,2)} offset:{L_CT+6144}")
    a("s_mov_b64 exec, vcc")
    a(f"v_mov_b32 v{K+2}, 0xbf803f80")
    a(f"v_mov_b32 v{K+3}, 0xbf803f80")
    a("s_mov_b64 exec, -1")
    a(f"ds_write_b64 v9, {V(K+2,2)} offset:{L_CT+2048}")
    if o.tlate != 2:
        a(f"global_load_dwordx4 {V(WR,4)}, v{VG16}, s[{S.PWR}:{S.PWR+1}]")
    if o.tlate == 1:
        tile_dma()
    a("v_mov_b32 v12, 0")
    a("v_mov_b32 v13, 0")
    stamp(3)
    if o.b0 == 1:
        a("s_waitcnt lgkmcnt(0)")
        a("s_barrier")
        for k in range(2):
            for t in range(4):
                a(f"ds_read_b128 {V(CM+16*t+4*k,4)}, v15 offset:{L_CT + t*2048 + k*1024}")

    def dots(w, fill=()):
        fill = list(fill)

        def pad(n):
            while n and fill:
                a(fill.pop(0))
                n -= 1
            a.nop(n)

        for i in range(4):
            a(f"v_dot2c_f32_bf16 v12, v{XR+i}, v{w+i}")
            a(f"v_dot2c_f32_bf16 v13, v{XR+4+i}, v{w+i}")
        pad(3)
        a("v_permlane32_swap_b32 v12, v13")
        a("v_add_f32 v12, v12, v13")
        a("v_mov_b32 v13, v12")
        pad(2)
        a("v_permlane16_swap_b32 v12, v13")
        a("v_add_f32 v12, v12, v13")
        for r in (8, 4, 2, 1):
            pad(2)
            a(f"v_add_f32_dpp v12, v12, v12 row_ror:{r} {DPPM}")
        rnd(12, 12)
        for x in fill:
            a(x)

    a(f"s_waitcnt vmcnt({2 if o.tlate else 0})")
    stamp(4)
    dots(WR, [f"s_sub_u32 s{S.T4}, 0xffff, s{S.TD}", f"s_sub_u32 s{S.T5}, 0xffff, s{S.TM}", f"v_mov_b32 v4, s{S.T4}",
              f"v_writelane_b32 v4, s{S.T5}, 32", f"v_mov_b32 v9, {L_KSL}",
              f"v_lshlrev_b32 v{VSGN}, 31, v1", f"v_lshrrev_b32 v7, 16, v{VSGN}", f"v_or_b32 v{VSGN}, v{VSGN}, v7",
              "v_bfe_u32 v6, v0, 2, 2", "v_and_b32 v14, 3, v0", f"v_lshl_add_u32 v14, v14, 1, s{S.T2}",
              f"v_lshl_add_u32 v{VTR}, v2, 3, v6", "v_lshrrev_b32 v6, 1, v6", "v_xor_b32 v14, v14, v6"])
    a("v_ashrrev_i32 v7, 31, v12")
    a("v_or_b32 v7, 0x80000000, v7")
    a("v_xor_b32 v7, v7, v12")
    a(f"v_and_b32 v7, {HIM}, v7")
    a("v_or_b32 v7, v7, v4")
    a("s_mov_b32 exec_lo, 1")
    a("s_mov_b32 exec_hi, 1")
    a("ds_max_u32 v9, v7")
    a("s_mov_b64 exec, -1")
    if o.b1a:
        a("s_waitcnt lgkmcnt(0)")
        hold("K")
        a("s_barrier")
    if o.b0 == 2:
        for k in range(2):
            for t in range(4):
                a(f"ds_read_b128 {V(CM+16*t+4*k,4)}, v15 offset:{L_CT + t*2048 + k*1024}")
    a(f"s_lshl_b32 s{S.T1}, s{S.T1}, 3")
    a(f"v_lshl_add_u32 v14, v14, 4, s{S.T1}")
    a(f"v_lshl_add_u32 v{VTR}, v{VTR}, 7, v14")
    a("v_lshlrev_b32 v9, 4, v2")
    a("s_waitcnt vmcnt(0)" + ("" if o.b0 == 2 else " lgkmcnt(0)"))
    hold("B1")
    a("s_barrier")
    stamp(5)
    if o.b0 == 2:
        a("s_waitcnt lgkmcnt(5)")
    a(f"ds_read_b128 v[28:31], v9 offset:{L_EXP}")
    for k in range(4):
        for h in range(2):
            a(f"ds_read_b64_tr_b16 {V(AOP+4*k+2*h,2)}, v{VTR} offset:{L_TILE + k*4096 + h*512}")
        if k < 2 and not o.b0:
            for t in range(4):
                a(f"ds_read_b128 {V(CM+16*t+4*k,4)}, v15 offset:{L_CT + t*2048 + k*1024}")
        if k == 1 and not o.b0:
            a("s_waitcnt lgkmcnt(9)")
    a(f"global_load_dwordx4 {V(GW,4)}, v{VG16}, s[{S.PGW}:{S.PGW+1}]")
    xors = [f"v_xor_b32 v{CM+t*16+8+4*kp+r}, v{CM+t*16+4*kp+r}, v{VSGN}" for kp in range(2) for t in range(4) for r in range(4)]
    misc = [f"s_mul_i32 s{S.SO}, s{S.T0}, {16*CS}",
            f"s_add_u32 s{S.SO}, s{S.SO}, s{S.PIE}",
            f"s_and_b32 s{S.T4}, s{S.WAVE}, 3",
            f"s_lshl_b32 s{S.T4}, s{S.T4}, 9",
            f"s_add_u32 s{S.SO}, s{S.SO}, s{S.T4}",
            f"s_add_u32 s{S.SO}, s{S.SO}, {WS_INT}",
            f"s_mov_b32 s{S.RWS}, s{S.PWS}", f"s_mov_b32 s{S.RWS+1}, s{S.PWS+1}", f"s_mov_b32 s{S.RWS+2}, {WS_BYTES:#x}",
            f"s_mov_b32 s{S.RWS+3}, 0x20000",
            f"s_add_u32 s{S.SO+1}, s{S.SO}, {32*CS}", f"s_mov_b32 s{S.T5}, 0xfffefffe", f"s_mov_b32 s{S.T4}, 0x07060302",
            f"v_mul_u32_u24 v{VST}, {CS}, v1", f"v_lshl_add_u32 v{VST}, v2, 4, v{VST}",
            ]
    fill = xors + misc
    for k in range(4):
        for t in range(4):
            if o.b0:
                if t == 0:
                    a(f"s_waitcnt lgkmcnt({6-2*k})")
            elif k == 0:
                a(f"s_waitcnt lgkmcnt({13-t})")
            elif k == 1:
                a(f"s_waitcnt lgkmcnt({7-t})")
            elif t == 0:
                a(f"s_waitcnt lgkmcnt({2 if k == 2 else 0})")
            c = "0" if k == 0 else V(ACC + 4 * t, 4)
            a(f"{MF} {V(ACC+4*t,4)}, {V(AOP+4*k,4)}, {V(CM+16*t+4*k,4)}, {c}")
            n = 4 if k < 2 else 2
            if k < 3 or t < 3:
                for _ in range(n):
                    if fill:
                        x = fill.pop(0)
                        if x != "TAGWAIT":
                            a(x)
    for x in fill:
        a(x)
    a("v_mov_b32 v12, 0")
    a("v_mov_b32 v13, 0")
    for h in range(2):
        for i in range(8):
            a(f"v_add_u32 v{ACC+8*h+i}, 0x10000, v{ACC+8*h+i}")
        for i in range(4):
            a(f"v_perm_b32 v{AOP+4*h+i}, v{ACC+8*h+4+i}, v{ACC+8*h+i}, s{S.T4}")
        for i in range(4):
            a(f"v_and_or_b32 v{AOP+4*h+i}, v{AOP+4*h+i}, s{S.T5}, v{28+i}")
        a(f"buffer_store_dwordx4 {V(AOP+4*h,4)}, v{VST}, {R4(S.RWS)}, s{S.SO+h} offen sc1")
    a(f"s_mov_b32 s{S.SPIN}, 0")
    a(f"s_mov_b32 s{S.ISZ}, 0")
    stamp(7)
    if o.only == "P1":
        a("s_endpgm")
    a.label("L_ta_end")

    gwait = [2]

    def gates(full):
        if full:
            a(f"s_waitcnt vmcnt({gwait[0]})")
        dots(GW)
        if full:
            a(f"s_lshl_b32 s{S.T0}, s{S.WAVE}, 11")
            a(f"v_add_u32 v6, s{S.T0}, v{VG16}")
            a(f"ds_write_b128 v6, {V(XR,4)} offset:{L_XT}")
            a(f"ds_write_b128 v6, {V(XR+4,4)} offset:{L_XT+1024}")
            a(f"v_lshl_add_u32 v7, v1, 6, s{S.T0}")
            a("v_lshl_add_u32 v7, v2, 3, v7")
            a("s_waitcnt lgkmcnt(0)")
            for r in range(2):
                a(f"ds_read2_b64 {V(XR+4*r,4)}, v7 offset0:{0} offset1:{4}" if False else f"ds_read_b64 {V(XR+4*r,2)}, v7 offset:{L_XT+1024*r}")
                a(f"ds_read_b64 {V(XR+4*r+2,2)}, v7 offset:{L_XT+1024*r+32}")
            vrow_setup()
        sigmoid(13, 12)
        rnd(13, 13)
        a("v_sub_f32 v14, 1.0, v13")
        rnd(14, 14)
        a(f"v_readlane_b32 s{S.T0}, v13, 0")
        a(f"v_readlane_b32 s{S.T1}, v13, 32")
        a(f"v_readlane_b32 s{S.T2}, v14, 0")
        a(f"v_readlane_b32 s{S.T3}, v14, 32")
        a(f"s_xor_b32 s{S.T4}, s{S.T0}, 0x80000000")
        a(f"s_cmp_eq_u32 s{S.TD}, 0")
        a(f"s_cselect_b32 s{S.T4}, 0, s{S.T4}")
        a(f"s_cselect_b32 s{S.T5}, 0, s{S.T1}")
        if not full:
            return
        a(f"v_mov_b32 v{CO}, s{S.T0}")
        a(f"v_mov_b32 v{CO+1}, s{S.T4}")
        a(f"v_mov_b32 v{CO+2}, s{S.T5}")
        a(f"v_mov_b32 v{CO+3}, s{S.T1}")
        a(f"v_mov_b32 v13, s{S.T2}")
        a(f"v_mov_b32 v14, s{S.T3}")
        a("s_waitcnt lgkmcnt(0)")
        for r in range(2):
            for i in range(4):
                a(f"v_lshlrev_b32 v{XG+8*r+2*i}, 16, v{XR+4*r+i}")
                a(f"v_and_b32 v{XG+8*r+2*i+1}, {HIM}, v{XR+4*r+i}")
            for i in range(8):
                a(f"v_mul_f32 v{XG+8*r+i}, v{13+r}, v{XG+8*r+i}")

    def addr_ur(wreg):
        a(f"s_mul_i32 s{S.T1}, s{wreg}, {2*UB}")
        a("v_bfe_u32 v7, v1, 1, 2")
        a("v_xor_b32 v7, v7, v2")
        a(f"v_lshl_add_u32 v7, v7, 4, s{S.T1}")
        a(f"v_lshl_add_u32 v{VUR0}, v1, 6, v7")
        a("v_sub_u32 v6, 16, v1")
        a("v_bfe_u32 v7, v6, 1, 2")
        a("v_xor_b32 v7, v7, v2")
        a(f"v_lshl_add_u32 v7, v7, 4, s{S.T1}")
        a(f"v_lshl_add_u32 v{VUR1}, v6, 6, v7")

    def addr_p2():
        a("v_lshlrev_b32 v6, 4, v1")
        a(f"v_lshl_add_u32 v{VLD}, v2, 13, v6")
        a(f"v_mul_u32_u24 v6, {4*UB}, v2")
        a("v_bfe_u32 v7, v1, 1, 2")
        a(f"v_xor_b32 v7, s{S.WAVE}, v7")
        a("v_lshl_add_u32 v7, v7, 4, v6")
        a(f"v_lshl_add_u32 v{VUW}, v1, 6, v7")
        a(f"s_lshl4_add_u32 s{S.T1}, s{S.WAVE}, 1024")
        a(f"v_mov_b32 v9, {L_DUMP - L_U2}")
        a(f"v_lshl_add_u32 v{VUX}, v0, 1, v9")
        a(f"v_lshl_add_u32 v7, v1, 1, s{S.T1}")
        a("s_mov_b32 exec_lo, 0x00ff00ff")
        a("s_mov_b32 exec_hi, 0x00ff00ff")
        a(f"v_add_u32 v{VUX}, v7, v6")
        a("s_mov_b64 exec, -1")

    EXP = 96

    def exp_setup():
        a("v_and_b32 v6, 3, v1")
        a("v_lshlrev_b32 v6, 4, v6")
        a(f"ds_read_b128 {V(EXP,4)}, v6 offset:{L_EXP}")
        a("s_waitcnt lgkmcnt(0)")

    def exp_make():
        a("v_lshlrev_b32 v6, 1, v1")
        a(f"v_lshrrev_b32 v6, v6, v{VTAG}")
        a("v_lshlrev_b32 v7, 15, v6")
        a("v_and_b32 v6, 1, v6")
        a("v_and_b32 v7, 0x10000, v7")
        a("v_or_b32 v6, v6, v7")
        a("v_lshlrev_b32 v7, 2, v1")
        a(f"ds_write_b32 v7, v6 offset:{L_EXP}")
        a("s_waitcnt lgkmcnt(0)")

    def const_d1():
        a("v_cvt_f32_u32 v6, v1")
        a(f"s_lshl_b32 s{S.T0}, s{S.WAVE}, 2")
        a(f"v_lshl_add_u32 v7, v2, 6, s{S.T0}")
        a("v_mul_f32 v6, 0x3b000000, v6")
        a("v_cvt_f32_u32 v7, v7")
        a("v_mul_f32 v15, 0x41800000, v6")
        a("v_mul_f32 v7, v7, v6")
        for ib in range(4):
            if ib:
                a("v_add_f32 v7, v7, v6")
            for j in range(4):
                src = "v7" if j == 0 else "v9"
                a(f"v_cos_f32 v{Cc+j}, {src}")
                a(f"v_sin_f32 v{Ss+j}, {src}")
                if j < 3:
                    a(f"v_add_f32 v9, {src}, v15")
            b = M1 + 12 * ib
            a(f"v_mov_b32 v{b+8}, 0")
            for p in range(2):
                a(f"v_cvt_pk_bf16_f32 v{b+p}, v{Cc+2*p}, v{Cc+2*p+1}")
                a(f"v_cvt_pk_bf16_f32 v{b+4+p}, -v{Ss+2*p}, -v{Ss+2*p+1}")
            for p in range(2):
                a(f"v_xor_b32 v{b+2+p}, v{b+p}, v{VSGN}")
                a(f"v_xor_b32 v{b+6+p}, v{b+4+p}, v{VSGN}")
        a("v_lshrrev_b32 v6, 1, v1")
        a(f"v_add_u32 v7, s{S.T0}, v6")
        a("v_and_b32 v9, 1, v1")
        a("v_lshl_add_u32 v7, v9, 3, v7")
        a("v_cvt_f32_u32 v7, v7")
        a("v_mul_f32 v7, 0x3d000000, v7")
        a("v_cos_f32 v7, v7")
        for ib in range(4):
            m = 0x00030003 << (2 * ib)
            a(f"s_mov_b32 exec_lo, {m:#x}")
            a(f"s_mov_b32 exec_hi, {m:#x}")
            a(f"v_cvt_pk_bf16_f32 v{M1+12*ib+8}, v7, -v7")
        a("s_mov_b64 exec, -1")
        for ib in range(4):
            for p in range(1, 4):
                a(f"v_mov_b32 v{M1+12*ib+8+p}, v{M1+12*ib+8}")

    def const_ga():
        a("v_lshrrev_b32 v6, 1, v1")
        a(f"s_lshl_b32 s{S.T0}, s{S.HH}, 10")
        a(f"s_add_u32 s{S.T0}, s{S.T0}, s{S.T1C}")
        a(f"v_lshl_add_u32 v6, v6, 7, s{S.T0}")
        a("v_and_b32 v7, 1, v1")
        a("v_lshlrev_b32 v9, 9, v7")
        l0, ld = a.L("g0"), a.L("gd")
        a(f"s_cmp_lg_u32 s{S.T1C}, 0")
        a(f"s_cbranch_scc1 {l0}")
        a("s_mov_b32 exec_lo, 0x00020002")
        a("s_mov_b32 exec_hi, 0x00020002")
        a("v_mov_b32 v6, 0x400")
        a("v_mov_b32 v9, 0")
        a("s_mov_b64 exec, -1")
        a.label(l0)
        a("v_lshlrev_b32 v7, 2, v2")
        a("v_mad_u32_u24 v9, v7, v6, v9")
        a("v_cvt_f32_u32 v6, v6")
        a("v_cvt_f32_u32 v9, v9")
        a("v_mul_f32 v6, 0x3a000000, v6")
        a("v_mul_f32 v9, 0x3a000000, v9")
        for jj in range(4):
            a(f"v_cos_f32 v{Cc+jj}, v9")
            a(f"v_sin_f32 v{Ss+jj}, v9")
            if jj < 3:
                a("v_add_f32 v9, v9, v6")
        a(f"s_and_b32 s{S.T1}, s{S.T1C}, 63")
        a.nop(1)
        for jj in range(4):
            a(f"v_cvt_pk_bf16_f32 v{GA+jj}, v{Cc+jj}, v{Ss+jj}")
        a(f"s_cmp_lg_u32 s{S.T1}, 0")
        a(f"s_cbranch_scc1 {ld}")
        a(f"s_lshr_b32 s{S.T1}, s{S.T1C}, 2")
        for jj in range(4):
            a(f"v_and_b32 v{GA+jj}, 0xffff, v{GA+jj}")
            a(f"v_lshlrev_b32 v{GA+jj}, s{S.T1}, v{GA+jj}")
        a.label(ld)

    def int_base():
        a(f"s_and_b32 s{S.T1}, s{S.T1C}, 63")
        a(f"s_mul_i32 s{S.L0}, s{S.T1}, {CS}")
        a(f"s_lshl_b32 s{S.T1}, s{S.WAVE}, 9")
        a(f"s_add_u32 s{S.L0}, s{S.L0}, s{S.T1}")
        a(f"s_add_u32 s{S.L0}, s{S.L0}, {WS_INT}")
        a(f"s_add_u32 s{S.L1}, s{S.L0}, 4096")

    def m2_addr():
        a(f"s_cmp_eq_u32 s{S.TD}, 0")
        a(f"s_cselect_b32 s{S.T0}, 0, 2048")
        a(f"v_add_u32 v4, s{S.T0}, v{VG16}")

    def int_loads(ah):
        for jj in range(4):
            so = S.L0 if jj < 2 else S.L1
            a(f"buffer_load_dwordx4 {V(LD+16*ah+4*jj,4)}, v{VLD}, {R4(S.RWS)}, s{so} offen offset:{(jj & 1)*2048 + ah*256} sc1")

    a.srd(S.ROUT, S.POUT, 0x200000)
    a(f"s_cmp_ge_u32 s{S.WAVE}, 4")
    a("s_cbranch_scc1 L_hi0")
    if o.prio & 1:
        a("s_setprio 2")
    pre = [lambda: (addr_p2(), int_base(), const_ga(), exp_setup()), const_d1, lambda: gates(True), lambda: (addr_ur(S.WAVE), m2_addr())]
    if o.gfirst:
        pre[1], pre[2] = pre[2], pre[1]
    for f in pre[:o.npre]:
        f()
    stamp(8)
    a(f"s_waitcnt vmcnt({0 if o.ackwait else 2})")
    if o.b3:
        a("s_barrier")
    if o.isleep0:
        a(f"s_sleep {o.isleep0}")
    hold("B4")
    stamp(9)
    if o.stag:
        a(f"s_cmp_lg_u32 s{S.HH}, 0")
        a("s_cbranch_scc1 L_stg1")
        int_loads(0)
        a(f"s_waitcnt vmcnt({4 - o.stag})")
        int_loads(1)
        a("s_branch L_stg2")
        a.label("L_stg1")
        int_loads(1)
        a(f"s_waitcnt vmcnt({4 - o.stag})")
        int_loads(0)
        a("s_waitcnt vmcnt(0)")
        a.label("L_stg2")
    else:
        int_loads(0)
        int_loads(1)
    gwait[0] = 10
    for f in pre[o.npre:]:
        f()
    gwait[0] = 2
    a.label("L_zjoin")
    stamp(10)
    for ah in range(2):
        a(f"s_waitcnt vmcnt({4-4*ah})")
        a.label(f"L_got{ah}")
        b = LD + 16 * ah
        da = DA1 if ah else DA0
        for ib in range(4):
            for jj in range(4):
                a(f"v_xor_b32 v{TP+4*ib+jj}, v{b+4*jj+ib}, v{EXP+ib}")
            if ib == 0:
                a(f"v_or3_b32 v6, v{TP}, v{TP+1}, v{TP+2}")
                a(f"v_or_b32 v6, v6, v{TP+3}")
            else:
                a(f"v_or3_b32 v6, v6, v{TP+4*ib}, v{TP+4*ib+1}")
                a(f"v_or3_b32 v6, v6, v{TP+4*ib+2}, v{TP+4*ib+3}")
            if ib == 3:
                a("v_and_b32 v6, 0x10001, v6")
                a("v_cmp_ne_u32 vcc, 0, v6")
            if not (ah == 1):
                a(f"{MF} {V(da+4*ib,4)}, {V(TP+4*ib,4)}, {V(GA,4)}, 0")
            else:
                a(f"{MF} {V(da+4*ib,4)}, {V(TP+4*ib,4)}, {V(GA,4)}, 0")
        a(f"s_cbranch_vccnz L_retry{ah}")
        a.label(f"L_fail{ah}")
    stamp(11)

    def d1(jb):
        a(f"{MF} {V(DA0+4*jb,4)}, {V(TP+4*jb,4)}, {V(M1+12*jb,4)}, 0")
        a(f"{MF} {V(DA1+4*jb,4)}, {V(TP+4*jb,4)}, {V(M1+12*jb+4,4)}, 0")
        a(f"{MF} {V(X16,4)}, {V(TP+4*jb,4)}, {V(M1+12*jb+8,4)}, {'0' if jb == 0 else V(X16,4)}")

    for ib in range(4):
        for p in range(4):
            s0 = (DA1 if p >= 2 else DA0) + 4 * ib + 2 * (p & 1)
            a(f"v_cvt_pk_bf16_f32 v{TP+4*ib+p}, v{s0}, v{s0+1}")
        if ib:
            d1(ib - 1)
    d1(3)
    for ib in range(3):
        for i in range(4):
            a(f"v_cvt_pk_bf16_f32 v{PK+4*i+ib}, v{DA0+4*ib+i}, v{DA1+4*ib+i}")
    for i in range(4):
        a(f"v_cvt_pk_bf16_f32 v{PK+4*i+3}, v{DA0+12+i}, v{DA1+12+i}")
        a(f"ds_write_b128 v{VUW}, {V(PK+4*i,4)} offset:{L_U2 + i*UB}")
    a(f"v_cvt_pk_bf16_f32 v{X16}, v{X16}, v{X16+1}")
    a(f"v_cvt_pk_bf16_f32 v{X16+2}, v{X16+2}, v{X16+3}")
    a(f"ds_write_b16 v{VUX}, v{X16} offset:{L_U2}")
    a(f"ds_write_b16_d16_hi v{VUX}, v{X16} offset:{L_U2+UB}")
    a(f"ds_write_b16 v{VUX}, v{X16+2} offset:{L_U2+2*UB}")
    a(f"ds_write_b16_d16_hi v{VUX}, v{X16+2} offset:{L_U2+3*UB}")
    a.label("L_d2")
    a(f"ds_read_b128 {V(M2,4)}, v{VG16} offset:{L_M2}")
    a(f"ds_read_b128 {V(M2+4,4)}, v{VG16} offset:{L_M2+1024}")
    a(f"ds_read_b128 {V(M2+8,4)}, v4 offset:{L_M2}")
    a(f"ds_read_b128 {V(M2+12,4)}, v4 offset:{L_M2+1024}")
    a(f"v_mov_b32 v9, {L_GKEY}")
    a(f"s_cmp_lg_u32 s{S.ISZ}, 0")
    a("s_waitcnt lgkmcnt(0)")
    a("s_cbranch_scc1 L_zsync")
    a("s_barrier")
    stamp(12)
    a("ds_read_b32 v6, v9")
    a(f"ds_read_b128 {V(UO,4)}, v{VUR0} offset:{L_U2}")
    a(f"ds_read_b128 {V(UO+4,4)}, v{VUR1} offset:{L_U2}")
    a(f"ds_read_b128 {V(UO+8,4)}, v{VUR0} offset:{L_U2+UB}")
    a(f"ds_read_b128 {V(UO+12,4)}, v{VUR1} offset:{L_U2+UB}")
    a(f"s_lshl_b32 s{S.T0}, s{S.TD}, 10")
    a(f"s_lshl_b32 s{S.T1}, s{S.TM}, 10")
    for k in range(4):
        a(f"s_waitcnt lgkmcnt({3-k})")
        a(f"{MF} {V(PQ+4*k,4)}, {V(UO+4*k,4)}, {V(M2+4*k,4)}, 0")
    a(f"v_readfirstlane_b32 s{S.GKEY}, v6")
    a(f"s_andn2_b32 s{S.IDX}, 0xffff, s{S.GKEY}")
    for r in range(2):
        for i in range(8):
            a(f"v_fmac_f32 v{XG+8*r+i}, v{CO+2*r}, v{PQ+i}")
    for r, (so, tr) in enumerate(((S.T0, S.TD), (S.T1, S.TM))):
        for i in range(8):
            a(f"v_fmac_f32 v{XG+8*r+i}, v{CO+2*r+1}, v{PQ+8+i}")
        for i in range(4):
            a(f"v_cvt_pk_bf16_f32 v{UO+4*r+i}, v{XG+8*r+2*i}, v{XG+8*r+2*i+1}")
        l = a.L("skip")
        if r == 0:
            stamp(6)
        a(f"s_cmp_eq_u32 s{tr}, s{S.IDX}")
        a(f"s_cbranch_scc1 {l}")
        a(f"v_permlane16_swap_b32 v{UO+4*r}, v{UO+4*r+2}")
        a(f"v_permlane16_swap_b32 v{UO+4*r+1}, v{UO+4*r+3}")
        a(f"buffer_store_dwordx4 {V(UO+4*r,4)}, v{VROW}, {R4(S.ROUT)}, s{so} offen{o.outpol}")
        a.label(l)
    a.label("L_tb_end")
    stamp(13)
    if o.stamps:
        a("s_waitcnt vmcnt(0)")
        stamp(15)
    endprog()

    for ah in range(2):
        a.label(f"L_retry{ah}")
        if o.stamps:
            a(f"s_add_u32 s{S.RC}, s{S.RC}, {1 << (8*ah)}")
        if o.rsleep:
            a(f"s_sleep {o.rsleep}")
        spin()
        a(f"s_cbranch_scc1 L_fail{ah}")
        int_loads(ah)
        a("s_waitcnt vmcnt(0)")
        a(f"s_branch L_got{ah}")

    a.label("L_hi0")
    if o.b3:
        if o.ackwait:
            a("s_waitcnt vmcnt(0)")
        a("s_barrier")
    a.label("L_hi1")
    if o.atouch:
        touch("L_tb", o.atouch, 4, 4)
        a(f"s_cmp_lg_u32 s{S.ISZ}, 0")
        a("s_cbranch_scc1 L_z0b")
    gates(True)
    addr_ur(S.WAVE)
    m2_addr()
    stamp(10)
    a("s_branch L_d2")

    a.label("L_ah")
    if o.prio & 2:
        a("s_setprio 3")
    if o.cpf:
        a(f"s_cmp_ge_u32 s{S.T1}, {o.cpf}")
        a("s_cbranch_scc1 L_nocpf")
        a(f"s_getpc_b64 s[{S.EX}:{S.EX+1}]")
        a.label("L_pc")
        a(f"s_sub_u32 s{S.EX}, s{S.EX}, L_pc - {name}")
        a(f"s_subb_u32 s{S.EX+1}, s{S.EX+1}, 0")
        a("v_lshlrev_b32 v6, 7, v0")
        a("v_add_u32 v7, 0x2000, v6")
        a(f"v_min_u32 v7, L_end - {name}, v7")
        a(f"v_mov_b32 v13, s{S.EX+1}")
        a(f"v_mov_b32 v15, s{S.EX+1}")
        a(f"v_add_co_u32 v12, vcc, s{S.EX}, v6")
        a.nop(2)
        a("v_addc_co_u32 v13, vcc, 0, v13, vcc")
        a(f"v_add_co_u32 v14, vcc, s{S.EX}, v7")
        a.nop(2)
        a("v_addc_co_u32 v15, vcc, 0, v15, vcc")
        a("global_load_dword v10, v[12:13], off")
        a("global_load_dword v11, v[14:15], off")
        a.label("L_nocpf")
    a(f"v_lshlrev_b32 v{VG16}, 4, v0")
    a(f"v_mov_b32 v{VTAG}, 0")
    a(f"v_mov_b32 v9, {L_KSL}")
    a(f"ds_write_b32 v9, v{VTAG}")
    a(f"s_mov_b32 s{S.KM}, 0x9E3779B1")
    a(f"s_cmp_ge_u32 s{S.T1}, {o.wpf}")
    a("s_waitcnt lgkmcnt(0)")
    a("s_cbranch_scc1 L_nowpf")
    a(f"global_load_dwordx4 v[32:35], v{VG16}, s[{S.PWR}:{S.PWR+1}]")
    a(f"global_load_dword v{VE}, v{VTAG}, s[{S.PWS}:{S.PWS+1}]")
    a(f"global_load_dwordx4 v[36:39], v{VG16}, s[{S.PGW}:{S.PGW+1}]")
    a.label("L_nowpf")
    stamp(1)
    a("v_lshlrev_b32 v14, 10, v0")
    a(f"s_lshl_b32 s{S.ID8}, s2, 3")
    a(f"s_add_u32 s{S.ID8}, s{S.ID8}, {WS_KEY}")
    ws_setup()

    if o.b0 == 2:
        a("s_barrier")
    const_d2()
    a(f"global_load_dword v{VE}, v{VTAG}, s[{S.PWS}:{S.PWS+1}]")
    a("s_waitcnt lgkmcnt(0)")
    stamp(2)
    if o.b0 == 1:
        a("s_barrier")
    a(f"v_mov_b32 v9, {L_KSL}")
    a("s_waitcnt vmcnt(0)")
    tag_make()
    exp_make()
    a(f"v_mov_b32 v9, {L_KSL}")
    stamp(3)
    a("s_barrier")
    a(f"ds_read_b32 v{VE}, v9")
    set_exec(RF * CF + RZ * CZ + R2 * C2 + RS)
    a("s_waitcnt lgkmcnt(0)")
    a(f"buffer_store_dwordx2 v[{VE}:{VTAG}], v14, {R4(S.RWS)}, s{S.ID8} offen sc1")
    if o.probe >= 0:
        a("s_mov_b64 exec, 1")
        a("v_mov_b32 v40, s66")
        a(f"v_mov_b32 v41, v{VTAG}")
        a(f"s_add_u32 s{S.T0}, s{S.ID8}, {WS_KEY2 - WS_KEY}")
        a(f"buffer_store_dwordx2 v[40:41], v14, {R4(S.RWS)}, s{S.T0} offen sc1")
    a("s_mov_b64 exec, -1")
    stamp(5)
    if o.b1a:
        a("s_barrier")
    if o.only == "P1":
        a("s_endpgm")
    poll_setup(WS_KEY + 1024 * (RF * CF + RZ * CZ), R2, C2)
    a("s_waitcnt vmcnt(0)")
    if not o.gate and o.b3:
        a("s_barrier")
    if o.k2sleep0:
        a(f"s_sleep {o.k2sleep0}")
    stamp(8)
    poll_granules(VG16, 32, sleep=o.k2sleep)
    stamp(9)
    wave_max_key(32)
    lds_put(L_GKEY, 32)
    if o.gate:
        a(f"s_sleep {o.gate}")
        a("s_barrier")
        if o.probe >= 0:
            a("s_cmp_lg_u32 s2, 9")
            a("s_cbranch_scc1 L_noprobe")
            a("s_barrier")
            a(f"s_mov_b32 s{S.PO}, {WS_KEY2}")
            a(f"s_mov_b32 s{S.POL}, {WS_KEY2}")
            poll_granules(VG16, 32, sleep=4)
            for i in range(8):
                a(f"v_readlane_b32 s{70+i}, v{32 + 2*(i&1)}, {i>>1}")
            a("s_mov_b32 s80, s70")
            for i in range(1, 8):
                a(f"s_sub_u32 s81, s{70+i}, s80")
                a("s_cmp_lt_i32 s81, 0")
                a(f"s_cselect_b32 s80, s{70+i}, s80")
            if o.probe < 8:
                a(f"s_sub_u32 s81, s{70+o.probe}, s80")
            else:
                a("s_mov_b32 s81, 0")
                for i in range(8):
                    a(f"s_sub_u32 s82, s{70+i}, s80")
                    a("s_max_u32 s81, s81, s82")
            a("s_mul_i32 s81, s81, 10")
            a("s_add_u32 s81, s81, 800")
            a.label("L_pw")
            a("s_sleep 1")
            a("s_memrealtime s[100:101]")
            a("s_waitcnt lgkmcnt(0)")
            a("s_sub_u32 s100, s100, s80")
            a("s_cmp_lt_u32 s100, s81")
            a("s_cbranch_scc1 L_pw")
            a.label("L_noprobe")
        if o.hold and o.hold[0] == "endA":
            a(f"s_sub_u32 s{S.T0}, s2, {o.hold[2]}")
            a(f"s_cmp_ge_u32 s{S.T0}, {o.hold[3]}")
            a("s_cbranch_scc1 L_nohold")
            a("s_barrier")
            hold("endA")
            a.label("L_nohold")
        endprog()
    a("s_barrier")
    endprog()

    a.label("L_notA")
    if o.only == "AA":
        a("s_endpgm")
    a(f"s_lshl4_add_u32 s{S.FJ}, s{S.T0}, s{S.T1}")
    a(f"s_sub_u32 s{S.FJ}, s{S.FJ}, 16")
    a(f"s_cmp_ge_u32 s2, {NWG}")
    a("s_cbranch_scc1 L_end")
    a(f"s_cmp_lt_u32 s{S.T0}, 4")
    a("s_cbranch_scc1 L_F")
    a(f"s_mul_i32 s{S.FJ}, s{S.T0}, 12")
    a(f"s_add_u32 s{S.FJ}, s{S.FJ}, s{S.T1}")
    a(f"s_cmp_lt_u32 s{S.T1}, 28")
    a("s_cbranch_scc1 L_F")
    a(f"s_mov_b32 s{S.ISZ}, 1")
    a(f"s_lshl2_add_u32 s{S.Z}, s{S.T0}, s{S.T1}")
    a(f"s_sub_u32 s{S.Z}, s{S.Z}, 44")
    vrow_setup()
    a(f"v_lshlrev_b32 v{VG16}, 4, v0")
    sgn_setup()
    a("s_waitcnt lgkmcnt(0)")
    ws_setup()
    a.srd(S.ROUT, S.POUT, 0x200000)
    addr_p2()
    a(f"s_cmp_eq_u32 s{S.WAVE}, 8")
    a("s_cbranch_scc1 L_zh")
    a(f"s_cmp_ge_u32 s{S.WAVE}, 4")
    a("s_cbranch_scc1 L_z0")
    const_d1()
    a("s_branch L_z1")
    a.label("L_z0")
    if o.atouch:
        a("s_branch L_hi1")
    a.label("L_z0b")
    if o.ztouch:
        touch("L_tz", o.ztouch, 4, 4)
    a.label("L_z1")
    a(f"v_mov_b32 v9, {L_KSL}")
    a("v_mov_b32 v12, 0")
    a("v_mov_b32 v13, 0")
    a("s_barrier")
    a(f"ds_read_b64 v[{VE}:{VTAG}], v9")
    a(f"ds_read_b128 {V(GW,4)}, v{VG16} offset:{L_WV+1024}")
    a("s_waitcnt lgkmcnt(0)")
    a(f"v_readfirstlane_b32 s{S.GKEY}, v{VE}")
    a(f"s_andn2_b32 s{S.IDX}, 2047, s{S.GKEY}")
    a(f"s_and_b32 s{S.T0}, s{S.IDX}, 127")
    a(f"s_cmp_gt_u32 s{S.T0}, 64")
    a(f"s_cselect_b32 s{S.WHICH}, 1, 0")
    a(f"s_and_b32 s{S.T0}, s{S.IDX}, {1024 + 63}")
    a(f"s_cmp_eq_u32 s{S.T0}, 1024")
    a(f"s_cselect_b32 s{S.WHICH}, 1, s{S.WHICH}")
    a(f"s_sub_u32 s{S.T0}, 2048, s{S.IDX}")
    a(f"s_cmp_lg_u32 s{S.WHICH}, 0")
    a(f"s_cselect_b32 s{S.T0}, s{S.T0}, s{S.IDX}")
    a(f"s_cmp_eq_u32 s{S.T0}, 1024")
    a(f"s_cselect_b32 s{S.T0}, 0, s{S.T0}")
    a(f"s_and_b32 s{S.T1C}, s{S.T0}, 127")
    a(f"s_lshr_b32 s{S.HH}, s{S.T0}, 10")
    a(f"s_bfe_u32 s{S.WSEL}, s{S.T0}, 0x30007")
    rows_setup(S.WSEL)
    a(f"s_cmp_ge_u32 s{S.WAVE}, 4")
    a("s_cbranch_scc1 L_z4")
    int_base()
    if o.zisleep0:
        a(f"s_sleep {o.zisleep0}")
    stamp(9)
    int_loads(0)
    int_loads(1)
    const_ga()
    exp_setup()
    addr_ur(S.WSEL)
    m2_addr()
    a("v_lshlrev_b32 v6, 7, v1")
    a(f"v_lshl_add_u32 v15, v2, 4, v6")
    a("s_branch L_zjoin")
    a.label("L_z4")
    a(f"s_cmp_ge_u32 s{S.WAVE}, 6")
    a("s_cbranch_scc1 L_zend2")
    rows_load()
    a(f"s_sub_u32 s{S.T0}, s{S.WAVE}, 4")
    a(f"s_lshl1_add_u32 s{S.T1}, s{S.Z}, s{S.T0}")
    a(f"s_lshl_b32 s{S.T1}, s{S.T1}, 5")
    a("v_and_b32 v6, 7, v0")
    a(f"v_lshl_add_u32 v10, v6, 2, s{S.T1}")
    a(f"s_lshl_b32 s{S.T2}, s{S.IDX}, 10")
    a(f"v_add_u32 v7, s{S.T2}, v10")
    a(f"global_load_dword v35, v7, {PXS}")
    a("v_lshlrev_b32 v10, 1, v10")
    a("v_lshrrev_b32 v7, 3, v0")
    a("v_lshlrev_b32 v7, 8, v7")
    a("v_lshl_add_u32 v11, v6, 4, v7")
    a(f"s_mul_i32 s{S.SI0}, s{S.Z}, {PZ}")
    a(f"s_lshl_b32 s{S.T0}, s{S.T0}, 7")
    a(f"s_add_u32 s{S.SI0}, s{S.SI0}, s{S.T0}")
    a(f"s_add_u32 s{S.SI0}, s{S.SI0}, {WS_PART}")
    a(f"s_add_u32 s{S.SI1}, s{S.SI0}, {(o.pc-1)*PARTC}")
    a(f"s_and_b32 s{S.T0}, s{S.GKEY}, 0xffff0000")
    a(f"s_xor_b32 s{S.T1}, s{S.T0}, 0x80000000")
    a(f"s_xor_b32 s{S.T3}, s{S.T0}, 0xffff0000")
    a(f"s_bitcmp1_b32 s{S.T0}, 31")
    a(f"s_cselect_b32 s{S.T0}, s{S.T1}, s{S.T3}")
    a(f"v_mov_b32 v15, s{S.T0}")
    sigmoid(15, 15)
    rnd(15, 15)
    a("s_waitcnt vmcnt(0)")
    gates(False)
    a(f"s_cmp_lg_u32 s{S.WHICH}, 0")
    a(f"s_cselect_b32 s{S.T2}, s{S.T3}, s{S.T2}")
    a(f"s_cselect_b32 s{S.T0}, s{S.T5}, s{S.T0}")
    a(f"s_cselect_b32 s{S.T4}, s{S.T1}, s{S.T4}")
    a(f"v_xor_b32 v{VTAG}, s{S.IDX}, v{VTAG}")
    a(f"v_mov_b32 v36, s{S.T2}")
    a(f"v_mov_b32 v{CO}, s{S.T0}")
    a(f"v_mov_b32 v{CO+1}, s{S.T4}")
    a("v_lshlrev_b32 v34, 16, v35")
    a(f"v_and_b32 v35, {HIM}, v35")
    if o.psleep0:
        a(f"s_sleep {o.psleep0}")
    hold("pp")
    a(f"v_mov_b32 v9, {L_ZF}")
    a.label("L_tz_start")
    stamp(10)
    if o.psleep:
        a("s_branch L_zp1")
    a.label("L_zp")
    if o.psleep:
        a(f"s_sleep {o.psleep}")
        a.label("L_zp1")
    for i in range(7):
        if i and i % 2 == 0:
            a(f"s_add_u32 s{S.T0}, s{S.SI0}, {2048*i}")
        a(f"buffer_load_dwordx4 {V(40+4*i,4)}, v11, {R4(S.RWS)}, s{S.T0 if i >= 2 else S.SI0} offen offset:{2048*(i&1)} sc1")
    a(f"s_add_u32 s{S.SI0}, s{S.SI0}, {PARTC}")
    a(f"s_min_u32 s{S.SI0}, s{S.SI0}, s{S.SI1}")
    if o.stamps:
        a(f"s_add_u32 s{S.RC}, s{S.RC}, 256")
    spin()
    a("s_cbranch_scc1 L_zp_ok")
    for i in range(7):
        a(f"s_waitcnt vmcnt({6-i})")
        a(f"v_bitop3_b32 v{37 if i == 0 else 38 + (i & 1)}, v{41+4*i}, v{43+4*i}, v{VTAG} bitop3:0x7e")
        if i:
            a(f"v_add_f32 v40, v40, v{40+4*i}")
            a(f"v_add_f32 v42, v42, v{42+4*i}")
        if i and i % 2 == 0:
            a("v_or3_b32 v37, v37, v38, v39")
    a("v_cmp_ne_u32 vcc, 0, v37")
    a.nop(1)
    a("s_cbranch_vccnz L_zp")
    a.label("L_zp_ok")
    a("ds_read_b32 v12, v9")
    a(f"ds_read_b64 v[32:33], v10 offset:{L_XG2}")
    a(f"ds_read_b64 v[16:17], v10 offset:{L_XG2+2048}")
    a("v_lshrrev_b32 v11, 1, v10")
    a(f"s_lshl_b32 s{S.T2}, s{S.IDX}, 10")
    a("s_waitcnt vmcnt(0)")
    stamp(11)
    a(f"v_add_f32_dpp v40, v40, v40 row_ror:8 {DPPM}")
    a(f"v_add_f32_dpp v42, v42, v42 row_ror:8 {DPPM}")
    a.nop(1)
    a.nop(1)
    a("v_permlane16_swap_b32 v40, v42")
    a("v_add_f32 v40, v40, v42")
    a("v_mov_b32 v42, v40")
    a.nop(2)
    a("v_permlane32_swap_b32 v40, v42")
    a("v_add_f32 v40, v40, v42")
    a("v_mov_b32 v42, v40")
    a.nop(2)
    a("v_permlane16_swap_b32 v40, v42")
    a("v_cvt_pk_bf16_f32 v41, v40, v42")
    a("v_lshlrev_b32 v40, 16, v41")
    a(f"v_and_b32 v42, {HIM}, v41")
    a("v_mul_f32 v40, v40, v15")
    a("v_mul_f32 v42, v42, v15")
    a("v_cvt_pk_bf16_f32 v41, v40, v42")
    a("v_lshlrev_b32 v40, 16, v41")
    a(f"v_and_b32 v42, {HIM}, v41")
    a("v_add_f32 v40, v40, v34")
    a("v_add_f32 v42, v42, v35")
    a("v_cvt_pk_bf16_f32 v41, v40, v42")
    a("v_lshlrev_b32 v40, 16, v41")
    a(f"v_and_b32 v42, {HIM}, v41")
    a.label("L_zw")
    a("s_waitcnt lgkmcnt(0)")
    a("v_cmp_eq_u32 vcc, 0, v12")
    a(f"v_mul_f32 v32, v{CO}, v32")
    a(f"v_mul_f32 v33, v{CO}, v33")
    a("s_cbranch_vccz L_zw_ok")
    spin()
    a("s_cbranch_scc1 L_zw_ok")
    a("ds_read_b32 v12, v9")
    a(f"ds_read_b64 v[32:33], v10 offset:{L_XG2}")
    a(f"ds_read_b64 v[16:17], v10 offset:{L_XG2+2048}")
    a("s_branch L_zw")
    a.label("L_zw_ok")
    a(f"v_fmac_f32 v32, v{CO+1}, v16")
    a(f"v_fmac_f32 v33, v{CO+1}, v17")
    a("v_fmac_f32 v32, v40, v36")
    a("v_fmac_f32 v33, v42, v36")
    a("v_cvt_pk_bf16_f32 v32, v32, v33")
    a("s_mov_b64 exec, 0xff")
    a(f"buffer_store_dword v32, v11, {R4(S.ROUT)}, s{S.T2} offen{o.zpol}")
    a("s_mov_b64 exec, -1")
    stamp(13)
    if o.stamps:
        a("s_waitcnt vmcnt(0)")
        stamp(15)
    a("s_barrier")
    endprog()

    a.label("L_zsync")
    a(f"v_mov_b32 v9, {L_ZC}")
    a("v_mov_b32 v6, 1")
    a("s_mov_b64 exec, 1")
    a("ds_add_u32 v9, v6")
    a("s_mov_b64 exec, -1")
    a(f"s_cmp_lg_u32 s{S.WAVE}, 0")
    a("s_cbranch_scc1 L_zend")
    a.label("L_zs")
    a("ds_read_b32 v6, v9")
    spin()
    a("s_waitcnt lgkmcnt(0)")
    a("s_cbranch_scc1 L_zs_ok")
    a("v_cmp_ne_u32 vcc, 4, v6")
    a.nop(1)
    a("s_cbranch_vccnz L_zs")
    a.label("L_zs_ok")
    stamp(12)
    a(f"ds_read_b128 {V(UO,4)}, v{VUR0} offset:{L_U2}")
    a(f"ds_read_b128 {V(UO+4,4)}, v{VUR1} offset:{L_U2}")
    a(f"ds_read_b128 {V(UO+8,4)}, v{VUR0} offset:{L_U2+UB}")
    a(f"ds_read_b128 {V(UO+12,4)}, v{VUR1} offset:{L_U2+UB}")
    for k in range(4):
        a(f"s_waitcnt lgkmcnt({3-k})")
        a(f"{MF} {V(PQ+4*k,4)}, {V(UO+4*k,4)}, {V(M2+4*k,4)}, 0")
    a.nop(3)
    for k in range(4):
        if k == 2:
            a.nop(2)
        a(f"ds_write_b128 v15, {V(PQ+4*k,4)} offset:{L_XG2 + 64*(k&1) + 2048*(k>>1)}")
    a(f"v_mov_b32 v9, {L_ZF}")
    a("s_waitcnt lgkmcnt(0)")
    a("ds_write_b32 v9, v9")
    a("s_waitcnt lgkmcnt(0)")
    stamp(13)
    a.label("L_zend")
    endprog()
    a.label("L_zend2")
    if o.hold and o.hold[0] == "end":
        a("s_barrier")
    hold("end")
    if o.ev:
        lo, n, w, st, med = [int(v) for v in o.ev.split(":")]
        a("s_cmp_lg_u32 s2, 255")
        a("s_cbranch_scc1 L_noev")
        a(f"s_cmp_lg_u32 s{S.WAVE}, 7")
        a("s_cbranch_scc1 L_noev")
        a("s_barrier")
        a.label("L_ev0")
        a("s_sleep 4")
        a("s_memrealtime s[100:101]")
        a("s_waitcnt lgkmcnt(0)")
        a(f"s_sub_u32 s100, s100, s{S.ST}")
        a("s_cmp_lt_u32 s100, 750")
        a("s_cbranch_scc1 L_ev0")
        a("v_lshlrev_b32 v6, 11, v0")
        a(f"v_add_u32 v7, {WS_STAMP + 8*128}, v6")
        a(f"global_load_dword v40, v7, s[{S.PWS}:{S.PWS+1}] sc1")
        a(f"v_add_u32 v7, {WS_STAMP + lo*2048 + w*128 + st*8}, v6")
        for q in range(n // 64):
            a(f"global_load_dword v{44+q}, v7, s[{S.PWS}:{S.PWS+1}] sc1")
            a(f"v_add_u32 v7, {64*2048}, v7")
        a("s_waitcnt vmcnt(0)")
        a(f"v_subrev_u32 v40, s{S.ST}, v40")
        a("v_sub_u32 v40, 1000, v40")
        a("v_mov_b32 v42, v40")
        wave_max_key(40)
        a("v_mov_b32 v41, 0")
        for q in range(n // 64):
            a(f"v_subrev_u32 v{44+q}, s{S.ST}, v{44+q}")
            a(f"v_cmp_gt_u32 vcc, 1000, v{44+q}")
            a.nop(2)
            a(f"v_cndmask_b32 v{44+q}, 0, v{44+q}, vcc")
            a(f"v_max_u32 v41, v41, v{44+q}")
        a("v_mov_b32 v43, v41")
        wave_max_key(41)
        a.nop(2)
        a("v_readlane_b32 s6, v40, 63")
        a("v_readlane_b32 s7, v41, 63")
        a("s_sub_u32 s6, s6, 1000")
        a("s_min_u32 s6, s6, 300")
        a("s_add_u32 s7, s7, s6")
        a("s_mul_i32 s7, s7, 4")
        a("s_add_u32 s7, s7, 900")
        a("s_sub_u32 s7, s7, s6")
        a.label("L_ev1")
        a("s_sleep 1")
        a("s_memrealtime s[100:101]")
        a("s_waitcnt lgkmcnt(0)")
        a(f"s_sub_u32 s100, s100, s{S.ST}")
        a("s_cmp_lt_u32 s100, s7")
        a("s_cbranch_scc1 L_ev1")
        a.label("L_noev")
    endprog()

    a.label("L_zh")
    a(f"v_mov_b32 v9, {L_ZF}")
    a("v_mov_b32 v6, 0")
    a("ds_write2_b32 v9, v6, v6 offset1:1")
    const_d2()
    a(f"s_mov_b32 m0, {L_WV+1024}")
    tag_load()
    a(f"global_load_lds_dwordx4 v{VG16}, s[{S.PGW}:{S.PGW+1}]")
    a("s_waitcnt vmcnt(0)")
    tag_make()
    exp_make()
    poll_setup(WS_KEY + 1024 * RF * CF, RZ, CZ)
    if o.zsleep0:
        a(f"s_sleep {o.zsleep0}")
    stamp(1)
    poll_granules(VG16, 32, sleep=o.zsleep)
    stamp(2)
    wave_max_key(32)
    lds_put(L_KSL, 32, tag=True)
    a("s_barrier")
    a(f"s_lshl_b32 s{S.T0}, s{S.Z}, 2")
    a(f"s_add_u32 s{S.T0}, s{S.T0}, {WS_ALIVE}")
    a("s_mov_b64 exec, 1")
    a(f"buffer_store_dword v{VTAG}, v0, {R4(S.RWS)}, s{S.T0} offen sc1")
    a("s_mov_b64 exec, -1")
    a(f"s_cmp_lg_u32 s{S.Z}, 0")
    a("s_cbranch_scc1 L_zend")
    a("s_mov_b64 exec, 0xffff")
    a("v_lshlrev_b32 v6, 2, v0")
    a(f"s_mov_b32 s{S.T0}, {WS_ALIVE}")
    a("s_waitcnt vmcnt(0)")
    a("s_sleep 24")
    a.label("L_za")
    a(f"buffer_load_dword v7, v6, {R4(S.RWS)}, s{S.T0} offen sc1")
    spin()
    a("s_waitcnt vmcnt(0)")
    a("s_cbranch_scc1 L_za_ok")
    a(f"v_cmp_ne_u32 vcc, v{VTAG}, v7")
    a.nop(1)
    a("s_cbranch_vccnz L_za")
    a.label("L_za_ok")
    a("s_mov_b64 exec, 1")
    a(f"v_add_u32 v9, 1, v{VE}")
    a("s_barrier")
    a(f"buffer_store_dword v9, v6, {R4(S.RWS)}, 0 offen sc1")
    a("s_mov_b64 exec, -1")
    a("s_branch L_zend")

    a.label("L_F")
    if o.only == "A":
        a("s_endpgm")
    WG_, WD_ = 32, 48
    a("v_lshlrev_b32 v5, 4, v0")
    a(f"s_cmp_eq_u32 s{S.WAVE}, 8")
    a("s_cbranch_scc1 L_fh")
    a(f"s_and_b32 s{S.T0}, s{S.FJ}, 3")
    a(f"s_lshr_b32 s{S.T1}, s{S.WAVE}, 1")
    a(f"s_lshl2_add_u32 s{S.L0}, s{S.T0}, s{S.T1}")
    a(f"s_mul_i32 s{S.T2}, s{S.L0}, {32*3584}")
    a(f"s_lshr_b32 s{S.L1}, s{S.FJ}, 2")
    a(f"s_lshl_b32 s{S.T3}, s{S.L1}, 7")
    a(f"s_add_u32 s{S.T2}, s{S.T2}, s{S.T3}")
    a("v_lshrrev_b32 v6, 3, v0")
    a("v_mul_u32_u24 v6, 3584, v6")
    a("v_and_b32 v7, 7, v0")
    a("v_bfe_u32 v8, v0, 4, 1")
    a("v_lshlrev_b32 v8, 2, v8")
    a("v_xor_b32 v4, v7, v8")
    a(f"v_lshl_add_u32 v7, v4, 4, s{S.T2}")
    a("v_add_u32 v3, v6, v7")
    a(f"s_lshl_b32 s{S.T4}, s{S.WAVE}, 12")
    a(f"s_mov_b32 m0, s{S.T4}")
    def w_dma():
        a(f"s_bitcmp1_b32 s{S.WAVE}, 0")
        a("s_waitcnt lgkmcnt(0)")
        a(f"s_cselect_b32 s{S.PWG}, s{S.PWU}, s{S.PWG}")
        a(f"s_cselect_b32 s{S.PWG+1}, s{S.PWU+1}, s{S.PWG+1}")
        if o.fdelay:
            a(f"s_sleep {o.fdelay}")
        for b in range(4):
            if b:
                a(f"s_add_u32 m0, s{S.T4}, {1024*b}")
                a(f"v_add_u32 v3, {8*3584}, v3")
            if o.wthr and b >= o.wthr:
                a(f"s_waitcnt vmcnt({o.wthr - 1})")
            a(f"global_load_lds_dwordx4 v3, s[{S.PWG}:{S.PWG+1}]{o.wpol}")
        ws_setup()
        stamp(1)

    if not o.flate:
        w_dma()
    a("v_bfe_u32 v6, v0, 2, 2")
    a("v_and_b32 v7, 3, v0")
    a("v_lshlrev_b32 v8, 3, v7")
    a("v_lshl_add_u32 v8, v2, 5, v8")
    a("v_and_b32 v9, 2, v6")
    a("v_lshlrev_b32 v9, 5, v9")
    a("v_xor_b32 v9, v9, v8")
    a("v_lshl_add_u32 v9, v6, 7, v9")
    a(f"v_add_u32 v9, s{S.T4}, v9")
    a(f"s_lshl_b32 s{S.T5}, s{S.WAVE}, 8")
    a("v_lshlrev_b32 v11, 2, v0")
    a(f"v_add_u32 v11, {L_RED}, v11")
    a(f"v_add_u32 v12, s{S.T5}, v11")
    a(f"s_lshl1_add_u32 s{S.T1}, s{S.L1}, s{S.T1}")
    a(f"s_lshl_b32 s{S.T2}, s{S.T1}, 15")
    a(f"s_and_b32 s{S.T3}, s{S.WAVE}, 1")
    a(f"s_lshl1_add_u32 s{S.T3}, s{S.T0}, s{S.T3}")
    a(f"s_lshl_b32 s{S.T5}, s{S.T3}, 7")
    a(f"s_add_u32 s{S.T2}, s{S.T2}, s{S.T5}")
    a("v_lshrrev_b32 v6, 3, v0")
    a(f"v_lshl_add_u32 v6, v6, 10, s{S.T2}")
    a("v_lshl_add_u32 v4, v4, 4, v6")
    a("v_lshrrev_b32 v6, 5, v0")
    a(f"v_mul_u32_u24 v13, {PZ}, v6")
    a("v_and_b32 v6, 31, v0")
    a("v_lshl_add_u32 v13, v6, 3, v13")
    a(f"s_mul_i32 s{S.T2}, s{S.T3}, {2*PZ}")
    a(f"s_lshl_b32 s{S.T1}, s{S.T1}, 8")
    a(f"s_add_u32 s{S.T2}, s{S.T2}, s{S.T1}")
    a(f"s_add_u32 s{S.T2}, s{S.T2}, {WS_PART}")
    a(f"s_lshl_b32 s{S.L0}, s{S.L0}, 6")
    a(f"s_lshl_b32 s{S.L1}, s{S.L1}, 12")
    a(f"s_add_u32 s{S.PO}, s{S.L1}, {WS_XCH}")
    a(f"s_add_u32 s{S.POL}, s{S.PO}, {(o.xc-1)*XCHC}")
    a(f"s_lshl_b32 s{S.T1}, s{S.T0}, 10")
    a(f"s_add_u32 s{S.L1}, s{S.PO}, s{S.T1}")
    a(f"v_mov_b32 v14, {L_FKEY}")
    a(f"s_lshr_b32 s{S.T1}, s{S.WAVE}, 1")
    a(f"s_lshl_b32 s{S.T1}, s{S.T1}, 9")
    a(f"v_lshl_add_u32 v15, v6, 4, s{S.T1}")
    a("v_lshrrev_b32 v6, 5, v0")
    a("v_lshl_add_u32 v15, v6, 10, v15")
    a(f"s_mov_b32 s{S.PO0}, s{S.PO}")
    a(f"s_mov_b32 s{S.L10}, s{S.L1}")
    a(f"s_mov_b32 s{S.T20}, s{S.T2}")
    a(f"s_mov_b32 s{S.FIN}, 0")

    if o.flate:
        w_dma()

    def wd_dma():
        l = a.L("nowd")
        a(f"s_cmp_ge_u32 s{S.WAVE}, 4")
        a(f"s_cbranch_scc1 {l}")
        for b in range(4):
            a(f"s_add_u32 m0, s{S.T4}, {L_WD + 1024*b}")
            if b:
                a("v_add_u32 v4, 0x2000, v4")
            else:
                a.nop(1)
            a(f"global_load_lds_dwordx4 v4, s[{S.PWD}:{S.PWD+1}]{o.wdpol}")
        a.label(l)

    if o.wdpos == 0:
        wd_dma()
    a("s_waitcnt vmcnt(0)")
    stamp(2)
    if o.fw0:
        a("s_barrier")
    if o.wdpos == 1:
        wd_dma()
    if o.xpre:
        for i in range(2):
            a(f"buffer_load_dwordx4 {V(64+4*i,4)}, v15, {R4(S.RWS)}, s{S.PO} offen offset:{2048*i} sc1")
    for k in range(8):
        a(f"ds_read_b64_tr_b16 {V(WG_+2*k,2)}, v9 offset:{L_W + k*512}")
    if o.ftouch:
        touch("L_tf", o.ftouch, 0, 8)
    a("s_waitcnt lgkmcnt(0)")
    a("s_barrier")
    a.label("L_tf_start")
    a("ds_read_b64 v[26:27], v14")
    a("s_waitcnt lgkmcnt(0)")
    a(f"v_readfirstlane_b32 s{S.FKEY}, v26")
    a.label("L_redo")
    a(f"s_andn2_b32 s{S.T0}, 2047, s{S.FKEY}")
    a(f"s_lshl_b32 s{S.T1}, s{S.T0}, 10")
    a(f"s_add_u32 s{S.T1}, s{S.T1}, s{S.L0}")
    a(f"s_load_dwordx16 s[{S.XS}:{S.XS+15}], {PXS}, s{S.T1}")
    stamp(5)
    a(f"v_xor_b32 v{VTAG}, s{S.T0}, v27")
    a(f"v_xor_b32 v29, s{S.T0}, v27")
    for r in (16, 17, 24, 25):
        a(f"v_mov_b32 v{r}, 0")
    a(f"s_mov_b32 s{S.PO}, s{S.PO0}")
    a(f"s_mov_b32 s{S.L1}, s{S.L10}")
    a(f"s_mov_b32 s{S.T2}, s{S.T20}")
    a(f"s_mov_b32 s{S.KM}, 0")
    a("s_waitcnt lgkmcnt(0)")
    for i in range(16):
        a(f"v_dot2c_f32_bf16 v{16+(i&1)}, s{S.XS+i}, v{WG_+i}")
    stamp(6)
    a.nop(3)
    a("v_add_f32 v16, v16, v17")
    a("ds_write_b32 v12, v16")
    a("s_waitcnt lgkmcnt(0)")
    a("s_barrier")
    a(f"s_lshl_b32 s{S.T0}, s{S.WAVE}, 4")
    a(f"s_lshl_b64 s[{S.EX}:{S.EX+1}], 0xffff, s{S.T0}")
    for i, (p, q) in enumerate(((0, 2), (4, 6), (1, 3), (5, 7))):
        a(f"ds_read2st64_b32 v[{16+2*i}:{17+2*i}], v11 offset0:{p} offset1:{q}")
    a("s_waitcnt lgkmcnt(2)")
    a("v_add_f32 v16, v16, v17")
    a("v_add_f32 v18, v18, v19")
    a("s_waitcnt lgkmcnt(0)")
    a("v_add_f32 v20, v20, v21")
    a("v_add_f32 v22, v22, v23")
    a("v_add_f32 v28, v16, v18")
    a(f"s_mov_b64 exec, s[{S.EX}:{S.EX+1}]")
    a("v_add_f32 v30, v20, v22")
    a(f"s_cmp_ge_u32 s{S.WAVE}, 4")
    a("s_cbranch_scc1 L_f5")
    a(f"buffer_store_dwordx4 v[28:31], v5, {R4(S.RWS)}, s{S.L1} offen{'' if o.xl2 else ' sc1'}")
    a("s_mov_b64 exec, -1")
    stamp(7)
    a("s_waitcnt vmcnt(1)")
    for k in range(8):
        a(f"ds_read_b64_tr_b16 {V(WD_+2*k,2)}, v9 offset:{L_WD + k*512}")
    if o.xsleep0:
        a(f"s_sleep {o.xsleep0}")
    stamp(8)
    a.label("L_fx")
    for i in range(2):
        a(f"buffer_load_dwordx4 {V(64+4*i,4)}, v15, {R4(S.RWS)}, s{S.PO} offen offset:{2048*i} sc1")
    if o.xl2:
        a(f"s_add_u32 s{S.KM}, s{S.KM}, 1")
        a(f"s_cmp_ge_u32 s{S.KM}, {o.xl2}")
        a(f"s_cselect_b32 s{S.T0}, {XCHC}, 0")
        a(f"s_add_u32 s{S.PO}, s{S.PO}, s{S.T0}")
    else:
        a(f"s_add_u32 s{S.PO}, s{S.PO}, {XCHC}")
    a(f"s_min_u32 s{S.PO}, s{S.PO}, s{S.POL}")
    if o.stamps:
        a(f"s_add_u32 s{S.RC}, s{S.RC}, 1")
    spin()
    a("s_cbranch_scc1 L_fx_ok")
    a("s_waitcnt vmcnt(1)")
    a(f"v_bitop3_b32 v20, v65, v67, v{VTAG} bitop3:0x7e")
    a("s_waitcnt vmcnt(0)")
    a("v_add_f32 v16, v64, v68")
    a("v_add_f32 v18, v66, v70")
    a(f"v_bitop3_b32 v21, v69, v71, v{VTAG} bitop3:0x7e")
    a("v_or_b32 v20, v20, v21")
    a("v_cmp_ne_u32 vcc, 0, v20")
    a("v_permlane32_swap_b32 v16, v18")
    a("s_cbranch_vccnz L_fxr")
    a.label("L_fx_ok")
    stamp(9)
    a("v_add_f32 v16, v16, v18")
    rnd(16, 16)
    a("v_mov_b32 v18, v16")
    sigmoid(17, 16)
    a("v_permlane32_swap_b32 v16, v18")
    a("v_mul_f32 v17, v17, v16")
    rnd(17, 17)
    a("v_mul_f32 v17, v17, v18")
    a.nop(2)
    a(f"v_mov_b32_dpp v18, v17 quad_perm:[1,0,3,2] {DPPM}")
    a("v_cvt_pk_bf16_f32 v17, v17, v18")
    a.nop(1)
    for i in range(16):
        a(f"v_readlane_b32 s{S.XS+i}, v17, {2*i}")
    a("s_waitcnt lgkmcnt(0)")
    for i in range(16):
        a(f"v_dot2c_f32_bf16 v{24+(i&1)}, s{S.XS+i}, v{WD_+i}")
    a.nop(3)
    a("v_add_f32 v30, v24, v25")
    for c in range(o.pc):
        if c:
            a(f"s_add_u32 s{S.T2}, s{S.T2}, {PARTC}")
        a(f"buffer_store_dwordx2 v[30:31], v13, {R4(S.RWS)}, s{S.T2} offen sc1")
    stamp(10)
    a.label("L_fend")
    a(f"s_cmp_lg_u32 s{S.FIN}, 0")
    a("s_cbranch_scc1 L_fexit")
    a("s_barrier")
    a("ds_read_b32 v26, v14 offset:8")
    a(f"s_mov_b32 s{S.FIN}, 1")
    a("s_waitcnt lgkmcnt(0)")
    a(f"v_readfirstlane_b32 s{S.T0}, v26")
    a(f"s_cmp_eq_u32 s{S.T0}, s{S.FKEY}")
    a(f"s_mov_b32 s{S.FKEY}, s{S.T0}")
    if o.stamps:
        a(f"s_cselect_b32 s{S.T1}, 0, 64")
        a(f"s_add_u32 s{S.RC}, s{S.RC}, s{S.T1}")
        a(f"s_cmp_eq_u32 s{S.T1}, 0")
    a("s_cbranch_scc0 L_redo")
    a.label("L_fexit")
    endprog()
    a.label("L_f5")
    for c in range(1, o.xc):
        a(f"s_add_u32 s{S.L1}, s{S.L1}, {XCHC}")
        a(f"buffer_store_dwordx4 v[28:31], v5, {R4(S.RWS)}, s{S.L1} offen sc1")
    a("s_mov_b64 exec, -1")
    a("s_branch L_fend")
    a.label("L_fxr")
    a("ds_read_b32 v26, v14 offset:8")
    a("s_waitcnt lgkmcnt(0)")
    a(f"v_readfirstlane_b32 s{S.T0}, v26")
    a(f"s_cmp_eq_u32 s{S.T0}, 0")
    a("s_cbranch_scc1 L_fx")
    a(f"s_cmp_eq_u32 s{S.T0}, s{S.FKEY}")
    a("s_cbranch_scc1 L_fx")
    a("s_branch L_fend")

    a.label("L_fh")
    a("s_waitcnt lgkmcnt(0)")
    if o.fesleep:
        a(f"s_sleep {o.fesleep}")
    tag_load()
    ws_setup()
    a(f"v_mov_b32 v14, {L_FKEY}")
    a("v_mov_b32 v6, 0")
    a("ds_write_b32 v14, v6 offset:8")
    if o.spec:
        poll_setup(WS_KEY + 1024 * (RF * CF + RZ * CZ + R2 * C2), 8, 1)
        a(f"s_sleep {o.spec}")
        a("s_waitcnt vmcnt(0)")
        tag_make()
        stamp(1)
        a(f"buffer_load_dwordx4 v[20:23], v5, {R4(S.RWS)}, s{S.PO} offen sc1")
        poll_setup(WS_KEY, RF, CF)
        a("s_waitcnt vmcnt(0)")
        stamp(2)
        a(f"v_cmp_ne_u32 vcc, v{VTAG}, v21")
        a(f"v_cmp_ne_u32 s[{S.EX}:{S.EX+1}], v{VTAG}, v23")
        a("s_mov_b64 exec, vcc")
        a("v_mov_b32 v20, 0")
        a(f"s_mov_b64 exec, s[{S.EX}:{S.EX+1}]")
        a("v_mov_b32 v22, 0")
        a("s_mov_b64 exec, -1")
        a(f"s_or_b64 s[{S.EY}:{S.EY+1}], vcc, s[{S.EX}:{S.EX+1}]")
        wave_max_key(20)
        lds_put(L_FKEY, 20, tag=True)
        a("s_barrier")
        a(f"s_cmp_eq_u64 s[{S.EY}:{S.EY+1}], 0")
        a("s_cbranch_scc1 L_fh2")
        if o.fsleep0:
            a(f"s_sleep {o.fsleep0}")
        stamp(3)
        poll_granules(5, 20, sleep=o.fsleep)
        stamp(4)
        wave_max_key(20)
        a.label("L_fh2")
        lds_put(L_FKEY + 8, 20)
    else:
        poll_setup(WS_KEY, RF, CF)
        if o.fsleep0:
            a(f"s_sleep {o.fsleep0}")
        a("s_waitcnt vmcnt(0)")
        tag_make()
        stamp(3)
        poll_granules(5, 20, sleep=o.fsleep)
        stamp(4)
        wave_max_key(20)
        lds_put(L_FKEY, 20, tag=True)
        a("s_barrier")
        lds_put(L_FKEY + 8, 20)
    a("s_barrier")
    endprog()
    a.label("L_end")
    a("s_endpgm")
    return name


def main():
    ap = argparse.ArgumentParser()
    ap.add_argument("-o", required=True)
    for k, d in dict(stamps=0, pc=1, xc=2, zsleep=8, zsleep0=24, psleep=0, psleep0=22, rsleep=3, ackwait=1, hipre=0, tlate=1,
                     mode=0, k2ack=1, k2sleep0=6, zk2sleep0=0, k2sleep=5, fbar=0, cpf=2, probe=-1, wsoff=0, flate=1, b1a=1, skew=0, gate=1, lds=0, nsgpr=102, prio=1, stag=0, spec=0, b0=2, wthr=0, xpre=0, atouch=10, ftouch=8, xl2=5, npre=3, gfirst=0, isleep0=0, zisleep0=5, b3=1, ztouch=8, zstep=128, touch=0, wdpos=1, wpf=2, fesleep=0, fw0=0, xack=0, fdelay=0, xsleep0=3, fsleep0=37, fsleep=4, spin=17).items():
        ap.add_argument("--" + k, type=int, default=d)
    for k in ("wpol", "wdpol", "xpol", "outpol", "zpol", "only"):
        ap.add_argument("--" + k, default="")
    ap.add_argument("--mf", default="8,2")
    ap.add_argument("--mz", default="1,3")
    ap.add_argument("--m2", default="8,2")
    ap.add_argument("--hold", default="")
    ap.add_argument("--ev", default="")
    o = ap.parse_args()
    if o.hold:
        o.hold = o.hold.split(":")
    for k in ("mf", "mz", "m2"):
        setattr(o, k, [int(v) for v in getattr(o, k).split(",")])
    for k in ("wpol", "wdpol", "xpol", "outpol", "zpol"):
        setattr(o, k, (" " + getattr(o, k)) if getattr(o, k) else "")
    a = Asm()
    name = gen(a, o)
    if o.touch:
        insert_stubs(a, [("L_ta_start", "L_ta_end", "L_ta", "L_taback", 9)], step=o.touch)
    reg = []
    if o.atouch:
        reg.append(("L_zjoin", "L_tb_end", "L_tb", "L_tbback", o.atouch))
    if o.ztouch:
        reg.append(("L_tz_start", "L_zend", "L_tz", "L_tzback", o.ztouch))
    if o.ftouch:
        reg.append(("L_tf_start", "L_fend", "L_tf", "L_tfback", o.ftouch))
    if reg:
        insert_stubs(a, reg, step=o.zstep)
    finish(a, name, NVGPR, o.nsgpr, NWG, 576, o.lds or LDS_BYTES, o.o)


main()
```

```python
import argparse
from lib import *

NA, NF, NZ = 128, 112, 16
NWG = NA + NF + NZ
WS_E = 0
WS_ALIVE = 4096
WS_KEY = 64 << 10
WS_KEY2 = 128 << 10
WS_XCH = 192 << 10
XCHC = 28 * 4096
WS_PART = 704 << 10
PZ = 56 * 256
PARTC = NZ * PZ
WS_INT = 2 << 20
CS = 32768 + 256
WS_STAMP = 8 << 20
WS_BYTES = 16 << 20
L_TILE = 0
L_U2 = 16384
L_CT = L_U2
UB = 17 * 64
L_MISC = L_U2 + 16 * UB
L_KSL = L_MISC
L_GKEY = L_MISC + 64
L_ZC = L_MISC + 76
L_ZF = L_MISC + 72
L_EXP = L_MISC + 128
L_DUMP = L_MISC + 192
L_XG2 = L_DUMP + 4 * UB + 256
L_M2 = L_XG2 + 4096
L_WV = L_M2 + 4096
L_XT = L_WV + 2048
L_W = 0
L_WD = 32768
L_RED = L_WD + 16384
L_FKEY = L_RED + 2048
LDS_BYTES = 84 * 1024
MF = "v_mfma_f32_16x16x32_bf16"
LOG2E = 0x3fb8aa3b
DPPM = "row_mask:0xf bank_mask:0xf"
HIM = "0xffff0000"
NVGPR = 168


class S:
    WAVE = 3
    PX = 4
    T0, T1, T2, T3, T4, T5 = 6, 7, 8, 9, 10, 11
    EX = 12
    EY = 14
    PWR, PWG, PWU, PWD, PGW, POUT, PDBG, PWS = 16, 18, 20, 22, 24, 26, 28, 30
    L0, L1, SPT, PIE = 32, 33, 34, 35
    RWS, ROUT = 36, 40
    XS = 44
    GKEY, WSEL, WHICH, Z = 44, 45, 46, 47
    SI0, SI1, ID8, BLK = 48, 49, 50, 51
    IDX, ISZ, TC = 54, 55, 53
    SO = 44
    T1C, HH, TD, TM = 56, 57, 58, 59
    FJ, PO, POL, RC, KM, SPIN = 60, 61, 62, 63, 64, 65
    PO0, L10, T20, FKEY, FIN = 40, 41, 42, 43, 35
    ST = 68


def gen(a, o):
    global WS_KEY, WS_XCH, WS_PART, WS_INT, WS_ALIVE, WS_BYTES
    WS_KEY += o.wsoff << 20
    WS_XCH += o.wsoff << 20
    WS_PART += o.wsoff << 20
    WS_INT += o.wsoff << 20
    WS_ALIVE += o.wsoff << 20
    WS_BYTES = max(WS_BYTES, (o.wsoff + 8) << 20)
    name = NAME + "_kernel"
    kernel_head(a, name)
    VE, VTAG = 30, 31
    PXS = f"s[{S.PX}:{S.PX+1}]"

    def stamp(i):
        if o.stamps:
            a(f"s_memrealtime s[{S.ST+2*i}:{S.ST+2*i+1}]")

    def hold(cp):
        if o.hold and o.hold[0] == cp:
            l = a.L("hold")
            a.label(l)
            a("s_sleep 1")
            a("s_memrealtime s[100:101]")
            a("s_waitcnt lgkmcnt(0)")
            a("s_sub_u32 s100, s100, s66")
            a(f"s_cmp_lt_u32 s100, {o.hold[1]}")
            a(f"s_cbranch_scc1 {l}")

    def touch(pre, n, first, step, back=None, tail=None):
        a("s_mov_b64 exec, 0")
        a(f"s_sub_u32 s{S.TC}, s{S.WAVE}, {first + step}")
        a.label(f"{pre}back")
        a(f"s_add_u32 s{S.TC}, s{S.TC}, {step}")
        for k in range(n):
            a(f"s_cmp_eq_u32 s{S.TC}, {k}")
            a(f"s_cbranch_scc1 {pre}{k}")
        a("s_mov_b64 exec, -1")

    def endprog():
        if o.stamps:
            a("s_waitcnt lgkmcnt(0)")
            a(f"s_add_u32 s{S.ST+28}, s{S.RC}, s{S.ST+30}")
            for i in range(16):
                a(f"v_writelane_b32 v166, s{S.ST+2*i}, {i}")
            a("s_mov_b64 exec, 0xffff")
            a(f"s_lshl4_add_u32 s{S.T0}, s2, s{S.WAVE}")
            a(f"s_lshl_b32 s{S.T0}, s{S.T0}, 7")
            a(f"s_add_u32 s{S.T0}, s{S.T0}, {WS_STAMP}")
            a(f"v_lshl_add_u32 v165, v0, 3, s{S.T0}")
            a("v_mov_b32 v167, 0")
            a(f"global_store_dwordx2 v165, v[166:167], s[{S.PWS}:{S.PWS+1}]" + (" sc1" if o.ev else ""))
        a("s_endpgm")

    def spin():
        a(f"s_add_u32 s{S.SPIN}, s{S.SPIN}, 1")
        a(f"s_lshr_b32 s{S.SPT}, s{S.SPIN}, {o.spin}")

    def poll_setup(base, R, C):
        a(f"s_and_b32 s{S.PO}, s2, {R-1}")
        a(f"s_mul_i32 s{S.PO}, s{S.PO}, {1024*C}")
        a(f"s_add_u32 s{S.PO}, s{S.PO}, {base}")
        a(f"s_add_u32 s{S.POL}, s{S.PO}, {1024*(C-1)}")

    def set_exec(n):
        if n >= 64:
            a("s_mov_b64 exec, -1")
        elif n <= 31:
            a(f"s_mov_b64 exec, {(1 << n) - 1:#x}")
        else:
            a("s_mov_b32 exec_lo, -1")
            a(f"s_mov_b32 exec_hi, {(1 << (n - 32)) - 1:#x}")

    RS = 8 if o.spec else 0
    RF, CF = o.mf
    RZ, CZ = o.mz
    R2, C2 = o.m2
    assert RF * CF + RZ * CZ + R2 * C2 + RS <= 64

    def poll_granules(vaddr, vd, sleep=0, step=1024):
        l = a.L("poll")
        if sleep:
            a(f"s_branch {l}_1")
        a.label(l)
        if sleep:
            a(f"s_sleep {sleep}")
            a.label(f"{l}_1")
        a(f"buffer_load_dwordx4 {V(vd,4)}, v{vaddr}, {R4(S.RWS)}, s{S.PO} offen sc1")
        a(f"s_add_u32 s{S.PO}, s{S.PO}, {step}")
        a(f"s_min_u32 s{S.PO}, s{S.PO}, s{S.POL}")
        if o.stamps:
            a(f"s_add_u32 s{S.RC}, s{S.RC}, 1")
        spin()
        a("s_waitcnt vmcnt(0)")
        a(f"s_cbranch_scc1 {l}_ok")
        a(f"v_cmp_ne_u32 vcc, v{VTAG}, v{vd+1}")
        a(f"v_cmp_ne_u32 s[{S.EX}:{S.EX+1}], v{VTAG}, v{vd+3}")
        a(f"s_or_b64 vcc, vcc, s[{S.EX}:{S.EX+1}]")
        a(f"s_cbranch_vccnz {l}")
        a.label(f"{l}_ok")

    def wave_max_key(vd):
        a(f"v_max_u32 v{vd}, v{vd}, v{vd+2}")
        for r in ("row_ror:8", "row_ror:4", "row_ror:2", "row_ror:1"):
            a.nop(2)
            a(f"v_max_u32_dpp v{vd}, v{vd}, v{vd} {r} {DPPM}")
        a.nop(2)
        a(f"v_max_u32_dpp v{vd}, v{vd}, v{vd} row_bcast:15 row_mask:0xa bank_mask:0xf")
        a.nop(2)
        a(f"v_max_u32_dpp v{vd}, v{vd}, v{vd} row_bcast:31 row_mask:0xc bank_mask:0xf")

    def lds_put(addr, v, tag=False):
        a(f"v_mov_b32 v9, {addr}")
        a("s_mov_b32 exec_lo, 0")
        a("s_brev_b32 exec_hi, 1")
        if tag:
            a(f"ds_write2_b32 v9, v{v}, v{VTAG} offset1:1")
        else:
            a(f"ds_write_b32 v9, v{v}")
        a("s_mov_b64 exec, -1")
        a("s_waitcnt lgkmcnt(0)")

    def sigmoid(d, s):
        a(f"v_mul_f32 v{d}, {LOG2E | 0x80000000:#x}, v{s}")
        a(f"v_exp_f32 v{d}, v{d}")
        a.nop(1)
        a(f"v_add_f32 v{d}, 1.0, v{d}")
        a(f"v_rcp_f32 v{d}, v{d}")
        a.nop(1)

    def rnd(d, s):
        a(f"v_cvt_pk_bf16_f32 v{d}, v{s}, v{s}")
        a(f"v_and_b32 v{d}, {HIM}, v{d}")

    def ws_setup():
        a.srd(S.RWS, S.PWS, WS_BYTES)
        a(f"s_mov_b32 s{S.SPIN}, 0")

    def tag_load():
        a(f"v_mov_b32 v{VTAG}, 0")
        a(f"global_load_dword v{VE}, v{VTAG}, s[{S.PWS}:{S.PWS+1}]")
        a(f"s_mov_b32 s{S.KM}, 0x9E3779B1")

    def tag_make():
        a(f"v_mul_lo_u32 v{VTAG}, v{VE}, s{S.KM}")
        a(f"v_add_u32 v{VTAG}, 0x7F4A7C15, v{VTAG}")

    a(f"s_load_dwordx2 s[{S.PX}:{S.PX+1}], s[0:1], {KA_X}")
    a(f"s_load_dwordx16 s[16:31], s[0:1], {KA_WR}")
    if o.stamps:
        for i in range(1, 16):
            a(f"s_mov_b32 s{S.ST+2*i}, 0")
        a(f"s_mov_b32 s{S.RC}, 0")
    stamp(0)
    if o.hold or o.probe >= 0:
        a("s_memrealtime s[66:67]")
    if o.skew:
        a("s_and_b32 s6, s2, 7")
        a("s_cmp_lg_u32 s6, 5")
        a("s_cbranch_scc1 L_noskew")
        a(f"s_sleep {o.skew}")
        a.label("L_noskew")
    a("v_lshrrev_b32 v1, 6, v0")
    a("v_and_b32 v0, 63, v0")
    a(f"v_readfirstlane_b32 s{S.WAVE}, v1")
    a("v_and_b32 v1, 15, v0")
    a("v_lshrrev_b32 v2, 4, v0")
    a(f"s_and_b32 s{S.T0}, s2, 7")
    a(f"s_sub_u32 s{S.WAVE}, s{S.WAVE}, 1")
    a(f"s_min_u32 s{S.WAVE}, s{S.WAVE}, 8")
    a(f"s_lshr_b32 s{S.T1}, s2, 3")
    if o.fent:
        a(f"s_sub_u32 s{S.T2}, s2, {NA}")
        a(f"s_cmp_lt_u32 s{S.T2}, 96")
        a("s_cbranch_scc1 L_F0")
    a(f"s_cmp_ge_u32 s2, {NA}")
    a("s_cbranch_scc1 L_notA")
    if o.only == "F":
        a("s_endpgm")

    VROW, VG16, VSGN, VTR, VST = 3, 5, 8, 10, 11
    VLD, VUW, VUX, VUR0, VUR1 = 10, 11, 28, 29, 30
    XR, WR, GW, CO = 16, 24, 24, 24
    CM, AOP, ACC = 32, 96, 112
    LD, DA0, DA1, TP, X16, PK = 32, 64, 32, 80, 96, 48
    M1, GA, XG = 100, 148, 152
    Cc, Ss = 64, 68
    UO, PQ, M2 = 32, 48, 64

    def rows_setup(wreg):
        a(f"s_lshl3_add_u32 s{S.T5}, s{S.HH}, s{wreg}")
        a(f"s_lshl_b32 s{S.T5}, s{S.T5}, 7")
        a(f"s_add_u32 s{S.TD}, s{S.T5}, s{S.T1C}")
        a(f"s_sub_u32 s{S.TM}, 2048, s{S.TD}")
        a(f"s_cmp_eq_u32 s{S.TD}, 0")
        a(f"s_cselect_b32 s{S.TM}, 1024, s{S.TM}")
        a(f"s_lshl_b32 s{S.T4}, s{S.TD}, 10")
        a(f"s_lshl_b32 s{S.T5}, s{S.TM}, 10")
        a(f"v_add_u32 v6, s{S.T4}, v{VG16}")
        a(f"v_add_u32 v7, s{S.T5}, v{VG16}")

    def vrow_setup():
        a("v_and_b32 v6, 1, v2")
        a("v_lshlrev_b32 v6, 5, v6")
        a("v_lshl_add_u32 v6, v1, 6, v6")
        a("v_lshrrev_b32 v7, 1, v2")
        a(f"v_lshl_add_u32 v{VROW}, v7, 4, v6")

    def rows_load():
        a(f"global_load_dwordx4 {V(XR,4)}, v6, {PXS}{o.xpol}")
        a(f"global_load_dwordx4 {V(XR+4,4)}, v7, {PXS}{o.xpol}")

    def sgn_setup():
        a(f"v_lshlrev_b32 v{VSGN}, 31, v1")
        a(f"v_lshrrev_b32 v9, 16, v{VSGN}")
        a(f"v_or_b32 v{VSGN}, v{VSGN}, v9")

    def sgn_setup2():
        a(f"v_lshlrev_b32 v{VSGN}, 31, v1")
        a(f"v_lshrrev_b32 v14, 16, v{VSGN}")
        a(f"v_or_b32 v{VSGN}, v{VSGN}, v14")

    def tile_ids():
        a(f"s_bitcmp1_b32 s{S.T1}, 3")
        a(f"s_cselect_b32 s{S.T2}, s{S.T3}, s{S.T2}")
        a(f"s_and_b32 s{S.T3}, s{S.T1}, 7")
        a(f"s_lshl3_add_u32 s{S.BLK}, s{S.T2}, s{S.T3}")
        a(f"s_lshl_b32 s{S.PIE}, s{S.T2}, 5")
        a(f"s_add_u32 s{S.PIE}, s{S.PIE}, s{S.T3}")
        a(f"s_lshl_b32 s{S.PIE}, s{S.PIE}, 6")

    def vst_setup():
        a(f"v_mul_u32_u24 v{VST}, {CS}, v1")
        a(f"v_lshl_add_u32 v{VST}, v2, 4, v{VST}")

    def const_d2():
        R = 40
        a("v_lshlrev_b32 v6, 2, v2")
        a("v_cvt_f32_u32 v7, v1")
        a("v_cvt_f32_u32 v6, v6")
        a("v_mul_f32 v7, 0x3d800000, v7")
        for hf in range(2):
            if hf:
                a("v_add_f32 v7, 0x3d800000, v7")
            a("v_mul_f32 v9, v6, v7")
            for jj in range(4):
                a(f"v_cos_f32 v{Cc+jj}, v9")
                a(f"v_sin_f32 v{Ss+jj}, v9")
                if jj < 3:
                    a("v_add_f32 v9, v9, v7")
            a.nop(1)
            for jj in range(4):
                if hf == 0:
                    a(f"v_cvt_pk_bf16_f32 v{R+jj}, v{Cc+jj}, v{Ss+jj}")
                    a(f"v_cvt_pk_bf16_f32 v{R+8+jj}, -v{Ss+jj}, v{Cc+jj}")
                else:
                    a(f"v_cvt_pk_bf16_f32 v{R+4+jj}, v{Cc+jj}, -v{Ss+jj}")
                    a(f"v_cvt_pk_bf16_f32 v{R+12+jj}, -v{Ss+jj}, -v{Cc+jj}")
        for k in range(4):
            a(f"ds_write_b128 v{VG16}, {V(R+4*k,4)} offset:{L_M2 + 1024*k}")

    if o.touch:
        a("s_mov_b64 exec, 0")
        for k in range(9):
            a(f"s_cmp_eq_u32 s{S.WAVE}, {(k + 8) % 9}")
            a(f"s_cbranch_scc1 L_ta{k}")
        a.label("L_taback")
        a("s_mov_b64 exec, -1")
        a.label("L_ta_start")
    a(f"s_add_u32 s{S.T2}, s{S.T0}, 1")
    a(f"s_sub_u32 s{S.T3}, 15, s{S.T0}")
    a(f"s_cmp_eq_u32 s{S.WAVE}, 8")
    a("s_cbranch_scc1 L_ah")
    a(f"s_and_b32 s{S.HH}, s{S.T1}, 1")
    a(f"s_bitcmp1_b32 s{S.T1}, 1")
    a(f"s_cselect_b32 s{S.T4}, s{S.T3}, s{S.T2}")
    a(f"s_lshr_b32 s{S.T5}, s{S.T1}, 2")
    a(f"s_lshl4_add_u32 s{S.T1C}, s{S.T5}, s{S.T4}")
    a(f"v_lshlrev_b32 v{VG16}, 4, v0")
    a(f"v_mov_b32 v{VROW}, 0")
    a(f"s_cmp_lg_u32 s{S.T0}, 7")
    a("s_cbranch_scc1 L_k7")
    a(f"s_lshr_b32 s{S.T5}, s{S.T1}, 1")
    a(f"s_lshl3_add_u32 s{S.T1C}, s{S.T5}, 8")
    a(f"s_mov_b32 s{S.T2}, 0")
    a(f"s_cmp_eq_u32 s2, 127")
    a(f"s_cselect_b32 s{S.T1C}, 0, s{S.T1C}")
    a(f"s_cselect_b32 s{S.HH}, 0, s{S.HH}")
    a.label("L_k7")
    rows_setup(S.WAVE)
    a("s_waitcnt lgkmcnt(0)")
    rows_load()
    stamp(1)
    if o.b0 == 2:
        a("s_barrier")
    tile_ids()

    def tile_dma():
        a(f"s_lshl_b32 s{S.T4}, s{S.WAVE}, 11")
        a(f"s_add_u32 s{S.T5}, s{S.T4}, s{S.BLK}")
        a(f"s_lshl_b32 s{S.T5}, s{S.T5}, 7")
        a(f"s_mov_b32 m0, s{S.T4}")
        a("v_and_b32 v9, 7, v0")
        a("v_bfe_u32 v13, v0, 4, 1")
        a("v_xor_b32 v9, v9, v13")
        a("v_lshrrev_b32 v13, 3, v0")
        a(f"v_lshl_add_u32 v9, v9, 4, s{S.T5}")
        a("v_lshl_add_u32 v13, v13, 14, v9")
        a(f"global_load_lds_dwordx4 v13, {PXS}")
        a(f"s_add_u32 m0, s{S.T4}, 1024")
        a("v_add_u32 v13, 0x20000, v13")
        a(f"global_load_lds_dwordx4 v13, {PXS}")
        stamp(2)

    if not o.tlate:
        tile_dma()
    C1, S1, K = AOP, AOP + 4, AOP + 8
    a(f"s_lshr_b32 s{S.T0}, s{S.WAVE}, 2")
    a(f"s_and_b32 s{S.T1}, s{S.WAVE}, 1")
    a(f"s_bfe_u32 s{S.T2}, s{S.WAVE}, 0x10001")
    a(f"v_lshl_add_u32 v6, s{S.T0}, 4, v1")
    a(f"s_lshl3_add_u32 s{S.T3}, s{S.T2}, s{S.T1}")
    a(f"s_lshl_b32 s{S.T3}, s{S.T3}, 2")
    a("v_cvt_f32_u32 v6, v6")
    a(f"v_lshl_add_u32 v7, v2, 3, s{S.T3}")
    a("v_mul_f32 v6, 0x3c000000, v6")
    a("v_cvt_f32_u32 v7, v7")
    a("v_mul_f32 v7, v7, v6")
    for j in range(4):
        a(f"v_cos_f32 v{C1+j}, v7")
        a(f"v_sin_f32 v{S1+j}, v7")
        if j < 3:
            a("v_add_f32 v7, v7, v6")
    if o.tlate == 2:
        a(f"global_load_dwordx4 {V(WR,4)}, v{VG16}, s[{S.PWR}:{S.PWR+1}]")
        tile_dma()
    a(f"s_lshl_b32 s{S.T4}, s{S.T0}, 13")
    a(f"s_lshl_b32 s{S.T5}, s{S.T2}, 10")
    a(f"s_lshl3_add_u32 s{S.T5}, s{S.T1}, s{S.T5}")
    a(f"v_add_u32 v15, s{S.T4}, v{VG16}")
    a(f"v_add_u32 v9, s{S.T5}, v15")
    a(f"v_cvt_pk_bf16_f32 v{K+0}, v{C1}, v{C1+1}")
    a(f"v_cvt_pk_bf16_f32 v{K+1}, v{C1+2}, v{C1+3}")
    a(f"v_cvt_pk_bf16_f32 v{K+2}, -v{S1}, -v{S1+1}")
    a(f"v_cvt_pk_bf16_f32 v{K+3}, -v{S1+2}, -v{S1+3}")
    a("v_cmp_eq_f32 vcc, 0, v6")
    a(f"v_cvt_pk_bf16_f32 v{K+4}, v{C1}, -v{S1+1}")
    a(f"v_cvt_pk_bf16_f32 v{K+5}, -v{C1+2}, v{S1+3}")
    a(f"v_cvt_pk_bf16_f32 v{K+6}, -v{S1}, -v{C1+1}")
    a(f"v_cvt_pk_bf16_f32 v{K+7}, v{S1+2}, v{C1+3}")
    a(f"ds_write_b64 v9, {V(K,2)} offset:{L_CT}")
    a(f"ds_write_b64 v9, {V(K+4,2)} offset:{L_CT+4096}")
    a(f"ds_write_b64 v9, {V(K+6,2)} offset:{L_CT+6144}")
    a("s_mov_b64 exec, vcc")
    a(f"v_mov_b32 v{K+2}, 0xbf803f80")
    a(f"v_mov_b32 v{K+3}, 0xbf803f80")
    a("s_mov_b64 exec, -1")
    a(f"ds_write_b64 v9, {V(K+2,2)} offset:{L_CT+2048}")
    if o.tlate != 2:
        a(f"global_load_dwordx4 {V(WR,4)}, v{VG16}, s[{S.PWR}:{S.PWR+1}]")
    if o.tlate == 1:
        tile_dma()
    a("v_mov_b32 v12, 0")
    a("v_mov_b32 v13, 0")
    stamp(3)
    if o.b0 == 1:
        a("s_waitcnt lgkmcnt(0)")
        a("s_barrier")
        for k in range(2):
            for t in range(4):
                a(f"ds_read_b128 {V(CM+16*t+4*k,4)}, v15 offset:{L_CT + t*2048 + k*1024}")

    def dots(w, fill=()):
        fill = list(fill)

        def pad(n):
            while n and fill:
                a(fill.pop(0))
                n -= 1
            a.nop(n)

        for i in range(4):
            a(f"v_dot2c_f32_bf16 v12, v{XR+i}, v{w+i}")
            a(f"v_dot2c_f32_bf16 v13, v{XR+4+i}, v{w+i}")
        pad(3)
        a("v_permlane32_swap_b32 v12, v13")
        a("v_add_f32 v12, v12, v13")
        a("v_mov_b32 v13, v12")
        pad(2)
        a("v_permlane16_swap_b32 v12, v13")
        a("v_add_f32 v12, v12, v13")
        for r in (8, 4, 2, 1):
            pad(2)
            a(f"v_add_f32_dpp v12, v12, v12 row_ror:{r} {DPPM}")
        rnd(12, 12)
        for x in fill:
            a(x)

    a(f"s_waitcnt vmcnt({2 if o.tlate else 0})")
    stamp(4)
    dots(WR, [f"s_sub_u32 s{S.T4}, 0xffff, s{S.TD}", f"s_sub_u32 s{S.T5}, 0xffff, s{S.TM}", f"v_mov_b32 v4, s{S.T4}",
              f"v_writelane_b32 v4, s{S.T5}, 32", f"v_mov_b32 v9, {L_KSL}",
              f"v_lshlrev_b32 v{VSGN}, 31, v1", f"v_lshrrev_b32 v7, 16, v{VSGN}", f"v_or_b32 v{VSGN}, v{VSGN}, v7",
              "v_bfe_u32 v6, v0, 2, 2", "v_and_b32 v14, 3, v0", f"v_lshl_add_u32 v14, v14, 1, s{S.T2}",
              f"v_lshl_add_u32 v{VTR}, v2, 3, v6", "v_lshrrev_b32 v6, 1, v6", "v_xor_b32 v14, v14, v6"])
    a("v_ashrrev_i32 v7, 31, v12")
    a("v_or_b32 v7, 0x80000000, v7")
    a("v_xor_b32 v7, v7, v12")
    a(f"v_and_b32 v7, {HIM}, v7")
    a("v_or_b32 v7, v7, v4")
    a("s_mov_b32 exec_lo, 1")
    a("s_mov_b32 exec_hi, 1")
    a("ds_max_u32 v9, v7")
    a("s_mov_b64 exec, -1")
    if o.b1a:
        a("s_waitcnt lgkmcnt(0)")
        hold("K")
        a("s_barrier")
    if o.b0 == 2:
        for k in range(2):
            for t in range(4):
                a(f"ds_read_b128 {V(CM+16*t+4*k,4)}, v15 offset:{L_CT + t*2048 + k*1024}")
    a(f"s_lshl_b32 s{S.T1}, s{S.T1}, 3")
    a(f"v_lshl_add_u32 v14, v14, 4, s{S.T1}")
    a(f"v_lshl_add_u32 v{VTR}, v{VTR}, 7, v14")
    a("v_lshlrev_b32 v9, 4, v2")
    a("s_waitcnt vmcnt(0)" + ("" if o.b0 == 2 else " lgkmcnt(0)"))
    hold("B1")
    a("s_barrier")
    stamp(5)
    if o.b0 == 2:
        a("s_waitcnt lgkmcnt(5)")
    a(f"ds_read_b128 v[28:31], v9 offset:{L_EXP}")
    for k in range(4):
        for h in range(2):
            a(f"ds_read_b64_tr_b16 {V(AOP+4*k+2*h,2)}, v{VTR} offset:{L_TILE + k*4096 + h*512}")
        if k < 2 and not o.b0:
            for t in range(4):
                a(f"ds_read_b128 {V(CM+16*t+4*k,4)}, v15 offset:{L_CT + t*2048 + k*1024}")
        if k == 1 and not o.b0:
            a("s_waitcnt lgkmcnt(9)")
    a(f"global_load_dwordx4 {V(GW,4)}, v{VG16}, s[{S.PGW}:{S.PGW+1}]")
    xors = [f"v_xor_b32 v{CM+t*16+8+4*kp+r}, v{CM+t*16+4*kp+r}, v{VSGN}" for kp in range(2) for t in range(4) for r in range(4)]
    misc = [f"s_mul_i32 s{S.SO}, s{S.T0}, {16*CS}",
            f"s_add_u32 s{S.SO}, s{S.SO}, s{S.PIE}",
            f"s_and_b32 s{S.T4}, s{S.WAVE}, 3",
            f"s_lshl_b32 s{S.T4}, s{S.T4}, 9",
            f"s_add_u32 s{S.SO}, s{S.SO}, s{S.T4}",
            f"s_add_u32 s{S.SO}, s{S.SO}, {WS_INT}",
            f"s_mov_b32 s{S.RWS}, s{S.PWS}", f"s_mov_b32 s{S.RWS+1}, s{S.PWS+1}", f"s_mov_b32 s{S.RWS+2}, {WS_BYTES:#x}",
            f"s_mov_b32 s{S.RWS+3}, 0x20000",
            f"s_add_u32 s{S.SO+1}, s{S.SO}, {32*CS}", f"s_mov_b32 s{S.T5}, 0xfffefffe", f"s_mov_b32 s{S.T4}, 0x07060302",
            f"v_mul_u32_u24 v{VST}, {CS}, v1", f"v_lshl_add_u32 v{VST}, v2, 4, v{VST}",
            ]
    fill = xors + misc
    for k in range(4):
        for t in range(4):
            if o.b0:
                if t == 0:
                    a(f"s_waitcnt lgkmcnt({6-2*k})")
            elif k == 0:
                a(f"s_waitcnt lgkmcnt({13-t})")
            elif k == 1:
                a(f"s_waitcnt lgkmcnt({7-t})")
            elif t == 0:
                a(f"s_waitcnt lgkmcnt({2 if k == 2 else 0})")
            c = "0" if k == 0 else V(ACC + 4 * t, 4)
            a(f"{MF} {V(ACC+4*t,4)}, {V(AOP+4*k,4)}, {V(CM+16*t+4*k,4)}, {c}")
            n = 4 if k < 2 else 2
            if k < 3 or t < 3:
                for _ in range(n):
                    if fill:
                        x = fill.pop(0)
                        if x != "TAGWAIT":
                            a(x)
    for x in fill:
        a(x)
    a("v_mov_b32 v12, 0")
    a("v_mov_b32 v13, 0")
    for h in range(2):
        for i in range(8):
            a(f"v_add_u32 v{ACC+8*h+i}, 0x10000, v{ACC+8*h+i}")
        for i in range(4):
            a(f"v_perm_b32 v{AOP+4*h+i}, v{ACC+8*h+4+i}, v{ACC+8*h+i}, s{S.T4}")
        for i in range(4):
            a(f"v_and_or_b32 v{AOP+4*h+i}, v{AOP+4*h+i}, s{S.T5}, v{28+i}")
        a(f"buffer_store_dwordx4 {V(AOP+4*h,4)}, v{VST}, {R4(S.RWS)}, s{S.SO+h} offen sc1")
    a(f"s_mov_b32 s{S.SPIN}, 0")
    a(f"s_mov_b32 s{S.ISZ}, 0")
    stamp(7)
    if o.only == "P1":
        a("s_endpgm")
    a.label("L_ta_end")

    gwait = [2]

    def gates(full):
        if full:
            a(f"s_waitcnt vmcnt({gwait[0]})")
        dots(GW)
        if full:
            a(f"s_lshl_b32 s{S.T0}, s{S.WAVE}, 11")
            a(f"v_add_u32 v6, s{S.T0}, v{VG16}")
            a(f"ds_write_b128 v6, {V(XR,4)} offset:{L_XT}")
            a(f"ds_write_b128 v6, {V(XR+4,4)} offset:{L_XT+1024}")
            a(f"v_lshl_add_u32 v7, v1, 6, s{S.T0}")
            a("v_lshl_add_u32 v7, v2, 3, v7")
            a("s_waitcnt lgkmcnt(0)")
            for r in range(2):
                a(f"ds_read2_b64 {V(XR+4*r,4)}, v7 offset0:{0} offset1:{4}" if False else f"ds_read_b64 {V(XR+4*r,2)}, v7 offset:{L_XT+1024*r}")
                a(f"ds_read_b64 {V(XR+4*r+2,2)}, v7 offset:{L_XT+1024*r+32}")
            vrow_setup()
        sigmoid(13, 12)
        rnd(13, 13)
        a("v_sub_f32 v14, 1.0, v13")
        rnd(14, 14)
        a(f"v_readlane_b32 s{S.T0}, v13, 0")
        a(f"v_readlane_b32 s{S.T1}, v13, 32")
        a(f"v_readlane_b32 s{S.T2}, v14, 0")
        a(f"v_readlane_b32 s{S.T3}, v14, 32")
        a(f"s_xor_b32 s{S.T4}, s{S.T0}, 0x80000000")
        a(f"s_cmp_eq_u32 s{S.TD}, 0")
        a(f"s_cselect_b32 s{S.T4}, 0, s{S.T4}")
        a(f"s_cselect_b32 s{S.T5}, 0, s{S.T1}")
        if not full:
            return
        a(f"v_mov_b32 v{CO}, s{S.T0}")
        a(f"v_mov_b32 v{CO+1}, s{S.T4}")
        a(f"v_mov_b32 v{CO+2}, s{S.T5}")
        a(f"v_mov_b32 v{CO+3}, s{S.T1}")
        a(f"v_mov_b32 v13, s{S.T2}")
        a(f"v_mov_b32 v14, s{S.T3}")
        a("s_waitcnt lgkmcnt(0)")
        for r in range(2):
            for i in range(4):
                a(f"v_lshlrev_b32 v{XG+8*r+2*i}, 16, v{XR+4*r+i}")
                a(f"v_and_b32 v{XG+8*r+2*i+1}, {HIM}, v{XR+4*r+i}")
            for i in range(8):
                a(f"v_mul_f32 v{XG+8*r+i}, v{13+r}, v{XG+8*r+i}")

    def addr_ur(wreg):
        a(f"s_mul_i32 s{S.T1}, s{wreg}, {2*UB}")
        a("v_bfe_u32 v7, v1, 1, 2")
        a("v_xor_b32 v7, v7, v2")
        a(f"v_lshl_add_u32 v7, v7, 4, s{S.T1}")
        a(f"v_lshl_add_u32 v{VUR0}, v1, 6, v7")
        a("v_sub_u32 v6, 16, v1")
        a("v_bfe_u32 v7, v6, 1, 2")
        a("v_xor_b32 v7, v7, v2")
        a(f"v_lshl_add_u32 v7, v7, 4, s{S.T1}")
        a(f"v_lshl_add_u32 v{VUR1}, v6, 6, v7")

    def addr_p2():
        a("v_lshlrev_b32 v6, 4, v1")
        a(f"v_lshl_add_u32 v{VLD}, v2, 13, v6")
        a(f"v_mul_u32_u24 v6, {4*UB}, v2")
        a("v_bfe_u32 v7, v1, 1, 2")
        a(f"v_xor_b32 v7, s{S.WAVE}, v7")
        a("v_lshl_add_u32 v7, v7, 4, v6")
        a(f"v_lshl_add_u32 v{VUW}, v1, 6, v7")
        a(f"s_lshl4_add_u32 s{S.T1}, s{S.WAVE}, 1024")
        a(f"v_mov_b32 v9, {L_DUMP - L_U2}")
        a(f"v_lshl_add_u32 v{VUX}, v0, 1, v9")
        a(f"v_lshl_add_u32 v7, v1, 1, s{S.T1}")
        a("s_mov_b32 exec_lo, 0x00ff00ff")
        a("s_mov_b32 exec_hi, 0x00ff00ff")
        a(f"v_add_u32 v{VUX}, v7, v6")
        a("s_mov_b64 exec, -1")

    EXP = 96

    def exp_setup():
        a("v_and_b32 v6, 3, v1")
        a("v_lshlrev_b32 v6, 4, v6")
        a(f"ds_read_b128 {V(EXP,4)}, v6 offset:{L_EXP}")
        a("s_waitcnt lgkmcnt(0)")

    def exp_make():
        a("v_lshlrev_b32 v6, 1, v1")
        a(f"v_lshrrev_b32 v6, v6, v{VTAG}")
        a("v_lshlrev_b32 v7, 15, v6")
        a("v_and_b32 v6, 1, v6")
        a("v_and_b32 v7, 0x10000, v7")
        a("v_or_b32 v6, v6, v7")
        a("v_lshlrev_b32 v7, 2, v1")
        a(f"ds_write_b32 v7, v6 offset:{L_EXP}")
        a("s_waitcnt lgkmcnt(0)")

    def const_d1():
        a("v_cvt_f32_u32 v6, v1")
        a(f"s_lshl_b32 s{S.T0}, s{S.WAVE}, 2")
        a(f"v_lshl_add_u32 v7, v2, 6, s{S.T0}")
        a("v_mul_f32 v6, 0x3b000000, v6")
        a("v_cvt_f32_u32 v7, v7")
        a("v_mul_f32 v15, 0x41800000, v6")
        a("v_mul_f32 v7, v7, v6")
        for ib in range(4):
            if ib:
                a("v_add_f32 v7, v7, v6")
            for j in range(4):
                src = "v7" if j == 0 else "v9"
                a(f"v_cos_f32 v{Cc+j}, {src}")
                a(f"v_sin_f32 v{Ss+j}, {src}")
                if j < 3:
                    a(f"v_add_f32 v9, {src}, v15")
            b = M1 + 12 * ib
            a(f"v_mov_b32 v{b+8}, 0")
            for p in range(2):
                a(f"v_cvt_pk_bf16_f32 v{b+p}, v{Cc+2*p}, v{Cc+2*p+1}")
                a(f"v_cvt_pk_bf16_f32 v{b+4+p}, -v{Ss+2*p}, -v{Ss+2*p+1}")
            for p in range(2):
                a(f"v_xor_b32 v{b+2+p}, v{b+p}, v{VSGN}")
                a(f"v_xor_b32 v{b+6+p}, v{b+4+p}, v{VSGN}")
        a("v_lshrrev_b32 v6, 1, v1")
        a(f"v_add_u32 v7, s{S.T0}, v6")
        a("v_and_b32 v9, 1, v1")
        a("v_lshl_add_u32 v7, v9, 3, v7")
        a("v_cvt_f32_u32 v7, v7")
        a("v_mul_f32 v7, 0x3d000000, v7")
        a("v_cos_f32 v7, v7")
        for ib in range(4):
            m = 0x00030003 << (2 * ib)
            a(f"s_mov_b32 exec_lo, {m:#x}")
            a(f"s_mov_b32 exec_hi, {m:#x}")
            a(f"v_cvt_pk_bf16_f32 v{M1+12*ib+8}, v7, -v7")
        a("s_mov_b64 exec, -1")
        for ib in range(4):
            for p in range(1, 4):
                a(f"v_mov_b32 v{M1+12*ib+8+p}, v{M1+12*ib+8}")

    def const_ga():
        a("v_lshrrev_b32 v6, 1, v1")
        a(f"s_lshl_b32 s{S.T0}, s{S.HH}, 10")
        a(f"s_add_u32 s{S.T0}, s{S.T0}, s{S.T1C}")
        a(f"v_lshl_add_u32 v6, v6, 7, s{S.T0}")
        a("v_and_b32 v7, 1, v1")
        a("v_lshlrev_b32 v9, 9, v7")
        l0, ld = a.L("g0"), a.L("gd")
        a(f"s_cmp_lg_u32 s{S.T1C}, 0")
        a(f"s_cbranch_scc1 {l0}")
        a("s_mov_b32 exec_lo, 0x00020002")
        a("s_mov_b32 exec_hi, 0x00020002")
        a("v_mov_b32 v6, 0x400")
        a("v_mov_b32 v9, 0")
        a("s_mov_b64 exec, -1")
        a.label(l0)
        a("v_lshlrev_b32 v7, 2, v2")
        a("v_mad_u32_u24 v9, v7, v6, v9")
        a("v_cvt_f32_u32 v6, v6")
        a("v_cvt_f32_u32 v9, v9")
        a("v_mul_f32 v6, 0x3a000000, v6")
        a("v_mul_f32 v9, 0x3a000000, v9")
        for jj in range(4):
            a(f"v_cos_f32 v{Cc+jj}, v9")
            a(f"v_sin_f32 v{Ss+jj}, v9")
            if jj < 3:
                a("v_add_f32 v9, v9, v6")
        a(f"s_and_b32 s{S.T1}, s{S.T1C}, 63")
        a.nop(1)
        for jj in range(4):
            a(f"v_cvt_pk_bf16_f32 v{GA+jj}, v{Cc+jj}, v{Ss+jj}")
        a(f"s_cmp_lg_u32 s{S.T1}, 0")
        a(f"s_cbranch_scc1 {ld}")
        a(f"s_lshr_b32 s{S.T1}, s{S.T1C}, 2")
        for jj in range(4):
            a(f"v_and_b32 v{GA+jj}, 0xffff, v{GA+jj}")
            a(f"v_lshlrev_b32 v{GA+jj}, s{S.T1}, v{GA+jj}")
        a.label(ld)

    def int_base():
        a(f"s_and_b32 s{S.T1}, s{S.T1C}, 63")
        a(f"s_mul_i32 s{S.L0}, s{S.T1}, {CS}")
        a(f"s_lshl_b32 s{S.T1}, s{S.WAVE}, 9")
        a(f"s_add_u32 s{S.L0}, s{S.L0}, s{S.T1}")
        a(f"s_add_u32 s{S.L0}, s{S.L0}, {WS_INT}")
        a(f"s_add_u32 s{S.L1}, s{S.L0}, 4096")

    def m2_addr():
        a(f"s_cmp_eq_u32 s{S.TD}, 0")
        a(f"s_cselect_b32 s{S.T0}, 0, 2048")
        a(f"v_add_u32 v4, s{S.T0}, v{VG16}")

    def int_loads(ah):
        for jj in range(4):
            so = S.L0 if jj < 2 else S.L1
            a(f"buffer_load_dwordx4 {V(LD+16*ah+4*jj,4)}, v{VLD}, {R4(S.RWS)}, s{so} offen offset:{(jj & 1)*2048 + ah*256} sc1")

    a.srd(S.ROUT, S.POUT, 0x200000)
    a(f"s_cmp_ge_u32 s{S.WAVE}, 4")
    a("s_cbranch_scc1 L_hi0")
    if o.prio & 1:
        a("s_setprio 2")
    pre = [lambda: (addr_p2(), int_base(), const_ga(), exp_setup()), const_d1, lambda: gates(True), lambda: (addr_ur(S.WAVE), m2_addr())]
    if o.gfirst:
        pre[1], pre[2] = pre[2], pre[1]
    for f in pre[:o.npre]:
        f()
    stamp(8)
    a(f"s_waitcnt vmcnt({0 if o.ackwait else 2})")
    if o.b3:
        a("s_barrier")
    if o.isleep0:
        a(f"s_sleep {o.isleep0}")
    hold("B4")
    stamp(9)
    if o.stag:
        a(f"s_cmp_lg_u32 s{S.HH}, 0")
        a("s_cbranch_scc1 L_stg1")
        int_loads(0)
        a(f"s_waitcnt vmcnt({4 - o.stag})")
        int_loads(1)
        a("s_branch L_stg2")
        a.label("L_stg1")
        int_loads(1)
        a(f"s_waitcnt vmcnt({4 - o.stag})")
        int_loads(0)
        a("s_waitcnt vmcnt(0)")
        a.label("L_stg2")
    else:
        int_loads(0)
        int_loads(1)
    gwait[0] = 10
    for f in pre[o.npre:]:
        f()
    gwait[0] = 2
    a.label("L_zjoin")
    stamp(10)
    for ah in range(2):
        a(f"s_waitcnt vmcnt({4-4*ah})")
        a.label(f"L_got{ah}")
        b = LD + 16 * ah
        da = DA1 if ah else DA0
        for ib in range(4):
            for jj in range(4):
                a(f"v_xor_b32 v{TP+4*ib+jj}, v{b+4*jj+ib}, v{EXP+ib}")
            if ib == 0:
                a(f"v_or3_b32 v6, v{TP}, v{TP+1}, v{TP+2}")
                a(f"v_or_b32 v6, v6, v{TP+3}")
            else:
                a(f"v_or3_b32 v6, v6, v{TP+4*ib}, v{TP+4*ib+1}")
                a(f"v_or3_b32 v6, v6, v{TP+4*ib+2}, v{TP+4*ib+3}")
            if ib == 3:
                a("v_and_b32 v6, 0x10001, v6")
                a("v_cmp_ne_u32 vcc, 0, v6")
            if not (ah == 1):
                a(f"{MF} {V(da+4*ib,4)}, {V(TP+4*ib,4)}, {V(GA,4)}, 0")
            else:
                a(f"{MF} {V(da+4*ib,4)}, {V(TP+4*ib,4)}, {V(GA,4)}, 0")
        a(f"s_cbranch_vccnz L_retry{ah}")
        a.label(f"L_fail{ah}")
    stamp(11)

    def d1(jb):
        a(f"{MF} {V(DA0+4*jb,4)}, {V(TP+4*jb,4)}, {V(M1+12*jb,4)}, 0")
        a(f"{MF} {V(DA1+4*jb,4)}, {V(TP+4*jb,4)}, {V(M1+12*jb+4,4)}, 0")
        a(f"{MF} {V(X16,4)}, {V(TP+4*jb,4)}, {V(M1+12*jb+8,4)}, {'0' if jb == 0 else V(X16,4)}")

    for ib in range(4):
        for p in range(4):
            s0 = (DA1 if p >= 2 else DA0) + 4 * ib + 2 * (p & 1)
            a(f"v_cvt_pk_bf16_f32 v{TP+4*ib+p}, v{s0}, v{s0+1}")
        if ib:
            d1(ib - 1)
    d1(3)
    for ib in range(3):
        for i in range(4):
            a(f"v_cvt_pk_bf16_f32 v{PK+4*i+ib}, v{DA0+4*ib+i}, v{DA1+4*ib+i}")
    for i in range(4):
        a(f"v_cvt_pk_bf16_f32 v{PK+4*i+3}, v{DA0+12+i}, v{DA1+12+i}")
        a(f"ds_write_b128 v{VUW}, {V(PK+4*i,4)} offset:{L_U2 + i*UB}")
    a(f"v_cvt_pk_bf16_f32 v{X16}, v{X16}, v{X16+1}")
    a(f"v_cvt_pk_bf16_f32 v{X16+2}, v{X16+2}, v{X16+3}")
    a(f"ds_write_b16 v{VUX}, v{X16} offset:{L_U2}")
    a(f"ds_write_b16_d16_hi v{VUX}, v{X16} offset:{L_U2+UB}")
    a(f"ds_write_b16 v{VUX}, v{X16+2} offset:{L_U2+2*UB}")
    a(f"ds_write_b16_d16_hi v{VUX}, v{X16+2} offset:{L_U2+3*UB}")
    a.label("L_d2")
    a(f"ds_read_b128 {V(M2,4)}, v{VG16} offset:{L_M2}")
    a(f"ds_read_b128 {V(M2+4,4)}, v{VG16} offset:{L_M2+1024}")
    a(f"ds_read_b128 {V(M2+8,4)}, v4 offset:{L_M2}")
    a(f"ds_read_b128 {V(M2+12,4)}, v4 offset:{L_M2+1024}")
    a(f"v_mov_b32 v9, {L_GKEY}")
    a(f"s_cmp_lg_u32 s{S.ISZ}, 0")
    a("s_waitcnt lgkmcnt(0)")
    a("s_cbranch_scc1 L_zsync")
    a("s_barrier")
    stamp(12)
    a("ds_read_b32 v6, v9")
    a(f"ds_read_b128 {V(UO,4)}, v{VUR0} offset:{L_U2}")
    a(f"ds_read_b128 {V(UO+4,4)}, v{VUR1} offset:{L_U2}")
    a(f"ds_read_b128 {V(UO+8,4)}, v{VUR0} offset:{L_U2+UB}")
    a(f"ds_read_b128 {V(UO+12,4)}, v{VUR1} offset:{L_U2+UB}")
    a(f"s_lshl_b32 s{S.T0}, s{S.TD}, 10")
    a(f"s_lshl_b32 s{S.T1}, s{S.TM}, 10")
    for k in range(4):
        a(f"s_waitcnt lgkmcnt({3-k})")
        a(f"{MF} {V(PQ+4*k,4)}, {V(UO+4*k,4)}, {V(M2+4*k,4)}, 0")
    a(f"v_readfirstlane_b32 s{S.GKEY}, v6")
    a(f"s_andn2_b32 s{S.IDX}, 0xffff, s{S.GKEY}")
    for r in range(2):
        for i in range(8):
            a(f"v_fmac_f32 v{XG+8*r+i}, v{CO+2*r}, v{PQ+i}")
    for r, (so, tr) in enumerate(((S.T0, S.TD), (S.T1, S.TM))):
        for i in range(8):
            a(f"v_fmac_f32 v{XG+8*r+i}, v{CO+2*r+1}, v{PQ+8+i}")
        for i in range(4):
            a(f"v_cvt_pk_bf16_f32 v{UO+4*r+i}, v{XG+8*r+2*i}, v{XG+8*r+2*i+1}")
        l = a.L("skip")
        if r == 0:
            stamp(6)
        a(f"s_cmp_eq_u32 s{tr}, s{S.IDX}")
        a(f"s_cbranch_scc1 {l}")
        a(f"v_permlane16_swap_b32 v{UO+4*r}, v{UO+4*r+2}")
        a(f"v_permlane16_swap_b32 v{UO+4*r+1}, v{UO+4*r+3}")
        a(f"buffer_store_dwordx4 {V(UO+4*r,4)}, v{VROW}, {R4(S.ROUT)}, s{so} offen{o.outpol}")
        a.label(l)
    a.label("L_tb_end")
    stamp(13)
    if o.stamps:
        a("s_waitcnt vmcnt(0)")
        stamp(15)
    endprog()

    for ah in range(2):
        a.label(f"L_retry{ah}")
        if o.stamps:
            a(f"s_add_u32 s{S.RC}, s{S.RC}, {1 << (8*ah)}")
        if o.rsleep:
            a(f"s_sleep {o.rsleep}")
        spin()
        a(f"s_cbranch_scc1 L_fail{ah}")
        int_loads(ah)
        a("s_waitcnt vmcnt(0)")
        a(f"s_branch L_got{ah}")

    a.label("L_hi0")
    if o.b3:
        if o.ackwait:
            a("s_waitcnt vmcnt(0)")
        a("s_barrier")
    a.label("L_hi1")
    if o.atouch:
        touch("L_tb", o.atouch, 4, 4)
        a(f"s_cmp_lg_u32 s{S.ISZ}, 0")
        a("s_cbranch_scc1 L_z0b")
    gates(True)
    addr_ur(S.WAVE)
    m2_addr()
    stamp(10)
    a("s_branch L_d2")

    a.label("L_ah")
    if o.prio & 2:
        a("s_setprio 3")
    if o.cpf:
        a(f"s_cmp_ge_u32 s{S.T1}, {o.cpf}")
        a("s_cbranch_scc1 L_nocpf")
        a(f"s_getpc_b64 s[{S.EX}:{S.EX+1}]")
        a.label("L_pc")
        a(f"s_sub_u32 s{S.EX}, s{S.EX}, L_pc - {name}")
        a(f"s_subb_u32 s{S.EX+1}, s{S.EX+1}, 0")
        a("v_lshlrev_b32 v6, 7, v0")
        a("v_add_u32 v7, 0x2000, v6")
        a(f"v_min_u32 v7, L_end - {name}, v7")
        a(f"v_mov_b32 v13, s{S.EX+1}")
        a(f"v_mov_b32 v15, s{S.EX+1}")
        a(f"v_add_co_u32 v12, vcc, s{S.EX}, v6")
        a.nop(2)
        a("v_addc_co_u32 v13, vcc, 0, v13, vcc")
        a(f"v_add_co_u32 v14, vcc, s{S.EX}, v7")
        a.nop(2)
        a("v_addc_co_u32 v15, vcc, 0, v15, vcc")
        a("global_load_dword v10, v[12:13], off")
        a("global_load_dword v11, v[14:15], off")
        a.label("L_nocpf")
    a(f"v_lshlrev_b32 v{VG16}, 4, v0")
    a(f"v_mov_b32 v{VTAG}, 0")
    a(f"v_mov_b32 v9, {L_KSL}")
    a(f"ds_write_b32 v9, v{VTAG}")
    a(f"s_mov_b32 s{S.KM}, 0x9E3779B1")
    a(f"s_cmp_ge_u32 s{S.T1}, {o.wpf}")
    a("s_waitcnt lgkmcnt(0)")
    a("s_cbranch_scc1 L_nowpf")
    a(f"global_load_dwordx4 v[32:35], v{VG16}, s[{S.PWR}:{S.PWR+1}]")
    a(f"global_load_dword v{VE}, v{VTAG}, s[{S.PWS}:{S.PWS+1}]")
    a(f"global_load_dwordx4 v[36:39], v{VG16}, s[{S.PGW}:{S.PGW+1}]")
    a.label("L_nowpf")
    stamp(1)
    a("v_lshlrev_b32 v14, 10, v0")
    a(f"s_lshl_b32 s{S.ID8}, s2, 3")
    a(f"s_add_u32 s{S.ID8}, s{S.ID8}, {WS_KEY}")
    ws_setup()

    if o.b0 == 2:
        a("s_barrier")
    const_d2()
    a(f"global_load_dword v{VE}, v{VTAG}, s[{S.PWS}:{S.PWS+1}]")
    a("s_waitcnt lgkmcnt(0)")
    stamp(2)
    if o.b0 == 1:
        a("s_barrier")
    a(f"v_mov_b32 v9, {L_KSL}")
    a("s_waitcnt vmcnt(0)")
    tag_make()
    exp_make()
    a(f"v_mov_b32 v9, {L_KSL}")
    stamp(3)
    a("s_barrier")
    a(f"ds_read_b32 v{VE}, v9")
    set_exec(RF * CF + RZ * CZ + R2 * C2 + RS)
    a("s_waitcnt lgkmcnt(0)")
    a(f"buffer_store_dwordx2 v[{VE}:{VTAG}], v14, {R4(S.RWS)}, s{S.ID8} offen sc1")
    if o.probe >= 0:
        a("s_mov_b64 exec, 1")
        a("v_mov_b32 v40, s66")
        a(f"v_mov_b32 v41, v{VTAG}")
        a(f"s_add_u32 s{S.T0}, s{S.ID8}, {WS_KEY2 - WS_KEY}")
        a(f"buffer_store_dwordx2 v[40:41], v14, {R4(S.RWS)}, s{S.T0} offen sc1")
    a("s_mov_b64 exec, -1")
    stamp(5)
    if o.b1a:
        a("s_barrier")
    if o.only == "P1":
        a("s_endpgm")
    poll_setup(WS_KEY + 1024 * (RF * CF + RZ * CZ), R2, C2)
    a("s_waitcnt vmcnt(0)")
    if not o.gate and o.b3:
        a("s_barrier")
    if o.k2sleep0:
        a(f"s_sleep {o.k2sleep0}")
    stamp(8)
    poll_granules(VG16, 32, sleep=o.k2sleep)
    stamp(9)
    wave_max_key(32)
    lds_put(L_GKEY, 32)
    if o.gate:
        a(f"s_sleep {o.gate}")
        a("s_barrier")
        if o.probe >= 0:
            a("s_cmp_lg_u32 s2, 9")
            a("s_cbranch_scc1 L_noprobe")
            a("s_barrier")
            a(f"s_mov_b32 s{S.PO}, {WS_KEY2}")
            a(f"s_mov_b32 s{S.POL}, {WS_KEY2}")
            poll_granules(VG16, 32, sleep=4)
            for i in range(8):
                a(f"v_readlane_b32 s{70+i}, v{32 + 2*(i&1)}, {i>>1}")
            a("s_mov_b32 s80, s70")
            for i in range(1, 8):
                a(f"s_sub_u32 s81, s{70+i}, s80")
                a("s_cmp_lt_i32 s81, 0")
                a(f"s_cselect_b32 s80, s{70+i}, s80")
            if o.probe < 8:
                a(f"s_sub_u32 s81, s{70+o.probe}, s80")
            else:
                a("s_mov_b32 s81, 0")
                for i in range(8):
                    a(f"s_sub_u32 s82, s{70+i}, s80")
                    a("s_max_u32 s81, s81, s82")
            a("s_mul_i32 s81, s81, 10")
            a("s_add_u32 s81, s81, 800")
            a.label("L_pw")
            a("s_sleep 1")
            a("s_memrealtime s[100:101]")
            a("s_waitcnt lgkmcnt(0)")
            a("s_sub_u32 s100, s100, s80")
            a("s_cmp_lt_u32 s100, s81")
            a("s_cbranch_scc1 L_pw")
            a.label("L_noprobe")
        if o.hold and o.hold[0] == "endA":
            a(f"s_sub_u32 s{S.T0}, s2, {o.hold[2]}")
            a(f"s_cmp_ge_u32 s{S.T0}, {o.hold[3]}")
            a("s_cbranch_scc1 L_nohold")
            a("s_barrier")
            hold("endA")
            a.label("L_nohold")
        endprog()
    a("s_barrier")
    endprog()

    a.label("L_notA")
    if o.only == "AA":
        a("s_endpgm")
    a(f"s_lshl4_add_u32 s{S.FJ}, s{S.T0}, s{S.T1}")
    a(f"s_sub_u32 s{S.FJ}, s{S.FJ}, 16")
    a(f"s_cmp_ge_u32 s2, {NWG}")
    a("s_cbranch_scc1 L_end")
    a(f"s_cmp_lt_u32 s{S.T0}, 4")
    a("s_cbranch_scc1 L_F")
    a(f"s_mul_i32 s{S.FJ}, s{S.T0}, 12")
    a(f"s_add_u32 s{S.FJ}, s{S.FJ}, s{S.T1}")
    a(f"s_cmp_lt_u32 s{S.T1}, 28")
    a("s_cbranch_scc1 L_F")
    a(f"s_mov_b32 s{S.ISZ}, 1")
    a(f"s_lshl2_add_u32 s{S.Z}, s{S.T0}, s{S.T1}")
    a(f"s_sub_u32 s{S.Z}, s{S.Z}, 44")
    vrow_setup()
    a(f"v_lshlrev_b32 v{VG16}, 4, v0")
    sgn_setup()
    a("s_waitcnt lgkmcnt(0)")
    ws_setup()
    a.srd(S.ROUT, S.POUT, 0x200000)
    addr_p2()
    a(f"s_cmp_eq_u32 s{S.WAVE}, 8")
    a("s_cbranch_scc1 L_zh")
    a(f"s_cmp_ge_u32 s{S.WAVE}, 4")
    a("s_cbranch_scc1 L_z0")
    const_d1()
    a("s_branch L_z1")
    a.label("L_z0")
    if o.atouch:
        a("s_branch L_hi1")
    a.label("L_z0b")
    if o.ztouch:
        touch("L_tz", o.ztouch, 4, 4)
    a.label("L_z1")
    a(f"v_mov_b32 v9, {L_KSL}")
    a("v_mov_b32 v12, 0")
    a("v_mov_b32 v13, 0")
    a("s_barrier")
    a(f"ds_read_b64 v[{VE}:{VTAG}], v9")
    a(f"ds_read_b128 {V(GW,4)}, v{VG16} offset:{L_WV+1024}")
    a("s_waitcnt lgkmcnt(0)")
    a(f"v_readfirstlane_b32 s{S.GKEY}, v{VE}")
    a(f"s_andn2_b32 s{S.IDX}, 2047, s{S.GKEY}")
    a(f"s_and_b32 s{S.T0}, s{S.IDX}, 127")
    a(f"s_cmp_gt_u32 s{S.T0}, 64")
    a(f"s_cselect_b32 s{S.WHICH}, 1, 0")
    a(f"s_and_b32 s{S.T0}, s{S.IDX}, {1024 + 63}")
    a(f"s_cmp_eq_u32 s{S.T0}, 1024")
    a(f"s_cselect_b32 s{S.WHICH}, 1, s{S.WHICH}")
    a(f"s_sub_u32 s{S.T0}, 2048, s{S.IDX}")
    a(f"s_cmp_lg_u32 s{S.WHICH}, 0")
    a(f"s_cselect_b32 s{S.T0}, s{S.T0}, s{S.IDX}")
    a(f"s_cmp_eq_u32 s{S.T0}, 1024")
    a(f"s_cselect_b32 s{S.T0}, 0, s{S.T0}")
    a(f"s_and_b32 s{S.T1C}, s{S.T0}, 127")
    a(f"s_lshr_b32 s{S.HH}, s{S.T0}, 10")
    a(f"s_bfe_u32 s{S.WSEL}, s{S.T0}, 0x30007")
    rows_setup(S.WSEL)
    a(f"s_cmp_ge_u32 s{S.WAVE}, 4")
    a("s_cbranch_scc1 L_z4")
    int_base()
    if o.zisleep0:
        a(f"s_sleep {o.zisleep0}")
    stamp(9)
    int_loads(0)
    int_loads(1)
    const_ga()
    exp_setup()
    addr_ur(S.WSEL)
    m2_addr()
    a("v_lshlrev_b32 v6, 7, v1")
    a(f"v_lshl_add_u32 v15, v2, 4, v6")
    a("s_branch L_zjoin")
    a.label("L_z4")
    a(f"s_cmp_ge_u32 s{S.WAVE}, 6")
    a("s_cbranch_scc1 L_zend2")
    rows_load()
    a(f"s_sub_u32 s{S.T0}, s{S.WAVE}, 4")
    a(f"s_lshl1_add_u32 s{S.T1}, s{S.Z}, s{S.T0}")
    a(f"s_lshl_b32 s{S.T1}, s{S.T1}, 5")
    a("v_and_b32 v6, 7, v0")
    a(f"v_lshl_add_u32 v10, v6, 2, s{S.T1}")
    a(f"s_lshl_b32 s{S.T2}, s{S.IDX}, 10")
    a(f"v_add_u32 v7, s{S.T2}, v10")
    a(f"global_load_dword v35, v7, {PXS}")
    a("v_lshlrev_b32 v10, 1, v10")
    a("v_lshrrev_b32 v7, 3, v0")
    a("v_lshlrev_b32 v7, 8, v7")
    a("v_lshl_add_u32 v11, v6, 4, v7")
    a(f"s_mul_i32 s{S.SI0}, s{S.Z}, {PZ}")
    a(f"s_lshl_b32 s{S.T0}, s{S.T0}, 7")
    a(f"s_add_u32 s{S.SI0}, s{S.SI0}, s{S.T0}")
    a(f"s_add_u32 s{S.SI0}, s{S.SI0}, {WS_PART}")
    a(f"s_add_u32 s{S.SI1}, s{S.SI0}, {(o.pc-1)*PARTC}")
    a(f"s_and_b32 s{S.T0}, s{S.GKEY}, 0xffff0000")
    a(f"s_xor_b32 s{S.T1}, s{S.T0}, 0x80000000")
    a(f"s_xor_b32 s{S.T3}, s{S.T0}, 0xffff0000")
    a(f"s_bitcmp1_b32 s{S.T0}, 31")
    a(f"s_cselect_b32 s{S.T0}, s{S.T1}, s{S.T3}")
    a(f"v_mov_b32 v15, s{S.T0}")
    sigmoid(15, 15)
    rnd(15, 15)
    a("s_waitcnt vmcnt(0)")
    gates(False)
    a(f"s_cmp_lg_u32 s{S.WHICH}, 0")
    a(f"s_cselect_b32 s{S.T2}, s{S.T3}, s{S.T2}")
    a(f"s_cselect_b32 s{S.T0}, s{S.T5}, s{S.T0}")
    a(f"s_cselect_b32 s{S.T4}, s{S.T1}, s{S.T4}")
    a(f"v_xor_b32 v{VTAG}, s{S.IDX}, v{VTAG}")
    a(f"v_mov_b32 v36, s{S.T2}")
    a(f"v_mov_b32 v{CO}, s{S.T0}")
    a(f"v_mov_b32 v{CO+1}, s{S.T4}")
    a("v_lshlrev_b32 v34, 16, v35")
    a(f"v_and_b32 v35, {HIM}, v35")
    if o.psleep0:
        a(f"s_sleep {o.psleep0}")
    hold("pp")
    a(f"v_mov_b32 v9, {L_ZF}")
    a.label("L_tz_start")
    stamp(10)
    if o.psleep:
        a("s_branch L_zp1")
    a.label("L_zp")
    if o.psleep:
        a(f"s_sleep {o.psleep}")
        a.label("L_zp1")
    for i in range(7):
        if i and i % 2 == 0:
            a(f"s_add_u32 s{S.T0}, s{S.SI0}, {2048*i}")
        a(f"buffer_load_dwordx4 {V(40+4*i,4)}, v11, {R4(S.RWS)}, s{S.T0 if i >= 2 else S.SI0} offen offset:{2048*(i&1)} sc1")
    a(f"s_add_u32 s{S.SI0}, s{S.SI0}, {PARTC}")
    a(f"s_min_u32 s{S.SI0}, s{S.SI0}, s{S.SI1}")
    if o.stamps:
        a(f"s_add_u32 s{S.RC}, s{S.RC}, 256")
    spin()
    a("s_cbranch_scc1 L_zp_ok")
    for i in range(7):
        a(f"s_waitcnt vmcnt({6-i})")
        a(f"v_bitop3_b32 v{37 if i == 0 else 38 + (i & 1)}, v{41+4*i}, v{43+4*i}, v{VTAG} bitop3:0x7e")
        if i:
            a(f"v_add_f32 v40, v40, v{40+4*i}")
            a(f"v_add_f32 v42, v42, v{42+4*i}")
        if i and i % 2 == 0:
            a("v_or3_b32 v37, v37, v38, v39")
    a("v_cmp_ne_u32 vcc, 0, v37")
    a.nop(1)
    a("s_cbranch_vccnz L_zp")
    a.label("L_zp_ok")
    a("ds_read_b32 v12, v9")
    a(f"ds_read_b64 v[32:33], v10 offset:{L_XG2}")
    a(f"ds_read_b64 v[16:17], v10 offset:{L_XG2+2048}")
    a("v_lshrrev_b32 v11, 1, v10")
    a(f"s_lshl_b32 s{S.T2}, s{S.IDX}, 10")
    a("s_waitcnt vmcnt(0)")
    stamp(11)
    a(f"v_add_f32_dpp v40, v40, v40 row_ror:8 {DPPM}")
    a(f"v_add_f32_dpp v42, v42, v42 row_ror:8 {DPPM}")
    a.nop(1)
    a.nop(1)
    a("v_permlane16_swap_b32 v40, v42")
    a("v_add_f32 v40, v40, v42")
    a("v_mov_b32 v42, v40")
    a.nop(2)
    a("v_permlane32_swap_b32 v40, v42")
    a("v_add_f32 v40, v40, v42")
    a("v_mov_b32 v42, v40")
    a.nop(2)
    a("v_permlane16_swap_b32 v40, v42")
    a("v_cvt_pk_bf16_f32 v41, v40, v42")
    a("v_lshlrev_b32 v40, 16, v41")
    a(f"v_and_b32 v42, {HIM}, v41")
    a("v_mul_f32 v40, v40, v15")
    a("v_mul_f32 v42, v42, v15")
    a("v_cvt_pk_bf16_f32 v41, v40, v42")
    a("v_lshlrev_b32 v40, 16, v41")
    a(f"v_and_b32 v42, {HIM}, v41")
    a("v_add_f32 v40, v40, v34")
    a("v_add_f32 v42, v42, v35")
    a("v_cvt_pk_bf16_f32 v41, v40, v42")
    a("v_lshlrev_b32 v40, 16, v41")
    a(f"v_and_b32 v42, {HIM}, v41")
    a.label("L_zw")
    a("s_waitcnt lgkmcnt(0)")
    a("v_cmp_eq_u32 vcc, 0, v12")
    a(f"v_mul_f32 v32, v{CO}, v32")
    a(f"v_mul_f32 v33, v{CO}, v33")
    a("s_cbranch_vccz L_zw_ok")
    spin()
    a("s_cbranch_scc1 L_zw_ok")
    a("ds_read_b32 v12, v9")
    a(f"ds_read_b64 v[32:33], v10 offset:{L_XG2}")
    a(f"ds_read_b64 v[16:17], v10 offset:{L_XG2+2048}")
    a("s_branch L_zw")
    a.label("L_zw_ok")
    a(f"v_fmac_f32 v32, v{CO+1}, v16")
    a(f"v_fmac_f32 v33, v{CO+1}, v17")
    a("v_fmac_f32 v32, v40, v36")
    a("v_fmac_f32 v33, v42, v36")
    a("v_cvt_pk_bf16_f32 v32, v32, v33")
    a("s_mov_b64 exec, 0xff")
    a(f"buffer_store_dword v32, v11, {R4(S.ROUT)}, s{S.T2} offen{o.zpol}")
    a("s_mov_b64 exec, -1")
    stamp(13)
    if o.stamps:
        a("s_waitcnt vmcnt(0)")
        stamp(15)
    a("s_barrier")
    endprog()

    a.label("L_zsync")
    a(f"v_mov_b32 v9, {L_ZC}")
    a("v_mov_b32 v6, 1")
    a("s_mov_b64 exec, 1")
    a("ds_add_u32 v9, v6")
    a("s_mov_b64 exec, -1")
    a(f"s_cmp_lg_u32 s{S.WAVE}, 0")
    a("s_cbranch_scc1 L_zend")
    a.label("L_zs")
    a("ds_read_b32 v6, v9")
    spin()
    a("s_waitcnt lgkmcnt(0)")
    a("s_cbranch_scc1 L_zs_ok")
    a("v_cmp_ne_u32 vcc, 4, v6")
    a.nop(1)
    a("s_cbranch_vccnz L_zs")
    a.label("L_zs_ok")
    stamp(12)
    a(f"ds_read_b128 {V(UO,4)}, v{VUR0} offset:{L_U2}")
    a(f"ds_read_b128 {V(UO+4,4)}, v{VUR1} offset:{L_U2}")
    a(f"ds_read_b128 {V(UO+8,4)}, v{VUR0} offset:{L_U2+UB}")
    a(f"ds_read_b128 {V(UO+12,4)}, v{VUR1} offset:{L_U2+UB}")
    for k in range(4):
        a(f"s_waitcnt lgkmcnt({3-k})")
        a(f"{MF} {V(PQ+4*k,4)}, {V(UO+4*k,4)}, {V(M2+4*k,4)}, 0")
    a.nop(3)
    for k in range(4):
        if k == 2:
            a.nop(2)
        a(f"ds_write_b128 v15, {V(PQ+4*k,4)} offset:{L_XG2 + 64*(k&1) + 2048*(k>>1)}")
    a(f"v_mov_b32 v9, {L_ZF}")
    a("s_waitcnt lgkmcnt(0)")
    a("ds_write_b32 v9, v9")
    a("s_waitcnt lgkmcnt(0)")
    stamp(13)
    a.label("L_zend")
    endprog()
    a.label("L_zend2")
    if o.hold and o.hold[0] == "end":
        a("s_barrier")
    hold("end")
    if o.ev:
        lo, n, w, st, med = [int(v) for v in o.ev.split(":")]
        a("s_cmp_lg_u32 s2, 255")
        a("s_cbranch_scc1 L_noev")
        a(f"s_cmp_lg_u32 s{S.WAVE}, 7")
        a("s_cbranch_scc1 L_noev")
        a("s_barrier")
        a.label("L_ev0")
        a("s_sleep 4")
        a("s_memrealtime s[100:101]")
        a("s_waitcnt lgkmcnt(0)")
        a(f"s_sub_u32 s100, s100, s{S.ST}")
        a("s_cmp_lt_u32 s100, 750")
        a("s_cbranch_scc1 L_ev0")
        a("v_lshlrev_b32 v6, 11, v0")
        a(f"v_add_u32 v7, {WS_STAMP + 8*128}, v6")
        a(f"global_load_dword v40, v7, s[{S.PWS}:{S.PWS+1}] sc1")
        a(f"v_add_u32 v7, {WS_STAMP + lo*2048 + w*128 + st*8}, v6")
        for q in range(n // 64):
            a(f"global_load_dword v{44+q}, v7, s[{S.PWS}:{S.PWS+1}] sc1")
            a(f"v_add_u32 v7, {64*2048}, v7")
        a("s_waitcnt vmcnt(0)")
        a(f"v_subrev_u32 v40, s{S.ST}, v40")
        a("v_sub_u32 v40, 1000, v40")
        a("v_mov_b32 v42, v40")
        wave_max_key(40)
        a("v_mov_b32 v41, 0")
        for q in range(n // 64):
            a(f"v_subrev_u32 v{44+q}, s{S.ST}, v{44+q}")
            a(f"v_cmp_gt_u32 vcc, 1000, v{44+q}")
            a.nop(2)
            a(f"v_cndmask_b32 v{44+q}, 0, v{44+q}, vcc")
            a(f"v_max_u32 v41, v41, v{44+q}")
        a("v_mov_b32 v43, v41")
        wave_max_key(41)
        a.nop(2)
        a("v_readlane_b32 s6, v40, 63")
        a("v_readlane_b32 s7, v41, 63")
        a("s_sub_u32 s6, s6, 1000")
        a("s_min_u32 s6, s6, 300")
        a("s_add_u32 s7, s7, s6")
        a("s_mul_i32 s7, s7, 4")
        a("s_add_u32 s7, s7, 900")
        a("s_sub_u32 s7, s7, s6")
        a.label("L_ev1")
        a("s_sleep 1")
        a("s_memrealtime s[100:101]")
        a("s_waitcnt lgkmcnt(0)")
        a(f"s_sub_u32 s100, s100, s{S.ST}")
        a("s_cmp_lt_u32 s100, s7")
        a("s_cbranch_scc1 L_ev1")
        a.label("L_noev")
    endprog()

    a.label("L_zh")
    a(f"v_mov_b32 v9, {L_ZF}")
    a("v_mov_b32 v6, 0")
    a("ds_write2_b32 v9, v6, v6 offset1:1")
    const_d2()
    a(f"s_mov_b32 m0, {L_WV+1024}")
    tag_load()
    a(f"global_load_lds_dwordx4 v{VG16}, s[{S.PGW}:{S.PGW+1}]")
    a("s_waitcnt vmcnt(0)")
    tag_make()
    exp_make()
    poll_setup(WS_KEY + 1024 * RF * CF, RZ, CZ)
    if o.zsleep0:
        a(f"s_sleep {o.zsleep0}")
    stamp(1)
    poll_granules(VG16, 32, sleep=o.zsleep)
    stamp(2)
    wave_max_key(32)
    lds_put(L_KSL, 32, tag=True)
    a("s_barrier")
    a(f"s_lshl_b32 s{S.T0}, s{S.Z}, 2")
    a(f"s_add_u32 s{S.T0}, s{S.T0}, {WS_ALIVE}")
    a("s_mov_b64 exec, 1")
    a(f"buffer_store_dword v{VTAG}, v0, {R4(S.RWS)}, s{S.T0} offen sc1")
    a("s_mov_b64 exec, -1")
    a(f"s_cmp_lg_u32 s{S.Z}, 0")
    a("s_cbranch_scc1 L_zend")
    a("s_mov_b64 exec, 0xffff")
    a("v_lshlrev_b32 v6, 2, v0")
    a(f"s_mov_b32 s{S.T0}, {WS_ALIVE}")
    a("s_waitcnt vmcnt(0)")
    a("s_sleep 24")
    a.label("L_za")
    a(f"buffer_load_dword v7, v6, {R4(S.RWS)}, s{S.T0} offen sc1")
    spin()
    a("s_waitcnt vmcnt(0)")
    a("s_cbranch_scc1 L_za_ok")
    a(f"v_cmp_ne_u32 vcc, v{VTAG}, v7")
    a.nop(1)
    a("s_cbranch_vccnz L_za")
    a.label("L_za_ok")
    a("s_mov_b64 exec, 1")
    a(f"v_add_u32 v9, 1, v{VE}")
    a("s_barrier")
    a(f"buffer_store_dword v9, v6, {R4(S.RWS)}, 0 offen sc1")
    a("s_mov_b64 exec, -1")
    a("s_branch L_zend")

    if o.fent:
        a.raw(".p2align 7")
    a.label("L_F0")
    a(f"s_lshl4_add_u32 s{S.FJ}, s{S.T0}, s{S.T2}")
    a.lines.pop()
    a(f"s_lshl_b32 s{S.FJ}, s{S.T0}, 4")
    a(f"s_mul_i32 s{S.T3}, s{S.T0}, 12")
    a(f"s_add_u32 s{S.T3}, s{S.T3}, 16")
    a(f"s_cmp_lt_u32 s{S.T0}, 4")
    a(f"s_cselect_b32 s{S.FJ}, s{S.FJ}, s{S.T3}")
    a(f"s_add_u32 s{S.FJ}, s{S.FJ}, s{S.T1}")
    a(f"s_sub_u32 s{S.FJ}, s{S.FJ}, 16")
    a.label("L_F")
    if o.only == "A":
        a("s_endpgm")
    WG_, WD_ = 32, 48
    a("v_lshlrev_b32 v5, 4, v0")
    a(f"s_cmp_eq_u32 s{S.WAVE}, 8")
    a("s_cbranch_scc1 L_fh")
    a(f"s_and_b32 s{S.T0}, s{S.FJ}, 3")
    a(f"s_lshr_b32 s{S.T1}, s{S.WAVE}, 1")
    a(f"s_lshl2_add_u32 s{S.L0}, s{S.T0}, s{S.T1}")
    a(f"s_mul_i32 s{S.T2}, s{S.L0}, {32*3584}")
    a(f"s_lshr_b32 s{S.L1}, s{S.FJ}, 2")
    a(f"s_lshl_b32 s{S.T3}, s{S.L1}, 7")
    a(f"s_add_u32 s{S.T2}, s{S.T2}, s{S.T3}")
    a("v_lshrrev_b32 v6, 3, v0")
    a("v_mul_u32_u24 v6, 3584, v6")
    a("v_and_b32 v7, 7, v0")
    a("v_bfe_u32 v8, v0, 4, 1")
    a("v_lshlrev_b32 v8, 2, v8")
    a("v_xor_b32 v4, v7, v8")
    a(f"v_lshl_add_u32 v7, v4, 4, s{S.T2}")
    a("v_add_u32 v3, v6, v7")
    a(f"s_lshl_b32 s{S.T4}, s{S.WAVE}, 12")
    a(f"s_mov_b32 m0, s{S.T4}")
    def w_dma():
        a(f"s_bitcmp1_b32 s{S.WAVE}, 0")
        a("s_waitcnt lgkmcnt(0)")
        a(f"s_cselect_b32 s{S.PWG}, s{S.PWU}, s{S.PWG}")
        a(f"s_cselect_b32 s{S.PWG+1}, s{S.PWU+1}, s{S.PWG+1}")
        if o.fdelay:
            a(f"s_sleep {o.fdelay}")
        for b in range(4):
            if b:
                a(f"s_add_u32 m0, s{S.T4}, {1024*b}")
                a(f"v_add_u32 v3, {8*3584}, v3")
            if o.wthr and b >= o.wthr:
                a(f"s_waitcnt vmcnt({o.wthr - 1})")
            a(f"global_load_lds_dwordx4 v3, s[{S.PWG}:{S.PWG+1}]{o.wpol}")
        ws_setup()
        stamp(1)

    if not o.flate:
        w_dma()
    a("v_bfe_u32 v6, v0, 2, 2")
    a("v_and_b32 v7, 3, v0")
    a("v_lshlrev_b32 v8, 3, v7")
    a("v_lshl_add_u32 v8, v2, 5, v8")
    a("v_and_b32 v9, 2, v6")
    a("v_lshlrev_b32 v9, 5, v9")
    a("v_xor_b32 v9, v9, v8")
    a("v_lshl_add_u32 v9, v6, 7, v9")
    a(f"v_add_u32 v9, s{S.T4}, v9")
    a(f"s_lshl_b32 s{S.T5}, s{S.WAVE}, 8")
    a("v_lshlrev_b32 v11, 2, v0")
    a(f"v_add_u32 v11, {L_RED}, v11")
    a(f"v_add_u32 v12, s{S.T5}, v11")
    a(f"s_lshl1_add_u32 s{S.T1}, s{S.L1}, s{S.T1}")
    a(f"s_lshl_b32 s{S.T2}, s{S.T1}, 15")
    a(f"s_and_b32 s{S.T3}, s{S.WAVE}, 1")
    a(f"s_lshl1_add_u32 s{S.T3}, s{S.T0}, s{S.T3}")
    a(f"s_lshl_b32 s{S.T5}, s{S.T3}, 7")
    a(f"s_add_u32 s{S.T2}, s{S.T2}, s{S.T5}")
    a("v_lshrrev_b32 v6, 3, v0")
    a(f"v_lshl_add_u32 v6, v6, 10, s{S.T2}")
    a("v_lshl_add_u32 v4, v4, 4, v6")
    a("v_lshrrev_b32 v6, 5, v0")
    a(f"v_mul_u32_u24 v13, {PZ}, v6")
    a("v_and_b32 v6, 31, v0")
    a("v_lshl_add_u32 v13, v6, 3, v13")
    a(f"s_mul_i32 s{S.T2}, s{S.T3}, {2*PZ}")
    a(f"s_lshl_b32 s{S.T1}, s{S.T1}, 8")
    a(f"s_add_u32 s{S.T2}, s{S.T2}, s{S.T1}")
    a(f"s_add_u32 s{S.T2}, s{S.T2}, {WS_PART}")
    a(f"s_lshl_b32 s{S.L0}, s{S.L0}, 6")
    a(f"s_lshl_b32 s{S.L1}, s{S.L1}, 12")
    a(f"s_add_u32 s{S.PO}, s{S.L1}, {WS_XCH}")
    a(f"s_add_u32 s{S.POL}, s{S.PO}, {(o.xc-1)*XCHC}")
    a(f"s_lshl_b32 s{S.T1}, s{S.T0}, 10")
    a(f"s_add_u32 s{S.L1}, s{S.PO}, s{S.T1}")
    a(f"v_mov_b32 v14, {L_FKEY}")
    a(f"s_lshr_b32 s{S.T1}, s{S.WAVE}, 1")
    a(f"s_lshl_b32 s{S.T1}, s{S.T1}, 9")
    a(f"v_lshl_add_u32 v15, v6, 4, s{S.T1}")
    a("v_lshrrev_b32 v6, 5, v0")
    a("v_lshl_add_u32 v15, v6, 10, v15")
    a(f"s_mov_b32 s{S.PO0}, s{S.PO}")
    a(f"s_mov_b32 s{S.L10}, s{S.L1}")
    a(f"s_mov_b32 s{S.T20}, s{S.T2}")
    a(f"s_mov_b32 s{S.FIN}, 0")

    if o.flate:
        w_dma()

    def wd_dma():
        l = a.L("nowd")
        a(f"s_cmp_ge_u32 s{S.WAVE}, 4")
        a(f"s_cbranch_scc1 {l}")
        for b in range(4):
            a(f"s_add_u32 m0, s{S.T4}, {L_WD + 1024*b}")
            if b:
                a("v_add_u32 v4, 0x2000, v4")
            else:
                a.nop(1)
            a(f"global_load_lds_dwordx4 v4, s[{S.PWD}:{S.PWD+1}]{o.wdpol}")
        a.label(l)

    if o.wdpos == 0:
        wd_dma()
    a("s_waitcnt vmcnt(0)")
    stamp(2)
    if o.fw0:
        a("s_barrier")
    if o.wdpos == 1:
        wd_dma()
    if o.xpre:
        for i in range(2):
            a(f"buffer_load_dwordx4 {V(64+4*i,4)}, v15, {R4(S.RWS)}, s{S.PO} offen offset:{2048*i} sc1")
    for k in range(8):
        a(f"ds_read_b64_tr_b16 {V(WG_+2*k,2)}, v9 offset:{L_W + k*512}")
    if o.ftouch:
        touch("L_tf", o.ftouch, 0, 8)
    a("s_waitcnt lgkmcnt(0)")
    a("s_barrier")
    a.label("L_tf_start")
    a("ds_read_b64 v[26:27], v14")
    a("s_waitcnt lgkmcnt(0)")
    a(f"v_readfirstlane_b32 s{S.FKEY}, v26")
    a.label("L_redo")
    a(f"s_andn2_b32 s{S.T0}, 2047, s{S.FKEY}")
    a(f"s_lshl_b32 s{S.T1}, s{S.T0}, 10")
    a(f"s_add_u32 s{S.T1}, s{S.T1}, s{S.L0}")
    a(f"s_load_dwordx16 s[{S.XS}:{S.XS+15}], {PXS}, s{S.T1}")
    stamp(5)
    a(f"v_xor_b32 v{VTAG}, s{S.T0}, v27")
    a(f"v_xor_b32 v29, s{S.T0}, v27")
    for r in (16, 17, 24, 25):
        a(f"v_mov_b32 v{r}, 0")
    a(f"s_mov_b32 s{S.PO}, s{S.PO0}")
    a(f"s_mov_b32 s{S.L1}, s{S.L10}")
    a(f"s_mov_b32 s{S.T2}, s{S.T20}")
    a(f"s_mov_b32 s{S.KM}, 0")
    a("s_waitcnt lgkmcnt(0)")
    for i in range(16):
        a(f"v_dot2c_f32_bf16 v{16+(i&1)}, s{S.XS+i}, v{WG_+i}")
    stamp(6)
    a.nop(3)
    a("v_add_f32 v16, v16, v17")
    a("ds_write_b32 v12, v16")
    a("s_waitcnt lgkmcnt(0)")
    a("s_barrier")
    a(f"s_lshl_b32 s{S.T0}, s{S.WAVE}, 4")
    a(f"s_lshl_b64 s[{S.EX}:{S.EX+1}], 0xffff, s{S.T0}")
    for i, (p, q) in enumerate(((0, 2), (4, 6), (1, 3), (5, 7))):
        a(f"ds_read2st64_b32 v[{16+2*i}:{17+2*i}], v11 offset0:{p} offset1:{q}")
    a("s_waitcnt lgkmcnt(2)")
    a("v_add_f32 v16, v16, v17")
    a("v_add_f32 v18, v18, v19")
    a("s_waitcnt lgkmcnt(0)")
    a("v_add_f32 v20, v20, v21")
    a("v_add_f32 v22, v22, v23")
    a("v_add_f32 v28, v16, v18")
    a(f"s_mov_b64 exec, s[{S.EX}:{S.EX+1}]")
    a("v_add_f32 v30, v20, v22")
    a(f"s_cmp_ge_u32 s{S.WAVE}, 4")
    a("s_cbranch_scc1 L_f5")
    a(f"buffer_store_dwordx4 v[28:31], v5, {R4(S.RWS)}, s{S.L1} offen{'' if o.xl2 else ' sc1'}")
    a("s_mov_b64 exec, -1")
    stamp(7)
    a("s_waitcnt vmcnt(1)")
    for k in range(8):
        a(f"ds_read_b64_tr_b16 {V(WD_+2*k,2)}, v9 offset:{L_WD + k*512}")
    if o.xsleep0:
        a(f"s_sleep {o.xsleep0}")
    stamp(8)
    a.label("L_fx")
    for i in range(2):
        a(f"buffer_load_dwordx4 {V(64+4*i,4)}, v15, {R4(S.RWS)}, s{S.PO} offen offset:{2048*i} sc1")
    if o.xl2:
        a(f"s_add_u32 s{S.KM}, s{S.KM}, 1")
        a(f"s_cmp_ge_u32 s{S.KM}, {o.xl2}")
        a(f"s_cselect_b32 s{S.T0}, {XCHC}, 0")
        a(f"s_add_u32 s{S.PO}, s{S.PO}, s{S.T0}")
    else:
        a(f"s_add_u32 s{S.PO}, s{S.PO}, {XCHC}")
    a(f"s_min_u32 s{S.PO}, s{S.PO}, s{S.POL}")
    if o.stamps:
        a(f"s_add_u32 s{S.RC}, s{S.RC}, 1")
    spin()
    a("s_cbranch_scc1 L_fx_ok")
    a("s_waitcnt vmcnt(1)")
    a(f"v_bitop3_b32 v20, v65, v67, v{VTAG} bitop3:0x7e")
    a("s_waitcnt vmcnt(0)")
    a("v_add_f32 v16, v64, v68")
    a("v_add_f32 v18, v66, v70")
    a(f"v_bitop3_b32 v21, v69, v71, v{VTAG} bitop3:0x7e")
    a("v_or_b32 v20, v20, v21")
    a("v_cmp_ne_u32 vcc, 0, v20")
    a("v_permlane32_swap_b32 v16, v18")
    a("s_cbranch_vccnz L_fxr")
    a.label("L_fx_ok")
    stamp(9)
    a("v_add_f32 v16, v16, v18")
    rnd(16, 16)
    a("v_mov_b32 v18, v16")
    sigmoid(17, 16)
    a("v_permlane32_swap_b32 v16, v18")
    a("v_mul_f32 v17, v17, v16")
    rnd(17, 17)
    a("v_mul_f32 v17, v17, v18")
    a.nop(2)
    a(f"v_mov_b32_dpp v18, v17 quad_perm:[1,0,3,2] {DPPM}")
    a("v_cvt_pk_bf16_f32 v17, v17, v18")
    a.nop(1)
    for i in range(16):
        a(f"v_readlane_b32 s{S.XS+i}, v17, {2*i}")
    a("s_waitcnt lgkmcnt(0)")
    for i in range(16):
        a(f"v_dot2c_f32_bf16 v{24+(i&1)}, s{S.XS+i}, v{WD_+i}")
    a.nop(3)
    a("v_add_f32 v30, v24, v25")
    for c in range(o.pc):
        if c:
            a(f"s_add_u32 s{S.T2}, s{S.T2}, {PARTC}")
        a(f"buffer_store_dwordx2 v[30:31], v13, {R4(S.RWS)}, s{S.T2} offen sc1")
    stamp(10)
    a.label("L_fend")
    a(f"s_cmp_lg_u32 s{S.FIN}, 0")
    a("s_cbranch_scc1 L_fexit")
    a("s_barrier")
    a("ds_read_b32 v26, v14 offset:8")
    a(f"s_mov_b32 s{S.FIN}, 1")
    a("s_waitcnt lgkmcnt(0)")
    a(f"v_readfirstlane_b32 s{S.T0}, v26")
    a(f"s_cmp_eq_u32 s{S.T0}, s{S.FKEY}")
    a(f"s_mov_b32 s{S.FKEY}, s{S.T0}")
    if o.stamps:
        a(f"s_cselect_b32 s{S.T1}, 0, 64")
        a(f"s_add_u32 s{S.RC}, s{S.RC}, s{S.T1}")
        a(f"s_cmp_eq_u32 s{S.T1}, 0")
    a("s_cbranch_scc0 L_redo")
    a.label("L_fexit")
    endprog()
    a.label("L_f5")
    for c in range(1, o.xc):
        a(f"s_add_u32 s{S.L1}, s{S.L1}, {XCHC}")
        a(f"buffer_store_dwordx4 v[28:31], v5, {R4(S.RWS)}, s{S.L1} offen sc1")
    a("s_mov_b64 exec, -1")
    a("s_branch L_fend")
    a.label("L_fxr")
    a("ds_read_b32 v26, v14 offset:8")
    a("s_waitcnt lgkmcnt(0)")
    a(f"v_readfirstlane_b32 s{S.T0}, v26")
    a(f"s_cmp_eq_u32 s{S.T0}, 0")
    a("s_cbranch_scc1 L_fx")
    a(f"s_cmp_eq_u32 s{S.T0}, s{S.FKEY}")
    a("s_cbranch_scc1 L_fx")
    a("s_branch L_fend")

    a.label("L_fh")
    a("s_waitcnt lgkmcnt(0)")
    if o.fesleep:
        a(f"s_sleep {o.fesleep}")
    tag_load()
    ws_setup()
    a(f"v_mov_b32 v14, {L_FKEY}")
    a("v_mov_b32 v6, 0")
    a("ds_write_b32 v14, v6 offset:8")
    if o.spec:
        poll_setup(WS_KEY + 1024 * (RF * CF + RZ * CZ + R2 * C2), 8, 1)
        a(f"s_sleep {o.spec}")
        a("s_waitcnt vmcnt(0)")
        tag_make()
        stamp(1)
        a(f"buffer_load_dwordx4 v[20:23], v5, {R4(S.RWS)}, s{S.PO} offen sc1")
        poll_setup(WS_KEY, RF, CF)
        a("s_waitcnt vmcnt(0)")
        stamp(2)
        a(f"v_cmp_ne_u32 vcc, v{VTAG}, v21")
        a(f"v_cmp_ne_u32 s[{S.EX}:{S.EX+1}], v{VTAG}, v23")
        a("s_mov_b64 exec, vcc")
        a("v_mov_b32 v20, 0")
        a(f"s_mov_b64 exec, s[{S.EX}:{S.EX+1}]")
        a("v_mov_b32 v22, 0")
        a("s_mov_b64 exec, -1")
        a(f"s_or_b64 s[{S.EY}:{S.EY+1}], vcc, s[{S.EX}:{S.EX+1}]")
        wave_max_key(20)
        lds_put(L_FKEY, 20, tag=True)
        a("s_barrier")
        a(f"s_cmp_eq_u64 s[{S.EY}:{S.EY+1}], 0")
        a("s_cbranch_scc1 L_fh2")
        if o.fsleep0:
            a(f"s_sleep {o.fsleep0}")
        stamp(3)
        poll_granules(5, 20, sleep=o.fsleep)
        stamp(4)
        wave_max_key(20)
        a.label("L_fh2")
        lds_put(L_FKEY + 8, 20)
    else:
        poll_setup(WS_KEY, RF, CF)
        if o.fsleep0:
            a(f"s_sleep {o.fsleep0}")
        a("s_waitcnt vmcnt(0)")
        tag_make()
        stamp(3)
        poll_granules(5, 20, sleep=o.fsleep)
        stamp(4)
        wave_max_key(20)
        lds_put(L_FKEY, 20, tag=True)
        a("s_barrier")
        lds_put(L_FKEY + 8, 20)
    a("s_barrier")
    endprog()
    a.label("L_end")
    a("s_endpgm")
    return name


def main():
    ap = argparse.ArgumentParser()
    ap.add_argument("-o", required=True)
    for k, d in dict(stamps=0, pc=1, xc=2, zsleep=8, zsleep0=24, psleep=0, psleep0=22, rsleep=3, ackwait=1, hipre=0, tlate=1,
                     mode=0, k2ack=1, k2sleep0=6, zk2sleep0=0, k2sleep=5, fbar=0, cpf=2, fent=1, probe=-1, wsoff=0, flate=0, b1a=1, skew=0, gate=1, lds=0, nsgpr=102, prio=1, stag=2, spec=0, b0=2, wthr=0, xpre=0, atouch=10, ftouch=8, xl2=5, npre=3, gfirst=0, isleep0=0, zisleep0=5, b3=1, ztouch=8, zstep=128, touch=0, wdpos=0, wpf=2, fesleep=0, fw0=0, xack=0, fdelay=0, xsleep0=3, fsleep0=37, fsleep=4, spin=17).items():
        ap.add_argument("--" + k, type=int, default=d)
    for k in ("wpol", "wdpol", "xpol", "outpol", "zpol", "only"):
        ap.add_argument("--" + k, default="")
    ap.add_argument("--mf", default="8,2")
    ap.add_argument("--mz", default="1,3")
    ap.add_argument("--m2", default="8,2")
    ap.add_argument("--hold", default="")
    ap.add_argument("--ev", default="")
    o = ap.parse_args()
    if o.hold:
        o.hold = o.hold.split(":")
    for k in ("mf", "mz", "m2"):
        setattr(o, k, [int(v) for v in getattr(o, k).split(",")])
    for k in ("wpol", "wdpol", "xpol", "outpol", "zpol"):
        setattr(o, k, (" " + getattr(o, k)) if getattr(o, k) else "")
    a = Asm()
    name = gen(a, o)
    if o.touch:
        insert_stubs(a, [("L_ta_start", "L_ta_end", "L_ta", "L_taback", 9)], step=o.touch)
    reg = []
    if o.atouch:
        reg.append(("L_zjoin", "L_tb_end", "L_tb", "L_tbback", o.atouch))
    if o.ztouch:
        reg.append(("L_tz_start", "L_zend", "L_tz", "L_tzback", o.ztouch))
    if o.ftouch:
        reg.append(("L_tf_start", "L_fend", "L_tf", "L_tfback", o.ftouch))
    if reg:
        insert_stubs(a, reg, step=o.zstep)
    finish(a, name, NVGPR, o.nsgpr, NWG, 576, o.lds or LDS_BYTES, o.o)


main()
```

```python
import argparse
from lib import *

NA, NF, NZ = 128, 112, 16
NWG = NA + NF + NZ
WS_E = 0
WS_ALIVE = 4096
WS_KEY = 64 << 10
WS_KEY2 = 128 << 10
WS_XCH = 192 << 10
XCHC = 28 * 4096
WS_PART = 704 << 10
PZ = 56 * 256
PARTC = NZ * PZ
WS_INT = 2 << 20
CS = 32768 + 256
WS_STAMP = 8 << 20
WS_BYTES = 16 << 20
L_TILE = 0
L_U2 = 16384
L_CT = L_U2
UB = 17 * 64
L_MISC = L_U2 + 16 * UB
L_KSL = L_MISC
L_GKEY = L_MISC + 64
L_ZC = L_MISC + 76
L_ZF = L_MISC + 72
L_EXP = L_MISC + 128
L_DUMP = L_MISC + 192
L_XG2 = L_DUMP + 4 * UB + 256
L_M2 = L_XG2 + 4096
L_WV = L_M2 + 4096
L_XT = L_WV + 2048
L_W = 0
L_WD = 32768
L_RED = L_WD + 16384
L_FKEY = L_RED + 2048
LDS_BYTES = 84 * 1024
MF = "v_mfma_f32_16x16x32_bf16"
LOG2E = 0x3fb8aa3b
DPPM = "row_mask:0xf bank_mask:0xf"
HIM = "0xffff0000"
NVGPR = 168


class S:
    WAVE = 3
    PX = 4
    T0, T1, T2, T3, T4, T5 = 6, 7, 8, 9, 10, 11
    EX = 12
    EY = 14
    PWR, PWG, PWU, PWD, PGW, POUT, PDBG, PWS = 16, 18, 20, 22, 24, 26, 28, 30
    L0, L1, SPT, PIE = 32, 33, 34, 35
    RWS, ROUT = 36, 40
    XS = 44
    GKEY, WSEL, WHICH, Z = 44, 45, 46, 47
    SI0, SI1, ID8, BLK = 48, 49, 50, 51
    IDX, ISZ, TC = 54, 55, 53
    SO = 44
    T1C, HH, TD, TM = 56, 57, 58, 59
    FJ, PO, POL, RC, KM, SPIN = 60, 61, 62, 63, 64, 65
    PO0, L10, T20, FKEY, FIN = 40, 41, 42, 43, 35
    ST = 68


def gen(a, o):
    global WS_KEY, WS_XCH, WS_PART, WS_INT, WS_ALIVE, WS_BYTES
    WS_KEY += o.wsoff << 20
    WS_XCH += o.wsoff << 20
    WS_PART += o.wsoff << 20
    WS_INT += o.wsoff << 20
    WS_ALIVE += o.wsoff << 20
    WS_BYTES = max(WS_BYTES, (o.wsoff + 8) << 20)
    name = NAME + "_kernel"
    kernel_head(a, name)
    VE, VTAG = 30, 31
    PXS = f"s[{S.PX}:{S.PX+1}]"

    def stamp(i):
        if o.stamps:
            a(f"s_memrealtime s[{S.ST+2*i}:{S.ST+2*i+1}]")

    def hold(cp):
        if o.hold and o.hold[0] == cp:
            l = a.L("hold")
            a.label(l)
            a("s_sleep 1")
            a("s_memrealtime s[100:101]")
            a("s_waitcnt lgkmcnt(0)")
            a("s_sub_u32 s100, s100, s66")
            a(f"s_cmp_lt_u32 s100, {o.hold[1]}")
            a(f"s_cbranch_scc1 {l}")

    def touch(pre, n, first, step, back=None, tail=None):
        a("s_mov_b64 exec, 0")
        a(f"s_sub_u32 s{S.TC}, s{S.WAVE}, {first + step}")
        a.label(f"{pre}back")
        a(f"s_add_u32 s{S.TC}, s{S.TC}, {step}")
        for k in range(n):
            a(f"s_cmp_eq_u32 s{S.TC}, {k}")
            a(f"s_cbranch_scc1 {pre}{k}")
        a("s_mov_b64 exec, -1")

    def endprog():
        if o.stamps:
            a("s_waitcnt lgkmcnt(0)")
            a(f"s_add_u32 s{S.ST+28}, s{S.RC}, s{S.ST+30}")
            for i in range(16):
                a(f"v_writelane_b32 v166, s{S.ST+2*i}, {i}")
            a("s_mov_b64 exec, 0xffff")
            a(f"s_lshl4_add_u32 s{S.T0}, s2, s{S.WAVE}")
            a(f"s_lshl_b32 s{S.T0}, s{S.T0}, 7")
            a(f"s_add_u32 s{S.T0}, s{S.T0}, {WS_STAMP}")
            a(f"v_lshl_add_u32 v165, v0, 3, s{S.T0}")
            a("v_mov_b32 v167, 0")
            a(f"global_store_dwordx2 v165, v[166:167], s[{S.PWS}:{S.PWS+1}]" + (" sc1" if o.ev else ""))
        a("s_endpgm")

    def spin():
        a(f"s_add_u32 s{S.SPIN}, s{S.SPIN}, 1")
        a(f"s_lshr_b32 s{S.SPT}, s{S.SPIN}, {o.spin}")

    def poll_setup(base, R, C):
        a(f"s_and_b32 s{S.PO}, s2, {R-1}")
        a(f"s_mul_i32 s{S.PO}, s{S.PO}, {1024*C}")
        a(f"s_add_u32 s{S.PO}, s{S.PO}, {base}")
        a(f"s_add_u32 s{S.POL}, s{S.PO}, {1024*(C-1)}")

    def set_exec(n):
        if n >= 64:
            a("s_mov_b64 exec, -1")
        elif n <= 31:
            a(f"s_mov_b64 exec, {(1 << n) - 1:#x}")
        else:
            a("s_mov_b32 exec_lo, -1")
            a(f"s_mov_b32 exec_hi, {(1 << (n - 32)) - 1:#x}")

    RS = 8 if o.spec else 0
    RF, CF = o.mf
    RZ, CZ = o.mz
    R2, C2 = o.m2
    assert RF * CF + RZ * CZ + R2 * C2 + RS <= 64

    def poll_granules(vaddr, vd, sleep=0, step=1024, bar=False):
        l = a.L("poll")
        if sleep:
            a(f"s_branch {l}_1")
        a.label(l)
        if sleep:
            a(f"s_sleep {sleep}")
            a.label(f"{l}_1")
        a(f"buffer_load_dwordx4 {V(vd,4)}, v{vaddr}, {R4(S.RWS)}, s{S.PO} offen sc1")
        a(f"s_add_u32 s{S.PO}, s{S.PO}, {step}")
        a(f"s_min_u32 s{S.PO}, s{S.PO}, s{S.POL}")
        if bar:
            a(f"s_cmp_lg_u32 s{S.SPIN}, 0")
            a(f"s_cbranch_scc1 {l}_2")
            a("s_barrier")
            a.label(f"{l}_2")
        if o.stamps:
            a(f"s_add_u32 s{S.RC}, s{S.RC}, 1")
        spin()
        a("s_waitcnt vmcnt(0)")
        a(f"s_cbranch_scc1 {l}_ok")
        a(f"v_cmp_ne_u32 vcc, v{VTAG}, v{vd+1}")
        a(f"v_cmp_ne_u32 s[{S.EX}:{S.EX+1}], v{VTAG}, v{vd+3}")
        a(f"s_or_b64 vcc, vcc, s[{S.EX}:{S.EX+1}]")
        a(f"s_cbranch_vccnz {l}")
        a.label(f"{l}_ok")

    def wave_max_key(vd):
        a(f"v_max_u32 v{vd}, v{vd}, v{vd+2}")
        for r in ("row_ror:8", "row_ror:4", "row_ror:2", "row_ror:1"):
            a.nop(2)
            a(f"v_max_u32_dpp v{vd}, v{vd}, v{vd} {r} {DPPM}")
        a.nop(2)
        a(f"v_max_u32_dpp v{vd}, v{vd}, v{vd} row_bcast:15 row_mask:0xa bank_mask:0xf")
        a.nop(2)
        a(f"v_max_u32_dpp v{vd}, v{vd}, v{vd} row_bcast:31 row_mask:0xc bank_mask:0xf")

    def lds_put(addr, v, tag=False):
        a(f"v_mov_b32 v9, {addr}")
        a("s_mov_b32 exec_lo, 0")
        a("s_brev_b32 exec_hi, 1")
        if tag:
            a(f"ds_write2_b32 v9, v{v}, v{VTAG} offset1:1")
        else:
            a(f"ds_write_b32 v9, v{v}")
        a("s_mov_b64 exec, -1")
        a("s_waitcnt lgkmcnt(0)")

    def sigmoid(d, s):
        a(f"v_mul_f32 v{d}, {LOG2E | 0x80000000:#x}, v{s}")
        a(f"v_exp_f32 v{d}, v{d}")
        a.nop(1)
        a(f"v_add_f32 v{d}, 1.0, v{d}")
        a(f"v_rcp_f32 v{d}, v{d}")
        a.nop(1)

    def rnd(d, s):
        a(f"v_cvt_pk_bf16_f32 v{d}, v{s}, v{s}")
        a(f"v_and_b32 v{d}, {HIM}, v{d}")

    def ws_setup():
        a.srd(S.RWS, S.PWS, WS_BYTES)
        a(f"s_mov_b32 s{S.SPIN}, 0")

    def tag_load():
        a(f"v_mov_b32 v{VTAG}, 0")
        a(f"global_load_dword v{VE}, v{VTAG}, s[{S.PWS}:{S.PWS+1}]")
        a(f"s_mov_b32 s{S.KM}, 0x9E3779B1")

    def tag_make():
        a(f"v_mul_lo_u32 v{VTAG}, v{VE}, s{S.KM}")
        a(f"v_add_u32 v{VTAG}, 0x7F4A7C15, v{VTAG}")

    a(f"s_load_dwordx2 s[{S.PX}:{S.PX+1}], s[0:1], {KA_X}")
    a(f"s_load_dwordx16 s[16:31], s[0:1], {KA_WR}")
    if o.stamps:
        for i in range(1, 16):
            a(f"s_mov_b32 s{S.ST+2*i}, 0")
        a(f"s_mov_b32 s{S.RC}, 0")
    stamp(0)
    if o.hold or o.probe >= 0:
        a("s_memrealtime s[66:67]")
    if o.skew:
        a("s_and_b32 s6, s2, 7")
        a("s_cmp_lg_u32 s6, 5")
        a("s_cbranch_scc1 L_noskew")
        a(f"s_sleep {o.skew}")
        a.label("L_noskew")
    a("v_lshrrev_b32 v1, 6, v0")
    a("v_and_b32 v0, 63, v0")
    a(f"v_readfirstlane_b32 s{S.WAVE}, v1")
    a("v_and_b32 v1, 15, v0")
    a("v_lshrrev_b32 v2, 4, v0")
    a(f"s_and_b32 s{S.T0}, s2, 7")
    a(f"s_sub_u32 s{S.WAVE}, s{S.WAVE}, 1")
    a(f"s_min_u32 s{S.WAVE}, s{S.WAVE}, 8")
    a(f"s_lshr_b32 s{S.T1}, s2, 3")
    a(f"s_cmp_ge_u32 s2, {NA}")
    a("s_cbranch_scc1 L_notA")
    if o.only == "F":
        a("s_endpgm")

    VROW, VG16, VSGN, VTR, VST = 3, 5, 8, 10, 11
    VLD, VUW, VUX, VUR0, VUR1 = 10, 11, 28, 29, 30
    XR, WR, GW, CO = 16, 24, 24, 24
    CM, AOP, ACC = 32, 96, 112
    LD, DA0, DA1, TP, X16, PK = 32, 64, 32, 80, 96, 48
    M1, GA, XG = 100, 148, 152
    Cc, Ss = 64, 68
    UO, PQ, M2 = 32, 48, 64

    def rows_setup(wreg):
        a(f"s_lshl3_add_u32 s{S.T5}, s{S.HH}, s{wreg}")
        a(f"s_lshl_b32 s{S.T5}, s{S.T5}, 7")
        a(f"s_add_u32 s{S.TD}, s{S.T5}, s{S.T1C}")
        a(f"s_sub_u32 s{S.TM}, 2048, s{S.TD}")
        a(f"s_cmp_eq_u32 s{S.TD}, 0")
        a(f"s_cselect_b32 s{S.TM}, 1024, s{S.TM}")
        a(f"s_lshl_b32 s{S.T4}, s{S.TD}, 10")
        a(f"s_lshl_b32 s{S.T5}, s{S.TM}, 10")
        a(f"v_add_u32 v6, s{S.T4}, v{VG16}")
        a(f"v_add_u32 v7, s{S.T5}, v{VG16}")

    def vrow_setup():
        a("v_and_b32 v6, 1, v2")
        a("v_lshlrev_b32 v6, 5, v6")
        a("v_lshl_add_u32 v6, v1, 6, v6")
        a("v_lshrrev_b32 v7, 1, v2")
        a(f"v_lshl_add_u32 v{VROW}, v7, 4, v6")

    def rows_load():
        a(f"global_load_dwordx4 {V(XR,4)}, v6, {PXS}{o.xpol}")
        a(f"global_load_dwordx4 {V(XR+4,4)}, v7, {PXS}{o.xpol}")

    def sgn_setup():
        a(f"v_lshlrev_b32 v{VSGN}, 31, v1")
        a(f"v_lshrrev_b32 v9, 16, v{VSGN}")
        a(f"v_or_b32 v{VSGN}, v{VSGN}, v9")

    def sgn_setup2():
        a(f"v_lshlrev_b32 v{VSGN}, 31, v1")
        a(f"v_lshrrev_b32 v14, 16, v{VSGN}")
        a(f"v_or_b32 v{VSGN}, v{VSGN}, v14")

    def tile_ids():
        a(f"s_bitcmp1_b32 s{S.T1}, 3")
        a(f"s_cselect_b32 s{S.T2}, s{S.T3}, s{S.T2}")
        a(f"s_and_b32 s{S.T3}, s{S.T1}, 7")
        a(f"s_lshl3_add_u32 s{S.BLK}, s{S.T2}, s{S.T3}")
        a(f"s_lshl_b32 s{S.PIE}, s{S.T2}, 5")
        a(f"s_add_u32 s{S.PIE}, s{S.PIE}, s{S.T3}")
        a(f"s_lshl_b32 s{S.PIE}, s{S.PIE}, 6")

    def vst_setup():
        a(f"v_mul_u32_u24 v{VST}, {CS}, v1")
        a(f"v_lshl_add_u32 v{VST}, v2, 4, v{VST}")

    def const_d2():
        R = 40
        a("v_lshlrev_b32 v6, 2, v2")
        a("v_cvt_f32_u32 v7, v1")
        a("v_cvt_f32_u32 v6, v6")
        a("v_mul_f32 v7, 0x3d800000, v7")
        for hf in range(2):
            if hf:
                a("v_add_f32 v7, 0x3d800000, v7")
            a("v_mul_f32 v9, v6, v7")
            for jj in range(4):
                a(f"v_cos_f32 v{Cc+jj}, v9")
                a(f"v_sin_f32 v{Ss+jj}, v9")
                if jj < 3:
                    a("v_add_f32 v9, v9, v7")
            a.nop(1)
            for jj in range(4):
                if hf == 0:
                    a(f"v_cvt_pk_bf16_f32 v{R+jj}, v{Cc+jj}, v{Ss+jj}")
                    a(f"v_cvt_pk_bf16_f32 v{R+8+jj}, -v{Ss+jj}, v{Cc+jj}")
                else:
                    a(f"v_cvt_pk_bf16_f32 v{R+4+jj}, v{Cc+jj}, -v{Ss+jj}")
                    a(f"v_cvt_pk_bf16_f32 v{R+12+jj}, -v{Ss+jj}, -v{Cc+jj}")
        for k in range(4):
            a(f"ds_write_b128 v{VG16}, {V(R+4*k,4)} offset:{L_M2 + 1024*k}")

    if o.touch:
        a("s_mov_b64 exec, 0")
        for k in range(9):
            a(f"s_cmp_eq_u32 s{S.WAVE}, {(k + 8) % 9}")
            a(f"s_cbranch_scc1 L_ta{k}")
        a.label("L_taback")
        a("s_mov_b64 exec, -1")
        a.label("L_ta_start")
    a(f"s_add_u32 s{S.T2}, s{S.T0}, 1")
    a(f"s_sub_u32 s{S.T3}, 15, s{S.T0}")
    a(f"s_cmp_eq_u32 s{S.WAVE}, 8")
    a("s_cbranch_scc1 L_ah")
    a(f"s_and_b32 s{S.HH}, s{S.T1}, 1")
    a(f"s_bitcmp1_b32 s{S.T1}, 1")
    a(f"s_cselect_b32 s{S.T4}, s{S.T3}, s{S.T2}")
    a(f"s_lshr_b32 s{S.T5}, s{S.T1}, 2")
    a(f"s_lshl4_add_u32 s{S.T1C}, s{S.T5}, s{S.T4}")
    a(f"v_lshlrev_b32 v{VG16}, 4, v0")
    a(f"v_mov_b32 v{VROW}, 0")
    a(f"s_cmp_lg_u32 s{S.T0}, 7")
    a("s_cbranch_scc1 L_k7")
    a(f"s_lshr_b32 s{S.T5}, s{S.T1}, 1")
    a(f"s_lshl3_add_u32 s{S.T1C}, s{S.T5}, 8")
    a(f"s_mov_b32 s{S.T2}, 0")
    a(f"s_cmp_eq_u32 s2, 127")
    a(f"s_cselect_b32 s{S.T1C}, 0, s{S.T1C}")
    a(f"s_cselect_b32 s{S.HH}, 0, s{S.HH}")
    a.label("L_k7")
    rows_setup(S.WAVE)
    a("s_waitcnt lgkmcnt(0)")
    rows_load()
    stamp(1)
    if o.b0 == 2:
        a("s_barrier")
    tile_ids()

    def tile_dma():
        a(f"s_lshl_b32 s{S.T4}, s{S.WAVE}, 11")
        a(f"s_add_u32 s{S.T5}, s{S.T4}, s{S.BLK}")
        a(f"s_lshl_b32 s{S.T5}, s{S.T5}, 7")
        a(f"s_mov_b32 m0, s{S.T4}")
        a("v_and_b32 v9, 7, v0")
        a("v_bfe_u32 v13, v0, 4, 1")
        a("v_xor_b32 v9, v9, v13")
        a("v_lshrrev_b32 v13, 3, v0")
        a(f"v_lshl_add_u32 v9, v9, 4, s{S.T5}")
        a("v_lshl_add_u32 v13, v13, 14, v9")
        a(f"global_load_lds_dwordx4 v13, {PXS}")
        a(f"s_add_u32 m0, s{S.T4}, 1024")
        a("v_add_u32 v13, 0x20000, v13")
        a(f"global_load_lds_dwordx4 v13, {PXS}")
        stamp(2)

    if not o.tlate:
        tile_dma()
    C1, S1, K = AOP, AOP + 4, AOP + 8
    a(f"s_lshr_b32 s{S.T0}, s{S.WAVE}, 2")
    a(f"s_and_b32 s{S.T1}, s{S.WAVE}, 1")
    a(f"s_bfe_u32 s{S.T2}, s{S.WAVE}, 0x10001")
    a(f"v_lshl_add_u32 v6, s{S.T0}, 4, v1")
    a(f"s_lshl3_add_u32 s{S.T3}, s{S.T2}, s{S.T1}")
    a(f"s_lshl_b32 s{S.T3}, s{S.T3}, 2")
    a("v_cvt_f32_u32 v6, v6")
    a(f"v_lshl_add_u32 v7, v2, 3, s{S.T3}")
    a("v_mul_f32 v6, 0x3c000000, v6")
    a("v_cvt_f32_u32 v7, v7")
    a("v_mul_f32 v7, v7, v6")
    for j in range(4):
        a(f"v_cos_f32 v{C1+j}, v7")
        a(f"v_sin_f32 v{S1+j}, v7")
        if j < 3:
            a("v_add_f32 v7, v7, v6")
    if o.tlate == 2:
        a(f"global_load_dwordx4 {V(WR,4)}, v{VG16}, s[{S.PWR}:{S.PWR+1}]")
        tile_dma()
    a(f"s_lshl_b32 s{S.T4}, s{S.T0}, 13")
    a(f"s_lshl_b32 s{S.T5}, s{S.T2}, 10")
    a(f"s_lshl3_add_u32 s{S.T5}, s{S.T1}, s{S.T5}")
    a(f"v_add_u32 v15, s{S.T4}, v{VG16}")
    a(f"v_add_u32 v9, s{S.T5}, v15")
    a(f"v_cvt_pk_bf16_f32 v{K+0}, v{C1}, v{C1+1}")
    a(f"v_cvt_pk_bf16_f32 v{K+1}, v{C1+2}, v{C1+3}")
    a(f"v_cvt_pk_bf16_f32 v{K+2}, -v{S1}, -v{S1+1}")
    a(f"v_cvt_pk_bf16_f32 v{K+3}, -v{S1+2}, -v{S1+3}")
    a("v_cmp_eq_f32 vcc, 0, v6")
    a(f"v_cvt_pk_bf16_f32 v{K+4}, v{C1}, -v{S1+1}")
    a(f"v_cvt_pk_bf16_f32 v{K+5}, -v{C1+2}, v{S1+3}")
    a(f"v_cvt_pk_bf16_f32 v{K+6}, -v{S1}, -v{C1+1}")
    a(f"v_cvt_pk_bf16_f32 v{K+7}, v{S1+2}, v{C1+3}")
    a(f"ds_write_b64 v9, {V(K,2)} offset:{L_CT}")
    a(f"ds_write_b64 v9, {V(K+4,2)} offset:{L_CT+4096}")
    a(f"ds_write_b64 v9, {V(K+6,2)} offset:{L_CT+6144}")
    a("s_mov_b64 exec, vcc")
    a(f"v_mov_b32 v{K+2}, 0xbf803f80")
    a(f"v_mov_b32 v{K+3}, 0xbf803f80")
    a("s_mov_b64 exec, -1")
    a(f"ds_write_b64 v9, {V(K+2,2)} offset:{L_CT+2048}")
    if o.tlate != 2:
        a(f"global_load_dwordx4 {V(WR,4)}, v{VG16}, s[{S.PWR}:{S.PWR+1}]")
    if o.tlate == 1:
        tile_dma()
    a("v_mov_b32 v12, 0")
    a("v_mov_b32 v13, 0")
    stamp(3)
    if o.b0 == 1:
        a("s_waitcnt lgkmcnt(0)")
        a("s_barrier")
        for k in range(2):
            for t in range(4):
                a(f"ds_read_b128 {V(CM+16*t+4*k,4)}, v15 offset:{L_CT + t*2048 + k*1024}")

    def dots(w, fill=()):
        fill = list(fill)

        def pad(n):
            while n and fill:
                a(fill.pop(0))
                n -= 1
            a.nop(n)

        for i in range(4):
            a(f"v_dot2c_f32_bf16 v12, v{XR+i}, v{w+i}")
            a(f"v_dot2c_f32_bf16 v13, v{XR+4+i}, v{w+i}")
        pad(3)
        a("v_permlane32_swap_b32 v12, v13")
        a("v_add_f32 v12, v12, v13")
        a("v_mov_b32 v13, v12")
        pad(2)
        a("v_permlane16_swap_b32 v12, v13")
        a("v_add_f32 v12, v12, v13")
        for r in (8, 4, 2, 1):
            pad(2)
            a(f"v_add_f32_dpp v12, v12, v12 row_ror:{r} {DPPM}")
        rnd(12, 12)
        for x in fill:
            a(x)

    a(f"s_waitcnt vmcnt({2 if o.tlate else 0})")
    stamp(4)
    dots(WR, [f"s_sub_u32 s{S.T4}, 0xffff, s{S.TD}", f"s_sub_u32 s{S.T5}, 0xffff, s{S.TM}", f"v_mov_b32 v4, s{S.T4}",
              f"v_writelane_b32 v4, s{S.T5}, 32", f"v_mov_b32 v9, {L_KSL}",
              f"v_lshlrev_b32 v{VSGN}, 31, v1", f"v_lshrrev_b32 v7, 16, v{VSGN}", f"v_or_b32 v{VSGN}, v{VSGN}, v7",
              "v_bfe_u32 v6, v0, 2, 2", "v_and_b32 v14, 3, v0", f"v_lshl_add_u32 v14, v14, 1, s{S.T2}",
              f"v_lshl_add_u32 v{VTR}, v2, 3, v6", "v_lshrrev_b32 v6, 1, v6", "v_xor_b32 v14, v14, v6"])
    a("v_ashrrev_i32 v7, 31, v12")
    a("v_or_b32 v7, 0x80000000, v7")
    a("v_xor_b32 v7, v7, v12")
    a(f"v_and_b32 v7, {HIM}, v7")
    a("v_or_b32 v7, v7, v4")
    a("s_mov_b32 exec_lo, 1")
    a("s_mov_b32 exec_hi, 1")
    a("ds_max_u32 v9, v7")
    a("s_mov_b64 exec, -1")
    if o.b1a:
        a("s_waitcnt lgkmcnt(0)")
        hold("K")
        a("s_barrier")
    if o.b0 == 2:
        for k in range(2):
            for t in range(4):
                a(f"ds_read_b128 {V(CM+16*t+4*k,4)}, v15 offset:{L_CT + t*2048 + k*1024}")
    a(f"s_lshl_b32 s{S.T1}, s{S.T1}, 3")
    a(f"v_lshl_add_u32 v14, v14, 4, s{S.T1}")
    a(f"v_lshl_add_u32 v{VTR}, v{VTR}, 7, v14")
    a("v_lshlrev_b32 v9, 4, v2")
    a("s_waitcnt vmcnt(0)" + ("" if o.b0 == 2 else " lgkmcnt(0)"))
    hold("B1")
    a("s_barrier")
    stamp(5)
    if o.b0 == 2:
        a("s_waitcnt lgkmcnt(5)")
    a(f"ds_read_b128 v[28:31], v9 offset:{L_EXP}")
    for k in range(4):
        for h in range(2):
            a(f"ds_read_b64_tr_b16 {V(AOP+4*k+2*h,2)}, v{VTR} offset:{L_TILE + k*4096 + h*512}")
        if k < 2 and not o.b0:
            for t in range(4):
                a(f"ds_read_b128 {V(CM+16*t+4*k,4)}, v15 offset:{L_CT + t*2048 + k*1024}")
        if k == 1 and not o.b0:
            a("s_waitcnt lgkmcnt(9)")
    a(f"global_load_dwordx4 {V(GW,4)}, v{VG16}, s[{S.PGW}:{S.PGW+1}]")
    xors = [f"v_xor_b32 v{CM+t*16+8+4*kp+r}, v{CM+t*16+4*kp+r}, v{VSGN}" for kp in range(2) for t in range(4) for r in range(4)]
    misc = [f"s_mul_i32 s{S.SO}, s{S.T0}, {16*CS}",
            f"s_add_u32 s{S.SO}, s{S.SO}, s{S.PIE}",
            f"s_and_b32 s{S.T4}, s{S.WAVE}, 3",
            f"s_lshl_b32 s{S.T4}, s{S.T4}, 9",
            f"s_add_u32 s{S.SO}, s{S.SO}, s{S.T4}",
            f"s_add_u32 s{S.SO}, s{S.SO}, {WS_INT}",
            f"s_mov_b32 s{S.RWS}, s{S.PWS}", f"s_mov_b32 s{S.RWS+1}, s{S.PWS+1}", f"s_mov_b32 s{S.RWS+2}, {WS_BYTES:#x}",
            f"s_mov_b32 s{S.RWS+3}, 0x20000",
            f"s_add_u32 s{S.SO+1}, s{S.SO}, {32*CS}", f"s_mov_b32 s{S.T5}, 0xfffefffe", f"s_mov_b32 s{S.T4}, 0x07060302",
            f"v_mul_u32_u24 v{VST}, {CS}, v1", f"v_lshl_add_u32 v{VST}, v2, 4, v{VST}",
            ]
    fill = xors + misc
    for k in range(4):
        for t in range(4):
            if o.b0:
                if t == 0:
                    a(f"s_waitcnt lgkmcnt({6-2*k})")
            elif k == 0:
                a(f"s_waitcnt lgkmcnt({13-t})")
            elif k == 1:
                a(f"s_waitcnt lgkmcnt({7-t})")
            elif t == 0:
                a(f"s_waitcnt lgkmcnt({2 if k == 2 else 0})")
            c = "0" if k == 0 else V(ACC + 4 * t, 4)
            a(f"{MF} {V(ACC+4*t,4)}, {V(AOP+4*k,4)}, {V(CM+16*t+4*k,4)}, {c}")
            n = 4 if k < 2 else 2
            if k < 3 or t < 3:
                for _ in range(n):
                    if fill:
                        x = fill.pop(0)
                        if x != "TAGWAIT":
                            a(x)
    for x in fill:
        a(x)
    a("v_mov_b32 v12, 0")
    a("v_mov_b32 v13, 0")
    for h in range(2):
        for i in range(8):
            a(f"v_add_u32 v{ACC+8*h+i}, 0x10000, v{ACC+8*h+i}")
        for i in range(4):
            a(f"v_perm_b32 v{AOP+4*h+i}, v{ACC+8*h+4+i}, v{ACC+8*h+i}, s{S.T4}")
        for i in range(4):
            a(f"v_and_or_b32 v{AOP+4*h+i}, v{AOP+4*h+i}, s{S.T5}, v{28+i}")
        a(f"buffer_store_dwordx4 {V(AOP+4*h,4)}, v{VST}, {R4(S.RWS)}, s{S.SO+h} offen sc1")
    a(f"s_mov_b32 s{S.SPIN}, 0")
    a(f"s_mov_b32 s{S.ISZ}, 0")
    stamp(7)
    if o.only == "P1":
        a("s_endpgm")
    a.label("L_ta_end")

    gwait = [2]

    def gates(full):
        if full:
            a(f"s_waitcnt vmcnt({gwait[0]})")
        dots(GW)
        if full:
            a(f"s_lshl_b32 s{S.T0}, s{S.WAVE}, 11")
            a(f"v_add_u32 v6, s{S.T0}, v{VG16}")
            a(f"ds_write_b128 v6, {V(XR,4)} offset:{L_XT}")
            a(f"ds_write_b128 v6, {V(XR+4,4)} offset:{L_XT+1024}")
            a(f"v_lshl_add_u32 v7, v1, 6, s{S.T0}")
            a("v_lshl_add_u32 v7, v2, 3, v7")
            a("s_waitcnt lgkmcnt(0)")
            for r in range(2):
                a(f"ds_read2_b64 {V(XR+4*r,4)}, v7 offset0:{0} offset1:{4}" if False else f"ds_read_b64 {V(XR+4*r,2)}, v7 offset:{L_XT+1024*r}")
                a(f"ds_read_b64 {V(XR+4*r+2,2)}, v7 offset:{L_XT+1024*r+32}")
            vrow_setup()
        sigmoid(13, 12)
        rnd(13, 13)
        a("v_sub_f32 v14, 1.0, v13")
        rnd(14, 14)
        a(f"v_readlane_b32 s{S.T0}, v13, 0")
        a(f"v_readlane_b32 s{S.T1}, v13, 32")
        a(f"v_readlane_b32 s{S.T2}, v14, 0")
        a(f"v_readlane_b32 s{S.T3}, v14, 32")
        a(f"s_xor_b32 s{S.T4}, s{S.T0}, 0x80000000")
        a(f"s_cmp_eq_u32 s{S.TD}, 0")
        a(f"s_cselect_b32 s{S.T4}, 0, s{S.T4}")
        a(f"s_cselect_b32 s{S.T5}, 0, s{S.T1}")
        if not full:
            return
        a(f"v_mov_b32 v{CO}, s{S.T0}")
        a(f"v_mov_b32 v{CO+1}, s{S.T4}")
        a(f"v_mov_b32 v{CO+2}, s{S.T5}")
        a(f"v_mov_b32 v{CO+3}, s{S.T1}")
        a(f"v_mov_b32 v13, s{S.T2}")
        a(f"v_mov_b32 v14, s{S.T3}")
        a("s_waitcnt lgkmcnt(0)")
        for r in range(2):
            for i in range(4):
                a(f"v_lshlrev_b32 v{XG+8*r+2*i}, 16, v{XR+4*r+i}")
                a(f"v_and_b32 v{XG+8*r+2*i+1}, {HIM}, v{XR+4*r+i}")
            for i in range(8):
                a(f"v_mul_f32 v{XG+8*r+i}, v{13+r}, v{XG+8*r+i}")

    def addr_ur(wreg):
        a(f"s_mul_i32 s{S.T1}, s{wreg}, {2*UB}")
        a("v_bfe_u32 v7, v1, 1, 2")
        a("v_xor_b32 v7, v7, v2")
        a(f"v_lshl_add_u32 v7, v7, 4, s{S.T1}")
        a(f"v_lshl_add_u32 v{VUR0}, v1, 6, v7")
        a("v_sub_u32 v6, 16, v1")
        a("v_bfe_u32 v7, v6, 1, 2")
        a("v_xor_b32 v7, v7, v2")
        a(f"v_lshl_add_u32 v7, v7, 4, s{S.T1}")
        a(f"v_lshl_add_u32 v{VUR1}, v6, 6, v7")

    def addr_p2():
        a("v_lshlrev_b32 v6, 4, v1")
        a(f"v_lshl_add_u32 v{VLD}, v2, 13, v6")
        a(f"v_mul_u32_u24 v6, {4*UB}, v2")
        a("v_bfe_u32 v7, v1, 1, 2")
        a(f"v_xor_b32 v7, s{S.WAVE}, v7")
        a("v_lshl_add_u32 v7, v7, 4, v6")
        a(f"v_lshl_add_u32 v{VUW}, v1, 6, v7")
        a(f"s_lshl4_add_u32 s{S.T1}, s{S.WAVE}, 1024")
        a(f"v_mov_b32 v9, {L_DUMP - L_U2}")
        a(f"v_lshl_add_u32 v{VUX}, v0, 1, v9")
        a(f"v_lshl_add_u32 v7, v1, 1, s{S.T1}")
        a("s_mov_b32 exec_lo, 0x00ff00ff")
        a("s_mov_b32 exec_hi, 0x00ff00ff")
        a(f"v_add_u32 v{VUX}, v7, v6")
        a("s_mov_b64 exec, -1")

    EXP = 96

    def exp_setup():
        a("v_and_b32 v6, 3, v1")
        a("v_lshlrev_b32 v6, 4, v6")
        a(f"ds_read_b128 {V(EXP,4)}, v6 offset:{L_EXP}")
        a("s_waitcnt lgkmcnt(0)")

    def exp_make():
        a("v_lshlrev_b32 v6, 1, v1")
        a(f"v_lshrrev_b32 v6, v6, v{VTAG}")
        a("v_lshlrev_b32 v7, 15, v6")
        a("v_and_b32 v6, 1, v6")
        a("v_and_b32 v7, 0x10000, v7")
        a("v_or_b32 v6, v6, v7")
        a("v_lshlrev_b32 v7, 2, v1")
        a(f"ds_write_b32 v7, v6 offset:{L_EXP}")
        a("s_waitcnt lgkmcnt(0)")

    def const_d1():
        a("v_cvt_f32_u32 v6, v1")
        a(f"s_lshl_b32 s{S.T0}, s{S.WAVE}, 2")
        a(f"v_lshl_add_u32 v7, v2, 6, s{S.T0}")
        a("v_mul_f32 v6, 0x3b000000, v6")
        a("v_cvt_f32_u32 v7, v7")
        a("v_mul_f32 v15, 0x41800000, v6")
        a("v_mul_f32 v7, v7, v6")
        for ib in range(4):
            if ib:
                a("v_add_f32 v7, v7, v6")
            for j in range(4):
                src = "v7" if j == 0 else "v9"
                a(f"v_cos_f32 v{Cc+j}, {src}")
                a(f"v_sin_f32 v{Ss+j}, {src}")
                if j < 3:
                    a(f"v_add_f32 v9, {src}, v15")
            b = M1 + 12 * ib
            a(f"v_mov_b32 v{b+8}, 0")
            for p in range(2):
                a(f"v_cvt_pk_bf16_f32 v{b+p}, v{Cc+2*p}, v{Cc+2*p+1}")
                a(f"v_cvt_pk_bf16_f32 v{b+4+p}, -v{Ss+2*p}, -v{Ss+2*p+1}")
            for p in range(2):
                a(f"v_xor_b32 v{b+2+p}, v{b+p}, v{VSGN}")
                a(f"v_xor_b32 v{b+6+p}, v{b+4+p}, v{VSGN}")
        a("v_lshrrev_b32 v6, 1, v1")
        a(f"v_add_u32 v7, s{S.T0}, v6")
        a("v_and_b32 v9, 1, v1")
        a("v_lshl_add_u32 v7, v9, 3, v7")
        a("v_cvt_f32_u32 v7, v7")
        a("v_mul_f32 v7, 0x3d000000, v7")
        a("v_cos_f32 v7, v7")
        for ib in range(4):
            m = 0x00030003 << (2 * ib)
            a(f"s_mov_b32 exec_lo, {m:#x}")
            a(f"s_mov_b32 exec_hi, {m:#x}")
            a(f"v_cvt_pk_bf16_f32 v{M1+12*ib+8}, v7, -v7")
        a("s_mov_b64 exec, -1")
        for ib in range(4):
            for p in range(1, 4):
                a(f"v_mov_b32 v{M1+12*ib+8+p}, v{M1+12*ib+8}")

    def const_ga():
        a("v_lshrrev_b32 v6, 1, v1")
        a(f"s_lshl_b32 s{S.T0}, s{S.HH}, 10")
        a(f"s_add_u32 s{S.T0}, s{S.T0}, s{S.T1C}")
        a(f"v_lshl_add_u32 v6, v6, 7, s{S.T0}")
        a("v_and_b32 v7, 1, v1")
        a("v_lshlrev_b32 v9, 9, v7")
        l0, ld = a.L("g0"), a.L("gd")
        a(f"s_cmp_lg_u32 s{S.T1C}, 0")
        a(f"s_cbranch_scc1 {l0}")
        a("s_mov_b32 exec_lo, 0x00020002")
        a("s_mov_b32 exec_hi, 0x00020002")
        a("v_mov_b32 v6, 0x400")
        a("v_mov_b32 v9, 0")
        a("s_mov_b64 exec, -1")
        a.label(l0)
        a("v_lshlrev_b32 v7, 2, v2")
        a("v_mad_u32_u24 v9, v7, v6, v9")
        a("v_cvt_f32_u32 v6, v6")
        a("v_cvt_f32_u32 v9, v9")
        a("v_mul_f32 v6, 0x3a000000, v6")
        a("v_mul_f32 v9, 0x3a000000, v9")
        for jj in range(4):
            a(f"v_cos_f32 v{Cc+jj}, v9")
            a(f"v_sin_f32 v{Ss+jj}, v9")
            if jj < 3:
                a("v_add_f32 v9, v9, v6")
        a(f"s_and_b32 s{S.T1}, s{S.T1C}, 63")
        a.nop(1)
        for jj in range(4):
            a(f"v_cvt_pk_bf16_f32 v{GA+jj}, v{Cc+jj}, v{Ss+jj}")
        a(f"s_cmp_lg_u32 s{S.T1}, 0")
        a(f"s_cbranch_scc1 {ld}")
        a(f"s_lshr_b32 s{S.T1}, s{S.T1C}, 2")
        for jj in range(4):
            a(f"v_and_b32 v{GA+jj}, 0xffff, v{GA+jj}")
            a(f"v_lshlrev_b32 v{GA+jj}, s{S.T1}, v{GA+jj}")
        a.label(ld)

    def int_base():
        a(f"s_and_b32 s{S.T1}, s{S.T1C}, 63")
        a(f"s_mul_i32 s{S.L0}, s{S.T1}, {CS}")
        a(f"s_lshl_b32 s{S.T1}, s{S.WAVE}, 9")
        a(f"s_add_u32 s{S.L0}, s{S.L0}, s{S.T1}")
        a(f"s_add_u32 s{S.L0}, s{S.L0}, {WS_INT}")
        a(f"s_add_u32 s{S.L1}, s{S.L0}, 4096")

    def m2_addr():
        a(f"s_cmp_eq_u32 s{S.TD}, 0")
        a(f"s_cselect_b32 s{S.T0}, 0, 2048")
        a(f"v_add_u32 v4, s{S.T0}, v{VG16}")

    def int_loads(ah):
        for jj in range(4):
            so = S.L0 if jj < 2 else S.L1
            a(f"buffer_load_dwordx4 {V(LD+16*ah+4*jj,4)}, v{VLD}, {R4(S.RWS)}, s{so} offen offset:{(jj & 1)*2048 + ah*256} sc1")

    a.srd(S.ROUT, S.POUT, 0x200000)
    a(f"s_cmp_ge_u32 s{S.WAVE}, 4")
    a("s_cbranch_scc1 L_hi0")
    if o.prio & 1:
        a("s_setprio 2")
    pre = [lambda: (addr_p2(), int_base(), const_ga(), exp_setup()), const_d1, lambda: gates(True), lambda: (addr_ur(S.WAVE), m2_addr())]
    if o.gfirst:
        pre[1], pre[2] = pre[2], pre[1]
    for f in pre[:o.npre]:
        f()
    stamp(8)
    a(f"s_waitcnt vmcnt({0 if o.ackwait else 2})")
    if o.b3:
        a("s_barrier")
    if o.isleep0:
        a(f"s_sleep {o.isleep0}")
    hold("B4")
    stamp(9)
    if o.stag:
        a(f"s_cmp_lg_u32 s{S.HH}, 0")
        a("s_cbranch_scc1 L_stg1")
        int_loads(0)
        a(f"s_waitcnt vmcnt({4 - o.stag})")
        int_loads(1)
        a("s_branch L_stg2")
        a.label("L_stg1")
        int_loads(1)
        a(f"s_waitcnt vmcnt({4 - o.stag})")
        int_loads(0)
        a("s_waitcnt vmcnt(0)")
        a.label("L_stg2")
    else:
        int_loads(0)
        int_loads(1)
    gwait[0] = 10
    for f in pre[o.npre:]:
        f()
    gwait[0] = 2
    a.label("L_zjoin")
    stamp(10)
    for ah in range(2):
        a(f"s_waitcnt vmcnt({4-4*ah})")
        a.label(f"L_got{ah}")
        b = LD + 16 * ah
        da = DA1 if ah else DA0
        for ib in range(4):
            for jj in range(4):
                a(f"v_xor_b32 v{TP+4*ib+jj}, v{b+4*jj+ib}, v{EXP+ib}")
            if ib == 0:
                a(f"v_or3_b32 v6, v{TP}, v{TP+1}, v{TP+2}")
                a(f"v_or_b32 v6, v6, v{TP+3}")
            else:
                a(f"v_or3_b32 v6, v6, v{TP+4*ib}, v{TP+4*ib+1}")
                a(f"v_or3_b32 v6, v6, v{TP+4*ib+2}, v{TP+4*ib+3}")
            if ib == 3:
                a("v_and_b32 v6, 0x10001, v6")
                a("v_cmp_ne_u32 vcc, 0, v6")
            if not (ah == 1):
                a(f"{MF} {V(da+4*ib,4)}, {V(TP+4*ib,4)}, {V(GA,4)}, 0")
            else:
                a(f"{MF} {V(da+4*ib,4)}, {V(TP+4*ib,4)}, {V(GA,4)}, 0")
        a(f"s_cbranch_vccnz L_retry{ah}")
        a.label(f"L_fail{ah}")
    stamp(11)

    def d1(jb):
        a(f"{MF} {V(DA0+4*jb,4)}, {V(TP+4*jb,4)}, {V(M1+12*jb,4)}, 0")
        a(f"{MF} {V(DA1+4*jb,4)}, {V(TP+4*jb,4)}, {V(M1+12*jb+4,4)}, 0")
        a(f"{MF} {V(X16,4)}, {V(TP+4*jb,4)}, {V(M1+12*jb+8,4)}, {'0' if jb == 0 else V(X16,4)}")

    for ib in range(4):
        for p in range(4):
            s0 = (DA1 if p >= 2 else DA0) + 4 * ib + 2 * (p & 1)
            a(f"v_cvt_pk_bf16_f32 v{TP+4*ib+p}, v{s0}, v{s0+1}")
        if ib:
            d1(ib - 1)
    d1(3)
    for ib in range(3):
        for i in range(4):
            a(f"v_cvt_pk_bf16_f32 v{PK+4*i+ib}, v{DA0+4*ib+i}, v{DA1+4*ib+i}")
    for i in range(4):
        a(f"v_cvt_pk_bf16_f32 v{PK+4*i+3}, v{DA0+12+i}, v{DA1+12+i}")
        a(f"ds_write_b128 v{VUW}, {V(PK+4*i,4)} offset:{L_U2 + i*UB}")
    a(f"v_cvt_pk_bf16_f32 v{X16}, v{X16}, v{X16+1}")
    a(f"v_cvt_pk_bf16_f32 v{X16+2}, v{X16+2}, v{X16+3}")
    a(f"ds_write_b16 v{VUX}, v{X16} offset:{L_U2}")
    a(f"ds_write_b16_d16_hi v{VUX}, v{X16} offset:{L_U2+UB}")
    a(f"ds_write_b16 v{VUX}, v{X16+2} offset:{L_U2+2*UB}")
    a(f"ds_write_b16_d16_hi v{VUX}, v{X16+2} offset:{L_U2+3*UB}")
    a.label("L_d2")
    a(f"ds_read_b128 {V(M2,4)}, v{VG16} offset:{L_M2}")
    a(f"ds_read_b128 {V(M2+4,4)}, v{VG16} offset:{L_M2+1024}")
    a(f"ds_read_b128 {V(M2+8,4)}, v4 offset:{L_M2}")
    a(f"ds_read_b128 {V(M2+12,4)}, v4 offset:{L_M2+1024}")
    a(f"v_mov_b32 v9, {L_GKEY}")
    a(f"s_cmp_lg_u32 s{S.ISZ}, 0")
    a("s_waitcnt lgkmcnt(0)")
    a("s_cbranch_scc1 L_zsync")
    a("s_barrier")
    stamp(12)
    a("ds_read_b32 v6, v9")
    a(f"ds_read_b128 {V(UO,4)}, v{VUR0} offset:{L_U2}")
    a(f"ds_read_b128 {V(UO+4,4)}, v{VUR1} offset:{L_U2}")
    a(f"ds_read_b128 {V(UO+8,4)}, v{VUR0} offset:{L_U2+UB}")
    a(f"ds_read_b128 {V(UO+12,4)}, v{VUR1} offset:{L_U2+UB}")
    a(f"s_lshl_b32 s{S.T0}, s{S.TD}, 10")
    a(f"s_lshl_b32 s{S.T1}, s{S.TM}, 10")
    for k in range(4):
        a(f"s_waitcnt lgkmcnt({3-k})")
        a(f"{MF} {V(PQ+4*k,4)}, {V(UO+4*k,4)}, {V(M2+4*k,4)}, 0")
    a(f"v_readfirstlane_b32 s{S.GKEY}, v6")
    a(f"s_andn2_b32 s{S.IDX}, 0xffff, s{S.GKEY}")
    for r in range(2):
        for i in range(8):
            a(f"v_fmac_f32 v{XG+8*r+i}, v{CO+2*r}, v{PQ+i}")
    for r, (so, tr) in enumerate(((S.T0, S.TD), (S.T1, S.TM))):
        for i in range(8):
            a(f"v_fmac_f32 v{XG+8*r+i}, v{CO+2*r+1}, v{PQ+8+i}")
        for i in range(4):
            a(f"v_cvt_pk_bf16_f32 v{UO+4*r+i}, v{XG+8*r+2*i}, v{XG+8*r+2*i+1}")
        l = a.L("skip")
        if r == 0:
            stamp(6)
        a(f"s_cmp_eq_u32 s{tr}, s{S.IDX}")
        a(f"s_cbranch_scc1 {l}")
        a(f"v_permlane16_swap_b32 v{UO+4*r}, v{UO+4*r+2}")
        a(f"v_permlane16_swap_b32 v{UO+4*r+1}, v{UO+4*r+3}")
        a(f"buffer_store_dwordx4 {V(UO+4*r,4)}, v{VROW}, {R4(S.ROUT)}, s{so} offen{o.outpol}")
        a.label(l)
    a.label("L_tb_end")
    stamp(13)
    if o.stamps:
        a("s_waitcnt vmcnt(0)")
        stamp(15)
    endprog()

    for ah in range(2):
        a.label(f"L_retry{ah}")
        if o.stamps:
            a(f"s_add_u32 s{S.RC}, s{S.RC}, {1 << (8*ah)}")
        if o.rsleep:
            a(f"s_sleep {o.rsleep}")
        spin()
        a(f"s_cbranch_scc1 L_fail{ah}")
        int_loads(ah)
        a("s_waitcnt vmcnt(0)")
        a(f"s_branch L_got{ah}")

    a.label("L_hi0")
    if o.b3:
        if o.ackwait:
            a("s_waitcnt vmcnt(0)")
        a("s_barrier")
    a.label("L_hi1")
    if o.atouch:
        touch("L_tb", o.atouch, 4, 4)
        a(f"s_cmp_lg_u32 s{S.ISZ}, 0")
        a("s_cbranch_scc1 L_z0b")
    gates(True)
    addr_ur(S.WAVE)
    m2_addr()
    stamp(10)
    a("s_branch L_d2")

    a.label("L_ah")
    if o.prio & 2:
        a("s_setprio 3")
    if o.cpf:
        a(f"s_cmp_ge_u32 s{S.T1}, {o.cpf}")
        a("s_cbranch_scc1 L_nocpf")
        a(f"s_getpc_b64 s[{S.EX}:{S.EX+1}]")
        a.label("L_pc")
        a(f"s_sub_u32 s{S.EX}, s{S.EX}, L_pc - {name}")
        a(f"s_subb_u32 s{S.EX+1}, s{S.EX+1}, 0")
        a("v_lshlrev_b32 v6, 7, v0")
        a("v_add_u32 v7, 0x2000, v6")
        a(f"v_min_u32 v7, L_end - {name}, v7")
        a(f"v_mov_b32 v13, s{S.EX+1}")
        a(f"v_mov_b32 v15, s{S.EX+1}")
        a(f"v_add_co_u32 v12, vcc, s{S.EX}, v6")
        a.nop(2)
        a("v_addc_co_u32 v13, vcc, 0, v13, vcc")
        a(f"v_add_co_u32 v14, vcc, s{S.EX}, v7")
        a.nop(2)
        a("v_addc_co_u32 v15, vcc, 0, v15, vcc")
        a("global_load_dword v10, v[12:13], off")
        a("global_load_dword v11, v[14:15], off")
        a.label("L_nocpf")
    a(f"v_lshlrev_b32 v{VG16}, 4, v0")
    a(f"v_mov_b32 v{VTAG}, 0")
    a(f"v_mov_b32 v9, {L_KSL}")
    a(f"ds_write_b32 v9, v{VTAG}")
    a(f"s_mov_b32 s{S.KM}, 0x9E3779B1")
    a(f"s_cmp_ge_u32 s{S.T1}, {o.wpf}")
    a("s_waitcnt lgkmcnt(0)")
    a("s_cbranch_scc1 L_nowpf")
    a(f"global_load_dwordx4 v[32:35], v{VG16}, s[{S.PWR}:{S.PWR+1}]")
    a(f"global_load_dword v{VE}, v{VTAG}, s[{S.PWS}:{S.PWS+1}]")
    a(f"global_load_dwordx4 v[36:39], v{VG16}, s[{S.PGW}:{S.PGW+1}]")
    a.label("L_nowpf")
    stamp(1)
    a("v_lshlrev_b32 v14, 10, v0")
    a(f"s_lshl_b32 s{S.ID8}, s2, 3")
    a(f"s_add_u32 s{S.ID8}, s{S.ID8}, {WS_KEY}")
    ws_setup()

    if o.b0 == 2:
        a("s_barrier")
    const_d2()
    a(f"global_load_dword v{VE}, v{VTAG}, s[{S.PWS}:{S.PWS+1}]")
    a("s_waitcnt lgkmcnt(0)")
    stamp(2)
    if o.b0 == 1:
        a("s_barrier")
    a(f"v_mov_b32 v9, {L_KSL}")
    a("s_waitcnt vmcnt(0)")
    tag_make()
    exp_make()
    a(f"v_mov_b32 v9, {L_KSL}")
    stamp(3)
    a("s_barrier")
    a(f"ds_read_b32 v{VE}, v9")
    set_exec(RF * CF + RZ * CZ + R2 * C2 + RS)
    a("s_waitcnt lgkmcnt(0)")
    a(f"buffer_store_dwordx2 v[{VE}:{VTAG}], v14, {R4(S.RWS)}, s{S.ID8} offen sc1")
    if o.probe >= 0:
        a("s_mov_b64 exec, 1")
        a("v_mov_b32 v40, s66")
        a(f"v_mov_b32 v41, v{VTAG}")
        a(f"s_add_u32 s{S.T0}, s{S.ID8}, {WS_KEY2 - WS_KEY}")
        a(f"buffer_store_dwordx2 v[40:41], v14, {R4(S.RWS)}, s{S.T0} offen sc1")
    a("s_mov_b64 exec, -1")
    stamp(5)
    if o.b1a:
        a("s_barrier")
    if o.only == "P1":
        a("s_endpgm")
    poll_setup(WS_KEY + 1024 * (RF * CF + RZ * CZ), R2, C2)
    a("s_waitcnt vmcnt(0)")
    if not o.gate and o.b3:
        a("s_barrier")
    if o.k2sleep0:
        a(f"s_sleep {o.k2sleep0}")
    stamp(8)
    poll_granules(VG16, 32, sleep=o.k2sleep)
    stamp(9)
    wave_max_key(32)
    lds_put(L_GKEY, 32)
    if o.gate:
        a(f"s_sleep {o.gate}")
        a("s_barrier")
        if o.probe >= 0:
            a("s_cmp_lg_u32 s2, 9")
            a("s_cbranch_scc1 L_noprobe")
            a("s_barrier")
            a(f"s_mov_b32 s{S.PO}, {WS_KEY2}")
            a(f"s_mov_b32 s{S.POL}, {WS_KEY2}")
            poll_granules(VG16, 32, sleep=4)
            for i in range(8):
                a(f"v_readlane_b32 s{70+i}, v{32 + 2*(i&1)}, {i>>1}")
            a("s_mov_b32 s80, s70")
            for i in range(1, 8):
                a(f"s_sub_u32 s81, s{70+i}, s80")
                a("s_cmp_lt_i32 s81, 0")
                a(f"s_cselect_b32 s80, s{70+i}, s80")
            if o.probe < 8:
                a(f"s_sub_u32 s81, s{70+o.probe}, s80")
            else:
                a("s_mov_b32 s81, 0")
                for i in range(8):
                    a(f"s_sub_u32 s82, s{70+i}, s80")
                    a("s_max_u32 s81, s81, s82")
            a("s_mul_i32 s81, s81, 10")
            a("s_add_u32 s81, s81, 800")
            a.label("L_pw")
            a("s_sleep 1")
            a("s_memrealtime s[100:101]")
            a("s_waitcnt lgkmcnt(0)")
            a("s_sub_u32 s100, s100, s80")
            a("s_cmp_lt_u32 s100, s81")
            a("s_cbranch_scc1 L_pw")
            a.label("L_noprobe")
        if o.hold and o.hold[0] == "endA":
            a(f"s_sub_u32 s{S.T0}, s2, {o.hold[2]}")
            a(f"s_cmp_ge_u32 s{S.T0}, {o.hold[3]}")
            a("s_cbranch_scc1 L_nohold")
            a("s_barrier")
            hold("endA")
            a.label("L_nohold")
        endprog()
    a("s_barrier")
    endprog()

    a.label("L_notA")
    if o.only == "AA":
        a("s_endpgm")
    a(f"s_lshl4_add_u32 s{S.FJ}, s{S.T0}, s{S.T1}")
    a(f"s_sub_u32 s{S.FJ}, s{S.FJ}, 16")
    a(f"s_cmp_ge_u32 s2, {NWG}")
    a("s_cbranch_scc1 L_end")
    a(f"s_cmp_lt_u32 s{S.T0}, 4")
    a("s_cbranch_scc1 L_F")
    a(f"s_mul_i32 s{S.FJ}, s{S.T0}, 12")
    a(f"s_add_u32 s{S.FJ}, s{S.FJ}, s{S.T1}")
    a(f"s_cmp_lt_u32 s{S.T1}, 28")
    a("s_cbranch_scc1 L_F")
    a(f"s_mov_b32 s{S.ISZ}, 1")
    a(f"s_lshl2_add_u32 s{S.Z}, s{S.T0}, s{S.T1}")
    a(f"s_sub_u32 s{S.Z}, s{S.Z}, 44")
    vrow_setup()
    a(f"v_lshlrev_b32 v{VG16}, 4, v0")
    sgn_setup()
    a("s_waitcnt lgkmcnt(0)")
    ws_setup()
    a.srd(S.ROUT, S.POUT, 0x200000)
    addr_p2()
    a(f"s_cmp_eq_u32 s{S.WAVE}, 8")
    a("s_cbranch_scc1 L_zh")
    a(f"s_cmp_ge_u32 s{S.WAVE}, 4")
    a("s_cbranch_scc1 L_z0")
    const_d1()
    a("s_branch L_z1")
    a.label("L_z0")
    if o.atouch:
        a("s_branch L_hi1")
    a.label("L_z0b")
    if o.ztouch:
        touch("L_tz", o.ztouch, 4, 4)
    a.label("L_z1")
    a(f"v_mov_b32 v9, {L_KSL}")
    a("v_mov_b32 v12, 0")
    a("v_mov_b32 v13, 0")
    a("s_barrier")
    a(f"ds_read_b64 v[{VE}:{VTAG}], v9")
    a(f"ds_read_b128 {V(GW,4)}, v{VG16} offset:{L_WV+1024}")
    a("s_waitcnt lgkmcnt(0)")
    a(f"v_readfirstlane_b32 s{S.GKEY}, v{VE}")
    a(f"s_andn2_b32 s{S.IDX}, 2047, s{S.GKEY}")
    a(f"s_and_b32 s{S.T0}, s{S.IDX}, 127")
    a(f"s_cmp_gt_u32 s{S.T0}, 64")
    a(f"s_cselect_b32 s{S.WHICH}, 1, 0")
    a(f"s_and_b32 s{S.T0}, s{S.IDX}, {1024 + 63}")
    a(f"s_cmp_eq_u32 s{S.T0}, 1024")
    a(f"s_cselect_b32 s{S.WHICH}, 1, s{S.WHICH}")
    a(f"s_sub_u32 s{S.T0}, 2048, s{S.IDX}")
    a(f"s_cmp_lg_u32 s{S.WHICH}, 0")
    a(f"s_cselect_b32 s{S.T0}, s{S.T0}, s{S.IDX}")
    a(f"s_cmp_eq_u32 s{S.T0}, 1024")
    a(f"s_cselect_b32 s{S.T0}, 0, s{S.T0}")
    a(f"s_and_b32 s{S.T1C}, s{S.T0}, 127")
    a(f"s_lshr_b32 s{S.HH}, s{S.T0}, 10")
    a(f"s_bfe_u32 s{S.WSEL}, s{S.T0}, 0x30007")
    rows_setup(S.WSEL)
    a(f"s_cmp_ge_u32 s{S.WAVE}, 4")
    a("s_cbranch_scc1 L_z4")
    int_base()
    if o.zisleep0:
        a(f"s_sleep {o.zisleep0}")
    stamp(9)
    int_loads(0)
    int_loads(1)
    const_ga()
    exp_setup()
    addr_ur(S.WSEL)
    m2_addr()
    a("v_lshlrev_b32 v6, 7, v1")
    a(f"v_lshl_add_u32 v15, v2, 4, v6")
    a("s_branch L_zjoin")
    a.label("L_z4")
    a(f"s_cmp_ge_u32 s{S.WAVE}, 6")
    a("s_cbranch_scc1 L_zend2")
    rows_load()
    a(f"s_sub_u32 s{S.T0}, s{S.WAVE}, 4")
    a(f"s_lshl1_add_u32 s{S.T1}, s{S.Z}, s{S.T0}")
    a(f"s_lshl_b32 s{S.T1}, s{S.T1}, 5")
    a("v_and_b32 v6, 7, v0")
    a(f"v_lshl_add_u32 v10, v6, 2, s{S.T1}")
    a(f"s_lshl_b32 s{S.T2}, s{S.IDX}, 10")
    a(f"v_add_u32 v7, s{S.T2}, v10")
    a(f"global_load_dword v35, v7, {PXS}")
    a("v_lshlrev_b32 v10, 1, v10")
    a("v_lshrrev_b32 v7, 3, v0")
    a("v_lshlrev_b32 v7, 8, v7")
    a("v_lshl_add_u32 v11, v6, 4, v7")
    a(f"s_mul_i32 s{S.SI0}, s{S.Z}, {PZ}")
    a(f"s_lshl_b32 s{S.T0}, s{S.T0}, 7")
    a(f"s_add_u32 s{S.SI0}, s{S.SI0}, s{S.T0}")
    a(f"s_add_u32 s{S.SI0}, s{S.SI0}, {WS_PART}")
    a(f"s_add_u32 s{S.SI1}, s{S.SI0}, {(o.pc-1)*PARTC}")
    a(f"s_and_b32 s{S.T0}, s{S.GKEY}, 0xffff0000")
    a(f"s_xor_b32 s{S.T1}, s{S.T0}, 0x80000000")
    a(f"s_xor_b32 s{S.T3}, s{S.T0}, 0xffff0000")
    a(f"s_bitcmp1_b32 s{S.T0}, 31")
    a(f"s_cselect_b32 s{S.T0}, s{S.T1}, s{S.T3}")
    a(f"v_mov_b32 v15, s{S.T0}")
    sigmoid(15, 15)
    rnd(15, 15)
    a("s_waitcnt vmcnt(0)")
    gates(False)
    a(f"s_cmp_lg_u32 s{S.WHICH}, 0")
    a(f"s_cselect_b32 s{S.T2}, s{S.T3}, s{S.T2}")
    a(f"s_cselect_b32 s{S.T0}, s{S.T5}, s{S.T0}")
    a(f"s_cselect_b32 s{S.T4}, s{S.T1}, s{S.T4}")
    a(f"v_xor_b32 v{VTAG}, s{S.IDX}, v{VTAG}")
    a(f"v_mov_b32 v36, s{S.T2}")
    a(f"v_mov_b32 v{CO}, s{S.T0}")
    a(f"v_mov_b32 v{CO+1}, s{S.T4}")
    a("v_lshlrev_b32 v34, 16, v35")
    a(f"v_and_b32 v35, {HIM}, v35")
    if o.psleep0:
        a(f"s_sleep {o.psleep0}")
    hold("pp")
    a(f"v_mov_b32 v9, {L_ZF}")
    a.label("L_tz_start")
    stamp(10)
    if o.psleep:
        a("s_branch L_zp1")
    a.label("L_zp")
    if o.psleep:
        a(f"s_sleep {o.psleep}")
        a.label("L_zp1")
    for i in range(7):
        if i and i % 2 == 0:
            a(f"s_add_u32 s{S.T0}, s{S.SI0}, {2048*i}")
        a(f"buffer_load_dwordx4 {V(40+4*i,4)}, v11, {R4(S.RWS)}, s{S.T0 if i >= 2 else S.SI0} offen offset:{2048*(i&1)} sc1")
    a(f"s_add_u32 s{S.SI0}, s{S.SI0}, {PARTC}")
    a(f"s_min_u32 s{S.SI0}, s{S.SI0}, s{S.SI1}")
    if o.stamps:
        a(f"s_add_u32 s{S.RC}, s{S.RC}, 256")
    spin()
    a("s_cbranch_scc1 L_zp_ok")
    for i in range(7):
        a(f"s_waitcnt vmcnt({6-i})")
        a(f"v_bitop3_b32 v{37 if i == 0 else 38 + (i & 1)}, v{41+4*i}, v{43+4*i}, v{VTAG} bitop3:0x7e")
        if i:
            a(f"v_add_f32 v40, v40, v{40+4*i}")
            a(f"v_add_f32 v42, v42, v{42+4*i}")
        if i and i % 2 == 0:
            a("v_or3_b32 v37, v37, v38, v39")
    a("v_cmp_ne_u32 vcc, 0, v37")
    a.nop(1)
    a("s_cbranch_vccnz L_zp")
    a.label("L_zp_ok")
    a("ds_read_b32 v12, v9")
    a(f"ds_read_b64 v[32:33], v10 offset:{L_XG2}")
    a(f"ds_read_b64 v[16:17], v10 offset:{L_XG2+2048}")
    a("v_lshrrev_b32 v11, 1, v10")
    a(f"s_lshl_b32 s{S.T2}, s{S.IDX}, 10")
    a("s_waitcnt vmcnt(0)")
    stamp(11)
    a(f"v_add_f32_dpp v40, v40, v40 row_ror:8 {DPPM}")
    a(f"v_add_f32_dpp v42, v42, v42 row_ror:8 {DPPM}")
    a.nop(1)
    a.nop(1)
    a("v_permlane16_swap_b32 v40, v42")
    a("v_add_f32 v40, v40, v42")
    a("v_mov_b32 v42, v40")
    a.nop(2)
    a("v_permlane32_swap_b32 v40, v42")
    a("v_add_f32 v40, v40, v42")
    a("v_mov_b32 v42, v40")
    a.nop(2)
    a("v_permlane16_swap_b32 v40, v42")
    a("v_cvt_pk_bf16_f32 v41, v40, v42")
    a("v_lshlrev_b32 v40, 16, v41")
    a(f"v_and_b32 v42, {HIM}, v41")
    a("v_mul_f32 v40, v40, v15")
    a("v_mul_f32 v42, v42, v15")
    a("v_cvt_pk_bf16_f32 v41, v40, v42")
    a("v_lshlrev_b32 v40, 16, v41")
    a(f"v_and_b32 v42, {HIM}, v41")
    a("v_add_f32 v40, v40, v34")
    a("v_add_f32 v42, v42, v35")
    a("v_cvt_pk_bf16_f32 v41, v40, v42")
    a("v_lshlrev_b32 v40, 16, v41")
    a(f"v_and_b32 v42, {HIM}, v41")
    a.label("L_zw")
    a("s_waitcnt lgkmcnt(0)")
    a("v_cmp_eq_u32 vcc, 0, v12")
    a(f"v_mul_f32 v32, v{CO}, v32")
    a(f"v_mul_f32 v33, v{CO}, v33")
    a("s_cbranch_vccz L_zw_ok")
    spin()
    a("s_cbranch_scc1 L_zw_ok")
    a("ds_read_b32 v12, v9")
    a(f"ds_read_b64 v[32:33], v10 offset:{L_XG2}")
    a(f"ds_read_b64 v[16:17], v10 offset:{L_XG2+2048}")
    a("s_branch L_zw")
    a.label("L_zw_ok")
    a(f"v_fmac_f32 v32, v{CO+1}, v16")
    a(f"v_fmac_f32 v33, v{CO+1}, v17")
    a("v_fmac_f32 v32, v40, v36")
    a("v_fmac_f32 v33, v42, v36")
    a("v_cvt_pk_bf16_f32 v32, v32, v33")
    a("s_mov_b64 exec, 0xff")
    a(f"buffer_store_dword v32, v11, {R4(S.ROUT)}, s{S.T2} offen{o.zpol}")
    a("s_mov_b64 exec, -1")
    stamp(13)
    if o.stamps:
        a("s_waitcnt vmcnt(0)")
        stamp(15)
    a("s_barrier")
    endprog()

    a.label("L_zsync")
    a(f"v_mov_b32 v9, {L_ZC}")
    a("v_mov_b32 v6, 1")
    a("s_mov_b64 exec, 1")
    a("ds_add_u32 v9, v6")
    a("s_mov_b64 exec, -1")
    a(f"s_cmp_lg_u32 s{S.WAVE}, 0")
    a("s_cbranch_scc1 L_zend")
    a.label("L_zs")
    a("ds_read_b32 v6, v9")
    spin()
    a("s_waitcnt lgkmcnt(0)")
    a("s_cbranch_scc1 L_zs_ok")
    a("v_cmp_ne_u32 vcc, 4, v6")
    a.nop(1)
    a("s_cbranch_vccnz L_zs")
    a.label("L_zs_ok")
    stamp(12)
    a(f"ds_read_b128 {V(UO,4)}, v{VUR0} offset:{L_U2}")
    a(f"ds_read_b128 {V(UO+4,4)}, v{VUR1} offset:{L_U2}")
    a(f"ds_read_b128 {V(UO+8,4)}, v{VUR0} offset:{L_U2+UB}")
    a(f"ds_read_b128 {V(UO+12,4)}, v{VUR1} offset:{L_U2+UB}")
    for k in range(4):
        a(f"s_waitcnt lgkmcnt({3-k})")
        a(f"{MF} {V(PQ+4*k,4)}, {V(UO+4*k,4)}, {V(M2+4*k,4)}, 0")
    a.nop(3)
    for k in range(4):
        if k == 2:
            a.nop(2)
        a(f"ds_write_b128 v15, {V(PQ+4*k,4)} offset:{L_XG2 + 64*(k&1) + 2048*(k>>1)}")
    a(f"v_mov_b32 v9, {L_ZF}")
    a("s_waitcnt lgkmcnt(0)")
    a("ds_write_b32 v9, v9")
    a("s_waitcnt lgkmcnt(0)")
    stamp(13)
    a.label("L_zend")
    endprog()
    a.label("L_zend2")
    if o.hold and o.hold[0] == "end":
        a("s_barrier")
    hold("end")
    if o.ev:
        lo, n, w, st, med = [int(v) for v in o.ev.split(":")]
        a("s_cmp_lg_u32 s2, 255")
        a("s_cbranch_scc1 L_noev")
        a(f"s_cmp_lg_u32 s{S.WAVE}, 7")
        a("s_cbranch_scc1 L_noev")
        a("s_barrier")
        a.label("L_ev0")
        a("s_sleep 4")
        a("s_memrealtime s[100:101]")
        a("s_waitcnt lgkmcnt(0)")
        a(f"s_sub_u32 s100, s100, s{S.ST}")
        a("s_cmp_lt_u32 s100, 750")
        a("s_cbranch_scc1 L_ev0")
        a("v_lshlrev_b32 v6, 11, v0")
        a(f"v_add_u32 v7, {WS_STAMP + 8*128}, v6")
        a(f"global_load_dword v40, v7, s[{S.PWS}:{S.PWS+1}] sc1")
        a(f"v_add_u32 v7, {WS_STAMP + lo*2048 + w*128 + st*8}, v6")
        for q in range(n // 64):
            a(f"global_load_dword v{44+q}, v7, s[{S.PWS}:{S.PWS+1}] sc1")
            a(f"v_add_u32 v7, {64*2048}, v7")
        a("s_waitcnt vmcnt(0)")
        a(f"v_subrev_u32 v40, s{S.ST}, v40")
        a("v_sub_u32 v40, 1000, v40")
        a("v_mov_b32 v42, v40")
        wave_max_key(40)
        a("v_mov_b32 v41, 0")
        for q in range(n // 64):
            a(f"v_subrev_u32 v{44+q}, s{S.ST}, v{44+q}")
            a(f"v_cmp_gt_u32 vcc, 1000, v{44+q}")
            a.nop(2)
            a(f"v_cndmask_b32 v{44+q}, 0, v{44+q}, vcc")
            a(f"v_max_u32 v41, v41, v{44+q}")
        a("v_mov_b32 v43, v41")
        wave_max_key(41)
        a.nop(2)
        a("v_readlane_b32 s6, v40, 63")
        a("v_readlane_b32 s7, v41, 63")
        a("s_sub_u32 s6, s6, 1000")
        a("s_min_u32 s6, s6, 300")
        a("s_add_u32 s7, s7, s6")
        a("s_mul_i32 s7, s7, 4")
        a("s_add_u32 s7, s7, 900")
        a("s_sub_u32 s7, s7, s6")
        a.label("L_ev1")
        a("s_sleep 1")
        a("s_memrealtime s[100:101]")
        a("s_waitcnt lgkmcnt(0)")
        a(f"s_sub_u32 s100, s100, s{S.ST}")
        a("s_cmp_lt_u32 s100, s7")
        a("s_cbranch_scc1 L_ev1")
        a.label("L_noev")
    endprog()

    a.label("L_zh")
    a(f"v_mov_b32 v9, {L_ZF}")
    a("v_mov_b32 v6, 0")
    a("ds_write2_b32 v9, v6, v6 offset1:1")
    const_d2()
    a(f"s_mov_b32 m0, {L_WV+1024}")
    tag_load()
    a(f"global_load_lds_dwordx4 v{VG16}, s[{S.PGW}:{S.PGW+1}]")
    a("s_waitcnt vmcnt(0)")
    tag_make()
    exp_make()
    poll_setup(WS_KEY + 1024 * RF * CF, RZ, CZ)
    if o.zsleep0:
        a(f"s_sleep {o.zsleep0}")
    stamp(1)
    poll_granules(VG16, 32, sleep=o.zsleep)
    stamp(2)
    wave_max_key(32)
    lds_put(L_KSL, 32, tag=True)
    a("s_barrier")
    a(f"s_lshl_b32 s{S.T0}, s{S.Z}, 2")
    a(f"s_add_u32 s{S.T0}, s{S.T0}, {WS_ALIVE}")
    a("s_mov_b64 exec, 1")
    a(f"buffer_store_dword v{VTAG}, v0, {R4(S.RWS)}, s{S.T0} offen sc1")
    a("s_mov_b64 exec, -1")
    a(f"s_cmp_lg_u32 s{S.Z}, 0")
    a("s_cbranch_scc1 L_zend")
    a("s_mov_b64 exec, 0xffff")
    a("v_lshlrev_b32 v6, 2, v0")
    a(f"s_mov_b32 s{S.T0}, {WS_ALIVE}")
    a("s_waitcnt vmcnt(0)")
    a("s_sleep 24")
    a.label("L_za")
    a(f"buffer_load_dword v7, v6, {R4(S.RWS)}, s{S.T0} offen sc1")
    spin()
    a("s_waitcnt vmcnt(0)")
    a("s_cbranch_scc1 L_za_ok")
    a(f"v_cmp_ne_u32 vcc, v{VTAG}, v7")
    a.nop(1)
    a("s_cbranch_vccnz L_za")
    a.label("L_za_ok")
    a("s_mov_b64 exec, 1")
    a(f"v_add_u32 v9, 1, v{VE}")
    a("s_barrier")
    a(f"buffer_store_dword v9, v6, {R4(S.RWS)}, 0 offen sc1")
    a("s_mov_b64 exec, -1")
    a("s_branch L_zend")

    a.label("L_F")
    if o.only == "A":
        a("s_endpgm")
    WG_, WD_ = 32, 48
    a("v_lshlrev_b32 v5, 4, v0")
    a(f"s_cmp_eq_u32 s{S.WAVE}, 8")
    a("s_cbranch_scc1 L_fh")
    a(f"s_and_b32 s{S.T0}, s{S.FJ}, 3")
    a(f"s_lshr_b32 s{S.T1}, s{S.WAVE}, 1")
    a(f"s_lshl2_add_u32 s{S.L0}, s{S.T0}, s{S.T1}")
    a(f"s_mul_i32 s{S.T2}, s{S.L0}, {32*3584}")
    a(f"s_lshr_b32 s{S.L1}, s{S.FJ}, 2")
    a(f"s_lshl_b32 s{S.T3}, s{S.L1}, 7")
    a(f"s_add_u32 s{S.T2}, s{S.T2}, s{S.T3}")
    a("v_lshrrev_b32 v6, 3, v0")
    a("v_mul_u32_u24 v6, 3584, v6")
    a("v_and_b32 v7, 7, v0")
    a("v_bfe_u32 v8, v0, 4, 1")
    a("v_lshlrev_b32 v8, 2, v8")
    a("v_xor_b32 v4, v7, v8")
    a(f"v_lshl_add_u32 v7, v4, 4, s{S.T2}")
    a("v_add_u32 v3, v6, v7")
    a(f"s_lshl_b32 s{S.T4}, s{S.WAVE}, 12")
    a(f"s_mov_b32 m0, s{S.T4}")
    def w_dma():
        a(f"s_bitcmp1_b32 s{S.WAVE}, 0")
        a("s_waitcnt lgkmcnt(0)")
        a(f"s_cselect_b32 s{S.PWG}, s{S.PWU}, s{S.PWG}")
        a(f"s_cselect_b32 s{S.PWG+1}, s{S.PWU+1}, s{S.PWG+1}")
        if o.fdelay:
            a(f"s_sleep {o.fdelay}")
        for b in range(4):
            if b:
                a(f"s_add_u32 m0, s{S.T4}, {1024*b}")
                a(f"v_add_u32 v3, {8*3584}, v3")
            if o.wthr and b >= o.wthr:
                a(f"s_waitcnt vmcnt({o.wthr - 1})")
            a(f"global_load_lds_dwordx4 v3, s[{S.PWG}:{S.PWG+1}]{o.wpol}")
        ws_setup()
        stamp(1)

    if not o.flate:
        w_dma()
    a("v_bfe_u32 v6, v0, 2, 2")
    a("v_and_b32 v7, 3, v0")
    a("v_lshlrev_b32 v8, 3, v7")
    a("v_lshl_add_u32 v8, v2, 5, v8")
    a("v_and_b32 v9, 2, v6")
    a("v_lshlrev_b32 v9, 5, v9")
    a("v_xor_b32 v9, v9, v8")
    a("v_lshl_add_u32 v9, v6, 7, v9")
    a(f"v_add_u32 v9, s{S.T4}, v9")
    a(f"s_lshl_b32 s{S.T5}, s{S.WAVE}, 8")
    a("v_lshlrev_b32 v11, 2, v0")
    a(f"v_add_u32 v11, {L_RED}, v11")
    a(f"v_add_u32 v12, s{S.T5}, v11")
    a(f"s_lshl1_add_u32 s{S.T1}, s{S.L1}, s{S.T1}")
    a(f"s_lshl_b32 s{S.T2}, s{S.T1}, 15")
    a(f"s_and_b32 s{S.T3}, s{S.WAVE}, 1")
    a(f"s_lshl1_add_u32 s{S.T3}, s{S.T0}, s{S.T3}")
    a(f"s_lshl_b32 s{S.T5}, s{S.T3}, 7")
    a(f"s_add_u32 s{S.T2}, s{S.T2}, s{S.T5}")
    a("v_lshrrev_b32 v6, 3, v0")
    a(f"v_lshl_add_u32 v6, v6, 10, s{S.T2}")
    a("v_lshl_add_u32 v4, v4, 4, v6")
    a("v_lshrrev_b32 v6, 5, v0")
    a(f"v_mul_u32_u24 v13, {PZ}, v6")
    a("v_and_b32 v6, 31, v0")
    a("v_lshl_add_u32 v13, v6, 3, v13")
    a(f"s_mul_i32 s{S.T2}, s{S.T3}, {2*PZ}")
    a(f"s_lshl_b32 s{S.T1}, s{S.T1}, 8")
    a(f"s_add_u32 s{S.T2}, s{S.T2}, s{S.T1}")
    a(f"s_add_u32 s{S.T2}, s{S.T2}, {WS_PART}")
    a(f"s_lshl_b32 s{S.L0}, s{S.L0}, 6")
    a(f"s_lshl_b32 s{S.L1}, s{S.L1}, 12")
    a(f"s_add_u32 s{S.PO}, s{S.L1}, {WS_XCH}")
    a(f"s_add_u32 s{S.POL}, s{S.PO}, {(o.xc-1)*XCHC}")
    a(f"s_lshl_b32 s{S.T1}, s{S.T0}, 10")
    a(f"s_add_u32 s{S.L1}, s{S.PO}, s{S.T1}")
    a(f"v_mov_b32 v14, {L_FKEY}")
    a(f"s_lshr_b32 s{S.T1}, s{S.WAVE}, 1")
    a(f"s_lshl_b32 s{S.T1}, s{S.T1}, 9")
    a(f"v_lshl_add_u32 v15, v6, 4, s{S.T1}")
    a("v_lshrrev_b32 v6, 5, v0")
    a("v_lshl_add_u32 v15, v6, 10, v15")
    a(f"s_mov_b32 s{S.PO0}, s{S.PO}")
    a(f"s_mov_b32 s{S.L10}, s{S.L1}")
    a(f"s_mov_b32 s{S.T20}, s{S.T2}")
    a(f"s_mov_b32 s{S.FIN}, 0")

    if o.flate:
        w_dma()

    def wd_dma():
        l = a.L("nowd")
        a(f"s_cmp_ge_u32 s{S.WAVE}, 4")
        a(f"s_cbranch_scc1 {l}")
        for b in range(4):
            a(f"s_add_u32 m0, s{S.T4}, {L_WD + 1024*b}")
            if b:
                a("v_add_u32 v4, 0x2000, v4")
            else:
                a.nop(1)
            a(f"global_load_lds_dwordx4 v4, s[{S.PWD}:{S.PWD+1}]{o.wdpol}")
        a.label(l)

    if o.wdpos == 0:
        wd_dma()
    if o.wdpos == 4:
        a("s_barrier")
        a(f"s_cmp_ge_u32 s{S.WAVE}, 4")
        a("s_cbranch_scc1 L_nowd4")
        for b in range(4):
            a(f"v_add_u32 v6, {0x2000*b}, v4")
            a(f"global_load_dwordx4 {V(80+4*b,4)}, v6, s[{S.PWD}:{S.PWD+1}]")
        a("s_waitcnt vmcnt(4)")
        a("s_branch L_nowd5")
        a.label("L_nowd4")
        a("s_waitcnt vmcnt(0)")
        a.label("L_nowd5")
    else:
        a("s_waitcnt vmcnt(0)")
    stamp(2)
    if o.fw0:
        a("s_barrier")
    if o.wdpos == 1:
        wd_dma()
    if o.xpre:
        for i in range(2):
            a(f"buffer_load_dwordx4 {V(64+4*i,4)}, v15, {R4(S.RWS)}, s{S.PO} offen offset:{2048*i} sc1")
    for k in range(8):
        a(f"ds_read_b64_tr_b16 {V(WG_+2*k,2)}, v9 offset:{L_W + k*512}")
    if o.ftouch:
        touch("L_tf", o.ftouch, 0, 8)
    a("s_waitcnt lgkmcnt(0)")
    a("s_barrier")
    a.label("L_tf_start")
    a("ds_read_b64 v[26:27], v14")
    a("s_waitcnt lgkmcnt(0)")
    a(f"v_readfirstlane_b32 s{S.FKEY}, v26")
    a.label("L_redo")
    a(f"s_andn2_b32 s{S.T0}, 2047, s{S.FKEY}")
    a(f"s_lshl_b32 s{S.T1}, s{S.T0}, 10")
    a(f"s_add_u32 s{S.T1}, s{S.T1}, s{S.L0}")
    a(f"s_load_dwordx16 s[{S.XS}:{S.XS+15}], {PXS}, s{S.T1}")
    stamp(5)
    a(f"v_xor_b32 v{VTAG}, s{S.T0}, v27")
    a(f"v_xor_b32 v29, s{S.T0}, v27")
    for r in (16, 17, 24, 25):
        a(f"v_mov_b32 v{r}, 0")
    a(f"s_mov_b32 s{S.PO}, s{S.PO0}")
    a(f"s_mov_b32 s{S.L1}, s{S.L10}")
    a(f"s_mov_b32 s{S.T2}, s{S.T20}")
    a(f"s_mov_b32 s{S.KM}, 0")
    a("s_waitcnt lgkmcnt(0)")
    for i in range(16):
        a(f"v_dot2c_f32_bf16 v{16+(i&1)}, s{S.XS+i}, v{WG_+i}")
    stamp(6)
    a.nop(3)
    a("v_add_f32 v16, v16, v17")
    a("ds_write_b32 v12, v16")
    a("s_waitcnt lgkmcnt(0)")
    a("s_barrier")
    a(f"s_lshl_b32 s{S.T0}, s{S.WAVE}, 4")
    a(f"s_lshl_b64 s[{S.EX}:{S.EX+1}], 0xffff, s{S.T0}")
    for i, (p, q) in enumerate(((0, 2), (4, 6), (1, 3), (5, 7))):
        a(f"ds_read2st64_b32 v[{16+2*i}:{17+2*i}], v11 offset0:{p} offset1:{q}")
    a("s_waitcnt lgkmcnt(2)")
    a("v_add_f32 v16, v16, v17")
    a("v_add_f32 v18, v18, v19")
    a("s_waitcnt lgkmcnt(0)")
    a("v_add_f32 v20, v20, v21")
    a("v_add_f32 v22, v22, v23")
    a("v_add_f32 v28, v16, v18")
    a(f"s_mov_b64 exec, s[{S.EX}:{S.EX+1}]")
    a("v_add_f32 v30, v20, v22")
    a(f"s_cmp_ge_u32 s{S.WAVE}, 4")
    a("s_cbranch_scc1 L_f5")
    a(f"buffer_store_dwordx4 v[28:31], v5, {R4(S.RWS)}, s{S.L1} offen{'' if o.xl2 else ' sc1'}")
    a("s_mov_b64 exec, -1")
    stamp(7)
    a("s_waitcnt vmcnt(1)")
    if o.wdpos == 4:
        a(f"v_add_u32 v6, s{S.T4}, v5")
        for b in range(4):
            a(f"ds_write_b128 v6, {V(80+4*b,4)} offset:{L_WD + 1024*b}")
        a("s_waitcnt lgkmcnt(0)")
    for k in range(8):
        a(f"ds_read_b64_tr_b16 {V(WD_+2*k,2)}, v9 offset:{L_WD + k*512}")
    if o.xsleep0:
        a(f"s_sleep {o.xsleep0}")
    stamp(8)
    a.label("L_fx")
    for i in range(2):
        a(f"buffer_load_dwordx4 {V(64+4*i,4)}, v15, {R4(S.RWS)}, s{S.PO} offen offset:{2048*i} sc1")
    if o.xl2:
        a(f"s_add_u32 s{S.KM}, s{S.KM}, 1")
        a(f"s_cmp_ge_u32 s{S.KM}, {o.xl2}")
        a(f"s_cselect_b32 s{S.T0}, {XCHC}, 0")
        a(f"s_add_u32 s{S.PO}, s{S.PO}, s{S.T0}")
    else:
        a(f"s_add_u32 s{S.PO}, s{S.PO}, {XCHC}")
    a(f"s_min_u32 s{S.PO}, s{S.PO}, s{S.POL}")
    if o.stamps:
        a(f"s_add_u32 s{S.RC}, s{S.RC}, 1")
    spin()
    a("s_cbranch_scc1 L_fx_ok")
    a("s_waitcnt vmcnt(1)")
    a(f"v_bitop3_b32 v20, v65, v67, v{VTAG} bitop3:0x7e")
    a("s_waitcnt vmcnt(0)")
    a("v_add_f32 v16, v64, v68")
    a("v_add_f32 v18, v66, v70")
    a(f"v_bitop3_b32 v21, v69, v71, v{VTAG} bitop3:0x7e")
    a("v_or_b32 v20, v20, v21")
    a("v_cmp_ne_u32 vcc, 0, v20")
    a("v_permlane32_swap_b32 v16, v18")
    a("s_cbranch_vccnz L_fxr")
    a.label("L_fx_ok")
    stamp(9)
    a("v_add_f32 v16, v16, v18")
    rnd(16, 16)
    a("v_mov_b32 v18, v16")
    sigmoid(17, 16)
    a("v_permlane32_swap_b32 v16, v18")
    a("v_mul_f32 v17, v17, v16")
    rnd(17, 17)
    a("v_mul_f32 v17, v17, v18")
    a.nop(2)
    a(f"v_mov_b32_dpp v18, v17 quad_perm:[1,0,3,2] {DPPM}")
    a("v_cvt_pk_bf16_f32 v17, v17, v18")
    a.nop(1)
    for i in range(16):
        a(f"v_readlane_b32 s{S.XS+i}, v17, {2*i}")
    a("s_waitcnt lgkmcnt(0)")
    for i in range(16):
        a(f"v_dot2c_f32_bf16 v{24+(i&1)}, s{S.XS+i}, v{WD_+i}")
    a.nop(3)
    a("v_add_f32 v30, v24, v25")
    for c in range(o.pc):
        if c:
            a(f"s_add_u32 s{S.T2}, s{S.T2}, {PARTC}")
        a(f"buffer_store_dwordx2 v[30:31], v13, {R4(S.RWS)}, s{S.T2} offen sc1")
    stamp(10)
    a.label("L_fend")
    a(f"s_cmp_lg_u32 s{S.FIN}, 0")
    a("s_cbranch_scc1 L_fexit")
    a("s_barrier")
    a("ds_read_b32 v26, v14 offset:8")
    a(f"s_mov_b32 s{S.FIN}, 1")
    a("s_waitcnt lgkmcnt(0)")
    a(f"v_readfirstlane_b32 s{S.T0}, v26")
    a(f"s_cmp_eq_u32 s{S.T0}, s{S.FKEY}")
    a(f"s_mov_b32 s{S.FKEY}, s{S.T0}")
    if o.stamps:
        a(f"s_cselect_b32 s{S.T1}, 0, 64")
        a(f"s_add_u32 s{S.RC}, s{S.RC}, s{S.T1}")
        a(f"s_cmp_eq_u32 s{S.T1}, 0")
    a("s_cbranch_scc0 L_redo")
    a.label("L_fexit")
    endprog()
    a.label("L_f5")
    for c in range(1, o.xc):
        a(f"s_add_u32 s{S.L1}, s{S.L1}, {XCHC}")
        a(f"buffer_store_dwordx4 v[28:31], v5, {R4(S.RWS)}, s{S.L1} offen sc1")
    a("s_mov_b64 exec, -1")
    a("s_branch L_fend")
    a.label("L_fxr")
    a("ds_read_b32 v26, v14 offset:8")
    a("s_waitcnt lgkmcnt(0)")
    a(f"v_readfirstlane_b32 s{S.T0}, v26")
    a(f"s_cmp_eq_u32 s{S.T0}, 0")
    a("s_cbranch_scc1 L_fx")
    a(f"s_cmp_eq_u32 s{S.T0}, s{S.FKEY}")
    a("s_cbranch_scc1 L_fx")
    a("s_branch L_fend")

    a.label("L_fh")
    a("s_waitcnt lgkmcnt(0)")
    if o.fesleep:
        a(f"s_sleep {o.fesleep}")
    tag_load()
    ws_setup()
    a(f"v_mov_b32 v14, {L_FKEY}")
    a("v_mov_b32 v6, 0")
    a("ds_write_b32 v14, v6 offset:8")
    if o.spec:
        poll_setup(WS_KEY + 1024 * (RF * CF + RZ * CZ + R2 * C2), 8, 1)
        a(f"s_sleep {o.spec}")
        a("s_waitcnt vmcnt(0)")
        tag_make()
        stamp(1)
        a(f"buffer_load_dwordx4 v[20:23], v5, {R4(S.RWS)}, s{S.PO} offen sc1")
        poll_setup(WS_KEY, RF, CF)
        a("s_waitcnt vmcnt(0)")
        stamp(2)
        a(f"v_cmp_ne_u32 vcc, v{VTAG}, v21")
        a(f"v_cmp_ne_u32 s[{S.EX}:{S.EX+1}], v{VTAG}, v23")
        a("s_mov_b64 exec, vcc")
        a("v_mov_b32 v20, 0")
        a(f"s_mov_b64 exec, s[{S.EX}:{S.EX+1}]")
        a("v_mov_b32 v22, 0")
        a("s_mov_b64 exec, -1")
        a(f"s_or_b64 s[{S.EY}:{S.EY+1}], vcc, s[{S.EX}:{S.EX+1}]")
        wave_max_key(20)
        lds_put(L_FKEY, 20, tag=True)
        a("s_barrier")
        a(f"s_cmp_eq_u64 s[{S.EY}:{S.EY+1}], 0")
        a("s_cbranch_scc1 L_fh2")
        if o.fsleep0:
            a(f"s_sleep {o.fsleep0}")
        stamp(3)
        poll_granules(5, 20, sleep=o.fsleep)
        stamp(4)
        wave_max_key(20)
        a.label("L_fh2")
        lds_put(L_FKEY + 8, 20)
    else:
        poll_setup(WS_KEY, RF, CF)
        if o.fsleep0:
            a(f"s_sleep {o.fsleep0}")
        a("s_waitcnt vmcnt(0)")
        tag_make()
        stamp(3)
        poll_granules(5, 20, sleep=o.fsleep, bar=o.wdpos == 4)
        stamp(4)
        wave_max_key(20)
        lds_put(L_FKEY, 20, tag=True)
        a("s_barrier")
        lds_put(L_FKEY + 8, 20)
    a("s_barrier")
    endprog()
    a.label("L_end")
    a("s_endpgm")
    return name


def main():
    ap = argparse.ArgumentParser()
    ap.add_argument("-o", required=True)
    for k, d in dict(stamps=0, pc=1, xc=2, zsleep=8, zsleep0=24, psleep=0, psleep0=24, rsleep=3, ackwait=0, hipre=0, tlate=1,
                     mode=0, k2ack=1, k2sleep0=6, zk2sleep0=0, k2sleep=5, fbar=0, cpf=2, probe=-1, wsoff=0, flate=1, b1a=1, skew=0, gate=12, lds=0, nsgpr=102, prio=1, stag=2, spec=0, b0=2, wthr=0, xpre=0, atouch=10, ftouch=8, xl2=8, npre=3, gfirst=0, isleep0=0, zisleep0=5, b3=1, ztouch=8, zstep=128, touch=0, wdpos=0, wpf=2, fesleep=0, fw0=0, xack=0, fdelay=0, xsleep0=3, fsleep0=37, fsleep=4, spin=17).items():
        ap.add_argument("--" + k, type=int, default=d)
    for k in ("wpol", "wdpol", "xpol", "outpol", "zpol", "only"):
        ap.add_argument("--" + k, default="")
    ap.add_argument("--mf", default="8,2")
    ap.add_argument("--mz", default="1,3")
    ap.add_argument("--m2", default="8,2")
    ap.add_argument("--hold", default="")
    ap.add_argument("--ev", default="")
    o = ap.parse_args()
    if o.hold:
        o.hold = o.hold.split(":")
    for k in ("mf", "mz", "m2"):
        setattr(o, k, [int(v) for v in getattr(o, k).split(",")])
    for k in ("wpol", "wdpol", "xpol", "outpol", "zpol"):
        setattr(o, k, (" " + getattr(o, k)) if getattr(o, k) else "")
    a = Asm()
    name = gen(a, o)
    if o.touch:
        insert_stubs(a, [("L_ta_start", "L_ta_end", "L_ta", "L_taback", 9)], step=o.touch)
    reg = []
    if o.atouch:
        reg.append(("L_zjoin", "L_tb_end", "L_tb", "L_tbback", o.atouch))
    if o.ztouch:
        reg.append(("L_tz_start", "L_zend", "L_tz", "L_tzback", o.ztouch))
    if o.ftouch:
        reg.append(("L_tf_start", "L_fend", "L_tf", "L_tfback", o.ftouch))
    if reg:
        insert_stubs(a, reg, step=o.zstep)
    finish(a, name, NVGPR, o.nsgpr, NWG, 576, o.lds or LDS_BYTES, o.o)


main()
```

```python
import argparse
from lib import *

NA, NF, NZ = 128, 112, 16
NWG = NA + NF + NZ
WS_E = 0
WS_ALIVE = 4096
WS_KEY = 64 << 10
WS_KEY2 = 128 << 10
WS_XCH = 192 << 10
XCHC = 28 * 4096
WS_PART = 704 << 10
PZ = 56 * 256
PARTC = NZ * PZ
WS_INT = 2 << 20
CS = 32768 + 256
WS_STAMP = 8 << 20
WS_BYTES = 16 << 20
L_TILE = 0
L_U2 = 16384
L_CT = L_U2
UB = 17 * 64
L_MISC = L_U2 + 16 * UB
L_KSL = L_MISC
L_GKEY = L_MISC + 64
L_ZC = L_MISC + 76
L_ZF = L_MISC + 72
L_EXP = L_MISC + 128
L_DUMP = L_MISC + 192
L_XG2 = L_DUMP + 4 * UB + 256
L_M2 = L_XG2 + 4096
L_WV = L_M2 + 4096
L_XT = L_WV + 2048
L_W = 0
L_WD = 32768
L_RED = L_WD + 16384
L_FKEY = L_RED + 2048
LDS_BYTES = 84 * 1024
MF = "v_mfma_f32_16x16x32_bf16"
LOG2E = 0x3fb8aa3b
DPPM = "row_mask:0xf bank_mask:0xf"
HIM = "0xffff0000"
NVGPR = 168


class S:
    WAVE = 3
    PX = 4
    T0, T1, T2, T3, T4, T5 = 6, 7, 8, 9, 10, 11
    EX = 12
    EY = 14
    PWR, PWG, PWU, PWD, PGW, POUT, PDBG, PWS = 16, 18, 20, 22, 24, 26, 28, 30
    L0, L1, SPT, PIE = 32, 33, 34, 35
    RWS, ROUT = 36, 40
    XS = 44
    GKEY, WSEL, WHICH, Z = 44, 45, 46, 47
    SI0, SI1, ID8, BLK = 48, 49, 50, 51
    IDX, ISZ, TC = 54, 55, 53
    SO = 44
    T1C, HH, TD, TM = 56, 57, 58, 59
    FJ, PO, POL, RC, KM, SPIN = 60, 61, 62, 63, 64, 65
    PO0, L10, T20, FKEY, FIN = 40, 41, 42, 43, 35
    ST = 68


def gen(a, o):
    global WS_KEY, WS_XCH, WS_PART, WS_INT, WS_ALIVE, WS_BYTES
    WS_KEY += o.wsoff << 20
    WS_XCH += o.wsoff << 20
    WS_PART += o.wsoff << 20
    WS_INT += o.wsoff << 20
    WS_ALIVE += o.wsoff << 20
    WS_BYTES = max(WS_BYTES, (o.wsoff + 8) << 20)
    name = NAME + "_kernel"
    kernel_head(a, name)
    VE, VTAG = 30, 31
    PXS = f"s[{S.PX}:{S.PX+1}]"

    def stamp(i):
        if o.stamps:
            a(f"s_memrealtime s[{S.ST+2*i}:{S.ST+2*i+1}]")

    def hold(cp):
        if o.hold and o.hold[0] == cp:
            l = a.L("hold")
            a.label(l)
            a("s_sleep 1")
            a("s_memrealtime s[100:101]")
            a("s_waitcnt lgkmcnt(0)")
            a("s_sub_u32 s100, s100, s66")
            a(f"s_cmp_lt_u32 s100, {o.hold[1]}")
            a(f"s_cbranch_scc1 {l}")

    def touch(pre, n, first, step, back=None, tail=None):
        a("s_mov_b64 exec, 0")
        a(f"s_sub_u32 s{S.TC}, s{S.WAVE}, {first + step}")
        a.label(f"{pre}back")
        a(f"s_add_u32 s{S.TC}, s{S.TC}, {step}")
        for k in range(n):
            a(f"s_cmp_eq_u32 s{S.TC}, {k}")
            a(f"s_cbranch_scc1 {pre}{k}")
        a("s_mov_b64 exec, -1")

    def endprog():
        if o.stamps:
            a("s_waitcnt lgkmcnt(0)")
            a(f"s_add_u32 s{S.ST+28}, s{S.RC}, s{S.ST+30}")
            for i in range(16):
                a(f"v_writelane_b32 v166, s{S.ST+2*i}, {i}")
            a("s_mov_b64 exec, 0xffff")
            a(f"s_lshl4_add_u32 s{S.T0}, s2, s{S.WAVE}")
            a(f"s_lshl_b32 s{S.T0}, s{S.T0}, 7")
            a(f"s_add_u32 s{S.T0}, s{S.T0}, {WS_STAMP}")
            a(f"v_lshl_add_u32 v165, v0, 3, s{S.T0}")
            a("v_mov_b32 v167, 0")
            a(f"global_store_dwordx2 v165, v[166:167], s[{S.PWS}:{S.PWS+1}]" + (" sc1" if o.ev else ""))
        a("s_endpgm")

    def spin():
        a(f"s_add_u32 s{S.SPIN}, s{S.SPIN}, 1")
        a(f"s_lshr_b32 s{S.SPT}, s{S.SPIN}, {o.spin}")

    def poll_setup(base, R, C):
        a(f"s_and_b32 s{S.PO}, s2, {R-1}")
        a(f"s_mul_i32 s{S.PO}, s{S.PO}, {1024*C}")
        a(f"s_add_u32 s{S.PO}, s{S.PO}, {base}")
        a(f"s_add_u32 s{S.POL}, s{S.PO}, {1024*(C-1)}")

    def set_exec(n):
        if n >= 64:
            a("s_mov_b64 exec, -1")
        elif n <= 31:
            a(f"s_mov_b64 exec, {(1 << n) - 1:#x}")
        else:
            a("s_mov_b32 exec_lo, -1")
            a(f"s_mov_b32 exec_hi, {(1 << (n - 32)) - 1:#x}")

    RS = 8 if o.spec else 0
    RF, CF = o.mf
    RZ, CZ = o.mz
    R2, C2 = o.m2
    assert RF * CF + RZ * CZ + R2 * C2 + RS <= 64

    def poll_granules(vaddr, vd, sleep=0, step=1024, bar=False):
        l = a.L("poll")
        if sleep:
            a(f"s_branch {l}_1")
        a.label(l)
        if sleep:
            a(f"s_sleep {sleep}")
            a.label(f"{l}_1")
        a(f"buffer_load_dwordx4 {V(vd,4)}, v{vaddr}, {R4(S.RWS)}, s{S.PO} offen sc1")
        a(f"s_add_u32 s{S.PO}, s{S.PO}, {step}")
        a(f"s_min_u32 s{S.PO}, s{S.PO}, s{S.POL}")
        if bar:
            a(f"s_cmp_lg_u32 s{S.SPIN}, 0")
            a(f"s_cbranch_scc1 {l}_2")
            a("s_barrier")
            a.label(f"{l}_2")
        if o.stamps:
            a(f"s_add_u32 s{S.RC}, s{S.RC}, 1")
        spin()
        a("s_waitcnt vmcnt(0)")
        a(f"s_cbranch_scc1 {l}_ok")
        a(f"v_cmp_ne_u32 vcc, v{VTAG}, v{vd+1}")
        a(f"v_cmp_ne_u32 s[{S.EX}:{S.EX+1}], v{VTAG}, v{vd+3}")
        a(f"s_or_b64 vcc, vcc, s[{S.EX}:{S.EX+1}]")
        a(f"s_cbranch_vccnz {l}")
        a.label(f"{l}_ok")

    def wave_max_key(vd):
        a(f"v_max_u32 v{vd}, v{vd}, v{vd+2}")
        for r in ("row_ror:8", "row_ror:4", "row_ror:2", "row_ror:1"):
            a.nop(2)
            a(f"v_max_u32_dpp v{vd}, v{vd}, v{vd} {r} {DPPM}")
        a.nop(2)
        a(f"v_max_u32_dpp v{vd}, v{vd}, v{vd} row_bcast:15 row_mask:0xa bank_mask:0xf")
        a.nop(2)
        a(f"v_max_u32_dpp v{vd}, v{vd}, v{vd} row_bcast:31 row_mask:0xc bank_mask:0xf")

    def lds_put(addr, v, tag=False):
        a(f"v_mov_b32 v9, {addr}")
        a("s_mov_b32 exec_lo, 0")
        a("s_brev_b32 exec_hi, 1")
        if tag:
            a(f"ds_write2_b32 v9, v{v}, v{VTAG} offset1:1")
        else:
            a(f"ds_write_b32 v9, v{v}")
        a("s_mov_b64 exec, -1")
        a("s_waitcnt lgkmcnt(0)")

    def sigmoid(d, s):
        a(f"v_mul_f32 v{d}, {LOG2E | 0x80000000:#x}, v{s}")
        a(f"v_exp_f32 v{d}, v{d}")
        a.nop(1)
        a(f"v_add_f32 v{d}, 1.0, v{d}")
        a(f"v_rcp_f32 v{d}, v{d}")
        a.nop(1)

    def rnd(d, s):
        a(f"v_cvt_pk_bf16_f32 v{d}, v{s}, v{s}")
        a(f"v_and_b32 v{d}, {HIM}, v{d}")

    def ws_setup():
        a.srd(S.RWS, S.PWS, WS_BYTES)
        a(f"s_mov_b32 s{S.SPIN}, 0")

    def tag_load():
        a(f"v_mov_b32 v{VTAG}, 0")
        a(f"global_load_dword v{VE}, v{VTAG}, s[{S.PWS}:{S.PWS+1}]")
        a(f"s_mov_b32 s{S.KM}, 0x9E3779B1")

    def tag_make():
        a(f"v_mul_lo_u32 v{VTAG}, v{VE}, s{S.KM}")
        a(f"v_add_u32 v{VTAG}, 0x7F4A7C15, v{VTAG}")

    a(f"s_load_dwordx2 s[{S.PX}:{S.PX+1}], s[0:1], {KA_X}")
    a(f"s_load_dwordx16 s[16:31], s[0:1], {KA_WR}")
    if o.cpf0:
        a(f"s_cmp_ge_u32 s2, {8*o.cpf0}")
        a("s_cbranch_scc1 L_nocpf0")
        a(f"s_getpc_b64 s[{S.EX}:{S.EX+1}]")
        a.label("L_pc0")
        a("v_lshlrev_b32 v6, 7, v0")
        a(f"v_min_u32 v6, L_end - L_pc0, v6")
        a(f"v_mov_b32 v13, s{S.EX+1}")
        a(f"v_add_co_u32 v12, vcc, s{S.EX}, v6")
        a.nop(2)
        a("v_addc_co_u32 v13, vcc, 0, v13, vcc")
        a("global_load_dword v164, v[12:13], off")
        a.label("L_nocpf0")
    if o.stamps:
        for i in range(1, 16):
            a(f"s_mov_b32 s{S.ST+2*i}, 0")
        a(f"s_mov_b32 s{S.RC}, 0")
    stamp(0)
    if o.hold or o.probe >= 0:
        a("s_memrealtime s[66:67]")
    if o.skew:
        a("s_and_b32 s6, s2, 7")
        a("s_cmp_lg_u32 s6, 5")
        a("s_cbranch_scc1 L_noskew")
        a(f"s_sleep {o.skew}")
        a.label("L_noskew")
    a("v_lshrrev_b32 v1, 6, v0")
    a("v_and_b32 v0, 63, v0")
    a(f"v_readfirstlane_b32 s{S.WAVE}, v1")
    a("v_and_b32 v1, 15, v0")
    a("v_lshrrev_b32 v2, 4, v0")
    a(f"s_and_b32 s{S.T0}, s2, 7")
    a(f"s_sub_u32 s{S.WAVE}, s{S.WAVE}, 1")
    a(f"s_min_u32 s{S.WAVE}, s{S.WAVE}, 8")
    a(f"s_lshr_b32 s{S.T1}, s2, 3")
    a(f"s_cmp_ge_u32 s2, {NA}")
    a("s_cbranch_scc1 L_notA")
    if o.only == "F":
        a("s_endpgm")

    VROW, VG16, VSGN, VTR, VST = 3, 5, 8, 10, 11
    VLD, VUW, VUX, VUR0, VUR1 = 10, 11, 28, 29, 30
    XR, WR, GW, CO = 16, 24, 24, 24
    CM, AOP, ACC = 32, 96, 112
    LD, DA0, DA1, TP, X16, PK = 32, 64, 32, 80, 96, 48
    M1, GA, XG = 100, 148, 152
    Cc, Ss = 64, 68
    UO, PQ, M2 = 32, 48, 64

    def rows_setup(wreg):
        a(f"s_lshl3_add_u32 s{S.T5}, s{S.HH}, s{wreg}")
        a(f"s_lshl_b32 s{S.T5}, s{S.T5}, 7")
        a(f"s_add_u32 s{S.TD}, s{S.T5}, s{S.T1C}")
        a(f"s_sub_u32 s{S.TM}, 2048, s{S.TD}")
        a(f"s_cmp_eq_u32 s{S.TD}, 0")
        a(f"s_cselect_b32 s{S.TM}, 1024, s{S.TM}")
        a(f"s_lshl_b32 s{S.T4}, s{S.TD}, 10")
        a(f"s_lshl_b32 s{S.T5}, s{S.TM}, 10")
        a(f"v_add_u32 v6, s{S.T4}, v{VG16}")
        a(f"v_add_u32 v7, s{S.T5}, v{VG16}")

    def vrow_setup():
        a("v_and_b32 v6, 1, v2")
        a("v_lshlrev_b32 v6, 5, v6")
        a("v_lshl_add_u32 v6, v1, 6, v6")
        a("v_lshrrev_b32 v7, 1, v2")
        a(f"v_lshl_add_u32 v{VROW}, v7, 4, v6")

    def rows_load():
        a(f"global_load_dwordx4 {V(XR,4)}, v6, {PXS}{o.xpol}")
        a(f"global_load_dwordx4 {V(XR+4,4)}, v7, {PXS}{o.xpol}")

    def sgn_setup():
        a(f"v_lshlrev_b32 v{VSGN}, 31, v1")
        a(f"v_lshrrev_b32 v9, 16, v{VSGN}")
        a(f"v_or_b32 v{VSGN}, v{VSGN}, v9")

    def sgn_setup2():
        a(f"v_lshlrev_b32 v{VSGN}, 31, v1")
        a(f"v_lshrrev_b32 v14, 16, v{VSGN}")
        a(f"v_or_b32 v{VSGN}, v{VSGN}, v14")

    def tile_ids():
        a(f"s_bitcmp1_b32 s{S.T1}, 3")
        a(f"s_cselect_b32 s{S.T2}, s{S.T3}, s{S.T2}")
        a(f"s_and_b32 s{S.T3}, s{S.T1}, 7")
        a(f"s_lshl3_add_u32 s{S.BLK}, s{S.T2}, s{S.T3}")
        a(f"s_lshl_b32 s{S.PIE}, s{S.T2}, 5")
        a(f"s_add_u32 s{S.PIE}, s{S.PIE}, s{S.T3}")
        a(f"s_lshl_b32 s{S.PIE}, s{S.PIE}, 6")

    def vst_setup():
        a(f"v_mul_u32_u24 v{VST}, {CS}, v1")
        a(f"v_lshl_add_u32 v{VST}, v2, 4, v{VST}")

    def const_d2():
        R = 40
        a("v_lshlrev_b32 v6, 2, v2")
        a("v_cvt_f32_u32 v7, v1")
        a("v_cvt_f32_u32 v6, v6")
        a("v_mul_f32 v7, 0x3d800000, v7")
        for hf in range(2):
            if hf:
                a("v_add_f32 v7, 0x3d800000, v7")
            a("v_mul_f32 v9, v6, v7")
            for jj in range(4):
                a(f"v_cos_f32 v{Cc+jj}, v9")
                a(f"v_sin_f32 v{Ss+jj}, v9")
                if jj < 3:
                    a("v_add_f32 v9, v9, v7")
            a.nop(1)
            for jj in range(4):
                if hf == 0:
                    a(f"v_cvt_pk_bf16_f32 v{R+jj}, v{Cc+jj}, v{Ss+jj}")
                    a(f"v_cvt_pk_bf16_f32 v{R+8+jj}, -v{Ss+jj}, v{Cc+jj}")
                else:
                    a(f"v_cvt_pk_bf16_f32 v{R+4+jj}, v{Cc+jj}, -v{Ss+jj}")
                    a(f"v_cvt_pk_bf16_f32 v{R+12+jj}, -v{Ss+jj}, -v{Cc+jj}")
        for k in range(4):
            a(f"ds_write_b128 v{VG16}, {V(R+4*k,4)} offset:{L_M2 + 1024*k}")

    a(f"s_add_u32 s{S.T2}, s{S.T0}, 1")
    a(f"s_sub_u32 s{S.T3}, 15, s{S.T0}")
    a(f"s_cmp_eq_u32 s{S.WAVE}, 8")
    a("s_cbranch_scc1 L_ah")
    a(f"s_and_b32 s{S.HH}, s{S.T1}, 1")
    a(f"s_bitcmp1_b32 s{S.T1}, 1")
    a(f"s_cselect_b32 s{S.T4}, s{S.T3}, s{S.T2}")
    a(f"s_lshr_b32 s{S.T5}, s{S.T1}, 2")
    a(f"s_lshl4_add_u32 s{S.T1C}, s{S.T5}, s{S.T4}")
    a(f"v_lshlrev_b32 v{VG16}, 4, v0")
    a(f"v_mov_b32 v{VROW}, 0")
    a(f"s_cmp_lg_u32 s{S.T0}, 7")
    a("s_cbranch_scc1 L_k7")
    a(f"s_lshr_b32 s{S.T5}, s{S.T1}, 1")
    a(f"s_lshl3_add_u32 s{S.T1C}, s{S.T5}, 8")
    a(f"s_mov_b32 s{S.T2}, 0")
    a(f"s_cmp_eq_u32 s2, 127")
    a(f"s_cselect_b32 s{S.T1C}, 0, s{S.T1C}")
    a(f"s_cselect_b32 s{S.HH}, 0, s{S.HH}")
    a.label("L_k7")
    rows_setup(S.WAVE)
    a("s_waitcnt lgkmcnt(0)")
    rows_load()
    stamp(1)
    if o.touch:
        touch("L_ta", o.touch, 0, 8)
    a.label("L_ta_start")
    if o.b0 == 2:
        a("s_barrier")
    tile_ids()

    def tile_dma():
        a(f"s_lshl_b32 s{S.T4}, s{S.WAVE}, 11")
        a(f"s_add_u32 s{S.T5}, s{S.T4}, s{S.BLK}")
        a(f"s_lshl_b32 s{S.T5}, s{S.T5}, 7")
        a(f"s_mov_b32 m0, s{S.T4}")
        a("v_and_b32 v9, 7, v0")
        a("v_bfe_u32 v13, v0, 4, 1")
        a("v_xor_b32 v9, v9, v13")
        a("v_lshrrev_b32 v13, 3, v0")
        a(f"v_lshl_add_u32 v9, v9, 4, s{S.T5}")
        a("v_lshl_add_u32 v13, v13, 14, v9")
        a(f"global_load_lds_dwordx4 v13, {PXS}")
        a(f"s_add_u32 m0, s{S.T4}, 1024")
        a("v_add_u32 v13, 0x20000, v13")
        a(f"global_load_lds_dwordx4 v13, {PXS}")
        stamp(2)

    if not o.tlate:
        tile_dma()
    C1, S1, K = AOP, AOP + 4, AOP + 8
    a(f"s_lshr_b32 s{S.T0}, s{S.WAVE}, 2")
    a(f"s_and_b32 s{S.T1}, s{S.WAVE}, 1")
    a(f"s_bfe_u32 s{S.T2}, s{S.WAVE}, 0x10001")
    a(f"v_lshl_add_u32 v6, s{S.T0}, 4, v1")
    a(f"s_lshl3_add_u32 s{S.T3}, s{S.T2}, s{S.T1}")
    a(f"s_lshl_b32 s{S.T3}, s{S.T3}, 2")
    a("v_cvt_f32_u32 v6, v6")
    a(f"v_lshl_add_u32 v7, v2, 3, s{S.T3}")
    a("v_mul_f32 v6, 0x3c000000, v6")
    a("v_cvt_f32_u32 v7, v7")
    a("v_mul_f32 v7, v7, v6")
    for j in range(4):
        a(f"v_cos_f32 v{C1+j}, v7")
        a(f"v_sin_f32 v{S1+j}, v7")
        if j < 3:
            a("v_add_f32 v7, v7, v6")
    if o.tlate == 2:
        a(f"global_load_dwordx4 {V(WR,4)}, v{VG16}, s[{S.PWR}:{S.PWR+1}]")
        tile_dma()
    a(f"s_lshl_b32 s{S.T4}, s{S.T0}, 13")
    a(f"s_lshl_b32 s{S.T5}, s{S.T2}, 10")
    a(f"s_lshl3_add_u32 s{S.T5}, s{S.T1}, s{S.T5}")
    a(f"v_add_u32 v15, s{S.T4}, v{VG16}")
    a(f"v_add_u32 v9, s{S.T5}, v15")
    a(f"v_cvt_pk_bf16_f32 v{K+0}, v{C1}, v{C1+1}")
    a(f"v_cvt_pk_bf16_f32 v{K+1}, v{C1+2}, v{C1+3}")
    a(f"v_cvt_pk_bf16_f32 v{K+2}, -v{S1}, -v{S1+1}")
    a(f"v_cvt_pk_bf16_f32 v{K+3}, -v{S1+2}, -v{S1+3}")
    a("v_cmp_eq_f32 vcc, 0, v6")
    a(f"v_cvt_pk_bf16_f32 v{K+4}, v{C1}, -v{S1+1}")
    a(f"v_cvt_pk_bf16_f32 v{K+5}, -v{C1+2}, v{S1+3}")
    a(f"v_cvt_pk_bf16_f32 v{K+6}, -v{S1}, -v{C1+1}")
    a(f"v_cvt_pk_bf16_f32 v{K+7}, v{S1+2}, v{C1+3}")
    a(f"ds_write_b64 v9, {V(K,2)} offset:{L_CT}")
    a(f"ds_write_b64 v9, {V(K+4,2)} offset:{L_CT+4096}")
    a(f"ds_write_b64 v9, {V(K+6,2)} offset:{L_CT+6144}")
    a("s_mov_b64 exec, vcc")
    a(f"v_mov_b32 v{K+2}, 0xbf803f80")
    a(f"v_mov_b32 v{K+3}, 0xbf803f80")
    a("s_mov_b64 exec, -1")
    a(f"ds_write_b64 v9, {V(K+2,2)} offset:{L_CT+2048}")
    if o.tlate != 2:
        a(f"global_load_dwordx4 {V(WR,4)}, v{VG16}, s[{S.PWR}:{S.PWR+1}]")
    if o.tlate == 1:
        tile_dma()
    a("v_mov_b32 v12, 0")
    a("v_mov_b32 v13, 0")
    stamp(3)
    if o.b0 == 1:
        a("s_waitcnt lgkmcnt(0)")
        a("s_barrier")
        for k in range(2):
            for t in range(4):
                a(f"ds_read_b128 {V(CM+16*t+4*k,4)}, v15 offset:{L_CT + t*2048 + k*1024}")

    def dots(w, fill=()):
        fill = list(fill)

        def pad(n):
            while n and fill:
                a(fill.pop(0))
                n -= 1
            a.nop(n)

        for i in range(4):
            a(f"v_dot2c_f32_bf16 v12, v{XR+i}, v{w+i}")
            a(f"v_dot2c_f32_bf16 v13, v{XR+4+i}, v{w+i}")
        pad(3)
        a("v_permlane32_swap_b32 v12, v13")
        a("v_add_f32 v12, v12, v13")
        a("v_mov_b32 v13, v12")
        pad(2)
        a("v_permlane16_swap_b32 v12, v13")
        a("v_add_f32 v12, v12, v13")
        for r in (8, 4, 2, 1):
            pad(2)
            a(f"v_add_f32_dpp v12, v12, v12 row_ror:{r} {DPPM}")
        rnd(12, 12)
        for x in fill:
            a(x)

    a(f"s_waitcnt vmcnt({2 if o.tlate else 0})")
    stamp(4)
    dots(WR, [f"s_sub_u32 s{S.T4}, 0xffff, s{S.TD}", f"s_sub_u32 s{S.T5}, 0xffff, s{S.TM}", f"v_mov_b32 v4, s{S.T4}",
              f"v_writelane_b32 v4, s{S.T5}, 32", f"v_mov_b32 v9, {L_KSL}",
              f"v_lshlrev_b32 v{VSGN}, 31, v1", f"v_lshrrev_b32 v7, 16, v{VSGN}", f"v_or_b32 v{VSGN}, v{VSGN}, v7",
              "v_bfe_u32 v6, v0, 2, 2", "v_and_b32 v14, 3, v0", f"v_lshl_add_u32 v14, v14, 1, s{S.T2}",
              f"v_lshl_add_u32 v{VTR}, v2, 3, v6", "v_lshrrev_b32 v6, 1, v6", "v_xor_b32 v14, v14, v6"])
    a("v_ashrrev_i32 v7, 31, v12")
    a("v_or_b32 v7, 0x80000000, v7")
    a("v_xor_b32 v7, v7, v12")
    a(f"v_and_b32 v7, {HIM}, v7")
    a("v_or_b32 v7, v7, v4")
    a("s_mov_b32 exec_lo, 1")
    a("s_mov_b32 exec_hi, 1")
    a("ds_max_u32 v9, v7")
    a("s_mov_b64 exec, -1")
    if o.b1a:
        a("s_waitcnt lgkmcnt(0)")
        hold("K")
        a("s_barrier")
    if o.b0 == 2:
        for k in range(2):
            for t in range(4):
                a(f"ds_read_b128 {V(CM+16*t+4*k,4)}, v15 offset:{L_CT + t*2048 + k*1024}")
    a(f"s_lshl_b32 s{S.T1}, s{S.T1}, 3")
    a(f"v_lshl_add_u32 v14, v14, 4, s{S.T1}")
    a(f"v_lshl_add_u32 v{VTR}, v{VTR}, 7, v14")
    a("v_lshlrev_b32 v9, 4, v2")
    a("s_waitcnt vmcnt(0)" + ("" if o.b0 == 2 else " lgkmcnt(0)"))
    hold("B1")
    a("s_barrier")
    stamp(5)
    if o.b0 == 2:
        a("s_waitcnt lgkmcnt(5)")
    a(f"ds_read_b128 v[28:31], v9 offset:{L_EXP}")
    for k in range(4):
        for h in range(2):
            a(f"ds_read_b64_tr_b16 {V(AOP+4*k+2*h,2)}, v{VTR} offset:{L_TILE + k*4096 + h*512}")
        if k < 2 and not o.b0:
            for t in range(4):
                a(f"ds_read_b128 {V(CM+16*t+4*k,4)}, v15 offset:{L_CT + t*2048 + k*1024}")
        if k == 1 and not o.b0:
            a("s_waitcnt lgkmcnt(9)")
    a(f"global_load_dwordx4 {V(GW,4)}, v{VG16}, s[{S.PGW}:{S.PGW+1}]")
    xors = [f"v_xor_b32 v{CM+t*16+8+4*kp+r}, v{CM+t*16+4*kp+r}, v{VSGN}" for kp in range(2) for t in range(4) for r in range(4)]
    misc = [f"s_mul_i32 s{S.SO}, s{S.T0}, {16*CS}",
            f"s_add_u32 s{S.SO}, s{S.SO}, s{S.PIE}",
            f"s_and_b32 s{S.T4}, s{S.WAVE}, 3",
            f"s_lshl_b32 s{S.T4}, s{S.T4}, 9",
            f"s_add_u32 s{S.SO}, s{S.SO}, s{S.T4}",
            f"s_add_u32 s{S.SO}, s{S.SO}, {WS_INT}",
            f"s_mov_b32 s{S.RWS}, s{S.PWS}", f"s_mov_b32 s{S.RWS+1}, s{S.PWS+1}", f"s_mov_b32 s{S.RWS+2}, {WS_BYTES:#x}",
            f"s_mov_b32 s{S.RWS+3}, 0x20000",
            f"s_add_u32 s{S.SO+1}, s{S.SO}, {32*CS}", f"s_mov_b32 s{S.T5}, 0xfffefffe", f"s_mov_b32 s{S.T4}, 0x07060302",
            f"v_mul_u32_u24 v{VST}, {CS}, v1", f"v_lshl_add_u32 v{VST}, v2, 4, v{VST}",
            ]
    fill = xors + misc
    for k in range(4):
        for t in range(4):
            if o.b0:
                if t == 0:
                    a(f"s_waitcnt lgkmcnt({6-2*k})")
            elif k == 0:
                a(f"s_waitcnt lgkmcnt({13-t})")
            elif k == 1:
                a(f"s_waitcnt lgkmcnt({7-t})")
            elif t == 0:
                a(f"s_waitcnt lgkmcnt({2 if k == 2 else 0})")
            c = "0" if k == 0 else V(ACC + 4 * t, 4)
            a(f"{MF} {V(ACC+4*t,4)}, {V(AOP+4*k,4)}, {V(CM+16*t+4*k,4)}, {c}")
            n = 4 if k < 2 else 2
            if k < 3 or t < 3:
                for _ in range(n):
                    if fill:
                        x = fill.pop(0)
                        if x != "TAGWAIT":
                            a(x)
    for x in fill:
        a(x)
    a("v_mov_b32 v12, 0")
    a("v_mov_b32 v13, 0")
    for h in range(2):
        for i in range(8):
            a(f"v_add_u32 v{ACC+8*h+i}, 0x10000, v{ACC+8*h+i}")
        for i in range(4):
            a(f"v_perm_b32 v{AOP+4*h+i}, v{ACC+8*h+4+i}, v{ACC+8*h+i}, s{S.T4}")
        for i in range(4):
            a(f"v_and_or_b32 v{AOP+4*h+i}, v{AOP+4*h+i}, s{S.T5}, v{28+i}")
        a(f"buffer_store_dwordx4 {V(AOP+4*h,4)}, v{VST}, {R4(S.RWS)}, s{S.SO+h} offen sc1")
    a(f"s_mov_b32 s{S.SPIN}, 0")
    a(f"s_mov_b32 s{S.ISZ}, 0")
    stamp(7)
    if o.only == "P1":
        a("s_endpgm")
    a.label("L_ta_end")

    gwait = [2]

    def gates(full):
        if full:
            a(f"s_waitcnt vmcnt({gwait[0]})")
        dots(GW)
        if full:
            a(f"s_lshl_b32 s{S.T0}, s{S.WAVE}, 11")
            a(f"v_add_u32 v6, s{S.T0}, v{VG16}")
            a(f"ds_write_b128 v6, {V(XR,4)} offset:{L_XT}")
            a(f"ds_write_b128 v6, {V(XR+4,4)} offset:{L_XT+1024}")
            a(f"v_lshl_add_u32 v7, v1, 6, s{S.T0}")
            a("v_lshl_add_u32 v7, v2, 3, v7")
            a("s_waitcnt lgkmcnt(0)")
            for r in range(2):
                a(f"ds_read2_b64 {V(XR+4*r,4)}, v7 offset0:{0} offset1:{4}" if False else f"ds_read_b64 {V(XR+4*r,2)}, v7 offset:{L_XT+1024*r}")
                a(f"ds_read_b64 {V(XR+4*r+2,2)}, v7 offset:{L_XT+1024*r+32}")
            vrow_setup()
        sigmoid(13, 12)
        rnd(13, 13)
        a("v_sub_f32 v14, 1.0, v13")
        rnd(14, 14)
        a(f"v_readlane_b32 s{S.T0}, v13, 0")
        a(f"v_readlane_b32 s{S.T1}, v13, 32")
        a(f"v_readlane_b32 s{S.T2}, v14, 0")
        a(f"v_readlane_b32 s{S.T3}, v14, 32")
        a(f"s_xor_b32 s{S.T4}, s{S.T0}, 0x80000000")
        a(f"s_cmp_eq_u32 s{S.TD}, 0")
        a(f"s_cselect_b32 s{S.T4}, 0, s{S.T4}")
        a(f"s_cselect_b32 s{S.T5}, 0, s{S.T1}")
        if not full:
            return
        a(f"v_mov_b32 v{CO}, s{S.T0}")
        a(f"v_mov_b32 v{CO+1}, s{S.T4}")
        a(f"v_mov_b32 v{CO+2}, s{S.T5}")
        a(f"v_mov_b32 v{CO+3}, s{S.T1}")
        a(f"v_mov_b32 v13, s{S.T2}")
        a(f"v_mov_b32 v14, s{S.T3}")
        a("s_waitcnt lgkmcnt(0)")
        for r in range(2):
            for i in range(4):
                a(f"v_lshlrev_b32 v{XG+8*r+2*i}, 16, v{XR+4*r+i}")
                a(f"v_and_b32 v{XG+8*r+2*i+1}, {HIM}, v{XR+4*r+i}")
            for i in range(8):
                a(f"v_mul_f32 v{XG+8*r+i}, v{13+r}, v{XG+8*r+i}")

    def addr_ur(wreg):
        a(f"s_mul_i32 s{S.T1}, s{wreg}, {2*UB}")
        a("v_bfe_u32 v7, v1, 1, 2")
        a("v_xor_b32 v7, v7, v2")
        a(f"v_lshl_add_u32 v7, v7, 4, s{S.T1}")
        a(f"v_lshl_add_u32 v{VUR0}, v1, 6, v7")
        a("v_sub_u32 v6, 16, v1")
        a("v_bfe_u32 v7, v6, 1, 2")
        a("v_xor_b32 v7, v7, v2")
        a(f"v_lshl_add_u32 v7, v7, 4, s{S.T1}")
        a(f"v_lshl_add_u32 v{VUR1}, v6, 6, v7")

    def addr_p2():
        a("v_lshlrev_b32 v6, 4, v1")
        a(f"v_lshl_add_u32 v{VLD}, v2, 13, v6")
        a(f"v_mul_u32_u24 v6, {4*UB}, v2")
        a("v_bfe_u32 v7, v1, 1, 2")
        a(f"v_xor_b32 v7, s{S.WAVE}, v7")
        a("v_lshl_add_u32 v7, v7, 4, v6")
        a(f"v_lshl_add_u32 v{VUW}, v1, 6, v7")
        a(f"s_lshl4_add_u32 s{S.T1}, s{S.WAVE}, 1024")
        a(f"v_mov_b32 v9, {L_DUMP - L_U2}")
        a(f"v_lshl_add_u32 v{VUX}, v0, 1, v9")
        a(f"v_lshl_add_u32 v7, v1, 1, s{S.T1}")
        a("s_mov_b32 exec_lo, 0x00ff00ff")
        a("s_mov_b32 exec_hi, 0x00ff00ff")
        a(f"v_add_u32 v{VUX}, v7, v6")
        a("s_mov_b64 exec, -1")

    EXP = 96

    def exp_setup():
        a("v_and_b32 v6, 3, v1")
        a("v_lshlrev_b32 v6, 4, v6")
        a(f"ds_read_b128 {V(EXP,4)}, v6 offset:{L_EXP}")
        a("s_waitcnt lgkmcnt(0)")

    def exp_make():
        a("v_lshlrev_b32 v6, 1, v1")
        a(f"v_lshrrev_b32 v6, v6, v{VTAG}")
        a("v_lshlrev_b32 v7, 15, v6")
        a("v_and_b32 v6, 1, v6")
        a("v_and_b32 v7, 0x10000, v7")
        a("v_or_b32 v6, v6, v7")
        a("v_lshlrev_b32 v7, 2, v1")
        a(f"ds_write_b32 v7, v6 offset:{L_EXP}")
        a("s_waitcnt lgkmcnt(0)")

    def const_d1():
        a("v_cvt_f32_u32 v6, v1")
        a(f"s_lshl_b32 s{S.T0}, s{S.WAVE}, 2")
        a(f"v_lshl_add_u32 v7, v2, 6, s{S.T0}")
        a("v_mul_f32 v6, 0x3b000000, v6")
        a("v_cvt_f32_u32 v7, v7")
        a("v_mul_f32 v15, 0x41800000, v6")
        a("v_mul_f32 v7, v7, v6")
        for ib in range(4):
            if ib:
                a("v_add_f32 v7, v7, v6")
            for j in range(4):
                src = "v7" if j == 0 else "v9"
                a(f"v_cos_f32 v{Cc+j}, {src}")
                a(f"v_sin_f32 v{Ss+j}, {src}")
                if j < 3:
                    a(f"v_add_f32 v9, {src}, v15")
            b = M1 + 12 * ib
            a(f"v_mov_b32 v{b+8}, 0")
            for p in range(2):
                a(f"v_cvt_pk_bf16_f32 v{b+p}, v{Cc+2*p}, v{Cc+2*p+1}")
                a(f"v_cvt_pk_bf16_f32 v{b+4+p}, -v{Ss+2*p}, -v{Ss+2*p+1}")
            for p in range(2):
                a(f"v_xor_b32 v{b+2+p}, v{b+p}, v{VSGN}")
                a(f"v_xor_b32 v{b+6+p}, v{b+4+p}, v{VSGN}")
        a("v_lshrrev_b32 v6, 1, v1")
        a(f"v_add_u32 v7, s{S.T0}, v6")
        a("v_and_b32 v9, 1, v1")
        a("v_lshl_add_u32 v7, v9, 3, v7")
        a("v_cvt_f32_u32 v7, v7")
        a("v_mul_f32 v7, 0x3d000000, v7")
        a("v_cos_f32 v7, v7")
        for ib in range(4):
            m = 0x00030003 << (2 * ib)
            a(f"s_mov_b32 exec_lo, {m:#x}")
            a(f"s_mov_b32 exec_hi, {m:#x}")
            a(f"v_cvt_pk_bf16_f32 v{M1+12*ib+8}, v7, -v7")
        a("s_mov_b64 exec, -1")
        for ib in range(4):
            for p in range(1, 4):
                a(f"v_mov_b32 v{M1+12*ib+8+p}, v{M1+12*ib+8}")

    def const_ga():
        a("v_lshrrev_b32 v6, 1, v1")
        a(f"s_lshl_b32 s{S.T0}, s{S.HH}, 10")
        a(f"s_add_u32 s{S.T0}, s{S.T0}, s{S.T1C}")
        a(f"v_lshl_add_u32 v6, v6, 7, s{S.T0}")
        a("v_and_b32 v7, 1, v1")
        a("v_lshlrev_b32 v9, 9, v7")
        l0, ld = a.L("g0"), a.L("gd")
        a(f"s_cmp_lg_u32 s{S.T1C}, 0")
        a(f"s_cbranch_scc1 {l0}")
        a("s_mov_b32 exec_lo, 0x00020002")
        a("s_mov_b32 exec_hi, 0x00020002")
        a("v_mov_b32 v6, 0x400")
        a("v_mov_b32 v9, 0")
        a("s_mov_b64 exec, -1")
        a.label(l0)
        a("v_lshlrev_b32 v7, 2, v2")
        a("v_mad_u32_u24 v9, v7, v6, v9")
        a("v_cvt_f32_u32 v6, v6")
        a("v_cvt_f32_u32 v9, v9")
        a("v_mul_f32 v6, 0x3a000000, v6")
        a("v_mul_f32 v9, 0x3a000000, v9")
        for jj in range(4):
            a(f"v_cos_f32 v{Cc+jj}, v9")
            a(f"v_sin_f32 v{Ss+jj}, v9")
            if jj < 3:
                a("v_add_f32 v9, v9, v6")
        a(f"s_and_b32 s{S.T1}, s{S.T1C}, 63")
        a.nop(1)
        for jj in range(4):
            a(f"v_cvt_pk_bf16_f32 v{GA+jj}, v{Cc+jj}, v{Ss+jj}")
        a(f"s_cmp_lg_u32 s{S.T1}, 0")
        a(f"s_cbranch_scc1 {ld}")
        a(f"s_lshr_b32 s{S.T1}, s{S.T1C}, 2")
        for jj in range(4):
            a(f"v_and_b32 v{GA+jj}, 0xffff, v{GA+jj}")
            a(f"v_lshlrev_b32 v{GA+jj}, s{S.T1}, v{GA+jj}")
        a.label(ld)

    def int_base():
        a(f"s_and_b32 s{S.T1}, s{S.T1C}, 63")
        a(f"s_mul_i32 s{S.L0}, s{S.T1}, {CS}")
        a(f"s_lshl_b32 s{S.T1}, s{S.WAVE}, 9")
        a(f"s_add_u32 s{S.L0}, s{S.L0}, s{S.T1}")
        a(f"s_add_u32 s{S.L0}, s{S.L0}, {WS_INT}")
        a(f"s_add_u32 s{S.L1}, s{S.L0}, 4096")

    def m2_addr():
        a(f"s_cmp_eq_u32 s{S.TD}, 0")
        a(f"s_cselect_b32 s{S.T0}, 0, 2048")
        a(f"v_add_u32 v4, s{S.T0}, v{VG16}")

    def int_loads(ah):
        for jj in range(4):
            so = S.L0 if jj < 2 else S.L1
            a(f"buffer_load_dwordx4 {V(LD+16*ah+4*jj,4)}, v{VLD}, {R4(S.RWS)}, s{so} offen offset:{(jj & 1)*2048 + ah*256} sc1")

    a.srd(S.ROUT, S.POUT, 0x200000)
    a(f"s_cmp_ge_u32 s{S.WAVE}, 4")
    a("s_cbranch_scc1 L_hi0")
    if o.prio & 1:
        a("s_setprio 2")
    pre = [lambda: (addr_p2(), int_base(), const_ga(), exp_setup()), const_d1, lambda: gates(True), lambda: (addr_ur(S.WAVE), m2_addr())]
    if o.gfirst:
        pre[1], pre[2] = pre[2], pre[1]
    for f in pre[:o.npre]:
        f()
    stamp(8)
    a(f"s_waitcnt vmcnt({0 if o.ackwait else 2})")
    if o.b3:
        a("s_barrier")
    if o.isleep0:
        a(f"s_sleep {o.isleep0}")
    hold("B4")
    stamp(9)
    if o.stag:
        a(f"s_cmp_lg_u32 s{S.HH}, 0")
        a("s_cbranch_scc1 L_stg1")
        int_loads(0)
        a(f"s_waitcnt vmcnt({4 - o.stag})")
        int_loads(1)
        a("s_branch L_stg2")
        a.label("L_stg1")
        int_loads(1)
        a(f"s_waitcnt vmcnt({4 - o.stag})")
        int_loads(0)
        a("s_waitcnt vmcnt(0)")
        a.label("L_stg2")
    else:
        int_loads(0)
        int_loads(1)
    gwait[0] = 10
    for f in pre[o.npre:]:
        f()
    gwait[0] = 2
    a.label("L_zjoin")
    stamp(10)
    for ah in range(2):
        a(f"s_waitcnt vmcnt({4-4*ah})")
        a.label(f"L_got{ah}")
        b = LD + 16 * ah
        da = DA1 if ah else DA0
        for ib in range(4):
            for jj in range(4):
                a(f"v_xor_b32 v{TP+4*ib+jj}, v{b+4*jj+ib}, v{EXP+ib}")
            if ib == 0:
                a(f"v_or3_b32 v6, v{TP}, v{TP+1}, v{TP+2}")
                a(f"v_or_b32 v6, v6, v{TP+3}")
            else:
                a(f"v_or3_b32 v6, v6, v{TP+4*ib}, v{TP+4*ib+1}")
                a(f"v_or3_b32 v6, v6, v{TP+4*ib+2}, v{TP+4*ib+3}")
            if ib == 3:
                a("v_and_b32 v6, 0x10001, v6")
                a("v_cmp_ne_u32 vcc, 0, v6")
            if not (ah == 1):
                a(f"{MF} {V(da+4*ib,4)}, {V(TP+4*ib,4)}, {V(GA,4)}, 0")
            else:
                a(f"{MF} {V(da+4*ib,4)}, {V(TP+4*ib,4)}, {V(GA,4)}, 0")
        a(f"s_cbranch_vccnz L_retry{ah}")
        a.label(f"L_fail{ah}")
    stamp(11)

    def d1(jb):
        a(f"{MF} {V(DA0+4*jb,4)}, {V(TP+4*jb,4)}, {V(M1+12*jb,4)}, 0")
        a(f"{MF} {V(DA1+4*jb,4)}, {V(TP+4*jb,4)}, {V(M1+12*jb+4,4)}, 0")
        a(f"{MF} {V(X16,4)}, {V(TP+4*jb,4)}, {V(M1+12*jb+8,4)}, {'0' if jb == 0 else V(X16,4)}")

    for ib in range(4):
        for p in range(4):
            s0 = (DA1 if p >= 2 else DA0) + 4 * ib + 2 * (p & 1)
            a(f"v_cvt_pk_bf16_f32 v{TP+4*ib+p}, v{s0}, v{s0+1}")
        if ib:
            d1(ib - 1)
    d1(3)
    for ib in range(3):
        for i in range(4):
            a(f"v_cvt_pk_bf16_f32 v{PK+4*i+ib}, v{DA0+4*ib+i}, v{DA1+4*ib+i}")
    for i in range(4):
        a(f"v_cvt_pk_bf16_f32 v{PK+4*i+3}, v{DA0+12+i}, v{DA1+12+i}")
        a(f"ds_write_b128 v{VUW}, {V(PK+4*i,4)} offset:{L_U2 + i*UB}")
    a(f"v_cvt_pk_bf16_f32 v{X16}, v{X16}, v{X16+1}")
    a(f"v_cvt_pk_bf16_f32 v{X16+2}, v{X16+2}, v{X16+3}")
    a(f"ds_write_b16 v{VUX}, v{X16} offset:{L_U2}")
    a(f"ds_write_b16_d16_hi v{VUX}, v{X16} offset:{L_U2+UB}")
    a(f"ds_write_b16 v{VUX}, v{X16+2} offset:{L_U2+2*UB}")
    a(f"ds_write_b16_d16_hi v{VUX}, v{X16+2} offset:{L_U2+3*UB}")
    a.label("L_d2")
    a(f"ds_read_b128 {V(M2,4)}, v{VG16} offset:{L_M2}")
    a(f"ds_read_b128 {V(M2+4,4)}, v{VG16} offset:{L_M2+1024}")
    a(f"ds_read_b128 {V(M2+8,4)}, v4 offset:{L_M2}")
    a(f"ds_read_b128 {V(M2+12,4)}, v4 offset:{L_M2+1024}")
    a(f"v_mov_b32 v9, {L_GKEY}")
    a(f"s_cmp_lg_u32 s{S.ISZ}, 0")
    a("s_waitcnt lgkmcnt(0)")
    a("s_cbranch_scc1 L_zsync")
    a("s_barrier")
    stamp(12)
    a("ds_read_b32 v6, v9")
    a(f"ds_read_b128 {V(UO,4)}, v{VUR0} offset:{L_U2}")
    a(f"ds_read_b128 {V(UO+4,4)}, v{VUR1} offset:{L_U2}")
    a(f"ds_read_b128 {V(UO+8,4)}, v{VUR0} offset:{L_U2+UB}")
    a(f"ds_read_b128 {V(UO+12,4)}, v{VUR1} offset:{L_U2+UB}")
    a(f"s_lshl_b32 s{S.T0}, s{S.TD}, 10")
    a(f"s_lshl_b32 s{S.T1}, s{S.TM}, 10")
    for k in range(4):
        a(f"s_waitcnt lgkmcnt({3-k})")
        a(f"{MF} {V(PQ+4*k,4)}, {V(UO+4*k,4)}, {V(M2+4*k,4)}, 0")
    a(f"v_readfirstlane_b32 s{S.GKEY}, v6")
    a(f"s_andn2_b32 s{S.IDX}, 0xffff, s{S.GKEY}")
    for r in range(2):
        for i in range(8):
            a(f"v_fmac_f32 v{XG+8*r+i}, v{CO+2*r}, v{PQ+i}")
    for r, (so, tr) in enumerate(((S.T0, S.TD), (S.T1, S.TM))):
        for i in range(8):
            a(f"v_fmac_f32 v{XG+8*r+i}, v{CO+2*r+1}, v{PQ+8+i}")
        for i in range(4):
            a(f"v_cvt_pk_bf16_f32 v{UO+4*r+i}, v{XG+8*r+2*i}, v{XG+8*r+2*i+1}")
        l = a.L("skip")
        if r == 0:
            stamp(6)
        a(f"s_cmp_eq_u32 s{tr}, s{S.IDX}")
        a(f"s_cbranch_scc1 {l}")
        a(f"v_permlane16_swap_b32 v{UO+4*r}, v{UO+4*r+2}")
        a(f"v_permlane16_swap_b32 v{UO+4*r+1}, v{UO+4*r+3}")
        a(f"buffer_store_dwordx4 {V(UO+4*r,4)}, v{VROW}, {R4(S.ROUT)}, s{so} offen{o.outpol}")
        a.label(l)
    a.label("L_tb_end")
    stamp(13)
    if o.stamps:
        a("s_waitcnt vmcnt(0)")
        stamp(15)
    endprog()

    for ah in range(2):
        a.label(f"L_retry{ah}")
        if o.stamps:
            a(f"s_add_u32 s{S.RC}, s{S.RC}, {1 << (8*ah)}")
        if o.rsleep:
            a(f"s_sleep {o.rsleep}")
        spin()
        a(f"s_cbranch_scc1 L_fail{ah}")
        int_loads(ah)
        a("s_waitcnt vmcnt(0)")
        a(f"s_branch L_got{ah}")

    a.label("L_hi0")
    if o.b3:
        if o.ackwait:
            a("s_waitcnt vmcnt(0)")
        a("s_barrier")
    a.label("L_hi1")
    if o.atouch:
        touch("L_tb", o.atouch, 4, 4)
        a(f"s_cmp_lg_u32 s{S.ISZ}, 0")
        a("s_cbranch_scc1 L_z0b")
    gates(True)
    addr_ur(S.WAVE)
    m2_addr()
    stamp(10)
    a("s_branch L_d2")

    a.label("L_ah")
    if o.prio & 2:
        a("s_setprio 3")
    if o.cpf:
        a(f"s_cmp_ge_u32 s{S.T1}, {o.cpf}")
        a("s_cbranch_scc1 L_nocpf")
        a(f"s_getpc_b64 s[{S.EX}:{S.EX+1}]")
        a.label("L_pc")
        a(f"s_sub_u32 s{S.EX}, s{S.EX}, L_pc - {name}")
        a(f"s_subb_u32 s{S.EX+1}, s{S.EX+1}, 0")
        a("v_lshlrev_b32 v6, 7, v0")
        a("v_add_u32 v7, 0x2000, v6")
        a(f"v_min_u32 v7, L_end - {name}, v7")
        a(f"v_mov_b32 v13, s{S.EX+1}")
        a(f"v_mov_b32 v15, s{S.EX+1}")
        a(f"v_add_co_u32 v12, vcc, s{S.EX}, v6")
        a.nop(2)
        a("v_addc_co_u32 v13, vcc, 0, v13, vcc")
        a(f"v_add_co_u32 v14, vcc, s{S.EX}, v7")
        a.nop(2)
        a("v_addc_co_u32 v15, vcc, 0, v15, vcc")
        a("global_load_dword v10, v[12:13], off")
        a("global_load_dword v11, v[14:15], off")
        a.label("L_nocpf")
    a(f"v_lshlrev_b32 v{VG16}, 4, v0")
    a(f"v_mov_b32 v{VTAG}, 0")
    a(f"v_mov_b32 v9, {L_KSL}")
    a(f"ds_write_b32 v9, v{VTAG}")
    a(f"s_mov_b32 s{S.KM}, 0x9E3779B1")
    a(f"s_cmp_ge_u32 s{S.T1}, {o.wpf}")
    a("s_waitcnt lgkmcnt(0)")
    a("s_cbranch_scc1 L_nowpf")
    a(f"global_load_dwordx4 v[32:35], v{VG16}, s[{S.PWR}:{S.PWR+1}]")
    a(f"global_load_dword v{VE}, v{VTAG}, s[{S.PWS}:{S.PWS+1}]")
    a(f"global_load_dwordx4 v[36:39], v{VG16}, s[{S.PGW}:{S.PGW+1}]")
    a.label("L_nowpf")
    stamp(1)
    a("v_lshlrev_b32 v14, 10, v0")
    a(f"s_lshl_b32 s{S.ID8}, s2, 3")
    a(f"s_add_u32 s{S.ID8}, s{S.ID8}, {WS_KEY}")
    ws_setup()

    if o.b0 == 2:
        a("s_barrier")
    const_d2()
    a(f"global_load_dword v{VE}, v{VTAG}, s[{S.PWS}:{S.PWS+1}]")
    a("s_waitcnt lgkmcnt(0)")
    stamp(2)
    if o.b0 == 1:
        a("s_barrier")
    a(f"v_mov_b32 v9, {L_KSL}")
    a("s_waitcnt vmcnt(0)")
    tag_make()
    exp_make()
    a(f"v_mov_b32 v9, {L_KSL}")
    stamp(3)
    a("s_barrier")
    a(f"ds_read_b32 v{VE}, v9")
    set_exec(RF * CF + RZ * CZ + R2 * C2 + RS)
    a("s_waitcnt lgkmcnt(0)")
    a(f"buffer_store_dwordx2 v[{VE}:{VTAG}], v14, {R4(S.RWS)}, s{S.ID8} offen sc1")
    if o.probe >= 0:
        a("s_mov_b64 exec, 1")
        a("v_mov_b32 v40, s66")
        a(f"v_mov_b32 v41, v{VTAG}")
        a(f"s_add_u32 s{S.T0}, s{S.ID8}, {WS_KEY2 - WS_KEY}")
        a(f"buffer_store_dwordx2 v[40:41], v14, {R4(S.RWS)}, s{S.T0} offen sc1")
    a("s_mov_b64 exec, -1")
    stamp(5)
    if o.b1a:
        a("s_barrier")
    if o.only == "P1":
        a("s_endpgm")
    if o.htouch:
        touch("L_th", o.htouch, 8, 1)
    poll_setup(WS_KEY + 1024 * (RF * CF + RZ * CZ), R2, C2)
    a("s_waitcnt vmcnt(0)")
    if not o.gate and o.b3:
        a("s_barrier")
    if o.k2sleep0:
        a(f"s_sleep {o.k2sleep0}")
    stamp(8)
    poll_granules(VG16, 32, sleep=o.k2sleep)
    stamp(9)
    wave_max_key(32)
    lds_put(L_GKEY, 32)
    if o.gate:
        a(f"s_sleep {o.gate}")
        a("s_barrier")
        if o.probe >= 0:
            a("s_cmp_lg_u32 s2, 9")
            a("s_cbranch_scc1 L_noprobe")
            a("s_barrier")
            a(f"s_mov_b32 s{S.PO}, {WS_KEY2}")
            a(f"s_mov_b32 s{S.POL}, {WS_KEY2}")
            poll_granules(VG16, 32, sleep=4)
            for i in range(8):
                a(f"v_readlane_b32 s{70+i}, v{32 + 2*(i&1)}, {i>>1}")
            a("s_mov_b32 s80, s70")
            for i in range(1, 8):
                a(f"s_sub_u32 s81, s{70+i}, s80")
                a("s_cmp_lt_i32 s81, 0")
                a(f"s_cselect_b32 s80, s{70+i}, s80")
            if o.probe < 8:
                a(f"s_sub_u32 s81, s{70+o.probe}, s80")
            else:
                a("s_mov_b32 s81, 0")
                for i in range(8):
                    a(f"s_sub_u32 s82, s{70+i}, s80")
                    a("s_max_u32 s81, s81, s82")
            a("s_mul_i32 s81, s81, 10")
            a("s_add_u32 s81, s81, 800")
            a.label("L_pw")
            a("s_sleep 1")
            a("s_memrealtime s[100:101]")
            a("s_waitcnt lgkmcnt(0)")
            a("s_sub_u32 s100, s100, s80")
            a("s_cmp_lt_u32 s100, s81")
            a("s_cbranch_scc1 L_pw")
            a.label("L_noprobe")
        if o.hold and o.hold[0] == "endA":
            a(f"s_sub_u32 s{S.T0}, s2, {o.hold[2]}")
            a(f"s_cmp_ge_u32 s{S.T0}, {o.hold[3]}")
            a("s_cbranch_scc1 L_nohold")
            a("s_barrier")
            hold("endA")
            a.label("L_nohold")
        endprog()
    a("s_barrier")
    endprog()

    a.label("L_notA")
    if o.only == "AA":
        a("s_endpgm")
    a(f"s_lshl4_add_u32 s{S.FJ}, s{S.T0}, s{S.T1}")
    a(f"s_sub_u32 s{S.FJ}, s{S.FJ}, 16")
    a(f"s_cmp_ge_u32 s2, {NWG}")
    a("s_cbranch_scc1 L_end")
    a(f"s_cmp_lt_u32 s{S.T0}, 4")
    a("s_cbranch_scc1 L_F")
    a(f"s_mul_i32 s{S.FJ}, s{S.T0}, 12")
    a(f"s_add_u32 s{S.FJ}, s{S.FJ}, s{S.T1}")
    a(f"s_cmp_lt_u32 s{S.T1}, 28")
    a("s_cbranch_scc1 L_F")
    a(f"s_mov_b32 s{S.ISZ}, 1")
    a(f"s_lshl2_add_u32 s{S.Z}, s{S.T0}, s{S.T1}")
    a(f"s_sub_u32 s{S.Z}, s{S.Z}, 44")
    vrow_setup()
    a(f"v_lshlrev_b32 v{VG16}, 4, v0")
    sgn_setup()
    a("s_waitcnt lgkmcnt(0)")
    ws_setup()
    a.srd(S.ROUT, S.POUT, 0x200000)
    addr_p2()
    a(f"s_cmp_eq_u32 s{S.WAVE}, 8")
    a("s_cbranch_scc1 L_zh")
    a(f"s_cmp_ge_u32 s{S.WAVE}, 4")
    a("s_cbranch_scc1 L_z0")
    const_d1()
    a("s_branch L_z1")
    a.label("L_z0")
    if o.atouch:
        a("s_branch L_hi1")
    a.label("L_z0b")
    if o.ztouch:
        touch("L_tz", o.ztouch, 4, 4)
    a.label("L_z1")
    a(f"v_mov_b32 v9, {L_KSL}")
    a("v_mov_b32 v12, 0")
    a("v_mov_b32 v13, 0")
    a("s_barrier")
    a(f"ds_read_b64 v[{VE}:{VTAG}], v9")
    a(f"ds_read_b128 {V(GW,4)}, v{VG16} offset:{L_WV+1024}")
    a("s_waitcnt lgkmcnt(0)")
    a(f"v_readfirstlane_b32 s{S.GKEY}, v{VE}")
    a(f"s_andn2_b32 s{S.IDX}, 2047, s{S.GKEY}")
    a(f"s_and_b32 s{S.T0}, s{S.IDX}, 127")
    a(f"s_cmp_gt_u32 s{S.T0}, 64")
    a(f"s_cselect_b32 s{S.WHICH}, 1, 0")
    a(f"s_and_b32 s{S.T0}, s{S.IDX}, {1024 + 63}")
    a(f"s_cmp_eq_u32 s{S.T0}, 1024")
    a(f"s_cselect_b32 s{S.WHICH}, 1, s{S.WHICH}")
    a(f"s_sub_u32 s{S.T0}, 2048, s{S.IDX}")
    a(f"s_cmp_lg_u32 s{S.WHICH}, 0")
    a(f"s_cselect_b32 s{S.T0}, s{S.T0}, s{S.IDX}")
    a(f"s_cmp_eq_u32 s{S.T0}, 1024")
    a(f"s_cselect_b32 s{S.T0}, 0, s{S.T0}")
    a(f"s_and_b32 s{S.T1C}, s{S.T0}, 127")
    a(f"s_lshr_b32 s{S.HH}, s{S.T0}, 10")
    a(f"s_bfe_u32 s{S.WSEL}, s{S.T0}, 0x30007")
    rows_setup(S.WSEL)
    a(f"s_cmp_ge_u32 s{S.WAVE}, 4")
    a("s_cbranch_scc1 L_z4")
    int_base()
    if o.zisleep0:
        a(f"s_sleep {o.zisleep0}")
    stamp(9)
    int_loads(0)
    int_loads(1)
    const_ga()
    exp_setup()
    addr_ur(S.WSEL)
    m2_addr()
    a("v_lshlrev_b32 v6, 7, v1")
    a(f"v_lshl_add_u32 v15, v2, 4, v6")
    a("s_branch L_zjoin")
    a.label("L_z4")
    a(f"s_cmp_ge_u32 s{S.WAVE}, 6")
    a("s_cbranch_scc1 L_zend2")
    rows_load()
    a(f"s_sub_u32 s{S.T0}, s{S.WAVE}, 4")
    a(f"s_lshl1_add_u32 s{S.T1}, s{S.Z}, s{S.T0}")
    a(f"s_lshl_b32 s{S.T1}, s{S.T1}, 5")
    a("v_and_b32 v6, 7, v0")
    a(f"v_lshl_add_u32 v10, v6, 2, s{S.T1}")
    a(f"s_lshl_b32 s{S.T2}, s{S.IDX}, 10")
    a(f"v_add_u32 v7, s{S.T2}, v10")
    a(f"global_load_dword v35, v7, {PXS}")
    a("v_lshlrev_b32 v10, 1, v10")
    a("v_lshrrev_b32 v7, 3, v0")
    a("v_lshlrev_b32 v7, 8, v7")
    a("v_lshl_add_u32 v11, v6, 4, v7")
    a(f"s_mul_i32 s{S.SI0}, s{S.Z}, {PZ}")
    a(f"s_lshl_b32 s{S.T0}, s{S.T0}, 7")
    a(f"s_add_u32 s{S.SI0}, s{S.SI0}, s{S.T0}")
    a(f"s_add_u32 s{S.SI0}, s{S.SI0}, {WS_PART}")
    a(f"s_add_u32 s{S.SI1}, s{S.SI0}, {(o.pc-1)*PARTC}")
    a(f"s_and_b32 s{S.T0}, s{S.GKEY}, 0xffff0000")
    a(f"s_xor_b32 s{S.T1}, s{S.T0}, 0x80000000")
    a(f"s_xor_b32 s{S.T3}, s{S.T0}, 0xffff0000")
    a(f"s_bitcmp1_b32 s{S.T0}, 31")
    a(f"s_cselect_b32 s{S.T0}, s{S.T1}, s{S.T3}")
    a(f"v_mov_b32 v15, s{S.T0}")
    sigmoid(15, 15)
    rnd(15, 15)
    a("s_waitcnt vmcnt(0)")
    gates(False)
    a(f"s_cmp_lg_u32 s{S.WHICH}, 0")
    a(f"s_cselect_b32 s{S.T2}, s{S.T3}, s{S.T2}")
    a(f"s_cselect_b32 s{S.T0}, s{S.T5}, s{S.T0}")
    a(f"s_cselect_b32 s{S.T4}, s{S.T1}, s{S.T4}")
    a(f"v_xor_b32 v{VTAG}, s{S.IDX}, v{VTAG}")
    a(f"v_mov_b32 v36, s{S.T2}")
    a(f"v_mov_b32 v{CO}, s{S.T0}")
    a(f"v_mov_b32 v{CO+1}, s{S.T4}")
    a("v_lshlrev_b32 v34, 16, v35")
    a(f"v_and_b32 v35, {HIM}, v35")
    if o.psleep0:
        a(f"s_sleep {o.psleep0}")
    hold("pp")
    a(f"v_mov_b32 v9, {L_ZF}")
    a.label("L_tz_start")
    stamp(10)
    if o.psleep:
        a("s_branch L_zp1")
    a.label("L_zp")
    if o.psleep:
        a(f"s_sleep {o.psleep}")
        a.label("L_zp1")
    for i in range(7):
        if i and i % 2 == 0:
            a(f"s_add_u32 s{S.T0}, s{S.SI0}, {2048*i}")
        a(f"buffer_load_dwordx4 {V(40+4*i,4)}, v11, {R4(S.RWS)}, s{S.T0 if i >= 2 else S.SI0} offen offset:{2048*(i&1)} sc1")
    a(f"s_add_u32 s{S.SI0}, s{S.SI0}, {PARTC}")
    a(f"s_min_u32 s{S.SI0}, s{S.SI0}, s{S.SI1}")
    if o.stamps:
        a(f"s_add_u32 s{S.RC}, s{S.RC}, 256")
    spin()
    a("s_cbranch_scc1 L_zp_ok")
    for i in range(7):
        a(f"s_waitcnt vmcnt({6-i})")
        a(f"v_bitop3_b32 v{37 if i == 0 else 38 + (i & 1)}, v{41+4*i}, v{43+4*i}, v{VTAG} bitop3:0x7e")
        if i:
            a(f"v_add_f32 v40, v40, v{40+4*i}")
            a(f"v_add_f32 v42, v42, v{42+4*i}")
        if i and i % 2 == 0:
            a("v_or3_b32 v37, v37, v38, v39")
    a("v_cmp_ne_u32 vcc, 0, v37")
    a.nop(1)
    a("s_cbranch_vccnz L_zp")
    a.label("L_zp_ok")
    a("ds_read_b32 v12, v9")
    a(f"ds_read_b64 v[32:33], v10 offset:{L_XG2}")
    a(f"ds_read_b64 v[16:17], v10 offset:{L_XG2+2048}")
    a("v_lshrrev_b32 v11, 1, v10")
    a(f"s_lshl_b32 s{S.T2}, s{S.IDX}, 10")
    a("s_waitcnt vmcnt(0)")
    stamp(11)
    a(f"v_add_f32_dpp v40, v40, v40 row_ror:8 {DPPM}")
    a(f"v_add_f32_dpp v42, v42, v42 row_ror:8 {DPPM}")
    a.nop(1)
    a.nop(1)
    a("v_permlane16_swap_b32 v40, v42")
    a("v_add_f32 v40, v40, v42")
    a("v_mov_b32 v42, v40")
    a.nop(2)
    a("v_permlane32_swap_b32 v40, v42")
    a("v_add_f32 v40, v40, v42")
    a("v_mov_b32 v42, v40")
    a.nop(2)
    a("v_permlane16_swap_b32 v40, v42")
    a("v_cvt_pk_bf16_f32 v41, v40, v42")
    a("v_lshlrev_b32 v40, 16, v41")
    a(f"v_and_b32 v42, {HIM}, v41")
    a("v_mul_f32 v40, v40, v15")
    a("v_mul_f32 v42, v42, v15")
    a("v_cvt_pk_bf16_f32 v41, v40, v42")
    a("v_lshlrev_b32 v40, 16, v41")
    a(f"v_and_b32 v42, {HIM}, v41")
    a("v_add_f32 v40, v40, v34")
    a("v_add_f32 v42, v42, v35")
    a("v_cvt_pk_bf16_f32 v41, v40, v42")
    a("v_lshlrev_b32 v40, 16, v41")
    a(f"v_and_b32 v42, {HIM}, v41")
    a.label("L_zw")
    a("s_waitcnt lgkmcnt(0)")
    a("v_cmp_eq_u32 vcc, 0, v12")
    a(f"v_mul_f32 v32, v{CO}, v32")
    a(f"v_mul_f32 v33, v{CO}, v33")
    a("s_cbranch_vccz L_zw_ok")
    spin()
    a("s_cbranch_scc1 L_zw_ok")
    a("ds_read_b32 v12, v9")
    a(f"ds_read_b64 v[32:33], v10 offset:{L_XG2}")
    a(f"ds_read_b64 v[16:17], v10 offset:{L_XG2+2048}")
    a("s_branch L_zw")
    a.label("L_zw_ok")
    a(f"v_fmac_f32 v32, v{CO+1}, v16")
    a(f"v_fmac_f32 v33, v{CO+1}, v17")
    a("v_fmac_f32 v32, v40, v36")
    a("v_fmac_f32 v33, v42, v36")
    a("v_cvt_pk_bf16_f32 v32, v32, v33")
    a("s_mov_b64 exec, 0xff")
    a(f"buffer_store_dword v32, v11, {R4(S.ROUT)}, s{S.T2} offen{o.zpol}")
    a("s_mov_b64 exec, -1")
    stamp(13)
    if o.stamps:
        a("s_waitcnt vmcnt(0)")
        stamp(15)
    a("s_barrier")
    endprog()

    a.label("L_zsync")
    a(f"v_mov_b32 v9, {L_ZC}")
    a("v_mov_b32 v6, 1")
    a("s_mov_b64 exec, 1")
    a("ds_add_u32 v9, v6")
    a("s_mov_b64 exec, -1")
    a(f"s_cmp_lg_u32 s{S.WAVE}, 0")
    a("s_cbranch_scc1 L_zend")
    a.label("L_zs")
    a("ds_read_b32 v6, v9")
    spin()
    a("s_waitcnt lgkmcnt(0)")
    a("s_cbranch_scc1 L_zs_ok")
    a("v_cmp_ne_u32 vcc, 4, v6")
    a.nop(1)
    a("s_cbranch_vccnz L_zs")
    a.label("L_zs_ok")
    stamp(12)
    a(f"ds_read_b128 {V(UO,4)}, v{VUR0} offset:{L_U2}")
    a(f"ds_read_b128 {V(UO+4,4)}, v{VUR1} offset:{L_U2}")
    a(f"ds_read_b128 {V(UO+8,4)}, v{VUR0} offset:{L_U2+UB}")
    a(f"ds_read_b128 {V(UO+12,4)}, v{VUR1} offset:{L_U2+UB}")
    for k in range(4):
        a(f"s_waitcnt lgkmcnt({3-k})")
        a(f"{MF} {V(PQ+4*k,4)}, {V(UO+4*k,4)}, {V(M2+4*k,4)}, 0")
    a.nop(3)
    for k in range(4):
        if k == 2:
            a.nop(2)
        a(f"ds_write_b128 v15, {V(PQ+4*k,4)} offset:{L_XG2 + 64*(k&1) + 2048*(k>>1)}")
    a(f"v_mov_b32 v9, {L_ZF}")
    a("s_waitcnt lgkmcnt(0)")
    a("ds_write_b32 v9, v9")
    a("s_waitcnt lgkmcnt(0)")
    stamp(13)
    a.label("L_zend")
    endprog()
    a.label("L_zend2")
    if o.hold and o.hold[0] == "end":
        a("s_barrier")
    hold("end")
    if o.ev:
        lo, n, w, st, med = [int(v) for v in o.ev.split(":")]
        a("s_cmp_lg_u32 s2, 255")
        a("s_cbranch_scc1 L_noev")
        a(f"s_cmp_lg_u32 s{S.WAVE}, 7")
        a("s_cbranch_scc1 L_noev")
        a("s_barrier")
        a.label("L_ev0")
        a("s_sleep 4")
        a("s_memrealtime s[100:101]")
        a("s_waitcnt lgkmcnt(0)")
        a(f"s_sub_u32 s100, s100, s{S.ST}")
        a("s_cmp_lt_u32 s100, 750")
        a("s_cbranch_scc1 L_ev0")
        a("v_lshlrev_b32 v6, 11, v0")
        a(f"v_add_u32 v7, {WS_STAMP + 8*128}, v6")
        a(f"global_load_dword v40, v7, s[{S.PWS}:{S.PWS+1}] sc1")
        a(f"v_add_u32 v7, {WS_STAMP + lo*2048 + w*128 + st*8}, v6")
        for q in range(n // 64):
            a(f"global_load_dword v{44+q}, v7, s[{S.PWS}:{S.PWS+1}] sc1")
            a(f"v_add_u32 v7, {64*2048}, v7")
        a("s_waitcnt vmcnt(0)")
        a(f"v_subrev_u32 v40, s{S.ST}, v40")
        a("v_sub_u32 v40, 1000, v40")
        a("v_mov_b32 v42, v40")
        wave_max_key(40)
        a("v_mov_b32 v41, 0")
        for q in range(n // 64):
            a(f"v_subrev_u32 v{44+q}, s{S.ST}, v{44+q}")
            a(f"v_cmp_gt_u32 vcc, 1000, v{44+q}")
            a.nop(2)
            a(f"v_cndmask_b32 v{44+q}, 0, v{44+q}, vcc")
            a(f"v_max_u32 v41, v41, v{44+q}")
        a("v_mov_b32 v43, v41")
        wave_max_key(41)
        a.nop(2)
        a("v_readlane_b32 s6, v40, 63")
        a("v_readlane_b32 s7, v41, 63")
        a("s_sub_u32 s6, s6, 1000")
        a("s_min_u32 s6, s6, 300")
        a("s_add_u32 s7, s7, s6")
        a("s_mul_i32 s7, s7, 4")
        a("s_add_u32 s7, s7, 900")
        a("s_sub_u32 s7, s7, s6")
        a.label("L_ev1")
        a("s_sleep 1")
        a("s_memrealtime s[100:101]")
        a("s_waitcnt lgkmcnt(0)")
        a(f"s_sub_u32 s100, s100, s{S.ST}")
        a("s_cmp_lt_u32 s100, s7")
        a("s_cbranch_scc1 L_ev1")
        a.label("L_noev")
    endprog()

    a.label("L_zh")
    a(f"v_mov_b32 v9, {L_ZF}")
    a("v_mov_b32 v6, 0")
    a("ds_write2_b32 v9, v6, v6 offset1:1")
    const_d2()
    a(f"s_mov_b32 m0, {L_WV+1024}")
    tag_load()
    a(f"global_load_lds_dwordx4 v{VG16}, s[{S.PGW}:{S.PGW+1}]")
    a("s_waitcnt vmcnt(0)")
    tag_make()
    exp_make()
    poll_setup(WS_KEY + 1024 * RF * CF, RZ, CZ)
    if o.zsleep0:
        a(f"s_sleep {o.zsleep0}")
    stamp(1)
    poll_granules(VG16, 32, sleep=o.zsleep)
    stamp(2)
    wave_max_key(32)
    lds_put(L_KSL, 32, tag=True)
    a("s_barrier")
    a(f"s_lshl_b32 s{S.T0}, s{S.Z}, 2")
    a(f"s_add_u32 s{S.T0}, s{S.T0}, {WS_ALIVE}")
    a("s_mov_b64 exec, 1")
    a(f"buffer_store_dword v{VTAG}, v0, {R4(S.RWS)}, s{S.T0} offen sc1")
    a("s_mov_b64 exec, -1")
    a(f"s_cmp_lg_u32 s{S.Z}, 0")
    a("s_cbranch_scc1 L_zend")
    a("s_mov_b64 exec, 0xffff")
    a("v_lshlrev_b32 v6, 2, v0")
    a(f"s_mov_b32 s{S.T0}, {WS_ALIVE}")
    a("s_waitcnt vmcnt(0)")
    a("s_sleep 24")
    a.label("L_za")
    a(f"buffer_load_dword v7, v6, {R4(S.RWS)}, s{S.T0} offen sc1")
    spin()
    a("s_waitcnt vmcnt(0)")
    a("s_cbranch_scc1 L_za_ok")
    a(f"v_cmp_ne_u32 vcc, v{VTAG}, v7")
    a.nop(1)
    a("s_cbranch_vccnz L_za")
    a.label("L_za_ok")
    a("s_mov_b64 exec, 1")
    a(f"v_add_u32 v9, 1, v{VE}")
    a("s_barrier")
    a(f"buffer_store_dword v9, v6, {R4(S.RWS)}, 0 offen sc1")
    a("s_mov_b64 exec, -1")
    a("s_branch L_zend")

    a.label("L_F")
    if o.only == "A":
        a("s_endpgm")
    WG_, WD_ = 32, 48
    a("v_lshlrev_b32 v5, 4, v0")
    a(f"s_cmp_eq_u32 s{S.WAVE}, 8")
    a("s_cbranch_scc1 L_fh")
    a(f"s_and_b32 s{S.T0}, s{S.FJ}, 3")
    a(f"s_lshr_b32 s{S.T1}, s{S.WAVE}, 1")
    a(f"s_lshl2_add_u32 s{S.L0}, s{S.T0}, s{S.T1}")
    a(f"s_mul_i32 s{S.T2}, s{S.L0}, {32*3584}")
    a(f"s_lshr_b32 s{S.L1}, s{S.FJ}, 2")
    a(f"s_lshl_b32 s{S.T3}, s{S.L1}, 7")
    a(f"s_add_u32 s{S.T2}, s{S.T2}, s{S.T3}")
    a("v_lshrrev_b32 v6, 3, v0")
    a("v_mul_u32_u24 v6, 3584, v6")
    a("v_and_b32 v7, 7, v0")
    a("v_bfe_u32 v8, v0, 4, 1")
    a("v_lshlrev_b32 v8, 2, v8")
    a("v_xor_b32 v4, v7, v8")
    a(f"v_lshl_add_u32 v7, v4, 4, s{S.T2}")
    a("v_add_u32 v3, v6, v7")
    a(f"s_lshl_b32 s{S.T4}, s{S.WAVE}, 12")
    a(f"s_mov_b32 m0, s{S.T4}")
    def w_dma():
        a(f"s_bitcmp1_b32 s{S.WAVE}, 0")
        a("s_waitcnt lgkmcnt(0)")
        a(f"s_cselect_b32 s{S.PWG}, s{S.PWU}, s{S.PWG}")
        a(f"s_cselect_b32 s{S.PWG+1}, s{S.PWU+1}, s{S.PWG+1}")
        if o.fdelay:
            a(f"s_sleep {o.fdelay}")
        for b in range(4):
            if b:
                a(f"s_add_u32 m0, s{S.T4}, {1024*b}")
                a(f"v_add_u32 v3, {8*3584}, v3")
            if o.wthr and b >= o.wthr:
                a(f"s_waitcnt vmcnt({o.wthr - 1})")
            a(f"global_load_lds_dwordx4 v3, s[{S.PWG}:{S.PWG+1}]{o.wpol}")
        ws_setup()
        stamp(1)

    if not o.flate:
        w_dma()
    a("v_bfe_u32 v6, v0, 2, 2")
    a("v_and_b32 v7, 3, v0")
    a("v_lshlrev_b32 v8, 3, v7")
    a("v_lshl_add_u32 v8, v2, 5, v8")
    a("v_and_b32 v9, 2, v6")
    a("v_lshlrev_b32 v9, 5, v9")
    a("v_xor_b32 v9, v9, v8")
    a("v_lshl_add_u32 v9, v6, 7, v9")
    a(f"v_add_u32 v9, s{S.T4}, v9")
    a(f"s_lshl_b32 s{S.T5}, s{S.WAVE}, 8")
    a("v_lshlrev_b32 v11, 2, v0")
    a(f"v_add_u32 v11, {L_RED}, v11")
    a(f"v_add_u32 v12, s{S.T5}, v11")
    a(f"s_lshl1_add_u32 s{S.T1}, s{S.L1}, s{S.T1}")
    a(f"s_lshl_b32 s{S.T2}, s{S.T1}, 15")
    a(f"s_and_b32 s{S.T3}, s{S.WAVE}, 1")
    a(f"s_lshl1_add_u32 s{S.T3}, s{S.T0}, s{S.T3}")
    a(f"s_lshl_b32 s{S.T5}, s{S.T3}, 7")
    a(f"s_add_u32 s{S.T2}, s{S.T2}, s{S.T5}")
    a("v_lshrrev_b32 v6, 3, v0")
    a(f"v_lshl_add_u32 v6, v6, 10, s{S.T2}")
    a("v_lshl_add_u32 v4, v4, 4, v6")
    a("v_lshrrev_b32 v6, 5, v0")
    a(f"v_mul_u32_u24 v13, {PZ}, v6")
    a("v_and_b32 v6, 31, v0")
    a("v_lshl_add_u32 v13, v6, 3, v13")
    a(f"s_mul_i32 s{S.T2}, s{S.T3}, {2*PZ}")
    a(f"s_lshl_b32 s{S.T1}, s{S.T1}, 8")
    a(f"s_add_u32 s{S.T2}, s{S.T2}, s{S.T1}")
    a(f"s_add_u32 s{S.T2}, s{S.T2}, {WS_PART}")
    a(f"s_lshl_b32 s{S.L0}, s{S.L0}, 6")
    a(f"s_lshl_b32 s{S.L1}, s{S.L1}, 12")
    a(f"s_add_u32 s{S.PO}, s{S.L1}, {WS_XCH}")
    a(f"s_add_u32 s{S.POL}, s{S.PO}, {(o.xc-1)*XCHC}")
    a(f"s_lshl_b32 s{S.T1}, s{S.T0}, 10")
    a(f"s_add_u32 s{S.L1}, s{S.PO}, s{S.T1}")
    a(f"v_mov_b32 v14, {L_FKEY}")
    a(f"s_lshr_b32 s{S.T1}, s{S.WAVE}, 1")
    a(f"s_lshl_b32 s{S.T1}, s{S.T1}, 9")
    a(f"v_lshl_add_u32 v15, v6, 4, s{S.T1}")
    a("v_lshrrev_b32 v6, 5, v0")
    a("v_lshl_add_u32 v15, v6, 10, v15")
    a(f"s_mov_b32 s{S.PO0}, s{S.PO}")
    a(f"s_mov_b32 s{S.L10}, s{S.L1}")
    a(f"s_mov_b32 s{S.T20}, s{S.T2}")
    a(f"s_mov_b32 s{S.FIN}, 0")

    if o.flate:
        w_dma()

    def wd_dma():
        l = a.L("nowd")
        a(f"s_cmp_ge_u32 s{S.WAVE}, 4")
        a(f"s_cbranch_scc1 {l}")
        for b in range(4):
            a(f"s_add_u32 m0, s{S.T4}, {L_WD + 1024*b}")
            if b:
                a("v_add_u32 v4, 0x2000, v4")
            else:
                a.nop(1)
            a(f"global_load_lds_dwordx4 v4, s[{S.PWD}:{S.PWD+1}]{o.wdpol}")
        a.label(l)

    if o.wdpos == 0:
        wd_dma()
    if o.wdpos == 4:
        a("s_barrier")
        a(f"s_cmp_ge_u32 s{S.WAVE}, 4")
        a("s_cbranch_scc1 L_nowd4")
        for b in range(4):
            a(f"v_add_u32 v6, {0x2000*b}, v4")
            a(f"global_load_dwordx4 {V(80+4*b,4)}, v6, s[{S.PWD}:{S.PWD+1}]")
        a("s_waitcnt vmcnt(4)")
        a("s_branch L_nowd5")
        a.label("L_nowd4")
        a("s_waitcnt vmcnt(0)")
        a.label("L_nowd5")
    else:
        a("s_waitcnt vmcnt(0)")
    stamp(2)
    if o.fw0:
        a("s_barrier")
    if o.wdpos == 1:
        wd_dma()
    if o.xpre:
        for i in range(2):
            a(f"buffer_load_dwordx4 {V(64+4*i,4)}, v15, {R4(S.RWS)}, s{S.PO} offen offset:{2048*i} sc1")
    for k in range(8):
        a(f"ds_read_b64_tr_b16 {V(WG_+2*k,2)}, v9 offset:{L_W + k*512}")
    if o.ftouch:
        touch("L_tf", o.ftouch, 0, 8)
    a("s_waitcnt lgkmcnt(0)")
    a("s_barrier")
    a.label("L_tf_start")
    a("ds_read_b64 v[26:27], v14")
    a("s_waitcnt lgkmcnt(0)")
    a(f"v_readfirstlane_b32 s{S.FKEY}, v26")
    a.label("L_redo")
    a(f"s_andn2_b32 s{S.T0}, 2047, s{S.FKEY}")
    a(f"s_lshl_b32 s{S.T1}, s{S.T0}, 10")
    a(f"s_add_u32 s{S.T1}, s{S.T1}, s{S.L0}")
    a(f"s_load_dwordx16 s[{S.XS}:{S.XS+15}], {PXS}, s{S.T1}")
    stamp(5)
    a(f"v_xor_b32 v{VTAG}, s{S.T0}, v27")
    a(f"v_xor_b32 v29, s{S.T0}, v27")
    for r in (16, 17, 24, 25):
        a(f"v_mov_b32 v{r}, 0")
    a(f"s_mov_b32 s{S.PO}, s{S.PO0}")
    a(f"s_mov_b32 s{S.L1}, s{S.L10}")
    a(f"s_mov_b32 s{S.T2}, s{S.T20}")
    a(f"s_mov_b32 s{S.KM}, 0")
    a("s_waitcnt lgkmcnt(0)")
    for i in range(16):
        a(f"v_dot2c_f32_bf16 v{16+(i&1)}, s{S.XS+i}, v{WG_+i}")
    stamp(6)
    a.nop(3)
    a("v_add_f32 v16, v16, v17")
    a("ds_write_b32 v12, v16")
    a("s_waitcnt lgkmcnt(0)")
    a("s_barrier")
    a(f"s_lshl_b32 s{S.T0}, s{S.WAVE}, 4")
    a(f"s_lshl_b64 s[{S.EX}:{S.EX+1}], 0xffff, s{S.T0}")
    for i, (p, q) in enumerate(((0, 2), (4, 6), (1, 3), (5, 7))):
        a(f"ds_read2st64_b32 v[{16+2*i}:{17+2*i}], v11 offset0:{p} offset1:{q}")
    a("s_waitcnt lgkmcnt(2)")
    a("v_add_f32 v16, v16, v17")
    a("v_add_f32 v18, v18, v19")
    a("s_waitcnt lgkmcnt(0)")
    a("v_add_f32 v20, v20, v21")
    a("v_add_f32 v22, v22, v23")
    a("v_add_f32 v28, v16, v18")
    a(f"s_mov_b64 exec, s[{S.EX}:{S.EX+1}]")
    a("v_add_f32 v30, v20, v22")
    a(f"s_cmp_ge_u32 s{S.WAVE}, 4")
    a("s_cbranch_scc1 L_f5")
    a(f"buffer_store_dwordx4 v[28:31], v5, {R4(S.RWS)}, s{S.L1} offen{'' if o.xl2 else ' sc1'}")
    a("s_mov_b64 exec, -1")
    stamp(7)
    a("s_waitcnt vmcnt(1)")
    if o.wdpos == 4:
        a(f"v_add_u32 v6, s{S.T4}, v5")
        for b in range(4):
            a(f"ds_write_b128 v6, {V(80+4*b,4)} offset:{L_WD + 1024*b}")
        a("s_waitcnt lgkmcnt(0)")
    for k in range(8):
        a(f"ds_read_b64_tr_b16 {V(WD_+2*k,2)}, v9 offset:{L_WD + k*512}")
    if o.xsleep0:
        a(f"s_sleep {o.xsleep0}")
    stamp(8)
    a.label("L_fx")
    for i in range(2):
        a(f"buffer_load_dwordx4 {V(64+4*i,4)}, v15, {R4(S.RWS)}, s{S.PO} offen offset:{2048*i} sc1")
    if o.xl2:
        a(f"s_add_u32 s{S.KM}, s{S.KM}, 1")
        a(f"s_cmp_ge_u32 s{S.KM}, {o.xl2}")
        a(f"s_cselect_b32 s{S.T0}, {XCHC}, 0")
        a(f"s_add_u32 s{S.PO}, s{S.PO}, s{S.T0}")
    else:
        a(f"s_add_u32 s{S.PO}, s{S.PO}, {XCHC}")
    a(f"s_min_u32 s{S.PO}, s{S.PO}, s{S.POL}")
    if o.stamps:
        a(f"s_add_u32 s{S.RC}, s{S.RC}, 1")
    spin()
    a("s_cbranch_scc1 L_fx_ok")
    a("s_waitcnt vmcnt(1)")
    a(f"v_bitop3_b32 v20, v65, v67, v{VTAG} bitop3:0x7e")
    a("s_waitcnt vmcnt(0)")
    a("v_add_f32 v16, v64, v68")
    a("v_add_f32 v18, v66, v70")
    a(f"v_bitop3_b32 v21, v69, v71, v{VTAG} bitop3:0x7e")
    a("v_or_b32 v20, v20, v21")
    a("v_cmp_ne_u32 vcc, 0, v20")
    a("v_permlane32_swap_b32 v16, v18")
    a("s_cbranch_vccnz L_fxr")
    a.label("L_fx_ok")
    stamp(9)
    a("v_add_f32 v16, v16, v18")
    rnd(16, 16)
    a("v_mov_b32 v18, v16")
    sigmoid(17, 16)
    a("v_permlane32_swap_b32 v16, v18")
    a("v_mul_f32 v17, v17, v16")
    rnd(17, 17)
    a("v_mul_f32 v17, v17, v18")
    a.nop(2)
    a(f"v_mov_b32_dpp v18, v17 quad_perm:[1,0,3,2] {DPPM}")
    a("v_cvt_pk_bf16_f32 v17, v17, v18")
    a.nop(1)
    for i in range(16):
        a(f"v_readlane_b32 s{S.XS+i}, v17, {2*i}")
    a("s_waitcnt lgkmcnt(0)")
    for i in range(16):
        a(f"v_dot2c_f32_bf16 v{24+(i&1)}, s{S.XS+i}, v{WD_+i}")
    a.nop(3)
    a("v_add_f32 v30, v24, v25")
    for c in range(o.pc):
        if c:
            a(f"s_add_u32 s{S.T2}, s{S.T2}, {PARTC}")
        a(f"buffer_store_dwordx2 v[30:31], v13, {R4(S.RWS)}, s{S.T2} offen sc1")
    stamp(10)
    a.label("L_fend")
    a(f"s_cmp_lg_u32 s{S.FIN}, 0")
    a("s_cbranch_scc1 L_fexit")
    a("s_barrier")
    a("ds_read_b32 v26, v14 offset:8")
    a(f"s_mov_b32 s{S.FIN}, 1")
    a("s_waitcnt lgkmcnt(0)")
    a(f"v_readfirstlane_b32 s{S.T0}, v26")
    a(f"s_cmp_eq_u32 s{S.T0}, s{S.FKEY}")
    a(f"s_mov_b32 s{S.FKEY}, s{S.T0}")
    if o.stamps:
        a(f"s_cselect_b32 s{S.T1}, 0, 64")
        a(f"s_add_u32 s{S.RC}, s{S.RC}, s{S.T1}")
        a(f"s_cmp_eq_u32 s{S.T1}, 0")
    a("s_cbranch_scc0 L_redo")
    a.label("L_fexit")
    endprog()
    a.label("L_f5")
    for c in range(1, o.xc):
        a(f"s_add_u32 s{S.L1}, s{S.L1}, {XCHC}")
        a(f"buffer_store_dwordx4 v[28:31], v5, {R4(S.RWS)}, s{S.L1} offen sc1")
    a("s_mov_b64 exec, -1")
    a("s_branch L_fend")
    a.label("L_fxr")
    a("ds_read_b32 v26, v14 offset:8")
    a("s_waitcnt lgkmcnt(0)")
    a(f"v_readfirstlane_b32 s{S.T0}, v26")
    a(f"s_cmp_eq_u32 s{S.T0}, 0")
    a("s_cbranch_scc1 L_fx")
    a(f"s_cmp_eq_u32 s{S.T0}, s{S.FKEY}")
    a("s_cbranch_scc1 L_fx")
    a("s_branch L_fend")

    a.label("L_fh")
    a("s_waitcnt lgkmcnt(0)")
    if o.fesleep:
        a(f"s_sleep {o.fesleep}")
    tag_load()
    ws_setup()
    a(f"v_mov_b32 v14, {L_FKEY}")
    a("v_mov_b32 v6, 0")
    a("ds_write_b32 v14, v6 offset:8")
    if o.spec:
        poll_setup(WS_KEY + 1024 * (RF * CF + RZ * CZ + R2 * C2), 8, 1)
        a(f"s_sleep {o.spec}")
        a("s_waitcnt vmcnt(0)")
        tag_make()
        stamp(1)
        a(f"buffer_load_dwordx4 v[20:23], v5, {R4(S.RWS)}, s{S.PO} offen sc1")
        poll_setup(WS_KEY, RF, CF)
        a("s_waitcnt vmcnt(0)")
        stamp(2)
        a(f"v_cmp_ne_u32 vcc, v{VTAG}, v21")
        a(f"v_cmp_ne_u32 s[{S.EX}:{S.EX+1}], v{VTAG}, v23")
        a("s_mov_b64 exec, vcc")
        a("v_mov_b32 v20, 0")
        a(f"s_mov_b64 exec, s[{S.EX}:{S.EX+1}]")
        a("v_mov_b32 v22, 0")
        a("s_mov_b64 exec, -1")
        a(f"s_or_b64 s[{S.EY}:{S.EY+1}], vcc, s[{S.EX}:{S.EX+1}]")
        wave_max_key(20)
        lds_put(L_FKEY, 20, tag=True)
        a("s_barrier")
        a(f"s_cmp_eq_u64 s[{S.EY}:{S.EY+1}], 0")
        a("s_cbranch_scc1 L_fh2")
        if o.fsleep0:
            a(f"s_sleep {o.fsleep0}")
        stamp(3)
        poll_granules(5, 20, sleep=o.fsleep)
        stamp(4)
        wave_max_key(20)
        a.label("L_fh2")
        lds_put(L_FKEY + 8, 20)
    else:
        poll_setup(WS_KEY, RF, CF)
        if o.fsleep0:
            a(f"s_sleep {o.fsleep0}")
        a("s_waitcnt vmcnt(0)")
        tag_make()
        stamp(3)
        poll_granules(5, 20, sleep=o.fsleep, bar=o.wdpos == 4)
        stamp(4)
        wave_max_key(20)
        lds_put(L_FKEY, 20, tag=True)
        a("s_barrier")
        lds_put(L_FKEY + 8, 20)
    a("s_barrier")
    endprog()
    a.label("L_end")
    a("s_endpgm")
    return name


def main():
    ap = argparse.ArgumentParser()
    ap.add_argument("-o", required=True)
    for k, d in dict(stamps=0, pc=1, xc=2, zsleep=8, zsleep0=32, psleep=0, psleep0=20, rsleep=3, ackwait=0, hipre=0, tlate=1,
                     mode=0, k2ack=1, k2sleep0=6, zk2sleep0=0, k2sleep=5, fbar=0, cpf=0, cpf0=1, htouch=0, probe=-1, wsoff=0, flate=1, b1a=1, skew=0, gate=8, lds=0, nsgpr=72, prio=1, stag=2, spec=0, b0=2, wthr=0, xpre=0, atouch=10, ftouch=8, xl2=8, npre=3, gfirst=0, isleep0=0, zisleep0=5, b3=1, ztouch=8, zstep=128, touch=0, wdpos=0, wpf=2, fesleep=0, fw0=0, xack=0, fdelay=0, xsleep0=3, fsleep0=46, fsleep=4, spin=17).items():
        ap.add_argument("--" + k, type=int, default=d)
    for k in ("wpol", "wdpol", "xpol", "outpol", "zpol", "only"):
        ap.add_argument("--" + k, default="nt" if k == "outpol" else "")
    ap.add_argument("--mf", default="8,2")
    ap.add_argument("--mz", default="1,3")
    ap.add_argument("--m2", default="8,2")
    ap.add_argument("--hold", default="")
    ap.add_argument("--ev", default="")
    o = ap.parse_args()
    if o.hold:
        o.hold = o.hold.split(":")
    for k in ("mf", "mz", "m2"):
        setattr(o, k, [int(v) for v in getattr(o, k).split(",")])
    for k in ("wpol", "wdpol", "xpol", "outpol", "zpol"):
        setattr(o, k, (" " + getattr(o, k)) if getattr(o, k) not in ("", "def") else "")
    a = Asm()
    name = gen(a, o)
    reg = []
    if o.touch:
        reg.append(("L_ta_start", "L_ta_end", "L_ta", "L_taback", o.touch))
    if o.htouch:
        reg.append(("L_ta_end", "L_zjoin", "L_th", "L_thback", o.htouch))
    if o.atouch:
        reg.append(("L_zjoin", "L_tb_end", "L_tb", "L_tbback", o.atouch))
    if o.ztouch:
        reg.append(("L_tz_start", "L_zend", "L_tz", "L_tzback", o.ztouch))
    if o.ftouch:
        reg.append(("L_tf_start", "L_fend", "L_tf", "L_tfback", o.ftouch))
    if reg:
        insert_stubs(a, reg, step=o.zstep)
    finish(a, name, NVGPR, 102 if (o.stamps or o.hold or o.probe >= 0) else o.nsgpr, NWG, 576, o.lds or LDS_BYTES, o.o)


main()
```

```python
import argparse
from lib import *

NA, NF, NZ = 128, 112, 16
NWG = NA + NF + NZ
WS_E = 0
WS_ALIVE = 4096
WS_KEY = 64 << 10
WS_KEY2 = 128 << 10
WS_XCH = 192 << 10
XCHC = 28 * 4096
WS_PART = 704 << 10
PZ = 56 * 256
PARTC = NZ * PZ
WS_INT = 2 << 20
CS = 32768 + 256
WS_STAMP = 8 << 20
WS_BYTES = 16 << 20
L_TILE = 0
L_U2 = 16384
L_CT = L_U2
UB = 17 * 64
L_MISC = L_U2 + 16 * UB
L_KSL = L_MISC
L_GKEY = L_MISC + 64
L_ZC = L_MISC + 76
L_ZF = L_MISC + 72
L_EXP = L_MISC + 128
L_DUMP = L_MISC + 192
L_XG2 = L_DUMP + 4 * UB + 256
L_M2 = L_XG2 + 4096
L_WV = L_M2 + 4096
L_XT = L_WV + 2048
L_W = 0
L_WD = 32768
L_RED = L_WD + 16384
L_FKEY = L_RED + 2048
LDS_BYTES = 84 * 1024
MF = "v_mfma_f32_16x16x32_bf16"
LOG2E = 0x3fb8aa3b
DPPM = "row_mask:0xf bank_mask:0xf"
HIM = "0xffff0000"
NVGPR = 168


class S:
    WAVE = 3
    PX = 4
    T0, T1, T2, T3, T4, T5 = 6, 7, 8, 9, 10, 11
    EX = 12
    EY = 14
    PWR, PWG, PWU, PWD, PGW, POUT, PDBG, PWS = 16, 18, 20, 22, 24, 26, 28, 30
    L0, L1, SPT, PIE = 32, 33, 34, 35
    RWS, ROUT = 36, 40
    XS = 44
    GKEY, WSEL, WHICH, Z = 44, 45, 46, 47
    SI0, SI1, ID8, BLK = 48, 49, 50, 51
    IDX, ISZ, TC = 54, 55, 53
    SO = 44
    T1C, HH, TD, TM = 56, 57, 58, 59
    FJ, PO, POL, RC, KM, SPIN = 60, 61, 62, 63, 64, 65
    PO0, L10, T20, FKEY, FIN = 40, 41, 42, 43, 35
    ST = 68


def gen(a, o):
    global WS_KEY, WS_XCH, WS_PART, WS_INT, WS_ALIVE, WS_BYTES
    WS_KEY += o.wsoff << 20
    WS_XCH += o.wsoff << 20
    WS_PART += o.wsoff << 20
    WS_INT += o.wsoff << 20
    WS_ALIVE += o.wsoff << 20
    WS_BYTES = max(WS_BYTES, (o.wsoff + 8) << 20)
    name = NAME + "_kernel"
    kernel_head(a, name)
    VE, VTAG = 30, 31
    PXS = f"s[{S.PX}:{S.PX+1}]"

    def stamp(i):
        if o.stamps:
            a(f"s_memrealtime s[{S.ST+2*i}:{S.ST+2*i+1}]")

    def hold(cp):
        if o.hold and o.hold[0] == cp:
            l = a.L("hold")
            a.label(l)
            a("s_sleep 1")
            a("s_memrealtime s[100:101]")
            a("s_waitcnt lgkmcnt(0)")
            a("s_sub_u32 s100, s100, s66")
            a(f"s_cmp_lt_u32 s100, {o.hold[1]}")
            a(f"s_cbranch_scc1 {l}")

    def touch(pre, n, first, step, back=None, tail=None):
        a("s_mov_b64 exec, 0")
        a(f"s_sub_u32 s{S.TC}, s{S.WAVE}, {first + step}")
        a.label(f"{pre}back")
        a(f"s_add_u32 s{S.TC}, s{S.TC}, {step}")
        for k in range(n):
            a(f"s_cmp_eq_u32 s{S.TC}, {k}")
            a(f"s_cbranch_scc1 {pre}{k}")
        a("s_mov_b64 exec, -1")

    def endprog():
        if o.stamps:
            a("s_waitcnt lgkmcnt(0)")
            a(f"s_add_u32 s{S.ST+28}, s{S.RC}, s{S.ST+30}")
            for i in range(16):
                a(f"v_writelane_b32 v166, s{S.ST+2*i}, {i}")
            a("s_mov_b64 exec, 0xffff")
            a(f"s_lshl4_add_u32 s{S.T0}, s2, s{S.WAVE}")
            a(f"s_lshl_b32 s{S.T0}, s{S.T0}, 7")
            a(f"s_add_u32 s{S.T0}, s{S.T0}, {WS_STAMP}")
            a(f"v_lshl_add_u32 v165, v0, 3, s{S.T0}")
            a("v_mov_b32 v167, 0")
            a(f"global_store_dwordx2 v165, v[166:167], s[{S.PWS}:{S.PWS+1}]" + (" sc1" if o.ev else ""))
        a("s_endpgm")

    def spin():
        a(f"s_add_u32 s{S.SPIN}, s{S.SPIN}, 1")
        a(f"s_lshr_b32 s{S.SPT}, s{S.SPIN}, {o.spin}")

    def poll_setup(base, R, C):
        a(f"s_and_b32 s{S.PO}, s2, {R-1}")
        a(f"s_mul_i32 s{S.PO}, s{S.PO}, {1024*C}")
        a(f"s_add_u32 s{S.PO}, s{S.PO}, {base}")
        a(f"s_add_u32 s{S.POL}, s{S.PO}, {1024*(C-1)}")

    def set_exec(n):
        if n >= 64:
            a("s_mov_b64 exec, -1")
        elif n <= 31:
            a(f"s_mov_b64 exec, {(1 << n) - 1:#x}")
        else:
            a("s_mov_b32 exec_lo, -1")
            a(f"s_mov_b32 exec_hi, {(1 << (n - 32)) - 1:#x}")

    RS = 8 if o.spec else 0
    RF, CF = o.mf
    RZ, CZ = o.mz
    R2, C2 = o.m2
    assert RF * CF + RZ * CZ + R2 * C2 + RS <= 64

    def poll_granules(vaddr, vd, sleep=0, step=1024, bar=False):
        l = a.L("poll")
        if sleep:
            a(f"s_branch {l}_1")
        a.label(l)
        if sleep:
            a(f"s_sleep {sleep}")
            a.label(f"{l}_1")
        a(f"buffer_load_dwordx4 {V(vd,4)}, v{vaddr}, {R4(S.RWS)}, s{S.PO} offen sc1")
        a(f"s_add_u32 s{S.PO}, s{S.PO}, {step}")
        a(f"s_min_u32 s{S.PO}, s{S.PO}, s{S.POL}")
        if bar:
            a(f"s_cmp_lg_u32 s{S.SPIN}, 0")
            a(f"s_cbranch_scc1 {l}_2")
            a("s_barrier")
            a.label(f"{l}_2")
        if o.stamps:
            a(f"s_add_u32 s{S.RC}, s{S.RC}, 1")
        spin()
        a("s_waitcnt vmcnt(0)")
        a(f"s_cbranch_scc1 {l}_ok")
        a(f"v_cmp_ne_u32 vcc, v{VTAG}, v{vd+1}")
        a(f"v_cmp_ne_u32 s[{S.EX}:{S.EX+1}], v{VTAG}, v{vd+3}")
        a(f"s_or_b64 vcc, vcc, s[{S.EX}:{S.EX+1}]")
        a(f"s_cbranch_vccnz {l}")
        a.label(f"{l}_ok")

    def wave_max_key(vd):
        a(f"v_max_u32 v{vd}, v{vd}, v{vd+2}")
        for r in ("row_ror:8", "row_ror:4", "row_ror:2", "row_ror:1"):
            a.nop(2)
            a(f"v_max_u32_dpp v{vd}, v{vd}, v{vd} {r} {DPPM}")
        a.nop(2)
        a(f"v_max_u32_dpp v{vd}, v{vd}, v{vd} row_bcast:15 row_mask:0xa bank_mask:0xf")
        a.nop(2)
        a(f"v_max_u32_dpp v{vd}, v{vd}, v{vd} row_bcast:31 row_mask:0xc bank_mask:0xf")

    def lds_put(addr, v, tag=False):
        a(f"v_mov_b32 v9, {addr}")
        a("s_mov_b32 exec_lo, 0")
        a("s_brev_b32 exec_hi, 1")
        if tag:
            a(f"ds_write2_b32 v9, v{v}, v{VTAG} offset1:1")
        else:
            a(f"ds_write_b32 v9, v{v}")
        a("s_mov_b64 exec, -1")
        a("s_waitcnt lgkmcnt(0)")

    def sigmoid(d, s):
        a(f"v_mul_f32 v{d}, {LOG2E | 0x80000000:#x}, v{s}")
        a(f"v_exp_f32 v{d}, v{d}")
        a.nop(1)
        a(f"v_add_f32 v{d}, 1.0, v{d}")
        a(f"v_rcp_f32 v{d}, v{d}")
        a.nop(1)

    def rnd(d, s):
        a(f"v_cvt_pk_bf16_f32 v{d}, v{s}, v{s}")
        a(f"v_and_b32 v{d}, {HIM}, v{d}")

    def ws_setup():
        a.srd(S.RWS, S.PWS, WS_BYTES)
        a(f"s_mov_b32 s{S.SPIN}, 0")

    def tag_load():
        a(f"v_mov_b32 v{VTAG}, 0")
        a(f"global_load_dword v{VE}, v{VTAG}, s[{S.PWS}:{S.PWS+1}]")
        a(f"s_mov_b32 s{S.KM}, 0x9E3779B1")

    def tag_make():
        a(f"v_mul_lo_u32 v{VTAG}, v{VE}, s{S.KM}")
        a(f"v_add_u32 v{VTAG}, 0x7F4A7C15, v{VTAG}")

    a(f"s_load_dwordx2 s[{S.PX}:{S.PX+1}], s[0:1], {KA_X}")
    a(f"s_load_dwordx16 s[16:31], s[0:1], {KA_WR}")
    if o.cpf0:
        a(f"s_cmp_ge_u32 s2, {8*o.cpf0}")
        a("s_cbranch_scc1 L_nocpf0")
        a(f"s_getpc_b64 s[{S.EX}:{S.EX+1}]")
        a.label("L_pc0")
        a("v_lshlrev_b32 v6, 7, v0")
        a(f"v_min_u32 v6, L_end - L_pc0, v6")
        a(f"v_mov_b32 v13, s{S.EX+1}")
        a(f"v_add_co_u32 v12, vcc, s{S.EX}, v6")
        a.nop(2)
        a("v_addc_co_u32 v13, vcc, 0, v13, vcc")
        a("global_load_dword v164, v[12:13], off")
        a.label("L_nocpf0")
    if o.stamps:
        for i in range(1, 16):
            a(f"s_mov_b32 s{S.ST+2*i}, 0")
        a(f"s_mov_b32 s{S.RC}, 0")
    stamp(0)
    if o.hold or o.probe >= 0:
        a("s_memrealtime s[66:67]")
    if o.skew:
        a("s_and_b32 s6, s2, 7")
        a("s_cmp_lg_u32 s6, 5")
        a("s_cbranch_scc1 L_noskew")
        a(f"s_sleep {o.skew}")
        a.label("L_noskew")
    a("v_lshrrev_b32 v1, 6, v0")
    a("v_and_b32 v0, 63, v0")
    a(f"v_readfirstlane_b32 s{S.WAVE}, v1")
    a("v_and_b32 v1, 15, v0")
    a("v_lshrrev_b32 v2, 4, v0")
    a(f"s_and_b32 s{S.T0}, s2, 7")
    a(f"s_sub_u32 s{S.WAVE}, s{S.WAVE}, 1")
    a(f"s_min_u32 s{S.WAVE}, s{S.WAVE}, 8")
    a(f"s_lshr_b32 s{S.T1}, s2, 3")
    a(f"s_cmp_ge_u32 s2, {NA}")
    a("s_cbranch_scc1 L_notA")
    if o.only == "F":
        a("s_endpgm")

    VROW, VG16, VSGN, VTR, VST = 3, 5, 8, 10, 11
    VLD, VUW, VUX, VUR0, VUR1 = 10, 11, 28, 29, 30
    XR, WR, GW, CO = 16, 24, 24, 24
    CM, AOP, ACC = 32, 96, 112
    LD, DA0, DA1, TP, X16, PK = 32, 64, 32, 80, 96, 48
    M1, GA, XG = 100, 148, 152
    Cc, Ss = 64, 68
    UO, PQ, M2 = 32, 48, 64

    def rows_setup(wreg):
        a(f"s_lshl3_add_u32 s{S.T5}, s{S.HH}, s{wreg}")
        a(f"s_lshl_b32 s{S.T5}, s{S.T5}, 7")
        a(f"s_add_u32 s{S.TD}, s{S.T5}, s{S.T1C}")
        a(f"s_sub_u32 s{S.TM}, 2048, s{S.TD}")
        a(f"s_cmp_eq_u32 s{S.TD}, 0")
        a(f"s_cselect_b32 s{S.TM}, 1024, s{S.TM}")
        a(f"s_lshl_b32 s{S.T4}, s{S.TD}, 10")
        a(f"s_lshl_b32 s{S.T5}, s{S.TM}, 10")
        a(f"v_add_u32 v6, s{S.T4}, v{VG16}")
        a(f"v_add_u32 v7, s{S.T5}, v{VG16}")

    def vrow_setup():
        a("v_and_b32 v6, 1, v2")
        a("v_lshlrev_b32 v6, 5, v6")
        a("v_lshl_add_u32 v6, v1, 6, v6")
        a("v_lshrrev_b32 v7, 1, v2")
        a(f"v_lshl_add_u32 v{VROW}, v7, 4, v6")

    def rows_load():
        a(f"global_load_dwordx4 {V(XR,4)}, v6, {PXS}{o.xpol}")
        a(f"global_load_dwordx4 {V(XR+4,4)}, v7, {PXS}{o.xpol}")

    def sgn_setup():
        a(f"v_lshlrev_b32 v{VSGN}, 31, v1")
        a(f"v_lshrrev_b32 v9, 16, v{VSGN}")
        a(f"v_or_b32 v{VSGN}, v{VSGN}, v9")

    def sgn_setup2():
        a(f"v_lshlrev_b32 v{VSGN}, 31, v1")
        a(f"v_lshrrev_b32 v14, 16, v{VSGN}")
        a(f"v_or_b32 v{VSGN}, v{VSGN}, v14")

    def tile_ids():
        a(f"s_bitcmp1_b32 s{S.T1}, 3")
        a(f"s_cselect_b32 s{S.T2}, s{S.T3}, s{S.T2}")
        a(f"s_and_b32 s{S.T3}, s{S.T1}, 7")
        a(f"s_lshl3_add_u32 s{S.BLK}, s{S.T2}, s{S.T3}")
        a(f"s_lshl_b32 s{S.PIE}, s{S.T2}, 5")
        a(f"s_add_u32 s{S.PIE}, s{S.PIE}, s{S.T3}")
        a(f"s_lshl_b32 s{S.PIE}, s{S.PIE}, 6")

    def vst_setup():
        a(f"v_mul_u32_u24 v{VST}, {CS}, v1")
        a(f"v_lshl_add_u32 v{VST}, v2, 4, v{VST}")

    def const_d2():
        R = 40
        a("v_lshlrev_b32 v6, 2, v2")
        a("v_cvt_f32_u32 v7, v1")
        a("v_cvt_f32_u32 v6, v6")
        a("v_mul_f32 v7, 0x3d800000, v7")
        for hf in range(2):
            if hf:
                a("v_add_f32 v7, 0x3d800000, v7")
            a("v_mul_f32 v9, v6, v7")
            for jj in range(4):
                a(f"v_cos_f32 v{Cc+jj}, v9")
                a(f"v_sin_f32 v{Ss+jj}, v9")
                if jj < 3:
                    a("v_add_f32 v9, v9, v7")
            a.nop(1)
            for jj in range(4):
                if hf == 0:
                    a(f"v_cvt_pk_bf16_f32 v{R+jj}, v{Cc+jj}, v{Ss+jj}")
                    a(f"v_cvt_pk_bf16_f32 v{R+8+jj}, -v{Ss+jj}, v{Cc+jj}")
                else:
                    a(f"v_cvt_pk_bf16_f32 v{R+4+jj}, v{Cc+jj}, -v{Ss+jj}")
                    a(f"v_cvt_pk_bf16_f32 v{R+12+jj}, -v{Ss+jj}, -v{Cc+jj}")
        for k in range(4):
            a(f"ds_write_b128 v{VG16}, {V(R+4*k,4)} offset:{L_M2 + 1024*k}")

    a(f"s_add_u32 s{S.T2}, s{S.T0}, 1")
    a(f"s_sub_u32 s{S.T3}, 15, s{S.T0}")
    a(f"s_cmp_eq_u32 s{S.WAVE}, 8")
    a("s_cbranch_scc1 L_ah")
    a(f"s_and_b32 s{S.HH}, s{S.T1}, 1")
    a(f"s_bitcmp1_b32 s{S.T1}, 1")
    a(f"s_cselect_b32 s{S.T4}, s{S.T3}, s{S.T2}")
    a(f"s_lshr_b32 s{S.T5}, s{S.T1}, 2")
    a(f"s_lshl4_add_u32 s{S.T1C}, s{S.T5}, s{S.T4}")
    a(f"v_lshlrev_b32 v{VG16}, 4, v0")
    a(f"v_mov_b32 v{VROW}, 0")
    a(f"s_cmp_lg_u32 s{S.T0}, 7")
    a("s_cbranch_scc1 L_k7")
    a(f"s_lshr_b32 s{S.T5}, s{S.T1}, 1")
    a(f"s_lshl3_add_u32 s{S.T1C}, s{S.T5}, 8")
    a(f"s_mov_b32 s{S.T2}, 0")
    a(f"s_cmp_eq_u32 s2, 127")
    a(f"s_cselect_b32 s{S.T1C}, 0, s{S.T1C}")
    a(f"s_cselect_b32 s{S.HH}, 0, s{S.HH}")
    a.label("L_k7")
    rows_setup(S.WAVE)
    if o.wpf0:
        a(f"s_lshl3_add_u32 s{S.T4}, s{S.WAVE}, s{S.T1}")
        a(f"s_cmp_ge_u32 s{S.T4}, {o.wpf0}")
    a("s_waitcnt lgkmcnt(0)")
    if o.wpf0:
        a("s_cbranch_scc1 L_nowpf0")
        a(f"global_load_dwordx4 v[156:159], v{VG16}, s[{S.PWR}:{S.PWR+1}]")
        a(f"global_load_dword v160, v{VROW}, s[{S.PWS}:{S.PWS+1}]")
        a(f"global_load_dwordx4 v[160:163], v{VG16}, s[{S.PGW}:{S.PGW+1}]")
        a.label("L_nowpf0")
    rows_load()
    stamp(1)
    if o.touch:
        touch("L_ta", o.touch, 0, 8)
    a.label("L_ta_start")
    if o.b0 == 2:
        a("s_barrier")
    tile_ids()

    def tile_addr():
        a(f"s_lshl_b32 s{S.SO}, s{S.WAVE}, 11")
        a(f"s_add_u32 s{S.T5}, s{S.SO}, s{S.BLK}")
        a(f"s_lshl_b32 s{S.T5}, s{S.T5}, 7")
        a(f"s_mov_b32 m0, s{S.SO}")
        a("v_and_b32 v9, 7, v0")
        a("v_bfe_u32 v11, v0, 4, 1")
        a("v_xor_b32 v9, v9, v11")
        a("v_lshrrev_b32 v11, 3, v0")
        a(f"v_lshl_add_u32 v9, v9, 4, s{S.T5}")
        a("v_lshl_add_u32 v11, v11, 14, v9")
        a("v_add_u32 v14, 0x20000, v11")

    def tile_issue():
        a(f"global_load_lds_dwordx4 v11, {PXS}")
        a(f"s_add_u32 m0, s{S.SO}, 1024")
        a.nop(1)
        a(f"global_load_lds_dwordx4 v14, {PXS}")
        stamp(2)

    def tile_dma():
        tile_addr()
        tile_issue()

    if not o.tlate:
        tile_dma()
    C1, S1, K = AOP, AOP + 4, AOP + 8
    a(f"s_lshr_b32 s{S.T0}, s{S.WAVE}, 2")
    a(f"s_and_b32 s{S.T1}, s{S.WAVE}, 1")
    a(f"s_bfe_u32 s{S.T2}, s{S.WAVE}, 0x10001")
    a(f"v_lshl_add_u32 v6, s{S.T0}, 4, v1")
    a(f"s_lshl3_add_u32 s{S.T3}, s{S.T2}, s{S.T1}")
    a(f"s_lshl_b32 s{S.T3}, s{S.T3}, 2")
    a("v_cvt_f32_u32 v6, v6")
    a(f"v_lshl_add_u32 v7, v2, 3, s{S.T3}")
    a("v_mul_f32 v6, 0x3c000000, v6")
    a("v_cvt_f32_u32 v7, v7")
    a("v_mul_f32 v7, v7, v6")
    for j in range(4):
        a(f"v_cos_f32 v{C1+j}, v7")
        a(f"v_sin_f32 v{S1+j}, v7")
        if j < 3:
            a("v_add_f32 v7, v7, v6")
    if o.tlate == 2:
        a(f"global_load_dwordx4 {V(WR,4)}, v{VG16}, s[{S.PWR}:{S.PWR+1}]")
        tile_dma()
    a(f"s_lshl_b32 s{S.T4}, s{S.T0}, 13")
    a(f"s_lshl_b32 s{S.T5}, s{S.T2}, 10")
    a(f"s_lshl3_add_u32 s{S.T5}, s{S.T1}, s{S.T5}")
    a(f"v_add_u32 v15, s{S.T4}, v{VG16}")
    a(f"v_add_u32 v9, s{S.T5}, v15")
    a(f"v_cvt_pk_bf16_f32 v{K+0}, v{C1}, v{C1+1}")
    a(f"v_cvt_pk_bf16_f32 v{K+1}, v{C1+2}, v{C1+3}")
    a(f"v_cvt_pk_bf16_f32 v{K+2}, -v{S1}, -v{S1+1}")
    a(f"v_cvt_pk_bf16_f32 v{K+3}, -v{S1+2}, -v{S1+3}")
    a("v_cmp_eq_f32 vcc, 0, v6")
    a(f"v_cvt_pk_bf16_f32 v{K+4}, v{C1}, -v{S1+1}")
    a(f"v_cvt_pk_bf16_f32 v{K+5}, -v{C1+2}, v{S1+3}")
    a(f"v_cvt_pk_bf16_f32 v{K+6}, -v{S1}, -v{C1+1}")
    a(f"v_cvt_pk_bf16_f32 v{K+7}, v{S1+2}, v{C1+3}")
    a(f"ds_write_b64 v9, {V(K,2)} offset:{L_CT}")
    a(f"ds_write_b64 v9, {V(K+4,2)} offset:{L_CT+4096}")
    a(f"ds_write_b64 v9, {V(K+6,2)} offset:{L_CT+6144}")
    a("s_mov_b64 exec, vcc")
    a(f"v_mov_b32 v{K+2}, 0xbf803f80")
    a(f"v_mov_b32 v{K+3}, 0xbf803f80")
    a("s_mov_b64 exec, -1")
    a(f"ds_write_b64 v9, {V(K+2,2)} offset:{L_CT+2048}")
    if o.tlate == 3:
        tile_addr()
    if o.wrsleep:
        a(f"s_sleep {o.wrsleep}")
    if o.tlate != 2:
        a(f"global_load_dwordx4 {V(WR,4)}, v{VG16}, s[{S.PWR}:{S.PWR+1}]")
    if o.tlate == 1:
        tile_dma()
    a("v_mov_b32 v12, 0")
    a("v_mov_b32 v13, 0")
    stamp(3)
    if o.b0 == 1:
        a("s_waitcnt lgkmcnt(0)")
        a("s_barrier")
        for k in range(2):
            for t in range(4):
                a(f"ds_read_b128 {V(CM+16*t+4*k,4)}, v15 offset:{L_CT + t*2048 + k*1024}")

    def dots(w, fill=()):
        fill = list(fill)

        def pad(n):
            while n and fill:
                a(fill.pop(0))
                n -= 1
            a.nop(n)

        for i in range(4):
            a(f"v_dot2c_f32_bf16 v12, v{XR+i}, v{w+i}")
            a(f"v_dot2c_f32_bf16 v13, v{XR+4+i}, v{w+i}")
        pad(3)
        a("v_permlane32_swap_b32 v12, v13")
        a("v_add_f32 v12, v12, v13")
        a("v_mov_b32 v13, v12")
        pad(2)
        a("v_permlane16_swap_b32 v12, v13")
        a("v_add_f32 v12, v12, v13")
        for r in (8, 4, 2, 1):
            pad(2)
            a(f"v_add_f32_dpp v12, v12, v12 row_ror:{r} {DPPM}")
        rnd(12, 12)
        for x in fill:
            a(x)

    if o.tlate == 3:
        a("s_waitcnt vmcnt(1)")
        tile_issue()
    a(f"s_waitcnt vmcnt({2 if o.tlate else 0})")
    stamp(4)
    dots(WR, [f"s_sub_u32 s{S.T4}, 0xffff, s{S.TD}", f"s_sub_u32 s{S.T5}, 0xffff, s{S.TM}", f"v_mov_b32 v4, s{S.T4}",
              f"v_writelane_b32 v4, s{S.T5}, 32", f"v_mov_b32 v9, {L_KSL}",
              f"v_lshlrev_b32 v{VSGN}, 31, v1", f"v_lshrrev_b32 v7, 16, v{VSGN}", f"v_or_b32 v{VSGN}, v{VSGN}, v7",
              "v_bfe_u32 v6, v0, 2, 2", "v_and_b32 v14, 3, v0", f"v_lshl_add_u32 v14, v14, 1, s{S.T2}",
              f"v_lshl_add_u32 v{VTR}, v2, 3, v6", "v_lshrrev_b32 v6, 1, v6", "v_xor_b32 v14, v14, v6"])
    a("v_ashrrev_i32 v7, 31, v12")
    a("v_or_b32 v7, 0x80000000, v7")
    a("v_xor_b32 v7, v7, v12")
    a(f"v_and_b32 v7, {HIM}, v7")
    a("v_or_b32 v7, v7, v4")
    a("s_mov_b32 exec_lo, 1")
    a("s_mov_b32 exec_hi, 1")
    a("ds_max_u32 v9, v7")
    a("s_mov_b64 exec, -1")
    if o.b1a:
        a("s_waitcnt lgkmcnt(0)")
        hold("K")
        a("s_barrier")
    if o.b0 == 2:
        for k in range(2):
            for t in range(4):
                a(f"ds_read_b128 {V(CM+16*t+4*k,4)}, v15 offset:{L_CT + t*2048 + k*1024}")
    a(f"s_lshl_b32 s{S.T1}, s{S.T1}, 3")
    a(f"v_lshl_add_u32 v14, v14, 4, s{S.T1}")
    a(f"v_lshl_add_u32 v{VTR}, v{VTR}, 7, v14")
    a("v_lshlrev_b32 v9, 4, v2")
    a("s_waitcnt vmcnt(0)" + ("" if o.b0 == 2 else " lgkmcnt(0)"))
    hold("B1")
    a("s_barrier")
    stamp(5)
    if o.b0 == 2:
        a("s_waitcnt lgkmcnt(5)")
    a(f"ds_read_b128 v[28:31], v9 offset:{L_EXP}")
    for k in range(4):
        for h in range(2):
            a(f"ds_read_b64_tr_b16 {V(AOP+4*k+2*h,2)}, v{VTR} offset:{L_TILE + k*4096 + h*512}")
        if k < 2 and not o.b0:
            for t in range(4):
                a(f"ds_read_b128 {V(CM+16*t+4*k,4)}, v15 offset:{L_CT + t*2048 + k*1024}")
        if k == 1 and not o.b0:
            a("s_waitcnt lgkmcnt(9)")
    a(f"global_load_dwordx4 {V(GW,4)}, v{VG16}, s[{S.PGW}:{S.PGW+1}]")
    xors = [f"v_xor_b32 v{CM+t*16+8+4*kp+r}, v{CM+t*16+4*kp+r}, v{VSGN}" for kp in range(2) for t in range(4) for r in range(4)]
    misc = [f"s_mul_i32 s{S.SO}, s{S.T0}, {16*CS}",
            f"s_add_u32 s{S.SO}, s{S.SO}, s{S.PIE}",
            f"s_and_b32 s{S.T4}, s{S.WAVE}, 3",
            f"s_lshl_b32 s{S.T4}, s{S.T4}, 9",
            f"s_add_u32 s{S.SO}, s{S.SO}, s{S.T4}",
            f"s_add_u32 s{S.SO}, s{S.SO}, {WS_INT}",
            f"s_mov_b32 s{S.RWS}, s{S.PWS}", f"s_mov_b32 s{S.RWS+1}, s{S.PWS+1}", f"s_mov_b32 s{S.RWS+2}, {WS_BYTES:#x}",
            f"s_mov_b32 s{S.RWS+3}, 0x20000",
            f"s_add_u32 s{S.SO+1}, s{S.SO}, {32*CS}", f"s_mov_b32 s{S.T5}, 0xfffefffe", f"s_mov_b32 s{S.T4}, 0x07060302",
            f"v_mul_u32_u24 v{VST}, {CS}, v1", f"v_lshl_add_u32 v{VST}, v2, 4, v{VST}",
            ]
    fill = xors + misc
    for k in range(4):
        for t in range(4):
            if o.b0:
                if t == 0:
                    a(f"s_waitcnt lgkmcnt({6-2*k})")
            elif k == 0:
                a(f"s_waitcnt lgkmcnt({13-t})")
            elif k == 1:
                a(f"s_waitcnt lgkmcnt({7-t})")
            elif t == 0:
                a(f"s_waitcnt lgkmcnt({2 if k == 2 else 0})")
            c = "0" if k == 0 else V(ACC + 4 * t, 4)
            a(f"{MF} {V(ACC+4*t,4)}, {V(AOP+4*k,4)}, {V(CM+16*t+4*k,4)}, {c}")
            n = 4 if k < 2 else 2
            if k < 3 or t < 3:
                for _ in range(n):
                    if fill:
                        x = fill.pop(0)
                        if x != "TAGWAIT":
                            a(x)
    for x in fill:
        a(x)
    a("v_mov_b32 v12, 0")
    a("v_mov_b32 v13, 0")
    for h in range(2):
        for i in range(8):
            a(f"v_add_u32 v{ACC+8*h+i}, 0x10000, v{ACC+8*h+i}")
        for i in range(4):
            a(f"v_perm_b32 v{AOP+4*h+i}, v{ACC+8*h+4+i}, v{ACC+8*h+i}, s{S.T4}")
        for i in range(4):
            a(f"v_and_or_b32 v{AOP+4*h+i}, v{AOP+4*h+i}, s{S.T5}, v{28+i}")
        a(f"buffer_store_dwordx4 {V(AOP+4*h,4)}, v{VST}, {R4(S.RWS)}, s{S.SO+h} offen sc1")
    a(f"s_mov_b32 s{S.SPIN}, 0")
    a(f"s_mov_b32 s{S.ISZ}, 0")
    stamp(7)
    if o.only == "P1":
        a("s_endpgm")
    a.label("L_ta_end")

    gwait = [2]

    def gates(full):
        if full:
            a(f"s_waitcnt vmcnt({gwait[0]})")
        dots(GW)
        if full:
            a(f"s_lshl_b32 s{S.T0}, s{S.WAVE}, 11")
            a(f"v_add_u32 v6, s{S.T0}, v{VG16}")
            a(f"ds_write_b128 v6, {V(XR,4)} offset:{L_XT}")
            a(f"ds_write_b128 v6, {V(XR+4,4)} offset:{L_XT+1024}")
            a(f"v_lshl_add_u32 v7, v1, 6, s{S.T0}")
            a("v_lshl_add_u32 v7, v2, 3, v7")
            a("s_waitcnt lgkmcnt(0)")
            for r in range(2):
                a(f"ds_read2_b64 {V(XR+4*r,4)}, v7 offset0:{0} offset1:{4}" if False else f"ds_read_b64 {V(XR+4*r,2)}, v7 offset:{L_XT+1024*r}")
                a(f"ds_read_b64 {V(XR+4*r+2,2)}, v7 offset:{L_XT+1024*r+32}")
            vrow_setup()
        sigmoid(13, 12)
        rnd(13, 13)
        a("v_sub_f32 v14, 1.0, v13")
        rnd(14, 14)
        a(f"v_readlane_b32 s{S.T0}, v13, 0")
        a(f"v_readlane_b32 s{S.T1}, v13, 32")
        a(f"v_readlane_b32 s{S.T2}, v14, 0")
        a(f"v_readlane_b32 s{S.T3}, v14, 32")
        a(f"s_xor_b32 s{S.T4}, s{S.T0}, 0x80000000")
        a(f"s_cmp_eq_u32 s{S.TD}, 0")
        a(f"s_cselect_b32 s{S.T4}, 0, s{S.T4}")
        a(f"s_cselect_b32 s{S.T5}, 0, s{S.T1}")
        if not full:
            return
        a(f"v_mov_b32 v{CO}, s{S.T0}")
        a(f"v_mov_b32 v{CO+1}, s{S.T4}")
        a(f"v_mov_b32 v{CO+2}, s{S.T5}")
        a(f"v_mov_b32 v{CO+3}, s{S.T1}")
        a(f"v_mov_b32 v13, s{S.T2}")
        a(f"v_mov_b32 v14, s{S.T3}")
        a("s_waitcnt lgkmcnt(0)")
        for r in range(2):
            for i in range(4):
                a(f"v_lshlrev_b32 v{XG+8*r+2*i}, 16, v{XR+4*r+i}")
                a(f"v_and_b32 v{XG+8*r+2*i+1}, {HIM}, v{XR+4*r+i}")
            for i in range(8):
                a(f"v_mul_f32 v{XG+8*r+i}, v{13+r}, v{XG+8*r+i}")

    def addr_ur(wreg):
        a(f"s_mul_i32 s{S.T1}, s{wreg}, {2*UB}")
        a("v_bfe_u32 v7, v1, 1, 2")
        a("v_xor_b32 v7, v7, v2")
        a(f"v_lshl_add_u32 v7, v7, 4, s{S.T1}")
        a(f"v_lshl_add_u32 v{VUR0}, v1, 6, v7")
        a("v_sub_u32 v6, 16, v1")
        a("v_bfe_u32 v7, v6, 1, 2")
        a("v_xor_b32 v7, v7, v2")
        a(f"v_lshl_add_u32 v7, v7, 4, s{S.T1}")
        a(f"v_lshl_add_u32 v{VUR1}, v6, 6, v7")

    def addr_p2():
        a("v_lshlrev_b32 v6, 4, v1")
        a(f"v_lshl_add_u32 v{VLD}, v2, 13, v6")
        a(f"v_mul_u32_u24 v6, {4*UB}, v2")
        a("v_bfe_u32 v7, v1, 1, 2")
        a(f"v_xor_b32 v7, s{S.WAVE}, v7")
        a("v_lshl_add_u32 v7, v7, 4, v6")
        a(f"v_lshl_add_u32 v{VUW}, v1, 6, v7")
        a(f"s_lshl4_add_u32 s{S.T1}, s{S.WAVE}, 1024")
        a(f"v_mov_b32 v9, {L_DUMP - L_U2}")
        a(f"v_lshl_add_u32 v{VUX}, v0, 1, v9")
        a(f"v_lshl_add_u32 v7, v1, 1, s{S.T1}")
        a("s_mov_b32 exec_lo, 0x00ff00ff")
        a("s_mov_b32 exec_hi, 0x00ff00ff")
        a(f"v_add_u32 v{VUX}, v7, v6")
        a("s_mov_b64 exec, -1")

    EXP = 96

    def exp_setup():
        a("v_and_b32 v6, 3, v1")
        a("v_lshlrev_b32 v6, 4, v6")
        a(f"ds_read_b128 {V(EXP,4)}, v6 offset:{L_EXP}")
        a("s_waitcnt lgkmcnt(0)")

    def exp_make():
        a("v_lshlrev_b32 v6, 1, v1")
        a(f"v_lshrrev_b32 v6, v6, v{VTAG}")
        a("v_lshlrev_b32 v7, 15, v6")
        a("v_and_b32 v6, 1, v6")
        a("v_and_b32 v7, 0x10000, v7")
        a("v_or_b32 v6, v6, v7")
        a("v_lshlrev_b32 v7, 2, v1")
        a(f"ds_write_b32 v7, v6 offset:{L_EXP}")
        a("s_waitcnt lgkmcnt(0)")

    def const_d1():
        a("v_cvt_f32_u32 v6, v1")
        a(f"s_lshl_b32 s{S.T0}, s{S.WAVE}, 2")
        a(f"v_lshl_add_u32 v7, v2, 6, s{S.T0}")
        a("v_mul_f32 v6, 0x3b000000, v6")
        a("v_cvt_f32_u32 v7, v7")
        a("v_mul_f32 v15, 0x41800000, v6")
        a("v_mul_f32 v7, v7, v6")
        for ib in range(4):
            if ib:
                a("v_add_f32 v7, v7, v6")
            for j in range(4):
                src = "v7" if j == 0 else "v9"
                a(f"v_cos_f32 v{Cc+j}, {src}")
                a(f"v_sin_f32 v{Ss+j}, {src}")
                if j < 3:
                    a(f"v_add_f32 v9, {src}, v15")
            b = M1 + 12 * ib
            a(f"v_mov_b32 v{b+8}, 0")
            for p in range(2):
                a(f"v_cvt_pk_bf16_f32 v{b+p}, v{Cc+2*p}, v{Cc+2*p+1}")
                a(f"v_cvt_pk_bf16_f32 v{b+4+p}, -v{Ss+2*p}, -v{Ss+2*p+1}")
            for p in range(2):
                a(f"v_xor_b32 v{b+2+p}, v{b+p}, v{VSGN}")
                a(f"v_xor_b32 v{b+6+p}, v{b+4+p}, v{VSGN}")
        a("v_lshrrev_b32 v6, 1, v1")
        a(f"v_add_u32 v7, s{S.T0}, v6")
        a("v_and_b32 v9, 1, v1")
        a("v_lshl_add_u32 v7, v9, 3, v7")
        a("v_cvt_f32_u32 v7, v7")
        a("v_mul_f32 v7, 0x3d000000, v7")
        a("v_cos_f32 v7, v7")
        for ib in range(4):
            m = 0x00030003 << (2 * ib)
            a(f"s_mov_b32 exec_lo, {m:#x}")
            a(f"s_mov_b32 exec_hi, {m:#x}")
            a(f"v_cvt_pk_bf16_f32 v{M1+12*ib+8}, v7, -v7")
        a("s_mov_b64 exec, -1")
        for ib in range(4):
            for p in range(1, 4):
                a(f"v_mov_b32 v{M1+12*ib+8+p}, v{M1+12*ib+8}")

    def const_ga():
        a("v_lshrrev_b32 v6, 1, v1")
        a(f"s_lshl_b32 s{S.T0}, s{S.HH}, 10")
        a(f"s_add_u32 s{S.T0}, s{S.T0}, s{S.T1C}")
        a(f"v_lshl_add_u32 v6, v6, 7, s{S.T0}")
        a("v_and_b32 v7, 1, v1")
        a("v_lshlrev_b32 v9, 9, v7")
        l0, ld = a.L("g0"), a.L("gd")
        a(f"s_cmp_lg_u32 s{S.T1C}, 0")
        a(f"s_cbranch_scc1 {l0}")
        a("s_mov_b32 exec_lo, 0x00020002")
        a("s_mov_b32 exec_hi, 0x00020002")
        a("v_mov_b32 v6, 0x400")
        a("v_mov_b32 v9, 0")
        a("s_mov_b64 exec, -1")
        a.label(l0)
        a("v_lshlrev_b32 v7, 2, v2")
        a("v_mad_u32_u24 v9, v7, v6, v9")
        a("v_cvt_f32_u32 v6, v6")
        a("v_cvt_f32_u32 v9, v9")
        a("v_mul_f32 v6, 0x3a000000, v6")
        a("v_mul_f32 v9, 0x3a000000, v9")
        for jj in range(4):
            a(f"v_cos_f32 v{Cc+jj}, v9")
            a(f"v_sin_f32 v{Ss+jj}, v9")
            if jj < 3:
                a("v_add_f32 v9, v9, v6")
        a(f"s_and_b32 s{S.T1}, s{S.T1C}, 63")
        a.nop(1)
        for jj in range(4):
            a(f"v_cvt_pk_bf16_f32 v{GA+jj}, v{Cc+jj}, v{Ss+jj}")
        a(f"s_cmp_lg_u32 s{S.T1}, 0")
        a(f"s_cbranch_scc1 {ld}")
        a(f"s_lshr_b32 s{S.T1}, s{S.T1C}, 2")
        for jj in range(4):
            a(f"v_and_b32 v{GA+jj}, 0xffff, v{GA+jj}")
            a(f"v_lshlrev_b32 v{GA+jj}, s{S.T1}, v{GA+jj}")
        a.label(ld)

    def int_base():
        a(f"s_and_b32 s{S.T1}, s{S.T1C}, 63")
        a(f"s_mul_i32 s{S.L0}, s{S.T1}, {CS}")
        a(f"s_lshl_b32 s{S.T1}, s{S.WAVE}, 9")
        a(f"s_add_u32 s{S.L0}, s{S.L0}, s{S.T1}")
        a(f"s_add_u32 s{S.L0}, s{S.L0}, {WS_INT}")
        a(f"s_add_u32 s{S.L1}, s{S.L0}, 4096")

    def m2_addr():
        a(f"s_cmp_eq_u32 s{S.TD}, 0")
        a(f"s_cselect_b32 s{S.T0}, 0, 2048")
        a(f"v_add_u32 v4, s{S.T0}, v{VG16}")

    def int_loads(ah):
        for jj in range(4):
            so = S.L0 if jj < 2 else S.L1
            a(f"buffer_load_dwordx4 {V(LD+16*ah+4*jj,4)}, v{VLD}, {R4(S.RWS)}, s{so} offen offset:{(jj & 1)*2048 + ah*256} sc1")

    a.srd(S.ROUT, S.POUT, 0x200000)
    a(f"s_cmp_ge_u32 s{S.WAVE}, 4")
    a("s_cbranch_scc1 L_hi0")
    if o.prio & 1:
        a("s_setprio 2")
    pre = [lambda: (addr_p2(), int_base(), const_ga(), exp_setup()), const_d1, lambda: gates(True), lambda: (addr_ur(S.WAVE), m2_addr())]
    if o.gfirst:
        pre[1], pre[2] = pre[2], pre[1]
    for f in pre[:o.npre]:
        f()
    stamp(8)
    a(f"s_waitcnt vmcnt({0 if o.ackwait else 2})")
    if o.b3:
        a("s_barrier")
    if o.isleep0:
        a(f"s_sleep {o.isleep0}")
    hold("B4")
    stamp(9)
    if o.stag:
        a(f"s_cmp_lg_u32 s{S.HH}, 0")
        a("s_cbranch_scc1 L_stg1")
        int_loads(0)
        a(f"s_waitcnt vmcnt({4 - o.stag})")
        int_loads(1)
        a("s_branch L_stg2")
        a.label("L_stg1")
        int_loads(1)
        a(f"s_waitcnt vmcnt({4 - o.stag})")
        int_loads(0)
        a("s_waitcnt vmcnt(0)")
        a.label("L_stg2")
    else:
        int_loads(0)
        int_loads(1)
    gwait[0] = 10
    for f in pre[o.npre:]:
        f()
    gwait[0] = 2
    a.label("L_zjoin")
    stamp(10)
    for ah in range(2):
        a(f"s_waitcnt vmcnt({4-4*ah})")
        a.label(f"L_got{ah}")
        b = LD + 16 * ah
        da = DA1 if ah else DA0
        for ib in range(4):
            for jj in range(4):
                a(f"v_xor_b32 v{TP+4*ib+jj}, v{b+4*jj+ib}, v{EXP+ib}")
            if ib == 0:
                a(f"v_or3_b32 v6, v{TP}, v{TP+1}, v{TP+2}")
                a(f"v_or_b32 v6, v6, v{TP+3}")
            else:
                a(f"v_or3_b32 v6, v6, v{TP+4*ib}, v{TP+4*ib+1}")
                a(f"v_or3_b32 v6, v6, v{TP+4*ib+2}, v{TP+4*ib+3}")
            if ib == 3:
                a("v_and_b32 v6, 0x10001, v6")
                a("v_cmp_ne_u32 vcc, 0, v6")
            if not (ah == 1):
                a(f"{MF} {V(da+4*ib,4)}, {V(TP+4*ib,4)}, {V(GA,4)}, 0")
            else:
                a(f"{MF} {V(da+4*ib,4)}, {V(TP+4*ib,4)}, {V(GA,4)}, 0")
        a(f"s_cbranch_vccnz L_retry{ah}")
        a.label(f"L_fail{ah}")
    stamp(11)

    def d1(jb):
        a(f"{MF} {V(DA0+4*jb,4)}, {V(TP+4*jb,4)}, {V(M1+12*jb,4)}, 0")
        a(f"{MF} {V(DA1+4*jb,4)}, {V(TP+4*jb,4)}, {V(M1+12*jb+4,4)}, 0")
        a(f"{MF} {V(X16,4)}, {V(TP+4*jb,4)}, {V(M1+12*jb+8,4)}, {'0' if jb == 0 else V(X16,4)}")

    for ib in range(4):
        for p in range(4):
            s0 = (DA1 if p >= 2 else DA0) + 4 * ib + 2 * (p & 1)
            a(f"v_cvt_pk_bf16_f32 v{TP+4*ib+p}, v{s0}, v{s0+1}")
        if ib:
            d1(ib - 1)
    d1(3)
    for ib in range(3):
        for i in range(4):
            a(f"v_cvt_pk_bf16_f32 v{PK+4*i+ib}, v{DA0+4*ib+i}, v{DA1+4*ib+i}")
    for i in range(4):
        a(f"v_cvt_pk_bf16_f32 v{PK+4*i+3}, v{DA0+12+i}, v{DA1+12+i}")
        a(f"ds_write_b128 v{VUW}, {V(PK+4*i,4)} offset:{L_U2 + i*UB}")
    a(f"v_cvt_pk_bf16_f32 v{X16}, v{X16}, v{X16+1}")
    a(f"v_cvt_pk_bf16_f32 v{X16+2}, v{X16+2}, v{X16+3}")
    a(f"ds_write_b16 v{VUX}, v{X16} offset:{L_U2}")
    a(f"ds_write_b16_d16_hi v{VUX}, v{X16} offset:{L_U2+UB}")
    a(f"ds_write_b16 v{VUX}, v{X16+2} offset:{L_U2+2*UB}")
    a(f"ds_write_b16_d16_hi v{VUX}, v{X16+2} offset:{L_U2+3*UB}")
    a.label("L_d2")
    a(f"ds_read_b128 {V(M2,4)}, v{VG16} offset:{L_M2}")
    a(f"ds_read_b128 {V(M2+4,4)}, v{VG16} offset:{L_M2+1024}")
    a(f"ds_read_b128 {V(M2+8,4)}, v4 offset:{L_M2}")
    a(f"ds_read_b128 {V(M2+12,4)}, v4 offset:{L_M2+1024}")
    a(f"v_mov_b32 v9, {L_GKEY}")
    a(f"s_cmp_lg_u32 s{S.ISZ}, 0")
    a("s_waitcnt lgkmcnt(0)")
    a("s_cbranch_scc1 L_zsync")
    a("s_barrier")
    stamp(12)
    a("ds_read_b32 v6, v9")
    a(f"ds_read_b128 {V(UO,4)}, v{VUR0} offset:{L_U2}")
    a(f"ds_read_b128 {V(UO+4,4)}, v{VUR1} offset:{L_U2}")
    a(f"ds_read_b128 {V(UO+8,4)}, v{VUR0} offset:{L_U2+UB}")
    a(f"ds_read_b128 {V(UO+12,4)}, v{VUR1} offset:{L_U2+UB}")
    a(f"s_lshl_b32 s{S.T0}, s{S.TD}, 10")
    a(f"s_lshl_b32 s{S.T1}, s{S.TM}, 10")
    for k in range(4):
        a(f"s_waitcnt lgkmcnt({3-k})")
        a(f"{MF} {V(PQ+4*k,4)}, {V(UO+4*k,4)}, {V(M2+4*k,4)}, 0")
    a(f"v_readfirstlane_b32 s{S.GKEY}, v6")
    a(f"s_andn2_b32 s{S.IDX}, 0xffff, s{S.GKEY}")
    for r in range(2):
        for i in range(8):
            a(f"v_fmac_f32 v{XG+8*r+i}, v{CO+2*r}, v{PQ+i}")
    for r, (so, tr) in enumerate(((S.T0, S.TD), (S.T1, S.TM))):
        for i in range(8):
            a(f"v_fmac_f32 v{XG+8*r+i}, v{CO+2*r+1}, v{PQ+8+i}")
        for i in range(4):
            a(f"v_cvt_pk_bf16_f32 v{UO+4*r+i}, v{XG+8*r+2*i}, v{XG+8*r+2*i+1}")
        l = a.L("skip")
        if r == 0:
            stamp(6)
        a(f"s_cmp_eq_u32 s{tr}, s{S.IDX}")
        a(f"s_cbranch_scc1 {l}")
        a(f"v_permlane16_swap_b32 v{UO+4*r}, v{UO+4*r+2}")
        a(f"v_permlane16_swap_b32 v{UO+4*r+1}, v{UO+4*r+3}")
        a(f"buffer_store_dwordx4 {V(UO+4*r,4)}, v{VROW}, {R4(S.ROUT)}, s{so} offen{o.outpol}")
        a.label(l)
    a.label("L_tb_end")
    stamp(13)
    if o.stamps:
        a("s_waitcnt vmcnt(0)")
        stamp(15)
    endprog()

    for ah in range(2):
        a.label(f"L_retry{ah}")
        if o.stamps:
            a(f"s_add_u32 s{S.RC}, s{S.RC}, {1 << (8*ah)}")
        if o.rsleep:
            a(f"s_sleep {o.rsleep}")
        spin()
        a(f"s_cbranch_scc1 L_fail{ah}")
        int_loads(ah)
        a("s_waitcnt vmcnt(0)")
        a(f"s_branch L_got{ah}")

    a.label("L_hi0")
    if o.b3:
        if o.ackwait:
            a("s_waitcnt vmcnt(0)")
        a("s_barrier")
    a.label("L_hi1")
    if o.atouch:
        touch("L_tb", o.atouch, 4, 4)
        a(f"s_cmp_lg_u32 s{S.ISZ}, 0")
        a("s_cbranch_scc1 L_z0b")
    gates(True)
    addr_ur(S.WAVE)
    m2_addr()
    stamp(10)
    a("s_branch L_d2")

    a.label("L_ah")
    if o.prio & 2:
        a("s_setprio 3")
    if o.cpf:
        a(f"s_cmp_ge_u32 s{S.T1}, {o.cpf}")
        a("s_cbranch_scc1 L_nocpf")
        a(f"s_getpc_b64 s[{S.EX}:{S.EX+1}]")
        a.label("L_pc")
        a(f"s_sub_u32 s{S.EX}, s{S.EX}, L_pc - {name}")
        a(f"s_subb_u32 s{S.EX+1}, s{S.EX+1}, 0")
        a("v_lshlrev_b32 v6, 7, v0")
        a("v_add_u32 v7, 0x2000, v6")
        a(f"v_min_u32 v7, L_end - {name}, v7")
        a(f"v_mov_b32 v13, s{S.EX+1}")
        a(f"v_mov_b32 v15, s{S.EX+1}")
        a(f"v_add_co_u32 v12, vcc, s{S.EX}, v6")
        a.nop(2)
        a("v_addc_co_u32 v13, vcc, 0, v13, vcc")
        a(f"v_add_co_u32 v14, vcc, s{S.EX}, v7")
        a.nop(2)
        a("v_addc_co_u32 v15, vcc, 0, v15, vcc")
        a("global_load_dword v10, v[12:13], off")
        a("global_load_dword v11, v[14:15], off")
        a.label("L_nocpf")
    a(f"v_lshlrev_b32 v{VG16}, 4, v0")
    a(f"v_mov_b32 v{VTAG}, 0")
    a(f"v_mov_b32 v9, {L_KSL}")
    a(f"ds_write_b32 v9, v{VTAG}")
    a(f"s_mov_b32 s{S.KM}, 0x9E3779B1")
    a(f"s_cmp_ge_u32 s{S.T1}, {o.wpf}")
    a("s_waitcnt lgkmcnt(0)")
    a("s_cbranch_scc1 L_nowpf")
    a(f"global_load_dwordx4 v[32:35], v{VG16}, s[{S.PWR}:{S.PWR+1}]")
    a(f"global_load_dword v{VE}, v{VTAG}, s[{S.PWS}:{S.PWS+1}]")
    a(f"global_load_dwordx4 v[36:39], v{VG16}, s[{S.PGW}:{S.PGW+1}]")
    a.label("L_nowpf")
    stamp(1)
    a("v_lshlrev_b32 v14, 10, v0")
    a(f"s_lshl_b32 s{S.ID8}, s2, 3")
    a(f"s_add_u32 s{S.ID8}, s{S.ID8}, {WS_KEY}")
    ws_setup()

    if o.b0 == 2:
        a("s_barrier")
    const_d2()
    a(f"global_load_dword v{VE}, v{VTAG}, s[{S.PWS}:{S.PWS+1}]")
    a("s_waitcnt lgkmcnt(0)")
    stamp(2)
    if o.b0 == 1:
        a("s_barrier")
    a(f"v_mov_b32 v9, {L_KSL}")
    a("s_waitcnt vmcnt(0)")
    tag_make()
    exp_make()
    a(f"v_mov_b32 v9, {L_KSL}")
    stamp(3)
    a("s_barrier")
    a(f"ds_read_b32 v{VE}, v9")
    set_exec(RF * CF + RZ * CZ + R2 * C2 + RS)
    a("s_waitcnt lgkmcnt(0)")
    a(f"buffer_store_dwordx2 v[{VE}:{VTAG}], v14, {R4(S.RWS)}, s{S.ID8} offen sc1")
    if o.probe >= 0:
        a("s_mov_b64 exec, 1")
        a("v_mov_b32 v40, s66")
        a(f"v_mov_b32 v41, v{VTAG}")
        a(f"s_add_u32 s{S.T0}, s{S.ID8}, {WS_KEY2 - WS_KEY}")
        a(f"buffer_store_dwordx2 v[40:41], v14, {R4(S.RWS)}, s{S.T0} offen sc1")
    a("s_mov_b64 exec, -1")
    stamp(5)
    if o.b1a:
        a("s_barrier")
    if o.only == "P1":
        a("s_endpgm")
    if o.htouch:
        touch("L_th", o.htouch, 8, 1)
    poll_setup(WS_KEY + 1024 * (RF * CF + RZ * CZ), R2, C2)
    a("s_waitcnt vmcnt(0)")
    if not o.gate and o.b3:
        a("s_barrier")
    if o.k2sleep0:
        a(f"s_sleep {o.k2sleep0}")
    stamp(8)
    poll_granules(VG16, 32, sleep=o.k2sleep)
    stamp(9)
    wave_max_key(32)
    lds_put(L_GKEY, 32)
    if o.gate:
        a(f"s_sleep {o.gate}")
        a("s_barrier")
        if o.probe >= 0:
            a("s_cmp_lg_u32 s2, 9")
            a("s_cbranch_scc1 L_noprobe")
            a("s_barrier")
            a(f"s_mov_b32 s{S.PO}, {WS_KEY2}")
            a(f"s_mov_b32 s{S.POL}, {WS_KEY2}")
            poll_granules(VG16, 32, sleep=4)
            for i in range(8):
                a(f"v_readlane_b32 s{70+i}, v{32 + 2*(i&1)}, {i>>1}")
            a("s_mov_b32 s80, s70")
            for i in range(1, 8):
                a(f"s_sub_u32 s81, s{70+i}, s80")
                a("s_cmp_lt_i32 s81, 0")
                a(f"s_cselect_b32 s80, s{70+i}, s80")
            if o.probe < 8:
                a(f"s_sub_u32 s81, s{70+o.probe}, s80")
            else:
                a("s_mov_b32 s81, 0")
                for i in range(8):
                    a(f"s_sub_u32 s82, s{70+i}, s80")
                    a("s_max_u32 s81, s81, s82")
            a("s_mul_i32 s81, s81, 10")
            a("s_add_u32 s81, s81, 800")
            a.label("L_pw")
            a("s_sleep 1")
            a("s_memrealtime s[100:101]")
            a("s_waitcnt lgkmcnt(0)")
            a("s_sub_u32 s100, s100, s80")
            a("s_cmp_lt_u32 s100, s81")
            a("s_cbranch_scc1 L_pw")
            a.label("L_noprobe")
        if o.hold and o.hold[0] == "endA":
            a(f"s_sub_u32 s{S.T0}, s2, {o.hold[2]}")
            a(f"s_cmp_ge_u32 s{S.T0}, {o.hold[3]}")
            a("s_cbranch_scc1 L_nohold")
            a("s_barrier")
            hold("endA")
            a.label("L_nohold")
        endprog()
    a("s_barrier")
    endprog()

    a.label("L_notA")
    if o.only == "AA":
        a("s_endpgm")
    a(f"s_lshl4_add_u32 s{S.FJ}, s{S.T0}, s{S.T1}")
    a(f"s_sub_u32 s{S.FJ}, s{S.FJ}, 16")
    a(f"s_cmp_ge_u32 s2, {NWG}")
    a("s_cbranch_scc1 L_end")
    a(f"s_cmp_lt_u32 s{S.T0}, 4")
    a("s_cbranch_scc1 L_F")
    a(f"s_mul_i32 s{S.FJ}, s{S.T0}, 12")
    a(f"s_add_u32 s{S.FJ}, s{S.FJ}, s{S.T1}")
    a(f"s_cmp_lt_u32 s{S.T1}, 28")
    a("s_cbranch_scc1 L_F")
    a(f"s_mov_b32 s{S.ISZ}, 1")
    a(f"s_lshl2_add_u32 s{S.Z}, s{S.T0}, s{S.T1}")
    a(f"s_sub_u32 s{S.Z}, s{S.Z}, 44")
    vrow_setup()
    a(f"v_lshlrev_b32 v{VG16}, 4, v0")
    sgn_setup()
    a("s_waitcnt lgkmcnt(0)")
    ws_setup()
    a.srd(S.ROUT, S.POUT, 0x200000)
    addr_p2()
    a(f"s_cmp_eq_u32 s{S.WAVE}, 8")
    a("s_cbranch_scc1 L_zh")
    a(f"s_cmp_ge_u32 s{S.WAVE}, 4")
    a("s_cbranch_scc1 L_z0")
    const_d1()
    a("s_branch L_z1")
    a.label("L_z0")
    if o.atouch:
        a("s_branch L_hi1")
    a.label("L_z0b")
    if o.ztouch:
        touch("L_tz", o.ztouch, 4, 4)
    a.label("L_z1")
    a(f"v_mov_b32 v9, {L_KSL}")
    a("v_mov_b32 v12, 0")
    a("v_mov_b32 v13, 0")
    a("s_barrier")
    a(f"ds_read_b64 v[{VE}:{VTAG}], v9")
    a(f"ds_read_b128 {V(GW,4)}, v{VG16} offset:{L_WV+1024}")
    a("s_waitcnt lgkmcnt(0)")
    a(f"v_readfirstlane_b32 s{S.GKEY}, v{VE}")
    a(f"s_andn2_b32 s{S.IDX}, 2047, s{S.GKEY}")
    a(f"s_and_b32 s{S.T0}, s{S.IDX}, 127")
    a(f"s_cmp_gt_u32 s{S.T0}, 64")
    a(f"s_cselect_b32 s{S.WHICH}, 1, 0")
    a(f"s_and_b32 s{S.T0}, s{S.IDX}, {1024 + 63}")
    a(f"s_cmp_eq_u32 s{S.T0}, 1024")
    a(f"s_cselect_b32 s{S.WHICH}, 1, s{S.WHICH}")
    a(f"s_sub_u32 s{S.T0}, 2048, s{S.IDX}")
    a(f"s_cmp_lg_u32 s{S.WHICH}, 0")
    a(f"s_cselect_b32 s{S.T0}, s{S.T0}, s{S.IDX}")
    a(f"s_cmp_eq_u32 s{S.T0}, 1024")
    a(f"s_cselect_b32 s{S.T0}, 0, s{S.T0}")
    a(f"s_and_b32 s{S.T1C}, s{S.T0}, 127")
    a(f"s_lshr_b32 s{S.HH}, s{S.T0}, 10")
    a(f"s_bfe_u32 s{S.WSEL}, s{S.T0}, 0x30007")
    rows_setup(S.WSEL)
    a(f"s_cmp_ge_u32 s{S.WAVE}, 4")
    a("s_cbranch_scc1 L_z4")
    int_base()
    if o.zisleep0:
        a(f"s_sleep {o.zisleep0}")
    stamp(9)
    int_loads(0)
    int_loads(1)
    const_ga()
    exp_setup()
    addr_ur(S.WSEL)
    m2_addr()
    a("v_lshlrev_b32 v6, 7, v1")
    a(f"v_lshl_add_u32 v15, v2, 4, v6")
    a("s_branch L_zjoin")
    a.label("L_z4")
    a(f"s_cmp_ge_u32 s{S.WAVE}, 6")
    a("s_cbranch_scc1 L_zend2")
    rows_load()
    a(f"s_sub_u32 s{S.T0}, s{S.WAVE}, 4")
    a(f"s_lshl1_add_u32 s{S.T1}, s{S.Z}, s{S.T0}")
    a(f"s_lshl_b32 s{S.T1}, s{S.T1}, 5")
    a("v_and_b32 v6, 7, v0")
    a(f"v_lshl_add_u32 v10, v6, 2, s{S.T1}")
    a(f"s_lshl_b32 s{S.T2}, s{S.IDX}, 10")
    a(f"v_add_u32 v7, s{S.T2}, v10")
    a(f"global_load_dword v35, v7, {PXS}")
    a("v_lshlrev_b32 v10, 1, v10")
    a("v_lshrrev_b32 v7, 3, v0")
    a("v_lshlrev_b32 v7, 8, v7")
    a("v_lshl_add_u32 v11, v6, 4, v7")
    a(f"s_mul_i32 s{S.SI0}, s{S.Z}, {PZ}")
    a(f"s_lshl_b32 s{S.T0}, s{S.T0}, 7")
    a(f"s_add_u32 s{S.SI0}, s{S.SI0}, s{S.T0}")
    a(f"s_add_u32 s{S.SI0}, s{S.SI0}, {WS_PART}")
    a(f"s_add_u32 s{S.SI1}, s{S.SI0}, {(o.pc-1)*PARTC}")
    a(f"s_and_b32 s{S.T0}, s{S.GKEY}, 0xffff0000")
    a(f"s_xor_b32 s{S.T1}, s{S.T0}, 0x80000000")
    a(f"s_xor_b32 s{S.T3}, s{S.T0}, 0xffff0000")
    a(f"s_bitcmp1_b32 s{S.T0}, 31")
    a(f"s_cselect_b32 s{S.T0}, s{S.T1}, s{S.T3}")
    a(f"v_mov_b32 v15, s{S.T0}")
    sigmoid(15, 15)
    rnd(15, 15)
    a("s_waitcnt vmcnt(0)")
    gates(False)
    a(f"s_cmp_lg_u32 s{S.WHICH}, 0")
    a(f"s_cselect_b32 s{S.T2}, s{S.T3}, s{S.T2}")
    a(f"s_cselect_b32 s{S.T0}, s{S.T5}, s{S.T0}")
    a(f"s_cselect_b32 s{S.T4}, s{S.T1}, s{S.T4}")
    a(f"v_xor_b32 v{VTAG}, s{S.IDX}, v{VTAG}")
    a(f"v_mov_b32 v36, s{S.T2}")
    a(f"v_mov_b32 v{CO}, s{S.T0}")
    a(f"v_mov_b32 v{CO+1}, s{S.T4}")
    a("v_lshlrev_b32 v34, 16, v35")
    a(f"v_and_b32 v35, {HIM}, v35")
    if o.psleep0:
        a(f"s_sleep {o.psleep0}")
    hold("pp")
    a(f"v_mov_b32 v9, {L_ZF}")
    a.label("L_tz_start")
    stamp(10)
    if o.psleep:
        a("s_branch L_zp1")
    a.label("L_zp")
    if o.psleep:
        a(f"s_sleep {o.psleep}")
        a.label("L_zp1")
    for i in range(7):
        if i and i % 2 == 0:
            a(f"s_add_u32 s{S.T0}, s{S.SI0}, {2048*i}")
        a(f"buffer_load_dwordx4 {V(40+4*i,4)}, v11, {R4(S.RWS)}, s{S.T0 if i >= 2 else S.SI0} offen offset:{2048*(i&1)} sc1")
    a(f"s_add_u32 s{S.SI0}, s{S.SI0}, {PARTC}")
    a(f"s_min_u32 s{S.SI0}, s{S.SI0}, s{S.SI1}")
    if o.stamps:
        a(f"s_add_u32 s{S.RC}, s{S.RC}, 256")
    spin()
    a("s_cbranch_scc1 L_zp_ok")
    for i in range(7):
        a(f"s_waitcnt vmcnt({6-i})")
        a(f"v_bitop3_b32 v{37 if i == 0 else 38 + (i & 1)}, v{41+4*i}, v{43+4*i}, v{VTAG} bitop3:0x7e")
        if i:
            a(f"v_add_f32 v40, v40, v{40+4*i}")
            a(f"v_add_f32 v42, v42, v{42+4*i}")
        if i and i % 2 == 0:
            a("v_or3_b32 v37, v37, v38, v39")
    a("v_cmp_ne_u32 vcc, 0, v37")
    a.nop(1)
    a("s_cbranch_vccnz L_zp")
    a.label("L_zp_ok")
    a("ds_read_b32 v12, v9")
    a(f"ds_read_b64 v[32:33], v10 offset:{L_XG2}")
    a(f"ds_read_b64 v[16:17], v10 offset:{L_XG2+2048}")
    a("v_lshrrev_b32 v11, 1, v10")
    a(f"s_lshl_b32 s{S.T2}, s{S.IDX}, 10")
    a("s_waitcnt vmcnt(0)")
    stamp(11)
    a(f"v_add_f32_dpp v40, v40, v40 row_ror:8 {DPPM}")
    a(f"v_add_f32_dpp v42, v42, v42 row_ror:8 {DPPM}")
    a.nop(1)
    a.nop(1)
    a("v_permlane16_swap_b32 v40, v42")
    a("v_add_f32 v40, v40, v42")
    a("v_mov_b32 v42, v40")
    a.nop(2)
    a("v_permlane32_swap_b32 v40, v42")
    a("v_add_f32 v40, v40, v42")
    a("v_mov_b32 v42, v40")
    a.nop(2)
    a("v_permlane16_swap_b32 v40, v42")
    a("v_cvt_pk_bf16_f32 v41, v40, v42")
    a("v_lshlrev_b32 v40, 16, v41")
    a(f"v_and_b32 v42, {HIM}, v41")
    a("v_mul_f32 v40, v40, v15")
    a("v_mul_f32 v42, v42, v15")
    a("v_cvt_pk_bf16_f32 v41, v40, v42")
    a("v_lshlrev_b32 v40, 16, v41")
    a(f"v_and_b32 v42, {HIM}, v41")
    a("v_add_f32 v40, v40, v34")
    a("v_add_f32 v42, v42, v35")
    a("v_cvt_pk_bf16_f32 v41, v40, v42")
    a("v_lshlrev_b32 v40, 16, v41")
    a(f"v_and_b32 v42, {HIM}, v41")
    a.label("L_zw")
    a("s_waitcnt lgkmcnt(0)")
    a("v_cmp_eq_u32 vcc, 0, v12")
    a(f"v_mul_f32 v32, v{CO}, v32")
    a(f"v_mul_f32 v33, v{CO}, v33")
    a("s_cbranch_vccz L_zw_ok")
    spin()
    a("s_cbranch_scc1 L_zw_ok")
    a("ds_read_b32 v12, v9")
    a(f"ds_read_b64 v[32:33], v10 offset:{L_XG2}")
    a(f"ds_read_b64 v[16:17], v10 offset:{L_XG2+2048}")
    a("s_branch L_zw")
    a.label("L_zw_ok")
    a(f"v_fmac_f32 v32, v{CO+1}, v16")
    a(f"v_fmac_f32 v33, v{CO+1}, v17")
    a("v_fmac_f32 v32, v40, v36")
    a("v_fmac_f32 v33, v42, v36")
    a("v_cvt_pk_bf16_f32 v32, v32, v33")
    a("s_mov_b64 exec, 0xff")
    a(f"buffer_store_dword v32, v11, {R4(S.ROUT)}, s{S.T2} offen{o.zpol}")
    a("s_mov_b64 exec, -1")
    stamp(13)
    if o.stamps:
        a("s_waitcnt vmcnt(0)")
        stamp(15)
    a("s_barrier")
    endprog()

    a.label("L_zsync")
    a(f"v_mov_b32 v9, {L_ZC}")
    a("v_mov_b32 v6, 1")
    a("s_mov_b64 exec, 1")
    a("ds_add_u32 v9, v6")
    a("s_mov_b64 exec, -1")
    a(f"s_cmp_lg_u32 s{S.WAVE}, 0")
    a("s_cbranch_scc1 L_zend")
    a.label("L_zs")
    a("ds_read_b32 v6, v9")
    spin()
    a("s_waitcnt lgkmcnt(0)")
    a("s_cbranch_scc1 L_zs_ok")
    a("v_cmp_ne_u32 vcc, 4, v6")
    a.nop(1)
    a("s_cbranch_vccnz L_zs")
    a.label("L_zs_ok")
    stamp(12)
    a(f"ds_read_b128 {V(UO,4)}, v{VUR0} offset:{L_U2}")
    a(f"ds_read_b128 {V(UO+4,4)}, v{VUR1} offset:{L_U2}")
    a(f"ds_read_b128 {V(UO+8,4)}, v{VUR0} offset:{L_U2+UB}")
    a(f"ds_read_b128 {V(UO+12,4)}, v{VUR1} offset:{L_U2+UB}")
    for k in range(4):
        a(f"s_waitcnt lgkmcnt({3-k})")
        a(f"{MF} {V(PQ+4*k,4)}, {V(UO+4*k,4)}, {V(M2+4*k,4)}, 0")
    a.nop(3)
    for k in range(4):
        if k == 2:
            a.nop(2)
        a(f"ds_write_b128 v15, {V(PQ+4*k,4)} offset:{L_XG2 + 64*(k&1) + 2048*(k>>1)}")
    a(f"v_mov_b32 v9, {L_ZF}")
    a("s_waitcnt lgkmcnt(0)")
    a("ds_write_b32 v9, v9")
    a("s_waitcnt lgkmcnt(0)")
    stamp(13)
    a.label("L_zend")
    endprog()
    a.label("L_zend2")
    if o.hold and o.hold[0] == "end":
        a("s_barrier")
    hold("end")
    if o.ev:
        lo, n, w, st, med = [int(v) for v in o.ev.split(":")]
        a("s_cmp_lg_u32 s2, 255")
        a("s_cbranch_scc1 L_noev")
        a(f"s_cmp_lg_u32 s{S.WAVE}, 7")
        a("s_cbranch_scc1 L_noev")
        a("s_barrier")
        a.label("L_ev0")
        a("s_sleep 4")
        a("s_memrealtime s[100:101]")
        a("s_waitcnt lgkmcnt(0)")
        a(f"s_sub_u32 s100, s100, s{S.ST}")
        a("s_cmp_lt_u32 s100, 750")
        a("s_cbranch_scc1 L_ev0")
        a("v_lshlrev_b32 v6, 11, v0")
        a(f"v_add_u32 v7, {WS_STAMP + 8*128}, v6")
        a(f"global_load_dword v40, v7, s[{S.PWS}:{S.PWS+1}] sc1")
        a(f"v_add_u32 v7, {WS_STAMP + lo*2048 + w*128 + st*8}, v6")
        for q in range(n // 64):
            a(f"global_load_dword v{44+q}, v7, s[{S.PWS}:{S.PWS+1}] sc1")
            a(f"v_add_u32 v7, {64*2048}, v7")
        a("s_waitcnt vmcnt(0)")
        a(f"v_subrev_u32 v40, s{S.ST}, v40")
        a("v_sub_u32 v40, 1000, v40")
        a("v_mov_b32 v42, v40")
        wave_max_key(40)
        a("v_mov_b32 v41, 0")
        for q in range(n // 64):
            a(f"v_subrev_u32 v{44+q}, s{S.ST}, v{44+q}")
            a(f"v_cmp_gt_u32 vcc, 1000, v{44+q}")
            a.nop(2)
            a(f"v_cndmask_b32 v{44+q}, 0, v{44+q}, vcc")
            a(f"v_max_u32 v41, v41, v{44+q}")
        a("v_mov_b32 v43, v41")
        wave_max_key(41)
        a.nop(2)
        a("v_readlane_b32 s6, v40, 63")
        a("v_readlane_b32 s7, v41, 63")
        a("s_sub_u32 s6, s6, 1000")
        a("s_min_u32 s6, s6, 300")
        a("s_add_u32 s7, s7, s6")
        a("s_mul_i32 s7, s7, 4")
        a("s_add_u32 s7, s7, 900")
        a("s_sub_u32 s7, s7, s6")
        a.label("L_ev1")
        a("s_sleep 1")
        a("s_memrealtime s[100:101]")
        a("s_waitcnt lgkmcnt(0)")
        a(f"s_sub_u32 s100, s100, s{S.ST}")
        a("s_cmp_lt_u32 s100, s7")
        a("s_cbranch_scc1 L_ev1")
        a.label("L_noev")
    endprog()

    a.label("L_zh")
    a(f"v_mov_b32 v9, {L_ZF}")
    a("v_mov_b32 v6, 0")
    a("ds_write2_b32 v9, v6, v6 offset1:1")
    const_d2()
    a(f"s_mov_b32 m0, {L_WV+1024}")
    tag_load()
    a(f"global_load_lds_dwordx4 v{VG16}, s[{S.PGW}:{S.PGW+1}]")
    a("s_waitcnt vmcnt(0)")
    tag_make()
    exp_make()
    poll_setup(WS_KEY + 1024 * RF * CF, RZ, CZ)
    if o.zsleep0:
        a(f"s_sleep {o.zsleep0}")
    stamp(1)
    poll_granules(VG16, 32, sleep=o.zsleep)
    stamp(2)
    wave_max_key(32)
    lds_put(L_KSL, 32, tag=True)
    a("s_barrier")
    a(f"s_lshl_b32 s{S.T0}, s{S.Z}, 2")
    a(f"s_add_u32 s{S.T0}, s{S.T0}, {WS_ALIVE}")
    a("s_mov_b64 exec, 1")
    a(f"buffer_store_dword v{VTAG}, v0, {R4(S.RWS)}, s{S.T0} offen sc1")
    a("s_mov_b64 exec, -1")
    a(f"s_cmp_lg_u32 s{S.Z}, 0")
    a("s_cbranch_scc1 L_zend")
    a("s_mov_b64 exec, 0xffff")
    a("v_lshlrev_b32 v6, 2, v0")
    a(f"s_mov_b32 s{S.T0}, {WS_ALIVE}")
    a("s_waitcnt vmcnt(0)")
    a("s_sleep 24")
    a.label("L_za")
    a(f"buffer_load_dword v7, v6, {R4(S.RWS)}, s{S.T0} offen sc1")
    spin()
    a("s_waitcnt vmcnt(0)")
    a("s_cbranch_scc1 L_za_ok")
    a(f"v_cmp_ne_u32 vcc, v{VTAG}, v7")
    a.nop(1)
    a("s_cbranch_vccnz L_za")
    a.label("L_za_ok")
    a("s_mov_b64 exec, 1")
    a(f"v_add_u32 v9, 1, v{VE}")
    a("s_barrier")
    a(f"buffer_store_dword v9, v6, {R4(S.RWS)}, 0 offen sc1")
    a("s_mov_b64 exec, -1")
    a("s_branch L_zend")

    a.label("L_F")
    if o.only == "A":
        a("s_endpgm")
    WG_, WD_ = 32, 48
    a("v_lshlrev_b32 v5, 4, v0")
    a(f"s_cmp_eq_u32 s{S.WAVE}, 8")
    a("s_cbranch_scc1 L_fh")
    a(f"s_and_b32 s{S.T0}, s{S.FJ}, 3")
    a(f"s_lshr_b32 s{S.T1}, s{S.WAVE}, 1")
    a(f"s_lshl2_add_u32 s{S.L0}, s{S.T0}, s{S.T1}")
    a(f"s_mul_i32 s{S.T2}, s{S.L0}, {32*3584}")
    a(f"s_lshr_b32 s{S.L1}, s{S.FJ}, 2")
    a(f"s_lshl_b32 s{S.T3}, s{S.L1}, 7")
    a(f"s_add_u32 s{S.T2}, s{S.T2}, s{S.T3}")
    a("v_lshrrev_b32 v6, 3, v0")
    a("v_mul_u32_u24 v6, 3584, v6")
    a("v_and_b32 v7, 7, v0")
    a("v_bfe_u32 v8, v0, 4, 1")
    a("v_lshlrev_b32 v8, 2, v8")
    a("v_xor_b32 v4, v7, v8")
    a(f"v_lshl_add_u32 v7, v4, 4, s{S.T2}")
    a("v_add_u32 v3, v6, v7")
    a(f"s_lshl_b32 s{S.T4}, s{S.WAVE}, 12")
    a(f"s_mov_b32 m0, s{S.T4}")
    def w_dma():
        a(f"s_bitcmp1_b32 s{S.WAVE}, 0")
        a("s_waitcnt lgkmcnt(0)")
        a(f"s_cselect_b32 s{S.PWG}, s{S.PWU}, s{S.PWG}")
        a(f"s_cselect_b32 s{S.PWG+1}, s{S.PWU+1}, s{S.PWG+1}")
        if o.fdelay:
            a(f"s_sleep {o.fdelay}")
        for b in range(4):
            if b:
                a(f"s_add_u32 m0, s{S.T4}, {1024*b}")
                a(f"v_add_u32 v3, {8*3584}, v3")
            if o.wthr and b >= o.wthr:
                a(f"s_waitcnt vmcnt({o.wthr - 1})")
            a(f"global_load_lds_dwordx4 v3, s[{S.PWG}:{S.PWG+1}]{o.wpol}")
        ws_setup()
        stamp(1)

    if not o.flate:
        w_dma()
    a("v_bfe_u32 v6, v0, 2, 2")
    a("v_and_b32 v7, 3, v0")
    a("v_lshlrev_b32 v8, 3, v7")
    a("v_lshl_add_u32 v8, v2, 5, v8")
    a("v_and_b32 v9, 2, v6")
    a("v_lshlrev_b32 v9, 5, v9")
    a("v_xor_b32 v9, v9, v8")
    a("v_lshl_add_u32 v9, v6, 7, v9")
    a(f"v_add_u32 v9, s{S.T4}, v9")
    a(f"s_lshl_b32 s{S.T5}, s{S.WAVE}, 8")
    a("v_lshlrev_b32 v11, 2, v0")
    a(f"v_add_u32 v11, {L_RED}, v11")
    a(f"v_add_u32 v12, s{S.T5}, v11")
    a(f"s_lshl1_add_u32 s{S.T1}, s{S.L1}, s{S.T1}")
    a(f"s_lshl_b32 s{S.T2}, s{S.T1}, 15")
    a(f"s_and_b32 s{S.T3}, s{S.WAVE}, 1")
    a(f"s_lshl1_add_u32 s{S.T3}, s{S.T0}, s{S.T3}")
    a(f"s_lshl_b32 s{S.T5}, s{S.T3}, 7")
    a(f"s_add_u32 s{S.T2}, s{S.T2}, s{S.T5}")
    a("v_lshrrev_b32 v6, 3, v0")
    a(f"v_lshl_add_u32 v6, v6, 10, s{S.T2}")
    a("v_lshl_add_u32 v4, v4, 4, v6")
    a("v_lshrrev_b32 v6, 5, v0")
    a(f"v_mul_u32_u24 v13, {PZ}, v6")
    a("v_and_b32 v6, 31, v0")
    a("v_lshl_add_u32 v13, v6, 3, v13")
    a(f"s_mul_i32 s{S.T2}, s{S.T3}, {2*PZ}")
    a(f"s_lshl_b32 s{S.T1}, s{S.T1}, 8")
    a(f"s_add_u32 s{S.T2}, s{S.T2}, s{S.T1}")
    a(f"s_add_u32 s{S.T2}, s{S.T2}, {WS_PART}")
    a(f"s_lshl_b32 s{S.L0}, s{S.L0}, 6")
    a(f"s_lshl_b32 s{S.L1}, s{S.L1}, 12")
    a(f"s_add_u32 s{S.PO}, s{S.L1}, {WS_XCH}")
    a(f"s_add_u32 s{S.POL}, s{S.PO}, {(o.xc-1)*XCHC}")
    a(f"s_lshl_b32 s{S.T1}, s{S.T0}, 10")
    a(f"s_add_u32 s{S.L1}, s{S.PO}, s{S.T1}")
    a(f"v_mov_b32 v14, {L_FKEY}")
    a(f"s_lshr_b32 s{S.T1}, s{S.WAVE}, 1")
    a(f"s_lshl_b32 s{S.T1}, s{S.T1}, 9")
    a(f"v_lshl_add_u32 v15, v6, 4, s{S.T1}")
    a("v_lshrrev_b32 v6, 5, v0")
    a("v_lshl_add_u32 v15, v6, 10, v15")
    a(f"s_mov_b32 s{S.PO0}, s{S.PO}")
    a(f"s_mov_b32 s{S.L10}, s{S.L1}")
    a(f"s_mov_b32 s{S.T20}, s{S.T2}")
    a(f"s_mov_b32 s{S.FIN}, 0")

    if o.flate:
        w_dma()

    def wd_dma():
        l = a.L("nowd")
        a(f"s_cmp_ge_u32 s{S.WAVE}, 4")
        a(f"s_cbranch_scc1 {l}")
        for b in range(4):
            a(f"s_add_u32 m0, s{S.T4}, {L_WD + 1024*b}")
            if b:
                a("v_add_u32 v4, 0x2000, v4")
            else:
                a.nop(1)
            a(f"global_load_lds_dwordx4 v4, s[{S.PWD}:{S.PWD+1}]{o.wdpol}")
        a.label(l)

    if o.wdpos == 0:
        wd_dma()
    if o.wdpos == 4:
        a("s_barrier")
        a(f"s_cmp_ge_u32 s{S.WAVE}, 4")
        a("s_cbranch_scc1 L_nowd4")
        for b in range(4):
            a(f"v_add_u32 v6, {0x2000*b}, v4")
            a(f"global_load_dwordx4 {V(80+4*b,4)}, v6, s[{S.PWD}:{S.PWD+1}]")
        a("s_waitcnt vmcnt(4)")
        a("s_branch L_nowd5")
        a.label("L_nowd4")
        a("s_waitcnt vmcnt(0)")
        a.label("L_nowd5")
    else:
        a("s_waitcnt vmcnt(0)")
    stamp(2)
    if o.fw0:
        a("s_barrier")
    if o.wdpos == 1:
        wd_dma()
    if o.xpre:
        for i in range(2):
            a(f"buffer_load_dwordx4 {V(64+4*i,4)}, v15, {R4(S.RWS)}, s{S.PO} offen offset:{2048*i} sc1")
    for k in range(8):
        a(f"ds_read_b64_tr_b16 {V(WG_+2*k,2)}, v9 offset:{L_W + k*512}")
    if o.ftouch:
        touch("L_tf", o.ftouch, 0, 8)
    a("s_waitcnt lgkmcnt(0)")
    a("s_barrier")
    a.label("L_tf_start")
    a("ds_read_b64 v[26:27], v14")
    a("s_waitcnt lgkmcnt(0)")
    a(f"v_readfirstlane_b32 s{S.FKEY}, v26")
    a.label("L_redo")
    a(f"s_andn2_b32 s{S.T0}, 2047, s{S.FKEY}")
    a(f"s_lshl_b32 s{S.T1}, s{S.T0}, 10")
    a(f"s_add_u32 s{S.T1}, s{S.T1}, s{S.L0}")
    a(f"s_load_dwordx16 s[{S.XS}:{S.XS+15}], {PXS}, s{S.T1}")
    stamp(5)
    a(f"v_xor_b32 v{VTAG}, s{S.T0}, v27")
    a(f"v_xor_b32 v29, s{S.T0}, v27")
    for r in (16, 17, 24, 25):
        a(f"v_mov_b32 v{r}, 0")
    a(f"s_mov_b32 s{S.PO}, s{S.PO0}")
    a(f"s_mov_b32 s{S.L1}, s{S.L10}")
    a(f"s_mov_b32 s{S.T2}, s{S.T20}")
    a(f"s_mov_b32 s{S.KM}, 0")
    a("s_waitcnt lgkmcnt(0)")
    for i in range(16):
        a(f"v_dot2c_f32_bf16 v{16+(i&1)}, s{S.XS+i}, v{WG_+i}")
    stamp(6)
    a.nop(3)
    a("v_add_f32 v16, v16, v17")
    a("ds_write_b32 v12, v16")
    a("s_waitcnt lgkmcnt(0)")
    a("s_barrier")
    a(f"s_lshl_b32 s{S.T0}, s{S.WAVE}, 4")
    a(f"s_lshl_b64 s[{S.EX}:{S.EX+1}], 0xffff, s{S.T0}")
    for i, (p, q) in enumerate(((0, 2), (4, 6), (1, 3), (5, 7))):
        a(f"ds_read2st64_b32 v[{16+2*i}:{17+2*i}], v11 offset0:{p} offset1:{q}")
    a("s_waitcnt lgkmcnt(2)")
    a("v_add_f32 v16, v16, v17")
    a("v_add_f32 v18, v18, v19")
    a("s_waitcnt lgkmcnt(0)")
    a("v_add_f32 v20, v20, v21")
    a("v_add_f32 v22, v22, v23")
    a("v_add_f32 v28, v16, v18")
    a(f"s_mov_b64 exec, s[{S.EX}:{S.EX+1}]")
    a("v_add_f32 v30, v20, v22")
    a(f"s_cmp_ge_u32 s{S.WAVE}, 4")
    a("s_cbranch_scc1 L_f5")
    a(f"buffer_store_dwordx4 v[28:31], v5, {R4(S.RWS)}, s{S.L1} offen{'' if o.xl2 else ' sc1'}")
    a("s_mov_b64 exec, -1")
    stamp(7)
    a("s_waitcnt vmcnt(1)")
    if o.wdpos == 4:
        a(f"v_add_u32 v6, s{S.T4}, v5")
        for b in range(4):
            a(f"ds_write_b128 v6, {V(80+4*b,4)} offset:{L_WD + 1024*b}")
        a("s_waitcnt lgkmcnt(0)")
    for k in range(8):
        a(f"ds_read_b64_tr_b16 {V(WD_+2*k,2)}, v9 offset:{L_WD + k*512}")
    if o.xsleep0:
        a(f"s_sleep {o.xsleep0}")
    stamp(8)
    a.label("L_fx")
    for i in range(2):
        a(f"buffer_load_dwordx4 {V(64+4*i,4)}, v15, {R4(S.RWS)}, s{S.PO} offen offset:{2048*i} sc1")
    if o.xl2:
        a(f"s_add_u32 s{S.KM}, s{S.KM}, 1")
        a(f"s_cmp_ge_u32 s{S.KM}, {o.xl2}")
        a(f"s_cselect_b32 s{S.T0}, {XCHC}, 0")
        a(f"s_add_u32 s{S.PO}, s{S.PO}, s{S.T0}")
    else:
        a(f"s_add_u32 s{S.PO}, s{S.PO}, {XCHC}")
    a(f"s_min_u32 s{S.PO}, s{S.PO}, s{S.POL}")
    if o.stamps:
        a(f"s_add_u32 s{S.RC}, s{S.RC}, 1")
    spin()
    a("s_cbranch_scc1 L_fx_ok")
    a("s_waitcnt vmcnt(1)")
    a(f"v_bitop3_b32 v20, v65, v67, v{VTAG} bitop3:0x7e")
    a("s_waitcnt vmcnt(0)")
    a("v_add_f32 v16, v64, v68")
    a("v_add_f32 v18, v66, v70")
    a(f"v_bitop3_b32 v21, v69, v71, v{VTAG} bitop3:0x7e")
    a("v_or_b32 v20, v20, v21")
    a("v_cmp_ne_u32 vcc, 0, v20")
    a("v_permlane32_swap_b32 v16, v18")
    a("s_cbranch_vccnz L_fxr")
    a.label("L_fx_ok")
    stamp(9)
    a("v_add_f32 v16, v16, v18")
    rnd(16, 16)
    a("v_mov_b32 v18, v16")
    sigmoid(17, 16)
    a("v_permlane32_swap_b32 v16, v18")
    a("v_mul_f32 v17, v17, v16")
    rnd(17, 17)
    a("v_mul_f32 v17, v17, v18")
    a.nop(2)
    a(f"v_mov_b32_dpp v18, v17 quad_perm:[1,0,3,2] {DPPM}")
    a("v_cvt_pk_bf16_f32 v17, v17, v18")
    a.nop(1)
    for i in range(16):
        a(f"v_readlane_b32 s{S.XS+i}, v17, {2*i}")
    a("s_waitcnt lgkmcnt(0)")
    for i in range(16):
        a(f"v_dot2c_f32_bf16 v{24+(i&1)}, s{S.XS+i}, v{WD_+i}")
    a.nop(3)
    a("v_add_f32 v30, v24, v25")
    for c in range(o.pc):
        if c:
            a(f"s_add_u32 s{S.T2}, s{S.T2}, {PARTC}")
        a(f"buffer_store_dwordx2 v[30:31], v13, {R4(S.RWS)}, s{S.T2} offen sc1")
    stamp(10)
    a.label("L_fend")
    a(f"s_cmp_lg_u32 s{S.FIN}, 0")
    a("s_cbranch_scc1 L_fexit")
    a("s_barrier")
    a("ds_read_b32 v26, v14 offset:8")
    a(f"s_mov_b32 s{S.FIN}, 1")
    a("s_waitcnt lgkmcnt(0)")
    a(f"v_readfirstlane_b32 s{S.T0}, v26")
    a(f"s_cmp_eq_u32 s{S.T0}, s{S.FKEY}")
    a(f"s_mov_b32 s{S.FKEY}, s{S.T0}")
    if o.stamps:
        a(f"s_cselect_b32 s{S.T1}, 0, 64")
        a(f"s_add_u32 s{S.RC}, s{S.RC}, s{S.T1}")
        a(f"s_cmp_eq_u32 s{S.T1}, 0")
    a("s_cbranch_scc0 L_redo")
    a.label("L_fexit")
    endprog()
    a.label("L_f5")
    for c in range(1, o.xc):
        a(f"s_add_u32 s{S.L1}, s{S.L1}, {XCHC}")
        a(f"buffer_store_dwordx4 v[28:31], v5, {R4(S.RWS)}, s{S.L1} offen sc1")
    a("s_mov_b64 exec, -1")
    a("s_branch L_fend")
    a.label("L_fxr")
    a("ds_read_b32 v26, v14 offset:8")
    a("s_waitcnt lgkmcnt(0)")
    a(f"v_readfirstlane_b32 s{S.T0}, v26")
    a(f"s_cmp_eq_u32 s{S.T0}, 0")
    a("s_cbranch_scc1 L_fx")
    a(f"s_cmp_eq_u32 s{S.T0}, s{S.FKEY}")
    a("s_cbranch_scc1 L_fx")
    a("s_branch L_fend")

    a.label("L_fh")
    a("s_waitcnt lgkmcnt(0)")
    if o.fesleep:
        a(f"s_sleep {o.fesleep}")
    tag_load()
    ws_setup()
    a(f"v_mov_b32 v14, {L_FKEY}")
    a("v_mov_b32 v6, 0")
    a("ds_write_b32 v14, v6 offset:8")
    if o.spec:
        poll_setup(WS_KEY + 1024 * (RF * CF + RZ * CZ + R2 * C2), 8, 1)
        a(f"s_sleep {o.spec}")
        a("s_waitcnt vmcnt(0)")
        tag_make()
        stamp(1)
        a(f"buffer_load_dwordx4 v[20:23], v5, {R4(S.RWS)}, s{S.PO} offen sc1")
        poll_setup(WS_KEY, RF, CF)
        a("s_waitcnt vmcnt(0)")
        stamp(2)
        a(f"v_cmp_ne_u32 vcc, v{VTAG}, v21")
        a(f"v_cmp_ne_u32 s[{S.EX}:{S.EX+1}], v{VTAG}, v23")
        a("s_mov_b64 exec, vcc")
        a("v_mov_b32 v20, 0")
        a(f"s_mov_b64 exec, s[{S.EX}:{S.EX+1}]")
        a("v_mov_b32 v22, 0")
        a("s_mov_b64 exec, -1")
        a(f"s_or_b64 s[{S.EY}:{S.EY+1}], vcc, s[{S.EX}:{S.EX+1}]")
        wave_max_key(20)
        lds_put(L_FKEY, 20, tag=True)
        a("s_barrier")
        a(f"s_cmp_eq_u64 s[{S.EY}:{S.EY+1}], 0")
        a("s_cbranch_scc1 L_fh2")
        if o.fsleep0:
            a(f"s_sleep {o.fsleep0}")
        stamp(3)
        poll_granules(5, 20, sleep=o.fsleep)
        stamp(4)
        wave_max_key(20)
        a.label("L_fh2")
        lds_put(L_FKEY + 8, 20)
    else:
        poll_setup(WS_KEY, RF, CF)
        if o.fsleep0:
            a(f"s_sleep {o.fsleep0}")
        a("s_waitcnt vmcnt(0)")
        tag_make()
        stamp(3)
        poll_granules(5, 20, sleep=o.fsleep, bar=o.wdpos == 4)
        stamp(4)
        wave_max_key(20)
        lds_put(L_FKEY, 20, tag=True)
        a("s_barrier")
        lds_put(L_FKEY + 8, 20)
    a("s_barrier")
    endprog()
    a.label("L_end")
    a("s_endpgm")
    return name


def main():
    ap = argparse.ArgumentParser()
    ap.add_argument("-o", required=True)
    for k, d in dict(stamps=0, pc=1, xc=2, zsleep=8, zsleep0=32, psleep=0, psleep0=20, rsleep=3, ackwait=0, hipre=0, tlate=3,
                     mode=0, k2ack=1, k2sleep0=6, zk2sleep0=0, k2sleep=5, fbar=0, cpf=0, cpf0=1, wpf0=1, wrsleep=0, htouch=0, probe=-1, wsoff=0, flate=1, b1a=1, skew=0, gate=8, lds=0, nsgpr=72, prio=1, stag=2, spec=0, b0=2, wthr=0, xpre=0, atouch=10, ftouch=8, xl2=8, npre=3, gfirst=0, isleep0=0, zisleep0=5, b3=1, ztouch=8, zstep=128, touch=0, wdpos=0, wpf=0, fesleep=0, fw0=0, xack=0, fdelay=0, xsleep0=3, fsleep0=46, fsleep=4, spin=17).items():
        ap.add_argument("--" + k, type=int, default=d)
    for k in ("wpol", "wdpol", "xpol", "outpol", "zpol", "only"):
        ap.add_argument("--" + k, default="nt" if k == "outpol" else "")
    ap.add_argument("--mf", default="8,2")
    ap.add_argument("--mz", default="1,3")
    ap.add_argument("--m2", default="8,2")
    ap.add_argument("--hold", default="")
    ap.add_argument("--ev", default="")
    o = ap.parse_args()
    if o.hold:
        o.hold = o.hold.split(":")
    for k in ("mf", "mz", "m2"):
        setattr(o, k, [int(v) for v in getattr(o, k).split(",")])
    for k in ("wpol", "wdpol", "xpol", "outpol", "zpol"):
        setattr(o, k, (" " + getattr(o, k)) if getattr(o, k) not in ("", "def") else "")
    a = Asm()
    name = gen(a, o)
    reg = []
    if o.touch:
        reg.append(("L_ta_start", "L_ta_end", "L_ta", "L_taback", o.touch))
    if o.htouch:
        reg.append(("L_ta_end", "L_zjoin", "L_th", "L_thback", o.htouch))
    if o.atouch:
        reg.append(("L_zjoin", "L_tb_end", "L_tb", "L_tbback", o.atouch))
    if o.ztouch:
        reg.append(("L_tz_start", "L_zend", "L_tz", "L_tzback", o.ztouch))
    if o.ftouch:
        reg.append(("L_tf_start", "L_fend", "L_tf", "L_tfback", o.ftouch))
    if reg:
        insert_stubs(a, reg, step=o.zstep)
    finish(a, name, NVGPR, 102 if (o.stamps or o.hold or o.probe >= 0) else o.nsgpr, NWG, 576, o.lds or LDS_BYTES, o.o)


main()
```

```python
import argparse
from lib import *

NA, NF, NZ = 128, 112, 16
NWG = NA + NF + NZ
WS_E = 0
WS_ALIVE = 4096
WS_KEY = 64 << 10
WS_KEY2 = 128 << 10
WS_XCH = 192 << 10
XCHC = 28 * 4096
WS_KEYS = 1 << 20
WS_PART = 704 << 10
PZ = 56 * 256
PARTC = NZ * PZ
WS_INT = 2 << 20
CS = 32768 + 256
WS_STAMP = 8 << 20
WS_BYTES = 16 << 20
L_TILE = 0
L_U2 = 16384
L_CT = L_U2
UB = 17 * 64
L_MISC = L_U2 + 16 * UB
L_KSL = L_MISC
L_GKEY = L_MISC + 64
L_ZC = L_MISC + 76
L_ZF = L_MISC + 72
L_EXP = L_MISC + 128
L_DUMP = L_MISC + 192
L_XG2 = L_DUMP + 4 * UB + 256
L_M2 = L_XG2 + 4096
L_WV = L_M2 + 4096
L_XT = L_WV + 2048
L_W = 0
L_WD = 32768
L_RED = L_WD + 16384
L_FKEY = L_RED + 2048
LDS_BYTES = 84 * 1024
MF = "v_mfma_f32_16x16x32_bf16"
LOG2E = 0x3fb8aa3b
DPPM = "row_mask:0xf bank_mask:0xf"
HIM = "0xffff0000"
NVGPR = 168


class S:
    WAVE = 3
    PX = 4
    T0, T1, T2, T3, T4, T5 = 6, 7, 8, 9, 10, 11
    EX = 12
    EY = 14
    PWR, PWG, PWU, PWD, PGW, POUT, PDBG, PWS = 16, 18, 20, 22, 24, 26, 28, 30
    L0, L1, SPT, PIE = 32, 33, 34, 35
    RWS, ROUT = 36, 40
    XS = 44
    GKEY, WSEL, WHICH, Z = 44, 45, 46, 47
    SI0, SI1, ID8, BLK = 48, 49, 50, 51
    IDX, ISZ, TC = 54, 55, 53
    SO = 44
    T1C, HH, TD, TM = 56, 57, 58, 59
    FJ, PO, POL, RC, KM, SPIN = 60, 61, 62, 63, 64, 65
    PO0, L10, T20, FKEY, FIN = 40, 41, 42, 43, 35
    ST = 68


def gen(a, o):
    global WS_KEY, WS_XCH, WS_PART, WS_INT, WS_ALIVE, WS_BYTES
    WS_KEY += o.wsoff << 20
    WS_XCH += o.wsoff << 20
    WS_PART += o.wsoff << 20
    WS_INT += o.wsoff << 20
    WS_ALIVE += o.wsoff << 20
    WS_BYTES = max(WS_BYTES, (o.wsoff + 8) << 20)
    name = NAME + "_kernel"
    kernel_head(a, name)
    VE, VTAG = 30, 31
    PXS = f"s[{S.PX}:{S.PX+1}]"

    def stamp(i):
        if o.stamps:
            a(f"s_memrealtime s[{S.ST+2*i}:{S.ST+2*i+1}]")

    def hold(cp):
        if o.hold and o.hold[0] == cp:
            l = a.L("hold")
            a.label(l)
            a("s_sleep 1")
            a("s_memrealtime s[100:101]")
            a("s_waitcnt lgkmcnt(0)")
            a("s_sub_u32 s100, s100, s66")
            a(f"s_cmp_lt_u32 s100, {o.hold[1]}")
            a(f"s_cbranch_scc1 {l}")

    def touch(pre, n, first, step, back=None, tail=None):
        a("s_mov_b64 exec, 0")
        a(f"s_sub_u32 s{S.TC}, s{S.WAVE}, {first + step}")
        a.label(f"{pre}back")
        a(f"s_add_u32 s{S.TC}, s{S.TC}, {step}")
        for k in range(n):
            a(f"s_cmp_eq_u32 s{S.TC}, {k}")
            a(f"s_cbranch_scc1 {pre}{k}")
        a("s_mov_b64 exec, -1")

    def endprog():
        if o.stamps:
            a("s_waitcnt lgkmcnt(0)")
            a(f"s_add_u32 s{S.ST+28}, s{S.RC}, s{S.ST+30}")
            for i in range(16):
                a(f"v_writelane_b32 v166, s{S.ST+2*i}, {i}")
            a("s_mov_b64 exec, 0xffff")
            a(f"s_lshl4_add_u32 s{S.T0}, s2, s{S.WAVE}")
            a(f"s_lshl_b32 s{S.T0}, s{S.T0}, 7")
            a(f"s_add_u32 s{S.T0}, s{S.T0}, {WS_STAMP}")
            a(f"v_lshl_add_u32 v165, v0, 3, s{S.T0}")
            a("v_mov_b32 v167, 0")
            a(f"global_store_dwordx2 v165, v[166:167], s[{S.PWS}:{S.PWS+1}]" + (" sc1" if o.ev else ""))
        a("s_endpgm")

    def spin():
        a(f"s_add_u32 s{S.SPIN}, s{S.SPIN}, 1")
        a(f"s_lshr_b32 s{S.SPT}, s{S.SPIN}, {o.spin}")

    def poll_setup(base, R, C):
        a(f"s_and_b32 s{S.PO}, s2, {R-1}")
        a(f"s_mul_i32 s{S.PO}, s{S.PO}, {1024*C}")
        a(f"s_add_u32 s{S.PO}, s{S.PO}, {base}")
        a(f"s_add_u32 s{S.POL}, s{S.PO}, {1024*(C-1)}")

    def kpoll_setup():
        a(f"s_and_b32 s{S.PO}, s2, 7")
        a(f"s_mul_i32 s{S.PO}, s{S.PO}, {8192*o.kc}")
        a(f"s_add_u32 s{S.PO}, s{S.PO}, {WS_KEYS}")
        a(f"s_add_u32 s{S.POL}, s{S.PO}, {8192*(o.kc-1)}")
        a("v_lshlrev_b32 v29, 7, v0")

    def kpoll(vd, sleep):
        l = a.L("kpoll")
        a(f"s_branch {l}_1")
        a.label(l)
        a(f"s_sleep {max(sleep, 1)}")
        a.label(f"{l}_1")
        a(f"buffer_load_dwordx2 {V(vd,2)}, v29, {R4(S.RWS)}, s{S.PO} offen sc1")
        a(f"buffer_load_dwordx2 {V(vd+2,2)}, v29, {R4(S.RWS)}, s{S.PO} offen offset:64 sc1")
        a(f"s_add_u32 s{S.PO}, s{S.PO}, 8192")
        a(f"s_min_u32 s{S.PO}, s{S.PO}, s{S.POL}")
        if o.stamps:
            a(f"s_add_u32 s{S.RC}, s{S.RC}, 1")
        spin()
        a("s_waitcnt vmcnt(0)")
        a(f"s_cbranch_scc1 {l}_ok")
        a(f"v_cmp_ne_u32 vcc, v{VTAG}, v{vd+1}")
        a(f"v_cmp_ne_u32 s[{S.EX}:{S.EX+1}], v{VTAG}, v{vd+3}")
        a(f"s_or_b64 vcc, vcc, s[{S.EX}:{S.EX+1}]")
        a(f"s_cbranch_vccnz {l}")
        a.label(f"{l}_ok")

    def set_exec(n):
        if n >= 64:
            a("s_mov_b64 exec, -1")
        elif n <= 31:
            a(f"s_mov_b64 exec, {(1 << n) - 1:#x}")
        else:
            a("s_mov_b32 exec_lo, -1")
            a(f"s_mov_b32 exec_hi, {(1 << (n - 32)) - 1:#x}")

    RS = 8 if o.spec else 0
    RF, CF = o.mf
    RZ, CZ = o.mz
    R2, C2 = o.m2
    assert RF * CF + RZ * CZ + R2 * C2 + RS <= 64

    def poll_granules(vaddr, vd, sleep=0, step=1024, bar=False):
        l = a.L("poll")
        if sleep:
            a(f"s_branch {l}_1")
        a.label(l)
        if sleep:
            a(f"s_sleep {sleep}")
            a.label(f"{l}_1")
        a(f"buffer_load_dwordx4 {V(vd,4)}, v{vaddr}, {R4(S.RWS)}, s{S.PO} offen sc1")
        a(f"s_add_u32 s{S.PO}, s{S.PO}, {step}")
        a(f"s_min_u32 s{S.PO}, s{S.PO}, s{S.POL}")
        if bar:
            a(f"s_cmp_lg_u32 s{S.SPIN}, 0")
            a(f"s_cbranch_scc1 {l}_2")
            a("s_barrier")
            a.label(f"{l}_2")
        if o.stamps:
            a(f"s_add_u32 s{S.RC}, s{S.RC}, 1")
        spin()
        a("s_waitcnt vmcnt(0)")
        a(f"s_cbranch_scc1 {l}_ok")
        a(f"v_cmp_ne_u32 vcc, v{VTAG}, v{vd+1}")
        a(f"v_cmp_ne_u32 s[{S.EX}:{S.EX+1}], v{VTAG}, v{vd+3}")
        a(f"s_or_b64 vcc, vcc, s[{S.EX}:{S.EX+1}]")
        a(f"s_cbranch_vccnz {l}")
        a.label(f"{l}_ok")

    def wave_max_key(vd):
        a(f"v_max_u32 v{vd}, v{vd}, v{vd+2}")
        for r in ("row_ror:8", "row_ror:4", "row_ror:2", "row_ror:1"):
            a.nop(2)
            a(f"v_max_u32_dpp v{vd}, v{vd}, v{vd} {r} {DPPM}")
        a.nop(2)
        a(f"v_max_u32_dpp v{vd}, v{vd}, v{vd} row_bcast:15 row_mask:0xa bank_mask:0xf")
        a.nop(2)
        a(f"v_max_u32_dpp v{vd}, v{vd}, v{vd} row_bcast:31 row_mask:0xc bank_mask:0xf")

    def lds_put(addr, v, tag=False):
        a(f"v_mov_b32 v9, {addr}")
        a("s_mov_b32 exec_lo, 0")
        a("s_brev_b32 exec_hi, 1")
        if tag:
            a(f"ds_write2_b32 v9, v{v}, v{VTAG} offset1:1")
        else:
            a(f"ds_write_b32 v9, v{v}")
        a("s_mov_b64 exec, -1")
        a("s_waitcnt lgkmcnt(0)")

    def sigmoid(d, s):
        a(f"v_mul_f32 v{d}, {LOG2E | 0x80000000:#x}, v{s}")
        a(f"v_exp_f32 v{d}, v{d}")
        a.nop(1)
        a(f"v_add_f32 v{d}, 1.0, v{d}")
        a(f"v_rcp_f32 v{d}, v{d}")
        a.nop(1)

    def rnd(d, s):
        a(f"v_cvt_pk_bf16_f32 v{d}, v{s}, v{s}")
        a(f"v_and_b32 v{d}, {HIM}, v{d}")

    def ws_setup():
        a.srd(S.RWS, S.PWS, WS_BYTES)
        a(f"s_mov_b32 s{S.SPIN}, 0")

    def tag_load():
        a(f"v_mov_b32 v{VTAG}, 0")
        a(f"global_load_dword v{VE}, v{VTAG}, s[{S.PWS}:{S.PWS+1}]")
        a(f"s_mov_b32 s{S.KM}, 0x9E3779B1")

    def tag_make():
        a(f"v_mul_lo_u32 v{VTAG}, v{VE}, s{S.KM}")
        a(f"v_add_u32 v{VTAG}, 0x7F4A7C15, v{VTAG}")

    a(f"s_load_dwordx2 s[{S.PX}:{S.PX+1}], s[0:1], {KA_X}")
    a(f"s_load_dwordx16 s[16:31], s[0:1], {KA_WR}")
    if o.cpf0:
        a(f"s_cmp_ge_u32 s2, {8*o.cpf0}")
        a("s_cbranch_scc1 L_nocpf0")
        a(f"s_getpc_b64 s[{S.EX}:{S.EX+1}]")
        a.label("L_pc0")
        a("v_lshlrev_b32 v6, 7, v0")
        a(f"v_min_u32 v6, L_end - L_pc0, v6")
        a(f"v_mov_b32 v13, s{S.EX+1}")
        a(f"v_add_co_u32 v12, vcc, s{S.EX}, v6")
        a.nop(2)
        a("v_addc_co_u32 v13, vcc, 0, v13, vcc")
        a("global_load_dword v164, v[12:13], off")
        a.label("L_nocpf0")
    if o.stamps:
        for i in range(1, 16):
            a(f"s_mov_b32 s{S.ST+2*i}, 0")
        a(f"s_mov_b32 s{S.RC}, 0")
    stamp(0)
    if o.hold or o.probe >= 0:
        a("s_memrealtime s[66:67]")
    if o.skew:
        a("s_and_b32 s6, s2, 7")
        a("s_cmp_lg_u32 s6, 5")
        a("s_cbranch_scc1 L_noskew")
        a(f"s_sleep {o.skew}")
        a.label("L_noskew")
    a("v_lshrrev_b32 v1, 6, v0")
    a("v_and_b32 v0, 63, v0")
    a(f"v_readfirstlane_b32 s{S.WAVE}, v1")
    a("v_and_b32 v1, 15, v0")
    a("v_lshrrev_b32 v2, 4, v0")
    a(f"s_and_b32 s{S.T0}, s2, 7")
    a(f"s_sub_u32 s{S.WAVE}, s{S.WAVE}, 1")
    a(f"s_min_u32 s{S.WAVE}, s{S.WAVE}, 8")
    a(f"s_lshr_b32 s{S.T1}, s2, 3")
    a(f"s_cmp_ge_u32 s2, {NA}")
    a("s_cbranch_scc1 L_notA")
    if o.only == "F":
        a("s_endpgm")

    VROW, VG16, VSGN, VTR, VST = 3, 5, 8, 10, 11
    VLD, VUW, VUX, VUR0, VUR1 = 10, 11, 28, 29, 30
    XR, WR, GW, CO = 16, 24, 24, 24
    CM, AOP, ACC = 32, 96, 112
    LD, DA0, DA1, TP, X16, PK = 32, 64, 32, 80, 96, 48
    M1, GA, XG = 100, 148, 152
    Cc, Ss = 64, 68
    UO, PQ, M2 = 32, 48, 64

    def rows_setup(wreg):
        a(f"s_lshl3_add_u32 s{S.T5}, s{S.HH}, s{wreg}")
        a(f"s_lshl_b32 s{S.T5}, s{S.T5}, 7")
        a(f"s_add_u32 s{S.TD}, s{S.T5}, s{S.T1C}")
        a(f"s_sub_u32 s{S.TM}, 2048, s{S.TD}")
        a(f"s_cmp_eq_u32 s{S.TD}, 0")
        a(f"s_cselect_b32 s{S.TM}, 1024, s{S.TM}")
        a(f"s_lshl_b32 s{S.T4}, s{S.TD}, 10")
        a(f"s_lshl_b32 s{S.T5}, s{S.TM}, 10")
        a(f"v_add_u32 v6, s{S.T4}, v{VG16}")
        a(f"v_add_u32 v7, s{S.T5}, v{VG16}")

    def vrow_setup():
        a("v_and_b32 v6, 1, v2")
        a("v_lshlrev_b32 v6, 5, v6")
        a("v_lshl_add_u32 v6, v1, 6, v6")
        a("v_lshrrev_b32 v7, 1, v2")
        a(f"v_lshl_add_u32 v{VROW}, v7, 4, v6")

    def rows_load():
        a(f"global_load_dwordx4 {V(XR,4)}, v6, {PXS}{o.xpol}")
        a(f"global_load_dwordx4 {V(XR+4,4)}, v7, {PXS}{o.xpol}")

    def sgn_setup():
        a(f"v_lshlrev_b32 v{VSGN}, 31, v1")
        a(f"v_lshrrev_b32 v9, 16, v{VSGN}")
        a(f"v_or_b32 v{VSGN}, v{VSGN}, v9")

    def sgn_setup2():
        a(f"v_lshlrev_b32 v{VSGN}, 31, v1")
        a(f"v_lshrrev_b32 v14, 16, v{VSGN}")
        a(f"v_or_b32 v{VSGN}, v{VSGN}, v14")

    def tile_ids():
        a(f"s_bitcmp1_b32 s{S.T1}, 3")
        a(f"s_cselect_b32 s{S.T2}, s{S.T3}, s{S.T2}")
        a(f"s_and_b32 s{S.T3}, s{S.T1}, 7")
        a(f"s_lshl3_add_u32 s{S.BLK}, s{S.T2}, s{S.T3}")
        a(f"s_lshl_b32 s{S.PIE}, s{S.T2}, 5")
        a(f"s_add_u32 s{S.PIE}, s{S.PIE}, s{S.T3}")
        a(f"s_lshl_b32 s{S.PIE}, s{S.PIE}, 6")

    def vst_setup():
        a(f"v_mul_u32_u24 v{VST}, {CS}, v1")
        a(f"v_lshl_add_u32 v{VST}, v2, 4, v{VST}")

    def const_d2():
        R = 40
        a("v_lshlrev_b32 v6, 2, v2")
        a("v_cvt_f32_u32 v7, v1")
        a("v_cvt_f32_u32 v6, v6")
        a("v_mul_f32 v7, 0x3d800000, v7")
        for hf in range(2):
            if hf:
                a("v_add_f32 v7, 0x3d800000, v7")
            a("v_mul_f32 v9, v6, v7")
            for jj in range(4):
                a(f"v_cos_f32 v{Cc+jj}, v9")
                a(f"v_sin_f32 v{Ss+jj}, v9")
                if jj < 3:
                    a("v_add_f32 v9, v9, v7")
            a.nop(1)
            for jj in range(4):
                if hf == 0:
                    a(f"v_cvt_pk_bf16_f32 v{R+jj}, v{Cc+jj}, v{Ss+jj}")
                    a(f"v_cvt_pk_bf16_f32 v{R+8+jj}, -v{Ss+jj}, v{Cc+jj}")
                else:
                    a(f"v_cvt_pk_bf16_f32 v{R+4+jj}, v{Cc+jj}, -v{Ss+jj}")
                    a(f"v_cvt_pk_bf16_f32 v{R+12+jj}, -v{Ss+jj}, -v{Cc+jj}")
        for k in range(4):
            a(f"ds_write_b128 v{VG16}, {V(R+4*k,4)} offset:{L_M2 + 1024*k}")

    a(f"s_add_u32 s{S.T2}, s{S.T0}, 1")
    a(f"s_sub_u32 s{S.T3}, 15, s{S.T0}")
    a(f"s_cmp_eq_u32 s{S.WAVE}, 8")
    a("s_cbranch_scc1 L_ah")
    a(f"s_and_b32 s{S.HH}, s{S.T1}, 1")
    a(f"s_bitcmp1_b32 s{S.T1}, 1")
    a(f"s_cselect_b32 s{S.T4}, s{S.T3}, s{S.T2}")
    a(f"s_lshr_b32 s{S.T5}, s{S.T1}, 2")
    a(f"s_lshl4_add_u32 s{S.T1C}, s{S.T5}, s{S.T4}")
    a(f"v_lshlrev_b32 v{VG16}, 4, v0")
    a(f"v_mov_b32 v{VROW}, 0")
    a(f"s_cmp_lg_u32 s{S.T0}, 7")
    a("s_cbranch_scc1 L_k7")
    a(f"s_lshr_b32 s{S.T5}, s{S.T1}, 1")
    a(f"s_lshl3_add_u32 s{S.T1C}, s{S.T5}, 8")
    a(f"s_mov_b32 s{S.T2}, 0")
    a(f"s_cmp_eq_u32 s2, 127")
    a(f"s_cselect_b32 s{S.T1C}, 0, s{S.T1C}")
    a(f"s_cselect_b32 s{S.HH}, 0, s{S.HH}")
    a.label("L_k7")
    rows_setup(S.WAVE)
    a("s_waitcnt lgkmcnt(0)")
    rows_load()
    stamp(1)
    if o.touch:
        touch("L_ta", o.touch, 0, 8)
    a.label("L_ta_start")
    if o.b0 == 2:
        a("s_barrier")
    tile_ids()

    def tile_dma():
        a(f"s_lshl_b32 s{S.T4}, s{S.WAVE}, 11")
        a(f"s_add_u32 s{S.T5}, s{S.T4}, s{S.BLK}")
        a(f"s_lshl_b32 s{S.T5}, s{S.T5}, 7")
        a(f"s_mov_b32 m0, s{S.T4}")
        a("v_and_b32 v9, 7, v0")
        a("v_bfe_u32 v13, v0, 4, 1")
        a("v_xor_b32 v9, v9, v13")
        a("v_lshrrev_b32 v13, 3, v0")
        a(f"v_lshl_add_u32 v9, v9, 4, s{S.T5}")
        a("v_lshl_add_u32 v13, v13, 14, v9")
        a(f"global_load_lds_dwordx4 v13, {PXS}")
        a(f"s_add_u32 m0, s{S.T4}, 1024")
        a("v_add_u32 v13, 0x20000, v13")
        a(f"global_load_lds_dwordx4 v13, {PXS}")
        stamp(2)

    if not o.tlate:
        tile_dma()
    C1, S1, K = AOP, AOP + 4, AOP + 8
    a(f"s_lshr_b32 s{S.T0}, s{S.WAVE}, 2")
    a(f"s_and_b32 s{S.T1}, s{S.WAVE}, 1")
    a(f"s_bfe_u32 s{S.T2}, s{S.WAVE}, 0x10001")
    a(f"v_lshl_add_u32 v6, s{S.T0}, 4, v1")
    a(f"s_lshl3_add_u32 s{S.T3}, s{S.T2}, s{S.T1}")
    a(f"s_lshl_b32 s{S.T3}, s{S.T3}, 2")
    a("v_cvt_f32_u32 v6, v6")
    a(f"v_lshl_add_u32 v7, v2, 3, s{S.T3}")
    a("v_mul_f32 v6, 0x3c000000, v6")
    a("v_cvt_f32_u32 v7, v7")
    a("v_mul_f32 v7, v7, v6")
    for j in range(4):
        a(f"v_cos_f32 v{C1+j}, v7")
        a(f"v_sin_f32 v{S1+j}, v7")
        if j < 3:
            a("v_add_f32 v7, v7, v6")
    if o.tlate == 2:
        a(f"global_load_dwordx4 {V(WR,4)}, v{VG16}, s[{S.PWR}:{S.PWR+1}]")
        tile_dma()
    a(f"s_lshl_b32 s{S.T4}, s{S.T0}, 13")
    a(f"s_lshl_b32 s{S.T5}, s{S.T2}, 10")
    a(f"s_lshl3_add_u32 s{S.T5}, s{S.T1}, s{S.T5}")
    a(f"v_add_u32 v15, s{S.T4}, v{VG16}")
    a(f"v_add_u32 v9, s{S.T5}, v15")
    a(f"v_cvt_pk_bf16_f32 v{K+0}, v{C1}, v{C1+1}")
    a(f"v_cvt_pk_bf16_f32 v{K+1}, v{C1+2}, v{C1+3}")
    a(f"v_cvt_pk_bf16_f32 v{K+2}, -v{S1}, -v{S1+1}")
    a(f"v_cvt_pk_bf16_f32 v{K+3}, -v{S1+2}, -v{S1+3}")
    a("v_cmp_eq_f32 vcc, 0, v6")
    a(f"v_cvt_pk_bf16_f32 v{K+4}, v{C1}, -v{S1+1}")
    a(f"v_cvt_pk_bf16_f32 v{K+5}, -v{C1+2}, v{S1+3}")
    a(f"v_cvt_pk_bf16_f32 v{K+6}, -v{S1}, -v{C1+1}")
    a(f"v_cvt_pk_bf16_f32 v{K+7}, v{S1+2}, v{C1+3}")
    a(f"ds_write_b64 v9, {V(K,2)} offset:{L_CT}")
    a(f"ds_write_b64 v9, {V(K+4,2)} offset:{L_CT+4096}")
    a(f"ds_write_b64 v9, {V(K+6,2)} offset:{L_CT+6144}")
    a("s_mov_b64 exec, vcc")
    a(f"v_mov_b32 v{K+2}, 0xbf803f80")
    a(f"v_mov_b32 v{K+3}, 0xbf803f80")
    a("s_mov_b64 exec, -1")
    a(f"ds_write_b64 v9, {V(K+2,2)} offset:{L_CT+2048}")
    if o.tlate != 2:
        a(f"global_load_dwordx4 {V(WR,4)}, v{VG16}, s[{S.PWR}:{S.PWR+1}]")
    if o.tlate == 1:
        tile_dma()
    a("v_mov_b32 v12, 0")
    a("v_mov_b32 v13, 0")
    stamp(3)
    if o.b0 == 1:
        a("s_waitcnt lgkmcnt(0)")
        a("s_barrier")
        for k in range(2):
            for t in range(4):
                a(f"ds_read_b128 {V(CM+16*t+4*k,4)}, v15 offset:{L_CT + t*2048 + k*1024}")

    def dots(w, fill=()):
        fill = list(fill)

        def pad(n):
            while n and fill:
                a(fill.pop(0))
                n -= 1
            a.nop(n)

        for i in range(4):
            a(f"v_dot2c_f32_bf16 v12, v{XR+i}, v{w+i}")
            a(f"v_dot2c_f32_bf16 v13, v{XR+4+i}, v{w+i}")
        pad(3)
        a("v_permlane32_swap_b32 v12, v13")
        a("v_add_f32 v12, v12, v13")
        a("v_mov_b32 v13, v12")
        pad(2)
        a("v_permlane16_swap_b32 v12, v13")
        a("v_add_f32 v12, v12, v13")
        for r in (8, 4, 2, 1):
            pad(2)
            a(f"v_add_f32_dpp v12, v12, v12 row_ror:{r} {DPPM}")
        rnd(12, 12)
        for x in fill:
            a(x)

    a(f"s_waitcnt vmcnt({2 if o.tlate else 0})")
    stamp(4)
    dots(WR, [f"s_sub_u32 s{S.T4}, 0xffff, s{S.TD}", f"s_sub_u32 s{S.T5}, 0xffff, s{S.TM}", f"v_mov_b32 v4, s{S.T4}",
              f"v_writelane_b32 v4, s{S.T5}, 32", f"v_mov_b32 v9, {L_KSL}",
              f"v_lshlrev_b32 v{VSGN}, 31, v1", f"v_lshrrev_b32 v7, 16, v{VSGN}", f"v_or_b32 v{VSGN}, v{VSGN}, v7",
              "v_bfe_u32 v6, v0, 2, 2", "v_and_b32 v14, 3, v0", f"v_lshl_add_u32 v14, v14, 1, s{S.T2}",
              f"v_lshl_add_u32 v{VTR}, v2, 3, v6", "v_lshrrev_b32 v6, 1, v6", "v_xor_b32 v14, v14, v6"])
    a("v_ashrrev_i32 v7, 31, v12")
    a("v_or_b32 v7, 0x80000000, v7")
    a("v_xor_b32 v7, v7, v12")
    a(f"v_and_b32 v7, {HIM}, v7")
    a("v_or_b32 v7, v7, v4")
    a("s_mov_b32 exec_lo, 1")
    a("s_mov_b32 exec_hi, 1")
    a("ds_max_u32 v9, v7")
    a("s_mov_b64 exec, -1")
    if o.b1a:
        a("s_waitcnt lgkmcnt(0)")
        hold("K")
        a("s_barrier")
    if o.b0 == 2:
        for k in range(2):
            for t in range(4):
                a(f"ds_read_b128 {V(CM+16*t+4*k,4)}, v15 offset:{L_CT + t*2048 + k*1024}")
    a(f"s_lshl_b32 s{S.T1}, s{S.T1}, 3")
    a(f"v_lshl_add_u32 v14, v14, 4, s{S.T1}")
    a(f"v_lshl_add_u32 v{VTR}, v{VTR}, 7, v14")
    a("v_lshlrev_b32 v9, 4, v2")
    a("s_waitcnt vmcnt(0)" + ("" if o.b0 == 2 else " lgkmcnt(0)"))
    hold("B1")
    a("s_barrier")
    stamp(5)
    if o.b0 == 2:
        a("s_waitcnt lgkmcnt(5)")
    a(f"ds_read_b128 v[28:31], v9 offset:{L_EXP}")
    for k in range(4):
        for h in range(2):
            a(f"ds_read_b64_tr_b16 {V(AOP+4*k+2*h,2)}, v{VTR} offset:{L_TILE + k*4096 + h*512}")
        if k < 2 and not o.b0:
            for t in range(4):
                a(f"ds_read_b128 {V(CM+16*t+4*k,4)}, v15 offset:{L_CT + t*2048 + k*1024}")
        if k == 1 and not o.b0:
            a("s_waitcnt lgkmcnt(9)")
    a(f"global_load_dwordx4 {V(GW,4)}, v{VG16}, s[{S.PGW}:{S.PGW+1}]")
    xors = [f"v_xor_b32 v{CM+t*16+8+4*kp+r}, v{CM+t*16+4*kp+r}, v{VSGN}" for kp in range(2) for t in range(4) for r in range(4)]
    misc = [f"s_mul_i32 s{S.SO}, s{S.T0}, {16*CS}",
            f"s_add_u32 s{S.SO}, s{S.SO}, s{S.PIE}",
            f"s_and_b32 s{S.T4}, s{S.WAVE}, 3",
            f"s_lshl_b32 s{S.T4}, s{S.T4}, 9",
            f"s_add_u32 s{S.SO}, s{S.SO}, s{S.T4}",
            f"s_add_u32 s{S.SO}, s{S.SO}, {WS_INT}",
            f"s_mov_b32 s{S.RWS}, s{S.PWS}", f"s_mov_b32 s{S.RWS+1}, s{S.PWS+1}", f"s_mov_b32 s{S.RWS+2}, {WS_BYTES:#x}",
            f"s_mov_b32 s{S.RWS+3}, 0x20000",
            f"s_add_u32 s{S.SO+1}, s{S.SO}, {32*CS}", f"s_mov_b32 s{S.T5}, 0xfffefffe", f"s_mov_b32 s{S.T4}, 0x07060302",
            f"v_mul_u32_u24 v{VST}, {CS}, v1", f"v_lshl_add_u32 v{VST}, v2, 4, v{VST}",
            ]
    fill = xors + misc
    for k in range(4):
        for t in range(4):
            if o.b0:
                if t == 0:
                    a(f"s_waitcnt lgkmcnt({6-2*k})")
            elif k == 0:
                a(f"s_waitcnt lgkmcnt({13-t})")
            elif k == 1:
                a(f"s_waitcnt lgkmcnt({7-t})")
            elif t == 0:
                a(f"s_waitcnt lgkmcnt({2 if k == 2 else 0})")
            c = "0" if k == 0 else V(ACC + 4 * t, 4)
            a(f"{MF} {V(ACC+4*t,4)}, {V(AOP+4*k,4)}, {V(CM+16*t+4*k,4)}, {c}")
            n = 4 if k < 2 else 2
            if k < 3 or t < 3:
                for _ in range(n):
                    if fill:
                        x = fill.pop(0)
                        if x != "TAGWAIT":
                            a(x)
    for x in fill:
        a(x)
    a("v_mov_b32 v12, 0")
    a("v_mov_b32 v13, 0")
    for h in range(2):
        for i in range(8):
            a(f"v_add_u32 v{ACC+8*h+i}, 0x10000, v{ACC+8*h+i}")
        for i in range(4):
            a(f"v_perm_b32 v{AOP+4*h+i}, v{ACC+8*h+4+i}, v{ACC+8*h+i}, s{S.T4}")
        for i in range(4):
            a(f"v_and_or_b32 v{AOP+4*h+i}, v{AOP+4*h+i}, s{S.T5}, v{28+i}")
        a(f"buffer_store_dwordx4 {V(AOP+4*h,4)}, v{VST}, {R4(S.RWS)}, s{S.SO+h} offen sc1")
    a(f"s_mov_b32 s{S.SPIN}, 0")
    a(f"s_mov_b32 s{S.ISZ}, 0")
    stamp(7)
    if o.only == "P1":
        a("s_endpgm")
    a.label("L_ta_end")

    gwait = [2]

    def gates(full):
        if full:
            a(f"s_waitcnt vmcnt({gwait[0]})")
        dots(GW)
        if full:
            a(f"s_lshl_b32 s{S.T0}, s{S.WAVE}, 11")
            a(f"v_add_u32 v6, s{S.T0}, v{VG16}")
            a(f"ds_write_b128 v6, {V(XR,4)} offset:{L_XT}")
            a(f"ds_write_b128 v6, {V(XR+4,4)} offset:{L_XT+1024}")
            a(f"v_lshl_add_u32 v7, v1, 6, s{S.T0}")
            a("v_lshl_add_u32 v7, v2, 3, v7")
            a("s_waitcnt lgkmcnt(0)")
            for r in range(2):
                a(f"ds_read2_b64 {V(XR+4*r,4)}, v7 offset0:{0} offset1:{4}" if False else f"ds_read_b64 {V(XR+4*r,2)}, v7 offset:{L_XT+1024*r}")
                a(f"ds_read_b64 {V(XR+4*r+2,2)}, v7 offset:{L_XT+1024*r+32}")
            vrow_setup()
        sigmoid(13, 12)
        rnd(13, 13)
        a("v_sub_f32 v14, 1.0, v13")
        rnd(14, 14)
        a(f"v_readlane_b32 s{S.T0}, v13, 0")
        a(f"v_readlane_b32 s{S.T1}, v13, 32")
        a(f"v_readlane_b32 s{S.T2}, v14, 0")
        a(f"v_readlane_b32 s{S.T3}, v14, 32")
        a(f"s_xor_b32 s{S.T4}, s{S.T0}, 0x80000000")
        a(f"s_cmp_eq_u32 s{S.TD}, 0")
        a(f"s_cselect_b32 s{S.T4}, 0, s{S.T4}")
        a(f"s_cselect_b32 s{S.T5}, 0, s{S.T1}")
        if not full:
            return
        a(f"v_mov_b32 v{CO}, s{S.T0}")
        a(f"v_mov_b32 v{CO+1}, s{S.T4}")
        a(f"v_mov_b32 v{CO+2}, s{S.T5}")
        a(f"v_mov_b32 v{CO+3}, s{S.T1}")
        a(f"v_mov_b32 v13, s{S.T2}")
        a(f"v_mov_b32 v14, s{S.T3}")
        a("s_waitcnt lgkmcnt(0)")
        for r in range(2):
            for i in range(4):
                a(f"v_lshlrev_b32 v{XG+8*r+2*i}, 16, v{XR+4*r+i}")
                a(f"v_and_b32 v{XG+8*r+2*i+1}, {HIM}, v{XR+4*r+i}")
            for i in range(8):
                a(f"v_mul_f32 v{XG+8*r+i}, v{13+r}, v{XG+8*r+i}")

    def addr_ur(wreg):
        a(f"s_mul_i32 s{S.T1}, s{wreg}, {2*UB}")
        a("v_bfe_u32 v7, v1, 1, 2")
        a("v_xor_b32 v7, v7, v2")
        a(f"v_lshl_add_u32 v7, v7, 4, s{S.T1}")
        a(f"v_lshl_add_u32 v{VUR0}, v1, 6, v7")
        a("v_sub_u32 v6, 16, v1")
        a("v_bfe_u32 v7, v6, 1, 2")
        a("v_xor_b32 v7, v7, v2")
        a(f"v_lshl_add_u32 v7, v7, 4, s{S.T1}")
        a(f"v_lshl_add_u32 v{VUR1}, v6, 6, v7")

    def addr_p2():
        a("v_lshlrev_b32 v6, 4, v1")
        a(f"v_lshl_add_u32 v{VLD}, v2, 13, v6")
        a(f"v_mul_u32_u24 v6, {4*UB}, v2")
        a("v_bfe_u32 v7, v1, 1, 2")
        a(f"v_xor_b32 v7, s{S.WAVE}, v7")
        a("v_lshl_add_u32 v7, v7, 4, v6")
        a(f"v_lshl_add_u32 v{VUW}, v1, 6, v7")
        a(f"s_lshl4_add_u32 s{S.T1}, s{S.WAVE}, 1024")
        a(f"v_mov_b32 v9, {L_DUMP - L_U2}")
        a(f"v_lshl_add_u32 v{VUX}, v0, 1, v9")
        a(f"v_lshl_add_u32 v7, v1, 1, s{S.T1}")
        a("s_mov_b32 exec_lo, 0x00ff00ff")
        a("s_mov_b32 exec_hi, 0x00ff00ff")
        a(f"v_add_u32 v{VUX}, v7, v6")
        a("s_mov_b64 exec, -1")

    EXP = 96

    def exp_setup():
        a("v_and_b32 v6, 3, v1")
        a("v_lshlrev_b32 v6, 4, v6")
        a(f"ds_read_b128 {V(EXP,4)}, v6 offset:{L_EXP}")
        a("s_waitcnt lgkmcnt(0)")

    def exp_make():
        a("v_lshlrev_b32 v6, 1, v1")
        a(f"v_lshrrev_b32 v6, v6, v{VTAG}")
        a("v_lshlrev_b32 v7, 15, v6")
        a("v_and_b32 v6, 1, v6")
        a("v_and_b32 v7, 0x10000, v7")
        a("v_or_b32 v6, v6, v7")
        a("v_lshlrev_b32 v7, 2, v1")
        a(f"ds_write_b32 v7, v6 offset:{L_EXP}")
        a("s_waitcnt lgkmcnt(0)")

    def const_d1():
        a("v_cvt_f32_u32 v6, v1")
        a(f"s_lshl_b32 s{S.T0}, s{S.WAVE}, 2")
        a(f"v_lshl_add_u32 v7, v2, 6, s{S.T0}")
        a("v_mul_f32 v6, 0x3b000000, v6")
        a("v_cvt_f32_u32 v7, v7")
        a("v_mul_f32 v15, 0x41800000, v6")
        a("v_mul_f32 v7, v7, v6")
        for ib in range(4):
            if ib:
                a("v_add_f32 v7, v7, v6")
            for j in range(4):
                src = "v7" if j == 0 else "v9"
                a(f"v_cos_f32 v{Cc+j}, {src}")
                a(f"v_sin_f32 v{Ss+j}, {src}")
                if j < 3:
                    a(f"v_add_f32 v9, {src}, v15")
            b = M1 + 12 * ib
            a(f"v_mov_b32 v{b+8}, 0")
            for p in range(2):
                a(f"v_cvt_pk_bf16_f32 v{b+p}, v{Cc+2*p}, v{Cc+2*p+1}")
                a(f"v_cvt_pk_bf16_f32 v{b+4+p}, -v{Ss+2*p}, -v{Ss+2*p+1}")
            for p in range(2):
                a(f"v_xor_b32 v{b+2+p}, v{b+p}, v{VSGN}")
                a(f"v_xor_b32 v{b+6+p}, v{b+4+p}, v{VSGN}")
        a("v_lshrrev_b32 v6, 1, v1")
        a(f"v_add_u32 v7, s{S.T0}, v6")
        a("v_and_b32 v9, 1, v1")
        a("v_lshl_add_u32 v7, v9, 3, v7")
        a("v_cvt_f32_u32 v7, v7")
        a("v_mul_f32 v7, 0x3d000000, v7")
        a("v_cos_f32 v7, v7")
        for ib in range(4):
            m = 0x00030003 << (2 * ib)
            a(f"s_mov_b32 exec_lo, {m:#x}")
            a(f"s_mov_b32 exec_hi, {m:#x}")
            a(f"v_cvt_pk_bf16_f32 v{M1+12*ib+8}, v7, -v7")
        a("s_mov_b64 exec, -1")
        for ib in range(4):
            for p in range(1, 4):
                a(f"v_mov_b32 v{M1+12*ib+8+p}, v{M1+12*ib+8}")

    def const_ga():
        a("v_lshrrev_b32 v6, 1, v1")
        a(f"s_lshl_b32 s{S.T0}, s{S.HH}, 10")
        a(f"s_add_u32 s{S.T0}, s{S.T0}, s{S.T1C}")
        a(f"v_lshl_add_u32 v6, v6, 7, s{S.T0}")
        a("v_and_b32 v7, 1, v1")
        a("v_lshlrev_b32 v9, 9, v7")
        l0, ld = a.L("g0"), a.L("gd")
        a(f"s_cmp_lg_u32 s{S.T1C}, 0")
        a(f"s_cbranch_scc1 {l0}")
        a("s_mov_b32 exec_lo, 0x00020002")
        a("s_mov_b32 exec_hi, 0x00020002")
        a("v_mov_b32 v6, 0x400")
        a("v_mov_b32 v9, 0")
        a("s_mov_b64 exec, -1")
        a.label(l0)
        a("v_lshlrev_b32 v7, 2, v2")
        a("v_mad_u32_u24 v9, v7, v6, v9")
        a("v_cvt_f32_u32 v6, v6")
        a("v_cvt_f32_u32 v9, v9")
        a("v_mul_f32 v6, 0x3a000000, v6")
        a("v_mul_f32 v9, 0x3a000000, v9")
        for jj in range(4):
            a(f"v_cos_f32 v{Cc+jj}, v9")
            a(f"v_sin_f32 v{Ss+jj}, v9")
            if jj < 3:
                a("v_add_f32 v9, v9, v6")
        a(f"s_and_b32 s{S.T1}, s{S.T1C}, 63")
        a.nop(1)
        for jj in range(4):
            a(f"v_cvt_pk_bf16_f32 v{GA+jj}, v{Cc+jj}, v{Ss+jj}")
        a(f"s_cmp_lg_u32 s{S.T1}, 0")
        a(f"s_cbranch_scc1 {ld}")
        a(f"s_lshr_b32 s{S.T1}, s{S.T1C}, 2")
        for jj in range(4):
            a(f"v_and_b32 v{GA+jj}, 0xffff, v{GA+jj}")
            a(f"v_lshlrev_b32 v{GA+jj}, s{S.T1}, v{GA+jj}")
        a.label(ld)

    def int_base():
        a(f"s_and_b32 s{S.T1}, s{S.T1C}, 63")
        a(f"s_mul_i32 s{S.L0}, s{S.T1}, {CS}")
        a(f"s_lshl_b32 s{S.T1}, s{S.WAVE}, 9")
        a(f"s_add_u32 s{S.L0}, s{S.L0}, s{S.T1}")
        a(f"s_add_u32 s{S.L0}, s{S.L0}, {WS_INT}")
        a(f"s_add_u32 s{S.L1}, s{S.L0}, 4096")

    def m2_addr():
        a(f"s_cmp_eq_u32 s{S.TD}, 0")
        a(f"s_cselect_b32 s{S.T0}, 0, 2048")
        a(f"v_add_u32 v4, s{S.T0}, v{VG16}")

    def int_loads(ah):
        for jj in range(4):
            so = S.L0 if jj < 2 else S.L1
            a(f"buffer_load_dwordx4 {V(LD+16*ah+4*jj,4)}, v{VLD}, {R4(S.RWS)}, s{so} offen offset:{(jj & 1)*2048 + ah*256} sc1")

    a.srd(S.ROUT, S.POUT, 0x200000)
    a(f"s_cmp_ge_u32 s{S.WAVE}, 4")
    a("s_cbranch_scc1 L_hi0")
    if o.prio & 1:
        a("s_setprio 2")
    pre = [lambda: (addr_p2(), int_base(), const_ga(), exp_setup()), const_d1, lambda: gates(True), lambda: (addr_ur(S.WAVE), m2_addr())]
    if o.gfirst:
        pre[1], pre[2] = pre[2], pre[1]
    for f in pre[:o.npre]:
        f()
    stamp(8)
    a(f"s_waitcnt vmcnt({0 if o.ackwait else 2})")
    if o.b3:
        a("s_barrier")
    if o.isleep0:
        a(f"s_sleep {o.isleep0}")
    hold("B4")
    stamp(9)
    if o.stag:
        a(f"s_cmp_lg_u32 s{S.HH}, 0")
        a("s_cbranch_scc1 L_stg1")
        int_loads(0)
        a(f"s_waitcnt vmcnt({4 - o.stag})")
        int_loads(1)
        a("s_branch L_stg2")
        a.label("L_stg1")
        int_loads(1)
        a(f"s_waitcnt vmcnt({4 - o.stag})")
        int_loads(0)
        a("s_waitcnt vmcnt(0)")
        a.label("L_stg2")
    else:
        int_loads(0)
        int_loads(1)
    gwait[0] = 10
    for f in pre[o.npre:]:
        f()
    gwait[0] = 2
    a.label("L_zjoin")
    stamp(10)
    for ah in range(2):
        a(f"s_waitcnt vmcnt({4-4*ah})")
        a.label(f"L_got{ah}")
        b = LD + 16 * ah
        da = DA1 if ah else DA0
        for ib in range(4):
            for jj in range(4):
                a(f"v_xor_b32 v{TP+4*ib+jj}, v{b+4*jj+ib}, v{EXP+ib}")
            if ib == 0:
                a(f"v_or3_b32 v6, v{TP}, v{TP+1}, v{TP+2}")
                a(f"v_or_b32 v6, v6, v{TP+3}")
            else:
                a(f"v_or3_b32 v6, v6, v{TP+4*ib}, v{TP+4*ib+1}")
                a(f"v_or3_b32 v6, v6, v{TP+4*ib+2}, v{TP+4*ib+3}")
            if ib == 3:
                a("v_and_b32 v6, 0x10001, v6")
                a("v_cmp_ne_u32 vcc, 0, v6")
            if not (ah == 1):
                a(f"{MF} {V(da+4*ib,4)}, {V(TP+4*ib,4)}, {V(GA,4)}, 0")
            else:
                a(f"{MF} {V(da+4*ib,4)}, {V(TP+4*ib,4)}, {V(GA,4)}, 0")
        a(f"s_cbranch_vccnz L_retry{ah}")
        a.label(f"L_fail{ah}")
    stamp(11)

    def d1(jb):
        a(f"{MF} {V(DA0+4*jb,4)}, {V(TP+4*jb,4)}, {V(M1+12*jb,4)}, 0")
        a(f"{MF} {V(DA1+4*jb,4)}, {V(TP+4*jb,4)}, {V(M1+12*jb+4,4)}, 0")
        a(f"{MF} {V(X16,4)}, {V(TP+4*jb,4)}, {V(M1+12*jb+8,4)}, {'0' if jb == 0 else V(X16,4)}")

    for ib in range(4):
        for p in range(4):
            s0 = (DA1 if p >= 2 else DA0) + 4 * ib + 2 * (p & 1)
            a(f"v_cvt_pk_bf16_f32 v{TP+4*ib+p}, v{s0}, v{s0+1}")
        if ib:
            d1(ib - 1)
    d1(3)
    for ib in range(3):
        for i in range(4):
            a(f"v_cvt_pk_bf16_f32 v{PK+4*i+ib}, v{DA0+4*ib+i}, v{DA1+4*ib+i}")
    for i in range(4):
        a(f"v_cvt_pk_bf16_f32 v{PK+4*i+3}, v{DA0+12+i}, v{DA1+12+i}")
        a(f"ds_write_b128 v{VUW}, {V(PK+4*i,4)} offset:{L_U2 + i*UB}")
    a(f"v_cvt_pk_bf16_f32 v{X16}, v{X16}, v{X16+1}")
    a(f"v_cvt_pk_bf16_f32 v{X16+2}, v{X16+2}, v{X16+3}")
    a(f"ds_write_b16 v{VUX}, v{X16} offset:{L_U2}")
    a(f"ds_write_b16_d16_hi v{VUX}, v{X16} offset:{L_U2+UB}")
    a(f"ds_write_b16 v{VUX}, v{X16+2} offset:{L_U2+2*UB}")
    a(f"ds_write_b16_d16_hi v{VUX}, v{X16+2} offset:{L_U2+3*UB}")
    a.label("L_d2")
    a(f"ds_read_b128 {V(M2,4)}, v{VG16} offset:{L_M2}")
    a(f"ds_read_b128 {V(M2+4,4)}, v{VG16} offset:{L_M2+1024}")
    a(f"ds_read_b128 {V(M2+8,4)}, v4 offset:{L_M2}")
    a(f"ds_read_b128 {V(M2+12,4)}, v4 offset:{L_M2+1024}")
    a(f"v_mov_b32 v9, {L_GKEY}")
    a(f"s_cmp_lg_u32 s{S.ISZ}, 0")
    a("s_waitcnt lgkmcnt(0)")
    a("s_cbranch_scc1 L_zsync")
    a("s_barrier")
    stamp(12)
    a("ds_read_b32 v6, v9")
    a(f"ds_read_b128 {V(UO,4)}, v{VUR0} offset:{L_U2}")
    a(f"ds_read_b128 {V(UO+4,4)}, v{VUR1} offset:{L_U2}")
    a(f"ds_read_b128 {V(UO+8,4)}, v{VUR0} offset:{L_U2+UB}")
    a(f"ds_read_b128 {V(UO+12,4)}, v{VUR1} offset:{L_U2+UB}")
    a(f"s_lshl_b32 s{S.T0}, s{S.TD}, 10")
    a(f"s_lshl_b32 s{S.T1}, s{S.TM}, 10")
    for k in range(4):
        a(f"s_waitcnt lgkmcnt({3-k})")
        a(f"{MF} {V(PQ+4*k,4)}, {V(UO+4*k,4)}, {V(M2+4*k,4)}, 0")
    a(f"v_readfirstlane_b32 s{S.GKEY}, v6")
    a(f"s_andn2_b32 s{S.IDX}, 0xffff, s{S.GKEY}")
    for r in range(2):
        for i in range(8):
            a(f"v_fmac_f32 v{XG+8*r+i}, v{CO+2*r}, v{PQ+i}")
    for r, (so, tr) in enumerate(((S.T0, S.TD), (S.T1, S.TM))):
        for i in range(8):
            a(f"v_fmac_f32 v{XG+8*r+i}, v{CO+2*r+1}, v{PQ+8+i}")
        for i in range(4):
            a(f"v_cvt_pk_bf16_f32 v{UO+4*r+i}, v{XG+8*r+2*i}, v{XG+8*r+2*i+1}")
        l = a.L("skip")
        if r == 0:
            stamp(6)
        a(f"s_cmp_eq_u32 s{tr}, s{S.IDX}")
        a(f"s_cbranch_scc1 {l}")
        a(f"v_permlane16_swap_b32 v{UO+4*r}, v{UO+4*r+2}")
        a(f"v_permlane16_swap_b32 v{UO+4*r+1}, v{UO+4*r+3}")
        a(f"buffer_store_dwordx4 {V(UO+4*r,4)}, v{VROW}, {R4(S.ROUT)}, s{so} offen{o.outpol}")
        a.label(l)
    a.label("L_tb_end")
    stamp(13)
    if o.stamps:
        a("s_waitcnt vmcnt(0)")
        stamp(15)
    endprog()

    for ah in range(2):
        a.label(f"L_retry{ah}")
        if o.stamps:
            a(f"s_add_u32 s{S.RC}, s{S.RC}, {1 << (8*ah)}")
        if o.rsleep:
            a(f"s_sleep {o.rsleep}")
        spin()
        a(f"s_cbranch_scc1 L_fail{ah}")
        int_loads(ah)
        a("s_waitcnt vmcnt(0)")
        a(f"s_branch L_got{ah}")

    a.label("L_hi0")
    if o.b3:
        if o.ackwait:
            a("s_waitcnt vmcnt(0)")
        a("s_barrier")
    a.label("L_hi1")
    if o.atouch:
        touch("L_tb", o.atouch, 4, 4)
        a(f"s_cmp_lg_u32 s{S.ISZ}, 0")
        a("s_cbranch_scc1 L_z0b")
    gates(True)
    addr_ur(S.WAVE)
    m2_addr()
    stamp(10)
    a("s_branch L_d2")

    a.label("L_ah")
    if o.prio & 2:
        a("s_setprio 3")
    if o.cpf:
        a(f"s_cmp_ge_u32 s{S.T1}, {o.cpf}")
        a("s_cbranch_scc1 L_nocpf")
        a(f"s_getpc_b64 s[{S.EX}:{S.EX+1}]")
        a.label("L_pc")
        a(f"s_sub_u32 s{S.EX}, s{S.EX}, L_pc - {name}")
        a(f"s_subb_u32 s{S.EX+1}, s{S.EX+1}, 0")
        a("v_lshlrev_b32 v6, 7, v0")
        a("v_add_u32 v7, 0x2000, v6")
        a(f"v_min_u32 v7, L_end - {name}, v7")
        a(f"v_mov_b32 v13, s{S.EX+1}")
        a(f"v_mov_b32 v15, s{S.EX+1}")
        a(f"v_add_co_u32 v12, vcc, s{S.EX}, v6")
        a.nop(2)
        a("v_addc_co_u32 v13, vcc, 0, v13, vcc")
        a(f"v_add_co_u32 v14, vcc, s{S.EX}, v7")
        a.nop(2)
        a("v_addc_co_u32 v15, vcc, 0, v15, vcc")
        a("global_load_dword v10, v[12:13], off")
        a("global_load_dword v11, v[14:15], off")
        a.label("L_nocpf")
    a(f"v_lshlrev_b32 v{VG16}, 4, v0")
    a(f"v_mov_b32 v{VTAG}, 0")
    a(f"v_mov_b32 v9, {L_KSL}")
    a(f"ds_write_b32 v9, v{VTAG}")
    a(f"s_mov_b32 s{S.KM}, 0x9E3779B1")
    a(f"s_cmp_ge_u32 s{S.T1}, {o.wpf}")
    a("s_waitcnt lgkmcnt(0)")
    a("s_cbranch_scc1 L_nowpf")
    a(f"global_load_dwordx4 v[32:35], v{VG16}, s[{S.PWR}:{S.PWR+1}]")
    a(f"global_load_dword v{VE}, v{VTAG}, s[{S.PWS}:{S.PWS+1}]")
    a(f"global_load_dwordx4 v[36:39], v{VG16}, s[{S.PGW}:{S.PGW+1}]")
    a.label("L_nowpf")
    stamp(1)
    a("v_lshrrev_b32 v14, 2, v0")
    a("v_lshlrev_b32 v14, 13, v14")
    a("v_and_b32 v6, 3, v0")
    a("v_lshl_add_u32 v14, v6, 4, v14")
    a(f"s_lshl_b32 s{S.ID8}, s2, 6")
    a(f"s_add_u32 s{S.ID8}, s{S.ID8}, {WS_KEYS}")
    ws_setup()

    if o.b0 == 2:
        a("s_barrier")
    const_d2()
    a(f"global_load_dword v{VE}, v{VTAG}, s[{S.PWS}:{S.PWS+1}]")
    a("s_waitcnt lgkmcnt(0)")
    stamp(2)
    if o.b0 == 1:
        a("s_barrier")
    a(f"v_mov_b32 v9, {L_KSL}")
    a("s_waitcnt vmcnt(0)")
    tag_make()
    exp_make()
    a(f"v_mov_b32 v9, {L_KSL}")
    stamp(3)
    a("s_barrier")
    a("ds_read_b32 v28, v9")
    a(f"ds_read_b32 v{VE}, v9")
    a(f"v_mov_b32 v29, v{VTAG}")
    a("s_waitcnt lgkmcnt(0)")
    for q in range((8 * o.kc + 15) // 16):
        if q:
            a(f"s_add_u32 s{S.ID8}, s{S.ID8}, {16*8192}")
        if 8 * o.kc - 16 * q < 16:
            set_exec(4 * (8 * o.kc - 16 * q))
        a(f"buffer_store_dwordx4 v[28:31], v14, {R4(S.RWS)}, s{S.ID8} offen sc1")
    if o.probe >= 0:
        a("s_mov_b64 exec, 1")
        a("v_mov_b32 v40, s66")
        a(f"v_mov_b32 v41, v{VTAG}")
        a(f"s_add_u32 s{S.T0}, s{S.ID8}, {WS_KEY2 - WS_KEY}")
        a(f"buffer_store_dwordx2 v[40:41], v14, {R4(S.RWS)}, s{S.T0} offen sc1")
    a("s_mov_b64 exec, -1")
    stamp(5)
    if o.b1a:
        a("s_barrier")
    if o.only == "P1":
        a("s_endpgm")
    if o.htouch:
        touch("L_th", o.htouch, 8, 1)
    kpoll_setup()
    a("s_waitcnt vmcnt(0)")
    if not o.gate and o.b3:
        a("s_barrier")
    if o.k2sleep0:
        a(f"s_sleep {o.k2sleep0}")
    stamp(8)
    kpoll(32, o.k2sleep)
    stamp(9)
    wave_max_key(32)
    lds_put(L_GKEY, 32)
    if o.gate:
        a(f"s_sleep {o.gate}")
        a("s_barrier")
        if o.probe >= 0:
            a("s_cmp_lg_u32 s2, 9")
            a("s_cbranch_scc1 L_noprobe")
            a("s_barrier")
            a(f"s_mov_b32 s{S.PO}, {WS_KEY2}")
            a(f"s_mov_b32 s{S.POL}, {WS_KEY2}")
            poll_granules(VG16, 32, sleep=4)
            for i in range(8):
                a(f"v_readlane_b32 s{70+i}, v{32 + 2*(i&1)}, {i>>1}")
            a("s_mov_b32 s80, s70")
            for i in range(1, 8):
                a(f"s_sub_u32 s81, s{70+i}, s80")
                a("s_cmp_lt_i32 s81, 0")
                a(f"s_cselect_b32 s80, s{70+i}, s80")
            if o.probe < 8:
                a(f"s_sub_u32 s81, s{70+o.probe}, s80")
            else:
                a("s_mov_b32 s81, 0")
                for i in range(8):
                    a(f"s_sub_u32 s82, s{70+i}, s80")
                    a("s_max_u32 s81, s81, s82")
            a("s_mul_i32 s81, s81, 10")
            a("s_add_u32 s81, s81, 800")
            a.label("L_pw")
            a("s_sleep 1")
            a("s_memrealtime s[100:101]")
            a("s_waitcnt lgkmcnt(0)")
            a("s_sub_u32 s100, s100, s80")
            a("s_cmp_lt_u32 s100, s81")
            a("s_cbranch_scc1 L_pw")
            a.label("L_noprobe")
        if o.hold and o.hold[0] == "endA":
            a(f"s_sub_u32 s{S.T0}, s2, {o.hold[2]}")
            a(f"s_cmp_ge_u32 s{S.T0}, {o.hold[3]}")
            a("s_cbranch_scc1 L_nohold")
            a("s_barrier")
            hold("endA")
            a.label("L_nohold")
        endprog()
    a("s_barrier")
    endprog()

    a.label("L_notA")
    if o.only == "AA":
        a("s_endpgm")
    a(f"s_lshl4_add_u32 s{S.FJ}, s{S.T0}, s{S.T1}")
    a(f"s_sub_u32 s{S.FJ}, s{S.FJ}, 16")
    a(f"s_cmp_ge_u32 s2, {NWG}")
    a("s_cbranch_scc1 L_end")
    a(f"s_cmp_lt_u32 s{S.T0}, 4")
    a("s_cbranch_scc1 L_F")
    a(f"s_mul_i32 s{S.FJ}, s{S.T0}, 12")
    a(f"s_add_u32 s{S.FJ}, s{S.FJ}, s{S.T1}")
    a(f"s_cmp_lt_u32 s{S.T1}, 28")
    a("s_cbranch_scc1 L_F")
    a(f"s_mov_b32 s{S.ISZ}, 1")
    a(f"s_lshl2_add_u32 s{S.Z}, s{S.T0}, s{S.T1}")
    a(f"s_sub_u32 s{S.Z}, s{S.Z}, 44")
    vrow_setup()
    a(f"v_lshlrev_b32 v{VG16}, 4, v0")
    sgn_setup()
    a("s_waitcnt lgkmcnt(0)")
    ws_setup()
    a.srd(S.ROUT, S.POUT, 0x200000)
    addr_p2()
    a(f"s_cmp_eq_u32 s{S.WAVE}, 8")
    a("s_cbranch_scc1 L_zh")
    a(f"s_cmp_ge_u32 s{S.WAVE}, 4")
    a("s_cbranch_scc1 L_z0")
    const_d1()
    a("s_branch L_z1")
    a.label("L_z0")
    if o.atouch:
        a("s_branch L_hi1")
    a.label("L_z0b")
    if o.ztouch:
        touch("L_tz", o.ztouch, 4, 4)
    a.label("L_z1")
    a(f"v_mov_b32 v9, {L_KSL}")
    a("v_mov_b32 v12, 0")
    a("v_mov_b32 v13, 0")
    a("s_barrier")
    a(f"ds_read_b64 v[{VE}:{VTAG}], v9")
    a(f"ds_read_b128 {V(GW,4)}, v{VG16} offset:{L_WV+1024}")
    a("s_waitcnt lgkmcnt(0)")
    a(f"v_readfirstlane_b32 s{S.GKEY}, v{VE}")
    a(f"s_andn2_b32 s{S.IDX}, 2047, s{S.GKEY}")
    a(f"s_and_b32 s{S.T0}, s{S.IDX}, 127")
    a(f"s_cmp_gt_u32 s{S.T0}, 64")
    a(f"s_cselect_b32 s{S.WHICH}, 1, 0")
    a(f"s_and_b32 s{S.T0}, s{S.IDX}, {1024 + 63}")
    a(f"s_cmp_eq_u32 s{S.T0}, 1024")
    a(f"s_cselect_b32 s{S.WHICH}, 1, s{S.WHICH}")
    a(f"s_sub_u32 s{S.T0}, 2048, s{S.IDX}")
    a(f"s_cmp_lg_u32 s{S.WHICH}, 0")
    a(f"s_cselect_b32 s{S.T0}, s{S.T0}, s{S.IDX}")
    a(f"s_cmp_eq_u32 s{S.T0}, 1024")
    a(f"s_cselect_b32 s{S.T0}, 0, s{S.T0}")
    a(f"s_and_b32 s{S.T1C}, s{S.T0}, 127")
    a(f"s_lshr_b32 s{S.HH}, s{S.T0}, 10")
    a(f"s_bfe_u32 s{S.WSEL}, s{S.T0}, 0x30007")
    rows_setup(S.WSEL)
    a(f"s_cmp_ge_u32 s{S.WAVE}, 4")
    a("s_cbranch_scc1 L_z4")
    int_base()
    if o.zisleep0:
        a(f"s_sleep {o.zisleep0}")
    stamp(9)
    int_loads(0)
    int_loads(1)
    const_ga()
    exp_setup()
    addr_ur(S.WSEL)
    m2_addr()
    a("v_lshlrev_b32 v6, 7, v1")
    a(f"v_lshl_add_u32 v15, v2, 4, v6")
    a("s_branch L_zjoin")
    a.label("L_z4")
    a(f"s_cmp_ge_u32 s{S.WAVE}, 6")
    a("s_cbranch_scc1 L_zend2")
    rows_load()
    a(f"s_sub_u32 s{S.T0}, s{S.WAVE}, 4")
    a(f"s_lshl1_add_u32 s{S.T1}, s{S.Z}, s{S.T0}")
    a(f"s_lshl_b32 s{S.T1}, s{S.T1}, 5")
    a("v_and_b32 v6, 7, v0")
    a(f"v_lshl_add_u32 v10, v6, 2, s{S.T1}")
    a(f"s_lshl_b32 s{S.T2}, s{S.IDX}, 10")
    a(f"v_add_u32 v7, s{S.T2}, v10")
    a(f"global_load_dword v35, v7, {PXS}")
    a("v_lshlrev_b32 v10, 1, v10")
    a("v_lshrrev_b32 v7, 3, v0")
    a("v_lshlrev_b32 v7, 8, v7")
    a("v_lshl_add_u32 v11, v6, 4, v7")
    a(f"s_mul_i32 s{S.SI0}, s{S.Z}, {PZ}")
    a(f"s_lshl_b32 s{S.T0}, s{S.T0}, 7")
    a(f"s_add_u32 s{S.SI0}, s{S.SI0}, s{S.T0}")
    a(f"s_add_u32 s{S.SI0}, s{S.SI0}, {WS_PART}")
    a(f"s_add_u32 s{S.SI1}, s{S.SI0}, {(o.pc-1)*PARTC}")
    a(f"s_and_b32 s{S.T0}, s{S.GKEY}, 0xffff0000")
    a(f"s_xor_b32 s{S.T1}, s{S.T0}, 0x80000000")
    a(f"s_xor_b32 s{S.T3}, s{S.T0}, 0xffff0000")
    a(f"s_bitcmp1_b32 s{S.T0}, 31")
    a(f"s_cselect_b32 s{S.T0}, s{S.T1}, s{S.T3}")
    a(f"v_mov_b32 v15, s{S.T0}")
    sigmoid(15, 15)
    rnd(15, 15)
    a("s_waitcnt vmcnt(0)")
    gates(False)
    a(f"s_cmp_lg_u32 s{S.WHICH}, 0")
    a(f"s_cselect_b32 s{S.T2}, s{S.T3}, s{S.T2}")
    a(f"s_cselect_b32 s{S.T0}, s{S.T5}, s{S.T0}")
    a(f"s_cselect_b32 s{S.T4}, s{S.T1}, s{S.T4}")
    a(f"v_xor_b32 v{VTAG}, s{S.IDX}, v{VTAG}")
    a(f"v_mov_b32 v36, s{S.T2}")
    a(f"v_mov_b32 v{CO}, s{S.T0}")
    a(f"v_mov_b32 v{CO+1}, s{S.T4}")
    a("v_lshlrev_b32 v34, 16, v35")
    a(f"v_and_b32 v35, {HIM}, v35")
    if o.psleep0:
        a(f"s_sleep {o.psleep0}")
    hold("pp")
    a(f"v_mov_b32 v9, {L_ZF}")
    a.label("L_tz_start")
    stamp(10)
    if o.psleep:
        a("s_branch L_zp1")
    a.label("L_zp")
    if o.psleep:
        a(f"s_sleep {o.psleep}")
        a.label("L_zp1")
    for i in range(7):
        if i and i % 2 == 0:
            a(f"s_add_u32 s{S.T0}, s{S.SI0}, {2048*i}")
        a(f"buffer_load_dwordx4 {V(40+4*i,4)}, v11, {R4(S.RWS)}, s{S.T0 if i >= 2 else S.SI0} offen offset:{2048*(i&1)} sc1")
    a(f"s_add_u32 s{S.SI0}, s{S.SI0}, {PARTC}")
    a(f"s_min_u32 s{S.SI0}, s{S.SI0}, s{S.SI1}")
    if o.stamps:
        a(f"s_add_u32 s{S.RC}, s{S.RC}, 256")
    spin()
    a("s_cbranch_scc1 L_zp_ok")
    for i in range(7):
        a(f"s_waitcnt vmcnt({6-i})")
        a(f"v_bitop3_b32 v{37 if i == 0 else 38 + (i & 1)}, v{41+4*i}, v{43+4*i}, v{VTAG} bitop3:0x7e")
        if i:
            a(f"v_add_f32 v40, v40, v{40+4*i}")
            a(f"v_add_f32 v42, v42, v{42+4*i}")
        if i and i % 2 == 0:
            a("v_or3_b32 v37, v37, v38, v39")
    a("v_cmp_ne_u32 vcc, 0, v37")
    a.nop(1)
    a("s_cbranch_vccnz L_zp")
    a.label("L_zp_ok")
    a("ds_read_b32 v12, v9")
    a(f"ds_read_b64 v[32:33], v10 offset:{L_XG2}")
    a(f"ds_read_b64 v[16:17], v10 offset:{L_XG2+2048}")
    a("v_lshrrev_b32 v11, 1, v10")
    a(f"s_lshl_b32 s{S.T2}, s{S.IDX}, 10")
    a("s_waitcnt vmcnt(0)")
    stamp(11)
    a(f"v_add_f32_dpp v40, v40, v40 row_ror:8 {DPPM}")
    a(f"v_add_f32_dpp v42, v42, v42 row_ror:8 {DPPM}")
    a.nop(1)
    a.nop(1)
    a("v_permlane16_swap_b32 v40, v42")
    a("v_add_f32 v40, v40, v42")
    a("v_mov_b32 v42, v40")
    a.nop(2)
    a("v_permlane32_swap_b32 v40, v42")
    a("v_add_f32 v40, v40, v42")
    a("v_mov_b32 v42, v40")
    a.nop(2)
    a("v_permlane16_swap_b32 v40, v42")
    a("v_cvt_pk_bf16_f32 v41, v40, v42")
    a("v_lshlrev_b32 v40, 16, v41")
    a(f"v_and_b32 v42, {HIM}, v41")
    a("v_mul_f32 v40, v40, v15")
    a("v_mul_f32 v42, v42, v15")
    a("v_cvt_pk_bf16_f32 v41, v40, v42")
    a("v_lshlrev_b32 v40, 16, v41")
    a(f"v_and_b32 v42, {HIM}, v41")
    a("v_add_f32 v40, v40, v34")
    a("v_add_f32 v42, v42, v35")
    a("v_cvt_pk_bf16_f32 v41, v40, v42")
    a("v_lshlrev_b32 v40, 16, v41")
    a(f"v_and_b32 v42, {HIM}, v41")
    a.label("L_zw")
    a("s_waitcnt lgkmcnt(0)")
    a("v_cmp_eq_u32 vcc, 0, v12")
    a(f"v_mul_f32 v32, v{CO}, v32")
    a(f"v_mul_f32 v33, v{CO}, v33")
    a("s_cbranch_vccz L_zw_ok")
    spin()
    a("s_cbranch_scc1 L_zw_ok")
    a("ds_read_b32 v12, v9")
    a(f"ds_read_b64 v[32:33], v10 offset:{L_XG2}")
    a(f"ds_read_b64 v[16:17], v10 offset:{L_XG2+2048}")
    a("s_branch L_zw")
    a.label("L_zw_ok")
    a(f"v_fmac_f32 v32, v{CO+1}, v16")
    a(f"v_fmac_f32 v33, v{CO+1}, v17")
    a("v_fmac_f32 v32, v40, v36")
    a("v_fmac_f32 v33, v42, v36")
    a("v_cvt_pk_bf16_f32 v32, v32, v33")
    a("s_mov_b64 exec, 0xff")
    a(f"buffer_store_dword v32, v11, {R4(S.ROUT)}, s{S.T2} offen{o.zpol}")
    a("s_mov_b64 exec, -1")
    stamp(13)
    if o.stamps:
        a("s_waitcnt vmcnt(0)")
        stamp(15)
    a("s_barrier")
    endprog()

    a.label("L_zsync")
    a(f"v_mov_b32 v9, {L_ZC}")
    a("v_mov_b32 v6, 1")
    a("s_mov_b64 exec, 1")
    a("ds_add_u32 v9, v6")
    a("s_mov_b64 exec, -1")
    a(f"s_cmp_lg_u32 s{S.WAVE}, 0")
    a("s_cbranch_scc1 L_zend")
    a.label("L_zs")
    a("ds_read_b32 v6, v9")
    spin()
    a("s_waitcnt lgkmcnt(0)")
    a("s_cbranch_scc1 L_zs_ok")
    a("v_cmp_ne_u32 vcc, 4, v6")
    a.nop(1)
    a("s_cbranch_vccnz L_zs")
    a.label("L_zs_ok")
    stamp(12)
    a(f"ds_read_b128 {V(UO,4)}, v{VUR0} offset:{L_U2}")
    a(f"ds_read_b128 {V(UO+4,4)}, v{VUR1} offset:{L_U2}")
    a(f"ds_read_b128 {V(UO+8,4)}, v{VUR0} offset:{L_U2+UB}")
    a(f"ds_read_b128 {V(UO+12,4)}, v{VUR1} offset:{L_U2+UB}")
    for k in range(4):
        a(f"s_waitcnt lgkmcnt({3-k})")
        a(f"{MF} {V(PQ+4*k,4)}, {V(UO+4*k,4)}, {V(M2+4*k,4)}, 0")
    a.nop(3)
    for k in range(4):
        if k == 2:
            a.nop(2)
        a(f"ds_write_b128 v15, {V(PQ+4*k,4)} offset:{L_XG2 + 64*(k&1) + 2048*(k>>1)}")
    a(f"v_mov_b32 v9, {L_ZF}")
    a("s_waitcnt lgkmcnt(0)")
    a("ds_write_b32 v9, v9")
    a("s_waitcnt lgkmcnt(0)")
    stamp(13)
    a.label("L_zend")
    endprog()
    a.label("L_zend2")
    if o.hold and o.hold[0] == "end":
        a("s_barrier")
    hold("end")
    if o.ev:
        lo, n, w, st, med = [int(v) for v in o.ev.split(":")]
        a("s_cmp_lg_u32 s2, 255")
        a("s_cbranch_scc1 L_noev")
        a(f"s_cmp_lg_u32 s{S.WAVE}, 7")
        a("s_cbranch_scc1 L_noev")
        a("s_barrier")
        a.label("L_ev0")
        a("s_sleep 4")
        a("s_memrealtime s[100:101]")
        a("s_waitcnt lgkmcnt(0)")
        a(f"s_sub_u32 s100, s100, s{S.ST}")
        a("s_cmp_lt_u32 s100, 750")
        a("s_cbranch_scc1 L_ev0")
        a("v_lshlrev_b32 v6, 11, v0")
        a(f"v_add_u32 v7, {WS_STAMP + 8*128}, v6")
        a(f"global_load_dword v40, v7, s[{S.PWS}:{S.PWS+1}] sc1")
        a(f"v_add_u32 v7, {WS_STAMP + lo*2048 + w*128 + st*8}, v6")
        for q in range(n // 64):
            a(f"global_load_dword v{44+q}, v7, s[{S.PWS}:{S.PWS+1}] sc1")
            a(f"v_add_u32 v7, {64*2048}, v7")
        a("s_waitcnt vmcnt(0)")
        a(f"v_subrev_u32 v40, s{S.ST}, v40")
        a("v_sub_u32 v40, 1000, v40")
        a("v_mov_b32 v42, v40")
        wave_max_key(40)
        a("v_mov_b32 v41, 0")
        for q in range(n // 64):
            a(f"v_subrev_u32 v{44+q}, s{S.ST}, v{44+q}")
            a(f"v_cmp_gt_u32 vcc, 1000, v{44+q}")
            a.nop(2)
            a(f"v_cndmask_b32 v{44+q}, 0, v{44+q}, vcc")
            a(f"v_max_u32 v41, v41, v{44+q}")
        a("v_mov_b32 v43, v41")
        wave_max_key(41)
        a.nop(2)
        a("v_readlane_b32 s6, v40, 63")
        a("v_readlane_b32 s7, v41, 63")
        a("s_sub_u32 s6, s6, 1000")
        a("s_min_u32 s6, s6, 300")
        a("s_add_u32 s7, s7, s6")
        a("s_mul_i32 s7, s7, 4")
        a("s_add_u32 s7, s7, 900")
        a("s_sub_u32 s7, s7, s6")
        a.label("L_ev1")
        a("s_sleep 1")
        a("s_memrealtime s[100:101]")
        a("s_waitcnt lgkmcnt(0)")
        a(f"s_sub_u32 s100, s100, s{S.ST}")
        a("s_cmp_lt_u32 s100, s7")
        a("s_cbranch_scc1 L_ev1")
        a.label("L_noev")
    endprog()

    a.label("L_zh")
    a(f"v_mov_b32 v9, {L_ZF}")
    a("v_mov_b32 v6, 0")
    a("ds_write2_b32 v9, v6, v6 offset1:1")
    const_d2()
    a(f"s_mov_b32 m0, {L_WV+1024}")
    tag_load()
    a(f"global_load_lds_dwordx4 v{VG16}, s[{S.PGW}:{S.PGW+1}]")
    a("s_waitcnt vmcnt(0)")
    tag_make()
    exp_make()
    kpoll_setup()
    if o.zsleep0:
        a(f"s_sleep {o.zsleep0}")
    stamp(1)
    kpoll(32, o.zsleep)
    stamp(2)
    wave_max_key(32)
    lds_put(L_KSL, 32, tag=True)
    a("s_barrier")
    a(f"s_lshl_b32 s{S.T0}, s{S.Z}, 2")
    a(f"s_add_u32 s{S.T0}, s{S.T0}, {WS_ALIVE}")
    a("s_mov_b64 exec, 1")
    a(f"buffer_store_dword v{VTAG}, v0, {R4(S.RWS)}, s{S.T0} offen sc1")
    a("s_mov_b64 exec, -1")
    a(f"s_cmp_lg_u32 s{S.Z}, 0")
    a("s_cbranch_scc1 L_zend")
    a("s_mov_b64 exec, 0xffff")
    a("v_lshlrev_b32 v6, 2, v0")
    a(f"s_mov_b32 s{S.T0}, {WS_ALIVE}")
    a("s_waitcnt vmcnt(0)")
    a("s_sleep 24")
    a.label("L_za")
    a(f"buffer_load_dword v7, v6, {R4(S.RWS)}, s{S.T0} offen sc1")
    spin()
    a("s_waitcnt vmcnt(0)")
    a("s_cbranch_scc1 L_za_ok")
    a(f"v_cmp_ne_u32 vcc, v{VTAG}, v7")
    a.nop(1)
    a("s_cbranch_vccnz L_za")
    a.label("L_za_ok")
    a("s_mov_b64 exec, 1")
    a(f"v_add_u32 v9, 1, v{VE}")
    a("s_barrier")
    a(f"buffer_store_dword v9, v6, {R4(S.RWS)}, 0 offen sc1")
    a("s_mov_b64 exec, -1")
    a("s_branch L_zend")

    a.label("L_F")
    if o.only == "A":
        a("s_endpgm")
    WG_, WD_ = 32, 48
    a("v_lshlrev_b32 v5, 4, v0")
    a(f"s_cmp_eq_u32 s{S.WAVE}, 8")
    a("s_cbranch_scc1 L_fh")
    a(f"s_and_b32 s{S.T0}, s{S.FJ}, 3")
    a(f"s_lshr_b32 s{S.T1}, s{S.WAVE}, 1")
    a(f"s_lshl2_add_u32 s{S.L0}, s{S.T0}, s{S.T1}")
    a(f"s_mul_i32 s{S.T2}, s{S.L0}, {32*3584}")
    a(f"s_lshr_b32 s{S.L1}, s{S.FJ}, 2")
    a(f"s_lshl_b32 s{S.T3}, s{S.L1}, 7")
    a(f"s_add_u32 s{S.T2}, s{S.T2}, s{S.T3}")
    a("v_lshrrev_b32 v6, 3, v0")
    a("v_mul_u32_u24 v6, 3584, v6")
    a("v_and_b32 v7, 7, v0")
    a("v_bfe_u32 v8, v0, 4, 1")
    a("v_lshlrev_b32 v8, 2, v8")
    a("v_xor_b32 v4, v7, v8")
    a(f"v_lshl_add_u32 v7, v4, 4, s{S.T2}")
    a("v_add_u32 v3, v6, v7")
    a(f"s_lshl_b32 s{S.T4}, s{S.WAVE}, 12")
    a(f"s_mov_b32 m0, s{S.T4}")
    def w_dma():
        a(f"s_bitcmp1_b32 s{S.WAVE}, 0")
        a("s_waitcnt lgkmcnt(0)")
        a(f"s_cselect_b32 s{S.PWG}, s{S.PWU}, s{S.PWG}")
        a(f"s_cselect_b32 s{S.PWG+1}, s{S.PWU+1}, s{S.PWG+1}")
        if o.fdelay:
            a(f"s_sleep {o.fdelay}")
        for b in range(4):
            if b:
                a(f"s_add_u32 m0, s{S.T4}, {1024*b}")
                a(f"v_add_u32 v3, {8*3584}, v3")
            if o.wthr and b >= o.wthr:
                a(f"s_waitcnt vmcnt({o.wthr - 1})")
            a(f"global_load_lds_dwordx4 v3, s[{S.PWG}:{S.PWG+1}]{o.wpol}")
        ws_setup()
        stamp(1)

    if not o.flate:
        w_dma()
    a("v_bfe_u32 v6, v0, 2, 2")
    a("v_and_b32 v7, 3, v0")
    a("v_lshlrev_b32 v8, 3, v7")
    a("v_lshl_add_u32 v8, v2, 5, v8")
    a("v_and_b32 v9, 2, v6")
    a("v_lshlrev_b32 v9, 5, v9")
    a("v_xor_b32 v9, v9, v8")
    a("v_lshl_add_u32 v9, v6, 7, v9")
    a(f"v_add_u32 v9, s{S.T4}, v9")
    a(f"s_lshl_b32 s{S.T5}, s{S.WAVE}, 8")
    a("v_lshlrev_b32 v11, 2, v0")
    a(f"v_add_u32 v11, {L_RED}, v11")
    a(f"v_add_u32 v12, s{S.T5}, v11")
    a(f"s_lshl1_add_u32 s{S.T1}, s{S.L1}, s{S.T1}")
    a(f"s_lshl_b32 s{S.T2}, s{S.T1}, 15")
    a(f"s_and_b32 s{S.T3}, s{S.WAVE}, 1")
    a(f"s_lshl1_add_u32 s{S.T3}, s{S.T0}, s{S.T3}")
    a(f"s_lshl_b32 s{S.T5}, s{S.T3}, 7")
    a(f"s_add_u32 s{S.T2}, s{S.T2}, s{S.T5}")
    a("v_lshrrev_b32 v6, 3, v0")
    a(f"v_lshl_add_u32 v6, v6, 10, s{S.T2}")
    a("v_lshl_add_u32 v4, v4, 4, v6")
    a("v_lshrrev_b32 v6, 5, v0")
    a(f"v_mul_u32_u24 v13, {PZ}, v6")
    a("v_and_b32 v6, 31, v0")
    a("v_lshl_add_u32 v13, v6, 3, v13")
    a(f"s_mul_i32 s{S.T2}, s{S.T3}, {2*PZ}")
    a(f"s_lshl_b32 s{S.T1}, s{S.T1}, 8")
    a(f"s_add_u32 s{S.T2}, s{S.T2}, s{S.T1}")
    a(f"s_add_u32 s{S.T2}, s{S.T2}, {WS_PART}")
    a(f"s_lshl_b32 s{S.L0}, s{S.L0}, 6")
    a(f"s_lshl_b32 s{S.L1}, s{S.L1}, 12")
    a(f"s_add_u32 s{S.PO}, s{S.L1}, {WS_XCH}")
    a(f"s_add_u32 s{S.POL}, s{S.PO}, {(o.xc-1)*XCHC}")
    a(f"s_lshl_b32 s{S.T1}, s{S.T0}, 10")
    a(f"s_add_u32 s{S.L1}, s{S.PO}, s{S.T1}")
    a(f"v_mov_b32 v14, {L_FKEY}")
    a(f"s_lshr_b32 s{S.T1}, s{S.WAVE}, 1")
    a(f"s_lshl_b32 s{S.T1}, s{S.T1}, 9")
    a(f"v_lshl_add_u32 v15, v6, 4, s{S.T1}")
    a("v_lshrrev_b32 v6, 5, v0")
    a("v_lshl_add_u32 v15, v6, 10, v15")
    a(f"s_mov_b32 s{S.PO0}, s{S.PO}")
    a(f"s_mov_b32 s{S.L10}, s{S.L1}")
    a(f"s_mov_b32 s{S.T20}, s{S.T2}")
    a(f"s_mov_b32 s{S.FIN}, 0")

    if o.flate:
        w_dma()

    def wd_dma():
        l = a.L("nowd")
        a(f"s_cmp_ge_u32 s{S.WAVE}, 4")
        a(f"s_cbranch_scc1 {l}")
        for b in range(4):
            a(f"s_add_u32 m0, s{S.T4}, {L_WD + 1024*b}")
            if b:
                a("v_add_u32 v4, 0x2000, v4")
            else:
                a.nop(1)
            a(f"global_load_lds_dwordx4 v4, s[{S.PWD}:{S.PWD+1}]{o.wdpol}")
        a.label(l)

    if o.wdpos == 0:
        wd_dma()
    if o.wdpos == 4:
        a("s_barrier")
        a(f"s_cmp_ge_u32 s{S.WAVE}, 4")
        a("s_cbranch_scc1 L_nowd4")
        for b in range(4):
            a(f"v_add_u32 v6, {0x2000*b}, v4")
            a(f"global_load_dwordx4 {V(80+4*b,4)}, v6, s[{S.PWD}:{S.PWD+1}]")
        a("s_waitcnt vmcnt(4)")
        a("s_branch L_nowd5")
        a.label("L_nowd4")
        a("s_waitcnt vmcnt(0)")
        a.label("L_nowd5")
    else:
        a("s_waitcnt vmcnt(0)")
    stamp(2)
    if o.fw0:
        a("s_barrier")
    if o.wdpos == 1:
        wd_dma()
    if o.xpre:
        for i in range(2):
            a(f"buffer_load_dwordx4 {V(64+4*i,4)}, v15, {R4(S.RWS)}, s{S.PO} offen offset:{2048*i} sc1")
    for k in range(8):
        a(f"ds_read_b64_tr_b16 {V(WG_+2*k,2)}, v9 offset:{L_W + k*512}")
    if o.ftouch:
        touch("L_tf", o.ftouch, 0, 8)
    a("s_waitcnt lgkmcnt(0)")
    a("s_barrier")
    a.label("L_tf_start")
    a("ds_read_b64 v[26:27], v14")
    a("s_waitcnt lgkmcnt(0)")
    a(f"v_readfirstlane_b32 s{S.FKEY}, v26")
    a.label("L_redo")
    a(f"s_andn2_b32 s{S.T0}, 2047, s{S.FKEY}")
    a(f"s_lshl_b32 s{S.T1}, s{S.T0}, 10")
    a(f"s_add_u32 s{S.T1}, s{S.T1}, s{S.L0}")
    a(f"s_load_dwordx16 s[{S.XS}:{S.XS+15}], {PXS}, s{S.T1}")
    stamp(5)
    a(f"v_xor_b32 v{VTAG}, s{S.T0}, v27")
    a(f"v_xor_b32 v29, s{S.T0}, v27")
    for r in (16, 17, 24, 25):
        a(f"v_mov_b32 v{r}, 0")
    a(f"s_mov_b32 s{S.PO}, s{S.PO0}")
    a(f"s_mov_b32 s{S.L1}, s{S.L10}")
    a(f"s_mov_b32 s{S.T2}, s{S.T20}")
    a(f"s_mov_b32 s{S.KM}, 0")
    a("s_waitcnt lgkmcnt(0)")
    for i in range(16):
        a(f"v_dot2c_f32_bf16 v{16+(i&1)}, s{S.XS+i}, v{WG_+i}")
    stamp(6)
    a.nop(3)
    a("v_add_f32 v16, v16, v17")
    a("ds_write_b32 v12, v16")
    a("s_waitcnt lgkmcnt(0)")
    a("s_barrier")
    a(f"s_lshl_b32 s{S.T0}, s{S.WAVE}, 4")
    a(f"s_lshl_b64 s[{S.EX}:{S.EX+1}], 0xffff, s{S.T0}")
    for i, (p, q) in enumerate(((0, 2), (4, 6), (1, 3), (5, 7))):
        a(f"ds_read2st64_b32 v[{16+2*i}:{17+2*i}], v11 offset0:{p} offset1:{q}")
    a("s_waitcnt lgkmcnt(2)")
    a("v_add_f32 v16, v16, v17")
    a("v_add_f32 v18, v18, v19")
    a("s_waitcnt lgkmcnt(0)")
    a("v_add_f32 v20, v20, v21")
    a("v_add_f32 v22, v22, v23")
    a("v_add_f32 v28, v16, v18")
    a(f"s_mov_b64 exec, s[{S.EX}:{S.EX+1}]")
    a("v_add_f32 v30, v20, v22")
    a(f"s_cmp_ge_u32 s{S.WAVE}, 4")
    a("s_cbranch_scc1 L_f5")
    a(f"buffer_store_dwordx4 v[28:31], v5, {R4(S.RWS)}, s{S.L1} offen{'' if o.xl2 else ' sc1'}")
    a("s_mov_b64 exec, -1")
    stamp(7)
    a("s_waitcnt vmcnt(1)")
    if o.wdpos == 4:
        a(f"v_add_u32 v6, s{S.T4}, v5")
        for b in range(4):
            a(f"ds_write_b128 v6, {V(80+4*b,4)} offset:{L_WD + 1024*b}")
        a("s_waitcnt lgkmcnt(0)")
    for k in range(8):
        a(f"ds_read_b64_tr_b16 {V(WD_+2*k,2)}, v9 offset:{L_WD + k*512}")
    if o.xsleep0:
        a(f"s_sleep {o.xsleep0}")
    stamp(8)
    a.label("L_fx")
    for i in range(2):
        a(f"buffer_load_dwordx4 {V(64+4*i,4)}, v15, {R4(S.RWS)}, s{S.PO} offen offset:{2048*i} sc1")
    if o.xl2:
        a(f"s_add_u32 s{S.KM}, s{S.KM}, 1")
        a(f"s_cmp_ge_u32 s{S.KM}, {o.xl2}")
        a(f"s_cselect_b32 s{S.T0}, {XCHC}, 0")
        a(f"s_add_u32 s{S.PO}, s{S.PO}, s{S.T0}")
    else:
        a(f"s_add_u32 s{S.PO}, s{S.PO}, {XCHC}")
    a(f"s_min_u32 s{S.PO}, s{S.PO}, s{S.POL}")
    if o.stamps:
        a(f"s_add_u32 s{S.RC}, s{S.RC}, 1")
    spin()
    a("s_cbranch_scc1 L_fx_ok")
    a("s_waitcnt vmcnt(1)")
    a(f"v_bitop3_b32 v20, v65, v67, v{VTAG} bitop3:0x7e")
    a("s_waitcnt vmcnt(0)")
    a("v_add_f32 v16, v64, v68")
    a("v_add_f32 v18, v66, v70")
    a(f"v_bitop3_b32 v21, v69, v71, v{VTAG} bitop3:0x7e")
    a("v_or_b32 v20, v20, v21")
    a("v_cmp_ne_u32 vcc, 0, v20")
    a("v_permlane32_swap_b32 v16, v18")
    a("s_cbranch_vccnz L_fxr")
    a.label("L_fx_ok")
    stamp(9)
    a("v_add_f32 v16, v16, v18")
    rnd(16, 16)
    a("v_mov_b32 v18, v16")
    sigmoid(17, 16)
    a("v_permlane32_swap_b32 v16, v18")
    a("v_mul_f32 v17, v17, v16")
    rnd(17, 17)
    a("v_mul_f32 v17, v17, v18")
    a.nop(2)
    a(f"v_mov_b32_dpp v18, v17 quad_perm:[1,0,3,2] {DPPM}")
    a("v_cvt_pk_bf16_f32 v17, v17, v18")
    a.nop(1)
    for i in range(16):
        a(f"v_readlane_b32 s{S.XS+i}, v17, {2*i}")
    a("s_waitcnt lgkmcnt(0)")
    for i in range(16):
        a(f"v_dot2c_f32_bf16 v{24+(i&1)}, s{S.XS+i}, v{WD_+i}")
    a.nop(3)
    a("v_add_f32 v30, v24, v25")
    for c in range(o.pc):
        if c:
            a(f"s_add_u32 s{S.T2}, s{S.T2}, {PARTC}")
        a(f"buffer_store_dwordx2 v[30:31], v13, {R4(S.RWS)}, s{S.T2} offen sc1")
    stamp(10)
    a.label("L_fend")
    a(f"s_cmp_lg_u32 s{S.FIN}, 0")
    a("s_cbranch_scc1 L_fexit")
    a("s_barrier")
    a("ds_read_b32 v26, v14 offset:8")
    a(f"s_mov_b32 s{S.FIN}, 1")
    a("s_waitcnt lgkmcnt(0)")
    a(f"v_readfirstlane_b32 s{S.T0}, v26")
    a(f"s_cmp_eq_u32 s{S.T0}, s{S.FKEY}")
    a(f"s_mov_b32 s{S.FKEY}, s{S.T0}")
    if o.stamps:
        a(f"s_cselect_b32 s{S.T1}, 0, 64")
        a(f"s_add_u32 s{S.RC}, s{S.RC}, s{S.T1}")
        a(f"s_cmp_eq_u32 s{S.T1}, 0")
    a("s_cbranch_scc0 L_redo")
    a.label("L_fexit")
    endprog()
    a.label("L_f5")
    for c in range(1, o.xc):
        a(f"s_add_u32 s{S.L1}, s{S.L1}, {XCHC}")
        a(f"buffer_store_dwordx4 v[28:31], v5, {R4(S.RWS)}, s{S.L1} offen sc1")
    a("s_mov_b64 exec, -1")
    a("s_branch L_fend")
    a.label("L_fxr")
    a("ds_read_b32 v26, v14 offset:8")
    a("s_waitcnt lgkmcnt(0)")
    a(f"v_readfirstlane_b32 s{S.T0}, v26")
    a(f"s_cmp_eq_u32 s{S.T0}, 0")
    a("s_cbranch_scc1 L_fx")
    a(f"s_cmp_eq_u32 s{S.T0}, s{S.FKEY}")
    a("s_cbranch_scc1 L_fx")
    a("s_branch L_fend")

    a.label("L_fh")
    a("s_waitcnt lgkmcnt(0)")
    if o.fesleep:
        a(f"s_sleep {o.fesleep}")
    tag_load()
    ws_setup()
    a(f"v_mov_b32 v14, {L_FKEY}")
    a("v_mov_b32 v6, 0")
    a("ds_write_b32 v14, v6 offset:8")
    if o.spec:
        poll_setup(WS_KEY + 1024 * (RF * CF + RZ * CZ + R2 * C2), 8, 1)
        a(f"s_sleep {o.spec}")
        a("s_waitcnt vmcnt(0)")
        tag_make()
        stamp(1)
        a(f"buffer_load_dwordx4 v[20:23], v5, {R4(S.RWS)}, s{S.PO} offen sc1")
        poll_setup(WS_KEY, RF, CF)
        a("s_waitcnt vmcnt(0)")
        stamp(2)
        a(f"v_cmp_ne_u32 vcc, v{VTAG}, v21")
        a(f"v_cmp_ne_u32 s[{S.EX}:{S.EX+1}], v{VTAG}, v23")
        a("s_mov_b64 exec, vcc")
        a("v_mov_b32 v20, 0")
        a(f"s_mov_b64 exec, s[{S.EX}:{S.EX+1}]")
        a("v_mov_b32 v22, 0")
        a("s_mov_b64 exec, -1")
        a(f"s_or_b64 s[{S.EY}:{S.EY+1}], vcc, s[{S.EX}:{S.EX+1}]")
        wave_max_key(20)
        lds_put(L_FKEY, 20, tag=True)
        a("s_barrier")
        a(f"s_cmp_eq_u64 s[{S.EY}:{S.EY+1}], 0")
        a("s_cbranch_scc1 L_fh2")
        if o.fsleep0:
            a(f"s_sleep {o.fsleep0}")
        stamp(3)
        poll_granules(5, 20, sleep=o.fsleep)
        stamp(4)
        wave_max_key(20)
        a.label("L_fh2")
        lds_put(L_FKEY + 8, 20)
    else:
        kpoll_setup()
        if o.fsleep0:
            a(f"s_sleep {o.fsleep0}")
        a("s_waitcnt vmcnt(0)")
        tag_make()
        stamp(3)
        kpoll(20, o.fsleep)
        stamp(4)
        wave_max_key(20)
        lds_put(L_FKEY, 20, tag=True)
        a("s_barrier")
        lds_put(L_FKEY + 8, 20)
    a("s_barrier")
    endprog()
    a.label("L_end")
    a("s_endpgm")
    return name


def main():
    ap = argparse.ArgumentParser()
    ap.add_argument("-o", required=True)
    for k, d in dict(stamps=0, pc=1, xc=2, zsleep=8, zsleep0=32, psleep=0, psleep0=20, rsleep=3, ackwait=0, hipre=0, tlate=1,
                     mode=0, k2ack=1, k2sleep0=6, zk2sleep0=0, k2sleep=5, fbar=0, cpf=0, cpf0=1, kc=2, htouch=0, probe=-1, wsoff=0, flate=1, b1a=1, skew=0, gate=8, lds=0, nsgpr=72, prio=1, stag=2, spec=0, b0=2, wthr=0, xpre=0, atouch=10, ftouch=8, xl2=8, npre=3, gfirst=0, isleep0=0, zisleep0=5, b3=1, ztouch=8, zstep=128, touch=0, wdpos=0, wpf=2, fesleep=0, fw0=0, xack=0, fdelay=0, xsleep0=3, fsleep0=46, fsleep=4, spin=17).items():
        ap.add_argument("--" + k, type=int, default=d)
    for k in ("wpol", "wdpol", "xpol", "outpol", "zpol", "only"):
        ap.add_argument("--" + k, default="nt" if k == "outpol" else "")
    ap.add_argument("--mf", default="8,2")
    ap.add_argument("--mz", default="1,3")
    ap.add_argument("--m2", default="8,2")
    ap.add_argument("--hold", default="")
    ap.add_argument("--ev", default="")
    o = ap.parse_args()
    if o.hold:
        o.hold = o.hold.split(":")
    for k in ("mf", "mz", "m2"):
        setattr(o, k, [int(v) for v in getattr(o, k).split(",")])
    for k in ("wpol", "wdpol", "xpol", "outpol", "zpol"):
        setattr(o, k, (" " + getattr(o, k)) if getattr(o, k) not in ("", "def") else "")
    a = Asm()
    name = gen(a, o)
    reg = []
    if o.touch:
        reg.append(("L_ta_start", "L_ta_end", "L_ta", "L_taback", o.touch))
    if o.htouch:
        reg.append(("L_ta_end", "L_zjoin", "L_th", "L_thback", o.htouch))
    if o.atouch:
        reg.append(("L_zjoin", "L_tb_end", "L_tb", "L_tbback", o.atouch))
    if o.ztouch:
        reg.append(("L_tz_start", "L_zend", "L_tz", "L_tzback", o.ztouch))
    if o.ftouch:
        reg.append(("L_tf_start", "L_fend", "L_tf", "L_tfback", o.ftouch))
    if reg:
        insert_stubs(a, reg, step=o.zstep)
    finish(a, name, NVGPR, 102 if (o.stamps or o.hold or o.probe >= 0) else o.nsgpr, NWG, 576, o.lds or LDS_BYTES, o.o)


main()
```

```python
import argparse
from lib import *

NA, NF, NZ = 128, 112, 16
NWG = NA + NF + NZ
WS_E = 0
WS_ALIVE = 4096
WS_KEY = 64 << 10
WS_KEY2 = 128 << 10
WS_XCH = 192 << 10
XCHC = 28 * 4096
WS_PART = 704 << 10
PZ = 56 * 256
PARTC = NZ * PZ
WS_INT = 2 << 20
CS = 32768 + 256
WS_STAMP = 8 << 20
WS_BYTES = 16 << 20
L_TILE = 0
L_U2 = 16384
L_CT = L_U2
UB = 17 * 64
L_MISC = L_U2 + 16 * UB
L_KSL = L_MISC
L_GKEY = L_MISC + 64
L_ZC = L_MISC + 76
L_ZF = L_MISC + 72
L_EXP = L_MISC + 128
L_DUMP = L_MISC + 192
L_XG2 = L_DUMP + 4 * UB + 256
L_M2 = L_XG2 + 4096
L_WV = L_M2 + 4096
L_XT = L_WV + 2048
L_W = 0
L_WD = 32768
L_RED = L_WD + 16384
L_FKEY = L_RED + 2048
LDS_BYTES = 84 * 1024
MF = "v_mfma_f32_16x16x32_bf16"
LOG2E = 0x3fb8aa3b
DPPM = "row_mask:0xf bank_mask:0xf"
HIM = "0xffff0000"
NVGPR = 168


class S:
    WAVE = 3
    PX = 4
    T0, T1, T2, T3, T4, T5 = 6, 7, 8, 9, 10, 11
    EX = 12
    EY = 14
    PWR, PWG, PWU, PWD, PGW, POUT, PDBG, PWS = 16, 18, 20, 22, 24, 26, 28, 30
    L0, L1, SPT, PIE = 32, 33, 34, 35
    RWS, ROUT = 36, 40
    XS = 44
    GKEY, WSEL, WHICH, Z = 44, 45, 46, 47
    SI0, SI1, ID8, BLK = 48, 49, 50, 51
    IDX, ISZ, TC = 54, 55, 53
    SO = 44
    T1C, HH, TD, TM = 56, 57, 58, 59
    FJ, PO, POL, RC, KM, SPIN = 60, 61, 62, 63, 64, 65
    PO0, L10, T20, FKEY, FIN = 40, 41, 42, 43, 35
    ST = 68


def gen(a, o):
    global WS_KEY, WS_XCH, WS_PART, WS_INT, WS_ALIVE, WS_BYTES
    WS_KEY += o.wsoff << 20
    WS_XCH += o.wsoff << 20
    WS_PART += o.wsoff << 20
    WS_INT += o.wsoff << 20
    WS_ALIVE += o.wsoff << 20
    WS_BYTES = max(WS_BYTES, (o.wsoff + 8) << 20)
    name = NAME + "_kernel"
    kernel_head(a, name)
    VE, VTAG = 30, 31
    PXS = f"s[{S.PX}:{S.PX+1}]"

    def stamp(i):
        if o.stamps:
            a(f"s_memrealtime s[{S.ST+2*i}:{S.ST+2*i+1}]")

    def hold(cp):
        if o.hold and o.hold[0] == cp:
            l = a.L("hold")
            a.label(l)
            a("s_sleep 1")
            a("s_memrealtime s[100:101]")
            a("s_waitcnt lgkmcnt(0)")
            a("s_sub_u32 s100, s100, s66")
            a(f"s_cmp_lt_u32 s100, {o.hold[1]}")
            a(f"s_cbranch_scc1 {l}")

    def touch(pre, n, first, step, back=None, tail=None):
        a("s_mov_b64 exec, 0")
        a(f"s_sub_u32 s{S.TC}, s{S.WAVE}, {first + step}")
        a.label(f"{pre}back")
        a(f"s_add_u32 s{S.TC}, s{S.TC}, {step}")
        for k in range(n):
            a(f"s_cmp_eq_u32 s{S.TC}, {k}")
            a(f"s_cbranch_scc1 {pre}{k}")
        a("s_mov_b64 exec, -1")

    def endprog():
        if o.stamps:
            a("s_waitcnt lgkmcnt(0)")
            a(f"s_add_u32 s{S.ST+28}, s{S.RC}, s{S.ST+30}")
            for i in range(16):
                a(f"v_writelane_b32 v166, s{S.ST+2*i}, {i}")
            a("s_mov_b64 exec, 0xffff")
            a(f"s_lshl4_add_u32 s{S.T0}, s2, s{S.WAVE}")
            a(f"s_lshl_b32 s{S.T0}, s{S.T0}, 7")
            a(f"s_add_u32 s{S.T0}, s{S.T0}, {WS_STAMP}")
            a(f"v_lshl_add_u32 v165, v0, 3, s{S.T0}")
            a("v_mov_b32 v167, 0")
            a(f"global_store_dwordx2 v165, v[166:167], s[{S.PWS}:{S.PWS+1}]" + (" sc1" if o.ev else ""))
        a("s_endpgm")

    def spin():
        a(f"s_add_u32 s{S.SPIN}, s{S.SPIN}, 1")
        a(f"s_lshr_b32 s{S.SPT}, s{S.SPIN}, {o.spin}")

    def poll_setup(base, R, C):
        a(f"s_and_b32 s{S.PO}, s2, {R-1}")
        a(f"s_mul_i32 s{S.PO}, s{S.PO}, {1024*C}")
        a(f"s_add_u32 s{S.PO}, s{S.PO}, {base}")
        a(f"s_add_u32 s{S.POL}, s{S.PO}, {1024*(C-1)}")

    def set_exec(n):
        if n >= 64:
            a("s_mov_b64 exec, -1")
        elif n <= 31:
            a(f"s_mov_b64 exec, {(1 << n) - 1:#x}")
        else:
            a("s_mov_b32 exec_lo, -1")
            a(f"s_mov_b32 exec_hi, {(1 << (n - 32)) - 1:#x}")

    RS = 8 if o.spec else 0
    RF, CF = o.mf
    RZ, CZ = o.mz
    R2, C2 = o.m2
    assert RF * CF + RZ * CZ + R2 * C2 + RS <= 64

    def poll_granules(vaddr, vd, sleep=0, step=1024, bar=False):
        l = a.L("poll")
        if sleep:
            a(f"s_branch {l}_1")
        a.label(l)
        if sleep:
            a(f"s_sleep {sleep}")
            a.label(f"{l}_1")
        a(f"buffer_load_dwordx4 {V(vd,4)}, v{vaddr}, {R4(S.RWS)}, s{S.PO} offen sc1")
        a(f"s_add_u32 s{S.PO}, s{S.PO}, {step}")
        a(f"s_min_u32 s{S.PO}, s{S.PO}, s{S.POL}")
        if bar:
            a(f"s_cmp_lg_u32 s{S.SPIN}, 0")
            a(f"s_cbranch_scc1 {l}_2")
            a("s_barrier")
            a.label(f"{l}_2")
        if o.stamps:
            a(f"s_add_u32 s{S.RC}, s{S.RC}, 1")
        spin()
        a("s_waitcnt vmcnt(0)")
        a(f"s_cbranch_scc1 {l}_ok")
        a(f"v_cmp_ne_u32 vcc, v{VTAG}, v{vd+1}")
        a(f"v_cmp_ne_u32 s[{S.EX}:{S.EX+1}], v{VTAG}, v{vd+3}")
        a(f"s_or_b64 vcc, vcc, s[{S.EX}:{S.EX+1}]")
        a(f"s_cbranch_vccnz {l}")
        a.label(f"{l}_ok")

    def wave_max_key(vd):
        a(f"v_max_u32 v{vd}, v{vd}, v{vd+2}")
        for r in ("row_ror:8", "row_ror:4", "row_ror:2", "row_ror:1"):
            a.nop(2)
            a(f"v_max_u32_dpp v{vd}, v{vd}, v{vd} {r} {DPPM}")
        a.nop(2)
        a(f"v_max_u32_dpp v{vd}, v{vd}, v{vd} row_bcast:15 row_mask:0xa bank_mask:0xf")
        a.nop(2)
        a(f"v_max_u32_dpp v{vd}, v{vd}, v{vd} row_bcast:31 row_mask:0xc bank_mask:0xf")

    def lds_put(addr, v, tag=False):
        a(f"v_mov_b32 v9, {addr}")
        a("s_mov_b32 exec_lo, 0")
        a("s_brev_b32 exec_hi, 1")
        if tag:
            a(f"ds_write2_b32 v9, v{v}, v{VTAG} offset1:1")
        else:
            a(f"ds_write_b32 v9, v{v}")
        a("s_mov_b64 exec, -1")
        a("s_waitcnt lgkmcnt(0)")

    def sigmoid(d, s):
        a(f"v_mul_f32 v{d}, {LOG2E | 0x80000000:#x}, v{s}")
        a(f"v_exp_f32 v{d}, v{d}")
        a.nop(1)
        a(f"v_add_f32 v{d}, 1.0, v{d}")
        a(f"v_rcp_f32 v{d}, v{d}")
        a.nop(1)

    def rnd(d, s):
        a(f"v_cvt_pk_bf16_f32 v{d}, v{s}, v{s}")
        a(f"v_and_b32 v{d}, {HIM}, v{d}")

    def ws_setup():
        a.srd(S.RWS, S.PWS, WS_BYTES)
        a(f"s_mov_b32 s{S.SPIN}, 0")

    def tag_load():
        a(f"v_mov_b32 v{VTAG}, 0")
        a(f"global_load_dword v{VE}, v{VTAG}, s[{S.PWS}:{S.PWS+1}]")
        a(f"s_mov_b32 s{S.KM}, 0x9E3779B1")

    def tag_make():
        a(f"v_mul_lo_u32 v{VTAG}, v{VE}, s{S.KM}")
        a(f"v_add_u32 v{VTAG}, 0x7F4A7C15, v{VTAG}")

    a(f"s_load_dwordx2 s[{S.PX}:{S.PX+1}], s[0:1], {KA_X}")
    a(f"s_load_dwordx16 s[16:31], s[0:1], {KA_WR}")
    if o.cpf0:
        a(f"s_cmp_ge_u32 s2, {8*o.cpf0}")
        a("s_cbranch_scc1 L_nocpf0")
        a(f"s_getpc_b64 s[{S.EX}:{S.EX+1}]")
        a.label("L_pc0")
        a("v_lshlrev_b32 v6, 7, v0")
        a(f"v_min_u32 v6, L_end - L_pc0, v6")
        a(f"v_mov_b32 v13, s{S.EX+1}")
        a(f"v_add_co_u32 v12, vcc, s{S.EX}, v6")
        a.nop(2)
        a("v_addc_co_u32 v13, vcc, 0, v13, vcc")
        a("global_load_dword v164, v[12:13], off")
        a.label("L_nocpf0")
    if o.stamps:
        for i in range(1, 16):
            a(f"s_mov_b32 s{S.ST+2*i}, 0")
        a(f"s_mov_b32 s{S.RC}, 0")
    stamp(0)
    if o.hold or o.probe >= 0:
        a("s_memrealtime s[66:67]")
    if o.skew:
        a("s_and_b32 s6, s2, 7")
        a("s_cmp_lg_u32 s6, 5")
        a("s_cbranch_scc1 L_noskew")
        a(f"s_sleep {o.skew}")
        a.label("L_noskew")
    a("v_lshrrev_b32 v1, 6, v0")
    a("v_and_b32 v0, 63, v0")
    a(f"v_readfirstlane_b32 s{S.WAVE}, v1")
    a("v_and_b32 v1, 15, v0")
    a("v_lshrrev_b32 v2, 4, v0")
    a(f"s_and_b32 s{S.T0}, s2, 7")
    a(f"s_sub_u32 s{S.WAVE}, s{S.WAVE}, 1")
    a(f"s_min_u32 s{S.WAVE}, s{S.WAVE}, 8")
    a(f"s_lshr_b32 s{S.T1}, s2, 3")
    a(f"s_cmp_ge_u32 s2, {NA}")
    a("s_cbranch_scc1 L_notA")
    if o.only == "F":
        a("s_endpgm")

    VROW, VG16, VSGN, VTR, VST = 3, 5, 8, 10, 11
    VLD, VUW, VUX, VUR0, VUR1 = 10, 11, 28, 29, 30
    XR, WR, GW, CO = 16, 24, 24, 24
    CM, AOP, ACC = 32, 96, 112
    LD, DA0, DA1, TP, X16, PK = 32, 64, 32, 80, 96, 48
    M1, GA, XG = 100, 148, 152
    Cc, Ss = 64, 68
    UO, PQ, M2 = 32, 48, 64

    def rows_setup(wreg):
        a(f"s_lshl3_add_u32 s{S.T5}, s{S.HH}, s{wreg}")
        a(f"s_lshl_b32 s{S.T5}, s{S.T5}, 7")
        a(f"s_add_u32 s{S.TD}, s{S.T5}, s{S.T1C}")
        a(f"s_sub_u32 s{S.TM}, 2048, s{S.TD}")
        a(f"s_cmp_eq_u32 s{S.TD}, 0")
        a(f"s_cselect_b32 s{S.TM}, 1024, s{S.TM}")
        a(f"s_lshl_b32 s{S.T4}, s{S.TD}, 10")
        a(f"s_lshl_b32 s{S.T5}, s{S.TM}, 10")
        a(f"v_add_u32 v6, s{S.T4}, v{VG16}")
        a(f"v_add_u32 v7, s{S.T5}, v{VG16}")

    def vrow_setup():
        a("v_and_b32 v6, 1, v2")
        a("v_lshlrev_b32 v6, 5, v6")
        a("v_lshl_add_u32 v6, v1, 6, v6")
        a("v_lshrrev_b32 v7, 1, v2")
        a(f"v_lshl_add_u32 v{VROW}, v7, 4, v6")

    def rows_load():
        a(f"global_load_dwordx4 {V(XR,4)}, v6, {PXS}{o.xpol}")
        a(f"global_load_dwordx4 {V(XR+4,4)}, v7, {PXS}{o.xpol}")

    def sgn_setup():
        a(f"v_lshlrev_b32 v{VSGN}, 31, v1")
        a(f"v_lshrrev_b32 v9, 16, v{VSGN}")
        a(f"v_or_b32 v{VSGN}, v{VSGN}, v9")

    def sgn_setup2():
        a(f"v_lshlrev_b32 v{VSGN}, 31, v1")
        a(f"v_lshrrev_b32 v14, 16, v{VSGN}")
        a(f"v_or_b32 v{VSGN}, v{VSGN}, v14")

    def tile_ids():
        a(f"s_bitcmp1_b32 s{S.T1}, 3")
        a(f"s_cselect_b32 s{S.T2}, s{S.T3}, s{S.T2}")
        a(f"s_and_b32 s{S.T3}, s{S.T1}, 7")
        a(f"s_lshl3_add_u32 s{S.BLK}, s{S.T2}, s{S.T3}")
        a(f"s_lshl_b32 s{S.PIE}, s{S.T2}, 5")
        a(f"s_add_u32 s{S.PIE}, s{S.PIE}, s{S.T3}")
        a(f"s_lshl_b32 s{S.PIE}, s{S.PIE}, 6")

    def vst_setup():
        a(f"v_mul_u32_u24 v{VST}, {CS}, v1")
        a(f"v_lshl_add_u32 v{VST}, v2, 4, v{VST}")

    def const_d2():
        R = 40
        a("v_lshlrev_b32 v6, 2, v2")
        a("v_cvt_f32_u32 v7, v1")
        a("v_cvt_f32_u32 v6, v6")
        a("v_mul_f32 v7, 0x3d800000, v7")
        for hf in range(2):
            if hf:
                a("v_add_f32 v7, 0x3d800000, v7")
            a("v_mul_f32 v9, v6, v7")
            for jj in range(4):
                a(f"v_cos_f32 v{Cc+jj}, v9")
                a(f"v_sin_f32 v{Ss+jj}, v9")
                if jj < 3:
                    a("v_add_f32 v9, v9, v7")
            a.nop(1)
            for jj in range(4):
                if hf == 0:
                    a(f"v_cvt_pk_bf16_f32 v{R+jj}, v{Cc+jj}, v{Ss+jj}")
                    a(f"v_cvt_pk_bf16_f32 v{R+8+jj}, -v{Ss+jj}, v{Cc+jj}")
                else:
                    a(f"v_cvt_pk_bf16_f32 v{R+4+jj}, v{Cc+jj}, -v{Ss+jj}")
                    a(f"v_cvt_pk_bf16_f32 v{R+12+jj}, -v{Ss+jj}, -v{Cc+jj}")
        for k in range(4):
            a(f"ds_write_b128 v{VG16}, {V(R+4*k,4)} offset:{L_M2 + 1024*k}")

    a(f"s_add_u32 s{S.T2}, s{S.T0}, 1")
    a(f"s_sub_u32 s{S.T3}, 15, s{S.T0}")
    a(f"s_cmp_eq_u32 s{S.WAVE}, 8")
    a("s_cbranch_scc1 L_ah")
    a(f"s_and_b32 s{S.HH}, s{S.T1}, 1")
    a(f"s_bitcmp1_b32 s{S.T1}, 1")
    a(f"s_cselect_b32 s{S.T4}, s{S.T3}, s{S.T2}")
    a(f"s_lshr_b32 s{S.T5}, s{S.T1}, 2")
    a(f"s_lshl4_add_u32 s{S.T1C}, s{S.T5}, s{S.T4}")
    a(f"v_lshlrev_b32 v{VG16}, 4, v0")
    a(f"v_mov_b32 v{VROW}, 0")
    a(f"s_cmp_lg_u32 s{S.T0}, 7")
    a("s_cbranch_scc1 L_k7")
    a(f"s_lshr_b32 s{S.T5}, s{S.T1}, 1")
    a(f"s_lshl3_add_u32 s{S.T1C}, s{S.T5}, 8")
    a(f"s_mov_b32 s{S.T2}, 0")
    a(f"s_cmp_eq_u32 s2, 127")
    a(f"s_cselect_b32 s{S.T1C}, 0, s{S.T1C}")
    a(f"s_cselect_b32 s{S.HH}, 0, s{S.HH}")
    a.label("L_k7")
    rows_setup(S.WAVE)
    a("s_waitcnt lgkmcnt(0)")
    rows_load()
    stamp(1)
    if o.touch:
        touch("L_ta", o.touch, 0, 8)
    a.label("L_ta_start")
    if o.b0 == 2:
        a("s_barrier")
    tile_ids()

    def tile_dma():
        a(f"s_lshl_b32 s{S.T4}, s{S.WAVE}, 11")
        a(f"s_add_u32 s{S.T5}, s{S.T4}, s{S.BLK}")
        a(f"s_lshl_b32 s{S.T5}, s{S.T5}, 7")
        a(f"s_mov_b32 m0, s{S.T4}")
        a("v_and_b32 v9, 7, v0")
        a("v_bfe_u32 v13, v0, 4, 1")
        a("v_xor_b32 v9, v9, v13")
        a("v_lshrrev_b32 v13, 3, v0")
        a(f"v_lshl_add_u32 v9, v9, 4, s{S.T5}")
        a("v_lshl_add_u32 v13, v13, 14, v9")
        a(f"global_load_lds_dwordx4 v13, {PXS}")
        a(f"s_add_u32 m0, s{S.T4}, 1024")
        a("v_add_u32 v13, 0x20000, v13")
        a(f"global_load_lds_dwordx4 v13, {PXS}")
        stamp(2)

    if not o.tlate:
        tile_dma()
    C1, S1, K = AOP, AOP + 4, AOP + 8
    a(f"s_lshr_b32 s{S.T0}, s{S.WAVE}, 2")
    a(f"s_and_b32 s{S.T1}, s{S.WAVE}, 1")
    a(f"s_bfe_u32 s{S.T2}, s{S.WAVE}, 0x10001")
    a(f"v_lshl_add_u32 v6, s{S.T0}, 4, v1")
    a(f"s_lshl3_add_u32 s{S.T3}, s{S.T2}, s{S.T1}")
    a(f"s_lshl_b32 s{S.T3}, s{S.T3}, 2")
    a("v_cvt_f32_u32 v6, v6")
    a(f"v_lshl_add_u32 v7, v2, 3, s{S.T3}")
    a("v_mul_f32 v6, 0x3c000000, v6")
    a("v_cvt_f32_u32 v7, v7")
    a("v_mul_f32 v7, v7, v6")
    for j in range(4):
        a(f"v_cos_f32 v{C1+j}, v7")
        a(f"v_sin_f32 v{S1+j}, v7")
        if j < 3:
            a("v_add_f32 v7, v7, v6")
    if o.tlate == 2:
        a(f"global_load_dwordx4 {V(WR,4)}, v{VG16}, s[{S.PWR}:{S.PWR+1}]")
        tile_dma()
    a(f"s_lshl_b32 s{S.T4}, s{S.T0}, 13")
    a(f"s_lshl_b32 s{S.T5}, s{S.T2}, 10")
    a(f"s_lshl3_add_u32 s{S.T5}, s{S.T1}, s{S.T5}")
    a(f"v_add_u32 v15, s{S.T4}, v{VG16}")
    a(f"v_add_u32 v9, s{S.T5}, v15")
    a(f"v_cvt_pk_bf16_f32 v{K+0}, v{C1}, v{C1+1}")
    a(f"v_cvt_pk_bf16_f32 v{K+1}, v{C1+2}, v{C1+3}")
    a(f"v_cvt_pk_bf16_f32 v{K+2}, -v{S1}, -v{S1+1}")
    a(f"v_cvt_pk_bf16_f32 v{K+3}, -v{S1+2}, -v{S1+3}")
    a("v_cmp_eq_f32 vcc, 0, v6")
    a(f"v_cvt_pk_bf16_f32 v{K+4}, v{C1}, -v{S1+1}")
    a(f"v_cvt_pk_bf16_f32 v{K+5}, -v{C1+2}, v{S1+3}")
    a(f"v_cvt_pk_bf16_f32 v{K+6}, -v{S1}, -v{C1+1}")
    a(f"v_cvt_pk_bf16_f32 v{K+7}, v{S1+2}, v{C1+3}")
    a(f"ds_write_b64 v9, {V(K,2)} offset:{L_CT}")
    a(f"ds_write_b64 v9, {V(K+4,2)} offset:{L_CT+4096}")
    a(f"ds_write_b64 v9, {V(K+6,2)} offset:{L_CT+6144}")
    a("s_mov_b64 exec, vcc")
    a(f"v_mov_b32 v{K+2}, 0xbf803f80")
    a(f"v_mov_b32 v{K+3}, 0xbf803f80")
    a("s_mov_b64 exec, -1")
    a(f"ds_write_b64 v9, {V(K+2,2)} offset:{L_CT+2048}")
    if o.tlate != 2:
        a(f"global_load_dwordx4 {V(WR,4)}, v{VG16}, s[{S.PWR}:{S.PWR+1}]")
    if o.tlate == 1:
        tile_dma()
    a("v_mov_b32 v12, 0")
    a("v_mov_b32 v13, 0")
    stamp(3)
    if o.b0 == 1:
        a("s_waitcnt lgkmcnt(0)")
        a("s_barrier")
        for k in range(2):
            for t in range(4):
                a(f"ds_read_b128 {V(CM+16*t+4*k,4)}, v15 offset:{L_CT + t*2048 + k*1024}")

    def dots(w, fill=()):
        fill = list(fill)

        def pad(n):
            while n and fill:
                a(fill.pop(0))
                n -= 1
            a.nop(n)

        for i in range(4):
            a(f"v_dot2c_f32_bf16 v12, v{XR+i}, v{w+i}")
            a(f"v_dot2c_f32_bf16 v13, v{XR+4+i}, v{w+i}")
        pad(3)
        a("v_permlane32_swap_b32 v12, v13")
        a("v_add_f32 v12, v12, v13")
        a("v_mov_b32 v13, v12")
        pad(2)
        a("v_permlane16_swap_b32 v12, v13")
        a("v_add_f32 v12, v12, v13")
        for r in (8, 4, 2, 1):
            pad(2)
            a(f"v_add_f32_dpp v12, v12, v12 row_ror:{r} {DPPM}")
        rnd(12, 12)
        for x in fill:
            a(x)

    a(f"s_waitcnt vmcnt({2 if o.tlate else 0})")
    stamp(4)
    dots(WR, [f"s_sub_u32 s{S.T4}, 0xffff, s{S.TD}", f"s_sub_u32 s{S.T5}, 0xffff, s{S.TM}", f"v_mov_b32 v4, s{S.T4}",
              f"v_writelane_b32 v4, s{S.T5}, 32", f"v_mov_b32 v9, {L_KSL}",
              f"v_lshlrev_b32 v{VSGN}, 31, v1", f"v_lshrrev_b32 v7, 16, v{VSGN}", f"v_or_b32 v{VSGN}, v{VSGN}, v7",
              "v_bfe_u32 v6, v0, 2, 2", "v_and_b32 v14, 3, v0", f"v_lshl_add_u32 v14, v14, 1, s{S.T2}",
              f"v_lshl_add_u32 v{VTR}, v2, 3, v6", "v_lshrrev_b32 v6, 1, v6", "v_xor_b32 v14, v14, v6"])
    a("v_ashrrev_i32 v7, 31, v12")
    a("v_or_b32 v7, 0x80000000, v7")
    a("v_xor_b32 v7, v7, v12")
    a(f"v_and_b32 v7, {HIM}, v7")
    a("v_or_b32 v7, v7, v4")
    a("s_mov_b32 exec_lo, 1")
    a("s_mov_b32 exec_hi, 1")
    a("ds_max_u32 v9, v7")
    a("s_mov_b64 exec, -1")
    if o.b1a:
        a("s_waitcnt lgkmcnt(0)")
        hold("K")
        a("s_barrier")
    if o.b0 == 2:
        for k in range(2):
            for t in range(4):
                a(f"ds_read_b128 {V(CM+16*t+4*k,4)}, v15 offset:{L_CT + t*2048 + k*1024}")
    a(f"s_lshl_b32 s{S.T1}, s{S.T1}, 3")
    a(f"v_lshl_add_u32 v14, v14, 4, s{S.T1}")
    a(f"v_lshl_add_u32 v{VTR}, v{VTR}, 7, v14")
    a("v_lshlrev_b32 v9, 4, v2")
    a("s_waitcnt vmcnt(0)" + ("" if o.b0 == 2 else " lgkmcnt(0)"))
    hold("B1")
    a("s_barrier")
    stamp(5)
    if o.b0 == 2:
        a("s_waitcnt lgkmcnt(5)")
    a(f"ds_read_b128 v[28:31], v9 offset:{L_EXP}")
    for k in range(4):
        for h in range(2):
            a(f"ds_read_b64_tr_b16 {V(AOP+4*k+2*h,2)}, v{VTR} offset:{L_TILE + k*4096 + h*512}")
        if k < 2 and not o.b0:
            for t in range(4):
                a(f"ds_read_b128 {V(CM+16*t+4*k,4)}, v15 offset:{L_CT + t*2048 + k*1024}")
        if k == 1 and not o.b0:
            a("s_waitcnt lgkmcnt(9)")
    a(f"global_load_dwordx4 {V(GW,4)}, v{VG16}, s[{S.PGW}:{S.PGW+1}]")
    xors = [f"v_xor_b32 v{CM+t*16+8+4*kp+r}, v{CM+t*16+4*kp+r}, v{VSGN}" for kp in range(2) for t in range(4) for r in range(4)]
    misc = [f"s_mul_i32 s{S.SO}, s{S.T0}, {16*CS}",
            f"s_add_u32 s{S.SO}, s{S.SO}, s{S.PIE}",
            f"s_and_b32 s{S.T4}, s{S.WAVE}, 3",
            f"s_lshl_b32 s{S.T4}, s{S.T4}, 9",
            f"s_add_u32 s{S.SO}, s{S.SO}, s{S.T4}",
            f"s_add_u32 s{S.SO}, s{S.SO}, {WS_INT}",
            f"s_mov_b32 s{S.RWS}, s{S.PWS}", f"s_mov_b32 s{S.RWS+1}, s{S.PWS+1}", f"s_mov_b32 s{S.RWS+2}, {WS_BYTES:#x}",
            f"s_mov_b32 s{S.RWS+3}, 0x20000",
            f"s_add_u32 s{S.SO+1}, s{S.SO}, {32*CS}", f"s_mov_b32 s{S.T5}, 0xfffefffe", f"s_mov_b32 s{S.T4}, 0x07060302",
            f"v_mul_u32_u24 v{VST}, {CS}, v1", f"v_lshl_add_u32 v{VST}, v2, 4, v{VST}",
            ]
    fill = xors + misc
    for k in range(4):
        for t in range(4):
            if o.b0:
                if t == 0:
                    a(f"s_waitcnt lgkmcnt({6-2*k})")
            elif k == 0:
                a(f"s_waitcnt lgkmcnt({13-t})")
            elif k == 1:
                a(f"s_waitcnt lgkmcnt({7-t})")
            elif t == 0:
                a(f"s_waitcnt lgkmcnt({2 if k == 2 else 0})")
            c = "0" if k == 0 else V(ACC + 4 * t, 4)
            a(f"{MF} {V(ACC+4*t,4)}, {V(AOP+4*k,4)}, {V(CM+16*t+4*k,4)}, {c}")
            n = 4 if k < 2 else 2
            if k < 3 or t < 3:
                for _ in range(n):
                    if fill:
                        x = fill.pop(0)
                        if x != "TAGWAIT":
                            a(x)
    for x in fill:
        a(x)
    a("v_mov_b32 v12, 0")
    a("v_mov_b32 v13, 0")
    for h in range(2):
        for i in range(8):
            a(f"v_add_u32 v{ACC+8*h+i}, 0x10000, v{ACC+8*h+i}")
        for i in range(4):
            a(f"v_perm_b32 v{AOP+4*h+i}, v{ACC+8*h+4+i}, v{ACC+8*h+i}, s{S.T4}")
        for i in range(4):
            a(f"v_and_or_b32 v{AOP+4*h+i}, v{AOP+4*h+i}, s{S.T5}, v{28+i}")
        a(f"buffer_store_dwordx4 {V(AOP+4*h,4)}, v{VST}, {R4(S.RWS)}, s{S.SO+h} offen sc1")
    a(f"s_mov_b32 s{S.SPIN}, 0")
    a(f"s_mov_b32 s{S.ISZ}, 0")
    stamp(7)
    if o.only == "P1":
        a("s_endpgm")
    a.label("L_ta_end")

    gwait = [2]

    def gates(full):
        if full:
            a(f"s_waitcnt vmcnt({gwait[0]})")
        dots(GW)
        if full:
            a(f"s_lshl_b32 s{S.T0}, s{S.WAVE}, 11")
            a(f"v_add_u32 v6, s{S.T0}, v{VG16}")
            a(f"ds_write_b128 v6, {V(XR,4)} offset:{L_XT}")
            a(f"ds_write_b128 v6, {V(XR+4,4)} offset:{L_XT+1024}")
            a(f"v_lshl_add_u32 v7, v1, 6, s{S.T0}")
            a("v_lshl_add_u32 v7, v2, 3, v7")
            a("s_waitcnt lgkmcnt(0)")
            for r in range(2):
                a(f"ds_read2_b64 {V(XR+4*r,4)}, v7 offset0:{0} offset1:{4}" if False else f"ds_read_b64 {V(XR+4*r,2)}, v7 offset:{L_XT+1024*r}")
                a(f"ds_read_b64 {V(XR+4*r+2,2)}, v7 offset:{L_XT+1024*r+32}")
            vrow_setup()
        sigmoid(13, 12)
        rnd(13, 13)
        a("v_sub_f32 v14, 1.0, v13")
        rnd(14, 14)
        a(f"v_readlane_b32 s{S.T0}, v13, 0")
        a(f"v_readlane_b32 s{S.T1}, v13, 32")
        a(f"v_readlane_b32 s{S.T2}, v14, 0")
        a(f"v_readlane_b32 s{S.T3}, v14, 32")
        a(f"s_xor_b32 s{S.T4}, s{S.T0}, 0x80000000")
        a(f"s_cmp_eq_u32 s{S.TD}, 0")
        a(f"s_cselect_b32 s{S.T4}, 0, s{S.T4}")
        a(f"s_cselect_b32 s{S.T5}, 0, s{S.T1}")
        if not full:
            return
        a(f"v_mov_b32 v{CO}, s{S.T0}")
        a(f"v_mov_b32 v{CO+1}, s{S.T4}")
        a(f"v_mov_b32 v{CO+2}, s{S.T5}")
        a(f"v_mov_b32 v{CO+3}, s{S.T1}")
        a(f"v_mov_b32 v13, s{S.T2}")
        a(f"v_mov_b32 v14, s{S.T3}")
        a("s_waitcnt lgkmcnt(0)")
        for r in range(2):
            for i in range(4):
                a(f"v_lshlrev_b32 v{XG+8*r+2*i}, 16, v{XR+4*r+i}")
                a(f"v_and_b32 v{XG+8*r+2*i+1}, {HIM}, v{XR+4*r+i}")
            for i in range(8):
                a(f"v_mul_f32 v{XG+8*r+i}, v{13+r}, v{XG+8*r+i}")

    def addr_ur(wreg):
        a(f"s_mul_i32 s{S.T1}, s{wreg}, {2*UB}")
        a("v_bfe_u32 v7, v1, 1, 2")
        a("v_xor_b32 v7, v7, v2")
        a(f"v_lshl_add_u32 v7, v7, 4, s{S.T1}")
        a(f"v_lshl_add_u32 v{VUR0}, v1, 6, v7")
        a("v_sub_u32 v6, 16, v1")
        a("v_bfe_u32 v7, v6, 1, 2")
        a("v_xor_b32 v7, v7, v2")
        a(f"v_lshl_add_u32 v7, v7, 4, s{S.T1}")
        a(f"v_lshl_add_u32 v{VUR1}, v6, 6, v7")

    def addr_p2():
        a("v_lshlrev_b32 v6, 4, v1")
        a(f"v_lshl_add_u32 v{VLD}, v2, 13, v6")
        a(f"v_mul_u32_u24 v6, {4*UB}, v2")
        a("v_bfe_u32 v7, v1, 1, 2")
        a(f"v_xor_b32 v7, s{S.WAVE}, v7")
        a("v_lshl_add_u32 v7, v7, 4, v6")
        a(f"v_lshl_add_u32 v{VUW}, v1, 6, v7")
        a(f"s_lshl4_add_u32 s{S.T1}, s{S.WAVE}, 1024")
        a(f"v_mov_b32 v9, {L_DUMP - L_U2}")
        a(f"v_lshl_add_u32 v{VUX}, v0, 1, v9")
        a(f"v_lshl_add_u32 v7, v1, 1, s{S.T1}")
        a("s_mov_b32 exec_lo, 0x00ff00ff")
        a("s_mov_b32 exec_hi, 0x00ff00ff")
        a(f"v_add_u32 v{VUX}, v7, v6")
        a("s_mov_b64 exec, -1")

    EXP = 96

    def exp_setup():
        a("v_and_b32 v6, 3, v1")
        a("v_lshlrev_b32 v6, 4, v6")
        a(f"ds_read_b128 {V(EXP,4)}, v6 offset:{L_EXP}")
        a("s_waitcnt lgkmcnt(0)")

    def exp_make():
        a("v_lshlrev_b32 v6, 1, v1")
        a(f"v_lshrrev_b32 v6, v6, v{VTAG}")
        a("v_lshlrev_b32 v7, 15, v6")
        a("v_and_b32 v6, 1, v6")
        a("v_and_b32 v7, 0x10000, v7")
        a("v_or_b32 v6, v6, v7")
        a("v_lshlrev_b32 v7, 2, v1")
        a(f"ds_write_b32 v7, v6 offset:{L_EXP}")
        a("s_waitcnt lgkmcnt(0)")

    def const_d1():
        a("v_cvt_f32_u32 v6, v1")
        a(f"s_lshl_b32 s{S.T0}, s{S.WAVE}, 2")
        a(f"v_lshl_add_u32 v7, v2, 6, s{S.T0}")
        a("v_mul_f32 v6, 0x3b000000, v6")
        a("v_cvt_f32_u32 v7, v7")
        a("v_mul_f32 v15, 0x41800000, v6")
        a("v_mul_f32 v7, v7, v6")
        for ib in range(4):
            if ib:
                a("v_add_f32 v7, v7, v6")
            for j in range(4):
                src = "v7" if j == 0 else "v9"
                a(f"v_cos_f32 v{Cc+j}, {src}")
                a(f"v_sin_f32 v{Ss+j}, {src}")
                if j < 3:
                    a(f"v_add_f32 v9, {src}, v15")
            b = M1 + 12 * ib
            a(f"v_mov_b32 v{b+8}, 0")
            for p in range(2):
                a(f"v_cvt_pk_bf16_f32 v{b+p}, v{Cc+2*p}, v{Cc+2*p+1}")
                a(f"v_cvt_pk_bf16_f32 v{b+4+p}, -v{Ss+2*p}, -v{Ss+2*p+1}")
            for p in range(2):
                a(f"v_xor_b32 v{b+2+p}, v{b+p}, v{VSGN}")
                a(f"v_xor_b32 v{b+6+p}, v{b+4+p}, v{VSGN}")
        a("v_lshrrev_b32 v6, 1, v1")
        a(f"v_add_u32 v7, s{S.T0}, v6")
        a("v_and_b32 v9, 1, v1")
        a("v_lshl_add_u32 v7, v9, 3, v7")
        a("v_cvt_f32_u32 v7, v7")
        a("v_mul_f32 v7, 0x3d000000, v7")
        a("v_cos_f32 v7, v7")
        for ib in range(4):
            m = 0x00030003 << (2 * ib)
            a(f"s_mov_b32 exec_lo, {m:#x}")
            a(f"s_mov_b32 exec_hi, {m:#x}")
            a(f"v_cvt_pk_bf16_f32 v{M1+12*ib+8}, v7, -v7")
        a("s_mov_b64 exec, -1")
        for ib in range(4):
            for p in range(1, 4):
                a(f"v_mov_b32 v{M1+12*ib+8+p}, v{M1+12*ib+8}")

    def const_ga():
        a("v_lshrrev_b32 v6, 1, v1")
        a(f"s_lshl_b32 s{S.T0}, s{S.HH}, 10")
        a(f"s_add_u32 s{S.T0}, s{S.T0}, s{S.T1C}")
        a(f"v_lshl_add_u32 v6, v6, 7, s{S.T0}")
        a("v_and_b32 v7, 1, v1")
        a("v_lshlrev_b32 v9, 9, v7")
        l0, ld = a.L("g0"), a.L("gd")
        a(f"s_cmp_lg_u32 s{S.T1C}, 0")
        a(f"s_cbranch_scc1 {l0}")
        a("s_mov_b32 exec_lo, 0x00020002")
        a("s_mov_b32 exec_hi, 0x00020002")
        a("v_mov_b32 v6, 0x400")
        a("v_mov_b32 v9, 0")
        a("s_mov_b64 exec, -1")
        a.label(l0)
        a("v_lshlrev_b32 v7, 2, v2")
        a("v_mad_u32_u24 v9, v7, v6, v9")
        a("v_cvt_f32_u32 v6, v6")
        a("v_cvt_f32_u32 v9, v9")
        a("v_mul_f32 v6, 0x3a000000, v6")
        a("v_mul_f32 v9, 0x3a000000, v9")
        for jj in range(4):
            a(f"v_cos_f32 v{Cc+jj}, v9")
            a(f"v_sin_f32 v{Ss+jj}, v9")
            if jj < 3:
                a("v_add_f32 v9, v9, v6")
        a(f"s_and_b32 s{S.T1}, s{S.T1C}, 63")
        a.nop(1)
        for jj in range(4):
            a(f"v_cvt_pk_bf16_f32 v{GA+jj}, v{Cc+jj}, v{Ss+jj}")
        a(f"s_cmp_lg_u32 s{S.T1}, 0")
        a(f"s_cbranch_scc1 {ld}")
        a(f"s_lshr_b32 s{S.T1}, s{S.T1C}, 2")
        for jj in range(4):
            a(f"v_and_b32 v{GA+jj}, 0xffff, v{GA+jj}")
            a(f"v_lshlrev_b32 v{GA+jj}, s{S.T1}, v{GA+jj}")
        a.label(ld)

    def int_base():
        a(f"s_and_b32 s{S.T1}, s{S.T1C}, 63")
        a(f"s_mul_i32 s{S.L0}, s{S.T1}, {CS}")
        a(f"s_lshl_b32 s{S.T1}, s{S.WAVE}, 9")
        a(f"s_add_u32 s{S.L0}, s{S.L0}, s{S.T1}")
        a(f"s_add_u32 s{S.L0}, s{S.L0}, {WS_INT}")
        a(f"s_add_u32 s{S.L1}, s{S.L0}, 4096")

    def m2_addr():
        a(f"s_cmp_eq_u32 s{S.TD}, 0")
        a(f"s_cselect_b32 s{S.T0}, 0, 2048")
        a(f"v_add_u32 v4, s{S.T0}, v{VG16}")

    def int_loads(ah):
        for jj in range(4):
            so = S.L0 if jj < 2 else S.L1
            a(f"buffer_load_dwordx4 {V(LD+16*ah+4*jj,4)}, v{VLD}, {R4(S.RWS)}, s{so} offen offset:{(jj & 1)*2048 + ah*256} sc1")

    a.srd(S.ROUT, S.POUT, 0x200000)
    a(f"s_cmp_ge_u32 s{S.WAVE}, 4")
    a("s_cbranch_scc1 L_hi0")
    if o.prio & 1:
        a("s_setprio 2")
    pre = [lambda: (addr_p2(), int_base(), const_ga(), exp_setup()), const_d1, lambda: gates(True), lambda: (addr_ur(S.WAVE), m2_addr())]
    if o.gfirst:
        pre[1], pre[2] = pre[2], pre[1]
    for f in pre[:o.npre]:
        f()
    stamp(8)
    a(f"s_waitcnt vmcnt({0 if o.ackwait else 2})")
    if o.b3:
        a("s_barrier")
    if o.isleep0:
        a(f"s_sleep {o.isleep0}")
    hold("B4")
    stamp(9)
    if o.stag:
        a(f"s_cmp_lg_u32 s{S.HH}, 0")
        a("s_cbranch_scc1 L_stg1")
        int_loads(0)
        a(f"s_waitcnt vmcnt({4 - o.stag})")
        int_loads(1)
        a("s_branch L_stg2")
        a.label("L_stg1")
        int_loads(1)
        a(f"s_waitcnt vmcnt({4 - o.stag})")
        int_loads(0)
        a("s_waitcnt vmcnt(0)")
        a.label("L_stg2")
    else:
        int_loads(0)
        int_loads(1)
    gwait[0] = 10
    for f in pre[o.npre:]:
        f()
    gwait[0] = 2
    a.label("L_zjoin")
    stamp(10)
    for ah in range(2):
        a(f"s_waitcnt vmcnt({4-4*ah})")
        a.label(f"L_got{ah}")
        b = LD + 16 * ah
        da = DA1 if ah else DA0
        for ib in range(4):
            for jj in range(4):
                a(f"v_xor_b32 v{TP+4*ib+jj}, v{b+4*jj+ib}, v{EXP+ib}")
            if ib == 0:
                a(f"v_or3_b32 v6, v{TP}, v{TP+1}, v{TP+2}")
                a(f"v_or_b32 v6, v6, v{TP+3}")
            else:
                a(f"v_or3_b32 v6, v6, v{TP+4*ib}, v{TP+4*ib+1}")
                a(f"v_or3_b32 v6, v6, v{TP+4*ib+2}, v{TP+4*ib+3}")
            if ib == 3:
                a("v_and_b32 v6, 0x10001, v6")
                a("v_cmp_ne_u32 vcc, 0, v6")
            if not (ah == 1):
                a(f"{MF} {V(da+4*ib,4)}, {V(TP+4*ib,4)}, {V(GA,4)}, 0")
            else:
                a(f"{MF} {V(da+4*ib,4)}, {V(TP+4*ib,4)}, {V(GA,4)}, 0")
        a(f"s_cbranch_vccnz L_retry{ah}")
        a.label(f"L_fail{ah}")
    stamp(11)

    def d1(jb):
        a(f"{MF} {V(DA0+4*jb,4)}, {V(TP+4*jb,4)}, {V(M1+12*jb,4)}, 0")
        a(f"{MF} {V(DA1+4*jb,4)}, {V(TP+4*jb,4)}, {V(M1+12*jb+4,4)}, 0")
        a(f"{MF} {V(X16,4)}, {V(TP+4*jb,4)}, {V(M1+12*jb+8,4)}, {'0' if jb == 0 else V(X16,4)}")

    for ib in range(4):
        for p in range(4):
            s0 = (DA1 if p >= 2 else DA0) + 4 * ib + 2 * (p & 1)
            a(f"v_cvt_pk_bf16_f32 v{TP+4*ib+p}, v{s0}, v{s0+1}")
        if ib:
            d1(ib - 1)
    d1(3)
    for ib in range(3):
        for i in range(4):
            a(f"v_cvt_pk_bf16_f32 v{PK+4*i+ib}, v{DA0+4*ib+i}, v{DA1+4*ib+i}")
    for i in range(4):
        a(f"v_cvt_pk_bf16_f32 v{PK+4*i+3}, v{DA0+12+i}, v{DA1+12+i}")
        a(f"ds_write_b128 v{VUW}, {V(PK+4*i,4)} offset:{L_U2 + i*UB}")
    a(f"v_cvt_pk_bf16_f32 v{X16}, v{X16}, v{X16+1}")
    a(f"v_cvt_pk_bf16_f32 v{X16+2}, v{X16+2}, v{X16+3}")
    a(f"ds_write_b16 v{VUX}, v{X16} offset:{L_U2}")
    a(f"ds_write_b16_d16_hi v{VUX}, v{X16} offset:{L_U2+UB}")
    a(f"ds_write_b16 v{VUX}, v{X16+2} offset:{L_U2+2*UB}")
    a(f"ds_write_b16_d16_hi v{VUX}, v{X16+2} offset:{L_U2+3*UB}")
    a.label("L_d2")
    a(f"ds_read_b128 {V(M2,4)}, v{VG16} offset:{L_M2}")
    a(f"ds_read_b128 {V(M2+4,4)}, v{VG16} offset:{L_M2+1024}")
    a(f"ds_read_b128 {V(M2+8,4)}, v4 offset:{L_M2}")
    a(f"ds_read_b128 {V(M2+12,4)}, v4 offset:{L_M2+1024}")
    a(f"v_mov_b32 v9, {L_GKEY}")
    a(f"s_cmp_lg_u32 s{S.ISZ}, 0")
    a("s_waitcnt lgkmcnt(0)")
    a("s_cbranch_scc1 L_zsync")
    a("s_barrier")
    stamp(12)
    a("ds_read_b32 v6, v9")
    a(f"ds_read_b128 {V(UO,4)}, v{VUR0} offset:{L_U2}")
    a(f"ds_read_b128 {V(UO+4,4)}, v{VUR1} offset:{L_U2}")
    a(f"ds_read_b128 {V(UO+8,4)}, v{VUR0} offset:{L_U2+UB}")
    a(f"ds_read_b128 {V(UO+12,4)}, v{VUR1} offset:{L_U2+UB}")
    a(f"s_lshl_b32 s{S.T0}, s{S.TD}, 10")
    a(f"s_lshl_b32 s{S.T1}, s{S.TM}, 10")
    for k in range(4):
        a(f"s_waitcnt lgkmcnt({3-k})")
        a(f"{MF} {V(PQ+4*k,4)}, {V(UO+4*k,4)}, {V(M2+4*k,4)}, 0")
    a(f"v_readfirstlane_b32 s{S.GKEY}, v6")
    a(f"s_andn2_b32 s{S.IDX}, 0xffff, s{S.GKEY}")
    for r in range(2):
        for i in range(8):
            a(f"v_fmac_f32 v{XG+8*r+i}, v{CO+2*r}, v{PQ+i}")
    for r, (so, tr) in enumerate(((S.T0, S.TD), (S.T1, S.TM))):
        for i in range(8):
            a(f"v_fmac_f32 v{XG+8*r+i}, v{CO+2*r+1}, v{PQ+8+i}")
        for i in range(4):
            a(f"v_cvt_pk_bf16_f32 v{UO+4*r+i}, v{XG+8*r+2*i}, v{XG+8*r+2*i+1}")
        l = a.L("skip")
        if r == 0:
            stamp(6)
        a(f"s_cmp_eq_u32 s{tr}, s{S.IDX}")
        a(f"s_cbranch_scc1 {l}")
        a(f"v_permlane16_swap_b32 v{UO+4*r}, v{UO+4*r+2}")
        a(f"v_permlane16_swap_b32 v{UO+4*r+1}, v{UO+4*r+3}")
        a(f"buffer_store_dwordx4 {V(UO+4*r,4)}, v{VROW}, {R4(S.ROUT)}, s{so} offen{o.outpol}")
        a.label(l)
    a.label("L_tb_end")
    stamp(13)
    if o.stamps:
        a("s_waitcnt vmcnt(0)")
        stamp(15)
    endprog()

    for ah in range(2):
        a.label(f"L_retry{ah}")
        if o.stamps:
            a(f"s_add_u32 s{S.RC}, s{S.RC}, {1 << (8*ah)}")
        if o.rsleep:
            a(f"s_sleep {o.rsleep}")
        spin()
        a(f"s_cbranch_scc1 L_fail{ah}")
        int_loads(ah)
        a("s_waitcnt vmcnt(0)")
        a(f"s_branch L_got{ah}")

    a.label("L_hi0")
    if o.b3:
        if o.ackwait:
            a("s_waitcnt vmcnt(0)")
        a("s_barrier")
    a.label("L_hi1")
    if o.atouch:
        touch("L_tb", o.atouch, 4, 4)
        a(f"s_cmp_lg_u32 s{S.ISZ}, 0")
        a("s_cbranch_scc1 L_z0b")
    gates(True)
    addr_ur(S.WAVE)
    m2_addr()
    stamp(10)
    a("s_branch L_d2")

    a.label("L_ah")
    if o.prio & 2:
        a("s_setprio 3")
    if o.cpf:
        a(f"s_cmp_ge_u32 s{S.T1}, {o.cpf}")
        a("s_cbranch_scc1 L_nocpf")
        a(f"s_getpc_b64 s[{S.EX}:{S.EX+1}]")
        a.label("L_pc")
        a(f"s_sub_u32 s{S.EX}, s{S.EX}, L_pc - {name}")
        a(f"s_subb_u32 s{S.EX+1}, s{S.EX+1}, 0")
        a("v_lshlrev_b32 v6, 7, v0")
        a("v_add_u32 v7, 0x2000, v6")
        a(f"v_min_u32 v7, L_end - {name}, v7")
        a(f"v_mov_b32 v13, s{S.EX+1}")
        a(f"v_mov_b32 v15, s{S.EX+1}")
        a(f"v_add_co_u32 v12, vcc, s{S.EX}, v6")
        a.nop(2)
        a("v_addc_co_u32 v13, vcc, 0, v13, vcc")
        a(f"v_add_co_u32 v14, vcc, s{S.EX}, v7")
        a.nop(2)
        a("v_addc_co_u32 v15, vcc, 0, v15, vcc")
        a("global_load_dword v10, v[12:13], off")
        a("global_load_dword v11, v[14:15], off")
        a.label("L_nocpf")
    a(f"v_lshlrev_b32 v{VG16}, 4, v0")
    a(f"v_mov_b32 v{VTAG}, 0")
    a(f"v_mov_b32 v9, {L_KSL}")
    a(f"ds_write_b32 v9, v{VTAG}")
    a(f"s_mov_b32 s{S.KM}, 0x9E3779B1")
    a(f"s_cmp_ge_u32 s{S.T1}, {o.wpf}")
    a("s_waitcnt lgkmcnt(0)")
    a("s_cbranch_scc1 L_nowpf")
    a(f"global_load_dwordx4 v[32:35], v{VG16}, s[{S.PWR}:{S.PWR+1}]")
    a(f"global_load_dword v{VE}, v{VTAG}, s[{S.PWS}:{S.PWS+1}]")
    a(f"global_load_dwordx4 v[36:39], v{VG16}, s[{S.PGW}:{S.PGW+1}]")
    a.label("L_nowpf")
    stamp(1)
    a("v_lshlrev_b32 v14, 10, v0")
    a(f"s_lshl_b32 s{S.ID8}, s2, 3")
    a(f"s_add_u32 s{S.ID8}, s{S.ID8}, {WS_KEY}")
    ws_setup()

    if o.b0 == 2:
        a("s_barrier")
    const_d2()
    a(f"global_load_dword v{VE}, v{VTAG}, s[{S.PWS}:{S.PWS+1}]")
    a("s_waitcnt lgkmcnt(0)")
    stamp(2)
    if o.b0 == 1:
        a("s_barrier")
    a(f"v_mov_b32 v9, {L_KSL}")
    a("s_waitcnt vmcnt(0)")
    tag_make()
    exp_make()
    a(f"v_mov_b32 v9, {L_KSL}")
    stamp(3)
    a("s_barrier")
    a(f"ds_read_b32 v{VE}, v9")
    set_exec(RF * CF + RZ * CZ + R2 * C2 + RS)
    a("s_waitcnt lgkmcnt(0)")
    a(f"buffer_store_dwordx2 v[{VE}:{VTAG}], v14, {R4(S.RWS)}, s{S.ID8} offen sc1")
    if o.probe >= 0:
        a("s_mov_b64 exec, 1")
        a("v_mov_b32 v40, s66")
        a(f"v_mov_b32 v41, v{VTAG}")
        a(f"s_add_u32 s{S.T0}, s{S.ID8}, {WS_KEY2 - WS_KEY}")
        a(f"buffer_store_dwordx2 v[40:41], v14, {R4(S.RWS)}, s{S.T0} offen sc1")
    a("s_mov_b64 exec, -1")
    stamp(5)
    if o.b1a:
        a("s_barrier")
    if o.only == "P1":
        a("s_endpgm")
    if o.htouch:
        touch("L_th", o.htouch, 8, 1)
    poll_setup(WS_KEY + 1024 * (RF * CF + RZ * CZ), R2, C2)
    a("s_waitcnt vmcnt(0)")
    if not o.gate and o.b3:
        a("s_barrier")
    if o.k2sleep0:
        a(f"s_sleep {o.k2sleep0}")
    stamp(8)
    poll_granules(VG16, 32, sleep=o.k2sleep)
    stamp(9)
    wave_max_key(32)
    lds_put(L_GKEY, 32)
    if o.gate:
        a(f"s_sleep {o.gate}")
        a("s_barrier")
        if o.probe >= 0:
            a("s_cmp_lg_u32 s2, 9")
            a("s_cbranch_scc1 L_noprobe")
            a("s_barrier")
            a(f"s_mov_b32 s{S.PO}, {WS_KEY2}")
            a(f"s_mov_b32 s{S.POL}, {WS_KEY2}")
            poll_granules(VG16, 32, sleep=4)
            for i in range(8):
                a(f"v_readlane_b32 s{70+i}, v{32 + 2*(i&1)}, {i>>1}")
            a("s_mov_b32 s80, s70")
            for i in range(1, 8):
                a(f"s_sub_u32 s81, s{70+i}, s80")
                a("s_cmp_lt_i32 s81, 0")
                a(f"s_cselect_b32 s80, s{70+i}, s80")
            if o.probe < 8:
                a(f"s_sub_u32 s81, s{70+o.probe}, s80")
            else:
                a("s_mov_b32 s81, 0")
                for i in range(8):
                    a(f"s_sub_u32 s82, s{70+i}, s80")
                    a("s_max_u32 s81, s81, s82")
            a("s_mul_i32 s81, s81, 10")
            a("s_add_u32 s81, s81, 800")
            a.label("L_pw")
            a("s_sleep 1")
            a("s_memrealtime s[100:101]")
            a("s_waitcnt lgkmcnt(0)")
            a("s_sub_u32 s100, s100, s80")
            a("s_cmp_lt_u32 s100, s81")
            a("s_cbranch_scc1 L_pw")
            a.label("L_noprobe")
        if o.hold and o.hold[0] == "endA":
            a(f"s_sub_u32 s{S.T0}, s2, {o.hold[2]}")
            a(f"s_cmp_ge_u32 s{S.T0}, {o.hold[3]}")
            a("s_cbranch_scc1 L_nohold")
            a("s_barrier")
            hold("endA")
            a.label("L_nohold")
        endprog()
    a("s_barrier")
    endprog()

    a.label("L_notA")
    if o.only == "AA":
        a("s_endpgm")
    a(f"s_sub_u32 s{S.T2}, s{S.T0}, {o.zx}")
    a(f"s_and_b32 s{S.T2}, s{S.T2}, 7")
    a(f"s_lshl4_add_u32 s{S.FJ}, s{S.T2}, s{S.T1}")
    a(f"s_sub_u32 s{S.FJ}, s{S.FJ}, 32")
    a(f"s_cmp_ge_u32 s2, {NWG}")
    a("s_cbranch_scc1 L_end")
    a(f"s_cmp_lg_u32 s{S.T2}, 0")
    a("s_cbranch_scc1 L_F")
    a(f"s_mov_b32 s{S.ISZ}, 1")
    a(f"s_sub_u32 s{S.Z}, s{S.T1}, 16")
    vrow_setup()
    a(f"v_lshlrev_b32 v{VG16}, 4, v0")
    sgn_setup()
    a("s_waitcnt lgkmcnt(0)")
    ws_setup()
    a.srd(S.ROUT, S.POUT, 0x200000)
    addr_p2()
    a(f"s_cmp_eq_u32 s{S.WAVE}, 8")
    a("s_cbranch_scc1 L_zh")
    a(f"s_cmp_ge_u32 s{S.WAVE}, 4")
    a("s_cbranch_scc1 L_z0")
    const_d1()
    a("s_branch L_z1")
    a.label("L_z0")
    if o.atouch:
        a("s_branch L_hi1")
    a.label("L_z0b")
    if o.ztouch:
        touch("L_tz", o.ztouch, 4, 4)
    a.label("L_z1")
    a(f"v_mov_b32 v9, {L_KSL}")
    a("v_mov_b32 v12, 0")
    a("v_mov_b32 v13, 0")
    a("s_barrier")
    a(f"ds_read_b64 v[{VE}:{VTAG}], v9")
    a(f"ds_read_b128 {V(GW,4)}, v{VG16} offset:{L_WV+1024}")
    a("s_waitcnt lgkmcnt(0)")
    a(f"v_readfirstlane_b32 s{S.GKEY}, v{VE}")
    a(f"s_andn2_b32 s{S.IDX}, 2047, s{S.GKEY}")
    a(f"s_and_b32 s{S.T0}, s{S.IDX}, 127")
    a(f"s_cmp_gt_u32 s{S.T0}, 64")
    a(f"s_cselect_b32 s{S.WHICH}, 1, 0")
    a(f"s_and_b32 s{S.T0}, s{S.IDX}, {1024 + 63}")
    a(f"s_cmp_eq_u32 s{S.T0}, 1024")
    a(f"s_cselect_b32 s{S.WHICH}, 1, s{S.WHICH}")
    a(f"s_sub_u32 s{S.T0}, 2048, s{S.IDX}")
    a(f"s_cmp_lg_u32 s{S.WHICH}, 0")
    a(f"s_cselect_b32 s{S.T0}, s{S.T0}, s{S.IDX}")
    a(f"s_cmp_eq_u32 s{S.T0}, 1024")
    a(f"s_cselect_b32 s{S.T0}, 0, s{S.T0}")
    a(f"s_and_b32 s{S.T1C}, s{S.T0}, 127")
    a(f"s_lshr_b32 s{S.HH}, s{S.T0}, 10")
    a(f"s_bfe_u32 s{S.WSEL}, s{S.T0}, 0x30007")
    rows_setup(S.WSEL)
    a(f"s_cmp_ge_u32 s{S.WAVE}, 4")
    a("s_cbranch_scc1 L_z4")
    int_base()
    if o.zisleep0:
        a(f"s_sleep {o.zisleep0}")
    stamp(9)
    int_loads(0)
    int_loads(1)
    const_ga()
    exp_setup()
    addr_ur(S.WSEL)
    m2_addr()
    a("v_lshlrev_b32 v6, 7, v1")
    a(f"v_lshl_add_u32 v15, v2, 4, v6")
    a("s_branch L_zjoin")
    a.label("L_z4")
    a(f"s_cmp_ge_u32 s{S.WAVE}, 6")
    a("s_cbranch_scc1 L_zend2")
    rows_load()
    a(f"s_sub_u32 s{S.T0}, s{S.WAVE}, 4")
    a(f"s_lshl1_add_u32 s{S.T1}, s{S.Z}, s{S.T0}")
    a(f"s_lshl_b32 s{S.T1}, s{S.T1}, 5")
    a("v_and_b32 v6, 7, v0")
    a(f"v_lshl_add_u32 v10, v6, 2, s{S.T1}")
    a(f"s_lshl_b32 s{S.T2}, s{S.IDX}, 10")
    a(f"v_add_u32 v7, s{S.T2}, v10")
    a(f"global_load_dword v35, v7, {PXS}")
    a("v_lshlrev_b32 v10, 1, v10")
    a("v_lshrrev_b32 v7, 3, v0")
    a("v_lshlrev_b32 v7, 8, v7")
    a("v_lshl_add_u32 v11, v6, 4, v7")
    a(f"s_mul_i32 s{S.SI0}, s{S.Z}, {PZ}")
    a(f"s_lshl_b32 s{S.T0}, s{S.T0}, 7")
    a(f"s_add_u32 s{S.SI0}, s{S.SI0}, s{S.T0}")
    a(f"s_add_u32 s{S.SI0}, s{S.SI0}, {WS_PART}")
    a(f"s_add_u32 s{S.SI1}, s{S.SI0}, {(o.pc-1)*PARTC}")
    a(f"s_and_b32 s{S.T0}, s{S.GKEY}, 0xffff0000")
    a(f"s_xor_b32 s{S.T1}, s{S.T0}, 0x80000000")
    a(f"s_xor_b32 s{S.T3}, s{S.T0}, 0xffff0000")
    a(f"s_bitcmp1_b32 s{S.T0}, 31")
    a(f"s_cselect_b32 s{S.T0}, s{S.T1}, s{S.T3}")
    a(f"v_mov_b32 v15, s{S.T0}")
    sigmoid(15, 15)
    rnd(15, 15)
    a("s_waitcnt vmcnt(0)")
    gates(False)
    a(f"s_cmp_lg_u32 s{S.WHICH}, 0")
    a(f"s_cselect_b32 s{S.T2}, s{S.T3}, s{S.T2}")
    a(f"s_cselect_b32 s{S.T0}, s{S.T5}, s{S.T0}")
    a(f"s_cselect_b32 s{S.T4}, s{S.T1}, s{S.T4}")
    a(f"v_xor_b32 v{VTAG}, s{S.IDX}, v{VTAG}")
    a(f"v_mov_b32 v36, s{S.T2}")
    a(f"v_mov_b32 v{CO}, s{S.T0}")
    a(f"v_mov_b32 v{CO+1}, s{S.T4}")
    a("v_lshlrev_b32 v34, 16, v35")
    a(f"v_and_b32 v35, {HIM}, v35")
    if o.psleep0:
        a(f"s_sleep {o.psleep0}")
    hold("pp")
    a(f"v_mov_b32 v9, {L_ZF}")
    a.label("L_tz_start")
    stamp(10)
    if o.psleep:
        a("s_branch L_zp1")
    a.label("L_zp")
    if o.psleep:
        a(f"s_sleep {o.psleep}")
        a.label("L_zp1")
    for i in range(7):
        if i and i % 2 == 0:
            a(f"s_add_u32 s{S.T0}, s{S.SI0}, {2048*i}")
        a(f"buffer_load_dwordx4 {V(40+4*i,4)}, v11, {R4(S.RWS)}, s{S.T0 if i >= 2 else S.SI0} offen offset:{2048*(i&1)} sc1")
    a(f"s_add_u32 s{S.SI0}, s{S.SI0}, {PARTC}")
    a(f"s_min_u32 s{S.SI0}, s{S.SI0}, s{S.SI1}")
    if o.stamps:
        a(f"s_add_u32 s{S.RC}, s{S.RC}, 256")
    spin()
    a("s_cbranch_scc1 L_zp_ok")
    for i in range(7):
        a(f"s_waitcnt vmcnt({6-i})")
        a(f"v_bitop3_b32 v{37 if i == 0 else 38 + (i & 1)}, v{41+4*i}, v{43+4*i}, v{VTAG} bitop3:0x7e")
        if i:
            a(f"v_add_f32 v40, v40, v{40+4*i}")
            a(f"v_add_f32 v42, v42, v{42+4*i}")
        if i and i % 2 == 0:
            a("v_or3_b32 v37, v37, v38, v39")
    a("v_cmp_ne_u32 vcc, 0, v37")
    a.nop(1)
    a("s_cbranch_vccnz L_zp")
    a.label("L_zp_ok")
    a("ds_read_b32 v12, v9")
    a(f"ds_read_b64 v[32:33], v10 offset:{L_XG2}")
    a(f"ds_read_b64 v[16:17], v10 offset:{L_XG2+2048}")
    a("v_lshrrev_b32 v11, 1, v10")
    a(f"s_lshl_b32 s{S.T2}, s{S.IDX}, 10")
    a("s_waitcnt vmcnt(0)")
    stamp(11)
    a(f"v_add_f32_dpp v40, v40, v40 row_ror:8 {DPPM}")
    a(f"v_add_f32_dpp v42, v42, v42 row_ror:8 {DPPM}")
    a.nop(1)
    a.nop(1)
    a("v_permlane16_swap_b32 v40, v42")
    a("v_add_f32 v40, v40, v42")
    a("v_mov_b32 v42, v40")
    a.nop(2)
    a("v_permlane32_swap_b32 v40, v42")
    a("v_add_f32 v40, v40, v42")
    a("v_mov_b32 v42, v40")
    a.nop(2)
    a("v_permlane16_swap_b32 v40, v42")
    a("v_cvt_pk_bf16_f32 v41, v40, v42")
    a("v_lshlrev_b32 v40, 16, v41")
    a(f"v_and_b32 v42, {HIM}, v41")
    a("v_mul_f32 v40, v40, v15")
    a("v_mul_f32 v42, v42, v15")
    a("v_cvt_pk_bf16_f32 v41, v40, v42")
    a("v_lshlrev_b32 v40, 16, v41")
    a(f"v_and_b32 v42, {HIM}, v41")
    a("v_add_f32 v40, v40, v34")
    a("v_add_f32 v42, v42, v35")
    a("v_cvt_pk_bf16_f32 v41, v40, v42")
    a("v_lshlrev_b32 v40, 16, v41")
    a(f"v_and_b32 v42, {HIM}, v41")
    a.label("L_zw")
    a("s_waitcnt lgkmcnt(0)")
    a("v_cmp_eq_u32 vcc, 0, v12")
    a(f"v_mul_f32 v32, v{CO}, v32")
    a(f"v_mul_f32 v33, v{CO}, v33")
    a("s_cbranch_vccz L_zw_ok")
    spin()
    a("s_cbranch_scc1 L_zw_ok")
    a("ds_read_b32 v12, v9")
    a(f"ds_read_b64 v[32:33], v10 offset:{L_XG2}")
    a(f"ds_read_b64 v[16:17], v10 offset:{L_XG2+2048}")
    a("s_branch L_zw")
    a.label("L_zw_ok")
    a(f"v_fmac_f32 v32, v{CO+1}, v16")
    a(f"v_fmac_f32 v33, v{CO+1}, v17")
    a("v_fmac_f32 v32, v40, v36")
    a("v_fmac_f32 v33, v42, v36")
    a("v_cvt_pk_bf16_f32 v32, v32, v33")
    a("s_mov_b64 exec, 0xff")
    a(f"buffer_store_dword v32, v11, {R4(S.ROUT)}, s{S.T2} offen{o.zpol}")
    a("s_mov_b64 exec, -1")
    stamp(13)
    if o.stamps:
        a("s_waitcnt vmcnt(0)")
        stamp(15)
    a("s_barrier")
    endprog()

    a.label("L_zsync")
    a(f"v_mov_b32 v9, {L_ZC}")
    a("v_mov_b32 v6, 1")
    a("s_mov_b64 exec, 1")
    a("ds_add_u32 v9, v6")
    a("s_mov_b64 exec, -1")
    a(f"s_cmp_lg_u32 s{S.WAVE}, 0")
    a("s_cbranch_scc1 L_zend")
    a.label("L_zs")
    a("ds_read_b32 v6, v9")
    spin()
    a("s_waitcnt lgkmcnt(0)")
    a("s_cbranch_scc1 L_zs_ok")
    a("v_cmp_ne_u32 vcc, 4, v6")
    a.nop(1)
    a("s_cbranch_vccnz L_zs")
    a.label("L_zs_ok")
    stamp(12)
    a(f"ds_read_b128 {V(UO,4)}, v{VUR0} offset:{L_U2}")
    a(f"ds_read_b128 {V(UO+4,4)}, v{VUR1} offset:{L_U2}")
    a(f"ds_read_b128 {V(UO+8,4)}, v{VUR0} offset:{L_U2+UB}")
    a(f"ds_read_b128 {V(UO+12,4)}, v{VUR1} offset:{L_U2+UB}")
    for k in range(4):
        a(f"s_waitcnt lgkmcnt({3-k})")
        a(f"{MF} {V(PQ+4*k,4)}, {V(UO+4*k,4)}, {V(M2+4*k,4)}, 0")
    a.nop(3)
    for k in range(4):
        if k == 2:
            a.nop(2)
        a(f"ds_write_b128 v15, {V(PQ+4*k,4)} offset:{L_XG2 + 64*(k&1) + 2048*(k>>1)}")
    a(f"v_mov_b32 v9, {L_ZF}")
    a("s_waitcnt lgkmcnt(0)")
    a("ds_write_b32 v9, v9")
    a("s_waitcnt lgkmcnt(0)")
    stamp(13)
    a.label("L_zend")
    endprog()
    a.label("L_zend2")
    if o.hold and o.hold[0] == "end":
        a("s_barrier")
    hold("end")
    if o.ev:
        lo, n, w, st, med = [int(v) for v in o.ev.split(":")]
        a(f"s_cmp_lg_u32 s2, {248 + o.zx}")
        a("s_cbranch_scc1 L_noev")
        a(f"s_cmp_lg_u32 s{S.WAVE}, 7")
        a("s_cbranch_scc1 L_noev")
        a("s_barrier")
        a.label("L_ev0")
        a("s_sleep 4")
        a("s_memrealtime s[100:101]")
        a("s_waitcnt lgkmcnt(0)")
        a(f"s_sub_u32 s100, s100, s{S.ST}")
        a("s_cmp_lt_u32 s100, 750")
        a("s_cbranch_scc1 L_ev0")
        a("v_lshlrev_b32 v6, 11, v0")
        a(f"v_add_u32 v7, {WS_STAMP + 8*128}, v6")
        a(f"global_load_dword v40, v7, s[{S.PWS}:{S.PWS+1}] sc1")
        a(f"v_add_u32 v7, {WS_STAMP + lo*2048 + w*128 + st*8}, v6")
        for q in range(n // 64):
            a(f"global_load_dword v{44+q}, v7, s[{S.PWS}:{S.PWS+1}] sc1")
            a(f"v_add_u32 v7, {64*2048}, v7")
        a("s_waitcnt vmcnt(0)")
        a(f"v_subrev_u32 v40, s{S.ST}, v40")
        a("v_sub_u32 v40, 1000, v40")
        a("v_mov_b32 v42, v40")
        wave_max_key(40)
        a("v_mov_b32 v41, 0")
        for q in range(n // 64):
            a(f"v_subrev_u32 v{44+q}, s{S.ST}, v{44+q}")
            a(f"v_cmp_gt_u32 vcc, 1000, v{44+q}")
            a.nop(2)
            a(f"v_cndmask_b32 v{44+q}, 0, v{44+q}, vcc")
            a(f"v_max_u32 v41, v41, v{44+q}")
        a("v_mov_b32 v43, v41")
        wave_max_key(41)
        a.nop(2)
        a("v_readlane_b32 s6, v40, 63")
        a("v_readlane_b32 s7, v41, 63")
        a("s_sub_u32 s6, s6, 1000")
        a("s_min_u32 s6, s6, 300")
        a("s_add_u32 s7, s7, s6")
        a("s_mul_i32 s7, s7, 4")
        a("s_add_u32 s7, s7, 900")
        a("s_sub_u32 s7, s7, s6")
        a.label("L_ev1")
        a("s_sleep 1")
        a("s_memrealtime s[100:101]")
        a("s_waitcnt lgkmcnt(0)")
        a(f"s_sub_u32 s100, s100, s{S.ST}")
        a("s_cmp_lt_u32 s100, s7")
        a("s_cbranch_scc1 L_ev1")
        a.label("L_noev")
    endprog()

    a.label("L_zh")
    a(f"v_mov_b32 v9, {L_ZF}")
    a("v_mov_b32 v6, 0")
    a("ds_write2_b32 v9, v6, v6 offset1:1")
    const_d2()
    a(f"s_mov_b32 m0, {L_WV+1024}")
    tag_load()
    a(f"global_load_lds_dwordx4 v{VG16}, s[{S.PGW}:{S.PGW+1}]")
    a("s_waitcnt vmcnt(0)")
    tag_make()
    exp_make()
    poll_setup(WS_KEY + 1024 * RF * CF, RZ, CZ)
    if o.zsleep0:
        a(f"s_sleep {o.zsleep0}")
    stamp(1)
    poll_granules(VG16, 32, sleep=o.zsleep)
    stamp(2)
    wave_max_key(32)
    lds_put(L_KSL, 32, tag=True)
    a("s_barrier")
    a(f"s_lshl_b32 s{S.T0}, s{S.Z}, 2")
    a(f"s_add_u32 s{S.T0}, s{S.T0}, {WS_ALIVE}")
    a("s_mov_b64 exec, 1")
    a(f"buffer_store_dword v{VTAG}, v0, {R4(S.RWS)}, s{S.T0} offen sc1")
    a("s_mov_b64 exec, -1")
    a(f"s_cmp_lg_u32 s{S.Z}, 0")
    a("s_cbranch_scc1 L_zend")
    a("s_mov_b64 exec, 0xffff")
    a("v_lshlrev_b32 v6, 2, v0")
    a(f"s_mov_b32 s{S.T0}, {WS_ALIVE}")
    a("s_waitcnt vmcnt(0)")
    a("s_sleep 24")
    a.label("L_za")
    a(f"buffer_load_dword v7, v6, {R4(S.RWS)}, s{S.T0} offen sc1")
    spin()
    a("s_waitcnt vmcnt(0)")
    a("s_cbranch_scc1 L_za_ok")
    a(f"v_cmp_ne_u32 vcc, v{VTAG}, v7")
    a.nop(1)
    a("s_cbranch_vccnz L_za")
    a.label("L_za_ok")
    a("s_mov_b64 exec, 1")
    a(f"v_add_u32 v9, 1, v{VE}")
    a("s_barrier")
    a(f"buffer_store_dword v9, v6, {R4(S.RWS)}, 0 offen sc1")
    a("s_mov_b64 exec, -1")
    a("s_branch L_zend")

    a.label("L_F")
    if o.only == "A":
        a("s_endpgm")
    WG_, WD_ = 32, 48
    a("v_lshlrev_b32 v5, 4, v0")
    a(f"s_cmp_eq_u32 s{S.WAVE}, 8")
    a("s_cbranch_scc1 L_fh")
    a(f"s_and_b32 s{S.T0}, s{S.FJ}, 3")
    a(f"s_lshr_b32 s{S.T1}, s{S.WAVE}, 1")
    a(f"s_lshl2_add_u32 s{S.L0}, s{S.T0}, s{S.T1}")
    a(f"s_mul_i32 s{S.T2}, s{S.L0}, {32*3584}")
    a(f"s_lshr_b32 s{S.L1}, s{S.FJ}, 2")
    a(f"s_lshl_b32 s{S.T3}, s{S.L1}, 7")
    a(f"s_add_u32 s{S.T2}, s{S.T2}, s{S.T3}")
    a("v_lshrrev_b32 v6, 3, v0")
    a("v_mul_u32_u24 v6, 3584, v6")
    a("v_and_b32 v7, 7, v0")
    a("v_bfe_u32 v8, v0, 4, 1")
    a("v_lshlrev_b32 v8, 2, v8")
    a("v_xor_b32 v4, v7, v8")
    a(f"v_lshl_add_u32 v7, v4, 4, s{S.T2}")
    a("v_add_u32 v3, v6, v7")
    a(f"s_lshl_b32 s{S.T4}, s{S.WAVE}, 12")
    a(f"s_mov_b32 m0, s{S.T4}")
    def w_dma():
        a(f"s_bitcmp1_b32 s{S.WAVE}, 0")
        a("s_waitcnt lgkmcnt(0)")
        a(f"s_cselect_b32 s{S.PWG}, s{S.PWU}, s{S.PWG}")
        a(f"s_cselect_b32 s{S.PWG+1}, s{S.PWU+1}, s{S.PWG+1}")
        if o.fdelay:
            a(f"s_sleep {o.fdelay}")
        for b in range(4):
            if b:
                a(f"s_add_u32 m0, s{S.T4}, {1024*b}")
                a(f"v_add_u32 v3, {8*3584}, v3")
            if o.wthr and b >= o.wthr:
                a(f"s_waitcnt vmcnt({o.wthr - 1})")
            a(f"global_load_lds_dwordx4 v3, s[{S.PWG}:{S.PWG+1}]{o.wpol}")
        ws_setup()
        stamp(1)

    if not o.flate:
        w_dma()
    a("v_bfe_u32 v6, v0, 2, 2")
    a("v_and_b32 v7, 3, v0")
    a("v_lshlrev_b32 v8, 3, v7")
    a("v_lshl_add_u32 v8, v2, 5, v8")
    a("v_and_b32 v9, 2, v6")
    a("v_lshlrev_b32 v9, 5, v9")
    a("v_xor_b32 v9, v9, v8")
    a("v_lshl_add_u32 v9, v6, 7, v9")
    a(f"v_add_u32 v9, s{S.T4}, v9")
    a(f"s_lshl_b32 s{S.T5}, s{S.WAVE}, 8")
    a("v_lshlrev_b32 v11, 2, v0")
    a(f"v_add_u32 v11, {L_RED}, v11")
    a(f"v_add_u32 v12, s{S.T5}, v11")
    a(f"s_lshl1_add_u32 s{S.T1}, s{S.L1}, s{S.T1}")
    a(f"s_lshl_b32 s{S.T2}, s{S.T1}, 15")
    a(f"s_and_b32 s{S.T3}, s{S.WAVE}, 1")
    a(f"s_lshl1_add_u32 s{S.T3}, s{S.T0}, s{S.T3}")
    a(f"s_lshl_b32 s{S.T5}, s{S.T3}, 7")
    a(f"s_add_u32 s{S.T2}, s{S.T2}, s{S.T5}")
    a("v_lshrrev_b32 v6, 3, v0")
    a(f"v_lshl_add_u32 v6, v6, 10, s{S.T2}")
    a("v_lshl_add_u32 v4, v4, 4, v6")
    a("v_lshrrev_b32 v6, 5, v0")
    a(f"v_mul_u32_u24 v13, {PZ}, v6")
    a("v_and_b32 v6, 31, v0")
    a("v_lshl_add_u32 v13, v6, 3, v13")
    a(f"s_mul_i32 s{S.T2}, s{S.T3}, {2*PZ}")
    a(f"s_lshl_b32 s{S.T1}, s{S.T1}, 8")
    a(f"s_add_u32 s{S.T2}, s{S.T2}, s{S.T1}")
    a(f"s_add_u32 s{S.T2}, s{S.T2}, {WS_PART}")
    a(f"s_lshl_b32 s{S.L0}, s{S.L0}, 6")
    a(f"s_lshl_b32 s{S.L1}, s{S.L1}, 12")
    a(f"s_add_u32 s{S.PO}, s{S.L1}, {WS_XCH}")
    a(f"s_add_u32 s{S.POL}, s{S.PO}, {(o.xc-1)*XCHC}")
    a(f"s_lshl_b32 s{S.T1}, s{S.T0}, 10")
    a(f"s_add_u32 s{S.L1}, s{S.PO}, s{S.T1}")
    a(f"v_mov_b32 v14, {L_FKEY}")
    a(f"s_lshr_b32 s{S.T1}, s{S.WAVE}, 1")
    a(f"s_lshl_b32 s{S.T1}, s{S.T1}, 9")
    a(f"v_lshl_add_u32 v15, v6, 4, s{S.T1}")
    a("v_lshrrev_b32 v6, 5, v0")
    a("v_lshl_add_u32 v15, v6, 10, v15")
    a(f"s_mov_b32 s{S.PO0}, s{S.PO}")
    a(f"s_mov_b32 s{S.L10}, s{S.L1}")
    a(f"s_mov_b32 s{S.T20}, s{S.T2}")
    a(f"s_mov_b32 s{S.FIN}, 0")

    if o.flate:
        w_dma()

    def wd_dma():
        l = a.L("nowd")
        a(f"s_cmp_ge_u32 s{S.WAVE}, 4")
        a(f"s_cbranch_scc1 {l}")
        for b in range(4):
            a(f"s_add_u32 m0, s{S.T4}, {L_WD + 1024*b}")
            if b:
                a("v_add_u32 v4, 0x2000, v4")
            else:
                a.nop(1)
            a(f"global_load_lds_dwordx4 v4, s[{S.PWD}:{S.PWD+1}]{o.wdpol}")
        a.label(l)

    if o.wdpos == 0:
        wd_dma()
    if o.wdpos == 4:
        a("s_barrier")
        a(f"s_cmp_ge_u32 s{S.WAVE}, 4")
        a("s_cbranch_scc1 L_nowd4")
        for b in range(4):
            a(f"v_add_u32 v6, {0x2000*b}, v4")
            a(f"global_load_dwordx4 {V(80+4*b,4)}, v6, s[{S.PWD}:{S.PWD+1}]")
        a("s_waitcnt vmcnt(4)")
        a("s_branch L_nowd5")
        a.label("L_nowd4")
        a("s_waitcnt vmcnt(0)")
        a.label("L_nowd5")
    else:
        a("s_waitcnt vmcnt(0)")
    stamp(2)
    if o.fw0:
        a("s_barrier")
    if o.wdpos == 1:
        wd_dma()
    if o.xpre:
        for i in range(2):
            a(f"buffer_load_dwordx4 {V(64+4*i,4)}, v15, {R4(S.RWS)}, s{S.PO} offen offset:{2048*i} sc1")
    for k in range(8):
        a(f"ds_read_b64_tr_b16 {V(WG_+2*k,2)}, v9 offset:{L_W + k*512}")
    if o.ftouch:
        touch("L_tf", o.ftouch, 0, 8)
    a("s_waitcnt lgkmcnt(0)")
    a("s_barrier")
    a.label("L_tf_start")
    a("ds_read_b64 v[26:27], v14")
    a("s_waitcnt lgkmcnt(0)")
    a(f"v_readfirstlane_b32 s{S.FKEY}, v26")
    a.label("L_redo")
    a(f"s_andn2_b32 s{S.T0}, 2047, s{S.FKEY}")
    a(f"s_lshl_b32 s{S.T1}, s{S.T0}, 10")
    a(f"s_add_u32 s{S.T1}, s{S.T1}, s{S.L0}")
    a(f"s_load_dwordx16 s[{S.XS}:{S.XS+15}], {PXS}, s{S.T1}")
    stamp(5)
    a(f"v_xor_b32 v{VTAG}, s{S.T0}, v27")
    a(f"v_xor_b32 v29, s{S.T0}, v27")
    for r in (16, 17, 24, 25):
        a(f"v_mov_b32 v{r}, 0")
    a(f"s_mov_b32 s{S.PO}, s{S.PO0}")
    a(f"s_mov_b32 s{S.L1}, s{S.L10}")
    a(f"s_mov_b32 s{S.T2}, s{S.T20}")
    a(f"s_mov_b32 s{S.KM}, 0")
    a("s_waitcnt lgkmcnt(0)")
    for i in range(16):
        a(f"v_dot2c_f32_bf16 v{16+(i&1)}, s{S.XS+i}, v{WG_+i}")
    stamp(6)
    a.nop(3)
    a("v_add_f32 v16, v16, v17")
    a("ds_write_b32 v12, v16")
    a("s_waitcnt lgkmcnt(0)")
    a("s_barrier")
    a(f"s_lshl_b32 s{S.T0}, s{S.WAVE}, 4")
    a(f"s_lshl_b64 s[{S.EX}:{S.EX+1}], 0xffff, s{S.T0}")
    for i, (p, q) in enumerate(((0, 2), (4, 6), (1, 3), (5, 7))):
        a(f"ds_read2st64_b32 v[{16+2*i}:{17+2*i}], v11 offset0:{p} offset1:{q}")
    a("s_waitcnt lgkmcnt(2)")
    a("v_add_f32 v16, v16, v17")
    a("v_add_f32 v18, v18, v19")
    a("s_waitcnt lgkmcnt(0)")
    a("v_add_f32 v20, v20, v21")
    a("v_add_f32 v22, v22, v23")
    a("v_add_f32 v28, v16, v18")
    a(f"s_mov_b64 exec, s[{S.EX}:{S.EX+1}]")
    a("v_add_f32 v30, v20, v22")
    a(f"s_cmp_ge_u32 s{S.WAVE}, 4")
    a("s_cbranch_scc1 L_f5")
    a(f"buffer_store_dwordx4 v[28:31], v5, {R4(S.RWS)}, s{S.L1} offen{'' if o.xl2 else ' sc1'}")
    a("s_mov_b64 exec, -1")
    stamp(7)
    a("s_waitcnt vmcnt(1)")
    if o.wdpos == 4:
        a(f"v_add_u32 v6, s{S.T4}, v5")
        for b in range(4):
            a(f"ds_write_b128 v6, {V(80+4*b,4)} offset:{L_WD + 1024*b}")
        a("s_waitcnt lgkmcnt(0)")
    for k in range(8):
        a(f"ds_read_b64_tr_b16 {V(WD_+2*k,2)}, v9 offset:{L_WD + k*512}")
    if o.xsleep0:
        a(f"s_sleep {o.xsleep0}")
    stamp(8)
    a.label("L_fx")
    for i in range(2):
        a(f"buffer_load_dwordx4 {V(64+4*i,4)}, v15, {R4(S.RWS)}, s{S.PO} offen offset:{2048*i} sc1")
    if o.xl2:
        a(f"s_add_u32 s{S.KM}, s{S.KM}, 1")
        a(f"s_cmp_ge_u32 s{S.KM}, {o.xl2}")
        a(f"s_cselect_b32 s{S.T0}, {XCHC}, 0")
        a(f"s_add_u32 s{S.PO}, s{S.PO}, s{S.T0}")
    else:
        a(f"s_add_u32 s{S.PO}, s{S.PO}, {XCHC}")
    a(f"s_min_u32 s{S.PO}, s{S.PO}, s{S.POL}")
    if o.stamps:
        a(f"s_add_u32 s{S.RC}, s{S.RC}, 1")
    spin()
    a("s_cbranch_scc1 L_fx_ok")
    a("s_waitcnt vmcnt(1)")
    a(f"v_bitop3_b32 v20, v65, v67, v{VTAG} bitop3:0x7e")
    a("s_waitcnt vmcnt(0)")
    a("v_add_f32 v16, v64, v68")
    a("v_add_f32 v18, v66, v70")
    a(f"v_bitop3_b32 v21, v69, v71, v{VTAG} bitop3:0x7e")
    a("v_or_b32 v20, v20, v21")
    a("v_cmp_ne_u32 vcc, 0, v20")
    a("v_permlane32_swap_b32 v16, v18")
    a("s_cbranch_vccnz L_fxr")
    a.label("L_fx_ok")
    stamp(9)
    a("v_add_f32 v16, v16, v18")
    rnd(16, 16)
    a("v_mov_b32 v18, v16")
    sigmoid(17, 16)
    a("v_permlane32_swap_b32 v16, v18")
    a("v_mul_f32 v17, v17, v16")
    rnd(17, 17)
    a("v_mul_f32 v17, v17, v18")
    a.nop(2)
    a(f"v_mov_b32_dpp v18, v17 quad_perm:[1,0,3,2] {DPPM}")
    a("v_cvt_pk_bf16_f32 v17, v17, v18")
    a.nop(1)
    for i in range(16):
        a(f"v_readlane_b32 s{S.XS+i}, v17, {2*i}")
    a("s_waitcnt lgkmcnt(0)")
    for i in range(16):
        a(f"v_dot2c_f32_bf16 v{24+(i&1)}, s{S.XS+i}, v{WD_+i}")
    a.nop(3)
    a("v_add_f32 v30, v24, v25")
    for c in range(o.pc):
        if c:
            a(f"s_add_u32 s{S.T2}, s{S.T2}, {PARTC}")
        a(f"buffer_store_dwordx2 v[30:31], v13, {R4(S.RWS)}, s{S.T2} offen sc1")
    stamp(10)
    a.label("L_fend")
    a(f"s_cmp_lg_u32 s{S.FIN}, 0")
    a("s_cbranch_scc1 L_fexit")
    a("s_barrier")
    a("ds_read_b32 v26, v14 offset:8")
    a(f"s_mov_b32 s{S.FIN}, 1")
    a("s_waitcnt lgkmcnt(0)")
    a(f"v_readfirstlane_b32 s{S.T0}, v26")
    a(f"s_cmp_eq_u32 s{S.T0}, s{S.FKEY}")
    a(f"s_mov_b32 s{S.FKEY}, s{S.T0}")
    if o.stamps:
        a(f"s_cselect_b32 s{S.T1}, 0, 64")
        a(f"s_add_u32 s{S.RC}, s{S.RC}, s{S.T1}")
        a(f"s_cmp_eq_u32 s{S.T1}, 0")
    a("s_cbranch_scc0 L_redo")
    a.label("L_fexit")
    endprog()
    a.label("L_f5")
    for c in range(1, o.xc):
        a(f"s_add_u32 s{S.L1}, s{S.L1}, {XCHC}")
        a(f"buffer_store_dwordx4 v[28:31], v5, {R4(S.RWS)}, s{S.L1} offen sc1")
    a("s_mov_b64 exec, -1")
    a("s_branch L_fend")
    a.label("L_fxr")
    a("ds_read_b32 v26, v14 offset:8")
    a("s_waitcnt lgkmcnt(0)")
    a(f"v_readfirstlane_b32 s{S.T0}, v26")
    a(f"s_cmp_eq_u32 s{S.T0}, 0")
    a("s_cbranch_scc1 L_fx")
    a(f"s_cmp_eq_u32 s{S.T0}, s{S.FKEY}")
    a("s_cbranch_scc1 L_fx")
    a("s_branch L_fend")

    a.label("L_fh")
    a("s_waitcnt lgkmcnt(0)")
    if o.fesleep:
        a(f"s_sleep {o.fesleep}")
    tag_load()
    ws_setup()
    a(f"v_mov_b32 v14, {L_FKEY}")
    a("v_mov_b32 v6, 0")
    a("ds_write_b32 v14, v6 offset:8")
    if o.spec:
        poll_setup(WS_KEY + 1024 * (RF * CF + RZ * CZ + R2 * C2), 8, 1)
        a(f"s_sleep {o.spec}")
        a("s_waitcnt vmcnt(0)")
        tag_make()
        stamp(1)
        a(f"buffer_load_dwordx4 v[20:23], v5, {R4(S.RWS)}, s{S.PO} offen sc1")
        poll_setup(WS_KEY, RF, CF)
        a("s_waitcnt vmcnt(0)")
        stamp(2)
        a(f"v_cmp_ne_u32 vcc, v{VTAG}, v21")
        a(f"v_cmp_ne_u32 s[{S.EX}:{S.EX+1}], v{VTAG}, v23")
        a("s_mov_b64 exec, vcc")
        a("v_mov_b32 v20, 0")
        a(f"s_mov_b64 exec, s[{S.EX}:{S.EX+1}]")
        a("v_mov_b32 v22, 0")
        a("s_mov_b64 exec, -1")
        a(f"s_or_b64 s[{S.EY}:{S.EY+1}], vcc, s[{S.EX}:{S.EX+1}]")
        wave_max_key(20)
        lds_put(L_FKEY, 20, tag=True)
        a("s_barrier")
        a(f"s_cmp_eq_u64 s[{S.EY}:{S.EY+1}], 0")
        a("s_cbranch_scc1 L_fh2")
        if o.fsleep0:
            a(f"s_sleep {o.fsleep0}")
        stamp(3)
        poll_granules(5, 20, sleep=o.fsleep)
        stamp(4)
        wave_max_key(20)
        a.label("L_fh2")
        lds_put(L_FKEY + 8, 20)
    else:
        poll_setup(WS_KEY, RF, CF)
        if o.fsleep0:
            a(f"s_sleep {o.fsleep0}")
        a("s_waitcnt vmcnt(0)")
        tag_make()
        stamp(3)
        poll_granules(5, 20, sleep=o.fsleep, bar=o.wdpos == 4)
        stamp(4)
        wave_max_key(20)
        lds_put(L_FKEY, 20, tag=True)
        a("s_barrier")
        lds_put(L_FKEY + 8, 20)
    a("s_barrier")
    endprog()
    a.label("L_end")
    a("s_endpgm")
    return name


def main():
    ap = argparse.ArgumentParser()
    ap.add_argument("-o", required=True)
    for k, d in dict(stamps=0, pc=1, xc=2, zsleep=8, zsleep0=32, psleep=0, psleep0=20, rsleep=3, ackwait=0, hipre=0, tlate=1,
                     mode=0, k2ack=1, k2sleep0=6, zk2sleep0=0, k2sleep=5, fbar=0, cpf=0, cpf0=1, zx=0, htouch=0, probe=-1, wsoff=0, flate=1, b1a=1, skew=0, gate=8, lds=0, nsgpr=72, prio=1, stag=2, spec=0, b0=2, wthr=0, xpre=0, atouch=10, ftouch=8, xl2=8, npre=3, gfirst=0, isleep0=0, zisleep0=16, b3=1, ztouch=8, zstep=128, touch=0, wdpos=0, wpf=2, fesleep=0, fw0=0, xack=0, fdelay=0, xsleep0=3, fsleep0=46, fsleep=4, spin=17).items():
        ap.add_argument("--" + k, type=int, default=d)
    for k in ("wpol", "wdpol", "xpol", "outpol", "zpol", "only"):
        ap.add_argument("--" + k, default="nt" if k == "outpol" else "")
    ap.add_argument("--mf", default="8,2")
    ap.add_argument("--mz", default="1,3")
    ap.add_argument("--m2", default="8,2")
    ap.add_argument("--hold", default="")
    ap.add_argument("--ev", default="")
    o = ap.parse_args()
    if o.hold:
        o.hold = o.hold.split(":")
    for k in ("mf", "mz", "m2"):
        setattr(o, k, [int(v) for v in getattr(o, k).split(",")])
    for k in ("wpol", "wdpol", "xpol", "outpol", "zpol"):
        setattr(o, k, (" " + getattr(o, k)) if getattr(o, k) not in ("", "def") else "")
    a = Asm()
    name = gen(a, o)
    reg = []
    if o.touch:
        reg.append(("L_ta_start", "L_ta_end", "L_ta", "L_taback", o.touch))
    if o.htouch:
        reg.append(("L_ta_end", "L_zjoin", "L_th", "L_thback", o.htouch))
    if o.atouch:
        reg.append(("L_zjoin", "L_tb_end", "L_tb", "L_tbback", o.atouch))
    if o.ztouch:
        reg.append(("L_tz_start", "L_zend", "L_tz", "L_tzback", o.ztouch))
    if o.ftouch:
        reg.append(("L_tf_start", "L_fend", "L_tf", "L_tfback", o.ftouch))
    if reg:
        insert_stubs(a, reg, step=o.zstep)
    finish(a, name, NVGPR, 102 if (o.stamps or o.hold or o.probe >= 0) else o.nsgpr, NWG, 576, o.lds or LDS_BYTES, o.o)


main()
```

```python
import argparse
from lib import *

NA, NF, NZ = 128, 112, 16
NWG = NA + NF + NZ
WS_E = 0
WS_ALIVE = 4096
WS_KEY = 64 << 10
WS_KEY2 = 128 << 10
WS_XCH = 192 << 10
XCHC = 28 * 4096
WS_PART = 704 << 10
PZ = 56 * 256
PARTC = NZ * PZ
WS_INT = 2 << 20
CS = 32768 + 256
WS_STAMP = 8 << 20
WS_BYTES = 16 << 20
L_TILE = 0
L_U2 = 16384
L_CT = L_U2
UB = 17 * 64
L_MISC = L_U2 + 16 * UB
L_KSL = L_MISC
L_GKEY = L_MISC + 64
L_ZC = L_MISC + 76
L_ZF = L_MISC + 72
L_EXP = L_MISC + 128
L_DUMP = L_MISC + 192
L_XG2 = L_DUMP + 4 * UB + 256
L_M2 = L_XG2 + 4096
L_WV = L_M2 + 4096
L_XT = L_WV + 2048
L_W = 0
L_WD = 32768
L_RED = L_WD + 16384
L_FKEY = L_RED + 2048
LDS_BYTES = 84 * 1024
MF = "v_mfma_f32_16x16x32_bf16"
LOG2E = 0x3fb8aa3b
DPPM = "row_mask:0xf bank_mask:0xf"
HIM = "0xffff0000"
NVGPR = 168


class S:
    WAVE = 3
    PX = 4
    T0, T1, T2, T3, T4, T5 = 6, 7, 8, 9, 10, 11
    EX = 12
    EY = 14
    PWR, PWG, PWU, PWD, PGW, POUT, PDBG, PWS = 16, 18, 20, 22, 24, 26, 28, 30
    L0, L1, SPT, PIE = 32, 33, 34, 35
    RWS, ROUT = 36, 40
    XS = 44
    GKEY, WSEL, WHICH, Z = 44, 45, 46, 47
    SI0, SI1, ID8, BLK = 48, 49, 50, 51
    IDX, ISZ, TC = 54, 55, 53
    SO = 44
    T1C, HH, TD, TM = 56, 57, 58, 59
    FJ, PO, POL, RC, KM, SPIN = 60, 61, 62, 63, 64, 65
    PO0, L10, T20, FKEY, FIN = 40, 41, 42, 43, 35
    ST = 68


def gen(a, o):
    global WS_KEY, WS_XCH, WS_PART, WS_INT, WS_ALIVE, WS_BYTES
    WS_KEY += o.wsoff << 20
    WS_XCH += o.wsoff << 20
    WS_PART += o.wsoff << 20
    WS_INT += o.wsoff << 20
    WS_ALIVE += o.wsoff << 20
    WS_BYTES = max(WS_BYTES, (o.wsoff + 8) << 20)
    name = NAME + "_kernel"
    kernel_head(a, name)
    VE, VTAG = 30, 31
    PXS = f"s[{S.PX}:{S.PX+1}]"

    def stamp(i):
        if o.stamps:
            a(f"s_memrealtime s[{S.ST+2*i}:{S.ST+2*i+1}]")

    def hold(cp):
        if o.hold and o.hold[0] == cp:
            l = a.L("hold")
            a.label(l)
            a("s_sleep 1")
            a("s_memrealtime s[100:101]")
            a("s_waitcnt lgkmcnt(0)")
            a("s_sub_u32 s100, s100, s66")
            a(f"s_cmp_lt_u32 s100, {o.hold[1]}")
            a(f"s_cbranch_scc1 {l}")

    def touch(pre, n, first, step, back=None, tail=None):
        a("s_mov_b64 exec, 0")
        a(f"s_sub_u32 s{S.TC}, s{S.WAVE}, {first + step}")
        a.label(f"{pre}back")
        a(f"s_add_u32 s{S.TC}, s{S.TC}, {step}")
        for k in range(n):
            a(f"s_cmp_eq_u32 s{S.TC}, {k}")
            a(f"s_cbranch_scc1 {pre}{k}")
        a("s_mov_b64 exec, -1")

    def endprog():
        if o.stamps:
            a("s_waitcnt lgkmcnt(0)")
            a(f"s_add_u32 s{S.ST+28}, s{S.RC}, s{S.ST+30}")
            for i in range(16):
                a(f"v_writelane_b32 v166, s{S.ST+2*i}, {i}")
            a("s_mov_b64 exec, 0xffff")
            a(f"s_lshl4_add_u32 s{S.T0}, s2, s{S.WAVE}")
            a(f"s_lshl_b32 s{S.T0}, s{S.T0}, 7")
            a(f"s_add_u32 s{S.T0}, s{S.T0}, {WS_STAMP}")
            a(f"v_lshl_add_u32 v165, v0, 3, s{S.T0}")
            a("v_mov_b32 v167, 0")
            a(f"global_store_dwordx2 v165, v[166:167], s[{S.PWS}:{S.PWS+1}]" + (" sc1" if o.ev else ""))
        a("s_endpgm")

    def spin():
        a(f"s_add_u32 s{S.SPIN}, s{S.SPIN}, 1")
        a(f"s_lshr_b32 s{S.SPT}, s{S.SPIN}, {o.spin}")

    def poll_setup(base, R, C):
        a(f"s_and_b32 s{S.PO}, s2, {R-1}")
        a(f"s_mul_i32 s{S.PO}, s{S.PO}, {1024*C}")
        a(f"s_add_u32 s{S.PO}, s{S.PO}, {base}")
        a(f"s_add_u32 s{S.POL}, s{S.PO}, {1024*(C-1)}")

    def set_exec(n):
        if n >= 64:
            a("s_mov_b64 exec, -1")
        elif n <= 31:
            a(f"s_mov_b64 exec, {(1 << n) - 1:#x}")
        else:
            a("s_mov_b32 exec_lo, -1")
            a(f"s_mov_b32 exec_hi, {(1 << (n - 32)) - 1:#x}")

    RS = 8 if o.spec else 0
    RF, CF = o.mf
    RZ, CZ = o.mz
    R2, C2 = o.m2
    assert RF * CF + RZ * CZ + R2 * C2 + RS <= 64

    def poll_granules(vaddr, vd, sleep=0, step=1024, bar=False):
        l = a.L("poll")
        if sleep:
            a(f"s_branch {l}_1")
        a.label(l)
        if sleep:
            a(f"s_sleep {sleep}")
            a.label(f"{l}_1")
        a(f"buffer_load_dwordx4 {V(vd,4)}, v{vaddr}, {R4(S.RWS)}, s{S.PO} offen sc1")
        a(f"s_add_u32 s{S.PO}, s{S.PO}, {step}")
        a(f"s_min_u32 s{S.PO}, s{S.PO}, s{S.POL}")
        if bar:
            a(f"s_cmp_lg_u32 s{S.SPIN}, 0")
            a(f"s_cbranch_scc1 {l}_2")
            a("s_barrier")
            a.label(f"{l}_2")
        if o.stamps:
            a(f"s_add_u32 s{S.RC}, s{S.RC}, 1")
        spin()
        a("s_waitcnt vmcnt(0)")
        a(f"s_cbranch_scc1 {l}_ok")
        a(f"v_cmp_ne_u32 vcc, v{VTAG}, v{vd+1}")
        a(f"v_cmp_ne_u32 s[{S.EX}:{S.EX+1}], v{VTAG}, v{vd+3}")
        a(f"s_or_b64 vcc, vcc, s[{S.EX}:{S.EX+1}]")
        a(f"s_cbranch_vccnz {l}")
        a.label(f"{l}_ok")

    def wave_max_key(vd):
        a(f"v_max_u32 v{vd}, v{vd}, v{vd+2}")
        for r in ("row_ror:8", "row_ror:4", "row_ror:2", "row_ror:1"):
            a.nop(2)
            a(f"v_max_u32_dpp v{vd}, v{vd}, v{vd} {r} {DPPM}")
        a.nop(2)
        a(f"v_max_u32_dpp v{vd}, v{vd}, v{vd} row_bcast:15 row_mask:0xa bank_mask:0xf")
        a.nop(2)
        a(f"v_max_u32_dpp v{vd}, v{vd}, v{vd} row_bcast:31 row_mask:0xc bank_mask:0xf")

    def lds_put(addr, v, tag=False):
        a(f"v_mov_b32 v9, {addr}")
        a("s_mov_b32 exec_lo, 0")
        a("s_brev_b32 exec_hi, 1")
        if tag:
            a(f"ds_write2_b32 v9, v{v}, v{VTAG} offset1:1")
        else:
            a(f"ds_write_b32 v9, v{v}")
        a("s_mov_b64 exec, -1")
        a("s_waitcnt lgkmcnt(0)")

    def sigmoid(d, s):
        a(f"v_mul_f32 v{d}, {LOG2E | 0x80000000:#x}, v{s}")
        a(f"v_exp_f32 v{d}, v{d}")
        a.nop(1)
        a(f"v_add_f32 v{d}, 1.0, v{d}")
        a(f"v_rcp_f32 v{d}, v{d}")
        a.nop(1)

    def rnd(d, s):
        a(f"v_cvt_pk_bf16_f32 v{d}, v{s}, v{s}")
        a(f"v_and_b32 v{d}, {HIM}, v{d}")

    def ws_setup():
        a.srd(S.RWS, S.PWS, WS_BYTES)
        a(f"s_mov_b32 s{S.SPIN}, 0")

    def tag_load():
        a(f"v_mov_b32 v{VTAG}, 0")
        a(f"global_load_dword v{VE}, v{VTAG}, s[{S.PWS}:{S.PWS+1}]")
        a(f"s_mov_b32 s{S.KM}, 0x9E3779B1")

    def tag_make():
        a(f"v_mul_lo_u32 v{VTAG}, v{VE}, s{S.KM}")
        a(f"v_add_u32 v{VTAG}, 0x7F4A7C15, v{VTAG}")

    a(f"s_load_dwordx2 s[{S.PX}:{S.PX+1}], s[0:1], {KA_X}")
    a(f"s_load_dwordx16 s[16:31], s[0:1], {KA_WR}")
    if o.cpf0:
        a(f"s_cmp_ge_u32 s2, {8*o.cpf0}")
        a("s_cbranch_scc1 L_nocpf0")
        a(f"s_getpc_b64 s[{S.EX}:{S.EX+1}]")
        a.label("L_pc0")
        a("v_lshlrev_b32 v6, 7, v0")
        a(f"v_min_u32 v6, L_end - L_pc0, v6")
        a(f"v_mov_b32 v13, s{S.EX+1}")
        a(f"v_add_co_u32 v12, vcc, s{S.EX}, v6")
        a.nop(2)
        a("v_addc_co_u32 v13, vcc, 0, v13, vcc")
        a("global_load_dword v164, v[12:13], off")
        a.label("L_nocpf0")
    if o.stamps:
        for i in range(1, 16):
            a(f"s_mov_b32 s{S.ST+2*i}, 0")
        a(f"s_mov_b32 s{S.RC}, 0")
    stamp(0)
    if o.hold or o.probe >= 0:
        a("s_memrealtime s[66:67]")
    if o.skew:
        a("s_and_b32 s6, s2, 7")
        a("s_cmp_lg_u32 s6, 5")
        a("s_cbranch_scc1 L_noskew")
        a(f"s_sleep {o.skew}")
        a.label("L_noskew")
    a("v_lshrrev_b32 v1, 6, v0")
    a("v_and_b32 v0, 63, v0")
    a(f"v_readfirstlane_b32 s{S.WAVE}, v1")
    a("v_and_b32 v1, 15, v0")
    a("v_lshrrev_b32 v2, 4, v0")
    a(f"s_and_b32 s{S.T0}, s2, 7")
    a(f"s_sub_u32 s{S.WAVE}, s{S.WAVE}, 1")
    a(f"s_min_u32 s{S.WAVE}, s{S.WAVE}, 8")
    a(f"s_lshr_b32 s{S.T1}, s2, 3")
    a(f"s_cmp_eq_u32 s{S.T0}, 0")
    a("s_cbranch_scc1 L_notA")
    a(f"s_cmp_lt_u32 s{S.T1}, 16")
    a("s_cbranch_scc1 L_isA")
    a(f"s_cmp_lt_u32 s{S.T0}, 4")
    a("s_cbranch_scc1 L_notA")
    a(f"s_cmp_ge_u32 s{S.T1}, 20")
    a("s_cbranch_scc1 L_notA")
    a(f"s_lshl2_add_u32 s{S.T1}, s{S.T0}, s{S.T1}")
    a(f"s_sub_u32 s{S.T1}, s{S.T1}, 32")
    a(f"s_mov_b32 s{S.T0}, 0")
    a.label("L_isA")
    if o.only == "F":
        a("s_endpgm")

    VROW, VG16, VSGN, VTR, VST = 3, 5, 8, 10, 11
    VLD, VUW, VUX, VUR0, VUR1 = 10, 11, 28, 29, 30
    XR, WR, GW, CO = 16, 24, 24, 24
    CM, AOP, ACC = 32, 96, 112
    LD, DA0, DA1, TP, X16, PK = 32, 64, 32, 80, 96, 48
    M1, GA, XG = 100, 148, 152
    Cc, Ss = 64, 68
    UO, PQ, M2 = 32, 48, 64

    def rows_setup(wreg):
        a(f"s_lshl3_add_u32 s{S.T5}, s{S.HH}, s{wreg}")
        a(f"s_lshl_b32 s{S.T5}, s{S.T5}, 7")
        a(f"s_add_u32 s{S.TD}, s{S.T5}, s{S.T1C}")
        a(f"s_sub_u32 s{S.TM}, 2048, s{S.TD}")
        a(f"s_cmp_eq_u32 s{S.TD}, 0")
        a(f"s_cselect_b32 s{S.TM}, 1024, s{S.TM}")
        a(f"s_lshl_b32 s{S.T4}, s{S.TD}, 10")
        a(f"s_lshl_b32 s{S.T5}, s{S.TM}, 10")
        a(f"v_add_u32 v6, s{S.T4}, v{VG16}")
        a(f"v_add_u32 v7, s{S.T5}, v{VG16}")

    def vrow_setup():
        a("v_and_b32 v6, 1, v2")
        a("v_lshlrev_b32 v6, 5, v6")
        a("v_lshl_add_u32 v6, v1, 6, v6")
        a("v_lshrrev_b32 v7, 1, v2")
        a(f"v_lshl_add_u32 v{VROW}, v7, 4, v6")

    def rows_load():
        a(f"global_load_dwordx4 {V(XR,4)}, v6, {PXS}{o.xpol}")
        a(f"global_load_dwordx4 {V(XR+4,4)}, v7, {PXS}{o.xpol}")

    def sgn_setup():
        a(f"v_lshlrev_b32 v{VSGN}, 31, v1")
        a(f"v_lshrrev_b32 v9, 16, v{VSGN}")
        a(f"v_or_b32 v{VSGN}, v{VSGN}, v9")

    def sgn_setup2():
        a(f"v_lshlrev_b32 v{VSGN}, 31, v1")
        a(f"v_lshrrev_b32 v14, 16, v{VSGN}")
        a(f"v_or_b32 v{VSGN}, v{VSGN}, v14")

    def tile_ids():
        a(f"s_bitcmp1_b32 s{S.T1}, 3")
        a(f"s_cselect_b32 s{S.T2}, s{S.T3}, s{S.T2}")
        a(f"s_and_b32 s{S.T3}, s{S.T1}, 7")
        a(f"s_lshl3_add_u32 s{S.BLK}, s{S.T2}, s{S.T3}")
        a(f"s_lshl_b32 s{S.PIE}, s{S.T2}, 5")
        a(f"s_add_u32 s{S.PIE}, s{S.PIE}, s{S.T3}")
        a(f"s_lshl_b32 s{S.PIE}, s{S.PIE}, 6")

    def vst_setup():
        a(f"v_mul_u32_u24 v{VST}, {CS}, v1")
        a(f"v_lshl_add_u32 v{VST}, v2, 4, v{VST}")

    def const_d2():
        R = 40
        a("v_lshlrev_b32 v6, 2, v2")
        a("v_cvt_f32_u32 v7, v1")
        a("v_cvt_f32_u32 v6, v6")
        a("v_mul_f32 v7, 0x3d800000, v7")
        for hf in range(2):
            if hf:
                a("v_add_f32 v7, 0x3d800000, v7")
            a("v_mul_f32 v9, v6, v7")
            for jj in range(4):
                a(f"v_cos_f32 v{Cc+jj}, v9")
                a(f"v_sin_f32 v{Ss+jj}, v9")
                if jj < 3:
                    a("v_add_f32 v9, v9, v7")
            a.nop(1)
            for jj in range(4):
                if hf == 0:
                    a(f"v_cvt_pk_bf16_f32 v{R+jj}, v{Cc+jj}, v{Ss+jj}")
                    a(f"v_cvt_pk_bf16_f32 v{R+8+jj}, -v{Ss+jj}, v{Cc+jj}")
                else:
                    a(f"v_cvt_pk_bf16_f32 v{R+4+jj}, v{Cc+jj}, -v{Ss+jj}")
                    a(f"v_cvt_pk_bf16_f32 v{R+12+jj}, -v{Ss+jj}, -v{Cc+jj}")
        for k in range(4):
            a(f"ds_write_b128 v{VG16}, {V(R+4*k,4)} offset:{L_M2 + 1024*k}")

    a(f"s_add_u32 s{S.T2}, s{S.T0}, 1")
    a(f"s_sub_u32 s{S.T3}, 15, s{S.T0}")
    a(f"s_cmp_eq_u32 s{S.WAVE}, 8")
    a("s_cbranch_scc1 L_ah")
    a(f"s_and_b32 s{S.HH}, s{S.T1}, 1")
    a(f"s_bitcmp1_b32 s{S.T1}, 1")
    a(f"s_cselect_b32 s{S.T4}, s{S.T3}, s{S.T2}")
    a(f"s_lshr_b32 s{S.T5}, s{S.T1}, 2")
    a(f"s_lshl4_add_u32 s{S.T1C}, s{S.T5}, s{S.T4}")
    a(f"v_lshlrev_b32 v{VG16}, 4, v0")
    a(f"v_mov_b32 v{VROW}, 0")
    a(f"s_cmp_lg_u32 s{S.T0}, 7")
    a("s_cbranch_scc1 L_k7")
    a(f"s_lshr_b32 s{S.T5}, s{S.T1}, 1")
    a(f"s_lshl3_add_u32 s{S.T1C}, s{S.T5}, 8")
    a(f"s_mov_b32 s{S.T2}, 0")
    a(f"s_cmp_eq_u32 s2, 127")
    a(f"s_cselect_b32 s{S.T1C}, 0, s{S.T1C}")
    a(f"s_cselect_b32 s{S.HH}, 0, s{S.HH}")
    a.label("L_k7")
    rows_setup(S.WAVE)
    a("s_waitcnt lgkmcnt(0)")
    rows_load()
    stamp(1)
    if o.touch:
        touch("L_ta", o.touch, 0, 8)
    a.label("L_ta_start")
    if o.b0 == 2:
        a("s_barrier")
    tile_ids()

    def tile_dma():
        a(f"s_lshl_b32 s{S.T4}, s{S.WAVE}, 11")
        a(f"s_add_u32 s{S.T5}, s{S.T4}, s{S.BLK}")
        a(f"s_lshl_b32 s{S.T5}, s{S.T5}, 7")
        a(f"s_mov_b32 m0, s{S.T4}")
        a("v_and_b32 v9, 7, v0")
        a("v_bfe_u32 v13, v0, 4, 1")
        a("v_xor_b32 v9, v9, v13")
        a("v_lshrrev_b32 v13, 3, v0")
        a(f"v_lshl_add_u32 v9, v9, 4, s{S.T5}")
        a("v_lshl_add_u32 v13, v13, 14, v9")
        a(f"global_load_lds_dwordx4 v13, {PXS}")
        a(f"s_add_u32 m0, s{S.T4}, 1024")
        a("v_add_u32 v13, 0x20000, v13")
        a(f"global_load_lds_dwordx4 v13, {PXS}")
        stamp(2)

    if not o.tlate:
        tile_dma()
    C1, S1, K = AOP, AOP + 4, AOP + 8
    a(f"s_lshr_b32 s{S.T0}, s{S.WAVE}, 2")
    a(f"s_and_b32 s{S.T1}, s{S.WAVE}, 1")
    a(f"s_bfe_u32 s{S.T2}, s{S.WAVE}, 0x10001")
    a(f"v_lshl_add_u32 v6, s{S.T0}, 4, v1")
    a(f"s_lshl3_add_u32 s{S.T3}, s{S.T2}, s{S.T1}")
    a(f"s_lshl_b32 s{S.T3}, s{S.T3}, 2")
    a("v_cvt_f32_u32 v6, v6")
    a(f"v_lshl_add_u32 v7, v2, 3, s{S.T3}")
    a("v_mul_f32 v6, 0x3c000000, v6")
    a("v_cvt_f32_u32 v7, v7")
    a("v_mul_f32 v7, v7, v6")
    for j in range(4):
        a(f"v_cos_f32 v{C1+j}, v7")
        a(f"v_sin_f32 v{S1+j}, v7")
        if j < 3:
            a("v_add_f32 v7, v7, v6")
    if o.tlate == 2:
        a(f"global_load_dwordx4 {V(WR,4)}, v{VG16}, s[{S.PWR}:{S.PWR+1}]")
        tile_dma()
    a(f"s_lshl_b32 s{S.T4}, s{S.T0}, 13")
    a(f"s_lshl_b32 s{S.T5}, s{S.T2}, 10")
    a(f"s_lshl3_add_u32 s{S.T5}, s{S.T1}, s{S.T5}")
    a(f"v_add_u32 v15, s{S.T4}, v{VG16}")
    a(f"v_add_u32 v9, s{S.T5}, v15")
    a(f"v_cvt_pk_bf16_f32 v{K+0}, v{C1}, v{C1+1}")
    a(f"v_cvt_pk_bf16_f32 v{K+1}, v{C1+2}, v{C1+3}")
    a(f"v_cvt_pk_bf16_f32 v{K+2}, -v{S1}, -v{S1+1}")
    a(f"v_cvt_pk_bf16_f32 v{K+3}, -v{S1+2}, -v{S1+3}")
    a("v_cmp_eq_f32 vcc, 0, v6")
    a(f"v_cvt_pk_bf16_f32 v{K+4}, v{C1}, -v{S1+1}")
    a(f"v_cvt_pk_bf16_f32 v{K+5}, -v{C1+2}, v{S1+3}")
    a(f"v_cvt_pk_bf16_f32 v{K+6}, -v{S1}, -v{C1+1}")
    a(f"v_cvt_pk_bf16_f32 v{K+7}, v{S1+2}, v{C1+3}")
    a(f"ds_write_b64 v9, {V(K,2)} offset:{L_CT}")
    a(f"ds_write_b64 v9, {V(K+4,2)} offset:{L_CT+4096}")
    a(f"ds_write_b64 v9, {V(K+6,2)} offset:{L_CT+6144}")
    a("s_mov_b64 exec, vcc")
    a(f"v_mov_b32 v{K+2}, 0xbf803f80")
    a(f"v_mov_b32 v{K+3}, 0xbf803f80")
    a("s_mov_b64 exec, -1")
    a(f"ds_write_b64 v9, {V(K+2,2)} offset:{L_CT+2048}")
    if o.tlate != 2:
        a(f"global_load_dwordx4 {V(WR,4)}, v{VG16}, s[{S.PWR}:{S.PWR+1}]")
    if o.tlate == 1:
        tile_dma()
    a("v_mov_b32 v12, 0")
    a("v_mov_b32 v13, 0")
    stamp(3)
    if o.b0 == 1:
        a("s_waitcnt lgkmcnt(0)")
        a("s_barrier")
        for k in range(2):
            for t in range(4):
                a(f"ds_read_b128 {V(CM+16*t+4*k,4)}, v15 offset:{L_CT + t*2048 + k*1024}")

    def dots(w, fill=()):
        fill = list(fill)

        def pad(n):
            while n and fill:
                a(fill.pop(0))
                n -= 1
            a.nop(n)

        for i in range(4):
            a(f"v_dot2c_f32_bf16 v12, v{XR+i}, v{w+i}")
            a(f"v_dot2c_f32_bf16 v13, v{XR+4+i}, v{w+i}")
        pad(3)
        a("v_permlane32_swap_b32 v12, v13")
        a("v_add_f32 v12, v12, v13")
        a("v_mov_b32 v13, v12")
        pad(2)
        a("v_permlane16_swap_b32 v12, v13")
        a("v_add_f32 v12, v12, v13")
        for r in (8, 4, 2, 1):
            pad(2)
            a(f"v_add_f32_dpp v12, v12, v12 row_ror:{r} {DPPM}")
        rnd(12, 12)
        for x in fill:
            a(x)

    a(f"s_waitcnt vmcnt({2 if o.tlate else 0})")
    stamp(4)
    dots(WR, [f"s_sub_u32 s{S.T4}, 0xffff, s{S.TD}", f"s_sub_u32 s{S.T5}, 0xffff, s{S.TM}", f"v_mov_b32 v4, s{S.T4}",
              f"v_writelane_b32 v4, s{S.T5}, 32", f"v_mov_b32 v9, {L_KSL}",
              f"v_lshlrev_b32 v{VSGN}, 31, v1", f"v_lshrrev_b32 v7, 16, v{VSGN}", f"v_or_b32 v{VSGN}, v{VSGN}, v7",
              "v_bfe_u32 v6, v0, 2, 2", "v_and_b32 v14, 3, v0", f"v_lshl_add_u32 v14, v14, 1, s{S.T2}",
              f"v_lshl_add_u32 v{VTR}, v2, 3, v6", "v_lshrrev_b32 v6, 1, v6", "v_xor_b32 v14, v14, v6"])
    a("v_ashrrev_i32 v7, 31, v12")
    a("v_or_b32 v7, 0x80000000, v7")
    a("v_xor_b32 v7, v7, v12")
    a(f"v_and_b32 v7, {HIM}, v7")
    a("v_or_b32 v7, v7, v4")
    a("s_mov_b32 exec_lo, 1")
    a("s_mov_b32 exec_hi, 1")
    a("ds_max_u32 v9, v7")
    a("s_mov_b64 exec, -1")
    if o.b1a:
        a("s_waitcnt lgkmcnt(0)")
        hold("K")
        a("s_barrier")
    if o.b0 == 2:
        for k in range(2):
            for t in range(4):
                a(f"ds_read_b128 {V(CM+16*t+4*k,4)}, v15 offset:{L_CT + t*2048 + k*1024}")
    a(f"s_lshl_b32 s{S.T1}, s{S.T1}, 3")
    a(f"v_lshl_add_u32 v14, v14, 4, s{S.T1}")
    a(f"v_lshl_add_u32 v{VTR}, v{VTR}, 7, v14")
    a("v_lshlrev_b32 v9, 4, v2")
    a("s_waitcnt vmcnt(0)" + ("" if o.b0 == 2 else " lgkmcnt(0)"))
    hold("B1")
    a("s_barrier")
    stamp(5)
    if o.b0 == 2:
        a("s_waitcnt lgkmcnt(5)")
    a(f"ds_read_b128 v[28:31], v9 offset:{L_EXP}")
    for k in range(4):
        for h in range(2):
            a(f"ds_read_b64_tr_b16 {V(AOP+4*k+2*h,2)}, v{VTR} offset:{L_TILE + k*4096 + h*512}")
        if k < 2 and not o.b0:
            for t in range(4):
                a(f"ds_read_b128 {V(CM+16*t+4*k,4)}, v15 offset:{L_CT + t*2048 + k*1024}")
        if k == 1 and not o.b0:
            a("s_waitcnt lgkmcnt(9)")
    a(f"global_load_dwordx4 {V(GW,4)}, v{VG16}, s[{S.PGW}:{S.PGW+1}]")
    xors = [f"v_xor_b32 v{CM+t*16+8+4*kp+r}, v{CM+t*16+4*kp+r}, v{VSGN}" for kp in range(2) for t in range(4) for r in range(4)]
    misc = [f"s_mul_i32 s{S.SO}, s{S.T0}, {16*CS}",
            f"s_add_u32 s{S.SO}, s{S.SO}, s{S.PIE}",
            f"s_and_b32 s{S.T4}, s{S.WAVE}, 3",
            f"s_lshl_b32 s{S.T4}, s{S.T4}, 9",
            f"s_add_u32 s{S.SO}, s{S.SO}, s{S.T4}",
            f"s_add_u32 s{S.SO}, s{S.SO}, {WS_INT}",
            f"s_mov_b32 s{S.RWS}, s{S.PWS}", f"s_mov_b32 s{S.RWS+1}, s{S.PWS+1}", f"s_mov_b32 s{S.RWS+2}, {WS_BYTES:#x}",
            f"s_mov_b32 s{S.RWS+3}, 0x20000",
            f"s_add_u32 s{S.SO+1}, s{S.SO}, {32*CS}", f"s_mov_b32 s{S.T5}, 0xfffefffe", f"s_mov_b32 s{S.T4}, 0x07060302",
            f"v_mul_u32_u24 v{VST}, {CS}, v1", f"v_lshl_add_u32 v{VST}, v2, 4, v{VST}",
            ]
    fill = xors + misc
    for k in range(4):
        for t in range(4):
            if o.b0:
                if t == 0:
                    a(f"s_waitcnt lgkmcnt({6-2*k})")
            elif k == 0:
                a(f"s_waitcnt lgkmcnt({13-t})")
            elif k == 1:
                a(f"s_waitcnt lgkmcnt({7-t})")
            elif t == 0:
                a(f"s_waitcnt lgkmcnt({2 if k == 2 else 0})")
            c = "0" if k == 0 else V(ACC + 4 * t, 4)
            a(f"{MF} {V(ACC+4*t,4)}, {V(AOP+4*k,4)}, {V(CM+16*t+4*k,4)}, {c}")
            n = 4 if k < 2 else 2
            if k < 3 or t < 3:
                for _ in range(n):
                    if fill:
                        x = fill.pop(0)
                        if x != "TAGWAIT":
                            a(x)
    for x in fill:
        a(x)
    a("v_mov_b32 v12, 0")
    a("v_mov_b32 v13, 0")
    for h in range(2):
        for i in range(8):
            a(f"v_add_u32 v{ACC+8*h+i}, 0x10000, v{ACC+8*h+i}")
        for i in range(4):
            a(f"v_perm_b32 v{AOP+4*h+i}, v{ACC+8*h+4+i}, v{ACC+8*h+i}, s{S.T4}")
        for i in range(4):
            a(f"v_and_or_b32 v{AOP+4*h+i}, v{AOP+4*h+i}, s{S.T5}, v{28+i}")
        a(f"buffer_store_dwordx4 {V(AOP+4*h,4)}, v{VST}, {R4(S.RWS)}, s{S.SO+h} offen sc1")
    a(f"s_mov_b32 s{S.SPIN}, 0")
    a(f"s_mov_b32 s{S.ISZ}, 0")
    stamp(7)
    if o.only == "P1":
        a("s_endpgm")
    a.label("L_ta_end")

    gwait = [2]

    def gates(full):
        if full:
            a(f"s_waitcnt vmcnt({gwait[0]})")
        dots(GW)
        if full:
            a(f"s_lshl_b32 s{S.T0}, s{S.WAVE}, 11")
            a(f"v_add_u32 v6, s{S.T0}, v{VG16}")
            a(f"ds_write_b128 v6, {V(XR,4)} offset:{L_XT}")
            a(f"ds_write_b128 v6, {V(XR+4,4)} offset:{L_XT+1024}")
            a(f"v_lshl_add_u32 v7, v1, 6, s{S.T0}")
            a("v_lshl_add_u32 v7, v2, 3, v7")
            a("s_waitcnt lgkmcnt(0)")
            for r in range(2):
                a(f"ds_read2_b64 {V(XR+4*r,4)}, v7 offset0:{0} offset1:{4}" if False else f"ds_read_b64 {V(XR+4*r,2)}, v7 offset:{L_XT+1024*r}")
                a(f"ds_read_b64 {V(XR+4*r+2,2)}, v7 offset:{L_XT+1024*r+32}")
            vrow_setup()
        sigmoid(13, 12)
        rnd(13, 13)
        a("v_sub_f32 v14, 1.0, v13")
        rnd(14, 14)
        a(f"v_readlane_b32 s{S.T0}, v13, 0")
        a(f"v_readlane_b32 s{S.T1}, v13, 32")
        a(f"v_readlane_b32 s{S.T2}, v14, 0")
        a(f"v_readlane_b32 s{S.T3}, v14, 32")
        a(f"s_xor_b32 s{S.T4}, s{S.T0}, 0x80000000")
        a(f"s_cmp_eq_u32 s{S.TD}, 0")
        a(f"s_cselect_b32 s{S.T4}, 0, s{S.T4}")
        a(f"s_cselect_b32 s{S.T5}, 0, s{S.T1}")
        if not full:
            return
        a(f"v_mov_b32 v{CO}, s{S.T0}")
        a(f"v_mov_b32 v{CO+1}, s{S.T4}")
        a(f"v_mov_b32 v{CO+2}, s{S.T5}")
        a(f"v_mov_b32 v{CO+3}, s{S.T1}")
        a(f"v_mov_b32 v13, s{S.T2}")
        a(f"v_mov_b32 v14, s{S.T3}")
        a("s_waitcnt lgkmcnt(0)")
        for r in range(2):
            for i in range(4):
                a(f"v_lshlrev_b32 v{XG+8*r+2*i}, 16, v{XR+4*r+i}")
                a(f"v_and_b32 v{XG+8*r+2*i+1}, {HIM}, v{XR+4*r+i}")
            for i in range(8):
                a(f"v_mul_f32 v{XG+8*r+i}, v{13+r}, v{XG+8*r+i}")

    def addr_ur(wreg):
        a(f"s_mul_i32 s{S.T1}, s{wreg}, {2*UB}")
        a("v_bfe_u32 v7, v1, 1, 2")
        a("v_xor_b32 v7, v7, v2")
        a(f"v_lshl_add_u32 v7, v7, 4, s{S.T1}")
        a(f"v_lshl_add_u32 v{VUR0}, v1, 6, v7")
        a("v_sub_u32 v6, 16, v1")
        a("v_bfe_u32 v7, v6, 1, 2")
        a("v_xor_b32 v7, v7, v2")
        a(f"v_lshl_add_u32 v7, v7, 4, s{S.T1}")
        a(f"v_lshl_add_u32 v{VUR1}, v6, 6, v7")

    def addr_p2():
        a("v_lshlrev_b32 v6, 4, v1")
        a(f"v_lshl_add_u32 v{VLD}, v2, 13, v6")
        a(f"v_mul_u32_u24 v6, {4*UB}, v2")
        a("v_bfe_u32 v7, v1, 1, 2")
        a(f"v_xor_b32 v7, s{S.WAVE}, v7")
        a("v_lshl_add_u32 v7, v7, 4, v6")
        a(f"v_lshl_add_u32 v{VUW}, v1, 6, v7")
        a(f"s_lshl4_add_u32 s{S.T1}, s{S.WAVE}, 1024")
        a(f"v_mov_b32 v9, {L_DUMP - L_U2}")
        a(f"v_lshl_add_u32 v{VUX}, v0, 1, v9")
        a(f"v_lshl_add_u32 v7, v1, 1, s{S.T1}")
        a("s_mov_b32 exec_lo, 0x00ff00ff")
        a("s_mov_b32 exec_hi, 0x00ff00ff")
        a(f"v_add_u32 v{VUX}, v7, v6")
        a("s_mov_b64 exec, -1")

    EXP = 96

    def exp_setup():
        a("v_and_b32 v6, 3, v1")
        a("v_lshlrev_b32 v6, 4, v6")
        a(f"ds_read_b128 {V(EXP,4)}, v6 offset:{L_EXP}")
        a("s_waitcnt lgkmcnt(0)")

    def exp_make():
        a("v_lshlrev_b32 v6, 1, v1")
        a(f"v_lshrrev_b32 v6, v6, v{VTAG}")
        a("v_lshlrev_b32 v7, 15, v6")
        a("v_and_b32 v6, 1, v6")
        a("v_and_b32 v7, 0x10000, v7")
        a("v_or_b32 v6, v6, v7")
        a("v_lshlrev_b32 v7, 2, v1")
        a(f"ds_write_b32 v7, v6 offset:{L_EXP}")
        a("s_waitcnt lgkmcnt(0)")

    def const_d1():
        a("v_cvt_f32_u32 v6, v1")
        a(f"s_lshl_b32 s{S.T0}, s{S.WAVE}, 2")
        a(f"v_lshl_add_u32 v7, v2, 6, s{S.T0}")
        a("v_mul_f32 v6, 0x3b000000, v6")
        a("v_cvt_f32_u32 v7, v7")
        a("v_mul_f32 v15, 0x41800000, v6")
        a("v_mul_f32 v7, v7, v6")
        for ib in range(4):
            if ib:
                a("v_add_f32 v7, v7, v6")
            for j in range(4):
                src = "v7" if j == 0 else "v9"
                a(f"v_cos_f32 v{Cc+j}, {src}")
                a(f"v_sin_f32 v{Ss+j}, {src}")
                if j < 3:
                    a(f"v_add_f32 v9, {src}, v15")
            b = M1 + 12 * ib
            a(f"v_mov_b32 v{b+8}, 0")
            for p in range(2):
                a(f"v_cvt_pk_bf16_f32 v{b+p}, v{Cc+2*p}, v{Cc+2*p+1}")
                a(f"v_cvt_pk_bf16_f32 v{b+4+p}, -v{Ss+2*p}, -v{Ss+2*p+1}")
            for p in range(2):
                a(f"v_xor_b32 v{b+2+p}, v{b+p}, v{VSGN}")
                a(f"v_xor_b32 v{b+6+p}, v{b+4+p}, v{VSGN}")
        a("v_lshrrev_b32 v6, 1, v1")
        a(f"v_add_u32 v7, s{S.T0}, v6")
        a("v_and_b32 v9, 1, v1")
        a("v_lshl_add_u32 v7, v9, 3, v7")
        a("v_cvt_f32_u32 v7, v7")
        a("v_mul_f32 v7, 0x3d000000, v7")
        a("v_cos_f32 v7, v7")
        for ib in range(4):
            m = 0x00030003 << (2 * ib)
            a(f"s_mov_b32 exec_lo, {m:#x}")
            a(f"s_mov_b32 exec_hi, {m:#x}")
            a(f"v_cvt_pk_bf16_f32 v{M1+12*ib+8}, v7, -v7")
        a("s_mov_b64 exec, -1")
        for ib in range(4):
            for p in range(1, 4):
                a(f"v_mov_b32 v{M1+12*ib+8+p}, v{M1+12*ib+8}")

    def const_ga():
        a("v_lshrrev_b32 v6, 1, v1")
        a(f"s_lshl_b32 s{S.T0}, s{S.HH}, 10")
        a(f"s_add_u32 s{S.T0}, s{S.T0}, s{S.T1C}")
        a(f"v_lshl_add_u32 v6, v6, 7, s{S.T0}")
        a("v_and_b32 v7, 1, v1")
        a("v_lshlrev_b32 v9, 9, v7")
        l0, ld = a.L("g0"), a.L("gd")
        a(f"s_cmp_lg_u32 s{S.T1C}, 0")
        a(f"s_cbranch_scc1 {l0}")
        a("s_mov_b32 exec_lo, 0x00020002")
        a("s_mov_b32 exec_hi, 0x00020002")
        a("v_mov_b32 v6, 0x400")
        a("v_mov_b32 v9, 0")
        a("s_mov_b64 exec, -1")
        a.label(l0)
        a("v_lshlrev_b32 v7, 2, v2")
        a("v_mad_u32_u24 v9, v7, v6, v9")
        a("v_cvt_f32_u32 v6, v6")
        a("v_cvt_f32_u32 v9, v9")
        a("v_mul_f32 v6, 0x3a000000, v6")
        a("v_mul_f32 v9, 0x3a000000, v9")
        for jj in range(4):
            a(f"v_cos_f32 v{Cc+jj}, v9")
            a(f"v_sin_f32 v{Ss+jj}, v9")
            if jj < 3:
                a("v_add_f32 v9, v9, v6")
        a(f"s_and_b32 s{S.T1}, s{S.T1C}, 63")
        a.nop(1)
        for jj in range(4):
            a(f"v_cvt_pk_bf16_f32 v{GA+jj}, v{Cc+jj}, v{Ss+jj}")
        a(f"s_cmp_lg_u32 s{S.T1}, 0")
        a(f"s_cbranch_scc1 {ld}")
        a(f"s_lshr_b32 s{S.T1}, s{S.T1C}, 2")
        for jj in range(4):
            a(f"v_and_b32 v{GA+jj}, 0xffff, v{GA+jj}")
            a(f"v_lshlrev_b32 v{GA+jj}, s{S.T1}, v{GA+jj}")
        a.label(ld)

    def int_base():
        a(f"s_and_b32 s{S.T1}, s{S.T1C}, 63")
        a(f"s_mul_i32 s{S.L0}, s{S.T1}, {CS}")
        a(f"s_lshl_b32 s{S.T1}, s{S.WAVE}, 9")
        a(f"s_add_u32 s{S.L0}, s{S.L0}, s{S.T1}")
        a(f"s_add_u32 s{S.L0}, s{S.L0}, {WS_INT}")
        a(f"s_add_u32 s{S.L1}, s{S.L0}, 4096")

    def m2_addr():
        a(f"s_cmp_eq_u32 s{S.TD}, 0")
        a(f"s_cselect_b32 s{S.T0}, 0, 2048")
        a(f"v_add_u32 v4, s{S.T0}, v{VG16}")

    def int_loads(ah):
        for jj in range(4):
            so = S.L0 if jj < 2 else S.L1
            a(f"buffer_load_dwordx4 {V(LD+16*ah+4*jj,4)}, v{VLD}, {R4(S.RWS)}, s{so} offen offset:{(jj & 1)*2048 + ah*256} sc1")

    a.srd(S.ROUT, S.POUT, 0x200000)
    a(f"s_cmp_ge_u32 s{S.WAVE}, 4")
    a("s_cbranch_scc1 L_hi0")
    if o.prio & 1:
        a("s_setprio 2")
    pre = [lambda: (addr_p2(), int_base(), const_ga(), exp_setup()), const_d1, lambda: gates(True), lambda: (addr_ur(S.WAVE), m2_addr())]
    if o.gfirst:
        pre[1], pre[2] = pre[2], pre[1]
    for f in pre[:o.npre]:
        f()
    stamp(8)
    a(f"s_waitcnt vmcnt({0 if o.ackwait else 2})")
    if o.b3:
        a("s_barrier")
    if o.isleep0:
        a(f"s_sleep {o.isleep0}")
    hold("B4")
    stamp(9)
    if o.stag:
        a(f"s_cmp_lg_u32 s{S.HH}, 0")
        a("s_cbranch_scc1 L_stg1")
        int_loads(0)
        a(f"s_waitcnt vmcnt({4 - o.stag})")
        int_loads(1)
        a("s_branch L_stg2")
        a.label("L_stg1")
        int_loads(1)
        a(f"s_waitcnt vmcnt({4 - o.stag})")
        int_loads(0)
        a("s_waitcnt vmcnt(0)")
        a.label("L_stg2")
    else:
        int_loads(0)
        int_loads(1)
    gwait[0] = 10
    for f in pre[o.npre:]:
        f()
    gwait[0] = 2
    a.label("L_zjoin")
    stamp(10)
    for ah in range(2):
        a(f"s_waitcnt vmcnt({4-4*ah})")
        a.label(f"L_got{ah}")
        b = LD + 16 * ah
        da = DA1 if ah else DA0
        for ib in range(4):
            for jj in range(4):
                a(f"v_xor_b32 v{TP+4*ib+jj}, v{b+4*jj+ib}, v{EXP+ib}")
            if ib == 0:
                a(f"v_or3_b32 v6, v{TP}, v{TP+1}, v{TP+2}")
                a(f"v_or_b32 v6, v6, v{TP+3}")
            else:
                a(f"v_or3_b32 v6, v6, v{TP+4*ib}, v{TP+4*ib+1}")
                a(f"v_or3_b32 v6, v6, v{TP+4*ib+2}, v{TP+4*ib+3}")
            if ib == 3:
                a("v_and_b32 v6, 0x10001, v6")
                a("v_cmp_ne_u32 vcc, 0, v6")
            if not (ah == 1):
                a(f"{MF} {V(da+4*ib,4)}, {V(TP+4*ib,4)}, {V(GA,4)}, 0")
            else:
                a(f"{MF} {V(da+4*ib,4)}, {V(TP+4*ib,4)}, {V(GA,4)}, 0")
        a(f"s_cbranch_vccnz L_retry{ah}")
        a.label(f"L_fail{ah}")
    stamp(11)

    def d1(jb):
        a(f"{MF} {V(DA0+4*jb,4)}, {V(TP+4*jb,4)}, {V(M1+12*jb,4)}, 0")
        a(f"{MF} {V(DA1+4*jb,4)}, {V(TP+4*jb,4)}, {V(M1+12*jb+4,4)}, 0")
        a(f"{MF} {V(X16,4)}, {V(TP+4*jb,4)}, {V(M1+12*jb+8,4)}, {'0' if jb == 0 else V(X16,4)}")

    for ib in range(4):
        for p in range(4):
            s0 = (DA1 if p >= 2 else DA0) + 4 * ib + 2 * (p & 1)
            a(f"v_cvt_pk_bf16_f32 v{TP+4*ib+p}, v{s0}, v{s0+1}")
        if ib:
            d1(ib - 1)
    d1(3)
    for ib in range(3):
        for i in range(4):
            a(f"v_cvt_pk_bf16_f32 v{PK+4*i+ib}, v{DA0+4*ib+i}, v{DA1+4*ib+i}")
    for i in range(4):
        a(f"v_cvt_pk_bf16_f32 v{PK+4*i+3}, v{DA0+12+i}, v{DA1+12+i}")
        a(f"ds_write_b128 v{VUW}, {V(PK+4*i,4)} offset:{L_U2 + i*UB}")
    a(f"v_cvt_pk_bf16_f32 v{X16}, v{X16}, v{X16+1}")
    a(f"v_cvt_pk_bf16_f32 v{X16+2}, v{X16+2}, v{X16+3}")
    a(f"ds_write_b16 v{VUX}, v{X16} offset:{L_U2}")
    a(f"ds_write_b16_d16_hi v{VUX}, v{X16} offset:{L_U2+UB}")
    a(f"ds_write_b16 v{VUX}, v{X16+2} offset:{L_U2+2*UB}")
    a(f"ds_write_b16_d16_hi v{VUX}, v{X16+2} offset:{L_U2+3*UB}")
    a.label("L_d2")
    a(f"ds_read_b128 {V(M2,4)}, v{VG16} offset:{L_M2}")
    a(f"ds_read_b128 {V(M2+4,4)}, v{VG16} offset:{L_M2+1024}")
    a(f"ds_read_b128 {V(M2+8,4)}, v4 offset:{L_M2}")
    a(f"ds_read_b128 {V(M2+12,4)}, v4 offset:{L_M2+1024}")
    a(f"v_mov_b32 v9, {L_GKEY}")
    a(f"s_cmp_lg_u32 s{S.ISZ}, 0")
    a("s_waitcnt lgkmcnt(0)")
    a("s_cbranch_scc1 L_zsync")
    a("s_barrier")
    stamp(12)
    a("ds_read_b32 v6, v9")
    a(f"ds_read_b128 {V(UO,4)}, v{VUR0} offset:{L_U2}")
    a(f"ds_read_b128 {V(UO+4,4)}, v{VUR1} offset:{L_U2}")
    a(f"ds_read_b128 {V(UO+8,4)}, v{VUR0} offset:{L_U2+UB}")
    a(f"ds_read_b128 {V(UO+12,4)}, v{VUR1} offset:{L_U2+UB}")
    a(f"s_lshl_b32 s{S.T0}, s{S.TD}, 10")
    a(f"s_lshl_b32 s{S.T1}, s{S.TM}, 10")
    for k in range(4):
        a(f"s_waitcnt lgkmcnt({3-k})")
        a(f"{MF} {V(PQ+4*k,4)}, {V(UO+4*k,4)}, {V(M2+4*k,4)}, 0")
    a(f"v_readfirstlane_b32 s{S.GKEY}, v6")
    a(f"s_andn2_b32 s{S.IDX}, 0xffff, s{S.GKEY}")
    for r in range(2):
        for i in range(8):
            a(f"v_fmac_f32 v{XG+8*r+i}, v{CO+2*r}, v{PQ+i}")
    for r, (so, tr) in enumerate(((S.T0, S.TD), (S.T1, S.TM))):
        for i in range(8):
            a(f"v_fmac_f32 v{XG+8*r+i}, v{CO+2*r+1}, v{PQ+8+i}")
        for i in range(4):
            a(f"v_cvt_pk_bf16_f32 v{UO+4*r+i}, v{XG+8*r+2*i}, v{XG+8*r+2*i+1}")
        l = a.L("skip")
        if r == 0:
            stamp(6)
        a(f"s_cmp_eq_u32 s{tr}, s{S.IDX}")
        a(f"s_cbranch_scc1 {l}")
        a(f"v_permlane16_swap_b32 v{UO+4*r}, v{UO+4*r+2}")
        a(f"v_permlane16_swap_b32 v{UO+4*r+1}, v{UO+4*r+3}")
        a(f"buffer_store_dwordx4 {V(UO+4*r,4)}, v{VROW}, {R4(S.ROUT)}, s{so} offen{o.outpol}")
        a.label(l)
    a.label("L_tb_end")
    stamp(13)
    if o.stamps:
        a("s_waitcnt vmcnt(0)")
        stamp(15)
    endprog()

    for ah in range(2):
        a.label(f"L_retry{ah}")
        if o.stamps:
            a(f"s_add_u32 s{S.RC}, s{S.RC}, {1 << (8*ah)}")
        if o.rsleep:
            a(f"s_sleep {o.rsleep}")
        spin()
        a(f"s_cbranch_scc1 L_fail{ah}")
        int_loads(ah)
        a("s_waitcnt vmcnt(0)")
        a(f"s_branch L_got{ah}")

    a.label("L_hi0")
    if o.b3:
        if o.ackwait:
            a("s_waitcnt vmcnt(0)")
        a("s_barrier")
    a.label("L_hi1")
    if o.atouch:
        touch("L_tb", o.atouch, 4, 4)
        a(f"s_cmp_lg_u32 s{S.ISZ}, 0")
        a("s_cbranch_scc1 L_z0b")
    gates(True)
    addr_ur(S.WAVE)
    m2_addr()
    stamp(10)
    a("s_branch L_d2")

    a.label("L_ah")
    if o.prio & 2:
        a("s_setprio 3")
    if o.cpf:
        a(f"s_cmp_ge_u32 s{S.T1}, {o.cpf}")
        a("s_cbranch_scc1 L_nocpf")
        a(f"s_getpc_b64 s[{S.EX}:{S.EX+1}]")
        a.label("L_pc")
        a(f"s_sub_u32 s{S.EX}, s{S.EX}, L_pc - {name}")
        a(f"s_subb_u32 s{S.EX+1}, s{S.EX+1}, 0")
        a("v_lshlrev_b32 v6, 7, v0")
        a("v_add_u32 v7, 0x2000, v6")
        a(f"v_min_u32 v7, L_end - {name}, v7")
        a(f"v_mov_b32 v13, s{S.EX+1}")
        a(f"v_mov_b32 v15, s{S.EX+1}")
        a(f"v_add_co_u32 v12, vcc, s{S.EX}, v6")
        a.nop(2)
        a("v_addc_co_u32 v13, vcc, 0, v13, vcc")
        a(f"v_add_co_u32 v14, vcc, s{S.EX}, v7")
        a.nop(2)
        a("v_addc_co_u32 v15, vcc, 0, v15, vcc")
        a("global_load_dword v10, v[12:13], off")
        a("global_load_dword v11, v[14:15], off")
        a.label("L_nocpf")
    a(f"v_lshlrev_b32 v{VG16}, 4, v0")
    a(f"v_mov_b32 v{VTAG}, 0")
    a(f"v_mov_b32 v9, {L_KSL}")
    a(f"ds_write_b32 v9, v{VTAG}")
    a(f"s_mov_b32 s{S.KM}, 0x9E3779B1")
    a(f"s_cmp_ge_u32 s{S.T1}, {o.wpf}")
    a("s_waitcnt lgkmcnt(0)")
    a("s_cbranch_scc1 L_nowpf")
    a(f"global_load_dwordx4 v[32:35], v{VG16}, s[{S.PWR}:{S.PWR+1}]")
    a(f"global_load_dword v{VE}, v{VTAG}, s[{S.PWS}:{S.PWS+1}]")
    a(f"global_load_dwordx4 v[36:39], v{VG16}, s[{S.PGW}:{S.PGW+1}]")
    a.label("L_nowpf")
    stamp(1)
    a("v_lshlrev_b32 v14, 10, v0")
    a(f"s_lshl3_add_u32 s{S.ID8}, s{S.T1}, s{S.T0}")
    a(f"s_lshl_b32 s{S.ID8}, s{S.ID8}, 3")
    a(f"s_add_u32 s{S.ID8}, s{S.ID8}, {WS_KEY}")
    ws_setup()

    if o.b0 == 2:
        a("s_barrier")
    const_d2()
    a(f"global_load_dword v{VE}, v{VTAG}, s[{S.PWS}:{S.PWS+1}]")
    a("s_waitcnt lgkmcnt(0)")
    stamp(2)
    if o.b0 == 1:
        a("s_barrier")
    a(f"v_mov_b32 v9, {L_KSL}")
    a("s_waitcnt vmcnt(0)")
    tag_make()
    exp_make()
    a(f"v_mov_b32 v9, {L_KSL}")
    stamp(3)
    a("s_barrier")
    a(f"ds_read_b32 v{VE}, v9")
    set_exec(RF * CF + RZ * CZ + R2 * C2 + RS)
    a("s_waitcnt lgkmcnt(0)")
    a(f"buffer_store_dwordx2 v[{VE}:{VTAG}], v14, {R4(S.RWS)}, s{S.ID8} offen sc1")
    if o.probe >= 0:
        a("s_mov_b64 exec, 1")
        a("v_mov_b32 v40, s66")
        a(f"v_mov_b32 v41, v{VTAG}")
        a(f"s_add_u32 s{S.T0}, s{S.ID8}, {WS_KEY2 - WS_KEY}")
        a(f"buffer_store_dwordx2 v[40:41], v14, {R4(S.RWS)}, s{S.T0} offen sc1")
    a("s_mov_b64 exec, -1")
    stamp(5)
    if o.b1a:
        a("s_barrier")
    if o.only == "P1":
        a("s_endpgm")
    if o.htouch:
        touch("L_th", o.htouch, 8, 1)
    poll_setup(WS_KEY + 1024 * (RF * CF + RZ * CZ), R2, C2)
    a("s_waitcnt vmcnt(0)")
    if not o.gate and o.b3:
        a("s_barrier")
    if o.k2sleep0:
        a(f"s_sleep {o.k2sleep0}")
    stamp(8)
    poll_granules(VG16, 32, sleep=o.k2sleep)
    stamp(9)
    wave_max_key(32)
    lds_put(L_GKEY, 32)
    if o.gate:
        a(f"s_sleep {o.gate}")
        a("s_barrier")
        if o.probe >= 0:
            a("s_cmp_lg_u32 s2, 9")
            a("s_cbranch_scc1 L_noprobe")
            a("s_barrier")
            a(f"s_mov_b32 s{S.PO}, {WS_KEY2}")
            a(f"s_mov_b32 s{S.POL}, {WS_KEY2}")
            poll_granules(VG16, 32, sleep=4)
            for i in range(8):
                a(f"v_readlane_b32 s{70+i}, v{32 + 2*(i&1)}, {i>>1}")
            a("s_mov_b32 s80, s70")
            for i in range(1, 8):
                a(f"s_sub_u32 s81, s{70+i}, s80")
                a("s_cmp_lt_i32 s81, 0")
                a(f"s_cselect_b32 s80, s{70+i}, s80")
            if o.probe < 8:
                a(f"s_sub_u32 s81, s{70+o.probe}, s80")
            else:
                a("s_mov_b32 s81, 0")
                for i in range(8):
                    a(f"s_sub_u32 s82, s{70+i}, s80")
                    a("s_max_u32 s81, s81, s82")
            a("s_mul_i32 s81, s81, 10")
            a("s_add_u32 s81, s81, 800")
            a.label("L_pw")
            a("s_sleep 1")
            a("s_memrealtime s[100:101]")
            a("s_waitcnt lgkmcnt(0)")
            a("s_sub_u32 s100, s100, s80")
            a("s_cmp_lt_u32 s100, s81")
            a("s_cbranch_scc1 L_pw")
            a.label("L_noprobe")
        if o.hold and o.hold[0] == "endA":
            a(f"s_sub_u32 s{S.T0}, s2, {o.hold[2]}")
            a(f"s_cmp_ge_u32 s{S.T0}, {o.hold[3]}")
            a("s_cbranch_scc1 L_nohold")
            a("s_barrier")
            hold("endA")
            a.label("L_nohold")
        endprog()
    a("s_barrier")
    endprog()

    a.label("L_notA")
    if o.only == "AA":
        a("s_endpgm")
    a(f"s_cmp_ge_u32 s2, {NWG}")
    a("s_cbranch_scc1 L_end")
    a(f"s_lshl4_add_u32 s{S.FJ}, s{S.T0}, s{S.T1}")
    a(f"s_sub_u32 s{S.FJ}, s{S.FJ}, 32")
    a(f"s_mul_i32 s{S.T2}, s{S.T0}, 12")
    a(f"s_add_u32 s{S.T2}, s{S.T2}, s{S.T1}")
    a(f"s_sub_u32 s{S.T2}, s{S.T2}, 20")
    a(f"s_cmp_ge_u32 s{S.T0}, 4")
    a(f"s_cselect_b32 s{S.FJ}, s{S.T2}, s{S.FJ}")
    a(f"s_cmp_lg_u32 s{S.T0}, 0")
    a("s_cbranch_scc1 L_F")
    a(f"s_add_u32 s{S.FJ}, s{S.T1}, 96")
    a(f"s_cmp_lt_u32 s{S.T1}, 16")
    a("s_cbranch_scc1 L_F")
    a(f"s_mov_b32 s{S.ISZ}, 1")
    a(f"s_sub_u32 s{S.Z}, s{S.T1}, 16")
    vrow_setup()
    a(f"v_lshlrev_b32 v{VG16}, 4, v0")
    sgn_setup()
    a("s_waitcnt lgkmcnt(0)")
    ws_setup()
    a.srd(S.ROUT, S.POUT, 0x200000)
    addr_p2()
    a(f"s_cmp_eq_u32 s{S.WAVE}, 8")
    a("s_cbranch_scc1 L_zh")
    a(f"s_cmp_ge_u32 s{S.WAVE}, 4")
    a("s_cbranch_scc1 L_z0")
    const_d1()
    a("s_branch L_z1")
    a.label("L_z0")
    if o.atouch:
        a("s_branch L_hi1")
    a.label("L_z0b")
    if o.ztouch:
        touch("L_tz", o.ztouch, 4, 4)
    a.label("L_z1")
    a(f"v_mov_b32 v9, {L_KSL}")
    a("v_mov_b32 v12, 0")
    a("v_mov_b32 v13, 0")
    a("s_barrier")
    a(f"ds_read_b64 v[{VE}:{VTAG}], v9")
    a(f"ds_read_b128 {V(GW,4)}, v{VG16} offset:{L_WV+1024}")
    a("s_waitcnt lgkmcnt(0)")
    a(f"v_readfirstlane_b32 s{S.GKEY}, v{VE}")
    a(f"s_andn2_b32 s{S.IDX}, 2047, s{S.GKEY}")
    a(f"s_and_b32 s{S.T0}, s{S.IDX}, 127")
    a(f"s_cmp_gt_u32 s{S.T0}, 64")
    a(f"s_cselect_b32 s{S.WHICH}, 1, 0")
    a(f"s_and_b32 s{S.T0}, s{S.IDX}, {1024 + 63}")
    a(f"s_cmp_eq_u32 s{S.T0}, 1024")
    a(f"s_cselect_b32 s{S.WHICH}, 1, s{S.WHICH}")
    a(f"s_sub_u32 s{S.T0}, 2048, s{S.IDX}")
    a(f"s_cmp_lg_u32 s{S.WHICH}, 0")
    a(f"s_cselect_b32 s{S.T0}, s{S.T0}, s{S.IDX}")
    a(f"s_cmp_eq_u32 s{S.T0}, 1024")
    a(f"s_cselect_b32 s{S.T0}, 0, s{S.T0}")
    a(f"s_and_b32 s{S.T1C}, s{S.T0}, 127")
    a(f"s_lshr_b32 s{S.HH}, s{S.T0}, 10")
    a(f"s_bfe_u32 s{S.WSEL}, s{S.T0}, 0x30007")
    rows_setup(S.WSEL)
    a(f"s_cmp_ge_u32 s{S.WAVE}, 4")
    a("s_cbranch_scc1 L_z4")
    int_base()
    if o.zisleep0:
        a(f"s_sleep {o.zisleep0}")
    stamp(9)
    int_loads(0)
    int_loads(1)
    const_ga()
    exp_setup()
    addr_ur(S.WSEL)
    m2_addr()
    a("v_lshlrev_b32 v6, 7, v1")
    a(f"v_lshl_add_u32 v15, v2, 4, v6")
    a("s_branch L_zjoin")
    a.label("L_z4")
    a(f"s_cmp_ge_u32 s{S.WAVE}, 6")
    a("s_cbranch_scc1 L_zend2")
    rows_load()
    a(f"s_sub_u32 s{S.T0}, s{S.WAVE}, 4")
    a(f"s_lshl1_add_u32 s{S.T1}, s{S.Z}, s{S.T0}")
    a(f"s_lshl_b32 s{S.T1}, s{S.T1}, 5")
    a("v_and_b32 v6, 7, v0")
    a(f"v_lshl_add_u32 v10, v6, 2, s{S.T1}")
    a(f"s_lshl_b32 s{S.T2}, s{S.IDX}, 10")
    a(f"v_add_u32 v7, s{S.T2}, v10")
    a(f"global_load_dword v35, v7, {PXS}")
    a("v_lshlrev_b32 v10, 1, v10")
    a("v_lshrrev_b32 v7, 3, v0")
    a("v_lshlrev_b32 v7, 8, v7")
    a("v_lshl_add_u32 v11, v6, 4, v7")
    a(f"s_mul_i32 s{S.SI0}, s{S.Z}, {PZ}")
    a(f"s_lshl_b32 s{S.T0}, s{S.T0}, 7")
    a(f"s_add_u32 s{S.SI0}, s{S.SI0}, s{S.T0}")
    a(f"s_add_u32 s{S.SI0}, s{S.SI0}, {WS_PART}")
    a(f"s_add_u32 s{S.SI1}, s{S.SI0}, {(o.pc-1)*PARTC}")
    a(f"s_and_b32 s{S.T0}, s{S.GKEY}, 0xffff0000")
    a(f"s_xor_b32 s{S.T1}, s{S.T0}, 0x80000000")
    a(f"s_xor_b32 s{S.T3}, s{S.T0}, 0xffff0000")
    a(f"s_bitcmp1_b32 s{S.T0}, 31")
    a(f"s_cselect_b32 s{S.T0}, s{S.T1}, s{S.T3}")
    a(f"v_mov_b32 v15, s{S.T0}")
    sigmoid(15, 15)
    rnd(15, 15)
    a("s_waitcnt vmcnt(0)")
    gates(False)
    a(f"s_cmp_lg_u32 s{S.WHICH}, 0")
    a(f"s_cselect_b32 s{S.T2}, s{S.T3}, s{S.T2}")
    a(f"s_cselect_b32 s{S.T0}, s{S.T5}, s{S.T0}")
    a(f"s_cselect_b32 s{S.T4}, s{S.T1}, s{S.T4}")
    a(f"v_xor_b32 v{VTAG}, s{S.IDX}, v{VTAG}")
    a(f"v_mov_b32 v36, s{S.T2}")
    a(f"v_mov_b32 v{CO}, s{S.T0}")
    a(f"v_mov_b32 v{CO+1}, s{S.T4}")
    a("v_lshlrev_b32 v34, 16, v35")
    a(f"v_and_b32 v35, {HIM}, v35")
    if o.psleep0:
        a(f"s_sleep {o.psleep0}")
    hold("pp")
    a(f"v_mov_b32 v9, {L_ZF}")
    a.label("L_tz_start")
    stamp(10)
    if o.psleep:
        a("s_branch L_zp1")
    a.label("L_zp")
    if o.psleep:
        a(f"s_sleep {o.psleep}")
        a.label("L_zp1")
    for i in range(7):
        if i and i % 2 == 0:
            a(f"s_add_u32 s{S.T0}, s{S.SI0}, {2048*i}")
        a(f"buffer_load_dwordx4 {V(40+4*i,4)}, v11, {R4(S.RWS)}, s{S.T0 if i >= 2 else S.SI0} offen offset:{2048*(i&1)} sc1")
    a(f"s_add_u32 s{S.SI0}, s{S.SI0}, {PARTC}")
    a(f"s_min_u32 s{S.SI0}, s{S.SI0}, s{S.SI1}")
    if o.stamps:
        a(f"s_add_u32 s{S.RC}, s{S.RC}, 256")
    spin()
    a("s_cbranch_scc1 L_zp_ok")
    for i in range(7):
        a(f"s_waitcnt vmcnt({6-i})")
        a(f"v_bitop3_b32 v{37 if i == 0 else 38 + (i & 1)}, v{41+4*i}, v{43+4*i}, v{VTAG} bitop3:0x7e")
        if i:
            a(f"v_add_f32 v40, v40, v{40+4*i}")
            a(f"v_add_f32 v42, v42, v{42+4*i}")
        if i and i % 2 == 0:
            a("v_or3_b32 v37, v37, v38, v39")
    a("v_cmp_ne_u32 vcc, 0, v37")
    a.nop(1)
    a("s_cbranch_vccnz L_zp")
    a.label("L_zp_ok")
    a("ds_read_b32 v12, v9")
    a(f"ds_read_b64 v[32:33], v10 offset:{L_XG2}")
    a(f"ds_read_b64 v[16:17], v10 offset:{L_XG2+2048}")
    a("v_lshrrev_b32 v11, 1, v10")
    a(f"s_lshl_b32 s{S.T2}, s{S.IDX}, 10")
    a("s_waitcnt vmcnt(0)")
    stamp(11)
    a(f"v_add_f32_dpp v40, v40, v40 row_ror:8 {DPPM}")
    a(f"v_add_f32_dpp v42, v42, v42 row_ror:8 {DPPM}")
    a.nop(1)
    a.nop(1)
    a("v_permlane16_swap_b32 v40, v42")
    a("v_add_f32 v40, v40, v42")
    a("v_mov_b32 v42, v40")
    a.nop(2)
    a("v_permlane32_swap_b32 v40, v42")
    a("v_add_f32 v40, v40, v42")
    a("v_mov_b32 v42, v40")
    a.nop(2)
    a("v_permlane16_swap_b32 v40, v42")
    a("v_cvt_pk_bf16_f32 v41, v40, v42")
    a("v_lshlrev_b32 v40, 16, v41")
    a(f"v_and_b32 v42, {HIM}, v41")
    a("v_mul_f32 v40, v40, v15")
    a("v_mul_f32 v42, v42, v15")
    a("v_cvt_pk_bf16_f32 v41, v40, v42")
    a("v_lshlrev_b32 v40, 16, v41")
    a(f"v_and_b32 v42, {HIM}, v41")
    a("v_add_f32 v40, v40, v34")
    a("v_add_f32 v42, v42, v35")
    a("v_cvt_pk_bf16_f32 v41, v40, v42")
    a("v_lshlrev_b32 v40, 16, v41")
    a(f"v_and_b32 v42, {HIM}, v41")
    a.label("L_zw")
    a("s_waitcnt lgkmcnt(0)")
    a("v_cmp_eq_u32 vcc, 0, v12")
    a(f"v_mul_f32 v32, v{CO}, v32")
    a(f"v_mul_f32 v33, v{CO}, v33")
    a("s_cbranch_vccz L_zw_ok")
    spin()
    a("s_cbranch_scc1 L_zw_ok")
    a("ds_read_b32 v12, v9")
    a(f"ds_read_b64 v[32:33], v10 offset:{L_XG2}")
    a(f"ds_read_b64 v[16:17], v10 offset:{L_XG2+2048}")
    a("s_branch L_zw")
    a.label("L_zw_ok")
    a(f"v_fmac_f32 v32, v{CO+1}, v16")
    a(f"v_fmac_f32 v33, v{CO+1}, v17")
    a("v_fmac_f32 v32, v40, v36")
    a("v_fmac_f32 v33, v42, v36")
    a("v_cvt_pk_bf16_f32 v32, v32, v33")
    a("s_mov_b64 exec, 0xff")
    a(f"buffer_store_dword v32, v11, {R4(S.ROUT)}, s{S.T2} offen{o.zpol}")
    a("s_mov_b64 exec, -1")
    stamp(13)
    if o.stamps:
        a("s_waitcnt vmcnt(0)")
        stamp(15)
    a("s_barrier")
    endprog()

    a.label("L_zsync")
    a(f"v_mov_b32 v9, {L_ZC}")
    a("v_mov_b32 v6, 1")
    a("s_mov_b64 exec, 1")
    a("ds_add_u32 v9, v6")
    a("s_mov_b64 exec, -1")
    a(f"s_cmp_lg_u32 s{S.WAVE}, 0")
    a("s_cbranch_scc1 L_zend")
    a.label("L_zs")
    a("ds_read_b32 v6, v9")
    spin()
    a("s_waitcnt lgkmcnt(0)")
    a("s_cbranch_scc1 L_zs_ok")
    a("v_cmp_ne_u32 vcc, 4, v6")
    a.nop(1)
    a("s_cbranch_vccnz L_zs")
    a.label("L_zs_ok")
    stamp(12)
    a(f"ds_read_b128 {V(UO,4)}, v{VUR0} offset:{L_U2}")
    a(f"ds_read_b128 {V(UO+4,4)}, v{VUR1} offset:{L_U2}")
    a(f"ds_read_b128 {V(UO+8,4)}, v{VUR0} offset:{L_U2+UB}")
    a(f"ds_read_b128 {V(UO+12,4)}, v{VUR1} offset:{L_U2+UB}")
    for k in range(4):
        a(f"s_waitcnt lgkmcnt({3-k})")
        a(f"{MF} {V(PQ+4*k,4)}, {V(UO+4*k,4)}, {V(M2+4*k,4)}, 0")
    a.nop(3)
    for k in range(4):
        if k == 2:
            a.nop(2)
        a(f"ds_write_b128 v15, {V(PQ+4*k,4)} offset:{L_XG2 + 64*(k&1) + 2048*(k>>1)}")
    a(f"v_mov_b32 v9, {L_ZF}")
    a("s_waitcnt lgkmcnt(0)")
    a("ds_write_b32 v9, v9")
    a("s_waitcnt lgkmcnt(0)")
    stamp(13)
    a.label("L_zend")
    endprog()
    a.label("L_zend2")
    if o.hold and o.hold[0] == "end":
        a("s_barrier")
    hold("end")
    if o.ev:
        lo, n, w, st, med = [int(v) for v in o.ev.split(":")]
        a(f"s_cmp_lg_u32 s2, {248 + o.zx}")
        a("s_cbranch_scc1 L_noev")
        a(f"s_cmp_lg_u32 s{S.WAVE}, 7")
        a("s_cbranch_scc1 L_noev")
        a("s_barrier")
        a.label("L_ev0")
        a("s_sleep 4")
        a("s_memrealtime s[100:101]")
        a("s_waitcnt lgkmcnt(0)")
        a(f"s_sub_u32 s100, s100, s{S.ST}")
        a("s_cmp_lt_u32 s100, 750")
        a("s_cbranch_scc1 L_ev0")
        a("v_lshlrev_b32 v6, 11, v0")
        a(f"v_add_u32 v7, {WS_STAMP + 8*128}, v6")
        a(f"global_load_dword v40, v7, s[{S.PWS}:{S.PWS+1}] sc1")
        a(f"v_add_u32 v7, {WS_STAMP + lo*2048 + w*128 + st*8}, v6")
        for q in range(n // 64):
            a(f"global_load_dword v{44+q}, v7, s[{S.PWS}:{S.PWS+1}] sc1")
            a(f"v_add_u32 v7, {64*2048}, v7")
        a("s_waitcnt vmcnt(0)")
        a(f"v_subrev_u32 v40, s{S.ST}, v40")
        a("v_sub_u32 v40, 1000, v40")
        a("v_mov_b32 v42, v40")
        wave_max_key(40)
        a("v_mov_b32 v41, 0")
        for q in range(n // 64):
            a(f"v_subrev_u32 v{44+q}, s{S.ST}, v{44+q}")
            a(f"v_cmp_gt_u32 vcc, 1000, v{44+q}")
            a.nop(2)
            a(f"v_cndmask_b32 v{44+q}, 0, v{44+q}, vcc")
            a(f"v_max_u32 v41, v41, v{44+q}")
        a("v_mov_b32 v43, v41")
        wave_max_key(41)
        a.nop(2)
        a("v_readlane_b32 s6, v40, 63")
        a("v_readlane_b32 s7, v41, 63")
        a("s_sub_u32 s6, s6, 1000")
        a("s_min_u32 s6, s6, 300")
        a("s_add_u32 s7, s7, s6")
        a("s_mul_i32 s7, s7, 4")
        a("s_add_u32 s7, s7, 900")
        a("s_sub_u32 s7, s7, s6")
        a.label("L_ev1")
        a("s_sleep 1")
        a("s_memrealtime s[100:101]")
        a("s_waitcnt lgkmcnt(0)")
        a(f"s_sub_u32 s100, s100, s{S.ST}")
        a("s_cmp_lt_u32 s100, s7")
        a("s_cbranch_scc1 L_ev1")
        a.label("L_noev")
    endprog()

    a.label("L_zh")
    a(f"v_mov_b32 v9, {L_ZF}")
    a("v_mov_b32 v6, 0")
    a("ds_write2_b32 v9, v6, v6 offset1:1")
    const_d2()
    a(f"s_mov_b32 m0, {L_WV+1024}")
    tag_load()
    a(f"global_load_lds_dwordx4 v{VG16}, s[{S.PGW}:{S.PGW+1}]")
    a("s_waitcnt vmcnt(0)")
    tag_make()
    exp_make()
    poll_setup(WS_KEY + 1024 * RF * CF, RZ, CZ)
    if o.zsleep0:
        a(f"s_sleep {o.zsleep0}")
    stamp(1)
    poll_granules(VG16, 32, sleep=o.zsleep)
    stamp(2)
    wave_max_key(32)
    lds_put(L_KSL, 32, tag=True)
    a("s_barrier")
    a(f"s_lshl_b32 s{S.T0}, s{S.Z}, 2")
    a(f"s_add_u32 s{S.T0}, s{S.T0}, {WS_ALIVE}")
    a("s_mov_b64 exec, 1")
    a(f"buffer_store_dword v{VTAG}, v0, {R4(S.RWS)}, s{S.T0} offen sc1")
    a("s_mov_b64 exec, -1")
    a(f"s_cmp_lg_u32 s{S.Z}, 0")
    a("s_cbranch_scc1 L_zend")
    a("s_mov_b64 exec, 0xffff")
    a("v_lshlrev_b32 v6, 2, v0")
    a(f"s_mov_b32 s{S.T0}, {WS_ALIVE}")
    a("s_waitcnt vmcnt(0)")
    a("s_sleep 24")
    a.label("L_za")
    a(f"buffer_load_dword v7, v6, {R4(S.RWS)}, s{S.T0} offen sc1")
    spin()
    a("s_waitcnt vmcnt(0)")
    a("s_cbranch_scc1 L_za_ok")
    a(f"v_cmp_ne_u32 vcc, v{VTAG}, v7")
    a.nop(1)
    a("s_cbranch_vccnz L_za")
    a.label("L_za_ok")
    a("s_mov_b64 exec, 1")
    a(f"v_add_u32 v9, 1, v{VE}")
    a("s_barrier")
    a(f"buffer_store_dword v9, v6, {R4(S.RWS)}, 0 offen sc1")
    a("s_mov_b64 exec, -1")
    a("s_branch L_zend")

    a.label("L_F")
    if o.only == "A":
        a("s_endpgm")
    WG_, WD_ = 32, 48
    a("v_lshlrev_b32 v5, 4, v0")
    a(f"s_cmp_eq_u32 s{S.WAVE}, 8")
    a("s_cbranch_scc1 L_fh")
    a(f"s_and_b32 s{S.T0}, s{S.FJ}, 3")
    a(f"s_lshr_b32 s{S.T1}, s{S.WAVE}, 1")
    a(f"s_lshl2_add_u32 s{S.L0}, s{S.T0}, s{S.T1}")
    a(f"s_mul_i32 s{S.T2}, s{S.L0}, {32*3584}")
    a(f"s_lshr_b32 s{S.L1}, s{S.FJ}, 2")
    a(f"s_lshl_b32 s{S.T3}, s{S.L1}, 7")
    a(f"s_add_u32 s{S.T2}, s{S.T2}, s{S.T3}")
    a("v_lshrrev_b32 v6, 3, v0")
    a("v_mul_u32_u24 v6, 3584, v6")
    a("v_and_b32 v7, 7, v0")
    a("v_bfe_u32 v8, v0, 4, 1")
    a("v_lshlrev_b32 v8, 2, v8")
    a("v_xor_b32 v4, v7, v8")
    a(f"v_lshl_add_u32 v7, v4, 4, s{S.T2}")
    a("v_add_u32 v3, v6, v7")
    a(f"s_lshl_b32 s{S.T4}, s{S.WAVE}, 12")
    a(f"s_mov_b32 m0, s{S.T4}")
    def w_dma():
        a(f"s_bitcmp1_b32 s{S.WAVE}, 0")
        a("s_waitcnt lgkmcnt(0)")
        a(f"s_cselect_b32 s{S.PWG}, s{S.PWU}, s{S.PWG}")
        a(f"s_cselect_b32 s{S.PWG+1}, s{S.PWU+1}, s{S.PWG+1}")
        if o.fdelay:
            a(f"s_sleep {o.fdelay}")
        for b in range(4):
            if b:
                a(f"s_add_u32 m0, s{S.T4}, {1024*b}")
                a(f"v_add_u32 v3, {8*3584}, v3")
            if o.wthr and b >= o.wthr:
                a(f"s_waitcnt vmcnt({o.wthr - 1})")
            a(f"global_load_lds_dwordx4 v3, s[{S.PWG}:{S.PWG+1}]{o.wpol}")
        ws_setup()
        stamp(1)

    if not o.flate:
        w_dma()
    a("v_bfe_u32 v6, v0, 2, 2")
    a("v_and_b32 v7, 3, v0")
    a("v_lshlrev_b32 v8, 3, v7")
    a("v_lshl_add_u32 v8, v2, 5, v8")
    a("v_and_b32 v9, 2, v6")
    a("v_lshlrev_b32 v9, 5, v9")
    a("v_xor_b32 v9, v9, v8")
    a("v_lshl_add_u32 v9, v6, 7, v9")
    a(f"v_add_u32 v9, s{S.T4}, v9")
    a(f"s_lshl_b32 s{S.T5}, s{S.WAVE}, 8")
    a("v_lshlrev_b32 v11, 2, v0")
    a(f"v_add_u32 v11, {L_RED}, v11")
    a(f"v_add_u32 v12, s{S.T5}, v11")
    a(f"s_lshl1_add_u32 s{S.T1}, s{S.L1}, s{S.T1}")
    a(f"s_lshl_b32 s{S.T2}, s{S.T1}, 15")
    a(f"s_and_b32 s{S.T3}, s{S.WAVE}, 1")
    a(f"s_lshl1_add_u32 s{S.T3}, s{S.T0}, s{S.T3}")
    a(f"s_lshl_b32 s{S.T5}, s{S.T3}, 7")
    a(f"s_add_u32 s{S.T2}, s{S.T2}, s{S.T5}")
    a("v_lshrrev_b32 v6, 3, v0")
    a(f"v_lshl_add_u32 v6, v6, 10, s{S.T2}")
    a("v_lshl_add_u32 v4, v4, 4, v6")
    a("v_lshrrev_b32 v6, 5, v0")
    a(f"v_mul_u32_u24 v13, {PZ}, v6")
    a("v_and_b32 v6, 31, v0")
    a("v_lshl_add_u32 v13, v6, 3, v13")
    a(f"s_mul_i32 s{S.T2}, s{S.T3}, {2*PZ}")
    a(f"s_lshl_b32 s{S.T1}, s{S.T1}, 8")
    a(f"s_add_u32 s{S.T2}, s{S.T2}, s{S.T1}")
    a(f"s_add_u32 s{S.T2}, s{S.T2}, {WS_PART}")
    a(f"s_lshl_b32 s{S.L0}, s{S.L0}, 6")
    a(f"s_lshl_b32 s{S.L1}, s{S.L1}, 12")
    a(f"s_add_u32 s{S.PO}, s{S.L1}, {WS_XCH}")
    a(f"s_add_u32 s{S.POL}, s{S.PO}, {(o.xc-1)*XCHC}")
    a(f"s_lshl_b32 s{S.T1}, s{S.T0}, 10")
    a(f"s_add_u32 s{S.L1}, s{S.PO}, s{S.T1}")
    a(f"v_mov_b32 v14, {L_FKEY}")
    a(f"s_lshr_b32 s{S.T1}, s{S.WAVE}, 1")
    a(f"s_lshl_b32 s{S.T1}, s{S.T1}, 9")
    a(f"v_lshl_add_u32 v15, v6, 4, s{S.T1}")
    a("v_lshrrev_b32 v6, 5, v0")
    a("v_lshl_add_u32 v15, v6, 10, v15")
    a(f"s_mov_b32 s{S.PO0}, s{S.PO}")
    a(f"s_mov_b32 s{S.L10}, s{S.L1}")
    a(f"s_mov_b32 s{S.T20}, s{S.T2}")
    a(f"s_mov_b32 s{S.FIN}, 0")

    if o.flate:
        w_dma()

    def wd_dma():
        l = a.L("nowd")
        a(f"s_cmp_ge_u32 s{S.WAVE}, 4")
        a(f"s_cbranch_scc1 {l}")
        for b in range(4):
            a(f"s_add_u32 m0, s{S.T4}, {L_WD + 1024*b}")
            if b:
                a("v_add_u32 v4, 0x2000, v4")
            else:
                a.nop(1)
            a(f"global_load_lds_dwordx4 v4, s[{S.PWD}:{S.PWD+1}]{o.wdpol}")
        a.label(l)

    if o.wdpos == 0:
        wd_dma()
    if o.wdpos == 4:
        a("s_barrier")
        a(f"s_cmp_ge_u32 s{S.WAVE}, 4")
        a("s_cbranch_scc1 L_nowd4")
        for b in range(4):
            a(f"v_add_u32 v6, {0x2000*b}, v4")
            a(f"global_load_dwordx4 {V(80+4*b,4)}, v6, s[{S.PWD}:{S.PWD+1}]")
        a("s_waitcnt vmcnt(4)")
        a("s_branch L_nowd5")
        a.label("L_nowd4")
        a("s_waitcnt vmcnt(0)")
        a.label("L_nowd5")
    else:
        a("s_waitcnt vmcnt(0)")
    stamp(2)
    if o.fw0:
        a("s_barrier")
    if o.wdpos == 1:
        wd_dma()
    if o.xpre:
        for i in range(2):
            a(f"buffer_load_dwordx4 {V(64+4*i,4)}, v15, {R4(S.RWS)}, s{S.PO} offen offset:{2048*i} sc1")
    for k in range(8):
        a(f"ds_read_b64_tr_b16 {V(WG_+2*k,2)}, v9 offset:{L_W + k*512}")
    if o.ftouch:
        touch("L_tf", o.ftouch, 0, 8)
    a("s_waitcnt lgkmcnt(0)")
    a("s_barrier")
    a.label("L_tf_start")
    a("ds_read_b64 v[26:27], v14")
    a("s_waitcnt lgkmcnt(0)")
    a(f"v_readfirstlane_b32 s{S.FKEY}, v26")
    a.label("L_redo")
    a(f"s_andn2_b32 s{S.T0}, 2047, s{S.FKEY}")
    a(f"s_lshl_b32 s{S.T1}, s{S.T0}, 10")
    a(f"s_add_u32 s{S.T1}, s{S.T1}, s{S.L0}")
    a(f"s_load_dwordx16 s[{S.XS}:{S.XS+15}], {PXS}, s{S.T1}")
    stamp(5)
    a(f"v_xor_b32 v{VTAG}, s{S.T0}, v27")
    a(f"v_xor_b32 v29, s{S.T0}, v27")
    for r in (16, 17, 24, 25):
        a(f"v_mov_b32 v{r}, 0")
    a(f"s_mov_b32 s{S.PO}, s{S.PO0}")
    a(f"s_mov_b32 s{S.L1}, s{S.L10}")
    a(f"s_mov_b32 s{S.T2}, s{S.T20}")
    a(f"s_mov_b32 s{S.KM}, 0")
    a("s_waitcnt lgkmcnt(0)")
    for i in range(16):
        a(f"v_dot2c_f32_bf16 v{16+(i&1)}, s{S.XS+i}, v{WG_+i}")
    stamp(6)
    a.nop(3)
    a("v_add_f32 v16, v16, v17")
    a("ds_write_b32 v12, v16")
    a("s_waitcnt lgkmcnt(0)")
    a("s_barrier")
    a(f"s_lshl_b32 s{S.T0}, s{S.WAVE}, 4")
    a(f"s_lshl_b64 s[{S.EX}:{S.EX+1}], 0xffff, s{S.T0}")
    for i, (p, q) in enumerate(((0, 2), (4, 6), (1, 3), (5, 7))):
        a(f"ds_read2st64_b32 v[{16+2*i}:{17+2*i}], v11 offset0:{p} offset1:{q}")
    a("s_waitcnt lgkmcnt(2)")
    a("v_add_f32 v16, v16, v17")
    a("v_add_f32 v18, v18, v19")
    a("s_waitcnt lgkmcnt(0)")
    a("v_add_f32 v20, v20, v21")
    a("v_add_f32 v22, v22, v23")
    a("v_add_f32 v28, v16, v18")
    a(f"s_mov_b64 exec, s[{S.EX}:{S.EX+1}]")
    a("v_add_f32 v30, v20, v22")
    a(f"s_cmp_ge_u32 s{S.WAVE}, 4")
    a("s_cbranch_scc1 L_f5")
    a(f"buffer_store_dwordx4 v[28:31], v5, {R4(S.RWS)}, s{S.L1} offen{'' if o.xl2 else ' sc1'}")
    a("s_mov_b64 exec, -1")
    stamp(7)
    a("s_waitcnt vmcnt(1)")
    if o.wdpos == 4:
        a(f"v_add_u32 v6, s{S.T4}, v5")
        for b in range(4):
            a(f"ds_write_b128 v6, {V(80+4*b,4)} offset:{L_WD + 1024*b}")
        a("s_waitcnt lgkmcnt(0)")
    for k in range(8):
        a(f"ds_read_b64_tr_b16 {V(WD_+2*k,2)}, v9 offset:{L_WD + k*512}")
    if o.xsleep0:
        a(f"s_sleep {o.xsleep0}")
    stamp(8)
    a.label("L_fx")
    for i in range(2):
        a(f"buffer_load_dwordx4 {V(64+4*i,4)}, v15, {R4(S.RWS)}, s{S.PO} offen offset:{2048*i} sc1")
    if o.xl2:
        a(f"s_add_u32 s{S.KM}, s{S.KM}, 1")
        a(f"s_cmp_ge_u32 s{S.KM}, {o.xl2}")
        a(f"s_cselect_b32 s{S.T0}, {XCHC}, 0")
        a(f"s_add_u32 s{S.PO}, s{S.PO}, s{S.T0}")
    else:
        a(f"s_add_u32 s{S.PO}, s{S.PO}, {XCHC}")
    a(f"s_min_u32 s{S.PO}, s{S.PO}, s{S.POL}")
    if o.stamps:
        a(f"s_add_u32 s{S.RC}, s{S.RC}, 1")
    spin()
    a("s_cbranch_scc1 L_fx_ok")
    a("s_waitcnt vmcnt(1)")
    a(f"v_bitop3_b32 v20, v65, v67, v{VTAG} bitop3:0x7e")
    a("s_waitcnt vmcnt(0)")
    a("v_add_f32 v16, v64, v68")
    a("v_add_f32 v18, v66, v70")
    a(f"v_bitop3_b32 v21, v69, v71, v{VTAG} bitop3:0x7e")
    a("v_or_b32 v20, v20, v21")
    a("v_cmp_ne_u32 vcc, 0, v20")
    a("v_permlane32_swap_b32 v16, v18")
    a("s_cbranch_vccnz L_fxr")
    a.label("L_fx_ok")
    stamp(9)
    a("v_add_f32 v16, v16, v18")
    rnd(16, 16)
    a("v_mov_b32 v18, v16")
    sigmoid(17, 16)
    a("v_permlane32_swap_b32 v16, v18")
    a("v_mul_f32 v17, v17, v16")
    rnd(17, 17)
    a("v_mul_f32 v17, v17, v18")
    a.nop(2)
    a(f"v_mov_b32_dpp v18, v17 quad_perm:[1,0,3,2] {DPPM}")
    a("v_cvt_pk_bf16_f32 v17, v17, v18")
    a.nop(1)
    for i in range(16):
        a(f"v_readlane_b32 s{S.XS+i}, v17, {2*i}")
    a("s_waitcnt lgkmcnt(0)")
    for i in range(16):
        a(f"v_dot2c_f32_bf16 v{24+(i&1)}, s{S.XS+i}, v{WD_+i}")
    a.nop(3)
    a("v_add_f32 v30, v24, v25")
    for c in range(o.pc):
        if c:
            a(f"s_add_u32 s{S.T2}, s{S.T2}, {PARTC}")
        a(f"buffer_store_dwordx2 v[30:31], v13, {R4(S.RWS)}, s{S.T2} offen sc1")
    stamp(10)
    a.label("L_fend")
    a(f"s_cmp_lg_u32 s{S.FIN}, 0")
    a("s_cbranch_scc1 L_fexit")
    a("s_barrier")
    a("ds_read_b32 v26, v14 offset:8")
    a(f"s_mov_b32 s{S.FIN}, 1")
    a("s_waitcnt lgkmcnt(0)")
    a(f"v_readfirstlane_b32 s{S.T0}, v26")
    a(f"s_cmp_eq_u32 s{S.T0}, s{S.FKEY}")
    a(f"s_mov_b32 s{S.FKEY}, s{S.T0}")
    if o.stamps:
        a(f"s_cselect_b32 s{S.T1}, 0, 64")
        a(f"s_add_u32 s{S.RC}, s{S.RC}, s{S.T1}")
        a(f"s_cmp_eq_u32 s{S.T1}, 0")
    a("s_cbranch_scc0 L_redo")
    a.label("L_fexit")
    endprog()
    a.label("L_f5")
    for c in range(1, o.xc):
        a(f"s_add_u32 s{S.L1}, s{S.L1}, {XCHC}")
        a(f"buffer_store_dwordx4 v[28:31], v5, {R4(S.RWS)}, s{S.L1} offen sc1")
    a("s_mov_b64 exec, -1")
    a("s_branch L_fend")
    a.label("L_fxr")
    a("ds_read_b32 v26, v14 offset:8")
    a("s_waitcnt lgkmcnt(0)")
    a(f"v_readfirstlane_b32 s{S.T0}, v26")
    a(f"s_cmp_eq_u32 s{S.T0}, 0")
    a("s_cbranch_scc1 L_fx")
    a(f"s_cmp_eq_u32 s{S.T0}, s{S.FKEY}")
    a("s_cbranch_scc1 L_fx")
    a("s_branch L_fend")

    a.label("L_fh")
    a("s_waitcnt lgkmcnt(0)")
    if o.fesleep:
        a(f"s_sleep {o.fesleep}")
    tag_load()
    ws_setup()
    a(f"v_mov_b32 v14, {L_FKEY}")
    a("v_mov_b32 v6, 0")
    a("ds_write_b32 v14, v6 offset:8")
    if o.spec:
        poll_setup(WS_KEY + 1024 * (RF * CF + RZ * CZ + R2 * C2), 8, 1)
        a(f"s_sleep {o.spec}")
        a("s_waitcnt vmcnt(0)")
        tag_make()
        stamp(1)
        a(f"buffer_load_dwordx4 v[20:23], v5, {R4(S.RWS)}, s{S.PO} offen sc1")
        poll_setup(WS_KEY, RF, CF)
        a("s_waitcnt vmcnt(0)")
        stamp(2)
        a(f"v_cmp_ne_u32 vcc, v{VTAG}, v21")
        a(f"v_cmp_ne_u32 s[{S.EX}:{S.EX+1}], v{VTAG}, v23")
        a("s_mov_b64 exec, vcc")
        a("v_mov_b32 v20, 0")
        a(f"s_mov_b64 exec, s[{S.EX}:{S.EX+1}]")
        a("v_mov_b32 v22, 0")
        a("s_mov_b64 exec, -1")
        a(f"s_or_b64 s[{S.EY}:{S.EY+1}], vcc, s[{S.EX}:{S.EX+1}]")
        wave_max_key(20)
        lds_put(L_FKEY, 20, tag=True)
        a("s_barrier")
        a(f"s_cmp_eq_u64 s[{S.EY}:{S.EY+1}], 0")
        a("s_cbranch_scc1 L_fh2")
        if o.fsleep0:
            a(f"s_sleep {o.fsleep0}")
        stamp(3)
        poll_granules(5, 20, sleep=o.fsleep)
        stamp(4)
        wave_max_key(20)
        a.label("L_fh2")
        lds_put(L_FKEY + 8, 20)
    else:
        poll_setup(WS_KEY, RF, CF)
        if o.fsleep0:
            a(f"s_sleep {o.fsleep0}")
        a("s_waitcnt vmcnt(0)")
        tag_make()
        stamp(3)
        poll_granules(5, 20, sleep=o.fsleep, bar=o.wdpos == 4)
        stamp(4)
        wave_max_key(20)
        lds_put(L_FKEY, 20, tag=True)
        a("s_barrier")
        lds_put(L_FKEY + 8, 20)
    a("s_barrier")
    endprog()
    a.label("L_end")
    a("s_endpgm")
    return name


def main():
    ap = argparse.ArgumentParser()
    ap.add_argument("-o", required=True)
    for k, d in dict(stamps=0, pc=1, xc=2, zsleep=8, zsleep0=32, psleep=0, psleep0=20, rsleep=3, ackwait=0, hipre=0, tlate=1,
                     mode=0, k2ack=1, k2sleep0=6, zk2sleep0=0, k2sleep=5, fbar=0, cpf=0, cpf0=1, zx=0, htouch=0, probe=-1, wsoff=0, flate=1, b1a=1, skew=0, gate=8, lds=0, nsgpr=72, prio=1, stag=2, spec=0, b0=2, wthr=0, xpre=0, atouch=10, ftouch=8, xl2=8, npre=3, gfirst=0, isleep0=0, zisleep0=16, b3=1, ztouch=8, zstep=128, touch=0, wdpos=0, wpf=2, fesleep=0, fw0=0, xack=0, fdelay=0, xsleep0=3, fsleep0=46, fsleep=4, spin=17).items():
        ap.add_argument("--" + k, type=int, default=d)
    for k in ("wpol", "wdpol", "xpol", "outpol", "zpol", "only"):
        ap.add_argument("--" + k, default="nt" if k == "outpol" else "")
    ap.add_argument("--mf", default="8,2")
    ap.add_argument("--mz", default="1,3")
    ap.add_argument("--m2", default="8,2")
    ap.add_argument("--hold", default="")
    ap.add_argument("--ev", default="")
    o = ap.parse_args()
    if o.hold:
        o.hold = o.hold.split(":")
    for k in ("mf", "mz", "m2"):
        setattr(o, k, [int(v) for v in getattr(o, k).split(",")])
    for k in ("wpol", "wdpol", "xpol", "outpol", "zpol"):
        setattr(o, k, (" " + getattr(o, k)) if getattr(o, k) not in ("", "def") else "")
    a = Asm()
    name = gen(a, o)
    reg = []
    if o.touch:
        reg.append(("L_ta_start", "L_ta_end", "L_ta", "L_taback", o.touch))
    if o.htouch:
        reg.append(("L_ta_end", "L_zjoin", "L_th", "L_thback", o.htouch))
    if o.atouch:
        reg.append(("L_zjoin", "L_tb_end", "L_tb", "L_tbback", o.atouch))
    if o.ztouch:
        reg.append(("L_tz_start", "L_zend", "L_tz", "L_tzback", o.ztouch))
    if o.ftouch:
        reg.append(("L_tf_start", "L_fend", "L_tf", "L_tfback", o.ftouch))
    if reg:
        insert_stubs(a, reg, step=o.zstep)
    finish(a, name, NVGPR, 102 if (o.stamps or o.hold or o.probe >= 0) else o.nsgpr, NWG, 576, o.lds or LDS_BYTES, o.o)


main()
```

```python
import argparse
from lib import *

NA, NF, NZ = 128, 112, 16
NWG = NA + NF + NZ
WS_E = 0
WS_ALIVE = 4096
WS_KEY = 64 << 10
WS_KEY2 = 128 << 10
WS_XCH = 192 << 10
XCHC = 28 * 4096
WS_PART = 704 << 10
PZ = 56 * 256
PARTC = NZ * PZ
WS_INT = 2 << 20
CS = 32768 + 256
WS_STAMP = 8 << 20
WS_BYTES = 16 << 20
L_TILE = 0
L_U2 = 16384
L_CT = L_U2
UB = 17 * 64
L_MISC = L_U2 + 16 * UB
L_KSL = L_MISC
L_GKEY = L_MISC + 64
L_ZC = L_MISC + 76
L_ZF = L_MISC + 72
L_EXP = L_MISC + 128
L_DUMP = L_MISC + 192
L_XG2 = L_DUMP + 4 * UB + 256
L_M2 = L_XG2 + 4096
L_WV = L_M2 + 4096
L_XT = L_WV + 2048
L_W = 0
L_WD = 32768
L_RED = L_WD + 16384
L_FKEY = L_RED + 2048
LDS_BYTES = 84 * 1024
MF = "v_mfma_f32_16x16x32_bf16"
LOG2E = 0x3fb8aa3b
DPPM = "row_mask:0xf bank_mask:0xf"
HIM = "0xffff0000"
NVGPR = 168


class S:
    WAVE = 3
    PX = 4
    T0, T1, T2, T3, T4, T5 = 6, 7, 8, 9, 10, 11
    EX = 12
    EY = 14
    PWR, PWG, PWU, PWD, PGW, POUT, PDBG, PWS = 16, 18, 20, 22, 24, 26, 28, 30
    L0, L1, SPT, PIE = 32, 33, 34, 35
    RWS, ROUT = 36, 40
    XS = 44
    GKEY, WSEL, WHICH, Z = 44, 45, 46, 47
    SI0, SI1, ID8, BLK = 48, 49, 50, 51
    IDX, ISZ, TC = 54, 55, 53
    SO = 44
    T1C, HH, TD, TM = 56, 57, 58, 59
    FJ, PO, POL, RC, KM, SPIN = 60, 61, 62, 63, 64, 65
    PO0, L10, T20, FKEY, FIN = 40, 41, 42, 43, 35
    ST = 68


def gen(a, o):
    global WS_KEY, WS_XCH, WS_PART, WS_INT, WS_ALIVE, WS_BYTES
    WS_KEY += o.wsoff << 20
    WS_XCH += o.wsoff << 20
    WS_PART += o.wsoff << 20
    WS_INT += o.wsoff << 20
    WS_ALIVE += o.wsoff << 20
    WS_BYTES = max(WS_BYTES, (o.wsoff + 8) << 20)
    name = NAME + "_kernel"
    kernel_head(a, name)
    VE, VTAG = 30, 31
    PXS = f"s[{S.PX}:{S.PX+1}]"

    def stamp(i):
        if o.stamps:
            a(f"s_memrealtime s[{S.ST+2*i}:{S.ST+2*i+1}]")

    def hold(cp):
        if o.hold and o.hold[0] == cp:
            l = a.L("hold")
            a.label(l)
            a("s_sleep 1")
            a("s_memrealtime s[100:101]")
            a("s_waitcnt lgkmcnt(0)")
            a("s_sub_u32 s100, s100, s66")
            a(f"s_cmp_lt_u32 s100, {o.hold[1]}")
            a(f"s_cbranch_scc1 {l}")

    def touch(pre, n, first, step, back=None, tail=None):
        a("s_mov_b64 exec, 0")
        a(f"s_sub_u32 s{S.TC}, s{S.WAVE}, {first + step}")
        a.label(f"{pre}back")
        a(f"s_add_u32 s{S.TC}, s{S.TC}, {step}")
        for k in range(n):
            a(f"s_cmp_eq_u32 s{S.TC}, {k}")
            a(f"s_cbranch_scc1 {pre}{k}")
        a("s_mov_b64 exec, -1")

    def endprog():
        if o.stamps:
            a("s_waitcnt lgkmcnt(0)")
            a(f"s_add_u32 s{S.ST+28}, s{S.RC}, s{S.ST+30}")
            for i in range(16):
                a(f"v_writelane_b32 v166, s{S.ST+2*i}, {i}")
            a("s_mov_b64 exec, 0xffff")
            a(f"s_lshl4_add_u32 s{S.T0}, s2, s{S.WAVE}")
            a(f"s_lshl_b32 s{S.T0}, s{S.T0}, 7")
            a(f"s_add_u32 s{S.T0}, s{S.T0}, {WS_STAMP}")
            a(f"v_lshl_add_u32 v165, v0, 3, s{S.T0}")
            a("v_mov_b32 v167, 0")
            a(f"global_store_dwordx2 v165, v[166:167], s[{S.PWS}:{S.PWS+1}]" + (" sc1" if o.ev else ""))
        a("s_endpgm")

    def spin():
        a(f"s_add_u32 s{S.SPIN}, s{S.SPIN}, 1")
        a(f"s_lshr_b32 s{S.SPT}, s{S.SPIN}, {o.spin}")

    def poll_setup(base, R, C):
        a(f"s_and_b32 s{S.PO}, s2, {R-1}")
        a(f"s_mul_i32 s{S.PO}, s{S.PO}, {1024*C}")
        a(f"s_add_u32 s{S.PO}, s{S.PO}, {base}")
        a(f"s_add_u32 s{S.POL}, s{S.PO}, {1024*(C-1)}")

    def set_exec(n):
        if n >= 64:
            a("s_mov_b64 exec, -1")
        elif n <= 31:
            a(f"s_mov_b64 exec, {(1 << n) - 1:#x}")
        else:
            a("s_mov_b32 exec_lo, -1")
            a(f"s_mov_b32 exec_hi, {(1 << (n - 32)) - 1:#x}")

    RS = 8 if o.spec else 0
    RF, CF = o.mf
    RZ, CZ = o.mz
    R2, C2 = o.m2
    assert RF * CF + RZ * CZ + R2 * C2 + RS <= 64

    def poll_granules(vaddr, vd, sleep=0, step=1024, bar=False):
        l = a.L("poll")
        if sleep:
            a(f"s_branch {l}_1")
        a.label(l)
        if sleep:
            a(f"s_sleep {sleep}")
            a.label(f"{l}_1")
        a(f"buffer_load_dwordx4 {V(vd,4)}, v{vaddr}, {R4(S.RWS)}, s{S.PO} offen sc1")
        a(f"s_add_u32 s{S.PO}, s{S.PO}, {step}")
        a(f"s_min_u32 s{S.PO}, s{S.PO}, s{S.POL}")
        if bar:
            a(f"s_cmp_lg_u32 s{S.SPIN}, 0")
            a(f"s_cbranch_scc1 {l}_2")
            a("s_barrier")
            a.label(f"{l}_2")
        if o.stamps:
            a(f"s_add_u32 s{S.RC}, s{S.RC}, 1")
        spin()
        a("s_waitcnt vmcnt(0)")
        a(f"s_cbranch_scc1 {l}_ok")
        a(f"v_cmp_ne_u32 vcc, v{VTAG}, v{vd+1}")
        a(f"v_cmp_ne_u32 s[{S.EX}:{S.EX+1}], v{VTAG}, v{vd+3}")
        a(f"s_or_b64 vcc, vcc, s[{S.EX}:{S.EX+1}]")
        a(f"s_cbranch_vccnz {l}")
        a.label(f"{l}_ok")

    def wave_max_key(vd):
        a(f"v_max_u32 v{vd}, v{vd}, v{vd+2}")
        for r in ("row_ror:8", "row_ror:4", "row_ror:2", "row_ror:1"):
            a.nop(2)
            a(f"v_max_u32_dpp v{vd}, v{vd}, v{vd} {r} {DPPM}")
        a.nop(2)
        a(f"v_max_u32_dpp v{vd}, v{vd}, v{vd} row_bcast:15 row_mask:0xa bank_mask:0xf")
        a.nop(2)
        a(f"v_max_u32_dpp v{vd}, v{vd}, v{vd} row_bcast:31 row_mask:0xc bank_mask:0xf")

    def lds_put(addr, v, tag=False):
        a(f"v_mov_b32 v9, {addr}")
        a("s_mov_b32 exec_lo, 0")
        a("s_brev_b32 exec_hi, 1")
        if tag:
            a(f"ds_write2_b32 v9, v{v}, v{VTAG} offset1:1")
        else:
            a(f"ds_write_b32 v9, v{v}")
        a("s_mov_b64 exec, -1")
        a("s_waitcnt lgkmcnt(0)")

    def sigmoid(d, s):
        a(f"v_mul_f32 v{d}, {LOG2E | 0x80000000:#x}, v{s}")
        a(f"v_exp_f32 v{d}, v{d}")
        a.nop(1)
        a(f"v_add_f32 v{d}, 1.0, v{d}")
        a(f"v_rcp_f32 v{d}, v{d}")
        a.nop(1)

    def rnd(d, s):
        a(f"v_cvt_pk_bf16_f32 v{d}, v{s}, v{s}")
        a(f"v_and_b32 v{d}, {HIM}, v{d}")

    def ws_setup():
        a.srd(S.RWS, S.PWS, WS_BYTES)
        a(f"s_mov_b32 s{S.SPIN}, 0")

    def tag_load():
        a(f"v_mov_b32 v{VTAG}, 0")
        a(f"global_load_dword v{VE}, v{VTAG}, s[{S.PWS}:{S.PWS+1}]")
        a(f"s_mov_b32 s{S.KM}, 0x9E3779B1")

    def tag_make():
        a(f"v_mul_lo_u32 v{VTAG}, v{VE}, s{S.KM}")
        a(f"v_add_u32 v{VTAG}, 0x7F4A7C15, v{VTAG}")

    a(f"s_load_dwordx2 s[{S.PX}:{S.PX+1}], s[0:1], {KA_X}")
    a(f"s_load_dwordx16 s[16:31], s[0:1], {KA_WR}")
    if o.cpf0:
        a(f"s_cmp_ge_u32 s2, {8*o.cpf0}")
        a("s_cbranch_scc1 L_nocpf0")
        a(f"s_getpc_b64 s[{S.EX}:{S.EX+1}]")
        a.label("L_pc0")
        a("v_lshlrev_b32 v6, 7, v0")
        a(f"v_min_u32 v6, L_end - L_pc0, v6")
        a(f"v_mov_b32 v13, s{S.EX+1}")
        a(f"v_add_co_u32 v12, vcc, s{S.EX}, v6")
        a.nop(2)
        a("v_addc_co_u32 v13, vcc, 0, v13, vcc")
        a("global_load_dword v164, v[12:13], off")
        a.label("L_nocpf0")
    if o.stamps:
        for i in range(1, 16):
            a(f"s_mov_b32 s{S.ST+2*i}, 0")
        a(f"s_mov_b32 s{S.RC}, 0")
    stamp(0)
    if o.hold or o.probe >= 0:
        a("s_memrealtime s[66:67]")
    if o.skew:
        a("s_and_b32 s6, s2, 7")
        a("s_cmp_lg_u32 s6, 5")
        a("s_cbranch_scc1 L_noskew")
        a(f"s_sleep {o.skew}")
        a.label("L_noskew")
    a("v_lshrrev_b32 v1, 6, v0")
    a("v_and_b32 v0, 63, v0")
    a(f"v_readfirstlane_b32 s{S.WAVE}, v1")
    a("v_and_b32 v1, 15, v0")
    a("v_lshrrev_b32 v2, 4, v0")
    a(f"s_and_b32 s{S.T0}, s2, 7")
    a(f"s_sub_u32 s{S.WAVE}, s{S.WAVE}, 1")
    a(f"s_min_u32 s{S.WAVE}, s{S.WAVE}, 8")
    a(f"s_lshr_b32 s{S.T1}, s2, 3")
    a(f"s_cmp_ge_u32 s2, {NA}")
    a("s_cbranch_scc1 L_notA")
    if o.only == "F":
        a("s_endpgm")

    VROW, VG16, VSGN, VTR, VST = 3, 5, 8, 10, 11
    VLD, VUW, VUX, VUR0, VUR1 = 10, 11, 28, 29, 30
    XR, WR, GW, CO = 16, 24, 24, 24
    CM, AOP, ACC = 32, 96, 112
    LD, DA0, DA1, TP, X16, PK = 32, 64, 32, 80, 96, 48
    M1, GA, XG = 100, 148, 152
    Cc, Ss = 64, 68
    UO, PQ, M2 = 32, 48, 64

    def rows_setup(wreg):
        a(f"s_lshl3_add_u32 s{S.T5}, s{S.HH}, s{wreg}")
        a(f"s_lshl_b32 s{S.T5}, s{S.T5}, 7")
        a(f"s_add_u32 s{S.TD}, s{S.T5}, s{S.T1C}")
        a(f"s_sub_u32 s{S.TM}, 2048, s{S.TD}")
        a(f"s_cmp_eq_u32 s{S.TD}, 0")
        a(f"s_cselect_b32 s{S.TM}, 1024, s{S.TM}")
        a(f"s_lshl_b32 s{S.T4}, s{S.TD}, 10")
        a(f"s_lshl_b32 s{S.T5}, s{S.TM}, 10")
        a(f"v_add_u32 v6, s{S.T4}, v{VG16}")
        a(f"v_add_u32 v7, s{S.T5}, v{VG16}")

    def vrow_setup():
        a("v_and_b32 v6, 1, v2")
        a("v_lshlrev_b32 v6, 5, v6")
        a("v_lshl_add_u32 v6, v1, 6, v6")
        a("v_lshrrev_b32 v7, 1, v2")
        a(f"v_lshl_add_u32 v{VROW}, v7, 4, v6")

    def rows_load():
        a(f"global_load_dwordx4 {V(XR,4)}, v6, {PXS}{o.xpol}")
        a(f"global_load_dwordx4 {V(XR+4,4)}, v7, {PXS}{o.xpol}")

    def sgn_setup():
        a(f"v_lshlrev_b32 v{VSGN}, 31, v1")
        a(f"v_lshrrev_b32 v9, 16, v{VSGN}")
        a(f"v_or_b32 v{VSGN}, v{VSGN}, v9")

    def sgn_setup2():
        a(f"v_lshlrev_b32 v{VSGN}, 31, v1")
        a(f"v_lshrrev_b32 v14, 16, v{VSGN}")
        a(f"v_or_b32 v{VSGN}, v{VSGN}, v14")

    def tile_ids():
        a(f"s_bitcmp1_b32 s{S.T1}, 3")
        a(f"s_cselect_b32 s{S.T2}, s{S.T3}, s{S.T2}")
        a(f"s_and_b32 s{S.T3}, s{S.T1}, 7")
        a(f"s_lshl3_add_u32 s{S.BLK}, s{S.T2}, s{S.T3}")
        a(f"s_lshl_b32 s{S.PIE}, s{S.T2}, 5")
        a(f"s_add_u32 s{S.PIE}, s{S.PIE}, s{S.T3}")
        a(f"s_lshl_b32 s{S.PIE}, s{S.PIE}, 6")

    def vst_setup():
        a(f"v_mul_u32_u24 v{VST}, {CS}, v1")
        a(f"v_lshl_add_u32 v{VST}, v2, 4, v{VST}")

    def const_d2():
        R = 40
        a("v_lshlrev_b32 v6, 2, v2")
        a("v_cvt_f32_u32 v7, v1")
        a("v_cvt_f32_u32 v6, v6")
        a("v_mul_f32 v7, 0x3d800000, v7")
        for hf in range(2):
            if hf:
                a("v_add_f32 v7, 0x3d800000, v7")
            a("v_mul_f32 v9, v6, v7")
            for jj in range(4):
                a(f"v_cos_f32 v{Cc+jj}, v9")
                a(f"v_sin_f32 v{Ss+jj}, v9")
                if jj < 3:
                    a("v_add_f32 v9, v9, v7")
            a.nop(1)
            for jj in range(4):
                if hf == 0:
                    a(f"v_cvt_pk_bf16_f32 v{R+jj}, v{Cc+jj}, v{Ss+jj}")
                    a(f"v_cvt_pk_bf16_f32 v{R+8+jj}, -v{Ss+jj}, v{Cc+jj}")
                else:
                    a(f"v_cvt_pk_bf16_f32 v{R+4+jj}, v{Cc+jj}, -v{Ss+jj}")
                    a(f"v_cvt_pk_bf16_f32 v{R+12+jj}, -v{Ss+jj}, -v{Cc+jj}")
        for k in range(4):
            a(f"ds_write_b128 v{VG16}, {V(R+4*k,4)} offset:{L_M2 + 1024*k}")

    a(f"s_add_u32 s{S.T2}, s{S.T0}, 1")
    a(f"s_sub_u32 s{S.T3}, 15, s{S.T0}")
    a(f"s_cmp_eq_u32 s{S.WAVE}, 8")
    a("s_cbranch_scc1 L_ah")
    a(f"s_and_b32 s{S.HH}, s{S.T1}, 1")
    a(f"s_bitcmp1_b32 s{S.T1}, 1")
    a(f"s_cselect_b32 s{S.T4}, s{S.T3}, s{S.T2}")
    a(f"s_lshr_b32 s{S.T5}, s{S.T1}, 2")
    a(f"s_lshl4_add_u32 s{S.T1C}, s{S.T5}, s{S.T4}")
    a(f"v_lshlrev_b32 v{VG16}, 4, v0")
    a(f"v_mov_b32 v{VROW}, 0")
    a(f"s_cmp_lg_u32 s{S.T0}, 7")
    a("s_cbranch_scc1 L_k7")
    a(f"s_lshr_b32 s{S.T5}, s{S.T1}, 1")
    a(f"s_lshl3_add_u32 s{S.T1C}, s{S.T5}, 8")
    a(f"s_mov_b32 s{S.T2}, 0")
    a(f"s_cmp_eq_u32 s2, 127")
    a(f"s_cselect_b32 s{S.T1C}, 0, s{S.T1C}")
    a(f"s_cselect_b32 s{S.HH}, 0, s{S.HH}")
    a.label("L_k7")
    rows_setup(S.WAVE)
    a("s_waitcnt lgkmcnt(0)")
    rows_load()
    stamp(1)
    if o.touch:
        touch("L_ta", o.touch, 0, 8)
    a.label("L_ta_start")
    if o.b0 == 2:
        a("s_barrier")
    tile_ids()

    def tile_dma():
        a(f"s_lshl_b32 s{S.T4}, s{S.WAVE}, 11")
        a(f"s_add_u32 s{S.T5}, s{S.T4}, s{S.BLK}")
        a(f"s_lshl_b32 s{S.T5}, s{S.T5}, 7")
        a(f"s_mov_b32 m0, s{S.T4}")
        a("v_and_b32 v9, 7, v0")
        a("v_bfe_u32 v13, v0, 4, 1")
        a("v_xor_b32 v9, v9, v13")
        a("v_lshrrev_b32 v13, 3, v0")
        a(f"v_lshl_add_u32 v9, v9, 4, s{S.T5}")
        a("v_lshl_add_u32 v13, v13, 14, v9")
        a(f"global_load_lds_dwordx4 v13, {PXS}")
        a(f"s_add_u32 m0, s{S.T4}, 1024")
        a("v_add_u32 v13, 0x20000, v13")
        a(f"global_load_lds_dwordx4 v13, {PXS}")
        stamp(2)

    if not o.tlate:
        tile_dma()
    C1, S1, K = AOP, AOP + 4, AOP + 8
    a(f"s_lshr_b32 s{S.T0}, s{S.WAVE}, 2")
    a(f"s_and_b32 s{S.T1}, s{S.WAVE}, 1")
    a(f"s_bfe_u32 s{S.T2}, s{S.WAVE}, 0x10001")
    a(f"v_lshl_add_u32 v6, s{S.T0}, 4, v1")
    a(f"s_lshl3_add_u32 s{S.T3}, s{S.T2}, s{S.T1}")
    a(f"s_lshl_b32 s{S.T3}, s{S.T3}, 2")
    a("v_cvt_f32_u32 v6, v6")
    a(f"v_lshl_add_u32 v7, v2, 3, s{S.T3}")
    a("v_mul_f32 v6, 0x3c000000, v6")
    a("v_cvt_f32_u32 v7, v7")
    a("v_mul_f32 v7, v7, v6")
    for j in range(4):
        a(f"v_cos_f32 v{C1+j}, v7")
        a(f"v_sin_f32 v{S1+j}, v7")
        if j < 3:
            a("v_add_f32 v7, v7, v6")
    if o.tlate == 2:
        a(f"global_load_dwordx4 {V(WR,4)}, v{VG16}, s[{S.PWR}:{S.PWR+1}]")
        tile_dma()
    a(f"s_lshl_b32 s{S.T4}, s{S.T0}, 13")
    a(f"s_lshl_b32 s{S.T5}, s{S.T2}, 10")
    a(f"s_lshl3_add_u32 s{S.T5}, s{S.T1}, s{S.T5}")
    a(f"v_add_u32 v15, s{S.T4}, v{VG16}")
    a(f"v_add_u32 v9, s{S.T5}, v15")
    a(f"v_cvt_pk_bf16_f32 v{K+0}, v{C1}, v{C1+1}")
    a(f"v_cvt_pk_bf16_f32 v{K+1}, v{C1+2}, v{C1+3}")
    a(f"v_cvt_pk_bf16_f32 v{K+2}, -v{S1}, -v{S1+1}")
    a(f"v_cvt_pk_bf16_f32 v{K+3}, -v{S1+2}, -v{S1+3}")
    a("v_cmp_eq_f32 vcc, 0, v6")
    a(f"v_cvt_pk_bf16_f32 v{K+4}, v{C1}, -v{S1+1}")
    a(f"v_cvt_pk_bf16_f32 v{K+5}, -v{C1+2}, v{S1+3}")
    a(f"v_cvt_pk_bf16_f32 v{K+6}, -v{S1}, -v{C1+1}")
    a(f"v_cvt_pk_bf16_f32 v{K+7}, v{S1+2}, v{C1+3}")
    a(f"ds_write_b64 v9, {V(K,2)} offset:{L_CT}")
    a(f"ds_write_b64 v9, {V(K+4,2)} offset:{L_CT+4096}")
    a(f"ds_write_b64 v9, {V(K+6,2)} offset:{L_CT+6144}")
    a("s_mov_b64 exec, vcc")
    a(f"v_mov_b32 v{K+2}, 0xbf803f80")
    a(f"v_mov_b32 v{K+3}, 0xbf803f80")
    a("s_mov_b64 exec, -1")
    a(f"ds_write_b64 v9, {V(K+2,2)} offset:{L_CT+2048}")
    if o.tlate != 2:
        a(f"global_load_dwordx4 {V(WR,4)}, v{VG16}, s[{S.PWR}:{S.PWR+1}]")
    if o.tlate == 1:
        tile_dma()
    a("v_mov_b32 v12, 0")
    a("v_mov_b32 v13, 0")
    stamp(3)
    if o.b0 == 1:
        a("s_waitcnt lgkmcnt(0)")
        a("s_barrier")
        for k in range(2):
            for t in range(4):
                a(f"ds_read_b128 {V(CM+16*t+4*k,4)}, v15 offset:{L_CT + t*2048 + k*1024}")

    def dots(w, fill=()):
        fill = list(fill)

        def pad(n):
            while n and fill:
                a(fill.pop(0))
                n -= 1
            a.nop(n)

        for i in range(4):
            a(f"v_dot2c_f32_bf16 v12, v{XR+i}, v{w+i}")
            a(f"v_dot2c_f32_bf16 v13, v{XR+4+i}, v{w+i}")
        pad(3)
        a("v_permlane32_swap_b32 v12, v13")
        a("v_add_f32 v12, v12, v13")
        a("v_mov_b32 v13, v12")
        pad(2)
        a("v_permlane16_swap_b32 v12, v13")
        a("v_add_f32 v12, v12, v13")
        for r in (8, 4, 2, 1):
            pad(2)
            a(f"v_add_f32_dpp v12, v12, v12 row_ror:{r} {DPPM}")
        rnd(12, 12)
        for x in fill:
            a(x)

    a(f"s_waitcnt vmcnt({2 if o.tlate else 0})")
    stamp(4)
    dots(WR, [f"s_sub_u32 s{S.T4}, 0xffff, s{S.TD}", f"s_sub_u32 s{S.T5}, 0xffff, s{S.TM}", f"v_mov_b32 v4, s{S.T4}",
              f"v_writelane_b32 v4, s{S.T5}, 32", f"v_mov_b32 v9, {L_KSL}",
              f"v_lshlrev_b32 v{VSGN}, 31, v1", f"v_lshrrev_b32 v7, 16, v{VSGN}", f"v_or_b32 v{VSGN}, v{VSGN}, v7",
              "v_bfe_u32 v6, v0, 2, 2", "v_and_b32 v14, 3, v0", f"v_lshl_add_u32 v14, v14, 1, s{S.T2}",
              f"v_lshl_add_u32 v{VTR}, v2, 3, v6", "v_lshrrev_b32 v6, 1, v6", "v_xor_b32 v14, v14, v6"])
    a("v_ashrrev_i32 v7, 31, v12")
    a("v_or_b32 v7, 0x80000000, v7")
    a("v_xor_b32 v7, v7, v12")
    a(f"v_and_b32 v7, {HIM}, v7")
    a("v_or_b32 v7, v7, v4")
    a("s_mov_b32 exec_lo, 1")
    a("s_mov_b32 exec_hi, 1")
    a("ds_max_u32 v9, v7")
    a("s_mov_b64 exec, -1")
    if o.b1a:
        a("s_waitcnt lgkmcnt(0)")
        hold("K")
        a("s_barrier")
    if o.b0 == 2:
        for k in range(2):
            for t in range(4):
                a(f"ds_read_b128 {V(CM+16*t+4*k,4)}, v15 offset:{L_CT + t*2048 + k*1024}")
    a(f"s_lshl_b32 s{S.T1}, s{S.T1}, 3")
    a(f"v_lshl_add_u32 v14, v14, 4, s{S.T1}")
    a(f"v_lshl_add_u32 v{VTR}, v{VTR}, 7, v14")
    a("v_lshlrev_b32 v9, 4, v2")
    a("s_waitcnt vmcnt(0)" + ("" if o.b0 == 2 else " lgkmcnt(0)"))
    hold("B1")
    a("s_barrier")
    stamp(5)
    if o.b0 == 2:
        a("s_waitcnt lgkmcnt(5)")
    a(f"ds_read_b128 v[28:31], v9 offset:{L_EXP}")
    for k in range(4):
        for h in range(2):
            a(f"ds_read_b64_tr_b16 {V(AOP+4*k+2*h,2)}, v{VTR} offset:{L_TILE + k*4096 + h*512}")
        if k < 2 and not o.b0:
            for t in range(4):
                a(f"ds_read_b128 {V(CM+16*t+4*k,4)}, v15 offset:{L_CT + t*2048 + k*1024}")
        if k == 1 and not o.b0:
            a("s_waitcnt lgkmcnt(9)")
    a(f"global_load_dwordx4 {V(GW,4)}, v{VG16}, s[{S.PGW}:{S.PGW+1}]")
    xors = [f"v_xor_b32 v{CM+t*16+8+4*kp+r}, v{CM+t*16+4*kp+r}, v{VSGN}" for kp in range(2) for t in range(4) for r in range(4)]
    misc = [f"s_mul_i32 s{S.SO}, s{S.T0}, {16*CS}",
            f"s_add_u32 s{S.SO}, s{S.SO}, s{S.PIE}",
            f"s_and_b32 s{S.T4}, s{S.WAVE}, 3",
            f"s_lshl_b32 s{S.T4}, s{S.T4}, 9",
            f"s_add_u32 s{S.SO}, s{S.SO}, s{S.T4}",
            f"s_add_u32 s{S.SO}, s{S.SO}, {WS_INT}",
            f"s_mov_b32 s{S.RWS}, s{S.PWS}", f"s_mov_b32 s{S.RWS+1}, s{S.PWS+1}", f"s_mov_b32 s{S.RWS+2}, {WS_BYTES:#x}",
            f"s_mov_b32 s{S.RWS+3}, 0x20000",
            f"s_add_u32 s{S.SO+1}, s{S.SO}, {32*CS}", f"s_mov_b32 s{S.T5}, 0xfffefffe", f"s_mov_b32 s{S.T4}, 0x07060302",
            f"v_mul_u32_u24 v{VST}, {CS}, v1", f"v_lshl_add_u32 v{VST}, v2, 4, v{VST}",
            ]
    fill = xors + misc
    for k in range(4):
        for t in range(4):
            if o.b0:
                if t == 0:
                    a(f"s_waitcnt lgkmcnt({6-2*k})")
            elif k == 0:
                a(f"s_waitcnt lgkmcnt({13-t})")
            elif k == 1:
                a(f"s_waitcnt lgkmcnt({7-t})")
            elif t == 0:
                a(f"s_waitcnt lgkmcnt({2 if k == 2 else 0})")
            c = "0" if k == 0 else V(ACC + 4 * t, 4)
            a(f"{MF} {V(ACC+4*t,4)}, {V(AOP+4*k,4)}, {V(CM+16*t+4*k,4)}, {c}")
            n = 4 if k < 2 else 2
            if k < 3 or t < 3:
                for _ in range(n):
                    if fill:
                        x = fill.pop(0)
                        if x != "TAGWAIT":
                            a(x)
    for x in fill:
        a(x)
    a("v_mov_b32 v12, 0")
    a("v_mov_b32 v13, 0")
    for h in range(2):
        for i in range(8):
            a(f"v_add_u32 v{ACC+8*h+i}, 0x10000, v{ACC+8*h+i}")
        for i in range(4):
            a(f"v_perm_b32 v{AOP+4*h+i}, v{ACC+8*h+4+i}, v{ACC+8*h+i}, s{S.T4}")
        for i in range(4):
            a(f"v_and_or_b32 v{AOP+4*h+i}, v{AOP+4*h+i}, s{S.T5}, v{28+i}")
        a(f"buffer_store_dwordx4 {V(AOP+4*h,4)}, v{VST}, {R4(S.RWS)}, s{S.SO+h} offen sc1")
    a(f"s_mov_b32 s{S.SPIN}, 0")
    a(f"s_mov_b32 s{S.ISZ}, 0")
    stamp(7)
    if o.only == "P1":
        a("s_endpgm")
    a.label("L_ta_end")

    gwait = [2]

    def gates(full):
        if full:
            a(f"s_waitcnt vmcnt({gwait[0]})")
        dots(GW)
        if full:
            a(f"s_lshl_b32 s{S.T0}, s{S.WAVE}, 11")
            a(f"v_add_u32 v6, s{S.T0}, v{VG16}")
            a(f"ds_write_b128 v6, {V(XR,4)} offset:{L_XT}")
            a(f"ds_write_b128 v6, {V(XR+4,4)} offset:{L_XT+1024}")
            a(f"v_lshl_add_u32 v7, v1, 6, s{S.T0}")
            a("v_lshl_add_u32 v7, v2, 3, v7")
            a("s_waitcnt lgkmcnt(0)")
            for r in range(2):
                a(f"ds_read2_b64 {V(XR+4*r,4)}, v7 offset0:{0} offset1:{4}" if False else f"ds_read_b64 {V(XR+4*r,2)}, v7 offset:{L_XT+1024*r}")
                a(f"ds_read_b64 {V(XR+4*r+2,2)}, v7 offset:{L_XT+1024*r+32}")
            vrow_setup()
        sigmoid(13, 12)
        rnd(13, 13)
        a("v_sub_f32 v14, 1.0, v13")
        rnd(14, 14)
        a(f"v_readlane_b32 s{S.T0}, v13, 0")
        a(f"v_readlane_b32 s{S.T1}, v13, 32")
        a(f"v_readlane_b32 s{S.T2}, v14, 0")
        a(f"v_readlane_b32 s{S.T3}, v14, 32")
        a(f"s_xor_b32 s{S.T4}, s{S.T0}, 0x80000000")
        a(f"s_cmp_eq_u32 s{S.TD}, 0")
        a(f"s_cselect_b32 s{S.T4}, 0, s{S.T4}")
        a(f"s_cselect_b32 s{S.T5}, 0, s{S.T1}")
        if not full:
            return
        a(f"v_mov_b32 v{CO}, s{S.T0}")
        a(f"v_mov_b32 v{CO+1}, s{S.T4}")
        a(f"v_mov_b32 v{CO+2}, s{S.T5}")
        a(f"v_mov_b32 v{CO+3}, s{S.T1}")
        a(f"v_mov_b32 v13, s{S.T2}")
        a(f"v_mov_b32 v14, s{S.T3}")
        a("s_waitcnt lgkmcnt(0)")
        for r in range(2):
            for i in range(4):
                a(f"v_lshlrev_b32 v{XG+8*r+2*i}, 16, v{XR+4*r+i}")
                a(f"v_and_b32 v{XG+8*r+2*i+1}, {HIM}, v{XR+4*r+i}")
            for i in range(8):
                a(f"v_mul_f32 v{XG+8*r+i}, v{13+r}, v{XG+8*r+i}")

    def addr_ur(wreg):
        a(f"s_mul_i32 s{S.T1}, s{wreg}, {2*UB}")
        a("v_bfe_u32 v7, v1, 1, 2")
        a("v_xor_b32 v7, v7, v2")
        a(f"v_lshl_add_u32 v7, v7, 4, s{S.T1}")
        a(f"v_lshl_add_u32 v{VUR0}, v1, 6, v7")
        a("v_sub_u32 v6, 16, v1")
        a("v_bfe_u32 v7, v6, 1, 2")
        a("v_xor_b32 v7, v7, v2")
        a(f"v_lshl_add_u32 v7, v7, 4, s{S.T1}")
        a(f"v_lshl_add_u32 v{VUR1}, v6, 6, v7")

    def addr_p2():
        a("v_lshlrev_b32 v6, 4, v1")
        a(f"v_lshl_add_u32 v{VLD}, v2, 13, v6")
        a(f"v_mul_u32_u24 v6, {4*UB}, v2")
        a("v_bfe_u32 v7, v1, 1, 2")
        a(f"v_xor_b32 v7, s{S.WAVE}, v7")
        a("v_lshl_add_u32 v7, v7, 4, v6")
        a(f"v_lshl_add_u32 v{VUW}, v1, 6, v7")
        a(f"s_lshl4_add_u32 s{S.T1}, s{S.WAVE}, 1024")
        a(f"v_mov_b32 v9, {L_DUMP - L_U2}")
        a(f"v_lshl_add_u32 v{VUX}, v0, 1, v9")
        a(f"v_lshl_add_u32 v7, v1, 1, s{S.T1}")
        a("s_mov_b32 exec_lo, 0x00ff00ff")
        a("s_mov_b32 exec_hi, 0x00ff00ff")
        a(f"v_add_u32 v{VUX}, v7, v6")
        a("s_mov_b64 exec, -1")

    EXP = 96

    def exp_setup():
        a("v_and_b32 v6, 3, v1")
        a("v_lshlrev_b32 v6, 4, v6")
        a(f"ds_read_b128 {V(EXP,4)}, v6 offset:{L_EXP}")
        a("s_waitcnt lgkmcnt(0)")

    def exp_make():
        a("v_lshlrev_b32 v6, 1, v1")
        a(f"v_lshrrev_b32 v6, v6, v{VTAG}")
        a("v_lshlrev_b32 v7, 15, v6")
        a("v_and_b32 v6, 1, v6")
        a("v_and_b32 v7, 0x10000, v7")
        a("v_or_b32 v6, v6, v7")
        a("v_lshlrev_b32 v7, 2, v1")
        a(f"ds_write_b32 v7, v6 offset:{L_EXP}")
        a("s_waitcnt lgkmcnt(0)")

    def const_d1():
        a("v_cvt_f32_u32 v6, v1")
        a(f"s_lshl_b32 s{S.T0}, s{S.WAVE}, 2")
        a(f"v_lshl_add_u32 v7, v2, 6, s{S.T0}")
        a("v_mul_f32 v6, 0x3b000000, v6")
        a("v_cvt_f32_u32 v7, v7")
        a("v_mul_f32 v15, 0x41800000, v6")
        a("v_mul_f32 v7, v7, v6")
        for ib in range(4):
            if ib:
                a("v_add_f32 v7, v7, v6")
            for j in range(4):
                src = "v7" if j == 0 else "v9"
                a(f"v_cos_f32 v{Cc+j}, {src}")
                a(f"v_sin_f32 v{Ss+j}, {src}")
                if j < 3:
                    a(f"v_add_f32 v9, {src}, v15")
            b = M1 + 12 * ib
            a(f"v_mov_b32 v{b+8}, 0")
            for p in range(2):
                a(f"v_cvt_pk_bf16_f32 v{b+p}, v{Cc+2*p}, v{Cc+2*p+1}")
                a(f"v_cvt_pk_bf16_f32 v{b+4+p}, -v{Ss+2*p}, -v{Ss+2*p+1}")
            for p in range(2):
                a(f"v_xor_b32 v{b+2+p}, v{b+p}, v{VSGN}")
                a(f"v_xor_b32 v{b+6+p}, v{b+4+p}, v{VSGN}")
        a("v_lshrrev_b32 v6, 1, v1")
        a(f"v_add_u32 v7, s{S.T0}, v6")
        a("v_and_b32 v9, 1, v1")
        a("v_lshl_add_u32 v7, v9, 3, v7")
        a("v_cvt_f32_u32 v7, v7")
        a("v_mul_f32 v7, 0x3d000000, v7")
        a("v_cos_f32 v7, v7")
        for ib in range(4):
            m = 0x00030003 << (2 * ib)
            a(f"s_mov_b32 exec_lo, {m:#x}")
            a(f"s_mov_b32 exec_hi, {m:#x}")
            a(f"v_cvt_pk_bf16_f32 v{M1+12*ib+8}, v7, -v7")
        a("s_mov_b64 exec, -1")
        for ib in range(4):
            for p in range(1, 4):
                a(f"v_mov_b32 v{M1+12*ib+8+p}, v{M1+12*ib+8}")

    def const_ga():
        a("v_lshrrev_b32 v6, 1, v1")
        a(f"s_lshl_b32 s{S.T0}, s{S.HH}, 10")
        a(f"s_add_u32 s{S.T0}, s{S.T0}, s{S.T1C}")
        a(f"v_lshl_add_u32 v6, v6, 7, s{S.T0}")
        a("v_and_b32 v7, 1, v1")
        a("v_lshlrev_b32 v9, 9, v7")
        l0, ld = a.L("g0"), a.L("gd")
        a(f"s_cmp_lg_u32 s{S.T1C}, 0")
        a(f"s_cbranch_scc1 {l0}")
        a("s_mov_b32 exec_lo, 0x00020002")
        a("s_mov_b32 exec_hi, 0x00020002")
        a("v_mov_b32 v6, 0x400")
        a("v_mov_b32 v9, 0")
        a("s_mov_b64 exec, -1")
        a.label(l0)
        a("v_lshlrev_b32 v7, 2, v2")
        a("v_mad_u32_u24 v9, v7, v6, v9")
        a("v_cvt_f32_u32 v6, v6")
        a("v_cvt_f32_u32 v9, v9")
        a("v_mul_f32 v6, 0x3a000000, v6")
        a("v_mul_f32 v9, 0x3a000000, v9")
        for jj in range(4):
            a(f"v_cos_f32 v{Cc+jj}, v9")
            a(f"v_sin_f32 v{Ss+jj}, v9")
            if jj < 3:
                a("v_add_f32 v9, v9, v6")
        a(f"s_and_b32 s{S.T1}, s{S.T1C}, 63")
        a.nop(1)
        for jj in range(4):
            a(f"v_cvt_pk_bf16_f32 v{GA+jj}, v{Cc+jj}, v{Ss+jj}")
        a(f"s_cmp_lg_u32 s{S.T1}, 0")
        a(f"s_cbranch_scc1 {ld}")
        a(f"s_lshr_b32 s{S.T1}, s{S.T1C}, 2")
        for jj in range(4):
            a(f"v_and_b32 v{GA+jj}, 0xffff, v{GA+jj}")
            a(f"v_lshlrev_b32 v{GA+jj}, s{S.T1}, v{GA+jj}")
        a.label(ld)

    def int_base():
        a(f"s_and_b32 s{S.T1}, s{S.T1C}, 63")
        a(f"s_mul_i32 s{S.L0}, s{S.T1}, {CS}")
        a(f"s_lshl_b32 s{S.T1}, s{S.WAVE}, 9")
        a(f"s_add_u32 s{S.L0}, s{S.L0}, s{S.T1}")
        a(f"s_add_u32 s{S.L0}, s{S.L0}, {WS_INT}")
        a(f"s_add_u32 s{S.L1}, s{S.L0}, 4096")

    def m2_addr():
        a(f"s_cmp_eq_u32 s{S.TD}, 0")
        a(f"s_cselect_b32 s{S.T0}, 0, 2048")
        a(f"v_add_u32 v4, s{S.T0}, v{VG16}")

    def int_loads(ah):
        for jj in range(4):
            so = S.L0 if jj < 2 else S.L1
            a(f"buffer_load_dwordx4 {V(LD+16*ah+4*jj,4)}, v{VLD}, {R4(S.RWS)}, s{so} offen offset:{(jj & 1)*2048 + ah*256} sc1")

    a.srd(S.ROUT, S.POUT, 0x200000)
    a(f"s_cmp_ge_u32 s{S.WAVE}, 4")
    a("s_cbranch_scc1 L_hi0")
    if o.prio & 1:
        a("s_setprio 2")
    pre = [lambda: (addr_p2(), int_base(), const_ga(), exp_setup()), const_d1, lambda: gates(True), lambda: (addr_ur(S.WAVE), m2_addr())]
    if o.gfirst:
        pre[1], pre[2] = pre[2], pre[1]
    for f in pre[:o.npre]:
        f()
    stamp(8)
    a(f"s_waitcnt vmcnt({0 if o.ackwait else 2})")
    if o.b3:
        a("s_barrier")
    if o.isleep0:
        a(f"s_sleep {o.isleep0}")
    hold("B4")
    stamp(9)
    if o.stag:
        a(f"s_cmp_lg_u32 s{S.HH}, 0")
        a("s_cbranch_scc1 L_stg1")
        int_loads(0)
        a(f"s_waitcnt vmcnt({4 - o.stag})")
        int_loads(1)
        a("s_branch L_stg2")
        a.label("L_stg1")
        int_loads(1)
        a(f"s_waitcnt vmcnt({4 - o.stag})")
        int_loads(0)
        a("s_waitcnt vmcnt(0)")
        a.label("L_stg2")
    else:
        int_loads(0)
        int_loads(1)
    gwait[0] = 10
    for f in pre[o.npre:]:
        f()
    gwait[0] = 2
    a.label("L_zjoin")
    stamp(10)
    for ah in range(2):
        a(f"s_waitcnt vmcnt({4-4*ah})")
        a.label(f"L_got{ah}")
        b = LD + 16 * ah
        da = DA1 if ah else DA0
        for ib in range(4):
            for jj in range(4):
                a(f"v_xor_b32 v{TP+4*ib+jj}, v{b+4*jj+ib}, v{EXP+ib}")
            if ib == 0:
                a(f"v_or3_b32 v6, v{TP}, v{TP+1}, v{TP+2}")
                a(f"v_or_b32 v6, v6, v{TP+3}")
            else:
                a(f"v_or3_b32 v6, v6, v{TP+4*ib}, v{TP+4*ib+1}")
                a(f"v_or3_b32 v6, v6, v{TP+4*ib+2}, v{TP+4*ib+3}")
            if ib == 3:
                a("v_and_b32 v6, 0x10001, v6")
                a("v_cmp_ne_u32 vcc, 0, v6")
            if not (ah == 1):
                a(f"{MF} {V(da+4*ib,4)}, {V(TP+4*ib,4)}, {V(GA,4)}, 0")
            else:
                a(f"{MF} {V(da+4*ib,4)}, {V(TP+4*ib,4)}, {V(GA,4)}, 0")
        a(f"s_cbranch_vccnz L_retry{ah}")
        a.label(f"L_fail{ah}")
    stamp(11)

    def d1(jb):
        a(f"{MF} {V(DA0+4*jb,4)}, {V(TP+4*jb,4)}, {V(M1+12*jb,4)}, 0")
        a(f"{MF} {V(DA1+4*jb,4)}, {V(TP+4*jb,4)}, {V(M1+12*jb+4,4)}, 0")
        a(f"{MF} {V(X16,4)}, {V(TP+4*jb,4)}, {V(M1+12*jb+8,4)}, {'0' if jb == 0 else V(X16,4)}")

    for ib in range(4):
        for p in range(4):
            s0 = (DA1 if p >= 2 else DA0) + 4 * ib + 2 * (p & 1)
            a(f"v_cvt_pk_bf16_f32 v{TP+4*ib+p}, v{s0}, v{s0+1}")
        if ib:
            d1(ib - 1)
    d1(3)
    for ib in range(3):
        for i in range(4):
            a(f"v_cvt_pk_bf16_f32 v{PK+4*i+ib}, v{DA0+4*ib+i}, v{DA1+4*ib+i}")
    for i in range(4):
        a(f"v_cvt_pk_bf16_f32 v{PK+4*i+3}, v{DA0+12+i}, v{DA1+12+i}")
        a(f"ds_write_b128 v{VUW}, {V(PK+4*i,4)} offset:{L_U2 + i*UB}")
    a(f"v_cvt_pk_bf16_f32 v{X16}, v{X16}, v{X16+1}")
    a(f"v_cvt_pk_bf16_f32 v{X16+2}, v{X16+2}, v{X16+3}")
    a(f"ds_write_b16 v{VUX}, v{X16} offset:{L_U2}")
    a(f"ds_write_b16_d16_hi v{VUX}, v{X16} offset:{L_U2+UB}")
    a(f"ds_write_b16 v{VUX}, v{X16+2} offset:{L_U2+2*UB}")
    a(f"ds_write_b16_d16_hi v{VUX}, v{X16+2} offset:{L_U2+3*UB}")
    a.label("L_d2")
    a(f"ds_read_b128 {V(M2,4)}, v{VG16} offset:{L_M2}")
    a(f"ds_read_b128 {V(M2+4,4)}, v{VG16} offset:{L_M2+1024}")
    a(f"ds_read_b128 {V(M2+8,4)}, v4 offset:{L_M2}")
    a(f"ds_read_b128 {V(M2+12,4)}, v4 offset:{L_M2+1024}")
    a(f"v_mov_b32 v9, {L_GKEY}")
    a(f"s_cmp_lg_u32 s{S.ISZ}, 0")
    a("s_waitcnt lgkmcnt(0)")
    a("s_cbranch_scc1 L_zsync")
    a("s_barrier")
    stamp(12)
    a("ds_read_b32 v6, v9")
    a(f"ds_read_b128 {V(UO,4)}, v{VUR0} offset:{L_U2}")
    a(f"ds_read_b128 {V(UO+4,4)}, v{VUR1} offset:{L_U2}")
    a(f"ds_read_b128 {V(UO+8,4)}, v{VUR0} offset:{L_U2+UB}")
    a(f"ds_read_b128 {V(UO+12,4)}, v{VUR1} offset:{L_U2+UB}")
    a(f"s_lshl_b32 s{S.T0}, s{S.TD}, 10")
    a(f"s_lshl_b32 s{S.T1}, s{S.TM}, 10")
    for k in range(4):
        a(f"s_waitcnt lgkmcnt({3-k})")
        a(f"{MF} {V(PQ+4*k,4)}, {V(UO+4*k,4)}, {V(M2+4*k,4)}, 0")
    a(f"v_readfirstlane_b32 s{S.GKEY}, v6")
    a(f"s_andn2_b32 s{S.IDX}, 0xffff, s{S.GKEY}")
    for r in range(2):
        for i in range(8):
            a(f"v_fmac_f32 v{XG+8*r+i}, v{CO+2*r}, v{PQ+i}")
    for r, (so, tr) in enumerate(((S.T0, S.TD), (S.T1, S.TM))):
        for i in range(8):
            a(f"v_fmac_f32 v{XG+8*r+i}, v{CO+2*r+1}, v{PQ+8+i}")
        for i in range(4):
            a(f"v_cvt_pk_bf16_f32 v{UO+4*r+i}, v{XG+8*r+2*i}, v{XG+8*r+2*i+1}")
        l = a.L("skip")
        if r == 0:
            stamp(6)
        a(f"s_cmp_eq_u32 s{tr}, s{S.IDX}")
        a(f"s_cbranch_scc1 {l}")
        a(f"v_permlane16_swap_b32 v{UO+4*r}, v{UO+4*r+2}")
        a(f"v_permlane16_swap_b32 v{UO+4*r+1}, v{UO+4*r+3}")
        a(f"buffer_store_dwordx4 {V(UO+4*r,4)}, v{VROW}, {R4(S.ROUT)}, s{so} offen{o.outpol}")
        a.label(l)
    a.label("L_tb_end")
    stamp(13)
    if o.stamps:
        a("s_waitcnt vmcnt(0)")
        stamp(15)
    endprog()

    for ah in range(2):
        a.label(f"L_retry{ah}")
        if o.stamps:
            a(f"s_add_u32 s{S.RC}, s{S.RC}, {1 << (8*ah)}")
        if o.rsleep:
            a(f"s_sleep {o.rsleep}")
        spin()
        a(f"s_cbranch_scc1 L_fail{ah}")
        int_loads(ah)
        a("s_waitcnt vmcnt(0)")
        a(f"s_branch L_got{ah}")

    a.label("L_hi0")
    if o.b3:
        if o.ackwait:
            a("s_waitcnt vmcnt(0)")
        a("s_barrier")
    a.label("L_hi1")
    if o.atouch:
        touch("L_tb", o.atouch, 4, 4)
        a(f"s_cmp_lg_u32 s{S.ISZ}, 0")
        a("s_cbranch_scc1 L_z0b")
    gates(True)
    addr_ur(S.WAVE)
    m2_addr()
    stamp(10)
    a("s_branch L_d2")

    a.label("L_ah")
    if o.prio & 2:
        a("s_setprio 3")
    if o.cpf:
        a(f"s_cmp_ge_u32 s{S.T1}, {o.cpf}")
        a("s_cbranch_scc1 L_nocpf")
        a(f"s_getpc_b64 s[{S.EX}:{S.EX+1}]")
        a.label("L_pc")
        a(f"s_sub_u32 s{S.EX}, s{S.EX}, L_pc - {name}")
        a(f"s_subb_u32 s{S.EX+1}, s{S.EX+1}, 0")
        a("v_lshlrev_b32 v6, 7, v0")
        a("v_add_u32 v7, 0x2000, v6")
        a(f"v_min_u32 v7, L_end - {name}, v7")
        a(f"v_mov_b32 v13, s{S.EX+1}")
        a(f"v_mov_b32 v15, s{S.EX+1}")
        a(f"v_add_co_u32 v12, vcc, s{S.EX}, v6")
        a.nop(2)
        a("v_addc_co_u32 v13, vcc, 0, v13, vcc")
        a(f"v_add_co_u32 v14, vcc, s{S.EX}, v7")
        a.nop(2)
        a("v_addc_co_u32 v15, vcc, 0, v15, vcc")
        a("global_load_dword v10, v[12:13], off")
        a("global_load_dword v11, v[14:15], off")
        a.label("L_nocpf")
    a(f"v_lshlrev_b32 v{VG16}, 4, v0")
    a(f"v_mov_b32 v{VTAG}, 0")
    a(f"v_mov_b32 v9, {L_KSL}")
    a(f"ds_write_b32 v9, v{VTAG}")
    a(f"s_mov_b32 s{S.KM}, 0x9E3779B1")
    a(f"s_cmp_ge_u32 s{S.T1}, {o.wpf}")
    a("s_waitcnt lgkmcnt(0)")
    a("s_cbranch_scc1 L_nowpf")
    a(f"global_load_dwordx4 v[32:35], v{VG16}, s[{S.PWR}:{S.PWR+1}]")
    a(f"global_load_dword v{VE}, v{VTAG}, s[{S.PWS}:{S.PWS+1}]")
    a(f"global_load_dwordx4 v[36:39], v{VG16}, s[{S.PGW}:{S.PGW+1}]")
    a.label("L_nowpf")
    stamp(1)
    a("v_lshlrev_b32 v14, 10, v0")
    a(f"s_lshl_b32 s{S.ID8}, s2, 3")
    a(f"s_add_u32 s{S.ID8}, s{S.ID8}, {WS_KEY}")
    ws_setup()

    if o.b0 == 2:
        a("s_barrier")
    const_d2()
    a(f"global_load_dword v{VE}, v{VTAG}, s[{S.PWS}:{S.PWS+1}]")
    a("s_waitcnt lgkmcnt(0)")
    stamp(2)
    if o.b0 == 1:
        a("s_barrier")
    a(f"v_mov_b32 v9, {L_KSL}")
    a("s_waitcnt vmcnt(0)")
    tag_make()
    exp_make()
    a(f"v_mov_b32 v9, {L_KSL}")
    stamp(3)
    a("s_barrier")
    a(f"ds_read_b32 v{VE}, v9")
    set_exec(RF * CF + RZ * CZ + R2 * C2 + RS)
    a("s_waitcnt lgkmcnt(0)")
    a(f"buffer_store_dwordx2 v[{VE}:{VTAG}], v14, {R4(S.RWS)}, s{S.ID8} offen sc1")
    if o.probe >= 0:
        a("s_mov_b64 exec, 1")
        a("v_mov_b32 v40, s66")
        a(f"v_mov_b32 v41, v{VTAG}")
        a(f"s_add_u32 s{S.T0}, s{S.ID8}, {WS_KEY2 - WS_KEY}")
        a(f"buffer_store_dwordx2 v[40:41], v14, {R4(S.RWS)}, s{S.T0} offen sc1")
    a("s_mov_b64 exec, -1")
    stamp(5)
    if o.b1a:
        a("s_barrier")
    if o.only == "P1":
        a("s_endpgm")
    if o.htouch:
        touch("L_th", o.htouch, 8, 1)
    poll_setup(WS_KEY + 1024 * (RF * CF + RZ * CZ), R2, C2)
    a("s_waitcnt vmcnt(0)")
    if not o.gate and o.b3:
        a("s_barrier")
    if o.k2sleep0:
        a(f"s_sleep {o.k2sleep0}")
    stamp(8)
    poll_granules(VG16, 32, sleep=o.k2sleep)
    stamp(9)
    wave_max_key(32)
    lds_put(L_GKEY, 32)
    if o.gate:
        a(f"s_sleep {o.gate}")
        a("s_barrier")
        if o.probe >= 0:
            a("s_cmp_lg_u32 s2, 9")
            a("s_cbranch_scc1 L_noprobe")
            a("s_barrier")
            a(f"s_mov_b32 s{S.PO}, {WS_KEY2}")
            a(f"s_mov_b32 s{S.POL}, {WS_KEY2}")
            poll_granules(VG16, 32, sleep=4)
            for i in range(8):
                a(f"v_readlane_b32 s{70+i}, v{32 + 2*(i&1)}, {i>>1}")
            a("s_mov_b32 s80, s70")
            for i in range(1, 8):
                a(f"s_sub_u32 s81, s{70+i}, s80")
                a("s_cmp_lt_i32 s81, 0")
                a(f"s_cselect_b32 s80, s{70+i}, s80")
            if o.probe < 8:
                a(f"s_sub_u32 s81, s{70+o.probe}, s80")
            else:
                a("s_mov_b32 s81, 0")
                for i in range(8):
                    a(f"s_sub_u32 s82, s{70+i}, s80")
                    a("s_max_u32 s81, s81, s82")
            a("s_mul_i32 s81, s81, 10")
            a("s_add_u32 s81, s81, 800")
            a.label("L_pw")
            a("s_sleep 1")
            a("s_memrealtime s[100:101]")
            a("s_waitcnt lgkmcnt(0)")
            a("s_sub_u32 s100, s100, s80")
            a("s_cmp_lt_u32 s100, s81")
            a("s_cbranch_scc1 L_pw")
            a.label("L_noprobe")
        if o.hold and o.hold[0] == "endA":
            a(f"s_sub_u32 s{S.T0}, s2, {o.hold[2]}")
            a(f"s_cmp_ge_u32 s{S.T0}, {o.hold[3]}")
            a("s_cbranch_scc1 L_nohold")
            a("s_barrier")
            hold("endA")
            a.label("L_nohold")
        endprog()
    a("s_barrier")
    endprog()

    a.label("L_notA")
    if o.only == "AA":
        a("s_endpgm")
    a(f"s_sub_u32 s{S.T2}, s{S.T0}, {o.zx}")
    a(f"s_and_b32 s{S.T2}, s{S.T2}, 7")
    a(f"s_lshl4_add_u32 s{S.FJ}, s{S.T2}, s{S.T1}")
    a(f"s_sub_u32 s{S.FJ}, s{S.FJ}, 32")
    a(f"s_cmp_ge_u32 s2, {NWG}")
    a("s_cbranch_scc1 L_end")
    a(f"s_cmp_lg_u32 s{S.T2}, 0")
    a("s_cbranch_scc1 L_F")
    a(f"s_mov_b32 s{S.ISZ}, 1")
    a(f"s_sub_u32 s{S.Z}, s{S.T1}, 16")
    vrow_setup()
    a(f"v_lshlrev_b32 v{VG16}, 4, v0")
    sgn_setup()
    a("s_waitcnt lgkmcnt(0)")
    ws_setup()
    a.srd(S.ROUT, S.POUT, 0x200000)
    addr_p2()
    a(f"s_cmp_eq_u32 s{S.WAVE}, 8")
    a("s_cbranch_scc1 L_zh")
    a(f"s_cmp_ge_u32 s{S.WAVE}, 4")
    a("s_cbranch_scc1 L_z0")
    const_d1()
    a("s_branch L_z1")
    a.label("L_z0")
    if o.atouch:
        a("s_branch L_hi1")
    a.label("L_z0b")
    if o.ztouch:
        touch("L_tz", o.ztouch, 4, 4)
    a.label("L_z1")
    a(f"v_mov_b32 v9, {L_KSL}")
    a("v_mov_b32 v12, 0")
    a("v_mov_b32 v13, 0")
    a("s_barrier")
    a(f"ds_read_b64 v[{VE}:{VTAG}], v9")
    a(f"ds_read_b128 {V(GW,4)}, v{VG16} offset:{L_WV+1024}")
    a("s_waitcnt lgkmcnt(0)")
    a(f"v_readfirstlane_b32 s{S.GKEY}, v{VE}")
    a(f"s_andn2_b32 s{S.IDX}, 2047, s{S.GKEY}")
    a(f"s_and_b32 s{S.T0}, s{S.IDX}, 127")
    a(f"s_cmp_gt_u32 s{S.T0}, 64")
    a(f"s_cselect_b32 s{S.WHICH}, 1, 0")
    a(f"s_and_b32 s{S.T0}, s{S.IDX}, {1024 + 63}")
    a(f"s_cmp_eq_u32 s{S.T0}, 1024")
    a(f"s_cselect_b32 s{S.WHICH}, 1, s{S.WHICH}")
    a(f"s_sub_u32 s{S.T0}, 2048, s{S.IDX}")
    a(f"s_cmp_lg_u32 s{S.WHICH}, 0")
    a(f"s_cselect_b32 s{S.T0}, s{S.T0}, s{S.IDX}")
    a(f"s_cmp_eq_u32 s{S.T0}, 1024")
    a(f"s_cselect_b32 s{S.T0}, 0, s{S.T0}")
    a(f"s_and_b32 s{S.T1C}, s{S.T0}, 127")
    a(f"s_lshr_b32 s{S.HH}, s{S.T0}, 10")
    a(f"s_bfe_u32 s{S.WSEL}, s{S.T0}, 0x30007")
    rows_setup(S.WSEL)
    a(f"s_cmp_ge_u32 s{S.WAVE}, 4")
    a("s_cbranch_scc1 L_z4")
    int_base()
    if o.zisleep0:
        a(f"s_sleep {o.zisleep0}")
    stamp(9)
    int_loads(0)
    int_loads(1)
    const_ga()
    exp_setup()
    addr_ur(S.WSEL)
    m2_addr()
    a("v_lshlrev_b32 v6, 7, v1")
    a(f"v_lshl_add_u32 v15, v2, 4, v6")
    a("s_branch L_zjoin")
    a.label("L_z4")
    a(f"s_cmp_ge_u32 s{S.WAVE}, 6")
    a("s_cbranch_scc1 L_zend2")
    rows_load()
    a(f"s_sub_u32 s{S.T0}, s{S.WAVE}, 4")
    a(f"s_lshl1_add_u32 s{S.T1}, s{S.Z}, s{S.T0}")
    a(f"s_lshl_b32 s{S.T1}, s{S.T1}, 5")
    a("v_and_b32 v6, 7, v0")
    a(f"v_lshl_add_u32 v10, v6, 2, s{S.T1}")
    a(f"s_lshl_b32 s{S.T2}, s{S.IDX}, 10")
    a(f"v_add_u32 v7, s{S.T2}, v10")
    a(f"global_load_dword v35, v7, {PXS}")
    a("v_lshlrev_b32 v10, 1, v10")
    a("v_lshrrev_b32 v7, 3, v0")
    a("v_lshlrev_b32 v7, 8, v7")
    a("v_lshl_add_u32 v11, v6, 4, v7")
    a(f"s_mul_i32 s{S.SI0}, s{S.Z}, {PZ}")
    a(f"s_lshl_b32 s{S.T0}, s{S.T0}, 7")
    a(f"s_add_u32 s{S.SI0}, s{S.SI0}, s{S.T0}")
    a(f"s_add_u32 s{S.SI0}, s{S.SI0}, {WS_PART}")
    a(f"s_add_u32 s{S.SI1}, s{S.SI0}, {(o.pc-1)*PARTC}")
    a(f"s_and_b32 s{S.T0}, s{S.GKEY}, 0xffff0000")
    a(f"s_xor_b32 s{S.T1}, s{S.T0}, 0x80000000")
    a(f"s_xor_b32 s{S.T3}, s{S.T0}, 0xffff0000")
    a(f"s_bitcmp1_b32 s{S.T0}, 31")
    a(f"s_cselect_b32 s{S.T0}, s{S.T1}, s{S.T3}")
    a(f"v_mov_b32 v15, s{S.T0}")
    sigmoid(15, 15)
    rnd(15, 15)
    a("s_waitcnt vmcnt(0)")
    gates(False)
    a(f"s_cmp_lg_u32 s{S.WHICH}, 0")
    a(f"s_cselect_b32 s{S.T2}, s{S.T3}, s{S.T2}")
    a(f"s_cselect_b32 s{S.T0}, s{S.T5}, s{S.T0}")
    a(f"s_cselect_b32 s{S.T4}, s{S.T1}, s{S.T4}")
    a(f"v_xor_b32 v{VTAG}, s{S.IDX}, v{VTAG}")
    a(f"v_mov_b32 v36, s{S.T2}")
    a(f"v_mov_b32 v{CO}, s{S.T0}")
    a(f"v_mov_b32 v{CO+1}, s{S.T4}")
    a("v_lshlrev_b32 v34, 16, v35")
    a(f"v_and_b32 v35, {HIM}, v35")
    if o.psleep0:
        a(f"s_sleep {o.psleep0}")
    hold("pp")
    a(f"v_mov_b32 v9, {L_ZF}")
    a.label("L_tz_start")
    stamp(10)
    if o.psleep:
        a("s_branch L_zp1")
    a.label("L_zp")
    if o.psleep:
        a(f"s_sleep {o.psleep}")
        a.label("L_zp1")
    for i in range(7):
        if i and i % 2 == 0:
            a(f"s_add_u32 s{S.T0}, s{S.SI0}, {2048*i}")
        a(f"buffer_load_dwordx4 {V(40+4*i,4)}, v11, {R4(S.RWS)}, s{S.T0 if i >= 2 else S.SI0} offen offset:{2048*(i&1)} sc1")
    a(f"s_add_u32 s{S.SI0}, s{S.SI0}, {PARTC}")
    a(f"s_min_u32 s{S.SI0}, s{S.SI0}, s{S.SI1}")
    if o.stamps:
        a(f"s_add_u32 s{S.RC}, s{S.RC}, 256")
    spin()
    a("s_cbranch_scc1 L_zp_ok")
    for i in range(7):
        a(f"s_waitcnt vmcnt({6-i})")
        a(f"v_bitop3_b32 v{37 if i == 0 else 38 + (i & 1)}, v{41+4*i}, v{43+4*i}, v{VTAG} bitop3:0x7e")
        if i:
            a(f"v_add_f32 v40, v40, v{40+4*i}")
            a(f"v_add_f32 v42, v42, v{42+4*i}")
        if i and i % 2 == 0:
            a("v_or3_b32 v37, v37, v38, v39")
    a("v_cmp_ne_u32 vcc, 0, v37")
    a.nop(1)
    a("s_cbranch_vccnz L_zp")
    a.label("L_zp_ok")
    a("ds_read_b32 v12, v9")
    a(f"ds_read_b64 v[32:33], v10 offset:{L_XG2}")
    a(f"ds_read_b64 v[16:17], v10 offset:{L_XG2+2048}")
    a("v_lshrrev_b32 v11, 1, v10")
    a(f"s_lshl_b32 s{S.T2}, s{S.IDX}, 10")
    a("s_waitcnt vmcnt(0)")
    stamp(11)
    a(f"v_add_f32_dpp v40, v40, v40 row_ror:8 {DPPM}")
    a(f"v_add_f32_dpp v42, v42, v42 row_ror:8 {DPPM}")
    a.nop(1)
    a.nop(1)
    a("v_permlane16_swap_b32 v40, v42")
    a("v_add_f32 v40, v40, v42")
    a("v_mov_b32 v42, v40")
    a.nop(2)
    a("v_permlane32_swap_b32 v40, v42")
    a("v_add_f32 v40, v40, v42")
    a("v_mov_b32 v42, v40")
    a.nop(2)
    a("v_permlane16_swap_b32 v40, v42")
    a("v_cvt_pk_bf16_f32 v41, v40, v42")
    a("v_lshlrev_b32 v40, 16, v41")
    a(f"v_and_b32 v42, {HIM}, v41")
    a("v_mul_f32 v40, v40, v15")
    a("v_mul_f32 v42, v42, v15")
    a("v_cvt_pk_bf16_f32 v41, v40, v42")
    a("v_lshlrev_b32 v40, 16, v41")
    a(f"v_and_b32 v42, {HIM}, v41")
    a("v_add_f32 v40, v40, v34")
    a("v_add_f32 v42, v42, v35")
    a("v_cvt_pk_bf16_f32 v41, v40, v42")
    a("v_lshlrev_b32 v40, 16, v41")
    a(f"v_and_b32 v42, {HIM}, v41")
    a.label("L_zw")
    a("s_waitcnt lgkmcnt(0)")
    a("v_cmp_eq_u32 vcc, 0, v12")
    a(f"v_mul_f32 v32, v{CO}, v32")
    a(f"v_mul_f32 v33, v{CO}, v33")
    a("s_cbranch_vccz L_zw_ok")
    spin()
    a("s_cbranch_scc1 L_zw_ok")
    a("ds_read_b32 v12, v9")
    a(f"ds_read_b64 v[32:33], v10 offset:{L_XG2}")
    a(f"ds_read_b64 v[16:17], v10 offset:{L_XG2+2048}")
    a("s_branch L_zw")
    a.label("L_zw_ok")
    a(f"v_fmac_f32 v32, v{CO+1}, v16")
    a(f"v_fmac_f32 v33, v{CO+1}, v17")
    a("v_fmac_f32 v32, v40, v36")
    a("v_fmac_f32 v33, v42, v36")
    a("v_cvt_pk_bf16_f32 v32, v32, v33")
    a("s_mov_b64 exec, 0xff")
    a(f"buffer_store_dword v32, v11, {R4(S.ROUT)}, s{S.T2} offen{o.zpol}")
    a("s_mov_b64 exec, -1")
    stamp(13)
    if o.stamps:
        a("s_waitcnt vmcnt(0)")
        stamp(15)
    a("s_barrier")
    endprog()

    a.label("L_zsync")
    a(f"v_mov_b32 v9, {L_ZC}")
    a("v_mov_b32 v6, 1")
    a("s_mov_b64 exec, 1")
    a("ds_add_u32 v9, v6")
    a("s_mov_b64 exec, -1")
    a(f"s_cmp_lg_u32 s{S.WAVE}, 0")
    a("s_cbranch_scc1 L_zend")
    a.label("L_zs")
    a("ds_read_b32 v6, v9")
    spin()
    a("s_waitcnt lgkmcnt(0)")
    a("s_cbranch_scc1 L_zs_ok")
    a("v_cmp_ne_u32 vcc, 4, v6")
    a.nop(1)
    a("s_cbranch_vccnz L_zs")
    a.label("L_zs_ok")
    stamp(12)
    a(f"ds_read_b128 {V(UO,4)}, v{VUR0} offset:{L_U2}")
    a(f"ds_read_b128 {V(UO+4,4)}, v{VUR1} offset:{L_U2}")
    a(f"ds_read_b128 {V(UO+8,4)}, v{VUR0} offset:{L_U2+UB}")
    a(f"ds_read_b128 {V(UO+12,4)}, v{VUR1} offset:{L_U2+UB}")
    for k in range(4):
        a(f"s_waitcnt lgkmcnt({3-k})")
        a(f"{MF} {V(PQ+4*k,4)}, {V(UO+4*k,4)}, {V(M2+4*k,4)}, 0")
    a.nop(3)
    for k in range(4):
        if k == 2:
            a.nop(2)
        a(f"ds_write_b128 v15, {V(PQ+4*k,4)} offset:{L_XG2 + 64*(k&1) + 2048*(k>>1)}")
    a(f"v_mov_b32 v9, {L_ZF}")
    a("s_waitcnt lgkmcnt(0)")
    a("ds_write_b32 v9, v9")
    a("s_waitcnt lgkmcnt(0)")
    stamp(13)
    a.label("L_zend")
    endprog()
    a.label("L_zend2")
    if o.hold and o.hold[0] == "end":
        a("s_barrier")
    hold("end")
    if o.ev:
        lo, n, w, st, med = [int(v) for v in o.ev.split(":")]
        a(f"s_cmp_lg_u32 s2, {248 + o.zx}")
        a("s_cbranch_scc1 L_noev")
        a(f"s_cmp_lg_u32 s{S.WAVE}, 7")
        a("s_cbranch_scc1 L_noev")
        a("s_barrier")
        a.label("L_ev0")
        a("s_sleep 4")
        a("s_memrealtime s[100:101]")
        a("s_waitcnt lgkmcnt(0)")
        a(f"s_sub_u32 s100, s100, s{S.ST}")
        a("s_cmp_lt_u32 s100, 750")
        a("s_cbranch_scc1 L_ev0")
        a("v_lshlrev_b32 v6, 11, v0")
        a(f"v_add_u32 v7, {WS_STAMP + 8*128}, v6")
        a(f"global_load_dword v40, v7, s[{S.PWS}:{S.PWS+1}] sc1")
        a(f"v_add_u32 v7, {WS_STAMP + lo*2048 + w*128 + st*8}, v6")
        for q in range(n // 64):
            a(f"global_load_dword v{44+q}, v7, s[{S.PWS}:{S.PWS+1}] sc1")
            a(f"v_add_u32 v7, {64*2048}, v7")
        a("s_waitcnt vmcnt(0)")
        a(f"v_subrev_u32 v40, s{S.ST}, v40")
        a("v_sub_u32 v40, 1000, v40")
        a("v_mov_b32 v42, v40")
        wave_max_key(40)
        a("v_mov_b32 v41, 0")
        for q in range(n // 64):
            a(f"v_subrev_u32 v{44+q}, s{S.ST}, v{44+q}")
            a(f"v_cmp_gt_u32 vcc, 1000, v{44+q}")
            a.nop(2)
            a(f"v_cndmask_b32 v{44+q}, 0, v{44+q}, vcc")
            if med:
                m = (~med & 0xff) * 0x01010101
                a(f"s_mov_b32 exec_lo, {m:#x}")
                a(f"s_mov_b32 exec_hi, {m:#x}")
                a(f"v_mov_b32 v{44+q}, 0")
                a("s_mov_b64 exec, -1")
            a(f"v_max_u32 v41, v41, v{44+q}")
        a("v_mov_b32 v43, v41")
        wave_max_key(41)
        a.nop(2)
        a("v_readlane_b32 s6, v40, 63")
        a("v_readlane_b32 s7, v41, 63")
        a("s_sub_u32 s6, s6, 1000")
        a("s_min_u32 s6, s6, 300")
        a("s_add_u32 s7, s7, s6")
        a("s_mul_i32 s7, s7, 4")
        a("s_add_u32 s7, s7, 900")
        a("s_sub_u32 s7, s7, s6")
        a.label("L_ev1")
        a("s_sleep 1")
        a("s_memrealtime s[100:101]")
        a("s_waitcnt lgkmcnt(0)")
        a(f"s_sub_u32 s100, s100, s{S.ST}")
        a("s_cmp_lt_u32 s100, s7")
        a("s_cbranch_scc1 L_ev1")
        a.label("L_noev")
    endprog()

    a.label("L_zh")
    a(f"v_mov_b32 v9, {L_ZF}")
    a("v_mov_b32 v6, 0")
    a("ds_write2_b32 v9, v6, v6 offset1:1")
    const_d2()
    a(f"s_mov_b32 m0, {L_WV+1024}")
    tag_load()
    a(f"global_load_lds_dwordx4 v{VG16}, s[{S.PGW}:{S.PGW+1}]")
    a("s_waitcnt vmcnt(0)")
    tag_make()
    exp_make()
    poll_setup(WS_KEY + 1024 * RF * CF, RZ, CZ)
    if o.zsleep0:
        a(f"s_sleep {o.zsleep0}")
    stamp(1)
    poll_granules(VG16, 32, sleep=o.zsleep)
    stamp(2)
    wave_max_key(32)
    lds_put(L_KSL, 32, tag=True)
    a("s_barrier")
    a(f"s_lshl_b32 s{S.T0}, s{S.Z}, 2")
    a(f"s_add_u32 s{S.T0}, s{S.T0}, {WS_ALIVE}")
    a("s_mov_b64 exec, 1")
    a(f"buffer_store_dword v{VTAG}, v0, {R4(S.RWS)}, s{S.T0} offen sc1")
    a("s_mov_b64 exec, -1")
    a(f"s_cmp_lg_u32 s{S.Z}, 0")
    a("s_cbranch_scc1 L_zend")
    a("s_mov_b64 exec, 0xffff")
    a("v_lshlrev_b32 v6, 2, v0")
    a(f"s_mov_b32 s{S.T0}, {WS_ALIVE}")
    a("s_waitcnt vmcnt(0)")
    a("s_sleep 24")
    a.label("L_za")
    a(f"buffer_load_dword v7, v6, {R4(S.RWS)}, s{S.T0} offen sc1")
    spin()
    a("s_waitcnt vmcnt(0)")
    a("s_cbranch_scc1 L_za_ok")
    a(f"v_cmp_ne_u32 vcc, v{VTAG}, v7")
    a.nop(1)
    a("s_cbranch_vccnz L_za")
    a.label("L_za_ok")
    a("s_mov_b64 exec, 1")
    a(f"v_add_u32 v9, 1, v{VE}")
    a("s_barrier")
    a(f"buffer_store_dword v9, v6, {R4(S.RWS)}, 0 offen sc1")
    a("s_mov_b64 exec, -1")
    a("s_branch L_zend")

    a.label("L_F")
    if o.only == "A":
        a("s_endpgm")
    WG_, WD_ = 32, 48
    a("v_lshlrev_b32 v5, 4, v0")
    a(f"s_cmp_eq_u32 s{S.WAVE}, 8")
    a("s_cbranch_scc1 L_fh")
    a(f"s_and_b32 s{S.T0}, s{S.FJ}, 3")
    a(f"s_lshr_b32 s{S.T1}, s{S.WAVE}, 1")
    a(f"s_lshl2_add_u32 s{S.L0}, s{S.T0}, s{S.T1}")
    a(f"s_mul_i32 s{S.T2}, s{S.L0}, {32*3584}")
    a(f"s_lshr_b32 s{S.L1}, s{S.FJ}, 2")
    a(f"s_lshl_b32 s{S.T3}, s{S.L1}, 7")
    a(f"s_add_u32 s{S.T2}, s{S.T2}, s{S.T3}")
    a("v_lshrrev_b32 v6, 3, v0")
    a("v_mul_u32_u24 v6, 3584, v6")
    a("v_and_b32 v7, 7, v0")
    a("v_bfe_u32 v8, v0, 4, 1")
    a("v_lshlrev_b32 v8, 2, v8")
    a("v_xor_b32 v4, v7, v8")
    a(f"v_lshl_add_u32 v7, v4, 4, s{S.T2}")
    a("v_add_u32 v3, v6, v7")
    a(f"s_lshl_b32 s{S.T4}, s{S.WAVE}, 12")
    a(f"s_mov_b32 m0, s{S.T4}")
    def w_dma():
        a(f"s_bitcmp1_b32 s{S.WAVE}, 0")
        a("s_waitcnt lgkmcnt(0)")
        a(f"s_cselect_b32 s{S.PWG}, s{S.PWU}, s{S.PWG}")
        a(f"s_cselect_b32 s{S.PWG+1}, s{S.PWU+1}, s{S.PWG+1}")
        if o.fdelay:
            a(f"s_sleep {o.fdelay}")
        for b in range(4):
            if b:
                a(f"s_add_u32 m0, s{S.T4}, {1024*b}")
                a(f"v_add_u32 v3, {8*3584}, v3")
            if o.wthr and b >= o.wthr:
                a(f"s_waitcnt vmcnt({o.wthr - 1})")
            a(f"global_load_lds_dwordx4 v3, s[{S.PWG}:{S.PWG+1}]{o.wpol}")
        ws_setup()
        stamp(1)

    if not o.flate:
        w_dma()
    a("v_bfe_u32 v6, v0, 2, 2")
    a("v_and_b32 v7, 3, v0")
    a("v_lshlrev_b32 v8, 3, v7")
    a("v_lshl_add_u32 v8, v2, 5, v8")
    a("v_and_b32 v9, 2, v6")
    a("v_lshlrev_b32 v9, 5, v9")
    a("v_xor_b32 v9, v9, v8")
    a("v_lshl_add_u32 v9, v6, 7, v9")
    a(f"v_add_u32 v9, s{S.T4}, v9")
    a(f"s_lshl_b32 s{S.T5}, s{S.WAVE}, 8")
    a("v_lshlrev_b32 v11, 2, v0")
    a(f"v_add_u32 v11, {L_RED}, v11")
    a(f"v_add_u32 v12, s{S.T5}, v11")
    a(f"s_lshl1_add_u32 s{S.T1}, s{S.L1}, s{S.T1}")
    a(f"s_lshl_b32 s{S.T2}, s{S.T1}, 15")
    a(f"s_and_b32 s{S.T3}, s{S.WAVE}, 1")
    a(f"s_lshl1_add_u32 s{S.T3}, s{S.T0}, s{S.T3}")
    a(f"s_lshl_b32 s{S.T5}, s{S.T3}, 7")
    a(f"s_add_u32 s{S.T2}, s{S.T2}, s{S.T5}")
    a("v_lshrrev_b32 v6, 3, v0")
    a(f"v_lshl_add_u32 v6, v6, 10, s{S.T2}")
    a("v_lshl_add_u32 v4, v4, 4, v6")
    a("v_lshrrev_b32 v6, 5, v0")
    a(f"v_mul_u32_u24 v13, {PZ}, v6")
    a("v_and_b32 v6, 31, v0")
    a("v_lshl_add_u32 v13, v6, 3, v13")
    a(f"s_mul_i32 s{S.T2}, s{S.T3}, {2*PZ}")
    a(f"s_lshl_b32 s{S.T1}, s{S.T1}, 8")
    a(f"s_add_u32 s{S.T2}, s{S.T2}, s{S.T1}")
    a(f"s_add_u32 s{S.T2}, s{S.T2}, {WS_PART}")
    a(f"s_lshl_b32 s{S.L0}, s{S.L0}, 6")
    a(f"s_lshl_b32 s{S.L1}, s{S.L1}, 12")
    a(f"s_add_u32 s{S.PO}, s{S.L1}, {WS_XCH}")
    a(f"s_add_u32 s{S.POL}, s{S.PO}, {(o.xc-1)*XCHC}")
    a(f"s_lshl_b32 s{S.T1}, s{S.T0}, 10")
    a(f"s_add_u32 s{S.L1}, s{S.PO}, s{S.T1}")
    a(f"v_mov_b32 v14, {L_FKEY}")
    a(f"s_lshr_b32 s{S.T1}, s{S.WAVE}, 1")
    a(f"s_lshl_b32 s{S.T1}, s{S.T1}, 9")
    a(f"v_lshl_add_u32 v15, v6, 4, s{S.T1}")
    a("v_lshrrev_b32 v6, 5, v0")
    a("v_lshl_add_u32 v15, v6, 10, v15")
    a(f"s_mov_b32 s{S.PO0}, s{S.PO}")
    a(f"s_mov_b32 s{S.L10}, s{S.L1}")
    a(f"s_mov_b32 s{S.T20}, s{S.T2}")
    a(f"s_mov_b32 s{S.FIN}, 0")

    if o.flate:
        w_dma()

    def wd_dma():
        l = a.L("nowd")
        a(f"s_cmp_ge_u32 s{S.WAVE}, 4")
        a(f"s_cbranch_scc1 {l}")
        for b in range(4):
            a(f"s_add_u32 m0, s{S.T4}, {L_WD + 1024*b}")
            if b:
                a("v_add_u32 v4, 0x2000, v4")
            else:
                a.nop(1)
            a(f"global_load_lds_dwordx4 v4, s[{S.PWD}:{S.PWD+1}]{o.wdpol}")
        a.label(l)

    if o.wdpos == 0:
        wd_dma()
    if o.wdpos == 4:
        a("s_barrier")
        a(f"s_cmp_ge_u32 s{S.WAVE}, 4")
        a("s_cbranch_scc1 L_nowd4")
        for b in range(4):
            a(f"v_add_u32 v6, {0x2000*b}, v4")
            a(f"global_load_dwordx4 {V(80+4*b,4)}, v6, s[{S.PWD}:{S.PWD+1}]")
        a("s_waitcnt vmcnt(4)")
        a("s_branch L_nowd5")
        a.label("L_nowd4")
        a("s_waitcnt vmcnt(0)")
        a.label("L_nowd5")
    else:
        a("s_waitcnt vmcnt(0)")
    stamp(2)
    if o.fw0:
        a("s_barrier")
    if o.wdpos == 1:
        wd_dma()
    if o.xpre:
        for i in range(2):
            a(f"buffer_load_dwordx4 {V(64+4*i,4)}, v15, {R4(S.RWS)}, s{S.PO} offen offset:{2048*i} sc1")
    for k in range(8):
        a(f"ds_read_b64_tr_b16 {V(WG_+2*k,2)}, v9 offset:{L_W + k*512}")
    if o.ftouch:
        touch("L_tf", o.ftouch, 0, 8)
    a("s_waitcnt lgkmcnt(0)")
    a("s_barrier")
    a.label("L_tf_start")
    a("ds_read_b64 v[26:27], v14")
    a("s_waitcnt lgkmcnt(0)")
    a(f"v_readfirstlane_b32 s{S.FKEY}, v26")
    a.label("L_redo")
    a(f"s_andn2_b32 s{S.T0}, 2047, s{S.FKEY}")
    a(f"s_lshl_b32 s{S.T1}, s{S.T0}, 10")
    a(f"s_add_u32 s{S.T1}, s{S.T1}, s{S.L0}")
    a(f"s_load_dwordx16 s[{S.XS}:{S.XS+15}], {PXS}, s{S.T1}")
    stamp(5)
    a(f"v_xor_b32 v{VTAG}, s{S.T0}, v27")
    a(f"v_xor_b32 v29, s{S.T0}, v27")
    for r in (16, 17, 24, 25):
        a(f"v_mov_b32 v{r}, 0")
    a(f"s_mov_b32 s{S.PO}, s{S.PO0}")
    a(f"s_mov_b32 s{S.L1}, s{S.L10}")
    a(f"s_mov_b32 s{S.T2}, s{S.T20}")
    a(f"s_mov_b32 s{S.KM}, 0")
    a("s_waitcnt lgkmcnt(0)")
    for i in range(16):
        a(f"v_dot2c_f32_bf16 v{16+(i&1)}, s{S.XS+i}, v{WG_+i}")
    stamp(6)
    a.nop(3)
    a("v_add_f32 v16, v16, v17")
    a("ds_write_b32 v12, v16")
    a("s_waitcnt lgkmcnt(0)")
    a("s_barrier")
    a(f"s_lshl_b32 s{S.T0}, s{S.WAVE}, 4")
    a(f"s_lshl_b64 s[{S.EX}:{S.EX+1}], 0xffff, s{S.T0}")
    for i, (p, q) in enumerate(((0, 2), (4, 6), (1, 3), (5, 7))):
        a(f"ds_read2st64_b32 v[{16+2*i}:{17+2*i}], v11 offset0:{p} offset1:{q}")
    a("s_waitcnt lgkmcnt(2)")
    a("v_add_f32 v16, v16, v17")
    a("v_add_f32 v18, v18, v19")
    a("s_waitcnt lgkmcnt(0)")
    a("v_add_f32 v20, v20, v21")
    a("v_add_f32 v22, v22, v23")
    a("v_add_f32 v28, v16, v18")
    a(f"s_mov_b64 exec, s[{S.EX}:{S.EX+1}]")
    a("v_add_f32 v30, v20, v22")
    a(f"s_cmp_ge_u32 s{S.WAVE}, 4")
    a("s_cbranch_scc1 L_f5")
    a(f"buffer_store_dwordx4 v[28:31], v5, {R4(S.RWS)}, s{S.L1} offen{'' if o.xl2 else ' sc1'}")
    a("s_mov_b64 exec, -1")
    stamp(7)
    a("s_waitcnt vmcnt(1)")
    if o.wdpos == 4:
        a(f"v_add_u32 v6, s{S.T4}, v5")
        for b in range(4):
            a(f"ds_write_b128 v6, {V(80+4*b,4)} offset:{L_WD + 1024*b}")
        a("s_waitcnt lgkmcnt(0)")
    for k in range(8):
        a(f"ds_read_b64_tr_b16 {V(WD_+2*k,2)}, v9 offset:{L_WD + k*512}")
    if o.xsleep0:
        a(f"s_sleep {o.xsleep0}")
    stamp(8)
    a.label("L_fx")
    for i in range(2):
        a(f"buffer_load_dwordx4 {V(64+4*i,4)}, v15, {R4(S.RWS)}, s{S.PO} offen offset:{2048*i} sc1")
    if o.xl2:
        a(f"s_add_u32 s{S.KM}, s{S.KM}, 1")
        a(f"s_cmp_ge_u32 s{S.KM}, {o.xl2}")
        a(f"s_cselect_b32 s{S.T0}, {XCHC}, 0")
        a(f"s_add_u32 s{S.PO}, s{S.PO}, s{S.T0}")
    else:
        a(f"s_add_u32 s{S.PO}, s{S.PO}, {XCHC}")
    a(f"s_min_u32 s{S.PO}, s{S.PO}, s{S.POL}")
    if o.stamps:
        a(f"s_add_u32 s{S.RC}, s{S.RC}, 1")
    spin()
    a("s_cbranch_scc1 L_fx_ok")
    a("s_waitcnt vmcnt(1)")
    a(f"v_bitop3_b32 v20, v65, v67, v{VTAG} bitop3:0x7e")
    a("s_waitcnt vmcnt(0)")
    a("v_add_f32 v16, v64, v68")
    a("v_add_f32 v18, v66, v70")
    a(f"v_bitop3_b32 v21, v69, v71, v{VTAG} bitop3:0x7e")
    a("v_or_b32 v20, v20, v21")
    a("v_cmp_ne_u32 vcc, 0, v20")
    a("v_permlane32_swap_b32 v16, v18")
    a("s_cbranch_vccnz L_fxr")
    a.label("L_fx_ok")
    stamp(9)
    a("v_add_f32 v16, v16, v18")
    rnd(16, 16)
    a("v_mov_b32 v18, v16")
    sigmoid(17, 16)
    a("v_permlane32_swap_b32 v16, v18")
    a("v_mul_f32 v17, v17, v16")
    rnd(17, 17)
    a("v_mul_f32 v17, v17, v18")
    a.nop(2)
    a(f"v_mov_b32_dpp v18, v17 quad_perm:[1,0,3,2] {DPPM}")
    a("v_cvt_pk_bf16_f32 v17, v17, v18")
    a.nop(1)
    for i in range(16):
        a(f"v_readlane_b32 s{S.XS+i}, v17, {2*i}")
    a("s_waitcnt lgkmcnt(0)")
    for i in range(16):
        a(f"v_dot2c_f32_bf16 v{24+(i&1)}, s{S.XS+i}, v{WD_+i}")
    a.nop(3)
    a("v_add_f32 v30, v24, v25")
    for c in range(o.pc):
        if c:
            a(f"s_add_u32 s{S.T2}, s{S.T2}, {PARTC}")
        a(f"buffer_store_dwordx2 v[30:31], v13, {R4(S.RWS)}, s{S.T2} offen sc1")
    stamp(10)
    a.label("L_fend")
    a(f"s_cmp_lg_u32 s{S.FIN}, 0")
    a("s_cbranch_scc1 L_fexit")
    a("s_barrier")
    a("ds_read_b32 v26, v14 offset:8")
    a(f"s_mov_b32 s{S.FIN}, 1")
    a("s_waitcnt lgkmcnt(0)")
    a(f"v_readfirstlane_b32 s{S.T0}, v26")
    a(f"s_cmp_eq_u32 s{S.T0}, s{S.FKEY}")
    a(f"s_mov_b32 s{S.FKEY}, s{S.T0}")
    if o.stamps:
        a(f"s_cselect_b32 s{S.T1}, 0, 64")
        a(f"s_add_u32 s{S.RC}, s{S.RC}, s{S.T1}")
        a(f"s_cmp_eq_u32 s{S.T1}, 0")
    a("s_cbranch_scc0 L_redo")
    a.label("L_fexit")
    endprog()
    a.label("L_f5")
    for c in range(1, o.xc):
        a(f"s_add_u32 s{S.L1}, s{S.L1}, {XCHC}")
        a(f"buffer_store_dwordx4 v[28:31], v5, {R4(S.RWS)}, s{S.L1} offen sc1")
    a("s_mov_b64 exec, -1")
    a("s_branch L_fend")
    a.label("L_fxr")
    a("ds_read_b32 v26, v14 offset:8")
    a("s_waitcnt lgkmcnt(0)")
    a(f"v_readfirstlane_b32 s{S.T0}, v26")
    a(f"s_cmp_eq_u32 s{S.T0}, 0")
    a("s_cbranch_scc1 L_fx")
    a(f"s_cmp_eq_u32 s{S.T0}, s{S.FKEY}")
    a("s_cbranch_scc1 L_fx")
    a("s_branch L_fend")

    a.label("L_fh")
    a("s_waitcnt lgkmcnt(0)")
    if o.fesleep:
        a(f"s_sleep {o.fesleep}")
    tag_load()
    ws_setup()
    a(f"v_mov_b32 v14, {L_FKEY}")
    a("v_mov_b32 v6, 0")
    a("ds_write_b32 v14, v6 offset:8")
    if o.spec:
        poll_setup(WS_KEY + 1024 * (RF * CF + RZ * CZ + R2 * C2), 8, 1)
        a(f"s_sleep {o.spec}")
        a("s_waitcnt vmcnt(0)")
        tag_make()
        stamp(1)
        a(f"buffer_load_dwordx4 v[20:23], v5, {R4(S.RWS)}, s{S.PO} offen sc1")
        poll_setup(WS_KEY, RF, CF)
        a("s_waitcnt vmcnt(0)")
        stamp(2)
        a(f"v_cmp_ne_u32 vcc, v{VTAG}, v21")
        a(f"v_cmp_ne_u32 s[{S.EX}:{S.EX+1}], v{VTAG}, v23")
        a("s_mov_b64 exec, vcc")
        a("v_mov_b32 v20, 0")
        a(f"s_mov_b64 exec, s[{S.EX}:{S.EX+1}]")
        a("v_mov_b32 v22, 0")
        a("s_mov_b64 exec, -1")
        a(f"s_or_b64 s[{S.EY}:{S.EY+1}], vcc, s[{S.EX}:{S.EX+1}]")
        wave_max_key(20)
        lds_put(L_FKEY, 20, tag=True)
        a("s_barrier")
        a(f"s_cmp_eq_u64 s[{S.EY}:{S.EY+1}], 0")
        a("s_cbranch_scc1 L_fh2")
        if o.fsleep0:
            a(f"s_sleep {o.fsleep0}")
        stamp(3)
        poll_granules(5, 20, sleep=o.fsleep)
        stamp(4)
        wave_max_key(20)
        a.label("L_fh2")
        lds_put(L_FKEY + 8, 20)
    else:
        poll_setup(WS_KEY, RF, CF)
        if o.fsleep0:
            a(f"s_sleep {o.fsleep0}")
        a("s_waitcnt vmcnt(0)")
        tag_make()
        stamp(3)
        poll_granules(5, 20, sleep=o.fsleep, bar=o.wdpos == 4)
        stamp(4)
        wave_max_key(20)
        lds_put(L_FKEY, 20, tag=True)
        a("s_barrier")
        lds_put(L_FKEY + 8, 20)
    a("s_barrier")
    endprog()
    a.label("L_end")
    a("s_endpgm")
    return name


def main():
    ap = argparse.ArgumentParser()
    ap.add_argument("-o", required=True)
    for k, d in dict(stamps=0, pc=1, xc=2, zsleep=8, zsleep0=32, psleep=0, psleep0=20, rsleep=3, ackwait=0, hipre=0, tlate=1,
                     mode=0, k2ack=1, k2sleep0=6, zk2sleep0=0, k2sleep=5, fbar=0, cpf=0, cpf0=1, zx=0, htouch=0, probe=-1, wsoff=0, flate=1, b1a=1, skew=0, gate=8, lds=0, nsgpr=72, prio=1, stag=2, spec=0, b0=2, wthr=0, xpre=0, atouch=10, ftouch=8, xl2=8, npre=3, gfirst=0, isleep0=0, zisleep0=16, b3=1, ztouch=8, zstep=128, touch=0, wdpos=0, wpf=2, fesleep=0, fw0=0, xack=0, fdelay=0, xsleep0=3, fsleep0=46, fsleep=4, spin=17).items():
        ap.add_argument("--" + k, type=int, default=d)
    for k in ("wpol", "wdpol", "xpol", "outpol", "zpol", "only"):
        ap.add_argument("--" + k, default="nt" if k == "outpol" else "")
    ap.add_argument("--mf", default="8,2")
    ap.add_argument("--mz", default="1,3")
    ap.add_argument("--m2", default="8,2")
    ap.add_argument("--hold", default="")
    ap.add_argument("--ev", default="")
    o = ap.parse_args()
    if o.hold:
        o.hold = o.hold.split(":")
    for k in ("mf", "mz", "m2"):
        setattr(o, k, [int(v) for v in getattr(o, k).split(",")])
    for k in ("wpol", "wdpol", "xpol", "outpol", "zpol"):
        setattr(o, k, (" " + getattr(o, k)) if getattr(o, k) not in ("", "def") else "")
    a = Asm()
    name = gen(a, o)
    reg = []
    if o.touch:
        reg.append(("L_ta_start", "L_ta_end", "L_ta", "L_taback", o.touch))
    if o.htouch:
        reg.append(("L_ta_end", "L_zjoin", "L_th", "L_thback", o.htouch))
    if o.atouch:
        reg.append(("L_zjoin", "L_tb_end", "L_tb", "L_tbback", o.atouch))
    if o.ztouch:
        reg.append(("L_tz_start", "L_zend", "L_tz", "L_tzback", o.ztouch))
    if o.ftouch:
        reg.append(("L_tf_start", "L_fend", "L_tf", "L_tfback", o.ftouch))
    if reg:
        insert_stubs(a, reg, step=o.zstep)
    finish(a, name, NVGPR, 102 if (o.stamps or o.hold or o.probe >= 0) else o.nsgpr, NWG, 576, o.lds or LDS_BYTES, o.o)


main()
```

```python
import argparse
from lib import *

NA, NF, NZ = 128, 112, 16
NWG = NA + NF + NZ
WS_E = 0
WS_ALIVE = 4096
WS_KEY = 64 << 10
WS_KEY2 = 128 << 10
WS_XCH = 192 << 10
XCHC = 28 * 4096
WS_PART = 704 << 10
PZ = 56 * 256
PARTC = NZ * PZ
WS_INT = 2 << 20
CS = 32768 + 256
WS_STAMP = 8 << 20
WS_BYTES = 16 << 20
L_TILE = 0
L_U2 = 16384
L_CT = L_U2
UB = 17 * 64
L_MISC = L_U2 + 16 * UB
L_KSL = L_MISC
L_GKEY = L_MISC + 64
L_ZC = L_MISC + 76
L_ZF = L_MISC + 72
L_EXP = L_MISC + 128
L_DUMP = L_MISC + 192
L_XG2 = L_DUMP + 4 * UB + 256
L_M2 = L_XG2 + 4096
L_WV = L_M2 + 4096
L_XT = L_WV + 2048
L_W = 0
L_WD = 32768
L_RED = L_WD + 16384
L_FKEY = L_RED + 2048
LDS_BYTES = 84 * 1024
MF = "v_mfma_f32_16x16x32_bf16"
LOG2E = 0x3fb8aa3b
DPPM = "row_mask:0xf bank_mask:0xf"
HIM = "0xffff0000"
NVGPR = 168


class S:
    WAVE = 3
    PX = 4
    T0, T1, T2, T3, T4, T5 = 6, 7, 8, 9, 10, 11
    EX = 12
    EY = 14
    PWR, PWG, PWU, PWD, PGW, POUT, PDBG, PWS = 16, 18, 20, 22, 24, 26, 28, 30
    L0, L1, SPT, PIE = 32, 33, 34, 35
    RWS, ROUT = 36, 40
    XS = 44
    GKEY, WSEL, WHICH, Z = 44, 45, 46, 47
    SI0, SI1, ID8, BLK = 48, 49, 50, 51
    IDX, ISZ, TC = 54, 55, 53
    SO = 44
    T1C, HH, TD, TM = 56, 57, 58, 59
    FJ, PO, POL, RC, KM, SPIN = 60, 61, 62, 63, 64, 65
    PO0, L10, T20, FKEY, FIN = 40, 41, 42, 43, 35
    ST = 68


def gen(a, o):
    global WS_KEY, WS_XCH, WS_PART, WS_INT, WS_ALIVE, WS_BYTES
    WS_KEY += o.wsoff << 20
    WS_XCH += o.wsoff << 20
    WS_PART += o.wsoff << 20
    WS_INT += o.wsoff << 20
    WS_ALIVE += o.wsoff << 20
    WS_BYTES = max(WS_BYTES, (o.wsoff + 8) << 20)
    name = NAME + "_kernel"
    kernel_head(a, name)
    VE, VTAG = 30, 31
    PXS = f"s[{S.PX}:{S.PX+1}]"

    def stamp(i):
        if o.stamps:
            a(f"s_memrealtime s[{S.ST+2*i}:{S.ST+2*i+1}]")

    def hold(cp):
        if o.hold and o.hold[0] == cp:
            l = a.L("hold")
            a.label(l)
            a("s_sleep 1")
            a("s_memrealtime s[100:101]")
            a("s_waitcnt lgkmcnt(0)")
            a("s_sub_u32 s100, s100, s66")
            a(f"s_cmp_lt_u32 s100, {o.hold[1]}")
            a(f"s_cbranch_scc1 {l}")

    def touch(pre, n, first, step, back=None, tail=None):
        a("s_mov_b64 exec, 0")
        a(f"s_sub_u32 s{S.TC}, s{S.WAVE}, {first + step}")
        a.label(f"{pre}back")
        a(f"s_add_u32 s{S.TC}, s{S.TC}, {step}")
        for k in range(n):
            a(f"s_cmp_eq_u32 s{S.TC}, {k}")
            a(f"s_cbranch_scc1 {pre}{k}")
        a("s_mov_b64 exec, -1")

    def endprog():
        if o.stamps:
            a("s_waitcnt lgkmcnt(0)")
            a(f"s_add_u32 s{S.ST+28}, s{S.RC}, s{S.ST+30}")
            for i in range(16):
                a(f"v_writelane_b32 v166, s{S.ST+2*i}, {i}")
            a("s_mov_b64 exec, 0xffff")
            a(f"s_lshl4_add_u32 s{S.T0}, s2, s{S.WAVE}")
            a(f"s_lshl_b32 s{S.T0}, s{S.T0}, 7")
            a(f"s_add_u32 s{S.T0}, s{S.T0}, {WS_STAMP}")
            a(f"v_lshl_add_u32 v165, v0, 3, s{S.T0}")
            a("v_mov_b32 v167, 0")
            a(f"global_store_dwordx2 v165, v[166:167], s[{S.RWS}:{S.RWS+1}]" + (" sc1" if o.ev else ""))
        a("s_endpgm")

    def spin():
        a(f"s_add_u32 s{S.SPIN}, s{S.SPIN}, 1")
        a(f"s_lshr_b32 s{S.SPT}, s{S.SPIN}, {o.spin}")

    def poll_setup(base, R, C):
        a(f"s_and_b32 s{S.PO}, s2, {R-1}")
        a(f"s_mul_i32 s{S.PO}, s{S.PO}, {1024*C}")
        a(f"s_add_u32 s{S.PO}, s{S.PO}, {base}")
        a(f"s_add_u32 s{S.POL}, s{S.PO}, {1024*(C-1)}")

    def set_exec(n):
        if n >= 64:
            a("s_mov_b64 exec, -1")
        elif n <= 31:
            a(f"s_mov_b64 exec, {(1 << n) - 1:#x}")
        else:
            a("s_mov_b32 exec_lo, -1")
            a(f"s_mov_b32 exec_hi, {(1 << (n - 32)) - 1:#x}")

    RS = 8 * o.smem
    RF, CF = o.mf
    RZ, CZ = o.mz
    R2, C2 = o.m2
    assert RF * CF + RZ * CZ + R2 * C2 + RS <= 64

    def poll_granules(vaddr, vd, sleep=0, step=1024, bar=False):
        l = a.L("poll")
        if sleep:
            a(f"s_branch {l}_1")
        a.label(l)
        if sleep:
            a(f"s_sleep {sleep}")
            a.label(f"{l}_1")
        a(f"buffer_load_dwordx4 {V(vd,4)}, v{vaddr}, {R4(S.RWS)}, s{S.PO} offen sc1")
        a(f"s_add_u32 s{S.PO}, s{S.PO}, {step}")
        a(f"s_min_u32 s{S.PO}, s{S.PO}, s{S.POL}")
        if bar:
            a(f"s_cmp_lg_u32 s{S.SPIN}, 0")
            a(f"s_cbranch_scc1 {l}_2")
            a("s_barrier")
            a.label(f"{l}_2")
        if o.stamps:
            a(f"s_add_u32 s{S.RC}, s{S.RC}, 1")
        spin()
        a("s_waitcnt vmcnt(0)")
        a(f"s_cbranch_scc1 {l}_ok")
        a(f"v_cmp_ne_u32 vcc, v{VTAG}, v{vd+1}")
        a(f"v_cmp_ne_u32 s[{S.EX}:{S.EX+1}], v{VTAG}, v{vd+3}")
        a(f"s_or_b64 vcc, vcc, s[{S.EX}:{S.EX+1}]")
        a(f"s_cbranch_vccnz {l}")
        a.label(f"{l}_ok")

    def wave_max_key(vd):
        a(f"v_max_u32 v{vd}, v{vd}, v{vd+2}")
        for r in ("row_ror:8", "row_ror:4", "row_ror:2", "row_ror:1"):
            a.nop(2)
            a(f"v_max_u32_dpp v{vd}, v{vd}, v{vd} {r} {DPPM}")
        a.nop(2)
        a(f"v_max_u32_dpp v{vd}, v{vd}, v{vd} row_bcast:15 row_mask:0xa bank_mask:0xf")
        a.nop(2)
        a(f"v_max_u32_dpp v{vd}, v{vd}, v{vd} row_bcast:31 row_mask:0xc bank_mask:0xf")

    def lds_put(addr, v, tag=False):
        a(f"v_mov_b32 v9, {addr}")
        a("s_mov_b32 exec_lo, 0")
        a("s_brev_b32 exec_hi, 1")
        if tag:
            a(f"ds_write2_b32 v9, v{v}, v{VTAG} offset1:1")
        else:
            a(f"ds_write_b32 v9, v{v}")
        a("s_mov_b64 exec, -1")
        a("s_waitcnt lgkmcnt(0)")

    def sigmoid(d, s):
        a(f"v_mul_f32 v{d}, {LOG2E | 0x80000000:#x}, v{s}")
        a(f"v_exp_f32 v{d}, v{d}")
        a.nop(1)
        a(f"v_add_f32 v{d}, 1.0, v{d}")
        a(f"v_rcp_f32 v{d}, v{d}")
        a.nop(1)

    def rnd(d, s):
        a(f"v_cvt_pk_bf16_f32 v{d}, v{s}, v{s}")
        a(f"v_and_b32 v{d}, {HIM}, v{d}")

    def ws_setup():
        a.srd(S.RWS, S.PWS, WS_BYTES)
        a(f"s_mov_b32 s{S.SPIN}, 0")

    def tag_load():
        a(f"v_mov_b32 v{VTAG}, 0")
        a(f"global_load_dword v{VE}, v{VTAG}, s[{S.PWS}:{S.PWS+1}]")
        a(f"s_mov_b32 s{S.KM}, 0x9E3779B1")

    def tag_make():
        a(f"v_mul_lo_u32 v{VTAG}, v{VE}, s{S.KM}")
        a(f"v_add_u32 v{VTAG}, 0x7F4A7C15, v{VTAG}")

    a(f"s_load_dwordx2 s[{S.PX}:{S.PX+1}], s[0:1], {KA_X}")
    a(f"s_load_dwordx16 s[16:31], s[0:1], {KA_WR}")
    if o.cpf0:
        a(f"s_cmp_ge_u32 s2, {8*o.cpf0}")
        a("s_cbranch_scc1 L_nocpf0")
        a(f"s_getpc_b64 s[{S.EX}:{S.EX+1}]")
        a.label("L_pc0")
        a("v_lshlrev_b32 v6, 7, v0")
        a(f"v_min_u32 v6, L_end - L_pc0, v6")
        a(f"v_mov_b32 v13, s{S.EX+1}")
        a(f"v_add_co_u32 v12, vcc, s{S.EX}, v6")
        a.nop(2)
        a("v_addc_co_u32 v13, vcc, 0, v13, vcc")
        a("global_load_dword v164, v[12:13], off")
        a.label("L_nocpf0")
    if o.stamps:
        for i in range(1, 16):
            a(f"s_mov_b32 s{S.ST+2*i}, 0")
        a(f"s_mov_b32 s{S.RC}, 0")
    stamp(0)
    if o.hold or o.probe >= 0:
        a("s_memrealtime s[66:67]")
    if o.skew:
        a("s_and_b32 s6, s2, 7")
        a("s_cmp_lg_u32 s6, 5")
        a("s_cbranch_scc1 L_noskew")
        a(f"s_sleep {o.skew}")
        a.label("L_noskew")
    a("v_lshrrev_b32 v1, 6, v0")
    a("v_and_b32 v0, 63, v0")
    a(f"v_readfirstlane_b32 s{S.WAVE}, v1")
    a("v_and_b32 v1, 15, v0")
    a("v_lshrrev_b32 v2, 4, v0")
    a(f"s_and_b32 s{S.T0}, s2, 7")
    a(f"s_sub_u32 s{S.WAVE}, s{S.WAVE}, 1")
    a(f"s_min_u32 s{S.WAVE}, s{S.WAVE}, 8")
    a(f"s_lshr_b32 s{S.T1}, s2, 3")
    a(f"s_cmp_ge_u32 s2, {NA}")
    a("s_cbranch_scc1 L_notA")
    if o.only == "F":
        a("s_endpgm")

    VROW, VG16, VSGN, VTR, VST = 3, 5, 8, 10, 11
    VLD, VUW, VUX, VUR0, VUR1 = 10, 11, 28, 29, 30
    XR, WR, GW, CO = 16, 24, 24, 24
    CM, AOP, ACC = 32, 96, 112
    LD, DA0, DA1, TP, X16, PK = 32, 64, 32, 80, 96, 48
    M1, GA, XG = 100, 148, 152
    Cc, Ss = 64, 68
    UO, PQ, M2 = 32, 48, 64

    def rows_setup(wreg):
        a(f"s_lshl3_add_u32 s{S.T5}, s{S.HH}, s{wreg}")
        a(f"s_lshl_b32 s{S.T5}, s{S.T5}, 7")
        a(f"s_add_u32 s{S.TD}, s{S.T5}, s{S.T1C}")
        a(f"s_sub_u32 s{S.TM}, 2048, s{S.TD}")
        a(f"s_cmp_eq_u32 s{S.TD}, 0")
        a(f"s_cselect_b32 s{S.TM}, 1024, s{S.TM}")
        a(f"s_lshl_b32 s{S.T4}, s{S.TD}, 10")
        a(f"s_lshl_b32 s{S.T5}, s{S.TM}, 10")
        a(f"v_add_u32 v6, s{S.T4}, v{VG16}")
        a(f"v_add_u32 v7, s{S.T5}, v{VG16}")

    def vrow_setup():
        a("v_and_b32 v6, 1, v2")
        a("v_lshlrev_b32 v6, 5, v6")
        a("v_lshl_add_u32 v6, v1, 6, v6")
        a("v_lshrrev_b32 v7, 1, v2")
        a(f"v_lshl_add_u32 v{VROW}, v7, 4, v6")

    def rows_load():
        a(f"global_load_dwordx4 {V(XR,4)}, v6, {PXS}{o.xpol}")
        a(f"global_load_dwordx4 {V(XR+4,4)}, v7, {PXS}{o.xpol}")

    def sgn_setup():
        a(f"v_lshlrev_b32 v{VSGN}, 31, v1")
        a(f"v_lshrrev_b32 v9, 16, v{VSGN}")
        a(f"v_or_b32 v{VSGN}, v{VSGN}, v9")

    def sgn_setup2():
        a(f"v_lshlrev_b32 v{VSGN}, 31, v1")
        a(f"v_lshrrev_b32 v14, 16, v{VSGN}")
        a(f"v_or_b32 v{VSGN}, v{VSGN}, v14")

    def tile_ids():
        a(f"s_bitcmp1_b32 s{S.T1}, 3")
        a(f"s_cselect_b32 s{S.T2}, s{S.T3}, s{S.T2}")
        a(f"s_and_b32 s{S.T3}, s{S.T1}, 7")
        a(f"s_lshl3_add_u32 s{S.BLK}, s{S.T2}, s{S.T3}")
        a(f"s_lshl_b32 s{S.PIE}, s{S.T2}, 5")
        a(f"s_add_u32 s{S.PIE}, s{S.PIE}, s{S.T3}")
        a(f"s_lshl_b32 s{S.PIE}, s{S.PIE}, 6")

    def vst_setup():
        a(f"v_mul_u32_u24 v{VST}, {CS}, v1")
        a(f"v_lshl_add_u32 v{VST}, v2, 4, v{VST}")

    def const_d2():
        R = 40
        a("v_lshlrev_b32 v6, 2, v2")
        a("v_cvt_f32_u32 v7, v1")
        a("v_cvt_f32_u32 v6, v6")
        a("v_mul_f32 v7, 0x3d800000, v7")
        for hf in range(2):
            if hf:
                a("v_add_f32 v7, 0x3d800000, v7")
            a("v_mul_f32 v9, v6, v7")
            for jj in range(4):
                a(f"v_cos_f32 v{Cc+jj}, v9")
                a(f"v_sin_f32 v{Ss+jj}, v9")
                if jj < 3:
                    a("v_add_f32 v9, v9, v7")
            a.nop(1)
            for jj in range(4):
                if hf == 0:
                    a(f"v_cvt_pk_bf16_f32 v{R+jj}, v{Cc+jj}, v{Ss+jj}")
                    a(f"v_cvt_pk_bf16_f32 v{R+8+jj}, -v{Ss+jj}, v{Cc+jj}")
                else:
                    a(f"v_cvt_pk_bf16_f32 v{R+4+jj}, v{Cc+jj}, -v{Ss+jj}")
                    a(f"v_cvt_pk_bf16_f32 v{R+12+jj}, -v{Ss+jj}, -v{Cc+jj}")
        for k in range(4):
            a(f"ds_write_b128 v{VG16}, {V(R+4*k,4)} offset:{L_M2 + 1024*k}")

    a(f"s_add_u32 s{S.T2}, s{S.T0}, 1")
    a(f"s_sub_u32 s{S.T3}, 15, s{S.T0}")
    a(f"s_cmp_eq_u32 s{S.WAVE}, 8")
    a("s_cbranch_scc1 L_ah")
    a(f"s_and_b32 s{S.HH}, s{S.T1}, 1")
    a(f"s_bitcmp1_b32 s{S.T1}, 1")
    a(f"s_cselect_b32 s{S.T4}, s{S.T3}, s{S.T2}")
    a(f"s_lshr_b32 s{S.T5}, s{S.T1}, 2")
    a(f"s_lshl4_add_u32 s{S.T1C}, s{S.T5}, s{S.T4}")
    a(f"v_lshlrev_b32 v{VG16}, 4, v0")
    a(f"v_mov_b32 v{VROW}, 0")
    a(f"s_cmp_lg_u32 s{S.T0}, 7")
    a("s_cbranch_scc1 L_k7")
    a(f"s_lshr_b32 s{S.T5}, s{S.T1}, 1")
    a(f"s_lshl3_add_u32 s{S.T1C}, s{S.T5}, 8")
    a(f"s_mov_b32 s{S.T2}, 0")
    a(f"s_cmp_eq_u32 s2, 127")
    a(f"s_cselect_b32 s{S.T1C}, 0, s{S.T1C}")
    a(f"s_cselect_b32 s{S.HH}, 0, s{S.HH}")
    a.label("L_k7")
    rows_setup(S.WAVE)
    a("s_waitcnt lgkmcnt(0)")
    rows_load()
    stamp(1)
    if o.touch:
        touch("L_ta", o.touch, 0, 8)
    a.label("L_ta_start")
    if o.b0 == 2:
        a("s_barrier")
    tile_ids()

    def tile_dma():
        a(f"s_lshl_b32 s{S.T4}, s{S.WAVE}, 11")
        a(f"s_add_u32 s{S.T5}, s{S.T4}, s{S.BLK}")
        a(f"s_lshl_b32 s{S.T5}, s{S.T5}, 7")
        a(f"s_mov_b32 m0, s{S.T4}")
        a("v_and_b32 v9, 7, v0")
        a("v_bfe_u32 v13, v0, 4, 1")
        a("v_xor_b32 v9, v9, v13")
        a("v_lshrrev_b32 v13, 3, v0")
        a(f"v_lshl_add_u32 v9, v9, 4, s{S.T5}")
        a("v_lshl_add_u32 v13, v13, 14, v9")
        a(f"global_load_lds_dwordx4 v13, {PXS}")
        a(f"s_add_u32 m0, s{S.T4}, 1024")
        a("v_add_u32 v13, 0x20000, v13")
        a(f"global_load_lds_dwordx4 v13, {PXS}")
        stamp(2)

    if not o.tlate:
        tile_dma()
    C1, S1, K = AOP, AOP + 4, AOP + 8
    a(f"s_lshr_b32 s{S.T0}, s{S.WAVE}, 2")
    a(f"s_and_b32 s{S.T1}, s{S.WAVE}, 1")
    a(f"s_bfe_u32 s{S.T2}, s{S.WAVE}, 0x10001")
    a(f"v_lshl_add_u32 v6, s{S.T0}, 4, v1")
    a(f"s_lshl3_add_u32 s{S.T3}, s{S.T2}, s{S.T1}")
    a(f"s_lshl_b32 s{S.T3}, s{S.T3}, 2")
    a("v_cvt_f32_u32 v6, v6")
    a(f"v_lshl_add_u32 v7, v2, 3, s{S.T3}")
    a("v_mul_f32 v6, 0x3c000000, v6")
    a("v_cvt_f32_u32 v7, v7")
    a("v_mul_f32 v7, v7, v6")
    for j in range(4):
        a(f"v_cos_f32 v{C1+j}, v7")
        a(f"v_sin_f32 v{S1+j}, v7")
        if j < 3:
            a("v_add_f32 v7, v7, v6")
    if o.tlate == 2:
        a(f"global_load_dwordx4 {V(WR,4)}, v{VG16}, s[{S.PWR}:{S.PWR+1}]")
        tile_dma()
    a(f"s_lshl_b32 s{S.T4}, s{S.T0}, 13")
    a(f"s_lshl_b32 s{S.T5}, s{S.T2}, 10")
    a(f"s_lshl3_add_u32 s{S.T5}, s{S.T1}, s{S.T5}")
    a(f"v_add_u32 v15, s{S.T4}, v{VG16}")
    a(f"v_add_u32 v9, s{S.T5}, v15")
    a(f"v_cvt_pk_bf16_f32 v{K+0}, v{C1}, v{C1+1}")
    a(f"v_cvt_pk_bf16_f32 v{K+1}, v{C1+2}, v{C1+3}")
    a(f"v_cvt_pk_bf16_f32 v{K+2}, -v{S1}, -v{S1+1}")
    a(f"v_cvt_pk_bf16_f32 v{K+3}, -v{S1+2}, -v{S1+3}")
    a("v_cmp_eq_f32 vcc, 0, v6")
    a(f"v_cvt_pk_bf16_f32 v{K+4}, v{C1}, -v{S1+1}")
    a(f"v_cvt_pk_bf16_f32 v{K+5}, -v{C1+2}, v{S1+3}")
    a(f"v_cvt_pk_bf16_f32 v{K+6}, -v{S1}, -v{C1+1}")
    a(f"v_cvt_pk_bf16_f32 v{K+7}, v{S1+2}, v{C1+3}")
    a(f"ds_write_b64 v9, {V(K,2)} offset:{L_CT}")
    a(f"ds_write_b64 v9, {V(K+4,2)} offset:{L_CT+4096}")
    a(f"ds_write_b64 v9, {V(K+6,2)} offset:{L_CT+6144}")
    a("s_mov_b64 exec, vcc")
    a(f"v_mov_b32 v{K+2}, 0xbf803f80")
    a(f"v_mov_b32 v{K+3}, 0xbf803f80")
    a("s_mov_b64 exec, -1")
    a(f"ds_write_b64 v9, {V(K+2,2)} offset:{L_CT+2048}")
    if o.tlate != 2:
        a(f"global_load_dwordx4 {V(WR,4)}, v{VG16}, s[{S.PWR}:{S.PWR+1}]")
    if o.tlate == 1:
        tile_dma()
    a("v_mov_b32 v12, 0")
    a("v_mov_b32 v13, 0")
    stamp(3)
    if o.b0 == 1:
        a("s_waitcnt lgkmcnt(0)")
        a("s_barrier")
        for k in range(2):
            for t in range(4):
                a(f"ds_read_b128 {V(CM+16*t+4*k,4)}, v15 offset:{L_CT + t*2048 + k*1024}")

    def dots(w, fill=()):
        fill = list(fill)

        def pad(n):
            while n and fill:
                a(fill.pop(0))
                n -= 1
            a.nop(n)

        for i in range(4):
            a(f"v_dot2c_f32_bf16 v12, v{XR+i}, v{w+i}")
            a(f"v_dot2c_f32_bf16 v13, v{XR+4+i}, v{w+i}")
        pad(3)
        a("v_permlane32_swap_b32 v12, v13")
        a("v_add_f32 v12, v12, v13")
        a("v_mov_b32 v13, v12")
        pad(2)
        a("v_permlane16_swap_b32 v12, v13")
        a("v_add_f32 v12, v12, v13")
        for r in (8, 4, 2, 1):
            pad(2)
            a(f"v_add_f32_dpp v12, v12, v12 row_ror:{r} {DPPM}")
        rnd(12, 12)
        for x in fill:
            a(x)

    a(f"s_waitcnt vmcnt({2 if o.tlate else 0})")
    stamp(4)
    dots(WR, [f"s_sub_u32 s{S.T4}, 0xffff, s{S.TD}", f"s_sub_u32 s{S.T5}, 0xffff, s{S.TM}", f"v_mov_b32 v4, s{S.T4}",
              f"v_writelane_b32 v4, s{S.T5}, 32", f"v_mov_b32 v9, {L_KSL}",
              f"v_lshlrev_b32 v{VSGN}, 31, v1", f"v_lshrrev_b32 v7, 16, v{VSGN}", f"v_or_b32 v{VSGN}, v{VSGN}, v7",
              "v_bfe_u32 v6, v0, 2, 2", "v_and_b32 v14, 3, v0", f"v_lshl_add_u32 v14, v14, 1, s{S.T2}",
              f"v_lshl_add_u32 v{VTR}, v2, 3, v6", "v_lshrrev_b32 v6, 1, v6", "v_xor_b32 v14, v14, v6"])
    a("v_ashrrev_i32 v7, 31, v12")
    a("v_or_b32 v7, 0x80000000, v7")
    a("v_xor_b32 v7, v7, v12")
    a(f"v_and_b32 v7, {HIM}, v7")
    a("v_or_b32 v7, v7, v4")
    a("s_mov_b32 exec_lo, 1")
    a("s_mov_b32 exec_hi, 1")
    a("ds_max_u32 v9, v7")
    a("s_mov_b64 exec, -1")
    if o.b1a:
        a("s_waitcnt lgkmcnt(0)")
        hold("K")
        a("s_barrier")
    if o.b0 == 2:
        for k in range(2):
            for t in range(4):
                a(f"ds_read_b128 {V(CM+16*t+4*k,4)}, v15 offset:{L_CT + t*2048 + k*1024}")
    a(f"s_lshl_b32 s{S.T1}, s{S.T1}, 3")
    a(f"v_lshl_add_u32 v14, v14, 4, s{S.T1}")
    a(f"v_lshl_add_u32 v{VTR}, v{VTR}, 7, v14")
    a("v_lshlrev_b32 v9, 4, v2")
    a("s_waitcnt vmcnt(0)" + ("" if o.b0 == 2 else " lgkmcnt(0)"))
    hold("B1")
    a("s_barrier")
    stamp(5)
    if o.b0 == 2:
        a("s_waitcnt lgkmcnt(5)")
    a(f"ds_read_b128 v[28:31], v9 offset:{L_EXP}")
    for k in range(4):
        for h in range(2):
            a(f"ds_read_b64_tr_b16 {V(AOP+4*k+2*h,2)}, v{VTR} offset:{L_TILE + k*4096 + h*512}")
        if k < 2 and not o.b0:
            for t in range(4):
                a(f"ds_read_b128 {V(CM+16*t+4*k,4)}, v15 offset:{L_CT + t*2048 + k*1024}")
        if k == 1 and not o.b0:
            a("s_waitcnt lgkmcnt(9)")
    a(f"global_load_dwordx4 {V(GW,4)}, v{VG16}, s[{S.PGW}:{S.PGW+1}]")
    xors = [f"v_xor_b32 v{CM+t*16+8+4*kp+r}, v{CM+t*16+4*kp+r}, v{VSGN}" for kp in range(2) for t in range(4) for r in range(4)]
    misc = [f"s_mul_i32 s{S.SO}, s{S.T0}, {16*CS}",
            f"s_add_u32 s{S.SO}, s{S.SO}, s{S.PIE}",
            f"s_and_b32 s{S.T4}, s{S.WAVE}, 3",
            f"s_lshl_b32 s{S.T4}, s{S.T4}, 9",
            f"s_add_u32 s{S.SO}, s{S.SO}, s{S.T4}",
            f"s_add_u32 s{S.SO}, s{S.SO}, {WS_INT}",
            f"s_mov_b32 s{S.RWS}, s{S.PWS}", f"s_mov_b32 s{S.RWS+1}, s{S.PWS+1}", f"s_mov_b32 s{S.RWS+2}, {WS_BYTES:#x}",
            f"s_mov_b32 s{S.RWS+3}, 0x20000",
            f"s_add_u32 s{S.SO+1}, s{S.SO}, {32*CS}", f"s_mov_b32 s{S.T5}, 0xfffefffe", f"s_mov_b32 s{S.T4}, 0x07060302",
            f"v_mul_u32_u24 v{VST}, {CS}, v1", f"v_lshl_add_u32 v{VST}, v2, 4, v{VST}",
            ]
    fill = xors + misc
    for k in range(4):
        for t in range(4):
            if o.b0:
                if t == 0:
                    a(f"s_waitcnt lgkmcnt({6-2*k})")
            elif k == 0:
                a(f"s_waitcnt lgkmcnt({13-t})")
            elif k == 1:
                a(f"s_waitcnt lgkmcnt({7-t})")
            elif t == 0:
                a(f"s_waitcnt lgkmcnt({2 if k == 2 else 0})")
            c = "0" if k == 0 else V(ACC + 4 * t, 4)
            a(f"{MF} {V(ACC+4*t,4)}, {V(AOP+4*k,4)}, {V(CM+16*t+4*k,4)}, {c}")
            n = 4 if k < 2 else 2
            if k < 3 or t < 3:
                for _ in range(n):
                    if fill:
                        x = fill.pop(0)
                        if x != "TAGWAIT":
                            a(x)
    for x in fill:
        a(x)
    a("v_mov_b32 v12, 0")
    a("v_mov_b32 v13, 0")
    for h in range(2):
        for i in range(8):
            a(f"v_add_u32 v{ACC+8*h+i}, 0x10000, v{ACC+8*h+i}")
        for i in range(4):
            a(f"v_perm_b32 v{AOP+4*h+i}, v{ACC+8*h+4+i}, v{ACC+8*h+i}, s{S.T4}")
        for i in range(4):
            a(f"v_and_or_b32 v{AOP+4*h+i}, v{AOP+4*h+i}, s{S.T5}, v{28+i}")
        a(f"buffer_store_dwordx4 {V(AOP+4*h,4)}, v{VST}, {R4(S.RWS)}, s{S.SO+h} offen sc1")
    a(f"s_mov_b32 s{S.SPIN}, 0")
    a(f"s_mov_b32 s{S.ISZ}, 0")
    stamp(7)
    if o.only == "P1":
        a("s_endpgm")
    a.label("L_ta_end")

    gwait = [2]

    def gates(full):
        if full:
            a(f"s_waitcnt vmcnt({gwait[0]})")
        dots(GW)
        if full:
            a(f"s_lshl_b32 s{S.T0}, s{S.WAVE}, 11")
            a(f"v_add_u32 v6, s{S.T0}, v{VG16}")
            a(f"ds_write_b128 v6, {V(XR,4)} offset:{L_XT}")
            a(f"ds_write_b128 v6, {V(XR+4,4)} offset:{L_XT+1024}")
            a(f"v_lshl_add_u32 v7, v1, 6, s{S.T0}")
            a("v_lshl_add_u32 v7, v2, 3, v7")
            a("s_waitcnt lgkmcnt(0)")
            for r in range(2):
                a(f"ds_read2_b64 {V(XR+4*r,4)}, v7 offset0:{0} offset1:{4}" if False else f"ds_read_b64 {V(XR+4*r,2)}, v7 offset:{L_XT+1024*r}")
                a(f"ds_read_b64 {V(XR+4*r+2,2)}, v7 offset:{L_XT+1024*r+32}")
            vrow_setup()
        sigmoid(13, 12)
        rnd(13, 13)
        a("v_sub_f32 v14, 1.0, v13")
        rnd(14, 14)
        a(f"v_readlane_b32 s{S.T0}, v13, 0")
        a(f"v_readlane_b32 s{S.T1}, v13, 32")
        a(f"v_readlane_b32 s{S.T2}, v14, 0")
        a(f"v_readlane_b32 s{S.T3}, v14, 32")
        a(f"s_xor_b32 s{S.T4}, s{S.T0}, 0x80000000")
        a(f"s_cmp_eq_u32 s{S.TD}, 0")
        a(f"s_cselect_b32 s{S.T4}, 0, s{S.T4}")
        a(f"s_cselect_b32 s{S.T5}, 0, s{S.T1}")
        if not full:
            return
        a(f"v_mov_b32 v{CO}, s{S.T0}")
        a(f"v_mov_b32 v{CO+1}, s{S.T4}")
        a(f"v_mov_b32 v{CO+2}, s{S.T5}")
        a(f"v_mov_b32 v{CO+3}, s{S.T1}")
        a(f"v_mov_b32 v13, s{S.T2}")
        a(f"v_mov_b32 v14, s{S.T3}")
        a("s_waitcnt lgkmcnt(0)")
        for r in range(2):
            for i in range(4):
                a(f"v_lshlrev_b32 v{XG+8*r+2*i}, 16, v{XR+4*r+i}")
                a(f"v_and_b32 v{XG+8*r+2*i+1}, {HIM}, v{XR+4*r+i}")
            for i in range(8):
                a(f"v_mul_f32 v{XG+8*r+i}, v{13+r}, v{XG+8*r+i}")

    def addr_ur(wreg):
        a(f"s_mul_i32 s{S.T1}, s{wreg}, {2*UB}")
        a("v_bfe_u32 v7, v1, 1, 2")
        a("v_xor_b32 v7, v7, v2")
        a(f"v_lshl_add_u32 v7, v7, 4, s{S.T1}")
        a(f"v_lshl_add_u32 v{VUR0}, v1, 6, v7")
        a("v_sub_u32 v6, 16, v1")
        a("v_bfe_u32 v7, v6, 1, 2")
        a("v_xor_b32 v7, v7, v2")
        a(f"v_lshl_add_u32 v7, v7, 4, s{S.T1}")
        a(f"v_lshl_add_u32 v{VUR1}, v6, 6, v7")

    def addr_p2():
        a("v_lshlrev_b32 v6, 4, v1")
        a(f"v_lshl_add_u32 v{VLD}, v2, 13, v6")
        a(f"v_mul_u32_u24 v6, {4*UB}, v2")
        a("v_bfe_u32 v7, v1, 1, 2")
        a(f"v_xor_b32 v7, s{S.WAVE}, v7")
        a("v_lshl_add_u32 v7, v7, 4, v6")
        a(f"v_lshl_add_u32 v{VUW}, v1, 6, v7")
        a(f"s_lshl4_add_u32 s{S.T1}, s{S.WAVE}, 1024")
        a(f"v_mov_b32 v9, {L_DUMP - L_U2}")
        a(f"v_lshl_add_u32 v{VUX}, v0, 1, v9")
        a(f"v_lshl_add_u32 v7, v1, 1, s{S.T1}")
        a("s_mov_b32 exec_lo, 0x00ff00ff")
        a("s_mov_b32 exec_hi, 0x00ff00ff")
        a(f"v_add_u32 v{VUX}, v7, v6")
        a("s_mov_b64 exec, -1")

    EXP = 96

    def exp_setup():
        a("v_and_b32 v6, 3, v1")
        a("v_lshlrev_b32 v6, 4, v6")
        a(f"ds_read_b128 {V(EXP,4)}, v6 offset:{L_EXP}")
        a("s_waitcnt lgkmcnt(0)")

    def exp_make():
        a("v_lshlrev_b32 v6, 1, v1")
        a(f"v_lshrrev_b32 v6, v6, v{VTAG}")
        a("v_lshlrev_b32 v7, 15, v6")
        a("v_and_b32 v6, 1, v6")
        a("v_and_b32 v7, 0x10000, v7")
        a("v_or_b32 v6, v6, v7")
        a("v_lshlrev_b32 v7, 2, v1")
        a(f"ds_write_b32 v7, v6 offset:{L_EXP}")
        a("s_waitcnt lgkmcnt(0)")

    def const_d1():
        a("v_cvt_f32_u32 v6, v1")
        a(f"s_lshl_b32 s{S.T0}, s{S.WAVE}, 2")
        a(f"v_lshl_add_u32 v7, v2, 6, s{S.T0}")
        a("v_mul_f32 v6, 0x3b000000, v6")
        a("v_cvt_f32_u32 v7, v7")
        a("v_mul_f32 v15, 0x41800000, v6")
        a("v_mul_f32 v7, v7, v6")
        for ib in range(4):
            if ib:
                a("v_add_f32 v7, v7, v6")
            for j in range(4):
                src = "v7" if j == 0 else "v9"
                a(f"v_cos_f32 v{Cc+j}, {src}")
                a(f"v_sin_f32 v{Ss+j}, {src}")
                if j < 3:
                    a(f"v_add_f32 v9, {src}, v15")
            b = M1 + 12 * ib
            a(f"v_mov_b32 v{b+8}, 0")
            for p in range(2):
                a(f"v_cvt_pk_bf16_f32 v{b+p}, v{Cc+2*p}, v{Cc+2*p+1}")
                a(f"v_cvt_pk_bf16_f32 v{b+4+p}, -v{Ss+2*p}, -v{Ss+2*p+1}")
            for p in range(2):
                a(f"v_xor_b32 v{b+2+p}, v{b+p}, v{VSGN}")
                a(f"v_xor_b32 v{b+6+p}, v{b+4+p}, v{VSGN}")
        a("v_lshrrev_b32 v6, 1, v1")
        a(f"v_add_u32 v7, s{S.T0}, v6")
        a("v_and_b32 v9, 1, v1")
        a("v_lshl_add_u32 v7, v9, 3, v7")
        a("v_cvt_f32_u32 v7, v7")
        a("v_mul_f32 v7, 0x3d000000, v7")
        a("v_cos_f32 v7, v7")
        for ib in range(4):
            m = 0x00030003 << (2 * ib)
            a(f"s_mov_b32 exec_lo, {m:#x}")
            a(f"s_mov_b32 exec_hi, {m:#x}")
            a(f"v_cvt_pk_bf16_f32 v{M1+12*ib+8}, v7, -v7")
        a("s_mov_b64 exec, -1")
        for ib in range(4):
            for p in range(1, 4):
                a(f"v_mov_b32 v{M1+12*ib+8+p}, v{M1+12*ib+8}")

    def const_ga():
        a("v_lshrrev_b32 v6, 1, v1")
        a(f"s_lshl_b32 s{S.T0}, s{S.HH}, 10")
        a(f"s_add_u32 s{S.T0}, s{S.T0}, s{S.T1C}")
        a(f"v_lshl_add_u32 v6, v6, 7, s{S.T0}")
        a("v_and_b32 v7, 1, v1")
        a("v_lshlrev_b32 v9, 9, v7")
        l0, ld = a.L("g0"), a.L("gd")
        a(f"s_cmp_lg_u32 s{S.T1C}, 0")
        a(f"s_cbranch_scc1 {l0}")
        a("s_mov_b32 exec_lo, 0x00020002")
        a("s_mov_b32 exec_hi, 0x00020002")
        a("v_mov_b32 v6, 0x400")
        a("v_mov_b32 v9, 0")
        a("s_mov_b64 exec, -1")
        a.label(l0)
        a("v_lshlrev_b32 v7, 2, v2")
        a("v_mad_u32_u24 v9, v7, v6, v9")
        a("v_cvt_f32_u32 v6, v6")
        a("v_cvt_f32_u32 v9, v9")
        a("v_mul_f32 v6, 0x3a000000, v6")
        a("v_mul_f32 v9, 0x3a000000, v9")
        for jj in range(4):
            a(f"v_cos_f32 v{Cc+jj}, v9")
            a(f"v_sin_f32 v{Ss+jj}, v9")
            if jj < 3:
                a("v_add_f32 v9, v9, v6")
        a(f"s_and_b32 s{S.T1}, s{S.T1C}, 63")
        a.nop(1)
        for jj in range(4):
            a(f"v_cvt_pk_bf16_f32 v{GA+jj}, v{Cc+jj}, v{Ss+jj}")
        a(f"s_cmp_lg_u32 s{S.T1}, 0")
        a(f"s_cbranch_scc1 {ld}")
        a(f"s_lshr_b32 s{S.T1}, s{S.T1C}, 2")
        for jj in range(4):
            a(f"v_and_b32 v{GA+jj}, 0xffff, v{GA+jj}")
            a(f"v_lshlrev_b32 v{GA+jj}, s{S.T1}, v{GA+jj}")
        a.label(ld)

    def int_base():
        a(f"s_and_b32 s{S.T1}, s{S.T1C}, 63")
        a(f"s_mul_i32 s{S.L0}, s{S.T1}, {CS}")
        a(f"s_lshl_b32 s{S.T1}, s{S.WAVE}, 9")
        a(f"s_add_u32 s{S.L0}, s{S.L0}, s{S.T1}")
        a(f"s_add_u32 s{S.L0}, s{S.L0}, {WS_INT}")
        a(f"s_add_u32 s{S.L1}, s{S.L0}, 4096")

    def m2_addr():
        a(f"s_cmp_eq_u32 s{S.TD}, 0")
        a(f"s_cselect_b32 s{S.T0}, 0, 2048")
        a(f"v_add_u32 v4, s{S.T0}, v{VG16}")

    def int_loads(ah):
        for jj in range(4):
            so = S.L0 if jj < 2 else S.L1
            a(f"buffer_load_dwordx4 {V(LD+16*ah+4*jj,4)}, v{VLD}, {R4(S.RWS)}, s{so} offen offset:{(jj & 1)*2048 + ah*256} sc1")

    a.srd(S.ROUT, S.POUT, 0x200000)
    a(f"s_cmp_ge_u32 s{S.WAVE}, 4")
    a("s_cbranch_scc1 L_hi0")
    if o.prio & 1:
        a("s_setprio 2")
    pre = [lambda: (addr_p2(), int_base(), const_ga(), exp_setup()), const_d1, lambda: gates(True), lambda: (addr_ur(S.WAVE), m2_addr())]
    if o.gfirst:
        pre[1], pre[2] = pre[2], pre[1]
    for f in pre[:o.npre]:
        f()
    stamp(8)
    a(f"s_waitcnt vmcnt({0 if o.ackwait else 2})")
    if o.b3:
        a("s_barrier")
    if o.isleep0:
        a(f"s_sleep {o.isleep0}")
    hold("B4")
    stamp(9)
    if o.stag:
        a(f"s_cmp_lg_u32 s{S.HH}, 0")
        a("s_cbranch_scc1 L_stg1")
        int_loads(0)
        a(f"s_waitcnt vmcnt({4 - o.stag})")
        int_loads(1)
        a("s_branch L_stg2")
        a.label("L_stg1")
        int_loads(1)
        a(f"s_waitcnt vmcnt({4 - o.stag})")
        int_loads(0)
        a("s_waitcnt vmcnt(0)")
        a.label("L_stg2")
    else:
        int_loads(0)
        int_loads(1)
    gwait[0] = 10
    for f in pre[o.npre:]:
        f()
    gwait[0] = 2
    a.label("L_zjoin")
    stamp(10)
    for ah in range(2):
        a(f"s_waitcnt vmcnt({4-4*ah})")
        a.label(f"L_got{ah}")
        b = LD + 16 * ah
        da = DA1 if ah else DA0
        for ib in range(4):
            for jj in range(4):
                a(f"v_xor_b32 v{TP+4*ib+jj}, v{b+4*jj+ib}, v{EXP+ib}")
            if ib == 0:
                a(f"v_or3_b32 v6, v{TP}, v{TP+1}, v{TP+2}")
                a(f"v_or_b32 v6, v6, v{TP+3}")
            else:
                a(f"v_or3_b32 v6, v6, v{TP+4*ib}, v{TP+4*ib+1}")
                a(f"v_or3_b32 v6, v6, v{TP+4*ib+2}, v{TP+4*ib+3}")
            if ib == 3:
                a("v_and_b32 v6, 0x10001, v6")
                a("v_cmp_ne_u32 vcc, 0, v6")
            if not (ah == 1):
                a(f"{MF} {V(da+4*ib,4)}, {V(TP+4*ib,4)}, {V(GA,4)}, 0")
            else:
                a(f"{MF} {V(da+4*ib,4)}, {V(TP+4*ib,4)}, {V(GA,4)}, 0")
        a(f"s_cbranch_vccnz L_retry{ah}")
        a.label(f"L_fail{ah}")
    stamp(11)

    def d1(jb):
        a(f"{MF} {V(DA0+4*jb,4)}, {V(TP+4*jb,4)}, {V(M1+12*jb,4)}, 0")
        a(f"{MF} {V(DA1+4*jb,4)}, {V(TP+4*jb,4)}, {V(M1+12*jb+4,4)}, 0")
        a(f"{MF} {V(X16,4)}, {V(TP+4*jb,4)}, {V(M1+12*jb+8,4)}, {'0' if jb == 0 else V(X16,4)}")

    for ib in range(4):
        for p in range(4):
            s0 = (DA1 if p >= 2 else DA0) + 4 * ib + 2 * (p & 1)
            a(f"v_cvt_pk_bf16_f32 v{TP+4*ib+p}, v{s0}, v{s0+1}")
        if ib:
            d1(ib - 1)
    d1(3)
    for ib in range(3):
        for i in range(4):
            a(f"v_cvt_pk_bf16_f32 v{PK+4*i+ib}, v{DA0+4*ib+i}, v{DA1+4*ib+i}")
    for i in range(4):
        a(f"v_cvt_pk_bf16_f32 v{PK+4*i+3}, v{DA0+12+i}, v{DA1+12+i}")
        a(f"ds_write_b128 v{VUW}, {V(PK+4*i,4)} offset:{L_U2 + i*UB}")
    a(f"v_cvt_pk_bf16_f32 v{X16}, v{X16}, v{X16+1}")
    a(f"v_cvt_pk_bf16_f32 v{X16+2}, v{X16+2}, v{X16+3}")
    a(f"ds_write_b16 v{VUX}, v{X16} offset:{L_U2}")
    a(f"ds_write_b16_d16_hi v{VUX}, v{X16} offset:{L_U2+UB}")
    a(f"ds_write_b16 v{VUX}, v{X16+2} offset:{L_U2+2*UB}")
    a(f"ds_write_b16_d16_hi v{VUX}, v{X16+2} offset:{L_U2+3*UB}")
    a.label("L_d2")
    a(f"ds_read_b128 {V(M2,4)}, v{VG16} offset:{L_M2}")
    a(f"ds_read_b128 {V(M2+4,4)}, v{VG16} offset:{L_M2+1024}")
    a(f"ds_read_b128 {V(M2+8,4)}, v4 offset:{L_M2}")
    a(f"ds_read_b128 {V(M2+12,4)}, v4 offset:{L_M2+1024}")
    a(f"v_mov_b32 v9, {L_GKEY}")
    a(f"s_cmp_lg_u32 s{S.ISZ}, 0")
    a("s_waitcnt lgkmcnt(0)")
    a("s_cbranch_scc1 L_zsync")
    a("s_barrier")
    stamp(12)
    a("ds_read_b32 v6, v9")
    a(f"ds_read_b128 {V(UO,4)}, v{VUR0} offset:{L_U2}")
    a(f"ds_read_b128 {V(UO+4,4)}, v{VUR1} offset:{L_U2}")
    a(f"ds_read_b128 {V(UO+8,4)}, v{VUR0} offset:{L_U2+UB}")
    a(f"ds_read_b128 {V(UO+12,4)}, v{VUR1} offset:{L_U2+UB}")
    a(f"s_lshl_b32 s{S.T0}, s{S.TD}, 10")
    a(f"s_lshl_b32 s{S.T1}, s{S.TM}, 10")
    for k in range(4):
        a(f"s_waitcnt lgkmcnt({3-k})")
        a(f"{MF} {V(PQ+4*k,4)}, {V(UO+4*k,4)}, {V(M2+4*k,4)}, 0")
    a(f"v_readfirstlane_b32 s{S.GKEY}, v6")
    a(f"s_andn2_b32 s{S.IDX}, 0xffff, s{S.GKEY}")
    for r in range(2):
        for i in range(8):
            a(f"v_fmac_f32 v{XG+8*r+i}, v{CO+2*r}, v{PQ+i}")
    for r, (so, tr) in enumerate(((S.T0, S.TD), (S.T1, S.TM))):
        for i in range(8):
            a(f"v_fmac_f32 v{XG+8*r+i}, v{CO+2*r+1}, v{PQ+8+i}")
        for i in range(4):
            a(f"v_cvt_pk_bf16_f32 v{UO+4*r+i}, v{XG+8*r+2*i}, v{XG+8*r+2*i+1}")
        l = a.L("skip")
        if r == 0:
            stamp(6)
        a(f"s_cmp_eq_u32 s{tr}, s{S.IDX}")
        a(f"s_cbranch_scc1 {l}")
        a(f"v_permlane16_swap_b32 v{UO+4*r}, v{UO+4*r+2}")
        a(f"v_permlane16_swap_b32 v{UO+4*r+1}, v{UO+4*r+3}")
        a(f"buffer_store_dwordx4 {V(UO+4*r,4)}, v{VROW}, {R4(S.ROUT)}, s{so} offen{o.outpol}")
        a.label(l)
    a.label("L_tb_end")
    stamp(13)
    if o.stamps:
        a("s_waitcnt vmcnt(0)")
        stamp(15)
    endprog()

    for ah in range(2):
        a.label(f"L_retry{ah}")
        if o.stamps:
            a(f"s_add_u32 s{S.RC}, s{S.RC}, {1 << (8*ah)}")
        if o.rsleep:
            a(f"s_sleep {o.rsleep}")
        spin()
        a(f"s_cbranch_scc1 L_fail{ah}")
        int_loads(ah)
        a("s_waitcnt vmcnt(0)")
        a(f"s_branch L_got{ah}")

    a.label("L_hi0")
    if o.b3:
        if o.ackwait:
            a("s_waitcnt vmcnt(0)")
        a("s_barrier")
    a.label("L_hi1")
    if o.atouch:
        touch("L_tb", o.atouch, 4, 4)
        a(f"s_cmp_lg_u32 s{S.ISZ}, 0")
        a("s_cbranch_scc1 L_z0b")
    gates(True)
    addr_ur(S.WAVE)
    m2_addr()
    stamp(10)
    a("s_branch L_d2")

    a.label("L_ah")
    if o.prio & 2:
        a("s_setprio 3")
    if o.cpf:
        a(f"s_cmp_ge_u32 s{S.T1}, {o.cpf}")
        a("s_cbranch_scc1 L_nocpf")
        a(f"s_getpc_b64 s[{S.EX}:{S.EX+1}]")
        a.label("L_pc")
        a(f"s_sub_u32 s{S.EX}, s{S.EX}, L_pc - {name}")
        a(f"s_subb_u32 s{S.EX+1}, s{S.EX+1}, 0")
        a("v_lshlrev_b32 v6, 7, v0")
        a("v_add_u32 v7, 0x2000, v6")
        a(f"v_min_u32 v7, L_end - {name}, v7")
        a(f"v_mov_b32 v13, s{S.EX+1}")
        a(f"v_mov_b32 v15, s{S.EX+1}")
        a(f"v_add_co_u32 v12, vcc, s{S.EX}, v6")
        a.nop(2)
        a("v_addc_co_u32 v13, vcc, 0, v13, vcc")
        a(f"v_add_co_u32 v14, vcc, s{S.EX}, v7")
        a.nop(2)
        a("v_addc_co_u32 v15, vcc, 0, v15, vcc")
        a("global_load_dword v10, v[12:13], off")
        a("global_load_dword v11, v[14:15], off")
        a.label("L_nocpf")
    a(f"v_lshlrev_b32 v{VG16}, 4, v0")
    a(f"v_mov_b32 v{VTAG}, 0")
    a(f"v_mov_b32 v9, {L_KSL}")
    a(f"ds_write_b32 v9, v{VTAG}")
    a(f"s_mov_b32 s{S.KM}, 0x9E3779B1")
    a(f"s_cmp_ge_u32 s{S.T1}, {o.wpf}")
    a("s_waitcnt lgkmcnt(0)")
    a("s_cbranch_scc1 L_nowpf")
    a(f"global_load_dwordx4 v[32:35], v{VG16}, s[{S.PWR}:{S.PWR+1}]")
    a(f"global_load_dword v{VE}, v{VTAG}, s[{S.PWS}:{S.PWS+1}]")
    a(f"global_load_dwordx4 v[36:39], v{VG16}, s[{S.PGW}:{S.PGW+1}]")
    a.label("L_nowpf")
    stamp(1)
    a("v_lshlrev_b32 v14, 10, v0")
    a(f"s_lshl_b32 s{S.ID8}, s2, 3")
    a(f"s_add_u32 s{S.ID8}, s{S.ID8}, {WS_KEY}")
    ws_setup()

    if o.b0 == 2:
        a("s_barrier")
    const_d2()
    a(f"global_load_dword v{VE}, v{VTAG}, s[{S.PWS}:{S.PWS+1}]")
    a("s_waitcnt lgkmcnt(0)")
    stamp(2)
    if o.b0 == 1:
        a("s_barrier")
    a(f"v_mov_b32 v9, {L_KSL}")
    a("s_waitcnt vmcnt(0)")
    tag_make()
    exp_make()
    a(f"v_mov_b32 v9, {L_KSL}")
    stamp(3)
    a("s_barrier")
    a(f"ds_read_b32 v{VE}, v9")
    set_exec(RF * CF + RZ * CZ + R2 * C2 + RS)
    a("s_waitcnt lgkmcnt(0)")
    a(f"buffer_store_dwordx2 v[{VE}:{VTAG}], v14, {R4(S.RWS)}, s{S.ID8} offen sc1")
    if o.probe >= 0:
        a("s_mov_b64 exec, 1")
        a("v_mov_b32 v40, s66")
        a(f"v_mov_b32 v41, v{VTAG}")
        a(f"s_add_u32 s{S.T0}, s{S.ID8}, {WS_KEY2 - WS_KEY}")
        a(f"buffer_store_dwordx2 v[40:41], v14, {R4(S.RWS)}, s{S.T0} offen sc1")
    a("s_mov_b64 exec, -1")
    stamp(5)
    if o.b1a:
        a("s_barrier")
    if o.only == "P1":
        a("s_endpgm")
    if o.htouch:
        touch("L_th", o.htouch, 8, 1)
    poll_setup(WS_KEY + 1024 * (RF * CF + RZ * CZ), R2, C2)
    a("s_waitcnt vmcnt(0)")
    if not o.gate and o.b3:
        a("s_barrier")
    if o.k2sleep0:
        a(f"s_sleep {o.k2sleep0}")
    stamp(8)
    poll_granules(VG16, 32, sleep=o.k2sleep)
    stamp(9)
    wave_max_key(32)
    lds_put(L_GKEY, 32)
    if o.gate:
        a(f"s_sleep {o.gate}")
        a("s_barrier")
        if o.probe >= 0:
            a("s_cmp_lg_u32 s2, 9")
            a("s_cbranch_scc1 L_noprobe")
            a("s_barrier")
            a(f"s_mov_b32 s{S.PO}, {WS_KEY2}")
            a(f"s_mov_b32 s{S.POL}, {WS_KEY2}")
            poll_granules(VG16, 32, sleep=4)
            for i in range(8):
                a(f"v_readlane_b32 s{70+i}, v{32 + 2*(i&1)}, {i>>1}")
            a("s_mov_b32 s80, s70")
            for i in range(1, 8):
                a(f"s_sub_u32 s81, s{70+i}, s80")
                a("s_cmp_lt_i32 s81, 0")
                a(f"s_cselect_b32 s80, s{70+i}, s80")
            if o.probe < 8:
                a(f"s_sub_u32 s81, s{70+o.probe}, s80")
            else:
                a("s_mov_b32 s81, 0")
                for i in range(8):
                    a(f"s_sub_u32 s82, s{70+i}, s80")
                    a("s_max_u32 s81, s81, s82")
            a("s_mul_i32 s81, s81, 10")
            a("s_add_u32 s81, s81, 800")
            a.label("L_pw")
            a("s_sleep 1")
            a("s_memrealtime s[100:101]")
            a("s_waitcnt lgkmcnt(0)")
            a("s_sub_u32 s100, s100, s80")
            a("s_cmp_lt_u32 s100, s81")
            a("s_cbranch_scc1 L_pw")
            a.label("L_noprobe")
        if o.hold and o.hold[0] == "endA":
            a(f"s_sub_u32 s{S.T0}, s2, {o.hold[2]}")
            a(f"s_cmp_ge_u32 s{S.T0}, {o.hold[3]}")
            a("s_cbranch_scc1 L_nohold")
            a("s_barrier")
            hold("endA")
            a.label("L_nohold")
        endprog()
    a("s_barrier")
    endprog()

    a.label("L_notA")
    if o.only == "AA":
        a("s_endpgm")
    a(f"s_sub_u32 s{S.T2}, s{S.T0}, {o.zx}")
    a(f"s_and_b32 s{S.T2}, s{S.T2}, 7")
    a(f"s_lshl4_add_u32 s{S.FJ}, s{S.T2}, s{S.T1}")
    a(f"s_sub_u32 s{S.FJ}, s{S.FJ}, 32")
    a(f"s_cmp_ge_u32 s2, {NWG}")
    a("s_cbranch_scc1 L_end")
    a(f"s_cmp_lg_u32 s{S.T2}, 0")
    a("s_cbranch_scc1 L_F")
    a(f"s_mov_b32 s{S.ISZ}, 1")
    a(f"s_sub_u32 s{S.Z}, s{S.T1}, 16")
    vrow_setup()
    a(f"v_lshlrev_b32 v{VG16}, 4, v0")
    sgn_setup()
    a("s_waitcnt lgkmcnt(0)")
    ws_setup()
    a.srd(S.ROUT, S.POUT, 0x200000)
    addr_p2()
    a(f"s_cmp_eq_u32 s{S.WAVE}, 8")
    a("s_cbranch_scc1 L_zh")
    a(f"s_cmp_ge_u32 s{S.WAVE}, 4")
    a("s_cbranch_scc1 L_z0")
    const_d1()
    a("s_branch L_z1")
    a.label("L_z0")
    if o.atouch:
        a("s_branch L_hi1")
    a.label("L_z0b")
    if o.ztouch:
        touch("L_tz", o.ztouch, 4, 4)
    a.label("L_z1")
    a(f"v_mov_b32 v9, {L_KSL}")
    a("v_mov_b32 v12, 0")
    a("v_mov_b32 v13, 0")
    a("s_barrier")
    a(f"ds_read_b64 v[{VE}:{VTAG}], v9")
    a(f"ds_read_b128 {V(GW,4)}, v{VG16} offset:{L_WV+1024}")
    a("s_waitcnt lgkmcnt(0)")
    a(f"v_readfirstlane_b32 s{S.GKEY}, v{VE}")
    a(f"s_andn2_b32 s{S.IDX}, 2047, s{S.GKEY}")
    a(f"s_and_b32 s{S.T0}, s{S.IDX}, 127")
    a(f"s_cmp_gt_u32 s{S.T0}, 64")
    a(f"s_cselect_b32 s{S.WHICH}, 1, 0")
    a(f"s_and_b32 s{S.T0}, s{S.IDX}, {1024 + 63}")
    a(f"s_cmp_eq_u32 s{S.T0}, 1024")
    a(f"s_cselect_b32 s{S.WHICH}, 1, s{S.WHICH}")
    a(f"s_sub_u32 s{S.T0}, 2048, s{S.IDX}")
    a(f"s_cmp_lg_u32 s{S.WHICH}, 0")
    a(f"s_cselect_b32 s{S.T0}, s{S.T0}, s{S.IDX}")
    a(f"s_cmp_eq_u32 s{S.T0}, 1024")
    a(f"s_cselect_b32 s{S.T0}, 0, s{S.T0}")
    a(f"s_and_b32 s{S.T1C}, s{S.T0}, 127")
    a(f"s_lshr_b32 s{S.HH}, s{S.T0}, 10")
    a(f"s_bfe_u32 s{S.WSEL}, s{S.T0}, 0x30007")
    rows_setup(S.WSEL)
    a(f"s_cmp_ge_u32 s{S.WAVE}, 4")
    a("s_cbranch_scc1 L_z4")
    int_base()
    if o.zisleep0:
        a(f"s_sleep {o.zisleep0}")
    stamp(9)
    int_loads(0)
    int_loads(1)
    const_ga()
    exp_setup()
    addr_ur(S.WSEL)
    m2_addr()
    a("v_lshlrev_b32 v6, 7, v1")
    a(f"v_lshl_add_u32 v15, v2, 4, v6")
    a("s_branch L_zjoin")
    a.label("L_z4")
    a(f"s_cmp_ge_u32 s{S.WAVE}, 6")
    a("s_cbranch_scc1 L_zend2")
    rows_load()
    a(f"s_sub_u32 s{S.T0}, s{S.WAVE}, 4")
    a(f"s_lshl1_add_u32 s{S.T1}, s{S.Z}, s{S.T0}")
    a(f"s_lshl_b32 s{S.T1}, s{S.T1}, 5")
    a("v_and_b32 v6, 7, v0")
    a(f"v_lshl_add_u32 v10, v6, 2, s{S.T1}")
    a(f"s_lshl_b32 s{S.T2}, s{S.IDX}, 10")
    a(f"v_add_u32 v7, s{S.T2}, v10")
    a(f"global_load_dword v35, v7, {PXS}")
    a("v_lshlrev_b32 v10, 1, v10")
    a("v_lshrrev_b32 v7, 3, v0")
    a("v_lshlrev_b32 v7, 8, v7")
    a("v_lshl_add_u32 v11, v6, 4, v7")
    a(f"s_mul_i32 s{S.SI0}, s{S.Z}, {PZ}")
    a(f"s_lshl_b32 s{S.T0}, s{S.T0}, 7")
    a(f"s_add_u32 s{S.SI0}, s{S.SI0}, s{S.T0}")
    a(f"s_add_u32 s{S.SI0}, s{S.SI0}, {WS_PART}")
    a(f"s_add_u32 s{S.SI1}, s{S.SI0}, {(o.pc-1)*PARTC}")
    a(f"s_and_b32 s{S.T0}, s{S.GKEY}, 0xffff0000")
    a(f"s_xor_b32 s{S.T1}, s{S.T0}, 0x80000000")
    a(f"s_xor_b32 s{S.T3}, s{S.T0}, 0xffff0000")
    a(f"s_bitcmp1_b32 s{S.T0}, 31")
    a(f"s_cselect_b32 s{S.T0}, s{S.T1}, s{S.T3}")
    a(f"v_mov_b32 v15, s{S.T0}")
    sigmoid(15, 15)
    rnd(15, 15)
    a("s_waitcnt vmcnt(0)")
    gates(False)
    a(f"s_cmp_lg_u32 s{S.WHICH}, 0")
    a(f"s_cselect_b32 s{S.T2}, s{S.T3}, s{S.T2}")
    a(f"s_cselect_b32 s{S.T0}, s{S.T5}, s{S.T0}")
    a(f"s_cselect_b32 s{S.T4}, s{S.T1}, s{S.T4}")
    a(f"v_xor_b32 v{VTAG}, s{S.IDX}, v{VTAG}")
    a(f"v_mov_b32 v36, s{S.T2}")
    a(f"v_mov_b32 v{CO}, s{S.T0}")
    a(f"v_mov_b32 v{CO+1}, s{S.T4}")
    a("v_lshlrev_b32 v34, 16, v35")
    a(f"v_and_b32 v35, {HIM}, v35")
    if o.psleep0:
        a(f"s_sleep {o.psleep0}")
    hold("pp")
    a(f"v_mov_b32 v9, {L_ZF}")
    a.label("L_tz_start")
    stamp(10)
    if o.psleep:
        a("s_branch L_zp1")
    a.label("L_zp")
    if o.psleep:
        a(f"s_sleep {o.psleep}")
        a.label("L_zp1")
    for i in range(7):
        if i and i % 2 == 0:
            a(f"s_add_u32 s{S.T0}, s{S.SI0}, {2048*i}")
        a(f"buffer_load_dwordx4 {V(40+4*i,4)}, v11, {R4(S.RWS)}, s{S.T0 if i >= 2 else S.SI0} offen offset:{2048*(i&1)} sc1")
    a(f"s_add_u32 s{S.SI0}, s{S.SI0}, {PARTC}")
    a(f"s_min_u32 s{S.SI0}, s{S.SI0}, s{S.SI1}")
    if o.stamps:
        a(f"s_add_u32 s{S.RC}, s{S.RC}, 256")
    spin()
    a("s_cbranch_scc1 L_zp_ok")
    for i in range(7):
        a(f"s_waitcnt vmcnt({6-i})")
        a(f"v_bitop3_b32 v{37 if i == 0 else 38 + (i & 1)}, v{41+4*i}, v{43+4*i}, v{VTAG} bitop3:0x7e")
        if i:
            a(f"v_add_f32 v40, v40, v{40+4*i}")
            a(f"v_add_f32 v42, v42, v{42+4*i}")
        if i and i % 2 == 0:
            a("v_or3_b32 v37, v37, v38, v39")
    a("v_cmp_ne_u32 vcc, 0, v37")
    a.nop(1)
    a("s_cbranch_vccnz L_zp")
    a.label("L_zp_ok")
    a("ds_read_b32 v12, v9")
    a(f"ds_read_b64 v[32:33], v10 offset:{L_XG2}")
    a(f"ds_read_b64 v[16:17], v10 offset:{L_XG2+2048}")
    a("v_lshrrev_b32 v11, 1, v10")
    a(f"s_lshl_b32 s{S.T2}, s{S.IDX}, 10")
    a("s_waitcnt vmcnt(0)")
    stamp(11)
    a(f"v_add_f32_dpp v40, v40, v40 row_ror:8 {DPPM}")
    a(f"v_add_f32_dpp v42, v42, v42 row_ror:8 {DPPM}")
    a.nop(1)
    a.nop(1)
    a("v_permlane16_swap_b32 v40, v42")
    a("v_add_f32 v40, v40, v42")
    a("v_mov_b32 v42, v40")
    a.nop(2)
    a("v_permlane32_swap_b32 v40, v42")
    a("v_add_f32 v40, v40, v42")
    a("v_mov_b32 v42, v40")
    a.nop(2)
    a("v_permlane16_swap_b32 v40, v42")
    a("v_cvt_pk_bf16_f32 v41, v40, v42")
    a("v_lshlrev_b32 v40, 16, v41")
    a(f"v_and_b32 v42, {HIM}, v41")
    a("v_mul_f32 v40, v40, v15")
    a("v_mul_f32 v42, v42, v15")
    a("v_cvt_pk_bf16_f32 v41, v40, v42")
    a("v_lshlrev_b32 v40, 16, v41")
    a(f"v_and_b32 v42, {HIM}, v41")
    a("v_add_f32 v40, v40, v34")
    a("v_add_f32 v42, v42, v35")
    a("v_cvt_pk_bf16_f32 v41, v40, v42")
    a("v_lshlrev_b32 v40, 16, v41")
    a(f"v_and_b32 v42, {HIM}, v41")
    a.label("L_zw")
    a("s_waitcnt lgkmcnt(0)")
    a("v_cmp_eq_u32 vcc, 0, v12")
    a(f"v_mul_f32 v32, v{CO}, v32")
    a(f"v_mul_f32 v33, v{CO}, v33")
    a("s_cbranch_vccz L_zw_ok")
    spin()
    a("s_cbranch_scc1 L_zw_ok")
    a("ds_read_b32 v12, v9")
    a(f"ds_read_b64 v[32:33], v10 offset:{L_XG2}")
    a(f"ds_read_b64 v[16:17], v10 offset:{L_XG2+2048}")
    a("s_branch L_zw")
    a.label("L_zw_ok")
    a(f"v_fmac_f32 v32, v{CO+1}, v16")
    a(f"v_fmac_f32 v33, v{CO+1}, v17")
    a("v_fmac_f32 v32, v40, v36")
    a("v_fmac_f32 v33, v42, v36")
    a("v_cvt_pk_bf16_f32 v32, v32, v33")
    a("s_mov_b64 exec, 0xff")
    a(f"buffer_store_dword v32, v11, {R4(S.ROUT)}, s{S.T2} offen{o.zpol}")
    a("s_mov_b64 exec, -1")
    stamp(13)
    if o.stamps:
        a("s_waitcnt vmcnt(0)")
        stamp(15)
    a("s_barrier")
    endprog()

    a.label("L_zsync")
    a(f"v_mov_b32 v9, {L_ZC}")
    a("v_mov_b32 v6, 1")
    a("s_mov_b64 exec, 1")
    a("ds_add_u32 v9, v6")
    a("s_mov_b64 exec, -1")
    a(f"s_cmp_lg_u32 s{S.WAVE}, 0")
    a("s_cbranch_scc1 L_zend")
    a.label("L_zs")
    a("ds_read_b32 v6, v9")
    spin()
    a("s_waitcnt lgkmcnt(0)")
    a("s_cbranch_scc1 L_zs_ok")
    a("v_cmp_ne_u32 vcc, 4, v6")
    a.nop(1)
    a("s_cbranch_vccnz L_zs")
    a.label("L_zs_ok")
    stamp(12)
    a(f"ds_read_b128 {V(UO,4)}, v{VUR0} offset:{L_U2}")
    a(f"ds_read_b128 {V(UO+4,4)}, v{VUR1} offset:{L_U2}")
    a(f"ds_read_b128 {V(UO+8,4)}, v{VUR0} offset:{L_U2+UB}")
    a(f"ds_read_b128 {V(UO+12,4)}, v{VUR1} offset:{L_U2+UB}")
    for k in range(4):
        a(f"s_waitcnt lgkmcnt({3-k})")
        a(f"{MF} {V(PQ+4*k,4)}, {V(UO+4*k,4)}, {V(M2+4*k,4)}, 0")
    a.nop(3)
    for k in range(4):
        if k == 2:
            a.nop(2)
        a(f"ds_write_b128 v15, {V(PQ+4*k,4)} offset:{L_XG2 + 64*(k&1) + 2048*(k>>1)}")
    a(f"v_mov_b32 v9, {L_ZF}")
    a("s_waitcnt lgkmcnt(0)")
    a("ds_write_b32 v9, v9")
    a("s_waitcnt lgkmcnt(0)")
    stamp(13)
    a.label("L_zend")
    endprog()
    a.label("L_zend2")
    if o.hold and o.hold[0] == "end":
        a("s_barrier")
    hold("end")
    if o.ev:
        lo, n, w, st, med = [int(v) for v in o.ev.split(":")]
        a(f"s_cmp_lg_u32 s2, {248 + o.zx}")
        a("s_cbranch_scc1 L_noev")
        a(f"s_cmp_lg_u32 s{S.WAVE}, 7")
        a("s_cbranch_scc1 L_noev")
        a("s_barrier")
        a.label("L_ev0")
        a("s_sleep 4")
        a("s_memrealtime s[100:101]")
        a("s_waitcnt lgkmcnt(0)")
        a(f"s_sub_u32 s100, s100, s{S.ST}")
        a("s_cmp_lt_u32 s100, 750")
        a("s_cbranch_scc1 L_ev0")
        a("v_lshlrev_b32 v6, 11, v0")
        a(f"v_add_u32 v7, {WS_STAMP + 8*128}, v6")
        a(f"global_load_dword v40, v7, s[{S.PWS}:{S.PWS+1}] sc1")
        a(f"v_add_u32 v7, {WS_STAMP + lo*2048 + w*128 + st*8}, v6")
        for q in range(n // 64):
            a(f"global_load_dword v{44+q}, v7, s[{S.PWS}:{S.PWS+1}] sc1")
            a(f"v_add_u32 v7, {64*2048}, v7")
        a("s_waitcnt vmcnt(0)")
        a(f"v_subrev_u32 v40, s{S.ST}, v40")
        a("v_sub_u32 v40, 1000, v40")
        a("v_mov_b32 v42, v40")
        wave_max_key(40)
        a("v_mov_b32 v41, 0")
        for q in range(n // 64):
            a(f"v_subrev_u32 v{44+q}, s{S.ST}, v{44+q}")
            a(f"v_cmp_gt_u32 vcc, 1000, v{44+q}")
            a.nop(2)
            a(f"v_cndmask_b32 v{44+q}, 0, v{44+q}, vcc")
            if med:
                m = (~med & 0xff) * 0x01010101
                a(f"s_mov_b32 exec_lo, {m:#x}")
                a(f"s_mov_b32 exec_hi, {m:#x}")
                a(f"v_mov_b32 v{44+q}, 0")
                a("s_mov_b64 exec, -1")
            a(f"v_max_u32 v41, v41, v{44+q}")
        a("v_mov_b32 v43, v41")
        wave_max_key(41)
        a.nop(2)
        a("v_readlane_b32 s6, v40, 63")
        a("v_readlane_b32 s7, v41, 63")
        a("s_sub_u32 s6, s6, 1000")
        a("s_min_u32 s6, s6, 300")
        a("s_add_u32 s7, s7, s6")
        a("s_mul_i32 s7, s7, 4")
        a("s_add_u32 s7, s7, 900")
        a("s_sub_u32 s7, s7, s6")
        a.label("L_ev1")
        a("s_sleep 1")
        a("s_memrealtime s[100:101]")
        a("s_waitcnt lgkmcnt(0)")
        a(f"s_sub_u32 s100, s100, s{S.ST}")
        a("s_cmp_lt_u32 s100, s7")
        a("s_cbranch_scc1 L_ev1")
        a.label("L_noev")
    endprog()

    a.label("L_zh")
    a(f"v_mov_b32 v9, {L_ZF}")
    a("v_mov_b32 v6, 0")
    a("ds_write2_b32 v9, v6, v6 offset1:1")
    const_d2()
    a(f"s_mov_b32 m0, {L_WV+1024}")
    tag_load()
    a(f"global_load_lds_dwordx4 v{VG16}, s[{S.PGW}:{S.PGW+1}]")
    a("s_waitcnt vmcnt(0)")
    tag_make()
    exp_make()
    poll_setup(WS_KEY + 1024 * RF * CF, RZ, CZ)
    if o.zsleep0:
        a(f"s_sleep {o.zsleep0}")
    stamp(1)
    poll_granules(VG16, 32, sleep=o.zsleep)
    stamp(2)
    wave_max_key(32)
    lds_put(L_KSL, 32, tag=True)
    a("s_barrier")
    a(f"s_lshl_b32 s{S.T0}, s{S.Z}, 2")
    a(f"s_add_u32 s{S.T0}, s{S.T0}, {WS_ALIVE}")
    a("s_mov_b64 exec, 1")
    a(f"buffer_store_dword v{VTAG}, v0, {R4(S.RWS)}, s{S.T0} offen sc1")
    a("s_mov_b64 exec, -1")
    a(f"s_cmp_lg_u32 s{S.Z}, 0")
    a("s_cbranch_scc1 L_zend")
    a("s_mov_b64 exec, 0xffff")
    a("v_lshlrev_b32 v6, 2, v0")
    a(f"s_mov_b32 s{S.T0}, {WS_ALIVE}")
    a("s_waitcnt vmcnt(0)")
    a("s_sleep 24")
    a.label("L_za")
    a(f"buffer_load_dword v7, v6, {R4(S.RWS)}, s{S.T0} offen sc1")
    spin()
    a("s_waitcnt vmcnt(0)")
    a("s_cbranch_scc1 L_za_ok")
    a(f"v_cmp_ne_u32 vcc, v{VTAG}, v7")
    a.nop(1)
    a("s_cbranch_vccnz L_za")
    a.label("L_za_ok")
    a("s_mov_b64 exec, 1")
    a(f"v_add_u32 v9, 1, v{VE}")
    a("s_barrier")
    a(f"buffer_store_dword v9, v6, {R4(S.RWS)}, 0 offen sc1")
    a("s_mov_b64 exec, -1")
    a("s_branch L_zend")

    a.label("L_F")
    if o.only == "A":
        a("s_endpgm")
    WG_, WD_ = 32, 48
    a("v_lshlrev_b32 v5, 4, v0")
    a(f"s_cmp_eq_u32 s{S.WAVE}, 8")
    a("s_cbranch_scc1 L_fh")
    a(f"s_and_b32 s{S.T0}, s{S.FJ}, 3")
    a(f"s_lshr_b32 s{S.T1}, s{S.WAVE}, 1")
    a(f"s_lshl2_add_u32 s{S.L0}, s{S.T0}, s{S.T1}")
    a(f"s_mul_i32 s{S.T2}, s{S.L0}, {32*3584}")
    a(f"s_lshr_b32 s{S.L1}, s{S.FJ}, 2")
    a(f"s_lshl_b32 s{S.T3}, s{S.L1}, 7")
    a(f"s_add_u32 s{S.T2}, s{S.T2}, s{S.T3}")
    a("v_lshrrev_b32 v6, 3, v0")
    a("v_mul_u32_u24 v6, 3584, v6")
    a("v_and_b32 v7, 7, v0")
    a("v_bfe_u32 v8, v0, 4, 1")
    a("v_lshlrev_b32 v8, 2, v8")
    a("v_xor_b32 v4, v7, v8")
    a(f"v_lshl_add_u32 v7, v4, 4, s{S.T2}")
    a("v_add_u32 v3, v6, v7")
    a(f"s_lshl_b32 s{S.T4}, s{S.WAVE}, 12")
    a(f"s_mov_b32 m0, s{S.T4}")
    def w_dma():
        a(f"s_bitcmp1_b32 s{S.WAVE}, 0")
        a("s_waitcnt lgkmcnt(0)")
        a(f"s_cselect_b32 s{S.PWG}, s{S.PWU}, s{S.PWG}")
        a(f"s_cselect_b32 s{S.PWG+1}, s{S.PWU+1}, s{S.PWG+1}")
        if o.fdelay:
            a(f"s_sleep {o.fdelay}")
        for b in range(4):
            if b:
                a(f"s_add_u32 m0, s{S.T4}, {1024*b}")
                a(f"v_add_u32 v3, {8*3584}, v3")
            if o.wthr and b >= o.wthr:
                a(f"s_waitcnt vmcnt({o.wthr - 1})")
            a(f"global_load_lds_dwordx4 v3, s[{S.PWG}:{S.PWG+1}]{o.wpol}")
        ws_setup()
        stamp(1)

    if not o.flate:
        w_dma()
    a("v_bfe_u32 v6, v0, 2, 2")
    a("v_and_b32 v7, 3, v0")
    a("v_lshlrev_b32 v8, 3, v7")
    a("v_lshl_add_u32 v8, v2, 5, v8")
    a("v_and_b32 v9, 2, v6")
    a("v_lshlrev_b32 v9, 5, v9")
    a("v_xor_b32 v9, v9, v8")
    a("v_lshl_add_u32 v9, v6, 7, v9")
    a(f"v_add_u32 v9, s{S.T4}, v9")
    a(f"s_lshl_b32 s{S.T5}, s{S.WAVE}, 8")
    a("v_lshlrev_b32 v11, 2, v0")
    a(f"v_add_u32 v11, {L_RED}, v11")
    a(f"v_add_u32 v12, s{S.T5}, v11")
    a(f"s_lshl1_add_u32 s{S.T1}, s{S.L1}, s{S.T1}")
    a(f"s_lshl_b32 s{S.T2}, s{S.T1}, 15")
    a(f"s_and_b32 s{S.T3}, s{S.WAVE}, 1")
    a(f"s_lshl1_add_u32 s{S.T3}, s{S.T0}, s{S.T3}")
    a(f"s_lshl_b32 s{S.T5}, s{S.T3}, 7")
    a(f"s_add_u32 s{S.T2}, s{S.T2}, s{S.T5}")
    a("v_lshrrev_b32 v6, 3, v0")
    a(f"v_lshl_add_u32 v6, v6, 10, s{S.T2}")
    a("v_lshl_add_u32 v4, v4, 4, v6")
    a("v_lshrrev_b32 v6, 5, v0")
    a(f"v_mul_u32_u24 v13, {PZ}, v6")
    a("v_and_b32 v6, 31, v0")
    a("v_lshl_add_u32 v13, v6, 3, v13")
    a(f"s_mul_i32 s{S.T2}, s{S.T3}, {2*PZ}")
    a(f"s_lshl_b32 s{S.T1}, s{S.T1}, 8")
    a(f"s_add_u32 s{S.T2}, s{S.T2}, s{S.T1}")
    a(f"s_add_u32 s{S.T2}, s{S.T2}, {WS_PART}")
    a(f"s_lshl_b32 s{S.L0}, s{S.L0}, 6")
    a(f"s_lshl_b32 s{S.L1}, s{S.L1}, 12")
    a(f"s_add_u32 s{S.PO}, s{S.L1}, {WS_XCH}")
    a(f"s_add_u32 s{S.POL}, s{S.PO}, {(o.xc-1)*XCHC}")
    a(f"s_lshl_b32 s{S.T1}, s{S.T0}, 10")
    a(f"s_add_u32 s{S.L1}, s{S.PO}, s{S.T1}")
    a(f"v_mov_b32 v14, {L_FKEY}")
    a(f"s_lshr_b32 s{S.T1}, s{S.WAVE}, 1")
    a(f"s_lshl_b32 s{S.T1}, s{S.T1}, 9")
    a(f"v_lshl_add_u32 v15, v6, 4, s{S.T1}")
    a("v_lshrrev_b32 v6, 5, v0")
    a("v_lshl_add_u32 v15, v6, 10, v15")
    a(f"s_mov_b32 s{S.PO0}, s{S.PO}")
    a(f"s_mov_b32 s{S.L10}, s{S.L1}")
    a(f"s_mov_b32 s{S.T20}, s{S.T2}")
    a(f"s_mov_b32 s{S.FIN}, 0")

    if o.flate:
        w_dma()

    def wd_dma():
        l = a.L("nowd")
        a(f"s_cmp_ge_u32 s{S.WAVE}, 4")
        a(f"s_cbranch_scc1 {l}")
        for b in range(4):
            a(f"s_add_u32 m0, s{S.T4}, {L_WD + 1024*b}")
            if b:
                a("v_add_u32 v4, 0x2000, v4")
            else:
                a.nop(1)
            a(f"global_load_lds_dwordx4 v4, s[{S.PWD}:{S.PWD+1}]{o.wdpol}")
        a.label(l)

    if o.wdpos == 0:
        wd_dma()
    if o.wdpos in (4, 6):
        a("s_barrier")
        a(f"s_cmp_ge_u32 s{S.WAVE}, 4")
        a("s_cbranch_scc1 L_nowd4")
        for b in range(4):
            a(f"v_add_u32 v6, {0x2000*b}, v4")
            a(f"global_load_dwordx4 {V(80+4*b,4)}, v6, s[{S.PWD}:{S.PWD+1}]")
        a("s_waitcnt vmcnt(4)")
        a("s_branch L_nowd5")
        a.label("L_nowd4")
        a("s_waitcnt vmcnt(0)")
        a.label("L_nowd5")
    else:
        a("s_waitcnt vmcnt(0)")
    stamp(2)
    if o.fw0:
        a("s_barrier")
    if o.wdpos == 1:
        wd_dma()
    if o.xpre:
        for i in range(2):
            a(f"buffer_load_dwordx4 {V(64+4*i,4)}, v15, {R4(S.RWS)}, s{S.PO} offen offset:{2048*i} sc1")
    for k in range(8):
        a(f"ds_read_b64_tr_b16 {V(WG_+2*k,2)}, v9 offset:{L_W + k*512}")
    if o.ftouch:
        touch("L_tf", o.ftouch, 0, 8)
    a.label("L_tf_start")
    if o.smem:
        a(f"s_and_b32 s{S.T0}, s2, 7")
        a(f"s_mul_i32 s{S.T0}, s{S.T0}, {1024*o.smem}")
        a(f"s_lshl_b32 s{S.T1}, s{S.WAVE}, 7")
        a(f"s_add_u32 s{S.T0}, s{S.T0}, s{S.T1}")
        a(f"s_add_u32 s{S.T0}, s{S.T0}, {WS_KEY + 1024 * (RF * CF + RZ * CZ + R2 * C2)}")
        a("s_waitcnt lgkmcnt(0)")
        a("s_barrier")
        for it in range(o.smem):
            a(f"s_load_dwordx16 s[44:59], s[{S.RWS}:{S.RWS+1}], s{S.T0} offset:{1024*it}")
            a(f"s_load_dwordx16 s[16:31], s[{S.RWS}:{S.RWS+1}], s{S.T0} offset:{1024*it+64}")
            if it == 0:
                a("ds_read_b32 v27, v14 offset:4")
            a("v_mov_b32 v20, 0")
            a("s_waitcnt lgkmcnt(0)")
            regs = list(range(44, 60, 2)) + list(range(16, 32, 2))
            for g, r in enumerate(regs):
                a(f"v_bitop3_b32 v20, s{r+1}, v27, v20 bitop3:0xbe")
                if g:
                    a(f"s_max_u32 s44, s44, s{r}")
            a("v_mov_b32 v21, s44")
            a("s_mov_b64 exec, 1")
            a(f"ds_max_u32 v14, v21 offset:{16+8*it}")
            a(f"ds_or_b32 v14, v20 offset:{20+8*it}")
            a("s_mov_b64 exec, -1")
            a("s_waitcnt lgkmcnt(0)")
            a("s_barrier")
            a(f"ds_read_b64 v[20:21], v14 offset:{16+8*it}")
            a("s_waitcnt lgkmcnt(0)")
            a(f"v_readfirstlane_b32 s{S.FKEY}, v20")
            a(f"v_readfirstlane_b32 s{S.T1}, v21")
            a(f"s_cmp_eq_u32 s{S.T1}, 0")
            a("s_cbranch_scc1 L_redo")
            if it < o.smem - 1:
                a(f"s_sleep {o.smsleep}")
    a("s_waitcnt lgkmcnt(0)")
    a("s_barrier")
    a("ds_read_b64 v[26:27], v14")
    a("s_waitcnt lgkmcnt(0)")
    a(f"v_readfirstlane_b32 s{S.FKEY}, v26")
    a.label("L_redo")
    a(f"s_andn2_b32 s{S.T0}, 2047, s{S.FKEY}")
    a(f"s_lshl_b32 s{S.T1}, s{S.T0}, 10")
    a(f"s_add_u32 s{S.T1}, s{S.T1}, s{S.L0}")
    a(f"s_load_dwordx16 s[{S.XS}:{S.XS+15}], {PXS}, s{S.T1}")
    stamp(5)
    a(f"v_xor_b32 v{VTAG}, s{S.T0}, v27")
    a(f"v_xor_b32 v29, s{S.T0}, v27")
    for r in (16, 17, 24, 25):
        a(f"v_mov_b32 v{r}, 0")
    a(f"s_mov_b32 s{S.PO}, s{S.PO0}")
    a(f"s_mov_b32 s{S.L1}, s{S.L10}")
    a(f"s_mov_b32 s{S.T2}, s{S.T20}")
    a(f"s_mov_b32 s{S.KM}, 0")
    a("s_waitcnt lgkmcnt(0)")
    for i in range(16):
        a(f"v_dot2c_f32_bf16 v{16+(i&1)}, s{S.XS+i}, v{WG_+i}")
    stamp(6)
    a.nop(3)
    a("v_add_f32 v16, v16, v17")
    a("ds_write_b32 v12, v16")
    a("s_waitcnt lgkmcnt(0)")
    a("s_barrier")
    a(f"s_lshl_b32 s{S.T0}, s{S.WAVE}, 4")
    a(f"s_lshl_b64 s[{S.EX}:{S.EX+1}], 0xffff, s{S.T0}")
    for i, (p, q) in enumerate(((0, 2), (4, 6), (1, 3), (5, 7))):
        a(f"ds_read2st64_b32 v[{16+2*i}:{17+2*i}], v11 offset0:{p} offset1:{q}")
    a("s_waitcnt lgkmcnt(2)")
    a("v_add_f32 v16, v16, v17")
    a("v_add_f32 v18, v18, v19")
    a("s_waitcnt lgkmcnt(0)")
    a("v_add_f32 v20, v20, v21")
    a("v_add_f32 v22, v22, v23")
    a("v_add_f32 v28, v16, v18")
    a(f"s_mov_b64 exec, s[{S.EX}:{S.EX+1}]")
    a("v_add_f32 v30, v20, v22")
    a(f"s_cmp_ge_u32 s{S.WAVE}, 4")
    a("s_cbranch_scc1 L_f5")
    a(f"buffer_store_dwordx4 v[28:31], v5, {R4(S.RWS)}, s{S.L1} offen{'' if o.xl2 else ' sc1'}")
    a("s_mov_b64 exec, -1")
    stamp(7)
    a("s_waitcnt vmcnt(1)")
    if o.wdpos in (4, 6):
        a(f"v_add_u32 v6, s{S.T4}, v5")
        for b in range(4):
            a(f"ds_write_b128 v6, {V(80+4*b,4)} offset:{L_WD + 1024*b}")
        a("s_waitcnt lgkmcnt(0)")
    for k in range(8):
        a(f"ds_read_b64_tr_b16 {V(WD_+2*k,2)}, v9 offset:{L_WD + k*512}")
    if o.xsleep0:
        a(f"s_sleep {o.xsleep0}")
    stamp(8)
    a.label("L_fx")
    for i in range(2):
        a(f"buffer_load_dwordx4 {V(64+4*i,4)}, v15, {R4(S.RWS)}, s{S.PO} offen offset:{2048*i} sc1")
    if o.xl2:
        a(f"s_add_u32 s{S.KM}, s{S.KM}, 1")
        a(f"s_cmp_ge_u32 s{S.KM}, {o.xl2}")
        a(f"s_cselect_b32 s{S.T0}, {XCHC}, 0")
        a(f"s_add_u32 s{S.PO}, s{S.PO}, s{S.T0}")
    else:
        a(f"s_add_u32 s{S.PO}, s{S.PO}, {XCHC}")
    a(f"s_min_u32 s{S.PO}, s{S.PO}, s{S.POL}")
    if o.stamps:
        a(f"s_add_u32 s{S.RC}, s{S.RC}, 1")
    spin()
    a("s_cbranch_scc1 L_fx_ok")
    a("s_waitcnt vmcnt(1)")
    a(f"v_bitop3_b32 v20, v65, v67, v{VTAG} bitop3:0x7e")
    a("s_waitcnt vmcnt(0)")
    a("v_add_f32 v16, v64, v68")
    a("v_add_f32 v18, v66, v70")
    a(f"v_bitop3_b32 v21, v69, v71, v{VTAG} bitop3:0x7e")
    a("v_or_b32 v20, v20, v21")
    a("v_cmp_ne_u32 vcc, 0, v20")
    a("v_permlane32_swap_b32 v16, v18")
    a("s_cbranch_vccnz L_fxr")
    a.label("L_fx_ok")
    stamp(9)
    a("v_add_f32 v16, v16, v18")
    rnd(16, 16)
    a("v_mov_b32 v18, v16")
    sigmoid(17, 16)
    a("v_permlane32_swap_b32 v16, v18")
    a("v_mul_f32 v17, v17, v16")
    rnd(17, 17)
    a("v_mul_f32 v17, v17, v18")
    a.nop(2)
    a(f"v_mov_b32_dpp v18, v17 quad_perm:[1,0,3,2] {DPPM}")
    a("v_cvt_pk_bf16_f32 v17, v17, v18")
    a.nop(1)
    for i in range(16):
        a(f"v_readlane_b32 s{S.XS+i}, v17, {2*i}")
    a("s_waitcnt lgkmcnt(0)")
    for i in range(16):
        a(f"v_dot2c_f32_bf16 v{24+(i&1)}, s{S.XS+i}, v{WD_+i}")
    a.nop(3)
    a("v_add_f32 v30, v24, v25")
    for c in range(o.pc):
        if c:
            a(f"s_add_u32 s{S.T2}, s{S.T2}, {PARTC}")
        a(f"buffer_store_dwordx2 v[30:31], v13, {R4(S.RWS)}, s{S.T2} offen sc1")
    stamp(10)
    a.label("L_fend")
    a(f"s_cmp_lg_u32 s{S.FIN}, 0")
    a("s_cbranch_scc1 L_fexit")
    a("s_barrier")
    a("ds_read_b32 v26, v14 offset:8")
    a(f"s_mov_b32 s{S.FIN}, 1")
    a("s_waitcnt lgkmcnt(0)")
    a(f"v_readfirstlane_b32 s{S.T0}, v26")
    a(f"s_cmp_eq_u32 s{S.T0}, s{S.FKEY}")
    a(f"s_mov_b32 s{S.FKEY}, s{S.T0}")
    if o.stamps:
        a(f"s_cselect_b32 s{S.T1}, 0, 64")
        a(f"s_add_u32 s{S.RC}, s{S.RC}, s{S.T1}")
        a(f"s_cmp_eq_u32 s{S.T1}, 0")
    a("s_cbranch_scc0 L_redo")
    a.label("L_fexit")
    endprog()
    a.label("L_f5")
    for c in range(1, o.xc):
        a(f"s_add_u32 s{S.L1}, s{S.L1}, {XCHC}")
        a(f"buffer_store_dwordx4 v[28:31], v5, {R4(S.RWS)}, s{S.L1} offen sc1")
    a("s_mov_b64 exec, -1")
    a("s_branch L_fend")
    a.label("L_fxr")
    a("ds_read_b32 v26, v14 offset:8")
    a("s_waitcnt lgkmcnt(0)")
    a(f"v_readfirstlane_b32 s{S.T0}, v26")
    a(f"s_cmp_eq_u32 s{S.T0}, 0")
    a("s_cbranch_scc1 L_fx")
    a(f"s_cmp_eq_u32 s{S.T0}, s{S.FKEY}")
    a("s_cbranch_scc1 L_fx")
    a("s_branch L_fend")

    a.label("L_fh")
    a("s_waitcnt lgkmcnt(0)")
    if o.fesleep:
        a(f"s_sleep {o.fesleep}")
    tag_load()
    ws_setup()
    a(f"v_mov_b32 v14, {L_FKEY}")
    a("v_mov_b32 v6, 0")
    a("ds_write_b32 v14, v6 offset:8")
    if o.smem:
        a("v_lshlrev_b32 v7, 2, v0")
        a(f"v_add_u32 v7, {L_FKEY + 16}, v7")
        set_exec(2 * o.smem)
        a("ds_write_b32 v7, v6")
        a("s_mov_b64 exec, -1")
        if o.wdpos == 6:
            a("s_barrier")
        poll_setup(WS_KEY, RF, CF)
        a(f"s_sleep {o.fsleep0}")
        a("s_waitcnt vmcnt(0)")
        tag_make()
        a(f"ds_write_b32 v14, v{VTAG} offset:4")
        a("s_waitcnt lgkmcnt(0)")
        stamp(3)
        a("s_barrier")
        for it in range(o.smem):
            a("s_barrier")
            a(f"ds_read_b64 v[20:21], v14 offset:{16+8*it}")
            if o.stamps:
                a(f"s_add_u32 s{S.RC}, s{S.RC}, 1")
            a("s_waitcnt lgkmcnt(0)")
            a(f"v_readfirstlane_b32 s{S.T1}, v21")
            a(f"s_cmp_eq_u32 s{S.T1}, 0")
            a("s_cbranch_scc1 L_fh2")
        poll_granules(5, 20, sleep=o.fsleep)
        wave_max_key(20)
        lds_put(L_FKEY, 20, tag=True)
        a("s_barrier")
        a.label("L_fh2")
        stamp(4)
        lds_put(L_FKEY + 8, 20)
    else:
        poll_setup(WS_KEY, RF, CF)
        if o.fsleep0:
            a(f"s_sleep {o.fsleep0}")
        a("s_waitcnt vmcnt(0)")
        tag_make()
        stamp(3)
        poll_granules(5, 20, sleep=o.fsleep, bar=o.wdpos == 4)
        stamp(4)
        wave_max_key(20)
        lds_put(L_FKEY, 20, tag=True)
        a("s_barrier")
        lds_put(L_FKEY + 8, 20)
    a("s_barrier")
    endprog()
    a.label("L_end")
    a("s_endpgm")
    return name


def main():
    ap = argparse.ArgumentParser()
    ap.add_argument("-o", required=True)
    for k, d in dict(stamps=0, pc=1, xc=2, zsleep=8, zsleep0=32, psleep=0, psleep0=20, rsleep=3, ackwait=0, hipre=0, tlate=1,
                     mode=0, k2ack=1, k2sleep0=6, zk2sleep0=0, k2sleep=5, fbar=0, cpf=0, cpf0=1, smem=3, smsleep=4, zx=0, htouch=0, probe=-1, wsoff=0, flate=1, b1a=1, skew=0, gate=8, lds=0, nsgpr=72, prio=1, stag=2, spec=0, b0=2, wthr=0, xpre=0, atouch=10, ftouch=8, xl2=8, npre=3, gfirst=0, isleep0=0, zisleep0=16, b3=1, ztouch=8, zstep=128, touch=0, wdpos=6, wpf=2, fesleep=0, fw0=0, xack=0, fdelay=0, xsleep0=0, fsleep0=46, fsleep=4, spin=17).items():
        ap.add_argument("--" + k, type=int, default=d)
    for k in ("wpol", "wdpol", "xpol", "outpol", "zpol", "only"):
        ap.add_argument("--" + k, default="nt" if k == "outpol" else "")
    ap.add_argument("--mf", default="8,1")
    ap.add_argument("--mz", default="1,3")
    ap.add_argument("--m2", default="8,2")
    ap.add_argument("--hold", default="")
    ap.add_argument("--ev", default="")
    o = ap.parse_args()
    if o.hold:
        o.hold = o.hold.split(":")
    for k in ("mf", "mz", "m2"):
        setattr(o, k, [int(v) for v in getattr(o, k).split(",")])
    for k in ("wpol", "wdpol", "xpol", "outpol", "zpol"):
        setattr(o, k, (" " + getattr(o, k)) if getattr(o, k) not in ("", "def") else "")
    a = Asm()
    name = gen(a, o)
    reg = []
    if o.touch:
        reg.append(("L_ta_start", "L_ta_end", "L_ta", "L_taback", o.touch))
    if o.htouch:
        reg.append(("L_ta_end", "L_zjoin", "L_th", "L_thback", o.htouch))
    if o.atouch:
        reg.append(("L_zjoin", "L_tb_end", "L_tb", "L_tbback", o.atouch))
    if o.ztouch:
        reg.append(("L_tz_start", "L_zend", "L_tz", "L_tzback", o.ztouch))
    if o.ftouch:
        reg.append(("L_tf_start", "L_fend", "L_tf", "L_tfback", o.ftouch))
    if reg:
        insert_stubs(a, reg, step=o.zstep)
    finish(a, name, NVGPR, 102 if (o.stamps or o.hold or o.probe >= 0) else o.nsgpr, NWG, 576, o.lds or LDS_BYTES, o.o)


main()
```

```python
import argparse
from lib import *

NA, NF, NZ = 128, 112, 16
NWG = NA + NF + NZ
WS_E = 0
WS_ALIVE = 4096
WS_KEY = 64 << 10
WS_KEY2 = 128 << 10
WS_XCH = 192 << 10
XCHC = 28 * 4096
WS_PART = 704 << 10
PZ = 56 * 256
PARTC = NZ * PZ
WS_INT = 2 << 20
CS = 32768 + 256
WS_STAMP = 8 << 20
WS_BYTES = 16 << 20
L_TILE = 0
L_U2 = 16384
L_CT = L_U2
UB = 17 * 64
L_MISC = L_U2 + 16 * UB
L_KSL = L_MISC
L_GKEY = L_MISC + 64
L_ZC = L_MISC + 76
L_ZF = L_MISC + 72
L_EXP = L_MISC + 128
L_DUMP = L_MISC + 192
L_XG2 = L_DUMP + 4 * UB + 256
L_M2 = L_XG2 + 4096
L_WV = L_M2 + 4096
L_XT = L_WV + 2048
L_W = 0
L_WD = 32768
L_RED = L_WD + 16384
L_FKEY = L_RED + 2048
LDS_BYTES = 84 * 1024
MF = "v_mfma_f32_16x16x32_bf16"
LOG2E = 0x3fb8aa3b
DPPM = "row_mask:0xf bank_mask:0xf"
HIM = "0xffff0000"
NVGPR = 168


class S:
    WAVE = 3
    PX = 4
    T0, T1, T2, T3, T4, T5 = 6, 7, 8, 9, 10, 11
    EX = 12
    EY = 14
    PWR, PWG, PWU, PWD, PGW, POUT, PDBG, PWS = 16, 18, 20, 22, 24, 26, 28, 30
    L0, L1, SPT, PIE = 32, 33, 34, 35
    RWS, ROUT = 36, 40
    XS = 44
    GKEY, WSEL, WHICH, Z = 44, 45, 46, 47
    SI0, SI1, ID8, BLK = 48, 49, 50, 51
    IDX, ISZ, TC = 54, 55, 53
    SO = 44
    T1C, HH, TD, TM = 56, 57, 58, 59
    FJ, PO, POL, RC, KM, SPIN = 60, 61, 62, 63, 64, 65
    PO0, L10, T20, FKEY, FIN = 40, 41, 42, 43, 35
    ST = 68


def gen(a, o):
    global WS_KEY, WS_XCH, WS_PART, WS_INT, WS_ALIVE, WS_BYTES
    WS_KEY += o.wsoff << 20
    WS_XCH += o.wsoff << 20
    WS_PART += o.wsoff << 20
    WS_INT += o.wsoff << 20
    WS_ALIVE += o.wsoff << 20
    WS_BYTES = max(WS_BYTES, (o.wsoff + 8) << 20)
    name = NAME + "_kernel"
    kernel_head(a, name)
    VE, VTAG = 30, 31
    PXS = f"s[{S.PX}:{S.PX+1}]"

    def stamp(i):
        if o.stamps:
            a(f"s_memrealtime s[{S.ST+2*i}:{S.ST+2*i+1}]")

    def hold(cp):
        if o.hold and o.hold[0] == cp:
            l = a.L("hold")
            a.label(l)
            a("s_sleep 1")
            a("s_memrealtime s[100:101]")
            a("s_waitcnt lgkmcnt(0)")
            a("s_sub_u32 s100, s100, s66")
            a(f"s_cmp_lt_u32 s100, {o.hold[1]}")
            a(f"s_cbranch_scc1 {l}")

    def touch(pre, n, first, step, back=None, tail=None):
        a("s_mov_b64 exec, 0")
        a(f"s_sub_u32 s{S.TC}, s{S.WAVE}, {first + step}")
        a.label(f"{pre}back")
        a(f"s_add_u32 s{S.TC}, s{S.TC}, {step}")
        for k in range(n):
            a(f"s_cmp_eq_u32 s{S.TC}, {k}")
            a(f"s_cbranch_scc1 {pre}{k}")
        a("s_mov_b64 exec, -1")

    def endprog():
        if o.stamps:
            a("s_waitcnt lgkmcnt(0)")
            a(f"s_add_u32 s{S.ST+28}, s{S.RC}, s{S.ST+30}")
            for i in range(16):
                a(f"v_writelane_b32 v166, s{S.ST+2*i}, {i}")
            a("s_mov_b64 exec, 0xffff")
            a(f"s_lshl4_add_u32 s{S.T0}, s2, s{S.WAVE}")
            a(f"s_lshl_b32 s{S.T0}, s{S.T0}, 7")
            a(f"s_add_u32 s{S.T0}, s{S.T0}, {WS_STAMP}")
            a(f"v_lshl_add_u32 v165, v0, 3, s{S.T0}")
            a("v_mov_b32 v167, 0")
            a(f"global_store_dwordx2 v165, v[166:167], s[{S.RWS}:{S.RWS+1}]" + (" sc1" if o.ev else ""))
        a("s_endpgm")

    def spin():
        a(f"s_add_u32 s{S.SPIN}, s{S.SPIN}, 1")
        a(f"s_lshr_b32 s{S.SPT}, s{S.SPIN}, {o.spin}")

    def poll_setup(base, R, C):
        a(f"s_and_b32 s{S.PO}, s2, {R-1}")
        a(f"s_mul_i32 s{S.PO}, s{S.PO}, {1024*C}")
        a(f"s_add_u32 s{S.PO}, s{S.PO}, {base}")
        a(f"s_add_u32 s{S.POL}, s{S.PO}, {1024*(C-1)}")

    def set_exec(n):
        if n >= 64:
            a("s_mov_b64 exec, -1")
        elif n <= 31:
            a(f"s_mov_b64 exec, {(1 << n) - 1:#x}")
        else:
            a("s_mov_b32 exec_lo, -1")
            a(f"s_mov_b32 exec_hi, {(1 << (n - 32)) - 1:#x}")

    RS = 8 * o.smem
    RF, CF = o.mf
    RZ, CZ = o.mz
    R2, C2 = o.m2
    assert RF * CF + RZ * CZ + R2 * C2 + RS <= 64

    def poll_granules(vaddr, vd, sleep=0, step=1024, bar=False):
        l = a.L("poll")
        if sleep:
            a(f"s_branch {l}_1")
        a.label(l)
        if sleep:
            a(f"s_sleep {sleep}")
            a.label(f"{l}_1")
        a(f"buffer_load_dwordx4 {V(vd,4)}, v{vaddr}, {R4(S.RWS)}, s{S.PO} offen sc1")
        a(f"s_add_u32 s{S.PO}, s{S.PO}, {step}")
        a(f"s_min_u32 s{S.PO}, s{S.PO}, s{S.POL}")
        if bar:
            a(f"s_cmp_lg_u32 s{S.SPIN}, 0")
            a(f"s_cbranch_scc1 {l}_2")
            a("s_barrier")
            a.label(f"{l}_2")
        if o.stamps:
            a(f"s_add_u32 s{S.RC}, s{S.RC}, 1")
        spin()
        a("s_waitcnt vmcnt(0)")
        a(f"s_cbranch_scc1 {l}_ok")
        a(f"v_cmp_ne_u32 vcc, v{VTAG}, v{vd+1}")
        a(f"v_cmp_ne_u32 s[{S.EX}:{S.EX+1}], v{VTAG}, v{vd+3}")
        a(f"s_or_b64 vcc, vcc, s[{S.EX}:{S.EX+1}]")
        a(f"s_cbranch_vccnz {l}")
        a.label(f"{l}_ok")

    def wave_max_key(vd):
        a(f"v_max_u32 v{vd}, v{vd}, v{vd+2}")
        for r in ("row_ror:8", "row_ror:4", "row_ror:2", "row_ror:1"):
            a.nop(2)
            a(f"v_max_u32_dpp v{vd}, v{vd}, v{vd} {r} {DPPM}")
        a.nop(2)
        a(f"v_max_u32_dpp v{vd}, v{vd}, v{vd} row_bcast:15 row_mask:0xa bank_mask:0xf")
        a.nop(2)
        a(f"v_max_u32_dpp v{vd}, v{vd}, v{vd} row_bcast:31 row_mask:0xc bank_mask:0xf")

    def lds_put(addr, v, tag=False):
        a(f"v_mov_b32 v9, {addr}")
        a("s_mov_b32 exec_lo, 0")
        a("s_brev_b32 exec_hi, 1")
        if tag:
            a(f"ds_write2_b32 v9, v{v}, v{VTAG} offset1:1")
        else:
            a(f"ds_write_b32 v9, v{v}")
        a("s_mov_b64 exec, -1")
        a("s_waitcnt lgkmcnt(0)")

    def sigmoid(d, s):
        a(f"v_mul_f32 v{d}, {LOG2E | 0x80000000:#x}, v{s}")
        a(f"v_exp_f32 v{d}, v{d}")
        a.nop(1)
        a(f"v_add_f32 v{d}, 1.0, v{d}")
        a(f"v_rcp_f32 v{d}, v{d}")
        a.nop(1)

    def rnd(d, s):
        a(f"v_cvt_pk_bf16_f32 v{d}, v{s}, v{s}")
        a(f"v_and_b32 v{d}, {HIM}, v{d}")

    def ws_setup():
        a.srd(S.RWS, S.PWS, WS_BYTES)
        a(f"s_mov_b32 s{S.SPIN}, 0")

    def tag_load():
        a(f"v_mov_b32 v{VTAG}, 0")
        a(f"global_load_dword v{VE}, v{VTAG}, s[{S.PWS}:{S.PWS+1}]")
        a(f"s_mov_b32 s{S.KM}, 0x9E3779B1")

    def tag_make():
        a(f"v_mul_lo_u32 v{VTAG}, v{VE}, s{S.KM}")
        a(f"v_add_u32 v{VTAG}, 0x7F4A7C15, v{VTAG}")

    a(f"s_load_dwordx2 s[{S.PX}:{S.PX+1}], s[0:1], {KA_X}")
    a(f"s_load_dwordx16 s[16:31], s[0:1], {KA_WR}")
    if o.cpf0:
        a(f"s_cmp_ge_u32 s2, {8*o.cpf0}")
        a("s_cbranch_scc1 L_nocpf0")
        a(f"s_getpc_b64 s[{S.EX}:{S.EX+1}]")
        a.label("L_pc0")
        a("v_lshlrev_b32 v6, 7, v0")
        a(f"v_min_u32 v6, L_end - L_pc0, v6")
        a(f"v_mov_b32 v13, s{S.EX+1}")
        a(f"v_add_co_u32 v12, vcc, s{S.EX}, v6")
        a.nop(2)
        a("v_addc_co_u32 v13, vcc, 0, v13, vcc")
        a("global_load_dword v164, v[12:13], off")
        a.label("L_nocpf0")
    if o.stamps:
        for i in range(1, 16):
            a(f"s_mov_b32 s{S.ST+2*i}, 0")
        a(f"s_mov_b32 s{S.RC}, 0")
    stamp(0)
    if o.hold or o.probe >= 0:
        a("s_memrealtime s[66:67]")
    if o.skew:
        a("s_and_b32 s6, s2, 7")
        a("s_cmp_lg_u32 s6, 5")
        a("s_cbranch_scc1 L_noskew")
        a(f"s_sleep {o.skew}")
        a.label("L_noskew")
    a("v_lshrrev_b32 v1, 6, v0")
    a("v_and_b32 v0, 63, v0")
    a(f"v_readfirstlane_b32 s{S.WAVE}, v1")
    a("v_and_b32 v1, 15, v0")
    a("v_lshrrev_b32 v2, 4, v0")
    a(f"s_and_b32 s{S.T0}, s2, 7")
    a(f"s_sub_u32 s{S.WAVE}, s{S.WAVE}, 1")
    a(f"s_min_u32 s{S.WAVE}, s{S.WAVE}, 8")
    a(f"s_lshr_b32 s{S.T1}, s2, 3")
    a(f"s_cmp_ge_u32 s2, {NA}")
    a("s_cbranch_scc1 L_notA")
    if o.only == "F":
        a("s_endpgm")

    VROW, VG16, VSGN, VTR, VST = 3, 5, 8, 10, 11
    VLD, VUW, VUX, VUR0, VUR1 = 10, 11, 28, 29, 30
    XR, WR, GW, CO = 16, 24, 24, 24
    CM, AOP, ACC = 32, 96, 112
    LD, DA0, DA1, TP, X16, PK = 32, 64, 32, 80, 96, 48
    M1, GA, XG = 100, 148, 152
    Cc, Ss = 64, 68
    UO, PQ, M2 = 32, 48, 64

    def rows_setup(wreg):
        a(f"s_lshl3_add_u32 s{S.T5}, s{S.HH}, s{wreg}")
        a(f"s_lshl_b32 s{S.T5}, s{S.T5}, 7")
        a(f"s_add_u32 s{S.TD}, s{S.T5}, s{S.T1C}")
        a(f"s_sub_u32 s{S.TM}, 2048, s{S.TD}")
        a(f"s_cmp_eq_u32 s{S.TD}, 0")
        a(f"s_cselect_b32 s{S.TM}, 1024, s{S.TM}")
        a(f"s_lshl_b32 s{S.T4}, s{S.TD}, 10")
        a(f"s_lshl_b32 s{S.T5}, s{S.TM}, 10")
        a(f"v_add_u32 v6, s{S.T4}, v{VG16}")
        a(f"v_add_u32 v7, s{S.T5}, v{VG16}")

    def vrow_setup():
        a("v_and_b32 v6, 1, v2")
        a("v_lshlrev_b32 v6, 5, v6")
        a("v_lshl_add_u32 v6, v1, 6, v6")
        a("v_lshrrev_b32 v7, 1, v2")
        a(f"v_lshl_add_u32 v{VROW}, v7, 4, v6")

    def rows_load():
        a(f"global_load_dwordx4 {V(XR,4)}, v6, {PXS}{o.xpol}")
        a(f"global_load_dwordx4 {V(XR+4,4)}, v7, {PXS}{o.xpol}")

    def sgn_setup():
        a(f"v_lshlrev_b32 v{VSGN}, 31, v1")
        a(f"v_lshrrev_b32 v9, 16, v{VSGN}")
        a(f"v_or_b32 v{VSGN}, v{VSGN}, v9")

    def sgn_setup2():
        a(f"v_lshlrev_b32 v{VSGN}, 31, v1")
        a(f"v_lshrrev_b32 v14, 16, v{VSGN}")
        a(f"v_or_b32 v{VSGN}, v{VSGN}, v14")

    def tile_ids():
        a(f"s_bitcmp1_b32 s{S.T1}, 3")
        a(f"s_cselect_b32 s{S.T2}, s{S.T3}, s{S.T2}")
        a(f"s_and_b32 s{S.T3}, s{S.T1}, 7")
        a(f"s_lshl3_add_u32 s{S.BLK}, s{S.T2}, s{S.T3}")
        a(f"s_lshl_b32 s{S.PIE}, s{S.T2}, 5")
        a(f"s_add_u32 s{S.PIE}, s{S.PIE}, s{S.T3}")
        a(f"s_lshl_b32 s{S.PIE}, s{S.PIE}, 6")

    def vst_setup():
        a(f"v_mul_u32_u24 v{VST}, {CS}, v1")
        a(f"v_lshl_add_u32 v{VST}, v2, 4, v{VST}")

    def const_d2():
        R = 40
        a("v_lshlrev_b32 v6, 2, v2")
        a("v_cvt_f32_u32 v7, v1")
        a("v_cvt_f32_u32 v6, v6")
        a("v_mul_f32 v7, 0x3d800000, v7")
        for hf in range(2):
            if hf:
                a("v_add_f32 v7, 0x3d800000, v7")
            a("v_mul_f32 v9, v6, v7")
            for jj in range(4):
                a(f"v_cos_f32 v{Cc+jj}, v9")
                a(f"v_sin_f32 v{Ss+jj}, v9")
                if jj < 3:
                    a("v_add_f32 v9, v9, v7")
            a.nop(1)
            for jj in range(4):
                if hf == 0:
                    a(f"v_cvt_pk_bf16_f32 v{R+jj}, v{Cc+jj}, v{Ss+jj}")
                    a(f"v_cvt_pk_bf16_f32 v{R+8+jj}, -v{Ss+jj}, v{Cc+jj}")
                else:
                    a(f"v_cvt_pk_bf16_f32 v{R+4+jj}, v{Cc+jj}, -v{Ss+jj}")
                    a(f"v_cvt_pk_bf16_f32 v{R+12+jj}, -v{Ss+jj}, -v{Cc+jj}")
        for k in range(4):
            a(f"ds_write_b128 v{VG16}, {V(R+4*k,4)} offset:{L_M2 + 1024*k}")

    a(f"s_add_u32 s{S.T2}, s{S.T0}, 1")
    a(f"s_sub_u32 s{S.T3}, 15, s{S.T0}")
    a(f"s_cmp_eq_u32 s{S.WAVE}, 8")
    a("s_cbranch_scc1 L_ah")
    a(f"s_and_b32 s{S.HH}, s{S.T1}, 1")
    a(f"s_bitcmp1_b32 s{S.T1}, 1")
    a(f"s_cselect_b32 s{S.T4}, s{S.T3}, s{S.T2}")
    a(f"s_lshr_b32 s{S.T5}, s{S.T1}, 2")
    a(f"s_lshl4_add_u32 s{S.T1C}, s{S.T5}, s{S.T4}")
    a(f"v_lshlrev_b32 v{VG16}, 4, v0")
    a(f"v_mov_b32 v{VROW}, 0")
    a(f"s_cmp_lg_u32 s{S.T0}, 7")
    a("s_cbranch_scc1 L_k7")
    a(f"s_lshr_b32 s{S.T5}, s{S.T1}, 1")
    a(f"s_lshl3_add_u32 s{S.T1C}, s{S.T5}, 8")
    a(f"s_mov_b32 s{S.T2}, 0")
    a(f"s_cmp_eq_u32 s2, 127")
    a(f"s_cselect_b32 s{S.T1C}, 0, s{S.T1C}")
    a(f"s_cselect_b32 s{S.HH}, 0, s{S.HH}")
    a.label("L_k7")
    rows_setup(S.WAVE)
    a("s_waitcnt lgkmcnt(0)")
    rows_load()
    stamp(1)
    if o.touch:
        touch("L_ta", o.touch, 0, 8)
    a.label("L_ta_start")
    if o.b0 == 2:
        a("s_barrier")
    tile_ids()

    def tile_dma():
        a(f"s_lshl_b32 s{S.T4}, s{S.WAVE}, 11")
        a(f"s_add_u32 s{S.T5}, s{S.T4}, s{S.BLK}")
        a(f"s_lshl_b32 s{S.T5}, s{S.T5}, 7")
        a(f"s_mov_b32 m0, s{S.T4}")
        a("v_and_b32 v9, 7, v0")
        a("v_bfe_u32 v13, v0, 4, 1")
        a("v_xor_b32 v9, v9, v13")
        a("v_lshrrev_b32 v13, 3, v0")
        a(f"v_lshl_add_u32 v9, v9, 4, s{S.T5}")
        a("v_lshl_add_u32 v13, v13, 14, v9")
        a(f"global_load_lds_dwordx4 v13, {PXS}")
        a(f"s_add_u32 m0, s{S.T4}, 1024")
        a("v_add_u32 v13, 0x20000, v13")
        a(f"global_load_lds_dwordx4 v13, {PXS}")
        stamp(2)

    if not o.tlate:
        tile_dma()
    C1, S1, K = AOP, AOP + 4, AOP + 8
    a(f"s_lshr_b32 s{S.T0}, s{S.WAVE}, 2")
    a(f"s_and_b32 s{S.T1}, s{S.WAVE}, 1")
    a(f"s_bfe_u32 s{S.T2}, s{S.WAVE}, 0x10001")
    a(f"v_lshl_add_u32 v6, s{S.T0}, 4, v1")
    a(f"s_lshl3_add_u32 s{S.T3}, s{S.T2}, s{S.T1}")
    a(f"s_lshl_b32 s{S.T3}, s{S.T3}, 2")
    a("v_cvt_f32_u32 v6, v6")
    a(f"v_lshl_add_u32 v7, v2, 3, s{S.T3}")
    a("v_mul_f32 v6, 0x3c000000, v6")
    a("v_cvt_f32_u32 v7, v7")
    a("v_mul_f32 v7, v7, v6")
    for j in range(4):
        a(f"v_cos_f32 v{C1+j}, v7")
        a(f"v_sin_f32 v{S1+j}, v7")
        if j < 3:
            a("v_add_f32 v7, v7, v6")
    if o.tlate == 2:
        a(f"global_load_dwordx4 {V(WR,4)}, v{VG16}, s[{S.PWR}:{S.PWR+1}]")
        tile_dma()
    a(f"s_lshl_b32 s{S.T4}, s{S.T0}, 13")
    a(f"s_lshl_b32 s{S.T5}, s{S.T2}, 10")
    a(f"s_lshl3_add_u32 s{S.T5}, s{S.T1}, s{S.T5}")
    a(f"v_add_u32 v15, s{S.T4}, v{VG16}")
    a(f"v_add_u32 v9, s{S.T5}, v15")
    a(f"v_cvt_pk_bf16_f32 v{K+0}, v{C1}, v{C1+1}")
    a(f"v_cvt_pk_bf16_f32 v{K+1}, v{C1+2}, v{C1+3}")
    a(f"v_cvt_pk_bf16_f32 v{K+2}, -v{S1}, -v{S1+1}")
    a(f"v_cvt_pk_bf16_f32 v{K+3}, -v{S1+2}, -v{S1+3}")
    a("v_cmp_eq_f32 vcc, 0, v6")
    a(f"v_cvt_pk_bf16_f32 v{K+4}, v{C1}, -v{S1+1}")
    a(f"v_cvt_pk_bf16_f32 v{K+5}, -v{C1+2}, v{S1+3}")
    a(f"v_cvt_pk_bf16_f32 v{K+6}, -v{S1}, -v{C1+1}")
    a(f"v_cvt_pk_bf16_f32 v{K+7}, v{S1+2}, v{C1+3}")
    a(f"ds_write_b64 v9, {V(K,2)} offset:{L_CT}")
    a(f"ds_write_b64 v9, {V(K+4,2)} offset:{L_CT+4096}")
    a(f"ds_write_b64 v9, {V(K+6,2)} offset:{L_CT+6144}")
    a("s_mov_b64 exec, vcc")
    a(f"v_mov_b32 v{K+2}, 0xbf803f80")
    a(f"v_mov_b32 v{K+3}, 0xbf803f80")
    a("s_mov_b64 exec, -1")
    a(f"ds_write_b64 v9, {V(K+2,2)} offset:{L_CT+2048}")
    if o.tlate != 2:
        a(f"global_load_dwordx4 {V(WR,4)}, v{VG16}, s[{S.PWR}:{S.PWR+1}]")
    if o.tlate == 1:
        tile_dma()
    a("v_mov_b32 v12, 0")
    a("v_mov_b32 v13, 0")
    stamp(3)
    if o.b0 == 1:
        a("s_waitcnt lgkmcnt(0)")
        a("s_barrier")
        for k in range(2):
            for t in range(4):
                a(f"ds_read_b128 {V(CM+16*t+4*k,4)}, v15 offset:{L_CT + t*2048 + k*1024}")

    def dots(w, fill=()):
        fill = list(fill)

        def pad(n):
            while n and fill:
                a(fill.pop(0))
                n -= 1
            a.nop(n)

        for i in range(4):
            a(f"v_dot2c_f32_bf16 v12, v{XR+i}, v{w+i}")
            a(f"v_dot2c_f32_bf16 v13, v{XR+4+i}, v{w+i}")
        pad(3)
        a("v_permlane32_swap_b32 v12, v13")
        a("v_add_f32 v12, v12, v13")
        a("v_mov_b32 v13, v12")
        pad(2)
        a("v_permlane16_swap_b32 v12, v13")
        a("v_add_f32 v12, v12, v13")
        for r in (8, 4, 2, 1):
            pad(2)
            a(f"v_add_f32_dpp v12, v12, v12 row_ror:{r} {DPPM}")
        rnd(12, 12)
        for x in fill:
            a(x)

    a(f"s_waitcnt vmcnt({2 if o.tlate else 0})")
    stamp(4)
    dots(WR, [f"s_sub_u32 s{S.T4}, 0xffff, s{S.TD}", f"s_sub_u32 s{S.T5}, 0xffff, s{S.TM}", f"v_mov_b32 v4, s{S.T4}",
              f"v_writelane_b32 v4, s{S.T5}, 32", f"v_mov_b32 v9, {L_KSL}",
              f"v_lshlrev_b32 v{VSGN}, 31, v1", f"v_lshrrev_b32 v7, 16, v{VSGN}", f"v_or_b32 v{VSGN}, v{VSGN}, v7",
              "v_bfe_u32 v6, v0, 2, 2", "v_and_b32 v14, 3, v0", f"v_lshl_add_u32 v14, v14, 1, s{S.T2}",
              f"v_lshl_add_u32 v{VTR}, v2, 3, v6", "v_lshrrev_b32 v6, 1, v6", "v_xor_b32 v14, v14, v6"])
    a("v_ashrrev_i32 v7, 31, v12")
    a("v_or_b32 v7, 0x80000000, v7")
    a("v_xor_b32 v7, v7, v12")
    a(f"v_and_b32 v7, {HIM}, v7")
    a("v_or_b32 v7, v7, v4")
    a("s_mov_b32 exec_lo, 1")
    a("s_mov_b32 exec_hi, 1")
    a("ds_max_u32 v9, v7")
    a("s_mov_b64 exec, -1")
    if o.b1a:
        a("s_waitcnt lgkmcnt(0)")
        hold("K")
        a("s_barrier")
    if o.b0 == 2:
        for k in range(2):
            for t in range(4):
                a(f"ds_read_b128 {V(CM+16*t+4*k,4)}, v15 offset:{L_CT + t*2048 + k*1024}")
    a(f"s_lshl_b32 s{S.T1}, s{S.T1}, 3")
    a(f"v_lshl_add_u32 v14, v14, 4, s{S.T1}")
    a(f"v_lshl_add_u32 v{VTR}, v{VTR}, 7, v14")
    a("v_lshlrev_b32 v9, 4, v2")
    a("s_waitcnt vmcnt(0)" + ("" if o.b0 == 2 else " lgkmcnt(0)"))
    hold("B1")
    a("s_barrier")
    stamp(5)
    if o.b0 == 2:
        a("s_waitcnt lgkmcnt(5)")
    a(f"ds_read_b128 v[28:31], v9 offset:{L_EXP}")
    for k in range(4):
        for h in range(2):
            a(f"ds_read_b64_tr_b16 {V(AOP+4*k+2*h,2)}, v{VTR} offset:{L_TILE + k*4096 + h*512}")
        if k < 2 and not o.b0:
            for t in range(4):
                a(f"ds_read_b128 {V(CM+16*t+4*k,4)}, v15 offset:{L_CT + t*2048 + k*1024}")
        if k == 1 and not o.b0:
            a("s_waitcnt lgkmcnt(9)")
    a(f"global_load_dwordx4 {V(GW,4)}, v{VG16}, s[{S.PGW}:{S.PGW+1}]")
    xors = [f"v_xor_b32 v{CM+t*16+8+4*kp+r}, v{CM+t*16+4*kp+r}, v{VSGN}" for kp in range(2) for t in range(4) for r in range(4)]
    misc = [f"s_mul_i32 s{S.SO}, s{S.T0}, {16*CS}",
            f"s_add_u32 s{S.SO}, s{S.SO}, s{S.PIE}",
            f"s_and_b32 s{S.T4}, s{S.WAVE}, 3",
            f"s_lshl_b32 s{S.T4}, s{S.T4}, 9",
            f"s_add_u32 s{S.SO}, s{S.SO}, s{S.T4}",
            f"s_add_u32 s{S.SO}, s{S.SO}, {WS_INT}",
            f"s_mov_b32 s{S.RWS}, s{S.PWS}", f"s_mov_b32 s{S.RWS+1}, s{S.PWS+1}", f"s_mov_b32 s{S.RWS+2}, {WS_BYTES:#x}",
            f"s_mov_b32 s{S.RWS+3}, 0x20000",
            f"s_add_u32 s{S.SO+1}, s{S.SO}, {32*CS}", f"s_mov_b32 s{S.T5}, 0xfffefffe", f"s_mov_b32 s{S.T4}, 0x07060302",
            f"v_mul_u32_u24 v{VST}, {CS}, v1", f"v_lshl_add_u32 v{VST}, v2, 4, v{VST}",
            ]
    fill = xors + misc
    for k in range(4):
        for t in range(4):
            if o.b0:
                if t == 0:
                    a(f"s_waitcnt lgkmcnt({6-2*k})")
            elif k == 0:
                a(f"s_waitcnt lgkmcnt({13-t})")
            elif k == 1:
                a(f"s_waitcnt lgkmcnt({7-t})")
            elif t == 0:
                a(f"s_waitcnt lgkmcnt({2 if k == 2 else 0})")
            c = "0" if k == 0 else V(ACC + 4 * t, 4)
            a(f"{MF} {V(ACC+4*t,4)}, {V(AOP+4*k,4)}, {V(CM+16*t+4*k,4)}, {c}")
            n = 4 if k < 2 else 2
            if k < 3 or t < 3:
                for _ in range(n):
                    if fill:
                        x = fill.pop(0)
                        if x != "TAGWAIT":
                            a(x)
    for x in fill:
        a(x)
    a("v_mov_b32 v12, 0")
    a("v_mov_b32 v13, 0")
    for h in range(2):
        for i in range(8):
            a(f"v_add_u32 v{ACC+8*h+i}, 0x10000, v{ACC+8*h+i}")
        for i in range(4):
            a(f"v_perm_b32 v{AOP+4*h+i}, v{ACC+8*h+4+i}, v{ACC+8*h+i}, s{S.T4}")
        for i in range(4):
            a(f"v_and_or_b32 v{AOP+4*h+i}, v{AOP+4*h+i}, s{S.T5}, v{28+i}")
        a(f"buffer_store_dwordx4 {V(AOP+4*h,4)}, v{VST}, {R4(S.RWS)}, s{S.SO+h} offen sc1")
    a(f"s_mov_b32 s{S.SPIN}, 0")
    a(f"s_mov_b32 s{S.ISZ}, 0")
    stamp(7)
    if o.only == "P1":
        a("s_endpgm")
    a.label("L_ta_end")

    gwait = [2]

    def gates(full):
        if full:
            a(f"s_waitcnt vmcnt({gwait[0]})")
        dots(GW)
        if full:
            a(f"s_lshl_b32 s{S.T0}, s{S.WAVE}, 11")
            a(f"v_add_u32 v6, s{S.T0}, v{VG16}")
            a(f"ds_write_b128 v6, {V(XR,4)} offset:{L_XT}")
            a(f"ds_write_b128 v6, {V(XR+4,4)} offset:{L_XT+1024}")
            a(f"v_lshl_add_u32 v7, v1, 6, s{S.T0}")
            a("v_lshl_add_u32 v7, v2, 3, v7")
            a("s_waitcnt lgkmcnt(0)")
            for r in range(2):
                a(f"ds_read2_b64 {V(XR+4*r,4)}, v7 offset0:{0} offset1:{4}" if False else f"ds_read_b64 {V(XR+4*r,2)}, v7 offset:{L_XT+1024*r}")
                a(f"ds_read_b64 {V(XR+4*r+2,2)}, v7 offset:{L_XT+1024*r+32}")
            vrow_setup()
        sigmoid(13, 12)
        rnd(13, 13)
        a("v_sub_f32 v14, 1.0, v13")
        rnd(14, 14)
        a(f"v_readlane_b32 s{S.T0}, v13, 0")
        a(f"v_readlane_b32 s{S.T1}, v13, 32")
        a(f"v_readlane_b32 s{S.T2}, v14, 0")
        a(f"v_readlane_b32 s{S.T3}, v14, 32")
        a(f"s_xor_b32 s{S.T4}, s{S.T0}, 0x80000000")
        a(f"s_cmp_eq_u32 s{S.TD}, 0")
        a(f"s_cselect_b32 s{S.T4}, 0, s{S.T4}")
        a(f"s_cselect_b32 s{S.T5}, 0, s{S.T1}")
        if not full:
            return
        a(f"v_mov_b32 v{CO}, s{S.T0}")
        a(f"v_mov_b32 v{CO+1}, s{S.T4}")
        a(f"v_mov_b32 v{CO+2}, s{S.T5}")
        a(f"v_mov_b32 v{CO+3}, s{S.T1}")
        a(f"v_mov_b32 v13, s{S.T2}")
        a(f"v_mov_b32 v14, s{S.T3}")
        a("s_waitcnt lgkmcnt(0)")
        for r in range(2):
            for i in range(4):
                a(f"v_lshlrev_b32 v{XG+8*r+2*i}, 16, v{XR+4*r+i}")
                a(f"v_and_b32 v{XG+8*r+2*i+1}, {HIM}, v{XR+4*r+i}")
            for i in range(8):
                a(f"v_mul_f32 v{XG+8*r+i}, v{13+r}, v{XG+8*r+i}")

    def addr_ur(wreg):
        a(f"s_mul_i32 s{S.T1}, s{wreg}, {2*UB}")
        a("v_bfe_u32 v7, v1, 1, 2")
        a("v_xor_b32 v7, v7, v2")
        a(f"v_lshl_add_u32 v7, v7, 4, s{S.T1}")
        a(f"v_lshl_add_u32 v{VUR0}, v1, 6, v7")
        a("v_sub_u32 v6, 16, v1")
        a("v_bfe_u32 v7, v6, 1, 2")
        a("v_xor_b32 v7, v7, v2")
        a(f"v_lshl_add_u32 v7, v7, 4, s{S.T1}")
        a(f"v_lshl_add_u32 v{VUR1}, v6, 6, v7")

    def addr_p2():
        a("v_lshlrev_b32 v6, 4, v1")
        a(f"v_lshl_add_u32 v{VLD}, v2, 13, v6")
        a(f"v_mul_u32_u24 v6, {4*UB}, v2")
        a("v_bfe_u32 v7, v1, 1, 2")
        a(f"v_xor_b32 v7, s{S.WAVE}, v7")
        a("v_lshl_add_u32 v7, v7, 4, v6")
        a(f"v_lshl_add_u32 v{VUW}, v1, 6, v7")
        a(f"s_lshl4_add_u32 s{S.T1}, s{S.WAVE}, 1024")
        a(f"v_mov_b32 v9, {L_DUMP - L_U2}")
        a(f"v_lshl_add_u32 v{VUX}, v0, 1, v9")
        a(f"v_lshl_add_u32 v7, v1, 1, s{S.T1}")
        a("s_mov_b32 exec_lo, 0x00ff00ff")
        a("s_mov_b32 exec_hi, 0x00ff00ff")
        a(f"v_add_u32 v{VUX}, v7, v6")
        a("s_mov_b64 exec, -1")

    EXP = 96

    def exp_setup():
        a("v_and_b32 v6, 3, v1")
        a("v_lshlrev_b32 v6, 4, v6")
        a(f"ds_read_b128 {V(EXP,4)}, v6 offset:{L_EXP}")
        a("s_waitcnt lgkmcnt(0)")

    def exp_make():
        a("v_lshlrev_b32 v6, 1, v1")
        a(f"v_lshrrev_b32 v6, v6, v{VTAG}")
        a("v_lshlrev_b32 v7, 15, v6")
        a("v_and_b32 v6, 1, v6")
        a("v_and_b32 v7, 0x10000, v7")
        a("v_or_b32 v6, v6, v7")
        a("v_lshlrev_b32 v7, 2, v1")
        a(f"ds_write_b32 v7, v6 offset:{L_EXP}")
        a("s_waitcnt lgkmcnt(0)")

    def const_d1():
        a("v_cvt_f32_u32 v6, v1")
        a(f"s_lshl_b32 s{S.T0}, s{S.WAVE}, 2")
        a(f"v_lshl_add_u32 v7, v2, 6, s{S.T0}")
        a("v_mul_f32 v6, 0x3b000000, v6")
        a("v_cvt_f32_u32 v7, v7")
        a("v_mul_f32 v15, 0x41800000, v6")
        a("v_mul_f32 v7, v7, v6")
        for ib in range(4):
            if ib:
                a("v_add_f32 v7, v7, v6")
            for j in range(4):
                src = "v7" if j == 0 else "v9"
                a(f"v_cos_f32 v{Cc+j}, {src}")
                a(f"v_sin_f32 v{Ss+j}, {src}")
                if j < 3:
                    a(f"v_add_f32 v9, {src}, v15")
            b = M1 + 12 * ib
            a(f"v_mov_b32 v{b+8}, 0")
            for p in range(2):
                a(f"v_cvt_pk_bf16_f32 v{b+p}, v{Cc+2*p}, v{Cc+2*p+1}")
                a(f"v_cvt_pk_bf16_f32 v{b+4+p}, -v{Ss+2*p}, -v{Ss+2*p+1}")
            for p in range(2):
                a(f"v_xor_b32 v{b+2+p}, v{b+p}, v{VSGN}")
                a(f"v_xor_b32 v{b+6+p}, v{b+4+p}, v{VSGN}")
        a("v_lshrrev_b32 v6, 1, v1")
        a(f"v_add_u32 v7, s{S.T0}, v6")
        a("v_and_b32 v9, 1, v1")
        a("v_lshl_add_u32 v7, v9, 3, v7")
        a("v_cvt_f32_u32 v7, v7")
        a("v_mul_f32 v7, 0x3d000000, v7")
        a("v_cos_f32 v7, v7")
        for ib in range(4):
            m = 0x00030003 << (2 * ib)
            a(f"s_mov_b32 exec_lo, {m:#x}")
            a(f"s_mov_b32 exec_hi, {m:#x}")
            a(f"v_cvt_pk_bf16_f32 v{M1+12*ib+8}, v7, -v7")
        a("s_mov_b64 exec, -1")
        for ib in range(4):
            for p in range(1, 4):
                a(f"v_mov_b32 v{M1+12*ib+8+p}, v{M1+12*ib+8}")

    def const_ga():
        a("v_lshrrev_b32 v6, 1, v1")
        a(f"s_lshl_b32 s{S.T0}, s{S.HH}, 10")
        a(f"s_add_u32 s{S.T0}, s{S.T0}, s{S.T1C}")
        a(f"v_lshl_add_u32 v6, v6, 7, s{S.T0}")
        a("v_and_b32 v7, 1, v1")
        a("v_lshlrev_b32 v9, 9, v7")
        l0, ld = a.L("g0"), a.L("gd")
        a(f"s_cmp_lg_u32 s{S.T1C}, 0")
        a(f"s_cbranch_scc1 {l0}")
        a("s_mov_b32 exec_lo, 0x00020002")
        a("s_mov_b32 exec_hi, 0x00020002")
        a("v_mov_b32 v6, 0x400")
        a("v_mov_b32 v9, 0")
        a("s_mov_b64 exec, -1")
        a.label(l0)
        a("v_lshlrev_b32 v7, 2, v2")
        a("v_mad_u32_u24 v9, v7, v6, v9")
        a("v_cvt_f32_u32 v6, v6")
        a("v_cvt_f32_u32 v9, v9")
        a("v_mul_f32 v6, 0x3a000000, v6")
        a("v_mul_f32 v9, 0x3a000000, v9")
        for jj in range(4):
            a(f"v_cos_f32 v{Cc+jj}, v9")
            a(f"v_sin_f32 v{Ss+jj}, v9")
            if jj < 3:
                a("v_add_f32 v9, v9, v6")
        a(f"s_and_b32 s{S.T1}, s{S.T1C}, 63")
        a.nop(1)
        for jj in range(4):
            a(f"v_cvt_pk_bf16_f32 v{GA+jj}, v{Cc+jj}, v{Ss+jj}")
        a(f"s_cmp_lg_u32 s{S.T1}, 0")
        a(f"s_cbranch_scc1 {ld}")
        a(f"s_lshr_b32 s{S.T1}, s{S.T1C}, 2")
        for jj in range(4):
            a(f"v_and_b32 v{GA+jj}, 0xffff, v{GA+jj}")
            a(f"v_lshlrev_b32 v{GA+jj}, s{S.T1}, v{GA+jj}")
        a.label(ld)

    def int_base():
        a(f"s_and_b32 s{S.T1}, s{S.T1C}, 63")
        a(f"s_mul_i32 s{S.L0}, s{S.T1}, {CS}")
        a(f"s_lshl_b32 s{S.T1}, s{S.WAVE}, 9")
        a(f"s_add_u32 s{S.L0}, s{S.L0}, s{S.T1}")
        a(f"s_add_u32 s{S.L0}, s{S.L0}, {WS_INT}")
        a(f"s_add_u32 s{S.L1}, s{S.L0}, 4096")

    def m2_addr():
        a(f"s_cmp_eq_u32 s{S.TD}, 0")
        a(f"s_cselect_b32 s{S.T0}, 0, 2048")
        a(f"v_add_u32 v4, s{S.T0}, v{VG16}")

    def int_loads(ah):
        for jj in range(4):
            so = S.L0 if jj < 2 else S.L1
            a(f"buffer_load_dwordx4 {V(LD+16*ah+4*jj,4)}, v{VLD}, {R4(S.RWS)}, s{so} offen offset:{(jj & 1)*2048 + ah*256} sc1")

    a.srd(S.ROUT, S.POUT, 0x200000)
    a(f"s_cmp_ge_u32 s{S.WAVE}, 4")
    a("s_cbranch_scc1 L_hi0")
    if o.prio & 1:
        a("s_setprio 2")
    pre = [lambda: (addr_p2(), int_base(), const_ga(), exp_setup()), const_d1, lambda: gates(True), lambda: (addr_ur(S.WAVE), m2_addr())]
    if o.gfirst:
        pre[1], pre[2] = pre[2], pre[1]
    for f in pre[:o.npre]:
        f()
    stamp(8)
    a(f"s_waitcnt vmcnt({0 if o.ackwait else 2})")
    if o.b3:
        a("s_barrier")
    if o.isleep0:
        a(f"s_sleep {o.isleep0}")
    hold("B4")
    stamp(9)
    if o.stag:
        a(f"s_cmp_lg_u32 s{S.HH}, 0")
        a("s_cbranch_scc1 L_stg1")
        int_loads(0)
        a(f"s_waitcnt vmcnt({4 - o.stag})")
        int_loads(1)
        a("s_branch L_stg2")
        a.label("L_stg1")
        int_loads(1)
        a(f"s_waitcnt vmcnt({4 - o.stag})")
        int_loads(0)
        a("s_waitcnt vmcnt(0)")
        a.label("L_stg2")
    else:
        int_loads(0)
        int_loads(1)
    gwait[0] = 10
    for f in pre[o.npre:]:
        f()
    gwait[0] = 2
    a.label("L_zjoin")
    stamp(10)
    for ah in range(2):
        a(f"s_waitcnt vmcnt({4-4*ah})")
        a.label(f"L_got{ah}")
        b = LD + 16 * ah
        da = DA1 if ah else DA0
        for ib in range(4):
            for jj in range(4):
                a(f"v_xor_b32 v{TP+4*ib+jj}, v{b+4*jj+ib}, v{EXP+ib}")
            if ib == 0:
                a(f"v_or3_b32 v6, v{TP}, v{TP+1}, v{TP+2}")
                a(f"v_or_b32 v6, v6, v{TP+3}")
            else:
                a(f"v_or3_b32 v6, v6, v{TP+4*ib}, v{TP+4*ib+1}")
                a(f"v_or3_b32 v6, v6, v{TP+4*ib+2}, v{TP+4*ib+3}")
            if ib == 3:
                a("v_and_b32 v6, 0x10001, v6")
                a("v_cmp_ne_u32 vcc, 0, v6")
            if not (ah == 1):
                a(f"{MF} {V(da+4*ib,4)}, {V(TP+4*ib,4)}, {V(GA,4)}, 0")
            else:
                a(f"{MF} {V(da+4*ib,4)}, {V(TP+4*ib,4)}, {V(GA,4)}, 0")
        a(f"s_cbranch_vccnz L_retry{ah}")
        a.label(f"L_fail{ah}")
    stamp(11)

    def d1(jb):
        a(f"{MF} {V(DA0+4*jb,4)}, {V(TP+4*jb,4)}, {V(M1+12*jb,4)}, 0")
        a(f"{MF} {V(DA1+4*jb,4)}, {V(TP+4*jb,4)}, {V(M1+12*jb+4,4)}, 0")
        a(f"{MF} {V(X16,4)}, {V(TP+4*jb,4)}, {V(M1+12*jb+8,4)}, {'0' if jb == 0 else V(X16,4)}")

    for ib in range(4):
        for p in range(4):
            s0 = (DA1 if p >= 2 else DA0) + 4 * ib + 2 * (p & 1)
            a(f"v_cvt_pk_bf16_f32 v{TP+4*ib+p}, v{s0}, v{s0+1}")
        if ib:
            d1(ib - 1)
    d1(3)
    for ib in range(3):
        for i in range(4):
            a(f"v_cvt_pk_bf16_f32 v{PK+4*i+ib}, v{DA0+4*ib+i}, v{DA1+4*ib+i}")
    for i in range(4):
        a(f"v_cvt_pk_bf16_f32 v{PK+4*i+3}, v{DA0+12+i}, v{DA1+12+i}")
        a(f"ds_write_b128 v{VUW}, {V(PK+4*i,4)} offset:{L_U2 + i*UB}")
    a(f"v_cvt_pk_bf16_f32 v{X16}, v{X16}, v{X16+1}")
    a(f"v_cvt_pk_bf16_f32 v{X16+2}, v{X16+2}, v{X16+3}")
    a(f"ds_write_b16 v{VUX}, v{X16} offset:{L_U2}")
    a(f"ds_write_b16_d16_hi v{VUX}, v{X16} offset:{L_U2+UB}")
    a(f"ds_write_b16 v{VUX}, v{X16+2} offset:{L_U2+2*UB}")
    a(f"ds_write_b16_d16_hi v{VUX}, v{X16+2} offset:{L_U2+3*UB}")
    a.label("L_d2")
    a(f"ds_read_b128 {V(M2,4)}, v{VG16} offset:{L_M2}")
    a(f"ds_read_b128 {V(M2+4,4)}, v{VG16} offset:{L_M2+1024}")
    a(f"ds_read_b128 {V(M2+8,4)}, v4 offset:{L_M2}")
    a(f"ds_read_b128 {V(M2+12,4)}, v4 offset:{L_M2+1024}")
    a(f"v_mov_b32 v9, {L_GKEY}")
    a(f"s_cmp_lg_u32 s{S.ISZ}, 0")
    a("s_waitcnt lgkmcnt(0)")
    a("s_cbranch_scc1 L_zsync")
    a("s_barrier")
    stamp(12)
    a("ds_read_b32 v6, v9")
    a(f"ds_read_b128 {V(UO,4)}, v{VUR0} offset:{L_U2}")
    a(f"ds_read_b128 {V(UO+4,4)}, v{VUR1} offset:{L_U2}")
    a(f"ds_read_b128 {V(UO+8,4)}, v{VUR0} offset:{L_U2+UB}")
    a(f"ds_read_b128 {V(UO+12,4)}, v{VUR1} offset:{L_U2+UB}")
    a(f"s_lshl_b32 s{S.T0}, s{S.TD}, 10")
    a(f"s_lshl_b32 s{S.T1}, s{S.TM}, 10")
    for k in range(4):
        a(f"s_waitcnt lgkmcnt({3-k})")
        a(f"{MF} {V(PQ+4*k,4)}, {V(UO+4*k,4)}, {V(M2+4*k,4)}, 0")
    a(f"v_readfirstlane_b32 s{S.GKEY}, v6")
    a(f"s_andn2_b32 s{S.IDX}, 0xffff, s{S.GKEY}")
    for r in range(2):
        for i in range(8):
            a(f"v_fmac_f32 v{XG+8*r+i}, v{CO+2*r}, v{PQ+i}")
    for r, (so, tr) in enumerate(((S.T0, S.TD), (S.T1, S.TM))):
        for i in range(8):
            a(f"v_fmac_f32 v{XG+8*r+i}, v{CO+2*r+1}, v{PQ+8+i}")
        for i in range(4):
            a(f"v_cvt_pk_bf16_f32 v{UO+4*r+i}, v{XG+8*r+2*i}, v{XG+8*r+2*i+1}")
        l = a.L("skip")
        if r == 0:
            stamp(6)
        a(f"s_cmp_eq_u32 s{tr}, s{S.IDX}")
        a(f"s_cbranch_scc1 {l}")
        a(f"v_permlane16_swap_b32 v{UO+4*r}, v{UO+4*r+2}")
        a(f"v_permlane16_swap_b32 v{UO+4*r+1}, v{UO+4*r+3}")
        a(f"buffer_store_dwordx4 {V(UO+4*r,4)}, v{VROW}, {R4(S.ROUT)}, s{so} offen{o.outpol}")
        a.label(l)
    a.label("L_tb_end")
    stamp(13)
    if o.stamps:
        a("s_waitcnt vmcnt(0)")
        stamp(15)
    endprog()

    for ah in range(2):
        a.label(f"L_retry{ah}")
        if o.stamps:
            a(f"s_add_u32 s{S.RC}, s{S.RC}, {1 << (8*ah)}")
        if o.rsleep:
            a(f"s_sleep {o.rsleep}")
        spin()
        a(f"s_cbranch_scc1 L_fail{ah}")
        int_loads(ah)
        a("s_waitcnt vmcnt(0)")
        a(f"s_branch L_got{ah}")

    a.label("L_hi0")
    if o.b3:
        if o.ackwait:
            a("s_waitcnt vmcnt(0)")
        a("s_barrier")
    a.label("L_hi1")
    if o.atouch:
        touch("L_tb", o.atouch, 4, 4)
        a(f"s_cmp_lg_u32 s{S.ISZ}, 0")
        a("s_cbranch_scc1 L_z0b")
    gates(True)
    addr_ur(S.WAVE)
    m2_addr()
    stamp(10)
    a("s_branch L_d2")

    a.label("L_ah")
    if o.prio & 2:
        a("s_setprio 3")
    if o.cpf:
        a(f"s_cmp_ge_u32 s{S.T1}, {o.cpf}")
        a("s_cbranch_scc1 L_nocpf")
        a(f"s_getpc_b64 s[{S.EX}:{S.EX+1}]")
        a.label("L_pc")
        a(f"s_sub_u32 s{S.EX}, s{S.EX}, L_pc - {name}")
        a(f"s_subb_u32 s{S.EX+1}, s{S.EX+1}, 0")
        a("v_lshlrev_b32 v6, 7, v0")
        a("v_add_u32 v7, 0x2000, v6")
        a(f"v_min_u32 v7, L_end - {name}, v7")
        a(f"v_mov_b32 v13, s{S.EX+1}")
        a(f"v_mov_b32 v15, s{S.EX+1}")
        a(f"v_add_co_u32 v12, vcc, s{S.EX}, v6")
        a.nop(2)
        a("v_addc_co_u32 v13, vcc, 0, v13, vcc")
        a(f"v_add_co_u32 v14, vcc, s{S.EX}, v7")
        a.nop(2)
        a("v_addc_co_u32 v15, vcc, 0, v15, vcc")
        a("global_load_dword v10, v[12:13], off")
        a("global_load_dword v11, v[14:15], off")
        a.label("L_nocpf")
    a(f"v_lshlrev_b32 v{VG16}, 4, v0")
    a(f"v_mov_b32 v{VTAG}, 0")
    a(f"v_mov_b32 v9, {L_KSL}")
    a(f"ds_write_b32 v9, v{VTAG}")
    a(f"s_mov_b32 s{S.KM}, 0x9E3779B1")
    a(f"s_cmp_ge_u32 s{S.T1}, {o.wpf}")
    a("s_waitcnt lgkmcnt(0)")
    a("s_cbranch_scc1 L_nowpf")
    a(f"global_load_dwordx4 v[32:35], v{VG16}, s[{S.PWR}:{S.PWR+1}]")
    a(f"global_load_dword v{VE}, v{VTAG}, s[{S.PWS}:{S.PWS+1}]")
    a(f"global_load_dwordx4 v[36:39], v{VG16}, s[{S.PGW}:{S.PGW+1}]")
    a.label("L_nowpf")
    stamp(1)
    a("v_lshlrev_b32 v14, 10, v0")
    a(f"s_lshl_b32 s{S.ID8}, s2, 3")
    a(f"s_add_u32 s{S.ID8}, s{S.ID8}, {WS_KEY}")
    ws_setup()

    if o.b0 == 2:
        a("s_barrier")
    const_d2()
    a(f"global_load_dword v{VE}, v{VTAG}, s[{S.PWS}:{S.PWS+1}]")
    a("s_waitcnt lgkmcnt(0)")
    stamp(2)
    if o.b0 == 1:
        a("s_barrier")
    a(f"v_mov_b32 v9, {L_KSL}")
    a("s_waitcnt vmcnt(0)")
    tag_make()
    exp_make()
    a(f"v_mov_b32 v9, {L_KSL}")
    stamp(3)
    a("s_barrier")
    a(f"ds_read_b32 v{VE}, v9")
    set_exec(RF * CF + RZ * CZ + R2 * C2 + RS)
    a("s_waitcnt lgkmcnt(0)")
    a(f"buffer_store_dwordx2 v[{VE}:{VTAG}], v14, {R4(S.RWS)}, s{S.ID8} offen sc1")
    if o.probe >= 0:
        a("s_mov_b64 exec, 1")
        a("v_mov_b32 v40, s66")
        a(f"v_mov_b32 v41, v{VTAG}")
        a(f"s_add_u32 s{S.T0}, s{S.ID8}, {WS_KEY2 - WS_KEY}")
        a(f"buffer_store_dwordx2 v[40:41], v14, {R4(S.RWS)}, s{S.T0} offen sc1")
    a("s_mov_b64 exec, -1")
    stamp(5)
    if o.b1a:
        a("s_barrier")
    if o.only == "P1":
        a("s_endpgm")
    if o.htouch:
        touch("L_th", o.htouch, 8, 1)
    poll_setup(WS_KEY + 1024 * (RF * CF + RZ * CZ), R2, C2)
    a("s_waitcnt vmcnt(0)")
    if not o.gate and o.b3:
        a("s_barrier")
    if o.k2sleep0:
        a(f"s_sleep {o.k2sleep0}")
    stamp(8)
    poll_granules(VG16, 32, sleep=o.k2sleep)
    stamp(9)
    wave_max_key(32)
    lds_put(L_GKEY, 32)
    if o.gate:
        a(f"s_sleep {o.gate}")
        a("s_barrier")
        if o.probe >= 0:
            a("s_cmp_lg_u32 s2, 9")
            a("s_cbranch_scc1 L_noprobe")
            a("s_barrier")
            a(f"s_mov_b32 s{S.PO}, {WS_KEY2}")
            a(f"s_mov_b32 s{S.POL}, {WS_KEY2}")
            poll_granules(VG16, 32, sleep=4)
            for i in range(8):
                a(f"v_readlane_b32 s{70+i}, v{32 + 2*(i&1)}, {i>>1}")
            a("s_mov_b32 s80, s70")
            for i in range(1, 8):
                a(f"s_sub_u32 s81, s{70+i}, s80")
                a("s_cmp_lt_i32 s81, 0")
                a(f"s_cselect_b32 s80, s{70+i}, s80")
            if o.probe < 8:
                a(f"s_sub_u32 s81, s{70+o.probe}, s80")
            else:
                a("s_mov_b32 s81, 0")
                for i in range(8):
                    a(f"s_sub_u32 s82, s{70+i}, s80")
                    a("s_max_u32 s81, s81, s82")
            a("s_mul_i32 s81, s81, 10")
            a("s_add_u32 s81, s81, 800")
            a.label("L_pw")
            a("s_sleep 1")
            a("s_memrealtime s[100:101]")
            a("s_waitcnt lgkmcnt(0)")
            a("s_sub_u32 s100, s100, s80")
            a("s_cmp_lt_u32 s100, s81")
            a("s_cbranch_scc1 L_pw")
            a.label("L_noprobe")
        if o.hold and o.hold[0] == "endA":
            a(f"s_sub_u32 s{S.T0}, s2, {o.hold[2]}")
            a(f"s_cmp_ge_u32 s{S.T0}, {o.hold[3]}")
            a("s_cbranch_scc1 L_nohold")
            a("s_barrier")
            hold("endA")
            a.label("L_nohold")
        endprog()
    a("s_barrier")
    endprog()

    a.label("L_notA")
    if o.only == "AA":
        a("s_endpgm")
    a(f"s_sub_u32 s{S.T2}, s{S.T0}, {o.zx}")
    a(f"s_and_b32 s{S.T2}, s{S.T2}, 7")
    a(f"s_lshl4_add_u32 s{S.FJ}, s{S.T2}, s{S.T1}")
    a(f"s_sub_u32 s{S.FJ}, s{S.FJ}, 32")
    a(f"s_cmp_ge_u32 s2, {NWG}")
    a("s_cbranch_scc1 L_end")
    a(f"s_cmp_lg_u32 s{S.T2}, 0")
    a("s_cbranch_scc1 L_F")
    a(f"s_mov_b32 s{S.ISZ}, 1")
    a(f"s_sub_u32 s{S.Z}, s{S.T1}, 16")
    vrow_setup()
    a(f"v_lshlrev_b32 v{VG16}, 4, v0")
    sgn_setup()
    a("s_waitcnt lgkmcnt(0)")
    ws_setup()
    a.srd(S.ROUT, S.POUT, 0x200000)
    addr_p2()
    a(f"s_cmp_eq_u32 s{S.WAVE}, 8")
    a("s_cbranch_scc1 L_zh")
    a(f"s_cmp_ge_u32 s{S.WAVE}, 4")
    a("s_cbranch_scc1 L_z0")
    const_d1()
    a("s_branch L_z1")
    a.label("L_z0")
    if o.atouch:
        a("s_branch L_hi1")
    a.label("L_z0b")
    if o.ztouch:
        touch("L_tz", o.ztouch, 4, 4)
    a.label("L_z1")
    a(f"v_mov_b32 v9, {L_KSL}")
    a("v_mov_b32 v12, 0")
    a("v_mov_b32 v13, 0")
    a("s_barrier")
    a(f"ds_read_b64 v[{VE}:{VTAG}], v9")
    a(f"ds_read_b128 {V(GW,4)}, v{VG16} offset:{L_WV+1024}")
    a("s_waitcnt lgkmcnt(0)")
    a(f"v_readfirstlane_b32 s{S.GKEY}, v{VE}")
    a(f"s_andn2_b32 s{S.IDX}, 2047, s{S.GKEY}")
    a(f"s_and_b32 s{S.T0}, s{S.IDX}, 127")
    a(f"s_cmp_gt_u32 s{S.T0}, 64")
    a(f"s_cselect_b32 s{S.WHICH}, 1, 0")
    a(f"s_and_b32 s{S.T0}, s{S.IDX}, {1024 + 63}")
    a(f"s_cmp_eq_u32 s{S.T0}, 1024")
    a(f"s_cselect_b32 s{S.WHICH}, 1, s{S.WHICH}")
    a(f"s_sub_u32 s{S.T0}, 2048, s{S.IDX}")
    a(f"s_cmp_lg_u32 s{S.WHICH}, 0")
    a(f"s_cselect_b32 s{S.T0}, s{S.T0}, s{S.IDX}")
    a(f"s_cmp_eq_u32 s{S.T0}, 1024")
    a(f"s_cselect_b32 s{S.T0}, 0, s{S.T0}")
    a(f"s_and_b32 s{S.T1C}, s{S.T0}, 127")
    a(f"s_lshr_b32 s{S.HH}, s{S.T0}, 10")
    a(f"s_bfe_u32 s{S.WSEL}, s{S.T0}, 0x30007")
    rows_setup(S.WSEL)
    a(f"s_cmp_ge_u32 s{S.WAVE}, 4")
    a("s_cbranch_scc1 L_z4")
    int_base()
    if o.zisleep0:
        a(f"s_sleep {o.zisleep0}")
    stamp(9)
    int_loads(0)
    int_loads(1)
    const_ga()
    exp_setup()
    addr_ur(S.WSEL)
    m2_addr()
    a("v_lshlrev_b32 v6, 7, v1")
    a(f"v_lshl_add_u32 v15, v2, 4, v6")
    a("s_branch L_zjoin")
    a.label("L_z4")
    a(f"s_cmp_ge_u32 s{S.WAVE}, 6")
    a("s_cbranch_scc1 L_zend2")
    rows_load()
    a(f"s_sub_u32 s{S.T0}, s{S.WAVE}, 4")
    a(f"s_lshl1_add_u32 s{S.T1}, s{S.Z}, s{S.T0}")
    a(f"s_lshl_b32 s{S.T1}, s{S.T1}, 5")
    a("v_and_b32 v6, 7, v0")
    a(f"v_lshl_add_u32 v10, v6, 2, s{S.T1}")
    a(f"s_lshl_b32 s{S.T2}, s{S.IDX}, 10")
    a(f"v_add_u32 v7, s{S.T2}, v10")
    a(f"global_load_dword v35, v7, {PXS}")
    a("v_lshlrev_b32 v10, 1, v10")
    a("v_lshrrev_b32 v7, 3, v0")
    a("v_lshlrev_b32 v7, 8, v7")
    a("v_lshl_add_u32 v11, v6, 4, v7")
    a(f"s_mul_i32 s{S.SI0}, s{S.Z}, {PZ}")
    a(f"s_lshl_b32 s{S.T0}, s{S.T0}, 7")
    a(f"s_add_u32 s{S.SI0}, s{S.SI0}, s{S.T0}")
    a(f"s_add_u32 s{S.SI0}, s{S.SI0}, {WS_PART}")
    a(f"s_add_u32 s{S.SI1}, s{S.SI0}, {(o.pc-1)*PARTC}")
    a(f"s_and_b32 s{S.T0}, s{S.GKEY}, 0xffff0000")
    a(f"s_xor_b32 s{S.T1}, s{S.T0}, 0x80000000")
    a(f"s_xor_b32 s{S.T3}, s{S.T0}, 0xffff0000")
    a(f"s_bitcmp1_b32 s{S.T0}, 31")
    a(f"s_cselect_b32 s{S.T0}, s{S.T1}, s{S.T3}")
    a(f"v_mov_b32 v15, s{S.T0}")
    sigmoid(15, 15)
    rnd(15, 15)
    a("s_waitcnt vmcnt(0)")
    gates(False)
    a(f"s_cmp_lg_u32 s{S.WHICH}, 0")
    a(f"s_cselect_b32 s{S.T2}, s{S.T3}, s{S.T2}")
    a(f"s_cselect_b32 s{S.T0}, s{S.T5}, s{S.T0}")
    a(f"s_cselect_b32 s{S.T4}, s{S.T1}, s{S.T4}")
    a(f"v_xor_b32 v{VTAG}, s{S.IDX}, v{VTAG}")
    a(f"v_mov_b32 v36, s{S.T2}")
    a(f"v_mov_b32 v{CO}, s{S.T0}")
    a(f"v_mov_b32 v{CO+1}, s{S.T4}")
    a("v_lshlrev_b32 v34, 16, v35")
    a(f"v_and_b32 v35, {HIM}, v35")
    if o.psleep0:
        a(f"s_sleep {o.psleep0}")
    hold("pp")
    a(f"v_mov_b32 v9, {L_ZF}")
    a.label("L_tz_start")
    stamp(10)
    if o.psleep:
        a("s_branch L_zp1")
    a.label("L_zp")
    if o.psleep:
        a(f"s_sleep {o.psleep}")
        a.label("L_zp1")
    for i in range(7):
        if i and i % 2 == 0:
            a(f"s_add_u32 s{S.T0}, s{S.SI0}, {2048*i}")
        a(f"buffer_load_dwordx4 {V(40+4*i,4)}, v11, {R4(S.RWS)}, s{S.T0 if i >= 2 else S.SI0} offen offset:{2048*(i&1)} sc1")
    a(f"s_add_u32 s{S.SI0}, s{S.SI0}, {PARTC}")
    a(f"s_min_u32 s{S.SI0}, s{S.SI0}, s{S.SI1}")
    if o.stamps:
        a(f"s_add_u32 s{S.RC}, s{S.RC}, 256")
    spin()
    a("s_cbranch_scc1 L_zp_ok")
    for i in range(7):
        a(f"s_waitcnt vmcnt({6-i})")
        a(f"v_bitop3_b32 v{37 if i == 0 else 38 + (i & 1)}, v{41+4*i}, v{43+4*i}, v{VTAG} bitop3:0x7e")
        if i:
            a(f"v_add_f32 v40, v40, v{40+4*i}")
            a(f"v_add_f32 v42, v42, v{42+4*i}")
        if i and i % 2 == 0:
            a("v_or3_b32 v37, v37, v38, v39")
    a("v_cmp_ne_u32 vcc, 0, v37")
    a.nop(1)
    a("s_cbranch_vccnz L_zp")
    a.label("L_zp_ok")
    a("ds_read_b32 v12, v9")
    a(f"ds_read_b64 v[32:33], v10 offset:{L_XG2}")
    a(f"ds_read_b64 v[16:17], v10 offset:{L_XG2+2048}")
    a("v_lshrrev_b32 v11, 1, v10")
    a(f"s_lshl_b32 s{S.T2}, s{S.IDX}, 10")
    a("s_waitcnt vmcnt(0)")
    stamp(11)
    a(f"v_add_f32_dpp v40, v40, v40 row_ror:8 {DPPM}")
    a(f"v_add_f32_dpp v42, v42, v42 row_ror:8 {DPPM}")
    a.nop(1)
    a.nop(1)
    a("v_permlane16_swap_b32 v40, v42")
    a("v_add_f32 v40, v40, v42")
    a("v_mov_b32 v42, v40")
    a.nop(2)
    a("v_permlane32_swap_b32 v40, v42")
    a("v_add_f32 v40, v40, v42")
    a("v_mov_b32 v42, v40")
    a.nop(2)
    a("v_permlane16_swap_b32 v40, v42")
    a("v_cvt_pk_bf16_f32 v41, v40, v42")
    a("v_lshlrev_b32 v40, 16, v41")
    a(f"v_and_b32 v42, {HIM}, v41")
    a("v_mul_f32 v40, v40, v15")
    a("v_mul_f32 v42, v42, v15")
    a("v_cvt_pk_bf16_f32 v41, v40, v42")
    a("v_lshlrev_b32 v40, 16, v41")
    a(f"v_and_b32 v42, {HIM}, v41")
    a("v_add_f32 v40, v40, v34")
    a("v_add_f32 v42, v42, v35")
    a("v_cvt_pk_bf16_f32 v41, v40, v42")
    a("v_lshlrev_b32 v40, 16, v41")
    a(f"v_and_b32 v42, {HIM}, v41")
    a.label("L_zw")
    a("s_waitcnt lgkmcnt(0)")
    a("v_cmp_eq_u32 vcc, 0, v12")
    a(f"v_mul_f32 v32, v{CO}, v32")
    a(f"v_mul_f32 v33, v{CO}, v33")
    a("s_cbranch_vccz L_zw_ok")
    spin()
    a("s_cbranch_scc1 L_zw_ok")
    a("ds_read_b32 v12, v9")
    a(f"ds_read_b64 v[32:33], v10 offset:{L_XG2}")
    a(f"ds_read_b64 v[16:17], v10 offset:{L_XG2+2048}")
    a("s_branch L_zw")
    a.label("L_zw_ok")
    a(f"v_fmac_f32 v32, v{CO+1}, v16")
    a(f"v_fmac_f32 v33, v{CO+1}, v17")
    a("v_fmac_f32 v32, v40, v36")
    a("v_fmac_f32 v33, v42, v36")
    a("v_cvt_pk_bf16_f32 v32, v32, v33")
    a("s_mov_b64 exec, 0xff")
    a(f"buffer_store_dword v32, v11, {R4(S.ROUT)}, s{S.T2} offen{o.zpol}")
    a("s_mov_b64 exec, -1")
    stamp(13)
    if o.stamps:
        a("s_waitcnt vmcnt(0)")
        stamp(15)
    a("s_barrier")
    endprog()

    a.label("L_zsync")
    a(f"v_mov_b32 v9, {L_ZC}")
    a("v_mov_b32 v6, 1")
    a("s_mov_b64 exec, 1")
    a("ds_add_u32 v9, v6")
    a("s_mov_b64 exec, -1")
    a(f"s_cmp_lg_u32 s{S.WAVE}, 0")
    a("s_cbranch_scc1 L_zend")
    a.label("L_zs")
    a("ds_read_b32 v6, v9")
    spin()
    a("s_waitcnt lgkmcnt(0)")
    a("s_cbranch_scc1 L_zs_ok")
    a("v_cmp_ne_u32 vcc, 4, v6")
    a.nop(1)
    a("s_cbranch_vccnz L_zs")
    a.label("L_zs_ok")
    stamp(12)
    a(f"ds_read_b128 {V(UO,4)}, v{VUR0} offset:{L_U2}")
    a(f"ds_read_b128 {V(UO+4,4)}, v{VUR1} offset:{L_U2}")
    a(f"ds_read_b128 {V(UO+8,4)}, v{VUR0} offset:{L_U2+UB}")
    a(f"ds_read_b128 {V(UO+12,4)}, v{VUR1} offset:{L_U2+UB}")
    for k in range(4):
        a(f"s_waitcnt lgkmcnt({3-k})")
        a(f"{MF} {V(PQ+4*k,4)}, {V(UO+4*k,4)}, {V(M2+4*k,4)}, 0")
    a.nop(3)
    for k in range(4):
        if k == 2:
            a.nop(2)
        a(f"ds_write_b128 v15, {V(PQ+4*k,4)} offset:{L_XG2 + 64*(k&1) + 2048*(k>>1)}")
    a(f"v_mov_b32 v9, {L_ZF}")
    a("s_waitcnt lgkmcnt(0)")
    a("ds_write_b32 v9, v9")
    a("s_waitcnt lgkmcnt(0)")
    stamp(13)
    a.label("L_zend")
    endprog()
    a.label("L_zend2")
    if o.hold and o.hold[0] == "end":
        a("s_barrier")
    hold("end")
    if o.ev:
        lo, n, w, st, med = [int(v) for v in o.ev.split(":")]
        a(f"s_cmp_lg_u32 s2, {248 + o.zx}")
        a("s_cbranch_scc1 L_noev")
        a(f"s_cmp_lg_u32 s{S.WAVE}, 7")
        a("s_cbranch_scc1 L_noev")
        a("s_barrier")
        a.label("L_ev0")
        a("s_sleep 4")
        a("s_memrealtime s[100:101]")
        a("s_waitcnt lgkmcnt(0)")
        a(f"s_sub_u32 s100, s100, s{S.ST}")
        a("s_cmp_lt_u32 s100, 750")
        a("s_cbranch_scc1 L_ev0")
        a("v_lshlrev_b32 v6, 11, v0")
        a(f"v_add_u32 v7, {WS_STAMP + 8*128}, v6")
        a(f"global_load_dword v40, v7, s[{S.PWS}:{S.PWS+1}] sc1")
        a(f"v_add_u32 v7, {WS_STAMP + lo*2048 + w*128 + st*8}, v6")
        for q in range(n // 64):
            a(f"global_load_dword v{44+q}, v7, s[{S.PWS}:{S.PWS+1}] sc1")
            a(f"v_add_u32 v7, {64*2048}, v7")
        a("s_waitcnt vmcnt(0)")
        a(f"v_subrev_u32 v40, s{S.ST}, v40")
        a("v_sub_u32 v40, 1000, v40")
        a("v_mov_b32 v42, v40")
        wave_max_key(40)
        a("v_mov_b32 v41, 0")
        for q in range(n // 64):
            a(f"v_subrev_u32 v{44+q}, s{S.ST}, v{44+q}")
            a(f"v_cmp_gt_u32 vcc, 1000, v{44+q}")
            a.nop(2)
            a(f"v_cndmask_b32 v{44+q}, 0, v{44+q}, vcc")
            if med:
                m = (~med & 0xff) * 0x01010101
                a(f"s_mov_b32 exec_lo, {m:#x}")
                a(f"s_mov_b32 exec_hi, {m:#x}")
                a(f"v_mov_b32 v{44+q}, 0")
                a("s_mov_b64 exec, -1")
            a(f"v_max_u32 v41, v41, v{44+q}")
        a("v_mov_b32 v43, v41")
        wave_max_key(41)
        a.nop(2)
        a("v_readlane_b32 s6, v40, 63")
        a("v_readlane_b32 s7, v41, 63")
        a("s_sub_u32 s6, s6, 1000")
        a("s_min_u32 s6, s6, 300")
        a("s_add_u32 s7, s7, s6")
        a("s_mul_i32 s7, s7, 4")
        a("s_add_u32 s7, s7, 900")
        a("s_sub_u32 s7, s7, s6")
        a.label("L_ev1")
        a("s_sleep 1")
        a("s_memrealtime s[100:101]")
        a("s_waitcnt lgkmcnt(0)")
        a(f"s_sub_u32 s100, s100, s{S.ST}")
        a("s_cmp_lt_u32 s100, s7")
        a("s_cbranch_scc1 L_ev1")
        a.label("L_noev")
    endprog()

    a.label("L_zh")
    a(f"v_mov_b32 v9, {L_ZF}")
    a("v_mov_b32 v6, 0")
    a("ds_write2_b32 v9, v6, v6 offset1:1")
    const_d2()
    a(f"s_mov_b32 m0, {L_WV+1024}")
    tag_load()
    a(f"global_load_lds_dwordx4 v{VG16}, s[{S.PGW}:{S.PGW+1}]")
    a("s_waitcnt vmcnt(0)")
    tag_make()
    exp_make()
    poll_setup(WS_KEY + 1024 * RF * CF, RZ, CZ)
    if o.zsleep0:
        a(f"s_sleep {o.zsleep0}")
    stamp(1)
    poll_granules(VG16, 32, sleep=o.zsleep)
    stamp(2)
    wave_max_key(32)
    lds_put(L_KSL, 32, tag=True)
    a("s_barrier")
    a(f"s_lshl_b32 s{S.T0}, s{S.Z}, 2")
    a(f"s_add_u32 s{S.T0}, s{S.T0}, {WS_ALIVE}")
    a("s_mov_b64 exec, 1")
    a(f"buffer_store_dword v{VTAG}, v0, {R4(S.RWS)}, s{S.T0} offen sc1")
    a("s_mov_b64 exec, -1")
    a(f"s_cmp_lg_u32 s{S.Z}, 0")
    a("s_cbranch_scc1 L_zend")
    a("s_mov_b64 exec, 0xffff")
    a("v_lshlrev_b32 v6, 2, v0")
    a(f"s_mov_b32 s{S.T0}, {WS_ALIVE}")
    a("s_waitcnt vmcnt(0)")
    a("s_sleep 24")
    a.label("L_za")
    a(f"buffer_load_dword v7, v6, {R4(S.RWS)}, s{S.T0} offen sc1")
    spin()
    a("s_waitcnt vmcnt(0)")
    a("s_cbranch_scc1 L_za_ok")
    a(f"v_cmp_ne_u32 vcc, v{VTAG}, v7")
    a.nop(1)
    a("s_cbranch_vccnz L_za")
    a.label("L_za_ok")
    a("s_mov_b64 exec, 1")
    a(f"v_add_u32 v9, 1, v{VE}")
    a("s_barrier")
    a(f"buffer_store_dword v9, v6, {R4(S.RWS)}, 0 offen sc1")
    a("s_mov_b64 exec, -1")
    a("s_branch L_zend")

    a.label("L_F")
    if o.only == "A":
        a("s_endpgm")
    WG_, WD_ = 32, 48
    a("v_lshlrev_b32 v5, 4, v0")
    a(f"s_cmp_eq_u32 s{S.WAVE}, 8")
    a("s_cbranch_scc1 L_fh")
    a(f"s_and_b32 s{S.T0}, s{S.FJ}, 3")
    a(f"s_lshr_b32 s{S.T1}, s{S.WAVE}, 1")
    a(f"s_lshl2_add_u32 s{S.L0}, s{S.T0}, s{S.T1}")
    a(f"s_mul_i32 s{S.T2}, s{S.L0}, {32*3584}")
    a(f"s_lshr_b32 s{S.L1}, s{S.FJ}, 2")
    a(f"s_lshl_b32 s{S.T3}, s{S.L1}, 7")
    a(f"s_add_u32 s{S.T2}, s{S.T2}, s{S.T3}")
    a("v_lshrrev_b32 v6, 3, v0")
    a("v_mul_u32_u24 v6, 3584, v6")
    a("v_and_b32 v7, 7, v0")
    a("v_bfe_u32 v8, v0, 4, 1")
    a("v_lshlrev_b32 v8, 2, v8")
    a("v_xor_b32 v4, v7, v8")
    a(f"v_lshl_add_u32 v7, v4, 4, s{S.T2}")
    a("v_add_u32 v3, v6, v7")
    a(f"s_lshl_b32 s{S.T4}, s{S.WAVE}, 12")
    a(f"s_mov_b32 m0, s{S.T4}")
    def w_dma():
        a(f"s_bitcmp1_b32 s{S.WAVE}, 0")
        a("s_waitcnt lgkmcnt(0)")
        a(f"s_cselect_b32 s{S.PWG}, s{S.PWU}, s{S.PWG}")
        a(f"s_cselect_b32 s{S.PWG+1}, s{S.PWU+1}, s{S.PWG+1}")
        if o.fdelay:
            a(f"s_sleep {o.fdelay}")
        for b in range(4):
            if b:
                a(f"s_add_u32 m0, s{S.T4}, {1024*b}")
                a(f"v_add_u32 v3, {8*3584}, v3")
            if o.wthr and b >= o.wthr:
                a(f"s_waitcnt vmcnt({o.wthr - 1})")
            a(f"global_load_lds_dwordx4 v3, s[{S.PWG}:{S.PWG+1}]{o.wpol}")
        ws_setup()
        stamp(1)

    if not o.flate:
        w_dma()
    a("v_bfe_u32 v6, v0, 2, 2")
    a("v_and_b32 v7, 3, v0")
    a("v_lshlrev_b32 v8, 3, v7")
    a("v_lshl_add_u32 v8, v2, 5, v8")
    a("v_and_b32 v9, 2, v6")
    a("v_lshlrev_b32 v9, 5, v9")
    a("v_xor_b32 v9, v9, v8")
    a("v_lshl_add_u32 v9, v6, 7, v9")
    a(f"v_add_u32 v9, s{S.T4}, v9")
    a(f"s_lshl_b32 s{S.T5}, s{S.WAVE}, 8")
    a("v_lshlrev_b32 v11, 2, v0")
    a(f"v_add_u32 v11, {L_RED}, v11")
    a(f"v_add_u32 v12, s{S.T5}, v11")
    a(f"s_lshl1_add_u32 s{S.T1}, s{S.L1}, s{S.T1}")
    a(f"s_lshl_b32 s{S.T2}, s{S.T1}, 15")
    a(f"s_and_b32 s{S.T3}, s{S.WAVE}, 1")
    a(f"s_lshl1_add_u32 s{S.T3}, s{S.T0}, s{S.T3}")
    a(f"s_lshl_b32 s{S.T5}, s{S.T3}, 7")
    a(f"s_add_u32 s{S.T2}, s{S.T2}, s{S.T5}")
    a("v_lshrrev_b32 v6, 3, v0")
    a(f"v_lshl_add_u32 v6, v6, 10, s{S.T2}")
    a("v_lshl_add_u32 v4, v4, 4, v6")
    a("v_lshrrev_b32 v6, 5, v0")
    a(f"v_mul_u32_u24 v13, {PZ}, v6")
    a("v_and_b32 v6, 31, v0")
    a("v_lshl_add_u32 v13, v6, 3, v13")
    a(f"s_mul_i32 s{S.T2}, s{S.T3}, {2*PZ}")
    a(f"s_lshl_b32 s{S.T1}, s{S.T1}, 8")
    a(f"s_add_u32 s{S.T2}, s{S.T2}, s{S.T1}")
    a(f"s_add_u32 s{S.T2}, s{S.T2}, {WS_PART}")
    a(f"s_lshl_b32 s{S.L0}, s{S.L0}, 6")
    a(f"s_lshl_b32 s{S.L1}, s{S.L1}, 12")
    a(f"s_add_u32 s{S.PO}, s{S.L1}, {WS_XCH}")
    a(f"s_add_u32 s{S.POL}, s{S.PO}, {(o.xc-1)*XCHC}")
    a(f"s_lshl_b32 s{S.T1}, s{S.T0}, 10")
    a(f"s_add_u32 s{S.L1}, s{S.PO}, s{S.T1}")
    a(f"v_mov_b32 v14, {L_FKEY}")
    a(f"s_lshr_b32 s{S.T1}, s{S.WAVE}, 1")
    a(f"s_lshl_b32 s{S.T1}, s{S.T1}, 9")
    a(f"v_lshl_add_u32 v15, v6, 4, s{S.T1}")
    a("v_lshrrev_b32 v6, 5, v0")
    a("v_lshl_add_u32 v15, v6, 10, v15")
    a(f"s_mov_b32 s{S.PO0}, s{S.PO}")
    a(f"s_mov_b32 s{S.L10}, s{S.L1}")
    a(f"s_mov_b32 s{S.T20}, s{S.T2}")
    a(f"s_mov_b32 s{S.FIN}, 0")

    if o.flate:
        w_dma()

    def wd_dma():
        l = a.L("nowd")
        a(f"s_cmp_ge_u32 s{S.WAVE}, 4")
        a(f"s_cbranch_scc1 {l}")
        for b in range(4):
            a(f"s_add_u32 m0, s{S.T4}, {L_WD + 1024*b}")
            if b:
                a("v_add_u32 v4, 0x2000, v4")
            else:
                a.nop(1)
            a(f"global_load_lds_dwordx4 v4, s[{S.PWD}:{S.PWD+1}]{o.wdpol}")
        a.label(l)

    if o.wdpos == 0:
        wd_dma()
    if o.wdpos in (4, 6):
        a("s_barrier")
        a(f"s_cmp_ge_u32 s{S.WAVE}, 4")
        a("s_cbranch_scc1 L_nowd4")
        for b in range(4):
            a(f"v_add_u32 v6, {0x2000*b}, v4")
            a(f"global_load_dwordx4 {V(80+4*b,4)}, v6, s[{S.PWD}:{S.PWD+1}]")
        a.label("L_nowd4")
    if o.ftouch:
        touch("L_tf", o.ftouch, 0, 8)
    a.label("L_tf_start")
    if o.smem:
        a(f"s_and_b32 s{S.T0}, s2, 7")
        a(f"s_mul_i32 s{S.T0}, s{S.T0}, {1024*o.smem}")
        a(f"s_lshl_b32 s{S.T1}, s{S.WAVE}, 7")
        a(f"s_add_u32 s{S.T0}, s{S.T0}, s{S.T1}")
        a(f"s_add_u32 s{S.T0}, s{S.T0}, {WS_KEY + 1024 * (RF * CF + RZ * CZ + R2 * C2)}")
        a("s_waitcnt lgkmcnt(0)")
        a("s_barrier")
        for it in range(o.smem):
            a(f"s_load_dwordx16 s[44:59], s[{S.RWS}:{S.RWS+1}], s{S.T0} offset:{1024*it}")
            a(f"s_load_dwordx16 s[16:31], s[{S.RWS}:{S.RWS+1}], s{S.T0} offset:{1024*it+64}")
            if it == 0:
                a("ds_read_b32 v27, v14 offset:4")
            a("v_mov_b32 v20, 0")
            a("s_waitcnt lgkmcnt(0)")
            regs = list(range(44, 60, 2)) + list(range(16, 32, 2))
            for g, r in enumerate(regs):
                a(f"v_bitop3_b32 v20, s{r+1}, v27, v20 bitop3:0xbe")
                if g:
                    a(f"s_max_u32 s44, s44, s{r}")
            a("v_mov_b32 v21, s44")
            a("s_mov_b64 exec, 1")
            a(f"ds_max_u32 v14, v21 offset:{16+8*it}")
            a(f"ds_or_b32 v14, v20 offset:{20+8*it}")
            a("s_mov_b64 exec, -1")
            a("s_waitcnt lgkmcnt(0)")
            a("s_barrier")
            a(f"ds_read_b64 v[20:21], v14 offset:{16+8*it}")
            a("s_waitcnt lgkmcnt(0)")
            a(f"v_readfirstlane_b32 s{S.FKEY}, v20")
            a(f"v_readfirstlane_b32 s{S.T1}, v21")
            a(f"s_cmp_eq_u32 s{S.T1}, 0")
            a("s_cbranch_scc1 L_redo")
            if it < o.smem - 1:
                a(f"s_sleep {o.smsleep}")
    a("s_waitcnt lgkmcnt(0)")
    a("s_barrier")
    a("ds_read_b64 v[26:27], v14")
    a("s_waitcnt lgkmcnt(0)")
    a(f"v_readfirstlane_b32 s{S.FKEY}, v26")
    a.label("L_redo")
    a(f"s_andn2_b32 s{S.T0}, 2047, s{S.FKEY}")
    a(f"s_lshl_b32 s{S.T1}, s{S.T0}, 10")
    a(f"s_add_u32 s{S.T1}, s{S.T1}, s{S.L0}")
    a(f"s_load_dwordx16 s[{S.XS}:{S.XS+15}], {PXS}, s{S.T1}")
    stamp(5)
    a(f"v_xor_b32 v{VTAG}, s{S.T0}, v27")
    a(f"v_xor_b32 v29, s{S.T0}, v27")
    for r in (16, 17, 24, 25):
        a(f"v_mov_b32 v{r}, 0")
    a(f"s_mov_b32 s{S.PO}, s{S.PO0}")
    a(f"s_mov_b32 s{S.L1}, s{S.L10}")
    a(f"s_mov_b32 s{S.T2}, s{S.T20}")
    a(f"s_mov_b32 s{S.KM}, 0")
    a(f"s_cmp_ge_u32 s{S.WAVE}, 4")
    a("s_cbranch_scc1 L_gw0")
    a(f"s_waitcnt vmcnt({4 if o.wdpos == 6 else 0})")
    a("s_branch L_gw1")
    a.label("L_gw0")
    a("s_waitcnt vmcnt(0)")
    a.label("L_gw1")
    stamp(2)
    for k in range(8):
        a(f"ds_read_b64_tr_b16 {V(WG_+2*k,2)}, v9 offset:{L_W + k*512}")
    a("s_waitcnt lgkmcnt(0)")
    for i in range(16):
        a(f"v_dot2c_f32_bf16 v{16+(i&1)}, s{S.XS+i}, v{WG_+i}")
    stamp(6)
    a.nop(3)
    a("v_add_f32 v16, v16, v17")
    a("ds_write_b32 v12, v16")
    a("s_waitcnt lgkmcnt(0)")
    a("s_barrier")
    a(f"s_lshl_b32 s{S.T0}, s{S.WAVE}, 4")
    a(f"s_lshl_b64 s[{S.EX}:{S.EX+1}], 0xffff, s{S.T0}")
    for i, (p, q) in enumerate(((0, 2), (4, 6), (1, 3), (5, 7))):
        a(f"ds_read2st64_b32 v[{16+2*i}:{17+2*i}], v11 offset0:{p} offset1:{q}")
    a("s_waitcnt lgkmcnt(2)")
    a("v_add_f32 v16, v16, v17")
    a("v_add_f32 v18, v18, v19")
    a("s_waitcnt lgkmcnt(0)")
    a("v_add_f32 v20, v20, v21")
    a("v_add_f32 v22, v22, v23")
    a("v_add_f32 v28, v16, v18")
    a(f"s_mov_b64 exec, s[{S.EX}:{S.EX+1}]")
    a("v_add_f32 v30, v20, v22")
    a(f"s_cmp_ge_u32 s{S.WAVE}, 4")
    a("s_cbranch_scc1 L_f5")
    a(f"buffer_store_dwordx4 v[28:31], v5, {R4(S.RWS)}, s{S.L1} offen{'' if o.xl2 else ' sc1'}")
    a("s_mov_b64 exec, -1")
    stamp(7)
    a("s_waitcnt vmcnt(1)")
    if o.wdpos in (4, 6):
        a(f"v_add_u32 v6, s{S.T4}, v5")
        for b in range(4):
            a(f"ds_write_b128 v6, {V(80+4*b,4)} offset:{L_WD + 1024*b}")
        a("s_waitcnt lgkmcnt(0)")
    for k in range(8):
        a(f"ds_read_b64_tr_b16 {V(WD_+2*k,2)}, v9 offset:{L_WD + k*512}")
    if o.xsleep0:
        a(f"s_sleep {o.xsleep0}")
    stamp(8)
    a.label("L_fx")
    for i in range(2):
        a(f"buffer_load_dwordx4 {V(64+4*i,4)}, v15, {R4(S.RWS)}, s{S.PO} offen offset:{2048*i} sc1")
    if o.xl2:
        a(f"s_add_u32 s{S.KM}, s{S.KM}, 1")
        a(f"s_cmp_ge_u32 s{S.KM}, {o.xl2}")
        a(f"s_cselect_b32 s{S.T0}, {XCHC}, 0")
        a(f"s_add_u32 s{S.PO}, s{S.PO}, s{S.T0}")
    else:
        a(f"s_add_u32 s{S.PO}, s{S.PO}, {XCHC}")
    a(f"s_min_u32 s{S.PO}, s{S.PO}, s{S.POL}")
    if o.stamps:
        a(f"s_add_u32 s{S.RC}, s{S.RC}, 1")
    spin()
    a("s_cbranch_scc1 L_fx_ok")
    a("s_waitcnt vmcnt(1)")
    a(f"v_bitop3_b32 v20, v65, v67, v{VTAG} bitop3:0x7e")
    a("s_waitcnt vmcnt(0)")
    a("v_add_f32 v16, v64, v68")
    a("v_add_f32 v18, v66, v70")
    a(f"v_bitop3_b32 v21, v69, v71, v{VTAG} bitop3:0x7e")
    a("v_or_b32 v20, v20, v21")
    a("v_cmp_ne_u32 vcc, 0, v20")
    a("v_permlane32_swap_b32 v16, v18")
    a("s_cbranch_vccnz L_fxr")
    a.label("L_fx_ok")
    stamp(9)
    a("v_add_f32 v16, v16, v18")
    rnd(16, 16)
    a("v_mov_b32 v18, v16")
    sigmoid(17, 16)
    a("v_permlane32_swap_b32 v16, v18")
    a("v_mul_f32 v17, v17, v16")
    rnd(17, 17)
    a("v_mul_f32 v17, v17, v18")
    a.nop(2)
    a(f"v_mov_b32_dpp v18, v17 quad_perm:[1,0,3,2] {DPPM}")
    a("v_cvt_pk_bf16_f32 v17, v17, v18")
    a.nop(1)
    for i in range(16):
        a(f"v_readlane_b32 s{S.XS+i}, v17, {2*i}")
    a("s_waitcnt lgkmcnt(0)")
    for i in range(16):
        a(f"v_dot2c_f32_bf16 v{24+(i&1)}, s{S.XS+i}, v{WD_+i}")
    a.nop(3)
    a("v_add_f32 v30, v24, v25")
    for c in range(o.pc):
        if c:
            a(f"s_add_u32 s{S.T2}, s{S.T2}, {PARTC}")
        a(f"buffer_store_dwordx2 v[30:31], v13, {R4(S.RWS)}, s{S.T2} offen sc1")
    stamp(10)
    a.label("L_fend")
    a(f"s_cmp_lg_u32 s{S.FIN}, 0")
    a("s_cbranch_scc1 L_fexit")
    a("s_barrier")
    a("ds_read_b32 v26, v14 offset:8")
    a(f"s_mov_b32 s{S.FIN}, 1")
    a("s_waitcnt lgkmcnt(0)")
    a(f"v_readfirstlane_b32 s{S.T0}, v26")
    a(f"s_cmp_eq_u32 s{S.T0}, s{S.FKEY}")
    a(f"s_mov_b32 s{S.FKEY}, s{S.T0}")
    if o.stamps:
        a(f"s_cselect_b32 s{S.T1}, 0, 64")
        a(f"s_add_u32 s{S.RC}, s{S.RC}, s{S.T1}")
        a(f"s_cmp_eq_u32 s{S.T1}, 0")
    a("s_cbranch_scc0 L_redo")
    a.label("L_fexit")
    endprog()
    a.label("L_f5")
    for c in range(1, o.xc):
        a(f"s_add_u32 s{S.L1}, s{S.L1}, {XCHC}")
        a(f"buffer_store_dwordx4 v[28:31], v5, {R4(S.RWS)}, s{S.L1} offen sc1")
    a("s_mov_b64 exec, -1")
    a("s_branch L_fend")
    a.label("L_fxr")
    a("ds_read_b32 v26, v14 offset:8")
    a("s_waitcnt lgkmcnt(0)")
    a(f"v_readfirstlane_b32 s{S.T0}, v26")
    a(f"s_cmp_eq_u32 s{S.T0}, 0")
    a("s_cbranch_scc1 L_fx")
    a(f"s_cmp_eq_u32 s{S.T0}, s{S.FKEY}")
    a("s_cbranch_scc1 L_fx")
    a("s_branch L_fend")

    a.label("L_fh")
    a("s_waitcnt lgkmcnt(0)")
    if o.fesleep:
        a(f"s_sleep {o.fesleep}")
    tag_load()
    ws_setup()
    a(f"v_mov_b32 v14, {L_FKEY}")
    a("v_mov_b32 v6, 0")
    a("ds_write_b32 v14, v6 offset:8")
    if o.smem:
        a("v_lshlrev_b32 v7, 2, v0")
        a(f"v_add_u32 v7, {L_FKEY + 16}, v7")
        set_exec(2 * o.smem)
        a("ds_write_b32 v7, v6")
        a("s_mov_b64 exec, -1")
        if o.wdpos == 6:
            a("s_barrier")
        poll_setup(WS_KEY, RF, CF)
        a(f"s_sleep {o.fsleep0}")
        a("s_waitcnt vmcnt(0)")
        tag_make()
        a(f"ds_write_b32 v14, v{VTAG} offset:4")
        a("s_waitcnt lgkmcnt(0)")
        stamp(3)
        a("s_barrier")
        for it in range(o.smem):
            a("s_barrier")
            a(f"ds_read_b64 v[20:21], v14 offset:{16+8*it}")
            if o.stamps:
                a(f"s_add_u32 s{S.RC}, s{S.RC}, 1")
            a("s_waitcnt lgkmcnt(0)")
            a(f"v_readfirstlane_b32 s{S.T1}, v21")
            a(f"s_cmp_eq_u32 s{S.T1}, 0")
            a("s_cbranch_scc1 L_fh2")
        poll_granules(5, 20, sleep=o.fsleep)
        wave_max_key(20)
        lds_put(L_FKEY, 20, tag=True)
        a("s_barrier")
        a.label("L_fh2")
        stamp(4)
        lds_put(L_FKEY + 8, 20)
    else:
        poll_setup(WS_KEY, RF, CF)
        if o.fsleep0:
            a(f"s_sleep {o.fsleep0}")
        a("s_waitcnt vmcnt(0)")
        tag_make()
        stamp(3)
        poll_granules(5, 20, sleep=o.fsleep, bar=o.wdpos == 4)
        stamp(4)
        wave_max_key(20)
        lds_put(L_FKEY, 20, tag=True)
        a("s_barrier")
        lds_put(L_FKEY + 8, 20)
    a("s_barrier")
    endprog()
    a.label("L_end")
    a("s_endpgm")
    return name


def main():
    ap = argparse.ArgumentParser()
    ap.add_argument("-o", required=True)
    for k, d in dict(stamps=0, pc=1, xc=2, zsleep=8, zsleep0=32, psleep=0, psleep0=20, rsleep=3, ackwait=0, hipre=0, tlate=1,
                     mode=0, k2ack=1, k2sleep0=6, zk2sleep0=0, k2sleep=5, fbar=0, cpf=0, cpf0=1, smem=3, smsleep=4, zx=0, htouch=0, probe=-1, wsoff=0, flate=1, b1a=1, skew=0, gate=8, lds=0, nsgpr=72, prio=1, stag=2, spec=0, b0=2, wthr=0, xpre=0, atouch=10, ftouch=8, xl2=8, npre=3, gfirst=0, isleep0=0, zisleep0=16, b3=1, ztouch=8, zstep=128, touch=0, wdpos=6, wpf=2, fesleep=0, fw0=0, xack=0, fdelay=0, xsleep0=0, fsleep0=46, fsleep=4, spin=17).items():
        ap.add_argument("--" + k, type=int, default=d)
    for k in ("wpol", "wdpol", "xpol", "outpol", "zpol", "only"):
        ap.add_argument("--" + k, default="nt" if k == "outpol" else "")
    ap.add_argument("--mf", default="8,1")
    ap.add_argument("--mz", default="1,3")
    ap.add_argument("--m2", default="8,2")
    ap.add_argument("--hold", default="")
    ap.add_argument("--ev", default="")
    o = ap.parse_args()
    if o.hold:
        o.hold = o.hold.split(":")
    for k in ("mf", "mz", "m2"):
        setattr(o, k, [int(v) for v in getattr(o, k).split(",")])
    for k in ("wpol", "wdpol", "xpol", "outpol", "zpol"):
        setattr(o, k, (" " + getattr(o, k)) if getattr(o, k) not in ("", "def") else "")
    a = Asm()
    name = gen(a, o)
    reg = []
    if o.touch:
        reg.append(("L_ta_start", "L_ta_end", "L_ta", "L_taback", o.touch))
    if o.htouch:
        reg.append(("L_ta_end", "L_zjoin", "L_th", "L_thback", o.htouch))
    if o.atouch:
        reg.append(("L_zjoin", "L_tb_end", "L_tb", "L_tbback", o.atouch))
    if o.ztouch:
        reg.append(("L_tz_start", "L_zend", "L_tz", "L_tzback", o.ztouch))
    if o.ftouch:
        reg.append(("L_tf_start", "L_fend", "L_tf", "L_tfback", o.ftouch))
    if reg:
        insert_stubs(a, reg, step=o.zstep)
    finish(a, name, NVGPR, 102 if (o.stamps or o.hold or o.probe >= 0) else o.nsgpr, NWG, 576, o.lds or LDS_BYTES, o.o)


main()
```

```python
import argparse
from lib import *

NA, NF, NZ = 128, 112, 16
NWG = NA + NF + NZ
WS_E = 0
WS_ALIVE = 4096
WS_KEY = 64 << 10
WS_KEY2 = 128 << 10
WS_XCH = 192 << 10
XCHC = 28 * 4096
WS_PART = 704 << 10
PZ = 56 * 256
PARTC = NZ * PZ
WS_INT = 2 << 20
CS = 32768 + 256
WS_STAMP = 8 << 20
WS_BYTES = 16 << 20
L_TILE = 0
L_U2 = 16384
L_CT = L_U2
UB = 17 * 64
L_MISC = L_U2 + 16 * UB
L_KSL = L_MISC
L_GKEY = L_MISC + 64
L_ZC = L_MISC + 76
L_ZF = L_MISC + 72
L_EXP = L_MISC + 128
L_DUMP = L_MISC + 192
L_XG2 = L_DUMP + 4 * UB + 256
L_M2 = L_XG2 + 4096
L_WV = L_M2 + 4096
L_XT = L_WV + 2048
L_W = 0
L_WD = 32768
L_RED = L_WD + 16384
L_FKEY = L_RED + 2048
LDS_BYTES = 84 * 1024
MF = "v_mfma_f32_16x16x32_bf16"
LOG2E = 0x3fb8aa3b
DPPM = "row_mask:0xf bank_mask:0xf"
HIM = "0xffff0000"
NVGPR = 168


class S:
    WAVE = 3
    PX = 4
    T0, T1, T2, T3, T4, T5 = 6, 7, 8, 9, 10, 11
    EX = 12
    EY = 14
    PWR, PWG, PWU, PWD, PGW, POUT, PDBG, PWS = 16, 18, 20, 22, 24, 26, 28, 30
    L0, L1, SPT, PIE = 32, 33, 34, 35
    RWS, ROUT = 36, 40
    XS = 44
    GKEY, WSEL, WHICH, Z = 44, 45, 46, 47
    SI0, SI1, ID8, BLK = 48, 49, 50, 51
    IDX, ISZ, TC = 54, 55, 53
    SO = 44
    T1C, HH, TD, TM = 56, 57, 58, 59
    FJ, PO, POL, RC, KM, SPIN = 60, 61, 62, 63, 64, 65
    PO0, L10, T20, FKEY, FIN = 40, 41, 42, 43, 35
    ST = 68


def gen(a, o):
    global WS_KEY, WS_XCH, WS_PART, WS_INT, WS_ALIVE, WS_BYTES
    WS_KEY += o.wsoff << 20
    WS_XCH += o.wsoff << 20
    WS_PART += o.wsoff << 20
    WS_INT += o.wsoff << 20
    WS_ALIVE += o.wsoff << 20
    WS_BYTES = max(WS_BYTES, (o.wsoff + 8) << 20)
    name = NAME + "_kernel"
    kernel_head(a, name)
    VE, VTAG = 30, 31
    PXS = f"s[{S.PX}:{S.PX+1}]"

    def stamp(i):
        if o.stamps:
            a(f"s_memrealtime s[{S.ST+2*i}:{S.ST+2*i+1}]")

    def hold(cp):
        if o.hold and o.hold[0] == cp:
            l = a.L("hold")
            a.label(l)
            a("s_sleep 1")
            a("s_memrealtime s[100:101]")
            a("s_waitcnt lgkmcnt(0)")
            a("s_sub_u32 s100, s100, s66")
            a(f"s_cmp_lt_u32 s100, {o.hold[1]}")
            a(f"s_cbranch_scc1 {l}")

    def touch(pre, n, first, step, back=None, tail=None):
        a("s_mov_b64 exec, 0")
        a(f"s_sub_u32 s{S.TC}, s{S.WAVE}, {first + step}")
        a.label(f"{pre}back")
        a(f"s_add_u32 s{S.TC}, s{S.TC}, {step}")
        for k in range(n):
            a(f"s_cmp_eq_u32 s{S.TC}, {k}")
            a(f"s_cbranch_scc1 {pre}{k}")
        a("s_mov_b64 exec, -1")

    def endprog():
        if o.stamps:
            a("s_waitcnt lgkmcnt(0)")
            a(f"s_add_u32 s{S.ST+28}, s{S.RC}, s{S.ST+30}")
            for i in range(16):
                a(f"v_writelane_b32 v166, s{S.ST+2*i}, {i}")
            a("s_mov_b64 exec, 0xffff")
            a(f"s_lshl4_add_u32 s{S.T0}, s2, s{S.WAVE}")
            a(f"s_lshl_b32 s{S.T0}, s{S.T0}, 7")
            a(f"s_add_u32 s{S.T0}, s{S.T0}, {WS_STAMP}")
            a(f"v_lshl_add_u32 v165, v0, 3, s{S.T0}")
            a("v_mov_b32 v167, 0")
            a(f"global_store_dwordx2 v165, v[166:167], s[{S.PWS}:{S.PWS+1}]" + (" sc1" if o.ev else ""))
        a("s_endpgm")

    def spin():
        a(f"s_add_u32 s{S.SPIN}, s{S.SPIN}, 1")
        a(f"s_lshr_b32 s{S.SPT}, s{S.SPIN}, {o.spin}")

    def poll_setup(base, R, C):
        a(f"s_and_b32 s{S.PO}, s2, {R-1}")
        a(f"s_mul_i32 s{S.PO}, s{S.PO}, {1024*C}")
        a(f"s_add_u32 s{S.PO}, s{S.PO}, {base}")
        a(f"s_add_u32 s{S.POL}, s{S.PO}, {1024*(C-1)}")

    def set_exec(n):
        if n >= 64:
            a("s_mov_b64 exec, -1")
        elif n <= 31:
            a(f"s_mov_b64 exec, {(1 << n) - 1:#x}")
        else:
            a("s_mov_b32 exec_lo, -1")
            a(f"s_mov_b32 exec_hi, {(1 << (n - 32)) - 1:#x}")

    RS = 8 if o.spec else 0
    RF, CF = o.mf
    RZ, CZ = o.mz
    R2, C2 = o.m2
    assert RF * CF + RZ * CZ + R2 * C2 + RS <= 64

    def poll_granules(vaddr, vd, sleep=0, step=1024, bar=False):
        l = a.L("poll")
        if sleep:
            a(f"s_branch {l}_1")
        a.label(l)
        if sleep:
            a(f"s_sleep {sleep}")
            a.label(f"{l}_1")
        a(f"buffer_load_dwordx4 {V(vd,4)}, v{vaddr}, {R4(S.RWS)}, s{S.PO} offen sc1")
        a(f"s_add_u32 s{S.PO}, s{S.PO}, {step}")
        a(f"s_min_u32 s{S.PO}, s{S.PO}, s{S.POL}")
        if bar:
            a(f"s_cmp_lg_u32 s{S.SPIN}, 0")
            a(f"s_cbranch_scc1 {l}_2")
            a("s_barrier")
            a.label(f"{l}_2")
        if o.stamps:
            a(f"s_add_u32 s{S.RC}, s{S.RC}, 1")
        spin()
        a("s_waitcnt vmcnt(0)")
        a(f"s_cbranch_scc1 {l}_ok")
        a(f"v_cmp_ne_u32 vcc, v{VTAG}, v{vd+1}")
        a(f"v_cmp_ne_u32 s[{S.EX}:{S.EX+1}], v{VTAG}, v{vd+3}")
        a(f"s_or_b64 vcc, vcc, s[{S.EX}:{S.EX+1}]")
        a(f"s_cbranch_vccnz {l}")
        a.label(f"{l}_ok")

    def wave_max_key(vd):
        a(f"v_max_u32 v{vd}, v{vd}, v{vd+2}")
        for r in ("row_ror:8", "row_ror:4", "row_ror:2", "row_ror:1"):
            a.nop(2)
            a(f"v_max_u32_dpp v{vd}, v{vd}, v{vd} {r} {DPPM}")
        a.nop(2)
        a(f"v_max_u32_dpp v{vd}, v{vd}, v{vd} row_bcast:15 row_mask:0xa bank_mask:0xf")
        a.nop(2)
        a(f"v_max_u32_dpp v{vd}, v{vd}, v{vd} row_bcast:31 row_mask:0xc bank_mask:0xf")

    def lds_put(addr, v, tag=False):
        a(f"v_mov_b32 v9, {addr}")
        a("s_mov_b32 exec_lo, 0")
        a("s_brev_b32 exec_hi, 1")
        if tag:
            a(f"ds_write2_b32 v9, v{v}, v{VTAG} offset1:1")
        else:
            a(f"ds_write_b32 v9, v{v}")
        a("s_mov_b64 exec, -1")
        a("s_waitcnt lgkmcnt(0)")

    def sigmoid(d, s):
        a(f"v_mul_f32 v{d}, {LOG2E | 0x80000000:#x}, v{s}")
        a(f"v_exp_f32 v{d}, v{d}")
        a.nop(1)
        a(f"v_add_f32 v{d}, 1.0, v{d}")
        a(f"v_rcp_f32 v{d}, v{d}")
        a.nop(1)

    def rnd(d, s):
        a(f"v_cvt_pk_bf16_f32 v{d}, v{s}, v{s}")
        a(f"v_and_b32 v{d}, {HIM}, v{d}")

    def ws_setup():
        a.srd(S.RWS, S.PWS, WS_BYTES)
        a(f"s_mov_b32 s{S.SPIN}, 0")

    def tag_load():
        a(f"v_mov_b32 v{VTAG}, 0")
        a(f"global_load_dword v{VE}, v{VTAG}, s[{S.PWS}:{S.PWS+1}]")
        a(f"s_mov_b32 s{S.KM}, 0x9E3779B1")

    def tag_make():
        a(f"v_mul_lo_u32 v{VTAG}, v{VE}, s{S.KM}")
        a(f"v_add_u32 v{VTAG}, 0x7F4A7C15, v{VTAG}")

    a(f"s_load_dwordx2 s[{S.PX}:{S.PX+1}], s[0:1], {KA_X}")
    a(f"s_load_dwordx16 s[16:31], s[0:1], {KA_WR}")
    if o.cpf0:
        a(f"s_cmp_ge_u32 s2, {8*o.cpf0}")
        a("s_cbranch_scc1 L_nocpf0")
        a(f"s_getpc_b64 s[{S.EX}:{S.EX+1}]")
        a.label("L_pc0")
        a("v_lshlrev_b32 v6, 7, v0")
        a(f"v_min_u32 v6, L_end - L_pc0, v6")
        a(f"v_mov_b32 v13, s{S.EX+1}")
        a(f"v_add_co_u32 v12, vcc, s{S.EX}, v6")
        a.nop(2)
        a("v_addc_co_u32 v13, vcc, 0, v13, vcc")
        a("global_load_dword v164, v[12:13], off")
        a.label("L_nocpf0")
    if o.stamps:
        for i in range(1, 16):
            a(f"s_mov_b32 s{S.ST+2*i}, 0")
        a(f"s_mov_b32 s{S.RC}, 0")
    stamp(0)
    if o.hold or o.probe >= 0:
        a("s_memrealtime s[66:67]")
    if o.skew:
        a("s_and_b32 s6, s2, 7")
        a("s_cmp_lg_u32 s6, 5")
        a("s_cbranch_scc1 L_noskew")
        a(f"s_sleep {o.skew}")
        a.label("L_noskew")
    a("v_lshrrev_b32 v1, 6, v0")
    a("v_and_b32 v0, 63, v0")
    a(f"v_readfirstlane_b32 s{S.WAVE}, v1")
    a("v_and_b32 v1, 15, v0")
    a("v_lshrrev_b32 v2, 4, v0")
    a(f"s_and_b32 s{S.T0}, s2, 7")
    a(f"s_sub_u32 s{S.WAVE}, s{S.WAVE}, 1")
    a(f"s_min_u32 s{S.WAVE}, s{S.WAVE}, 8")
    a(f"s_lshr_b32 s{S.T1}, s2, 3")
    a(f"s_cmp_ge_u32 s2, {NA}")
    a("s_cbranch_scc1 L_notA")
    if o.only == "F":
        a("s_endpgm")

    VROW, VG16, VSGN, VTR, VST = 3, 5, 8, 10, 11
    VLD, VUW, VUX, VUR0, VUR1 = 10, 11, 28, 29, 30
    XR, WR, GW, CO = 16, 24, 24, 24
    CM, AOP, ACC = 32, 96, 112
    LD, DA0, DA1, TP, X16, PK = 32, 64, 32, 80, 96, 48
    M1, GA, XG = 100, 148, 152
    Cc, Ss = 64, 68
    UO, PQ, M2 = 32, 48, 64

    def rows_setup(wreg):
        a(f"s_lshl3_add_u32 s{S.T5}, s{S.HH}, s{wreg}")
        a(f"s_lshl_b32 s{S.T5}, s{S.T5}, 7")
        a(f"s_add_u32 s{S.TD}, s{S.T5}, s{S.T1C}")
        a(f"s_sub_u32 s{S.TM}, 2048, s{S.TD}")
        a(f"s_cmp_eq_u32 s{S.TD}, 0")
        a(f"s_cselect_b32 s{S.TM}, 1024, s{S.TM}")
        a(f"s_lshl_b32 s{S.T4}, s{S.TD}, 10")
        a(f"s_lshl_b32 s{S.T5}, s{S.TM}, 10")
        a(f"v_add_u32 v6, s{S.T4}, v{VG16}")
        a(f"v_add_u32 v7, s{S.T5}, v{VG16}")

    def vrow_setup():
        a("v_and_b32 v6, 1, v2")
        a("v_lshlrev_b32 v6, 5, v6")
        a("v_lshl_add_u32 v6, v1, 6, v6")
        a("v_lshrrev_b32 v7, 1, v2")
        a(f"v_lshl_add_u32 v{VROW}, v7, 4, v6")

    def rows_load():
        a(f"global_load_dwordx4 {V(XR,4)}, v6, {PXS}{o.xpol}")
        a(f"global_load_dwordx4 {V(XR+4,4)}, v7, {PXS}{o.xpol}")

    def sgn_setup():
        a(f"v_lshlrev_b32 v{VSGN}, 31, v1")
        a(f"v_lshrrev_b32 v9, 16, v{VSGN}")
        a(f"v_or_b32 v{VSGN}, v{VSGN}, v9")

    def sgn_setup2():
        a(f"v_lshlrev_b32 v{VSGN}, 31, v1")
        a(f"v_lshrrev_b32 v14, 16, v{VSGN}")
        a(f"v_or_b32 v{VSGN}, v{VSGN}, v14")

    def tile_ids():
        a(f"s_bitcmp1_b32 s{S.T1}, 3")
        a(f"s_cselect_b32 s{S.T2}, s{S.T3}, s{S.T2}")
        a(f"s_and_b32 s{S.T3}, s{S.T1}, 7")
        a(f"s_lshl3_add_u32 s{S.BLK}, s{S.T2}, s{S.T3}")
        a(f"s_lshl_b32 s{S.PIE}, s{S.T2}, 5")
        a(f"s_add_u32 s{S.PIE}, s{S.PIE}, s{S.T3}")
        a(f"s_lshl_b32 s{S.PIE}, s{S.PIE}, 6")

    def vst_setup():
        a(f"v_mul_u32_u24 v{VST}, {CS}, v1")
        a(f"v_lshl_add_u32 v{VST}, v2, 4, v{VST}")

    def const_d2():
        R = 40
        a("v_lshlrev_b32 v6, 2, v2")
        a("v_cvt_f32_u32 v7, v1")
        a("v_cvt_f32_u32 v6, v6")
        a("v_mul_f32 v7, 0x3d800000, v7")
        for hf in range(2):
            if hf:
                a("v_add_f32 v7, 0x3d800000, v7")
            a("v_mul_f32 v9, v6, v7")
            for jj in range(4):
                a(f"v_cos_f32 v{Cc+jj}, v9")
                a(f"v_sin_f32 v{Ss+jj}, v9")
                if jj < 3:
                    a("v_add_f32 v9, v9, v7")
            a.nop(1)
            for jj in range(4):
                if hf == 0:
                    a(f"v_cvt_pk_bf16_f32 v{R+jj}, v{Cc+jj}, v{Ss+jj}")
                    a(f"v_cvt_pk_bf16_f32 v{R+8+jj}, -v{Ss+jj}, v{Cc+jj}")
                else:
                    a(f"v_cvt_pk_bf16_f32 v{R+4+jj}, v{Cc+jj}, -v{Ss+jj}")
                    a(f"v_cvt_pk_bf16_f32 v{R+12+jj}, -v{Ss+jj}, -v{Cc+jj}")
        for k in range(4):
            a(f"ds_write_b128 v{VG16}, {V(R+4*k,4)} offset:{L_M2 + 1024*k}")

    a(f"s_add_u32 s{S.T2}, s{S.T0}, 1")
    a(f"s_sub_u32 s{S.T3}, 15, s{S.T0}")
    a(f"s_cmp_eq_u32 s{S.WAVE}, 8")
    a("s_cbranch_scc1 L_ah")
    a(f"s_and_b32 s{S.HH}, s{S.T1}, 1")
    a(f"s_bitcmp1_b32 s{S.T1}, 1")
    a(f"s_cselect_b32 s{S.T4}, s{S.T3}, s{S.T2}")
    a(f"s_lshr_b32 s{S.T5}, s{S.T1}, 2")
    a(f"s_lshl4_add_u32 s{S.T1C}, s{S.T5}, s{S.T4}")
    a(f"v_lshlrev_b32 v{VG16}, 4, v0")
    a(f"v_mov_b32 v{VROW}, 0")
    a(f"s_cmp_lg_u32 s{S.T0}, 7")
    a("s_cbranch_scc1 L_k7")
    a(f"s_lshr_b32 s{S.T5}, s{S.T1}, 1")
    a(f"s_lshl3_add_u32 s{S.T1C}, s{S.T5}, 8")
    a(f"s_mov_b32 s{S.T2}, 0")
    a(f"s_cmp_eq_u32 s2, 127")
    a(f"s_cselect_b32 s{S.T1C}, 0, s{S.T1C}")
    a(f"s_cselect_b32 s{S.HH}, 0, s{S.HH}")
    a.label("L_k7")
    rows_setup(S.WAVE)
    a("s_waitcnt lgkmcnt(0)")
    rows_load()
    stamp(1)
    if o.touch:
        touch("L_ta", o.touch, 0, 8)
    a.label("L_ta_start")
    if o.b0 == 2:
        a("s_barrier")
    tile_ids()

    def tile_dma():
        a(f"s_lshl_b32 s{S.T4}, s{S.WAVE}, 11")
        a(f"s_add_u32 s{S.T5}, s{S.T4}, s{S.BLK}")
        a(f"s_lshl_b32 s{S.T5}, s{S.T5}, 7")
        a(f"s_mov_b32 m0, s{S.T4}")
        a("v_and_b32 v9, 7, v0")
        a("v_bfe_u32 v13, v0, 4, 1")
        a("v_xor_b32 v9, v9, v13")
        a("v_lshrrev_b32 v13, 3, v0")
        a(f"v_lshl_add_u32 v9, v9, 4, s{S.T5}")
        a("v_lshl_add_u32 v13, v13, 14, v9")
        a(f"global_load_lds_dwordx4 v13, {PXS}")
        a(f"s_add_u32 m0, s{S.T4}, 1024")
        a("v_add_u32 v13, 0x20000, v13")
        a(f"global_load_lds_dwordx4 v13, {PXS}")
        stamp(2)

    if not o.tlate:
        tile_dma()
    C1, S1, K = AOP, AOP + 4, AOP + 8
    a(f"s_lshr_b32 s{S.T0}, s{S.WAVE}, 2")
    a(f"s_and_b32 s{S.T1}, s{S.WAVE}, 1")
    a(f"s_bfe_u32 s{S.T2}, s{S.WAVE}, 0x10001")
    a(f"v_lshl_add_u32 v6, s{S.T0}, 4, v1")
    a(f"s_lshl3_add_u32 s{S.T3}, s{S.T2}, s{S.T1}")
    a(f"s_lshl_b32 s{S.T3}, s{S.T3}, 2")
    a("v_cvt_f32_u32 v6, v6")
    a(f"v_lshl_add_u32 v7, v2, 3, s{S.T3}")
    a("v_mul_f32 v6, 0x3c000000, v6")
    a("v_cvt_f32_u32 v7, v7")
    a("v_mul_f32 v7, v7, v6")
    for j in range(4):
        a(f"v_cos_f32 v{C1+j}, v7")
        a(f"v_sin_f32 v{S1+j}, v7")
        if j < 3:
            a("v_add_f32 v7, v7, v6")
    if o.tlate == 2:
        a(f"global_load_dwordx4 {V(WR,4)}, v{VG16}, s[{S.PWR}:{S.PWR+1}]")
        tile_dma()
    a(f"s_lshl_b32 s{S.T4}, s{S.T0}, 13")
    a(f"s_lshl_b32 s{S.T5}, s{S.T2}, 10")
    a(f"s_lshl3_add_u32 s{S.T5}, s{S.T1}, s{S.T5}")
    a(f"v_add_u32 v15, s{S.T4}, v{VG16}")
    a(f"v_add_u32 v9, s{S.T5}, v15")
    a(f"v_cvt_pk_bf16_f32 v{K+0}, v{C1}, v{C1+1}")
    a(f"v_cvt_pk_bf16_f32 v{K+1}, v{C1+2}, v{C1+3}")
    a(f"v_cvt_pk_bf16_f32 v{K+2}, -v{S1}, -v{S1+1}")
    a(f"v_cvt_pk_bf16_f32 v{K+3}, -v{S1+2}, -v{S1+3}")
    a("v_cmp_eq_f32 vcc, 0, v6")
    a(f"v_cvt_pk_bf16_f32 v{K+4}, v{C1}, -v{S1+1}")
    a(f"v_cvt_pk_bf16_f32 v{K+5}, -v{C1+2}, v{S1+3}")
    a(f"v_cvt_pk_bf16_f32 v{K+6}, -v{S1}, -v{C1+1}")
    a(f"v_cvt_pk_bf16_f32 v{K+7}, v{S1+2}, v{C1+3}")
    a(f"ds_write_b64 v9, {V(K,2)} offset:{L_CT}")
    a(f"ds_write_b64 v9, {V(K+4,2)} offset:{L_CT+4096}")
    a(f"ds_write_b64 v9, {V(K+6,2)} offset:{L_CT+6144}")
    a("s_mov_b64 exec, vcc")
    a(f"v_mov_b32 v{K+2}, 0xbf803f80")
    a(f"v_mov_b32 v{K+3}, 0xbf803f80")
    a("s_mov_b64 exec, -1")
    a(f"ds_write_b64 v9, {V(K+2,2)} offset:{L_CT+2048}")
    if o.tlate != 2:
        a(f"global_load_dwordx4 {V(WR,4)}, v{VG16}, s[{S.PWR}:{S.PWR+1}]")
    if o.tlate == 1:
        tile_dma()
    a("v_mov_b32 v12, 0")
    a("v_mov_b32 v13, 0")
    stamp(3)
    if o.b0 == 1:
        a("s_waitcnt lgkmcnt(0)")
        a("s_barrier")
        for k in range(2):
            for t in range(4):
                a(f"ds_read_b128 {V(CM+16*t+4*k,4)}, v15 offset:{L_CT + t*2048 + k*1024}")

    def dots(w, fill=()):
        fill = list(fill)

        def pad(n):
            while n and fill:
                a(fill.pop(0))
                n -= 1
            a.nop(n)

        for i in range(4):
            a(f"v_dot2c_f32_bf16 v12, v{XR+i}, v{w+i}")
            a(f"v_dot2c_f32_bf16 v13, v{XR+4+i}, v{w+i}")
        pad(3)
        a("v_permlane32_swap_b32 v12, v13")
        a("v_add_f32 v12, v12, v13")
        a("v_mov_b32 v13, v12")
        pad(2)
        a("v_permlane16_swap_b32 v12, v13")
        a("v_add_f32 v12, v12, v13")
        for r in (8, 4, 2, 1):
            pad(2)
            a(f"v_add_f32_dpp v12, v12, v12 row_ror:{r} {DPPM}")
        rnd(12, 12)
        for x in fill:
            a(x)

    a(f"s_waitcnt vmcnt({2 if o.tlate else 0})")
    stamp(4)
    dots(WR, [f"s_sub_u32 s{S.T4}, 0xffff, s{S.TD}", f"s_sub_u32 s{S.T5}, 0xffff, s{S.TM}", f"v_mov_b32 v4, s{S.T4}",
              f"v_writelane_b32 v4, s{S.T5}, 32", f"v_mov_b32 v9, {L_KSL}",
              f"v_lshlrev_b32 v{VSGN}, 31, v1", f"v_lshrrev_b32 v7, 16, v{VSGN}", f"v_or_b32 v{VSGN}, v{VSGN}, v7",
              "v_bfe_u32 v6, v0, 2, 2", "v_and_b32 v14, 3, v0", f"v_lshl_add_u32 v14, v14, 1, s{S.T2}",
              f"v_lshl_add_u32 v{VTR}, v2, 3, v6", "v_lshrrev_b32 v6, 1, v6", "v_xor_b32 v14, v14, v6"])
    a("v_ashrrev_i32 v7, 31, v12")
    a("v_or_b32 v7, 0x80000000, v7")
    a("v_xor_b32 v7, v7, v12")
    a(f"v_and_b32 v7, {HIM}, v7")
    a("v_or_b32 v7, v7, v4")
    a("s_mov_b32 exec_lo, 1")
    a("s_mov_b32 exec_hi, 1")
    a("ds_max_u32 v9, v7")
    a("s_mov_b64 exec, -1")
    if o.b1a:
        a("s_waitcnt lgkmcnt(0)")
        hold("K")
        a("s_barrier")
    if o.b0 == 2:
        for k in range(2):
            for t in range(4):
                a(f"ds_read_b128 {V(CM+16*t+4*k,4)}, v15 offset:{L_CT + t*2048 + k*1024}")
    a(f"s_lshl_b32 s{S.T1}, s{S.T1}, 3")
    a(f"v_lshl_add_u32 v14, v14, 4, s{S.T1}")
    a(f"v_lshl_add_u32 v{VTR}, v{VTR}, 7, v14")
    a("v_lshlrev_b32 v9, 4, v2")
    a("s_waitcnt vmcnt(0)" + ("" if o.b0 == 2 else " lgkmcnt(0)"))
    hold("B1")
    a("s_barrier")
    stamp(5)
    if o.b0 == 2:
        a("s_waitcnt lgkmcnt(5)")
    a(f"ds_read_b128 v[28:31], v9 offset:{L_EXP}")
    for k in range(4):
        for h in range(2):
            a(f"ds_read_b64_tr_b16 {V(AOP+4*k+2*h,2)}, v{VTR} offset:{L_TILE + k*4096 + h*512}")
        if k < 2 and not o.b0:
            for t in range(4):
                a(f"ds_read_b128 {V(CM+16*t+4*k,4)}, v15 offset:{L_CT + t*2048 + k*1024}")
        if k == 1 and not o.b0:
            a("s_waitcnt lgkmcnt(9)")
    a(f"global_load_dwordx4 {V(GW,4)}, v{VG16}, s[{S.PGW}:{S.PGW+1}]")
    xors = [f"v_xor_b32 v{CM+t*16+8+4*kp+r}, v{CM+t*16+4*kp+r}, v{VSGN}" for kp in range(2) for t in range(4) for r in range(4)]
    misc = [f"s_mul_i32 s{S.SO}, s{S.T0}, {16*CS}",
            f"s_add_u32 s{S.SO}, s{S.SO}, s{S.PIE}",
            f"s_and_b32 s{S.T4}, s{S.WAVE}, 3",
            f"s_lshl_b32 s{S.T4}, s{S.T4}, 9",
            f"s_add_u32 s{S.SO}, s{S.SO}, s{S.T4}",
            f"s_add_u32 s{S.SO}, s{S.SO}, {WS_INT}",
            f"s_mov_b32 s{S.RWS}, s{S.PWS}", f"s_mov_b32 s{S.RWS+1}, s{S.PWS+1}", f"s_mov_b32 s{S.RWS+2}, {WS_BYTES:#x}",
            f"s_mov_b32 s{S.RWS+3}, 0x20000",
            f"s_add_u32 s{S.SO+1}, s{S.SO}, {32*CS}", f"s_mov_b32 s{S.T5}, 0xfffefffe", f"s_mov_b32 s{S.T4}, 0x07060302",
            f"v_mul_u32_u24 v{VST}, {CS}, v1", f"v_lshl_add_u32 v{VST}, v2, 4, v{VST}",
            ]
    fill = xors + misc
    for k in range(4):
        for t in range(4):
            if o.b0:
                if t == 0:
                    a(f"s_waitcnt lgkmcnt({6-2*k})")
            elif k == 0:
                a(f"s_waitcnt lgkmcnt({13-t})")
            elif k == 1:
                a(f"s_waitcnt lgkmcnt({7-t})")
            elif t == 0:
                a(f"s_waitcnt lgkmcnt({2 if k == 2 else 0})")
            c = "0" if k == 0 else V(ACC + 4 * t, 4)
            a(f"{MF} {V(ACC+4*t,4)}, {V(AOP+4*k,4)}, {V(CM+16*t+4*k,4)}, {c}")
            n = 4 if k < 2 else 2
            if k < 3 or t < 3:
                for _ in range(n):
                    if fill:
                        x = fill.pop(0)
                        if x != "TAGWAIT":
                            a(x)
    for x in fill:
        a(x)
    a("v_mov_b32 v12, 0")
    a("v_mov_b32 v13, 0")
    for h in range(2):
        for i in range(8):
            a(f"v_add_u32 v{ACC+8*h+i}, 0x10000, v{ACC+8*h+i}")
        for i in range(4):
            a(f"v_perm_b32 v{AOP+4*h+i}, v{ACC+8*h+4+i}, v{ACC+8*h+i}, s{S.T4}")
        for i in range(4):
            a(f"v_and_or_b32 v{AOP+4*h+i}, v{AOP+4*h+i}, s{S.T5}, v{28+i}")
        a(f"buffer_store_dwordx4 {V(AOP+4*h,4)}, v{VST}, {R4(S.RWS)}, s{S.SO+h} offen sc1")
    a(f"s_mov_b32 s{S.SPIN}, 0")
    a(f"s_mov_b32 s{S.ISZ}, 0")
    stamp(7)
    if o.only == "P1":
        a("s_endpgm")
    a.label("L_ta_end")

    gwait = [2]

    def gates(full):
        if full:
            a(f"s_waitcnt vmcnt({gwait[0]})")
        dots(GW)
        if full:
            a(f"s_lshl_b32 s{S.T0}, s{S.WAVE}, 11")
            a(f"v_add_u32 v6, s{S.T0}, v{VG16}")
            a(f"ds_write_b128 v6, {V(XR,4)} offset:{L_XT}")
            a(f"ds_write_b128 v6, {V(XR+4,4)} offset:{L_XT+1024}")
            a(f"v_lshl_add_u32 v7, v1, 6, s{S.T0}")
            a("v_lshl_add_u32 v7, v2, 3, v7")
            a("s_waitcnt lgkmcnt(0)")
            for r in range(2):
                a(f"ds_read2_b64 {V(XR+4*r,4)}, v7 offset0:{0} offset1:{4}" if False else f"ds_read_b64 {V(XR+4*r,2)}, v7 offset:{L_XT+1024*r}")
                a(f"ds_read_b64 {V(XR+4*r+2,2)}, v7 offset:{L_XT+1024*r+32}")
            vrow_setup()
        sigmoid(13, 12)
        rnd(13, 13)
        a("v_sub_f32 v14, 1.0, v13")
        rnd(14, 14)
        a(f"v_readlane_b32 s{S.T0}, v13, 0")
        a(f"v_readlane_b32 s{S.T1}, v13, 32")
        a(f"v_readlane_b32 s{S.T2}, v14, 0")
        a(f"v_readlane_b32 s{S.T3}, v14, 32")
        a(f"s_xor_b32 s{S.T4}, s{S.T0}, 0x80000000")
        a(f"s_cmp_eq_u32 s{S.TD}, 0")
        a(f"s_cselect_b32 s{S.T4}, 0, s{S.T4}")
        a(f"s_cselect_b32 s{S.T5}, 0, s{S.T1}")
        if not full:
            return
        a(f"v_mov_b32 v{CO}, s{S.T0}")
        a(f"v_mov_b32 v{CO+1}, s{S.T4}")
        a(f"v_mov_b32 v{CO+2}, s{S.T5}")
        a(f"v_mov_b32 v{CO+3}, s{S.T1}")
        a(f"v_mov_b32 v13, s{S.T2}")
        a(f"v_mov_b32 v14, s{S.T3}")
        a("s_waitcnt lgkmcnt(0)")
        for r in range(2):
            for i in range(4):
                a(f"v_lshlrev_b32 v{XG+8*r+2*i}, 16, v{XR+4*r+i}")
                a(f"v_and_b32 v{XG+8*r+2*i+1}, {HIM}, v{XR+4*r+i}")
            for i in range(8):
                a(f"v_mul_f32 v{XG+8*r+i}, v{13+r}, v{XG+8*r+i}")

    def addr_ur(wreg):
        a(f"s_mul_i32 s{S.T1}, s{wreg}, {2*UB}")
        a("v_bfe_u32 v7, v1, 1, 2")
        a("v_xor_b32 v7, v7, v2")
        a(f"v_lshl_add_u32 v7, v7, 4, s{S.T1}")
        a(f"v_lshl_add_u32 v{VUR0}, v1, 6, v7")
        a("v_sub_u32 v6, 16, v1")
        a("v_bfe_u32 v7, v6, 1, 2")
        a("v_xor_b32 v7, v7, v2")
        a(f"v_lshl_add_u32 v7, v7, 4, s{S.T1}")
        a(f"v_lshl_add_u32 v{VUR1}, v6, 6, v7")

    def addr_p2():
        a("v_lshlrev_b32 v6, 4, v1")
        a(f"v_lshl_add_u32 v{VLD}, v2, 13, v6")
        a(f"v_mul_u32_u24 v6, {4*UB}, v2")
        a("v_bfe_u32 v7, v1, 1, 2")
        a(f"v_xor_b32 v7, s{S.WAVE}, v7")
        a("v_lshl_add_u32 v7, v7, 4, v6")
        a(f"v_lshl_add_u32 v{VUW}, v1, 6, v7")
        a(f"s_lshl4_add_u32 s{S.T1}, s{S.WAVE}, 1024")
        a(f"v_mov_b32 v9, {L_DUMP - L_U2}")
        a(f"v_lshl_add_u32 v{VUX}, v0, 1, v9")
        a(f"v_lshl_add_u32 v7, v1, 1, s{S.T1}")
        a("s_mov_b32 exec_lo, 0x00ff00ff")
        a("s_mov_b32 exec_hi, 0x00ff00ff")
        a(f"v_add_u32 v{VUX}, v7, v6")
        a("s_mov_b64 exec, -1")

    EXP = 96

    def exp_setup():
        a("v_and_b32 v6, 3, v1")
        a("v_lshlrev_b32 v6, 4, v6")
        a(f"ds_read_b128 {V(EXP,4)}, v6 offset:{L_EXP}")
        a("s_waitcnt lgkmcnt(0)")

    def exp_make():
        a("v_lshlrev_b32 v6, 1, v1")
        a(f"v_lshrrev_b32 v6, v6, v{VTAG}")
        a("v_lshlrev_b32 v7, 15, v6")
        a("v_and_b32 v6, 1, v6")
        a("v_and_b32 v7, 0x10000, v7")
        a("v_or_b32 v6, v6, v7")
        a("v_lshlrev_b32 v7, 2, v1")
        a(f"ds_write_b32 v7, v6 offset:{L_EXP}")
        a("s_waitcnt lgkmcnt(0)")

    def const_d1():
        a("v_cvt_f32_u32 v6, v1")
        a(f"s_lshl_b32 s{S.T0}, s{S.WAVE}, 2")
        a(f"v_lshl_add_u32 v7, v2, 6, s{S.T0}")
        a("v_mul_f32 v6, 0x3b000000, v6")
        a("v_cvt_f32_u32 v7, v7")
        a("v_mul_f32 v15, 0x41800000, v6")
        a("v_mul_f32 v7, v7, v6")
        for ib in range(4):
            if ib:
                a("v_add_f32 v7, v7, v6")
            for j in range(4):
                src = "v7" if j == 0 else "v9"
                a(f"v_cos_f32 v{Cc+j}, {src}")
                a(f"v_sin_f32 v{Ss+j}, {src}")
                if j < 3:
                    a(f"v_add_f32 v9, {src}, v15")
            b = M1 + 12 * ib
            a(f"v_mov_b32 v{b+8}, 0")
            for p in range(2):
                a(f"v_cvt_pk_bf16_f32 v{b+p}, v{Cc+2*p}, v{Cc+2*p+1}")
                a(f"v_cvt_pk_bf16_f32 v{b+4+p}, -v{Ss+2*p}, -v{Ss+2*p+1}")
            for p in range(2):
                a(f"v_xor_b32 v{b+2+p}, v{b+p}, v{VSGN}")
                a(f"v_xor_b32 v{b+6+p}, v{b+4+p}, v{VSGN}")
        a("v_lshrrev_b32 v6, 1, v1")
        a(f"v_add_u32 v7, s{S.T0}, v6")
        a("v_and_b32 v9, 1, v1")
        a("v_lshl_add_u32 v7, v9, 3, v7")
        a("v_cvt_f32_u32 v7, v7")
        a("v_mul_f32 v7, 0x3d000000, v7")
        a("v_cos_f32 v7, v7")
        for ib in range(4):
            m = 0x00030003 << (2 * ib)
            a(f"s_mov_b32 exec_lo, {m:#x}")
            a(f"s_mov_b32 exec_hi, {m:#x}")
            a(f"v_cvt_pk_bf16_f32 v{M1+12*ib+8}, v7, -v7")
        a("s_mov_b64 exec, -1")
        for ib in range(4):
            for p in range(1, 4):
                a(f"v_mov_b32 v{M1+12*ib+8+p}, v{M1+12*ib+8}")

    def const_ga():
        a("v_lshrrev_b32 v6, 1, v1")
        a(f"s_lshl_b32 s{S.T0}, s{S.HH}, 10")
        a(f"s_add_u32 s{S.T0}, s{S.T0}, s{S.T1C}")
        a(f"v_lshl_add_u32 v6, v6, 7, s{S.T0}")
        a("v_and_b32 v7, 1, v1")
        a("v_lshlrev_b32 v9, 9, v7")
        l0, ld = a.L("g0"), a.L("gd")
        a(f"s_cmp_lg_u32 s{S.T1C}, 0")
        a(f"s_cbranch_scc1 {l0}")
        a("s_mov_b32 exec_lo, 0x00020002")
        a("s_mov_b32 exec_hi, 0x00020002")
        a("v_mov_b32 v6, 0x400")
        a("v_mov_b32 v9, 0")
        a("s_mov_b64 exec, -1")
        a.label(l0)
        a("v_lshlrev_b32 v7, 2, v2")
        a("v_mad_u32_u24 v9, v7, v6, v9")
        a("v_cvt_f32_u32 v6, v6")
        a("v_cvt_f32_u32 v9, v9")
        a("v_mul_f32 v6, 0x3a000000, v6")
        a("v_mul_f32 v9, 0x3a000000, v9")
        for jj in range(4):
            a(f"v_cos_f32 v{Cc+jj}, v9")
            a(f"v_sin_f32 v{Ss+jj}, v9")
            if jj < 3:
                a("v_add_f32 v9, v9, v6")
        a(f"s_and_b32 s{S.T1}, s{S.T1C}, 63")
        a.nop(1)
        for jj in range(4):
            a(f"v_cvt_pk_bf16_f32 v{GA+jj}, v{Cc+jj}, v{Ss+jj}")
        a(f"s_cmp_lg_u32 s{S.T1}, 0")
        a(f"s_cbranch_scc1 {ld}")
        a(f"s_lshr_b32 s{S.T1}, s{S.T1C}, 2")
        for jj in range(4):
            a(f"v_and_b32 v{GA+jj}, 0xffff, v{GA+jj}")
            a(f"v_lshlrev_b32 v{GA+jj}, s{S.T1}, v{GA+jj}")
        a.label(ld)

    def int_base():
        a(f"s_and_b32 s{S.T1}, s{S.T1C}, 63")
        a(f"s_mul_i32 s{S.L0}, s{S.T1}, {CS}")
        a(f"s_lshl_b32 s{S.T1}, s{S.WAVE}, 9")
        a(f"s_add_u32 s{S.L0}, s{S.L0}, s{S.T1}")
        a(f"s_add_u32 s{S.L0}, s{S.L0}, {WS_INT}")
        a(f"s_add_u32 s{S.L1}, s{S.L0}, 4096")

    def m2_addr():
        a(f"s_cmp_eq_u32 s{S.TD}, 0")
        a(f"s_cselect_b32 s{S.T0}, 0, 2048")
        a(f"v_add_u32 v4, s{S.T0}, v{VG16}")

    def int_loads(ah):
        for jj in range(4):
            so = S.L0 if jj < 2 else S.L1
            a(f"buffer_load_dwordx4 {V(LD+16*ah+4*jj,4)}, v{VLD}, {R4(S.RWS)}, s{so} offen offset:{(jj & 1)*2048 + ah*256} sc1")

    a.srd(S.ROUT, S.POUT, 0x200000)
    a(f"s_cmp_ge_u32 s{S.WAVE}, 4")
    a("s_cbranch_scc1 L_hi0")
    if o.prio & 1:
        a("s_setprio 2")
    pre = [lambda: (addr_p2(), int_base(), const_ga(), exp_setup()), const_d1, lambda: gates(True), lambda: (addr_ur(S.WAVE), m2_addr())]
    if o.gfirst:
        pre[1], pre[2] = pre[2], pre[1]
    for f in pre[:o.npre]:
        f()
    stamp(8)
    a(f"s_waitcnt vmcnt({0 if o.ackwait else 2})")
    if o.b3:
        a("s_barrier")
    if o.isleep0:
        a(f"s_sleep {o.isleep0}")
    hold("B4")
    stamp(9)
    if o.stag:
        a(f"s_cmp_lg_u32 s{S.HH}, 0")
        a("s_cbranch_scc1 L_stg1")
        int_loads(0)
        a(f"s_waitcnt vmcnt({4 - o.stag})")
        int_loads(1)
        a("s_branch L_stg2")
        a.label("L_stg1")
        int_loads(1)
        a(f"s_waitcnt vmcnt({4 - o.stag})")
        int_loads(0)
        a("s_waitcnt vmcnt(0)")
        a.label("L_stg2")
    else:
        int_loads(0)
        int_loads(1)
    gwait[0] = 10
    for f in pre[o.npre:]:
        f()
    gwait[0] = 2
    a.label("L_zjoin")
    stamp(10)
    for ah in range(2):
        a(f"s_waitcnt vmcnt({4-4*ah})")
        a.label(f"L_got{ah}")
        b = LD + 16 * ah
        da = DA1 if ah else DA0
        for ib in range(4):
            for jj in range(4):
                a(f"v_xor_b32 v{TP+4*ib+jj}, v{b+4*jj+ib}, v{EXP+ib}")
            if ib == 0:
                a(f"v_or3_b32 v6, v{TP}, v{TP+1}, v{TP+2}")
                a(f"v_or_b32 v6, v6, v{TP+3}")
            else:
                a(f"v_or3_b32 v6, v6, v{TP+4*ib}, v{TP+4*ib+1}")
                a(f"v_or3_b32 v6, v6, v{TP+4*ib+2}, v{TP+4*ib+3}")
            if ib == 3:
                a("v_and_b32 v6, 0x10001, v6")
                a("v_cmp_ne_u32 vcc, 0, v6")
            if not (ah == 1):
                a(f"{MF} {V(da+4*ib,4)}, {V(TP+4*ib,4)}, {V(GA,4)}, 0")
            else:
                a(f"{MF} {V(da+4*ib,4)}, {V(TP+4*ib,4)}, {V(GA,4)}, 0")
        a(f"s_cbranch_vccnz L_retry{ah}")
        a.label(f"L_fail{ah}")
    stamp(11)

    def d1(jb):
        a(f"{MF} {V(DA0+4*jb,4)}, {V(TP+4*jb,4)}, {V(M1+12*jb,4)}, 0")
        a(f"{MF} {V(DA1+4*jb,4)}, {V(TP+4*jb,4)}, {V(M1+12*jb+4,4)}, 0")
        a(f"{MF} {V(X16,4)}, {V(TP+4*jb,4)}, {V(M1+12*jb+8,4)}, {'0' if jb == 0 else V(X16,4)}")

    for ib in range(4):
        for p in range(4):
            s0 = (DA1 if p >= 2 else DA0) + 4 * ib + 2 * (p & 1)
            a(f"v_cvt_pk_bf16_f32 v{TP+4*ib+p}, v{s0}, v{s0+1}")
        if ib:
            d1(ib - 1)
    d1(3)
    for ib in range(3):
        for i in range(4):
            a(f"v_cvt_pk_bf16_f32 v{PK+4*i+ib}, v{DA0+4*ib+i}, v{DA1+4*ib+i}")
    for i in range(4):
        a(f"v_cvt_pk_bf16_f32 v{PK+4*i+3}, v{DA0+12+i}, v{DA1+12+i}")
        a(f"ds_write_b128 v{VUW}, {V(PK+4*i,4)} offset:{L_U2 + i*UB}")
    a(f"v_cvt_pk_bf16_f32 v{X16}, v{X16}, v{X16+1}")
    a(f"v_cvt_pk_bf16_f32 v{X16+2}, v{X16+2}, v{X16+3}")
    a(f"ds_write_b16 v{VUX}, v{X16} offset:{L_U2}")
    a(f"ds_write_b16_d16_hi v{VUX}, v{X16} offset:{L_U2+UB}")
    a(f"ds_write_b16 v{VUX}, v{X16+2} offset:{L_U2+2*UB}")
    a(f"ds_write_b16_d16_hi v{VUX}, v{X16+2} offset:{L_U2+3*UB}")
    a.label("L_d2")
    a(f"ds_read_b128 {V(M2,4)}, v{VG16} offset:{L_M2}")
    a(f"ds_read_b128 {V(M2+4,4)}, v{VG16} offset:{L_M2+1024}")
    a(f"ds_read_b128 {V(M2+8,4)}, v4 offset:{L_M2}")
    a(f"ds_read_b128 {V(M2+12,4)}, v4 offset:{L_M2+1024}")
    a(f"v_mov_b32 v9, {L_GKEY}")
    a(f"s_cmp_lg_u32 s{S.ISZ}, 0")
    a("s_waitcnt lgkmcnt(0)")
    a("s_cbranch_scc1 L_zsync")
    a("s_barrier")
    stamp(12)
    a("ds_read_b32 v6, v9")
    a(f"ds_read_b128 {V(UO,4)}, v{VUR0} offset:{L_U2}")
    a(f"ds_read_b128 {V(UO+4,4)}, v{VUR1} offset:{L_U2}")
    a(f"ds_read_b128 {V(UO+8,4)}, v{VUR0} offset:{L_U2+UB}")
    a(f"ds_read_b128 {V(UO+12,4)}, v{VUR1} offset:{L_U2+UB}")
    a(f"s_lshl_b32 s{S.T0}, s{S.TD}, 10")
    a(f"s_lshl_b32 s{S.T1}, s{S.TM}, 10")
    for k in range(4):
        a(f"s_waitcnt lgkmcnt({3-k})")
        a(f"{MF} {V(PQ+4*k,4)}, {V(UO+4*k,4)}, {V(M2+4*k,4)}, 0")
    a(f"v_readfirstlane_b32 s{S.GKEY}, v6")
    a(f"s_andn2_b32 s{S.IDX}, 0xffff, s{S.GKEY}")
    for r in range(2):
        for i in range(8):
            a(f"v_fmac_f32 v{XG+8*r+i}, v{CO+2*r}, v{PQ+i}")
    for r, (so, tr) in enumerate(((S.T0, S.TD), (S.T1, S.TM))):
        for i in range(8):
            a(f"v_fmac_f32 v{XG+8*r+i}, v{CO+2*r+1}, v{PQ+8+i}")
        for i in range(4):
            a(f"v_cvt_pk_bf16_f32 v{UO+4*r+i}, v{XG+8*r+2*i}, v{XG+8*r+2*i+1}")
        l = a.L("skip")
        if r == 0:
            stamp(6)
        a(f"s_cmp_eq_u32 s{tr}, s{S.IDX}")
        a(f"s_cbranch_scc1 {l}")
        a(f"v_permlane16_swap_b32 v{UO+4*r}, v{UO+4*r+2}")
        a(f"v_permlane16_swap_b32 v{UO+4*r+1}, v{UO+4*r+3}")
        a(f"buffer_store_dwordx4 {V(UO+4*r,4)}, v{VROW}, {R4(S.ROUT)}, s{so} offen{o.outpol}")
        a.label(l)
    a.label("L_tb_end")
    stamp(13)
    if o.stamps:
        a("s_waitcnt vmcnt(0)")
        stamp(15)
    endprog()

    for ah in range(2):
        a.label(f"L_retry{ah}")
        if o.stamps:
            a(f"s_add_u32 s{S.RC}, s{S.RC}, {1 << (8*ah)}")
        if o.rsleep:
            a(f"s_sleep {o.rsleep}")
        spin()
        a(f"s_cbranch_scc1 L_fail{ah}")
        int_loads(ah)
        a("s_waitcnt vmcnt(0)")
        a(f"s_branch L_got{ah}")

    a.label("L_hi0")
    if o.b3:
        if o.ackwait:
            a("s_waitcnt vmcnt(0)")
        a("s_barrier")
    a.label("L_hi1")
    if o.atouch:
        touch("L_tb", o.atouch, 4, 4)
        a(f"s_cmp_lg_u32 s{S.ISZ}, 0")
        a("s_cbranch_scc1 L_z0b")
    gates(True)
    addr_ur(S.WAVE)
    m2_addr()
    stamp(10)
    a("s_branch L_d2")

    a.label("L_ah")
    if o.prio & 2:
        a("s_setprio 3")
    if o.cpf:
        a(f"s_cmp_ge_u32 s{S.T1}, {o.cpf}")
        a("s_cbranch_scc1 L_nocpf")
        a(f"s_getpc_b64 s[{S.EX}:{S.EX+1}]")
        a.label("L_pc")
        a(f"s_sub_u32 s{S.EX}, s{S.EX}, L_pc - {name}")
        a(f"s_subb_u32 s{S.EX+1}, s{S.EX+1}, 0")
        a("v_lshlrev_b32 v6, 7, v0")
        a("v_add_u32 v7, 0x2000, v6")
        a(f"v_min_u32 v7, L_end - {name}, v7")
        a(f"v_mov_b32 v13, s{S.EX+1}")
        a(f"v_mov_b32 v15, s{S.EX+1}")
        a(f"v_add_co_u32 v12, vcc, s{S.EX}, v6")
        a.nop(2)
        a("v_addc_co_u32 v13, vcc, 0, v13, vcc")
        a(f"v_add_co_u32 v14, vcc, s{S.EX}, v7")
        a.nop(2)
        a("v_addc_co_u32 v15, vcc, 0, v15, vcc")
        a("global_load_dword v10, v[12:13], off")
        a("global_load_dword v11, v[14:15], off")
        a.label("L_nocpf")
    a(f"v_lshlrev_b32 v{VG16}, 4, v0")
    a(f"v_mov_b32 v{VTAG}, 0")
    a(f"v_mov_b32 v9, {L_KSL}")
    a(f"ds_write_b32 v9, v{VTAG}")
    a(f"s_mov_b32 s{S.KM}, 0x9E3779B1")
    a(f"s_cmp_ge_u32 s{S.T1}, {o.wpf}")
    a("s_waitcnt lgkmcnt(0)")
    a("s_cbranch_scc1 L_nowpf")
    a(f"global_load_dwordx4 v[32:35], v{VG16}, s[{S.PWR}:{S.PWR+1}]")
    a(f"global_load_dword v{VE}, v{VTAG}, s[{S.PWS}:{S.PWS+1}]")
    a(f"global_load_dwordx4 v[36:39], v{VG16}, s[{S.PGW}:{S.PGW+1}]")
    a.label("L_nowpf")
    stamp(1)
    a("v_lshlrev_b32 v14, 10, v0")
    a(f"s_lshl_b32 s{S.ID8}, s2, 3")
    a(f"s_add_u32 s{S.ID8}, s{S.ID8}, {WS_KEY}")
    ws_setup()

    if o.b0 == 2:
        a("s_barrier")
    const_d2()
    a(f"global_load_dword v{VE}, v{VTAG}, s[{S.PWS}:{S.PWS+1}]")
    a("s_waitcnt lgkmcnt(0)")
    stamp(2)
    if o.b0 == 1:
        a("s_barrier")
    a(f"v_mov_b32 v9, {L_KSL}")
    a("s_waitcnt vmcnt(0)")
    tag_make()
    exp_make()
    a(f"v_mov_b32 v9, {L_KSL}")
    stamp(3)
    a("s_barrier")
    a(f"ds_read_b32 v{VE}, v9")
    set_exec(RF * CF + RZ * CZ + R2 * C2 + RS)
    a("s_waitcnt lgkmcnt(0)")
    a(f"buffer_store_dwordx2 v[{VE}:{VTAG}], v14, {R4(S.RWS)}, s{S.ID8} offen sc1")
    if o.probe >= 0:
        a("s_mov_b64 exec, 1")
        a("v_mov_b32 v40, s66")
        a(f"v_mov_b32 v41, v{VTAG}")
        a(f"s_add_u32 s{S.T0}, s{S.ID8}, {WS_KEY2 - WS_KEY}")
        a(f"buffer_store_dwordx2 v[40:41], v14, {R4(S.RWS)}, s{S.T0} offen sc1")
    a("s_mov_b64 exec, -1")
    stamp(5)
    if o.b1a:
        a("s_barrier")
    if o.only == "P1":
        a("s_endpgm")
    if o.htouch:
        touch("L_th", o.htouch, 8, 1)
    poll_setup(WS_KEY + 1024 * (RF * CF + RZ * CZ), R2, C2)
    a("s_waitcnt vmcnt(0)")
    if not o.gate and o.b3:
        a("s_barrier")
    if o.k2sleep0:
        a(f"s_sleep {o.k2sleep0}")
    stamp(8)
    poll_granules(VG16, 32, sleep=o.k2sleep)
    stamp(9)
    wave_max_key(32)
    lds_put(L_GKEY, 32)
    if o.gate:
        a(f"s_sleep {o.gate}")
        a("s_barrier")
        if o.probe >= 0:
            a("s_cmp_lg_u32 s2, 9")
            a("s_cbranch_scc1 L_noprobe")
            a("s_barrier")
            a(f"s_mov_b32 s{S.PO}, {WS_KEY2}")
            a(f"s_mov_b32 s{S.POL}, {WS_KEY2}")
            poll_granules(VG16, 32, sleep=4)
            for i in range(8):
                a(f"v_readlane_b32 s{70+i}, v{32 + 2*(i&1)}, {i>>1}")
            a("s_mov_b32 s80, s70")
            for i in range(1, 8):
                a(f"s_sub_u32 s81, s{70+i}, s80")
                a("s_cmp_lt_i32 s81, 0")
                a(f"s_cselect_b32 s80, s{70+i}, s80")
            if o.probe < 8:
                a(f"s_sub_u32 s81, s{70+o.probe}, s80")
            else:
                a("s_mov_b32 s81, 0")
                for i in range(8):
                    a(f"s_sub_u32 s82, s{70+i}, s80")
                    a("s_max_u32 s81, s81, s82")
            a("s_mul_i32 s81, s81, 10")
            a("s_add_u32 s81, s81, 800")
            a.label("L_pw")
            a("s_sleep 1")
            a("s_memrealtime s[100:101]")
            a("s_waitcnt lgkmcnt(0)")
            a("s_sub_u32 s100, s100, s80")
            a("s_cmp_lt_u32 s100, s81")
            a("s_cbranch_scc1 L_pw")
            a.label("L_noprobe")
        if o.hold and o.hold[0] == "endA":
            a(f"s_sub_u32 s{S.T0}, s2, {o.hold[2]}")
            a(f"s_cmp_ge_u32 s{S.T0}, {o.hold[3]}")
            a("s_cbranch_scc1 L_nohold")
            a("s_barrier")
            hold("endA")
            a.label("L_nohold")
        endprog()
    a("s_barrier")
    endprog()

    a.label("L_notA")
    if o.only == "AA":
        a("s_endpgm")
    a(f"s_sub_u32 s{S.T2}, s{S.T0}, {o.zx}")
    a(f"s_and_b32 s{S.T2}, s{S.T2}, 7")
    a(f"s_lshl4_add_u32 s{S.FJ}, s{S.T2}, s{S.T1}")
    a(f"s_sub_u32 s{S.FJ}, s{S.FJ}, 32")
    a(f"s_cmp_ge_u32 s2, {NWG}")
    a("s_cbranch_scc1 L_end")
    a(f"s_cmp_lg_u32 s{S.T2}, 0")
    a("s_cbranch_scc1 L_F")
    a(f"s_mov_b32 s{S.ISZ}, 1")
    a(f"s_sub_u32 s{S.Z}, s{S.T1}, 16")
    vrow_setup()
    a(f"v_lshlrev_b32 v{VG16}, 4, v0")
    sgn_setup()
    a("s_waitcnt lgkmcnt(0)")
    ws_setup()
    a.srd(S.ROUT, S.POUT, 0x200000)
    addr_p2()
    a(f"s_cmp_eq_u32 s{S.WAVE}, 8")
    a("s_cbranch_scc1 L_zh")
    a(f"s_cmp_ge_u32 s{S.WAVE}, 4")
    a("s_cbranch_scc1 L_z0")
    const_d1()
    a("s_branch L_z1")
    a.label("L_z0")
    if o.atouch:
        a("s_branch L_hi1")
    a.label("L_z0b")
    if o.ztouch:
        touch("L_tz", o.ztouch, 4, 4)
    a.label("L_z1")
    a(f"v_mov_b32 v9, {L_KSL}")
    a("v_mov_b32 v12, 0")
    a("v_mov_b32 v13, 0")
    a("s_barrier")
    a(f"ds_read_b64 v[{VE}:{VTAG}], v9")
    a(f"ds_read_b128 {V(GW,4)}, v{VG16} offset:{L_WV+1024}")
    a("s_waitcnt lgkmcnt(0)")
    a(f"v_readfirstlane_b32 s{S.GKEY}, v{VE}")
    a(f"s_andn2_b32 s{S.IDX}, 2047, s{S.GKEY}")
    a(f"s_and_b32 s{S.T0}, s{S.IDX}, 127")
    a(f"s_cmp_gt_u32 s{S.T0}, 64")
    a(f"s_cselect_b32 s{S.WHICH}, 1, 0")
    a(f"s_and_b32 s{S.T0}, s{S.IDX}, {1024 + 63}")
    a(f"s_cmp_eq_u32 s{S.T0}, 1024")
    a(f"s_cselect_b32 s{S.WHICH}, 1, s{S.WHICH}")
    a(f"s_sub_u32 s{S.T0}, 2048, s{S.IDX}")
    a(f"s_cmp_lg_u32 s{S.WHICH}, 0")
    a(f"s_cselect_b32 s{S.T0}, s{S.T0}, s{S.IDX}")
    a(f"s_cmp_eq_u32 s{S.T0}, 1024")
    a(f"s_cselect_b32 s{S.T0}, 0, s{S.T0}")
    a(f"s_and_b32 s{S.T1C}, s{S.T0}, 127")
    a(f"s_lshr_b32 s{S.HH}, s{S.T0}, 10")
    a(f"s_bfe_u32 s{S.WSEL}, s{S.T0}, 0x30007")
    rows_setup(S.WSEL)
    a(f"s_cmp_ge_u32 s{S.WAVE}, 4")
    a("s_cbranch_scc1 L_z4")
    int_base()
    if o.zisleep0:
        a(f"s_sleep {o.zisleep0}")
    stamp(9)
    int_loads(0)
    int_loads(1)
    const_ga()
    exp_setup()
    addr_ur(S.WSEL)
    m2_addr()
    a("v_lshlrev_b32 v6, 7, v1")
    a(f"v_lshl_add_u32 v15, v2, 4, v6")
    a("s_branch L_zjoin")
    a.label("L_z4")
    a(f"s_cmp_ge_u32 s{S.WAVE}, 6")
    a("s_cbranch_scc1 L_zend2")
    rows_load()
    a(f"s_sub_u32 s{S.T0}, s{S.WAVE}, 4")
    a(f"s_lshl1_add_u32 s{S.T1}, s{S.Z}, s{S.T0}")
    a(f"s_lshl_b32 s{S.T1}, s{S.T1}, 5")
    a("v_and_b32 v6, 7, v0")
    a(f"v_lshl_add_u32 v10, v6, 2, s{S.T1}")
    a(f"s_lshl_b32 s{S.T2}, s{S.IDX}, 10")
    a(f"v_add_u32 v7, s{S.T2}, v10")
    a(f"global_load_dword v35, v7, {PXS}")
    a("v_lshlrev_b32 v10, 1, v10")
    a("v_lshrrev_b32 v7, 3, v0")
    a("v_lshlrev_b32 v7, 8, v7")
    a("v_lshl_add_u32 v11, v6, 4, v7")
    a(f"s_mul_i32 s{S.SI0}, s{S.Z}, {PZ}")
    a(f"s_lshl_b32 s{S.T0}, s{S.T0}, 7")
    a(f"s_add_u32 s{S.SI0}, s{S.SI0}, s{S.T0}")
    a(f"s_add_u32 s{S.SI0}, s{S.SI0}, {WS_PART}")
    a(f"s_add_u32 s{S.SI1}, s{S.SI0}, {(o.pc-1)*PARTC}")
    a(f"s_and_b32 s{S.T0}, s{S.GKEY}, 0xffff0000")
    a(f"s_xor_b32 s{S.T1}, s{S.T0}, 0x80000000")
    a(f"s_xor_b32 s{S.T3}, s{S.T0}, 0xffff0000")
    a(f"s_bitcmp1_b32 s{S.T0}, 31")
    a(f"s_cselect_b32 s{S.T0}, s{S.T1}, s{S.T3}")
    a(f"v_mov_b32 v15, s{S.T0}")
    sigmoid(15, 15)
    rnd(15, 15)
    a("s_waitcnt vmcnt(0)")
    gates(False)
    a(f"s_cmp_lg_u32 s{S.WHICH}, 0")
    a(f"s_cselect_b32 s{S.T2}, s{S.T3}, s{S.T2}")
    a(f"s_cselect_b32 s{S.T0}, s{S.T5}, s{S.T0}")
    a(f"s_cselect_b32 s{S.T4}, s{S.T1}, s{S.T4}")
    a(f"v_xor_b32 v{VTAG}, s{S.IDX}, v{VTAG}")
    a(f"v_mov_b32 v36, s{S.T2}")
    a(f"v_mov_b32 v{CO}, s{S.T0}")
    a(f"v_mov_b32 v{CO+1}, s{S.T4}")
    a("v_lshlrev_b32 v34, 16, v35")
    a(f"v_and_b32 v35, {HIM}, v35")
    if o.psleep0:
        a(f"s_sleep {o.psleep0}")
    hold("pp")
    a(f"v_mov_b32 v9, {L_ZF}")
    a.label("L_tz_start")
    stamp(10)
    if o.psleep:
        a("s_branch L_zp1")
    a.label("L_zp")
    if o.psleep:
        a(f"s_sleep {o.psleep}")
        a.label("L_zp1")
    for i in range(7):
        if i and i % 2 == 0:
            a(f"s_add_u32 s{S.T0}, s{S.SI0}, {2048*i}")
        a(f"buffer_load_dwordx4 {V(40+4*i,4)}, v11, {R4(S.RWS)}, s{S.T0 if i >= 2 else S.SI0} offen offset:{2048*(i&1)} sc1")
    a(f"s_add_u32 s{S.SI0}, s{S.SI0}, {PARTC}")
    a(f"s_min_u32 s{S.SI0}, s{S.SI0}, s{S.SI1}")
    if o.stamps:
        a(f"s_add_u32 s{S.RC}, s{S.RC}, 256")
    spin()
    a("s_cbranch_scc1 L_zp_ok")
    for i in range(7):
        a(f"s_waitcnt vmcnt({6-i})")
        a(f"v_bitop3_b32 v{37 if i == 0 else 38 + (i & 1)}, v{41+4*i}, v{43+4*i}, v{VTAG} bitop3:0x7e")
        if i:
            a(f"v_add_f32 v40, v40, v{40+4*i}")
            a(f"v_add_f32 v42, v42, v{42+4*i}")
        if i and i % 2 == 0:
            a("v_or3_b32 v37, v37, v38, v39")
    a("v_cmp_ne_u32 vcc, 0, v37")
    a.nop(1)
    a("s_cbranch_vccnz L_zp")
    a.label("L_zp_ok")
    a("ds_read_b32 v12, v9")
    a(f"ds_read_b64 v[32:33], v10 offset:{L_XG2}")
    a(f"ds_read_b64 v[16:17], v10 offset:{L_XG2+2048}")
    a("v_lshrrev_b32 v11, 1, v10")
    a(f"s_lshl_b32 s{S.T2}, s{S.IDX}, 10")
    a("s_waitcnt vmcnt(0)")
    stamp(11)
    a(f"v_add_f32_dpp v40, v40, v40 row_ror:8 {DPPM}")
    a(f"v_add_f32_dpp v42, v42, v42 row_ror:8 {DPPM}")
    a.nop(1)
    a.nop(1)
    a("v_permlane16_swap_b32 v40, v42")
    a("v_add_f32 v40, v40, v42")
    a("v_mov_b32 v42, v40")
    a.nop(2)
    a("v_permlane32_swap_b32 v40, v42")
    a("v_add_f32 v40, v40, v42")
    a("v_mov_b32 v42, v40")
    a.nop(2)
    a("v_permlane16_swap_b32 v40, v42")
    a("v_cvt_pk_bf16_f32 v41, v40, v42")
    a("v_lshlrev_b32 v40, 16, v41")
    a(f"v_and_b32 v42, {HIM}, v41")
    a("v_mul_f32 v40, v40, v15")
    a("v_mul_f32 v42, v42, v15")
    a("v_cvt_pk_bf16_f32 v41, v40, v42")
    a("v_lshlrev_b32 v40, 16, v41")
    a(f"v_and_b32 v42, {HIM}, v41")
    a("v_add_f32 v40, v40, v34")
    a("v_add_f32 v42, v42, v35")
    a("v_cvt_pk_bf16_f32 v41, v40, v42")
    a("v_lshlrev_b32 v40, 16, v41")
    a(f"v_and_b32 v42, {HIM}, v41")
    a.label("L_zw")
    a("s_waitcnt lgkmcnt(0)")
    a("v_cmp_eq_u32 vcc, 0, v12")
    a(f"v_mul_f32 v32, v{CO}, v32")
    a(f"v_mul_f32 v33, v{CO}, v33")
    a("s_cbranch_vccz L_zw_ok")
    spin()
    a("s_cbranch_scc1 L_zw_ok")
    a("ds_read_b32 v12, v9")
    a(f"ds_read_b64 v[32:33], v10 offset:{L_XG2}")
    a(f"ds_read_b64 v[16:17], v10 offset:{L_XG2+2048}")
    a("s_branch L_zw")
    a.label("L_zw_ok")
    a(f"v_fmac_f32 v32, v{CO+1}, v16")
    a(f"v_fmac_f32 v33, v{CO+1}, v17")
    a("v_fmac_f32 v32, v40, v36")
    a("v_fmac_f32 v33, v42, v36")
    a("v_cvt_pk_bf16_f32 v32, v32, v33")
    a("s_mov_b64 exec, 0xff")
    a(f"buffer_store_dword v32, v11, {R4(S.ROUT)}, s{S.T2} offen{o.zpol}")
    a("s_mov_b64 exec, -1")
    stamp(13)
    if o.stamps:
        a("s_waitcnt vmcnt(0)")
        stamp(15)
    a("s_barrier")
    endprog()

    a.label("L_zsync")
    a(f"v_mov_b32 v9, {L_ZC}")
    a("v_mov_b32 v6, 1")
    a("s_mov_b64 exec, 1")
    a("ds_add_u32 v9, v6")
    a("s_mov_b64 exec, -1")
    a(f"s_cmp_lg_u32 s{S.WAVE}, 0")
    a("s_cbranch_scc1 L_zend")
    a.label("L_zs")
    a("ds_read_b32 v6, v9")
    spin()
    a("s_waitcnt lgkmcnt(0)")
    a("s_cbranch_scc1 L_zs_ok")
    a("v_cmp_ne_u32 vcc, 4, v6")
    a.nop(1)
    a("s_cbranch_vccnz L_zs")
    a.label("L_zs_ok")
    stamp(12)
    a(f"ds_read_b128 {V(UO,4)}, v{VUR0} offset:{L_U2}")
    a(f"ds_read_b128 {V(UO+4,4)}, v{VUR1} offset:{L_U2}")
    a(f"ds_read_b128 {V(UO+8,4)}, v{VUR0} offset:{L_U2+UB}")
    a(f"ds_read_b128 {V(UO+12,4)}, v{VUR1} offset:{L_U2+UB}")
    for k in range(4):
        a(f"s_waitcnt lgkmcnt({3-k})")
        a(f"{MF} {V(PQ+4*k,4)}, {V(UO+4*k,4)}, {V(M2+4*k,4)}, 0")
    a.nop(3)
    for k in range(4):
        if k == 2:
            a.nop(2)
        a(f"ds_write_b128 v15, {V(PQ+4*k,4)} offset:{L_XG2 + 64*(k&1) + 2048*(k>>1)}")
    a(f"v_mov_b32 v9, {L_ZF}")
    a("s_waitcnt lgkmcnt(0)")
    a("ds_write_b32 v9, v9")
    a("s_waitcnt lgkmcnt(0)")
    stamp(13)
    a.label("L_zend")
    endprog()
    a.label("L_zend2")
    if o.hold and o.hold[0] == "end":
        a("s_barrier")
    hold("end")
    if o.ev:
        lo, n, w, st, med = [int(v) for v in o.ev.split(":")]
        a(f"s_cmp_lg_u32 s2, {248 + o.zx}")
        a("s_cbranch_scc1 L_noev")
        a(f"s_cmp_lg_u32 s{S.WAVE}, 7")
        a("s_cbranch_scc1 L_noev")
        a("s_barrier")
        a.label("L_ev0")
        a("s_sleep 4")
        a("s_memrealtime s[100:101]")
        a("s_waitcnt lgkmcnt(0)")
        a(f"s_sub_u32 s100, s100, s{S.ST}")
        a("s_cmp_lt_u32 s100, 750")
        a("s_cbranch_scc1 L_ev0")
        a("v_lshlrev_b32 v6, 11, v0")
        a(f"v_add_u32 v7, {WS_STAMP + 8*128}, v6")
        a(f"global_load_dword v40, v7, s[{S.PWS}:{S.PWS+1}] sc1")
        a(f"v_add_u32 v7, {WS_STAMP + lo*2048 + w*128 + st*8}, v6")
        for q in range(n // 64):
            a(f"global_load_dword v{44+q}, v7, s[{S.PWS}:{S.PWS+1}] sc1")
            a(f"v_add_u32 v7, {64*2048}, v7")
        a("s_waitcnt vmcnt(0)")
        a(f"v_subrev_u32 v40, s{S.ST}, v40")
        a("v_sub_u32 v40, 1000, v40")
        a("v_mov_b32 v42, v40")
        wave_max_key(40)
        a("v_mov_b32 v41, 0")
        for q in range(n // 64):
            a(f"v_subrev_u32 v{44+q}, s{S.ST}, v{44+q}")
            a(f"v_cmp_gt_u32 vcc, 1000, v{44+q}")
            a.nop(2)
            a(f"v_cndmask_b32 v{44+q}, 0, v{44+q}, vcc")
            if med:
                m = (~med & 0xff) * 0x01010101
                a(f"s_mov_b32 exec_lo, {m:#x}")
                a(f"s_mov_b32 exec_hi, {m:#x}")
                a(f"v_mov_b32 v{44+q}, 0")
                a("s_mov_b64 exec, -1")
            a(f"v_max_u32 v41, v41, v{44+q}")
        a("v_mov_b32 v43, v41")
        wave_max_key(41)
        a.nop(2)
        a("v_readlane_b32 s6, v40, 63")
        a("v_readlane_b32 s7, v41, 63")
        a("s_sub_u32 s6, s6, 1000")
        a("s_min_u32 s6, s6, 300")
        a("s_add_u32 s7, s7, s6")
        a("s_mul_i32 s7, s7, 4")
        a("s_add_u32 s7, s7, 900")
        a("s_sub_u32 s7, s7, s6")
        a.label("L_ev1")
        a("s_sleep 1")
        a("s_memrealtime s[100:101]")
        a("s_waitcnt lgkmcnt(0)")
        a(f"s_sub_u32 s100, s100, s{S.ST}")
        a("s_cmp_lt_u32 s100, s7")
        a("s_cbranch_scc1 L_ev1")
        a.label("L_noev")
    endprog()

    a.label("L_zh")
    a(f"v_mov_b32 v9, {L_ZF}")
    a("v_mov_b32 v6, 0")
    a("ds_write2_b32 v9, v6, v6 offset1:1")
    const_d2()
    a(f"s_mov_b32 m0, {L_WV+1024}")
    tag_load()
    a(f"global_load_lds_dwordx4 v{VG16}, s[{S.PGW}:{S.PGW+1}]")
    a("s_waitcnt vmcnt(0)")
    tag_make()
    exp_make()
    poll_setup(WS_KEY + 1024 * RF * CF, RZ, CZ)
    if o.zsleep0:
        a(f"s_sleep {o.zsleep0}")
    stamp(1)
    poll_granules(VG16, 32, sleep=o.zsleep)
    stamp(2)
    wave_max_key(32)
    lds_put(L_KSL, 32, tag=True)
    a("s_barrier")
    a(f"s_lshl_b32 s{S.T0}, s{S.Z}, 2")
    a(f"s_add_u32 s{S.T0}, s{S.T0}, {WS_ALIVE}")
    a("s_mov_b64 exec, 1")
    a(f"buffer_store_dword v{VTAG}, v0, {R4(S.RWS)}, s{S.T0} offen sc1")
    a("s_mov_b64 exec, -1")
    a(f"s_cmp_lg_u32 s{S.Z}, 0")
    a("s_cbranch_scc1 L_zend")
    a("s_mov_b64 exec, 0xffff")
    a("v_lshlrev_b32 v6, 2, v0")
    a(f"s_mov_b32 s{S.T0}, {WS_ALIVE}")
    a("s_waitcnt vmcnt(0)")
    a("s_sleep 24")
    a.label("L_za")
    a(f"buffer_load_dword v7, v6, {R4(S.RWS)}, s{S.T0} offen sc1")
    spin()
    a("s_waitcnt vmcnt(0)")
    a("s_cbranch_scc1 L_za_ok")
    a(f"v_cmp_ne_u32 vcc, v{VTAG}, v7")
    a.nop(1)
    a("s_cbranch_vccnz L_za")
    a.label("L_za_ok")
    a("s_mov_b64 exec, 1")
    a(f"v_add_u32 v9, 1, v{VE}")
    a("s_barrier")
    a(f"buffer_store_dword v9, v6, {R4(S.RWS)}, 0 offen sc1")
    a("s_mov_b64 exec, -1")
    a("s_branch L_zend")

    a.label("L_F")
    if o.only == "A":
        a("s_endpgm")
    WG_, WD_ = 32, 48
    a("v_lshlrev_b32 v5, 4, v0")
    a(f"s_cmp_eq_u32 s{S.WAVE}, 8")
    a("s_cbranch_scc1 L_fh")
    a(f"s_and_b32 s{S.T0}, s{S.FJ}, 3")
    a(f"s_lshr_b32 s{S.T1}, s{S.WAVE}, 1")
    a(f"s_lshl2_add_u32 s{S.L0}, s{S.T0}, s{S.T1}")
    a(f"s_mul_i32 s{S.T2}, s{S.L0}, {32*3584}")
    a(f"s_lshr_b32 s{S.L1}, s{S.FJ}, 2")
    a(f"s_lshl_b32 s{S.T3}, s{S.L1}, 7")
    a(f"s_add_u32 s{S.T2}, s{S.T2}, s{S.T3}")
    a("v_lshrrev_b32 v6, 3, v0")
    a("v_mul_u32_u24 v6, 3584, v6")
    a("v_and_b32 v7, 7, v0")
    a("v_bfe_u32 v8, v0, 4, 1")
    a("v_lshlrev_b32 v8, 2, v8")
    a("v_xor_b32 v4, v7, v8")
    a(f"v_lshl_add_u32 v7, v4, 4, s{S.T2}")
    a("v_add_u32 v3, v6, v7")
    a(f"s_lshl_b32 s{S.T4}, s{S.WAVE}, 12")
    a(f"s_mov_b32 m0, s{S.T4}")
    def w_dma():
        a(f"s_bitcmp1_b32 s{S.WAVE}, 0")
        a("s_waitcnt lgkmcnt(0)")
        a(f"s_cselect_b32 s{S.PWG}, s{S.PWU}, s{S.PWG}")
        a(f"s_cselect_b32 s{S.PWG+1}, s{S.PWU+1}, s{S.PWG+1}")
        if o.fdelay:
            a(f"s_sleep {o.fdelay}")
        for b in range(4):
            if b:
                a(f"s_add_u32 m0, s{S.T4}, {1024*b}")
                a(f"v_add_u32 v3, {8*3584}, v3")
            if o.wthr and b >= o.wthr:
                a(f"s_waitcnt vmcnt({o.wthr - 1})")
            a(f"global_load_lds_dwordx4 v3, s[{S.PWG}:{S.PWG+1}]{o.wpol}")
        ws_setup()
        stamp(1)

    if not o.flate:
        w_dma()
    a("v_bfe_u32 v6, v0, 2, 2")
    a("v_and_b32 v7, 3, v0")
    a("v_lshlrev_b32 v8, 3, v7")
    a("v_lshl_add_u32 v8, v2, 5, v8")
    a("v_and_b32 v9, 2, v6")
    a("v_lshlrev_b32 v9, 5, v9")
    a("v_xor_b32 v9, v9, v8")
    a("v_lshl_add_u32 v9, v6, 7, v9")
    a(f"v_add_u32 v9, s{S.T4}, v9")
    a(f"s_lshl_b32 s{S.T5}, s{S.WAVE}, 8")
    a("v_lshlrev_b32 v11, 2, v0")
    a(f"v_add_u32 v11, {L_RED}, v11")
    a(f"v_add_u32 v12, s{S.T5}, v11")
    a(f"s_lshl1_add_u32 s{S.T1}, s{S.L1}, s{S.T1}")
    a(f"s_lshl_b32 s{S.T2}, s{S.T1}, 15")
    a(f"s_and_b32 s{S.T3}, s{S.WAVE}, 1")
    a(f"s_lshl1_add_u32 s{S.T3}, s{S.T0}, s{S.T3}")
    a(f"s_lshl_b32 s{S.T5}, s{S.T3}, 7")
    a(f"s_add_u32 s{S.T2}, s{S.T2}, s{S.T5}")
    a("v_lshrrev_b32 v6, 3, v0")
    a(f"v_lshl_add_u32 v6, v6, 10, s{S.T2}")
    a("v_lshl_add_u32 v4, v4, 4, v6")
    a("v_lshrrev_b32 v6, 5, v0")
    a(f"v_mul_u32_u24 v13, {PZ}, v6")
    a("v_and_b32 v6, 31, v0")
    a("v_lshl_add_u32 v13, v6, 3, v13")
    a(f"s_mul_i32 s{S.T2}, s{S.T3}, {2*PZ}")
    a(f"s_lshl_b32 s{S.T1}, s{S.T1}, 8")
    a(f"s_add_u32 s{S.T2}, s{S.T2}, s{S.T1}")
    a(f"s_add_u32 s{S.T2}, s{S.T2}, {WS_PART}")
    a(f"s_lshl_b32 s{S.L0}, s{S.L0}, 6")
    a(f"s_lshl_b32 s{S.L1}, s{S.L1}, 12")
    a(f"s_add_u32 s{S.PO}, s{S.L1}, {WS_XCH}")
    a(f"s_add_u32 s{S.POL}, s{S.PO}, {(o.xc-1)*XCHC}")
    a(f"s_lshl_b32 s{S.T1}, s{S.T0}, 10")
    a(f"s_add_u32 s{S.L1}, s{S.PO}, s{S.T1}")
    a(f"v_mov_b32 v14, {L_FKEY}")
    a(f"s_lshr_b32 s{S.T1}, s{S.WAVE}, 1")
    a(f"s_lshl_b32 s{S.T1}, s{S.T1}, 9")
    a(f"v_lshl_add_u32 v15, v6, 4, s{S.T1}")
    a("v_lshrrev_b32 v6, 5, v0")
    a("v_lshl_add_u32 v15, v6, 10, v15")
    a(f"s_mov_b32 s{S.PO0}, s{S.PO}")
    a(f"s_mov_b32 s{S.L10}, s{S.L1}")
    a(f"s_mov_b32 s{S.T20}, s{S.T2}")
    a(f"s_mov_b32 s{S.FIN}, 0")

    if o.flate:
        w_dma()

    def wd_dma():
        l = a.L("nowd")
        a(f"s_cmp_ge_u32 s{S.WAVE}, 4")
        a(f"s_cbranch_scc1 {l}")
        for b in range(4):
            a(f"s_add_u32 m0, s{S.T4}, {L_WD + 1024*b}")
            if b:
                a("v_add_u32 v4, 0x2000, v4")
            else:
                a.nop(1)
            a(f"global_load_lds_dwordx4 v4, s[{S.PWD}:{S.PWD+1}]{o.wdpol}")
        a.label(l)

    if o.wdpos == 0:
        wd_dma()
    if o.wdpos == 4:
        a("s_barrier")
        a(f"s_cmp_ge_u32 s{S.WAVE}, 4")
        a("s_cbranch_scc1 L_nowd4")
        for b in range(4):
            a(f"v_add_u32 v6, {0x2000*b}, v4")
            a(f"global_load_dwordx4 {V(80+4*b,4)}, v6, s[{S.PWD}:{S.PWD+1}]")
        a("s_waitcnt vmcnt(4)")
        a("s_branch L_nowd5")
        a.label("L_nowd4")
        a("s_waitcnt vmcnt(0)")
        a.label("L_nowd5")
    else:
        a("s_waitcnt vmcnt(0)")
    stamp(2)
    if o.fw0:
        a("s_barrier")
    if o.wdpos == 1:
        wd_dma()
    if o.xpre:
        for i in range(2):
            a(f"buffer_load_dwordx4 {V(64+4*i,4)}, v15, {R4(S.RWS)}, s{S.PO} offen offset:{2048*i} sc1")
    for k in range(8):
        a(f"ds_read_b64_tr_b16 {V(WG_+2*k,2)}, v9 offset:{L_W + k*512}")
    if o.ftouch:
        touch("L_tf", o.ftouch, 0, 8)
    a("s_waitcnt lgkmcnt(0)")
    a("s_barrier")
    a.label("L_tf_start")
    a("ds_read_b64 v[26:27], v14")
    a("s_waitcnt lgkmcnt(0)")
    a(f"v_readfirstlane_b32 s{S.FKEY}, v26")
    a.label("L_redo")
    a(f"s_andn2_b32 s{S.T0}, 2047, s{S.FKEY}")
    a(f"s_lshl_b32 s{S.T1}, s{S.T0}, 10")
    a(f"s_add_u32 s{S.T1}, s{S.T1}, s{S.L0}")
    a(f"s_load_dwordx16 s[{S.XS}:{S.XS+15}], {PXS}, s{S.T1}")
    stamp(5)
    a(f"v_xor_b32 v{VTAG}, s{S.T0}, v27")
    a(f"v_xor_b32 v29, s{S.T0}, v27")
    for r in (16, 17, 24, 25):
        a(f"v_mov_b32 v{r}, 0")
    a(f"s_mov_b32 s{S.PO}, s{S.PO0}")
    a(f"s_mov_b32 s{S.L1}, s{S.L10}")
    a(f"s_mov_b32 s{S.T2}, s{S.T20}")
    a(f"s_mov_b32 s{S.KM}, 0")
    a("s_waitcnt lgkmcnt(0)")
    for i in range(16):
        a(f"v_dot2c_f32_bf16 v{16+(i&1)}, s{S.XS+i}, v{WG_+i}")
    stamp(6)
    a.nop(3)
    a("v_add_f32 v16, v16, v17")
    a("ds_write_b32 v12, v16")
    a("s_waitcnt lgkmcnt(0)")
    a("s_barrier")
    a(f"s_lshl_b32 s{S.T0}, s{S.WAVE}, 4")
    a(f"s_lshl_b64 s[{S.EX}:{S.EX+1}], 0xffff, s{S.T0}")
    for i, (p, q) in enumerate(((0, 2), (4, 6), (1, 3), (5, 7))):
        a(f"ds_read2st64_b32 v[{16+2*i}:{17+2*i}], v11 offset0:{p} offset1:{q}")
    a("s_waitcnt lgkmcnt(2)")
    a("v_add_f32 v16, v16, v17")
    a("v_add_f32 v18, v18, v19")
    a("s_waitcnt lgkmcnt(0)")
    a("v_add_f32 v20, v20, v21")
    a("v_add_f32 v22, v22, v23")
    a("v_add_f32 v28, v16, v18")
    a(f"s_mov_b64 exec, s[{S.EX}:{S.EX+1}]")
    a("v_add_f32 v30, v20, v22")
    a(f"s_cmp_ge_u32 s{S.WAVE}, 4")
    a("s_cbranch_scc1 L_f5")
    a(f"buffer_store_dwordx4 v[28:31], v5, {R4(S.RWS)}, s{S.L1} offen{'' if o.xl2 else ' sc1'}")
    a("s_mov_b64 exec, -1")
    stamp(7)
    a("s_waitcnt vmcnt(1)")
    if o.wdpos == 4:
        a(f"v_add_u32 v6, s{S.T4}, v5")
        for b in range(4):
            a(f"ds_write_b128 v6, {V(80+4*b,4)} offset:{L_WD + 1024*b}")
        a("s_waitcnt lgkmcnt(0)")
    for k in range(8):
        a(f"ds_read_b64_tr_b16 {V(WD_+2*k,2)}, v9 offset:{L_WD + k*512}")
    if o.xsleep0:
        a(f"s_sleep {o.xsleep0}")
    stamp(8)
    a.label("L_fx")
    for i in range(2):
        a(f"buffer_load_dwordx4 {V(64+4*i,4)}, v15, {R4(S.RWS)}, s{S.PO} offen offset:{2048*i} sc1")
    if o.xl2:
        a(f"s_add_u32 s{S.KM}, s{S.KM}, 1")
        a(f"s_cmp_ge_u32 s{S.KM}, {o.xl2}")
        a(f"s_cselect_b32 s{S.T0}, {XCHC}, 0")
        a(f"s_add_u32 s{S.PO}, s{S.PO}, s{S.T0}")
    else:
        a(f"s_add_u32 s{S.PO}, s{S.PO}, {XCHC}")
    a(f"s_min_u32 s{S.PO}, s{S.PO}, s{S.POL}")
    if o.stamps:
        a(f"s_add_u32 s{S.RC}, s{S.RC}, 1")
    spin()
    a("s_cbranch_scc1 L_fx_ok")
    a("s_waitcnt vmcnt(1)")
    a(f"v_bitop3_b32 v20, v65, v67, v{VTAG} bitop3:0x7e")
    a("s_waitcnt vmcnt(0)")
    a("v_add_f32 v16, v64, v68")
    a("v_add_f32 v18, v66, v70")
    a(f"v_bitop3_b32 v21, v69, v71, v{VTAG} bitop3:0x7e")
    a("v_or_b32 v20, v20, v21")
    a("v_cmp_ne_u32 vcc, 0, v20")
    a("v_permlane32_swap_b32 v16, v18")
    a("s_cbranch_vccnz L_fxr")
    a.label("L_fx_ok")
    stamp(9)
    a("v_add_f32 v16, v16, v18")
    rnd(16, 16)
    a("v_mov_b32 v18, v16")
    sigmoid(17, 16)
    a("v_permlane32_swap_b32 v16, v18")
    a("v_mul_f32 v17, v17, v16")
    rnd(17, 17)
    a("v_mul_f32 v17, v17, v18")
    a.nop(2)
    a(f"v_mov_b32_dpp v18, v17 quad_perm:[1,0,3,2] {DPPM}")
    a("v_cvt_pk_bf16_f32 v17, v17, v18")
    a.nop(1)
    for i in range(16):
        a(f"v_readlane_b32 s{S.XS+i}, v17, {2*i}")
    a("s_waitcnt lgkmcnt(0)")
    for i in range(16):
        a(f"v_dot2c_f32_bf16 v{24+(i&1)}, s{S.XS+i}, v{WD_+i}")
    a.nop(3)
    a("v_add_f32 v30, v24, v25")
    for c in range(o.pc):
        if c:
            a(f"s_add_u32 s{S.T2}, s{S.T2}, {PARTC}")
        a(f"buffer_store_dwordx2 v[30:31], v13, {R4(S.RWS)}, s{S.T2} offen sc1")
    stamp(10)
    a.label("L_fend")
    a(f"s_cmp_lg_u32 s{S.FIN}, 0")
    a("s_cbranch_scc1 L_fexit")
    a("s_barrier")
    a("ds_read_b32 v26, v14 offset:8")
    a(f"s_mov_b32 s{S.FIN}, 1")
    a("s_waitcnt lgkmcnt(0)")
    a(f"v_readfirstlane_b32 s{S.T0}, v26")
    a(f"s_cmp_eq_u32 s{S.T0}, s{S.FKEY}")
    a(f"s_mov_b32 s{S.FKEY}, s{S.T0}")
    if o.stamps:
        a(f"s_cselect_b32 s{S.T1}, 0, 64")
        a(f"s_add_u32 s{S.RC}, s{S.RC}, s{S.T1}")
        a(f"s_cmp_eq_u32 s{S.T1}, 0")
    a("s_cbranch_scc0 L_redo")
    a.label("L_fexit")
    endprog()
    a.label("L_f5")
    for c in range(1, o.xc):
        a(f"s_add_u32 s{S.L1}, s{S.L1}, {XCHC}")
        a(f"buffer_store_dwordx4 v[28:31], v5, {R4(S.RWS)}, s{S.L1} offen sc1")
    a("s_mov_b64 exec, -1")
    a("s_branch L_fend")
    a.label("L_fxr")
    a("ds_read_b32 v26, v14 offset:8")
    a("s_waitcnt lgkmcnt(0)")
    a(f"v_readfirstlane_b32 s{S.T0}, v26")
    a(f"s_cmp_eq_u32 s{S.T0}, 0")
    a("s_cbranch_scc1 L_fx")
    a(f"s_cmp_eq_u32 s{S.T0}, s{S.FKEY}")
    a("s_cbranch_scc1 L_fx")
    a("s_branch L_fend")

    a.label("L_fh")
    a("s_waitcnt lgkmcnt(0)")
    if o.fesleep:
        a(f"s_sleep {o.fesleep}")
    if o.esm:
        a(f"s_load_dword s{S.T5}, s[{S.PWS}:{S.PWS+1}], 0")
        a(f"s_mov_b32 s{S.KM}, 0x9E3779B1")
    else:
        tag_load()
    ws_setup()
    a(f"v_mov_b32 v14, {L_FKEY}")
    a("v_mov_b32 v6, 0")
    a("ds_write_b32 v14, v6 offset:8")
    if o.spec:
        poll_setup(WS_KEY + 1024 * (RF * CF + RZ * CZ + R2 * C2), 8, 1)
        a(f"s_sleep {o.spec}")
        if o.esm:
            a("s_waitcnt lgkmcnt(0)")
            a(f"v_mov_b32 v{VE}, s{S.T5}")
        else:
            a("s_waitcnt vmcnt(0)")
        tag_make()
        stamp(1)
        a(f"buffer_load_dwordx4 v[20:23], v5, {R4(S.RWS)}, s{S.PO} offen sc1")
        poll_setup(WS_KEY, RF, CF)
        a("s_waitcnt vmcnt(0)")
        stamp(2)
        a(f"v_cmp_ne_u32 vcc, v{VTAG}, v21")
        a(f"v_cmp_ne_u32 s[{S.EX}:{S.EX+1}], v{VTAG}, v23")
        a("s_mov_b64 exec, vcc")
        a("v_mov_b32 v20, 0")
        a(f"s_mov_b64 exec, s[{S.EX}:{S.EX+1}]")
        a("v_mov_b32 v22, 0")
        a("s_mov_b64 exec, -1")
        a(f"s_or_b64 s[{S.EY}:{S.EY+1}], vcc, s[{S.EX}:{S.EX+1}]")
        wave_max_key(20)
        lds_put(L_FKEY, 20, tag=True)
        a("s_barrier")
        a(f"s_cmp_eq_u64 s[{S.EY}:{S.EY+1}], 0")
        a("s_cbranch_scc1 L_fh2")
        if o.fsleep0:
            a(f"s_sleep {o.fsleep0}")
        stamp(3)
        poll_granules(5, 20, sleep=o.fsleep)
        stamp(4)
        wave_max_key(20)
        a.label("L_fh2")
        lds_put(L_FKEY + 8, 20)
    else:
        poll_setup(WS_KEY, RF, CF)
        if o.fsleep0:
            a(f"s_sleep {o.fsleep0}")
        if o.esm:
            a("s_waitcnt lgkmcnt(0)")
            a(f"v_mov_b32 v{VE}, s{S.T5}")
        else:
            a("s_waitcnt vmcnt(0)")
        tag_make()
        stamp(3)
        poll_granules(5, 20, sleep=o.fsleep, bar=o.wdpos == 4)
        stamp(4)
        wave_max_key(20)
        lds_put(L_FKEY, 20, tag=True)
        a("s_barrier")
        lds_put(L_FKEY + 8, 20)
    a("s_barrier")
    endprog()
    a.label("L_end")
    a("s_endpgm")
    return name


def main():
    ap = argparse.ArgumentParser()
    ap.add_argument("-o", required=True)
    for k, d in dict(stamps=0, pc=1, xc=2, zsleep=8, zsleep0=32, psleep=0, psleep0=20, rsleep=3, ackwait=0, hipre=0, tlate=1,
                     mode=0, k2ack=1, k2sleep0=6, zk2sleep0=0, k2sleep=5, fbar=0, cpf=0, cpf0=1, esm=0, zx=0, htouch=0, probe=-1, wsoff=0, flate=1, b1a=1, skew=0, gate=8, lds=0, nsgpr=72, prio=1, stag=2, spec=0, b0=2, wthr=0, xpre=0, atouch=10, ftouch=8, xl2=8, npre=3, gfirst=0, isleep0=0, zisleep0=16, b3=1, ztouch=8, zstep=128, touch=0, wdpos=0, wpf=2, fesleep=0, fw0=0, xack=0, fdelay=0, xsleep0=3, fsleep0=46, fsleep=4, spin=17).items():
        ap.add_argument("--" + k, type=int, default=d)
    for k in ("wpol", "wdpol", "xpol", "outpol", "zpol", "only"):
        ap.add_argument("--" + k, default="nt" if k == "outpol" else "")
    ap.add_argument("--mf", default="8,2")
    ap.add_argument("--mz", default="1,3")
    ap.add_argument("--m2", default="8,2")
    ap.add_argument("--hold", default="")
    ap.add_argument("--ev", default="")
    o = ap.parse_args()
    if o.hold:
        o.hold = o.hold.split(":")
    for k in ("mf", "mz", "m2"):
        setattr(o, k, [int(v) for v in getattr(o, k).split(",")])
    for k in ("wpol", "wdpol", "xpol", "outpol", "zpol"):
        setattr(o, k, (" " + getattr(o, k)) if getattr(o, k) not in ("", "def") else "")
    a = Asm()
    name = gen(a, o)
    reg = []
    if o.touch:
        reg.append(("L_ta_start", "L_ta_end", "L_ta", "L_taback", o.touch))
    if o.htouch:
        reg.append(("L_ta_end", "L_zjoin", "L_th", "L_thback", o.htouch))
    if o.atouch:
        reg.append(("L_zjoin", "L_tb_end", "L_tb", "L_tbback", o.atouch))
    if o.ztouch:
        reg.append(("L_tz_start", "L_zend", "L_tz", "L_tzback", o.ztouch))
    if o.ftouch:
        reg.append(("L_tf_start", "L_fend", "L_tf", "L_tfback", o.ftouch))
    if reg:
        insert_stubs(a, reg, step=o.zstep)
    finish(a, name, NVGPR, 102 if (o.stamps or o.hold or o.probe >= 0) else o.nsgpr, NWG, 576, o.lds or LDS_BYTES, o.o)


main()
```
